```python
import torch

def _softmax(x, axis=-1):
    return torch.softmax(x, dim=axis)

def _gelu(x):
    return torch.nn.functional.gelu(x, approximate='tanh')

def _silu(x):
    return torch.nn.functional.silu(x)

def _sigmoid(x):
    return torch.sigmoid(x)

def _layernorm(x, axis=-1, eps=1e-05):
    m = x.mean(dim=axis, keepdim=True)
    v = x.var(dim=axis, keepdim=True, unbiased=False)
    return (x - m) / torch.sqrt(v + eps)

def _scatter_add(tgt, idx, src, axis=0):
    return tgt.clone().index_add_(axis, idx, src)

def _segment_sum(src, seg, n):
    out = torch.zeros((n,) + src.shape[1:], dtype=src.dtype)
    return out.index_add_(0, seg, src)

def _pad(x, pw):
    flat = tuple((v for pair in reversed(pw) for v in pair))
    return torch.nn.functional.pad(x, flat)
kernel_name = 'parallel_sum__memory_aug_recurrent_mem_tr__moe_arch_mod__prompt'

def setup_inputs():

    _w = lambda a: (lambda t: t.to(torch.bfloat16) if t.is_floating_point() else t)(torch.as_tensor(a))

    def _A_setup():
        B, S, Dm = (1, 2048, 448)
        H, Dh = (16, 256)
        M, seg = (8, 32)
        seg = min(seg, S)
        S = S // seg * seg
        return {'x': _w((lambda *s: torch.randn(*s, dtype=torch.bfloat16) * 0.05)(B, S, Dm)), 'mem0': _w((lambda *s: torch.randn(*s, dtype=torch.bfloat16) * 1.6)(B, M, Dm)), 'Wq': _w((lambda *s: torch.randn(*s, dtype=torch.bfloat16) * 0.8)(Dm, H, Dh) * Dm ** (-0.5)), 'Wk': _w((lambda *s: torch.randn(*s, dtype=torch.bfloat16) * 0.8)(Dm, H, Dh) * Dm ** (-0.5)), 'Wv': _w((lambda *s: torch.randn(*s, dtype=torch.bfloat16) * 1.6)(Dm, H, Dh) * Dm ** (-0.5)), 'Wo': _w((lambda *s: torch.randn(*s, dtype=torch.bfloat16) * 1.6)(H, Dh, Dm) * (H * Dh) ** (-0.5)), 'seg_len': seg}
    _A_in = _A_setup()

    def _B_setup():
        B, S, D, F, C = (1, 2048, 448, 1792, 8)
        return {'x': _w((lambda *s: torch.randn(*s, dtype=torch.bfloat16) * 0.05)(B, S, D)), 'w_r': _w((lambda *s: torch.randn(*s, dtype=torch.bfloat16) * 0.05)(D)), 'w_gate': _w((lambda *s: torch.randn(*s, dtype=torch.bfloat16) * 0.05)(D, F)), 'w_up': _w((lambda *s: torch.randn(*s, dtype=torch.bfloat16) * 0.05)(D, F)), 'w_down': _w((lambda *s: torch.randn(*s, dtype=torch.bfloat16) * 0.05)(F, D))}
    _B_in = _B_setup()
    return {'A_x': _A_in['x'], 'A_mem0': _A_in['mem0'], 'A_Wq': _A_in['Wq'], 'A_Wk': _A_in['Wk'], 'A_Wv': _A_in['Wv'], 'A_Wo': _A_in['Wo'], 'A_seg_len': _A_in['seg_len'], 'B_x': _B_in['x'], 'B_w_r': _B_in['w_r'], 'B_w_gate': _B_in['w_gate'], 'B_w_up': _B_in['w_up'], 'B_w_down': _B_in['w_down']}

def reference(A_x, A_mem0, A_Wq, A_Wk, A_Wv, A_Wo, A_seg_len, B_x, B_w_r, B_w_gate, B_w_up, B_w_down):

    def _A_ref(x, mem0, Wq, Wk, Wv, Wo, seg_len):
        B, S, Dm = x.shape
        H, Dh = (Wq.shape[1], Wq.shape[2])
        M = mem0.shape[1]
        scale = Dh ** (-0.5)
        n_seg = S // seg_len
        L = M + seg_len
        idx = torch.arange(L)
        mask = (idx[:, None] < M) | (idx[:, None] >= idx[None, :])
        mem = mem0
        outs = []
        for s in range(n_seg):
            xs = x[:, s * seg_len:(s + 1) * seg_len, :].clone()
            h = torch.concatenate([mem, xs], axis=1)
            q = torch.einsum('btd,dhe->bhte', h, Wq)
            k = torch.einsum('btd,dhe->bhte', h, Wk)
            v = torch.einsum('btd,dhe->bhte', h, Wv)
            scores = torch.einsum('bhqe,bhke->bhqk', q, k) * scale
            scores = torch.where(mask[None, None], scores, -1000000000.0)
            p = _softmax(scores, axis=-1)
            o = torch.einsum('bhqk,bhke->bhqe', p, v)
            o = torch.einsum('bhte,hed->btd', o, Wo)
            mem = o[:, :M, :].clone()
            outs.append(o[:, M:, :])
        return torch.concatenate(outs, axis=1)

    def _B_ref(x, w_r, w_gate, w_up, w_down):
        B, S, D = x.shape
        C = 8
        r = x @ w_r
        idx = torch.argsort(-r, axis=-1)[:, :C]
        idx_e = (lambda x, n, axis: torch.repeat_interleave(x, n, dim=axis))(idx.reshape(B, C, 1), D, axis=2)
        x_sel = (lambda x, i, axis: torch.take_along_dim(x, i, dim=axis))(x, idx_e, axis=1)
        g = _silu(x_sel @ w_gate)
        u = x_sel @ w_up
        y = g * u @ w_down
        r_sel = _sigmoid((lambda x, i, axis: torch.take_along_dim(x, i, dim=axis))(r, idx, axis=1))
        y = y * r_sel.reshape(B, C, 1)
        b_off = (torch.arange(B) * S).reshape(B, 1)
        flat_idx = (idx + b_off).reshape(B * C)
        zero = (x * 0.0).reshape(B * S, D)
        upd = _scatter_add(zero, flat_idx, y.reshape(B * C, D), axis=0)
        return x + upd.reshape(B, S, D)
    x = A_x
    xn = _layernorm(x, axis=-1)
    return x + _A_ref(xn, A_mem0, A_Wq, A_Wk, A_Wv, A_Wo, A_seg_len) + _B_ref(xn, B_w_r, B_w_gate, B_w_up, B_w_down)
```

```python
WTA   = 0
WT_SZ = 16*28*14*1024
WTB   = WTA + WT_SZ
XNF   = WTB + WT_SZ
XN_SZ = 128*14*1024
XNS   = XNF + XN_SZ
XNR   = XNS + XN_SZ
UF    = XNR + XN_SZ
UF_SEG = 16*28*1024
UM    = UF + 64*UF_SEG
UM_SEG = 8*28*1024
MEM   = UM + 64*UM_SEG
MEM_S = 7168
PB    = MEM + 64*MEM_S
PB_S  = 10240
PT    = PB + 64*PB_S
PT_SEG = 48*1024
RR    = PT + 64*PT_SEG
HB    = RR + 8192
UPD   = HB + 32768
IDX   = UPD + 16384
FLG   = IDX + 4096
FLG_SZ = 128*256
STAMP = FLG + FLG_SZ
WS_USED = STAMP + (1<<20)
WS_SIZE = 268435456

def sigma(ks, g, jj):
    return 32*ks + 16*(g>>1) + 4*(jj>>1) + 2*(g&1) + (jj&1)
def nrow(nt, c):
    p, T = nt>>1, nt&1
    return sigma(p, c>>2, 4*T + (c&3))
```

```python
import re

class Asm:
    def __init__(self):
        self.lines = []
        self.uid = 0
    def __call__(self, s):
        for l in s.split('\n'):
            l = l.strip()
            if l: self.lines.append(l)
    def label(self, name): self.lines.append(name + ':')
    def newlabel(self, base='L'):
        self.uid += 1
        return f'{base}_{self.uid}'
    def nop(self, n):
        while n > 0:
            k = min(n, 16)
            self.lines.append(f's_nop {k-1}')
            n -= k
    def text(self):
        out = []
        for l in self.lines:
            if l.endswith(':') or l.startswith('.') or l.startswith(';'):
                out.append(l)
            else:
                out.append('    ' + l)
        return '\n'.join(out) + '\n'

def vr(b, n=1):
    return f'v{b}' if n == 1 else f'v[{b}:{b+n-1}]'
def ar(b, n=1):
    return f'a{b}' if n == 1 else f'a[{b}:{b+n-1}]'
def sr(b, n=1):
    return f's{b}' if n == 1 else f's[{b}:{b+n-1}]'
def xr(b, n=1):
    return vr(b, n) if b < 256 else ar(b - 256, n)

_reg = re.compile(r'\b([vas])(?:(\d+)\b|\[(\d+):(\d+)\])')
def regs_of(tok):
    out = set()
    for m in _reg.finditer(tok):
        k = m.group(1)
        if m.group(2) is not None: out.add((k, int(m.group(2))))
        else:
            for i in range(int(m.group(3)), int(m.group(4)) + 1): out.add((k, i))
    if re.search(r'\bvcc\b', tok): out.add(('s', 'vcc'))
    if re.search(r'\bexec\b', tok): out.add(('s', 'exec'))
    if re.search(r'\bm0\b', tok): out.add(('s', 'm0'))
    return out

TRANS = ('v_exp_f32', 'v_log_f32', 'v_rcp_f32', 'v_rsq_f32', 'v_sqrt_f32', 'v_sin_f32', 'v_cos_f32')

class I:
    pass

def parse(line):
    line = line.split(';')[0].strip()
    if not line or line.endswith(':') or line.startswith('.'): return None
    p = line.split(None, 1)
    op = p[0]; rest = p[1] if len(p) > 1 else ''
    ops = [o.strip() for o in re.split(r',(?![^\[]*\])', rest)] if rest else []
    i = I(); i.op = op; i.line = line; i.ops = ops
    i.defs = set(); i.uses = set(); i.srcc = set(); i.ab = set()
    i.states = 1
    i.cls = 'other'
    if op == 's_nop':
        i.states = int(ops[0], 0) + 1; i.cls = 'nop'; return i
    if op.startswith('v_mfma') or op.startswith('v_smfmac'):
        i.cls = 'mfma'
        i.defs = regs_of(ops[0])
        i.ab = regs_of(ops[1]) | regs_of(ops[2])
        if op.startswith('v_smfmac'):
            i.srcc = regs_of(ops[0]); i.ab |= regs_of(ops[3].split()[0])
        else:
            i.srcc = regs_of(ops[3].split()[0])
        i.uses = i.ab | i.srcc
        i.passes = 8 if '32x32' in op else 4
        return i
    if op.startswith('v_'):
        i.cls = 'valu'
        i.trans = op.replace('_e32', '').replace('_e64', '') in TRANS
        i.dpp = ('_dpp' in op) or ('row_' in rest) or ('quad_perm' in rest)
        i.perm = op.startswith('v_permlane')
        if op.startswith('v_cmp'):
            i.defs = regs_of(ops[0]); i.uses = set().union(*[regs_of(o) for o in ops[1:]])
            if op.startswith('v_cmpx'): i.defs.add(('s', 'exec'))
        elif i.perm:
            i.defs = regs_of(ops[0]) | regs_of(ops[1]); i.uses = set(i.defs)
        elif op.startswith(('v_add_co', 'v_sub_co', 'v_addc_co', 'v_subb_co', 'v_div_scale', 'v_mad_u64')):
            i.defs = regs_of(ops[0]) | regs_of(ops[1]); i.uses = set().union(*[regs_of(o) for o in ops[2:]])
        else:
            i.defs = regs_of(ops[0]); i.uses = set().union(*[regs_of(o) for o in ops[1:]]) if len(ops) > 1 else set()
            if op.startswith(('v_fmac', 'v_dot2c', 'v_pk_fmac', 'v_writelane')) or i.dpp: i.uses |= regs_of(ops[0])
            if op.startswith('v_cndmask') and len(ops) == 3: i.uses.add(('s', 'vcc'))
            if op.startswith('v_div_fmas'): i.uses.add(('s', 'vcc'))
        i.rdlane = op.startswith(('v_readlane', 'v_readfirstlane'))
        return i
    if op.startswith('ds_'):
        i.cls = 'ds'
        if op.startswith(('ds_read', 'ds_bpermute', 'ds_permute', 'ds_swizzle')) or '_rtn' in op:
            i.defs = regs_of(ops[0]); i.uses = set().union(*[regs_of(o.split()[0]) for o in ops[1:]])
        else:
            i.uses = set().union(*[regs_of(o.split()[0]) for o in ops])
        return i
    if op.startswith(('buffer_', 'global_')):
        i.cls = 'vmem'
        i.lds = bool(re.search(r'\blds\b', rest)) or '_lds_' in op
        allr = set().union(*[regs_of(o) for o in ops]) if ops else set()
        i.wide_store = False
        if 'load' in op and not i.lds:
            i.defs = regs_of(ops[0]); i.uses = set().union(*[regs_of(o) for o in ops[1:]])
        elif 'atomic' in op and 'sc0' in rest:
            i.defs = regs_of(ops[0]); i.uses = allr
        else:
            i.uses = allr
            if 'store' in op and ('x4' in op or 'x3' in op):
                i.wide_store = True
                i.sdata = regs_of(ops[0]) if op.startswith('buffer_') else regs_of(ops[1])
        if i.lds: i.uses.add(('s', 'm0'))
        return i
    if op.startswith('s_'):
        i.cls = 'salu'
        if op.startswith(('s_cmp', 's_cbranch', 's_branch', 's_waitcnt', 's_barrier', 's_endpgm', 's_sleep', 's_setprio', 's_bitcmp')):
            i.uses = set().union(*[regs_of(o) for o in ops]) if ops else set()
        else:
            i.defs = regs_of(ops[0]) if ops else set()
            i.uses = set().union(*[regs_of(o) for o in ops[1:]]) if len(ops) > 1 else set()
            if 'saveexec' in op: i.defs.add(('s', 'exec'))
        return i
    return i

def need(p, c):
    n = 0
    vdefs = {r for r in p.defs if r[0] in 'va'}
    sdefs = {r for r in p.defs if r[0] == 's'}
    if p.cls == 'valu':
        if c.cls == 'mfma' and (vdefs & c.uses): n = max(n, 2)
        if c.cls == 'mfma' and ('s', 'exec') in sdefs: n = max(n, 4)
        if c.cls == 'valu':
            if p.trans and not c.trans and (vdefs & c.uses): n = max(n, 1)
            if c.dpp and (vdefs & c.uses): n = max(n, 2)
            if c.dpp and ('s', 'exec') in sdefs: n = max(n, 5)
            if c.perm and (vdefs & c.uses): n = max(n, 2)
            if c.rdlane and (vdefs & c.uses): n = max(n, 1)
            if sdefs & c.uses: n = max(n, 2)
            if ('s','exec') in sdefs and (c.rdlane or c.perm): n = max(n, 4)
        if c.cls == 'vmem' and (sdefs & c.uses): n = max(n, 5)
        if c.cls == 'salu' and (sdefs & c.uses) and not c.op.startswith('s_cbranch'): n = max(n, 1)
    if p.cls == 'mfma':
        big = p.passes == 8
        d = p.defs
        if c.cls == 'mfma':
            if d & c.ab: n = max(n, 12 if big else 8)
            if d & c.srcc:
                if not (c.srcc == d and c.passes == p.passes): n = max(n, 10 if big else 6)
            elif d & c.defs: n = max(n, 10 if big else 6)
        elif c.cls in ('valu', 'ds', 'vmem'):
            if d & (c.uses | c.defs): n = max(n, 12 if big else 8)
            if c.cls == 'valu' and (p.srcc & c.defs): n = max(n, 7 if big else 3)
    if p.cls == 'vmem' and getattr(p, 'wide_store', False):
        if c.cls in ('valu', 'mfma', 'ds', 'vmem') and (p.sdata & c.defs): n = max(n, 2)
    if p.cls == 'salu' and ('s', 'm0') in p.defs and c.cls == 'vmem' and c.lds: n = max(n, 1)
    return n

def check(lines, name=''):
    ins = []; labels = {}
    for l in lines:
        t = l.split(';')[0].strip()
        if t.endswith(':'): labels[t[:-1]] = len(ins); continue
        i = parse(l)
        if i is not None: ins.append(i)
    errs = []
    def succ(k):
        i = ins[k]
        if i.op == 's_endpgm': return []
        if i.op == 's_branch': return [labels[i.ops[0]]] if i.ops[0] in labels else []
        if i.op.startswith('s_cbranch'):
            r = [k + 1]
            if i.ops[0] in labels: r.append(labels[i.ops[0]])
            return r
        if i.op.startswith(('s_setpc', 's_swappc')): return []
        return [k + 1]
    for k, p in enumerate(ins):
        if p.cls not in ('valu', 'mfma', 'vmem', 'salu'): continue
        stack = [(s, 0) for s in succ(k)]
        seen = {}
        while stack:
            j, dist = stack.pop()
            if j >= len(ins) or dist >= 13: continue
            if seen.get(j, 99) <= dist: continue
            seen[j] = dist
            c = ins[j]
            nd = need(p, c)
            if nd > dist: errs.append(f'{name}: need {nd} have {dist}: [{p.line}] -> [{c.line}]')
            for s in succ(j): stack.append((s, dist + (3 if (p.cls == 'mfma' and c.cls == 'mfma') else c.states)))
    return errs
```

```python
from asmlib import *
from layout import *

class K(Asm):
    def __init__(self):
        super().__init__()
        self.dsq = []; self.cold = []
    def ds(self, text, tag=None):
        self(text); self.dsq.append(tag)
    def wds(self, tag):
        if tag not in self.dsq: return
        idx = max(i for i, t in enumerate(self.dsq) if t == tag)
        n = len(self.dsq) - 1 - idx
        assert n <= 15
        self(f's_waitcnt lgkmcnt({n})')
        self.dsq = self.dsq[idx+1:]
    def wds0(self):
        self('s_waitcnt lgkmcnt(0)'); self.dsq = []
    def flush_cold(self):
        for l in self.cold: self(l)
        self.cold = []

SWS, SDBG = 4, 8
sROLE, sWAVE, sSTEP, sMODE, sM, sP, sX, sUM, sCNT = 12, 13, 14, 15, 16, 17, 18, 19, 20
sT0, sT1, sT2 = 21, 22, 23
sMASK8 = 24
sID = 26
sST = 28
sTM = 30
POLL_LIMIT = 400000
NSTEP = 63
OPT = dict(sa='late', sb='early', um='sc1', uf='sc1', sleepA=0, sleepB=0, stampmask=15, rt=0, barA=1, barB=1, prefP=0, pfd=2, pfs=128, upos='early', ud=1, apf=1, nb=7, stag=2, wpos=1, rsp=1, s1pos=0, upre=8, uneed=16)

def stamp(k, idx, on):
    if not on or not (OPT['stampmask'] >> idx) & 1: return
    k(('s_memrealtime' if OPT['rt'] else 's_memtime') + f' s[{sTM}:{sTM+1}]')
    k.wds0()
    k(f'v_mov_b32 v0, s{sTM}')
    k(f'buffer_store_dword v0, off, s[{SWS}:{SWS+3}], s{sST} offset:{idx*4}')

def publish(k, text):
    ls, ld = k.newlabel('Lslow'), k.newlabel('Lpub')
    k(f's_cbranch_scc0 {ls}')
    k(text)
    k.label(ld)
    k.cold += [ls + ':', text + ' sc1', f's_branch {ld}']

def gather_mem(k, vG, vOff0, vOff1, vL0, vL1, vT):
    lp, dn = k.newlabel('Lgm'), k.newlabel('Lgd')
    k(f's_mov_b32 s{sCNT}, 0')
    k.label(lp)
    k(f'buffer_load_dwordx4 {vr(vG,4)}, v{vOff0}, s[{SWS}:{SWS+3}], s{sM} offen sc1')
    k(f'buffer_load_dwordx4 {vr(vG+4,4)}, v{vOff1}, s[{SWS}:{SWS+3}], s{sM} offen sc1')
    k(f's_add_u32 s{sCNT}, s{sCNT}, 1')
    k(f's_cmp_gt_u32 s{sCNT}, s{sT2}')
    k('s_cbranch_scc1 L_fail')
    k('s_waitcnt vmcnt(1)')
    k(f'v_max3_u32 v{vT}, v{vG}, v{vG+1}, v{vG+2}')
    k('s_waitcnt vmcnt(0)')
    k(f'v_max3_u32 v{vT+1}, v{vG+4}, v{vG+5}, v{vG+6}')
    k(f'v_max3_u32 v{vT}, v{vT}, v{vG+3}, v{vG+7}')
    k(f'v_max_u32 v{vT}, v{vT}, v{vT+1}')
    k(f'v_cmp_eq_u32 vcc, -1, v{vT}')
    k(f's_cbranch_vccnz {lp}')
    if vL0 is None: return
    k.ds(f'ds_write_b128 v{vL0}, {vr(vG,4)}')
    k.ds(f'ds_write_b128 v{vL1}, {vr(vG+4,4)}')
    k.wds0()
    k('s_barrier')

def wait_mode(k, vT):
    lp = k.newlabel('Lwm')
    k(f's_mov_b32 s{sCNT}, 0')
    k.label(lp)
    k(f'buffer_load_dword v{vT}, off, s[{SDBG}:{SDBG+3}], 0 offset:128 sc1')
    k(f's_add_u32 s{sCNT}, s{sCNT}, 1')
    k(f's_cmp_gt_u32 s{sCNT}, s{sT2}')
    k('s_cbranch_scc1 L_fail')
    k('s_waitcnt vmcnt(0)')
    k(f'v_readfirstlane_b32 s{sMODE}, v{vT}')
    k('s_nop 3')
    k(f's_cmp_eq_u32 s{sMODE}, 0')
    k(f's_cbranch_scc1 {lp}')

def common_lane_setup(k, vLane, vL16, vG0, vG1, vIdx, vT):
    k(f'v_and_b32 v{vLane}, 63, v0')
    k(f'v_lshlrev_b32 v{vL16}, 4, v{vLane}')
    if vG0 is not None:
        k(f's_lshl_b32 s{sT0}, s{sWAVE}, 10')
        k(f'v_add_u32 v{vG0}, s{sT0}, v{vL16}')
        k(f's_add_u32 s{sT0}, s{sWAVE}, 4')
        k(f's_min_u32 s{sT0}, s{sT0}, 6')
        k(f's_lshl_b32 s{sT0}, s{sT0}, 10')
        k(f'v_add_u32 v{vG1}, s{sT0}, v{vL16}')
    k(f'v_and_b32 v{vT}, 8, v{vLane}')
    k(f'v_mov_b32 v{vIdx}, 0x4444')
    k(f'v_mov_b32 v{vT+1}, 0xeeee')
    k(f'v_cmp_ne_u32 vcc, 0, v{vT}')
    k('s_nop 1')
    k(f'v_cndmask_b32 v{vIdx}, v{vIdx}, v{vT+1}, vcc')
    k(f's_mov_b32 s{sT2}, {POLL_LIMIT}')

def role_A(k, stamps=False):
    vLane, vL16, vIdx = 1, 2, 3
    vKey, vKeyS, vMK, vMKS, vQW, vQR, vSW, vSR, vPO, vVal = 4, 5, 6, 7, 8, 9, 10, 11, 12, 13
    vT = 14
    vM = 16
    vQ = 44
    vKT = 72
    vKM = 100
    vX = 114
    vG0, vG1 = 118, 119
    def W(lt, kb):
        i = lt*7 + kb
        return (256 + 8*i) if i < 32 else (120 + 8*(i-32))
    LM, LSP, LQS = 0, 7168, 20480
    k.label('L_roleA')
    k(f's_mov_b32 s{sID}, s{sROLE}')
    common_lane_setup(k, vLane, vL16, vG0, vG1, vIdx, vX)
    k(f's_lshr_b32 s{sT0}, s{sWAVE}, 1')
    k(f's_mul_i32 s{sT0}, s{sT0}, 14')
    k(f's_and_b32 s{sT1}, s{sWAVE}, 1')
    k(f's_add_u32 s33, s{sT0}, 6')
    k(f's_add_u32 s33, s33, s{sT1}')
    k(f's_lshl_b32 s34, s{sT1}, 3')
    k(f's_add_u32 s32, s{sT0}, s34')
    k(f's_mul_i32 s35, s{sID}, {28*14*1024}')
    k(f's_add_u32 s35, s35, {WTA}')
    k(f's_mul_i32 s36, s32, {14*1024}')
    k(f's_add_u32 s36, s36, s35')
    k(f's_mul_i32 s37, s33, {14*1024}')
    k(f's_add_u32 s37, s37, s35')
    for j in range(7):
        k(f's_add_u32 s{50+j}, s{sWAVE}, {(4*j) % 7}')
        k(f's_sub_u32 s40, s{50+j}, 7')
        k(f's_cmp_ge_u32 s{50+j}, 7')
        k(f's_cselect_b32 s{50+j}, s40, s{50+j}')
        k(f's_lshl_b32 s{50+j}, s{50+j}, 10')
    n = 0
    for lt in range(7):
        sb = 36 if lt < 6 else 37
        for j in range(7):
            k(f's_lshl_b32 s40, s{50+j}, 1')
            k(f's_add_u32 s40, s40, s{sb}')
            for f in range(2):
                k(f'buffer_load_dwordx4 {xr(W(lt, j) + 4*f,4)}, v{vL16}, s[{SWS}:{SWS+3}], s40 offen offset:{f*1024}')
                n += 1
                if n % 16 == 0: k('s_waitcnt vmcnt(40)')
        k(f's_add_u32 s{sb}, s{sb}, 14336')
    k(f'v_add_u32 v{vG1}, s51, v{vL16}')
    t = vX
    g, i = vQ, vQ+1
    k(f'v_lshrrev_b32 v{g}, 4, v{vLane}')
    k(f'v_and_b32 v{i}, 15, v{vLane}')
    k(f's_lshr_b32 s38, s32, 1')
    k(f's_lshr_b32 s39, s33, 1')
    k(f's_lshl_b32 s40, s38, 10')
    k(f'v_add_u32 v{vKey}, s40, v{vL16}')
    k(f's_lshl_b32 s40, s39, 10')
    k(f's_add_u32 s40, s40, s34')
    k(f'v_add_u32 v{vKeyS}, s40, v{vL16}')
    k(f'v_lshrrev_b32 v{t}, 1, v{g}')
    k(f'v_lshlrev_b32 v{t}, 8, v{t}')
    k(f'v_and_b32 v{t+1}, 7, v{i}')
    k(f'v_lshlrev_b32 v{t+1}, 4, v{t+1}')
    k(f'v_add_u32 v{t}, v{t}, v{t+1}')
    k(f'v_and_b32 v{t+1}, 1, v{g}')
    k(f'v_lshlrev_b32 v{t+1}, 7, v{t+1}')
    k(f'v_add_u32 v{t}, v{t}, v{t+1}')
    k(f's_lshl_b32 s40, s38, 9')
    k(f'v_add_u32 v{vMK}, s40, v{t}')
    k(f's_lshl_b32 s40, s39, 9')
    k(f's_add_u32 s40, s40, s34')
    k(f'v_add_u32 v{vMKS}, s40, v{t}')
    k(f's_lshl_b32 s40, s{sWAVE}, 10')
    k(f's_add_u32 s40, s40, {LQS}')
    k(f'v_lshrrev_b32 v{t}, 2, v{i}')
    k(f'v_add_u32 v{t}, v{t}, v{g}')
    k(f'v_and_b32 v{t}, 3, v{t}')
    k(f'v_lshlrev_b32 v{t}, 3, v{t}')
    k(f'v_lshlrev_b32 v{t+1}, 5, v{i}')
    k(f'v_add3_u32 v{vQW}, v{t}, v{t+1}, s40')
    k(f'v_lshrrev_b32 v{t}, 2, v{vLane}')
    k(f'v_lshlrev_b32 v{t}, 5, v{t}')
    k(f'v_add_u32 v{t+1}, v{vLane}, v{g}')
    k(f'v_and_b32 v{t+1}, 3, v{t+1}')
    k(f'v_lshlrev_b32 v{t+1}, 3, v{t+1}')
    k(f'v_add3_u32 v{vQR}, v{t}, v{t+1}, s40')
    k(f's_mul_i32 s40, s{sWAVE}, 3264')
    k(f's_add_u32 s40, s40, {LSP}')
    k(f'v_lshlrev_b32 v{t}, 4, v{i}')
    k(f'v_mul_u32_u24 v{t+1}, 272, v{g}')
    k(f'v_add3_u32 v{vSW}, v{t}, v{t+1}, s40')
    k(f'v_subrev_u32 v{t}, 12, v{i}')
    k(f'v_cmp_le_u32 vcc, 12, v{i}')
    k('s_nop 1')
    k(f'v_cndmask_b32 v{t}, v{i}, v{t}, vcc')
    k(f'v_lshrrev_b32 v{t+1}, 5, v{vLane}')
    k(f's_lshl_b32 s40, s{sWAVE}, 1')
    k(f'v_add_u32 v{t+1}, s40, v{t+1}')
    k(f'v_and_b32 v{t+2}, 1, v{g}')
    k(f'v_lshl_add_u32 v{t+3}, v{t+2}, 3, v{t+1}')
    k(f'v_lshlrev_b32 v{t+3}, 4, v{t+3}')
    k(f'v_mul_u32_u24 v{vSR}, 272, v{t}')
    k(f'v_add_u32 v{vSR}, v{vSR}, v{t+3}')
    if LSP: k(f'v_add_u32 v{vSR}, {LSP}, v{vSR}')
    k(f'v_and_b32 v{vPO}, 1, v{i}')
    k(f'v_lshlrev_b32 v{vPO}, 3, v{vPO}')
    k(f'v_lshl_add_u32 v{vPO}, v{t+1}, 4, v{vPO}')
    k(f'v_lshl_add_u32 v{vPO}, v{t+2}, 2, v{vPO}')
    k(f'v_bfe_u32 v{t}, v{i}, 1, 1')
    k(f'v_lshl_add_u32 v{vPO}, v{t}, 8, v{vPO}')
    k(f's_lshl_b32 s40, s{sID}, 7')
    k(f's_add_u32 s40, s40, 8192')
    k(f's_lshr_b32 s41, s{sID}, 1')
    k(f's_lshl_b32 s41, s41, 10')
    k(f's_and_b32 s42, s{sID}, 1')
    k(f's_lshl_b32 s42, s42, 7')
    k(f's_add_u32 s41, s41, s42')
    k(f'v_mov_b32 v{t}, s40')
    k(f'v_mov_b32 v{t+1}, s41')
    k(f'v_add_u32 v{t+2}, 0x200, v{t+1}')
    k(f'v_mov_b32 v{t+3}, 0x40000000')
    k(f'v_mov_b32 v{vVal}, 1.0')
    for lim, src in ((2, t+3), (4, t+1), (8, t+2), (12, t+3)):
        k(f'v_cmp_le_u32 vcc, {lim}, v{i}')
        k('s_nop 1')
        k(f'v_cndmask_b32 v{t}, v{t}, v{src}, vcc')
    k(f'v_add_u32 v{vPO}, v{vPO}, v{t}')
    k(f'v_cmp_le_u32 vcc, v{t+3}, v{vPO}')
    k('s_nop 1')
    k(f'v_cndmask_b32 v{vVal}, v{vVal}, 0, vcc')
    k(f's_mov_b32 s{sSTEP}, 0')
    k(f's_mov_b32 s{sM}, {MEM}')
    k(f's_mov_b32 s{sP}, {PB}')
    k(f's_mov_b32 s{sX}, {XNS}')
    k(f's_lshl_b32 s40, s{sID}, 2')
    k(f's_add_u32 s40, s40, s{sWAVE}')
    k(f's_mul_i32 s40, s40, 7168')
    k(f'v_min_u32 v{vX}, 55, v{vLane}')
    k(f'v_lshlrev_b32 v{vX}, 7, v{vX}')
    k(f'v_add_u32 v{vX}, s40, v{vX}')
    k(f"s_mov_b32 s{sUM}, {UF + OPT['ud']*UF_SEG}")
    WS = f's[{SWS}:{SWS+3}]'
    def load_keys():
        k(f's_add_u32 s{sT0}, s{sX}, 14336')
        for p in range(3):
            k(f'buffer_load_dwordx4 {vr(vKT+8*p,4)}, v{vKey}, {WS}, s{sX} offen offset:{p*1024}')
            k(f'buffer_load_dwordx4 {vr(vKT+8*p+4,4)}, v{vKey}, {WS}, s{sT0} offen offset:{p*1024}')
        k(f'buffer_load_dwordx2 {vr(vKT+24,2)}, v{vKeyS}, {WS}, s{sX} offen')
        k(f'buffer_load_dwordx2 {vr(vKT+26,2)}, v{vKeyS}, {WS}, s{sT0} offen')
        k(f's_add_u32 s{sX}, s{sX}, 28672')
        k(f's_add_u32 s{sT0}, s{sSTEP}, {1 + OPT["ud"]}')
        k(f's_lshr_b32 s{sT0}, s{sT0}, 2')
        k(f's_lshl_b32 s{sT0}, s{sT0}, 7')
        k(f's_add_u32 s{sT0}, s{sT0}, {flag(F_U)}')
        k(f'buffer_load_dword v{vX+2}, off, {WS}, s{sT0} sc1')
    k(f's_mov_b32 s{sSTEP}, -1')
    load_keys()
    k(f's_mov_b32 s{sSTEP}, 0')
    wait_mode(k, vX+3)
    k.label('L_A_loop')
    for r in range(0, 28, 2): k(f'v_mov_b64 {vr(vQ+r,2)}, 0')
    for j in range(2, 7): k(f'v_add_u32 v{vKM+j}, s{50+j}, v{vL16}')
    gather_mem(k, vM, vG0, vG1, None, None, vT)
    stamp(k, 0, stamps)
    def M(lt, kb):
        return f'v_smfmac_f32_16x16x64_bf16 {vr(vQ+4*lt,4)}, {vr(vM+4*kb,4)}, {xr(W(lt,kb),8)}, v{vIdx}'
    mk = [f'ds_read_b128 {vr(vKM+4*p,4)}, v{vMK} offset:{LM+p*512}' for p in range(3)]
    mk.append(f'ds_read_b64 {vr(vKM+12,2)}, v{vMKS} offset:{LM}')
    wrs = [f'ds_write_b128 v{vG0}, {vr(vM,4)} offset:{LM}', f'ds_write_b128 v{vG1}, {vr(vM+4,4)} offset:{LM}']
    if OPT['wpos'] == 0:
        for x in wrs: k.ds(x)
    NB = OPT['nb']
    seq = [(lt, j) for j in range(2) for lt in range(7)]
    for n, (lt, j) in enumerate(seq):
        k(M(lt, j))
        if OPT['wpos'] == 1 and n < 2: k.ds(wrs[n])
        if n == NB - 1:
            k.wds0(); k('s_barrier')
            if OPT['rsp'] == 0:
                for jj in range(2, 7): k.ds(f'ds_read_b128 {vr(vM+4*jj,4)}, v{vKM+jj} offset:{LM}', f'm{jj}')
        if OPT['rsp'] == 1 and NB - 1 <= n < NB + 4:
            jj = n - (NB - 1) + 2
            k.ds(f'ds_read_b128 {vr(vM+4*jj,4)}, v{vKM+jj} offset:{LM}', f'm{jj}')
        if n == NB + 1 and OPT['apf']:
            k(f'v_cmp_le_u32 vcc, {OPT["uneed"]}, v{vX+2}')
        if n == NB + 2 and OPT['apf']:
            lu = k.newlabel('Lnt')
            k(f's_cbranch_vccz {lu}')
            k(f'buffer_load_dword v{vX+1}, v{vX}, {WS}, s{sUM} offen sc1')
            k.label(lu)
    def cvt(lt, h):
        k(f'v_cvt_pk_bf16_f32 v{vQ+4*lt+h}, v{vQ+4*lt+2*h}, v{vQ+4*lt+2*h+1}')
    def wr(lt):
        k.ds(f'ds_write_b64 v{vQW}, {vr(vQ+4*lt,2)} offset:{512*(lt&1)}')
    def tr(p, h):
        k.ds(f'ds_read_b64_tr_b16 {vr(vQ+8*p+2*h,2)}, v{vQR} offset:{512*h}', f'q{p}')
    vSt = [vM, vM+4, vQ+4]
    def S(p, t):
        q = vQ + 8*p
        c = '0' if p == 0 else vr(vSt[t],4)
        if p < 3:
            a = vKM+4*p if t == 0 else vKT+8*p+4*(t-1)
            k(f'v_mfma_f32_16x16x32_bf16 {vr(vSt[t],4)}, {vr(a,4)}, {vr(q,4)}, {c}')
        else:
            a = vKM+12 if t == 0 else vKT+24+2*(t-1)
            k(f'v_mfma_f32_16x16x16_bf16 {vr(vSt[t],4)}, {vr(a,2)}, {vr(q,2)}, {c}')
    for lt in range(7):
        for j in range(2, 7):
            if lt == 0: k.wds(f'm{j}')
            k(M(lt, j))
            if lt == 0 and j == 6:
                for x in mk: k.ds(x, 'mk')
            if lt >= 1:
                if j == 4: cvt(lt-1, 0)
                if j == 5: cvt(lt-1, 1)
                if j == 6:
                    wr(lt-1)
                    if (lt-1) & 1: tr((lt-1)//2, 0); tr((lt-1)//2, 1)
        if lt == (4 if OPT['s1pos'] == 0 else 3):
            k.wds('q0')
            for t in range(3): S(0, t)
        if lt == 5 and OPT['s1pos'] == 1:
            k.wds('q1')
            for t in range(3): S(1, t)
    if OPT['s1pos'] == 0:
        k.wds('q1')
        for t in range(3): S(1, t)
        cvt(6, 0); cvt(6, 1); wr(6); tr(3, 0)
        k.wds('q2')
        for t in range(3): S(2, t)
    else:
        k.nop(8)
        cvt(6, 0); cvt(6, 1); wr(6); tr(3, 0)
        k.wds('q2')
        for t in range(3): S(2, t)
    k.wds('q3')
    for t in range(3): S(3, t)
    k.nop(2)
    k.ds(f'ds_write_b128 v{vSW}, {vr(vSt[0],4)}')
    k.nop(2)
    k.ds(f'ds_write_b128 v{vSW}, {vr(vSt[1],4)} offset:1088')
    k.nop(2)
    k.ds(f'ds_write_b128 v{vSW}, {vr(vSt[2],4)} offset:2176')
    k.wds0()
    k('s_barrier')
    stamp(k, 1, stamps)
    R = vQ+8
    for w in range(4): k.ds(f'ds_read_b128 {vr(R+4*w,4)}, v{vSR} offset:{w*3264}', f'r{w}')
    k(f's_cmp_eq_u32 s{sMODE}, 1')
    k.wds('r1')
    k(f'v_pk_add_f32 {vr(R,2)}, {vr(R,2)}, {vr(R+4,2)}')
    k(f'v_pk_add_f32 {vr(R+2,2)}, {vr(R+2,2)}, {vr(R+6,2)}')
    k.wds('r2')
    k(f'v_pk_add_f32 {vr(R,2)}, {vr(R,2)}, {vr(R+8,2)}')
    k(f'v_pk_add_f32 {vr(R+2,2)}, {vr(R+2,2)}, {vr(R+10,2)}')
    k.wds('r3')
    k(f'v_pk_add_f32 {vr(R,2)}, {vr(R,2)}, {vr(R+12,2)}')
    k(f'v_pk_add_f32 {vr(R+2,2)}, {vr(R+2,2)}, {vr(R+14,2)}')
    k.nop(2)
    k(f'v_permlane16_swap_b32 v{R}, v{R+2}')
    k(f'v_permlane16_swap_b32 v{R+1}, v{R+3}')
    X = R+4; m = R+6; t = R+8
    k(f'v_pk_add_f32 {vr(X,2)}, {vr(R,2)}, {vr(R+2,2)}')
    def allred(op, m):
        for rot in (8, 4, 2, 1):
            k.nop(2)
            k(f'{op}_dpp v{m}, v{m}, v{m} row_ror:{rot} row_mask:0xf bank_mask:0xf')
        k(f'v_mov_b32 v{t}, v{m}')
        k.nop(2)
        k(f'v_permlane16_swap_b32 v{m}, v{t}')
        k(f'{op} v{m}, v{m}, v{t}')
    k(f'v_max_f32 v{m}, v{X}, v{X+1}')
    allred('v_max_f32', m)
    k(f'v_pk_add_f32 {vr(X,2)}, {vr(X,2)}, {vr(m,2)} op_sel_hi:[1,0] neg_lo:[0,1] neg_hi:[0,1]')
    k(f'v_exp_f32 v{X}, v{X}')
    k(f'v_exp_f32 v{X+1}, v{X+1}')
    k.nop(1)
    k(f'v_add_f32 v{m}, v{X}, v{X+1}')
    k(f'v_mul_f32 v{m}, v{m}, v{vVal}')
    allred('v_add_f32', m)
    k(f'v_rcp_f32 v{m}, v{m}')
    k.nop(1)
    k(f'v_pk_mul_f32 {vr(X,2)}, {vr(X,2)}, {vr(m,2)} op_sel_hi:[1,0]')
    k(f'v_cvt_pk_bf16_f32 v{X}, v{X}, v{X+1}')
    k(f'v_min_u32 v{X}, -2, v{X}')
    publish(k, f'buffer_store_dword v{X}, v{vPO}, {WS}, s{sP} offen')
    stamp(k, 2, stamps)
    k('s_barrier')
    load_keys()
    if OPT['sleepA']: k(f"s_sleep {OPT['sleepA']}")
    k(f's_add_u32 s{sUM}, s{sUM}, {UF_SEG}')
    k(f's_add_u32 s{sM}, s{sM}, {MEM_S}')
    k(f's_add_u32 s{sP}, s{sP}, {PB_S}')
    if stamps: k(f's_add_u32 s{sST}, s{sST}, 16')
    k(f's_add_u32 s{sSTEP}, s{sSTEP}, 1')
    k(f's_cmp_lt_u32 s{sSTEP}, {NSTEP}')
    k('s_cbranch_scc1 L_A_loop')
    k('s_waitcnt vmcnt(0)')
    k('s_endpgm')
    k.flush_cold()

def poll2(k, issue, checks, body, name):
    nl = len(issue(0))
    l0, d0, d1, dn = [k.newlabel(name + x) for x in ('lp', 'd0', 'd1', 'dn')]
    k(f's_mov_b32 s{sCNT}, 0')
    for x in issue(0): k(x)
    k(f"s_sleep {OPT['stag']}")
    k.label(l0)
    for st, dl in ((0, d0), (1, d1)):
        for x in issue(1 - st): k(x)
        if st == 0:
            k(f's_add_u32 s{sCNT}, s{sCNT}, 1')
            k(f's_cmp_gt_u32 s{sCNT}, s{sT2}')
            k('s_cbranch_scc1 L_fail')
        for rel, ins in checks(st):
            k(f's_waitcnt vmcnt({nl + rel})')
            for x in ins: k(x)
        if st == 0: k(f's_cbranch_vccz {d0}')
        else:       k(f's_cbranch_vccnz {l0}x')
    saved = list(k.dsq)
    body(1)
    k(f's_branch {dn}')
    k.label(l0 + 'x')
    k(f's_branch {l0}')
    k.label(d0)
    end = list(k.dsq); k.dsq = saved
    body(0)
    assert k.dsq == end
    k.label(dn)

def role_B(k, stamps=False, wait_u=None):
    WS = f's[{SWS}:{SWS+3}]'
    vLane, vL16, vG0, vG1, vIdx = 1, 2, 3, 4, 5
    vWL, vPT, vPM, vRW, vRR, vL4 = 6, 7, 8, 9, 10, 11
    vC = 12
    vM = 16
    vA = 44
    vU = 76
    vTm = 108
    vUi = 140
    vUm = 172
    vRR2 = 188
    vD = vTm
    vG = vTm + 16
    vP = [vM, vA]
    def W(gi, kb):
        i = gi*5 + kb
        return (256 + 8*i) if i < 32 else (192 + 8*(i-32))
    LM, LRED, LW = 0, 7168, 16384
    k.label('L_roleB')
    k(f's_sub_u32 s{sID}, s{sROLE}, 16')
    common_lane_setup(k, vLane, vL16, vG0, vG1, vIdx, vC)
    k(f's_lshl_b32 s{sT0}, s{sWAVE}, 2')
    k(f's_mul_i32 s{sT0}, s{sT0}, 28')
    k(f's_lshl_b32 s{sT1}, s{sID}, 1')
    k(f's_add_u32 s{sT0}, s{sT0}, s{sT1}')
    k(f's_mul_i32 s35, s{sT0}, 14336')
    k(f's_add_u32 s35, s35, {WTB}')
    k(f's_lshl_b32 s37, s{sWAVE}, 15')
    k(f's_add_u32 s37, s37, {LW}')
    k(f'v_add_u32 v{vWL}, s37, v{vL16}')
    for gi in range(8):
        k(f's_add_u32 s36, s35, {(gi>>1)*28*14336 + (gi&1)*14336}')
        for f in range(10):
            r = W(gi, f//2) + 4*(f&1)
            k(f'buffer_load_dwordx4 {xr(r,4)}, v{vL16}, {WS}, s36 offen offset:{(f&3)*1024}')
            if (f&3) == 3: k(f's_add_u32 s36, s36, 4096')
        k(f's_add_u32 s36, s36, 2048')
        k(f's_add_u32 s38, s37, {gi*4096}')
        k(f's_mov_b32 m0, s38')
        k('s_nop 0')
        for f in range(4):
            k(f'buffer_load_dwordx4 v{vL16}, {WS}, s36 offen offset:{f*1024} lds')
        k('s_waitcnt vmcnt(40)')
    g, i = vA, vA+1
    vT = vC
    k(f'v_lshrrev_b32 v{g}, 4, v{vLane}')
    k(f'v_and_b32 v{i}, 15, v{vLane}')
    k(f's_lshl_b32 s40, s{sWAVE}, 11')
    k(f'v_add_u32 v{vPT}, s40, v{vL16}')
    k(f'v_lshrrev_b32 v{vT}, 1, v{g}')
    k(f'v_lshlrev_b32 v{vT}, 8, v{vT}')
    k(f'v_lshl_add_u32 v{vT}, v{i}, 4, v{vT}')
    k(f's_lshl_b32 s40, s{sWAVE}, 9')
    k(f's_add_u32 s40, s40, 8192')
    k(f'v_add_u32 v{vPM}, s40, v{vT}')
    k(f's_lshl_b32 s40, s{sWAVE}, 10')
    k(f's_add_u32 s40, s40, {LRED}')
    k(f'v_add_u32 v{vRW}, s40, v{vL16}')
    k(f'v_and_b32 v{vT}, 3, v{vLane}')
    k(f'v_lshlrev_b32 v{vT}, 6, v{vT}')
    k(f'v_lshrrev_b32 v{vT+1}, 5, v{vLane}')
    k(f'v_lshl_add_u32 v{vT}, v{vT+1}, 5, v{vT}')
    k(f'v_lshrrev_b32 v{vT+1}, 2, v{vLane}')
    k(f'v_and_b32 v{vT+2}, 3, v{vT+1}')
    k(f'v_lshl_add_u32 v{vT}, v{vT+2}, 2, v{vT}')
    k(f'v_bfe_u32 v{vT+2}, v{vLane}, 4, 1')
    k(f'v_lshl_add_u32 v{vT}, v{vT+2}, 8, v{vT}')
    k(f's_and_b32 s40, s{sWAVE}, 1')
    k(f's_lshl_b32 s40, s40, 9')
    k(f's_add_u32 s40, s40, {LRED}')
    k(f'v_add_u32 v{vRR}, s40, v{vT}')
    for w in range(1, 4): k(f'v_add_u32 v{vRR2+w-1}, {1024*w}, v{vRR}')
    k(f's_lshl_b32 s40, s{sID}, 1')
    k(f's_and_b32 s41, s{sWAVE}, 1')
    k(f's_add_u32 s40, s40, s41')
    k(f's_lshl_b32 s40, s40, 8')
    k(f'v_lshlrev_b32 v{vL4}, 2, v{vLane}')
    k(f'v_add_u32 v{vL4}, s40, v{vL4}')
    k(f's_mov_b32 s{sSTEP}, 0')
    k(f's_mov_b32 s{sM}, {MEM}')
    k(f's_mov_b32 s{sP}, {PB}')
    k(f's_lshl_b32 s{sX}, s{sID}, 15')
    k(f's_lshl_b32 s40, s{sWAVE}, 13')
    k(f's_add_u32 s{sX}, s{sX}, s40')
    k(f's_add_u32 s{sX}, s{sX}, {UF}')
    k(f's_mul_i32 s{sUM}, s{sWAVE}, {2*28*1024}')
    k(f's_lshl_b32 s40, s{sID}, 11')
    k(f's_add_u32 s{sUM}, s{sUM}, s40')
    k(f's_add_u32 s{sUM}, s{sUM}, {UM}')
    k(f's_mov_b32 s43, s{sUM}')
    def ldu(j):
        hh, T = j >> 1, j & 1
        r = vU + 16*(hh>>1) + 8*T + 4*(hh&1)
        return f'buffer_load_dwordx4 {vr(r,4)}, v{vL16}, {WS}, s{sX if j<4 else sT0} offen offset:{(j&3)*1024} ' + OPT['uf']
    def stum(u, T):
        return f'buffer_store_dwordx4 {vr(vUm+8*T+4*u,4)}, v{vL16}, {WS}, s{43 if u==0 else 44} offen offset:{T*1024} ' + OPT['um']
    def lw(gi):
        b = vTm + 16*(gi&1)
        for f in range(4): k.ds(f'ds_read_b128 {vr(b+4*f,4)}, v{vWL} offset:{gi*4096+f*1024}', f'w{gi}')
    wait_mode(k, vC)
    k.label('L_B_loop')
    k('s_waitcnt vmcnt(0)')
    for r in range(0, 32, 2): k(f'v_mov_b64 {vr(vA+r,2)}, 0')
    if wait_u:
        lu = k.newlabel('Lnu')
        k(f's_and_b32 s{sT0}, s{sSTEP}, 3')
        k(f's_cbranch_scc1 {lu}')
        k(f's_lshl_b32 s{sT0}, s{sSTEP}, 5')
        k(f's_add_u32 s{sT0}, s{sT0}, {flag(F_U)}')
        wait_u(k, sT0, 16, vC)
        k.label(lu)
    k(f's_add_u32 s{sT0}, s{sX}, 4096')
    k(f's_add_u32 s44, s43, {28*1024}')
    vm = [stum(0,0), stum(0,1), stum(1,0), stum(1,1)] + [ldu(j) for j in range(8)]
    NP = OPT['upre']
    for x in vm[4:4+NP]: k(x)
    gather_mem(k, vG, vG0, vG1, vG0, vG1, vC)
    stamp(k, 0, stamps)
    for kb in range(7): k.ds(f'ds_read_b128 {vr(vM+4*kb,4)}, v{vL16} offset:{LM+kb*1024}', f'm{kb}')
    lw(0)
    for x in vm[4+NP:] + vm[:4]: k(x)
    def acc(gi): return vA + 4*gi
    def cvt(gi, h):
        hh, T = gi>>1, gi&1
        d = vUm + 8*T + 4*(hh>>1) + 2*h + (hh&1)
        a = acc(gi) + 2*h
        k(f'v_cvt_pk_bf16_f32 v{d}, v{a}, v{a+1}')
    def lw1(gi, f):
        k.ds(f'ds_read_b128 {vr(vTm+16*(gi&1)+4*f,4)}, v{vWL} offset:{gi*4096+f*1024}', f'w{gi}')
    sw = []
    for o in range(4):
        r = vU + 8*o
        for e in range(4):
            sel = e & 1
            sw.append(f'v_pk_mov_b32 {vr(vUi+8*o+2*e,2)}, {vr(r+(e&2),2)}, {vr(r+4+(e&2),2)} op_sel:[{sel},{sel}]')
    for gi in range(8):
        for kb in range(7):
            if gi == 0: k.wds(f'm{kb}')
            if kb == 5: k.wds(f'w{gi}')
            w = xr(W(gi,kb),8) if kb < 5 else vr(vTm + 16*(gi&1) + 8*(kb-5), 8)
            k(f'v_smfmac_f32_16x16x64_bf16 {vr(acc(gi),4)}, {vr(vM+4*kb,4)}, {w}, v{vIdx}')
            if gi < 7 and kb in (0, 1, 2, 5): lw1(gi+1, {0:0, 1:1, 2:2, 5:3}[kb])
            if gi >= 1 and kb == 3: cvt(gi-1, 0)
            if gi >= 1 and kb == 4: cvt(gi-1, 1)
    k(f's_mov_b32 s43, s{sUM}')
    k(f's_add_u32 s{sUM}, s{sUM}, {UM_SEG}')
    k(f's_add_u32 s{sX}, s{sX}, {UF_SEG}')
    k('s_waitcnt vmcnt(4)')
    for x in sw[:4]: k(x)
    cvt(7, 0); cvt(7, 1)
    for x in sw[4:]: k(x)
    for r in range(0, 8, 2): k(f'v_mov_b64 {vr(vD+r,2)}, 0')
    k(f's_cmp_ge_u32 s{sSTEP}, {NSTEP}')
    k('s_cbranch_scc1 L_B_end')
    stamp(k, 1, stamps)
    if OPT['sleepB']: k(f"s_sleep {OPT['sleepB']}")
    def issue(st):
        P = vP[st]
        return [f'buffer_load_dwordx4 {vr(P,4)}, v{vPT}, {WS}, s{sP} offen sc1',
                f'buffer_load_dwordx4 {vr(P+4,4)}, v{vPT}, {WS}, s{sP} offen offset:1024 sc1',
                f'buffer_load_dwordx4 {vr(P+8,4)}, v{vPM}, {WS}, s{sP} offen sc1']
    def checks(st):
        P = vP[st]
        return [(2, [f'v_max3_u32 v{vC}, v{P}, v{P+1}, v{P+2}']),
                (1, [f'v_max3_u32 v{vC+1}, v{P+4}, v{P+5}, v{P+6}', f'v_max3_u32 v{vC}, v{vC}, v{P+3}, v{P+7}']),
                (0, [f'v_max3_u32 v{vC+1}, v{vC+1}, v{P+8}, v{P+9}', f'v_max3_u32 v{vC}, v{vC}, v{P+10}, v{P+11}',
                     f'v_max_u32 v{vC}, v{vC}, v{vC+1}', f'v_cmp_eq_u32 vcc, -1, v{vC}'])]
    def body(st):
        P = vP[st]
        stamp(k, 2, stamps)
        for j in range(3):
            for T in range(2):
                b = vr(vUi + 16*j + 8*T, 8) if j < 2 else vr(vUm + 8*T, 8)
                k(f'v_smfmac_f32_16x16x64_bf16 {vr(vD+4*T,4)}, {vr(P+4*j,4)}, {b}, v{vIdx}')
    poll2(k, issue, checks, body, 'Lpp')
    k(f's_add_u32 s{sM}, s{sM}, {MEM_S}')
    k(f's_add_u32 s{sP}, s{sP}, {PB_S}')
    k.nop(6)
    for r in range(4): k(f'v_permlane32_swap_b32 v{vD+r}, v{vD+4+r}')
    k(f'v_pk_add_f32 {vr(vD,2)}, {vr(vD,2)}, {vr(vD+4,2)}')
    k(f'v_pk_add_f32 {vr(vD+2,2)}, {vr(vD+2,2)}, {vr(vD+6,2)}')
    k.ds(f'ds_write_b128 v{vRW}, {vr(vD,4)}')
    k.wds0()
    k('s_barrier')
    k(f's_cmp_ge_u32 s{sWAVE}, 2')
    k('s_cbranch_scc1 L_B_skip')
    R = vG
    for w in range(4): k.ds(f'ds_read2_b32 {vr(R+2*w,2)}, v{vRR} offset0:{0} offset1:{4}' if w == 0 else
                            f'ds_read2_b32 {vr(R+2*w,2)}, v{vRR2+w-1} offset0:0 offset1:4', f'r{w}')
    k(f's_cmp_eq_u32 s{sMODE}, 1')
    k.wds('r1')
    k(f'v_pk_add_f32 {vr(R,2)}, {vr(R,2)}, {vr(R+2,2)}')
    k.wds('r3')
    k(f'v_pk_add_f32 {vr(R+4,2)}, {vr(R+4,2)}, {vr(R+6,2)}')
    k(f'v_pk_add_f32 {vr(R,2)}, {vr(R,2)}, {vr(R+4,2)}')
    k(f'v_cvt_pk_bf16_f32 v{R}, v{R}, v{R+1}')
    k(f'v_min_u32 v{R}, -2, v{R}')
    publish(k, f'buffer_store_dword v{R}, v{vL4}, {WS}, s{sM} offen')
    k(f's_add_u32 s{sT0}, s{sM}, {MEMX - MEM - MEM_S}')
    k(f'buffer_store_dword v{R}, v{vL4}, {WS}, s{sT0} offen sc1')
    k('s_branch L_B_skip2')
    k.label('L_B_skip')
    k(f's_cmp_eq_u32 s{sWAVE}, 2')
    k(f's_cselect_b32 s{sT0}, s{sSTEP}, 0')
    k(f's_cmp_eq_u32 s{sT0}, 0')
    k('s_cbranch_scc1 L_B_skip2')
    k(f's_lshl_b32 s{sT0}, s{sSTEP}, 7')
    k(f's_add_u32 s{sT0}, s{sT0}, {flag(F_UM) - 128}')
    k('s_mov_b64 exec, 1')
    k(f'v_mov_b32 v{vC}, 1')
    k(f'buffer_atomic_add v{vC}, off, {WS}, s{sT0}')
    k('s_mov_b64 exec, -1')
    k.label('L_B_skip2')
    stamp(k, 3, stamps)
    k('s_barrier')
    k(f's_add_u32 s{sSTEP}, s{sSTEP}, 1')
    if stamps: k(f's_add_u32 s{sST}, s{sST}, 16')
    k('s_branch L_B_loop')
    k.label('L_B_end')
    k(f's_add_u32 s44, s43, {28*1024}')
    for x in vm[:4]: k(x)
    k('s_waitcnt vmcnt(0)')
    k('s_barrier')
    k(f's_cmp_lg_u32 s{sWAVE}, 0')
    k('s_cbranch_scc1 L_exit')
    k('s_mov_b64 exec, 3')
    k(f'v_mov_b32 v{vC}, 1')
    k(f'v_lshlrev_b32 v{vC+1}, 7, v{vLane}')
    k(f's_mov_b32 s{sT0}, {flag(F_UM + 62)}')
    k(f'buffer_atomic_add v{vC}, v{vC+1}, {WS}, s{sT0} offen')
    k('s_endpgm')
    k.flush_cold()

def role_P(k, wait_u=None):
    WS = f's[{SWS}:{SWS+3}]'
    vLane, vU, vX, vS, vD = 1, 2, 3, 4, 8
    D = OPT['pfd']; st = OPT['pfs']; sh = 7 if st == 128 else 6
    k.label('L_roleP')
    k(f's_mov_b32 s{sT2}, {POLL_LIMIT}')
    k(f's_sub_u32 s{sID}, s{sROLE}, 30')
    k(f's_lshl_b32 s{sID}, s{sID}, 2')
    k(f's_add_u32 s{sID}, s{sID}, s{sWAVE}')
    k(f'v_and_b32 v{vLane}, 63, v0')
    k(f'v_lshlrev_b32 v{vU}, {sh}, v{vLane}')
    k(f's_mul_i32 s40, s{sID}, {UF_SEG//8}')
    k(f'v_add_u32 v{vU}, s40, v{vU}')
    k(f'v_min_u32 v{vX}, 55, v{vLane}')
    k(f'v_lshlrev_b32 v{vX}, 6, v{vX}')
    k(f's_mul_i32 s40, s{sID}, 3584')
    k(f'v_add_u32 v{vX}, s40, v{vX}')
    k(f'v_min_u32 v{vS}, 19, v{vLane}')
    k(f'v_lshlrev_b32 v{vS}, 6, v{vS}')
    k(f's_mul_i32 s40, s{sID}, 1280')
    k(f'v_add_u32 v{vS}, s40, v{vS}')
    k(f'v_min_u32 v{vS+1}, 13, v{vLane}')
    k(f'v_lshlrev_b32 v{vS+1}, 6, v{vS+1}')
    k(f's_mul_i32 s40, s{sID}, 896')
    k(f'v_add_u32 v{vS+1}, s40, v{vS+1}')
    k(f's_mov_b32 s{sSTEP}, 0')
    k(f's_mov_b32 s{sX}, {UF}')
    k(f's_mov_b32 s{sUM}, {XNS}')
    k(f's_mov_b32 s{sP}, {PB}')
    k(f's_mov_b32 s{sM}, {MEM + MEM_S}')
    k(f's_mov_b32 s41, {MEM - D*MEM_S}')
    k.label('L_P_loop')
    k(f's_cmp_le_u32 s{sSTEP}, {D}')
    k('s_cbranch_scc1 L_P_go')
    k(f's_mov_b32 s{sCNT}, 0')
    k.label('L_P_wait')
    k(f'buffer_load_dword v{vD}, off, {WS}, s41 sc1')
    k(f's_add_u32 s{sCNT}, s{sCNT}, 1')
    k(f's_cmp_gt_u32 s{sCNT}, s{sT2}')
    k('s_cbranch_scc1 L_fail')
    k('s_waitcnt vmcnt(0)')
    k(f'v_cmp_eq_u32 vcc, -1, v{vD}')
    k('s_cbranch_vccz L_P_go')
    k('s_sleep 2')
    k('s_branch L_P_wait')
    k.label('L_P_go')
    k(f'buffer_load_dword v{vD+1}, v{vS}, {WS}, s{sP} offen sc1')
    k(f'buffer_load_dword v{vD+2}, v{vS+1}, {WS}, s{sM} offen sc1')
    k(f'buffer_load_dword v{vD+3}, v{vX}, {WS}, s{sUM} offen sc1')
    n = 0 if OPT['apf'] else UF_SEG // 8 // (64*st)
    k(f's_mov_b32 s{sT0}, s{sX}')
    for j in range(n):
        k(f'buffer_load_dword v{vD+4+j}, v{vU}, {WS}, s{sT0} offen sc1')
        k(f's_add_u32 s{sT0}, s{sT0}, {64*st}')
    k(f's_add_u32 s{sX}, s{sX}, {UF_SEG}')
    k(f's_add_u32 s{sUM}, s{sUM}, 28672')
    k(f's_add_u32 s{sP}, s{sP}, {PB_S}')
    k(f's_add_u32 s{sM}, s{sM}, {MEM_S}')
    k(f's_add_u32 s41, s41, {MEM_S}')
    k(f's_add_u32 s{sSTEP}, s{sSTEP}, 1')
    k(f's_cmp_lt_u32 s{sSTEP}, {NSTEP}')
    k('s_cbranch_scc1 L_P_loop')
    k('s_waitcnt vmcnt(0)')
    k('s_endpgm')
```

```python
WTA   = 0
WT_SZ = 16*28*14*1024
WTB   = WTA + WT_SZ
XNF   = WTB + WT_SZ
XN_SZ = 128*14*1024
XNS   = XNF + XN_SZ
XNR   = XNS + XN_SZ
UF    = XNR + XN_SZ
UF_SEG = 16*28*1024
UM    = UF + 64*UF_SEG
UM_SEG = 8*28*1024
MEM   = UM + 64*UM_SEG
MEM_S = 7168
PB    = MEM + 64*MEM_S
PB_S  = 10240
MEMX  = PB + 64*PB_S
SENT_END = MEMX + 64*MEM_S
PT    = SENT_END
PT_SEG = 48*1024
RR    = PT + 64*PT_SEG
HB    = RR + 8192
UPD   = HB + 32768
IDX   = UPD + 65536
FLG   = IDX + 4096
FLG_SZ = 128*256
STAMP = FLG + FLG_SZ
WS_USED = STAMP + (1<<20)
WS_SIZE = 268435456

def sigma(ks, g, jj):
    return 32*ks + 16*(g>>1) + 4*(jj>>1) + 2*(g&1) + (jj&1)
def nrow(nt, c):
    p, T = nt>>1, nt&1
    return sigma(p, c>>2, 4*T + (c&3))

F_U, F_P, F_UM, F_M1, F_M2 = 0, 16, 32, 96, 97
def flag(i): return FLG + 128*i
```

```python
from chain import *

NCHAIN = 32
def kd(name, vgpr=512, acc=256, sgpr=96):
    return f'''.section .rodata,"a"
.p2align 6
.amdhsa_kernel {name}
  .amdhsa_next_free_vgpr {vgpr}
  .amdhsa_next_free_sgpr {sgpr}
  .amdhsa_accum_offset {acc}
  .amdhsa_group_segment_fixed_size 0
  .amdhsa_kernarg_size 120
  .amdhsa_user_sgpr_count 2
  .amdhsa_user_sgpr_kernarg_segment_ptr 1
  .amdhsa_system_sgpr_workgroup_id_x 1
.end_amdhsa_kernel
.text
'''
def khead(name):
    return f'.globl {name}\n.p2align 8\n.type {name},@function\n{name}:\n'

def main_prologue(k, pref_xcd=0, stamps=False):
    k('s_cmp_ge_u32 s2, 256')
    k('s_cbranch_scc1 L_exit')
    k('s_load_dwordx2 s[4:5], s[0:1], 112')
    k('s_load_dwordx2 s[8:9], s[0:1], 104')
    k('s_getreg_b32 s3, hwreg(HW_REG_XCC_ID, 0, 4)')
    k('v_lshrrev_b32 v1, 6, v0')
    k('s_nop 0')
    k(f'v_readfirstlane_b32 s{sWAVE}, v1')
    k(f's_mov_b32 s6, {WS_SIZE}')
    k('s_mov_b32 s7, 0x20000')
    k('s_mov_b32 s10, 256')
    k('s_mov_b32 s11, 0x20000')
    k('s_waitcnt lgkmcnt(0)')
    k('s_and_b32 s5, s5, 0xffff')
    k('s_and_b32 s9, s9, 0xffff')
    k(f's_mov_b32 s{sROLE}, 255')
    k(f's_cmp_lg_u32 s{sWAVE}, 0')
    k('s_cbranch_scc1 L_rolewait')
    k(f's_cmp_lg_u32 s3, {pref_xcd}')
    k('s_cbranch_scc1 L_rolewr')
    k('s_mov_b64 exec, 1')
    k('v_mov_b32 v2, 1')
    k('buffer_atomic_add v2, off, s[8:11], 0 sc0')
    k('s_waitcnt vmcnt(0)')
    k(f'v_readfirstlane_b32 s{sROLE}, v2')
    k('s_nop 3')
    k(f's_cmp_lg_u32 s{sROLE}, {NCHAIN-1}')
    k('s_cbranch_scc1 L_rolewr0')
    k('v_mov_b32 v2, 1')
    k('v_mov_b32 v3, 0')
    k('buffer_atomic_cmpswap v[2:3], off, s[8:11], 0 offset:128')
    k.label('L_rolewr0')
    k('s_mov_b64 exec, -1')
    k.label('L_rolewr')
    k(f'v_mov_b32 v2, s{sROLE}')
    k('v_mov_b32 v3, 0')
    k('ds_write_b32 v3, v2')
    k('s_waitcnt lgkmcnt(0)')
    k.label('L_rolewait')
    k('s_barrier')
    k('v_mov_b32 v3, 0')
    k('ds_read_b32 v2, v3')
    k('s_waitcnt lgkmcnt(0)')
    k(f'v_readfirstlane_b32 s{sROLE}, v2')
    k('s_barrier')
    k('s_nop 2')
    k.label('L_dispatch')
    if stamps:
        k(f's_lshl_b32 s{sST}, s{sROLE}, 2')
        k(f's_add_u32 s{sST}, s{sST}, s{sWAVE}')
        k(f's_lshl_b32 s{sST}, s{sST}, 10')
        k(f's_add_u32 s{sST}, s{sST}, {STAMP}')
    k(f's_cmp_lt_u32 s{sROLE}, 16')
    k('s_cbranch_scc1 L_roleA')
    k(f's_cmp_lt_u32 s{sROLE}, 30')
    k('s_cbranch_scc1 L_roleB')
    k(f's_cmp_lt_u32 s{sROLE}, {NCHAIN}')
    k('s_cbranch_scc1 L_roleP')

def fail_exit(k):
    k.label('L_fail')
    k('s_mov_b64 exec, 1')
    k(f'v_mov_b32 v2, s{sSTEP}')
    k(f'v_mov_b32 v3, s{sROLE}')
    k('v_lshl_add_u32 v2, v3, 8, v2')
    k('v_or_b32 v2, 0x10000, v2')
    k('buffer_store_dword v2, off, s[8:11], 0 offset:8')
    k('s_waitcnt vmcnt(0)')
    k.label('L_exit')
    k('s_endpgm')

def gen_chain_only(stamps=True):
    k = K()
    main_prologue(k, stamps=stamps)
    k('s_endpgm')
    role_A(k, stamps)
    role_B(k, stamps)
    role_P(k)
    fail_exit(k)
    errs = check(k.lines, 'main')
    for e in errs: print('HAZARD', e)
    name = 'main_kernel'
    return ('; @launch kernel=main_kernel grid=(256,1,1) block=(256,1,1) lds=163840\n'
            '.amdgcn_target "amdgcn-amd-amdhsa--gfx950"\n.text\n' + khead(name) + k.text() + kd(name))

if __name__ == '__main__':
    import sys, chain
    for a in sys.argv[3:]:
        kk, vv = a.split('='); chain.OPT[kk] = int(vv) if vv.isdigit() else vv
    open(sys.argv[1], 'w').write(gen_chain_only(stamps=(sys.argv[2]=='1')))
```

```python
from chain import K
from asmlib import *
from layout import *
import math, struct

def f32bits(x): return struct.unpack('<I', struct.pack('<f', x))[0]
N_GEMM, N_LN, N_INIT = 224, 37, 22
PREP_GRID = N_GEMM + N_LN + N_INIT + 1

def srd(k, s, argoff, size):
    k(f's_load_dwordx2 s[{s}:{s+1}], s[0:1], {argoff}')
    k(f's_mov_b32 s{s+2}, {size}')
    k(f's_mov_b32 s{s+3}, 0x20000')

def gen_prep():
    k = K()
    WS = 's[4:7]'
    k(f's_cmp_ge_u32 s2, {PREP_GRID}')
    k('s_cbranch_scc1 P_exit')
    srd(k, 4, 112, WS_SIZE)
    k('v_lshrrev_b32 v1, 6, v0')
    k('v_and_b32 v2, 63, v0')
    k('v_readfirstlane_b32 s16, v1')
    k(f's_cmp_ge_u32 s2, {N_GEMM + N_LN}')
    k('s_cbranch_scc1 P_init')
    k(f's_cmp_ge_u32 s2, {N_GEMM}')
    k('s_cbranch_scc1 P_ln')
    k('s_cmp_ge_u32 s2, 112')
    k('s_cselect_b32 s17, 1, 0')
    k('s_mul_i32 s18, s17, 112')
    k('s_sub_u32 s18, s2, s18')
    k(f's_mul_hi_u32 s19, s18, {(1<<32)//7 + 1}')
    k('s_mul_i32 s20, s19, 7')
    k('s_sub_u32 s20, s18, s20')
    k('s_cmp_eq_u32 s17, 0')
    k('s_cbranch_scc0 P_gB0')
    srd(k, 8, 16, 3670016); srd(k, 12, 24, 3670016)
    k('s_branch P_g1')
    k.label('P_gB0')
    srd(k, 8, 32, 3670016); srd(k, 12, 40, 3670016)
    k.label('P_g1')
    vI, vG = 3, 4
    k(f'v_and_b32 v{vI}, 15, v2')
    k(f'v_lshrrev_b32 v{vG}, 4, v2')
    vR = 5
    k(f'v_lshrrev_b32 v9, 2, v{vI}')
    k('v_lshlrev_b32 v9, 3, v9')
    k(f'v_and_b32 v10, 3, v{vI}')
    k('v_add_u32 v9, v9, v10')
    k('s_lshl_b32 s21, s16, 6')
    k('v_add_u32 v9, s21, v9')
    k('v_lshlrev_b32 v9, 13, v9')
    k(f'v_lshl_add_u32 v9, v{vG}, 4, v9')
    k('s_lshl_b32 s21, s19, 9')
    k(f'v_add_u32 v{vR}, s21, v9')
    k(f'v_add_u32 v{vR+1}, {4*8192}, v{vR}')
    k(f'v_add_u32 v{vR+2}, {32*8192}, v{vR}')
    k(f'v_add_u32 v{vR+3}, {36*8192}, v{vR}')
    vC = 10
    vAcc = 16
    vRing = 80
    k('s_waitcnt lgkmcnt(0)')
    k('s_and_b32 s5, s5, 0xffff'); k('s_and_b32 s9, s9, 0xffff'); k('s_and_b32 s13, s13, 0xffff')
    def ldA(es):
        for rt in range(4):
            k(f'buffer_load_dwordx4 {vr(vRing+32*(es&3)+4*rt,4)}, v{vR+rt}, s[8:11], 0 offen offset:{es*64}')
    def mm(es):
        b = vRing + 32*(es&3)
        for rt in range(4):
            for ct in range(4):
                a = vAcc + 16*rt + 4*ct
                c = '0' if es == 0 else vr(a,4)
                k(f'v_mfma_f32_16x16x32_bf16 {vr(a,4)}, {vr(b+4*rt,4)}, {vr(b+16+4*ct,4)}, {c}')
    k('s_cmp_eq_u32 s17, 0')
    k('s_cbranch_scc0 P_gB')
    k(f'v_lshrrev_b32 v9, 3, v{vI}')
    k('v_lshlrev_b32 v9, 4, v9')
    k(f'v_bfe_u32 v14, v{vI}, 1, 1')
    k('v_lshl_add_u32 v9, v14, 2, v9')
    k(f'v_bfe_u32 v14, v{vI}, 2, 1')
    k('v_lshl_add_u32 v9, v14, 1, v9')
    k(f'v_and_b32 v14, 1, v{vI}')
    k('v_add_u32 v9, v9, v14')
    k('s_lshl_b32 s21, s20, 6')
    k('v_add_u32 v9, s21, v9')
    k('v_lshlrev_b32 v9, 13, v9')
    k(f'v_lshl_add_u32 v9, v{vG}, 4, v9')
    k('s_lshl_b32 s21, s19, 9')
    k(f'v_add_u32 v{vC}, s21, v9')
    k(f'v_add_u32 v{vC+1}, {8*8192}, v{vC}')
    k(f'v_add_u32 v{vC+2}, {32*8192}, v{vC}')
    k(f'v_add_u32 v{vC+3}, {40*8192}, v{vC}')
    def ldB(es):
        for ct in range(4):
            k(f'buffer_load_dwordx4 {vr(vRing+32*(es&3)+16+4*ct,4)}, v{vC+ct}, s[12:15], 0 offen offset:{es*64}')
    for es in range(4): ldA(es); ldB(es)
    for es in range(8):
        k(f's_waitcnt vmcnt({8*min(3, 7-es)})')
        mm(es)
        if es + 4 < 8: ldA(es+4); ldB(es+4)
    k(f's_mov_b32 s22, {f32bits(math.log2(math.e)/16):#x}')
    k(f's_mov_b32 s23, {WTA}')
    k('s_branch P_gepi')
    k.label('P_gB')
    for r in range(5):
        k(f'v_add_u32 v9, {448*r}, v0')
        k('v_lshrrev_b32 v14, 3, v9')
        k('v_and_b32 v15, 7, v9')
        k(f'v_mul_u32_u24 v{vAcc+8*r}, 896, v14')
        k(f'v_lshl_add_u32 v{vAcc+8*r}, v15, 4, v{vAcc+8*r}')
        k(f'v_bfe_u32 v{vAcc+8*r+2}, v14, 1, 1')
        k(f'v_bfe_u32 v{vAcc+8*r+3}, v14, 3, 1')
        k(f'v_lshl_add_u32 v{vAcc+8*r+2}, v{vAcc+8*r+3}, 1, v{vAcc+8*r+2}')
        k(f'v_lshlrev_b32 v{vAcc+8*r+2}, 1, v{vAcc+8*r+2}')
        k(f'v_xor_b32 v{vAcc+8*r+2}, v{vAcc+8*r+2}, v15')
        k(f'v_lshlrev_b32 v{vAcc+8*r+2}, 4, v{vAcc+8*r+2}')
        k(f'v_lshl_add_u32 v{vAcc+8*r+1}, v14, 7, v{vAcc+8*r+2}')
    k('s_mul_i32 s21, s19, 229376')
    k('s_lshl_b32 s24, s20, 7')
    k('s_add_u32 s21, s21, s24')
    for r in range(5):
        if r == 4:
            k('v_cmp_gt_u32 vcc, 256, v0'); k('s_nop 0')
            k('s_and_saveexec_b64 s[26:27], vcc')
            k('s_cbranch_execz P_gB1')
        k(f'buffer_load_dwordx4 {vr(vAcc+8*r+4,4)}, v{vAcc+8*r}, s[12:15], s21 offen')
    k('s_waitcnt vmcnt(0)')
    k(f'ds_write_b128 v{vAcc+33}, {vr(vAcc+36,4)}')
    k.label('P_gB1')
    k('s_mov_b64 exec, -1')
    for es in range(4): ldA(es)
    k('s_waitcnt vmcnt(16)')
    for r in range(4): k(f'ds_write_b128 v{vAcc+8*r+1}, {vr(vAcc+8*r+4,4)}')
    k('v_bfe_u32 v9, v2, 2, 2')
    k(f'v_lshl_add_u32 v9, v{vG}, 3, v9')
    k('v_lshlrev_b32 v9, 7, v9')
    k('v_and_b32 v14, 3, v2')
    k('v_lshl_add_u32 v9, v14, 3, v9')
    k('v_bfe_u32 v14, v2, 3, 1')
    k('v_bfe_u32 v15, v2, 4, 1')
    k('v_lshl_add_u32 v14, v15, 1, v14')
    for ct in range(4):
        k(f'v_xor_b32 v15, {ct}, v14')
        k(f'v_lshl_add_u32 v{vC+ct}, v15, 5, v9')
    k('s_waitcnt lgkmcnt(0)')
    k('s_barrier')
    def trB(es):
        for ct in range(4):
            for hh in range(2):
                k(f'ds_read_b64_tr_b16 {vr(vRing+32*(es&3)+16+4*ct+2*hh,2)}, v{vC+ct} offset:{es*4096+hh*512}')
    trB(0)
    for es in range(8):
        if es + 1 < 8: trB(es+1)
        k(f's_waitcnt vmcnt({4*min(3, 7-es)}) lgkmcnt({8 if es + 1 < 8 else 0})')
        mm(es)
        if es + 4 < 8: ldA(es+4)
    k('s_mov_b32 s22, 1.0')
    k(f's_mov_b32 s23, {WTB}')
    k.label('P_gepi')
    k('s_mul_i32 s21, s19, 28')
    k('s_lshl_b32 s24, s20, 2')
    k('s_add_u32 s21, s21, s24')
    k('s_mul_i32 s21, s21, 14')
    k('s_lshl_b32 s24, s16, 1')
    k('s_add_u32 s21, s21, s24')
    k('s_lshl_b32 s21, s21, 10')
    k('s_add_u32 s21, s21, s23')
    k('v_lshlrev_b32 v9, 4, v2')
    k('s_mov_b32 s23, s22')
    k.nop(2)
    for ct in range(4):
        for ks in range(2):
            d = vRing + 4*(2*ct+ks)
            for T in range(2):
                a = vAcc + 16*(2*ks+T) + 4*ct
                k(f'v_pk_mul_f32 {vr(a,2)}, {vr(a,2)}, s[22:23]')
                k(f'v_pk_mul_f32 {vr(a+2,2)}, {vr(a+2,2)}, s[22:23]')
                k(f'v_cvt_pk_bf16_f32 v{d+2*T}, v{a}, v{a+1}')
                k(f'v_cvt_pk_bf16_f32 v{d+2*T+1}, v{a+2}, v{a+3}')
            k(f'buffer_store_dwordx4 {vr(d,4)}, v9, {WS}, s21 offen offset:{ks*1024}')
        k('s_add_u32 s21, s21, 14336')
    k('s_endpgm')
    k.label('P_ln')
    srd(k, 8, 0, 1835008); srd(k, 12, 64, 896)
    k(f's_sub_u32 s17, s2, {N_GEMM}')
    k('s_mul_i32 s17, s17, 7')
    k('s_add_u32 s17, s17, s16')
    k('s_cmp_ge_u32 s17, 256')
    k('s_cbranch_scc1 P_exit')
    k('v_lshrrev_b32 v3, 3, v2')
    k('s_lshl_b32 s18, s17, 3')
    k('v_add_u32 v3, s18, v3')
    k('v_and_b32 v4, 7, v2')
    k('v_mul_u32_u24 v5, 896, v3')
    k('v_lshl_add_u32 v5, v4, 4, v5')
    k('v_lshlrev_b32 v6, 4, v4')
    vX, vW, vF = 16, 44, 72
    k('s_waitcnt lgkmcnt(0)')
    k('s_and_b32 s5, s5, 0xffff'); k('s_and_b32 s9, s9, 0xffff'); k('s_and_b32 s13, s13, 0xffff')
    for i in range(7): k(f'buffer_load_dwordx4 {vr(vX+4*i,4)}, v5, s[8:11], 0 offen offset:{i*128}')
    for i in range(7): k(f'buffer_load_dwordx4 {vr(vW+4*i,4)}, v6, s[12:15], 0 offen offset:{i*128}')
    k('v_lshrrev_b32 v7, 4, v3')
    k('v_mul_u32_u24 v7, 14336, v7')
    k('v_and_b32 v8, 15, v3')
    k('v_lshl_add_u32 v7, v8, 4, v7')
    k('v_lshrrev_b32 v8, 2, v4')
    k('v_lshl_add_u32 v7, v8, 10, v7')
    k('v_and_b32 v8, 3, v4')
    k('v_lshl_add_u32 v9, v8, 8, v7')
    k('v_bfe_u32 v8, v4, 1, 1')
    k('v_lshl_add_u32 v10, v8, 9, v7')
    k('v_and_b32 v8, 1, v4')
    k('v_lshl_add_u32 v10, v8, 3, v10')
    k('s_mov_b32 s20, 0xffff0000')
    k('s_waitcnt vmcnt(7)')
    for d in range(28):
        k(f'v_lshlrev_b32 v{vF+2*d}, 16, v{vX+d}')
        k(f'v_and_b32 v{vF+2*d+1}, s20, v{vX+d}')
    def red8(v):
        for ctl in ('quad_perm:[1,0,3,2]', 'quad_perm:[2,3,0,1]', 'row_half_mirror'):
            k.nop(2)
            k(f'v_add_f32_dpp v{v}, v{v}, v{v} {ctl} row_mask:0xf bank_mask:0xf')
    def rbf(v):
        k(f'v_cvt_pk_bf16_f32 v{v}, v{v}, v{v}')
        k(f'v_and_b32 v{v}, s20, v{v}')
    k(f'v_pk_add_f32 v[12:13], {vr(vF,2)}, {vr(vF+2,2)}')
    for d in range(2, 28): k(f'v_pk_add_f32 v[12:13], v[12:13], {vr(vF+2*d,2)}')
    k('v_add_f32 v12, v12, v13')
    red8(12)
    k(f's_mov_b32 s21, {f32bits(1/448):#x}')
    k('v_mul_f32 v12, s21, v12')
    k('v_mov_b32 v14, 0'); k('v_mov_b32 v15, 0')
    for d in range(28):
        k(f'v_pk_add_f32 {vr(vX,2)}, {vr(vF+2*d,2)}, v[12:13] op_sel_hi:[1,0] neg_lo:[0,1] neg_hi:[0,1]')
        k(f'v_pk_fma_f32 v[14:15], {vr(vX,2)}, {vr(vX,2)}, v[14:15]')
    k('v_add_f32 v14, v14, v15')
    red8(14)
    k('v_mul_f32 v14, s21, v14')
    rbf(14)
    k(f'v_add_f32 v14, {f32bits(1e-5):#x}, v14')
    rbf(14)
    k('v_sqrt_f32 v14, v14')
    k.nop(1)
    rbf(14)
    k('v_rcp_f32 v15, v14')
    rbf(12)
    k('s_waitcnt vmcnt(0)')
    k('v_mov_b32 v128, 0'); k('v_mov_b32 v129, 0')
    vO, vS = vX, 132
    for d in range(28):
        f = vF + 2*d
        k(f'v_pk_add_f32 {vr(f,2)}, {vr(f,2)}, v[12:13] op_sel_hi:[1,0] neg_lo:[0,1] neg_hi:[0,1]')
        k(f'v_cvt_pk_bf16_f32 v130, v{f}, v{f+1}')
        k(f'v_lshlrev_b32 v{f}, 16, v130')
        k(f'v_and_b32 v{f+1}, s20, v130')
        k(f'v_pk_mul_f32 v[130:131], {vr(f,2)}, v[14:15] op_sel:[0,1] op_sel_hi:[1,1]')
        k(f'v_pk_fma_f32 {vr(f,2)}, v[130:131], v[14:15], {vr(f,2)} op_sel_hi:[1,0,1] neg_lo:[1,0,0] neg_hi:[1,0,0]')
        k(f'v_pk_fma_f32 v[130:131], {vr(f,2)}, v[14:15], v[130:131] op_sel:[0,1,0] op_sel_hi:[1,1,1]')
        k(f'v_cvt_pk_bf16_f32 v{vO+d}, v130, v131')
        so = vS + 4*(d>>2) + {0:0, 1:2, 2:1, 3:3}[d&3]
        k(f'v_mov_b32 v{so}, v{vO+d}')
        k(f'v_dot2_f32_bf16 v{128+(d&1)}, v{vO+d}, v{vW+d}, v{128+(d&1)}')
    k(f's_mov_b32 s22, {XNR}'); k(f's_mov_b32 s23, {XNF}'); k(f's_mov_b32 s24, {XNS}')
    for i in range(7):
        k(f'buffer_store_dwordx4 {vr(vO+4*i,4)}, v5, {WS}, s22 offen offset:{i*128}')
        k(f'buffer_store_dwordx4 {vr(vO+4*i,4)}, v9, {WS}, s23 offen offset:{(i&1)*2048}')
        k(f'buffer_store_dwordx2 {vr(vS+4*i,2)}, v10, {WS}, s24 offen offset:{(i&1)*2048}')
        k(f'buffer_store_dwordx2 {vr(vS+4*i+2,2)}, v10, {WS}, s24 offen offset:{(i&1)*2048+256}')
        if i & 1:
            k('s_add_u32 s23, s23, 4096'); k('s_add_u32 s24, s24, 4096')
    k.nop(2)
    k('v_add_f32 v128, v128, v129')
    red8(128)
    rbf(128)
    k('v_lshlrev_b32 v3, 2, v3')
    k(f's_mov_b32 s22, {RR}')
    k(f'buffer_store_dword v128, v3, {WS}, s22 offen')
    k('s_endpgm')
    k.label('P_init')
    k(f's_sub_u32 s17, s2, {N_GEMM + N_LN}')
    k(f's_cmp_eq_u32 s17, {N_INIT}')
    k('s_cbranch_scc1 P_mem0')
    k('s_waitcnt lgkmcnt(0)')
    k('s_and_b32 s5, s5, 0xffff')
    k(f's_mov_b32 s6, {SENT_END - MEM_S}')
    k('v_lshlrev_b32 v3, 4, v0')
    k(f's_mul_i32 s18, s17, {448*16*10}')
    k(f's_add_u32 s18, s18, {MEM + MEM_S}')
    for r in range(4): k(f'v_mov_b32 v{4+r}, -1')
    for r in range(10):
        k(f'buffer_store_dwordx4 v[4:7], v3, {WS}, s18 offen')
        k(f's_add_u32 s18, s18, {448*16}')
    k('s_endpgm')
    k.label('P_mem0')
    srd(k, 8, 8, 7168)
    k('s_waitcnt lgkmcnt(0)')
    k('s_and_b32 s5, s5, 0xffff'); k('s_and_b32 s9, s9, 0xffff')
    for r in range(4):
        k(f'v_add_u32 v3, {448*r}, v0')
        k('v_bfe_u32 v4, v3, 2, 3')
        k('v_mul_u32_u24 v4, 896, v4')
        k('v_lshrrev_b32 v5, 6, v3')
        k('v_lshl_add_u32 v4, v5, 5, v4')
        k('v_and_b32 v5, 3, v3')
        k('v_lshl_add_u32 v4, v5, 3, v4')
        k('v_bfe_u32 v5, v3, 5, 1')
        k('v_lshl_add_u32 v4, v5, 2, v4')
        k(f'buffer_load_dword v{8+r}, v4, s[8:11], 0 offen')
        k(f'v_lshlrev_b32 v{12+r}, 2, v3')
    k(f's_mov_b32 s18, {MEM}')
    k(f's_mov_b32 s19, {SENT_END - MEM_S}')
    k('s_waitcnt vmcnt(0)')
    for r in range(4):
        k(f'v_min_u32 v{8+r}, -2, v{8+r}')
        k(f'buffer_store_dword v{8+r}, v{12+r}, {WS}, s18 offen')
        k(f'buffer_store_dword v{8+r}, v{12+r}, {WS}, s19 offen')
    k(f's_mov_b32 s6, {FLG + FLG_SZ}')
    k(f's_mov_b32 s18, {FLG}')
    k('v_lshlrev_b32 v3, 4, v0')
    for r in range(4): k(f'v_mov_b32 v{4+r}, 0')
    for r in range(5):
        k(f'buffer_store_dwordx4 v[4:7], v3, {WS}, s18 offen')
        k(f's_add_u32 s18, s18, {448*16}')
    k.label('P_exit')
    k('s_endpgm')
    return k
```

```python
from chain import *
from prep import srd, f32bits
WS = 's[4:7]'
sH, sBLK, sSEG, sQT, sCG, sJ = 60, 61, 62, 63, 64, 65
vLn, vL16 = 1, 2

def wait_flag(k, off_sgpr, target, vT, name='Lwf'):
    lp, dn = k.newlabel(name), k.newlabel(name + 'd')
    k(f's_mov_b32 s{sCNT}, 0')
    k.label(lp)
    k(f'buffer_load_dword v{vT}, off, {WS}, s{off_sgpr} sc1')
    k(f's_add_u32 s{sCNT}, s{sCNT}, 1')
    k(f's_cmp_gt_u32 s{sCNT}, s{sT2}')
    k('s_cbranch_scc1 L_fail')
    k('s_waitcnt vmcnt(0)')
    k(f'v_cmp_le_u32 vcc, {target}, v{vT}')
    k(f's_cbranch_vccnz {dn}')
    k('s_sleep 8')
    k(f's_branch {lp}')
    k.label(dn)

def signal(k, off_sgpr, vT):
    dn = k.newlabel('Lsg')
    k('s_waitcnt vmcnt(0)')
    k('s_barrier')
    k(f's_cmp_lg_u32 s{sWAVE}, 0')
    k(f's_cbranch_scc1 {dn}')
    k('s_mov_b64 exec, 1')
    k(f'v_mov_b32 v{vT}, 1')
    k(f'buffer_atomic_add v{vT}, off, {WS}, s{off_sgpr}')
    k('s_mov_b64 exec, -1')
    k.label(dn)

ACC0 = 32
def acc(lt, tt): return ACC0 + 4*(lt*8 + tt)

def gemm(k, wbase, swap):
    vW = 8
    vX2 = 15
    k(f's_mul_i32 s40, s{sBLK}, 114688')
    k(f's_mul_i32 s41, s{sWAVE}, 28672')
    k(f's_add_u32 s40, s40, s41')
    k(f's_add_u32 s40, s40, {XNF}')
    k('s_barrier')
    for j in range(7):
        k(f's_mov_b32 m0, s41')
        k(f's_add_u32 s41, s41, 4096')
        for f in range(4):
            k(f'buffer_load_dwordx4 v{vL16}, {WS}, s40 offen offset:{f*1024} lds')
        k(f's_add_u32 s40, s40, 4096')
    k(f's_mul_i32 s42, s{sH}, {28*14336}')
    k(f's_mul_i32 s41, s{sWAVE}, {7*14336}')
    k(f's_add_u32 s42, s42, s41')
    k(f's_add_u32 s42, s42, {wbase}')
    for lt in range(7): k(f'v_add_u32 v{vW+lt}, {lt*14336}, v{vL16}')
    k(f'v_add_u32 v{vX2}, 57344, v{vL16}')
    def ldw(ks, lt): return f'buffer_load_dwordx4 {ar(28*(ks%3)+4*lt,4)}, v{vW+lt}, {WS}, s42 offen offset:{(ks&3)*1024}'
    def ldx(ks, tt): return f'ds_read_b128 {ar(84+32*(ks&1)+4*tt,4)}, v{vL16 if tt<4 else vX2} offset:{(tt&3)*14336+ks*1024}'
    for ks in range(2):
        for lt in range(7): k(ldw(ks, lt))
    k('s_waitcnt vmcnt(14)')
    k('s_barrier')
    for tt in range(8): k(ldx(0, tt))
    for ks in range(14):
        k(f's_waitcnt vmcnt({7 if ks < 13 else 0}) lgkmcnt(0)')
        if (ks + 2) % 4 == 0 and ks + 2 < 14: k('s_add_u32 s42, s42, 4096')
        for tt in range(8):
            for lt in range(7):
                x, w = ar(84+32*(ks&1)+4*tt,4), ar(28*(ks%3)+4*lt,4)
                a, b = (w, x) if swap else (x, w)
                c = '0' if ks == 0 else vr(acc(lt,tt),4)
                k(f'v_mfma_f32_16x16x32_bf16 {vr(acc(lt,tt),4)}, {a}, {b}, {c}')
                if lt == 1 and ks + 1 < 14: k(ldx(ks+1, tt))
                if lt == 4 and tt < 7 and ks + 2 < 14: k(ldw(ks+2, tt))

def task_U(k):
    k.label('T_U')
    gemm(k, WTB, False)
    k(f's_mul_i32 s40, s{sBLK}, {4*UF_SEG}')
    k(f's_lshl_b32 s41, s{sH}, 11')
    k(f's_add_u32 s40, s40, s41')
    k(f's_add_u32 s40, s40, {UF}')
    k(f's_mul_i32 s41, s{sWAVE}, 7')
    for lt in range(7):
        k(f's_add_u32 s42, s41, {lt}')
        k(f's_lshr_b32 s43, s42, 1')
        k(f's_lshl_b32 s43, s43, 15')
        k(f's_and_b32 s42, s42, 1')
        k(f's_lshl_b32 s42, s42, 10')
        k(f's_add_u32 s{44+lt}, s40, s43')
        k(f's_add_u32 s{44+lt}, s{44+lt}, s42')
    for q in range(4):
        for lt in range(7):
            a, b = acc(lt, 2*q), acc(lt, 2*q+1)
            k(f'v_cvt_pk_bf16_f32 v{a}, v{a}, v{a+1}')
            k(f'v_cvt_pk_bf16_f32 v{a+1}, v{a+2}, v{a+3}')
            k(f'v_cvt_pk_bf16_f32 v{a+2}, v{b}, v{b+1}')
            k(f'v_cvt_pk_bf16_f32 v{a+3}, v{b+2}, v{b+3}')
            k(f'buffer_store_dwordx4 {vr(a,4)}, v{vL16}, {WS}, s{44+lt} offen sc1')
            k(f's_add_u32 s{44+lt}, s{44+lt}, {UF_SEG}')
    k(f's_lshl_b32 s40, s{sBLK}, 7')
    k(f's_add_u32 s40, s40, {flag(F_U)}')
    signal(k, 40, 3)
    k('s_branch W_next')

def xlane_red(k, op, m, t):
    for sw in ('v_permlane16_swap_b32', 'v_permlane32_swap_b32'):
        k(f'v_mov_b32 v{t}, v{m}')
        k.nop(2)
        k(f'{sw} v{m}, v{t}')
        k(f'{op} v{m}, v{m}, v{t}')

def task_P(k):
    k.label('T_P')
    gemm(k, WTA, True)
    vE, vO, vG, vI, vMK, vT = 16, 17, 18, 19, 20, 21
    k(f's_mul_i32 s40, s{sWAVE}, 7')
    k(f's_lshr_b32 s40, s40, 1')
    k(f's_lshl_b32 s40, s40, 10')
    k(f's_and_b32 s41, s{sWAVE}, 1')
    k(f's_lshl_b32 s42, s41, 3')
    k(f's_add_u32 s42, s42, s40')
    k(f's_mul_i32 s43, s41, 1016')
    k(f's_add_u32 s43, s43, 8')
    k(f's_add_u32 s43, s43, s40')
    k(f'v_add_u32 v{vE}, s42, v{vL16}')
    k(f'v_add_u32 v{vO}, s43, v{vL16}')
    k(f'v_add_u32 v{vT}, 57344, v{vE}')
    k(f'v_add_u32 v{vT+1}, 57344, v{vO}')
    k('s_barrier')
    for tt in range(8):
        for lt in range(7):
            a = acc(lt, tt)
            k(f'v_cvt_pk_bf16_f32 v{a}, v{a}, v{a+1}')
            k(f'v_cvt_pk_bf16_f32 v{a+1}, v{a+2}, v{a+3}')
            ad = (vE if lt % 2 == 0 else vO) if tt < 4 else (vT if lt % 2 == 0 else vT+1)
            k(f'ds_write_b64 v{ad}, {vr(a,2)} offset:{(tt&3)*14336 + (lt>>1)*1024}')
    k(f's_lshl_b32 s{sSEG}, s{sBLK}, 2')
    k(f's_add_u32 s{sSEG}, s{sSEG}, s{sWAVE}')
    k(f's_mul_i32 s40, s{sSEG}, 28672')
    k(f's_add_u32 s40, s40, {XNS}')
    vKT, vKM, vS = 32, 144, 200
    k('s_waitcnt lgkmcnt(0)')
    for f in range(28):
        k(f'buffer_load_dwordx4 {vr(vKT+4*f,4)}, v{vL16}, {WS}, s40 offen offset:{(f&3)*1024}')
        if (f&3) == 3: k('s_add_u32 s40, s40, 4096')
    k('s_barrier')
    k(f's_mul_i32 s41, s{sWAVE}, 28672')
    k(f'v_add_u32 v{vT}, s41, v{vL16}')
    for f in range(28): k(f'ds_read_b128 {ar(4*f,4)}, v{vT} offset:{f*1024}')
    k(f'v_lshrrev_b32 v{vG}, 4, v{vLn}')
    k(f'v_and_b32 v{vI}, 15, v{vLn}')
    k(f'v_lshrrev_b32 v{vMK}, 1, v{vG}')
    k(f'v_lshlrev_b32 v{vMK}, 8, v{vMK}')
    k(f'v_and_b32 v{vT}, 7, v{vI}')
    k(f'v_lshl_add_u32 v{vMK}, v{vT}, 4, v{vMK}')
    k(f'v_and_b32 v{vT}, 1, v{vG}')
    k(f'v_lshl_add_u32 v{vMK}, v{vT}, 7, v{vMK}')
    k(f'v_lshlrev_b32 v{vT}, 2, v{vG}')
    for r in range(4):
        k(f'v_cmp_gt_u32 s[{44+2*r}:{45+2*r}], v{vT}, v{vI}')
        if r < 3: k(f'v_add_u32 v{vT}, 1, v{vT}')
    k(f'v_cmp_gt_u32 s[52:53], 2, v{vG}')
    St = {(1,0): vS, (1,1): vS+4, (2,1): vS+8, (0,0): vS+12, (0,1): vS+16}
    k('s_waitcnt vmcnt(0) lgkmcnt(0)')
    for ks in range(14):
        for (kt, qt) in ((1,0), (1,1), (2,1)):
            c = '0' if ks == 0 else vr(St[kt,qt],4)
            k(f'v_mfma_f32_16x16x32_bf16 {vr(St[kt,qt],4)}, {vr(vKT+56*(kt-1)+4*ks,4)}, {ar(56*qt+4*ks,4)}, {c}')
    k(f's_add_u32 s40, s{sSEG}, 63')
    k(f's_and_b32 s40, s40, 63')
    k(f's_mul_i32 s40, s40, {MEM_S}')
    k(f's_add_u32 s40, s40, {MEMX}')
    k(f's_add_u32 s41, s40, 4096')
    lp, dn = k.newlabel('Lpm'), k.newlabel('Lpd')
    k(f's_mov_b32 s{sCNT}, 0')
    k.label(lp)
    for ks in range(14):
        k(f'buffer_load_dwordx4 {vr(vKM+4*ks,4)}, v{vMK}, {WS}, s{40 if ks < 8 else 41} offen offset:{(ks&7)*512} sc1')
    k(f's_add_u32 s{sCNT}, s{sCNT}, 1')
    k(f's_cmp_gt_u32 s{sCNT}, s{sT2}')
    k('s_cbranch_scc1 L_fail')
    k('s_waitcnt vmcnt(0)')
    k(f'v_max3_u32 v{vT}, v{vKM}, v{vKM+1}, v{vKM+2}')
    for r in range(3, 55, 2): k(f'v_max3_u32 v{vT}, v{vT}, v{vKM+r}, v{vKM+r+1}')
    k(f'v_max_u32 v{vT}, v{vT}, v{vKM+55}')
    k(f'v_cmp_eq_u32 vcc, -1, v{vT}')
    k(f's_cbranch_vccz {dn}')
    l2 = k.newlabel('Lpl')
    k.label(l2)
    k('s_sleep 8')
    k(f'buffer_load_dword v{vT}, v{vMK}, {WS}, s41 offen offset:2560 sc1')
    k(f's_add_u32 s{sCNT}, s{sCNT}, 1')
    k(f's_cmp_gt_u32 s{sCNT}, s{sT2}')
    k('s_cbranch_scc1 L_fail')
    k('s_waitcnt vmcnt(0)')
    k(f'v_cmp_eq_u32 vcc, -1, v{vT}')
    k(f's_cbranch_vccnz {l2}')
    k(f's_branch {lp}')
    k.label(dn)
    for ks in range(14):
        for qt in range(2):
            c = '0' if ks == 0 else vr(St[0,qt],4)
            k(f'v_mfma_f32_16x16x32_bf16 {vr(St[0,qt],4)}, {vr(vKM+4*ks,4)}, {ar(56*qt+4*ks,4)}, {c}')
    k(f's_mul_i32 s40, s{sSEG}, {PT_SEG}')
    k(f's_add_u32 s40, s40, {PT}')
    k(f's_lshl_b32 s41, s{sH}, 11')
    k(f's_add_u32 s41, s41, s40')
    k(f's_lshr_b32 s42, s{sH}, 1')
    k(f's_lshl_b32 s42, s42, 11')
    k(f's_and_b32 s43, s{sH}, 1')
    k(f's_lshl_b32 s43, s43, 2')
    k(f's_add_u32 s42, s42, s43')
    k(f's_add_u32 s42, s42, s40')
    k(f's_add_u32 s42, s42, 32768')
    k(f'v_mov_b32 v{vT+2}, 0xff800000')
    k.nop(2)
    for d in ((1,0), (2,1)):
        for r in range(4):
            k(f'v_cndmask_b32 v{St[d]+r}, v{St[d]+r}, v{vT+2}, s[{44+2*r}:{45+2*r}]')
    for qt in range(2):
        tiles = [St[0,qt], St[1,qt]] + ([St[2,1]] if qt else [])
        regs = [t + r for t in tiles for r in range(4)]
        m, t, l = 24, 26, 28
        k(f'v_max3_f32 v{m}, v{regs[0]}, v{regs[1]}, v{regs[2]}')
        for i in range(3, len(regs) - 1, 2): k(f'v_max3_f32 v{m}, v{m}, v{regs[i]}, v{regs[i+1]}')
        k(f'v_max_f32 v{m}, v{m}, v{regs[-1]}')
        xlane_red(k, 'v_max_f32', m, t)
        for i in range(0, len(regs), 2):
            k(f'v_pk_add_f32 {vr(regs[i],2)}, {vr(regs[i],2)}, {vr(m,2)} op_sel_hi:[1,0] neg_lo:[0,1] neg_hi:[0,1]')
        for r in regs: k(f'v_exp_f32 v{r}, v{r}')
        k.nop(1)
        k(f'v_pk_add_f32 {vr(l,2)}, {vr(regs[0],2)}, {vr(regs[2],2)}')
        k(f'v_add_f32 v{l}, v{l}, v{l+1}')
        k(f'v_cndmask_b32 v{l}, 0, v{l}, s[52:53]')
        k(f'v_mov_b32 v{l+1}, 0')
        for i in range(4, len(regs), 2): k(f'v_pk_add_f32 {vr(l,2)}, {vr(l,2)}, {vr(regs[i],2)}')
        k(f'v_add_f32 v{l}, v{l}, v{l+1}')
        xlane_red(k, 'v_add_f32', l, t)
        k(f'v_rcp_f32 v{l}, v{l}')
        k.nop(1)
        for i in range(0, len(regs), 2):
            k(f'v_pk_mul_f32 {vr(regs[i],2)}, {vr(regs[i],2)}, {vr(l,2)} op_sel_hi:[1,0]')
        o = 220 + 8*qt
        k(f'v_cvt_pk_bf16_f32 v{o}, v{regs[4]}, v{regs[5]}')
        k(f'v_cvt_pk_bf16_f32 v{o+1}, v{regs[6]}, v{regs[7]}')
        if qt:
            k(f'v_cvt_pk_bf16_f32 v{o+2}, v{regs[8]}, v{regs[9]}')
            k(f'v_cvt_pk_bf16_f32 v{o+3}, v{regs[10]}, v{regs[11]}')
        else:
            k(f'v_mov_b64 {vr(o+2,2)}, 0')
        k(f'v_cvt_pk_bf16_f32 v{o+4}, v{regs[0]}, v{regs[1]}')
        k(f'v_cvt_pk_bf16_f32 v{o+5}, v{regs[2]}, v{regs[3]}')
        k(f'buffer_store_dwordx4 {vr(o,4)}, v{vL16}, {WS}, s41 offen offset:{qt*1024} sc1')
        k(f'buffer_store_dword v{o+4}, v{vL16}, {WS}, s42 offen offset:{qt*1024} sc1')
        k(f'buffer_store_dword v{o+5}, v{vL16}, {WS}, s42 offen offset:{qt*1024+8} sc1')
    k(f's_lshl_b32 s40, s{sBLK}, 7')
    k(f's_add_u32 s40, s40, {flag(F_P)}')
    signal(k, 40, 3)
    k('s_branch W_next')

def rbf(k, v, sMaskHi):
    k(f'v_cvt_pk_bf16_f32 v{v}, v{v}, v{v}')
    k(f'v_and_b32 v{v}, s{sMaskHi}, v{v}')

def task_V(k):
    k.label('T_V')
    vU, vUM, vP, vD, vT = 32, 96, 128, 152, 16
    k(f's_lshr_b32 s{sBLK}, s{sSEG}, 2')
    k(f's_lshl_b32 s40, s{sBLK}, 7')
    k(f's_add_u32 s40, s40, {flag(F_U)}')
    wait_flag(k, 40, 16, vT)
    k(f's_mul_i32 s40, s{sSEG}, {UF_SEG}')
    k(f's_lshl_b32 s41, s{sCG}, 16')
    k(f's_add_u32 s40, s40, s41')
    k(f's_lshl_b32 s41, s{sWAVE}, 13')
    k(f's_add_u32 s40, s40, s41')
    k(f's_add_u32 s40, s40, {UF}')
    for bb in range(2):
        for hp in range(2):
            k(f's_add_u32 s41, s40, {bb*32768 + hp*4096}')
            for f in range(4):
                hh, T = 2*hp + (f>>1), f&1
                k(f'buffer_load_dwordx4 {vr(vU+16*(2*bb+T)+4*hh,4)}, v{vL16}, {WS}, s41 offen offset:{f*1024} sc1')
    srd(k, 68, 0, 1835008); srd(k, 72, 96, 1835008)
    vRow, vOff = vT+1, vT+2
    k(f's_lshl_b32 s42, s{sSEG}, 5')
    k(f's_lshl_b32 s43, s{sQT}, 4')
    k(f's_add_u32 s42, s42, s43')
    k(f'v_and_b32 v{vRow}, 15, v{vLn}')
    k(f'v_add_u32 v{vRow}, s42, v{vRow}')
    k(f'v_mul_u32_u24 v{vOff}, 896, v{vRow}')
    k(f'v_lshrrev_b32 v{vT+3}, 4, v{vLn}')
    k(f's_lshl_b32 s42, s{sCG}, 7')
    k(f's_lshl_b32 s43, s{sWAVE}, 5')
    k(f's_add_u32 s42, s42, s43')
    k(f'v_lshl_add_u32 v{vT+3}, v{vT+3}, 3, s42')
    k(f'v_add_u32 v{vOff}, v{vOff}, v{vT+3}')
    k(f's_mov_b32 s43, {XNR}')
    k('s_waitcnt lgkmcnt(0)')
    k('s_and_b32 s69, s69, 0xffff'); k('s_and_b32 s73, s73, 0xffff')
    vXr, vXn = vT+4, vT+6
    k(f'buffer_load_dwordx2 {vr(vXr,2)}, v{vOff}, s[68:71], 0 offen')
    k(f'buffer_load_dwordx2 {vr(vXn,2)}, v{vOff}, {WS}, s43 offen')
    k(f's_mov_b32 s40, {flag(F_M2)}')
    wait_flag(k, 40, 28, vT)
    vIx = 168
    k(f's_mov_b32 s40, {IDX}')
    for j in range(4): k(f'buffer_load_dwordx4 {vr(vIx+4*j,4)}, off, {WS}, s40 offset:{16*j} sc1')
    vSel, vSig, vY = 184, 185, 188
    k(f'v_mov_b32 v{vSel}, 0x40000000')
    k(f'v_mov_b32 v{vSig}, 0')
    k('s_waitcnt vmcnt(0)')
    for j in range(8):
        k(f'v_cmp_eq_u32 vcc, v{vIx+j}, v{vRow}')
        k(f'v_mov_b32 v{vT}, {j*1792}')
        k('s_nop 0')
        k(f'v_cndmask_b32 v{vSel}, v{vSel}, v{vT}, vcc')
        k(f'v_cndmask_b32 v{vSig}, v{vSig}, v{vIx+8+j}, vcc')
    k(f'v_lshl_add_u32 v{vSel}, v{vT+3}, 1, v{vSel}')
    for q in range(4):
        k(f's_mov_b32 s40, {UPD + q*14336}')
        k(f'buffer_load_dwordx4 {vr(vY+4*q,4)}, v{vSel}, {WS}, s40 offen sc1')
    k(f's_lshl_b32 s40, s{sBLK}, 7')
    k(f's_add_u32 s40, s40, {flag(F_P)}')
    wait_flag(k, 40, 16, vT)
    k(f's_mul_i32 s40, s{sSEG}, {PT_SEG}')
    k(f's_lshl_b32 s41, s{sQT}, 10')
    k(f's_add_u32 s40, s40, s41')
    k(f's_add_u32 s40, s40, {PT}')
    k(f's_lshl_b32 s41, s{sWAVE}, 13')
    k(f's_add_u32 s41, s41, s40')
    k(f's_add_u32 s42, s41, 4096')
    for hh in range(4):
        k(f'buffer_load_dwordx4 {vr(vP+4*hh,4)}, v{vL16}, {WS}, s{41 if hh<2 else 42} offen offset:{(hh&1)*2048} sc1')
    k(f's_lshl_b32 s41, s{sWAVE}, 12')
    k(f's_add_u32 s41, s41, s40')
    k(f's_add_u32 s41, s41, 32768')
    for u in range(2):
        k(f'buffer_load_dwordx4 {vr(vP+16+4*u,4)}, v{vL16}, {WS}, s41 offen offset:{u*2048} sc1')
    k(f's_lshl_b32 s40, s{sSEG}, 7')
    k(f's_add_u32 s40, s40, {flag(F_UM)}')
    wait_flag(k, 40, 14, vT)
    k(f's_mul_i32 s40, s{sSEG}, {UM_SEG}')
    k(f's_mul_i32 s41, s{sWAVE}, {2*28672}')
    k(f's_add_u32 s40, s40, s41')
    k(f's_lshl_b32 s41, s{sCG}, 12')
    k(f's_add_u32 s40, s40, s41')
    k(f's_add_u32 s40, s40, {UM}')
    k(f's_add_u32 s41, s40, 28672')
    for u in range(2):
        for ct in range(4):
            k(f'buffer_load_dwordx4 {vr(vUM+8*ct+4*u,4)}, v{vL16}, {WS}, s{40+u} offen offset:{ct*1024} sc1')
    k('s_mov_b32 s54, 0xffff0000')
    for h in range(2):
        k(f'v_pk_add_f32 {vr(vY+2*h,2)}, {vr(vY+2*h,2)}, {vr(vY+4+2*h,2)}')
        k(f'v_pk_add_f32 {vr(vY+8+2*h,2)}, {vr(vY+8+2*h,2)}, {vr(vY+12+2*h,2)}')
        k(f'v_pk_add_f32 {vr(vY+2*h,2)}, {vr(vY+2*h,2)}, {vr(vY+8+2*h,2)}')
    vB, vXf = vY+4, vY+8
    for r in range(4):
        rbf(k, vY+r, 54)
        k(f'v_mul_f32 v{vY+r}, v{vY+r}, v{vSig}')
        rbf(k, vY+r, 54)
        src = vXn + (r>>1)
        k(f'v_lshlrev_b32 v{vB+r}, 16, v{src}' if r % 2 == 0 else f'v_and_b32 v{vB+r}, s54, v{src}')
        k(f'v_add_f32 v{vB+r}, v{vB+r}, v{vY+r}')
        rbf(k, vB+r, 54)
        src = vXr + (r>>1)
        k(f'v_lshlrev_b32 v{vXf+r}, 16, v{src}' if r % 2 == 0 else f'v_and_b32 v{vXf+r}, s54, v{src}')
    k('s_barrier')
    k('s_waitcnt vmcnt(8)')
    for hh in range(4):
        for ct in range(4):
            c = '0' if hh == 0 else vr(vD+4*ct,4)
            k(f'v_mfma_f32_16x16x32_bf16 {vr(vD+4*ct,4)}, {vr(vU+16*ct+4*hh,4)}, {vr(vP+4*hh,4)}, {c}')
    k('s_waitcnt vmcnt(0)')
    for u in range(2):
        for ct in range(4):
            k(f'v_mfma_f32_16x16x32_bf16 {vr(vD+4*ct,4)}, {vr(vUM+8*ct+4*u,4)}, {vr(vP+16+4*u,4)}, {vr(vD+4*ct,4)}')
    k(f's_lshl_b32 s40, s{sWAVE}, 12')
    k(f'v_add_u32 v{vT}, s40, v{vL16}')
    k(f's_lshl_b32 s40, s{sWAVE}, 10')
    k(f'v_add_u32 v{vT+3}, s40, v{vL16}')
    k.nop(2)
    for ct in range(4): k(f'ds_write_b128 v{vT}, {vr(vD+4*ct,4)} offset:{ct*1024}')
    k('s_waitcnt lgkmcnt(0)')
    k('s_barrier')
    for w in range(4): k(f'ds_read_b128 {vr(vU+4*w,4)}, v{vT+3} offset:{w*4096}')
    k('s_waitcnt lgkmcnt(0)')
    for h in range(2):
        k(f'v_pk_add_f32 {vr(vU+2*h,2)}, {vr(vU+2*h,2)}, {vr(vU+4+2*h,2)}')
        k(f'v_pk_add_f32 {vr(vU+8+2*h,2)}, {vr(vU+8+2*h,2)}, {vr(vU+12+2*h,2)}')
        k(f'v_pk_add_f32 {vr(vU+2*h,2)}, {vr(vU+2*h,2)}, {vr(vU+8+2*h,2)}')
    for r in range(4):
        rbf(k, vU+r, 54)
        k(f'v_add_f32 v{vU+r}, v{vU+r}, v{vXf+r}')
        rbf(k, vU+r, 54)
        k(f'v_add_f32 v{vU+r}, v{vU+r}, v{vB+r}')
    k(f'v_cvt_pk_bf16_f32 v{vU}, v{vU}, v{vU+1}')
    k(f'v_cvt_pk_bf16_f32 v{vU+1}, v{vU+2}, v{vU+3}')
    k(f'buffer_store_dwordx2 {vr(vU,2)}, v{vOff}, s[72:75], 0 offen')
    k('s_branch W_next')

def moe_stage(k, srdreg, pitch, soff, lds, vT):
    k(f'v_lshrrev_b32 v{vT}, 3, v0')
    k(f'v_and_b32 v{vT+1}, 7, v0')
    k(f's_mov_b32 s44, {pitch}')
    k(f'v_mul_lo_u32 v{vT+2}, v{vT}, s44')
    k(f'v_lshl_add_u32 v{vT+2}, v{vT+1}, 4, v{vT+2}')
    k(f'v_bfe_u32 v{vT+3}, v{vT}, 1, 1')
    k(f'v_bfe_u32 v{vT+4}, v{vT}, 3, 1')
    k(f'v_lshl_add_u32 v{vT+3}, v{vT+4}, 1, v{vT+3}')
    k(f'v_lshlrev_b32 v{vT+3}, 1, v{vT+3}')
    k(f'v_xor_b32 v{vT+3}, v{vT+3}, v{vT+1}')
    k(f'v_lshlrev_b32 v{vT+3}, 4, v{vT+3}')
    k(f'v_lshl_add_u32 v{vT+3}, v{vT}, 7, v{vT+3}')
    if lds: k(f'v_add_u32 v{vT+3}, {lds}, v{vT+3}')
    k(f's_mov_b32 s44, s{soff}')
    for r in range(14):
        k(f'buffer_load_dwordx4 {vr(32+4*r,4)}, v{vT+2}, s[{srdreg}:{srdreg+3}], s44 offen')
        k(f's_add_u32 s44, s44, {32*pitch}')
    for r in range(14):
        k(f's_waitcnt vmcnt({13-r})')
        k(f'ds_write_b128 v{vT+3}, {vr(32+4*r,4)} offset:{r*4096}')

def moe_mm(k, lds, vA, vD, vAd, vB):
    for ks in range(14):
        for hh in range(2): k(f'ds_read_b64_tr_b16 {vr(vB+4*ks+2*hh,2)}, v{vAd} offset:{lds + ks*4096 + hh*512}')
    k('s_waitcnt lgkmcnt(0)')
    for ks in range(14):
        k(f'v_mfma_f32_16x16x32_bf16 {vr(vD,4)}, {vr(vA+4*ks,4)}, {vr(vB+4*ks,4)}, {"0" if ks == 0 else vr(vD,4)}')

def moe_traddr(k, vAd, vT):
    k(f'v_bfe_u32 v{vAd}, v{vLn}, 2, 2')
    k(f'v_lshrrev_b32 v{vT}, 4, v{vLn}')
    k(f'v_lshl_add_u32 v{vAd}, v{vT}, 3, v{vAd}')
    k(f'v_lshlrev_b32 v{vAd}, 7, v{vAd}')
    k(f'v_and_b32 v{vT}, 3, v{vLn}')
    k(f'v_lshl_add_u32 v{vAd}, v{vT}, 3, v{vAd}')
    k(f'v_bfe_u32 v{vT}, v{vLn}, 3, 1')
    k(f'v_bfe_u32 v{vT+1}, v{vLn}, 4, 1')
    k(f'v_lshl_add_u32 v{vT}, v{vT+1}, 1, v{vT}')
    k(f'v_xor_b32 v{vT}, s{sWAVE}, v{vT}')
    k(f'v_lshl_add_u32 v{vAd}, v{vT}, 5, v{vAd}')

def sigmoid(k, v, t):
    k(f'v_mul_f32 v{t}, {f32bits(-1.4426950408889634):#x}, v{v}')
    k(f'v_exp_f32 v{t}, v{t}')
    k.nop(1)
    k(f'v_add_f32 v{t}, 1.0, v{t}')
    k(f'v_rcp_f32 v{v}, v{t}')
    k.nop(1)

def task_M1(k):
    k.label('T_M1')
    vT = 16
    srd(k, 68, 72, 1605632); srd(k, 72, 80, 1605632)
    vK = 160
    k(f's_mov_b32 s40, {RR}')
    k(f's_add_u32 s41, s40, 4096')
    for j in range(8): k(f'buffer_load_dwordx4 {vr(vK+4*j,4)}, v{vL16}, {WS}, s{40 + (j>>2)} offen offset:{(j&3)*1024}')
    k(f'v_lshlrev_b32 v{vT}, 2, v{vLn}')
    k(f'v_sub_u32 v{vT}, 0xffff, v{vT}')
    k('s_mov_b32 s54, 0xffff0000')
    k('s_waitcnt vmcnt(0) lgkmcnt(0)')
    k('s_and_b32 s69, s69, 0xffff'); k('s_and_b32 s73, s73, 0xffff')
    for j in range(32):
        r = vK + j
        k(f'v_ashrrev_i32 v{vT+1}, 31, v{r}')
        k(f'v_or_b32 v{vT+1}, 0x80000000, v{vT+1}')
        k(f'v_xor_b32 v{r}, v{r}, v{vT+1}')
        k(f'v_subrev_u32 v{vT+1}, {(j>>2)*256 + (j&3)}, v{vT}')
        k(f'v_and_or_b32 v{r}, v{r}, s54, v{vT+1}')
    m, t = vT+2, vT+3
    for it in range(8):
        k(f'v_max3_u32 v{m}, v{vK}, v{vK+1}, v{vK+2}')
        for r in range(3, 31, 2): k(f'v_max3_u32 v{m}, v{m}, v{vK+r}, v{vK+r+1}')
        k(f'v_max_u32 v{m}, v{m}, v{vK+31}')
        for rot in (8, 4, 2, 1):
            k.nop(2)
            k(f'v_max_u32_dpp v{m}, v{m}, v{m} row_ror:{rot} row_mask:0xf bank_mask:0xf')
        xlane_red(k, 'v_max_u32', m, t)
        k.nop(1)
        k(f'v_readfirstlane_b32 s{76+it}, v{m}')
        if it < 7:
            for j in range(32):
                k(f'v_cmp_eq_u32 vcc, v{m}, v{vK+j}')
                k('s_nop 1')
                k(f'v_cndmask_b32 v{vK+j}, v{vK+j}, 0, vcc')
    vKy, vIx = vT+4, vT+5
    k(f'v_mov_b32 v{vKy}, s76')
    k(f'v_and_b32 v{t}, 7, v{vLn}')
    for j in range(1, 8):
        k(f'v_cmp_eq_u32 vcc, {j}, v{t}')
        k(f'v_mov_b32 v{m}, s{76+j}')
        k('s_nop 0')
        k(f'v_cndmask_b32 v{vKy}, v{vKy}, v{m}, vcc')
    k(f'v_and_b32 v{vIx}, 0xffff, v{vKy}')
    k(f'v_sub_u32 v{vIx}, 0xffff, v{vIx}')
    sk = k.newlabel('Lm1s')
    k(f's_or_b32 s40, s{sJ}, s{sWAVE}')
    k('s_cmp_lg_u32 s40, 0')
    k(f's_cbranch_scc1 {sk}')
    k(f'v_and_b32 v{m}, s54, v{vKy}')
    k(f'v_not_b32 v{t}, v{m}')
    k(f'v_ashrrev_i32 v{t}, 31, v{t}')
    k(f'v_or_b32 v{t}, 0x80000000, v{t}')
    k(f'v_xor_b32 v{m}, v{m}, v{t}')
    k(f'v_and_b32 v{m}, s54, v{m}')
    sigmoid(k, m, t)
    rbf(k, m, 54)
    k(f'v_lshlrev_b32 v{t}, 2, v{vLn}')
    k(f's_mov_b32 s40, {IDX}')
    k('s_mov_b64 exec, 0xff')
    k(f'buffer_store_dword v{vIx}, v{t}, {WS}, s40 offen sc1')
    k(f'buffer_store_dword v{m}, v{t}, {WS}, s40 offen offset:32 sc1')
    k('s_mov_b64 exec, -1')
    k.label(sk)
    vA = 96
    k(f'v_mul_u32_u24 v{m}, 896, v{vIx}')
    k(f'v_lshrrev_b32 v{t}, 4, v{vLn}')
    k(f'v_lshl_add_u32 v{m}, v{t}, 4, v{m}')
    k(f's_mov_b32 s40, {XNR}')
    for ks in range(14): k(f'buffer_load_dwordx4 {vr(vA+4*ks,4)}, v{m}, {WS}, s40 offen offset:{ks*64}')
    k('s_barrier')
    k(f's_lshl_b32 s43, s{sJ}, 7')
    moe_stage(k, 68, 3584, 43, 0, 24)
    moe_stage(k, 72, 3584, 43, 57344, 24)
    vAd = vT
    moe_traddr(k, vAd, vT+1)
    k(f'v_add_u32 v{vT+1}, 57344, v{vAd}')
    k('s_waitcnt lgkmcnt(0)')
    k('s_barrier')
    vG, vUu = 24, 28
    moe_mm(k, 0, vA, vG, vAd, 32)
    moe_mm(k, 0, vA, vUu, vT+1, 160)
    k(f'v_lshrrev_b32 v{vT+2}, 4, v{vLn}')
    k(f'v_mul_u32_u24 v{vT+2}, {4*3584}, v{vT+2}')
    k(f'v_and_b32 v{vT+3}, 15, v{vLn}')
    k(f'v_lshl_add_u32 v{vT+2}, v{vT+3}, 1, v{vT+2}')
    k(f's_lshl_b32 s40, s{sWAVE}, 5')
    k(f's_add_u32 s40, s40, s43')
    k(f's_add_u32 s40, s40, {HB}')
    k.nop(4)
    k('s_mov_b32 exec_hi, 0')
    for r in range(4):
        rbf(k, vG+r, 54); rbf(k, vUu+r, 54)
        k(f'v_mov_b32 v{vT+4}, v{vG+r}')
        sigmoid(k, vT+4, vT+5)
        k(f'v_mul_f32 v{vG+r}, v{vG+r}, v{vT+4}')
        rbf(k, vG+r, 54)
        k(f'v_mul_f32 v{vG+r}, v{vG+r}, v{vUu+r}')
        k(f'v_cvt_pk_bf16_f32 v{vG+r}, v{vG+r}, v{vG+r}')
        k(f'buffer_store_short v{vG+r}, v{vT+2}, {WS}, s40 offen sc1')
        k(f's_add_u32 s40, s40, 3584')
    k('s_mov_b64 exec, -1')
    k(f's_mov_b32 s40, {flag(F_M1)}')
    signal(k, 40, 3)
    k('s_branch W_next')

def task_M2(k):
    k.label('T_M2')
    vT = 16
    srd(k, 68, 88, 1605632)
    k(f's_mul_hi_u32 s45, s{sJ}, {(1<<32)//7 + 1}')
    k(f's_mul_i32 s46, s45, 7')
    k(f's_sub_u32 s46, s{sJ}, s46')
    k(f's_mul_i32 s43, s45, {448*896}')
    k(f's_lshl_b32 s40, s46, 7')
    k(f's_add_u32 s43, s43, s40')
    k('s_waitcnt lgkmcnt(0)')
    k('s_and_b32 s69, s69, 0xffff')
    k('s_barrier')
    moe_stage(k, 68, 896, 43, 0, 24)
    vAd = vT
    moe_traddr(k, vAd, vT+1)
    k(f's_mov_b32 s40, {flag(F_M1)}')
    wait_flag(k, 40, 28, vT+1)
    vA = 96
    k(f'v_and_b32 v{vT+1}, 7, v{vLn}')
    k(f'v_mul_u32_u24 v{vT+1}, 3584, v{vT+1}')
    k(f'v_lshrrev_b32 v{vT+2}, 4, v{vLn}')
    k(f'v_lshl_add_u32 v{vT+1}, v{vT+2}, 4, v{vT+1}')
    k(f's_mul_i32 s40, s45, 896')
    k(f's_add_u32 s40, s40, {HB}')
    for ks in range(14): k(f'buffer_load_dwordx4 {vr(vA+4*ks,4)}, v{vT+1}, {WS}, s40 offen offset:{ks*64} sc1')
    k('s_waitcnt vmcnt(0) lgkmcnt(0)')
    k('s_barrier')
    moe_mm(k, 0, vA, 24, vAd, 32)
    k(f'v_mul_u32_u24 v{vT+2}, {4*1792}, v{vT+2}')
    k(f'v_and_b32 v{vT+3}, 15, v{vLn}')
    k(f'v_lshl_add_u32 v{vT+2}, v{vT+3}, 2, v{vT+2}')
    k(f's_mul_i32 s40, s45, 14336')
    k(f's_lshl_b32 s41, s46, 8')
    k(f's_add_u32 s40, s40, s41')
    k(f's_lshl_b32 s41, s{sWAVE}, 6')
    k(f's_add_u32 s40, s40, s41')
    k(f's_add_u32 s40, s40, {UPD}')
    k('s_mov_b32 exec_hi, 0')
    for r in range(4):
        k(f'buffer_store_dword v{24+r}, v{vT+2}, {WS}, s40 offen sc1')
        k(f's_add_u32 s40, s40, 1792')
    k('s_mov_b64 exec, -1')
    k(f's_mov_b32 s40, {flag(F_M2)}')
    signal(k, 40, 3)
    k('s_branch W_next')

LTK = 163832
sSW, sOK, sXR = 66, 67, 3
Q_SWEEP, Q_U2, Q_M1, Q_M2, Q_P0 = 0, 7, 39, 67, 95
Q_G = Q_P0 + 48
Q_T = Q_G + 13*72
Q_END = Q_T + 3*56
DBG = 's[8:11]'

def atomic_ret(k, vT, off):
    k(f'v_mov_b32 v{vT}, 1')
    k(f'buffer_atomic_add v{vT}, off, {DBG}, {off[0]} offset:{off[1]} sc0')
    k('s_waitcnt vmcnt(0)')

def worker(k, mode_wait=20000):
    k.label('L_worker')
    k(f'v_and_b32 v{vLn}, 63, v0')
    k(f'v_lshlrev_b32 v{vL16}, 4, v{vLn}')
    k(f's_mov_b32 s{sT2}, {POLL_LIMIT}')
    k(f's_mov_b32 s{sSTEP}, 255')
    k(f's_mov_b32 s{sOK}, 0')
    k(f's_add_u32 s{sXR}, s{sXR}, 7')
    k(f's_and_b32 s{sXR}, s{sXR}, 7')
    k(f's_add_u32 s{sSW}, s{sXR}, 1')
    k(f's_and_b32 s{sSW}, s{sSW}, 7')
    k(f's_mov_b32 s56, 1')
    k.label('W_next')
    k(f's_cmp_lg_u32 s{sWAVE}, 0')
    k('s_cbranch_scc1 W_bc')
    k('s_mov_b64 exec, 1')
    k.label('W_again')
    k(f's_cmp_eq_u32 s{sSW}, 0')
    k('s_cbranch_scc1 W_nosw')
    k(f's_lshl_b32 s40, s{sSW}, 2')
    atomic_ret(k, 3, ('s40', 28))
    k('v_readfirstlane_b32 s41, v3')
    k(f's_sub_u32 s42, s{sSW}, 1')
    k('s_lshl_b32 s42, s42, 5')
    k('s_cmp_eq_u32 s56, 1')
    k(f's_cselect_b32 s{sSW}, 0, s{sSW}')
    k('s_mov_b32 s56, 0')
    k('s_add_u32 s42, s42, s41')
    k('s_or_b32 s42, s42, 0x10000')
    k('s_cmp_lt_u32 s41, 32')
    k('s_cbranch_scc1 W_wr')
    k(f's_mov_b32 s{sSW}, 0')
    k.label('W_nosw')
    k('s_mov_b32 s56, 0')
    k(f's_cmp_eq_u32 s{sOK}, 1')
    k('s_cbranch_scc1 W_tk')
    k(f's_mov_b32 s{sCNT}, 0')
    k.label('W_md')
    k(f'buffer_load_dword v3, off, {DBG}, 0 offset:128 sc1')
    k(f's_add_u32 s{sCNT}, s{sCNT}, 1')
    k('s_waitcnt vmcnt(0)')
    k('v_readfirstlane_b32 s41, v3')
    k('s_nop 3')
    k('s_cmp_lg_u32 s41, 0')
    k('s_cbranch_scc1 W_md1')
    k(f's_cmp_lt_u32 s{sCNT}, {mode_wait}')
    k('s_cbranch_scc1 W_md')
    k('v_mov_b32 v4, 2')
    k('v_mov_b32 v5, 0')
    k(f'buffer_atomic_cmpswap v[4:5], off, {DBG}, 0 offset:128')
    k('s_waitcnt vmcnt(0)')
    k(f's_mov_b32 s{sCNT}, 0')
    k('s_branch W_md')
    k.label('W_md1')
    k(f's_mov_b32 s{sOK}, 1')
    k('s_cmp_eq_u32 s41, 1')
    k('s_cbranch_scc1 W_tk')
    atomic_ret(k, 3, ('0', 0))
    k('v_readfirstlane_b32 s41, v3')
    k('s_nop 3')
    k('s_or_b32 s42, s41, 0x20000')
    k('s_cmp_lt_u32 s41, 32')
    k('s_cbranch_scc1 W_wr')
    k.label('W_tk')
    atomic_ret(k, 3, ('0', 192))
    k('v_readfirstlane_b32 s42, v3')
    k('s_nop 3')
    k(f's_cmp_lt_u32 s42, {Q_U2}')
    k('s_cbranch_scc0 W_wr')
    k(f's_add_u32 s{sSW}, s42, 1')
    k('s_branch W_again')
    k.label('W_wr')
    k('v_mov_b32 v3, s42')
    k(f'v_mov_b32 v4, {LTK}')
    k('ds_write_b32 v4, v3')
    k('s_waitcnt lgkmcnt(0)')
    k('s_mov_b64 exec, -1')
    k.label('W_bc')
    k('s_barrier')
    k(f'v_mov_b32 v4, {LTK}')
    k('ds_read_b32 v3, v4')
    k('s_waitcnt lgkmcnt(0)')
    k('v_readfirstlane_b32 s42, v3')
    k('s_nop 3')
    k('s_cmp_lt_u32 s42, 0x10000')
    k('s_cbranch_scc1 W_q')
    k('s_cmp_lt_u32 s42, 0x20000')
    k('s_cbranch_scc0 W_role')
    k('s_and_b32 s42, s42, 0xffff')
    k(f's_mul_hi_u32 s{sH}, s42, {(1<<32)//14 + 1}')
    k(f's_mul_i32 s41, s{sH}, 14')
    k(f's_sub_u32 s{sBLK}, s42, s41')
    k('s_branch T_U')
    k.label('W_role')
    k(f's_and_b32 s{sROLE}, s42, 0xffff')
    k('s_barrier')
    k('s_branch L_dispatch')
    k.label('W_q')
    k(f's_cmp_ge_u32 s42, {Q_END}')
    k('s_cbranch_scc1 L_exit')
    k(f's_cmp_lt_u32 s42, {Q_M1}')
    k('s_cbranch_scc0 W_q1')
    k(f's_sub_u32 s42, s42, {Q_U2}')
    k(f's_and_b32 s{sH}, s42, 15')
    k(f's_lshr_b32 s{sBLK}, s42, 4')
    k(f's_add_u32 s{sBLK}, s{sBLK}, 14')
    k('s_branch T_U')
    k.label('W_q1')
    k(f's_sub_u32 s{sJ}, s42, {Q_M1}')
    k(f's_cmp_lt_u32 s42, {Q_M2}')
    k('s_cbranch_scc1 T_M1')
    k(f's_sub_u32 s{sJ}, s42, {Q_M2}')
    k(f's_cmp_lt_u32 s42, {Q_P0}')
    k('s_cbranch_scc1 T_M2')
    k(f's_cmp_lt_u32 s42, {Q_G}')
    k('s_cbranch_scc0 W_q2')
    k(f's_sub_u32 s42, s42, {Q_P0}')
    k(f's_and_b32 s{sH}, s42, 15')
    k(f's_lshr_b32 s{sBLK}, s42, 4')
    k('s_branch T_P')
    k.label('W_q2')
    k(f's_cmp_lt_u32 s42, {Q_T}')
    k('s_cbranch_scc0 W_q3')
    k(f's_sub_u32 s42, s42, {Q_G}')
    k(f's_mul_hi_u32 s41, s42, {(1<<32)//72 + 1}')
    k('s_mul_i32 s43, s41, 72')
    k('s_sub_u32 s42, s42, s43')
    k(f's_mov_b32 s{sH}, s42')
    k(f's_add_u32 s{sBLK}, s41, 3')
    k('s_cmp_lt_u32 s42, 16')
    k('s_cbranch_scc1 T_P')
    k('s_sub_u32 s42, s42, 16')
    k('s_mul_i32 s41, s41, 56')
    k('s_add_u32 s42, s42, s41')
    k('s_branch W_v')
    k.label('W_q3')
    k(f's_sub_u32 s42, s42, {Q_T - 13*56}')
    k.label('W_v')
    k(f's_mul_hi_u32 s{sSEG}, s42, {(1<<32)//14 + 1}')
    k(f's_mul_i32 s41, s{sSEG}, 14')
    k('s_sub_u32 s42, s42, s41')
    k('s_cmp_ge_u32 s42, 7')
    k(f's_cselect_b32 s{sQT}, 1, 0')
    k(f's_mul_i32 s41, s{sQT}, 7')
    k(f's_sub_u32 s{sCG}, s42, s41')
    k('s_branch T_V')
    task_U(k); task_P(k); task_V(k); task_M1(k); task_M2(k)
```

```python
import sys
from main_k import *
from prep import *
import worker, chain
def emit(parts, launches):
    out = ''.join(f'; @launch kernel={n} grid=({g},1,1) block=({b},1,1) lds={l}\n' for n, g, b, l in launches)
    out += '.amdgcn_target "amdgcn-amd-amdhsa--gfx950"\n.text\n'
    for name, k, vg, acc in parts:
        for e in check(k.lines, name): print('HAZARD', e)
        out += khead(name) + k.text() + kd(name, vg, acc)
    return out
if __name__ == '__main__':
    if sys.argv[1] == 'prep':
        open(sys.argv[2], 'w').write(emit([('prep_kernel', gen_prep(), 208, 208)], [('prep_kernel', PREP_GRID, 448, 32768)]))
    if sys.argv[1] == 'full':
        stamps = False; pref = 0; mw = 20000
        for a in sys.argv[3:]:
            kk, vv = a.split('=')
            if kk == 'stamps': stamps = bool(int(vv))
            elif kk == 'pref': pref = int(vv)
            elif kk == 'mw': mw = int(vv)
            else: chain.OPT[kk] = int(vv) if vv.isdigit() else vv
        k = K()
        main_prologue(k, pref_xcd=pref, stamps=stamps)
        worker.worker(k, mw)
        role_A(k, stamps); role_B(k, stamps, worker.wait_flag); role_P(k)
        fail_exit(k)
        hdr = open('parallel_sum__memory_aug_recurrent_mem_tr__moe_arch_mod__prompt.s.ref').read().split('; Override launch')[0]
        open(sys.argv[2], 'w').write(hdr + emit([('prep_kernel', gen_prep(), 208, 208), ('main_kernel', k, 512, 256)],
             [('prep_kernel', PREP_GRID, 448, 32768), ('main_kernel', 256, 256, 163840)]))
```

```python
from asmlib import *
from layout import *

class K(Asm):
    def __init__(self):
        super().__init__()
        self.dsq = []; self.cold = []; self.vmq = []
    def ds(self, text, tag=None):
        self(text); self.dsq.append(tag)
    def wds(self, tag):
        if tag not in self.dsq: return
        idx = max(i for i, t in enumerate(self.dsq) if t == tag)
        n = len(self.dsq) - 1 - idx
        assert n <= 15
        self(f's_waitcnt lgkmcnt({n})')
        self.dsq = self.dsq[idx+1:]
    def wds0(self):
        self('s_waitcnt lgkmcnt(0)'); self.dsq = []
    def vm(self, text, tag=None):
        self(text); self.vmq.append(tag)
    def wvm(self, *tags, extra=''):
        idx = max([i for i, t in enumerate(self.vmq) if t in tags], default=-1)
        if idx < 0:
            if extra: self('s_waitcnt ' + extra)
            return
        n = len(self.vmq) - 1 - idx
        assert n <= 63
        self(f's_waitcnt vmcnt({n}) {extra}')
        self.vmq = self.vmq[idx+1:]
    def flush_cold(self):
        for l in self.cold: self(l)
        self.cold = []

SWS, SDBG = 4, 8
sROLE, sWAVE, sSTEP, sMODE, sM, sP, sX, sUM, sCNT = 12, 13, 14, 15, 16, 17, 18, 19, 20
sT0, sT1, sT2 = 21, 22, 23
sMASK8 = 24
sID = 26
sST = 28
sTM = 30
POLL_LIMIT = 400000
NSTEP = 63
OPT = dict(sa='late', sb='early', um='sc1', uf='sc1', sleepA=0, sleepB=0, stampmask=15, rt=0, barA=1, barB=1, prefP=0, pfd=2, pfs=128, upos='early', ud=2, apf=1, nb=7, stag=2, wpos=1, rsp=1, s1pos=0, upre=8, uneed=16, ust='sc1', rot=1, k1st='sc1', uwin=2)

def stamp(k, idx, on):
    if not on or not (OPT['stampmask'] >> idx) & 1: return
    k(('s_memrealtime' if OPT['rt'] else 's_memtime') + f' s[{sTM}:{sTM+1}]')
    k.wds0()
    k(f'v_mov_b32 v0, s{sTM}')
    k(f'buffer_store_dword v0, off, s[{SWS}:{SWS+3}], s{sST} offset:{idx*4}')

def publish(k, text):
    ls, ld = k.newlabel('Lslow'), k.newlabel('Lpub')
    k(f's_cbranch_scc0 {ls}')
    k(text)
    k.label(ld)
    k.cold += [ls + ':', text + ' sc1', f's_branch {ld}']

def gather_mem(k, vG, vOff0, vOff1, vL0, vL1, vT):
    lp, dn = k.newlabel('Lgm'), k.newlabel('Lgd')
    k(f's_mov_b32 s{sCNT}, 0')
    k.label(lp)
    k(f'buffer_load_dwordx4 {vr(vG,4)}, v{vOff0}, s[{SWS}:{SWS+3}], s{sM} offen sc1')
    k(f'buffer_load_dwordx4 {vr(vG+4,4)}, v{vOff1}, s[{SWS}:{SWS+3}], s{sM} offen sc1')
    k(f's_add_u32 s{sCNT}, s{sCNT}, 1')
    k(f's_cmp_gt_u32 s{sCNT}, s{sT2}')
    k('s_cbranch_scc1 L_fail')
    k('s_waitcnt vmcnt(1)')
    k(f'v_max3_u32 v{vT}, v{vG}, v{vG+1}, v{vG+2}')
    k('s_waitcnt vmcnt(0)')
    k(f'v_max3_u32 v{vT+1}, v{vG+4}, v{vG+5}, v{vG+6}')
    k(f'v_max3_u32 v{vT}, v{vT}, v{vG+3}, v{vG+7}')
    k(f'v_max_u32 v{vT}, v{vT}, v{vT+1}')
    k(f'v_cmp_eq_u32 vcc, -1, v{vT}')
    k(f's_cbranch_vccnz {lp}')
    if vL0 is None: return
    k.ds(f'ds_write_b128 v{vL0}, {vr(vG,4)}')
    k.ds(f'ds_write_b128 v{vL1}, {vr(vG+4,4)}')
    k.wds0()
    k('s_barrier')

def wait_mode(k, vT):
    lp = k.newlabel('Lwm')
    k(f's_mov_b32 s{sCNT}, 0')
    k.label(lp)
    k(f'buffer_load_dword v{vT}, off, s[{SDBG}:{SDBG+3}], 0 offset:128 sc1')
    k(f's_add_u32 s{sCNT}, s{sCNT}, 1')
    k(f's_cmp_gt_u32 s{sCNT}, s{sT2}')
    k('s_cbranch_scc1 L_fail')
    k('s_waitcnt vmcnt(0)')
    k(f'v_readfirstlane_b32 s{sMODE}, v{vT}')
    k('s_nop 3')
    k(f's_cmp_eq_u32 s{sMODE}, 0')
    k(f's_cbranch_scc1 {lp}')

def common_lane_setup(k, vLane, vL16, vG0, vG1, vIdx, vT):
    k(f'v_and_b32 v{vLane}, 63, v0')
    k(f'v_lshlrev_b32 v{vL16}, 4, v{vLane}')
    if vG0 is not None:
        k(f's_lshl_b32 s{sT0}, s{sWAVE}, 10')
        k(f'v_add_u32 v{vG0}, s{sT0}, v{vL16}')
        k(f's_add_u32 s{sT0}, s{sWAVE}, 4')
        k(f's_min_u32 s{sT0}, s{sT0}, 6')
        k(f's_lshl_b32 s{sT0}, s{sT0}, 10')
        k(f'v_add_u32 v{vG1}, s{sT0}, v{vL16}')
    k(f'v_and_b32 v{vT}, 8, v{vLane}')
    k(f'v_mov_b32 v{vIdx}, 0x4444')
    k(f'v_mov_b32 v{vT+1}, 0xeeee')
    k(f'v_cmp_ne_u32 vcc, 0, v{vT}')
    k('s_nop 1')
    k(f'v_cndmask_b32 v{vIdx}, v{vIdx}, v{vT+1}, vcc')
    k(f's_mov_b32 s{sT2}, {POLL_LIMIT}')

def role_A(k, stamps=False):
    vLane, vL16, vIdx = 1, 2, 3
    vKey, vKeyS, vMK, vMKS, vQW, vQR, vSW, vSR, vPO, vVal = 4, 5, 6, 7, 8, 9, 10, 11, 12, 13
    vT = 14
    vM = 16
    vQ = 44
    vKT = 72
    vKM = 100
    vX = 114
    vG0, vG1 = 118, 119
    def W(lt, kb):
        i = lt*7 + kb
        return (256 + 8*i) if i < 32 else (120 + 8*(i-32))
    LM, LSP, LQS = 0, 7168, 20480
    k.label('L_roleA')
    k(f's_mov_b32 s{sID}, s{sROLE}')
    common_lane_setup(k, vLane, vL16, vG0, vG1, vIdx, vX)
    k(f's_lshr_b32 s{sT0}, s{sWAVE}, 1')
    k(f's_mul_i32 s{sT0}, s{sT0}, 14')
    k(f's_and_b32 s{sT1}, s{sWAVE}, 1')
    k(f's_add_u32 s33, s{sT0}, 6')
    k(f's_add_u32 s33, s33, s{sT1}')
    k(f's_lshl_b32 s34, s{sT1}, 3')
    k(f's_add_u32 s32, s{sT0}, s34')
    k(f's_mul_i32 s35, s{sID}, {28*14*1024}')
    k(f's_add_u32 s35, s35, {WTA}')
    k(f's_mul_i32 s36, s32, {14*1024}')
    k(f's_add_u32 s36, s36, s35')
    k(f's_mul_i32 s37, s33, {14*1024}')
    k(f's_add_u32 s37, s37, s35')
    for j in range(7):
        k(f's_add_u32 s{50+j}, s{sWAVE}, {(4*j) % 7}')
        k(f's_sub_u32 s40, s{50+j}, 7')
        k(f's_cmp_ge_u32 s{50+j}, 7')
        k(f's_cselect_b32 s{50+j}, s40, s{50+j}')
        k(f's_lshl_b32 s{50+j}, s{50+j}, 10')
    n = 0
    for lt in range(7):
        sb = 36 if lt < 6 else 37
        for j in range(7):
            k(f's_lshl_b32 s40, s{50+j}, 1')
            k(f's_add_u32 s40, s40, s{sb}')
            for f in range(2):
                k(f'buffer_load_dwordx4 {xr(W(lt, j) + 4*f,4)}, v{vL16}, s[{SWS}:{SWS+3}], s40 offen offset:{f*1024}')
                n += 1
                if n % 16 == 0: k('s_waitcnt vmcnt(40)')
        k(f's_add_u32 s{sb}, s{sb}, 14336')
    k(f'v_add_u32 v{vG1}, s51, v{vL16}')
    t = vX
    g, i = vQ, vQ+1
    k(f'v_lshrrev_b32 v{g}, 4, v{vLane}')
    k(f'v_and_b32 v{i}, 15, v{vLane}')
    k(f's_lshr_b32 s38, s32, 1')
    k(f's_lshr_b32 s39, s33, 1')
    k(f's_lshl_b32 s40, s38, 10')
    k(f'v_add_u32 v{vKey}, s40, v{vL16}')
    k(f's_lshl_b32 s40, s39, 10')
    k(f's_add_u32 s40, s40, s34')
    k(f'v_add_u32 v{vKeyS}, s40, v{vL16}')
    k(f'v_lshrrev_b32 v{t}, 1, v{g}')
    k(f'v_lshlrev_b32 v{t}, 8, v{t}')
    k(f'v_and_b32 v{t+1}, 7, v{i}')
    k(f'v_lshlrev_b32 v{t+1}, 4, v{t+1}')
    k(f'v_add_u32 v{t}, v{t}, v{t+1}')
    k(f'v_and_b32 v{t+1}, 1, v{g}')
    k(f'v_lshlrev_b32 v{t+1}, 7, v{t+1}')
    k(f'v_add_u32 v{t}, v{t}, v{t+1}')
    k(f's_lshl_b32 s40, s38, 9')
    k(f'v_add_u32 v{vMK}, s40, v{t}')
    k(f's_lshl_b32 s40, s39, 9')
    k(f's_add_u32 s40, s40, s34')
    k(f'v_add_u32 v{vMKS}, s40, v{t}')
    k(f's_lshl_b32 s40, s{sWAVE}, 10')
    k(f's_add_u32 s40, s40, {LQS}')
    k(f'v_lshrrev_b32 v{t}, 2, v{i}')
    k(f'v_add_u32 v{t}, v{t}, v{g}')
    k(f'v_and_b32 v{t}, 3, v{t}')
    k(f'v_lshlrev_b32 v{t}, 3, v{t}')
    k(f'v_lshlrev_b32 v{t+1}, 5, v{i}')
    k(f'v_add3_u32 v{vQW}, v{t}, v{t+1}, s40')
    k(f'v_lshrrev_b32 v{t}, 2, v{vLane}')
    k(f'v_lshlrev_b32 v{t}, 5, v{t}')
    k(f'v_add_u32 v{t+1}, v{vLane}, v{g}')
    k(f'v_and_b32 v{t+1}, 3, v{t+1}')
    k(f'v_lshlrev_b32 v{t+1}, 3, v{t+1}')
    k(f'v_add3_u32 v{vQR}, v{t}, v{t+1}, s40')
    k(f's_mul_i32 s40, s{sWAVE}, 3264')
    k(f's_add_u32 s40, s40, {LSP}')
    k(f'v_lshlrev_b32 v{t}, 4, v{i}')
    k(f'v_mul_u32_u24 v{t+1}, 272, v{g}')
    k(f'v_add3_u32 v{vSW}, v{t}, v{t+1}, s40')
    k(f'v_subrev_u32 v{t}, 12, v{i}')
    k(f'v_cmp_le_u32 vcc, 12, v{i}')
    k('s_nop 1')
    k(f'v_cndmask_b32 v{t}, v{i}, v{t}, vcc')
    k(f'v_lshrrev_b32 v{t+1}, 5, v{vLane}')
    k(f's_lshl_b32 s40, s{sWAVE}, 1')
    k(f'v_add_u32 v{t+1}, s40, v{t+1}')
    k(f'v_and_b32 v{t+2}, 1, v{g}')
    k(f'v_lshl_add_u32 v{t+3}, v{t+2}, 3, v{t+1}')
    k(f'v_lshlrev_b32 v{t+3}, 4, v{t+3}')
    k(f'v_mul_u32_u24 v{vSR}, 272, v{t}')
    k(f'v_add_u32 v{vSR}, v{vSR}, v{t+3}')
    if LSP: k(f'v_add_u32 v{vSR}, {LSP}, v{vSR}')
    k(f'v_and_b32 v{vPO}, 1, v{i}')
    k(f'v_lshlrev_b32 v{vPO}, 3, v{vPO}')
    k(f'v_lshl_add_u32 v{vPO}, v{t+1}, 4, v{vPO}')
    k(f'v_lshl_add_u32 v{vPO}, v{t+2}, 2, v{vPO}')
    k(f'v_bfe_u32 v{t}, v{i}, 1, 1')
    k(f'v_lshl_add_u32 v{vPO}, v{t}, 8, v{vPO}')
    k(f's_lshl_b32 s40, s{sID}, 7')
    k(f's_add_u32 s40, s40, 8192')
    k(f's_lshr_b32 s41, s{sID}, 1')
    k(f's_lshl_b32 s41, s41, 10')
    k(f's_and_b32 s42, s{sID}, 1')
    k(f's_lshl_b32 s42, s42, 7')
    k(f's_add_u32 s41, s41, s42')
    k(f'v_mov_b32 v{t}, s40')
    k(f'v_mov_b32 v{t+1}, s41')
    k(f'v_add_u32 v{t+2}, 0x200, v{t+1}')
    k(f'v_mov_b32 v{t+3}, 0x40000000')
    k(f'v_mov_b32 v{vVal}, 1.0')
    for lim, src in ((2, t+3), (4, t+1), (8, t+2), (12, t+3)):
        k(f'v_cmp_le_u32 vcc, {lim}, v{i}')
        k('s_nop 1')
        k(f'v_cndmask_b32 v{t}, v{t}, v{src}, vcc')
    k(f'v_add_u32 v{vPO}, v{vPO}, v{t}')
    k(f'v_cmp_le_u32 vcc, v{t+3}, v{vPO}')
    k('s_nop 1')
    k(f'v_cndmask_b32 v{vVal}, v{vVal}, 0, vcc')
    k(f's_mov_b32 s{sSTEP}, 0')
    k(f's_mov_b32 s{sM}, {MEM}')
    k(f's_mov_b32 s{sP}, {PB}')
    k(f's_mov_b32 s{sX}, {XNS}')
    k(f's_lshl_b32 s40, s{sID}, 2')
    k(f's_add_u32 s40, s40, s{sWAVE}')
    k(f's_mul_i32 s40, s40, 7168')
    k(f'v_min_u32 v{vX}, 55, v{vLane}')
    k(f'v_lshlrev_b32 v{vX}, 7, v{vX}')
    k(f'v_add_u32 v{vX}, s40, v{vX}')
    k(f"s_mov_b32 s{sUM}, {UF + OPT['ud']*UF_SEG}")
    WS = f's[{SWS}:{SWS+3}]'
    def load_keys():
        k(f's_add_u32 s{sT0}, s{sX}, 14336')
        for p in range(3):
            k(f'buffer_load_dwordx4 {vr(vKT+8*p,4)}, v{vKey}, {WS}, s{sX} offen offset:{p*1024}')
            k(f'buffer_load_dwordx4 {vr(vKT+8*p+4,4)}, v{vKey}, {WS}, s{sT0} offen offset:{p*1024}')
        k(f'buffer_load_dwordx2 {vr(vKT+24,2)}, v{vKeyS}, {WS}, s{sX} offen')
        k(f'buffer_load_dwordx2 {vr(vKT+26,2)}, v{vKeyS}, {WS}, s{sT0} offen')
        k(f's_add_u32 s{sX}, s{sX}, 28672')
        k(f's_add_u32 s{sT0}, s{sSTEP}, {1 + OPT["ud"]}')
        k(f's_lshr_b32 s{sT0}, s{sT0}, 2')
        k(f's_lshl_b32 s{sT0}, s{sT0}, 7')
        k(f's_add_u32 s{sT0}, s{sT0}, {flag(F_U)}')
        k(f'buffer_load_dword v{vX+2}, off, {WS}, s{sT0} sc1')
    k(f's_mov_b32 s{sSTEP}, -1')
    load_keys()
    k(f's_mov_b32 s{sSTEP}, 0')
    wait_mode(k, vX+3)
    k.label('L_A_loop')
    for r in range(0, 28, 2): k(f'v_mov_b64 {vr(vQ+r,2)}, 0')
    for j in range(2, 7): k(f'v_add_u32 v{vKM+j}, s{50+j}, v{vL16}')
    gather_mem(k, vM, vG0, vG1, None, None, vT)
    stamp(k, 0, stamps)
    def M(lt, kb):
        return f'v_smfmac_f32_16x16x64_bf16 {vr(vQ+4*lt,4)}, {vr(vM+4*kb,4)}, {xr(W(lt,kb),8)}, v{vIdx}'
    mk = [f'ds_read_b128 {vr(vKM+4*p,4)}, v{vMK} offset:{LM+p*512}' for p in range(3)]
    mk.append(f'ds_read_b64 {vr(vKM+12,2)}, v{vMKS} offset:{LM}')
    wrs = [f'ds_write_b128 v{vG0}, {vr(vM,4)} offset:{LM}', f'ds_write_b128 v{vG1}, {vr(vM+4,4)} offset:{LM}']
    if OPT['wpos'] == 0:
        for x in wrs: k.ds(x)
    NB = OPT['nb']
    seq = [(lt, j) for j in range(2) for lt in range(7)]
    for n, (lt, j) in enumerate(seq):
        k(M(lt, j))
        if OPT['wpos'] == 1 and n < 2: k.ds(wrs[n])
        if n == NB - 1:
            k.wds0(); k('s_barrier')
            if OPT['rsp'] == 0:
                for jj in range(2, 7): k.ds(f'ds_read_b128 {vr(vM+4*jj,4)}, v{vKM+jj} offset:{LM}', f'm{jj}')
        if OPT['rsp'] == 1 and NB - 1 <= n < NB + 4:
            jj = n - (NB - 1) + 2
            k.ds(f'ds_read_b128 {vr(vM+4*jj,4)}, v{vKM+jj} offset:{LM}', f'm{jj}')
        if n == NB + 1 and OPT['apf']:
            k(f'v_cmp_le_u32 vcc, {OPT["uneed"]}, v{vX+2}')
        if n == NB + 2 and OPT['apf']:
            lu = k.newlabel('Lnt')
            k(f's_cbranch_vccz {lu}')
            k(f'buffer_load_dword v{vX+1}, v{vX}, {WS}, s{sUM} offen sc1')
            k.label(lu)
    def cvt(lt, h):
        k(f'v_cvt_pk_bf16_f32 v{vQ+4*lt+h}, v{vQ+4*lt+2*h}, v{vQ+4*lt+2*h+1}')
    def wr(lt):
        k.ds(f'ds_write_b64 v{vQW}, {vr(vQ+4*lt,2)} offset:{512*(lt&1)}')
    def tr(p, h):
        k.ds(f'ds_read_b64_tr_b16 {vr(vQ+8*p+2*h,2)}, v{vQR} offset:{512*h}', f'q{p}')
    vSt = [vM, vM+4, vQ+4]
    def S(p, t):
        q = vQ + 8*p
        c = '0' if p == 0 else vr(vSt[t],4)
        if p < 3:
            a = vKM+4*p if t == 0 else vKT+8*p+4*(t-1)
            k(f'v_mfma_f32_16x16x32_bf16 {vr(vSt[t],4)}, {vr(a,4)}, {vr(q,4)}, {c}')
        else:
            a = vKM+12 if t == 0 else vKT+24+2*(t-1)
            k(f'v_mfma_f32_16x16x16_bf16 {vr(vSt[t],4)}, {vr(a,2)}, {vr(q,2)}, {c}')
    for lt in range(7):
        for j in range(2, 7):
            if lt == 0: k.wds(f'm{j}')
            k(M(lt, j))
            if lt == 0 and j == 6:
                for x in mk: k.ds(x, 'mk')
            if lt >= 1:
                if j == 4: cvt(lt-1, 0)
                if j == 5: cvt(lt-1, 1)
                if j == 6:
                    wr(lt-1)
                    if (lt-1) & 1: tr((lt-1)//2, 0); tr((lt-1)//2, 1)
        if lt == (4 if OPT['s1pos'] == 0 else 3):
            k.wds('q0')
            for t in range(3): S(0, t)
        if lt == 5 and OPT['s1pos'] == 1:
            k.wds('q1')
            for t in range(3): S(1, t)
    if OPT['s1pos'] == 0:
        k.wds('q1')
        for t in range(3): S(1, t)
        cvt(6, 0); cvt(6, 1); wr(6); tr(3, 0)
        k.wds('q2')
        for t in range(3): S(2, t)
    else:
        k.nop(8)
        cvt(6, 0); cvt(6, 1); wr(6); tr(3, 0)
        k.wds('q2')
        for t in range(3): S(2, t)
    k.wds('q3')
    for t in range(3): S(3, t)
    k.nop(2)
    k.ds(f'ds_write_b128 v{vSW}, {vr(vSt[0],4)}')
    k.nop(2)
    k.ds(f'ds_write_b128 v{vSW}, {vr(vSt[1],4)} offset:1088')
    k.nop(2)
    k.ds(f'ds_write_b128 v{vSW}, {vr(vSt[2],4)} offset:2176')
    k.wds0()
    k('s_barrier')
    stamp(k, 1, stamps)
    R = vQ+8
    for w in range(4): k.ds(f'ds_read_b128 {vr(R+4*w,4)}, v{vSR} offset:{w*3264}', f'r{w}')
    k(f's_cmp_eq_u32 s{sMODE}, 1')
    k.wds('r1')
    k(f'v_pk_add_f32 {vr(R,2)}, {vr(R,2)}, {vr(R+4,2)}')
    k(f'v_pk_add_f32 {vr(R+2,2)}, {vr(R+2,2)}, {vr(R+6,2)}')
    k.wds('r2')
    k(f'v_pk_add_f32 {vr(R,2)}, {vr(R,2)}, {vr(R+8,2)}')
    k(f'v_pk_add_f32 {vr(R+2,2)}, {vr(R+2,2)}, {vr(R+10,2)}')
    k.wds('r3')
    k(f'v_pk_add_f32 {vr(R,2)}, {vr(R,2)}, {vr(R+12,2)}')
    k(f'v_pk_add_f32 {vr(R+2,2)}, {vr(R+2,2)}, {vr(R+14,2)}')
    k.nop(2)
    k(f'v_permlane16_swap_b32 v{R}, v{R+2}')
    k(f'v_permlane16_swap_b32 v{R+1}, v{R+3}')
    X = R+4; m = R+6; t = R+8
    k(f'v_pk_add_f32 {vr(X,2)}, {vr(R,2)}, {vr(R+2,2)}')
    def allred(op, m):
        for rot in (8, 4, 2, 1):
            k.nop(2)
            k(f'{op}_dpp v{m}, v{m}, v{m} row_ror:{rot} row_mask:0xf bank_mask:0xf')
        k(f'v_mov_b32 v{t}, v{m}')
        k.nop(2)
        k(f'v_permlane16_swap_b32 v{m}, v{t}')
        k(f'{op} v{m}, v{m}, v{t}')
    k(f'v_max_f32 v{m}, v{X}, v{X+1}')
    allred('v_max_f32', m)
    k(f'v_pk_add_f32 {vr(X,2)}, {vr(X,2)}, {vr(m,2)} op_sel_hi:[1,0] neg_lo:[0,1] neg_hi:[0,1]')
    k(f'v_exp_f32 v{X}, v{X}')
    k(f'v_exp_f32 v{X+1}, v{X+1}')
    k.nop(1)
    k(f'v_add_f32 v{m}, v{X}, v{X+1}')
    k(f'v_mul_f32 v{m}, v{m}, v{vVal}')
    allred('v_add_f32', m)
    k(f'v_rcp_f32 v{m}, v{m}')
    k.nop(1)
    k(f'v_pk_mul_f32 {vr(X,2)}, {vr(X,2)}, {vr(m,2)} op_sel_hi:[1,0]')
    k(f'v_cvt_pk_bf16_f32 v{X}, v{X}, v{X+1}')
    k(f'v_min_u32 v{X}, -2, v{X}')
    publish(k, f'buffer_store_dword v{X}, v{vPO}, {WS}, s{sP} offen')
    stamp(k, 2, stamps)
    k('s_barrier')
    load_keys()
    if OPT['sleepA']: k(f"s_sleep {OPT['sleepA']}")
    k(f's_add_u32 s{sUM}, s{sUM}, {UF_SEG}')
    k(f's_add_u32 s{sM}, s{sM}, {MEM_S}')
    k(f's_add_u32 s{sP}, s{sP}, {PB_S}')
    if stamps: k(f's_add_u32 s{sST}, s{sST}, 16')
    k(f's_add_u32 s{sSTEP}, s{sSTEP}, 1')
    k(f's_cmp_lt_u32 s{sSTEP}, {NSTEP}')
    k('s_cbranch_scc1 L_A_loop')
    k('s_waitcnt vmcnt(0)')
    k('s_endpgm')
    k.flush_cold()

def poll2(k, issue, checks, body, name):
    nl = len(issue(0))
    l0, d0, d1, dn = [k.newlabel(name + x) for x in ('lp', 'd0', 'd1', 'dn')]
    k(f's_mov_b32 s{sCNT}, 0')
    for x in issue(0): k(x)
    k(f"s_sleep {OPT['stag']}")
    k.label(l0)
    for st, dl in ((0, d0), (1, d1)):
        for x in issue(1 - st): k(x)
        if st == 0:
            k(f's_add_u32 s{sCNT}, s{sCNT}, 1')
            k(f's_cmp_gt_u32 s{sCNT}, s{sT2}')
            k('s_cbranch_scc1 L_fail')
        for rel, ins in checks(st):
            k(f's_waitcnt vmcnt({nl + rel})')
            for x in ins: k(x)
        if st == 0: k(f's_cbranch_vccz {d0}')
        else:       k(f's_cbranch_vccnz {l0}x')
    saved = list(k.dsq)
    body(1)
    k(f's_branch {dn}')
    k.label(l0 + 'x')
    k(f's_branch {l0}')
    k.label(d0)
    end = list(k.dsq); k.dsq = saved
    body(0)
    assert k.dsq == end
    k.label(dn)

def role_B(k, stamps=False, wait_u=None):
    WS = f's[{SWS}:{SWS+3}]'
    vLane, vL16, vG0, vG1, vIdx = 1, 2, 3, 4, 5
    vWL, vPT, vPM, vRW, vRR, vL4 = 6, 7, 8, 9, 10, 11
    vC = 12
    vM = 16
    vA = 44
    vU = 76
    vTm = 108
    vUi = 140
    vUm = 172
    vRR2 = 188
    vKeep, vFl = 191, 15
    vD = vTm
    vG = vTm + 16
    vP = [vM, vA]
    def W(gi, kb):
        i = gi*5 + kb
        return (256 + 8*i) if i < 32 else (192 + 8*(i-32))
    LM, LRED, LW = 0, 7168, 16384
    k.label('L_roleB')
    k(f's_sub_u32 s{sID}, s{sROLE}, 16')
    common_lane_setup(k, vLane, vL16, vG0, vG1, vIdx, vC)
    k(f's_lshl_b32 s{sT0}, s{sWAVE}, 2')
    k(f's_mul_i32 s{sT0}, s{sT0}, 28')
    k(f's_lshl_b32 s{sT1}, s{sID}, 1')
    k(f's_add_u32 s{sT0}, s{sT0}, s{sT1}')
    k(f's_mul_i32 s35, s{sT0}, 14336')
    k(f's_add_u32 s35, s35, {WTB}')
    k(f's_lshl_b32 s37, s{sWAVE}, 15')
    k(f's_add_u32 s37, s37, {LW}')
    k(f'v_add_u32 v{vWL}, s37, v{vL16}')
    for gi in range(8):
        k(f's_add_u32 s36, s35, {(gi>>1)*28*14336 + (gi&1)*14336}')
        for f in range(10):
            r = W(gi, f//2) + 4*(f&1)
            k(f'buffer_load_dwordx4 {xr(r,4)}, v{vL16}, {WS}, s36 offen offset:{(f&3)*1024}')
            if (f&3) == 3: k(f's_add_u32 s36, s36, 4096')
        k(f's_add_u32 s36, s36, 2048')
        k(f's_add_u32 s38, s37, {gi*4096}')
        k(f's_mov_b32 m0, s38')
        k('s_nop 0')
        for f in range(4):
            k(f'buffer_load_dwordx4 v{vL16}, {WS}, s36 offen offset:{f*1024} lds')
        k('s_waitcnt vmcnt(40)')
    g, i = vA, vA+1
    vT = vC
    k(f'v_lshrrev_b32 v{g}, 4, v{vLane}')
    k(f'v_and_b32 v{i}, 15, v{vLane}')
    k(f's_lshl_b32 s40, s{sWAVE}, 11')
    k(f'v_add_u32 v{vPT}, s40, v{vL16}')
    k(f'v_lshrrev_b32 v{vT}, 1, v{g}')
    k(f'v_lshlrev_b32 v{vT}, 8, v{vT}')
    k(f'v_lshl_add_u32 v{vT}, v{i}, 4, v{vT}')
    k(f's_lshl_b32 s40, s{sWAVE}, 9')
    k(f's_add_u32 s40, s40, 8192')
    k(f'v_add_u32 v{vPM}, s40, v{vT}')
    k(f's_lshl_b32 s40, s{sWAVE}, 10')
    k(f's_add_u32 s40, s40, {LRED}')
    k(f'v_add_u32 v{vRW}, s40, v{vL16}')
    k(f'v_and_b32 v{vT}, 3, v{vLane}')
    k(f'v_lshlrev_b32 v{vT}, 6, v{vT}')
    k(f'v_lshrrev_b32 v{vT+1}, 5, v{vLane}')
    k(f'v_lshl_add_u32 v{vT}, v{vT+1}, 5, v{vT}')
    k(f'v_lshrrev_b32 v{vT+1}, 2, v{vLane}')
    k(f'v_and_b32 v{vT+2}, 3, v{vT+1}')
    k(f'v_lshl_add_u32 v{vT}, v{vT+2}, 2, v{vT}')
    k(f'v_bfe_u32 v{vT+2}, v{vLane}, 4, 1')
    k(f'v_lshl_add_u32 v{vT}, v{vT+2}, 8, v{vT}')
    k(f's_and_b32 s40, s{sWAVE}, 1')
    k(f's_lshl_b32 s40, s40, 9')
    k(f's_add_u32 s40, s40, {LRED}')
    k(f'v_add_u32 v{vRR}, s40, v{vT}')
    for w in range(1, 4): k(f'v_add_u32 v{vRR2+w-1}, {1024*w}, v{vRR}')
    k(f's_lshl_b32 s40, s{sID}, 1')
    k(f's_and_b32 s41, s{sWAVE}, 1')
    k(f's_add_u32 s40, s40, s41')
    k(f's_lshl_b32 s40, s40, 8')
    k(f'v_lshlrev_b32 v{vL4}, 2, v{vLane}')
    k(f'v_add_u32 v{vL4}, s40, v{vL4}')
    k(f's_mov_b32 s{sSTEP}, 0')
    k(f's_mov_b32 s{sM}, {MEM}')
    k(f's_mov_b32 s{sP}, {PB}')
    k(f's_lshl_b32 s{sX}, s{sID}, 15')
    k(f's_lshl_b32 s40, s{sWAVE}, 13')
    k(f's_add_u32 s{sX}, s{sX}, s40')
    k(f's_add_u32 s{sX}, s{sX}, {UF}')
    k(f's_mul_i32 s{sUM}, s{sWAVE}, {2*28*1024}')
    k(f's_lshl_b32 s40, s{sID}, 11')
    k(f's_add_u32 s{sUM}, s{sUM}, s40')
    k(f's_add_u32 s{sUM}, s{sUM}, {UM}')
    k(f's_mov_b32 s43, s{sUM}')
    def ldu(j):
        hh, T = j >> 1, j & 1
        r = vU + 16*(hh>>1) + 8*T + 4*(hh&1)
        return f'buffer_load_dwordx4 {vr(r,4)}, v{vL16}, {WS}, s{sX if j<4 else sT0} offen offset:{(j&3)*1024} ' + OPT['uf']
    def stum(u, T):
        return f'buffer_store_dwordx4 {vr(vUm+8*T+4*u,4)}, v{vL16}, {WS}, s{43 if u==0 else 44} offen offset:{T*1024} ' + OPT['um']
    def lw(gi):
        b = vTm + 16*(gi&1)
        for f in range(4): k.ds(f'ds_read_b128 {vr(b+4*f,4)}, v{vWL} offset:{gi*4096+f*1024}', f'w{gi}')
    def load_u(ahead):
        if wait_u:
            lu = k.newlabel('Lnu')
            k(f's_add_u32 s{sT0}, s{sSTEP}, {ahead}')
            k(f's_and_b32 s{sT1}, s{sT0}, 3')
            k(f's_cbranch_scc1 {lu}')
            k(f's_lshl_b32 s{sT0}, s{sT0}, 5')
            k(f's_add_u32 s{sT0}, s{sT0}, {flag(F_U)}')
            wait_u(k, sT0, 16, vC)
            k.label(lu)
        k(f's_add_u32 s{sT0}, s{sX}, 4096')
        for j in range(8): k(ldu(j))
        k(f's_add_u32 s{sX}, s{sX}, {UF_SEG}')
    load_u(0)
    k(f'v_mov_b32 v{vFl}, 16')
    wait_mode(k, vC)
    sw = []
    for o in range(4):
        r = vU + 8*o
        for e in range(4):
            sel = e & 1
            sw.append(f'v_pk_mov_b32 {vr(vUi+8*o+2*e,2)}, {vr(r+(e&2),2)}, {vr(r+4+(e&2),2)} op_sel:[{sel},{sel}]')
    k.label('L_B_loop')
    k('s_waitcnt vmcnt(0)')
    for x in sw: k(x)
    k(f's_add_u32 s45, s{sSTEP}, 1')
    k(f's_lshr_b32 s45, s45, 2')
    k(f's_lshl_b32 s45, s45, 7')
    k(f's_add_u32 s45, s45, {flag(F_U)}')
    for r in range(0, 32, 2): k(f'v_mov_b64 {vr(vA+r,2)}, 0')
    k(f's_add_u32 s44, s43, {28*1024}')
    vm = [stum(0,0), stum(0,1), stum(1,0), stum(1,1)] + [ldu(j) for j in range(8)]
    gather_mem(k, vG, vG0, vG1, vG0, vG1, vC)
    stamp(k, 0, stamps)
    for kb in range(7): k.ds(f'ds_read_b128 {vr(vM+4*kb,4)}, v{vL16} offset:{LM+kb*1024}', f'm{kb}')
    lw(0)
    ls, l2 = k.newlabel('Lbs'), k.newlabel('Lbt')
    k(f's_cmp_eq_u32 s{sSTEP}, 0')
    k(f's_cbranch_scc1 {l2}')
    k(f's_cmp_ge_u32 s{sWAVE}, 2')
    k(f's_cbranch_scc1 {ls}')
    k(f's_add_u32 s{sT0}, s{sM}, {MEMX - MEM - MEM_S}')
    k(f'buffer_store_dword v{vKeep}, v{vL4}, {WS}, s{sT0} offen sc1')
    k(f's_branch {l2}')
    k.label(ls)
    k(f's_cmp_eq_u32 s{sWAVE}, 2')
    k(f's_cselect_b32 s{sT0}, s{sSTEP}, 0')
    k(f's_cmp_le_u32 s{sT0}, 1')
    k(f's_cbranch_scc1 {l2}')
    k(f's_lshl_b32 s{sT0}, s{sSTEP}, 7')
    k(f's_add_u32 s{sT0}, s{sT0}, {flag(F_UM) - 256}')
    k('s_mov_b64 exec, 1')
    k(f'v_mov_b32 v{vC}, 1')
    k(f'buffer_atomic_add v{vC}, off, {WS}, s{sT0}')
    k('s_mov_b64 exec, -1')
    k.label(l2)
    k(f'buffer_load_dword v{vFl}, off, {WS}, s45 sc1')
    for x in vm[:4]: k(x)
    def acc(gi): return vA + 4*gi
    def cvt(gi, h):
        hh, T = gi>>1, gi&1
        d = vUm + 8*T + 4*(hh>>1) + 2*h + (hh&1)
        a = acc(gi) + 2*h
        k(f'v_cvt_pk_bf16_f32 v{d}, v{a}, v{a+1}')
    def lw1(gi, f):
        k.ds(f'ds_read_b128 {vr(vTm+16*(gi&1)+4*f,4)}, v{vWL} offset:{gi*4096+f*1024}', f'w{gi}')
    for gi in range(8):
        for kb in range(7):
            if gi == 0: k.wds(f'm{kb}')
            if kb == 5: k.wds(f'w{gi}')
            w = xr(W(gi,kb),8) if kb < 5 else vr(vTm + 16*(gi&1) + 8*(kb-5), 8)
            k(f'v_smfmac_f32_16x16x64_bf16 {vr(acc(gi),4)}, {vr(vM+4*kb,4)}, {w}, v{vIdx}')
            if gi < 7 and kb in (0, 1, 2, 5): lw1(gi+1, {0:0, 1:1, 2:2, 5:3}[kb])
            if gi >= 1 and kb == 3: cvt(gi-1, 0)
            if gi >= 1 and kb == 4: cvt(gi-1, 1)
    k(f's_mov_b32 s43, s{sUM}')
    k(f's_add_u32 s{sUM}, s{sUM}, {UM_SEG}')
    k.nop(6)
    cvt(7, 0); cvt(7, 1)
    for r in range(0, 8, 2): k(f'v_mov_b64 {vr(vD+r,2)}, 0')
    k(f's_cmp_ge_u32 s{sSTEP}, {NSTEP}')
    k('s_cbranch_scc1 L_B_end')
    k('s_waitcnt vmcnt(4)')
    if wait_u:
        lu = k.newlabel('Lnu')
        k(f'v_cmp_le_u32 vcc, 16, v{vFl}')
        k(f's_cbranch_vccnz {lu}')
        wait_u(k, 45, 16, vC)
        k.label(lu)
    k(f's_add_u32 s{sT0}, s{sX}, 4096')
    for j in range(8): k(ldu(j))
    k(f's_add_u32 s{sX}, s{sX}, {UF_SEG}')
    stamp(k, 1, stamps)
    if OPT['sleepB']: k(f"s_sleep {OPT['sleepB']}")
    def issue(st):
        P = vP[st]
        return [f'buffer_load_dwordx4 {vr(P,4)}, v{vPT}, {WS}, s{sP} offen sc1',
                f'buffer_load_dwordx4 {vr(P+4,4)}, v{vPT}, {WS}, s{sP} offen offset:1024 sc1',
                f'buffer_load_dwordx4 {vr(P+8,4)}, v{vPM}, {WS}, s{sP} offen sc1']
    def checks(st):
        P = vP[st]
        return [(2, [f'v_max3_u32 v{vC}, v{P}, v{P+1}, v{P+2}']),
                (1, [f'v_max3_u32 v{vC+1}, v{P+4}, v{P+5}, v{P+6}', f'v_max3_u32 v{vC}, v{vC}, v{P+3}, v{P+7}']),
                (0, [f'v_max3_u32 v{vC+1}, v{vC+1}, v{P+8}, v{P+9}', f'v_max3_u32 v{vC}, v{vC}, v{P+10}, v{P+11}',
                     f'v_max_u32 v{vC}, v{vC}, v{vC+1}', f'v_cmp_eq_u32 vcc, -1, v{vC}'])]
    def body(st):
        P = vP[st]
        stamp(k, 2, stamps)
        for j in range(3):
            for T in range(2):
                b = vr(vUi + 16*j + 8*T, 8) if j < 2 else vr(vUm + 8*T, 8)
                k(f'v_smfmac_f32_16x16x64_bf16 {vr(vD+4*T,4)}, {vr(P+4*j,4)}, {b}, v{vIdx}')
    poll2(k, issue, checks, body, 'Lpp')
    k(f's_add_u32 s{sM}, s{sM}, {MEM_S}')
    k(f's_add_u32 s{sP}, s{sP}, {PB_S}')
    k.nop(6)
    for r in range(4): k(f'v_permlane32_swap_b32 v{vD+r}, v{vD+4+r}')
    k(f'v_pk_add_f32 {vr(vD,2)}, {vr(vD,2)}, {vr(vD+4,2)}')
    k(f'v_pk_add_f32 {vr(vD+2,2)}, {vr(vD+2,2)}, {vr(vD+6,2)}')
    k.ds(f'ds_write_b128 v{vRW}, {vr(vD,4)}')
    k.wds0()
    k('s_barrier')
    k(f's_cmp_ge_u32 s{sWAVE}, 2')
    k('s_cbranch_scc1 L_B_skip')
    R = vG
    for w in range(4): k.ds(f'ds_read2_b32 {vr(R+2*w,2)}, v{vRR} offset0:{0} offset1:{4}' if w == 0 else
                            f'ds_read2_b32 {vr(R+2*w,2)}, v{vRR2+w-1} offset0:0 offset1:4', f'r{w}')
    k(f's_cmp_eq_u32 s{sMODE}, 1')
    k.wds('r1')
    k(f'v_pk_add_f32 {vr(R,2)}, {vr(R,2)}, {vr(R+2,2)}')
    k.wds('r3')
    k(f'v_pk_add_f32 {vr(R+4,2)}, {vr(R+4,2)}, {vr(R+6,2)}')
    k(f'v_pk_add_f32 {vr(R,2)}, {vr(R,2)}, {vr(R+4,2)}')
    k(f'v_cvt_pk_bf16_f32 v{R}, v{R}, v{R+1}')
    k(f'v_min_u32 v{R}, -2, v{R}')
    publish(k, f'buffer_store_dword v{R}, v{vL4}, {WS}, s{sM} offen')
    k(f'v_mov_b32 v{vKeep}, v{R}')
    k.label('L_B_skip')
    stamp(k, 3, stamps)
    k('s_barrier')
    k(f's_add_u32 s{sSTEP}, s{sSTEP}, 1')
    if stamps: k(f's_add_u32 s{sST}, s{sST}, 16')
    k('s_branch L_B_loop')
    k.label('L_B_end')
    k(f's_add_u32 s44, s43, {28*1024}')
    for x in vm[:4]: k(x)
    k('s_waitcnt vmcnt(0)')
    k('s_barrier')
    k(f's_cmp_lg_u32 s{sWAVE}, 0')
    k('s_cbranch_scc1 L_exit')
    k('s_mov_b64 exec, 3')
    k(f'v_mov_b32 v{vC}, 1')
    k(f'v_lshlrev_b32 v{vC+1}, 7, v{vLane}')
    k(f's_mov_b32 s{sT0}, {flag(F_UM + 62)}')
    k(f'buffer_atomic_add v{vC}, v{vC+1}, {WS}, s{sT0} offen')
    k('s_endpgm')
    k.flush_cold()

def role_P(k, wait_u=None):
    WS = f's[{SWS}:{SWS+3}]'
    vLane, vU, vX, vS, vD = 1, 2, 3, 4, 8
    D = OPT['pfd']; st = OPT['pfs']; sh = 7 if st == 128 else 6
    k.label('L_roleP')
    k(f's_mov_b32 s{sT2}, {POLL_LIMIT}')
    k(f's_sub_u32 s{sID}, s{sROLE}, 30')
    k(f's_lshl_b32 s{sID}, s{sID}, 2')
    k(f's_add_u32 s{sID}, s{sID}, s{sWAVE}')
    k(f'v_and_b32 v{vLane}, 63, v0')
    k(f'v_lshlrev_b32 v{vU}, {sh}, v{vLane}')
    k(f's_mul_i32 s40, s{sID}, {UF_SEG//8}')
    k(f'v_add_u32 v{vU}, s40, v{vU}')
    k(f'v_min_u32 v{vX}, 55, v{vLane}')
    k(f'v_lshlrev_b32 v{vX}, 6, v{vX}')
    k(f's_mul_i32 s40, s{sID}, 3584')
    k(f'v_add_u32 v{vX}, s40, v{vX}')
    k(f'v_min_u32 v{vS}, 19, v{vLane}')
    k(f'v_lshlrev_b32 v{vS}, 6, v{vS}')
    k(f's_mul_i32 s40, s{sID}, 1280')
    k(f'v_add_u32 v{vS}, s40, v{vS}')
    k(f'v_min_u32 v{vS+1}, 13, v{vLane}')
    k(f'v_lshlrev_b32 v{vS+1}, 6, v{vS+1}')
    k(f's_mul_i32 s40, s{sID}, 896')
    k(f'v_add_u32 v{vS+1}, s40, v{vS+1}')
    k(f's_mov_b32 s{sSTEP}, 0')
    k(f's_mov_b32 s{sX}, {UF}')
    k(f's_mov_b32 s{sUM}, {XNS}')
    k(f's_mov_b32 s{sP}, {PB}')
    k(f's_mov_b32 s{sM}, {MEM + MEM_S}')
    k(f's_mov_b32 s41, {MEM - D*MEM_S}')
    k.label('L_P_loop')
    k(f's_cmp_le_u32 s{sSTEP}, {D}')
    k('s_cbranch_scc1 L_P_go')
    k(f's_mov_b32 s{sCNT}, 0')
    k.label('L_P_wait')
    k(f'buffer_load_dword v{vD}, off, {WS}, s41 sc1')
    k(f's_add_u32 s{sCNT}, s{sCNT}, 1')
    k(f's_cmp_gt_u32 s{sCNT}, s{sT2}')
    k('s_cbranch_scc1 L_fail')
    k('s_waitcnt vmcnt(0)')
    k(f'v_cmp_eq_u32 vcc, -1, v{vD}')
    k('s_cbranch_vccz L_P_go')
    k('s_sleep 2')
    k('s_branch L_P_wait')
    k.label('L_P_go')
    k(f'buffer_load_dword v{vD+1}, v{vS}, {WS}, s{sP} offen sc1')
    k(f'buffer_load_dword v{vD+2}, v{vS+1}, {WS}, s{sM} offen sc1')
    k(f'buffer_load_dword v{vD+3}, v{vX}, {WS}, s{sUM} offen sc1')
    n = 0 if OPT['apf'] else UF_SEG // 8 // (64*st)
    k(f's_mov_b32 s{sT0}, s{sX}')
    for j in range(n):
        k(f'buffer_load_dword v{vD+4+j}, v{vU}, {WS}, s{sT0} offen sc1')
        k(f's_add_u32 s{sT0}, s{sT0}, {64*st}')
    k(f's_add_u32 s{sX}, s{sX}, {UF_SEG}')
    k(f's_add_u32 s{sUM}, s{sUM}, 28672')
    k(f's_add_u32 s{sP}, s{sP}, {PB_S}')
    k(f's_add_u32 s{sM}, s{sM}, {MEM_S}')
    k(f's_add_u32 s41, s41, {MEM_S}')
    k(f's_add_u32 s{sSTEP}, s{sSTEP}, 1')
    k(f's_cmp_lt_u32 s{sSTEP}, {NSTEP}')
    k('s_cbranch_scc1 L_P_loop')
    k('s_waitcnt vmcnt(0)')
    k('s_endpgm')
```

```python
from chain import *

NCHAIN = 32
def kd(name, vgpr=512, acc=256, sgpr=96):
    return f'''.section .rodata,"a"
.p2align 6
.amdhsa_kernel {name}
  .amdhsa_next_free_vgpr {vgpr}
  .amdhsa_next_free_sgpr {sgpr}
  .amdhsa_accum_offset {acc}
  .amdhsa_group_segment_fixed_size 0
  .amdhsa_kernarg_size 120
  .amdhsa_user_sgpr_count 2
  .amdhsa_user_sgpr_kernarg_segment_ptr 1
  .amdhsa_system_sgpr_workgroup_id_x 1
.end_amdhsa_kernel
.text
'''
def khead(name):
    return f'.globl {name}\n.p2align 8\n.type {name},@function\n{name}:\n'

def main_prologue(k, pref_xcd=0, stamps=False):
    k('s_cmp_ge_u32 s2, 256')
    k('s_cbranch_scc1 L_exit')
    k('s_load_dwordx2 s[4:5], s[0:1], 112')
    k('s_load_dwordx2 s[8:9], s[0:1], 104')
    k('s_getreg_b32 s3, hwreg(HW_REG_XCC_ID, 0, 4)')
    k('v_lshrrev_b32 v1, 6, v0')
    k('s_nop 0')
    k(f'v_readfirstlane_b32 s{sWAVE}, v1')
    k(f's_mov_b32 s6, {WS_SIZE}')
    k('s_mov_b32 s7, 0x20000')
    k('s_mov_b32 s10, 256')
    k('s_mov_b32 s11, 0x20000')
    k('s_waitcnt lgkmcnt(0)')
    k('s_and_b32 s5, s5, 0xffff')
    k('s_and_b32 s9, s9, 0xffff')
    k(f's_mov_b32 s{sROLE}, 255')
    k(f's_cmp_lg_u32 s{sWAVE}, 0')
    k('s_cbranch_scc1 L_rolewait')
    k(f's_cmp_lg_u32 s3, {pref_xcd}')
    k('s_cbranch_scc1 L_rolewr')
    k('s_mov_b64 exec, 1')
    k('v_mov_b32 v2, 1')
    k('buffer_atomic_add v2, off, s[8:11], 0 sc0')
    k('s_waitcnt vmcnt(0)')
    k(f'v_readfirstlane_b32 s{sROLE}, v2')
    k('s_nop 3')
    k(f's_cmp_lg_u32 s{sROLE}, {NCHAIN-1}')
    k('s_cbranch_scc1 L_rolewr0')
    k('v_mov_b32 v2, 1')
    k('v_mov_b32 v3, 0')
    k('buffer_atomic_cmpswap v[2:3], off, s[8:11], 0 offset:128')
    k.label('L_rolewr0')
    k('s_mov_b64 exec, -1')
    k.label('L_rolewr')
    k(f'v_mov_b32 v2, s{sROLE}')
    k('v_mov_b32 v3, 0')
    k('ds_write_b32 v3, v2')
    k('s_waitcnt lgkmcnt(0)')
    k.label('L_rolewait')
    k('s_barrier')
    k('v_mov_b32 v3, 0')
    k('ds_read_b32 v2, v3')
    k('s_waitcnt lgkmcnt(0)')
    k(f'v_readfirstlane_b32 s{sROLE}, v2')
    k('s_barrier')
    k('s_nop 2')
    k.label('L_dispatch')
    if stamps:
        k(f's_min_u32 s{sST}, s{sROLE}, 40')
        k(f's_lshl_b32 s{sST}, s{sST}, 2')
        k(f's_add_u32 s{sST}, s{sST}, s{sWAVE}')
        k(f's_lshl_b32 s{sST}, s{sST}, 10')
        k(f's_add_u32 s{sST}, s{sST}, {STAMP}')
    if stamps:
        k('s_memrealtime s[30:31]')
        k('s_waitcnt lgkmcnt(0)')
        k('v_mov_b32 v3, s30')
        k(f'buffer_store_dword v3, off, s[4:7], s{sST} offset:1020')
    k(f's_cmp_lt_u32 s{sROLE}, 16')
    k('s_cbranch_scc1 L_roleA')
    k(f's_cmp_lt_u32 s{sROLE}, 30')
    k('s_cbranch_scc1 L_roleB')
    k(f's_cmp_lt_u32 s{sROLE}, {NCHAIN}')
    k('s_cbranch_scc1 L_roleP')

def fail_exit(k):
    k.label('L_fail')
    k('s_mov_b64 exec, 1')
    k(f'v_mov_b32 v2, s{sSTEP}')
    k(f'v_mov_b32 v3, s{sROLE}')
    k('v_lshl_add_u32 v2, v3, 8, v2')
    k('v_or_b32 v2, 0x10000, v2')
    k('buffer_store_dword v2, off, s[8:11], 0 offset:8')
    k('s_waitcnt vmcnt(0)')
    k.label('L_exit')
    k('s_endpgm')

def gen_chain_only(stamps=True):
    k = K()
    main_prologue(k, stamps=stamps)
    k('s_endpgm')
    role_A(k, stamps)
    role_B(k, stamps)
    role_P(k)
    fail_exit(k)
    errs = check(k.lines, 'main')
    for e in errs: print('HAZARD', e)
    name = 'main_kernel'
    return ('; @launch kernel=main_kernel grid=(256,1,1) block=(256,1,1) lds=163840\n'
            '.amdgcn_target "amdgcn-amd-amdhsa--gfx950"\n.text\n' + khead(name) + k.text() + kd(name))

if __name__ == '__main__':
    import sys, chain
    for a in sys.argv[3:]:
        kk, vv = a.split('='); chain.OPT[kk] = int(vv) if vv.isdigit() else vv
    open(sys.argv[1], 'w').write(gen_chain_only(stamps=(sys.argv[2]=='1')))
```

```python
from chain import K, OPT
from asmlib import *
from layout import *
import math, struct

def f32bits(x): return struct.unpack('<I', struct.pack('<f', x))[0]
PREP_GRID, PREP_BLOCK, PREP_LDS = 256, 512, 57344

def srd(k, s, argoff, size):
    k(f's_load_dwordx2 s[{s}:{s+1}], s[0:1], {argoff}')
    k(f's_mov_b32 s{s+2}, {size}')
    k(f's_mov_b32 s{s+3}, 0x20000')

def gen_prep(tl=False):
    k = K()
    WS = 's[4:7]'
    k(f's_cmp_ge_u32 s2, {PREP_GRID}')
    k('s_cbranch_scc1 P_exit')
    srd(k, 4, 112, WS_SIZE)
    k('v_lshrrev_b32 v1, 6, v0')
    k('v_and_b32 v2, 63, v0')
    k('v_readfirstlane_b32 s16, v1')
    if tl: k('s_memrealtime s[40:41]')
    k('s_nop 2')
    k('s_cmp_eq_u32 s16, 7')
    k('s_cbranch_scc1 P_ln')
    k('s_and_b32 s19, s2, 15')
    k('s_bfe_u32 s18, s2, 0x10005')
    k('s_lshr_b32 s20, s2, 6')
    k('s_bitcmp1_b32 s2, 4')
    k('s_cbranch_scc1 P_gB0')
    srd(k, 8, 16, 3670016); srd(k, 12, 24, 3670016)
    k('s_branch P_g1')
    k.label('P_gB0')
    srd(k, 8, 32, 3670016); srd(k, 12, 40, 3670016)
    k.label('P_g1')
    vI, vG, vR, vC, vL16, vA = 3, 4, 5, 7, 8, 9
    k(f'v_and_b32 v{vI}, 15, v2')
    k(f'v_lshrrev_b32 v{vG}, 4, v2')
    k(f'v_lshlrev_b32 v{vL16}, 4, v2')
    k('s_mul_i32 s21, s18, 7')
    k('s_add_u32 s21, s21, s16')
    k(f'v_lshrrev_b32 v10, 2, v{vI}')
    k('v_lshlrev_b32 v10, 3, v10')
    k(f'v_and_b32 v11, 3, v{vI}')
    k('v_add_u32 v10, v10, v11')
    k('s_lshl_b32 s22, s21, 5')
    k('v_add_u32 v10, s22, v10')
    k('v_lshlrev_b32 v10, 13, v10')
    k(f'v_lshl_add_u32 v10, v{vG}, 4, v10')
    k('s_lshl_b32 s22, s19, 9')
    k(f'v_add_u32 v{vR}, s22, v10')
    k(f'v_add_u32 v{vR+1}, {4*8192}, v{vR}')
    k('s_lshl_b32 s22, s20, 1')
    k('s_add_u32 s22, s22, s18')
    for j in range(8):
        k(f's_add_u32 s{24+j}, s22, {j}')
        k(f's_and_b32 s{24+j}, s{24+j}, 7')
    vAcc, vRow, vCol = 16, 72, 136
    k('s_lshl_b32 s33, s16, 10')
    def mm(j):
        for T in range(2):
            for ct in range(7):
                a = vAcc + 28*T + 4*ct
                k(f'v_mfma_f32_16x16x32_bf16 {vr(a,4)}, {vr(vRow+8*j+4*T,4)}, {vr(vCol+28*(j&1)+4*ct,4)}, {"0" if j == 0 else vr(a,4)}')
    def body(gstep, rd):
        k('s_waitcnt lgkmcnt(0)')
        k('s_and_b32 s5, s5, 0xffff'); k('s_and_b32 s9, s9, 0xffff'); k('s_and_b32 s13, s13, 0xffff')
        for j in range(8):
            k(f's_mul_i32 s34, s{24+j}, 7168')
            k('s_add_u32 s34, s34, s33')
            k('s_mov_b32 m0, s34')
            k(f's_mul_i32 s35, s{24+j}, {gstep}')
            k(f's_lshl_b32 s36, s{24+j}, 6')
            k(f'buffer_load_dwordx4 v{vC}, s[12:15], s35 offen lds')
            for T in range(2): k(f'buffer_load_dwordx4 {vr(vRow+8*j+4*T,4)}, v{vR+T}, s[8:11], s36 offen')
            k(f's_mul_i32 s{24+j}, s{24+j}, 7168')
        for j in range(9):
            if j < 8:
                k(f'v_add_u32 v{vA+1}, s{24+j}, v{vA}')
                k(f's_waitcnt vmcnt({3*(7-j)})')
                k('s_barrier')
                rd(j)
            if j > 0:
                if j < 8: k(f's_waitcnt lgkmcnt({7 if rd.n == 7 else 14})')
                else: k('s_waitcnt lgkmcnt(0)')
                mm(j-1)
    k('s_bitcmp1_b32 s2, 4')
    k('s_cbranch_scc1 P_gB')
    k(f'v_lshrrev_b32 v10, 3, v{vI}')
    k('v_lshlrev_b32 v10, 4, v10')
    k(f'v_bfe_u32 v11, v{vI}, 1, 1')
    k('v_lshl_add_u32 v10, v11, 2, v10')
    k(f'v_bfe_u32 v11, v{vI}, 2, 1')
    k('v_lshl_add_u32 v10, v11, 1, v10')
    k(f'v_and_b32 v11, 1, v{vI}')
    k('v_add_u32 v10, v10, v11')
    k('s_mul_i32 s22, s20, 7')
    k('s_add_u32 s22, s22, s16')
    k('s_lshr_b32 s23, s22, 1')
    k('s_lshl_b32 s23, s23, 5')
    k('s_and_b32 s22, s22, 1')
    k('s_lshl_b32 s22, s22, 3')
    k('s_add_u32 s22, s22, s23')
    k('v_add_u32 v10, s22, v10')
    k('v_lshlrev_b32 v10, 13, v10')
    k(f'v_lshl_add_u32 v10, v{vG}, 4, v10')
    k('s_lshl_b32 s22, s19, 9')
    k(f'v_add_u32 v{vC}, s22, v10')
    k(f'v_mov_b32 v{vA}, v{vL16}')
    def rdA(j):
        for ct in range(7): k(f'ds_read_b128 {vr(vCol+28*(j&1)+4*ct,4)}, v{vA+1} offset:{ct*1024}')
    rdA.n = 7
    body(64, rdA)
    k(f's_mov_b32 s22, {f32bits(math.log2(math.e)/16):#x}')
    k(f's_mov_b32 s23, {WTA}')
    k('s_branch P_gepi')
    k.label('P_gB')
    k(f's_mov_b32 s22, {(1<<32)//14 + 1}')
    k('v_mul_hi_u32 v10, v0, s22')
    k('v_mul_u32_u24 v11, 14, v10')
    k('v_sub_u32 v11, v0, v11')
    k('v_mul_u32_u24 v10, 896, v10')
    k('v_lshl_add_u32 v10, v11, 4, v10')
    k('s_mul_i32 s22, s19, 229376')
    k('s_mul_i32 s23, s20, 224')
    k('s_add_u32 s22, s22, s23')
    k(f'v_add_u32 v{vC}, s22, v10')
    k('v_bfe_u32 v10, v2, 2, 2')
    k(f'v_lshl_add_u32 v10, v{vG}, 3, v10')
    k('v_mul_u32_u24 v10, 224, v10')
    k('v_and_b32 v11, 3, v2')
    k(f'v_lshl_add_u32 v{vA}, v11, 3, v10')
    def rdB(j):
        for ct in range(7):
            for hh in range(2): k(f'ds_read_b64_tr_b16 {vr(vCol+28*(j&1)+4*ct+2*hh,2)}, v{vA+1} offset:{ct*32+hh*896}')
    rdB.n = 14
    body(32*896, rdB)
    k('s_mov_b32 s22, 1.0')
    k(f's_mov_b32 s23, {WTB}')
    k.label('P_gepi')
    k('s_mul_i32 s24, s19, 28')
    k('s_mul_i32 s25, s20, 7')
    k('s_add_u32 s24, s24, s25')
    k('s_mul_i32 s24, s24, 14')
    k('s_add_u32 s24, s24, s21')
    k('s_lshl_b32 s24, s24, 10')
    k('s_add_u32 s24, s24, s23')
    k('s_mov_b32 s23, s22')
    for ct in range(7):
        d = vRow + 4*ct
        for T in range(2):
            a = vAcc + 28*T + 4*ct
            k(f'v_pk_mul_f32 {vr(a,2)}, {vr(a,2)}, s[22:23]')
            k(f'v_pk_mul_f32 {vr(a+2,2)}, {vr(a+2,2)}, s[22:23]')
            k(f'v_cvt_pk_bf16_f32 v{d+2*T}, v{a}, v{a+1}')
            k(f'v_cvt_pk_bf16_f32 v{d+2*T+1}, v{a+2}, v{a+3}')
        k(f'buffer_store_dwordx4 {vr(d,4)}, v{vL16}, {WS}, s24 offen ' + OPT['k1st'])
        k('s_add_u32 s24, s24, 14336')
    if tl:
        k('s_waitcnt vmcnt(0)')
        k('s_memrealtime s[42:43]')
        k('s_lshl_b32 s44, s2, 3')
        k(f's_add_u32 s44, s44, {STAMP + 0xE0000}')
        k('s_waitcnt lgkmcnt(0)')
        k('v_mov_b32 v10, s40'); k('v_mov_b32 v11, s42')
        k(f'buffer_store_dwordx2 v[10:11], off, {WS}, s44')
    k('s_endpgm')
    k.label('P_ln')
    srd(k, 8, 0, 1835008); srd(k, 12, 64, 896)
    srd(k, 28, 8, 7168)
    k('s_mov_b32 s17, s2')
    k('v_lshrrev_b32 v3, 3, v2')
    k('s_lshl_b32 s18, s17, 3')
    k('v_add_u32 v3, s18, v3')
    k('v_and_b32 v4, 7, v2')
    k('v_mul_u32_u24 v5, 896, v3')
    k('v_lshl_add_u32 v5, v4, 4, v5')
    k('v_lshlrev_b32 v6, 4, v4')
    vX, vW, vF = 16, 44, 72
    k('s_waitcnt lgkmcnt(0)')
    k('s_and_b32 s5, s5, 0xffff'); k('s_and_b32 s9, s9, 0xffff'); k('s_and_b32 s13, s13, 0xffff')
    for i in range(7): k(f'buffer_load_dwordx4 {vr(vX+4*i,4)}, v5, s[8:11], 0 offen offset:{i*128}')
    for i in range(7): k(f'buffer_load_dwordx4 {vr(vW+4*i,4)}, v6, s[12:15], 0 offen offset:{i*128}')
    k('v_lshrrev_b32 v7, 4, v3')
    k('v_mul_u32_u24 v7, 14336, v7')
    k('v_and_b32 v8, 15, v3')
    k('v_lshl_add_u32 v7, v8, 4, v7')
    k('v_lshrrev_b32 v8, 2, v4')
    k('v_lshl_add_u32 v7, v8, 10, v7')
    k('v_and_b32 v8, 3, v4')
    k('v_lshl_add_u32 v9, v8, 8, v7')
    k('v_bfe_u32 v8, v4, 1, 1')
    k('v_lshl_add_u32 v10, v8, 9, v7')
    k('v_and_b32 v8, 1, v4')
    k('v_lshl_add_u32 v10, v8, 3, v10')
    k('s_mov_b32 s20, 0xffff0000')
    k('s_and_b32 s29, s29, 0xffff')
    k('v_bfe_u32 v12, v2, 2, 3')
    k('v_mul_u32_u24 v12, 896, v12')
    k('v_and_b32 v13, 3, v2')
    k('v_lshl_add_u32 v12, v13, 3, v12')
    k('v_lshrrev_b32 v13, 5, v2')
    k('v_lshl_add_u32 v12, v13, 2, v12')
    k('s_lshl_b32 s21, s2, 5')
    k('buffer_load_dword v160, v12, s[28:31], s21 offen')
    k('s_mov_b32 s32, s4'); k('s_mov_b32 s33, s5'); k(f's_mov_b32 s34, {SENT_END - MEM_S}'); k('s_mov_b32 s35, 0x20000')
    k('s_mov_b32 s36, s4'); k('s_mov_b32 s37, s5'); k(f's_mov_b32 s38, {FLG + FLG_SZ}'); k('s_mov_b32 s39, 0x20000')
    k('v_lshlrev_b32 v11, 4, v2')
    k('s_mul_i32 s21, s2, 6144')
    k(f's_add_u32 s21, s21, {MEM + MEM_S}')
    k('s_add_u32 s22, s21, 4096')
    for r in range(4): k(f'v_mov_b32 v{164+r}, -1')
    for r in range(4): k(f'v_mov_b32 v{168+r}, 0')
    for r in range(6): k(f'buffer_store_dwordx4 v[164:167], v11, s[32:35], s{21 if r < 4 else 22} offen offset:{(r&3)*1024}')
    k('s_lshl_b32 s21, s2, 10')
    k(f's_add_u32 s21, s21, {FLG}')
    k('buffer_store_dwordx4 v[168:171], v11, s[36:39], s21 offen')
    k('s_barrier')
    k('s_waitcnt vmcnt(15)')
    for d in range(28):
        k(f'v_lshlrev_b32 v{vF+2*d}, 16, v{vX+d}')
        k(f'v_and_b32 v{vF+2*d+1}, s20, v{vX+d}')
    def red8(v):
        for ctl in ('quad_perm:[1,0,3,2]', 'quad_perm:[2,3,0,1]', 'row_half_mirror'):
            k.nop(2)
            k(f'v_add_f32_dpp v{v}, v{v}, v{v} {ctl} row_mask:0xf bank_mask:0xf')
    def rbf(v):
        k(f'v_cvt_pk_bf16_f32 v{v}, v{v}, v{v}')
        k(f'v_and_b32 v{v}, s20, v{v}')
    k(f'v_pk_add_f32 v[12:13], {vr(vF,2)}, {vr(vF+2,2)}')
    for d in range(2, 28): k(f'v_pk_add_f32 v[12:13], v[12:13], {vr(vF+2*d,2)}')
    k('v_add_f32 v12, v12, v13')
    k('s_barrier')
    red8(12)
    k(f's_mov_b32 s21, {f32bits(1/448):#x}')
    k('v_mul_f32 v12, s21, v12')
    k('v_mov_b32 v14, 0'); k('v_mov_b32 v15, 0')
    for d in range(28):
        k(f'v_pk_add_f32 {vr(vX,2)}, {vr(vF+2*d,2)}, v[12:13] op_sel_hi:[1,0] neg_lo:[0,1] neg_hi:[0,1]')
        k(f'v_pk_fma_f32 v[14:15], {vr(vX,2)}, {vr(vX,2)}, v[14:15]')
    k('v_add_f32 v14, v14, v15')
    k('s_barrier')
    red8(14)
    k('v_mul_f32 v14, s21, v14')
    rbf(14)
    k(f'v_add_f32 v14, {f32bits(1e-5):#x}, v14')
    rbf(14)
    k('v_sqrt_f32 v14, v14')
    k.nop(1)
    rbf(14)
    k('v_rcp_f32 v15, v14')
    rbf(12)
    k('s_waitcnt vmcnt(7)')
    k('v_mov_b32 v128, 0'); k('v_mov_b32 v129, 0')
    vO, vS = vX, 132
    for d in range(28):
        f = vF + 2*d
        k(f'v_pk_add_f32 {vr(f,2)}, {vr(f,2)}, v[12:13] op_sel_hi:[1,0] neg_lo:[0,1] neg_hi:[0,1]')
        k(f'v_cvt_pk_bf16_f32 v130, v{f}, v{f+1}')
        k(f'v_lshlrev_b32 v{f}, 16, v130')
        k(f'v_and_b32 v{f+1}, s20, v130')
        k(f'v_pk_mul_f32 v[130:131], {vr(f,2)}, v[14:15] op_sel:[0,1] op_sel_hi:[1,1]')
        k(f'v_pk_fma_f32 {vr(f,2)}, v[130:131], v[14:15], {vr(f,2)} op_sel_hi:[1,0,1] neg_lo:[1,0,0] neg_hi:[1,0,0]')
        k(f'v_pk_fma_f32 v[130:131], {vr(f,2)}, v[14:15], v[130:131] op_sel:[0,1,0] op_sel_hi:[1,1,1]')
        k(f'v_cvt_pk_bf16_f32 v{vO+d}, v130, v131')
        so = vS + 4*(d>>2) + {0:0, 1:2, 2:1, 3:3}[d&3]
        k(f'v_mov_b32 v{so}, v{vO+d}')
        k(f'v_dot2_f32_bf16 v{128+(d&1)}, v{vO+d}, v{vW+d}, v{128+(d&1)}')
        if d % 7 == 3: k('s_barrier')
    k(f's_mov_b32 s22, {XNR}'); k(f's_mov_b32 s23, {XNF}'); k(f's_mov_b32 s24, {XNS}')
    for i in range(7):
        k(f'buffer_store_dwordx4 {vr(vO+4*i,4)}, v5, {WS}, s22 offen offset:{i*128}')
        k(f'buffer_store_dwordx4 {vr(vO+4*i,4)}, v9, {WS}, s23 offen offset:{(i&1)*2048}')
        k(f'buffer_store_dwordx2 {vr(vS+4*i,2)}, v10, {WS}, s24 offen offset:{(i&1)*2048}')
        k(f'buffer_store_dwordx2 {vr(vS+4*i+2,2)}, v10, {WS}, s24 offen offset:{(i&1)*2048+256}')
        if i & 1:
            k('s_add_u32 s23, s23, 4096'); k('s_add_u32 s24, s24, 4096')
    k.nop(2)
    k('v_add_f32 v128, v128, v129')
    red8(128)
    rbf(128)
    k('v_lshlrev_b32 v3, 2, v3')
    k(f's_mov_b32 s22, {RR}')
    k(f'buffer_store_dword v128, v3, {WS}, s22 offen')
    k('s_cmp_ge_u32 s2, 28')
    k('s_cbranch_scc1 P_exit')
    k('v_min_u32 v160, -2, v160')
    k('v_lshlrev_b32 v11, 2, v2')
    k('s_lshl_b32 s21, s2, 8')
    k(f's_add_u32 s22, s21, {MEM}')
    k(f's_add_u32 s21, s21, {SENT_END - MEM_S}')
    k(f'buffer_store_dword v160, v11, {WS}, s22 offen')
    k(f'buffer_store_dword v160, v11, {WS}, s21 offen')
    k.label('P_exit')
    k('s_endpgm')
    return k
```

```python
from chain import *
from prep import srd, f32bits
WS = 's[4:7]'
sH, sBLK, sSEG, sQT, sCG, sJ = 60, 61, 62, 63, 64, 65
vLn, vL16 = 1, 2

def wait_flag(k, off_sgpr, target, vT, name='Lwf'):
    lp, dn = k.newlabel(name), k.newlabel(name + 'd')
    k(f's_mov_b32 s{sCNT}, 0')
    k.label(lp)
    k(f'buffer_load_dword v{vT}, off, {WS}, s{off_sgpr} sc1')
    k(f's_add_u32 s{sCNT}, s{sCNT}, 1')
    k(f's_cmp_gt_u32 s{sCNT}, s{sT2}')
    k('s_cbranch_scc1 L_fail')
    k('s_waitcnt vmcnt(0)')
    k(f'v_cmp_le_u32 vcc, {target}, v{vT}')
    k(f's_cbranch_vccnz {dn}')
    k('s_sleep 8')
    k(f's_branch {lp}')
    k.label(dn)

def signal(k, off_sgpr, vT):
    dn = k.newlabel('Lsg')
    k('s_waitcnt vmcnt(0)')
    k('s_barrier')
    k(f's_cmp_lg_u32 s{sWAVE}, 0')
    k(f's_cbranch_scc1 {dn}')
    k('s_mov_b64 exec, 1')
    k(f'v_mov_b32 v{vT}, 1')
    k(f'buffer_atomic_add v{vT}, off, {WS}, s{off_sgpr}')
    k('s_mov_b64 exec, -1')
    k.label(dn)

TL = [False]
ACC0 = 32
def acc(lt, tt): return ACC0 + 4*(lt*8 + tt)

def gemm(k, wbase, swap):
    vW = 8
    vXa = 15
    k.vmq = []
    k(f's_mul_i32 s41, s{sWAVE}, 28672')
    k(f's_mul_i32 s40, s{sBLK}, 114688')
    k(f's_add_u32 s40, s40, s41')
    k(f's_add_u32 s40, s40, {XNF}')
    k(f's_mul_i32 s42, s{sH}, {28*14336}')
    k(f's_mul_i32 s43, s{sWAVE}, {7*14336}')
    k(f's_add_u32 s42, s42, s43')
    k(f's_add_u32 s42, s42, {wbase}')
    for j in range(14):
        k(f's_add_u32 s{76+j}, s59, {j}')
        k(f's_sub_u32 s43, s{76+j}, 14')
        k(f's_cmp_ge_u32 s{76+j}, 14')
        k(f's_cselect_b32 s{76+j}, s43, s{76+j}')
        k(f's_lshl_b32 s{76+j}, s{76+j}, 10')
    for lt in range(7): k(f'v_add_u32 v{vW+lt}, {lt*14336}, v{vL16}')
    k(f'v_add_u32 v17, 14336, v{vL16}')
    k('s_barrier')
    def stx(j, t):
        k(f's_add_u32 s43, s41, s{76+j}')
        if t: k('s_add_u32 s43, s43, 14336')
        k('s_mov_b32 m0, s43')
        k(f's_add_u32 s44, s40, s{76+j}')
        k.vm(f'buffer_load_dwordx4 v{17 if t else vL16}, {WS}, s44 offen lds', f'x{j}')
    def ldw(j, lt):
        if lt == 0: k(f's_add_u32 s45, s42, s{76+j}')
        k.vm(f'buffer_load_dwordx4 {ar(28*(j%3)+4*lt,4)}, v{vW+lt}, {WS}, s45 offen', f'w{j}')
    def xaddr(j):
        k(f'v_add_u32 v{vXa}, s{76+j}, v{vL16}')
        k(f'v_add_u32 v{vXa+1}, 57344, v{vXa}')
    def ldx(j, tt): k(f'ds_read_b128 {ar(84+32*(j&1)+4*tt,4)}, v{vXa + (tt>>2)} offset:{(tt&3)*14336}')
    for j in range(2):
        stx(j, 0); stx(j, 1)
        for lt in range(7): ldw(j, lt)
    for j in (2, 3): stx(j, 0); stx(j, 1)
    xaddr(0)
    k.wvm('x0')
    k('s_barrier')
    if TL[0] and not swap:
        tstamp(k, 57, 12, 18); k.vmq.append('st')
    for tt in range(8): ldx(0, tt)
    for j in range(14):
        if j + 1 < 14: xaddr(j+1)
        k.wvm(f'w{j}', f'x{j+1}', extra='lgkmcnt(0)')
        if j + 1 < 14: k('s_barrier')
        for tt in range(8):
            for lt in range(7):
                x, w = ar(84+32*(j&1)+4*tt,4), ar(28*(j%3)+4*lt,4)
                a, b = (w, x) if swap else (x, w)
                c = '0' if j == 0 else vr(acc(lt,tt),4)
                k(f'v_mfma_f32_16x16x32_bf16 {vr(acc(lt,tt),4)}, {a}, {b}, {c}')
                if lt == 1 and j + 1 < 14: ldx(j+1, tt)
                if lt == 3 and tt < 2 and j + 4 < 14: stx(j+4, tt)
                if lt == 5 and tt >= 1 and j + 2 < 14: ldw(j+2, tt-1)

def task_U(k):
    k.label('T_U')
    k(f's_min_u32 s59, s{sBLK}, 13' if OPT['rot'] else 's_mov_b32 s59, 0')
    gemm(k, WTB, False)
    if TL[0]: tstamp(k, 57, 8, 16)
    k(f's_mul_i32 s40, s{sBLK}, {4*UF_SEG}')
    k(f's_lshl_b32 s41, s{sH}, 11')
    k(f's_add_u32 s40, s40, s41')
    k(f's_add_u32 s40, s40, {UF}')
    k(f's_mul_i32 s41, s{sWAVE}, 7')
    for lt in range(7):
        k(f's_add_u32 s42, s41, {lt}')
        k(f's_lshr_b32 s43, s42, 1')
        k(f's_lshl_b32 s43, s43, 15')
        k(f's_and_b32 s42, s42, 1')
        k(f's_lshl_b32 s42, s42, 10')
        k(f's_add_u32 s{44+lt}, s40, s43')
        k(f's_add_u32 s{44+lt}, s{44+lt}, s42')
    if OPT['uwin']:
        lw = k.newlabel('Luw')
        k(f"s_cmp_lt_u32 s{sBLK}, {OPT['uwin']}")
        k(f's_cbranch_scc1 {lw}')
        k(f's_lshl_b32 s40, s{sBLK}, 7')
        k(f"s_add_u32 s40, s40, {flag(F_U) - 128*OPT['uwin']}")
        wait_flag(k, 40, 16, 16)
        k.label(lw)
    for q in range(4):
        for lt in range(7):
            a, b = acc(lt, 2*q), acc(lt, 2*q+1)
            k(f'v_cvt_pk_bf16_f32 v{a}, v{a}, v{a+1}')
            k(f'v_cvt_pk_bf16_f32 v{a+1}, v{a+2}, v{a+3}')
            k(f'v_cvt_pk_bf16_f32 v{a+2}, v{b}, v{b+1}')
            k(f'v_cvt_pk_bf16_f32 v{a+3}, v{b+2}, v{b+3}')
            k(f'buffer_store_dwordx4 {vr(a,4)}, v{vL16}, {WS}, s{44+lt} offen ' + OPT['ust'])
            k(f's_add_u32 s{44+lt}, s{44+lt}, {UF_SEG}')
    k(f's_lshl_b32 s40, s{sBLK}, 7')
    k(f's_add_u32 s40, s40, {flag(F_U)}')
    signal(k, 40, 3)
    k('s_branch W_next')

def xlane_red(k, op, m, t):
    for sw in ('v_permlane16_swap_b32', 'v_permlane32_swap_b32'):
        k(f'v_mov_b32 v{t}, v{m}')
        k.nop(2)
        k(f'{sw} v{m}, v{t}')
        k(f'{op} v{m}, v{m}, v{t}')

def task_P(k):
    k.label('T_P')
    k(f's_min_u32 s59, s{sBLK}, 13')
    gemm(k, WTA, True)
    vE, vO, vG, vI, vMK, vT = 16, 17, 18, 19, 20, 21
    k(f's_mul_i32 s40, s{sWAVE}, 7')
    k(f's_lshr_b32 s40, s40, 1')
    k(f's_lshl_b32 s40, s40, 10')
    k(f's_and_b32 s41, s{sWAVE}, 1')
    k(f's_lshl_b32 s42, s41, 3')
    k(f's_add_u32 s42, s42, s40')
    k(f's_mul_i32 s43, s41, 1016')
    k(f's_add_u32 s43, s43, 8')
    k(f's_add_u32 s43, s43, s40')
    k(f'v_add_u32 v{vE}, s42, v{vL16}')
    k(f'v_add_u32 v{vO}, s43, v{vL16}')
    k(f'v_add_u32 v{vT}, 57344, v{vE}')
    k(f'v_add_u32 v{vT+1}, 57344, v{vO}')
    k('s_barrier')
    for tt in range(8):
        for lt in range(7):
            a = acc(lt, tt)
            k(f'v_cvt_pk_bf16_f32 v{a}, v{a}, v{a+1}')
            k(f'v_cvt_pk_bf16_f32 v{a+1}, v{a+2}, v{a+3}')
            ad = (vE if lt % 2 == 0 else vO) if tt < 4 else (vT if lt % 2 == 0 else vT+1)
            k(f'ds_write_b64 v{ad}, {vr(a,2)} offset:{(tt&3)*14336 + (lt>>1)*1024}')
    k(f's_lshl_b32 s{sSEG}, s{sBLK}, 2')
    k(f's_add_u32 s{sSEG}, s{sSEG}, s{sWAVE}')
    k(f's_mul_i32 s40, s{sSEG}, 28672')
    k(f's_add_u32 s40, s40, {XNS}')
    vKT, vKM, vS = 32, 144, 200
    k('s_waitcnt lgkmcnt(0)')
    for f in range(28):
        k(f'buffer_load_dwordx4 {vr(vKT+4*f,4)}, v{vL16}, {WS}, s40 offen offset:{(f&3)*1024}')
        if (f&3) == 3: k('s_add_u32 s40, s40, 4096')
    k('s_barrier')
    k(f's_mul_i32 s41, s{sWAVE}, 28672')
    k(f'v_add_u32 v{vT}, s41, v{vL16}')
    for f in range(28): k(f'ds_read_b128 {ar(4*f,4)}, v{vT} offset:{f*1024}')
    k(f'v_lshrrev_b32 v{vG}, 4, v{vLn}')
    k(f'v_and_b32 v{vI}, 15, v{vLn}')
    k(f'v_lshrrev_b32 v{vMK}, 1, v{vG}')
    k(f'v_lshlrev_b32 v{vMK}, 8, v{vMK}')
    k(f'v_and_b32 v{vT}, 7, v{vI}')
    k(f'v_lshl_add_u32 v{vMK}, v{vT}, 4, v{vMK}')
    k(f'v_and_b32 v{vT}, 1, v{vG}')
    k(f'v_lshl_add_u32 v{vMK}, v{vT}, 7, v{vMK}')
    k(f'v_lshlrev_b32 v{vT}, 2, v{vG}')
    for r in range(4):
        k(f'v_cmp_gt_u32 s[{44+2*r}:{45+2*r}], v{vT}, v{vI}')
        if r < 3: k(f'v_add_u32 v{vT}, 1, v{vT}')
    k(f'v_cmp_gt_u32 s[52:53], 2, v{vG}')
    St = {(1,0): vS, (1,1): vS+4, (2,1): vS+8, (0,0): vS+12, (0,1): vS+16}
    k('s_waitcnt vmcnt(0) lgkmcnt(0)')
    for ks in range(14):
        for (kt, qt) in ((1,0), (1,1), (2,1)):
            c = '0' if ks == 0 else vr(St[kt,qt],4)
            k(f'v_mfma_f32_16x16x32_bf16 {vr(St[kt,qt],4)}, {vr(vKT+56*(kt-1)+4*ks,4)}, {ar(56*qt+4*ks,4)}, {c}')
    if TL[0]: tstamp(k, 57, 8, vT)
    k(f's_add_u32 s40, s{sSEG}, 63')
    k(f's_and_b32 s40, s40, 63')
    k(f's_mul_i32 s40, s40, {MEM_S}')
    k(f's_add_u32 s40, s40, {MEMX}')
    k(f's_add_u32 s41, s40, 4096')
    lp, dn = k.newlabel('Lpm'), k.newlabel('Lpd')
    k(f's_mov_b32 s{sCNT}, 0')
    k.label(lp)
    for ks in range(14):
        k(f'buffer_load_dwordx4 {vr(vKM+4*ks,4)}, v{vMK}, {WS}, s{40 if ks < 8 else 41} offen offset:{(ks&7)*512} sc1')
    k(f's_add_u32 s{sCNT}, s{sCNT}, 1')
    k(f's_cmp_gt_u32 s{sCNT}, s{sT2}')
    k('s_cbranch_scc1 L_fail')
    k('s_waitcnt vmcnt(0)')
    k(f'v_max3_u32 v{vT}, v{vKM}, v{vKM+1}, v{vKM+2}')
    for r in range(3, 55, 2): k(f'v_max3_u32 v{vT}, v{vT}, v{vKM+r}, v{vKM+r+1}')
    k(f'v_max_u32 v{vT}, v{vT}, v{vKM+55}')
    k(f'v_cmp_eq_u32 vcc, -1, v{vT}')
    k(f's_cbranch_vccz {dn}')
    l2 = k.newlabel('Lpl')
    k.label(l2)
    k('s_sleep 8')
    k(f'buffer_load_dword v{vT}, v{vMK}, {WS}, s41 offen offset:2560 sc1')
    k(f's_add_u32 s{sCNT}, s{sCNT}, 1')
    k(f's_cmp_gt_u32 s{sCNT}, s{sT2}')
    k('s_cbranch_scc1 L_fail')
    k('s_waitcnt vmcnt(0)')
    k(f'v_cmp_eq_u32 vcc, -1, v{vT}')
    k(f's_cbranch_vccnz {l2}')
    k(f's_branch {lp}')
    k.label(dn)
    if TL[0]: tstamp(k, 57, 12, vT)
    for ks in range(14):
        for qt in range(2):
            c = '0' if ks == 0 else vr(St[0,qt],4)
            k(f'v_mfma_f32_16x16x32_bf16 {vr(St[0,qt],4)}, {vr(vKM+4*ks,4)}, {ar(56*qt+4*ks,4)}, {c}')
    k(f's_mul_i32 s40, s{sSEG}, {PT_SEG}')
    k(f's_add_u32 s40, s40, {PT}')
    k(f's_lshl_b32 s41, s{sH}, 11')
    k(f's_add_u32 s41, s41, s40')
    k(f's_lshr_b32 s42, s{sH}, 1')
    k(f's_lshl_b32 s42, s42, 11')
    k(f's_and_b32 s43, s{sH}, 1')
    k(f's_lshl_b32 s43, s43, 2')
    k(f's_add_u32 s42, s42, s43')
    k(f's_add_u32 s42, s42, s40')
    k(f's_add_u32 s42, s42, 32768')
    k(f'v_mov_b32 v{vT+2}, 0xff800000')
    k.nop(2)
    for d in ((1,0), (2,1)):
        for r in range(4):
            k(f'v_cndmask_b32 v{St[d]+r}, v{St[d]+r}, v{vT+2}, s[{44+2*r}:{45+2*r}]')
    for qt in range(2):
        tiles = [St[0,qt], St[1,qt]] + ([St[2,1]] if qt else [])
        regs = [t + r for t in tiles for r in range(4)]
        m, t, l = 24, 26, 28
        k(f'v_max3_f32 v{m}, v{regs[0]}, v{regs[1]}, v{regs[2]}')
        for i in range(3, len(regs) - 1, 2): k(f'v_max3_f32 v{m}, v{m}, v{regs[i]}, v{regs[i+1]}')
        k(f'v_max_f32 v{m}, v{m}, v{regs[-1]}')
        xlane_red(k, 'v_max_f32', m, t)
        for i in range(0, len(regs), 2):
            k(f'v_pk_add_f32 {vr(regs[i],2)}, {vr(regs[i],2)}, {vr(m,2)} op_sel_hi:[1,0] neg_lo:[0,1] neg_hi:[0,1]')
        for r in regs: k(f'v_exp_f32 v{r}, v{r}')
        k.nop(1)
        k(f'v_pk_add_f32 {vr(l,2)}, {vr(regs[0],2)}, {vr(regs[2],2)}')
        k(f'v_add_f32 v{l}, v{l}, v{l+1}')
        k(f'v_cndmask_b32 v{l}, 0, v{l}, s[52:53]')
        k(f'v_mov_b32 v{l+1}, 0')
        for i in range(4, len(regs), 2): k(f'v_pk_add_f32 {vr(l,2)}, {vr(l,2)}, {vr(regs[i],2)}')
        k(f'v_add_f32 v{l}, v{l}, v{l+1}')
        xlane_red(k, 'v_add_f32', l, t)
        k(f'v_rcp_f32 v{l}, v{l}')
        k.nop(1)
        for i in range(0, len(regs), 2):
            k(f'v_pk_mul_f32 {vr(regs[i],2)}, {vr(regs[i],2)}, {vr(l,2)} op_sel_hi:[1,0]')
        o = 220 + 8*qt
        k(f'v_cvt_pk_bf16_f32 v{o}, v{regs[4]}, v{regs[5]}')
        k(f'v_cvt_pk_bf16_f32 v{o+1}, v{regs[6]}, v{regs[7]}')
        if qt:
            k(f'v_cvt_pk_bf16_f32 v{o+2}, v{regs[8]}, v{regs[9]}')
            k(f'v_cvt_pk_bf16_f32 v{o+3}, v{regs[10]}, v{regs[11]}')
        else:
            k(f'v_mov_b64 {vr(o+2,2)}, 0')
        k(f'v_cvt_pk_bf16_f32 v{o+4}, v{regs[0]}, v{regs[1]}')
        k(f'v_cvt_pk_bf16_f32 v{o+5}, v{regs[2]}, v{regs[3]}')
        k(f'buffer_store_dwordx4 {vr(o,4)}, v{vL16}, {WS}, s41 offen offset:{qt*1024} sc1')
        k(f'buffer_store_dword v{o+4}, v{vL16}, {WS}, s42 offen offset:{qt*1024} sc1')
        k(f'buffer_store_dword v{o+5}, v{vL16}, {WS}, s42 offen offset:{qt*1024+8} sc1')
    k(f's_lshl_b32 s40, s{sBLK}, 7')
    k(f's_add_u32 s40, s40, {flag(F_P)}')
    signal(k, 40, 3)
    k('s_branch W_next')

def rbf(k, v, sMaskHi):
    k(f'v_cvt_pk_bf16_f32 v{v}, v{v}, v{v}')
    k(f'v_and_b32 v{v}, s{sMaskHi}, v{v}')

def task_V(k):
    k.label('T_V')
    vU, vUM, vP, vD, vT = 32, 96, 128, 152, 16
    k(f's_lshr_b32 s{sBLK}, s{sSEG}, 2')
    k(f's_lshl_b32 s40, s{sBLK}, 7')
    k(f's_add_u32 s40, s40, {flag(F_U)}')
    wait_flag(k, 40, 16, vT)
    k(f's_mul_i32 s40, s{sSEG}, {UF_SEG}')
    k(f's_lshl_b32 s41, s{sCG}, 16')
    k(f's_add_u32 s40, s40, s41')
    k(f's_lshl_b32 s41, s{sWAVE}, 13')
    k(f's_add_u32 s40, s40, s41')
    k(f's_add_u32 s40, s40, {UF}')
    for bb in range(2):
        for hp in range(2):
            k(f's_add_u32 s41, s40, {bb*32768 + hp*4096}')
            for f in range(4):
                hh, T = 2*hp + (f>>1), f&1
                k(f'buffer_load_dwordx4 {vr(vU+16*(2*bb+T)+4*hh,4)}, v{vL16}, {WS}, s41 offen offset:{f*1024} sc1')
    srd(k, 68, 0, 1835008); srd(k, 72, 96, 1835008)
    vRow, vOff = vT+1, vT+2
    k(f's_lshl_b32 s42, s{sSEG}, 5')
    k(f's_lshl_b32 s43, s{sQT}, 4')
    k(f's_add_u32 s42, s42, s43')
    k(f'v_and_b32 v{vRow}, 15, v{vLn}')
    k(f'v_add_u32 v{vRow}, s42, v{vRow}')
    k(f'v_mul_u32_u24 v{vOff}, 896, v{vRow}')
    k(f'v_lshrrev_b32 v{vT+3}, 4, v{vLn}')
    k(f's_lshl_b32 s42, s{sCG}, 7')
    k(f's_lshl_b32 s43, s{sWAVE}, 5')
    k(f's_add_u32 s42, s42, s43')
    k(f'v_lshl_add_u32 v{vT+3}, v{vT+3}, 3, s42')
    k(f'v_add_u32 v{vOff}, v{vOff}, v{vT+3}')
    k(f's_mov_b32 s43, {XNR}')
    k('s_waitcnt lgkmcnt(0)')
    k('s_and_b32 s69, s69, 0xffff'); k('s_and_b32 s73, s73, 0xffff')
    vXr, vXn = vT+4, vT+6
    k(f'buffer_load_dwordx2 {vr(vXr,2)}, v{vOff}, s[68:71], 0 offen')
    k(f'buffer_load_dwordx2 {vr(vXn,2)}, v{vOff}, {WS}, s43 offen')
    k(f's_mov_b32 s40, {flag(F_M2)}')
    wait_flag(k, 40, 28, vT)
    vIx = 168
    k(f's_mov_b32 s40, {IDX}')
    for j in range(4): k(f'buffer_load_dwordx4 {vr(vIx+4*j,4)}, off, {WS}, s40 offset:{16*j} sc1')
    vSel, vSig, vY = 184, 185, 188
    k(f'v_mov_b32 v{vSel}, 0x40000000')
    k(f'v_mov_b32 v{vSig}, 0')
    k('s_waitcnt vmcnt(0)')
    for j in range(8):
        k(f'v_cmp_eq_u32 vcc, v{vIx+j}, v{vRow}')
        k(f'v_mov_b32 v{vT}, {j*1792}')
        k('s_nop 0')
        k(f'v_cndmask_b32 v{vSel}, v{vSel}, v{vT}, vcc')
        k(f'v_cndmask_b32 v{vSig}, v{vSig}, v{vIx+8+j}, vcc')
    k(f'v_lshl_add_u32 v{vSel}, v{vT+3}, 1, v{vSel}')
    for q in range(4):
        k(f's_mov_b32 s40, {UPD + q*14336}')
        k(f'buffer_load_dwordx4 {vr(vY+4*q,4)}, v{vSel}, {WS}, s40 offen sc1')
    k(f's_lshl_b32 s40, s{sBLK}, 7')
    k(f's_add_u32 s40, s40, {flag(F_P)}')
    wait_flag(k, 40, 16, vT)
    if TL[0]: tstamp(k, 57, 8, vT)
    k(f's_mul_i32 s40, s{sSEG}, {PT_SEG}')
    k(f's_lshl_b32 s41, s{sQT}, 10')
    k(f's_add_u32 s40, s40, s41')
    k(f's_add_u32 s40, s40, {PT}')
    k(f's_lshl_b32 s41, s{sWAVE}, 13')
    k(f's_add_u32 s41, s41, s40')
    k(f's_add_u32 s42, s41, 4096')
    for hh in range(4):
        k(f'buffer_load_dwordx4 {vr(vP+4*hh,4)}, v{vL16}, {WS}, s{41 if hh<2 else 42} offen offset:{(hh&1)*2048} sc1')
    k(f's_lshl_b32 s41, s{sWAVE}, 12')
    k(f's_add_u32 s41, s41, s40')
    k(f's_add_u32 s41, s41, 32768')
    for u in range(2):
        k(f'buffer_load_dwordx4 {vr(vP+16+4*u,4)}, v{vL16}, {WS}, s41 offen offset:{u*2048} sc1')
    k(f's_lshl_b32 s40, s{sSEG}, 7')
    k(f's_add_u32 s40, s40, {flag(F_UM)}')
    wait_flag(k, 40, 14, vT)
    if TL[0]: tstamp(k, 57, 12, vT)
    k(f's_mul_i32 s40, s{sSEG}, {UM_SEG}')
    k(f's_mul_i32 s41, s{sWAVE}, {2*28672}')
    k(f's_add_u32 s40, s40, s41')
    k(f's_lshl_b32 s41, s{sCG}, 12')
    k(f's_add_u32 s40, s40, s41')
    k(f's_add_u32 s40, s40, {UM}')
    k(f's_add_u32 s41, s40, 28672')
    for u in range(2):
        for ct in range(4):
            k(f'buffer_load_dwordx4 {vr(vUM+8*ct+4*u,4)}, v{vL16}, {WS}, s{40+u} offen offset:{ct*1024} sc1')
    k('s_mov_b32 s54, 0xffff0000')
    for h in range(2):
        k(f'v_pk_add_f32 {vr(vY+2*h,2)}, {vr(vY+2*h,2)}, {vr(vY+4+2*h,2)}')
        k(f'v_pk_add_f32 {vr(vY+8+2*h,2)}, {vr(vY+8+2*h,2)}, {vr(vY+12+2*h,2)}')
        k(f'v_pk_add_f32 {vr(vY+2*h,2)}, {vr(vY+2*h,2)}, {vr(vY+8+2*h,2)}')
    vB, vXf = vY+4, vY+8
    for r in range(4):
        rbf(k, vY+r, 54)
        k(f'v_mul_f32 v{vY+r}, v{vY+r}, v{vSig}')
        rbf(k, vY+r, 54)
        src = vXn + (r>>1)
        k(f'v_lshlrev_b32 v{vB+r}, 16, v{src}' if r % 2 == 0 else f'v_and_b32 v{vB+r}, s54, v{src}')
        k(f'v_add_f32 v{vB+r}, v{vB+r}, v{vY+r}')
        rbf(k, vB+r, 54)
        src = vXr + (r>>1)
        k(f'v_lshlrev_b32 v{vXf+r}, 16, v{src}' if r % 2 == 0 else f'v_and_b32 v{vXf+r}, s54, v{src}')
    k('s_barrier')
    k('s_waitcnt vmcnt(8)')
    for hh in range(4):
        for ct in range(4):
            c = '0' if hh == 0 else vr(vD+4*ct,4)
            k(f'v_mfma_f32_16x16x32_bf16 {vr(vD+4*ct,4)}, {vr(vU+16*ct+4*hh,4)}, {vr(vP+4*hh,4)}, {c}')
    k('s_waitcnt vmcnt(0)')
    for u in range(2):
        for ct in range(4):
            k(f'v_mfma_f32_16x16x32_bf16 {vr(vD+4*ct,4)}, {vr(vUM+8*ct+4*u,4)}, {vr(vP+16+4*u,4)}, {vr(vD+4*ct,4)}')
    k(f's_lshl_b32 s40, s{sWAVE}, 12')
    k(f'v_add_u32 v{vT}, s40, v{vL16}')
    k(f's_lshl_b32 s40, s{sWAVE}, 10')
    k(f'v_add_u32 v{vT+3}, s40, v{vL16}')
    k.nop(2)
    for ct in range(4): k(f'ds_write_b128 v{vT}, {vr(vD+4*ct,4)} offset:{ct*1024}')
    k('s_waitcnt lgkmcnt(0)')
    k('s_barrier')
    for w in range(4): k(f'ds_read_b128 {vr(vU+4*w,4)}, v{vT+3} offset:{w*4096}')
    k('s_waitcnt lgkmcnt(0)')
    for h in range(2):
        k(f'v_pk_add_f32 {vr(vU+2*h,2)}, {vr(vU+2*h,2)}, {vr(vU+4+2*h,2)}')
        k(f'v_pk_add_f32 {vr(vU+8+2*h,2)}, {vr(vU+8+2*h,2)}, {vr(vU+12+2*h,2)}')
        k(f'v_pk_add_f32 {vr(vU+2*h,2)}, {vr(vU+2*h,2)}, {vr(vU+8+2*h,2)}')
    for r in range(4):
        rbf(k, vU+r, 54)
        k(f'v_add_f32 v{vU+r}, v{vU+r}, v{vXf+r}')
        rbf(k, vU+r, 54)
        k(f'v_add_f32 v{vU+r}, v{vU+r}, v{vB+r}')
    k(f'v_cvt_pk_bf16_f32 v{vU}, v{vU}, v{vU+1}')
    k(f'v_cvt_pk_bf16_f32 v{vU+1}, v{vU+2}, v{vU+3}')
    k(f'buffer_store_dwordx2 {vr(vU,2)}, v{vOff}, s[72:75], 0 offen')
    k('s_branch W_next')

def moe_stage(k, srdreg, pitch, soff, lds, vT):
    k(f'v_lshrrev_b32 v{vT}, 3, v0')
    k(f'v_and_b32 v{vT+1}, 7, v0')
    k(f's_mov_b32 s44, {pitch}')
    k(f'v_mul_lo_u32 v{vT+2}, v{vT}, s44')
    k(f'v_lshl_add_u32 v{vT+2}, v{vT+1}, 4, v{vT+2}')
    k(f'v_bfe_u32 v{vT+3}, v{vT}, 1, 1')
    k(f'v_bfe_u32 v{vT+4}, v{vT}, 3, 1')
    k(f'v_lshl_add_u32 v{vT+3}, v{vT+4}, 1, v{vT+3}')
    k(f'v_lshlrev_b32 v{vT+3}, 1, v{vT+3}')
    k(f'v_xor_b32 v{vT+3}, v{vT+3}, v{vT+1}')
    k(f'v_lshlrev_b32 v{vT+3}, 4, v{vT+3}')
    k(f'v_lshl_add_u32 v{vT+3}, v{vT}, 7, v{vT+3}')
    if lds: k(f'v_add_u32 v{vT+3}, {lds}, v{vT+3}')
    k(f's_mov_b32 s44, s{soff}')
    for r in range(14):
        k(f'buffer_load_dwordx4 {vr(32+4*r,4)}, v{vT+2}, s[{srdreg}:{srdreg+3}], s44 offen')
        k(f's_add_u32 s44, s44, {32*pitch}')
    for r in range(14):
        k(f's_waitcnt vmcnt({13-r})')
        k(f'ds_write_b128 v{vT+3}, {vr(32+4*r,4)} offset:{r*4096}')

def moe_mm(k, lds, vA, vD, vAd, vB):
    for ks in range(14):
        for hh in range(2): k(f'ds_read_b64_tr_b16 {vr(vB+4*ks+2*hh,2)}, v{vAd} offset:{lds + ks*4096 + hh*512}')
    k('s_waitcnt lgkmcnt(0)')
    for ks in range(14):
        k(f'v_mfma_f32_16x16x32_bf16 {vr(vD,4)}, {vr(vA+4*ks,4)}, {vr(vB+4*ks,4)}, {"0" if ks == 0 else vr(vD,4)}')

def moe_traddr(k, vAd, vT):
    k(f'v_bfe_u32 v{vAd}, v{vLn}, 2, 2')
    k(f'v_lshrrev_b32 v{vT}, 4, v{vLn}')
    k(f'v_lshl_add_u32 v{vAd}, v{vT}, 3, v{vAd}')
    k(f'v_lshlrev_b32 v{vAd}, 7, v{vAd}')
    k(f'v_and_b32 v{vT}, 3, v{vLn}')
    k(f'v_lshl_add_u32 v{vAd}, v{vT}, 3, v{vAd}')
    k(f'v_bfe_u32 v{vT}, v{vLn}, 3, 1')
    k(f'v_bfe_u32 v{vT+1}, v{vLn}, 4, 1')
    k(f'v_lshl_add_u32 v{vT}, v{vT+1}, 1, v{vT}')
    k(f'v_xor_b32 v{vT}, s{sWAVE}, v{vT}')
    k(f'v_lshl_add_u32 v{vAd}, v{vT}, 5, v{vAd}')

def sigmoid(k, v, t):
    k(f'v_mul_f32 v{t}, {f32bits(-1.4426950408889634):#x}, v{v}')
    k(f'v_exp_f32 v{t}, v{t}')
    k.nop(1)
    k(f'v_add_f32 v{t}, 1.0, v{t}')
    k(f'v_rcp_f32 v{v}, v{t}')
    k.nop(1)

def task_M1(k):
    k.label('T_M1')
    vT = 16
    srd(k, 68, 72, 1605632); srd(k, 72, 80, 1605632)
    vK = 160
    k(f's_mov_b32 s40, {RR}')
    k(f's_add_u32 s41, s40, 4096')
    for j in range(8): k(f'buffer_load_dwordx4 {vr(vK+4*j,4)}, v{vL16}, {WS}, s{40 + (j>>2)} offen offset:{(j&3)*1024}')
    k(f'v_lshlrev_b32 v{vT}, 2, v{vLn}')
    k(f'v_sub_u32 v{vT}, 0xffff, v{vT}')
    k('s_mov_b32 s54, 0xffff0000')
    k('s_waitcnt vmcnt(0) lgkmcnt(0)')
    k('s_and_b32 s69, s69, 0xffff'); k('s_and_b32 s73, s73, 0xffff')
    for j in range(32):
        r = vK + j
        k(f'v_ashrrev_i32 v{vT+1}, 31, v{r}')
        k(f'v_or_b32 v{vT+1}, 0x80000000, v{vT+1}')
        k(f'v_xor_b32 v{r}, v{r}, v{vT+1}')
        k(f'v_subrev_u32 v{vT+1}, {(j>>2)*256 + (j&3)}, v{vT}')
        k(f'v_and_or_b32 v{r}, v{r}, s54, v{vT+1}')
    m, t = vT+2, vT+3
    for it in range(8):
        k(f'v_max3_u32 v{m}, v{vK}, v{vK+1}, v{vK+2}')
        for r in range(3, 31, 2): k(f'v_max3_u32 v{m}, v{m}, v{vK+r}, v{vK+r+1}')
        k(f'v_max_u32 v{m}, v{m}, v{vK+31}')
        for rot in (8, 4, 2, 1):
            k.nop(2)
            k(f'v_max_u32_dpp v{m}, v{m}, v{m} row_ror:{rot} row_mask:0xf bank_mask:0xf')
        xlane_red(k, 'v_max_u32', m, t)
        k.nop(1)
        k(f'v_readfirstlane_b32 s{76+it}, v{m}')
        if it < 7:
            for j in range(32):
                k(f'v_cmp_eq_u32 vcc, v{m}, v{vK+j}')
                k('s_nop 1')
                k(f'v_cndmask_b32 v{vK+j}, v{vK+j}, 0, vcc')
    vKy, vIx = vT+4, vT+5
    k(f'v_mov_b32 v{vKy}, s76')
    k(f'v_and_b32 v{t}, 7, v{vLn}')
    for j in range(1, 8):
        k(f'v_cmp_eq_u32 vcc, {j}, v{t}')
        k(f'v_mov_b32 v{m}, s{76+j}')
        k('s_nop 0')
        k(f'v_cndmask_b32 v{vKy}, v{vKy}, v{m}, vcc')
    k(f'v_and_b32 v{vIx}, 0xffff, v{vKy}')
    k(f'v_sub_u32 v{vIx}, 0xffff, v{vIx}')
    sk = k.newlabel('Lm1s')
    k(f's_or_b32 s40, s{sJ}, s{sWAVE}')
    k('s_cmp_lg_u32 s40, 0')
    k(f's_cbranch_scc1 {sk}')
    k(f'v_and_b32 v{m}, s54, v{vKy}')
    k(f'v_not_b32 v{t}, v{m}')
    k(f'v_ashrrev_i32 v{t}, 31, v{t}')
    k(f'v_or_b32 v{t}, 0x80000000, v{t}')
    k(f'v_xor_b32 v{m}, v{m}, v{t}')
    k(f'v_and_b32 v{m}, s54, v{m}')
    sigmoid(k, m, t)
    rbf(k, m, 54)
    k(f'v_lshlrev_b32 v{t}, 2, v{vLn}')
    k(f's_mov_b32 s40, {IDX}')
    k('s_mov_b64 exec, 0xff')
    k(f'buffer_store_dword v{vIx}, v{t}, {WS}, s40 offen sc1')
    k(f'buffer_store_dword v{m}, v{t}, {WS}, s40 offen offset:32 sc1')
    k('s_mov_b64 exec, -1')
    k.label(sk)
    vA = 96
    k(f'v_mul_u32_u24 v{m}, 896, v{vIx}')
    k(f'v_lshrrev_b32 v{t}, 4, v{vLn}')
    k(f'v_lshl_add_u32 v{m}, v{t}, 4, v{m}')
    k(f's_mov_b32 s40, {XNR}')
    for ks in range(14): k(f'buffer_load_dwordx4 {vr(vA+4*ks,4)}, v{m}, {WS}, s40 offen offset:{ks*64}')
    k('s_barrier')
    k(f's_lshl_b32 s43, s{sJ}, 7')
    moe_stage(k, 68, 3584, 43, 0, 24)
    moe_stage(k, 72, 3584, 43, 57344, 24)
    vAd = vT
    moe_traddr(k, vAd, vT+1)
    k(f'v_add_u32 v{vT+1}, 57344, v{vAd}')
    k('s_waitcnt lgkmcnt(0)')
    k('s_barrier')
    vG, vUu = 24, 28
    moe_mm(k, 0, vA, vG, vAd, 32)
    moe_mm(k, 0, vA, vUu, vT+1, 160)
    k(f'v_lshrrev_b32 v{vT+2}, 4, v{vLn}')
    k(f'v_mul_u32_u24 v{vT+2}, {4*3584}, v{vT+2}')
    k(f'v_and_b32 v{vT+3}, 15, v{vLn}')
    k(f'v_lshl_add_u32 v{vT+2}, v{vT+3}, 1, v{vT+2}')
    k(f's_lshl_b32 s40, s{sWAVE}, 5')
    k(f's_add_u32 s40, s40, s43')
    k(f's_add_u32 s40, s40, {HB}')
    k.nop(4)
    k('s_mov_b32 exec_hi, 0')
    for r in range(4):
        rbf(k, vG+r, 54); rbf(k, vUu+r, 54)
        k(f'v_mov_b32 v{vT+4}, v{vG+r}')
        sigmoid(k, vT+4, vT+5)
        k(f'v_mul_f32 v{vG+r}, v{vG+r}, v{vT+4}')
        rbf(k, vG+r, 54)
        k(f'v_mul_f32 v{vG+r}, v{vG+r}, v{vUu+r}')
        k(f'v_cvt_pk_bf16_f32 v{vG+r}, v{vG+r}, v{vG+r}')
        k(f'buffer_store_short v{vG+r}, v{vT+2}, {WS}, s40 offen sc1')
        k(f's_add_u32 s40, s40, 3584')
    k('s_mov_b64 exec, -1')
    k(f's_mov_b32 s40, {flag(F_M1)}')
    signal(k, 40, 3)
    k('s_branch W_next')

def task_M2(k):
    k.label('T_M2')
    vT = 16
    srd(k, 68, 88, 1605632)
    k(f's_mul_hi_u32 s45, s{sJ}, {(1<<32)//7 + 1}')
    k(f's_mul_i32 s46, s45, 7')
    k(f's_sub_u32 s46, s{sJ}, s46')
    k(f's_mul_i32 s43, s45, {448*896}')
    k(f's_lshl_b32 s40, s46, 7')
    k(f's_add_u32 s43, s43, s40')
    k('s_waitcnt lgkmcnt(0)')
    k('s_and_b32 s69, s69, 0xffff')
    k('s_barrier')
    moe_stage(k, 68, 896, 43, 0, 24)
    vAd = vT
    moe_traddr(k, vAd, vT+1)
    k(f's_mov_b32 s40, {flag(F_M1)}')
    wait_flag(k, 40, 28, vT+1)
    vA = 96
    k(f'v_and_b32 v{vT+1}, 7, v{vLn}')
    k(f'v_mul_u32_u24 v{vT+1}, 3584, v{vT+1}')
    k(f'v_lshrrev_b32 v{vT+2}, 4, v{vLn}')
    k(f'v_lshl_add_u32 v{vT+1}, v{vT+2}, 4, v{vT+1}')
    k(f's_mul_i32 s40, s45, 896')
    k(f's_add_u32 s40, s40, {HB}')
    for ks in range(14): k(f'buffer_load_dwordx4 {vr(vA+4*ks,4)}, v{vT+1}, {WS}, s40 offen offset:{ks*64} sc1')
    k('s_waitcnt vmcnt(0) lgkmcnt(0)')
    k('s_barrier')
    moe_mm(k, 0, vA, 24, vAd, 32)
    k(f'v_mul_u32_u24 v{vT+2}, {4*1792}, v{vT+2}')
    k(f'v_and_b32 v{vT+3}, 15, v{vLn}')
    k(f'v_lshl_add_u32 v{vT+2}, v{vT+3}, 2, v{vT+2}')
    k(f's_mul_i32 s40, s45, 14336')
    k(f's_lshl_b32 s41, s46, 8')
    k(f's_add_u32 s40, s40, s41')
    k(f's_lshl_b32 s41, s{sWAVE}, 6')
    k(f's_add_u32 s40, s40, s41')
    k(f's_add_u32 s40, s40, {UPD}')
    k('s_mov_b32 exec_hi, 0')
    for r in range(4):
        k(f'buffer_store_dword v{24+r}, v{vT+2}, {WS}, s40 offen sc1')
        k(f's_add_u32 s40, s40, 1792')
    k('s_mov_b64 exec, -1')
    k(f's_mov_b32 s40, {flag(F_M2)}')
    signal(k, 40, 3)
    k('s_branch W_next')

LTK = 163832
sSW, sOK, sXR = 66, 67, 3
Q_SWEEP, Q_U2, Q_M1, Q_M2, Q_P0 = 0, 7, 39, 67, 95
Q_G = Q_P0 + 48
Q_T = Q_G + 13*72
Q_END = Q_T + 3*56
DBG = 's[8:11]'

def atomic_ret(k, vT, off):
    k(f'v_mov_b32 v{vT}, 1')
    k(f'buffer_atomic_add v{vT}, off, {DBG}, {off[0]} offset:{off[1]} sc0')
    k('s_waitcnt vmcnt(0)')

def tstamp(k, sOff, off, vT=3):
    k('s_memrealtime s[30:31]')
    k('s_waitcnt lgkmcnt(0)')
    k(f'v_mov_b32 v{vT}, s30')
    k(f'buffer_store_dword v{vT}, off, {WS}, s{sOff} offset:{off}')

def worker(k, mode_wait=20000, tl=False):
    TL[0] = tl
    k.label('L_worker')
    k(f'v_and_b32 v{vLn}, 63, v0')
    k(f'v_lshlrev_b32 v{vL16}, 4, v{vLn}')
    k(f's_mov_b32 s{sT2}, {POLL_LIMIT}')
    k(f's_mov_b32 s{sSTEP}, 255')
    k(f's_mov_b32 s{sOK}, 0')
    k(f's_add_u32 s{sXR}, s{sXR}, 7')
    k(f's_and_b32 s{sXR}, s{sXR}, 7')
    k(f's_add_u32 s{sSW}, s{sXR}, 1')
    k(f's_and_b32 s{sSW}, s{sSW}, 7')
    k(f's_mov_b32 s56, 1')
    k(f's_mov_b32 s57, {STAMP + 0xF0000}')
    k.label('W_next')
    if tl: tstamp(k, 57, 4)
    k(f's_cmp_lg_u32 s{sWAVE}, 0')
    k('s_cbranch_scc1 W_bc')
    k('s_mov_b64 exec, 1')
    k.label('W_again')
    k(f's_cmp_eq_u32 s{sSW}, 0')
    k('s_cbranch_scc1 W_nosw')
    k(f's_lshl_b32 s40, s{sSW}, 2')
    atomic_ret(k, 3, ('s40', 28))
    k('v_readfirstlane_b32 s41, v3')
    k(f's_sub_u32 s42, s{sSW}, 1')
    k('s_lshl_b32 s42, s42, 5')
    k('s_cmp_eq_u32 s56, 1')
    k(f's_cselect_b32 s{sSW}, 0, s{sSW}')
    k('s_mov_b32 s56, 0')
    k('s_add_u32 s42, s42, s41')
    k('s_or_b32 s42, s42, 0x10000')
    k('s_cmp_lt_u32 s41, 32')
    k('s_cbranch_scc1 W_wr')
    k(f's_mov_b32 s{sSW}, 0')
    k.label('W_nosw')
    k('s_mov_b32 s56, 0')
    k(f's_cmp_eq_u32 s{sOK}, 1')
    k('s_cbranch_scc1 W_tk')
    k(f's_mov_b32 s{sCNT}, 0')
    k.label('W_md')
    k(f'buffer_load_dword v3, off, {DBG}, 0 offset:128 sc1')
    k(f's_add_u32 s{sCNT}, s{sCNT}, 1')
    k('s_waitcnt vmcnt(0)')
    k('v_readfirstlane_b32 s41, v3')
    k('s_nop 3')
    k('s_cmp_lg_u32 s41, 0')
    k('s_cbranch_scc1 W_md1')
    k(f's_cmp_lt_u32 s{sCNT}, {mode_wait}')
    k('s_cbranch_scc1 W_md')
    k('v_mov_b32 v4, 2')
    k('v_mov_b32 v5, 0')
    k(f'buffer_atomic_cmpswap v[4:5], off, {DBG}, 0 offset:128')
    k('s_waitcnt vmcnt(0)')
    k(f's_mov_b32 s{sCNT}, 0')
    k('s_branch W_md')
    k.label('W_md1')
    k(f's_mov_b32 s{sOK}, 1')
    k('s_cmp_eq_u32 s41, 1')
    k('s_cbranch_scc1 W_tk')
    atomic_ret(k, 3, ('0', 0))
    k('v_readfirstlane_b32 s41, v3')
    k('s_nop 3')
    k('s_or_b32 s42, s41, 0x20000')
    k('s_cmp_lt_u32 s41, 32')
    k('s_cbranch_scc1 W_wr')
    k.label('W_tk')
    atomic_ret(k, 3, ('0', 192))
    k('v_readfirstlane_b32 s42, v3')
    k('s_nop 3')
    k(f's_cmp_lt_u32 s42, {Q_U2}')
    k('s_cbranch_scc0 W_wr')
    k(f's_add_u32 s{sSW}, s42, 1')
    k('s_branch W_again')
    k.label('W_wr')
    k('v_mov_b32 v3, s42')
    k(f'v_mov_b32 v4, {LTK}')
    k('ds_write_b32 v4, v3')
    k('s_waitcnt lgkmcnt(0)')
    k('s_mov_b64 exec, -1')
    k.label('W_bc')
    k('s_barrier')
    k(f'v_mov_b32 v4, {LTK}')
    k('ds_read_b32 v3, v4')
    k('s_waitcnt lgkmcnt(0)')
    k('v_readfirstlane_b32 s42, v3')
    k('s_nop 3')
    if tl:
        k('s_lshr_b32 s57, s42, 16')
        k('s_mul_i32 s57, s57, 1536')
        k('s_and_b32 s58, s42, 0xffff')
        k('s_add_u32 s57, s57, s58')
        k('s_lshl_b32 s57, s57, 4')
        k(f's_add_u32 s57, s57, {STAMP + 0x40000}')
        tstamp(k, 57, 0)
    k('s_cmp_lt_u32 s42, 0x10000')
    k('s_cbranch_scc1 W_q')
    k('s_cmp_lt_u32 s42, 0x20000')
    k('s_cbranch_scc0 W_role')
    k('s_and_b32 s42, s42, 0xffff')
    k(f's_mul_hi_u32 s{sH}, s42, {(1<<32)//14 + 1}')
    k(f's_mul_i32 s41, s{sH}, 14')
    k(f's_sub_u32 s{sBLK}, s42, s41')
    k('s_branch T_U')
    k.label('W_role')
    k(f's_and_b32 s{sROLE}, s42, 0xffff')
    k('s_barrier')
    k('s_branch L_dispatch')
    k.label('W_q')
    k(f's_cmp_ge_u32 s42, {Q_END}')
    k('s_cbranch_scc1 L_exit')
    k(f's_cmp_lt_u32 s42, {Q_M1}')
    k('s_cbranch_scc0 W_q1')
    k(f's_sub_u32 s42, s42, {Q_U2}')
    k(f's_and_b32 s{sH}, s42, 15')
    k(f's_lshr_b32 s{sBLK}, s42, 4')
    k(f's_add_u32 s{sBLK}, s{sBLK}, 14')
    k('s_branch T_U')
    k.label('W_q1')
    k(f's_sub_u32 s{sJ}, s42, {Q_M1}')
    k(f's_cmp_lt_u32 s42, {Q_M2}')
    k('s_cbranch_scc1 T_M1')
    k(f's_sub_u32 s{sJ}, s42, {Q_M2}')
    k(f's_cmp_lt_u32 s42, {Q_P0}')
    k('s_cbranch_scc1 T_M2')
    k(f's_cmp_lt_u32 s42, {Q_G}')
    k('s_cbranch_scc0 W_q2')
    k(f's_sub_u32 s42, s42, {Q_P0}')
    k(f's_and_b32 s{sH}, s42, 15')
    k(f's_lshr_b32 s{sBLK}, s42, 4')
    k('s_branch T_P')
    k.label('W_q2')
    k(f's_cmp_lt_u32 s42, {Q_T}')
    k('s_cbranch_scc0 W_q3')
    k(f's_sub_u32 s42, s42, {Q_G}')
    k(f's_mul_hi_u32 s41, s42, {(1<<32)//72 + 1}')
    k('s_mul_i32 s43, s41, 72')
    k('s_sub_u32 s42, s42, s43')
    k(f's_mov_b32 s{sH}, s42')
    k(f's_add_u32 s{sBLK}, s41, 3')
    k('s_cmp_lt_u32 s42, 16')
    k('s_cbranch_scc1 T_P')
    k('s_sub_u32 s42, s42, 16')
    k('s_mul_i32 s41, s41, 56')
    k('s_add_u32 s42, s42, s41')
    k('s_branch W_v')
    k.label('W_q3')
    k(f's_sub_u32 s42, s42, {Q_T - 13*56}')
    k.label('W_v')
    k(f's_mul_hi_u32 s{sSEG}, s42, {(1<<32)//14 + 1}')
    k(f's_mul_i32 s41, s{sSEG}, 14')
    k('s_sub_u32 s42, s42, s41')
    k('s_cmp_ge_u32 s42, 7')
    k(f's_cselect_b32 s{sQT}, 1, 0')
    k(f's_mul_i32 s41, s{sQT}, 7')
    k(f's_sub_u32 s{sCG}, s42, s41')
    k('s_branch T_V')
    task_U(k); task_P(k); task_V(k); task_M1(k); task_M2(k)
```

```python
import sys
from main_k import *
from prep import *
import worker, chain, align
def emit(parts, launches):
    out = ''.join(f'; @launch kernel={n} grid=({g},1,1) block=({b},1,1) lds={l}\n' for n, g, b, l in launches)
    out += '.amdgcn_target "amdgcn-amd-amdhsa--gfx950"\n.text\n'
    for name, k, vg, acc in parts:
        if chain.OPT['align']:
            k.lines, nf = align.align(k.lines, chain.OPT['align'])
        for e in check(k.lines, name): print('HAZARD', e)
        out += khead(name) + k.text() + kd(name, vg, acc)
    return out
if __name__ == '__main__':
    if sys.argv[1] == 'prep':
        open(sys.argv[2], 'w').write(emit([('prep_kernel', gen_prep(), 192, 192)], [('prep_kernel', PREP_GRID, PREP_BLOCK, PREP_LDS)]))
    if sys.argv[1] == 'full':
        stamps = False; pref = 0; mw = 20000
        for a in sys.argv[3:]:
            kk, vv = a.split('=')
            if kk == 'stamps': stamps = int(vv)
            elif kk == 'pref': pref = int(vv)
            elif kk == 'mw': mw = int(vv)
            else: chain.OPT[kk] = int(vv) if vv.isdigit() else vv.replace('+', ' ')
        k = K()
        main_prologue(k, pref_xcd=pref, stamps=stamps, force_slow=(mw == 1))
        worker.worker(k, pref, stamps)
        role_A(k, stamps); role_B(k, stamps, worker.wait_flag); role_P(k)
        fail_exit(k)
        hdr = open('parallel_sum__memory_aug_recurrent_mem_tr__moe_arch_mod__prompt.s.ref').read().split('; Override launch')[0]
        open(sys.argv[2], 'w').write(hdr + emit([('prep_kernel', gen_prep(stamps), 192, 192), ('main_kernel', k, 512, 256)],
             [('prep_kernel', PREP_GRID, PREP_BLOCK, PREP_LDS), ('main_kernel', 256, 256, 163840)]))
```

```python
from asmlib import *
from layout import *

class K(Asm):
    def __init__(self):
        super().__init__()
        self.dsq = []; self.cold = []; self.vmq = []
    def ds(self, text, tag=None):
        self(text); self.dsq.append(tag)
    def wds(self, tag):
        if tag not in self.dsq: return
        idx = max(i for i, t in enumerate(self.dsq) if t == tag)
        n = len(self.dsq) - 1 - idx
        assert n <= 15
        self(f's_waitcnt lgkmcnt({n})')
        self.dsq = self.dsq[idx+1:]
    def wds0(self):
        self('s_waitcnt lgkmcnt(0)'); self.dsq = []
    def vm(self, text, tag=None):
        self(text); self.vmq.append(tag)
    def wvm(self, *tags, extra=''):
        idx = max([i for i, t in enumerate(self.vmq) if t in tags], default=-1)
        if idx < 0:
            if extra: self('s_waitcnt ' + extra)
            return
        n = len(self.vmq) - 1 - idx
        assert n <= 63
        self(f's_waitcnt vmcnt({n}) {extra}')
        self.vmq = self.vmq[idx+1:]
    def flush_cold(self):
        for l in self.cold: self(l)
        self.cold = []

SWS, SDBG = 4, 8
sROLE, sWAVE, sSTEP, sMODE, sM, sP, sX, sUM, sCNT = 12, 13, 14, 15, 16, 17, 18, 19, 20
sT0, sT1, sT2 = 21, 22, 23
sMASK8 = 24
sID = 26
sST = 28
sTM = 30
POLL_LIMIT = 400000
NSTEP = 63
OPT = dict(sa='late', sb='early', um='sc1', uf='sc1', sleepA=0, sleepB=0, stampmask=15, rt=0, barA=1, barB=1, prefP=0, pfd=2, pfs=128, upos='early', ud=2, apf=1, nb=7, stag=2, wpos=1, rsp=1, s1pos=0, upre=8, uneed=32, ust='sc1', rot=1, k1st='sc1', uwin=2, k1d=3, ap2=0, stagA=2, gv=0)

def stamp(k, idx, on):
    if not on or not (OPT['stampmask'] >> idx) & 1: return
    k(('s_memrealtime' if OPT['rt'] else 's_memtime') + f' s[{sTM}:{sTM+1}]')
    k.wds0()
    k(f'v_mov_b32 v0, s{sTM}')
    k(f'buffer_store_dword v0, off, s[{SWS}:{SWS+3}], s{sST} offset:{idx*4}')

def edge(k, on, off):
    if not on or OPT['rt']: return
    lp = k.newlabel('Led')
    k('s_memrealtime s[70:71]')
    k('s_waitcnt lgkmcnt(0)')
    k.label(lp)
    k('s_memrealtime s[72:73]')
    k('s_memtime s[74:75]')
    k('s_waitcnt lgkmcnt(0)')
    k('s_cmp_eq_u32 s72, s70')
    k(f's_cbranch_scc1 {lp}')
    k('v_mov_b32 v0, s72')
    k(f'buffer_store_dword v0, off, s[{SWS}:{SWS+3}], s76 offset:{off}')
    k('v_mov_b32 v0, s74')
    k(f'buffer_store_dword v0, off, s[{SWS}:{SWS+3}], s76 offset:{off+4}')

def publish(k, text):
    ls, ld = k.newlabel('Lslow'), k.newlabel('Lpub')
    k(f's_cbranch_scc0 {ls}')
    k(text)
    k.label(ld)
    k.cold += [ls + ':', text + ' sc1', f's_branch {ld}']

def gather_mem(k, vG, vOff0, vOff1, vL0, vL1, vT):
    lp, dn = k.newlabel('Lgm'), k.newlabel('Lgd')
    k(f's_mov_b32 s{sCNT}, 0')
    k.label(lp)
    k(f'buffer_load_dwordx4 {vr(vG,4)}, v{vOff0}, s[{SWS}:{SWS+3}], s{sM} offen sc1')
    k(f'buffer_load_dwordx4 {vr(vG+4,4)}, v{vOff1}, s[{SWS}:{SWS+3}], s{sM} offen sc1')
    k(f's_add_u32 s{sCNT}, s{sCNT}, 1')
    k(f's_cmp_gt_u32 s{sCNT}, s{sT2}')
    k('s_cbranch_scc1 L_fail')
    k('s_waitcnt vmcnt(1)')
    k(f'v_max3_u32 v{vT}, v{vG}, v{vG+1}, v{vG+2}')
    k('s_waitcnt vmcnt(0)')
    k(f'v_max3_u32 v{vT+1}, v{vG+4}, v{vG+5}, v{vG+6}')
    k(f'v_max3_u32 v{vT}, v{vT}, v{vG+3}, v{vG+7}')
    k(f'v_max_u32 v{vT}, v{vT}, v{vT+1}')
    k(f'v_cmp_eq_u32 vcc, -1, v{vT}')
    k(f's_cbranch_vccnz {lp}')
    if vL0 is None: return
    k.ds(f'ds_write_b128 v{vL0}, {vr(vG,4)}')
    k.ds(f'ds_write_b128 v{vL1}, {vr(vG+4,4)}')
    k.wds0()
    k('s_barrier')

def wait_mode(k, vT):
    lp = k.newlabel('Lwm')
    k(f's_mov_b32 s{sCNT}, 0')
    k(f'v_and_b32 v{vT+1}, 15, v0')
    k(f'v_lshlrev_b32 v{vT+1}, 2, v{vT+1}')
    k.label(lp)
    k(f'buffer_load_dword v{vT}, v{vT+1}, s[{SDBG}:{SDBG+3}], 0 offen offset:32 sc1')
    k(f's_add_u32 s{sCNT}, s{sCNT}, 1')
    k(f's_cmp_gt_u32 s{sCNT}, s{sT2}')
    k('s_cbranch_scc1 L_fail')
    k('s_waitcnt vmcnt(0)')
    k(f'v_cmp_eq_u32 vcc, 32, v{vT}')
    for rot in (8, 4, 2, 1):
        k.nop(2)
        k(f'v_add_u32_dpp v{vT}, v{vT}, v{vT} row_ror:{rot} row_mask:0xf bank_mask:0xf')
    k.nop(1)
    k(f'v_readfirstlane_b32 s{sMODE}, v{vT}')
    k('s_nop 3')
    k(f's_cmp_lt_u32 s{sMODE}, 32')
    k(f's_cbranch_scc1 {lp}')
    k('s_cmp_lg_u64 vcc, 0')
    k(f's_cselect_b32 s{sMODE}, 1, 2')

def common_lane_setup(k, vLane, vL16, vG0, vG1, vIdx, vT):
    k(f'v_and_b32 v{vLane}, 63, v0')
    k(f'v_lshlrev_b32 v{vL16}, 4, v{vLane}')
    if vG0 is not None:
        k(f's_lshl_b32 s{sT0}, s{sWAVE}, 10')
        k(f'v_add_u32 v{vG0}, s{sT0}, v{vL16}')
        k(f's_add_u32 s{sT0}, s{sWAVE}, 4')
        k(f's_min_u32 s{sT0}, s{sT0}, 6')
        k(f's_lshl_b32 s{sT0}, s{sT0}, 10')
        k(f'v_add_u32 v{vG1}, s{sT0}, v{vL16}')
    k(f'v_and_b32 v{vT}, 8, v{vLane}')
    k(f'v_mov_b32 v{vIdx}, 0x4444')
    k(f'v_mov_b32 v{vT+1}, 0xeeee')
    k(f'v_cmp_ne_u32 vcc, 0, v{vT}')
    k('s_nop 1')
    k(f'v_cndmask_b32 v{vIdx}, v{vIdx}, v{vT+1}, vcc')
    k(f's_mov_b32 s{sT2}, {POLL_LIMIT}')

def poll2(k, issue, checks, body, name, stag):
    nl = len(issue(0))
    l0, d0, d1, dn = [k.newlabel(name + x) for x in ('lp', 'd0', 'd1', 'dn')]
    k(f's_mov_b32 s{sCNT}, 0')
    for x in issue(0): k(x)
    k(f"s_sleep {stag}")
    k.label(l0)
    for st, dl in ((0, d0), (1, d1)):
        for x in issue(1 - st): k(x)
        if st == 0:
            k(f's_add_u32 s{sCNT}, s{sCNT}, 1')
            k(f's_cmp_gt_u32 s{sCNT}, s{sT2}')
            k('s_cbranch_scc1 L_fail')
        for rel, ins in checks(st):
            k(f's_waitcnt vmcnt({nl + rel})')
            for x in ins: k(x)
        if st == 0: k(f's_cbranch_vccz {d0}')
        else:       k(f's_cbranch_vccnz {l0}x')
    saved = list(k.dsq)
    body(1)
    k(f's_branch {dn}')
    k.label(l0 + 'x')
    k(f's_branch {l0}')
    k.label(d0)
    end = list(k.dsq); k.dsq = saved
    body(0)
    assert k.dsq == end
    k.label(dn)

def role_A(k, stamps=False):
    vLane, vL16, vIdx = 1, 2, 3
    vKey, vKeyS, vMK, vMKS, vQW, vQR, vSW, vSR, vPO, vVal = 4, 5, 6, 7, 8, 9, 10, 11, 12, 13
    vT = 14
    vM = 16
    vQ = 44
    vKT = 72
    vKM = 100
    vX = 114
    vG0, vG1 = 118, 119
    def W(lt, kb):
        i = lt*7 + kb
        return (256 + 8*i) if i < 32 else (120 + 8*(i-32))
    LM, LSP, LQS = 0, 7168, 20480
    k.label('L_roleA')
    k(f's_mov_b32 s{sID}, s{sROLE}')
    common_lane_setup(k, vLane, vL16, vG0, vG1, vIdx, vX)
    k(f's_lshr_b32 s{sT0}, s{sWAVE}, 1')
    k(f's_mul_i32 s{sT0}, s{sT0}, 14')
    k(f's_and_b32 s{sT1}, s{sWAVE}, 1')
    k(f's_add_u32 s33, s{sT0}, 6')
    k(f's_add_u32 s33, s33, s{sT1}')
    k(f's_lshl_b32 s34, s{sT1}, 3')
    k(f's_add_u32 s32, s{sT0}, s34')
    k(f's_mul_i32 s35, s{sID}, {28*14*1024}')
    k(f's_add_u32 s35, s35, {WTA}')
    k(f's_mul_i32 s36, s32, {14*1024}')
    k(f's_add_u32 s36, s36, s35')
    k(f's_mul_i32 s37, s33, {14*1024}')
    k(f's_add_u32 s37, s37, s35')
    for j in range(7):
        k(f's_add_u32 s{50+j}, s{sWAVE}, {(4*j) % 7}')
        k(f's_sub_u32 s40, s{50+j}, 7')
        k(f's_cmp_ge_u32 s{50+j}, 7')
        k(f's_cselect_b32 s{50+j}, s40, s{50+j}')
        k(f's_lshl_b32 s{50+j}, s{50+j}, 10')
    n = 0
    for lt in range(7):
        sb = 36 if lt < 6 else 37
        for j in range(7):
            k(f's_lshl_b32 s40, s{50+j}, 1')
            k(f's_add_u32 s40, s40, s{sb}')
            for f in range(2):
                k(f'buffer_load_dwordx4 {xr(W(lt, j) + 4*f,4)}, v{vL16}, s[{SWS}:{SWS+3}], s40 offen offset:{f*1024}')
                n += 1
                if n % 16 == 0: k('s_waitcnt vmcnt(40)')
        k(f's_add_u32 s{sb}, s{sb}, 14336')
    k(f'v_add_u32 v{vG1}, s51, v{vL16}')
    t = vX
    g, i = vQ, vQ+1
    k(f'v_lshrrev_b32 v{g}, 4, v{vLane}')
    k(f'v_and_b32 v{i}, 15, v{vLane}')
    k(f's_lshr_b32 s38, s32, 1')
    k(f's_lshr_b32 s39, s33, 1')
    k(f's_lshl_b32 s40, s38, 10')
    k(f'v_add_u32 v{vKey}, s40, v{vL16}')
    k(f's_lshl_b32 s40, s39, 10')
    k(f's_add_u32 s40, s40, s34')
    k(f'v_add_u32 v{vKeyS}, s40, v{vL16}')
    k(f'v_lshrrev_b32 v{t}, 1, v{g}')
    k(f'v_lshlrev_b32 v{t}, 8, v{t}')
    k(f'v_and_b32 v{t+1}, 7, v{i}')
    k(f'v_lshlrev_b32 v{t+1}, 4, v{t+1}')
    k(f'v_add_u32 v{t}, v{t}, v{t+1}')
    k(f'v_and_b32 v{t+1}, 1, v{g}')
    k(f'v_lshlrev_b32 v{t+1}, 7, v{t+1}')
    k(f'v_add_u32 v{t}, v{t}, v{t+1}')
    k(f's_lshl_b32 s40, s38, 9')
    k(f'v_add_u32 v{vMK}, s40, v{t}')
    k(f's_lshl_b32 s40, s39, 9')
    k(f's_add_u32 s40, s40, s34')
    k(f'v_add_u32 v{vMKS}, s40, v{t}')
    k(f's_lshl_b32 s40, s{sWAVE}, 10')
    k(f's_add_u32 s40, s40, {LQS}')
    k(f'v_lshrrev_b32 v{t}, 2, v{i}')
    k(f'v_add_u32 v{t}, v{t}, v{g}')
    k(f'v_and_b32 v{t}, 3, v{t}')
    k(f'v_lshlrev_b32 v{t}, 3, v{t}')
    k(f'v_lshlrev_b32 v{t+1}, 5, v{i}')
    k(f'v_add3_u32 v{vQW}, v{t}, v{t+1}, s40')
    k(f'v_lshrrev_b32 v{t}, 2, v{vLane}')
    k(f'v_lshlrev_b32 v{t}, 5, v{t}')
    k(f'v_add_u32 v{t+1}, v{vLane}, v{g}')
    k(f'v_and_b32 v{t+1}, 3, v{t+1}')
    k(f'v_lshlrev_b32 v{t+1}, 3, v{t+1}')
    k(f'v_add3_u32 v{vQR}, v{t}, v{t+1}, s40')
    k(f's_mul_i32 s40, s{sWAVE}, 3264')
    k(f's_add_u32 s40, s40, {LSP}')
    k(f'v_lshlrev_b32 v{t}, 4, v{i}')
    k(f'v_mul_u32_u24 v{t+1}, 272, v{g}')
    k(f'v_add3_u32 v{vSW}, v{t}, v{t+1}, s40')
    k(f'v_subrev_u32 v{t}, 12, v{i}')
    k(f'v_cmp_le_u32 vcc, 12, v{i}')
    k('s_nop 1')
    k(f'v_cndmask_b32 v{t}, v{i}, v{t}, vcc')
    k(f'v_lshrrev_b32 v{t+1}, 5, v{vLane}')
    k(f's_lshl_b32 s40, s{sWAVE}, 1')
    k(f'v_add_u32 v{t+1}, s40, v{t+1}')
    k(f'v_and_b32 v{t+2}, 1, v{g}')
    k(f'v_lshl_add_u32 v{t+3}, v{t+2}, 3, v{t+1}')
    k(f'v_lshlrev_b32 v{t+3}, 4, v{t+3}')
    k(f'v_mul_u32_u24 v{vSR}, 272, v{t}')
    k(f'v_add_u32 v{vSR}, v{vSR}, v{t+3}')
    if LSP: k(f'v_add_u32 v{vSR}, {LSP}, v{vSR}')
    k(f'v_and_b32 v{vPO}, 1, v{i}')
    k(f'v_lshlrev_b32 v{vPO}, 3, v{vPO}')
    k(f'v_lshl_add_u32 v{vPO}, v{t+1}, 4, v{vPO}')
    k(f'v_lshl_add_u32 v{vPO}, v{t+2}, 2, v{vPO}')
    k(f'v_bfe_u32 v{t}, v{i}, 1, 1')
    k(f'v_lshl_add_u32 v{vPO}, v{t}, 8, v{vPO}')
    k(f's_lshl_b32 s40, s{sID}, 7')
    k(f's_add_u32 s40, s40, 8192')
    k(f's_lshr_b32 s41, s{sID}, 1')
    k(f's_lshl_b32 s41, s41, 10')
    k(f's_and_b32 s42, s{sID}, 1')
    k(f's_lshl_b32 s42, s42, 7')
    k(f's_add_u32 s41, s41, s42')
    k(f'v_mov_b32 v{t}, s40')
    k(f'v_mov_b32 v{t+1}, s41')
    k(f'v_add_u32 v{t+2}, 0x200, v{t+1}')
    k(f'v_mov_b32 v{t+3}, 0x40000000')
    k(f'v_mov_b32 v{vVal}, 1.0')
    for lim, src in ((2, t+3), (4, t+1), (8, t+2), (12, t+3)):
        k(f'v_cmp_le_u32 vcc, {lim}, v{i}')
        k('s_nop 1')
        k(f'v_cndmask_b32 v{t}, v{t}, v{src}, vcc')
    k(f'v_add_u32 v{vPO}, v{vPO}, v{t}')
    k(f'v_cmp_le_u32 vcc, v{t+3}, v{vPO}')
    k('s_nop 1')
    k(f'v_cndmask_b32 v{vVal}, v{vVal}, 0, vcc')
    k(f's_mov_b32 s{sSTEP}, 0')
    k(f's_mov_b32 s{sM}, {MEM}')
    k(f's_mov_b32 s{sP}, {PB}')
    k(f's_mov_b32 s{sX}, {XNS}')
    k(f's_lshl_b32 s40, s{sID}, 2')
    k(f's_add_u32 s40, s40, s{sWAVE}')
    k(f's_mul_i32 s40, s40, 7168')
    k(f'v_min_u32 v{vX}, 55, v{vLane}')
    k(f'v_lshlrev_b32 v{vX}, 7, v{vX}')
    k(f'v_add_u32 v{vX}, s40, v{vX}')
    k(f"s_mov_b32 s{sUM}, {UF + OPT['ud']*UF_SEG}")
    WS = f's[{SWS}:{SWS+3}]'
    def load_keys():
        k(f's_add_u32 s{sT0}, s{sX}, 14336')
        for p in range(3):
            k(f'buffer_load_dwordx4 {vr(vKT+8*p,4)}, v{vKey}, {WS}, s{sX} offen offset:{p*1024}')
            k(f'buffer_load_dwordx4 {vr(vKT+8*p+4,4)}, v{vKey}, {WS}, s{sT0} offen offset:{p*1024}')
        k(f'buffer_load_dwordx2 {vr(vKT+24,2)}, v{vKeyS}, {WS}, s{sX} offen')
        k(f'buffer_load_dwordx2 {vr(vKT+26,2)}, v{vKeyS}, {WS}, s{sT0} offen')
        k(f's_add_u32 s{sX}, s{sX}, 28672')
        k(f's_add_u32 s{sT0}, s{sSTEP}, {1 + OPT["ud"]}')
        k(f's_lshr_b32 s{sT0}, s{sT0}, 2')
        k(f's_lshl_b32 s{sT0}, s{sT0}, 7')
        k(f's_add_u32 s{sT0}, s{sT0}, {flag(F_U)}')
        k(f'buffer_load_dword v{vX+2}, off, {WS}, s{sT0} sc1')
    k(f's_mov_b32 s{sSTEP}, -1')
    load_keys()
    k(f's_mov_b32 s{sSTEP}, 0')
    wait_mode(k, vT)
    k(f'v_mov_b32 v{vX+3}, 0x40000000')
    if stamps: k(f's_add_u32 s76, s{sST}, 0x20000')
    edge(k, stamps, 0)
    k.label('L_A_loop')
    for r in range(0, 28, 2): k(f'v_mov_b64 {vr(vQ+r,2)}, 0')
    vAd = vKM + 6
    for j in range(2, 7): k(f'v_add_u32 v{vAd+j}, s{50+j}, v{vL16}')
    def Mx(lt, kb, src):
        return f'v_smfmac_f32_16x16x64_bf16 {vr(vQ+4*lt,4)}, {vr(src,4)}, {xr(W(lt,kb),8)}, v{vIdx}'
    def M(lt, kb): return Mx(lt, kb, vM+4*kb)
    mk = [f'ds_read_b128 {vr(vKM+4*p,4)}, v{vMK} offset:{LM+p*512}' for p in range(3)]
    mk.append(f'ds_read_b64 {vr(vKM+12,2)}, v{vMKS} offset:{LM}')
    sets = [vM, vKM]
    def issue(st):
        return [f'buffer_load_dwordx4 {vr(sets[st],4)}, v{vG0}, {WS}, s{sM} offen sc1',
                f'buffer_load_dwordx4 {vr(sets[st]+4,4)}, v{vG1}, {WS}, s{sM} offen sc1']
    def checks(st):
        G = sets[st]
        return [(1, [f'v_max3_u32 v{vT}, v{G}, v{G+1}, v{G+2}']),
                (0, [f'v_max3_u32 v{vT+1}, v{G+4}, v{G+5}, v{G+6}', f'v_max3_u32 v{vT}, v{vT}, v{G+3}, v{G+7}',
                     f'v_max_u32 v{vT}, v{vT}, v{vT+1}', f'v_cmp_eq_u32 vcc, -1, v{vT}'])]
    NB = OPT['nb']
    def body(st):
        G = sets[st]
        stamp(k, 0, stamps)
        wrs = [f'ds_write_b128 v{vG0}, {vr(G,4)} offset:{LM}', f'ds_write_b128 v{vG1}, {vr(G+4,4)} offset:{LM}']
        seq = [(lt, j) for j in range(2) for lt in range(7)]
        for n, (lt, j) in enumerate(seq):
            k(Mx(lt, j, G + 4*j))
            if n < 2: k.ds(wrs[n])
            if n == 3: k(f'v_cmp_le_u32 vcc, {OPT["uneed"]}, v{vX+2}')
            if n == 5: k(f'v_cndmask_b32 v{vX+1}, v{vX+3}, v{vX}, vcc')
            if n == NB - 1:
                k.wds0(); k('s_barrier')
            if NB - 1 <= n < NB + 4:
                jj = n - (NB - 1) + 2
                k.ds(f'ds_read_b128 {vr(vM+4*jj,4)}, v{vAd+jj} offset:{LM}', f'm{jj}')
            if n == NB + 5: k(f'buffer_load_dword v0, v{vX+1}, {WS}, s{sUM} offen sc1')
    if OPT['ap2']:
        poll2(k, issue, checks, body, 'Lga', OPT['stagA'])
    else:
        gather_mem(k, vM, vG0, vG1, None, None, vT)
        body(0)
    def cvt(lt, h):
        k(f'v_cvt_pk_bf16_f32 v{vQ+4*lt+h}, v{vQ+4*lt+2*h}, v{vQ+4*lt+2*h+1}')
    def wr(lt):
        k.ds(f'ds_write_b64 v{vQW}, {vr(vQ+4*lt,2)} offset:{512*(lt&1)}')
    def tr(p, h):
        k.ds(f'ds_read_b64_tr_b16 {vr(vQ+8*p+2*h,2)}, v{vQR} offset:{512*h}', f'q{p}')
    vSt = [vM, vM+4, vQ+4]
    def S(p, t):
        q = vQ + 8*p
        c = '0' if p == 0 else vr(vSt[t],4)
        if p < 3:
            a = vKM+4*p if t == 0 else vKT+8*p+4*(t-1)
            k(f'v_mfma_f32_16x16x32_bf16 {vr(vSt[t],4)}, {vr(a,4)}, {vr(q,4)}, {c}')
        else:
            a = vKM+12 if t == 0 else vKT+24+2*(t-1)
            k(f'v_mfma_f32_16x16x16_bf16 {vr(vSt[t],4)}, {vr(a,2)}, {vr(q,2)}, {c}')
    for lt in range(7):
        for j in range(2, 7):
            if lt == 0: k.wds(f'm{j}')
            k(M(lt, j))
            if lt == 0 and j == 6:
                k('s_waitcnt vmcnt(1)')
                for x in mk: k.ds(x, 'mk')
            if lt >= 1:
                if j == 4: cvt(lt-1, 0)
                if j == 5: cvt(lt-1, 1)
                if j == 6:
                    wr(lt-1)
                    if (lt-1) & 1: tr((lt-1)//2, 0); tr((lt-1)//2, 1)
        if lt == (4 if OPT['s1pos'] == 0 else 3):
            k.wds('q0')
            for t in range(3): S(0, t)
        if lt == 5 and OPT['s1pos'] == 1:
            k.wds('q1')
            for t in range(3): S(1, t)
    if OPT['s1pos'] == 0:
        k.wds('q1')
        for t in range(3): S(1, t)
        cvt(6, 0); cvt(6, 1); wr(6); tr(3, 0)
        k.wds('q2')
        for t in range(3): S(2, t)
    else:
        k.nop(8)
        cvt(6, 0); cvt(6, 1); wr(6); tr(3, 0)
        k.wds('q2')
        for t in range(3): S(2, t)
    k.wds('q3')
    for t in range(3): S(3, t)
    k.nop(2)
    k.ds(f'ds_write_b128 v{vSW}, {vr(vSt[0],4)}')
    k.nop(2)
    k.ds(f'ds_write_b128 v{vSW}, {vr(vSt[1],4)} offset:1088')
    k.nop(2)
    k.ds(f'ds_write_b128 v{vSW}, {vr(vSt[2],4)} offset:2176')
    k.wds0()
    k('s_barrier')
    stamp(k, 1, stamps)
    R = vQ+8
    for w in range(4): k.ds(f'ds_read_b128 {vr(R+4*w,4)}, v{vSR} offset:{w*3264}', f'r{w}')
    k(f's_cmp_eq_u32 s{sMODE}, 1')
    k.wds('r1')
    k(f'v_pk_add_f32 {vr(R,2)}, {vr(R,2)}, {vr(R+4,2)}')
    k(f'v_pk_add_f32 {vr(R+2,2)}, {vr(R+2,2)}, {vr(R+6,2)}')
    k.wds('r2')
    k(f'v_pk_add_f32 {vr(R,2)}, {vr(R,2)}, {vr(R+8,2)}')
    k(f'v_pk_add_f32 {vr(R+2,2)}, {vr(R+2,2)}, {vr(R+10,2)}')
    k.wds('r3')
    k(f'v_pk_add_f32 {vr(R,2)}, {vr(R,2)}, {vr(R+12,2)}')
    k(f'v_pk_add_f32 {vr(R+2,2)}, {vr(R+2,2)}, {vr(R+14,2)}')
    k.nop(2)
    k(f'v_permlane16_swap_b32 v{R}, v{R+2}')
    k(f'v_permlane16_swap_b32 v{R+1}, v{R+3}')
    X = R+4; m = R+6; t = R+8
    k(f'v_pk_add_f32 {vr(X,2)}, {vr(R,2)}, {vr(R+2,2)}')
    def allred(op, m):
        for rot in (8, 4, 2, 1):
            k.nop(2)
            k(f'{op}_dpp v{m}, v{m}, v{m} row_ror:{rot} row_mask:0xf bank_mask:0xf')
        k(f'v_mov_b32 v{t}, v{m}')
        k.nop(2)
        k(f'v_permlane16_swap_b32 v{m}, v{t}')
        k(f'{op} v{m}, v{m}, v{t}')
    k(f'v_max_f32 v{m}, v{X}, v{X+1}')
    allred('v_max_f32', m)
    k(f'v_pk_add_f32 {vr(X,2)}, {vr(X,2)}, {vr(m,2)} op_sel_hi:[1,0] neg_lo:[0,1] neg_hi:[0,1]')
    k(f'v_exp_f32 v{X}, v{X}')
    k(f'v_exp_f32 v{X+1}, v{X+1}')
    k.nop(1)
    k(f'v_add_f32 v{m}, v{X}, v{X+1}')
    k(f'v_mul_f32 v{m}, v{m}, v{vVal}')
    allred('v_add_f32', m)
    k(f'v_rcp_f32 v{m}, v{m}')
    k.nop(1)
    k(f'v_pk_mul_f32 {vr(X,2)}, {vr(X,2)}, {vr(m,2)} op_sel_hi:[1,0]')
    k(f'v_cvt_pk_bf16_f32 v{X}, v{X}, v{X+1}')
    k(f'v_min_u32 v{X}, -2, v{X}')
    publish(k, f'buffer_store_dword v{X}, v{vPO}, {WS}, s{sP} offen')
    stamp(k, 2, stamps)
    k('s_barrier')
    load_keys()
    if OPT['sleepA']: k(f"s_sleep {OPT['sleepA']}")
    k(f's_add_u32 s{sUM}, s{sUM}, {UF_SEG}')
    k(f's_add_u32 s{sM}, s{sM}, {MEM_S}')
    k(f's_add_u32 s{sP}, s{sP}, {PB_S}')
    if stamps: k(f's_add_u32 s{sST}, s{sST}, 16')
    k(f's_add_u32 s{sSTEP}, s{sSTEP}, 1')
    k(f's_cmp_lt_u32 s{sSTEP}, {NSTEP}')
    k('s_cbranch_scc1 L_A_loop')
    edge(k, stamps, 8)
    k('s_waitcnt vmcnt(0)')
    k('s_endpgm')
    k.flush_cold()

def role_B(k, stamps=False, wait_u=None):
    WS = f's[{SWS}:{SWS+3}]'
    vLane, vL16, vG0, vG1, vIdx = 1, 2, 3, 4, 5
    vWL, vPT, vPM, vRW, vRR, vL4 = 6, 7, 8, 9, 10, 11
    vC = 12
    vM = 16
    vA = 44
    vU = 76
    vTm = 108
    vUi = 140
    vUm = 172
    vRR2 = 188
    vKeep, vFl = 191, 15
    vD = vTm
    vG = vTm + 16
    vP = [vM, vA]
    def W(gi, kb):
        i = gi*5 + kb
        return (256 + 8*i) if i < 32 else (192 + 8*(i-32))
    LM, LRED, LW = 0, 7168, 16384
    k.label('L_roleB')
    k(f's_sub_u32 s{sID}, s{sROLE}, 16')
    common_lane_setup(k, vLane, vL16, vG0, vG1, vIdx, vC)
    k(f's_lshl_b32 s{sT0}, s{sWAVE}, 2')
    k(f's_mul_i32 s{sT0}, s{sT0}, 28')
    k(f's_lshl_b32 s{sT1}, s{sID}, 1')
    k(f's_add_u32 s{sT0}, s{sT0}, s{sT1}')
    k(f's_mul_i32 s35, s{sT0}, 14336')
    k(f's_add_u32 s35, s35, {WTB}')
    k(f's_lshl_b32 s37, s{sWAVE}, 15')
    k(f's_add_u32 s37, s37, {LW}')
    k(f'v_add_u32 v{vWL}, s37, v{vL16}')
    for j in range(7):
        k(f's_add_u32 s{50+j}, s{sWAVE}, {(4*j) % 7}')
        k(f's_sub_u32 s40, s{50+j}, 7')
        k(f's_cmp_ge_u32 s{50+j}, 7')
        k(f's_cselect_b32 s{50+j}, s40, s{50+j}')
        k(f's_lshl_b32 s{50+j}, s{50+j}, 10')
    k(f'v_add_u32 v{vG1}, s51, v{vL16}')
    for gi in range(8):
        k(f's_add_u32 s36, s35, {(gi>>1)*28*14336 + (gi&1)*14336}')
        for j in range(7):
            k(f's_lshl_b32 s40, s{50+j}, 1')
            k(f's_add_u32 s40, s40, s36')
            if j >= 5:
                k(f's_add_u32 s38, s37, {gi*4096 + (j-5)*2048}')
                k(f's_mov_b32 m0, s38')
                k('s_nop 0')
            for f in range(2):
                if j < 5: k(f'buffer_load_dwordx4 {xr(W(gi, j) + 4*f,4)}, v{vL16}, {WS}, s40 offen offset:{f*1024}')
                else:     k(f'buffer_load_dwordx4 v{vL16}, {WS}, s40 offen offset:{f*1024} lds')
        k('s_waitcnt vmcnt(40)')
    g, i = vA, vA+1
    vT = vC
    k(f'v_lshrrev_b32 v{g}, 4, v{vLane}')
    k(f'v_and_b32 v{i}, 15, v{vLane}')
    k(f's_lshl_b32 s40, s{sWAVE}, 11')
    k(f'v_add_u32 v{vPT}, s40, v{vL16}')
    k(f'v_lshrrev_b32 v{vT}, 1, v{g}')
    k(f'v_lshlrev_b32 v{vT}, 8, v{vT}')
    k(f'v_lshl_add_u32 v{vT}, v{i}, 4, v{vT}')
    k(f's_lshl_b32 s40, s{sWAVE}, 9')
    k(f's_add_u32 s40, s40, 8192')
    k(f'v_add_u32 v{vPM}, s40, v{vT}')
    k(f's_lshl_b32 s40, s{sWAVE}, 10')
    k(f's_add_u32 s40, s40, {LRED}')
    k(f'v_add_u32 v{vRW}, s40, v{vL16}')
    k(f'v_and_b32 v{vT}, 3, v{vLane}')
    k(f'v_lshlrev_b32 v{vT}, 6, v{vT}')
    k(f'v_lshrrev_b32 v{vT+1}, 5, v{vLane}')
    k(f'v_lshl_add_u32 v{vT}, v{vT+1}, 5, v{vT}')
    k(f'v_lshrrev_b32 v{vT+1}, 2, v{vLane}')
    k(f'v_and_b32 v{vT+2}, 3, v{vT+1}')
    k(f'v_lshl_add_u32 v{vT}, v{vT+2}, 2, v{vT}')
    k(f'v_bfe_u32 v{vT+2}, v{vLane}, 4, 1')
    k(f'v_lshl_add_u32 v{vT}, v{vT+2}, 8, v{vT}')
    k(f's_and_b32 s40, s{sWAVE}, 1')
    k(f's_lshl_b32 s40, s40, 9')
    k(f's_add_u32 s40, s40, {LRED}')
    k(f'v_add_u32 v{vRR}, s40, v{vT}')
    for w in range(1, 4): k(f'v_add_u32 v{vRR2+w-1}, {1024*w}, v{vRR}')
    k(f's_lshl_b32 s40, s{sID}, 1')
    k(f's_and_b32 s41, s{sWAVE}, 1')
    k(f's_add_u32 s40, s40, s41')
    k(f's_lshl_b32 s40, s40, 8')
    k(f'v_lshlrev_b32 v{vL4}, 2, v{vLane}')
    k(f'v_add_u32 v{vL4}, s40, v{vL4}')
    k(f's_mov_b32 s{sSTEP}, 0')
    k(f's_mov_b32 s{sM}, {MEM}')
    k(f's_mov_b32 s{sP}, {PB}')
    k(f's_lshl_b32 s{sX}, s{sID}, 15')
    k(f's_lshl_b32 s40, s{sWAVE}, 13')
    k(f's_add_u32 s{sX}, s{sX}, s40')
    k(f's_add_u32 s{sX}, s{sX}, {UF}')
    k(f's_mul_i32 s{sUM}, s{sWAVE}, {2*28*1024}')
    k(f's_lshl_b32 s40, s{sID}, 11')
    k(f's_add_u32 s{sUM}, s{sUM}, s40')
    k(f's_add_u32 s{sUM}, s{sUM}, {UM}')
    k(f's_mov_b32 s43, s{sUM}')
    def ldu(j):
        hh, T = j >> 1, j & 1
        r = vU + 16*(hh>>1) + 8*T + 4*(hh&1)
        return f'buffer_load_dwordx4 {vr(r,4)}, v{vL16}, {WS}, s{sX if j<4 else sT0} offen offset:{(j&3)*1024} ' + OPT['uf']
    def stum(u, T):
        return f'buffer_store_dwordx4 {vr(vUm+8*T+4*u,4)}, v{vL16}, {WS}, s{43 if u==0 else 44} offen offset:{T*1024} ' + OPT['um']
    def lw(gi):
        b = vTm + 16*(gi&1)
        for f in range(4): k.ds(f'ds_read_b128 {vr(b+4*f,4)}, v{vWL} offset:{gi*4096+f*1024}', f'w{gi}')
    def load_u(ahead):
        if wait_u:
            lu = k.newlabel('Lnu')
            k(f's_add_u32 s{sT0}, s{sSTEP}, {ahead}')
            k(f's_and_b32 s{sT1}, s{sT0}, 3')
            k(f's_cbranch_scc1 {lu}')
            k(f's_lshl_b32 s{sT0}, s{sT0}, 5')
            k(f's_add_u32 s{sT0}, s{sT0}, {flag(F_U)}')
            wait_u(k, sT0, 32, vC, sleep=1)
            k.label(lu)
        k(f's_add_u32 s{sT0}, s{sX}, 4096')
        for j in range(8): k(ldu(j))
        k(f's_add_u32 s{sX}, s{sX}, {UF_SEG}')
    wait_mode(k, vC)
    sw = []
    for o in range(4):
        r = vU + 8*o
        for e in range(4):
            sel = e & 1
            sw.append(f'v_pk_mov_b32 {vr(vUi+8*o+2*e,2)}, {vr(r+(e&2),2)}, {vr(r+4+(e&2),2)} op_sel:[{sel},{sel}]')
    if stamps: k(f's_add_u32 s76, s{sST}, 0x20000')
    edge(k, stamps, 0)
    k.label('L_B_loop')
    lp = k.newlabel('Lgm')
    def gl():
        k(f'buffer_load_dwordx4 {vr(vM,4)}, v{vG0}, {WS}, s{sM} offen sc1')
        k(f'buffer_load_dwordx4 {vr(vM+4,4)}, v{vG1}, {WS}, s{sM} offen sc1')
    k('s_waitcnt vmcnt(1)')
    gl()
    for x in sw: k(x)
    for r in range(0, 32, 2): k(f'v_mov_b64 {vr(vA+r,2)}, 0')
    for j in range(2, 7): k(f'v_add_u32 v{vG+j}, s{50+j}, v{vL16}')
    k(f's_add_u32 s45, s{sSTEP}, 1')
    k(f's_lshr_b32 s45, s45, 2')
    k(f's_lshl_b32 s45, s45, 7')
    k(f's_add_u32 s45, s45, {flag(F_U)}')
    k(f's_add_u32 s44, s43, {28*1024}')
    vm = [stum(0,0), stum(0,1), stum(1,0), stum(1,1)] + [ldu(j) for j in range(8)]
    lw(0)
    k(f's_mov_b32 s{sCNT}, 0')
    k(f's_branch {lp}w')
    k.label(lp)
    gl()
    k(f's_add_u32 s{sCNT}, s{sCNT}, 1')
    k(f's_cmp_gt_u32 s{sCNT}, s{sT2}')
    k('s_cbranch_scc1 L_fail')
    k.label(lp + 'w')
    k('s_waitcnt vmcnt(1)')
    k(f'v_max3_u32 v{vC}, v{vM}, v{vM+1}, v{vM+2}')
    k('s_waitcnt vmcnt(0)')
    k(f'v_max3_u32 v{vC+1}, v{vM+4}, v{vM+5}, v{vM+6}')
    k(f'v_max3_u32 v{vC}, v{vC}, v{vM+3}, v{vM+7}')
    k(f'v_max_u32 v{vC}, v{vC}, v{vC+1}')
    k(f'v_cmp_eq_u32 vcc, -1, v{vC}')
    k(f's_cbranch_vccnz {lp}')
    stamp(k, 0, stamps)
    k.ds(f'ds_write_b128 v{vG0}, {vr(vM,4)} offset:{LM}')
    k.ds(f'ds_write_b128 v{vG1}, {vr(vM+4,4)} offset:{LM}')
    ls, l2 = k.newlabel('Lbs'), k.newlabel('Lbt')
    k(f's_cmp_eq_u32 s{sSTEP}, 0')
    k(f's_cbranch_scc1 {l2}')
    k(f's_cmp_ge_u32 s{sWAVE}, 2')
    k(f's_cbranch_scc1 {ls}')
    k(f's_add_u32 s{sT0}, s{sM}, {MEMX - MEM - MEM_S}')
    k(f'buffer_store_dword v{vKeep}, v{vL4}, {WS}, s{sT0} offen sc1')
    k(f's_branch {l2}')
    k.label(ls)
    k(f's_cmp_eq_u32 s{sWAVE}, 2')
    k(f's_cselect_b32 s{sT0}, s{sSTEP}, 0')
    k(f's_cmp_le_u32 s{sT0}, 1')
    k(f's_cbranch_scc1 {l2}')
    k(f's_lshl_b32 s{sT0}, s{sSTEP}, 7')
    k(f's_add_u32 s{sT0}, s{sT0}, {flag(F_UM) - 256}')
    k('s_mov_b64 exec, 1')
    k(f'v_mov_b32 v{vC}, 1')
    k(f'buffer_atomic_add v{vC}, off, {WS}, s{sT0}')
    k('s_mov_b64 exec, -1')
    k.label(l2)
    k(f'buffer_load_dword v{vFl}, off, {WS}, s45 sc1')
    for x in vm[:4]: k(x)
    def acc(gi): return vA + 4*gi
    def cvt(gi, h):
        hh, T = gi>>1, gi&1
        d = vUm + 8*T + 4*(hh>>1) + 2*h + (hh&1)
        a = acc(gi) + 2*h
        k(f'v_cvt_pk_bf16_f32 v{d}, v{a}, v{a+1}')
    def lw1(gi, f):
        k.ds(f'ds_read_b128 {vr(vTm+16*(gi&1)+4*f,4)}, v{vWL} offset:{gi*4096+f*1024}', f'w{gi}')
    def MB(gi, j):
        w = xr(W(gi,j),8) if j < 5 else vr(vTm + 16*(gi&1) + 8*(j-5), 8)
        k(f'v_smfmac_f32_16x16x64_bf16 {vr(acc(gi),4)}, {vr(vM+4*j,4)}, {w}, v{vIdx}')
    for n in range(16):
        MB(n & 7, n >> 3)
        if n == 5:
            k.wds0(); k('s_barrier')
        if 5 <= n < 10:
            k.ds(f'ds_read_b128 {vr(vM+4*(n-3),4)}, v{vG+n-3} offset:{LM}', f'm{n-3}')
    for gi in range(8):
        for j in range(2, 7):
            if gi == 0: k.wds(f'm{j}')
            if j == 5: k.wds(f'w{gi}')
            MB(gi, j)
            if gi < 7 and j in (2, 3, 5, 6): lw1(gi+1, {2:0, 3:1, 5:2, 6:3}[j])
            if gi >= 1 and j == 4: cvt(gi-1, 0); cvt(gi-1, 1)
    k(f's_mov_b32 s43, s{sUM}')
    k(f's_add_u32 s{sUM}, s{sUM}, {UM_SEG}')
    k.nop(6)
    cvt(7, 0); cvt(7, 1)
    for r in range(0, 8, 2): k(f'v_mov_b64 {vr(vD+r,2)}, 0')
    k(f's_cmp_ge_u32 s{sSTEP}, {NSTEP}')
    k('s_cbranch_scc1 L_B_end')
    k('s_waitcnt vmcnt(4)')
    l0, l1 = k.newlabel('Lu0'), k.newlabel('Lu1')
    k(f's_cmp_eq_u32 s{sSTEP}, 0')
    k(f's_cbranch_scc1 {l0}')
    k.label(l1)
    main = k.lines; k.lines = []
    k.label(l0)
    load_u(0)
    k('s_waitcnt vmcnt(0)')
    for x in sw: k(x)
    k(f'v_mov_b32 v{vFl}, 32')
    k(f's_branch {l1}')
    k.cold += k.lines; k.lines = main
    if wait_u:
        lu = k.newlabel('Lnu')
        k(f'v_cmp_le_u32 vcc, 32, v{vFl}')
        k(f's_cbranch_vccnz {lu}')
        wait_u(k, 45, 32, vC)
        k.label(lu)
    k(f's_add_u32 s{sT0}, s{sX}, 4096')
    for j in range(8): k(ldu(j))
    k(f's_add_u32 s{sX}, s{sX}, {UF_SEG}')
    stamp(k, 1, stamps)
    if OPT['sleepB']: k(f"s_sleep {OPT['sleepB']}")
    def issue(st):
        P = vP[st]
        return [f'buffer_load_dwordx4 {vr(P,4)}, v{vPT}, {WS}, s{sP} offen sc1',
                f'buffer_load_dwordx4 {vr(P+4,4)}, v{vPT}, {WS}, s{sP} offen offset:1024 sc1',
                f'buffer_load_dwordx4 {vr(P+8,4)}, v{vPM}, {WS}, s{sP} offen sc1']
    def checks(st):
        P = vP[st]
        return [(2, [f'v_max3_u32 v{vC}, v{P}, v{P+1}, v{P+2}']),
                (1, [f'v_max3_u32 v{vC+1}, v{P+4}, v{P+5}, v{P+6}', f'v_max3_u32 v{vC}, v{vC}, v{P+3}, v{P+7}']),
                (0, [f'v_max3_u32 v{vC+1}, v{vC+1}, v{P+8}, v{P+9}', f'v_max3_u32 v{vC}, v{vC}, v{P+10}, v{P+11}',
                     f'v_max_u32 v{vC}, v{vC}, v{vC+1}', f'v_cmp_eq_u32 vcc, -1, v{vC}'])]
    def body(st):
        P = vP[st]
        stamp(k, 2, stamps)
        for j in range(3):
            for T in range(2):
                b = vr(vUi + 16*j + 8*T, 8) if j < 2 else vr(vUm + 8*T, 8)
                k(f'v_smfmac_f32_16x16x64_bf16 {vr(vD+4*T,4)}, {vr(P+4*j,4)}, {b}, v{vIdx}')
    poll2(k, issue, checks, body, 'Lpp', OPT['stag'])
    k(f's_add_u32 s{sM}, s{sM}, {MEM_S}')
    k(f's_add_u32 s{sP}, s{sP}, {PB_S}')
    k.nop(6)
    for r in range(4): k(f'v_permlane32_swap_b32 v{vD+r}, v{vD+4+r}')
    k(f'v_pk_add_f32 {vr(vD,2)}, {vr(vD,2)}, {vr(vD+4,2)}')
    k(f'v_pk_add_f32 {vr(vD+2,2)}, {vr(vD+2,2)}, {vr(vD+6,2)}')
    k.ds(f'ds_write_b128 v{vRW}, {vr(vD,4)}')
    k.wds0()
    k('s_barrier')
    k(f's_cmp_ge_u32 s{sWAVE}, 2')
    k('s_cbranch_scc1 L_B_skip')
    R = vG
    for w in range(4): k.ds(f'ds_read2_b32 {vr(R+2*w,2)}, v{vRR} offset0:{0} offset1:{4}' if w == 0 else
                            f'ds_read2_b32 {vr(R+2*w,2)}, v{vRR2+w-1} offset0:0 offset1:4', f'r{w}')
    k(f's_cmp_eq_u32 s{sMODE}, 1')
    k.wds('r1')
    k(f'v_pk_add_f32 {vr(R,2)}, {vr(R,2)}, {vr(R+2,2)}')
    k.wds('r3')
    k(f'v_pk_add_f32 {vr(R+4,2)}, {vr(R+4,2)}, {vr(R+6,2)}')
    k(f'v_pk_add_f32 {vr(R,2)}, {vr(R,2)}, {vr(R+4,2)}')
    k(f'v_cvt_pk_bf16_f32 v{R}, v{R}, v{R+1}')
    k(f'v_min_u32 v{R}, -2, v{R}')
    publish(k, f'buffer_store_dword v{R}, v{vL4}, {WS}, s{sM} offen')
    k(f'v_mov_b32 v{vKeep}, v{R}')
    k('s_branch L_B_skip2')
    k.label('L_B_skip')
    k('s_waitcnt vmcnt(0)')
    k.label('L_B_skip2')
    stamp(k, 3, stamps)
    k('s_barrier')
    k(f's_add_u32 s{sSTEP}, s{sSTEP}, 1')
    if stamps: k(f's_add_u32 s{sST}, s{sST}, 16')
    k('s_branch L_B_loop')
    k.label('L_B_end')
    edge(k, stamps, 8)
    k(f's_add_u32 s44, s43, {28*1024}')
    for x in vm[:4]: k(x)
    k('s_waitcnt vmcnt(0)')
    k('s_barrier')
    k(f's_cmp_lg_u32 s{sWAVE}, 0')
    k('s_cbranch_scc1 L_exit')
    k('s_mov_b64 exec, 3')
    k(f'v_mov_b32 v{vC}, 1')
    k(f'v_lshlrev_b32 v{vC+1}, 7, v{vLane}')
    k(f's_mov_b32 s{sT0}, {flag(F_UM + 62)}')
    k(f'buffer_atomic_add v{vC}, v{vC+1}, {WS}, s{sT0} offen')
    k('s_endpgm')
    k.flush_cold()

def role_P(k, wait_u=None):
    WS = f's[{SWS}:{SWS+3}]'
    vLane, vU, vX, vS, vD = 1, 2, 3, 4, 8
    D = OPT['pfd']; st = OPT['pfs']; sh = 7 if st == 128 else 6
    k.label('L_roleP')
    k(f's_mov_b32 s{sT2}, {POLL_LIMIT}')
    k(f's_sub_u32 s{sID}, s{sROLE}, 30')
    k(f's_lshl_b32 s{sID}, s{sID}, 2')
    k(f's_add_u32 s{sID}, s{sID}, s{sWAVE}')
    k(f'v_and_b32 v{vLane}, 63, v0')
    k(f'v_lshlrev_b32 v{vU}, {sh}, v{vLane}')
    k(f's_mul_i32 s40, s{sID}, {UF_SEG//8}')
    k(f'v_add_u32 v{vU}, s40, v{vU}')
    k(f'v_min_u32 v{vX}, 55, v{vLane}')
    k(f'v_lshlrev_b32 v{vX}, 6, v{vX}')
    k(f's_mul_i32 s40, s{sID}, 3584')
    k(f'v_add_u32 v{vX}, s40, v{vX}')
    k(f'v_min_u32 v{vS}, 19, v{vLane}')
    k(f'v_lshlrev_b32 v{vS}, 6, v{vS}')
    k(f's_mul_i32 s40, s{sID}, 1280')
    k(f'v_add_u32 v{vS}, s40, v{vS}')
    k(f'v_min_u32 v{vS+1}, 13, v{vLane}')
    k(f'v_lshlrev_b32 v{vS+1}, 6, v{vS+1}')
    k(f's_mul_i32 s40, s{sID}, 896')
    k(f'v_add_u32 v{vS+1}, s40, v{vS+1}')
    k(f's_mov_b32 s{sSTEP}, 0')
    k(f's_mov_b32 s{sX}, {UF}')
    k(f's_mov_b32 s{sUM}, {XNS}')
    k(f's_mov_b32 s{sP}, {PB}')
    k(f's_mov_b32 s{sM}, {MEM + MEM_S}')
    k(f's_mov_b32 s41, {MEM - D*MEM_S}')
    k.label('L_P_loop')
    k(f's_cmp_le_u32 s{sSTEP}, {D}')
    k('s_cbranch_scc1 L_P_go')
    k(f's_mov_b32 s{sCNT}, 0')
    k.label('L_P_wait')
    k(f'buffer_load_dword v{vD}, off, {WS}, s41 sc1')
    k(f's_add_u32 s{sCNT}, s{sCNT}, 1')
    k(f's_cmp_gt_u32 s{sCNT}, s{sT2}')
    k('s_cbranch_scc1 L_fail')
    k('s_waitcnt vmcnt(0)')
    k(f'v_cmp_eq_u32 vcc, -1, v{vD}')
    k('s_cbranch_vccz L_P_go')
    k('s_sleep 2')
    k('s_branch L_P_wait')
    k.label('L_P_go')
    k(f'buffer_load_dword v{vD+1}, v{vS}, {WS}, s{sP} offen sc1')
    k(f'buffer_load_dword v{vD+2}, v{vS+1}, {WS}, s{sM} offen sc1')
    k(f'buffer_load_dword v{vD+3}, v{vX}, {WS}, s{sUM} offen sc1')
    n = 0 if OPT['apf'] else UF_SEG // 8 // (64*st)
    k(f's_mov_b32 s{sT0}, s{sX}')
    for j in range(n):
        k(f'buffer_load_dword v{vD+4+j}, v{vU}, {WS}, s{sT0} offen sc1')
        k(f's_add_u32 s{sT0}, s{sT0}, {64*st}')
    k(f's_add_u32 s{sX}, s{sX}, {UF_SEG}')
    k(f's_add_u32 s{sUM}, s{sUM}, 28672')
    k(f's_add_u32 s{sP}, s{sP}, {PB_S}')
    k(f's_add_u32 s{sM}, s{sM}, {MEM_S}')
    k(f's_add_u32 s41, s41, {MEM_S}')
    k(f's_add_u32 s{sSTEP}, s{sSTEP}, 1')
    k(f's_cmp_lt_u32 s{sSTEP}, {NSTEP}')
    k('s_cbranch_scc1 L_P_loop')
    k('s_waitcnt vmcnt(0)')
    k('s_endpgm')
```

```python
from chain import *

NCHAIN = 32
def kd(name, vgpr=512, acc=256, sgpr=96):
    return f'''.section .rodata,"a"
.p2align 6
.amdhsa_kernel {name}
  .amdhsa_next_free_vgpr {vgpr}
  .amdhsa_next_free_sgpr {sgpr}
  .amdhsa_accum_offset {acc}
  .amdhsa_group_segment_fixed_size 0
  .amdhsa_kernarg_size 120
  .amdhsa_user_sgpr_count 2
  .amdhsa_user_sgpr_kernarg_segment_ptr 1
  .amdhsa_system_sgpr_workgroup_id_x 1
.end_amdhsa_kernel
.text
'''
def khead(name):
    return f'.globl {name}\n.p2align 8\n.type {name},@function\n{name}:\n'

def main_prologue(k, pref_xcd=0, stamps=False, force_slow=False):
    k('s_cmp_ge_u32 s2, 256')
    k('s_cbranch_scc1 L_exit')
    k('s_load_dwordx2 s[4:5], s[0:1], 112')
    k('s_load_dwordx2 s[8:9], s[0:1], 104')
    k('s_getreg_b32 s3, hwreg(HW_REG_XCC_ID, 0, 4)')
    k('v_lshrrev_b32 v1, 6, v0')
    k('s_nop 0')
    k(f'v_readfirstlane_b32 s{sWAVE}, v1')
    k(f's_mov_b32 s6, {WS_SIZE}')
    k('s_mov_b32 s7, 0x20000')
    k('s_mov_b32 s10, 256')
    k('s_mov_b32 s11, 0x20000')
    k('s_waitcnt lgkmcnt(0)')
    k('s_and_b32 s5, s5, 0xffff')
    k('s_and_b32 s9, s9, 0xffff')
    k(f's_mov_b32 s{sROLE}, 255')
    k(f's_and_b32 s40, s2, 7')
    k(f's_cmp_lg_u32 s40, {pref_xcd}')
    k('s_cbranch_scc1 L_dispatch')
    k(f's_lshr_b32 s{sROLE}, s2, 3')
    k(f's_cmp_lg_u32 s{sWAVE}, 0')
    k('s_cbranch_scc1 L_dispatch')
    if force_slow: k('s_and_b32 s3, s2, 8')
    k('s_lshl_b32 s40, s3, 2')
    k('s_mov_b64 exec, 1')
    k('v_mov_b32 v2, 1')
    k('buffer_atomic_add v2, off, s[8:11], s40 offset:32')
    k('s_mov_b64 exec, -1')
    k.label('L_dispatch')
    if stamps:
        k(f's_min_u32 s{sST}, s{sROLE}, 40')
        k(f's_lshl_b32 s{sST}, s{sST}, 2')
        k(f's_add_u32 s{sST}, s{sST}, s{sWAVE}')
        k(f's_lshl_b32 s{sST}, s{sST}, 10')
        k(f's_add_u32 s{sST}, s{sST}, {STAMP}')
    if stamps:
        k('s_memrealtime s[30:31]')
        k('s_waitcnt lgkmcnt(0)')
        k('v_mov_b32 v3, s30')
        k(f'buffer_store_dword v3, off, s[4:7], s{sST} offset:1020')
    k(f's_cmp_lt_u32 s{sROLE}, 16')
    k('s_cbranch_scc1 L_roleA')
    k(f's_cmp_lt_u32 s{sROLE}, 30')
    k('s_cbranch_scc1 L_roleB')
    k(f's_cmp_lt_u32 s{sROLE}, {NCHAIN}')
    k('s_cbranch_scc1 L_roleP')

def fail_exit(k):
    k.label('L_fail')
    k('s_mov_b64 exec, 1')
    k(f'v_mov_b32 v2, s{sSTEP}')
    k(f'v_mov_b32 v3, s{sROLE}')
    k('v_lshl_add_u32 v2, v3, 8, v2')
    k('v_or_b32 v2, 0x10000, v2')
    k('buffer_store_dword v2, off, s[8:11], 0 offset:8')
    k('v_mov_b32 v3, 163832')
    k('ds_write_b32 v3, v2')
    k('s_waitcnt lgkmcnt(0)')
    k('s_waitcnt vmcnt(0)')
    k.label('L_exit')
    k('s_endpgm')

def gen_chain_only(stamps=True):
    k = K()
    main_prologue(k, stamps=stamps)
    k('s_endpgm')
    role_A(k, stamps)
    role_B(k, stamps)
    role_P(k)
    fail_exit(k)
    errs = check(k.lines, 'main')
    for e in errs: print('HAZARD', e)
    name = 'main_kernel'
    return ('; @launch kernel=main_kernel grid=(256,1,1) block=(256,1,1) lds=163840\n'
            '.amdgcn_target "amdgcn-amd-amdhsa--gfx950"\n.text\n' + khead(name) + k.text() + kd(name))

if __name__ == '__main__':
    import sys, chain
    for a in sys.argv[3:]:
        kk, vv = a.split('='); chain.OPT[kk] = int(vv) if vv.isdigit() else vv
    open(sys.argv[1], 'w').write(gen_chain_only(stamps=(sys.argv[2]=='1')))
```

```python
from chain import K, OPT
from asmlib import *
from layout import *
import math, struct

def f32bits(x): return struct.unpack('<I', struct.pack('<f', x))[0]
PREP_GRID, PREP_BLOCK, PREP_LDS = 256, 512, 57344

def srd(k, s, argoff, size):
    k(f's_load_dwordx2 s[{s}:{s+1}], s[0:1], {argoff}')
    k(f's_mov_b32 s{s+2}, {size}')
    k(f's_mov_b32 s{s+3}, 0x20000')

def gen_prep(tl=False):
    k = K()
    WS = 's[4:7]'
    k(f's_cmp_ge_u32 s2, {PREP_GRID}')
    k('s_cbranch_scc1 P_exit')
    srd(k, 4, 112, WS_SIZE)
    k('v_lshrrev_b32 v1, 6, v0')
    k('v_and_b32 v2, 63, v0')
    k('v_readfirstlane_b32 s16, v1')
    if tl: k('s_memrealtime s[40:41]')
    k('s_nop 2')
    k('s_cmp_eq_u32 s16, 7')
    k('s_cbranch_scc1 P_ln')
    k('s_and_b32 s19, s2, 15')
    k('s_bfe_u32 s18, s2, 0x10005')
    k('s_lshr_b32 s20, s2, 6')
    k('s_bitcmp1_b32 s2, 4')
    k('s_cbranch_scc1 P_gB0')
    srd(k, 8, 16, 3670016); srd(k, 12, 24, 3670016)
    k('s_branch P_g1')
    k.label('P_gB0')
    srd(k, 8, 32, 3670016); srd(k, 12, 40, 3670016)
    k.label('P_g1')
    vI, vG, vR, vC, vL16, vA = 3, 4, 5, 7, 8, 9
    k(f'v_and_b32 v{vI}, 15, v2')
    k(f'v_lshrrev_b32 v{vG}, 4, v2')
    k(f'v_lshlrev_b32 v{vL16}, 4, v2')
    k('s_mul_i32 s21, s18, 7')
    k('s_add_u32 s21, s21, s16')
    k(f'v_lshrrev_b32 v10, 2, v{vI}')
    k('v_lshlrev_b32 v10, 3, v10')
    k(f'v_and_b32 v11, 3, v{vI}')
    k('v_add_u32 v10, v10, v11')
    k('s_lshl_b32 s22, s21, 5')
    k('v_add_u32 v10, s22, v10')
    k('v_lshlrev_b32 v10, 13, v10')
    k(f'v_lshl_add_u32 v10, v{vG}, 4, v10')
    k('s_lshl_b32 s22, s19, 9')
    k(f'v_add_u32 v{vR}, s22, v10')
    k(f'v_add_u32 v{vR+1}, {4*8192}, v{vR}')
    k('s_lshl_b32 s22, s20, 1')
    k('s_add_u32 s22, s22, s18')
    for j in range(8):
        k(f's_add_u32 s{24+j}, s22, {j}')
        k(f's_and_b32 s{24+j}, s{24+j}, 7')
    vAcc, vRow, vCol = 16, 72, 136
    k('s_lshl_b32 s33, s16, 10')
    def mm(j):
        for T in range(2):
            for ct in range(7):
                a = vAcc + 28*T + 4*ct
                k(f'v_mfma_f32_16x16x32_bf16 {vr(a,4)}, {vr(vRow+8*j+4*T,4)}, {vr(vCol+28*(j&1)+4*ct,4)}, {"0" if j == 0 else vr(a,4)}')
    def body(gstep, rd):
        k('s_waitcnt lgkmcnt(0)')
        k('s_and_b32 s5, s5, 0xffff'); k('s_and_b32 s9, s9, 0xffff'); k('s_and_b32 s13, s13, 0xffff')
        D = OPT['k1d']
        k.vmq = []
        def issue(j):
            k(f's_mul_i32 s34, s{24+j}, 7168')
            k('s_add_u32 s34, s34, s33')
            k('s_mov_b32 m0, s34')
            k(f's_mul_i32 s35, s{24+j}, {gstep}')
            k(f's_lshl_b32 s36, s{24+j}, 6')
            k.vm(f'buffer_load_dwordx4 v{vC}, s[12:15], s35 offen lds', j)
            for T in range(2): k.vm(f'buffer_load_dwordx4 {vr(vRow+8*j+4*T,4)}, v{vR+T}, s[8:11], s36 offen', j)
            k(f's_mul_i32 s{24+j}, s{24+j}, 7168')
        for j in range(D): issue(j)
        for j in range(9):
            if j < 8:
                k(f'v_add_u32 v{vA+1}, s{24+j}, v{vA}')
                k.wvm(j)
                k('s_barrier')
                if tl == 1 and j in (0, 3, 7): k(f's_memrealtime s[{46+2*(j//3)}:{47+2*(j//3)}]')
                rd(j)
                if j + D < 8: issue(j + D)
            if j > 0:
                if j < 8 and not tl: k(f's_waitcnt lgkmcnt({7 if rd.n == 7 else 14})')
                else: k('s_waitcnt lgkmcnt(0)')
                mm(j-1)
    k('s_bitcmp1_b32 s2, 4')
    k('s_cbranch_scc1 P_gB')
    k(f'v_lshrrev_b32 v10, 3, v{vI}')
    k('v_lshlrev_b32 v10, 4, v10')
    k(f'v_bfe_u32 v11, v{vI}, 1, 1')
    k('v_lshl_add_u32 v10, v11, 2, v10')
    k(f'v_bfe_u32 v11, v{vI}, 2, 1')
    k('v_lshl_add_u32 v10, v11, 1, v10')
    k(f'v_and_b32 v11, 1, v{vI}')
    k('v_add_u32 v10, v10, v11')
    k('s_mul_i32 s22, s20, 7')
    k('s_add_u32 s22, s22, s16')
    k('s_lshr_b32 s23, s22, 1')
    k('s_lshl_b32 s23, s23, 5')
    k('s_and_b32 s22, s22, 1')
    k('s_lshl_b32 s22, s22, 3')
    k('s_add_u32 s22, s22, s23')
    k('v_add_u32 v10, s22, v10')
    k('v_lshlrev_b32 v10, 13, v10')
    k(f'v_lshl_add_u32 v10, v{vG}, 4, v10')
    k('s_lshl_b32 s22, s19, 9')
    k(f'v_add_u32 v{vC}, s22, v10')
    k(f'v_mov_b32 v{vA}, v{vL16}')
    def rdA(j):
        for ct in range(7): k(f'ds_read_b128 {vr(vCol+28*(j&1)+4*ct,4)}, v{vA+1} offset:{ct*1024}')
    rdA.n = 7
    body(64, rdA)
    k(f's_mov_b32 s22, {f32bits(math.log2(math.e)/16):#x}')
    k(f's_mov_b32 s23, {WTA}')
    k('s_branch P_gepi')
    k.label('P_gB')
    k(f's_mov_b32 s22, {(1<<32)//14 + 1}')
    k('v_mul_hi_u32 v10, v0, s22')
    k('v_mul_u32_u24 v11, 14, v10')
    k('v_sub_u32 v11, v0, v11')
    k('v_mul_u32_u24 v10, 896, v10')
    k('v_lshl_add_u32 v10, v11, 4, v10')
    k('s_mul_i32 s22, s19, 229376')
    k('s_mul_i32 s23, s20, 224')
    k('s_add_u32 s22, s22, s23')
    k(f'v_add_u32 v{vC}, s22, v10')
    k('v_bfe_u32 v10, v2, 2, 2')
    k(f'v_lshl_add_u32 v10, v{vG}, 3, v10')
    k('v_mul_u32_u24 v10, 224, v10')
    k('v_and_b32 v11, 3, v2')
    k(f'v_lshl_add_u32 v{vA}, v11, 3, v10')
    def rdB(j):
        for ct in range(7):
            for hh in range(2): k(f'ds_read_b64_tr_b16 {vr(vCol+28*(j&1)+4*ct+2*hh,2)}, v{vA+1} offset:{ct*32+hh*896}')
    rdB.n = 14
    body(32*896, rdB)
    k('s_mov_b32 s22, 1.0')
    k(f's_mov_b32 s23, {WTB}')
    k.label('P_gepi')
    if tl: k('s_memrealtime s[52:53]')
    k('s_mul_i32 s24, s19, 28')
    k('s_mul_i32 s25, s20, 7')
    k('s_add_u32 s24, s24, s25')
    k('s_mul_i32 s24, s24, 14')
    k('s_add_u32 s24, s24, s21')
    k('s_lshl_b32 s24, s24, 10')
    k('s_add_u32 s24, s24, s23')
    k('s_mov_b32 s23, s22')
    for ct in range(7):
        d = vRow + 4*ct
        for T in range(2):
            a = vAcc + 28*T + 4*ct
            k(f'v_pk_mul_f32 {vr(a,2)}, {vr(a,2)}, s[22:23]')
            k(f'v_pk_mul_f32 {vr(a+2,2)}, {vr(a+2,2)}, s[22:23]')
            k(f'v_cvt_pk_bf16_f32 v{d+2*T}, v{a}, v{a+1}')
            k(f'v_cvt_pk_bf16_f32 v{d+2*T+1}, v{a+2}, v{a+3}')
        k(f'buffer_store_dwordx4 {vr(d,4)}, v{vL16}, {WS}, s24 offen ' + OPT['k1st'])
        k('s_add_u32 s24, s24, 14336')
    if tl:
        k('s_waitcnt vmcnt(0)')
        k('s_memrealtime s[42:43]')
        k('s_lshl_b32 s44, s2, 5')
        k(f's_add_u32 s44, s44, {STAMP + 0xE0000}')
        k('s_waitcnt lgkmcnt(0)')
        k('v_mov_b32 v10, s40'); k('v_mov_b32 v11, s42'); k('v_mov_b32 v12, s46'); k('v_mov_b32 v13, s48')
        k('v_mov_b32 v14, s50'); k('v_mov_b32 v15, s52')
        k(f'buffer_store_dwordx4 v[10:13], off, {WS}, s44')
        k(f'buffer_store_dwordx2 v[14:15], off, {WS}, s44 offset:16')
    k('s_endpgm')
    k.label('P_ln')
    srd(k, 8, 0, 1835008); srd(k, 12, 64, 896)
    srd(k, 28, 8, 7168)
    k('s_mov_b32 s17, s2')
    k('v_lshrrev_b32 v3, 3, v2')
    k('s_lshl_b32 s18, s17, 3')
    k('v_add_u32 v3, s18, v3')
    k('v_and_b32 v4, 7, v2')
    k('v_mul_u32_u24 v5, 896, v3')
    k('v_lshl_add_u32 v5, v4, 4, v5')
    k('v_lshlrev_b32 v6, 4, v4')
    vX, vW, vF = 16, 44, 72
    k('s_waitcnt lgkmcnt(0)')
    k('s_and_b32 s5, s5, 0xffff'); k('s_and_b32 s9, s9, 0xffff'); k('s_and_b32 s13, s13, 0xffff')
    for i in range(7): k(f'buffer_load_dwordx4 {vr(vX+4*i,4)}, v5, s[8:11], 0 offen offset:{i*128}')
    for i in range(7): k(f'buffer_load_dwordx4 {vr(vW+4*i,4)}, v6, s[12:15], 0 offen offset:{i*128}')
    k('v_lshrrev_b32 v7, 4, v3')
    k('v_mul_u32_u24 v7, 14336, v7')
    k('v_and_b32 v8, 15, v3')
    k('v_lshl_add_u32 v7, v8, 4, v7')
    k('v_lshrrev_b32 v8, 2, v4')
    k('v_lshl_add_u32 v7, v8, 10, v7')
    k('v_and_b32 v8, 3, v4')
    k('v_lshl_add_u32 v9, v8, 8, v7')
    k('v_bfe_u32 v8, v4, 1, 1')
    k('v_lshl_add_u32 v10, v8, 9, v7')
    k('v_and_b32 v8, 1, v4')
    k('v_lshl_add_u32 v10, v8, 3, v10')
    k('s_mov_b32 s20, 0xffff0000')
    k('s_and_b32 s29, s29, 0xffff')
    k('v_bfe_u32 v12, v2, 2, 3')
    k('v_mul_u32_u24 v12, 896, v12')
    k('v_and_b32 v13, 3, v2')
    k('v_lshl_add_u32 v12, v13, 3, v12')
    k('v_lshrrev_b32 v13, 5, v2')
    k('v_lshl_add_u32 v12, v13, 2, v12')
    k('s_lshl_b32 s21, s2, 5')
    k('buffer_load_dword v160, v12, s[28:31], s21 offen')
    k('s_mov_b32 s32, s4'); k('s_mov_b32 s33, s5'); k(f's_mov_b32 s34, {SENT_END - MEM_S}'); k('s_mov_b32 s35, 0x20000')
    k('s_mov_b32 s36, s4'); k('s_mov_b32 s37, s5'); k(f's_mov_b32 s38, {FLG + FLG_SZ}'); k('s_mov_b32 s39, 0x20000')
    k('v_lshlrev_b32 v11, 4, v2')
    k('s_mul_i32 s21, s2, 6144')
    k(f's_add_u32 s21, s21, {MEM + MEM_S}')
    k('s_add_u32 s22, s21, 4096')
    for r in range(4): k(f'v_mov_b32 v{164+r}, -1')
    for r in range(4): k(f'v_mov_b32 v{168+r}, 0')
    for r in range(6): k(f'buffer_store_dwordx4 v[164:167], v11, s[32:35], s{21 if r < 4 else 22} offen offset:{(r&3)*1024}')
    k('s_lshl_b32 s21, s2, 10')
    k(f's_add_u32 s21, s21, {FLG}')
    k('buffer_store_dwordx4 v[168:171], v11, s[36:39], s21 offen')
    k('s_barrier')
    k('s_waitcnt vmcnt(15)')
    for d in range(28):
        k(f'v_lshlrev_b32 v{vF+2*d}, 16, v{vX+d}')
        k(f'v_and_b32 v{vF+2*d+1}, s20, v{vX+d}')
    def red8(v):
        for ctl in ('quad_perm:[1,0,3,2]', 'quad_perm:[2,3,0,1]', 'row_half_mirror'):
            k.nop(2)
            k(f'v_add_f32_dpp v{v}, v{v}, v{v} {ctl} row_mask:0xf bank_mask:0xf')
    def rbf(v):
        k(f'v_cvt_pk_bf16_f32 v{v}, v{v}, v{v}')
        k(f'v_and_b32 v{v}, s20, v{v}')
    k(f'v_pk_add_f32 v[12:13], {vr(vF,2)}, {vr(vF+2,2)}')
    for d in range(2, 28): k(f'v_pk_add_f32 v[12:13], v[12:13], {vr(vF+2*d,2)}')
    k('v_add_f32 v12, v12, v13')
    k('s_barrier')
    red8(12)
    k(f's_mov_b32 s21, {f32bits(1/448):#x}')
    k('v_mul_f32 v12, s21, v12')
    k('v_mov_b32 v14, 0'); k('v_mov_b32 v15, 0')
    for d in range(28):
        k(f'v_pk_add_f32 {vr(vX,2)}, {vr(vF+2*d,2)}, v[12:13] op_sel_hi:[1,0] neg_lo:[0,1] neg_hi:[0,1]')
        k(f'v_pk_fma_f32 v[14:15], {vr(vX,2)}, {vr(vX,2)}, v[14:15]')
    k('v_add_f32 v14, v14, v15')
    k('s_barrier')
    red8(14)
    k('v_mul_f32 v14, s21, v14')
    rbf(14)
    k(f'v_add_f32 v14, {f32bits(1e-5):#x}, v14')
    rbf(14)
    k('v_sqrt_f32 v14, v14')
    k.nop(1)
    rbf(14)
    k('v_rcp_f32 v15, v14')
    rbf(12)
    k('s_waitcnt vmcnt(7)')
    k('v_mov_b32 v128, 0'); k('v_mov_b32 v129, 0')
    vO, vS = vX, 132
    for d in range(28):
        f = vF + 2*d
        k(f'v_pk_add_f32 {vr(f,2)}, {vr(f,2)}, v[12:13] op_sel_hi:[1,0] neg_lo:[0,1] neg_hi:[0,1]')
        k(f'v_cvt_pk_bf16_f32 v130, v{f}, v{f+1}')
        k(f'v_lshlrev_b32 v{f}, 16, v130')
        k(f'v_and_b32 v{f+1}, s20, v130')
        k(f'v_pk_mul_f32 v[130:131], {vr(f,2)}, v[14:15] op_sel:[0,1] op_sel_hi:[1,1]')
        k(f'v_pk_fma_f32 {vr(f,2)}, v[130:131], v[14:15], {vr(f,2)} op_sel_hi:[1,0,1] neg_lo:[1,0,0] neg_hi:[1,0,0]')
        k(f'v_pk_fma_f32 v[130:131], {vr(f,2)}, v[14:15], v[130:131] op_sel:[0,1,0] op_sel_hi:[1,1,1]')
        k(f'v_cvt_pk_bf16_f32 v{vO+d}, v130, v131')
        so = vS + 4*(d>>2) + {0:0, 1:2, 2:1, 3:3}[d&3]
        k(f'v_mov_b32 v{so}, v{vO+d}')
        k(f'v_dot2_f32_bf16 v{128+(d&1)}, v{vO+d}, v{vW+d}, v{128+(d&1)}')
        if d % 7 == 3: k('s_barrier')
    k(f's_mov_b32 s22, {XNR}'); k(f's_mov_b32 s23, {XNF}'); k(f's_mov_b32 s24, {XNS}')
    for i in range(7):
        k(f'buffer_store_dwordx4 {vr(vO+4*i,4)}, v5, {WS}, s22 offen offset:{i*128}')
        k(f'buffer_store_dwordx4 {vr(vO+4*i,4)}, v9, {WS}, s23 offen offset:{(i&1)*2048}')
        k(f'buffer_store_dwordx2 {vr(vS+4*i,2)}, v10, {WS}, s24 offen offset:{(i&1)*2048}')
        k(f'buffer_store_dwordx2 {vr(vS+4*i+2,2)}, v10, {WS}, s24 offen offset:{(i&1)*2048+256}')
        if i & 1:
            k('s_add_u32 s23, s23, 4096'); k('s_add_u32 s24, s24, 4096')
    k.nop(2)
    k('v_add_f32 v128, v128, v129')
    red8(128)
    rbf(128)
    k('v_lshlrev_b32 v3, 2, v3')
    k(f's_mov_b32 s22, {RR}')
    k(f'buffer_store_dword v128, v3, {WS}, s22 offen')
    if tl:
        k('s_waitcnt vmcnt(0)')
        k('s_memrealtime s[42:43]')
        k('s_lshl_b32 s44, s2, 5')
        k(f's_add_u32 s44, s44, {STAMP + 0xE0000}')
        k('s_waitcnt lgkmcnt(0)')
        k('v_mov_b32 v10, s42')
        k(f'buffer_store_dword v10, off, {WS}, s44 offset:24')
    k('s_cmp_ge_u32 s2, 28')
    k('s_cbranch_scc1 P_exit')
    k('v_min_u32 v160, -2, v160')
    k('v_lshlrev_b32 v11, 2, v2')
    k('s_lshl_b32 s21, s2, 8')
    k(f's_add_u32 s22, s21, {MEM}')
    k(f's_add_u32 s21, s21, {SENT_END - MEM_S}')
    k(f'buffer_store_dword v160, v11, {WS}, s22 offen')
    k(f'buffer_store_dword v160, v11, {WS}, s21 offen')
    k.label('P_exit')
    k('s_endpgm')
    return k
```

```python
from chain import *
from prep import srd, f32bits
WS = 's[4:7]'
sH, sBLK, sSEG, sQT, sCG, sJ = 60, 61, 62, 63, 64, 65
vLn, vL16 = 1, 2

def wait_flag(k, off_sgpr, target, vT, name='Lwf', sleep=8):
    lp, dn = k.newlabel(name), k.newlabel(name + 'd')
    k(f's_mov_b32 s{sCNT}, 0')
    k.label(lp)
    k(f'buffer_load_dword v{vT}, off, {WS}, s{off_sgpr} sc1')
    k(f's_add_u32 s{sCNT}, s{sCNT}, 1')
    k(f's_cmp_gt_u32 s{sCNT}, s{sT2}')
    k('s_cbranch_scc1 L_fail')
    k('s_waitcnt vmcnt(0)')
    k(f'v_cmp_le_u32 vcc, {target}, v{vT}')
    k(f's_cbranch_vccnz {dn}')
    k(f's_sleep {sleep}')
    k(f's_branch {lp}')
    k.label(dn)

def signal(k, off_sgpr, vT, val=1):
    dn = k.newlabel('Lsg')
    k('s_waitcnt vmcnt(0)')
    k('s_barrier')
    k(f's_cmp_lg_u32 s{sWAVE}, 0')
    k(f's_cbranch_scc1 {dn}')
    k('s_mov_b64 exec, 1')
    k(f'v_mov_b32 v{vT}, {val}')
    k(f'buffer_atomic_add v{vT}, off, {WS}, s{off_sgpr}')
    k('s_mov_b64 exec, -1')
    k.label(dn)

TL = [False]
ACC0 = 32
def acc(lt, tt): return ACC0 + 4*(lt*8 + tt)

def gemm(k, wbase, swap, ntt=8):
    vW = 8
    vXa = 15
    k.vmq = []
    nst = ntt // 4
    k(f's_mul_i32 s41, s{sWAVE}, {14336*nst}')
    k(f's_mul_i32 s40, s{sBLK}, {14336*ntt}')
    k(f's_add_u32 s40, s40, s41')
    k(f's_add_u32 s40, s40, {XNF}')
    k(f's_mul_i32 s42, s{sH}, {28*14336}')
    k(f's_mul_i32 s43, s{sWAVE}, {7*14336}')
    k(f's_add_u32 s42, s42, s43')
    k(f's_add_u32 s42, s42, {wbase}')
    for j in range(14):
        k(f's_add_u32 s{76+j}, s59, {j}')
        k(f's_sub_u32 s43, s{76+j}, 14')
        k(f's_cmp_ge_u32 s{76+j}, 14')
        k(f's_cselect_b32 s{76+j}, s43, s{76+j}')
        k(f's_lshl_b32 s{76+j}, s{76+j}, 10')
    for lt in range(7): k(f'v_add_u32 v{vW+lt}, {lt*14336}, v{vL16}')
    k(f'v_add_u32 v17, 14336, v{vL16}')
    k('s_barrier')
    def stx(j, t):
        k(f's_add_u32 s43, s41, s{76+j}')
        if t: k('s_add_u32 s43, s43, 14336')
        k('s_mov_b32 m0, s43')
        k(f's_add_u32 s44, s40, s{76+j}')
        k.vm(f'buffer_load_dwordx4 v{17 if t else vL16}, {WS}, s44 offen lds', f'x{j}')
    def ldw(j, lt):
        if lt == 0: k(f's_add_u32 s45, s42, s{76+j}')
        k.vm(f'buffer_load_dwordx4 {ar(28*(j%3)+4*lt,4)}, v{vW+lt}, {WS}, s45 offen', f'w{j}')
    def xaddr(j):
        k(f'v_add_u32 v{vXa}, s{76+j}, v{vL16}')
        k(f'v_add_u32 v{vXa+1}, 57344, v{vXa}')
    def ldx(j, tt): k(f'ds_read_b128 {ar(84+32*(j&1)+4*tt,4)}, v{vXa + (tt>>2)} offset:{(tt&3)*14336}')
    for j in range(2):
        for t in range(nst): stx(j, t)
        for lt in range(7): ldw(j, lt)
    for j in (2, 3):
        for t in range(nst): stx(j, t)
    xaddr(0)
    k.wvm('x0')
    k('s_barrier')
    if TL[0] and not swap:
        tstamp(k, 57, 12, 18); k.vmq.append('st')
    for tt in range(ntt): ldx(0, tt)
    for j in range(14):
        if j + 1 < 14: xaddr(j+1)
        k.wvm(f'w{j}', f'x{j+1}', extra='lgkmcnt(0)')
        if j + 1 < 14: k('s_barrier')
        for tt in range(ntt):
            for lt in range(7):
                x, w = ar(84+32*(j&1)+4*tt,4), ar(28*(j%3)+4*lt,4)
                a, b = (w, x) if swap else (x, w)
                c = '0' if j == 0 else vr(acc(lt,tt),4)
                k(f'v_mfma_f32_16x16x32_bf16 {vr(acc(lt,tt),4)}, {a}, {b}, {c}')
                if lt == 1 and j + 1 < 14: ldx(j+1, tt)
                if ntt == 8:
                    if lt == 3 and tt < 2 and j + 4 < 14: stx(j+4, tt)
                    if lt == 5 and tt >= 1 and j + 2 < 14: ldw(j+2, tt-1)
                else:
                    if lt == 3 and tt == 0 and j + 4 < 14: stx(j+4, 0)
                    if lt in (3, 5) and (tt, lt) != (0, 3) and j + 2 < 14: ldw(j+2, 2*tt + (lt == 5) - 1)

def task_U(k, half=False):
    nq = 2 if half else 4
    k.label('T_Uh' if half else 'T_U')
    k(f's_mul_i32 s59, s{sBLK}, 7' if half else f's_min_u32 s59, s{sBLK}, 13')
    gemm(k, WTB, False, 2*nq)
    if TL[0]: tstamp(k, 57, 8, 16)
    k(f's_mul_i32 s40, s{sBLK}, {nq*UF_SEG}')
    k(f's_lshl_b32 s41, s{sH}, 11')
    k(f's_add_u32 s40, s40, s41')
    k(f's_add_u32 s40, s40, {UF}')
    k(f's_mul_i32 s41, s{sWAVE}, 7')
    for lt in range(7):
        k(f's_add_u32 s42, s41, {lt}')
        k(f's_lshr_b32 s43, s42, 1')
        k(f's_lshl_b32 s43, s43, 15')
        k(f's_and_b32 s42, s42, 1')
        k(f's_lshl_b32 s42, s42, 10')
        k(f's_add_u32 s{44+lt}, s40, s43')
        k(f's_add_u32 s{44+lt}, s{44+lt}, s42')
    if OPT['uwin'] and not half:
        lw = k.newlabel('Luw')
        k(f"s_cmp_lt_u32 s{sBLK}, {OPT['uwin']}")
        k(f's_cbranch_scc1 {lw}')
        k(f's_lshl_b32 s40, s{sBLK}, 7')
        k(f"s_add_u32 s40, s40, {flag(F_U) - 128*OPT['uwin']}")
        wait_flag(k, 40, 32, 16)
        k.label(lw)
    for q in range(nq):
        for lt in range(7):
            a, b = acc(lt, 2*q), acc(lt, 2*q+1)
            k(f'v_cvt_pk_bf16_f32 v{a}, v{a}, v{a+1}')
            k(f'v_cvt_pk_bf16_f32 v{a+1}, v{a+2}, v{a+3}')
            k(f'v_cvt_pk_bf16_f32 v{a+2}, v{b}, v{b+1}')
            k(f'v_cvt_pk_bf16_f32 v{a+3}, v{b+2}, v{b+3}')
            k(f'buffer_store_dwordx4 {vr(a,4)}, v{vL16}, {WS}, s{44+lt} offen ' + OPT['ust'])
            k(f's_add_u32 s{44+lt}, s{44+lt}, {UF_SEG}')
    if half: k(f's_mov_b32 s40, {flag(F_U)}')
    else:
        k(f's_lshl_b32 s40, s{sBLK}, 7')
        k(f's_add_u32 s40, s40, {flag(F_U)}')
    signal(k, 40, 3, 1 if half else 2)
    k('s_branch W_next')

def xlane_red(k, op, m, t):
    for sw in ('v_permlane16_swap_b32', 'v_permlane32_swap_b32'):
        k(f'v_mov_b32 v{t}, v{m}')
        k.nop(2)
        k(f'{sw} v{m}, v{t}')
        k(f'{op} v{m}, v{m}, v{t}')

def task_P(k):
    k.label('T_P')
    k(f's_min_u32 s59, s{sBLK}, 13')
    gemm(k, WTA, True)
    vE, vO, vG, vI, vMK, vT = 16, 17, 18, 19, 20, 21
    k(f's_mul_i32 s40, s{sWAVE}, 7')
    k(f's_lshr_b32 s40, s40, 1')
    k(f's_lshl_b32 s40, s40, 10')
    k(f's_and_b32 s41, s{sWAVE}, 1')
    k(f's_lshl_b32 s42, s41, 3')
    k(f's_add_u32 s42, s42, s40')
    k(f's_mul_i32 s43, s41, 1016')
    k(f's_add_u32 s43, s43, 8')
    k(f's_add_u32 s43, s43, s40')
    k(f'v_add_u32 v{vE}, s42, v{vL16}')
    k(f'v_add_u32 v{vO}, s43, v{vL16}')
    k(f'v_add_u32 v{vT}, 57344, v{vE}')
    k(f'v_add_u32 v{vT+1}, 57344, v{vO}')
    k('s_barrier')
    for tt in range(8):
        for lt in range(7):
            a = acc(lt, tt)
            k(f'v_cvt_pk_bf16_f32 v{a}, v{a}, v{a+1}')
            k(f'v_cvt_pk_bf16_f32 v{a+1}, v{a+2}, v{a+3}')
            ad = (vE if lt % 2 == 0 else vO) if tt < 4 else (vT if lt % 2 == 0 else vT+1)
            k(f'ds_write_b64 v{ad}, {vr(a,2)} offset:{(tt&3)*14336 + (lt>>1)*1024}')
    k(f's_lshl_b32 s{sSEG}, s{sBLK}, 2')
    k(f's_add_u32 s{sSEG}, s{sSEG}, s{sWAVE}')
    k(f's_mul_i32 s40, s{sSEG}, 28672')
    k(f's_add_u32 s40, s40, {XNS}')
    vKT, vKM, vS = 32, 144, 200
    k('s_waitcnt lgkmcnt(0)')
    for f in range(28):
        k(f'buffer_load_dwordx4 {vr(vKT+4*f,4)}, v{vL16}, {WS}, s40 offen offset:{(f&3)*1024}')
        if (f&3) == 3: k('s_add_u32 s40, s40, 4096')
    k('s_barrier')
    k(f's_mul_i32 s41, s{sWAVE}, 28672')
    k(f'v_add_u32 v{vT}, s41, v{vL16}')
    for f in range(28): k(f'ds_read_b128 {ar(4*f,4)}, v{vT} offset:{f*1024}')
    k(f'v_lshrrev_b32 v{vG}, 4, v{vLn}')
    k(f'v_and_b32 v{vI}, 15, v{vLn}')
    k(f'v_lshrrev_b32 v{vMK}, 1, v{vG}')
    k(f'v_lshlrev_b32 v{vMK}, 8, v{vMK}')
    k(f'v_and_b32 v{vT}, 7, v{vI}')
    k(f'v_lshl_add_u32 v{vMK}, v{vT}, 4, v{vMK}')
    k(f'v_and_b32 v{vT}, 1, v{vG}')
    k(f'v_lshl_add_u32 v{vMK}, v{vT}, 7, v{vMK}')
    k(f'v_lshlrev_b32 v{vT}, 2, v{vG}')
    for r in range(4):
        k(f'v_cmp_gt_u32 s[{44+2*r}:{45+2*r}], v{vT}, v{vI}')
        if r < 3: k(f'v_add_u32 v{vT}, 1, v{vT}')
    k(f'v_cmp_gt_u32 s[52:53], 2, v{vG}')
    St = {(1,0): vS, (1,1): vS+4, (2,1): vS+8, (0,0): vS+12, (0,1): vS+16}
    k('s_waitcnt vmcnt(0) lgkmcnt(0)')
    for ks in range(14):
        for (kt, qt) in ((1,0), (1,1), (2,1)):
            c = '0' if ks == 0 else vr(St[kt,qt],4)
            k(f'v_mfma_f32_16x16x32_bf16 {vr(St[kt,qt],4)}, {vr(vKT+56*(kt-1)+4*ks,4)}, {ar(56*qt+4*ks,4)}, {c}')
    if TL[0]: tstamp(k, 57, 8, vT)
    k(f's_add_u32 s40, s{sSEG}, 63')
    k(f's_and_b32 s40, s40, 63')
    k(f's_mul_i32 s40, s40, {MEM_S}')
    k(f's_add_u32 s40, s40, {MEMX}')
    k(f's_add_u32 s41, s40, 4096')
    lp, dn = k.newlabel('Lpm'), k.newlabel('Lpd')
    k(f's_mov_b32 s{sCNT}, 0')
    k.label(lp)
    for ks in range(14):
        k(f'buffer_load_dwordx4 {vr(vKM+4*ks,4)}, v{vMK}, {WS}, s{40 if ks < 8 else 41} offen offset:{(ks&7)*512} sc1')
    k(f's_add_u32 s{sCNT}, s{sCNT}, 1')
    k(f's_cmp_gt_u32 s{sCNT}, s{sT2}')
    k('s_cbranch_scc1 L_fail')
    k('s_waitcnt vmcnt(0)')
    k(f'v_max3_u32 v{vT}, v{vKM}, v{vKM+1}, v{vKM+2}')
    for r in range(3, 55, 2): k(f'v_max3_u32 v{vT}, v{vT}, v{vKM+r}, v{vKM+r+1}')
    k(f'v_max_u32 v{vT}, v{vT}, v{vKM+55}')
    k(f'v_cmp_eq_u32 vcc, -1, v{vT}')
    k(f's_cbranch_vccz {dn}')
    l2 = k.newlabel('Lpl')
    k.label(l2)
    k('s_sleep 8')
    k(f'buffer_load_dword v{vT}, v{vMK}, {WS}, s41 offen offset:2560 sc1')
    k(f's_add_u32 s{sCNT}, s{sCNT}, 1')
    k(f's_cmp_gt_u32 s{sCNT}, s{sT2}')
    k('s_cbranch_scc1 L_fail')
    k('s_waitcnt vmcnt(0)')
    k(f'v_cmp_eq_u32 vcc, -1, v{vT}')
    k(f's_cbranch_vccnz {l2}')
    k(f's_branch {lp}')
    k.label(dn)
    if TL[0]: tstamp(k, 57, 12, vT)
    for ks in range(14):
        for qt in range(2):
            c = '0' if ks == 0 else vr(St[0,qt],4)
            k(f'v_mfma_f32_16x16x32_bf16 {vr(St[0,qt],4)}, {vr(vKM+4*ks,4)}, {ar(56*qt+4*ks,4)}, {c}')
    k(f's_mul_i32 s40, s{sSEG}, {PT_SEG}')
    k(f's_add_u32 s40, s40, {PT}')
    k(f's_lshl_b32 s41, s{sH}, 11')
    k(f's_add_u32 s41, s41, s40')
    k(f's_lshr_b32 s42, s{sH}, 1')
    k(f's_lshl_b32 s42, s42, 11')
    k(f's_and_b32 s43, s{sH}, 1')
    k(f's_lshl_b32 s43, s43, 2')
    k(f's_add_u32 s42, s42, s43')
    k(f's_add_u32 s42, s42, s40')
    k(f's_add_u32 s42, s42, 32768')
    k(f'v_mov_b32 v{vT+2}, 0xff800000')
    k.nop(2)
    for d in ((1,0), (2,1)):
        for r in range(4):
            k(f'v_cndmask_b32 v{St[d]+r}, v{St[d]+r}, v{vT+2}, s[{44+2*r}:{45+2*r}]')
    for qt in range(2):
        tiles = [St[0,qt], St[1,qt]] + ([St[2,1]] if qt else [])
        regs = [t + r for t in tiles for r in range(4)]
        m, t, l = 24, 26, 28
        k(f'v_max3_f32 v{m}, v{regs[0]}, v{regs[1]}, v{regs[2]}')
        for i in range(3, len(regs) - 1, 2): k(f'v_max3_f32 v{m}, v{m}, v{regs[i]}, v{regs[i+1]}')
        k(f'v_max_f32 v{m}, v{m}, v{regs[-1]}')
        xlane_red(k, 'v_max_f32', m, t)
        for i in range(0, len(regs), 2):
            k(f'v_pk_add_f32 {vr(regs[i],2)}, {vr(regs[i],2)}, {vr(m,2)} op_sel_hi:[1,0] neg_lo:[0,1] neg_hi:[0,1]')
        for r in regs: k(f'v_exp_f32 v{r}, v{r}')
        k.nop(1)
        k(f'v_pk_add_f32 {vr(l,2)}, {vr(regs[0],2)}, {vr(regs[2],2)}')
        k(f'v_add_f32 v{l}, v{l}, v{l+1}')
        k(f'v_cndmask_b32 v{l}, 0, v{l}, s[52:53]')
        k(f'v_mov_b32 v{l+1}, 0')
        for i in range(4, len(regs), 2): k(f'v_pk_add_f32 {vr(l,2)}, {vr(l,2)}, {vr(regs[i],2)}')
        k(f'v_add_f32 v{l}, v{l}, v{l+1}')
        xlane_red(k, 'v_add_f32', l, t)
        k(f'v_rcp_f32 v{l}, v{l}')
        k.nop(1)
        for i in range(0, len(regs), 2):
            k(f'v_pk_mul_f32 {vr(regs[i],2)}, {vr(regs[i],2)}, {vr(l,2)} op_sel_hi:[1,0]')
        o = 220 + 8*qt
        k(f'v_cvt_pk_bf16_f32 v{o}, v{regs[4]}, v{regs[5]}')
        k(f'v_cvt_pk_bf16_f32 v{o+1}, v{regs[6]}, v{regs[7]}')
        if qt:
            k(f'v_cvt_pk_bf16_f32 v{o+2}, v{regs[8]}, v{regs[9]}')
            k(f'v_cvt_pk_bf16_f32 v{o+3}, v{regs[10]}, v{regs[11]}')
        else:
            k(f'v_mov_b64 {vr(o+2,2)}, 0')
        k(f'v_cvt_pk_bf16_f32 v{o+4}, v{regs[0]}, v{regs[1]}')
        k(f'v_cvt_pk_bf16_f32 v{o+5}, v{regs[2]}, v{regs[3]}')
        k(f'buffer_store_dwordx4 {vr(o,4)}, v{vL16}, {WS}, s41 offen offset:{qt*1024} sc1')
        k(f'buffer_store_dword v{o+4}, v{vL16}, {WS}, s42 offen offset:{qt*1024} sc1')
        k(f'buffer_store_dword v{o+5}, v{vL16}, {WS}, s42 offen offset:{qt*1024+8} sc1')
    k(f's_lshl_b32 s40, s{sBLK}, 7')
    k(f's_add_u32 s40, s40, {flag(F_P)}')
    signal(k, 40, 3)
    k('s_branch W_next')

def rbf(k, v, sMaskHi):
    k(f'v_cvt_pk_bf16_f32 v{v}, v{v}, v{v}')
    k(f'v_and_b32 v{v}, s{sMaskHi}, v{v}')

def task_V(k):
    k.label('T_V')
    vU, vUM, vP, vD, vT = 32, 96, 128, 152, 16
    k(f's_lshr_b32 s{sBLK}, s{sSEG}, 2')
    k(f's_lshl_b32 s40, s{sBLK}, 7')
    k(f's_add_u32 s40, s40, {flag(F_U)}')
    wait_flag(k, 40, 32, vT)
    k(f's_mul_i32 s40, s{sSEG}, {UF_SEG}')
    k(f's_lshl_b32 s41, s{sCG}, 16')
    k(f's_add_u32 s40, s40, s41')
    k(f's_lshl_b32 s41, s{sWAVE}, 13')
    k(f's_add_u32 s40, s40, s41')
    k(f's_add_u32 s40, s40, {UF}')
    for bb in range(2):
        for hp in range(2):
            k(f's_add_u32 s41, s40, {bb*32768 + hp*4096}')
            for f in range(4):
                hh, T = 2*hp + (f>>1), f&1
                k(f'buffer_load_dwordx4 {vr(vU+16*(2*bb+T)+4*hh,4)}, v{vL16}, {WS}, s41 offen offset:{f*1024} sc1')
    srd(k, 68, 0, 1835008); srd(k, 72, 96, 1835008)
    vRow, vOff = vT+1, vT+2
    k(f's_lshl_b32 s42, s{sSEG}, 5')
    k(f's_lshl_b32 s43, s{sQT}, 4')
    k(f's_add_u32 s42, s42, s43')
    k(f'v_and_b32 v{vRow}, 15, v{vLn}')
    k(f'v_add_u32 v{vRow}, s42, v{vRow}')
    k(f'v_mul_u32_u24 v{vOff}, 896, v{vRow}')
    k(f'v_lshrrev_b32 v{vT+3}, 4, v{vLn}')
    k(f's_lshl_b32 s42, s{sCG}, 7')
    k(f's_lshl_b32 s43, s{sWAVE}, 5')
    k(f's_add_u32 s42, s42, s43')
    k(f'v_lshl_add_u32 v{vT+3}, v{vT+3}, 3, s42')
    k(f'v_add_u32 v{vOff}, v{vOff}, v{vT+3}')
    k(f's_mov_b32 s43, {XNR}')
    k('s_waitcnt lgkmcnt(0)')
    k('s_and_b32 s69, s69, 0xffff'); k('s_and_b32 s73, s73, 0xffff')
    vXr, vXn = vT+4, vT+6
    k(f'buffer_load_dwordx2 {vr(vXr,2)}, v{vOff}, s[68:71], 0 offen')
    k(f'buffer_load_dwordx2 {vr(vXn,2)}, v{vOff}, {WS}, s43 offen')
    k(f's_mov_b32 s40, {flag(F_M2)}')
    wait_flag(k, 40, 28, vT)
    vIx = 168
    k(f's_mov_b32 s40, {IDX}')
    for j in range(4): k(f'buffer_load_dwordx4 {vr(vIx+4*j,4)}, off, {WS}, s40 offset:{16*j} sc1')
    vSel, vSig, vY = 184, 185, 188
    k(f'v_mov_b32 v{vSel}, 0x40000000')
    k(f'v_mov_b32 v{vSig}, 0')
    k('s_waitcnt vmcnt(0)')
    for j in range(8):
        k(f'v_cmp_eq_u32 vcc, v{vIx+j}, v{vRow}')
        k(f'v_mov_b32 v{vT}, {j*1792}')
        k('s_nop 0')
        k(f'v_cndmask_b32 v{vSel}, v{vSel}, v{vT}, vcc')
        k(f'v_cndmask_b32 v{vSig}, v{vSig}, v{vIx+8+j}, vcc')
    k(f'v_lshl_add_u32 v{vSel}, v{vT+3}, 1, v{vSel}')
    for q in range(4):
        k(f's_mov_b32 s40, {UPD + q*14336}')
        k(f'buffer_load_dwordx4 {vr(vY+4*q,4)}, v{vSel}, {WS}, s40 offen sc1')
    k(f's_lshl_b32 s40, s{sBLK}, 7')
    k(f's_add_u32 s40, s40, {flag(F_P)}')
    wait_flag(k, 40, 16, vT)
    if TL[0]: tstamp(k, 57, 8, vT)
    k(f's_mul_i32 s40, s{sSEG}, {PT_SEG}')
    k(f's_lshl_b32 s41, s{sQT}, 10')
    k(f's_add_u32 s40, s40, s41')
    k(f's_add_u32 s40, s40, {PT}')
    k(f's_lshl_b32 s41, s{sWAVE}, 13')
    k(f's_add_u32 s41, s41, s40')
    k(f's_add_u32 s42, s41, 4096')
    for hh in range(4):
        k(f'buffer_load_dwordx4 {vr(vP+4*hh,4)}, v{vL16}, {WS}, s{41 if hh<2 else 42} offen offset:{(hh&1)*2048} sc1')
    k(f's_lshl_b32 s41, s{sWAVE}, 12')
    k(f's_add_u32 s41, s41, s40')
    k(f's_add_u32 s41, s41, 32768')
    for u in range(2):
        k(f'buffer_load_dwordx4 {vr(vP+16+4*u,4)}, v{vL16}, {WS}, s41 offen offset:{u*2048} sc1')
    k(f's_lshl_b32 s40, s{sSEG}, 7')
    k(f's_add_u32 s40, s40, {flag(F_UM)}')
    wait_flag(k, 40, 14, vT)
    if TL[0]: tstamp(k, 57, 12, vT)
    k(f's_mul_i32 s40, s{sSEG}, {UM_SEG}')
    k(f's_mul_i32 s41, s{sWAVE}, {2*28672}')
    k(f's_add_u32 s40, s40, s41')
    k(f's_lshl_b32 s41, s{sCG}, 12')
    k(f's_add_u32 s40, s40, s41')
    k(f's_add_u32 s40, s40, {UM}')
    k(f's_add_u32 s41, s40, 28672')
    for u in range(2):
        for ct in range(4):
            k(f'buffer_load_dwordx4 {vr(vUM+8*ct+4*u,4)}, v{vL16}, {WS}, s{40+u} offen offset:{ct*1024} sc1')
    k('s_mov_b32 s54, 0xffff0000')
    for h in range(2):
        k(f'v_pk_add_f32 {vr(vY+2*h,2)}, {vr(vY+2*h,2)}, {vr(vY+4+2*h,2)}')
        k(f'v_pk_add_f32 {vr(vY+8+2*h,2)}, {vr(vY+8+2*h,2)}, {vr(vY+12+2*h,2)}')
        k(f'v_pk_add_f32 {vr(vY+2*h,2)}, {vr(vY+2*h,2)}, {vr(vY+8+2*h,2)}')
    vB, vXf = vY+4, vY+8
    for r in range(4):
        rbf(k, vY+r, 54)
        k(f'v_mul_f32 v{vY+r}, v{vY+r}, v{vSig}')
        rbf(k, vY+r, 54)
        src = vXn + (r>>1)
        k(f'v_lshlrev_b32 v{vB+r}, 16, v{src}' if r % 2 == 0 else f'v_and_b32 v{vB+r}, s54, v{src}')
        k(f'v_add_f32 v{vB+r}, v{vB+r}, v{vY+r}')
        rbf(k, vB+r, 54)
        src = vXr + (r>>1)
        k(f'v_lshlrev_b32 v{vXf+r}, 16, v{src}' if r % 2 == 0 else f'v_and_b32 v{vXf+r}, s54, v{src}')
    k('s_barrier')
    k('s_waitcnt vmcnt(8)')
    for hh in range(4):
        for ct in range(4):
            c = '0' if hh == 0 else vr(vD+4*ct,4)
            k(f'v_mfma_f32_16x16x32_bf16 {vr(vD+4*ct,4)}, {vr(vU+16*ct+4*hh,4)}, {vr(vP+4*hh,4)}, {c}')
    k('s_waitcnt vmcnt(0)')
    for u in range(2):
        for ct in range(4):
            k(f'v_mfma_f32_16x16x32_bf16 {vr(vD+4*ct,4)}, {vr(vUM+8*ct+4*u,4)}, {vr(vP+16+4*u,4)}, {vr(vD+4*ct,4)}')
    k(f's_lshl_b32 s40, s{sWAVE}, 12')
    k(f'v_add_u32 v{vT}, s40, v{vL16}')
    k(f's_lshl_b32 s40, s{sWAVE}, 10')
    k(f'v_add_u32 v{vT+3}, s40, v{vL16}')
    k.nop(2)
    for ct in range(4): k(f'ds_write_b128 v{vT}, {vr(vD+4*ct,4)} offset:{ct*1024}')
    k('s_waitcnt lgkmcnt(0)')
    k('s_barrier')
    for w in range(4): k(f'ds_read_b128 {vr(vU+4*w,4)}, v{vT+3} offset:{w*4096}')
    k('s_waitcnt lgkmcnt(0)')
    for h in range(2):
        k(f'v_pk_add_f32 {vr(vU+2*h,2)}, {vr(vU+2*h,2)}, {vr(vU+4+2*h,2)}')
        k(f'v_pk_add_f32 {vr(vU+8+2*h,2)}, {vr(vU+8+2*h,2)}, {vr(vU+12+2*h,2)}')
        k(f'v_pk_add_f32 {vr(vU+2*h,2)}, {vr(vU+2*h,2)}, {vr(vU+8+2*h,2)}')
    for r in range(4):
        rbf(k, vU+r, 54)
        k(f'v_add_f32 v{vU+r}, v{vU+r}, v{vXf+r}')
        rbf(k, vU+r, 54)
        k(f'v_add_f32 v{vU+r}, v{vU+r}, v{vB+r}')
    k(f'v_cvt_pk_bf16_f32 v{vU}, v{vU}, v{vU+1}')
    k(f'v_cvt_pk_bf16_f32 v{vU+1}, v{vU+2}, v{vU+3}')
    k(f'buffer_store_dwordx2 {vr(vU,2)}, v{vOff}, s[72:75], 0 offen')
    k('s_branch W_next')

def moe_stage(k, srdreg, pitch, soff, lds, vT):
    k(f'v_lshrrev_b32 v{vT}, 3, v0')
    k(f'v_and_b32 v{vT+1}, 7, v0')
    k(f's_mov_b32 s44, {pitch}')
    k(f'v_mul_lo_u32 v{vT+2}, v{vT}, s44')
    k(f'v_lshl_add_u32 v{vT+2}, v{vT+1}, 4, v{vT+2}')
    k(f'v_bfe_u32 v{vT+3}, v{vT}, 1, 1')
    k(f'v_bfe_u32 v{vT+4}, v{vT}, 3, 1')
    k(f'v_lshl_add_u32 v{vT+3}, v{vT+4}, 1, v{vT+3}')
    k(f'v_lshlrev_b32 v{vT+3}, 1, v{vT+3}')
    k(f'v_xor_b32 v{vT+3}, v{vT+3}, v{vT+1}')
    k(f'v_lshlrev_b32 v{vT+3}, 4, v{vT+3}')
    k(f'v_lshl_add_u32 v{vT+3}, v{vT}, 7, v{vT+3}')
    if lds: k(f'v_add_u32 v{vT+3}, {lds}, v{vT+3}')
    k(f's_mov_b32 s44, s{soff}')
    for r in range(14):
        k(f'buffer_load_dwordx4 {vr(32+4*r,4)}, v{vT+2}, s[{srdreg}:{srdreg+3}], s44 offen')
        k(f's_add_u32 s44, s44, {32*pitch}')
    for r in range(14):
        k(f's_waitcnt vmcnt({13-r})')
        k(f'ds_write_b128 v{vT+3}, {vr(32+4*r,4)} offset:{r*4096}')

def moe_mm(k, lds, vA, vD, vAd, vB):
    for ks in range(14):
        for hh in range(2): k(f'ds_read_b64_tr_b16 {vr(vB+4*ks+2*hh,2)}, v{vAd} offset:{lds + ks*4096 + hh*512}')
    k('s_waitcnt lgkmcnt(0)')
    for ks in range(14):
        k(f'v_mfma_f32_16x16x32_bf16 {vr(vD,4)}, {vr(vA+4*ks,4)}, {vr(vB+4*ks,4)}, {"0" if ks == 0 else vr(vD,4)}')

def moe_traddr(k, vAd, vT):
    k(f'v_bfe_u32 v{vAd}, v{vLn}, 2, 2')
    k(f'v_lshrrev_b32 v{vT}, 4, v{vLn}')
    k(f'v_lshl_add_u32 v{vAd}, v{vT}, 3, v{vAd}')
    k(f'v_lshlrev_b32 v{vAd}, 7, v{vAd}')
    k(f'v_and_b32 v{vT}, 3, v{vLn}')
    k(f'v_lshl_add_u32 v{vAd}, v{vT}, 3, v{vAd}')
    k(f'v_bfe_u32 v{vT}, v{vLn}, 3, 1')
    k(f'v_bfe_u32 v{vT+1}, v{vLn}, 4, 1')
    k(f'v_lshl_add_u32 v{vT}, v{vT+1}, 1, v{vT}')
    k(f'v_xor_b32 v{vT}, s{sWAVE}, v{vT}')
    k(f'v_lshl_add_u32 v{vAd}, v{vT}, 5, v{vAd}')

def sigmoid(k, v, t):
    k(f'v_mul_f32 v{t}, {f32bits(-1.4426950408889634):#x}, v{v}')
    k(f'v_exp_f32 v{t}, v{t}')
    k.nop(1)
    k(f'v_add_f32 v{t}, 1.0, v{t}')
    k(f'v_rcp_f32 v{v}, v{t}')
    k.nop(1)

def task_M1(k):
    k.label('T_M1')
    vT = 16
    srd(k, 68, 72, 1605632); srd(k, 72, 80, 1605632)
    vK = 160
    k(f's_mov_b32 s40, {RR}')
    k(f's_add_u32 s41, s40, 4096')
    for j in range(8): k(f'buffer_load_dwordx4 {vr(vK+4*j,4)}, v{vL16}, {WS}, s{40 + (j>>2)} offen offset:{(j&3)*1024}')
    k(f'v_lshlrev_b32 v{vT}, 2, v{vLn}')
    k(f'v_sub_u32 v{vT}, 0xffff, v{vT}')
    k('s_mov_b32 s54, 0xffff0000')
    k('s_waitcnt vmcnt(0) lgkmcnt(0)')
    k('s_and_b32 s69, s69, 0xffff'); k('s_and_b32 s73, s73, 0xffff')
    for j in range(32):
        r = vK + j
        k(f'v_ashrrev_i32 v{vT+1}, 31, v{r}')
        k(f'v_or_b32 v{vT+1}, 0x80000000, v{vT+1}')
        k(f'v_xor_b32 v{r}, v{r}, v{vT+1}')
        k(f'v_subrev_u32 v{vT+1}, {(j>>2)*256 + (j&3)}, v{vT}')
        k(f'v_and_or_b32 v{r}, v{r}, s54, v{vT+1}')
    m, t = vT+2, vT+3
    for it in range(8):
        k(f'v_max3_u32 v{m}, v{vK}, v{vK+1}, v{vK+2}')
        for r in range(3, 31, 2): k(f'v_max3_u32 v{m}, v{m}, v{vK+r}, v{vK+r+1}')
        k(f'v_max_u32 v{m}, v{m}, v{vK+31}')
        for rot in (8, 4, 2, 1):
            k.nop(2)
            k(f'v_max_u32_dpp v{m}, v{m}, v{m} row_ror:{rot} row_mask:0xf bank_mask:0xf')
        xlane_red(k, 'v_max_u32', m, t)
        k.nop(1)
        k(f'v_readfirstlane_b32 s{76+it}, v{m}')
        if it < 7:
            for j in range(32):
                k(f'v_cmp_eq_u32 vcc, v{m}, v{vK+j}')
                k('s_nop 1')
                k(f'v_cndmask_b32 v{vK+j}, v{vK+j}, 0, vcc')
    vKy, vIx = vT+4, vT+5
    k(f'v_mov_b32 v{vKy}, s76')
    k(f'v_and_b32 v{t}, 7, v{vLn}')
    for j in range(1, 8):
        k(f'v_cmp_eq_u32 vcc, {j}, v{t}')
        k(f'v_mov_b32 v{m}, s{76+j}')
        k('s_nop 0')
        k(f'v_cndmask_b32 v{vKy}, v{vKy}, v{m}, vcc')
    k(f'v_and_b32 v{vIx}, 0xffff, v{vKy}')
    k(f'v_sub_u32 v{vIx}, 0xffff, v{vIx}')
    sk = k.newlabel('Lm1s')
    k(f's_or_b32 s40, s{sJ}, s{sWAVE}')
    k('s_cmp_lg_u32 s40, 0')
    k(f's_cbranch_scc1 {sk}')
    k(f'v_and_b32 v{m}, s54, v{vKy}')
    k(f'v_not_b32 v{t}, v{m}')
    k(f'v_ashrrev_i32 v{t}, 31, v{t}')
    k(f'v_or_b32 v{t}, 0x80000000, v{t}')
    k(f'v_xor_b32 v{m}, v{m}, v{t}')
    k(f'v_and_b32 v{m}, s54, v{m}')
    sigmoid(k, m, t)
    rbf(k, m, 54)
    k(f'v_lshlrev_b32 v{t}, 2, v{vLn}')
    k(f's_mov_b32 s40, {IDX}')
    k('s_mov_b64 exec, 0xff')
    k(f'buffer_store_dword v{vIx}, v{t}, {WS}, s40 offen sc1')
    k(f'buffer_store_dword v{m}, v{t}, {WS}, s40 offen offset:32 sc1')
    k('s_mov_b64 exec, -1')
    k.label(sk)
    vA = 96
    k(f'v_mul_u32_u24 v{m}, 896, v{vIx}')
    k(f'v_lshrrev_b32 v{t}, 4, v{vLn}')
    k(f'v_lshl_add_u32 v{m}, v{t}, 4, v{m}')
    k(f's_mov_b32 s40, {XNR}')
    for ks in range(14): k(f'buffer_load_dwordx4 {vr(vA+4*ks,4)}, v{m}, {WS}, s40 offen offset:{ks*64}')
    k('s_barrier')
    k(f's_lshl_b32 s43, s{sJ}, 7')
    moe_stage(k, 68, 3584, 43, 0, 24)
    moe_stage(k, 72, 3584, 43, 57344, 24)
    vAd = vT
    moe_traddr(k, vAd, vT+1)
    k(f'v_add_u32 v{vT+1}, 57344, v{vAd}')
    k('s_waitcnt lgkmcnt(0)')
    k('s_barrier')
    vG, vUu = 24, 28
    moe_mm(k, 0, vA, vG, vAd, 32)
    moe_mm(k, 0, vA, vUu, vT+1, 160)
    k(f'v_lshrrev_b32 v{vT+2}, 4, v{vLn}')
    k(f'v_mul_u32_u24 v{vT+2}, {4*3584}, v{vT+2}')
    k(f'v_and_b32 v{vT+3}, 15, v{vLn}')
    k(f'v_lshl_add_u32 v{vT+2}, v{vT+3}, 1, v{vT+2}')
    k(f's_lshl_b32 s40, s{sWAVE}, 5')
    k(f's_add_u32 s40, s40, s43')
    k(f's_add_u32 s40, s40, {HB}')
    k.nop(4)
    k('s_mov_b32 exec_hi, 0')
    for r in range(4):
        rbf(k, vG+r, 54); rbf(k, vUu+r, 54)
        k(f'v_mov_b32 v{vT+4}, v{vG+r}')
        sigmoid(k, vT+4, vT+5)
        k(f'v_mul_f32 v{vG+r}, v{vG+r}, v{vT+4}')
        rbf(k, vG+r, 54)
        k(f'v_mul_f32 v{vG+r}, v{vG+r}, v{vUu+r}')
        k(f'v_cvt_pk_bf16_f32 v{vG+r}, v{vG+r}, v{vG+r}')
        k(f'buffer_store_short v{vG+r}, v{vT+2}, {WS}, s40 offen sc1')
        k(f's_add_u32 s40, s40, 3584')
    k('s_mov_b64 exec, -1')
    k(f's_mov_b32 s40, {flag(F_M1)}')
    signal(k, 40, 3)
    k('s_branch W_next')

def task_M2(k):
    k.label('T_M2')
    vT = 16
    srd(k, 68, 88, 1605632)
    k(f's_mul_hi_u32 s45, s{sJ}, {(1<<32)//7 + 1}')
    k(f's_mul_i32 s46, s45, 7')
    k(f's_sub_u32 s46, s{sJ}, s46')
    k(f's_mul_i32 s43, s45, {448*896}')
    k(f's_lshl_b32 s40, s46, 7')
    k(f's_add_u32 s43, s43, s40')
    k('s_waitcnt lgkmcnt(0)')
    k('s_and_b32 s69, s69, 0xffff')
    k('s_barrier')
    moe_stage(k, 68, 896, 43, 0, 24)
    vAd = vT
    moe_traddr(k, vAd, vT+1)
    k(f's_mov_b32 s40, {flag(F_M1)}')
    wait_flag(k, 40, 28, vT+1)
    vA = 96
    k(f'v_and_b32 v{vT+1}, 7, v{vLn}')
    k(f'v_mul_u32_u24 v{vT+1}, 3584, v{vT+1}')
    k(f'v_lshrrev_b32 v{vT+2}, 4, v{vLn}')
    k(f'v_lshl_add_u32 v{vT+1}, v{vT+2}, 4, v{vT+1}')
    k(f's_mul_i32 s40, s45, 896')
    k(f's_add_u32 s40, s40, {HB}')
    for ks in range(14): k(f'buffer_load_dwordx4 {vr(vA+4*ks,4)}, v{vT+1}, {WS}, s40 offen offset:{ks*64} sc1')
    k('s_waitcnt vmcnt(0) lgkmcnt(0)')
    k('s_barrier')
    moe_mm(k, 0, vA, 24, vAd, 32)
    k(f'v_mul_u32_u24 v{vT+2}, {4*1792}, v{vT+2}')
    k(f'v_and_b32 v{vT+3}, 15, v{vLn}')
    k(f'v_lshl_add_u32 v{vT+2}, v{vT+3}, 2, v{vT+2}')
    k(f's_mul_i32 s40, s45, 14336')
    k(f's_lshl_b32 s41, s46, 8')
    k(f's_add_u32 s40, s40, s41')
    k(f's_lshl_b32 s41, s{sWAVE}, 6')
    k(f's_add_u32 s40, s40, s41')
    k(f's_add_u32 s40, s40, {UPD}')
    k('s_mov_b32 exec_hi, 0')
    for r in range(4):
        k(f'buffer_store_dword v{24+r}, v{vT+2}, {WS}, s40 offen sc1')
        k(f's_add_u32 s40, s40, 1792')
    k('s_mov_b64 exec, -1')
    k(f's_mov_b32 s40, {flag(F_M2)}')
    signal(k, 40, 3)
    k('s_branch W_next')

LTK = 163832
Q_U2, Q_M1, Q_M2, Q_P0 = 0, 48, 76, 104
Q_G = Q_P0 + 48
Q_T = Q_G + 13*72
Q_END = Q_T + 3*56
DBG = 's[8:11]'

def tstamp(k, sOff, off, vT=3):
    k('s_memrealtime s[30:31]')
    k('s_waitcnt lgkmcnt(0)')
    k(f'v_mov_b32 v{vT}, s30')
    k(f'buffer_store_dword v{vT}, off, {WS}, s{sOff} offset:{off}')

def worker(k, pref=0, tl=False):
    TL[0] = tl
    def tl_start(base):
        if not tl: return
        k(f's_add_u32 s57, s42, {base}')
        k('s_lshl_b32 s57, s57, 4')
        k(f's_add_u32 s57, s57, {STAMP + 0x40000}')
        tstamp(k, 57, 0)
    k.label('L_worker')
    k(f'v_and_b32 v{vLn}, 63, v0')
    k(f'v_lshlrev_b32 v{vL16}, 4, v{vLn}')
    k(f's_mov_b32 s{sT2}, {POLL_LIMIT}')
    k(f's_mov_b32 s{sSTEP}, 255')
    k(f's_add_u32 s42, s2, {7 - pref}')
    k('s_and_b32 s42, s42, 7')
    k('s_lshl_b32 s42, s42, 5')
    k('s_lshr_b32 s41, s2, 3')
    k('s_add_u32 s42, s42, s41')
    tl_start(1536)
    k(f's_mul_hi_u32 s{sH}, s42, {(1<<32)//14 + 1}')
    k(f's_mul_i32 s41, s{sH}, 14')
    k(f's_sub_u32 s{sBLK}, s42, s41')
    k(f's_cmp_lt_u32 s{sBLK}, 2')
    k('s_cbranch_scc1 T_Uh')
    k(f's_sub_u32 s{sBLK}, s{sBLK}, 1')
    k('s_branch T_U')
    k.label('W_next')
    if tl: tstamp(k, 57, 4)
    k(f's_cmp_lg_u32 s{sWAVE}, 0')
    k('s_cbranch_scc1 W_bc')
    k('s_mov_b64 exec, 1')
    k('v_mov_b32 v3, 1')
    k(f'buffer_atomic_add v3, off, {DBG}, 0 offset:192 sc0')
    k(f'v_mov_b32 v4, {LTK}')
    k('s_waitcnt vmcnt(0)')
    k('ds_write_b32 v4, v3')
    k('s_waitcnt lgkmcnt(0)')
    k('s_mov_b64 exec, -1')
    k.label('W_bc')
    k('s_barrier')
    k(f'v_mov_b32 v4, {LTK}')
    k('ds_read_b32 v3, v4')
    k('s_waitcnt lgkmcnt(0)')
    k('v_readfirstlane_b32 s42, v3')
    k('s_nop 3')
    tl_start(0)
    k(f's_cmp_ge_u32 s42, {Q_END}')
    k('s_cbranch_scc1 L_exit')
    k(f's_cmp_lt_u32 s42, {Q_M1}')
    k('s_cbranch_scc0 W_q1')
    k(f's_and_b32 s{sH}, s42, 15')
    k(f's_lshr_b32 s{sBLK}, s42, 4')
    k(f's_add_u32 s{sBLK}, s{sBLK}, 13')
    k('s_branch T_U')
    k.label('W_q1')
    k(f's_sub_u32 s{sJ}, s42, {Q_M1}')
    k(f's_cmp_lt_u32 s42, {Q_M2}')
    k('s_cbranch_scc1 T_M1')
    k(f's_sub_u32 s{sJ}, s42, {Q_M2}')
    k(f's_cmp_lt_u32 s42, {Q_P0}')
    k('s_cbranch_scc1 T_M2')
    k(f's_cmp_lt_u32 s42, {Q_G}')
    k('s_cbranch_scc0 W_q2')
    k(f's_sub_u32 s42, s42, {Q_P0}')
    k(f's_and_b32 s{sH}, s42, 15')
    k(f's_lshr_b32 s{sBLK}, s42, 4')
    k('s_branch T_P')
    k.label('W_q2')
    k(f's_cmp_lt_u32 s42, {Q_T}')
    k('s_cbranch_scc0 W_q3')
    k(f's_sub_u32 s42, s42, {Q_G}')
    k(f's_mul_hi_u32 s41, s42, {(1<<32)//72 + 1}')
    k('s_mul_i32 s43, s41, 72')
    k('s_sub_u32 s42, s42, s43')
    k(f's_mov_b32 s{sH}, s42')
    k(f's_add_u32 s{sBLK}, s41, 3')
    k('s_cmp_lt_u32 s42, 16')
    k('s_cbranch_scc1 T_P')
    k('s_sub_u32 s42, s42, 16')
    k('s_mul_i32 s41, s41, 56')
    k('s_add_u32 s42, s42, s41')
    k('s_branch W_v')
    k.label('W_q3')
    k(f's_sub_u32 s42, s42, {Q_T - 13*56}')
    k.label('W_v')
    k(f's_mul_hi_u32 s{sSEG}, s42, {(1<<32)//14 + 1}')
    k(f's_mul_i32 s41, s{sSEG}, 14')
    k('s_sub_u32 s42, s42, s41')
    k('s_cmp_ge_u32 s42, 7')
    k(f's_cselect_b32 s{sQT}, 1, 0')
    k(f's_mul_i32 s41, s{sQT}, 7')
    k(f's_sub_u32 s{sCG}, s42, s41')
    k('s_branch T_V')
    task_U(k); task_U(k, True); task_P(k); task_V(k); task_M1(k); task_M2(k)
```

```python
from asmlib import *
from layout import *

class K(Asm):
    def __init__(self):
        super().__init__()
        self.dsq = []; self.cold = []; self.vmq = []
    def ds(self, text, tag=None):
        self(text); self.dsq.append(tag)
    def wds(self, tag):
        if tag not in self.dsq: return
        idx = max(i for i, t in enumerate(self.dsq) if t == tag)
        n = len(self.dsq) - 1 - idx
        assert n <= 15
        self(f's_waitcnt lgkmcnt({n})')
        self.dsq = self.dsq[idx+1:]
    def wds0(self):
        self('s_waitcnt lgkmcnt(0)'); self.dsq = []
    def vm(self, text, tag=None):
        self(text); self.vmq.append(tag)
    def wvm(self, *tags, extra=''):
        idx = max([i for i, t in enumerate(self.vmq) if t in tags], default=-1)
        if idx < 0:
            if extra: self('s_waitcnt ' + extra)
            return
        n = len(self.vmq) - 1 - idx
        assert n <= 63
        self(f's_waitcnt vmcnt({n}) {extra}')
        self.vmq = self.vmq[idx+1:]
    def flush_cold(self):
        for l in self.cold: self(l)
        self.cold = []

SWS, SDBG = 4, 8
sROLE, sWAVE, sSTEP, sMODE, sM, sP, sX, sUM, sCNT = 12, 13, 14, 15, 16, 17, 18, 19, 20
sT0, sT1, sT2 = 21, 22, 23
sMASK8 = 24
sID = 26
sST = 28
sTM = 30
POLL_LIMIT = 400000
NSTEP = 63
OPT = dict(sa='late', sb='early', um='sc1', uf='sc1', sleepA=0, sleepB=0, stampmask=15, rt=0, barA=1, barB=1, prefP=0, pfd=2, pfs=128, upos='early', ud=2, apf=1, nb=7, stag=2, wpos=1, rsp=1, s1pos=0, upre=8, uneed=32, ust='sc1', rot=1, k1st='sc1', uwin=2, k1d=2, ap2=0, stagA=2, gv=0, vsl=120, usl=120, psl=16, msl=120)

def stamp(k, idx, on):
    if not on or not (OPT['stampmask'] >> idx) & 1: return
    k(('s_memrealtime' if OPT['rt'] else 's_memtime') + f' s[{sTM}:{sTM+1}]')
    k.wds0()
    k(f'v_mov_b32 v0, s{sTM}')
    k(f'buffer_store_dword v0, off, s[{SWS}:{SWS+3}], s{sST} offset:{idx*4}')

def edge(k, on, off):
    if not on or OPT['rt']: return
    lp = k.newlabel('Led')
    k('s_memrealtime s[70:71]')
    k('s_waitcnt lgkmcnt(0)')
    k.label(lp)
    k('s_memrealtime s[72:73]')
    k('s_memtime s[74:75]')
    k('s_waitcnt lgkmcnt(0)')
    k('s_cmp_eq_u32 s72, s70')
    k(f's_cbranch_scc1 {lp}')
    k('v_mov_b32 v0, s72')
    k(f'buffer_store_dword v0, off, s[{SWS}:{SWS+3}], s76 offset:{off}')
    k('v_mov_b32 v0, s74')
    k(f'buffer_store_dword v0, off, s[{SWS}:{SWS+3}], s76 offset:{off+4}')

def publish(k, text):
    ls, ld = k.newlabel('Lslow'), k.newlabel('Lpub')
    k(f's_cbranch_scc0 {ls}')
    k(text)
    k.label(ld)
    k.cold += [ls + ':', text + ' sc1', f's_branch {ld}']

def gather_mem(k, vG, vOff0, vOff1, vL0, vL1, vT):
    lp, dn = k.newlabel('Lgm'), k.newlabel('Lgd')
    k(f's_mov_b32 s{sCNT}, 0')
    k.label(lp)
    k(f'buffer_load_dwordx4 {vr(vG,4)}, v{vOff0}, s[{SWS}:{SWS+3}], s{sM} offen sc1')
    k(f'buffer_load_dwordx4 {vr(vG+4,4)}, v{vOff1}, s[{SWS}:{SWS+3}], s{sM} offen sc1')
    k(f's_add_u32 s{sCNT}, s{sCNT}, 1')
    k(f's_cmp_gt_u32 s{sCNT}, s{sT2}')
    k('s_cbranch_scc1 L_fail')
    k('s_waitcnt vmcnt(1)')
    k(f'v_max3_u32 v{vT}, v{vG}, v{vG+1}, v{vG+2}')
    k('s_waitcnt vmcnt(0)')
    k(f'v_max3_u32 v{vT+1}, v{vG+4}, v{vG+5}, v{vG+6}')
    k(f'v_max3_u32 v{vT}, v{vT}, v{vG+3}, v{vG+7}')
    k(f'v_max_u32 v{vT}, v{vT}, v{vT+1}')
    k(f'v_cmp_eq_u32 vcc, -1, v{vT}')
    k(f's_cbranch_vccnz {lp}')
    if vL0 is None: return
    k.ds(f'ds_write_b128 v{vL0}, {vr(vG,4)}')
    k.ds(f'ds_write_b128 v{vL1}, {vr(vG+4,4)}')
    k.wds0()
    k('s_barrier')

def wait_mode(k, vT):
    lp = k.newlabel('Lwm')
    k(f's_mov_b32 s{sCNT}, 0')
    k(f'v_and_b32 v{vT+1}, 15, v0')
    k(f'v_lshlrev_b32 v{vT+1}, 2, v{vT+1}')
    k.label(lp)
    k(f'buffer_load_dword v{vT}, v{vT+1}, s[{SDBG}:{SDBG+3}], 0 offen offset:32 sc1')
    k(f's_add_u32 s{sCNT}, s{sCNT}, 1')
    k(f's_cmp_gt_u32 s{sCNT}, s{sT2}')
    k('s_cbranch_scc1 L_fail')
    k('s_waitcnt vmcnt(0)')
    k(f'v_cmp_eq_u32 vcc, 32, v{vT}')
    for rot in (8, 4, 2, 1):
        k.nop(2)
        k(f'v_add_u32_dpp v{vT}, v{vT}, v{vT} row_ror:{rot} row_mask:0xf bank_mask:0xf')
    k.nop(1)
    k(f'v_readfirstlane_b32 s{sMODE}, v{vT}')
    k('s_nop 3')
    k(f's_cmp_lt_u32 s{sMODE}, 32')
    k(f's_cbranch_scc1 {lp}')
    k('s_cmp_lg_u64 vcc, 0')
    k(f's_cselect_b32 s{sMODE}, 1, 2')

def common_lane_setup(k, vLane, vL16, vG0, vG1, vIdx, vT):
    k(f'v_and_b32 v{vLane}, 63, v0')
    k(f'v_lshlrev_b32 v{vL16}, 4, v{vLane}')
    if vG0 is not None:
        k(f's_lshl_b32 s{sT0}, s{sWAVE}, 10')
        k(f'v_add_u32 v{vG0}, s{sT0}, v{vL16}')
        k(f's_add_u32 s{sT0}, s{sWAVE}, 4')
        k(f's_min_u32 s{sT0}, s{sT0}, 6')
        k(f's_lshl_b32 s{sT0}, s{sT0}, 10')
        k(f'v_add_u32 v{vG1}, s{sT0}, v{vL16}')
    k(f'v_and_b32 v{vT}, 8, v{vLane}')
    k(f'v_mov_b32 v{vIdx}, 0x4444')
    k(f'v_mov_b32 v{vT+1}, 0xeeee')
    k(f'v_cmp_ne_u32 vcc, 0, v{vT}')
    k('s_nop 1')
    k(f'v_cndmask_b32 v{vIdx}, v{vIdx}, v{vT+1}, vcc')
    k(f's_mov_b32 s{sT2}, {POLL_LIMIT}')

def poll2(k, issue, checks, body, name, stag):
    nl = len(issue(0))
    l0, d0, d1, dn = [k.newlabel(name + x) for x in ('lp', 'd0', 'd1', 'dn')]
    k(f's_mov_b32 s{sCNT}, 0')
    for x in issue(0): k(x)
    k(f"s_sleep {stag}")
    k.label(l0)
    for st, dl in ((0, d0), (1, d1)):
        for x in issue(1 - st): k(x)
        if st == 0:
            k(f's_add_u32 s{sCNT}, s{sCNT}, 1')
            k(f's_cmp_gt_u32 s{sCNT}, s{sT2}')
            k('s_cbranch_scc1 L_fail')
        for rel, ins in checks(st):
            k(f's_waitcnt vmcnt({nl + rel})')
            for x in ins: k(x)
        if st == 0: k(f's_cbranch_vccz {d0}')
        else:       k(f's_cbranch_vccnz {l0}x')
    saved = list(k.dsq)
    body(1)
    k(f's_branch {dn}')
    k.label(l0 + 'x')
    k(f's_branch {l0}')
    k.label(d0)
    end = list(k.dsq); k.dsq = saved
    body(0)
    assert k.dsq == end
    k.label(dn)

def role_A(k, stamps=False):
    vLane, vL16, vIdx = 1, 2, 3
    vKey, vKeyS, vMK, vMKS, vQW, vQR, vSW, vSR, vPO, vVal = 4, 5, 6, 7, 8, 9, 10, 11, 12, 13
    vT = 14
    vM = 16
    vQ = 44
    vKT = 72
    vKM = 100
    vX = 114
    vG0, vG1 = 118, 119
    def W(lt, kb):
        i = lt*7 + kb
        return (256 + 8*i) if i < 32 else (120 + 8*(i-32))
    LM, LSP, LQS = 0, 7168, 20480
    k.label('L_roleA')
    k(f's_mov_b32 s{sID}, s{sROLE}')
    common_lane_setup(k, vLane, vL16, vG0, vG1, vIdx, vX)
    k(f's_lshr_b32 s{sT0}, s{sWAVE}, 1')
    k(f's_mul_i32 s{sT0}, s{sT0}, 14')
    k(f's_and_b32 s{sT1}, s{sWAVE}, 1')
    k(f's_add_u32 s33, s{sT0}, 6')
    k(f's_add_u32 s33, s33, s{sT1}')
    k(f's_lshl_b32 s34, s{sT1}, 3')
    k(f's_add_u32 s32, s{sT0}, s34')
    k(f's_mul_i32 s35, s{sID}, {28*14*1024}')
    k(f's_add_u32 s35, s35, {WTA}')
    k(f's_mul_i32 s36, s32, {14*1024}')
    k(f's_add_u32 s36, s36, s35')
    k(f's_mul_i32 s37, s33, {14*1024}')
    k(f's_add_u32 s37, s37, s35')
    for j in range(7):
        k(f's_add_u32 s{50+j}, s{sWAVE}, {(4*j) % 7}')
        k(f's_sub_u32 s40, s{50+j}, 7')
        k(f's_cmp_ge_u32 s{50+j}, 7')
        k(f's_cselect_b32 s{50+j}, s40, s{50+j}')
        k(f's_lshl_b32 s{50+j}, s{50+j}, 10')
    n = 0
    for lt in range(7):
        sb = 36 if lt < 6 else 37
        for j in range(7):
            k(f's_lshl_b32 s40, s{50+j}, 1')
            k(f's_add_u32 s40, s40, s{sb}')
            for f in range(2):
                k(f'buffer_load_dwordx4 {xr(W(lt, j) + 4*f,4)}, v{vL16}, s[{SWS}:{SWS+3}], s40 offen offset:{f*1024}')
                n += 1
                if n % 16 == 0: k('s_waitcnt vmcnt(40)')
        k(f's_add_u32 s{sb}, s{sb}, 14336')
    k(f'v_add_u32 v{vG1}, s51, v{vL16}')
    t = vX
    g, i = vQ, vQ+1
    k(f'v_lshrrev_b32 v{g}, 4, v{vLane}')
    k(f'v_and_b32 v{i}, 15, v{vLane}')
    k(f's_lshr_b32 s38, s32, 1')
    k(f's_lshr_b32 s39, s33, 1')
    k(f's_lshl_b32 s40, s38, 10')
    k(f'v_add_u32 v{vKey}, s40, v{vL16}')
    k(f's_lshl_b32 s40, s39, 10')
    k(f's_add_u32 s40, s40, s34')
    k(f'v_add_u32 v{vKeyS}, s40, v{vL16}')
    k(f'v_lshrrev_b32 v{t}, 1, v{g}')
    k(f'v_lshlrev_b32 v{t}, 8, v{t}')
    k(f'v_and_b32 v{t+1}, 7, v{i}')
    k(f'v_lshlrev_b32 v{t+1}, 4, v{t+1}')
    k(f'v_add_u32 v{t}, v{t}, v{t+1}')
    k(f'v_and_b32 v{t+1}, 1, v{g}')
    k(f'v_lshlrev_b32 v{t+1}, 7, v{t+1}')
    k(f'v_add_u32 v{t}, v{t}, v{t+1}')
    k(f's_lshl_b32 s40, s38, 9')
    k(f'v_add_u32 v{vMK}, s40, v{t}')
    k(f's_lshl_b32 s40, s39, 9')
    k(f's_add_u32 s40, s40, s34')
    k(f'v_add_u32 v{vMKS}, s40, v{t}')
    k(f's_lshl_b32 s40, s{sWAVE}, 10')
    k(f's_add_u32 s40, s40, {LQS}')
    k(f'v_lshrrev_b32 v{t}, 2, v{i}')
    k(f'v_add_u32 v{t}, v{t}, v{g}')
    k(f'v_and_b32 v{t}, 3, v{t}')
    k(f'v_lshlrev_b32 v{t}, 3, v{t}')
    k(f'v_lshlrev_b32 v{t+1}, 5, v{i}')
    k(f'v_add3_u32 v{vQW}, v{t}, v{t+1}, s40')
    k(f'v_lshrrev_b32 v{t}, 2, v{vLane}')
    k(f'v_lshlrev_b32 v{t}, 5, v{t}')
    k(f'v_add_u32 v{t+1}, v{vLane}, v{g}')
    k(f'v_and_b32 v{t+1}, 3, v{t+1}')
    k(f'v_lshlrev_b32 v{t+1}, 3, v{t+1}')
    k(f'v_add3_u32 v{vQR}, v{t}, v{t+1}, s40')
    k(f's_mul_i32 s40, s{sWAVE}, 3264')
    k(f's_add_u32 s40, s40, {LSP}')
    k(f'v_lshlrev_b32 v{t}, 4, v{i}')
    k(f'v_mul_u32_u24 v{t+1}, 272, v{g}')
    k(f'v_add3_u32 v{vSW}, v{t}, v{t+1}, s40')
    k(f'v_subrev_u32 v{t}, 12, v{i}')
    k(f'v_cmp_le_u32 vcc, 12, v{i}')
    k('s_nop 1')
    k(f'v_cndmask_b32 v{t}, v{i}, v{t}, vcc')
    k(f'v_lshrrev_b32 v{t+1}, 5, v{vLane}')
    k(f's_lshl_b32 s40, s{sWAVE}, 1')
    k(f'v_add_u32 v{t+1}, s40, v{t+1}')
    k(f'v_and_b32 v{t+2}, 1, v{g}')
    k(f'v_lshl_add_u32 v{t+3}, v{t+2}, 3, v{t+1}')
    k(f'v_lshlrev_b32 v{t+3}, 4, v{t+3}')
    k(f'v_mul_u32_u24 v{vSR}, 272, v{t}')
    k(f'v_add_u32 v{vSR}, v{vSR}, v{t+3}')
    if LSP: k(f'v_add_u32 v{vSR}, {LSP}, v{vSR}')
    k(f'v_and_b32 v{vPO}, 1, v{i}')
    k(f'v_lshlrev_b32 v{vPO}, 3, v{vPO}')
    k(f'v_lshl_add_u32 v{vPO}, v{t+1}, 4, v{vPO}')
    k(f'v_lshl_add_u32 v{vPO}, v{t+2}, 2, v{vPO}')
    k(f'v_bfe_u32 v{t}, v{i}, 1, 1')
    k(f'v_lshl_add_u32 v{vPO}, v{t}, 8, v{vPO}')
    k(f's_lshl_b32 s40, s{sID}, 7')
    k(f's_add_u32 s40, s40, 8192')
    k(f's_lshr_b32 s41, s{sID}, 1')
    k(f's_lshl_b32 s41, s41, 10')
    k(f's_and_b32 s42, s{sID}, 1')
    k(f's_lshl_b32 s42, s42, 7')
    k(f's_add_u32 s41, s41, s42')
    k(f'v_mov_b32 v{t}, s40')
    k(f'v_mov_b32 v{t+1}, s41')
    k(f'v_add_u32 v{t+2}, 0x200, v{t+1}')
    k(f'v_mov_b32 v{t+3}, 0x40000000')
    k(f'v_mov_b32 v{vVal}, 1.0')
    for lim, src in ((2, t+3), (4, t+1), (8, t+2), (12, t+3)):
        k(f'v_cmp_le_u32 vcc, {lim}, v{i}')
        k('s_nop 1')
        k(f'v_cndmask_b32 v{t}, v{t}, v{src}, vcc')
    k(f'v_add_u32 v{vPO}, v{vPO}, v{t}')
    k(f'v_cmp_le_u32 vcc, v{t+3}, v{vPO}')
    k('s_nop 1')
    k(f'v_cndmask_b32 v{vVal}, v{vVal}, 0, vcc')
    k(f's_mov_b32 s{sSTEP}, 0')
    k(f's_mov_b32 s{sM}, {MEM}')
    k(f's_mov_b32 s{sP}, {PB}')
    k(f's_mov_b32 s{sX}, {XNS}')
    k(f's_lshl_b32 s40, s{sID}, 2')
    k(f's_add_u32 s40, s40, s{sWAVE}')
    k(f's_mul_i32 s40, s40, 7168')
    k(f'v_min_u32 v{vX}, 55, v{vLane}')
    k(f'v_lshlrev_b32 v{vX}, 7, v{vX}')
    k(f'v_add_u32 v{vX}, s40, v{vX}')
    k(f"s_mov_b32 s{sUM}, {UF + OPT['ud']*UF_SEG}")
    WS = f's[{SWS}:{SWS+3}]'
    def load_keys():
        k(f's_add_u32 s{sT0}, s{sX}, 14336')
        for p in range(3):
            k(f'buffer_load_dwordx4 {vr(vKT+8*p,4)}, v{vKey}, {WS}, s{sX} offen offset:{p*1024}')
            k(f'buffer_load_dwordx4 {vr(vKT+8*p+4,4)}, v{vKey}, {WS}, s{sT0} offen offset:{p*1024}')
        k(f'buffer_load_dwordx2 {vr(vKT+24,2)}, v{vKeyS}, {WS}, s{sX} offen')
        k(f'buffer_load_dwordx2 {vr(vKT+26,2)}, v{vKeyS}, {WS}, s{sT0} offen')
        k(f's_add_u32 s{sX}, s{sX}, 28672')
        k(f's_add_u32 s{sT0}, s{sSTEP}, {1 + OPT["ud"]}')
        k(f's_lshr_b32 s{sT0}, s{sT0}, 2')
        k(f's_lshl_b32 s{sT0}, s{sT0}, 7')
        k(f's_add_u32 s{sT0}, s{sT0}, {flag(F_U)}')
        k(f'buffer_load_dword v{vX+2}, off, {WS}, s{sT0} sc1')
    k(f's_mov_b32 s{sSTEP}, -1')
    load_keys()
    k(f's_mov_b32 s{sSTEP}, 0')
    wait_mode(k, vT)
    k(f'v_mov_b32 v{vX+3}, 0x40000000')
    if stamps: k(f's_add_u32 s76, s{sST}, 0x20000')
    edge(k, stamps, 0)
    k.label('L_A_loop')
    for r in range(0, 28, 2): k(f'v_mov_b64 {vr(vQ+r,2)}, 0')
    vAd = vKM + 6
    for j in range(2, 7): k(f'v_add_u32 v{vAd+j}, s{50+j}, v{vL16}')
    def Mx(lt, kb, src):
        return f'v_smfmac_f32_16x16x64_bf16 {vr(vQ+4*lt,4)}, {vr(src,4)}, {xr(W(lt,kb),8)}, v{vIdx}'
    def M(lt, kb): return Mx(lt, kb, vM+4*kb)
    mk = [f'ds_read_b128 {vr(vKM+4*p,4)}, v{vMK} offset:{LM+p*512}' for p in range(3)]
    mk.append(f'ds_read_b64 {vr(vKM+12,2)}, v{vMKS} offset:{LM}')
    sets = [vM, vKM]
    def issue(st):
        return [f'buffer_load_dwordx4 {vr(sets[st],4)}, v{vG0}, {WS}, s{sM} offen sc1',
                f'buffer_load_dwordx4 {vr(sets[st]+4,4)}, v{vG1}, {WS}, s{sM} offen sc1']
    def checks(st):
        G = sets[st]
        return [(1, [f'v_max3_u32 v{vT}, v{G}, v{G+1}, v{G+2}']),
                (0, [f'v_max3_u32 v{vT+1}, v{G+4}, v{G+5}, v{G+6}', f'v_max3_u32 v{vT}, v{vT}, v{G+3}, v{G+7}',
                     f'v_max_u32 v{vT}, v{vT}, v{vT+1}', f'v_cmp_eq_u32 vcc, -1, v{vT}'])]
    NB = OPT['nb']
    def body(st):
        G = sets[st]
        stamp(k, 0, stamps)
        wrs = [f'ds_write_b128 v{vG0}, {vr(G,4)} offset:{LM}', f'ds_write_b128 v{vG1}, {vr(G+4,4)} offset:{LM}']
        seq = [(lt, j) for j in range(2) for lt in range(7)]
        for n, (lt, j) in enumerate(seq):
            k(Mx(lt, j, G + 4*j))
            if n < 2: k.ds(wrs[n])
            if n == 3: k(f'v_cmp_le_u32 vcc, {OPT["uneed"]}, v{vX+2}')
            if n == 5: k(f'v_cndmask_b32 v{vX+1}, v{vX+3}, v{vX}, vcc')
            if n == NB - 1:
                k.wds0(); k('s_barrier')
            if NB - 1 <= n < NB + 4:
                jj = n - (NB - 1) + 2
                k.ds(f'ds_read_b128 {vr(vM+4*jj,4)}, v{vAd+jj} offset:{LM}', f'm{jj}')
            if n == NB + 5: k(f'buffer_load_dword v0, v{vX+1}, {WS}, s{sUM} offen sc1')
    if OPT['ap2']:
        poll2(k, issue, checks, body, 'Lga', OPT['stagA'])
    else:
        gather_mem(k, vM, vG0, vG1, None, None, vT)
        body(0)
    def cvt(lt, h):
        k(f'v_cvt_pk_bf16_f32 v{vQ+4*lt+h}, v{vQ+4*lt+2*h}, v{vQ+4*lt+2*h+1}')
    def wr(lt):
        k.ds(f'ds_write_b64 v{vQW}, {vr(vQ+4*lt,2)} offset:{512*(lt&1)}')
    def tr(p, h):
        k.ds(f'ds_read_b64_tr_b16 {vr(vQ+8*p+2*h,2)}, v{vQR} offset:{512*h}', f'q{p}')
    vSt = [vM, vM+4, vQ+4]
    def S(p, t):
        q = vQ + 8*p
        c = '0' if p == 0 else vr(vSt[t],4)
        if p < 3:
            a = vKM+4*p if t == 0 else vKT+8*p+4*(t-1)
            k(f'v_mfma_f32_16x16x32_bf16 {vr(vSt[t],4)}, {vr(a,4)}, {vr(q,4)}, {c}')
        else:
            a = vKM+12 if t == 0 else vKT+24+2*(t-1)
            k(f'v_mfma_f32_16x16x16_bf16 {vr(vSt[t],4)}, {vr(a,2)}, {vr(q,2)}, {c}')
    for lt in range(7):
        for j in range(2, 7):
            if lt == 0: k.wds(f'm{j}')
            k(M(lt, j))
            if lt == 0 and j == 6:
                k('s_waitcnt vmcnt(1)')
                for x in mk: k.ds(x, 'mk')
            if lt >= 1:
                if j == 4: cvt(lt-1, 0)
                if j == 5: cvt(lt-1, 1)
                if j == 6:
                    wr(lt-1)
                    if (lt-1) & 1: tr((lt-1)//2, 0); tr((lt-1)//2, 1)
        if lt == (4 if OPT['s1pos'] == 0 else 3):
            k.wds('q0')
            for t in range(3): S(0, t)
        if lt == 5 and OPT['s1pos'] == 1:
            k.wds('q1')
            for t in range(3): S(1, t)
    if OPT['s1pos'] == 0:
        k.wds('q1')
        for t in range(3): S(1, t)
        cvt(6, 0); cvt(6, 1); wr(6); tr(3, 0)
        k.wds('q2')
        for t in range(3): S(2, t)
    else:
        k.nop(8)
        cvt(6, 0); cvt(6, 1); wr(6); tr(3, 0)
        k.wds('q2')
        for t in range(3): S(2, t)
    k.wds('q3')
    for t in range(3): S(3, t)
    k.nop(2)
    k.ds(f'ds_write_b128 v{vSW}, {vr(vSt[0],4)}')
    k.nop(2)
    k.ds(f'ds_write_b128 v{vSW}, {vr(vSt[1],4)} offset:1088')
    k.nop(2)
    k.ds(f'ds_write_b128 v{vSW}, {vr(vSt[2],4)} offset:2176')
    k.wds0()
    k('s_barrier')
    stamp(k, 1, stamps)
    R = vQ+8
    for w in range(4): k.ds(f'ds_read_b128 {vr(R+4*w,4)}, v{vSR} offset:{w*3264}', f'r{w}')
    k(f's_cmp_eq_u32 s{sMODE}, 1')
    k.wds('r1')
    k(f'v_pk_add_f32 {vr(R,2)}, {vr(R,2)}, {vr(R+4,2)}')
    k(f'v_pk_add_f32 {vr(R+2,2)}, {vr(R+2,2)}, {vr(R+6,2)}')
    k.wds('r2')
    k(f'v_pk_add_f32 {vr(R,2)}, {vr(R,2)}, {vr(R+8,2)}')
    k(f'v_pk_add_f32 {vr(R+2,2)}, {vr(R+2,2)}, {vr(R+10,2)}')
    k.wds('r3')
    k(f'v_pk_add_f32 {vr(R,2)}, {vr(R,2)}, {vr(R+12,2)}')
    k(f'v_pk_add_f32 {vr(R+2,2)}, {vr(R+2,2)}, {vr(R+14,2)}')
    k.nop(2)
    k(f'v_permlane16_swap_b32 v{R}, v{R+2}')
    k(f'v_permlane16_swap_b32 v{R+1}, v{R+3}')
    X = R+4; m = R+6; t = R+8
    k(f'v_pk_add_f32 {vr(X,2)}, {vr(R,2)}, {vr(R+2,2)}')
    def allred(op, m):
        for rot in (8, 4, 2, 1):
            k.nop(2)
            k(f'{op}_dpp v{m}, v{m}, v{m} row_ror:{rot} row_mask:0xf bank_mask:0xf')
        k(f'v_mov_b32 v{t}, v{m}')
        k.nop(2)
        k(f'v_permlane16_swap_b32 v{m}, v{t}')
        k(f'{op} v{m}, v{m}, v{t}')
    k(f'v_max_f32 v{m}, v{X}, v{X+1}')
    allred('v_max_f32', m)
    k(f'v_pk_add_f32 {vr(X,2)}, {vr(X,2)}, {vr(m,2)} op_sel_hi:[1,0] neg_lo:[0,1] neg_hi:[0,1]')
    k(f'v_exp_f32 v{X}, v{X}')
    k(f'v_exp_f32 v{X+1}, v{X+1}')
    k.nop(1)
    k(f'v_add_f32 v{m}, v{X}, v{X+1}')
    k(f'v_mul_f32 v{m}, v{m}, v{vVal}')
    allred('v_add_f32', m)
    k(f'v_rcp_f32 v{m}, v{m}')
    k.nop(1)
    k(f'v_pk_mul_f32 {vr(X,2)}, {vr(X,2)}, {vr(m,2)} op_sel_hi:[1,0]')
    k(f'v_cvt_pk_bf16_f32 v{X}, v{X}, v{X+1}')
    k(f'v_min_u32 v{X}, -2, v{X}')
    publish(k, f'buffer_store_dword v{X}, v{vPO}, {WS}, s{sP} offen')
    stamp(k, 2, stamps)
    k('s_barrier')
    load_keys()
    if OPT['sleepA']: k(f"s_sleep {OPT['sleepA']}")
    k(f's_add_u32 s{sUM}, s{sUM}, {UF_SEG}')
    k(f's_add_u32 s{sM}, s{sM}, {MEM_S}')
    k(f's_add_u32 s{sP}, s{sP}, {PB_S}')
    if stamps: k(f's_add_u32 s{sST}, s{sST}, 16')
    k(f's_add_u32 s{sSTEP}, s{sSTEP}, 1')
    k(f's_cmp_lt_u32 s{sSTEP}, {NSTEP}')
    k('s_cbranch_scc1 L_A_loop')
    edge(k, stamps, 8)
    k('s_waitcnt vmcnt(0)')
    k('s_endpgm')
    k.flush_cold()

def role_B(k, stamps=False, wait_u=None):
    WS = f's[{SWS}:{SWS+3}]'
    vLane, vL16, vG0, vG1, vIdx = 1, 2, 3, 4, 5
    vWL, vPT, vPM, vRW, vRR, vL4 = 6, 7, 8, 9, 10, 11
    vC = 12
    vM = 16
    vA = 44
    vU = 76
    vTm = 108
    vUi = 140
    vUm = 172
    vRR2 = 188
    vKeep, vFl = 191, 15
    vD = vTm
    vG = vTm + 16
    vP = [vM, vA]
    def W(gi, kb):
        i = gi*5 + kb
        return (256 + 8*i) if i < 32 else (192 + 8*(i-32))
    LM, LRED, LW = 0, 7168, 16384
    k.label('L_roleB')
    k(f's_sub_u32 s{sID}, s{sROLE}, 16')
    common_lane_setup(k, vLane, vL16, vG0, vG1, vIdx, vC)
    k(f's_lshl_b32 s{sT0}, s{sWAVE}, 2')
    k(f's_mul_i32 s{sT0}, s{sT0}, 28')
    k(f's_lshl_b32 s{sT1}, s{sID}, 1')
    k(f's_add_u32 s{sT0}, s{sT0}, s{sT1}')
    k(f's_mul_i32 s35, s{sT0}, 14336')
    k(f's_add_u32 s35, s35, {WTB}')
    k(f's_lshl_b32 s37, s{sWAVE}, 15')
    k(f's_add_u32 s37, s37, {LW}')
    k(f'v_add_u32 v{vWL}, s37, v{vL16}')
    for j in range(7):
        k(f's_add_u32 s{50+j}, s{sWAVE}, {(4*j) % 7}')
        k(f's_sub_u32 s40, s{50+j}, 7')
        k(f's_cmp_ge_u32 s{50+j}, 7')
        k(f's_cselect_b32 s{50+j}, s40, s{50+j}')
        k(f's_lshl_b32 s{50+j}, s{50+j}, 10')
    k(f'v_add_u32 v{vG1}, s51, v{vL16}')
    for gi in range(8):
        k(f's_add_u32 s36, s35, {(gi>>1)*28*14336 + (gi&1)*14336}')
        for j in range(7):
            k(f's_lshl_b32 s40, s{50+j}, 1')
            k(f's_add_u32 s40, s40, s36')
            if j >= 5:
                k(f's_add_u32 s38, s37, {gi*4096 + (j-5)*2048}')
                k(f's_mov_b32 m0, s38')
                k('s_nop 0')
            for f in range(2):
                if j < 5: k(f'buffer_load_dwordx4 {xr(W(gi, j) + 4*f,4)}, v{vL16}, {WS}, s40 offen offset:{f*1024}')
                else:     k(f'buffer_load_dwordx4 v{vL16}, {WS}, s40 offen offset:{f*1024} lds')
        k('s_waitcnt vmcnt(40)')
    g, i = vA, vA+1
    vT = vC
    k(f'v_lshrrev_b32 v{g}, 4, v{vLane}')
    k(f'v_and_b32 v{i}, 15, v{vLane}')
    k(f's_lshl_b32 s40, s{sWAVE}, 11')
    k(f'v_add_u32 v{vPT}, s40, v{vL16}')
    k(f'v_lshrrev_b32 v{vT}, 1, v{g}')
    k(f'v_lshlrev_b32 v{vT}, 8, v{vT}')
    k(f'v_lshl_add_u32 v{vT}, v{i}, 4, v{vT}')
    k(f's_lshl_b32 s40, s{sWAVE}, 9')
    k(f's_add_u32 s40, s40, 8192')
    k(f'v_add_u32 v{vPM}, s40, v{vT}')
    k(f's_lshl_b32 s40, s{sWAVE}, 10')
    k(f's_add_u32 s40, s40, {LRED}')
    k(f'v_add_u32 v{vRW}, s40, v{vL16}')
    k(f'v_and_b32 v{vT}, 3, v{vLane}')
    k(f'v_lshlrev_b32 v{vT}, 6, v{vT}')
    k(f'v_lshrrev_b32 v{vT+1}, 5, v{vLane}')
    k(f'v_lshl_add_u32 v{vT}, v{vT+1}, 5, v{vT}')
    k(f'v_lshrrev_b32 v{vT+1}, 2, v{vLane}')
    k(f'v_and_b32 v{vT+2}, 3, v{vT+1}')
    k(f'v_lshl_add_u32 v{vT}, v{vT+2}, 2, v{vT}')
    k(f'v_bfe_u32 v{vT+2}, v{vLane}, 4, 1')
    k(f'v_lshl_add_u32 v{vT}, v{vT+2}, 8, v{vT}')
    k(f's_and_b32 s40, s{sWAVE}, 1')
    k(f's_lshl_b32 s40, s40, 9')
    k(f's_add_u32 s40, s40, {LRED}')
    k(f'v_add_u32 v{vRR}, s40, v{vT}')
    for w in range(1, 4): k(f'v_add_u32 v{vRR2+w-1}, {1024*w}, v{vRR}')
    k(f's_lshl_b32 s40, s{sID}, 1')
    k(f's_and_b32 s41, s{sWAVE}, 1')
    k(f's_add_u32 s40, s40, s41')
    k(f's_lshl_b32 s40, s40, 8')
    k(f'v_lshlrev_b32 v{vL4}, 2, v{vLane}')
    k(f'v_add_u32 v{vL4}, s40, v{vL4}')
    k(f's_mov_b32 s{sSTEP}, 0')
    k(f's_mov_b32 s{sM}, {MEM}')
    k(f's_mov_b32 s{sP}, {PB}')
    k(f's_lshl_b32 s{sX}, s{sID}, 15')
    k(f's_lshl_b32 s40, s{sWAVE}, 13')
    k(f's_add_u32 s{sX}, s{sX}, s40')
    k(f's_add_u32 s{sX}, s{sX}, {UF}')
    k(f's_mul_i32 s{sUM}, s{sWAVE}, {2*28*1024}')
    k(f's_lshl_b32 s40, s{sID}, 11')
    k(f's_add_u32 s{sUM}, s{sUM}, s40')
    k(f's_add_u32 s{sUM}, s{sUM}, {UM}')
    k(f's_mov_b32 s43, s{sUM}')
    def ldu(j):
        hh, T = j >> 1, j & 1
        r = vU + 16*(hh>>1) + 8*T + 4*(hh&1)
        return f'buffer_load_dwordx4 {vr(r,4)}, v{vL16}, {WS}, s{sX if j<4 else sT0} offen offset:{(j&3)*1024} ' + OPT['uf']
    def stum(u, T):
        return f'buffer_store_dwordx4 {vr(vUm+8*T+4*u,4)}, v{vL16}, {WS}, s{43 if u==0 else 44} offen offset:{T*1024} ' + OPT['um']
    def lw(gi):
        b = vTm + 16*(gi&1)
        for f in range(4): k.ds(f'ds_read_b128 {vr(b+4*f,4)}, v{vWL} offset:{gi*4096+f*1024}', f'w{gi}')
    def load_u(ahead):
        if wait_u:
            lu = k.newlabel('Lnu')
            k(f's_add_u32 s{sT0}, s{sSTEP}, {ahead}')
            k(f's_and_b32 s{sT1}, s{sT0}, 3')
            k(f's_cbranch_scc1 {lu}')
            k(f's_lshl_b32 s{sT0}, s{sT0}, 5')
            k(f's_add_u32 s{sT0}, s{sT0}, {flag(F_U)}')
            wait_u(k, sT0, 32, vC, sleep=1)
            k.label(lu)
        k(f's_add_u32 s{sT0}, s{sX}, 4096')
        for j in range(8): k(ldu(j))
        k(f's_add_u32 s{sX}, s{sX}, {UF_SEG}')
    wait_mode(k, vC)
    sw = []
    for o in range(4):
        r = vU + 8*o
        for e in range(4):
            sel = e & 1
            sw.append(f'v_pk_mov_b32 {vr(vUi+8*o+2*e,2)}, {vr(r+(e&2),2)}, {vr(r+4+(e&2),2)} op_sel:[{sel},{sel}]')
    if stamps: k(f's_add_u32 s76, s{sST}, 0x20000')
    edge(k, stamps, 0)
    k.label('L_B_loop')
    lp = k.newlabel('Lgm')
    def gl():
        k(f'buffer_load_dwordx4 {vr(vM,4)}, v{vG0}, {WS}, s{sM} offen sc1')
        k(f'buffer_load_dwordx4 {vr(vM+4,4)}, v{vG1}, {WS}, s{sM} offen sc1')
    k('s_waitcnt vmcnt(1)')
    gl()
    for x in sw: k(x)
    for r in range(0, 32, 2): k(f'v_mov_b64 {vr(vA+r,2)}, 0')
    for j in range(2, 7): k(f'v_add_u32 v{vG+j}, s{50+j}, v{vL16}')
    k(f's_add_u32 s45, s{sSTEP}, 1')
    k(f's_lshr_b32 s45, s45, 2')
    k(f's_lshl_b32 s45, s45, 7')
    k(f's_add_u32 s45, s45, {flag(F_U)}')
    k(f's_add_u32 s44, s43, {28*1024}')
    vm = [stum(0,0), stum(0,1), stum(1,0), stum(1,1)] + [ldu(j) for j in range(8)]
    lw(0)
    k(f's_mov_b32 s{sCNT}, 0')
    k(f's_branch {lp}w')
    k.label(lp)
    gl()
    k(f's_add_u32 s{sCNT}, s{sCNT}, 1')
    k(f's_cmp_gt_u32 s{sCNT}, s{sT2}')
    k('s_cbranch_scc1 L_fail')
    k.label(lp + 'w')
    k('s_waitcnt vmcnt(1)')
    k(f'v_max3_u32 v{vC}, v{vM}, v{vM+1}, v{vM+2}')
    k('s_waitcnt vmcnt(0)')
    k(f'v_max3_u32 v{vC+1}, v{vM+4}, v{vM+5}, v{vM+6}')
    k(f'v_max3_u32 v{vC}, v{vC}, v{vM+3}, v{vM+7}')
    k(f'v_max_u32 v{vC}, v{vC}, v{vC+1}')
    k(f'v_cmp_eq_u32 vcc, -1, v{vC}')
    k(f's_cbranch_vccnz {lp}')
    stamp(k, 0, stamps)
    k.ds(f'ds_write_b128 v{vG0}, {vr(vM,4)} offset:{LM}')
    k.ds(f'ds_write_b128 v{vG1}, {vr(vM+4,4)} offset:{LM}')
    ls, l2 = k.newlabel('Lbs'), k.newlabel('Lbt')
    k(f's_cmp_eq_u32 s{sSTEP}, 0')
    k(f's_cbranch_scc1 {l2}')
    k(f's_cmp_ge_u32 s{sWAVE}, 2')
    k(f's_cbranch_scc1 {ls}')
    k(f's_add_u32 s{sT0}, s{sM}, {MEMX - MEM - MEM_S}')
    k(f'buffer_store_dword v{vKeep}, v{vL4}, {WS}, s{sT0} offen sc1')
    k(f's_branch {l2}')
    k.label(ls)
    k(f's_cmp_eq_u32 s{sWAVE}, 2')
    k(f's_cselect_b32 s{sT0}, s{sSTEP}, 0')
    k(f's_cmp_le_u32 s{sT0}, 1')
    k(f's_cbranch_scc1 {l2}')
    k(f's_lshl_b32 s{sT0}, s{sSTEP}, 7')
    k(f's_add_u32 s{sT0}, s{sT0}, {flag(F_UM) - 256}')
    k('s_mov_b64 exec, 1')
    k(f'v_mov_b32 v{vC}, 1')
    k(f'buffer_atomic_add v{vC}, off, {WS}, s{sT0}')
    k('s_mov_b64 exec, -1')
    k.label(l2)
    k(f'buffer_load_dword v{vFl}, off, {WS}, s45 sc1')
    for x in vm[:4]: k(x)
    def acc(gi): return vA + 4*gi
    def cvt(gi, h):
        hh, T = gi>>1, gi&1
        d = vUm + 8*T + 4*(hh>>1) + 2*h + (hh&1)
        a = acc(gi) + 2*h
        k(f'v_cvt_pk_bf16_f32 v{d}, v{a}, v{a+1}')
    def lw1(gi, f):
        k.ds(f'ds_read_b128 {vr(vTm+16*(gi&1)+4*f,4)}, v{vWL} offset:{gi*4096+f*1024}', f'w{gi}')
    def MB(gi, j):
        w = xr(W(gi,j),8) if j < 5 else vr(vTm + 16*(gi&1) + 8*(j-5), 8)
        k(f'v_smfmac_f32_16x16x64_bf16 {vr(acc(gi),4)}, {vr(vM+4*j,4)}, {w}, v{vIdx}')
    for n in range(16):
        MB(n & 7, n >> 3)
        if n == 5:
            k.wds0(); k('s_barrier')
        if 5 <= n < 10:
            k.ds(f'ds_read_b128 {vr(vM+4*(n-3),4)}, v{vG+n-3} offset:{LM}', f'm{n-3}')
    for gi in range(8):
        for j in range(2, 7):
            if gi == 0: k.wds(f'm{j}')
            if j == 5: k.wds(f'w{gi}')
            MB(gi, j)
            if gi < 7 and j in (2, 3, 5, 6): lw1(gi+1, {2:0, 3:1, 5:2, 6:3}[j])
            if gi >= 1 and j == 4: cvt(gi-1, 0); cvt(gi-1, 1)
    k(f's_mov_b32 s43, s{sUM}')
    k(f's_add_u32 s{sUM}, s{sUM}, {UM_SEG}')
    k.nop(6)
    cvt(7, 0); cvt(7, 1)
    for r in range(0, 8, 2): k(f'v_mov_b64 {vr(vD+r,2)}, 0')
    k(f's_cmp_ge_u32 s{sSTEP}, {NSTEP}')
    k('s_cbranch_scc1 L_B_end')
    k('s_waitcnt vmcnt(4)')
    l0, l1 = k.newlabel('Lu0'), k.newlabel('Lu1')
    k(f's_cmp_eq_u32 s{sSTEP}, 0')
    k(f's_cbranch_scc1 {l0}')
    k.label(l1)
    main = k.lines; k.lines = []
    k.label(l0)
    load_u(0)
    k('s_waitcnt vmcnt(0)')
    for x in sw: k(x)
    k(f'v_mov_b32 v{vFl}, 32')
    k(f's_branch {l1}')
    k.cold += k.lines; k.lines = main
    if wait_u:
        lu = k.newlabel('Lnu')
        k(f'v_cmp_le_u32 vcc, 32, v{vFl}')
        k(f's_cbranch_vccnz {lu}')
        wait_u(k, 45, 32, vC)
        k.label(lu)
    k(f's_add_u32 s{sT0}, s{sX}, 4096')
    for j in range(8): k(ldu(j))
    k(f's_add_u32 s{sX}, s{sX}, {UF_SEG}')
    stamp(k, 1, stamps)
    if OPT['sleepB']: k(f"s_sleep {OPT['sleepB']}")
    def issue(st):
        P = vP[st]
        return [f'buffer_load_dwordx4 {vr(P,4)}, v{vPT}, {WS}, s{sP} offen sc1',
                f'buffer_load_dwordx4 {vr(P+4,4)}, v{vPT}, {WS}, s{sP} offen offset:1024 sc1',
                f'buffer_load_dwordx4 {vr(P+8,4)}, v{vPM}, {WS}, s{sP} offen sc1']
    def checks(st):
        P = vP[st]
        return [(2, [f'v_max3_u32 v{vC}, v{P}, v{P+1}, v{P+2}']),
                (1, [f'v_max3_u32 v{vC+1}, v{P+4}, v{P+5}, v{P+6}', f'v_max3_u32 v{vC}, v{vC}, v{P+3}, v{P+7}']),
                (0, [f'v_max3_u32 v{vC+1}, v{vC+1}, v{P+8}, v{P+9}', f'v_max3_u32 v{vC}, v{vC}, v{P+10}, v{P+11}',
                     f'v_max_u32 v{vC}, v{vC}, v{vC+1}', f'v_cmp_eq_u32 vcc, -1, v{vC}'])]
    def body(st):
        P = vP[st]
        stamp(k, 2, stamps)
        for j in range(3):
            for T in range(2):
                b = vr(vUi + 16*j + 8*T, 8) if j < 2 else vr(vUm + 8*T, 8)
                k(f'v_smfmac_f32_16x16x64_bf16 {vr(vD+4*T,4)}, {vr(P+4*j,4)}, {b}, v{vIdx}')
    poll2(k, issue, checks, body, 'Lpp', OPT['stag'])
    k(f's_add_u32 s{sM}, s{sM}, {MEM_S}')
    k(f's_add_u32 s{sP}, s{sP}, {PB_S}')
    k.nop(6)
    for r in range(4): k(f'v_permlane32_swap_b32 v{vD+r}, v{vD+4+r}')
    k(f'v_pk_add_f32 {vr(vD,2)}, {vr(vD,2)}, {vr(vD+4,2)}')
    k(f'v_pk_add_f32 {vr(vD+2,2)}, {vr(vD+2,2)}, {vr(vD+6,2)}')
    k.ds(f'ds_write_b128 v{vRW}, {vr(vD,4)}')
    k.wds0()
    k('s_barrier')
    k(f's_cmp_ge_u32 s{sWAVE}, 2')
    k('s_cbranch_scc1 L_B_skip')
    R = vG
    for w in range(4): k.ds(f'ds_read2_b32 {vr(R+2*w,2)}, v{vRR} offset0:{0} offset1:{4}' if w == 0 else
                            f'ds_read2_b32 {vr(R+2*w,2)}, v{vRR2+w-1} offset0:0 offset1:4', f'r{w}')
    k(f's_cmp_eq_u32 s{sMODE}, 1')
    k.wds('r1')
    k(f'v_pk_add_f32 {vr(R,2)}, {vr(R,2)}, {vr(R+2,2)}')
    k.wds('r3')
    k(f'v_pk_add_f32 {vr(R+4,2)}, {vr(R+4,2)}, {vr(R+6,2)}')
    k(f'v_pk_add_f32 {vr(R,2)}, {vr(R,2)}, {vr(R+4,2)}')
    k(f'v_cvt_pk_bf16_f32 v{R}, v{R}, v{R+1}')
    k(f'v_min_u32 v{R}, -2, v{R}')
    publish(k, f'buffer_store_dword v{R}, v{vL4}, {WS}, s{sM} offen')
    k(f'v_mov_b32 v{vKeep}, v{R}')
    k(f's_cmp_lg_u32 s{sSTEP}, {NSTEP-1}')
    k('s_cbranch_scc1 L_B_skip2')
    k(f's_add_u32 s{sT0}, s{sM}, {MEMX - MEM - MEM_S}')
    k(f'buffer_store_dword v{R}, v{vL4}, {WS}, s{sT0} offen sc1')
    k('s_branch L_B_skip2')
    k.label('L_B_skip')
    k('s_waitcnt vmcnt(0)')
    k.label('L_B_skip2')
    stamp(k, 3, stamps)
    k('s_barrier')
    k(f's_add_u32 s{sSTEP}, s{sSTEP}, 1')
    if stamps: k(f's_add_u32 s{sST}, s{sST}, 16')
    k('s_branch L_B_loop')
    k.label('L_B_end')
    edge(k, stamps, 8)
    k(f's_add_u32 s44, s43, {28*1024}')
    for x in vm[:4]: k(x)
    k('s_waitcnt vmcnt(0)')
    k('s_barrier')
    k(f's_cmp_lg_u32 s{sWAVE}, 0')
    k('s_cbranch_scc1 L_exit')
    k('s_mov_b64 exec, 3')
    k(f'v_mov_b32 v{vC}, 1')
    k(f'v_lshlrev_b32 v{vC+1}, 7, v{vLane}')
    k(f's_mov_b32 s{sT0}, {flag(F_UM + 62)}')
    k(f'buffer_atomic_add v{vC}, v{vC+1}, {WS}, s{sT0} offen')
    k('s_endpgm')
    k.flush_cold()

def role_P(k, wait_u=None):
    WS = f's[{SWS}:{SWS+3}]'
    vLane, vU, vX, vS, vD = 1, 2, 3, 4, 8
    D = OPT['pfd']; st = OPT['pfs']; sh = 7 if st == 128 else 6
    k.label('L_roleP')
    k(f's_mov_b32 s{sT2}, {POLL_LIMIT}')
    k(f's_sub_u32 s{sID}, s{sROLE}, 30')
    k(f's_lshl_b32 s{sID}, s{sID}, 2')
    k(f's_add_u32 s{sID}, s{sID}, s{sWAVE}')
    k(f'v_and_b32 v{vLane}, 63, v0')
    k(f'v_lshlrev_b32 v{vU}, {sh}, v{vLane}')
    k(f's_mul_i32 s40, s{sID}, {UF_SEG//8}')
    k(f'v_add_u32 v{vU}, s40, v{vU}')
    k(f'v_min_u32 v{vX}, 55, v{vLane}')
    k(f'v_lshlrev_b32 v{vX}, 6, v{vX}')
    k(f's_mul_i32 s40, s{sID}, 3584')
    k(f'v_add_u32 v{vX}, s40, v{vX}')
    k(f'v_min_u32 v{vS}, 19, v{vLane}')
    k(f'v_lshlrev_b32 v{vS}, 6, v{vS}')
    k(f's_mul_i32 s40, s{sID}, 1280')
    k(f'v_add_u32 v{vS}, s40, v{vS}')
    k(f'v_min_u32 v{vS+1}, 13, v{vLane}')
    k(f'v_lshlrev_b32 v{vS+1}, 6, v{vS+1}')
    k(f's_mul_i32 s40, s{sID}, 896')
    k(f'v_add_u32 v{vS+1}, s40, v{vS+1}')
    k(f's_mov_b32 s{sSTEP}, 0')
    k(f's_mov_b32 s{sX}, {UF}')
    k(f's_mov_b32 s{sUM}, {XNS}')
    k(f's_mov_b32 s{sP}, {PB}')
    k(f's_mov_b32 s{sM}, {MEM + MEM_S}')
    k(f's_mov_b32 s41, {MEM - D*MEM_S}')
    k.label('L_P_loop')
    k(f's_cmp_le_u32 s{sSTEP}, {D}')
    k('s_cbranch_scc1 L_P_go')
    k(f's_mov_b32 s{sCNT}, 0')
    k.label('L_P_wait')
    k(f'buffer_load_dword v{vD}, off, {WS}, s41 sc1')
    k(f's_add_u32 s{sCNT}, s{sCNT}, 1')
    k(f's_cmp_gt_u32 s{sCNT}, s{sT2}')
    k('s_cbranch_scc1 L_fail')
    k('s_waitcnt vmcnt(0)')
    k(f'v_cmp_eq_u32 vcc, -1, v{vD}')
    k('s_cbranch_vccz L_P_go')
    k('s_sleep 2')
    k('s_branch L_P_wait')
    k.label('L_P_go')
    k(f'buffer_load_dword v{vD+1}, v{vS}, {WS}, s{sP} offen sc1')
    k(f'buffer_load_dword v{vD+2}, v{vS+1}, {WS}, s{sM} offen sc1')
    k(f'buffer_load_dword v{vD+3}, v{vX}, {WS}, s{sUM} offen sc1')
    n = 0 if OPT['apf'] else UF_SEG // 8 // (64*st)
    k(f's_mov_b32 s{sT0}, s{sX}')
    for j in range(n):
        k(f'buffer_load_dword v{vD+4+j}, v{vU}, {WS}, s{sT0} offen sc1')
        k(f's_add_u32 s{sT0}, s{sT0}, {64*st}')
    k(f's_add_u32 s{sX}, s{sX}, {UF_SEG}')
    k(f's_add_u32 s{sUM}, s{sUM}, 28672')
    k(f's_add_u32 s{sP}, s{sP}, {PB_S}')
    k(f's_add_u32 s{sM}, s{sM}, {MEM_S}')
    k(f's_add_u32 s41, s41, {MEM_S}')
    k(f's_add_u32 s{sSTEP}, s{sSTEP}, 1')
    k(f's_cmp_lt_u32 s{sSTEP}, {NSTEP}')
    k('s_cbranch_scc1 L_P_loop')
    k('s_waitcnt vmcnt(0)')
    k('s_endpgm')
```

```python
from chain import K, OPT
from asmlib import *
from layout import *
import math, struct

def f32bits(x): return struct.unpack('<I', struct.pack('<f', x))[0]
PREP_GRID, PREP_BLOCK, PREP_LDS = 256, 512, 3*43008

def srd(k, s, argoff, size):
    k(f's_load_dwordx2 s[{s}:{s+1}], s[0:1], {argoff}')
    k(f's_mov_b32 s{s+2}, {size}')
    k(f's_mov_b32 s{s+3}, 0x20000')

def gen_prep(tl=False):
    k = K()
    WS = 's[4:7]'
    k(f's_cmp_ge_u32 s2, {PREP_GRID}')
    k('s_cbranch_scc1 P_exit')
    srd(k, 4, 112, WS_SIZE)
    k('v_lshrrev_b32 v1, 6, v0')
    k('v_and_b32 v2, 63, v0')
    k('v_readfirstlane_b32 s16, v1')
    if tl: k('s_memrealtime s[40:41]')
    k('s_nop 2')
    k('s_cmp_eq_u32 s16, 7')
    k('s_cbranch_scc1 P_ln')
    k('s_and_b32 s19, s2, 15')
    k('s_bfe_u32 s18, s2, 0x10005')
    k('s_lshr_b32 s20, s2, 6')
    k('s_bitcmp1_b32 s2, 4')
    k('s_cbranch_scc1 P_gB0')
    srd(k, 8, 16, 3670016); srd(k, 12, 24, 3670016)
    k('s_branch P_g1')
    k.label('P_gB0')
    srd(k, 8, 32, 3670016); srd(k, 12, 40, 3670016)
    k.label('P_g1')
    vI, vG, vL16 = 3, 4, 5
    vR, vC, vRA, vCA, vt = 6, 10, 12, 16, 18
    vRAs, vCAs = 20, 24
    k(f'v_and_b32 v{vI}, 15, v2')
    k(f'v_lshrrev_b32 v{vG}, 4, v2')
    k(f'v_lshlrev_b32 v{vL16}, 4, v2')
    k('s_mul_i32 s21, s18, 7')
    k('s_add_u32 s21, s21, s16')
    k(f'v_lshrrev_b32 v{vt}, 3, v2')
    k('s_lshl_b32 s22, s21, 5')
    k(f'v_add_u32 v{vt}, s22, v{vt}')
    k(f'v_lshlrev_b32 v{vt}, 13, v{vt}')
    k('s_lshl_b32 s22, s19, 9')
    k(f'v_add_u32 v{vt}, s22, v{vt}')
    k(f'v_and_b32 v{vt+1}, 7, v2')
    k(f'v_and_b32 v26, 1, v{vG}')
    k(f'v_xor_b32 v{vt+1}, v{vt+1}, v26')
    for q in range(4):
        k(f'v_xor_b32 v26, {2*q}, v{vt+1}')
        k(f'v_lshl_add_u32 v{vR+q}, v26, 4, v{vt}')
        if q: k(f'v_add_u32 v{vR+q}, {q*8*8192}, v{vR+q}')
    k(f'v_lshrrev_b32 v{vt}, 2, v{vI}')
    k(f'v_bfe_u32 v{vt+1}, v{vI}, 1, 1')
    k(f'v_lshl_add_u32 v{vt+1}, v{vt}, 1, v{vt+1}')
    k(f'v_xor_b32 v{vt+1}, v{vt+1}, v{vG}')
    k(f'v_lshlrev_b32 v{vt+1}, 4, v{vt+1}')
    k(f'v_lshl_add_u32 v{vt+1}, v{vt}, 10, v{vt+1}')
    k(f'v_and_b32 v{vt}, 3, v{vI}')
    k(f'v_lshl_add_u32 v{vt+1}, v{vt}, 7, v{vt+1}')
    k('s_lshl_b32 s33, s16, 12')
    k(f'v_add_u32 v{vRA}, s33, v{vt+1}')
    k(f'v_xor_b32 v{vRA+1}, 64, v{vRA}')
    k('s_lshl_b32 s22, s18, 1')
    k('s_add_u32 s22, s22, s20')
    for j in range(4):
        k(f's_add_u32 s{24+j}, s22, {j}')
        k(f's_and_b32 s{24+j}, s{24+j}, 3')
    vAcc, vOp = 28, 84
    k('s_lshl_b32 s32, s16, 11')
    k('s_add_u32 s32, s32, 28672')
    def mm(n):
        o = vOp + 36*(n&1)
        for T in range(2):
            for ct in range(7):
                a = vAcc + 28*T + 4*ct
                k(f'v_mfma_f32_16x16x32_bf16 {vr(a,4)}, {vr(o+4*T,4)}, {vr(o+8+4*ct,4)}, {"0" if n == 0 else vr(a,4)}')
    def body(gstep, rdc, cdma):
        k('s_waitcnt lgkmcnt(0)')
        k('s_and_b32 s5, s5, 0xffff'); k('s_and_b32 s9, s9, 0xffff'); k('s_and_b32 s13, s13, 0xffff')
        k.vmq = []
        def issue(j):
            sb = (j % 3)*43008
            k(f's_lshl_b32 s36, s{24+j}, 7')
            k(f's_mul_i32 s35, s{24+j}, {gstep}')
            for q in range(4):
                k(f's_add_u32 s34, s33, {sb + q*1024}')
                k('s_mov_b32 m0, s34')
                k('s_nop 0')
                k.vm(f'buffer_load_dwordx4 v{vR+q}, s[8:11], s36 offen lds', j)
            cdma(sb, j)
        D = OPT['k1d']
        for j in range(D): issue(j)
        def rd(n):
            j, es = n >> 1, n & 1
            o = vOp + 36*(n&1)
            for T in range(2): k(f'ds_read_b128 {vr(o+4*T,4)}, v{vRAs+es} offset:{T*512}')
            rdc(o + 8, es)
        for n in range(9):
            j = n >> 1
            if n < 8 and n % 2 == 0:
                sb = (j % 3)*43008
                k.wvm(j, extra='lgkmcnt(0)')
                k('s_barrier')
                if j + D < 4: issue(j + D)
                if tl == 1 and j in (0, 1, 3): k(f's_memrealtime s[{46+2*((j+1)//2)}:{47+2*((j+1)//2)}]')
                for e in range(2):
                    k(f'v_add_u32 v{vRAs+e}, {sb}, v{vRA+e}')
                    k(f'v_add_u32 v{vCAs+e}, {sb}, v{vCA+e}')
            if n < 8: rd(n)
            if n > 0:
                k(f's_waitcnt lgkmcnt({0 if (n == 8 or tl) else min(15, rdc.n + 2)})')
                mm(n-1)
    k('s_bitcmp1_b32 s2, 4')
    k('s_cbranch_scc1 P_gB')
    k('s_mul_i32 s22, s20, 7')
    k('s_add_u32 s22, s22, s16')
    k('s_lshr_b32 s23, s22, 1')
    k('s_lshl_b32 s23, s23, 5')
    k('s_and_b32 s22, s22, 1')
    k('s_lshl_b32 s22, s22, 3')
    k('s_add_u32 s22, s22, s23')
    k(f'v_bfe_u32 v{vt}, v2, 4, 1')
    k(f'v_lshlrev_b32 v{vt}, 2, v{vt}')
    k(f'v_bfe_u32 v{vt+1}, v2, 5, 1')
    k(f'v_lshl_add_u32 v{vt}, v{vt+1}, 1, v{vt}')
    k(f'v_bfe_u32 v{vt+1}, v2, 3, 1')
    k(f'v_add3_u32 v{vt}, v{vt}, v{vt+1}, s22')
    k(f'v_lshlrev_b32 v{vt}, 13, v{vt}')
    k('s_lshl_b32 s22, s19, 9')
    k(f'v_add_u32 v{vt}, s22, v{vt}')
    k(f'v_and_b32 v{vt+1}, 7, v2')
    k(f'v_xor_b32 v{vt+1}, v{vt+1}, v{vG}')
    k(f'v_lshl_add_u32 v{vC}, v{vt+1}, 4, v{vt}')
    k(f'v_xor_b32 v{vt+1}, 4, v{vt+1}')
    k(f'v_lshl_add_u32 v{vC+1}, v{vt+1}, 4, v{vt}')
    k(f'v_add_u32 v{vC+1}, {16*8192}, v{vC+1}')
    k(f'v_lshrrev_b32 v{vt}, 1, v{vI}')
    k(f'v_xor_b32 v{vt}, v{vt}, v{vG}')
    k(f'v_lshlrev_b32 v{vt}, 4, v{vt}')
    k(f'v_lshl_add_u32 v{vt}, v{vI}, 7, v{vt}')
    k(f'v_add_u32 v{vCA}, 28672, v{vt}')
    k(f'v_xor_b32 v{vCA+1}, 64, v{vCA}')
    def rdA(o, es):
        for ct in range(7): k(f'ds_read_b128 {vr(o+4*ct,4)}, v{vCAs+es} offset:{ct*2048}')
    rdA.n = 7
    def dmaA(sb, j):
        for hq in range(2):
            k(f's_add_u32 s34, s32, {sb + hq*1024}')
            k('s_mov_b32 m0, s34')
            k('s_nop 0')
            k.vm(f'buffer_load_dwordx4 v{vC+hq}, s[12:15], s35 offen lds', j)
    body(128, rdA, dmaA)
    k(f's_mov_b32 s22, {f32bits(math.log2(math.e)/16):#x}')
    k(f's_mov_b32 s23, {WTA}')
    k('s_branch P_gepi')
    k.label('P_gB')
    k(f's_mov_b32 s22, {(1<<32)//14 + 1}')
    k(f'v_mul_hi_u32 v{vt}, v0, s22')
    k(f'v_mul_u32_u24 v{vt+1}, 14, v{vt}')
    k(f'v_sub_u32 v{vt+1}, v0, v{vt+1}')
    k(f'v_mul_u32_u24 v{vt}, 896, v{vt}')
    k(f'v_lshl_add_u32 v{vt}, v{vt+1}, 4, v{vt}')
    k('s_mul_i32 s22, s19, 229376')
    k('s_mul_i32 s23, s20, 224')
    k('s_add_u32 s22, s22, s23')
    k(f'v_add_u32 v{vC}, s22, v{vt}')
    k(f'v_add_u32 v{vC+1}, {32*896}, v{vC}')
    k('s_lshl_b32 s32, s16, 10')
    k('s_add_u32 s32, s32, 28672')
    k(f'v_bfe_u32 v{vt}, v2, 2, 2')
    k(f'v_lshl_add_u32 v{vt}, v{vG}, 3, v{vt}')
    k(f'v_mul_u32_u24 v{vt}, 224, v{vt}')
    k(f'v_and_b32 v{vt+1}, 3, v2')
    k(f'v_lshl_add_u32 v{vt}, v{vt+1}, 3, v{vt}')
    k(f'v_add_u32 v{vCA}, 28672, v{vt}')
    k(f'v_add_u32 v{vCA+1}, 7168, v{vCA}')
    def rdB(o, es):
        for ct in range(7):
            for hh in range(2): k(f'ds_read_b64_tr_b16 {vr(o+4*ct+2*hh,2)}, v{vCAs+es} offset:{ct*32+hh*896}')
    rdB.n = 14
    def dmaB(sb, j):
        for hq in range(2):
            k(f's_add_u32 s34, s32, {sb + hq*7168}')
            k('s_mov_b32 m0, s34')
            k('s_nop 0')
            k.vm(f'buffer_load_dwordx4 v{vC+hq}, s[12:15], s35 offen lds', j)
    body(64*896, rdB, dmaB)
    k('s_mov_b32 s22, 1.0')
    k(f's_mov_b32 s23, {WTB}')
    k.label('P_gepi')
    if tl: k('s_memrealtime s[52:53]')
    k('s_mul_i32 s24, s19, 28')
    k('s_mul_i32 s25, s20, 7')
    k('s_add_u32 s24, s24, s25')
    k('s_mul_i32 s24, s24, 14')
    k('s_add_u32 s24, s24, s21')
    k('s_lshl_b32 s24, s24, 10')
    k('s_add_u32 s24, s24, s23')
    k('s_mov_b32 s23, s22')
    for ct in range(7):
        d = vOp + 4*ct
        for T in range(2):
            a = vAcc + 28*T + 4*ct
            k(f'v_pk_mul_f32 {vr(a,2)}, {vr(a,2)}, s[22:23]')
            k(f'v_pk_mul_f32 {vr(a+2,2)}, {vr(a+2,2)}, s[22:23]')
            k(f'v_cvt_pk_bf16_f32 v{d+2*T}, v{a}, v{a+1}')
            k(f'v_cvt_pk_bf16_f32 v{d+2*T+1}, v{a+2}, v{a+3}')
        k(f'buffer_store_dwordx4 {vr(d,4)}, v{vL16}, {WS}, s24 offen ' + OPT['k1st'])
        k('s_add_u32 s24, s24, 14336')
    if tl:
        k('s_waitcnt vmcnt(0)')
        k('s_memrealtime s[42:43]')
        k('s_lshl_b32 s44, s2, 5')
        k(f's_add_u32 s44, s44, {STAMP + 0xE0000}')
        k('s_waitcnt lgkmcnt(0)')
        k('v_mov_b32 v10, s40'); k('v_mov_b32 v11, s42'); k('v_mov_b32 v12, s46'); k('v_mov_b32 v13, s48')
        k('v_mov_b32 v14, s50'); k('v_mov_b32 v15, s52')
        k(f'buffer_store_dwordx4 v[10:13], off, {WS}, s44')
        k(f'buffer_store_dwordx2 v[14:15], off, {WS}, s44 offset:16')
    k('s_endpgm')
    k.label('P_ln')
    srd(k, 8, 0, 1835008); srd(k, 12, 64, 896)
    srd(k, 28, 8, 7168)
    k('s_mov_b32 s17, s2')
    k('v_lshrrev_b32 v3, 3, v2')
    k('s_lshl_b32 s18, s17, 3')
    k('v_add_u32 v3, s18, v3')
    k('v_and_b32 v4, 7, v2')
    k('v_mul_u32_u24 v5, 896, v3')
    k('v_lshl_add_u32 v5, v4, 4, v5')
    k('v_lshlrev_b32 v6, 4, v4')
    vX, vW, vF = 16, 44, 72
    k('s_waitcnt lgkmcnt(0)')
    k('s_and_b32 s5, s5, 0xffff'); k('s_and_b32 s9, s9, 0xffff'); k('s_and_b32 s13, s13, 0xffff')
    for i in range(7): k(f'buffer_load_dwordx4 {vr(vX+4*i,4)}, v5, s[8:11], 0 offen offset:{i*128}')
    for i in range(7): k(f'buffer_load_dwordx4 {vr(vW+4*i,4)}, v6, s[12:15], 0 offen offset:{i*128}')
    k('v_lshrrev_b32 v7, 4, v3')
    k('v_mul_u32_u24 v7, 14336, v7')
    k('v_and_b32 v8, 15, v3')
    k('v_lshl_add_u32 v7, v8, 4, v7')
    k('v_lshrrev_b32 v8, 2, v4')
    k('v_lshl_add_u32 v7, v8, 10, v7')
    k('v_and_b32 v8, 3, v4')
    k('v_lshl_add_u32 v9, v8, 8, v7')
    k('v_bfe_u32 v8, v4, 1, 1')
    k('v_lshl_add_u32 v10, v8, 9, v7')
    k('v_and_b32 v8, 1, v4')
    k('v_lshl_add_u32 v10, v8, 3, v10')
    k('s_mov_b32 s20, 0xffff0000')
    k('s_and_b32 s29, s29, 0xffff')
    k('v_bfe_u32 v12, v2, 2, 3')
    k('v_mul_u32_u24 v12, 896, v12')
    k('v_and_b32 v13, 3, v2')
    k('v_lshl_add_u32 v12, v13, 3, v12')
    k('v_lshrrev_b32 v13, 5, v2')
    k('v_lshl_add_u32 v12, v13, 2, v12')
    k('s_lshl_b32 s21, s2, 5')
    k('buffer_load_dword v160, v12, s[28:31], s21 offen')
    k('s_barrier')
    k('s_mov_b32 s32, s4'); k('s_mov_b32 s33, s5'); k(f's_mov_b32 s34, {SENT_END - MEM_S}'); k('s_mov_b32 s35, 0x20000')
    k('s_mov_b32 s36, s4'); k('s_mov_b32 s37, s5'); k(f's_mov_b32 s38, {FLG + FLG_SZ}'); k('s_mov_b32 s39, 0x20000')
    k('v_lshlrev_b32 v11, 4, v2')
    k('s_mul_i32 s21, s2, 6144')
    k(f's_add_u32 s21, s21, {MEM + MEM_S}')
    k('s_add_u32 s22, s21, 4096')
    for r in range(4): k(f'v_mov_b32 v{164+r}, -1')
    for r in range(4): k(f'v_mov_b32 v{168+r}, 0')
    for r in range(6): k(f'buffer_store_dwordx4 v[164:167], v11, s[32:35], s{21 if r < 4 else 22} offen offset:{(r&3)*1024}')
    k('s_mul_i32 s21, s2, 12288')
    k(f's_add_u32 s21, s21, {PT}')
    for r in range(12):
        k(f'buffer_store_dwordx4 v[164:167], v11, {WS}, s21 offen offset:{(r&3)*1024}')
        if (r&3) == 3: k('s_add_u32 s21, s21, 4096')
    k('s_lshl_b32 s21, s2, 10')
    k(f's_add_u32 s21, s21, {FLG}')
    k('buffer_store_dwordx4 v[168:171], v11, s[36:39], s21 offen')
    k('s_waitcnt vmcnt(27)')
    for d in range(28):
        k(f'v_lshlrev_b32 v{vF+2*d}, 16, v{vX+d}')
        k(f'v_and_b32 v{vF+2*d+1}, s20, v{vX+d}')
    def red8(v):
        for ctl in ('quad_perm:[1,0,3,2]', 'quad_perm:[2,3,0,1]', 'row_half_mirror'):
            k.nop(2)
            k(f'v_add_f32_dpp v{v}, v{v}, v{v} {ctl} row_mask:0xf bank_mask:0xf')
    def rbf(v):
        k(f'v_cvt_pk_bf16_f32 v{v}, v{v}, v{v}')
        k(f'v_and_b32 v{v}, s20, v{v}')
    k(f'v_pk_add_f32 v[12:13], {vr(vF,2)}, {vr(vF+2,2)}')
    for d in range(2, 28): k(f'v_pk_add_f32 v[12:13], v[12:13], {vr(vF+2*d,2)}')
    k('v_add_f32 v12, v12, v13')
    k('s_barrier')
    red8(12)
    k(f's_mov_b32 s21, {f32bits(1/448):#x}')
    k('v_mul_f32 v12, s21, v12')
    k('v_mov_b32 v14, 0'); k('v_mov_b32 v15, 0')
    for d in range(28):
        k(f'v_pk_add_f32 {vr(vX,2)}, {vr(vF+2*d,2)}, v[12:13] op_sel_hi:[1,0] neg_lo:[0,1] neg_hi:[0,1]')
        k(f'v_pk_fma_f32 v[14:15], {vr(vX,2)}, {vr(vX,2)}, v[14:15]')
    k('v_add_f32 v14, v14, v15')
    red8(14)
    k('v_mul_f32 v14, s21, v14')
    rbf(14)
    k(f'v_add_f32 v14, {f32bits(1e-5):#x}, v14')
    rbf(14)
    k('v_sqrt_f32 v14, v14')
    k.nop(1)
    rbf(14)
    k('v_rcp_f32 v15, v14')
    rbf(12)
    k('s_waitcnt vmcnt(19)')
    k('v_mov_b32 v128, 0'); k('v_mov_b32 v129, 0')
    vO, vS = vX, 132
    for d in range(28):
        f = vF + 2*d
        k(f'v_pk_add_f32 {vr(f,2)}, {vr(f,2)}, v[12:13] op_sel_hi:[1,0] neg_lo:[0,1] neg_hi:[0,1]')
        k(f'v_cvt_pk_bf16_f32 v130, v{f}, v{f+1}')
        k(f'v_lshlrev_b32 v{f}, 16, v130')
        k(f'v_and_b32 v{f+1}, s20, v130')
        k(f'v_pk_mul_f32 v[130:131], {vr(f,2)}, v[14:15] op_sel:[0,1] op_sel_hi:[1,1]')
        k(f'v_pk_fma_f32 {vr(f,2)}, v[130:131], v[14:15], {vr(f,2)} op_sel_hi:[1,0,1] neg_lo:[1,0,0] neg_hi:[1,0,0]')
        k(f'v_pk_fma_f32 v[130:131], {vr(f,2)}, v[14:15], v[130:131] op_sel:[0,1,0] op_sel_hi:[1,1,1]')
        k(f'v_cvt_pk_bf16_f32 v{vO+d}, v130, v131')
        so = vS + 4*(d>>2) + {0:0, 1:2, 2:1, 3:3}[d&3]
        k(f'v_mov_b32 v{so}, v{vO+d}')
        k(f'v_dot2_f32_bf16 v{128+(d&1)}, v{vO+d}, v{vW+d}, v{128+(d&1)}')
        if d in (3, 15): k('s_barrier')
    k(f's_mov_b32 s22, {XNR}'); k(f's_mov_b32 s23, {XNF}'); k(f's_mov_b32 s24, {XNS}')
    for i in range(7):
        k(f'buffer_store_dwordx4 {vr(vO+4*i,4)}, v5, {WS}, s22 offen offset:{i*128}')
        k(f'buffer_store_dwordx4 {vr(vO+4*i,4)}, v9, {WS}, s23 offen offset:{(i&1)*2048}')
        k(f'buffer_store_dwordx2 {vr(vS+4*i,2)}, v10, {WS}, s24 offen offset:{(i&1)*2048}')
        k(f'buffer_store_dwordx2 {vr(vS+4*i+2,2)}, v10, {WS}, s24 offen offset:{(i&1)*2048+256}')
        if i & 1:
            k('s_add_u32 s23, s23, 4096'); k('s_add_u32 s24, s24, 4096')
    k.nop(2)
    k('v_add_f32 v128, v128, v129')
    red8(128)
    rbf(128)
    k('v_lshlrev_b32 v3, 2, v3')
    k(f's_mov_b32 s22, {RR}')
    k(f'buffer_store_dword v128, v3, {WS}, s22 offen')
    if tl:
        k('s_waitcnt vmcnt(0)')
        k('s_memrealtime s[42:43]')
        k('s_lshl_b32 s44, s2, 5')
        k(f's_add_u32 s44, s44, {STAMP + 0xE0000}')
        k('s_waitcnt lgkmcnt(0)')
        k('v_mov_b32 v10, s42')
        k(f'buffer_store_dword v10, off, {WS}, s44 offset:24')
    k('s_cmp_ge_u32 s2, 28')
    k('s_cbranch_scc1 P_exit')
    k('v_min_u32 v160, -2, v160')
    k('v_lshlrev_b32 v11, 2, v2')
    k('s_lshl_b32 s21, s2, 8')
    k(f's_add_u32 s22, s21, {MEM}')
    k(f's_add_u32 s21, s21, {SENT_END - MEM_S}')
    k(f'buffer_store_dword v160, v11, {WS}, s22 offen')
    k(f'buffer_store_dword v160, v11, {WS}, s21 offen')
    k.label('P_exit')
    k('s_endpgm')
    return k
```

```python
from chain import *
from prep import srd, f32bits
WS = 's[4:7]'
sH, sBLK, sSEG, sQT, sCG, sJ = 60, 61, 62, 63, 64, 65
vLn, vL16 = 1, 2

def wait_flag(k, off_sgpr, target, vT, name='Lwf', sleep=8):
    lp, dn = k.newlabel(name), k.newlabel(name + 'd')
    k(f's_mov_b32 s{sCNT}, 0')
    k.label(lp)
    k(f'buffer_load_dword v{vT}, off, {WS}, s{off_sgpr} sc1')
    k(f's_add_u32 s{sCNT}, s{sCNT}, 1')
    k(f's_cmp_gt_u32 s{sCNT}, s{sT2}')
    k('s_cbranch_scc1 L_fail')
    k('s_waitcnt vmcnt(0)')
    k(f'v_cmp_le_u32 vcc, {target}, v{vT}')
    k(f's_cbranch_vccnz {dn}')
    k(f's_sleep {sleep}')
    k(f's_branch {lp}')
    k.label(dn)

def wait1(k, off_sgpr, cond, vT, sleep, fast=None):
    lp, dn, l2 = k.newlabel('Lw1'), k.newlabel('Lw1d'), k.newlabel('Lw1f')
    k(f's_cmp_lg_u32 s{sWAVE}, 0')
    k(f's_cbranch_scc1 {dn}')
    k(f's_mov_b32 s{sCNT}, 0')
    k.label(lp)
    k(f'buffer_load_dword v{vT}, off, {WS}, s{off_sgpr} sc1')
    k(f's_add_u32 s{sCNT}, s{sCNT}, 1')
    k(f's_cmp_gt_u32 s{sCNT}, s{sT2}')
    k('s_cbranch_scc1 L_fail')
    k('s_waitcnt vmcnt(0)')
    k(cond)
    k(f's_cbranch_vccnz {dn}')
    if fast:
        k('s_sleep 2')
        k(fast)
        k(f's_cbranch_scc1 {lp}')
    k(f's_sleep {sleep}')
    k(f's_branch {lp}')
    k.label(dn)
    k('s_barrier')

def signal(k, off_sgpr, vT, val=1):
    dn = k.newlabel('Lsg')
    k('s_waitcnt vmcnt(0)')
    k('s_barrier')
    k(f's_cmp_lg_u32 s{sWAVE}, 0')
    k(f's_cbranch_scc1 {dn}')
    k('s_mov_b64 exec, 1')
    k(f'v_mov_b32 v{vT}, {val}')
    k(f'buffer_atomic_add v{vT}, off, {WS}, s{off_sgpr}')
    k('s_mov_b64 exec, -1')
    k.label(dn)

TL = [False]
ACC0 = 32
def acc(lt, tt): return ACC0 + 4*(lt*8 + tt)

def gemm(k, wbase, swap, ntt=8):
    vW = 8
    vXa = 15
    k.vmq = []
    nst = ntt // 4
    k(f's_mul_i32 s41, s{sWAVE}, {14336*nst}')
    k(f's_mul_i32 s40, s{sBLK}, {14336*ntt}')
    k(f's_add_u32 s40, s40, s41')
    k(f's_add_u32 s40, s40, {XNF}')
    k(f's_mul_i32 s42, s{sH}, {28*14336}')
    k(f's_mul_i32 s43, s{sWAVE}, {7*14336}')
    k(f's_add_u32 s42, s42, s43')
    k(f's_add_u32 s42, s42, {wbase}')
    for j in range(14):
        k(f's_add_u32 s{76+j}, s59, {j}')
        k(f's_sub_u32 s43, s{76+j}, 14')
        k(f's_cmp_ge_u32 s{76+j}, 14')
        k(f's_cselect_b32 s{76+j}, s43, s{76+j}')
        k(f's_lshl_b32 s{76+j}, s{76+j}, 10')
    for lt in range(7): k(f'v_add_u32 v{vW+lt}, {lt*14336}, v{vL16}')
    k(f'v_add_u32 v17, 14336, v{vL16}')
    k('s_barrier')
    def stx(j, t):
        k(f's_add_u32 s43, s41, s{76+j}')
        if t: k('s_add_u32 s43, s43, 14336')
        k('s_mov_b32 m0, s43')
        k(f's_add_u32 s44, s40, s{76+j}')
        k.vm(f'buffer_load_dwordx4 v{17 if t else vL16}, {WS}, s44 offen lds', f'x{j}')
    def ldw(j, lt):
        if lt == 0: k(f's_add_u32 s45, s42, s{76+j}')
        k.vm(f'buffer_load_dwordx4 {ar(28*(j%3)+4*lt,4)}, v{vW+lt}, {WS}, s45 offen', f'w{j}')
    def xaddr(j):
        k(f'v_add_u32 v{vXa}, s{76+j}, v{vL16}')
        k(f'v_add_u32 v{vXa+1}, 57344, v{vXa}')
    def ldx(j, tt): k(f'ds_read_b128 {ar(84+32*(j&1)+4*tt,4)}, v{vXa + (tt>>2)} offset:{(tt&3)*14336}')
    for j in range(2):
        for t in range(nst): stx(j, t)
        for lt in range(7): ldw(j, lt)
    for j in (2, 3):
        for t in range(nst): stx(j, t)
    xaddr(0)
    k.wvm('x0')
    k('s_barrier')
    if TL[0] and not swap:
        tstamp(k, 57, 12, 18); k.vmq.append('st')
    for tt in range(ntt): ldx(0, tt)
    for j in range(14):
        if j + 1 < 14: xaddr(j+1)
        k.wvm(f'w{j}', f'x{j+1}', extra='lgkmcnt(0)')
        if j + 1 < 14: k('s_barrier')
        for tt in range(ntt):
            for lt in range(7):
                x, w = ar(84+32*(j&1)+4*tt,4), ar(28*(j%3)+4*lt,4)
                a, b = (w, x) if swap else (x, w)
                c = '0' if j == 0 else vr(acc(lt,tt),4)
                k(f'v_mfma_f32_16x16x32_bf16 {vr(acc(lt,tt),4)}, {a}, {b}, {c}')
                if lt == 1 and j + 1 < 14: ldx(j+1, tt)
                if ntt == 8:
                    if lt == 3 and tt < 2 and j + 4 < 14: stx(j+4, tt)
                    if lt == 5 and tt >= 1 and j + 2 < 14: ldw(j+2, tt-1)
                else:
                    if lt == 3 and tt == 0 and j + 4 < 14: stx(j+4, 0)
                    if lt in (3, 5) and (tt, lt) != (0, 3) and j + 2 < 14: ldw(j+2, 2*tt + (lt == 5) - 1)

def task_U(k, half=False):
    nq = 2 if half else 4
    k.label('T_Uh' if half else 'T_U')
    k(f's_mul_i32 s59, s{sBLK}, 7' if half else f's_min_u32 s59, s{sBLK}, 13')
    gemm(k, WTB, False, 2*nq)
    if TL[0]: tstamp(k, 57, 8, 16)
    k(f's_mul_i32 s40, s{sBLK}, {nq*UF_SEG}')
    k(f's_lshl_b32 s41, s{sH}, 11')
    k(f's_add_u32 s40, s40, s41')
    k(f's_add_u32 s40, s40, {UF}')
    k(f's_mul_i32 s41, s{sWAVE}, 7')
    for lt in range(7):
        k(f's_add_u32 s42, s41, {lt}')
        k(f's_lshr_b32 s43, s42, 1')
        k(f's_lshl_b32 s43, s43, 15')
        k(f's_and_b32 s42, s42, 1')
        k(f's_lshl_b32 s42, s42, 10')
        k(f's_add_u32 s{44+lt}, s40, s43')
        k(f's_add_u32 s{44+lt}, s{44+lt}, s42')
    if OPT['uwin'] and not half:
        lw = k.newlabel('Luw')
        k(f"s_cmp_lt_u32 s{sBLK}, {OPT['uwin']}")
        k(f's_cbranch_scc1 {lw}')
        k(f's_lshl_b32 s40, s{sBLK}, 7')
        k(f"s_add_u32 s40, s40, {flag(F_U) - 128*OPT['uwin']}")
        wait1(k, 40, 'v_cmp_le_u32 vcc, 32, v16', 16, 8)
        k.label(lw)
    for q in range(nq):
        for lt in range(7):
            a, b = acc(lt, 2*q), acc(lt, 2*q+1)
            k(f'v_cvt_pk_bf16_f32 v{a}, v{a}, v{a+1}')
            k(f'v_cvt_pk_bf16_f32 v{a+1}, v{a+2}, v{a+3}')
            k(f'v_cvt_pk_bf16_f32 v{a+2}, v{b}, v{b+1}')
            k(f'v_cvt_pk_bf16_f32 v{a+3}, v{b+2}, v{b+3}')
            k(f'buffer_store_dwordx4 {vr(a,4)}, v{vL16}, {WS}, s{44+lt} offen ' + OPT['ust'])
            k(f's_add_u32 s{44+lt}, s{44+lt}, {UF_SEG}')
    if half: k(f's_mov_b32 s40, {flag(F_U)}')
    else:
        k(f's_lshl_b32 s40, s{sBLK}, 7')
        k(f's_add_u32 s40, s40, {flag(F_U)}')
    signal(k, 40, 3, 1 if half else 2)
    k('s_branch W_next')

def xlane_red(k, op, m, t):
    for sw in ('v_permlane16_swap_b32', 'v_permlane32_swap_b32'):
        k(f'v_mov_b32 v{t}, v{m}')
        k.nop(2)
        k(f'{sw} v{m}, v{t}')
        k(f'{op} v{m}, v{m}, v{t}')

def task_P(k):
    k.label('T_P')
    k(f's_min_u32 s59, s{sBLK}, 13')
    gemm(k, WTA, True)
    vE, vO, vG, vI, vMK, vT = 16, 17, 18, 19, 20, 21
    k(f's_mul_i32 s40, s{sWAVE}, 7')
    k(f's_lshr_b32 s40, s40, 1')
    k(f's_lshl_b32 s40, s40, 10')
    k(f's_and_b32 s41, s{sWAVE}, 1')
    k(f's_lshl_b32 s42, s41, 3')
    k(f's_add_u32 s42, s42, s40')
    k(f's_mul_i32 s43, s41, 1016')
    k(f's_add_u32 s43, s43, 8')
    k(f's_add_u32 s43, s43, s40')
    k(f'v_add_u32 v{vE}, s42, v{vL16}')
    k(f'v_add_u32 v{vO}, s43, v{vL16}')
    k(f'v_add_u32 v{vT}, 57344, v{vE}')
    k(f'v_add_u32 v{vT+1}, 57344, v{vO}')
    k('s_barrier')
    for tt in range(8):
        for lt in range(7):
            a = acc(lt, tt)
            k(f'v_cvt_pk_bf16_f32 v{a}, v{a}, v{a+1}')
            k(f'v_cvt_pk_bf16_f32 v{a+1}, v{a+2}, v{a+3}')
            ad = (vE if lt % 2 == 0 else vO) if tt < 4 else (vT if lt % 2 == 0 else vT+1)
            k(f'ds_write_b64 v{ad}, {vr(a,2)} offset:{(tt&3)*14336 + (lt>>1)*1024}')
    k(f's_lshl_b32 s{sSEG}, s{sBLK}, 2')
    k(f's_add_u32 s{sSEG}, s{sSEG}, s{sWAVE}')
    k(f's_mul_i32 s40, s{sSEG}, 28672')
    k(f's_add_u32 s40, s40, {XNS}')
    vKT, vKM, vS = 32, 144, 200
    k('s_waitcnt lgkmcnt(0)')
    for f in range(28):
        k(f'buffer_load_dwordx4 {vr(vKT+4*f,4)}, v{vL16}, {WS}, s40 offen offset:{(f&3)*1024}')
        if (f&3) == 3: k('s_add_u32 s40, s40, 4096')
    k('s_barrier')
    k(f's_mul_i32 s41, s{sWAVE}, 28672')
    k(f'v_add_u32 v{vT}, s41, v{vL16}')
    for f in range(28): k(f'ds_read_b128 {ar(4*f,4)}, v{vT} offset:{f*1024}')
    k(f'v_lshrrev_b32 v{vG}, 4, v{vLn}')
    k(f'v_and_b32 v{vI}, 15, v{vLn}')
    k(f'v_lshrrev_b32 v{vMK}, 1, v{vG}')
    k(f'v_lshlrev_b32 v{vMK}, 8, v{vMK}')
    k(f'v_and_b32 v{vT}, 7, v{vI}')
    k(f'v_lshl_add_u32 v{vMK}, v{vT}, 4, v{vMK}')
    k(f'v_and_b32 v{vT}, 1, v{vG}')
    k(f'v_lshl_add_u32 v{vMK}, v{vT}, 7, v{vMK}')
    k(f'v_lshlrev_b32 v{vT}, 2, v{vG}')
    for r in range(4):
        k(f'v_cmp_gt_u32 s[{44+2*r}:{45+2*r}], v{vT}, v{vI}')
        if r < 3: k(f'v_add_u32 v{vT}, 1, v{vT}')
    k(f'v_cmp_gt_u32 s[52:53], 2, v{vG}')
    St = {(1,0): vS, (1,1): vS+4, (2,1): vS+8, (0,0): vS+12, (0,1): vS+16}
    k('s_waitcnt vmcnt(0) lgkmcnt(0)')
    for ks in range(14):
        for (kt, qt) in ((1,0), (1,1), (2,1)):
            c = '0' if ks == 0 else vr(St[kt,qt],4)
            k(f'v_mfma_f32_16x16x32_bf16 {vr(St[kt,qt],4)}, {vr(vKT+56*(kt-1)+4*ks,4)}, {ar(56*qt+4*ks,4)}, {c}')
    if TL[0]: tstamp(k, 57, 8, vT)
    k(f's_add_u32 s40, s{sSEG}, 63')
    k(f's_and_b32 s40, s40, 63')
    k(f's_mul_i32 s40, s40, {MEM_S}')
    k(f's_add_u32 s40, s40, {MEMX}')
    k(f's_add_u32 s41, s40, 4096')
    lp, dn = k.newlabel('Lpm'), k.newlabel('Lpd')
    k(f's_mov_b32 s{sCNT}, 0')
    k.label(lp)
    for ks in range(14):
        k(f'buffer_load_dwordx4 {vr(vKM+4*ks,4)}, v{vMK}, {WS}, s{40 if ks < 8 else 41} offen offset:{(ks&7)*512} sc1')
    k(f's_add_u32 s{sCNT}, s{sCNT}, 1')
    k(f's_cmp_gt_u32 s{sCNT}, s{sT2}')
    k('s_cbranch_scc1 L_fail')
    k('s_waitcnt vmcnt(0)')
    k(f'v_max3_u32 v{vT}, v{vKM}, v{vKM+1}, v{vKM+2}')
    for r in range(3, 55, 2): k(f'v_max3_u32 v{vT}, v{vT}, v{vKM+r}, v{vKM+r+1}')
    k(f'v_max_u32 v{vT}, v{vT}, v{vKM+55}')
    k(f'v_cmp_eq_u32 vcc, -1, v{vT}')
    k(f's_cbranch_vccz {dn}')
    l2 = k.newlabel('Lpl')
    k.label(l2)
    k('s_sleep 2')
    k(f's_cmp_ge_u32 s{sSEG}, 62')
    k(f's_cbranch_scc1 {l2}f')
    k(f"s_sleep {OPT['msl']}")
    k.label(l2 + 'f')
    k(f'buffer_load_dword v{vT}, v{vMK}, {WS}, s41 offen offset:2560 sc1')
    k(f's_add_u32 s{sCNT}, s{sCNT}, 1')
    k(f's_cmp_gt_u32 s{sCNT}, s{sT2}')
    k('s_cbranch_scc1 L_fail')
    k('s_waitcnt vmcnt(0)')
    k(f'v_cmp_eq_u32 vcc, -1, v{vT}')
    k(f's_cbranch_vccnz {l2}')
    k(f's_branch {lp}')
    k.label(dn)
    if TL[0]: tstamp(k, 57, 12, vT)
    for ks in range(14):
        for qt in range(2):
            c = '0' if ks == 0 else vr(St[0,qt],4)
            k(f'v_mfma_f32_16x16x32_bf16 {vr(St[0,qt],4)}, {vr(vKM+4*ks,4)}, {ar(56*qt+4*ks,4)}, {c}')
    k(f's_mul_i32 s40, s{sSEG}, {PT_SEG}')
    k(f's_add_u32 s40, s40, {PT}')
    k(f's_lshl_b32 s41, s{sH}, 11')
    k(f's_add_u32 s41, s41, s40')
    k(f's_lshr_b32 s42, s{sH}, 1')
    k(f's_lshl_b32 s42, s42, 11')
    k(f's_and_b32 s43, s{sH}, 1')
    k(f's_lshl_b32 s43, s43, 2')
    k(f's_add_u32 s42, s42, s43')
    k(f's_add_u32 s42, s42, s40')
    k(f's_add_u32 s42, s42, 32768')
    k(f'v_mov_b32 v{vT+2}, 0xff800000')
    k.nop(2)
    for d in ((1,0), (2,1)):
        for r in range(4):
            k(f'v_cndmask_b32 v{St[d]+r}, v{St[d]+r}, v{vT+2}, s[{44+2*r}:{45+2*r}]')
    for qt in range(2):
        tiles = [St[0,qt], St[1,qt]] + ([St[2,1]] if qt else [])
        regs = [t + r for t in tiles for r in range(4)]
        m, t, l = 24, 26, 28
        k(f'v_max3_f32 v{m}, v{regs[0]}, v{regs[1]}, v{regs[2]}')
        for i in range(3, len(regs) - 1, 2): k(f'v_max3_f32 v{m}, v{m}, v{regs[i]}, v{regs[i+1]}')
        k(f'v_max_f32 v{m}, v{m}, v{regs[-1]}')
        xlane_red(k, 'v_max_f32', m, t)
        for i in range(0, len(regs), 2):
            k(f'v_pk_add_f32 {vr(regs[i],2)}, {vr(regs[i],2)}, {vr(m,2)} op_sel_hi:[1,0] neg_lo:[0,1] neg_hi:[0,1]')
        for r in regs: k(f'v_exp_f32 v{r}, v{r}')
        k.nop(1)
        k(f'v_pk_add_f32 {vr(l,2)}, {vr(regs[0],2)}, {vr(regs[2],2)}')
        k(f'v_add_f32 v{l}, v{l}, v{l+1}')
        k(f'v_cndmask_b32 v{l}, 0, v{l}, s[52:53]')
        k(f'v_mov_b32 v{l+1}, 0')
        for i in range(4, len(regs), 2): k(f'v_pk_add_f32 {vr(l,2)}, {vr(l,2)}, {vr(regs[i],2)}')
        k(f'v_add_f32 v{l}, v{l}, v{l+1}')
        xlane_red(k, 'v_add_f32', l, t)
        k(f'v_rcp_f32 v{l}, v{l}')
        k.nop(1)
        for i in range(0, len(regs), 2):
            k(f'v_pk_mul_f32 {vr(regs[i],2)}, {vr(regs[i],2)}, {vr(l,2)} op_sel_hi:[1,0]')
        o = 220 + 8*qt
        k(f'v_cvt_pk_bf16_f32 v{o}, v{regs[4]}, v{regs[5]}')
        k(f'v_cvt_pk_bf16_f32 v{o+1}, v{regs[6]}, v{regs[7]}')
        if qt:
            k(f'v_cvt_pk_bf16_f32 v{o+2}, v{regs[8]}, v{regs[9]}')
            k(f'v_cvt_pk_bf16_f32 v{o+3}, v{regs[10]}, v{regs[11]}')
        else:
            k(f'v_mov_b64 {vr(o+2,2)}, 0')
        k(f'v_cvt_pk_bf16_f32 v{o+4}, v{regs[0]}, v{regs[1]}')
        k(f'v_cvt_pk_bf16_f32 v{o+5}, v{regs[2]}, v{regs[3]}')
        for r in range(6):
            if qt or r not in (2, 3): k(f'v_min_u32 v{o+r}, -2, v{o+r}')
        k(f'buffer_store_dwordx4 {vr(o,4)}, v{vL16}, {WS}, s41 offen offset:{qt*1024} sc1')
        k(f'buffer_store_dword v{o+4}, v{vL16}, {WS}, s42 offen offset:{qt*1024} sc1')
        k(f'buffer_store_dword v{o+5}, v{vL16}, {WS}, s42 offen offset:{qt*1024+8} sc1')
    k('s_branch W_next')

def rbf(k, v, sMaskHi):
    k(f'v_cvt_pk_bf16_f32 v{v}, v{v}, v{v}')
    k(f'v_and_b32 v{v}, s{sMaskHi}, v{v}')

def task_V(k):
    k.label('T_V')
    vU, vUM, vP, vD, vT = 32, 96, 128, 152, 16
    k(f's_lshr_b32 s{sBLK}, s{sSEG}, 2')
    k(f's_lshl_b32 s40, s{sBLK}, 7')
    k(f's_add_u32 s40, s40, {flag(F_U)}')
    wait1(k, 40, f'v_cmp_le_u32 vcc, 32, v{vT}', vT, 16)
    k(f's_mul_i32 s40, s{sSEG}, {UF_SEG}')
    k(f's_lshl_b32 s41, s{sCG}, 16')
    k(f's_add_u32 s40, s40, s41')
    k(f's_lshl_b32 s41, s{sWAVE}, 13')
    k(f's_add_u32 s40, s40, s41')
    k(f's_add_u32 s40, s40, {UF}')
    for bb in range(2):
        for hp in range(2):
            k(f's_add_u32 s41, s40, {bb*32768 + hp*4096}')
            for f in range(4):
                hh, T = 2*hp + (f>>1), f&1
                k(f'buffer_load_dwordx4 {vr(vU+16*(2*bb+T)+4*hh,4)}, v{vL16}, {WS}, s41 offen offset:{f*1024} sc1')
    srd(k, 68, 0, 1835008); srd(k, 72, 96, 1835008)
    vRow, vOff = vT+1, vT+2
    k(f's_lshl_b32 s42, s{sSEG}, 5')
    k(f's_lshl_b32 s43, s{sQT}, 4')
    k(f's_add_u32 s42, s42, s43')
    k(f'v_and_b32 v{vRow}, 15, v{vLn}')
    k(f'v_add_u32 v{vRow}, s42, v{vRow}')
    k(f'v_mul_u32_u24 v{vOff}, 896, v{vRow}')
    k(f'v_lshrrev_b32 v{vT+3}, 4, v{vLn}')
    k(f's_lshl_b32 s42, s{sCG}, 7')
    k(f's_lshl_b32 s43, s{sWAVE}, 5')
    k(f's_add_u32 s42, s42, s43')
    k(f'v_lshl_add_u32 v{vT+3}, v{vT+3}, 3, s42')
    k(f'v_add_u32 v{vOff}, v{vOff}, v{vT+3}')
    k(f's_mov_b32 s43, {XNR}')
    k('s_waitcnt lgkmcnt(0)')
    k('s_and_b32 s69, s69, 0xffff'); k('s_and_b32 s73, s73, 0xffff')
    vXr, vXn = vT+4, vT+6
    k(f'buffer_load_dwordx2 {vr(vXr,2)}, v{vOff}, s[68:71], 0 offen')
    k(f'buffer_load_dwordx2 {vr(vXn,2)}, v{vOff}, {WS}, s43 offen')
    k(f's_mov_b32 s40, {flag(F_M2)}')
    wait1(k, 40, f'v_cmp_le_u32 vcc, 28, v{vT}', vT, 16)
    vIx = 168
    k(f's_mov_b32 s40, {IDX}')
    for j in range(4): k(f'buffer_load_dwordx4 {vr(vIx+4*j,4)}, off, {WS}, s40 offset:{16*j} sc1')
    vSel, vSig, vY = 184, 185, 188
    k(f'v_mov_b32 v{vSel}, 0x40000000')
    k(f'v_mov_b32 v{vSig}, 0')
    k('s_waitcnt vmcnt(0)')
    for j in range(8):
        k(f'v_cmp_eq_u32 vcc, v{vIx+j}, v{vRow}')
        k(f'v_mov_b32 v{vT}, {j*1792}')
        k('s_nop 0')
        k(f'v_cndmask_b32 v{vSel}, v{vSel}, v{vT}, vcc')
        k(f'v_cndmask_b32 v{vSig}, v{vSig}, v{vIx+8+j}, vcc')
    k(f'v_lshl_add_u32 v{vSel}, v{vT+3}, 1, v{vSel}')
    for q in range(4):
        k(f's_mov_b32 s40, {UPD + q*14336}')
        k(f'buffer_load_dwordx4 {vr(vY+4*q,4)}, v{vSel}, {WS}, s40 offen sc1')
    k(f's_add_u32 s40, s{sSEG}, 63')
    k(f's_and_b32 s40, s40, 63')
    k(f's_mul_i32 s40, s40, {MEM_S}')
    k(f's_add_u32 s40, s40, {MEMX}')
    wait1(k, 40, f'v_cmp_ne_u32 vcc, -1, v{vT}', vT, OPT['vsl'], f's_cmp_ge_u32 s{sSEG}, 62')
    k(f's_mov_b32 s{sCNT}, 0')
    k(f's_mul_i32 s40, s{sSEG}, {PT_SEG}')
    k(f's_lshl_b32 s41, s{sQT}, 10')
    k(f's_add_u32 s40, s40, s41')
    k(f's_add_u32 s40, s40, {PT}')
    k(f's_lshl_b32 s41, s{sWAVE}, 13')
    k(f's_add_u32 s41, s41, s40')
    k(f's_add_u32 s42, s41, 4096')
    k(f's_lshl_b32 s43, s{sWAVE}, 12')
    k(f's_add_u32 s43, s43, s40')
    k(f's_add_u32 s43, s43, 32768')
    lp, dn = k.newlabel('Lvp'), k.newlabel('Lvq')
    k.label(lp)
    for hh in range(4):
        k(f'buffer_load_dwordx4 {vr(vP+4*hh,4)}, v{vL16}, {WS}, s{41 if hh<2 else 42} offen offset:{(hh&1)*2048} sc1')
    for u in range(2):
        k(f'buffer_load_dwordx4 {vr(vP+16+4*u,4)}, v{vL16}, {WS}, s43 offen offset:{u*2048} sc1')
    k(f's_add_u32 s{sCNT}, s{sCNT}, 1')
    k(f's_cmp_gt_u32 s{sCNT}, s{sT2}')
    k('s_cbranch_scc1 L_fail')
    k('s_waitcnt vmcnt(0)')
    k(f'v_max3_u32 v{vT}, v{vP}, v{vP+1}, v{vP+2}')
    for r in range(3, 23, 2): k(f'v_max3_u32 v{vT}, v{vT}, v{vP+r}, v{vP+r+1}')
    k(f'v_max_u32 v{vT}, v{vT}, v{vP+23}')
    k(f'v_cmp_eq_u32 vcc, -1, v{vT}')
    k(f's_cbranch_vccz {dn}')
    k('s_sleep 2')
    k(f's_cmp_ge_u32 s{sSEG}, 62')
    k(f's_cbranch_scc1 {lp}')
    k(f"s_sleep {OPT['psl']}")
    k(f's_branch {lp}')
    k.label(dn)
    if TL[0]: tstamp(k, 57, 8, vT)
    k(f's_lshl_b32 s40, s{sSEG}, 7')
    k(f's_add_u32 s40, s40, {flag(F_UM)}')
    wait1(k, 40, f'v_cmp_le_u32 vcc, 14, v{vT}', vT, OPT['usl'], f's_cmp_ge_u32 s{sSEG}, 62')
    if TL[0]: tstamp(k, 57, 12, vT)
    k(f's_mul_i32 s40, s{sSEG}, {UM_SEG}')
    k(f's_mul_i32 s41, s{sWAVE}, {2*28672}')
    k(f's_add_u32 s40, s40, s41')
    k(f's_lshl_b32 s41, s{sCG}, 12')
    k(f's_add_u32 s40, s40, s41')
    k(f's_add_u32 s40, s40, {UM}')
    k(f's_add_u32 s41, s40, 28672')
    for u in range(2):
        for ct in range(4):
            k(f'buffer_load_dwordx4 {vr(vUM+8*ct+4*u,4)}, v{vL16}, {WS}, s{40+u} offen offset:{ct*1024} sc1')
    k('s_mov_b32 s54, 0xffff0000')
    for h in range(2):
        k(f'v_pk_add_f32 {vr(vY+2*h,2)}, {vr(vY+2*h,2)}, {vr(vY+4+2*h,2)}')
        k(f'v_pk_add_f32 {vr(vY+8+2*h,2)}, {vr(vY+8+2*h,2)}, {vr(vY+12+2*h,2)}')
        k(f'v_pk_add_f32 {vr(vY+2*h,2)}, {vr(vY+2*h,2)}, {vr(vY+8+2*h,2)}')
    vB, vXf = vY+4, vY+8
    for r in range(4):
        rbf(k, vY+r, 54)
        k(f'v_mul_f32 v{vY+r}, v{vY+r}, v{vSig}')
        rbf(k, vY+r, 54)
        src = vXn + (r>>1)
        k(f'v_lshlrev_b32 v{vB+r}, 16, v{src}' if r % 2 == 0 else f'v_and_b32 v{vB+r}, s54, v{src}')
        k(f'v_add_f32 v{vB+r}, v{vB+r}, v{vY+r}')
        rbf(k, vB+r, 54)
        src = vXr + (r>>1)
        k(f'v_lshlrev_b32 v{vXf+r}, 16, v{src}' if r % 2 == 0 else f'v_and_b32 v{vXf+r}, s54, v{src}')
    k('s_barrier')
    k('s_waitcnt vmcnt(8)')
    for hh in range(4):
        for ct in range(4):
            c = '0' if hh == 0 else vr(vD+4*ct,4)
            k(f'v_mfma_f32_16x16x32_bf16 {vr(vD+4*ct,4)}, {vr(vU+16*ct+4*hh,4)}, {vr(vP+4*hh,4)}, {c}')
    k('s_waitcnt vmcnt(0)')
    for u in range(2):
        for ct in range(4):
            k(f'v_mfma_f32_16x16x32_bf16 {vr(vD+4*ct,4)}, {vr(vUM+8*ct+4*u,4)}, {vr(vP+16+4*u,4)}, {vr(vD+4*ct,4)}')
    k(f's_lshl_b32 s40, s{sWAVE}, 12')
    k(f'v_add_u32 v{vT}, s40, v{vL16}')
    k(f's_lshl_b32 s40, s{sWAVE}, 10')
    k(f'v_add_u32 v{vT+3}, s40, v{vL16}')
    k.nop(2)
    for ct in range(4): k(f'ds_write_b128 v{vT}, {vr(vD+4*ct,4)} offset:{ct*1024}')
    k('s_waitcnt lgkmcnt(0)')
    k('s_barrier')
    for w in range(4): k(f'ds_read_b128 {vr(vU+4*w,4)}, v{vT+3} offset:{w*4096}')
    k('s_waitcnt lgkmcnt(0)')
    for h in range(2):
        k(f'v_pk_add_f32 {vr(vU+2*h,2)}, {vr(vU+2*h,2)}, {vr(vU+4+2*h,2)}')
        k(f'v_pk_add_f32 {vr(vU+8+2*h,2)}, {vr(vU+8+2*h,2)}, {vr(vU+12+2*h,2)}')
        k(f'v_pk_add_f32 {vr(vU+2*h,2)}, {vr(vU+2*h,2)}, {vr(vU+8+2*h,2)}')
    for r in range(4):
        rbf(k, vU+r, 54)
        k(f'v_add_f32 v{vU+r}, v{vU+r}, v{vXf+r}')
        rbf(k, vU+r, 54)
        k(f'v_add_f32 v{vU+r}, v{vU+r}, v{vB+r}')
    k(f'v_cvt_pk_bf16_f32 v{vU}, v{vU}, v{vU+1}')
    k(f'v_cvt_pk_bf16_f32 v{vU+1}, v{vU+2}, v{vU+3}')
    k(f'buffer_store_dwordx2 {vr(vU,2)}, v{vOff}, s[72:75], 0 offen')
    k('s_branch W_next')

def moe_stage(k, srdreg, pitch, soff, lds, vT):
    k(f'v_lshrrev_b32 v{vT}, 3, v0')
    k(f'v_and_b32 v{vT+1}, 7, v0')
    k(f's_mov_b32 s44, {pitch}')
    k(f'v_mul_lo_u32 v{vT+2}, v{vT}, s44')
    k(f'v_lshl_add_u32 v{vT+2}, v{vT+1}, 4, v{vT+2}')
    k(f'v_bfe_u32 v{vT+3}, v{vT}, 1, 1')
    k(f'v_bfe_u32 v{vT+4}, v{vT}, 3, 1')
    k(f'v_lshl_add_u32 v{vT+3}, v{vT+4}, 1, v{vT+3}')
    k(f'v_lshlrev_b32 v{vT+3}, 1, v{vT+3}')
    k(f'v_xor_b32 v{vT+3}, v{vT+3}, v{vT+1}')
    k(f'v_lshlrev_b32 v{vT+3}, 4, v{vT+3}')
    k(f'v_lshl_add_u32 v{vT+3}, v{vT}, 7, v{vT+3}')
    if lds: k(f'v_add_u32 v{vT+3}, {lds}, v{vT+3}')
    k(f's_mov_b32 s44, s{soff}')
    for r in range(14):
        k(f'buffer_load_dwordx4 {vr(32+4*r,4)}, v{vT+2}, s[{srdreg}:{srdreg+3}], s44 offen')
        k(f's_add_u32 s44, s44, {32*pitch}')
    for r in range(14):
        k(f's_waitcnt vmcnt({13-r})')
        k(f'ds_write_b128 v{vT+3}, {vr(32+4*r,4)} offset:{r*4096}')

def moe_mm(k, lds, vA, vD, vAd, vB):
    for ks in range(14):
        for hh in range(2): k(f'ds_read_b64_tr_b16 {vr(vB+4*ks+2*hh,2)}, v{vAd} offset:{lds + ks*4096 + hh*512}')
    k('s_waitcnt lgkmcnt(0)')
    for ks in range(14):
        k(f'v_mfma_f32_16x16x32_bf16 {vr(vD,4)}, {vr(vA+4*ks,4)}, {vr(vB+4*ks,4)}, {"0" if ks == 0 else vr(vD,4)}')

def moe_traddr(k, vAd, vT):
    k(f'v_bfe_u32 v{vAd}, v{vLn}, 2, 2')
    k(f'v_lshrrev_b32 v{vT}, 4, v{vLn}')
    k(f'v_lshl_add_u32 v{vAd}, v{vT}, 3, v{vAd}')
    k(f'v_lshlrev_b32 v{vAd}, 7, v{vAd}')
    k(f'v_and_b32 v{vT}, 3, v{vLn}')
    k(f'v_lshl_add_u32 v{vAd}, v{vT}, 3, v{vAd}')
    k(f'v_bfe_u32 v{vT}, v{vLn}, 3, 1')
    k(f'v_bfe_u32 v{vT+1}, v{vLn}, 4, 1')
    k(f'v_lshl_add_u32 v{vT}, v{vT+1}, 1, v{vT}')
    k(f'v_xor_b32 v{vT}, s{sWAVE}, v{vT}')
    k(f'v_lshl_add_u32 v{vAd}, v{vT}, 5, v{vAd}')

def sigmoid(k, v, t):
    k(f'v_mul_f32 v{t}, {f32bits(-1.4426950408889634):#x}, v{v}')
    k(f'v_exp_f32 v{t}, v{t}')
    k.nop(1)
    k(f'v_add_f32 v{t}, 1.0, v{t}')
    k(f'v_rcp_f32 v{v}, v{t}')
    k.nop(1)

def task_M1(k):
    k.label('T_M1')
    vT = 16
    srd(k, 68, 72, 1605632); srd(k, 72, 80, 1605632)
    vK = 160
    k(f's_mov_b32 s40, {RR}')
    k(f's_add_u32 s41, s40, 4096')
    for j in range(8): k(f'buffer_load_dwordx4 {vr(vK+4*j,4)}, v{vL16}, {WS}, s{40 + (j>>2)} offen offset:{(j&3)*1024}')
    k(f'v_lshlrev_b32 v{vT}, 2, v{vLn}')
    k(f'v_sub_u32 v{vT}, 0xffff, v{vT}')
    k('s_mov_b32 s54, 0xffff0000')
    k('s_waitcnt vmcnt(0) lgkmcnt(0)')
    k('s_and_b32 s69, s69, 0xffff'); k('s_and_b32 s73, s73, 0xffff')
    for j in range(32):
        r = vK + j
        k(f'v_ashrrev_i32 v{vT+1}, 31, v{r}')
        k(f'v_or_b32 v{vT+1}, 0x80000000, v{vT+1}')
        k(f'v_xor_b32 v{r}, v{r}, v{vT+1}')
        k(f'v_subrev_u32 v{vT+1}, {(j>>2)*256 + (j&3)}, v{vT}')
        k(f'v_and_or_b32 v{r}, v{r}, s54, v{vT+1}')
    m, t = vT+2, vT+3
    for it in range(8):
        k(f'v_max3_u32 v{m}, v{vK}, v{vK+1}, v{vK+2}')
        for r in range(3, 31, 2): k(f'v_max3_u32 v{m}, v{m}, v{vK+r}, v{vK+r+1}')
        k(f'v_max_u32 v{m}, v{m}, v{vK+31}')
        for rot in (8, 4, 2, 1):
            k.nop(2)
            k(f'v_max_u32_dpp v{m}, v{m}, v{m} row_ror:{rot} row_mask:0xf bank_mask:0xf')
        xlane_red(k, 'v_max_u32', m, t)
        k.nop(1)
        k(f'v_readfirstlane_b32 s{76+it}, v{m}')
        if it < 7:
            for j in range(32):
                k(f'v_cmp_eq_u32 vcc, v{m}, v{vK+j}')
                k('s_nop 1')
                k(f'v_cndmask_b32 v{vK+j}, v{vK+j}, 0, vcc')
    vKy, vIx = vT+4, vT+5
    k(f'v_mov_b32 v{vKy}, s76')
    k(f'v_and_b32 v{t}, 7, v{vLn}')
    for j in range(1, 8):
        k(f'v_cmp_eq_u32 vcc, {j}, v{t}')
        k(f'v_mov_b32 v{m}, s{76+j}')
        k('s_nop 0')
        k(f'v_cndmask_b32 v{vKy}, v{vKy}, v{m}, vcc')
    k(f'v_and_b32 v{vIx}, 0xffff, v{vKy}')
    k(f'v_sub_u32 v{vIx}, 0xffff, v{vIx}')
    sk = k.newlabel('Lm1s')
    k(f's_or_b32 s40, s{sJ}, s{sWAVE}')
    k('s_cmp_lg_u32 s40, 0')
    k(f's_cbranch_scc1 {sk}')
    k(f'v_and_b32 v{m}, s54, v{vKy}')
    k(f'v_not_b32 v{t}, v{m}')
    k(f'v_ashrrev_i32 v{t}, 31, v{t}')
    k(f'v_or_b32 v{t}, 0x80000000, v{t}')
    k(f'v_xor_b32 v{m}, v{m}, v{t}')
    k(f'v_and_b32 v{m}, s54, v{m}')
    sigmoid(k, m, t)
    rbf(k, m, 54)
    k(f'v_lshlrev_b32 v{t}, 2, v{vLn}')
    k(f's_mov_b32 s40, {IDX}')
    k('s_mov_b64 exec, 0xff')
    k(f'buffer_store_dword v{vIx}, v{t}, {WS}, s40 offen sc1')
    k(f'buffer_store_dword v{m}, v{t}, {WS}, s40 offen offset:32 sc1')
    k('s_mov_b64 exec, -1')
    k.label(sk)
    vA = 96
    k(f'v_mul_u32_u24 v{m}, 896, v{vIx}')
    k(f'v_lshrrev_b32 v{t}, 4, v{vLn}')
    k(f'v_lshl_add_u32 v{m}, v{t}, 4, v{m}')
    k(f's_mov_b32 s40, {XNR}')
    for ks in range(14): k(f'buffer_load_dwordx4 {vr(vA+4*ks,4)}, v{m}, {WS}, s40 offen offset:{ks*64}')
    k('s_barrier')
    k(f's_lshl_b32 s43, s{sJ}, 7')
    moe_stage(k, 68, 3584, 43, 0, 24)
    moe_stage(k, 72, 3584, 43, 57344, 24)
    vAd = vT
    moe_traddr(k, vAd, vT+1)
    k(f'v_add_u32 v{vT+1}, 57344, v{vAd}')
    k('s_waitcnt lgkmcnt(0)')
    k('s_barrier')
    vG, vUu = 24, 28
    moe_mm(k, 0, vA, vG, vAd, 32)
    moe_mm(k, 0, vA, vUu, vT+1, 160)
    k(f'v_lshrrev_b32 v{vT+2}, 4, v{vLn}')
    k(f'v_mul_u32_u24 v{vT+2}, {4*3584}, v{vT+2}')
    k(f'v_and_b32 v{vT+3}, 15, v{vLn}')
    k(f'v_lshl_add_u32 v{vT+2}, v{vT+3}, 1, v{vT+2}')
    k(f's_lshl_b32 s40, s{sWAVE}, 5')
    k(f's_add_u32 s40, s40, s43')
    k(f's_add_u32 s40, s40, {HB}')
    k.nop(4)
    k('s_mov_b32 exec_hi, 0')
    for r in range(4):
        rbf(k, vG+r, 54); rbf(k, vUu+r, 54)
        k(f'v_mov_b32 v{vT+4}, v{vG+r}')
        sigmoid(k, vT+4, vT+5)
        k(f'v_mul_f32 v{vG+r}, v{vG+r}, v{vT+4}')
        rbf(k, vG+r, 54)
        k(f'v_mul_f32 v{vG+r}, v{vG+r}, v{vUu+r}')
        k(f'v_cvt_pk_bf16_f32 v{vG+r}, v{vG+r}, v{vG+r}')
        k(f'buffer_store_short v{vG+r}, v{vT+2}, {WS}, s40 offen sc1')
        k(f's_add_u32 s40, s40, 3584')
    k('s_mov_b64 exec, -1')
    k(f's_mov_b32 s40, {flag(F_M1)}')
    signal(k, 40, 3)
    k('s_branch W_next')

def task_M2(k):
    k.label('T_M2')
    vT = 16
    srd(k, 68, 88, 1605632)
    k(f's_mul_hi_u32 s45, s{sJ}, {(1<<32)//7 + 1}')
    k(f's_mul_i32 s46, s45, 7')
    k(f's_sub_u32 s46, s{sJ}, s46')
    k(f's_mul_i32 s43, s45, {448*896}')
    k(f's_lshl_b32 s40, s46, 7')
    k(f's_add_u32 s43, s43, s40')
    k('s_waitcnt lgkmcnt(0)')
    k('s_and_b32 s69, s69, 0xffff')
    k('s_barrier')
    moe_stage(k, 68, 896, 43, 0, 24)
    vAd = vT
    moe_traddr(k, vAd, vT+1)
    k(f's_mov_b32 s40, {flag(F_M1)}')
    wait_flag(k, 40, 28, vT+1)
    vA = 96
    k(f'v_and_b32 v{vT+1}, 7, v{vLn}')
    k(f'v_mul_u32_u24 v{vT+1}, 3584, v{vT+1}')
    k(f'v_lshrrev_b32 v{vT+2}, 4, v{vLn}')
    k(f'v_lshl_add_u32 v{vT+1}, v{vT+2}, 4, v{vT+1}')
    k(f's_mul_i32 s40, s45, 896')
    k(f's_add_u32 s40, s40, {HB}')
    for ks in range(14): k(f'buffer_load_dwordx4 {vr(vA+4*ks,4)}, v{vT+1}, {WS}, s40 offen offset:{ks*64} sc1')
    k('s_waitcnt vmcnt(0) lgkmcnt(0)')
    k('s_barrier')
    moe_mm(k, 0, vA, 24, vAd, 32)
    k(f'v_mul_u32_u24 v{vT+2}, {4*1792}, v{vT+2}')
    k(f'v_and_b32 v{vT+3}, 15, v{vLn}')
    k(f'v_lshl_add_u32 v{vT+2}, v{vT+3}, 2, v{vT+2}')
    k(f's_mul_i32 s40, s45, 14336')
    k(f's_lshl_b32 s41, s46, 8')
    k(f's_add_u32 s40, s40, s41')
    k(f's_lshl_b32 s41, s{sWAVE}, 6')
    k(f's_add_u32 s40, s40, s41')
    k(f's_add_u32 s40, s40, {UPD}')
    k('s_mov_b32 exec_hi, 0')
    for r in range(4):
        k(f'buffer_store_dword v{24+r}, v{vT+2}, {WS}, s40 offen sc1')
        k(f's_add_u32 s40, s40, 1792')
    k('s_mov_b64 exec, -1')
    k(f's_mov_b32 s40, {flag(F_M2)}')
    signal(k, 40, 3)
    k('s_branch W_next')

LTK = 163832
Q_U2, Q_M1, Q_M2, Q_P0 = 0, 48, 76, 104
Q_G = Q_P0 + 48
Q_T = Q_G + 13*72
Q_END = Q_T + 3*56
DBG = 's[8:11]'

def tstamp(k, sOff, off, vT=3):
    k('s_memrealtime s[30:31]')
    k('s_waitcnt lgkmcnt(0)')
    k(f'v_mov_b32 v{vT}, s30')
    k(f'buffer_store_dword v{vT}, off, {WS}, s{sOff} offset:{off}')

def worker(k, pref=0, tl=False):
    TL[0] = tl
    def tl_start(base):
        if not tl: return
        k(f's_add_u32 s57, s42, {base}')
        k('s_lshl_b32 s57, s57, 4')
        k(f's_add_u32 s57, s57, {STAMP + 0x40000}')
        tstamp(k, 57, 0)
    k.label('L_worker')
    k(f'v_and_b32 v{vLn}, 63, v0')
    k(f'v_lshlrev_b32 v{vL16}, 4, v{vLn}')
    k(f's_mov_b32 s{sT2}, {POLL_LIMIT}')
    k(f's_mov_b32 s{sSTEP}, 255')
    k(f's_add_u32 s42, s2, {7 - pref}')
    k('s_and_b32 s42, s42, 7')
    k('s_lshl_b32 s42, s42, 5')
    k('s_lshr_b32 s41, s2, 3')
    k('s_add_u32 s42, s42, s41')
    tl_start(1536)
    k(f's_mul_hi_u32 s{sH}, s42, {(1<<32)//14 + 1}')
    k(f's_mul_i32 s41, s{sH}, 14')
    k(f's_sub_u32 s{sBLK}, s42, s41')
    k(f's_cmp_lt_u32 s{sBLK}, 2')
    k('s_cbranch_scc1 T_Uh')
    k(f's_sub_u32 s{sBLK}, s{sBLK}, 1')
    k('s_branch T_U')
    k.label('W_next')
    if tl: tstamp(k, 57, 4)
    k(f's_cmp_lg_u32 s{sWAVE}, 0')
    k('s_cbranch_scc1 W_bc')
    k('s_mov_b64 exec, 1')
    k('v_mov_b32 v3, 1')
    k(f'buffer_atomic_add v3, off, {DBG}, 0 offset:192 sc0')
    k(f'v_mov_b32 v4, {LTK}')
    k('s_waitcnt vmcnt(0)')
    k('ds_write_b32 v4, v3')
    k('s_waitcnt lgkmcnt(0)')
    k('s_mov_b64 exec, -1')
    k.label('W_bc')
    k('s_barrier')
    k(f'v_mov_b32 v4, {LTK}')
    k('ds_read_b32 v3, v4')
    k('s_waitcnt lgkmcnt(0)')
    k('v_readfirstlane_b32 s42, v3')
    k('s_nop 3')
    tl_start(0)
    k(f's_cmp_ge_u32 s42, {Q_END}')
    k('s_cbranch_scc1 L_exit')
    k(f's_cmp_lt_u32 s42, {Q_M1}')
    k('s_cbranch_scc0 W_q1')
    k(f's_and_b32 s{sH}, s42, 15')
    k(f's_lshr_b32 s{sBLK}, s42, 4')
    k(f's_add_u32 s{sBLK}, s{sBLK}, 13')
    k('s_branch T_U')
    k.label('W_q1')
    k(f's_sub_u32 s{sJ}, s42, {Q_M1}')
    k(f's_cmp_lt_u32 s42, {Q_M2}')
    k('s_cbranch_scc1 T_M1')
    k(f's_sub_u32 s{sJ}, s42, {Q_M2}')
    k(f's_cmp_lt_u32 s42, {Q_P0}')
    k('s_cbranch_scc1 T_M2')
    k(f's_cmp_lt_u32 s42, {Q_G}')
    k('s_cbranch_scc0 W_q2')
    k(f's_sub_u32 s42, s42, {Q_P0}')
    k(f's_and_b32 s{sH}, s42, 15')
    k(f's_lshr_b32 s{sBLK}, s42, 4')
    k('s_branch T_P')
    k.label('W_q2')
    k(f's_cmp_lt_u32 s42, {Q_T}')
    k('s_cbranch_scc0 W_q3')
    k(f's_sub_u32 s42, s42, {Q_G}')
    k(f's_mul_hi_u32 s41, s42, {(1<<32)//72 + 1}')
    k('s_mul_i32 s43, s41, 72')
    k('s_sub_u32 s42, s42, s43')
    k(f's_mov_b32 s{sH}, s42')
    k(f's_add_u32 s{sBLK}, s41, 3')
    k('s_cmp_lt_u32 s42, 16')
    k('s_cbranch_scc1 T_P')
    k('s_sub_u32 s42, s42, 16')
    k('s_mul_i32 s41, s41, 56')
    k('s_add_u32 s42, s42, s41')
    k('s_branch W_v')
    k.label('W_q3')
    k(f's_sub_u32 s42, s42, {Q_T - 13*56}')
    k.label('W_v')
    k(f's_mul_hi_u32 s{sSEG}, s42, {(1<<32)//14 + 1}')
    k(f's_mul_i32 s41, s{sSEG}, 14')
    k('s_sub_u32 s42, s42, s41')
    k('s_cmp_ge_u32 s42, 7')
    k(f's_cselect_b32 s{sQT}, 1, 0')
    k(f's_mul_i32 s41, s{sQT}, 7')
    k(f's_sub_u32 s{sCG}, s42, s41')
    k('s_branch T_V')
    task_U(k); task_U(k, True); task_P(k); task_V(k); task_M1(k); task_M2(k)
```

```python
from asmlib import *
from layout import *

class K(Asm):
    def __init__(self):
        super().__init__()
        self.dsq = []; self.cold = []; self.vmq = []
    def ds(self, text, tag=None):
        self(text); self.dsq.append(tag)
    def wds(self, tag):
        if tag not in self.dsq: return
        idx = max(i for i, t in enumerate(self.dsq) if t == tag)
        n = len(self.dsq) - 1 - idx
        assert n <= 15
        self(f's_waitcnt lgkmcnt({n})')
        self.dsq = self.dsq[idx+1:]
    def wds0(self):
        self('s_waitcnt lgkmcnt(0)'); self.dsq = []
    def vm(self, text, tag=None):
        self(text); self.vmq.append(tag)
    def wvm(self, *tags, extra=''):
        idx = max([i for i, t in enumerate(self.vmq) if t in tags], default=-1)
        if idx < 0:
            if extra: self('s_waitcnt ' + extra)
            return
        n = len(self.vmq) - 1 - idx
        assert n <= 63
        self(f's_waitcnt vmcnt({n}) {extra}')
        self.vmq = self.vmq[idx+1:]
    def flush_cold(self):
        for l in self.cold: self(l)
        self.cold = []

SWS, SDBG = 4, 8
sROLE, sWAVE, sSTEP, sMODE, sM, sP, sX, sUM, sCNT = 12, 13, 14, 15, 16, 17, 18, 19, 20
sT0, sT1, sT2 = 21, 22, 23
sMASK8 = 24
sID = 26
sST = 28
sTM = 30
POLL_LIMIT = 400000
NSTEP = 63
OPT = dict(sa='late', sb='early', um='sc1', uf='sc1', sleepA=0, sleepB=0, stampmask=15, rt=0, barA=1, barB=1, prefP=0, pfd=2, pfs=128, upos='early', ud=2, apf=1, nb=7, stag=2, wpos=1, rsp=1, s1pos=0, upre=8, uneed=32, ust='sc1', rot=1, k1st='sc1', uwin=2, k1d=2, ap2=0, stagA=2, gv=0, k1pf=0, k1ln='sc1', u0='cold', align=0, w64=0, p64=0, kpos='post', kdel=7, nu2=4, bgs=0, vsl=120, usl=120, psl=16, msl=120)

def stamp(k, idx, on):
    if not on or not (OPT['stampmask'] >> idx) & 1: return
    k(('s_memrealtime' if OPT['rt'] else 's_memtime') + f' s[{sTM}:{sTM+1}]')
    k.wds0()
    k(f'v_mov_b32 v0, s{sTM}')
    k(f'buffer_store_dword v0, off, s[{SWS}:{SWS+3}], s{sST} offset:{idx*4}')

def edge(k, on, off):
    if not on or OPT['rt']: return
    lp = k.newlabel('Led')
    k('s_memrealtime s[70:71]')
    k('s_waitcnt lgkmcnt(0)')
    k.label(lp)
    k('s_memrealtime s[72:73]')
    k('s_memtime s[74:75]')
    k('s_waitcnt lgkmcnt(0)')
    k('s_cmp_eq_u32 s72, s70')
    k(f's_cbranch_scc1 {lp}')
    k('v_mov_b32 v0, s72')
    k(f'buffer_store_dword v0, off, s[{SWS}:{SWS+3}], s76 offset:{off}')
    k('v_mov_b32 v0, s74')
    k(f'buffer_store_dword v0, off, s[{SWS}:{SWS+3}], s76 offset:{off+4}')

def publish(k, text):
    ls, ld = k.newlabel('Lslow'), k.newlabel('Lpub')
    k(f's_cbranch_scc0 {ls}')
    k(text)
    k.label(ld)
    k.cold += [ls + ':', text + ' sc1', f's_branch {ld}']

def gather_mem(k, vG, vOff0, vOff1, vL0, vL1, vT):
    lp, dn = k.newlabel('Lgm'), k.newlabel('Lgd')
    k(f's_mov_b32 s{sCNT}, 0')
    k.label(lp)
    k(f'buffer_load_dwordx4 {vr(vG,4)}, v{vOff0}, s[{SWS}:{SWS+3}], s{sM} offen sc1')
    k(f'buffer_load_dwordx4 {vr(vG+4,4)}, v{vOff1}, s[{SWS}:{SWS+3}], s{sM} offen sc1')
    k(f's_add_u32 s{sCNT}, s{sCNT}, 1')
    k(f's_cmp_gt_u32 s{sCNT}, s{sT2}')
    k('s_cbranch_scc1 L_fail')
    k('s_waitcnt vmcnt(1)')
    k(f'v_max3_u32 v{vT}, v{vG}, v{vG+1}, v{vG+2}')
    k('s_waitcnt vmcnt(0)')
    k(f'v_max3_u32 v{vT+1}, v{vG+4}, v{vG+5}, v{vG+6}')
    k(f'v_max3_u32 v{vT}, v{vT}, v{vG+3}, v{vG+7}')
    k(f'v_max_u32 v{vT}, v{vT}, v{vT+1}')
    k(f'v_cmp_eq_u32 vcc, -1, v{vT}')
    k(f's_cbranch_vccnz {lp}')
    if vL0 is None: return
    k.ds(f'ds_write_b128 v{vL0}, {vr(vG,4)}')
    k.ds(f'ds_write_b128 v{vL1}, {vr(vG+4,4)}')
    k.wds0()
    k('s_barrier')

def wait_mode(k, vT):
    lp = k.newlabel('Lwm')
    k(f's_mov_b32 s{sCNT}, 0')
    k(f'v_and_b32 v{vT+1}, 15, v0')
    k(f'v_lshlrev_b32 v{vT+1}, 2, v{vT+1}')
    k.label(lp)
    k(f'buffer_load_dword v{vT}, v{vT+1}, s[{SDBG}:{SDBG+3}], 0 offen offset:32 sc1')
    k(f's_add_u32 s{sCNT}, s{sCNT}, 1')
    k(f's_cmp_gt_u32 s{sCNT}, s{sT2}')
    k('s_cbranch_scc1 L_fail')
    k('s_waitcnt vmcnt(0)')
    k(f'v_cmp_eq_u32 vcc, 32, v{vT}')
    for rot in (8, 4, 2, 1):
        k.nop(2)
        k(f'v_add_u32_dpp v{vT}, v{vT}, v{vT} row_ror:{rot} row_mask:0xf bank_mask:0xf')
    k.nop(1)
    k(f'v_readfirstlane_b32 s{sMODE}, v{vT}')
    k('s_nop 3')
    k(f's_cmp_lt_u32 s{sMODE}, 32')
    k(f's_cbranch_scc1 {lp}')
    k('s_cmp_lg_u64 vcc, 0')
    k(f's_cselect_b32 s{sMODE}, 1, 2')

def common_lane_setup(k, vLane, vL16, vG0, vG1, vIdx, vT):
    k(f'v_and_b32 v{vLane}, 63, v0')
    k(f'v_lshlrev_b32 v{vL16}, 4, v{vLane}')
    if vG0 is not None:
        k(f's_lshl_b32 s{sT0}, s{sWAVE}, 10')
        k(f'v_add_u32 v{vG0}, s{sT0}, v{vL16}')
        k(f's_add_u32 s{sT0}, s{sWAVE}, 4')
        k(f's_min_u32 s{sT0}, s{sT0}, 6')
        k(f's_lshl_b32 s{sT0}, s{sT0}, 10')
        k(f'v_add_u32 v{vG1}, s{sT0}, v{vL16}')
    k(f'v_and_b32 v{vT}, 8, v{vLane}')
    k(f'v_mov_b32 v{vIdx}, 0x4444')
    k(f'v_mov_b32 v{vT+1}, 0xeeee')
    k(f'v_cmp_ne_u32 vcc, 0, v{vT}')
    k('s_nop 1')
    k(f'v_cndmask_b32 v{vIdx}, v{vIdx}, v{vT+1}, vcc')
    k(f's_mov_b32 s{sT2}, {POLL_LIMIT}')

def poll2(k, issue, checks, body, name, stag):
    nl = len(issue(0))
    l0, d0, d1, dn = [k.newlabel(name + x) for x in ('lp', 'd0', 'd1', 'dn')]
    k(f's_mov_b32 s{sCNT}, 0')
    for x in issue(0): k(x)
    k(f"s_sleep {stag}")
    k.label(l0)
    for st, dl in ((0, d0), (1, d1)):
        for x in issue(1 - st): k(x)
        if st == 0:
            k(f's_add_u32 s{sCNT}, s{sCNT}, 1')
            k(f's_cmp_gt_u32 s{sCNT}, s{sT2}')
            k('s_cbranch_scc1 L_fail')
        for rel, ins in checks(st):
            k(f's_waitcnt vmcnt({nl + rel})')
            for x in ins: k(x)
        if st == 0: k(f's_cbranch_vccz {d0}')
        else:       k(f's_cbranch_vccnz {l0}x')
    saved = list(k.dsq)
    body(1)
    k(f's_branch {dn}')
    k.label(l0 + 'x')
    k(f's_branch {l0}')
    k.label(d0)
    end = list(k.dsq); k.dsq = saved
    body(0)
    assert k.dsq == end
    k.label(dn)

def role_A(k, stamps=False):
    vLane, vL16, vIdx = 1, 2, 3
    vKey, vKeyS, vMK, vMKS, vQW, vQR, vSW, vSR, vPO, vVal = 4, 5, 6, 7, 8, 9, 10, 11, 12, 13
    vT = 14
    vM = 16
    vQ = 44
    vKT = 72
    vKM = 100
    vX = 114
    vG0, vG1 = 118, 119
    def W(lt, kb):
        i = lt*7 + kb
        return (256 + 8*i) if i < 32 else (120 + 8*(i-32))
    LM, LSP, LQS = 0, 7168, 20480
    k.label('L_roleA')
    k(f's_mov_b32 s{sID}, s{sROLE}')
    common_lane_setup(k, vLane, vL16, vG0, vG1, vIdx, vX)
    k(f's_lshr_b32 s{sT0}, s{sWAVE}, 1')
    k(f's_mul_i32 s{sT0}, s{sT0}, 14')
    k(f's_and_b32 s{sT1}, s{sWAVE}, 1')
    k(f's_add_u32 s33, s{sT0}, 6')
    k(f's_add_u32 s33, s33, s{sT1}')
    k(f's_lshl_b32 s34, s{sT1}, 3')
    k(f's_add_u32 s32, s{sT0}, s34')
    k(f's_mul_i32 s35, s{sID}, {28*14*1024}')
    k(f's_add_u32 s35, s35, {WTA}')
    k(f's_mul_i32 s36, s32, {14*1024}')
    k(f's_add_u32 s36, s36, s35')
    k(f's_mul_i32 s37, s33, {14*1024}')
    k(f's_add_u32 s37, s37, s35')
    for j in range(7):
        k(f's_add_u32 s{50+j}, s{sWAVE}, {(4*j) % 7}')
        k(f's_sub_u32 s40, s{50+j}, 7')
        k(f's_cmp_ge_u32 s{50+j}, 7')
        k(f's_cselect_b32 s{50+j}, s40, s{50+j}')
        k(f's_lshl_b32 s{50+j}, s{50+j}, 10')
    n = 0
    for lt in range(7):
        sb = 36 if lt < 6 else 37
        for j in range(7):
            k(f's_lshl_b32 s40, s{50+j}, 1')
            k(f's_add_u32 s40, s40, s{sb}')
            for f in range(2):
                k(f'buffer_load_dwordx4 {xr(W(lt, j) + 4*f,4)}, v{vL16}, s[{SWS}:{SWS+3}], s40 offen offset:{f*1024}')
                n += 1
                if n % 16 == 0: k('s_waitcnt vmcnt(40)')
        k(f's_add_u32 s{sb}, s{sb}, 14336')
    k(f'v_add_u32 v{vG1}, s51, v{vL16}')
    t = vX
    g, i = vQ, vQ+1
    k(f'v_lshrrev_b32 v{g}, 4, v{vLane}')
    k(f'v_and_b32 v{i}, 15, v{vLane}')
    k(f's_lshr_b32 s38, s32, 1')
    k(f's_lshr_b32 s39, s33, 1')
    k(f's_lshl_b32 s40, s38, 10')
    k(f'v_add_u32 v{vKey}, s40, v{vL16}')
    k(f's_lshl_b32 s40, s39, 10')
    k(f's_add_u32 s40, s40, s34')
    k(f'v_add_u32 v{vKeyS}, s40, v{vL16}')
    k(f'v_lshrrev_b32 v{t}, 1, v{g}')
    k(f'v_lshlrev_b32 v{t}, 8, v{t}')
    k(f'v_and_b32 v{t+1}, 7, v{i}')
    k(f'v_lshlrev_b32 v{t+1}, 4, v{t+1}')
    k(f'v_add_u32 v{t}, v{t}, v{t+1}')
    k(f'v_and_b32 v{t+1}, 1, v{g}')
    k(f'v_lshlrev_b32 v{t+1}, 7, v{t+1}')
    k(f'v_add_u32 v{t}, v{t}, v{t+1}')
    k(f's_lshl_b32 s40, s38, 9')
    k(f'v_add_u32 v{vMK}, s40, v{t}')
    k(f's_lshl_b32 s40, s39, 9')
    k(f's_add_u32 s40, s40, s34')
    k(f'v_add_u32 v{vMKS}, s40, v{t}')
    k(f's_lshl_b32 s40, s{sWAVE}, 10')
    k(f's_add_u32 s40, s40, {LQS}')
    k(f'v_lshrrev_b32 v{t}, 2, v{i}')
    k(f'v_add_u32 v{t}, v{t}, v{g}')
    k(f'v_and_b32 v{t}, 3, v{t}')
    k(f'v_lshlrev_b32 v{t}, 3, v{t}')
    k(f'v_lshlrev_b32 v{t+1}, 5, v{i}')
    k(f'v_add3_u32 v{vQW}, v{t}, v{t+1}, s40')
    k(f'v_lshrrev_b32 v{t}, 2, v{vLane}')
    k(f'v_lshlrev_b32 v{t}, 5, v{t}')
    k(f'v_add_u32 v{t+1}, v{vLane}, v{g}')
    k(f'v_and_b32 v{t+1}, 3, v{t+1}')
    k(f'v_lshlrev_b32 v{t+1}, 3, v{t+1}')
    k(f'v_add3_u32 v{vQR}, v{t}, v{t+1}, s40')
    k(f's_mul_i32 s40, s{sWAVE}, 3264')
    k(f's_add_u32 s40, s40, {LSP}')
    k(f'v_lshlrev_b32 v{t}, 4, v{i}')
    k(f'v_mul_u32_u24 v{t+1}, 272, v{g}')
    k(f'v_add3_u32 v{vSW}, v{t}, v{t+1}, s40')
    k(f'v_subrev_u32 v{t}, 12, v{i}')
    k(f'v_cmp_le_u32 vcc, 12, v{i}')
    k('s_nop 1')
    k(f'v_cndmask_b32 v{t}, v{i}, v{t}, vcc')
    k(f'v_lshrrev_b32 v{t+1}, 5, v{vLane}')
    k(f's_lshl_b32 s40, s{sWAVE}, 1')
    k(f'v_add_u32 v{t+1}, s40, v{t+1}')
    k(f'v_and_b32 v{t+2}, 1, v{g}')
    k(f'v_lshl_add_u32 v{t+3}, v{t+2}, 3, v{t+1}')
    k(f'v_lshlrev_b32 v{t+3}, 4, v{t+3}')
    k(f'v_mul_u32_u24 v{vSR}, 272, v{t}')
    k(f'v_add_u32 v{vSR}, v{vSR}, v{t+3}')
    if LSP: k(f'v_add_u32 v{vSR}, {LSP}, v{vSR}')
    k(f's_and_b32 s42, s{sID}, 1')
    k(f's_lshl_b32 s42, s42, 3')
    k(f'v_add_u32 v{t+1}, s42, v{t+1}')
    k(f'v_and_b32 v{vPO}, 1, v{i}')
    k(f'v_lshlrev_b32 v{vPO}, 3, v{vPO}')
    k(f'v_lshl_add_u32 v{vPO}, v{t+1}, 4, v{vPO}')
    k(f'v_bfe_u32 v{t}, v{i}, 1, 1')
    k(f'v_lshl_add_u32 v{vPO}, v{t}, 8, v{vPO}')
    k(f'v_bfe_u32 v{t}, v{i}, 3, 1')
    k(f'v_lshl_add_u32 v{vPO}, v{t}, 9, v{vPO}')
    k(f's_lshr_b32 s41, s{sID}, 1')
    k(f's_lshl_b32 s40, s41, 10')
    k(f'v_add_u32 v{vPO}, s40, v{vPO}')
    k(f'v_lshlrev_b32 v{t}, 3, v{i}')
    k(f'v_lshl_add_u32 v{t}, v{t+1}, 4, v{t}')
    k(f's_lshl_b32 s40, s41, 8')
    k(f's_add_u32 s40, s40, 8192')
    k(f'v_add_u32 v{t}, s40, v{t}')
    k(f'v_mov_b32 v{t+3}, 0x40000000')
    k(f'v_cmp_le_u32 vcc, 2, v{i}')
    k('s_nop 1')
    k(f'v_cndmask_b32 v{t}, v{t}, v{t+3}, vcc')
    k(f'v_cmp_le_u32 vcc, 4, v{i}')
    k('s_nop 1')
    k(f'v_cndmask_b32 v{vPO}, v{t}, v{vPO}, vcc')
    k(f'v_cmp_le_u32 vcc, 12, v{i}')
    k('s_nop 1')
    k(f'v_cndmask_b32 v{vPO}, v{vPO}, v{t+3}, vcc')
    k(f'v_lshl_add_u32 v{vPO}, v{t+2}, 2, v{vPO}')
    k(f'v_mov_b32 v{vVal}, 1.0')
    k(f'v_cmp_le_u32 vcc, v{t+3}, v{vPO}')
    k('s_nop 1')
    k(f'v_cndmask_b32 v{vVal}, v{vVal}, 0, vcc')
    k(f's_mov_b32 s{sSTEP}, 0')
    k(f's_mov_b32 s{sM}, {MEM}')
    k(f's_mov_b32 s{sP}, {PB}')
    k(f's_mov_b32 s{sX}, {XNS}')
    k(f's_lshl_b32 s40, s{sID}, 2')
    k(f's_add_u32 s40, s40, s{sWAVE}')
    k(f's_mul_i32 s40, s40, 7168')
    k(f'v_min_u32 v{vX}, {55*16}, v{vL16}')
    k(f'v_lshlrev_b32 v{vX}, 3, v{vX}')
    k(f'v_add_u32 v{vX}, s40, v{vX}')
    k(f"s_mov_b32 s{sUM}, {UF + OPT['ud']*UF_SEG}")
    WS = f's[{SWS}:{SWS+3}]'
    def key_list():
        L = []
        for p in range(3):
            L.append(f'buffer_load_dwordx4 {vr(vKT+8*p,4)}, v{vKey}, {WS}, s{sX} offen offset:{p*1024}')
            L.append(f'buffer_load_dwordx4 {vr(vKT+8*p+4,4)}, v{vKey}, {WS}, s46 offen offset:{p*1024}')
        L.append(f'buffer_load_dwordx2 {vr(vKT+24,2)}, v{vKeyS}, {WS}, s{sX} offen')
        L.append(f'buffer_load_dwordx2 {vr(vKT+26,2)}, v{vKeyS}, {WS}, s46 offen')
        return L
    def load_keys(keys=True):
        if keys:
            for x in key_list(): k(x)
        k(f's_add_u32 s{sX}, s{sX}, 28672')
        k(f's_add_u32 s46, s{sX}, 14336')
        k(f's_add_u32 s{sT0}, s{sSTEP}, {1 + OPT["ud"]}')
        k(f's_lshr_b32 s{sT0}, s{sT0}, 2')
        k(f's_lshl_b32 s{sT0}, s{sT0}, 7')
        k(f's_add_u32 s{sT0}, s{sT0}, {flag(F_U)}')
        k(f'buffer_load_dword v{vX+2}, off, {WS}, s{sT0} sc1')
    k(f's_add_u32 s46, s{sX}, 14336')
    k(f's_mov_b32 s{sSTEP}, -1')
    load_keys()
    k(f's_mov_b32 s{sSTEP}, 0')
    wait_mode(k, vT)
    k(f'v_mov_b32 v{vX+3}, 0x40000000')
    if stamps: k(f's_add_u32 s76, s{sST}, 0x20000')
    edge(k, stamps, 0)
    k.label('L_A_loop')
    for r in range(0, 28, 2): k(f'v_mov_b64 {vr(vQ+r,2)}, 0')
    vAd = vKM + 6
    for j in range(2, 7): k(f'v_add_u32 v{vAd+j}, s{50+j}, v{vL16}')
    def Mx(lt, kb, src):
        return f'v_smfmac_f32_16x16x64_bf16 {vr(vQ+4*lt,4)}, {vr(src,4)}, {xr(W(lt,kb),8)}, v{vIdx}'
    def M(lt, kb): return Mx(lt, kb, vM+4*kb)
    mk = [f'ds_read_b128 {vr(vKM+4*p,4)}, v{vMK} offset:{LM+p*512}' for p in range(3)]
    mk.append(f'ds_read_b64 {vr(vKM+12,2)}, v{vMKS} offset:{LM}')
    sets = [vM, vKM]
    def issue(st):
        return [f'buffer_load_dwordx4 {vr(sets[st],4)}, v{vG0}, {WS}, s{sM} offen sc1',
                f'buffer_load_dwordx4 {vr(sets[st]+4,4)}, v{vG1}, {WS}, s{sM} offen sc1']
    def checks(st):
        G = sets[st]
        return [(1, [f'v_max3_u32 v{vT}, v{G}, v{G+1}, v{G+2}']),
                (0, [f'v_max3_u32 v{vT+1}, v{G+4}, v{G+5}, v{G+6}', f'v_max3_u32 v{vT}, v{vT}, v{G+3}, v{G+7}',
                     f'v_max_u32 v{vT}, v{vT}, v{vT+1}', f'v_cmp_eq_u32 vcc, -1, v{vT}'])]
    NB = OPT['nb']
    def body(st):
        G = sets[st]
        stamp(k, 0, stamps)
        wrs = [f'ds_write_b128 v{vG0}, {vr(G,4)} offset:{LM}', f'ds_write_b128 v{vG1}, {vr(G+4,4)} offset:{LM}']
        seq = [(lt, j) for j in range(2) for lt in range(7)]
        for n, (lt, j) in enumerate(seq):
            k(Mx(lt, j, G + 4*j))
            if OPT['w64'] == 0 and n < 2: k.ds(wrs[n])
            if OPT['w64'] == 1 and n < 4: k.ds(f'ds_write_b64 v{vG0 if n < 2 else vG1}, {vr(G+2*n,2)} offset:{LM + 8*(n&1)}')
            if n == 4: k(f'v_cmp_le_u32 vcc, {OPT["uneed"]}, v{vX+2}')
            if n == 5: k('s_nop 0'); k(f'v_cndmask_b32 v{vX+1}, v{vX+3}, v{vX}, vcc')
            if n == NB - 1:
                k.wds0(); k('s_barrier')
            if NB - 1 <= n < NB + 4:
                jj = n - (NB - 1) + 2
                k.ds(f'ds_read_b128 {vr(vM+4*jj,4)}, v{vAd+jj} offset:{LM}', f'm{jj}')
            if n == NB + 5: k(f'buffer_load_dword v0, v{vX+1}, {WS}, s{sUM} offen sc1')
    if OPT['ap2']:
        poll2(k, issue, checks, body, 'Lga', OPT['stagA'])
    else:
        gather_mem(k, vM, vG0, vG1, None, None, vT)
        body(0)
    def cvt(lt, h):
        k(f'v_cvt_pk_bf16_f32 v{vQ+4*lt+h}, v{vQ+4*lt+2*h}, v{vQ+4*lt+2*h+1}')
    def wr(lt):
        k.ds(f'ds_write_b64 v{vQW}, {vr(vQ+4*lt,2)} offset:{512*(lt&1)}')
    def tr(p, h):
        k.ds(f'ds_read_b64_tr_b16 {vr(vQ+8*p+2*h,2)}, v{vQR} offset:{512*h}', f'q{p}')
    vSt = [vM, vM+4, vQ+4]
    def S(p, t):
        q = vQ + 8*p
        c = '0' if p == 0 else vr(vSt[t],4)
        if p < 3:
            a = vKM+4*p if t == 0 else vKT+8*p+4*(t-1)
            k(f'v_mfma_f32_16x16x32_bf16 {vr(vSt[t],4)}, {vr(a,4)}, {vr(q,4)}, {c}')
        else:
            a = vKM+12 if t == 0 else vKT+24+2*(t-1)
            k(f'v_mfma_f32_16x16x16_bf16 {vr(vSt[t],4)}, {vr(a,2)}, {vr(q,2)}, {c}')
    for lt in range(7):
        for j in range(2, 7):
            if lt == 0: k.wds(f'm{j}')
            k(M(lt, j))
            if lt == 0 and j == 6:
                k('s_waitcnt vmcnt(1)')
                for x in mk: k.ds(x, 'mk')
            if lt >= 1:
                if j == 4: cvt(lt-1, 0)
                if j == 5: cvt(lt-1, 1)
                if j == 6:
                    wr(lt-1)
                    if (lt-1) & 1: tr((lt-1)//2, 0); tr((lt-1)//2, 1)
        if lt == (4 if OPT['s1pos'] == 0 else 3):
            k.wds('q0')
            for t in range(3): S(0, t)
        if lt == 5 and OPT['s1pos'] == 1:
            k.wds('q1')
            for t in range(3): S(1, t)
    if OPT['s1pos'] == 0:
        k.wds('q1')
        for t in range(3): S(1, t)
        cvt(6, 0); cvt(6, 1); wr(6); tr(3, 0)
        k.wds('q2')
        for t in range(3): S(2, t)
    else:
        k.nop(8)
        cvt(6, 0); cvt(6, 1); wr(6); tr(3, 0)
        k.wds('q2')
        for t in range(3): S(2, t)
    k.wds('q3')
    for t in range(3): S(3, t)
    for t in range(3):
        k.nop(2 if (t == 0 or OPT['p64'] == 0) else 1)
        if OPT['p64'] == 0: k.ds(f'ds_write_b128 v{vSW}, {vr(vSt[t],4)} offset:{1088*t}')
        else:
            k.ds(f'ds_write_b64 v{vSW}, {vr(vSt[t],2)} offset:{1088*t}')
            k.ds(f'ds_write_b64 v{vSW}, {vr(vSt[t]+2,2)} offset:{1088*t+8}')
    k.wds0()
    k('s_barrier')
    stamp(k, 1, stamps)
    mark = len(k.lines)
    R = vQ+8
    for w in range(4): k.ds(f'ds_read_b128 {vr(R+4*w,4)}, v{vSR} offset:{w*3264}', f'r{w}')
    k(f's_cmp_eq_u32 s{sMODE}, 1')
    k.wds('r1')
    k(f'v_pk_add_f32 {vr(R,2)}, {vr(R,2)}, {vr(R+4,2)}')
    k(f'v_pk_add_f32 {vr(R+2,2)}, {vr(R+2,2)}, {vr(R+6,2)}')
    k.wds('r2')
    k(f'v_pk_add_f32 {vr(R,2)}, {vr(R,2)}, {vr(R+8,2)}')
    k(f'v_pk_add_f32 {vr(R+2,2)}, {vr(R+2,2)}, {vr(R+10,2)}')
    k.wds('r3')
    k(f'v_pk_add_f32 {vr(R,2)}, {vr(R,2)}, {vr(R+12,2)}')
    k(f'v_pk_add_f32 {vr(R+2,2)}, {vr(R+2,2)}, {vr(R+14,2)}')
    k.nop(2)
    k(f'v_permlane16_swap_b32 v{R}, v{R+2}')
    k(f'v_permlane16_swap_b32 v{R+1}, v{R+3}')
    X = R+4; m = R+6; t = R+8
    k(f'v_pk_add_f32 {vr(X,2)}, {vr(R,2)}, {vr(R+2,2)}')
    def allred(op, m):
        for rot in (8, 4, 2, 1):
            k.nop(2)
            k(f'{op}_dpp v{m}, v{m}, v{m} row_ror:{rot} row_mask:0xf bank_mask:0xf')
        k(f'v_mov_b32 v{t}, v{m}')
        k.nop(2)
        k(f'v_permlane16_swap_b32 v{m}, v{t}')
        k(f'{op} v{m}, v{m}, v{t}')
    k(f'v_max_f32 v{m}, v{X}, v{X+1}')
    allred('v_max_f32', m)
    k(f'v_pk_add_f32 {vr(X,2)}, {vr(X,2)}, {vr(m,2)} op_sel_hi:[1,0] neg_lo:[0,1] neg_hi:[0,1]')
    k(f'v_exp_f32 v{X}, v{X}')
    k(f'v_exp_f32 v{X+1}, v{X+1}')
    k.nop(1)
    k(f'v_add_f32 v{m}, v{X}, v{X+1}')
    k(f'v_mul_f32 v{m}, v{m}, v{vVal}')
    allred('v_add_f32', m)
    k(f'v_rcp_f32 v{m}, v{m}')
    k.nop(1)
    k(f'v_pk_mul_f32 {vr(X,2)}, {vr(X,2)}, {vr(m,2)} op_sel_hi:[1,0]')
    k(f'v_cvt_pk_bf16_f32 v{X}, v{X}, v{X+1}')
    k(f'v_min_u32 v{X}, -2, v{X}')
    if OPT['kpos'] == 'soft':
        body_ = k.lines[mark:]; k.lines = k.lines[:mark]; L = key_list()
        for x in body_:
            if x == 's_nop 1' and L: k(L.pop(0)); k('s_nop 0')
            else: k(x)
        assert not L
    publish(k, f'buffer_store_dword v{X}, v{vPO}, {WS}, s{sP} offen')
    stamp(k, 2, stamps)
    k('s_barrier')
    if OPT['kdel']: k(f"s_sleep {OPT['kdel']}")
    load_keys(OPT['kpos'] != 'soft')
    if OPT['sleepA']: k(f"s_sleep {OPT['sleepA']}")
    k(f's_add_u32 s{sUM}, s{sUM}, {UF_SEG}')
    k(f's_add_u32 s{sM}, s{sM}, {MEM_S}')
    k(f's_add_u32 s{sP}, s{sP}, {PB_S}')
    if stamps: k(f's_add_u32 s{sST}, s{sST}, 16')
    k(f's_add_u32 s{sSTEP}, s{sSTEP}, 1')
    k(f's_cmp_lt_u32 s{sSTEP}, {NSTEP}')
    k('s_cbranch_scc1 L_A_loop')
    edge(k, stamps, 8)
    k('s_waitcnt vmcnt(0)')
    k('s_endpgm')
    k.flush_cold()

def role_B(k, stamps=False, wait_u=None):
    WS = f's[{SWS}:{SWS+3}]'
    vLane, vL16, vG0, vG1, vIdx = 1, 2, 3, 4, 5
    vWL, vPT, vPM, vRW, vRR, vL4 = 6, 7, 8, 9, 10, 11
    vC = 12
    vM = 16
    vA = 44
    vU = 76
    vTm = 108
    vUi = 140
    vUm = 172
    vRR2 = 188
    vKeep, vFl = 191, 15
    vD = vTm
    vG = vTm + 16
    vP = [vM, vA]
    def W(gi, kb):
        i = gi*5 + kb
        return (256 + 8*i) if i < 32 else (192 + 8*(i-32))
    LM, LRED, LW = 0, 7168, 16384
    k.label('L_roleB')
    k(f's_sub_u32 s{sID}, s{sROLE}, 16')
    common_lane_setup(k, vLane, vL16, vG0, vG1, vIdx, vC)
    k(f's_lshl_b32 s{sT0}, s{sWAVE}, 2')
    k(f's_mul_i32 s{sT0}, s{sT0}, 28')
    k(f's_lshl_b32 s{sT1}, s{sID}, 1')
    k(f's_add_u32 s{sT0}, s{sT0}, s{sT1}')
    k(f's_mul_i32 s35, s{sT0}, 14336')
    k(f's_add_u32 s35, s35, {WTB}')
    k(f's_lshl_b32 s37, s{sWAVE}, 15')
    k(f's_add_u32 s37, s37, {LW}')
    k(f'v_add_u32 v{vWL}, s37, v{vL16}')
    for j in range(7):
        k(f's_add_u32 s{50+j}, s{sWAVE}, {(4*j) % 7}')
        k(f's_sub_u32 s40, s{50+j}, 7')
        k(f's_cmp_ge_u32 s{50+j}, 7')
        k(f's_cselect_b32 s{50+j}, s40, s{50+j}')
        k(f's_lshl_b32 s{50+j}, s{50+j}, 10')
    k(f'v_add_u32 v{vG1}, s51, v{vL16}')
    for gi in range(8):
        k(f's_add_u32 s36, s35, {(gi>>1)*28*14336 + (gi&1)*14336}')
        for j in range(7):
            k(f's_lshl_b32 s40, s{50+j}, 1')
            k(f's_add_u32 s40, s40, s36')
            if j >= 5:
                k(f's_add_u32 s38, s37, {gi*4096 + (j-5)*2048}')
                k(f's_mov_b32 m0, s38')
                k('s_nop 0')
            for f in range(2):
                if j < 5: k(f'buffer_load_dwordx4 {xr(W(gi, j) + 4*f,4)}, v{vL16}, {WS}, s40 offen offset:{f*1024}')
                else:     k(f'buffer_load_dwordx4 v{vL16}, {WS}, s40 offen offset:{f*1024} lds')
        k('s_waitcnt vmcnt(40)')
    g, i = vA, vA+1
    vT = vC
    k(f'v_lshrrev_b32 v{g}, 4, v{vLane}')
    k(f'v_and_b32 v{i}, 15, v{vLane}')
    k(f's_lshl_b32 s40, s{sWAVE}, 11')
    k(f'v_add_u32 v{vPT}, s40, v{vL16}')
    k(f'v_lshrrev_b32 v{vT}, 1, v{g}')
    k(f'v_lshlrev_b32 v{vT}, 8, v{vT}')
    k(f'v_lshl_add_u32 v{vT}, v{i}, 4, v{vT}')
    k(f's_lshl_b32 s40, s{sWAVE}, 9')
    k(f's_add_u32 s40, s40, 8192')
    k(f'v_add_u32 v{vPM}, s40, v{vT}')
    k(f's_lshl_b32 s40, s{sWAVE}, 10')
    k(f's_add_u32 s40, s40, {LRED}')
    k(f'v_add_u32 v{vRW}, s40, v{vL16}')
    k(f'v_and_b32 v{vT}, 3, v{vLane}')
    k(f'v_lshlrev_b32 v{vT}, 6, v{vT}')
    k(f'v_lshrrev_b32 v{vT+1}, 5, v{vLane}')
    k(f'v_lshl_add_u32 v{vT}, v{vT+1}, 5, v{vT}')
    k(f'v_lshrrev_b32 v{vT+1}, 2, v{vLane}')
    k(f'v_and_b32 v{vT+2}, 3, v{vT+1}')
    k(f'v_lshl_add_u32 v{vT}, v{vT+2}, 2, v{vT}')
    k(f'v_bfe_u32 v{vT+2}, v{vLane}, 4, 1')
    k(f'v_lshl_add_u32 v{vT}, v{vT+2}, 8, v{vT}')
    k(f's_and_b32 s40, s{sWAVE}, 1')
    k(f's_lshl_b32 s40, s40, 9')
    k(f's_add_u32 s40, s40, {LRED}')
    k(f'v_add_u32 v{vRR}, s40, v{vT}')
    for w in range(1, 4): k(f'v_add_u32 v{vRR2+w-1}, {1024*w}, v{vRR}')
    k(f's_lshl_b32 s40, s{sID}, 1')
    k(f's_and_b32 s41, s{sWAVE}, 1')
    k(f's_add_u32 s40, s40, s41')
    k(f's_lshl_b32 s40, s40, 8')
    k(f'v_lshlrev_b32 v{vL4}, 2, v{vLane}')
    k(f'v_add_u32 v{vL4}, s40, v{vL4}')
    k(f's_mov_b32 s{sSTEP}, 0')
    k(f's_mov_b32 s{sM}, {MEM}')
    k(f's_mov_b32 s{sP}, {PB}')
    k(f's_lshl_b32 s{sX}, s{sID}, 15')
    k(f's_lshl_b32 s40, s{sWAVE}, 13')
    k(f's_add_u32 s{sX}, s{sX}, s40')
    k(f's_add_u32 s{sX}, s{sX}, {UF}')
    k(f's_mul_i32 s{sUM}, s{sWAVE}, {2*28*1024}')
    k(f's_lshl_b32 s40, s{sID}, 11')
    k(f's_add_u32 s{sUM}, s{sUM}, s40')
    k(f's_add_u32 s{sUM}, s{sUM}, {UM}')
    k(f's_mov_b32 s43, s{sUM}')
    def ldu(j):
        hh, T = j >> 1, j & 1
        r = vU + 16*(hh>>1) + 8*T + 4*(hh&1)
        return f'buffer_load_dwordx4 {vr(r,4)}, v{vL16}, {WS}, s{sX if j<4 else sT0} offen offset:{(j&3)*1024} ' + OPT['uf']
    def stum(u, T):
        return f'buffer_store_dwordx4 {vr(vUm+8*T+4*u,4)}, v{vL16}, {WS}, s{43 if u==0 else 44} offen offset:{T*1024} ' + OPT['um']
    def lw(gi):
        b = vTm + 16*(gi&1)
        for f in range(4): k.ds(f'ds_read_b128 {vr(b+4*f,4)}, v{vWL} offset:{gi*4096+f*1024}', f'w{gi}')
    def load_u(ahead):
        if wait_u:
            lu = k.newlabel('Lnu')
            k(f's_add_u32 s{sT0}, s{sSTEP}, {ahead}')
            k(f's_and_b32 s{sT1}, s{sT0}, 3')
            k(f's_cbranch_scc1 {lu}')
            k(f's_lshl_b32 s{sT0}, s{sT0}, 5')
            k(f's_add_u32 s{sT0}, s{sT0}, {flag(F_U)}')
            wait_u(k, sT0, 32, vC, sleep=1)
            k.label(lu)
        k(f's_add_u32 s{sT0}, s{sX}, 4096')
        for j in range(8): k(ldu(j))
        k(f's_add_u32 s{sX}, s{sX}, {UF_SEG}')
    if OPT['u0'] == 'pro': load_u(0)
    wait_mode(k, vC)
    sw = []
    for o in range(4):
        r = vU + 8*o
        for e in range(4):
            sel = e & 1
            sw.append(f'v_pk_mov_b32 {vr(vUi+8*o+2*e,2)}, {vr(r+(e&2),2)}, {vr(r+4+(e&2),2)} op_sel:[{sel},{sel}]')
    if stamps: k(f's_add_u32 s76, s{sST}, 0x20000')
    edge(k, stamps, 0)
    k.label('L_B_loop')
    lp = k.newlabel('Lgm')
    def gl():
        k(f'buffer_load_dwordx4 {vr(vM,4)}, v{vG0}, {WS}, s{sM} offen sc1')
        k(f'buffer_load_dwordx4 {vr(vM+4,4)}, v{vG1}, {WS}, s{sM} offen sc1')
    k('s_waitcnt vmcnt(1)')
    NU = OPT['nu2']
    k(f's_add_u32 s{sT0}, s{sX}, {4096 - UF_SEG}')
    for j in range(8-NU, 8): k(ldu(j))
    gl()
    for x in sw[:16-2*NU]: k(x)
    for r in range(0, 32, 2): k(f'v_mov_b64 {vr(vA+r,2)}, 0')
    for j in range(2, 7): k(f'v_add_u32 v{vG+j}, s{50+j}, v{vL16}')
    k(f's_add_u32 s45, s{sSTEP}, 1')
    k(f's_lshr_b32 s45, s45, 2')
    k(f's_lshl_b32 s45, s45, 7')
    k(f's_add_u32 s45, s45, {flag(F_U)}')
    k(f's_add_u32 s44, s43, {28*1024}')
    vm = [stum(0,0), stum(0,1), stum(1,0), stum(1,1)] + [ldu(j) for j in range(8)]
    lw(0)
    k(f's_mov_b32 s{sCNT}, 0')
    k(f's_branch {lp}w')
    k.label(lp)
    if OPT['bgs']: k(f"s_sleep {OPT['bgs']}")
    gl()
    k(f's_add_u32 s{sCNT}, s{sCNT}, 1')
    k(f's_cmp_gt_u32 s{sCNT}, s{sT2}')
    k('s_cbranch_scc1 L_fail')
    k.label(lp + 'w')
    k('s_waitcnt vmcnt(1)')
    k(f'v_max3_u32 v{vC}, v{vM}, v{vM+1}, v{vM+2}')
    k('s_waitcnt vmcnt(0)')
    k(f'v_max3_u32 v{vC+1}, v{vM+4}, v{vM+5}, v{vM+6}')
    k(f'v_max3_u32 v{vC}, v{vC}, v{vM+3}, v{vM+7}')
    k(f'v_max_u32 v{vC}, v{vC}, v{vC+1}')
    k(f'v_cmp_eq_u32 vcc, -1, v{vC}')
    k(f's_cbranch_vccnz {lp}')
    stamp(k, 0, stamps)
    k.ds(f'ds_write_b128 v{vG0}, {vr(vM,4)} offset:{LM}')
    k.ds(f'ds_write_b128 v{vG1}, {vr(vM+4,4)} offset:{LM}')
    ls, l2 = k.newlabel('Lbs'), k.newlabel('Lbt')
    k(f's_cmp_eq_u32 s{sSTEP}, 0')
    k(f's_cbranch_scc1 {l2}')
    k(f's_cmp_ge_u32 s{sWAVE}, 2')
    k(f's_cbranch_scc1 {ls}')
    k(f's_add_u32 s{sT0}, s{sM}, {MEMX - MEM - MEM_S}')
    k(f'buffer_store_dword v{vKeep}, v{vL4}, {WS}, s{sT0} offen sc1')
    k(f's_branch {l2}')
    k.label(ls)
    k(f's_cmp_eq_u32 s{sWAVE}, 2')
    k(f's_cselect_b32 s{sT0}, s{sSTEP}, 0')
    k(f's_cmp_le_u32 s{sT0}, 1')
    k(f's_cbranch_scc1 {l2}')
    k(f's_lshl_b32 s{sT0}, s{sSTEP}, 7')
    k(f's_add_u32 s{sT0}, s{sT0}, {flag(F_UM) - 256}')
    k('s_mov_b64 exec, 1')
    k(f'v_mov_b32 v{vC}, 1')
    k(f'buffer_atomic_add v{vC}, off, {WS}, s{sT0}')
    k('s_mov_b64 exec, -1')
    k.label(l2)
    k(f'buffer_load_dword v{vFl}, off, {WS}, s45 sc1')
    for x in vm[:4]: k(x)
    def acc(gi): return vA + 4*gi
    def cvt(gi, h):
        hh, T = gi>>1, gi&1
        d = vUm + 8*T + 4*(hh>>1) + 2*h + (hh&1)
        a = acc(gi) + 2*h
        k(f'v_cvt_pk_bf16_f32 v{d}, v{a}, v{a+1}')
    def lw1(gi, f):
        k.ds(f'ds_read_b128 {vr(vTm+16*(gi&1)+4*f,4)}, v{vWL} offset:{gi*4096+f*1024}', f'w{gi}')
    def MB(gi, j):
        w = xr(W(gi,j),8) if j < 5 else vr(vTm + 16*(gi&1) + 8*(j-5), 8)
        k(f'v_smfmac_f32_16x16x64_bf16 {vr(acc(gi),4)}, {vr(vM+4*j,4)}, {w}, v{vIdx}')
    for n in range(16):
        MB(n & 7, n >> 3)
        if n == 5:
            k.wds0(); k('s_barrier')
        if 5 <= n < 10:
            k.ds(f'ds_read_b128 {vr(vM+4*(n-3),4)}, v{vG+n-3} offset:{LM}', f'm{n-3}')
    for gi in range(8):
        for j in range(2, 7):
            if gi == 0: k.wds(f'm{j}')
            if j == 5: k.wds(f'w{gi}')
            MB(gi, j)
            if gi < 7 and j in (2, 3, 5, 6): lw1(gi+1, {2:0, 3:1, 5:2, 6:3}[j])
            if gi >= 1 and j == 4: cvt(gi-1, 0); cvt(gi-1, 1)
    k(f's_mov_b32 s43, s{sUM}')
    k(f's_add_u32 s{sUM}, s{sUM}, {UM_SEG}')
    for x in sw[16-2*NU:]: k(x)
    k.nop(max(0, 6 - 2*NU))
    cvt(7, 0); cvt(7, 1)
    for r in range(0, 8, 2): k(f'v_mov_b64 {vr(vD+r,2)}, 0')
    k(f's_cmp_ge_u32 s{sSTEP}, {NSTEP}')
    k('s_cbranch_scc1 L_B_end')
    k('s_waitcnt vmcnt(4)')
    if OPT['u0'] == 'cold':
        l0, l1 = k.newlabel('Lu0'), k.newlabel('Lu1')
        k(f's_cmp_eq_u32 s{sSTEP}, 0')
        k(f's_cbranch_scc1 {l0}')
        k.label(l1)
        main = k.lines; k.lines = []
        k.label(l0)
        load_u(0)
        k('s_waitcnt vmcnt(0)')
        for x in sw: k(x)
        k(f'v_mov_b32 v{vFl}, 32')
        k(f's_branch {l1}')
        k.cold += k.lines; k.lines = main
    if wait_u:
        lu = k.newlabel('Lnu')
        k(f'v_cmp_le_u32 vcc, 32, v{vFl}')
        k(f's_cbranch_vccnz {lu}')
        wait_u(k, 45, 32, vC)
        k.label(lu)
    k(f's_add_u32 s{sT0}, s{sX}, 4096')
    for j in range(8-NU): k(ldu(j))
    k(f's_add_u32 s{sX}, s{sX}, {UF_SEG}')
    stamp(k, 1, stamps)
    if OPT['sleepB']: k(f"s_sleep {OPT['sleepB']}")
    def issue(st):
        P = vP[st]
        return [f'buffer_load_dwordx4 {vr(P,4)}, v{vPT}, {WS}, s{sP} offen sc1',
                f'buffer_load_dwordx4 {vr(P+4,4)}, v{vPT}, {WS}, s{sP} offen offset:1024 sc1',
                f'buffer_load_dwordx4 {vr(P+8,4)}, v{vPM}, {WS}, s{sP} offen sc1']
    def checks(st):
        P = vP[st]
        return [(2, [f'v_max3_u32 v{vC}, v{P}, v{P+1}, v{P+2}']),
                (1, [f'v_max3_u32 v{vC+1}, v{P+4}, v{P+5}, v{P+6}', f'v_max3_u32 v{vC}, v{vC}, v{P+3}, v{P+7}']),
                (0, [f'v_max3_u32 v{vC+1}, v{vC+1}, v{P+8}, v{P+9}', f'v_max3_u32 v{vC}, v{vC}, v{P+10}, v{P+11}',
                     f'v_max_u32 v{vC}, v{vC}, v{vC+1}', f'v_cmp_eq_u32 vcc, -1, v{vC}'])]
    def body(st):
        P = vP[st]
        stamp(k, 2, stamps)
        for j in range(3):
            for T in range(2):
                b = vr(vUi + 16*j + 8*T, 8) if j < 2 else vr(vUm + 8*T, 8)
                k(f'v_smfmac_f32_16x16x64_bf16 {vr(vD+4*T,4)}, {vr(P+4*j,4)}, {b}, v{vIdx}')
    poll2(k, issue, checks, body, 'Lpp', OPT['stag'])
    k(f's_add_u32 s{sM}, s{sM}, {MEM_S}')
    k(f's_add_u32 s{sP}, s{sP}, {PB_S}')
    k.nop(6)
    for r in range(4): k(f'v_permlane32_swap_b32 v{vD+r}, v{vD+4+r}')
    k(f'v_pk_add_f32 {vr(vD,2)}, {vr(vD,2)}, {vr(vD+4,2)}')
    k(f'v_pk_add_f32 {vr(vD+2,2)}, {vr(vD+2,2)}, {vr(vD+6,2)}')
    k.ds(f'ds_write_b128 v{vRW}, {vr(vD,4)}')
    k.wds0()
    k('s_barrier')
    k(f's_cmp_ge_u32 s{sWAVE}, 2')
    k('s_cbranch_scc1 L_B_skip')
    R = vG
    for w in range(4): k.ds(f'ds_read2_b32 {vr(R+2*w,2)}, v{vRR} offset0:{0} offset1:{4}' if w == 0 else
                            f'ds_read2_b32 {vr(R+2*w,2)}, v{vRR2+w-1} offset0:0 offset1:4', f'r{w}')
    k(f's_cmp_eq_u32 s{sMODE}, 1')
    k.wds('r1')
    k(f'v_pk_add_f32 {vr(R,2)}, {vr(R,2)}, {vr(R+2,2)}')
    k.wds('r3')
    k(f'v_pk_add_f32 {vr(R+4,2)}, {vr(R+4,2)}, {vr(R+6,2)}')
    k(f'v_pk_add_f32 {vr(R,2)}, {vr(R,2)}, {vr(R+4,2)}')
    k(f'v_cvt_pk_bf16_f32 v{R}, v{R}, v{R+1}')
    k(f'v_min_u32 v{R}, -2, v{R}')
    publish(k, f'buffer_store_dword v{R}, v{vL4}, {WS}, s{sM} offen')
    k(f'v_mov_b32 v{vKeep}, v{R}')
    k(f's_cmp_lg_u32 s{sSTEP}, {NSTEP-1}')
    k('s_cbranch_scc1 L_B_skip2')
    k(f's_add_u32 s{sT0}, s{sM}, {MEMX - MEM - MEM_S}')
    k(f'buffer_store_dword v{R}, v{vL4}, {WS}, s{sT0} offen sc1')
    k('s_branch L_B_skip2')
    k.label('L_B_skip')
    k('s_waitcnt vmcnt(0)')
    k.label('L_B_skip2')
    stamp(k, 3, stamps)
    k('s_barrier')
    k(f's_add_u32 s{sSTEP}, s{sSTEP}, 1')
    if stamps: k(f's_add_u32 s{sST}, s{sST}, 16')
    k('s_branch L_B_loop')
    k.label('L_B_end')
    edge(k, stamps, 8)
    k(f's_add_u32 s44, s43, {28*1024}')
    for x in vm[:4]: k(x)
    k('s_waitcnt vmcnt(0)')
    k('s_barrier')
    k(f's_cmp_lg_u32 s{sWAVE}, 0')
    k('s_cbranch_scc1 L_exit')
    k('s_mov_b64 exec, 3')
    k(f'v_mov_b32 v{vC}, 1')
    k(f'v_lshlrev_b32 v{vC+1}, 7, v{vLane}')
    k(f's_mov_b32 s{sT0}, {flag(F_UM + 62)}')
    k(f'buffer_atomic_add v{vC}, v{vC+1}, {WS}, s{sT0} offen')
    k('s_endpgm')
    k.flush_cold()

def role_P(k, wait_u=None):
    WS = f's[{SWS}:{SWS+3}]'
    vLane, vU, vX, vS, vD = 1, 2, 3, 4, 8
    D = OPT['pfd']; st = OPT['pfs']; sh = 7 if st == 128 else 6
    k.label('L_roleP')
    k(f's_mov_b32 s{sT2}, {POLL_LIMIT}')
    k(f's_sub_u32 s{sID}, s{sROLE}, 30')
    k(f's_lshl_b32 s{sID}, s{sID}, 2')
    k(f's_add_u32 s{sID}, s{sID}, s{sWAVE}')
    k(f'v_and_b32 v{vLane}, 63, v0')
    k(f'v_lshlrev_b32 v{vU}, {sh}, v{vLane}')
    k(f's_mul_i32 s40, s{sID}, {UF_SEG//8}')
    k(f'v_add_u32 v{vU}, s40, v{vU}')
    k(f'v_min_u32 v{vX}, 55, v{vLane}')
    k(f'v_lshlrev_b32 v{vX}, 6, v{vX}')
    k(f's_mul_i32 s40, s{sID}, 3584')
    k(f'v_add_u32 v{vX}, s40, v{vX}')
    k(f'v_min_u32 v{vS}, 19, v{vLane}')
    k(f'v_lshlrev_b32 v{vS}, 6, v{vS}')
    k(f's_mul_i32 s40, s{sID}, 1280')
    k(f'v_add_u32 v{vS}, s40, v{vS}')
    k(f'v_min_u32 v{vS+1}, 13, v{vLane}')
    k(f'v_lshlrev_b32 v{vS+1}, 6, v{vS+1}')
    k(f's_mul_i32 s40, s{sID}, 896')
    k(f'v_add_u32 v{vS+1}, s40, v{vS+1}')
    k(f's_mov_b32 s{sSTEP}, 0')
    k(f's_mov_b32 s{sX}, {UF}')
    k(f's_mov_b32 s{sUM}, {XNS}')
    k(f's_mov_b32 s{sP}, {PB}')
    k(f's_mov_b32 s{sM}, {MEM + MEM_S}')
    k(f's_mov_b32 s41, {MEM - D*MEM_S}')
    k.label('L_P_loop')
    k(f's_cmp_le_u32 s{sSTEP}, {D}')
    k('s_cbranch_scc1 L_P_go')
    k(f's_mov_b32 s{sCNT}, 0')
    k.label('L_P_wait')
    k(f'buffer_load_dword v{vD}, off, {WS}, s41 sc1')
    k(f's_add_u32 s{sCNT}, s{sCNT}, 1')
    k(f's_cmp_gt_u32 s{sCNT}, s{sT2}')
    k('s_cbranch_scc1 L_fail')
    k('s_waitcnt vmcnt(0)')
    k(f'v_cmp_eq_u32 vcc, -1, v{vD}')
    k('s_cbranch_vccz L_P_go')
    k('s_sleep 2')
    k('s_branch L_P_wait')
    k.label('L_P_go')
    k(f'buffer_load_dword v{vD+1}, v{vS}, {WS}, s{sP} offen sc1')
    k(f'buffer_load_dword v{vD+2}, v{vS+1}, {WS}, s{sM} offen sc1')
    k(f'buffer_load_dword v{vD+3}, v{vX}, {WS}, s{sUM} offen sc1')
    n = 0 if OPT['apf'] else UF_SEG // 8 // (64*st)
    k(f's_mov_b32 s{sT0}, s{sX}')
    for j in range(n):
        k(f'buffer_load_dword v{vD+4+j}, v{vU}, {WS}, s{sT0} offen sc1')
        k(f's_add_u32 s{sT0}, s{sT0}, {64*st}')
    k(f's_add_u32 s{sX}, s{sX}, {UF_SEG}')
    k(f's_add_u32 s{sUM}, s{sUM}, 28672')
    k(f's_add_u32 s{sP}, s{sP}, {PB_S}')
    k(f's_add_u32 s{sM}, s{sM}, {MEM_S}')
    k(f's_add_u32 s41, s41, {MEM_S}')
    k(f's_add_u32 s{sSTEP}, s{sSTEP}, 1')
    k(f's_cmp_lt_u32 s{sSTEP}, {NSTEP}')
    k('s_cbranch_scc1 L_P_loop')
    k('s_waitcnt vmcnt(0)')
    k('s_endpgm')
```

```python
from chain import K, OPT
from asmlib import *
from layout import *
import math, struct

def f32bits(x): return struct.unpack('<I', struct.pack('<f', x))[0]
PREP_GRID, PREP_BLOCK, PREP_LDS = 256, 512, 3*43008

def srd(k, s, argoff, size):
    k(f's_load_dwordx2 s[{s}:{s+1}], s[0:1], {argoff}')
    k(f's_mov_b32 s{s+2}, {size}')
    k(f's_mov_b32 s{s+3}, 0x20000')

def gen_prep(tl=False):
    k = K()
    WS = 's[4:7]'
    k(f's_cmp_ge_u32 s2, {PREP_GRID}')
    k('s_cbranch_scc1 P_exit')
    srd(k, 4, 112, WS_SIZE)
    k('v_lshrrev_b32 v1, 6, v0')
    k('v_and_b32 v2, 63, v0')
    k('v_readfirstlane_b32 s16, v1')
    if tl: k('s_memrealtime s[40:41]')
    k('s_nop 2')
    k('s_cmp_eq_u32 s16, 7')
    k('s_cbranch_scc1 P_ln')
    k('s_and_b32 s19, s2, 15')
    k('s_bfe_u32 s18, s2, 0x10005')
    k('s_lshr_b32 s20, s2, 6')
    k('s_bitcmp1_b32 s2, 4')
    k('s_cbranch_scc1 P_gB0')
    srd(k, 8, 16, 3670016); srd(k, 12, 24, 3670016)
    k('s_branch P_g1')
    k.label('P_gB0')
    srd(k, 8, 32, 3670016); srd(k, 12, 40, 3670016)
    k.label('P_g1')
    vI, vG, vL16 = 3, 4, 5
    vR, vC, vRA, vCA, vt = 6, 10, 12, 16, 18
    vRAs, vCAs = 20, 24
    k(f'v_and_b32 v{vI}, 15, v2')
    k(f'v_lshrrev_b32 v{vG}, 4, v2')
    k(f'v_lshlrev_b32 v{vL16}, 4, v2')
    k('s_mul_i32 s21, s18, 7')
    k('s_add_u32 s21, s21, s16')
    k(f'v_lshrrev_b32 v{vt}, 3, v2')
    k('s_lshl_b32 s22, s21, 5')
    k(f'v_add_u32 v{vt}, s22, v{vt}')
    k(f'v_lshlrev_b32 v{vt}, 13, v{vt}')
    k('s_lshl_b32 s22, s19, 9')
    k(f'v_add_u32 v{vt}, s22, v{vt}')
    k(f'v_and_b32 v{vt+1}, 7, v2')
    k(f'v_and_b32 v26, 1, v{vG}')
    k(f'v_xor_b32 v{vt+1}, v{vt+1}, v26')
    for q in range(4):
        k(f'v_xor_b32 v26, {2*q}, v{vt+1}')
        k(f'v_lshl_add_u32 v{vR+q}, v26, 4, v{vt}')
        if q: k(f'v_add_u32 v{vR+q}, {q*8*8192}, v{vR+q}')
    k(f'v_lshrrev_b32 v{vt}, 2, v{vI}')
    k(f'v_bfe_u32 v{vt+1}, v{vI}, 1, 1')
    k(f'v_lshl_add_u32 v{vt+1}, v{vt}, 1, v{vt+1}')
    k(f'v_xor_b32 v{vt+1}, v{vt+1}, v{vG}')
    k(f'v_lshlrev_b32 v{vt+1}, 4, v{vt+1}')
    k(f'v_lshl_add_u32 v{vt+1}, v{vt}, 10, v{vt+1}')
    k(f'v_and_b32 v{vt}, 3, v{vI}')
    k(f'v_lshl_add_u32 v{vt+1}, v{vt}, 7, v{vt+1}')
    k('s_lshl_b32 s33, s16, 12')
    k(f'v_add_u32 v{vRA}, s33, v{vt+1}')
    k(f'v_xor_b32 v{vRA+1}, 64, v{vRA}')
    k('s_lshl_b32 s22, s18, 1')
    k('s_add_u32 s22, s22, s20')
    for j in range(4):
        k(f's_add_u32 s{24+j}, s22, {j}')
        k(f's_and_b32 s{24+j}, s{24+j}, 3')
    vAcc, vOp = 28, 84
    k('s_lshl_b32 s32, s16, 11')
    k('s_add_u32 s32, s32, 28672')
    def mm(n):
        o = vOp + 36*(n&1)
        for T in range(2):
            for ct in range(7):
                a = vAcc + 28*T + 4*ct
                k(f'v_mfma_f32_16x16x32_bf16 {vr(a,4)}, {vr(o+4*T,4)}, {vr(o+8+4*ct,4)}, {"0" if n == 0 else vr(a,4)}')
    def body(gstep, rdc, cdma):
        k('s_waitcnt lgkmcnt(0)')
        k('s_and_b32 s5, s5, 0xffff'); k('s_and_b32 s9, s9, 0xffff'); k('s_and_b32 s13, s13, 0xffff')
        k.vmq = []
        def issue(j):
            sb = (j % 3)*43008
            k(f's_lshl_b32 s36, s{24+j}, 7')
            k(f's_mul_i32 s35, s{24+j}, {gstep}')
            for q in range(4):
                k(f's_add_u32 s34, s33, {sb + q*1024}')
                k('s_mov_b32 m0, s34')
                k('s_nop 0')
                k.vm(f'buffer_load_dwordx4 v{vR+q}, s[8:11], s36 offen lds', j)
            cdma(sb, j)
        D = OPT['k1d']
        for j in range(D): issue(j)
        def rd(n):
            j, es = n >> 1, n & 1
            o = vOp + 36*(n&1)
            for T in range(2): k(f'ds_read_b128 {vr(o+4*T,4)}, v{vRAs+es} offset:{T*512}')
            rdc(o + 8, es)
        for n in range(9):
            j = n >> 1
            if n < 8 and n % 2 == 0:
                sb = (j % 3)*43008
                k.wvm(j, extra='lgkmcnt(0)')
                k('s_barrier')
                if j + D < 4: issue(j + D)
                if tl == 1 and j in (0, 1, 3): k(f's_memrealtime s[{46+2*((j+1)//2)}:{47+2*((j+1)//2)}]')
                for e in range(2):
                    k(f'v_add_u32 v{vRAs+e}, {sb}, v{vRA+e}')
                    k(f'v_add_u32 v{vCAs+e}, {sb}, v{vCA+e}')
            if n < 8: rd(n)
            if n > 0:
                k(f's_waitcnt lgkmcnt({0 if (n == 8 or tl) else min(15, rdc.n + 2)})')
                mm(n-1)
    k('s_bitcmp1_b32 s2, 4')
    k('s_cbranch_scc1 P_gB')
    k('s_mul_i32 s22, s20, 7')
    k('s_add_u32 s22, s22, s16')
    k('s_lshr_b32 s23, s22, 1')
    k('s_lshl_b32 s23, s23, 5')
    k('s_and_b32 s22, s22, 1')
    k('s_lshl_b32 s22, s22, 3')
    k('s_add_u32 s22, s22, s23')
    k(f'v_bfe_u32 v{vt}, v2, 4, 1')
    k(f'v_lshlrev_b32 v{vt}, 2, v{vt}')
    k(f'v_bfe_u32 v{vt+1}, v2, 5, 1')
    k(f'v_lshl_add_u32 v{vt}, v{vt+1}, 1, v{vt}')
    k(f'v_bfe_u32 v{vt+1}, v2, 3, 1')
    k(f'v_add3_u32 v{vt}, v{vt}, v{vt+1}, s22')
    k(f'v_lshlrev_b32 v{vt}, 13, v{vt}')
    k('s_lshl_b32 s22, s19, 9')
    k(f'v_add_u32 v{vt}, s22, v{vt}')
    k(f'v_and_b32 v{vt+1}, 7, v2')
    k(f'v_xor_b32 v{vt+1}, v{vt+1}, v{vG}')
    k(f'v_lshl_add_u32 v{vC}, v{vt+1}, 4, v{vt}')
    k(f'v_xor_b32 v{vt+1}, 4, v{vt+1}')
    k(f'v_lshl_add_u32 v{vC+1}, v{vt+1}, 4, v{vt}')
    k(f'v_add_u32 v{vC+1}, {16*8192}, v{vC+1}')
    k(f'v_lshrrev_b32 v{vt}, 1, v{vI}')
    k(f'v_xor_b32 v{vt}, v{vt}, v{vG}')
    k(f'v_lshlrev_b32 v{vt}, 4, v{vt}')
    k(f'v_lshl_add_u32 v{vt}, v{vI}, 7, v{vt}')
    k(f'v_add_u32 v{vCA}, 28672, v{vt}')
    k(f'v_xor_b32 v{vCA+1}, 64, v{vCA}')
    def rdA(o, es):
        for ct in range(7): k(f'ds_read_b128 {vr(o+4*ct,4)}, v{vCAs+es} offset:{ct*2048}')
    rdA.n = 7
    def dmaA(sb, j):
        for hq in range(2):
            k(f's_add_u32 s34, s32, {sb + hq*1024}')
            k('s_mov_b32 m0, s34')
            k('s_nop 0')
            k.vm(f'buffer_load_dwordx4 v{vC+hq}, s[12:15], s35 offen lds', j)
    body(128, rdA, dmaA)
    k(f's_mov_b32 s22, {f32bits(math.log2(math.e)/16):#x}')
    k(f's_mov_b32 s23, {WTA}')
    k('s_branch P_gepi')
    k.label('P_gB')
    k(f's_mov_b32 s22, {(1<<32)//14 + 1}')
    k(f'v_mul_hi_u32 v{vt}, v0, s22')
    k(f'v_mul_u32_u24 v{vt+1}, 14, v{vt}')
    k(f'v_sub_u32 v{vt+1}, v0, v{vt+1}')
    k(f'v_mul_u32_u24 v{vt}, 896, v{vt}')
    k(f'v_lshl_add_u32 v{vt}, v{vt+1}, 4, v{vt}')
    k('s_mul_i32 s22, s19, 229376')
    k('s_mul_i32 s23, s20, 224')
    k('s_add_u32 s22, s22, s23')
    k(f'v_add_u32 v{vC}, s22, v{vt}')
    k(f'v_add_u32 v{vC+1}, {32*896}, v{vC}')
    k('s_lshl_b32 s32, s16, 10')
    k('s_add_u32 s32, s32, 28672')
    k(f'v_bfe_u32 v{vt}, v2, 2, 2')
    k(f'v_lshl_add_u32 v{vt}, v{vG}, 3, v{vt}')
    k(f'v_mul_u32_u24 v{vt}, 224, v{vt}')
    k(f'v_and_b32 v{vt+1}, 3, v2')
    k(f'v_lshl_add_u32 v{vt}, v{vt+1}, 3, v{vt}')
    k(f'v_add_u32 v{vCA}, 28672, v{vt}')
    k(f'v_add_u32 v{vCA+1}, 7168, v{vCA}')
    def rdB(o, es):
        for ct in range(7):
            for hh in range(2): k(f'ds_read_b64_tr_b16 {vr(o+4*ct+2*hh,2)}, v{vCAs+es} offset:{ct*32+hh*896}')
    rdB.n = 14
    def dmaB(sb, j):
        for hq in range(2):
            k(f's_add_u32 s34, s32, {sb + hq*7168}')
            k('s_mov_b32 m0, s34')
            k('s_nop 0')
            k.vm(f'buffer_load_dwordx4 v{vC+hq}, s[12:15], s35 offen lds', j)
    body(64*896, rdB, dmaB)
    k('s_mov_b32 s22, 1.0')
    k(f's_mov_b32 s23, {WTB}')
    k.label('P_gepi')
    if tl: k('s_memrealtime s[52:53]')
    k('s_mul_i32 s24, s19, 28')
    k('s_mul_i32 s25, s20, 7')
    k('s_add_u32 s24, s24, s25')
    k('s_mul_i32 s24, s24, 14')
    k('s_add_u32 s24, s24, s21')
    k('s_lshl_b32 s24, s24, 10')
    k('s_add_u32 s24, s24, s23')
    k('s_mov_b32 s23, s22')
    for ct in range(7):
        d = vOp + 4*ct
        for T in range(2):
            a = vAcc + 28*T + 4*ct
            k(f'v_pk_mul_f32 {vr(a,2)}, {vr(a,2)}, s[22:23]')
            k(f'v_pk_mul_f32 {vr(a+2,2)}, {vr(a+2,2)}, s[22:23]')
            k(f'v_cvt_pk_bf16_f32 v{d+2*T}, v{a}, v{a+1}')
            k(f'v_cvt_pk_bf16_f32 v{d+2*T+1}, v{a+2}, v{a+3}')
        k(f'buffer_store_dwordx4 {vr(d,4)}, v{vL16}, {WS}, s24 offen ' + OPT['k1st'])
        k('s_add_u32 s24, s24, 14336')
    if tl:
        k('s_waitcnt vmcnt(0)')
        k('s_memrealtime s[42:43]')
        k('s_lshl_b32 s44, s2, 5')
        k(f's_add_u32 s44, s44, {STAMP + 0xE0000}')
        k('s_waitcnt lgkmcnt(0)')
        k('v_mov_b32 v10, s40'); k('v_mov_b32 v11, s42'); k('v_mov_b32 v12, s46'); k('v_mov_b32 v13, s48')
        k('v_mov_b32 v14, s50'); k('v_mov_b32 v15, s52')
        k(f'buffer_store_dwordx4 v[10:13], off, {WS}, s44')
        k(f'buffer_store_dwordx2 v[14:15], off, {WS}, s44 offset:16')
    k('s_endpgm')
    k.label('P_ln')
    srd(k, 8, 0, 1835008); srd(k, 12, 64, 896)
    srd(k, 28, 8, 7168)
    k('s_mov_b32 s17, s2')
    k('v_lshrrev_b32 v3, 3, v2')
    k('s_lshl_b32 s18, s17, 3')
    k('v_add_u32 v3, s18, v3')
    k('v_and_b32 v4, 7, v2')
    k('v_mul_u32_u24 v5, 896, v3')
    k('v_lshl_add_u32 v5, v4, 4, v5')
    k('v_lshlrev_b32 v6, 4, v4')
    vX, vW, vF = 16, 44, 72
    k('s_waitcnt lgkmcnt(0)')
    k('s_and_b32 s5, s5, 0xffff'); k('s_and_b32 s9, s9, 0xffff'); k('s_and_b32 s13, s13, 0xffff')
    for i in range(7): k(f'buffer_load_dwordx4 {vr(vX+4*i,4)}, v5, s[8:11], 0 offen offset:{i*128}')
    for i in range(7): k(f'buffer_load_dwordx4 {vr(vW+4*i,4)}, v6, s[12:15], 0 offen offset:{i*128}')
    k('v_lshrrev_b32 v7, 4, v3')
    k('v_mul_u32_u24 v7, 14336, v7')
    k('v_and_b32 v8, 15, v3')
    k('v_lshl_add_u32 v7, v8, 4, v7')
    k('v_lshrrev_b32 v8, 2, v4')
    k('v_lshl_add_u32 v7, v8, 10, v7')
    k('v_and_b32 v8, 3, v4')
    k('v_lshl_add_u32 v9, v8, 8, v7')
    k('v_bfe_u32 v8, v4, 1, 1')
    k('v_lshl_add_u32 v10, v8, 9, v7')
    k('v_and_b32 v8, 1, v4')
    k('v_lshl_add_u32 v10, v8, 3, v10')
    k('s_mov_b32 s20, 0xffff0000')
    k('s_and_b32 s29, s29, 0xffff')
    k('v_bfe_u32 v12, v2, 2, 3')
    k('v_mul_u32_u24 v12, 896, v12')
    k('v_and_b32 v13, 3, v2')
    k('v_lshl_add_u32 v12, v13, 3, v12')
    k('v_lshrrev_b32 v13, 5, v2')
    k('v_lshl_add_u32 v12, v13, 2, v12')
    k('s_lshl_b32 s21, s2, 5')
    k('buffer_load_dword v160, v12, s[28:31], s21 offen')
    k('s_barrier')
    k('s_mov_b32 s32, s4'); k('s_mov_b32 s33, s5'); k(f's_mov_b32 s34, {SENT_END - MEM_S}'); k('s_mov_b32 s35, 0x20000')
    k('s_mov_b32 s36, s4'); k('s_mov_b32 s37, s5'); k(f's_mov_b32 s38, {FLG + FLG_SZ}'); k('s_mov_b32 s39, 0x20000')
    k('v_lshlrev_b32 v11, 4, v2')
    k('s_mul_i32 s21, s2, 7168')
    k(f's_add_u32 s21, s21, {MEM + MEM_S}')
    k('s_add_u32 s22, s21, 4096')
    for r in range(4): k(f'v_mov_b32 v{164+r}, -1')
    for r in range(4): k(f'v_mov_b32 v{168+r}, 0')
    for r in range(7): k(f'buffer_store_dwordx4 v[164:167], v11, s[32:35], s{21 if r < 4 else 22} offen offset:{(r&3)*1024} ' + OPT['k1ln'])
    k('s_mul_i32 s21, s2, 12288')
    k(f's_add_u32 s21, s21, {PT}')
    for r in range(12):
        k(f'buffer_store_dwordx4 v[164:167], v11, {WS}, s21 offen offset:{(r&3)*1024} ' + OPT['k1ln'])
        if (r&3) == 3: k('s_add_u32 s21, s21, 4096')
    k('s_lshl_b32 s21, s2, 10')
    k(f's_add_u32 s21, s21, {FLG}')
    k('buffer_store_dwordx4 v[168:171], v11, s[36:39], s21 offen ' + OPT['k1ln'])
    k('s_waitcnt vmcnt(28)')
    for d in range(28):
        k(f'v_lshlrev_b32 v{vF+2*d}, 16, v{vX+d}')
        k(f'v_and_b32 v{vF+2*d+1}, s20, v{vX+d}')
    def red8(v):
        for ctl in ('quad_perm:[1,0,3,2]', 'quad_perm:[2,3,0,1]', 'row_half_mirror'):
            k.nop(2)
            k(f'v_add_f32_dpp v{v}, v{v}, v{v} {ctl} row_mask:0xf bank_mask:0xf')
    def rbf(v):
        k(f'v_cvt_pk_bf16_f32 v{v}, v{v}, v{v}')
        k(f'v_and_b32 v{v}, s20, v{v}')
    k(f'v_pk_add_f32 v[12:13], {vr(vF,2)}, {vr(vF+2,2)}')
    for d in range(2, 28): k(f'v_pk_add_f32 v[12:13], v[12:13], {vr(vF+2*d,2)}')
    k('v_add_f32 v12, v12, v13')
    k('s_barrier')
    red8(12)
    k(f's_mov_b32 s21, {f32bits(1/448):#x}')
    k('v_mul_f32 v12, s21, v12')
    k('v_mov_b32 v14, 0'); k('v_mov_b32 v15, 0')
    for d in range(28):
        k(f'v_pk_add_f32 {vr(vX,2)}, {vr(vF+2*d,2)}, v[12:13] op_sel_hi:[1,0] neg_lo:[0,1] neg_hi:[0,1]')
        k(f'v_pk_fma_f32 v[14:15], {vr(vX,2)}, {vr(vX,2)}, v[14:15]')
    k('v_add_f32 v14, v14, v15')
    red8(14)
    k('v_mul_f32 v14, s21, v14')
    rbf(14)
    k(f'v_add_f32 v14, {f32bits(1e-5):#x}, v14')
    rbf(14)
    k('v_sqrt_f32 v14, v14')
    k.nop(1)
    rbf(14)
    k('v_rcp_f32 v15, v14')
    rbf(12)
    k('s_waitcnt vmcnt(20)')
    k('v_mov_b32 v128, 0'); k('v_mov_b32 v129, 0')
    vO, vS = vX, 132
    for d in range(28):
        f = vF + 2*d
        k(f'v_pk_add_f32 {vr(f,2)}, {vr(f,2)}, v[12:13] op_sel_hi:[1,0] neg_lo:[0,1] neg_hi:[0,1]')
        k(f'v_cvt_pk_bf16_f32 v130, v{f}, v{f+1}')
        k(f'v_lshlrev_b32 v{f}, 16, v130')
        k(f'v_and_b32 v{f+1}, s20, v130')
        k(f'v_pk_mul_f32 v[130:131], {vr(f,2)}, v[14:15] op_sel:[0,1] op_sel_hi:[1,1]')
        k(f'v_pk_fma_f32 {vr(f,2)}, v[130:131], v[14:15], {vr(f,2)} op_sel_hi:[1,0,1] neg_lo:[1,0,0] neg_hi:[1,0,0]')
        k(f'v_pk_fma_f32 v[130:131], {vr(f,2)}, v[14:15], v[130:131] op_sel:[0,1,0] op_sel_hi:[1,1,1]')
        k(f'v_cvt_pk_bf16_f32 v{vO+d}, v130, v131')
        so = vS + 4*(d>>2) + {0:0, 1:2, 2:1, 3:3}[d&3]
        k(f'v_mov_b32 v{so}, v{vO+d}')
        k(f'v_dot2_f32_bf16 v{128+(d&1)}, v{vO+d}, v{vW+d}, v{128+(d&1)}')
        if d in (3, 15): k('s_barrier')
    k(f's_mov_b32 s22, {XNR}'); k(f's_mov_b32 s23, {XNF}'); k(f's_mov_b32 s24, {XNS}')
    for i in range(7):
        k(f'buffer_store_dwordx4 {vr(vO+4*i,4)}, v5, {WS}, s22 offen offset:{i*128} ' + OPT['k1ln'])
        k(f'buffer_store_dwordx4 {vr(vO+4*i,4)}, v9, {WS}, s23 offen offset:{(i&1)*2048} ' + OPT['k1ln'])
        k(f'buffer_store_dwordx2 {vr(vS+4*i,2)}, v10, {WS}, s24 offen offset:{(i&1)*2048} ' + OPT['k1ln'])
        k(f'buffer_store_dwordx2 {vr(vS+4*i+2,2)}, v10, {WS}, s24 offen offset:{(i&1)*2048+256} ' + OPT['k1ln'])
        if i & 1:
            k('s_add_u32 s23, s23, 4096'); k('s_add_u32 s24, s24, 4096')
    k.nop(2)
    k('v_add_f32 v128, v128, v129')
    red8(128)
    rbf(128)
    k('v_lshlrev_b32 v3, 2, v3')
    k(f's_mov_b32 s22, {RR}')
    k(f'buffer_store_dword v128, v3, {WS}, s22 offen ' + OPT['k1ln'])
    if tl:
        k('s_waitcnt vmcnt(0)')
        k('s_memrealtime s[42:43]')
        k('s_lshl_b32 s44, s2, 5')
        k(f's_add_u32 s44, s44, {STAMP + 0xE0000}')
        k('s_waitcnt lgkmcnt(0)')
        k('v_mov_b32 v10, s42')
        k(f'buffer_store_dword v10, off, {WS}, s44 offset:24')
    k('s_cmp_ge_u32 s2, 28')
    k('s_cbranch_scc1 P_exit')
    k('v_min_u32 v160, -2, v160')
    k('v_lshlrev_b32 v11, 2, v2')
    k('s_lshl_b32 s21, s2, 8')
    k(f's_add_u32 s22, s21, {MEM}')
    k(f's_add_u32 s21, s21, {SENT_END - MEM_S}')
    k(f'buffer_store_dword v160, v11, {WS}, s22 offen ' + OPT['k1ln'])
    k(f'buffer_store_dword v160, v11, {WS}, s21 offen ' + OPT['k1ln'])
    k.label('P_exit')
    k('s_endpgm')
    return k
```

```python
from chain import *
from prep import srd, f32bits
WS = 's[4:7]'
sH, sBLK, sSEG, sQT, sCG, sJ = 60, 61, 62, 63, 64, 65
vLn, vL16 = 1, 2

def wait_flag(k, off_sgpr, target, vT, name='Lwf', sleep=8):
    lp, dn = k.newlabel(name), k.newlabel(name + 'd')
    k(f's_mov_b32 s{sCNT}, 0')
    k.label(lp)
    k(f'buffer_load_dword v{vT}, off, {WS}, s{off_sgpr} sc1')
    k(f's_add_u32 s{sCNT}, s{sCNT}, 1')
    k(f's_cmp_gt_u32 s{sCNT}, s{sT2}')
    k('s_cbranch_scc1 L_fail')
    k('s_waitcnt vmcnt(0)')
    k(f'v_cmp_le_u32 vcc, {target}, v{vT}')
    k(f's_cbranch_vccnz {dn}')
    k(f's_sleep {sleep}')
    k(f's_branch {lp}')
    k.label(dn)

def wait1(k, off_sgpr, cond, vT, sleep, fast=None):
    lp, dn, l2 = k.newlabel('Lw1'), k.newlabel('Lw1d'), k.newlabel('Lw1f')
    k(f's_cmp_lg_u32 s{sWAVE}, 0')
    k(f's_cbranch_scc1 {dn}')
    k(f's_mov_b32 s{sCNT}, 0')
    k.label(lp)
    k(f'buffer_load_dword v{vT}, off, {WS}, s{off_sgpr} sc1')
    k(f's_add_u32 s{sCNT}, s{sCNT}, 1')
    k(f's_cmp_gt_u32 s{sCNT}, s{sT2}')
    k('s_cbranch_scc1 L_fail')
    k('s_waitcnt vmcnt(0)')
    k(cond)
    k(f's_cbranch_vccnz {dn}')
    if fast:
        k('s_sleep 2')
        k(fast)
        k(f's_cbranch_scc1 {lp}')
    k(f's_sleep {sleep}')
    k(f's_branch {lp}')
    k.label(dn)
    k('s_barrier')

def signal(k, off_sgpr, vT, val=1):
    dn = k.newlabel('Lsg')
    k('s_waitcnt vmcnt(0)')
    k('s_barrier')
    k(f's_cmp_lg_u32 s{sWAVE}, 0')
    k(f's_cbranch_scc1 {dn}')
    k('s_mov_b64 exec, 1')
    k(f'v_mov_b32 v{vT}, {val}')
    k(f'buffer_atomic_add v{vT}, off, {WS}, s{off_sgpr}')
    k('s_mov_b64 exec, -1')
    k.label(dn)

TL = [False]
ACC0 = 32
def acc(lt, tt): return ACC0 + 4*(lt*8 + tt)

def gemm(k, wbase, swap, ntt=8):
    vW = 8
    vXa = 15
    k.vmq = []
    nst = ntt // 4
    k(f's_mul_i32 s41, s{sWAVE}, {14336*nst}')
    k(f's_mul_i32 s40, s{sBLK}, {14336*ntt}')
    k(f's_add_u32 s40, s40, s41')
    k(f's_add_u32 s40, s40, {XNF}')
    k(f's_mul_i32 s42, s{sH}, {28*14336}')
    k(f's_mul_i32 s43, s{sWAVE}, {7*14336}')
    k(f's_add_u32 s42, s42, s43')
    k(f's_add_u32 s42, s42, {wbase}')
    for j in range(14):
        k(f's_add_u32 s{76+j}, s59, {j}')
        k(f's_sub_u32 s43, s{76+j}, 14')
        k(f's_cmp_ge_u32 s{76+j}, 14')
        k(f's_cselect_b32 s{76+j}, s43, s{76+j}')
        k(f's_lshl_b32 s{76+j}, s{76+j}, 10')
    for lt in range(7): k(f'v_add_u32 v{vW+lt}, {lt*14336}, v{vL16}')
    k(f'v_add_u32 v17, 14336, v{vL16}')
    k('s_barrier')
    def stx(j, t):
        k(f's_add_u32 s43, s41, s{76+j}')
        if t: k('s_add_u32 s43, s43, 14336')
        k('s_mov_b32 m0, s43')
        k(f's_add_u32 s44, s40, s{76+j}')
        k.vm(f'buffer_load_dwordx4 v{17 if t else vL16}, {WS}, s44 offen lds', f'x{j}')
    def ldw(j, lt):
        if lt == 0: k(f's_add_u32 s45, s42, s{76+j}')
        k.vm(f'buffer_load_dwordx4 {ar(28*(j%3)+4*lt,4)}, v{vW+lt}, {WS}, s45 offen', f'w{j}')
    def xaddr(j):
        k(f'v_add_u32 v{vXa}, s{76+j}, v{vL16}')
        k(f'v_add_u32 v{vXa+1}, 57344, v{vXa}')
    def ldx(j, tt): k(f'ds_read_b128 {ar(84+32*(j&1)+4*tt,4)}, v{vXa + (tt>>2)} offset:{(tt&3)*14336}')
    for j in range(2):
        for t in range(nst): stx(j, t)
        for lt in range(7): ldw(j, lt)
    for j in (2, 3):
        for t in range(nst): stx(j, t)
    xaddr(0)
    k.wvm('x0')
    k('s_barrier')
    if TL[0] and not swap:
        tstamp(k, 57, 12, 18); k.vmq.append('st')
    for tt in range(ntt): ldx(0, tt)
    for j in range(14):
        if j + 1 < 14: xaddr(j+1)
        k.wvm(f'w{j}', f'x{j+1}', extra='lgkmcnt(0)')
        if j + 1 < 14: k('s_barrier')
        for tt in range(ntt):
            for lt in range(7):
                x, w = ar(84+32*(j&1)+4*tt,4), ar(28*(j%3)+4*lt,4)
                a, b = (w, x) if swap else (x, w)
                c = '0' if j == 0 else vr(acc(lt,tt),4)
                k(f'v_mfma_f32_16x16x32_bf16 {vr(acc(lt,tt),4)}, {a}, {b}, {c}')
                if lt == 1 and j + 1 < 14: ldx(j+1, tt)
                if ntt == 8:
                    if lt == 3 and tt < 2 and j + 4 < 14: stx(j+4, tt)
                    if lt == 5 and tt >= 1 and j + 2 < 14: ldw(j+2, tt-1)
                else:
                    if lt == 3 and tt == 0 and j + 4 < 14: stx(j+4, 0)
                    if lt in (3, 5) and (tt, lt) != (0, 3) and j + 2 < 14: ldw(j+2, 2*tt + (lt == 5) - 1)

def task_U(k, half=False):
    nq = 2 if half else 4
    k.label('T_Uh' if half else 'T_U')
    k(f's_mul_i32 s59, s{sBLK}, 7' if half else f's_min_u32 s59, s{sBLK}, 13')
    gemm(k, WTB, False, 2*nq)
    if TL[0]: tstamp(k, 57, 8, 16)
    k(f's_mul_i32 s40, s{sBLK}, {nq*UF_SEG}')
    k(f's_lshl_b32 s41, s{sH}, 11')
    k(f's_add_u32 s40, s40, s41')
    k(f's_add_u32 s40, s40, {UF}')
    k(f's_mul_i32 s41, s{sWAVE}, 7')
    for lt in range(7):
        k(f's_add_u32 s42, s41, {lt}')
        k(f's_lshr_b32 s43, s42, 1')
        k(f's_lshl_b32 s43, s43, 15')
        k(f's_and_b32 s42, s42, 1')
        k(f's_lshl_b32 s42, s42, 10')
        k(f's_add_u32 s{44+lt}, s40, s43')
        k(f's_add_u32 s{44+lt}, s{44+lt}, s42')
    if OPT['uwin'] and not half:
        lw = k.newlabel('Luw')
        k(f"s_cmp_lt_u32 s{sBLK}, {OPT['uwin']}")
        k(f's_cbranch_scc1 {lw}')
        k(f's_lshl_b32 s40, s{sBLK}, 7')
        k(f"s_add_u32 s40, s40, {flag(F_U) - 128*OPT['uwin']}")
        wait1(k, 40, 'v_cmp_le_u32 vcc, 32, v16', 16, 8)
        k.label(lw)
    for q in range(nq):
        for lt in range(7):
            a, b = acc(lt, 2*q), acc(lt, 2*q+1)
            k(f'v_cvt_pk_bf16_f32 v{a}, v{a}, v{a+1}')
            k(f'v_cvt_pk_bf16_f32 v{a+1}, v{a+2}, v{a+3}')
            k(f'v_cvt_pk_bf16_f32 v{a+2}, v{b}, v{b+1}')
            k(f'v_cvt_pk_bf16_f32 v{a+3}, v{b+2}, v{b+3}')
            k(f'buffer_store_dwordx4 {vr(a,4)}, v{vL16}, {WS}, s{44+lt} offen ' + OPT['ust'])
            k(f's_add_u32 s{44+lt}, s{44+lt}, {UF_SEG}')
    if half: k(f's_mov_b32 s40, {flag(F_U)}')
    else:
        k(f's_lshl_b32 s40, s{sBLK}, 7')
        k(f's_add_u32 s40, s40, {flag(F_U)}')
    signal(k, 40, 3, 1 if half else 2)
    k('s_branch W_next')

def xlane_red(k, op, m, t):
    for sw in ('v_permlane16_swap_b32', 'v_permlane32_swap_b32'):
        k(f'v_mov_b32 v{t}, v{m}')
        k.nop(2)
        k(f'{sw} v{m}, v{t}')
        k(f'{op} v{m}, v{m}, v{t}')

def task_P(k):
    k.label('T_P')
    k(f's_min_u32 s59, s{sBLK}, 13')
    gemm(k, WTA, True)
    vE, vO, vG, vI, vMK, vT = 16, 17, 18, 19, 20, 21
    k(f's_mul_i32 s40, s{sWAVE}, 7')
    k(f's_lshr_b32 s40, s40, 1')
    k(f's_lshl_b32 s40, s40, 10')
    k(f's_and_b32 s41, s{sWAVE}, 1')
    k(f's_lshl_b32 s42, s41, 3')
    k(f's_add_u32 s42, s42, s40')
    k(f's_mul_i32 s43, s41, 1016')
    k(f's_add_u32 s43, s43, 8')
    k(f's_add_u32 s43, s43, s40')
    k(f'v_add_u32 v{vE}, s42, v{vL16}')
    k(f'v_add_u32 v{vO}, s43, v{vL16}')
    k(f'v_add_u32 v{vT}, 57344, v{vE}')
    k(f'v_add_u32 v{vT+1}, 57344, v{vO}')
    k('s_barrier')
    for tt in range(8):
        for lt in range(7):
            a = acc(lt, tt)
            k(f'v_cvt_pk_bf16_f32 v{a}, v{a}, v{a+1}')
            k(f'v_cvt_pk_bf16_f32 v{a+1}, v{a+2}, v{a+3}')
            ad = (vE if lt % 2 == 0 else vO) if tt < 4 else (vT if lt % 2 == 0 else vT+1)
            k(f'ds_write_b64 v{ad}, {vr(a,2)} offset:{(tt&3)*14336 + (lt>>1)*1024}')
    k(f's_lshl_b32 s{sSEG}, s{sBLK}, 2')
    k(f's_add_u32 s{sSEG}, s{sSEG}, s{sWAVE}')
    k(f's_mul_i32 s40, s{sSEG}, 28672')
    k(f's_add_u32 s40, s40, {XNS}')
    vKT, vKM, vS = 32, 144, 200
    k('s_waitcnt lgkmcnt(0)')
    for f in range(28):
        k(f'buffer_load_dwordx4 {vr(vKT+4*f,4)}, v{vL16}, {WS}, s40 offen offset:{(f&3)*1024}')
        if (f&3) == 3: k('s_add_u32 s40, s40, 4096')
    k('s_barrier')
    k(f's_mul_i32 s41, s{sWAVE}, 28672')
    k(f'v_add_u32 v{vT}, s41, v{vL16}')
    for f in range(28): k(f'ds_read_b128 {ar(4*f,4)}, v{vT} offset:{f*1024}')
    k(f'v_lshrrev_b32 v{vG}, 4, v{vLn}')
    k(f'v_and_b32 v{vI}, 15, v{vLn}')
    k(f'v_lshrrev_b32 v{vMK}, 1, v{vG}')
    k(f'v_lshlrev_b32 v{vMK}, 8, v{vMK}')
    k(f'v_and_b32 v{vT}, 7, v{vI}')
    k(f'v_lshl_add_u32 v{vMK}, v{vT}, 4, v{vMK}')
    k(f'v_and_b32 v{vT}, 1, v{vG}')
    k(f'v_lshl_add_u32 v{vMK}, v{vT}, 7, v{vMK}')
    k(f'v_lshlrev_b32 v{vT}, 2, v{vG}')
    for r in range(4):
        k(f'v_cmp_gt_u32 s[{44+2*r}:{45+2*r}], v{vT}, v{vI}')
        if r < 3: k(f'v_add_u32 v{vT}, 1, v{vT}')
    k(f'v_cmp_gt_u32 s[52:53], 2, v{vG}')
    St = {(1,0): vS, (1,1): vS+4, (2,1): vS+8, (0,0): vS+12, (0,1): vS+16}
    k('s_waitcnt vmcnt(0) lgkmcnt(0)')
    for ks in range(14):
        for (kt, qt) in ((1,0), (1,1), (2,1)):
            c = '0' if ks == 0 else vr(St[kt,qt],4)
            k(f'v_mfma_f32_16x16x32_bf16 {vr(St[kt,qt],4)}, {vr(vKT+56*(kt-1)+4*ks,4)}, {ar(56*qt+4*ks,4)}, {c}')
    if TL[0]: tstamp(k, 57, 8, vT)
    k(f's_add_u32 s40, s{sSEG}, 63')
    k(f's_and_b32 s40, s40, 63')
    k(f's_mul_i32 s40, s40, {MEM_S}')
    k(f's_add_u32 s40, s40, {MEMX}')
    k(f's_add_u32 s41, s40, 4096')
    lp, dn = k.newlabel('Lpm'), k.newlabel('Lpd')
    k(f's_mov_b32 s{sCNT}, 0')
    k.label(lp)
    for ks in range(14):
        k(f'buffer_load_dwordx4 {vr(vKM+4*ks,4)}, v{vMK}, {WS}, s{40 if ks < 8 else 41} offen offset:{(ks&7)*512} sc1')
    k(f's_add_u32 s{sCNT}, s{sCNT}, 1')
    k(f's_cmp_gt_u32 s{sCNT}, s{sT2}')
    k('s_cbranch_scc1 L_fail')
    k('s_waitcnt vmcnt(0)')
    k(f'v_max3_u32 v{vT}, v{vKM}, v{vKM+1}, v{vKM+2}')
    for r in range(3, 55, 2): k(f'v_max3_u32 v{vT}, v{vT}, v{vKM+r}, v{vKM+r+1}')
    k(f'v_max_u32 v{vT}, v{vT}, v{vKM+55}')
    k(f'v_cmp_eq_u32 vcc, -1, v{vT}')
    k(f's_cbranch_vccz {dn}')
    l2 = k.newlabel('Lpl')
    k.label(l2)
    k('s_sleep 2')
    k(f's_cmp_ge_u32 s{sSEG}, 60')
    k(f's_cbranch_scc1 {l2}f')
    k(f"s_sleep {OPT['msl']}")
    k.label(l2 + 'f')
    k(f'buffer_load_dword v{vT}, v{vMK}, {WS}, s41 offen offset:2560 sc1')
    k(f's_add_u32 s{sCNT}, s{sCNT}, 1')
    k(f's_cmp_gt_u32 s{sCNT}, s{sT2}')
    k('s_cbranch_scc1 L_fail')
    k('s_waitcnt vmcnt(0)')
    k(f'v_cmp_eq_u32 vcc, -1, v{vT}')
    k(f's_cbranch_vccnz {l2}')
    k(f's_branch {lp}')
    k.label(dn)
    if TL[0]: tstamp(k, 57, 12, vT)
    for ks in range(14):
        for qt in range(2):
            c = '0' if ks == 0 else vr(St[0,qt],4)
            k(f'v_mfma_f32_16x16x32_bf16 {vr(St[0,qt],4)}, {vr(vKM+4*ks,4)}, {ar(56*qt+4*ks,4)}, {c}')
    k(f's_mul_i32 s40, s{sSEG}, {PT_SEG}')
    k(f's_add_u32 s40, s40, {PT}')
    k(f's_lshl_b32 s41, s{sH}, 11')
    k(f's_add_u32 s41, s41, s40')
    k(f's_lshr_b32 s42, s{sH}, 1')
    k(f's_lshl_b32 s42, s42, 11')
    k(f's_and_b32 s43, s{sH}, 1')
    k(f's_lshl_b32 s43, s43, 2')
    k(f's_add_u32 s42, s42, s43')
    k(f's_add_u32 s42, s42, s40')
    k(f's_add_u32 s42, s42, 32768')
    k(f'v_mov_b32 v{vT+2}, 0xff800000')
    k.nop(2)
    for d in ((1,0), (2,1)):
        for r in range(4):
            k(f'v_cndmask_b32 v{St[d]+r}, v{St[d]+r}, v{vT+2}, s[{44+2*r}:{45+2*r}]')
    for qt in range(2):
        tiles = [St[0,qt], St[1,qt]] + ([St[2,1]] if qt else [])
        regs = [t + r for t in tiles for r in range(4)]
        m, t, l = 24, 26, 28
        k(f'v_max3_f32 v{m}, v{regs[0]}, v{regs[1]}, v{regs[2]}')
        for i in range(3, len(regs) - 1, 2): k(f'v_max3_f32 v{m}, v{m}, v{regs[i]}, v{regs[i+1]}')
        k(f'v_max_f32 v{m}, v{m}, v{regs[-1]}')
        xlane_red(k, 'v_max_f32', m, t)
        for i in range(0, len(regs), 2):
            k(f'v_pk_add_f32 {vr(regs[i],2)}, {vr(regs[i],2)}, {vr(m,2)} op_sel_hi:[1,0] neg_lo:[0,1] neg_hi:[0,1]')
        for r in regs: k(f'v_exp_f32 v{r}, v{r}')
        k.nop(1)
        k(f'v_pk_add_f32 {vr(l,2)}, {vr(regs[0],2)}, {vr(regs[2],2)}')
        k(f'v_add_f32 v{l}, v{l}, v{l+1}')
        k(f'v_cndmask_b32 v{l}, 0, v{l}, s[52:53]')
        k(f'v_mov_b32 v{l+1}, 0')
        for i in range(4, len(regs), 2): k(f'v_pk_add_f32 {vr(l,2)}, {vr(l,2)}, {vr(regs[i],2)}')
        k(f'v_add_f32 v{l}, v{l}, v{l+1}')
        xlane_red(k, 'v_add_f32', l, t)
        k(f'v_rcp_f32 v{l}, v{l}')
        k.nop(1)
        for i in range(0, len(regs), 2):
            k(f'v_pk_mul_f32 {vr(regs[i],2)}, {vr(regs[i],2)}, {vr(l,2)} op_sel_hi:[1,0]')
        o = 220 + 8*qt
        k(f'v_cvt_pk_bf16_f32 v{o}, v{regs[4]}, v{regs[5]}')
        k(f'v_cvt_pk_bf16_f32 v{o+1}, v{regs[6]}, v{regs[7]}')
        if qt:
            k(f'v_cvt_pk_bf16_f32 v{o+2}, v{regs[8]}, v{regs[9]}')
            k(f'v_cvt_pk_bf16_f32 v{o+3}, v{regs[10]}, v{regs[11]}')
        else:
            k(f'v_mov_b64 {vr(o+2,2)}, 0')
        k(f'v_cvt_pk_bf16_f32 v{o+4}, v{regs[0]}, v{regs[1]}')
        k(f'v_cvt_pk_bf16_f32 v{o+5}, v{regs[2]}, v{regs[3]}')
        for r in range(6):
            if qt or r not in (2, 3): k(f'v_min_u32 v{o+r}, -2, v{o+r}')
        k(f'buffer_store_dwordx4 {vr(o,4)}, v{vL16}, {WS}, s41 offen offset:{qt*1024} sc1')
        k(f'buffer_store_dword v{o+4}, v{vL16}, {WS}, s42 offen offset:{qt*1024} sc1')
        k(f'buffer_store_dword v{o+5}, v{vL16}, {WS}, s42 offen offset:{qt*1024+8} sc1')
    k('s_branch W_next')

def rbf(k, v, sMaskHi):
    k(f'v_cvt_pk_bf16_f32 v{v}, v{v}, v{v}')
    k(f'v_and_b32 v{v}, s{sMaskHi}, v{v}')

def task_V(k):
    k.label('T_V')
    vU, vUM, vP, vD, vT = 32, 96, 128, 152, 16
    k(f's_lshr_b32 s{sBLK}, s{sSEG}, 2')
    k(f's_lshl_b32 s40, s{sBLK}, 7')
    k(f's_add_u32 s40, s40, {flag(F_U)}')
    wait1(k, 40, f'v_cmp_le_u32 vcc, 32, v{vT}', vT, 16)
    k(f's_mul_i32 s40, s{sSEG}, {UF_SEG}')
    k(f's_lshl_b32 s41, s{sCG}, 16')
    k(f's_add_u32 s40, s40, s41')
    k(f's_lshl_b32 s41, s{sWAVE}, 13')
    k(f's_add_u32 s40, s40, s41')
    k(f's_add_u32 s40, s40, {UF}')
    for bb in range(2):
        for hp in range(2):
            k(f's_add_u32 s41, s40, {bb*32768 + hp*4096}')
            for f in range(4):
                hh, T = 2*hp + (f>>1), f&1
                k(f'buffer_load_dwordx4 {vr(vU+16*(2*bb+T)+4*hh,4)}, v{vL16}, {WS}, s41 offen offset:{f*1024} sc1')
    srd(k, 68, 0, 1835008); srd(k, 72, 96, 1835008)
    vRow, vOff = vT+1, vT+2
    k(f's_lshl_b32 s42, s{sSEG}, 5')
    k(f's_lshl_b32 s43, s{sQT}, 4')
    k(f's_add_u32 s42, s42, s43')
    k(f'v_and_b32 v{vRow}, 15, v{vLn}')
    k(f'v_add_u32 v{vRow}, s42, v{vRow}')
    k(f'v_mul_u32_u24 v{vOff}, 896, v{vRow}')
    k(f'v_lshrrev_b32 v{vT+3}, 4, v{vLn}')
    k(f's_lshl_b32 s42, s{sCG}, 7')
    k(f's_lshl_b32 s43, s{sWAVE}, 5')
    k(f's_add_u32 s42, s42, s43')
    k(f'v_lshl_add_u32 v{vT+3}, v{vT+3}, 3, s42')
    k(f'v_add_u32 v{vOff}, v{vOff}, v{vT+3}')
    k(f's_mov_b32 s43, {XNR}')
    k('s_waitcnt lgkmcnt(0)')
    k('s_and_b32 s69, s69, 0xffff'); k('s_and_b32 s73, s73, 0xffff')
    vXr, vXn = vT+4, vT+6
    k(f'buffer_load_dwordx2 {vr(vXr,2)}, v{vOff}, s[68:71], 0 offen')
    k(f'buffer_load_dwordx2 {vr(vXn,2)}, v{vOff}, {WS}, s43 offen')
    k(f's_mov_b32 s40, {flag(F_M2)}')
    wait1(k, 40, f'v_cmp_le_u32 vcc, 28, v{vT}', vT, 16)
    vIx = 168
    k(f's_mov_b32 s40, {IDX}')
    for j in range(4): k(f'buffer_load_dwordx4 {vr(vIx+4*j,4)}, off, {WS}, s40 offset:{16*j} sc1')
    vSel, vSig, vY = 184, 185, 188
    k(f'v_mov_b32 v{vSel}, 0x40000000')
    k(f'v_mov_b32 v{vSig}, 0')
    k('s_waitcnt vmcnt(0)')
    for j in range(8):
        k(f'v_cmp_eq_u32 vcc, v{vIx+j}, v{vRow}')
        k(f'v_mov_b32 v{vT}, {j*1792}')
        k('s_nop 0')
        k(f'v_cndmask_b32 v{vSel}, v{vSel}, v{vT}, vcc')
        k(f'v_cndmask_b32 v{vSig}, v{vSig}, v{vIx+8+j}, vcc')
    k(f'v_lshl_add_u32 v{vSel}, v{vT+3}, 1, v{vSel}')
    for q in range(4):
        k(f's_mov_b32 s40, {UPD + q*14336}')
        k(f'buffer_load_dwordx4 {vr(vY+4*q,4)}, v{vSel}, {WS}, s40 offen sc1')
    k(f's_add_u32 s40, s{sSEG}, 63')
    k(f's_and_b32 s40, s40, 63')
    k(f's_mul_i32 s40, s40, {MEM_S}')
    k(f's_add_u32 s40, s40, {MEMX}')
    wait1(k, 40, f'v_cmp_ne_u32 vcc, -1, v{vT}', vT, OPT['vsl'], f's_cmp_ge_u32 s{sSEG}, 60')
    k(f's_mov_b32 s{sCNT}, 0')
    k(f's_mul_i32 s40, s{sSEG}, {PT_SEG}')
    k(f's_lshl_b32 s41, s{sQT}, 10')
    k(f's_add_u32 s40, s40, s41')
    k(f's_add_u32 s40, s40, {PT}')
    k(f's_lshl_b32 s41, s{sWAVE}, 13')
    k(f's_add_u32 s41, s41, s40')
    k(f's_add_u32 s42, s41, 4096')
    k(f's_lshl_b32 s43, s{sWAVE}, 12')
    k(f's_add_u32 s43, s43, s40')
    k(f's_add_u32 s43, s43, 32768')
    lp, dn = k.newlabel('Lvp'), k.newlabel('Lvq')
    k.label(lp)
    for hh in range(4):
        k(f'buffer_load_dwordx4 {vr(vP+4*hh,4)}, v{vL16}, {WS}, s{41 if hh<2 else 42} offen offset:{(hh&1)*2048} sc1')
    for u in range(2):
        k(f'buffer_load_dwordx4 {vr(vP+16+4*u,4)}, v{vL16}, {WS}, s43 offen offset:{u*2048} sc1')
    k(f's_add_u32 s{sCNT}, s{sCNT}, 1')
    k(f's_cmp_gt_u32 s{sCNT}, s{sT2}')
    k('s_cbranch_scc1 L_fail')
    k('s_waitcnt vmcnt(0)')
    k(f'v_max3_u32 v{vT}, v{vP}, v{vP+1}, v{vP+2}')
    for r in range(3, 23, 2): k(f'v_max3_u32 v{vT}, v{vT}, v{vP+r}, v{vP+r+1}')
    k(f'v_max_u32 v{vT}, v{vT}, v{vP+23}')
    k(f'v_cmp_eq_u32 vcc, -1, v{vT}')
    k(f's_cbranch_vccz {dn}')
    k('s_sleep 2')
    k(f's_cmp_ge_u32 s{sSEG}, 60')
    k(f's_cbranch_scc1 {lp}')
    k(f"s_sleep {OPT['psl']}")
    k(f's_branch {lp}')
    k.label(dn)
    if TL[0]: tstamp(k, 57, 8, vT)
    k(f's_lshl_b32 s40, s{sSEG}, 7')
    k(f's_add_u32 s40, s40, {flag(F_UM)}')
    wait1(k, 40, f'v_cmp_le_u32 vcc, 14, v{vT}', vT, OPT['usl'], f's_cmp_ge_u32 s{sSEG}, 60')
    if TL[0]: tstamp(k, 57, 12, vT)
    k(f's_mul_i32 s40, s{sSEG}, {UM_SEG}')
    k(f's_mul_i32 s41, s{sWAVE}, {2*28672}')
    k(f's_add_u32 s40, s40, s41')
    k(f's_lshl_b32 s41, s{sCG}, 12')
    k(f's_add_u32 s40, s40, s41')
    k(f's_add_u32 s40, s40, {UM}')
    k(f's_add_u32 s41, s40, 28672')
    for u in range(2):
        for ct in range(4):
            k(f'buffer_load_dwordx4 {vr(vUM+8*ct+4*u,4)}, v{vL16}, {WS}, s{40+u} offen offset:{ct*1024} sc1')
    k('s_mov_b32 s54, 0xffff0000')
    for h in range(2):
        k(f'v_pk_add_f32 {vr(vY+2*h,2)}, {vr(vY+2*h,2)}, {vr(vY+4+2*h,2)}')
        k(f'v_pk_add_f32 {vr(vY+8+2*h,2)}, {vr(vY+8+2*h,2)}, {vr(vY+12+2*h,2)}')
        k(f'v_pk_add_f32 {vr(vY+2*h,2)}, {vr(vY+2*h,2)}, {vr(vY+8+2*h,2)}')
    vB, vXf = vY+4, vY+8
    for r in range(4):
        rbf(k, vY+r, 54)
        k(f'v_mul_f32 v{vY+r}, v{vY+r}, v{vSig}')
        rbf(k, vY+r, 54)
        src = vXn + (r>>1)
        k(f'v_lshlrev_b32 v{vB+r}, 16, v{src}' if r % 2 == 0 else f'v_and_b32 v{vB+r}, s54, v{src}')
        k(f'v_add_f32 v{vB+r}, v{vB+r}, v{vY+r}')
        rbf(k, vB+r, 54)
        src = vXr + (r>>1)
        k(f'v_lshlrev_b32 v{vXf+r}, 16, v{src}' if r % 2 == 0 else f'v_and_b32 v{vXf+r}, s54, v{src}')
    k('s_barrier')
    k('s_waitcnt vmcnt(8)')
    for hh in range(4):
        for ct in range(4):
            c = '0' if hh == 0 else vr(vD+4*ct,4)
            k(f'v_mfma_f32_16x16x32_bf16 {vr(vD+4*ct,4)}, {vr(vU+16*ct+4*hh,4)}, {vr(vP+4*hh,4)}, {c}')
    k('s_waitcnt vmcnt(0)')
    for u in range(2):
        for ct in range(4):
            k(f'v_mfma_f32_16x16x32_bf16 {vr(vD+4*ct,4)}, {vr(vUM+8*ct+4*u,4)}, {vr(vP+16+4*u,4)}, {vr(vD+4*ct,4)}')
    k(f's_lshl_b32 s40, s{sWAVE}, 12')
    k(f'v_add_u32 v{vT}, s40, v{vL16}')
    k(f's_lshl_b32 s40, s{sWAVE}, 10')
    k(f'v_add_u32 v{vT+3}, s40, v{vL16}')
    k.nop(2)
    for ct in range(4): k(f'ds_write_b128 v{vT}, {vr(vD+4*ct,4)} offset:{ct*1024}')
    k('s_waitcnt lgkmcnt(0)')
    k('s_barrier')
    for w in range(4): k(f'ds_read_b128 {vr(vU+4*w,4)}, v{vT+3} offset:{w*4096}')
    k('s_waitcnt lgkmcnt(0)')
    for h in range(2):
        k(f'v_pk_add_f32 {vr(vU+2*h,2)}, {vr(vU+2*h,2)}, {vr(vU+4+2*h,2)}')
        k(f'v_pk_add_f32 {vr(vU+8+2*h,2)}, {vr(vU+8+2*h,2)}, {vr(vU+12+2*h,2)}')
        k(f'v_pk_add_f32 {vr(vU+2*h,2)}, {vr(vU+2*h,2)}, {vr(vU+8+2*h,2)}')
    for r in range(4):
        rbf(k, vU+r, 54)
        k(f'v_add_f32 v{vU+r}, v{vU+r}, v{vXf+r}')
        rbf(k, vU+r, 54)
        k(f'v_add_f32 v{vU+r}, v{vU+r}, v{vB+r}')
    k(f'v_cvt_pk_bf16_f32 v{vU}, v{vU}, v{vU+1}')
    k(f'v_cvt_pk_bf16_f32 v{vU+1}, v{vU+2}, v{vU+3}')
    k(f'buffer_store_dwordx2 {vr(vU,2)}, v{vOff}, s[72:75], 0 offen')
    k('s_branch W_next')

def moe_stage(k, srdreg, pitch, soff, lds, vT):
    k(f'v_lshrrev_b32 v{vT}, 3, v0')
    k(f'v_and_b32 v{vT+1}, 7, v0')
    k(f's_mov_b32 s44, {pitch}')
    k(f'v_mul_lo_u32 v{vT+2}, v{vT}, s44')
    k(f'v_lshl_add_u32 v{vT+2}, v{vT+1}, 4, v{vT+2}')
    k(f'v_bfe_u32 v{vT+3}, v{vT}, 1, 1')
    k(f'v_bfe_u32 v{vT+4}, v{vT}, 3, 1')
    k(f'v_lshl_add_u32 v{vT+3}, v{vT+4}, 1, v{vT+3}')
    k(f'v_lshlrev_b32 v{vT+3}, 1, v{vT+3}')
    k(f'v_xor_b32 v{vT+3}, v{vT+3}, v{vT+1}')
    k(f'v_lshlrev_b32 v{vT+3}, 4, v{vT+3}')
    k(f'v_lshl_add_u32 v{vT+3}, v{vT}, 7, v{vT+3}')
    if lds: k(f'v_add_u32 v{vT+3}, {lds}, v{vT+3}')
    k(f's_mov_b32 s44, s{soff}')
    for r in range(14):
        k(f'buffer_load_dwordx4 {vr(32+4*r,4)}, v{vT+2}, s[{srdreg}:{srdreg+3}], s44 offen')
        k(f's_add_u32 s44, s44, {32*pitch}')
    for r in range(14):
        k(f's_waitcnt vmcnt({13-r})')
        k(f'ds_write_b128 v{vT+3}, {vr(32+4*r,4)} offset:{r*4096}')

def moe_mm(k, lds, vA, vD, vAd, vB):
    for ks in range(14):
        for hh in range(2): k(f'ds_read_b64_tr_b16 {vr(vB+4*ks+2*hh,2)}, v{vAd} offset:{lds + ks*4096 + hh*512}')
    k('s_waitcnt lgkmcnt(0)')
    for ks in range(14):
        k(f'v_mfma_f32_16x16x32_bf16 {vr(vD,4)}, {vr(vA+4*ks,4)}, {vr(vB+4*ks,4)}, {"0" if ks == 0 else vr(vD,4)}')

def moe_traddr(k, vAd, vT):
    k(f'v_bfe_u32 v{vAd}, v{vLn}, 2, 2')
    k(f'v_lshrrev_b32 v{vT}, 4, v{vLn}')
    k(f'v_lshl_add_u32 v{vAd}, v{vT}, 3, v{vAd}')
    k(f'v_lshlrev_b32 v{vAd}, 7, v{vAd}')
    k(f'v_and_b32 v{vT}, 3, v{vLn}')
    k(f'v_lshl_add_u32 v{vAd}, v{vT}, 3, v{vAd}')
    k(f'v_bfe_u32 v{vT}, v{vLn}, 3, 1')
    k(f'v_bfe_u32 v{vT+1}, v{vLn}, 4, 1')
    k(f'v_lshl_add_u32 v{vT}, v{vT+1}, 1, v{vT}')
    k(f'v_xor_b32 v{vT}, s{sWAVE}, v{vT}')
    k(f'v_lshl_add_u32 v{vAd}, v{vT}, 5, v{vAd}')

def sigmoid(k, v, t):
    k(f'v_mul_f32 v{t}, {f32bits(-1.4426950408889634):#x}, v{v}')
    k(f'v_exp_f32 v{t}, v{t}')
    k.nop(1)
    k(f'v_add_f32 v{t}, 1.0, v{t}')
    k(f'v_rcp_f32 v{v}, v{t}')
    k.nop(1)

def task_M1(k):
    k.label('T_M1')
    vT = 16
    srd(k, 68, 72, 1605632); srd(k, 72, 80, 1605632)
    vK = 160
    k(f's_mov_b32 s40, {RR}')
    k(f's_add_u32 s41, s40, 4096')
    for j in range(8): k(f'buffer_load_dwordx4 {vr(vK+4*j,4)}, v{vL16}, {WS}, s{40 + (j>>2)} offen offset:{(j&3)*1024}')
    k(f'v_lshlrev_b32 v{vT}, 2, v{vLn}')
    k(f'v_sub_u32 v{vT}, 0xffff, v{vT}')
    k('s_mov_b32 s54, 0xffff0000')
    k('s_waitcnt vmcnt(0) lgkmcnt(0)')
    k('s_and_b32 s69, s69, 0xffff'); k('s_and_b32 s73, s73, 0xffff')
    for j in range(32):
        r = vK + j
        k(f'v_ashrrev_i32 v{vT+1}, 31, v{r}')
        k(f'v_or_b32 v{vT+1}, 0x80000000, v{vT+1}')
        k(f'v_xor_b32 v{r}, v{r}, v{vT+1}')
        k(f'v_subrev_u32 v{vT+1}, {(j>>2)*256 + (j&3)}, v{vT}')
        k(f'v_and_or_b32 v{r}, v{r}, s54, v{vT+1}')
    m, t = vT+2, vT+3
    for it in range(8):
        k(f'v_max3_u32 v{m}, v{vK}, v{vK+1}, v{vK+2}')
        for r in range(3, 31, 2): k(f'v_max3_u32 v{m}, v{m}, v{vK+r}, v{vK+r+1}')
        k(f'v_max_u32 v{m}, v{m}, v{vK+31}')
        for rot in (8, 4, 2, 1):
            k.nop(2)
            k(f'v_max_u32_dpp v{m}, v{m}, v{m} row_ror:{rot} row_mask:0xf bank_mask:0xf')
        xlane_red(k, 'v_max_u32', m, t)
        k.nop(1)
        k(f'v_readfirstlane_b32 s{76+it}, v{m}')
        if it < 7:
            for j in range(32):
                k(f'v_cmp_eq_u32 vcc, v{m}, v{vK+j}')
                k('s_nop 1')
                k(f'v_cndmask_b32 v{vK+j}, v{vK+j}, 0, vcc')
    vKy, vIx = vT+4, vT+5
    k(f'v_mov_b32 v{vKy}, s76')
    k(f'v_and_b32 v{t}, 7, v{vLn}')
    for j in range(1, 8):
        k(f'v_cmp_eq_u32 vcc, {j}, v{t}')
        k(f'v_mov_b32 v{m}, s{76+j}')
        k('s_nop 0')
        k(f'v_cndmask_b32 v{vKy}, v{vKy}, v{m}, vcc')
    k(f'v_and_b32 v{vIx}, 0xffff, v{vKy}')
    k(f'v_sub_u32 v{vIx}, 0xffff, v{vIx}')
    sk = k.newlabel('Lm1s')
    k(f's_or_b32 s40, s{sJ}, s{sWAVE}')
    k('s_cmp_lg_u32 s40, 0')
    k(f's_cbranch_scc1 {sk}')
    k(f'v_and_b32 v{m}, s54, v{vKy}')
    k(f'v_not_b32 v{t}, v{m}')
    k(f'v_ashrrev_i32 v{t}, 31, v{t}')
    k(f'v_or_b32 v{t}, 0x80000000, v{t}')
    k(f'v_xor_b32 v{m}, v{m}, v{t}')
    k(f'v_and_b32 v{m}, s54, v{m}')
    sigmoid(k, m, t)
    rbf(k, m, 54)
    k(f'v_lshlrev_b32 v{t}, 2, v{vLn}')
    k(f's_mov_b32 s40, {IDX}')
    k('s_mov_b64 exec, 0xff')
    k(f'buffer_store_dword v{vIx}, v{t}, {WS}, s40 offen sc1')
    k(f'buffer_store_dword v{m}, v{t}, {WS}, s40 offen offset:32 sc1')
    k('s_mov_b64 exec, -1')
    k.label(sk)
    vA = 96
    k(f'v_mul_u32_u24 v{m}, 896, v{vIx}')
    k(f'v_lshrrev_b32 v{t}, 4, v{vLn}')
    k(f'v_lshl_add_u32 v{m}, v{t}, 4, v{m}')
    k(f's_mov_b32 s40, {XNR}')
    for ks in range(14): k(f'buffer_load_dwordx4 {vr(vA+4*ks,4)}, v{m}, {WS}, s40 offen offset:{ks*64}')
    k('s_barrier')
    k(f's_lshl_b32 s43, s{sJ}, 7')
    moe_stage(k, 68, 3584, 43, 0, 24)
    moe_stage(k, 72, 3584, 43, 57344, 24)
    vAd = vT
    moe_traddr(k, vAd, vT+1)
    k(f'v_add_u32 v{vT+1}, 57344, v{vAd}')
    k('s_waitcnt lgkmcnt(0)')
    k('s_barrier')
    vG, vUu = 24, 28
    moe_mm(k, 0, vA, vG, vAd, 32)
    moe_mm(k, 0, vA, vUu, vT+1, 160)
    k(f'v_lshrrev_b32 v{vT+2}, 4, v{vLn}')
    k(f'v_mul_u32_u24 v{vT+2}, {4*3584}, v{vT+2}')
    k(f'v_and_b32 v{vT+3}, 15, v{vLn}')
    k(f'v_lshl_add_u32 v{vT+2}, v{vT+3}, 1, v{vT+2}')
    k(f's_lshl_b32 s40, s{sWAVE}, 5')
    k(f's_add_u32 s40, s40, s43')
    k(f's_add_u32 s40, s40, {HB}')
    k.nop(4)
    k('s_mov_b32 exec_hi, 0')
    for r in range(4):
        rbf(k, vG+r, 54); rbf(k, vUu+r, 54)
        k(f'v_mov_b32 v{vT+4}, v{vG+r}')
        sigmoid(k, vT+4, vT+5)
        k(f'v_mul_f32 v{vG+r}, v{vG+r}, v{vT+4}')
        rbf(k, vG+r, 54)
        k(f'v_mul_f32 v{vG+r}, v{vG+r}, v{vUu+r}')
        k(f'v_cvt_pk_bf16_f32 v{vG+r}, v{vG+r}, v{vG+r}')
        k(f'buffer_store_short v{vG+r}, v{vT+2}, {WS}, s40 offen sc1')
        k(f's_add_u32 s40, s40, 3584')
    k('s_mov_b64 exec, -1')
    k(f's_mov_b32 s40, {flag(F_M1)}')
    signal(k, 40, 3)
    k('s_branch W_next')

def task_M2(k):
    k.label('T_M2')
    vT = 16
    srd(k, 68, 88, 1605632)
    k(f's_mul_hi_u32 s45, s{sJ}, {(1<<32)//7 + 1}')
    k(f's_mul_i32 s46, s45, 7')
    k(f's_sub_u32 s46, s{sJ}, s46')
    k(f's_mul_i32 s43, s45, {448*896}')
    k(f's_lshl_b32 s40, s46, 7')
    k(f's_add_u32 s43, s43, s40')
    k('s_waitcnt lgkmcnt(0)')
    k('s_and_b32 s69, s69, 0xffff')
    k('s_barrier')
    moe_stage(k, 68, 896, 43, 0, 24)
    vAd = vT
    moe_traddr(k, vAd, vT+1)
    k(f's_mov_b32 s40, {flag(F_M1)}')
    wait_flag(k, 40, 28, vT+1)
    vA = 96
    k(f'v_and_b32 v{vT+1}, 7, v{vLn}')
    k(f'v_mul_u32_u24 v{vT+1}, 3584, v{vT+1}')
    k(f'v_lshrrev_b32 v{vT+2}, 4, v{vLn}')
    k(f'v_lshl_add_u32 v{vT+1}, v{vT+2}, 4, v{vT+1}')
    k(f's_mul_i32 s40, s45, 896')
    k(f's_add_u32 s40, s40, {HB}')
    for ks in range(14): k(f'buffer_load_dwordx4 {vr(vA+4*ks,4)}, v{vT+1}, {WS}, s40 offen offset:{ks*64} sc1')
    k('s_waitcnt vmcnt(0) lgkmcnt(0)')
    k('s_barrier')
    moe_mm(k, 0, vA, 24, vAd, 32)
    k(f'v_mul_u32_u24 v{vT+2}, {4*1792}, v{vT+2}')
    k(f'v_and_b32 v{vT+3}, 15, v{vLn}')
    k(f'v_lshl_add_u32 v{vT+2}, v{vT+3}, 2, v{vT+2}')
    k(f's_mul_i32 s40, s45, 14336')
    k(f's_lshl_b32 s41, s46, 8')
    k(f's_add_u32 s40, s40, s41')
    k(f's_lshl_b32 s41, s{sWAVE}, 6')
    k(f's_add_u32 s40, s40, s41')
    k(f's_add_u32 s40, s40, {UPD}')
    k('s_mov_b32 exec_hi, 0')
    for r in range(4):
        k(f'buffer_store_dword v{24+r}, v{vT+2}, {WS}, s40 offen sc1')
        k(f's_add_u32 s40, s40, 1792')
    k('s_mov_b64 exec, -1')
    k(f's_mov_b32 s40, {flag(F_M2)}')
    signal(k, 40, 3)
    k('s_branch W_next')

LTK = 163832
Q_U2, Q_M1, Q_M2, Q_P0 = 0, 48, 76, 104
Q_G = Q_P0 + 48
Q_T = Q_G + 13*72
Q_END = Q_T + 3*56
DBG = 's[8:11]'

def tstamp(k, sOff, off, vT=3):
    k('s_memrealtime s[30:31]')
    k('s_waitcnt lgkmcnt(0)')
    k(f'v_mov_b32 v{vT}, s30')
    k(f'buffer_store_dword v{vT}, off, {WS}, s{sOff} offset:{off}')

def worker(k, pref=0, tl=False):
    TL[0] = tl
    def tl_start(base):
        if not tl: return
        k(f's_add_u32 s57, s42, {base}')
        k('s_lshl_b32 s57, s57, 4')
        k(f's_add_u32 s57, s57, {STAMP + 0x40000}')
        tstamp(k, 57, 0)
    k.label('L_worker')
    k(f'v_and_b32 v{vLn}, 63, v0')
    k(f'v_lshlrev_b32 v{vL16}, 4, v{vLn}')
    k(f's_mov_b32 s{sT2}, {POLL_LIMIT}')
    k(f's_mov_b32 s{sSTEP}, 255')
    k(f's_add_u32 s42, s2, {7 - pref}')
    k('s_and_b32 s42, s42, 7')
    k('s_lshl_b32 s42, s42, 5')
    k('s_lshr_b32 s41, s2, 3')
    k('s_add_u32 s42, s42, s41')
    tl_start(1536)
    k(f's_mul_hi_u32 s{sH}, s42, {(1<<32)//14 + 1}')
    k(f's_mul_i32 s41, s{sH}, 14')
    k(f's_sub_u32 s{sBLK}, s42, s41')
    k(f's_cmp_lt_u32 s{sBLK}, 2')
    k('s_cbranch_scc1 T_Uh')
    k(f's_sub_u32 s{sBLK}, s{sBLK}, 1')
    k('s_branch T_U')
    k.label('W_next')
    if tl: tstamp(k, 57, 4)
    k(f's_cmp_lg_u32 s{sWAVE}, 0')
    k('s_cbranch_scc1 W_bc')
    k('s_mov_b64 exec, 1')
    k('v_mov_b32 v3, 1')
    k(f'buffer_atomic_add v3, off, {DBG}, 0 offset:192 sc0')
    k(f'v_mov_b32 v4, {LTK}')
    k('s_waitcnt vmcnt(0)')
    k('ds_write_b32 v4, v3')
    k('s_waitcnt lgkmcnt(0)')
    k('s_mov_b64 exec, -1')
    k.label('W_bc')
    k('s_barrier')
    k(f'v_mov_b32 v4, {LTK}')
    k('ds_read_b32 v3, v4')
    k('s_waitcnt lgkmcnt(0)')
    k('v_readfirstlane_b32 s42, v3')
    k('s_nop 3')
    tl_start(0)
    k(f's_cmp_ge_u32 s42, {Q_END}')
    k('s_cbranch_scc1 L_exit')
    k(f's_cmp_lt_u32 s42, {Q_M1}')
    k('s_cbranch_scc0 W_q1')
    k(f's_and_b32 s{sH}, s42, 15')
    k(f's_lshr_b32 s{sBLK}, s42, 4')
    k(f's_add_u32 s{sBLK}, s{sBLK}, 13')
    k('s_branch T_U')
    k.label('W_q1')
    k(f's_sub_u32 s{sJ}, s42, {Q_M1}')
    k(f's_cmp_lt_u32 s42, {Q_M2}')
    k('s_cbranch_scc1 T_M1')
    k(f's_sub_u32 s{sJ}, s42, {Q_M2}')
    k(f's_cmp_lt_u32 s42, {Q_P0}')
    k('s_cbranch_scc1 T_M2')
    k(f's_cmp_lt_u32 s42, {Q_G}')
    k('s_cbranch_scc0 W_q2')
    k(f's_sub_u32 s42, s42, {Q_P0}')
    k(f's_and_b32 s{sH}, s42, 15')
    k(f's_lshr_b32 s{sBLK}, s42, 4')
    k('s_branch T_P')
    k.label('W_q2')
    k(f's_cmp_lt_u32 s42, {Q_T}')
    k('s_cbranch_scc0 W_q3')
    k(f's_sub_u32 s42, s42, {Q_G}')
    k(f's_mul_hi_u32 s41, s42, {(1<<32)//72 + 1}')
    k('s_mul_i32 s43, s41, 72')
    k('s_sub_u32 s42, s42, s43')
    k(f's_mov_b32 s{sH}, s42')
    k(f's_add_u32 s{sBLK}, s41, 3')
    k('s_cmp_lt_u32 s42, 16')
    k('s_cbranch_scc1 T_P')
    k('s_sub_u32 s42, s42, 16')
    k('s_mul_i32 s41, s41, 56')
    k('s_add_u32 s42, s42, s41')
    k('s_branch W_v')
    k.label('W_q3')
    k(f's_sub_u32 s42, s42, {Q_T - 13*56}')
    k.label('W_v')
    k(f's_mul_hi_u32 s{sSEG}, s42, {(1<<32)//14 + 1}')
    k(f's_mul_i32 s41, s{sSEG}, 14')
    k('s_sub_u32 s42, s42, s41')
    k('s_cmp_ge_u32 s42, 7')
    k(f's_cselect_b32 s{sQT}, 1, 0')
    k(f's_mul_i32 s41, s{sQT}, 7')
    k(f's_sub_u32 s{sCG}, s42, s41')
    k('s_branch T_V')
    task_U(k); task_U(k, True); task_P(k); task_V(k); task_M1(k); task_M2(k)
```

```python
from chain import K, OPT
from asmlib import *
from layout import *
import math, struct

def f32bits(x): return struct.unpack('<I', struct.pack('<f', x))[0]
PREP_GRID, PREP_BLOCK, PREP_LDS = 256, 512, 3*43008

def srd(k, s, argoff, size):
    k(f's_load_dwordx2 s[{s}:{s+1}], s[0:1], {argoff}')
    k(f's_mov_b32 s{s+2}, {size}')
    k(f's_mov_b32 s{s+3}, 0x20000')

def gen_prep(tl=False):
    k = K()
    WS = 's[4:7]'
    k(f's_cmp_ge_u32 s2, {PREP_GRID}')
    k('s_cbranch_scc1 P_exit')
    srd(k, 4, 112, WS_SIZE)
    k('v_lshrrev_b32 v1, 6, v0')
    k('v_and_b32 v2, 63, v0')
    k('v_readfirstlane_b32 s16, v1')
    if tl: k('s_memrealtime s[40:41]')
    k('s_nop 2')
    if OPT['k1pf']:
        k('s_cmp_ge_u32 s16, 4')
        k('s_cbranch_scc1 P_nopf')
        k('s_lshl_b32 s44, s16, 3')
        k('s_add_u32 s44, s44, 16')
        k('s_load_dwordx2 s[56:57], s[0:1], s44')
        k('s_mov_b32 s58, 3670016')
        k('s_mov_b32 s59, 0x20000')
        k('v_lshlrev_b32 v190, 7, v2')
        k('s_mul_i32 s44, s2, 14336')
        k('s_add_u32 s45, s44, 6144')
        k('s_waitcnt lgkmcnt(0)')
        k('s_and_b32 s57, s57, 0xffff')
        k('buffer_load_dword v191, v190, s[56:59], s44 offen')
        k('buffer_load_dword v189, v190, s[56:59], s45 offen')
        k.label('P_nopf')
    k('s_cmp_eq_u32 s16, 7')
    k('s_cbranch_scc1 P_ln')
    k('s_and_b32 s19, s2, 15')
    k('s_bfe_u32 s18, s2, 0x10005')
    k('s_lshr_b32 s20, s2, 6')
    k('s_bitcmp1_b32 s2, 4')
    k('s_cbranch_scc1 P_gB0')
    srd(k, 8, 16, 3670016); srd(k, 12, 24, 3670016)
    k('s_branch P_g1')
    k.label('P_gB0')
    srd(k, 8, 32, 3670016); srd(k, 12, 40, 3670016)
    k.label('P_g1')
    vI, vG, vL16 = 3, 4, 5
    vR, vC, vRA, vCA, vt = 6, 10, 12, 16, 18
    vRAs, vCAs = 20, 24
    k(f'v_and_b32 v{vI}, 15, v2')
    k(f'v_lshrrev_b32 v{vG}, 4, v2')
    k(f'v_lshlrev_b32 v{vL16}, 4, v2')
    k('s_mul_i32 s21, s18, 7')
    k('s_add_u32 s21, s21, s16')
    k(f'v_lshrrev_b32 v{vt}, 3, v2')
    k('s_lshl_b32 s22, s21, 5')
    k(f'v_add_u32 v{vt}, s22, v{vt}')
    k(f'v_lshlrev_b32 v{vt}, 13, v{vt}')
    k('s_lshl_b32 s22, s19, 9')
    k(f'v_add_u32 v{vt}, s22, v{vt}')
    k(f'v_and_b32 v{vt+1}, 7, v2')
    k(f'v_and_b32 v26, 1, v{vG}')
    k(f'v_xor_b32 v{vt+1}, v{vt+1}, v26')
    for q in range(4):
        k(f'v_xor_b32 v26, {2*q}, v{vt+1}')
        k(f'v_lshl_add_u32 v{vR+q}, v26, 4, v{vt}')
        if q: k(f'v_add_u32 v{vR+q}, {q*8*8192}, v{vR+q}')
    k(f'v_lshrrev_b32 v{vt}, 2, v{vI}')
    k(f'v_bfe_u32 v{vt+1}, v{vI}, 1, 1')
    k(f'v_lshl_add_u32 v{vt+1}, v{vt}, 1, v{vt+1}')
    k(f'v_xor_b32 v{vt+1}, v{vt+1}, v{vG}')
    k(f'v_lshlrev_b32 v{vt+1}, 4, v{vt+1}')
    k(f'v_lshl_add_u32 v{vt+1}, v{vt}, 10, v{vt+1}')
    k(f'v_and_b32 v{vt}, 3, v{vI}')
    k(f'v_lshl_add_u32 v{vt+1}, v{vt}, 7, v{vt+1}')
    k('s_lshl_b32 s33, s16, 12')
    k(f'v_add_u32 v{vRA}, s33, v{vt+1}')
    k(f'v_xor_b32 v{vRA+1}, 64, v{vRA}')
    k('s_lshl_b32 s22, s18, 1')
    k('s_add_u32 s22, s22, s20')
    for j in range(4):
        k(f's_add_u32 s{24+j}, s22, {j}')
        k(f's_and_b32 s{24+j}, s{24+j}, 3')
    vAcc, vOp = 28, 84
    k('s_lshl_b32 s32, s16, 11')
    k('s_add_u32 s32, s32, 28672')
    def mm(n):
        o = vOp + 36*(n&1)
        for T in range(2):
            for ct in range(7):
                a = vAcc + 28*T + 4*ct
                k(f'v_mfma_f32_16x16x32_bf16 {vr(a,4)}, {vr(o+4*T,4)}, {vr(o+8+4*ct,4)}, {"0" if n == 0 else vr(a,4)}')
    def body(gstep, rdc, cdma):
        if tl == 2: k('s_memrealtime s[46:47]')
        k('s_waitcnt lgkmcnt(0)')
        if tl == 2: k('s_memrealtime s[48:49]')
        k('s_and_b32 s5, s5, 0xffff'); k('s_and_b32 s9, s9, 0xffff'); k('s_and_b32 s13, s13, 0xffff')
        k.vmq = []
        def issue(j):
            sb = (j % 3)*43008
            k(f's_lshl_b32 s36, s{24+j}, 7')
            k(f's_mul_i32 s35, s{24+j}, {gstep}')
            for q in range(4):
                k(f's_add_u32 s34, s33, {sb + q*1024}')
                k('s_mov_b32 m0, s34')
                k('s_nop 0')
                k.vm(f'buffer_load_dwordx4 v{vR+q}, s[8:11], s36 offen lds', j)
            cdma(sb, j)
        D = OPT['k1d']
        for j in range(D): issue(j)
        if tl == 2: k('s_memrealtime s[50:51]')
        def rd(n):
            j, es = n >> 1, n & 1
            o = vOp + 36*(n&1)
            for T in range(2): k(f'ds_read_b128 {vr(o+4*T,4)}, v{vRAs+es} offset:{T*512}')
            rdc(o + 8, es)
        for n in range(9):
            j = n >> 1
            if n < 8 and n % 2 == 0:
                sb = (j % 3)*43008
                k.wvm(j, extra='lgkmcnt(0)')
                k('s_barrier')
                if j + D < 4: issue(j + D)
                if tl == 1 and j in (0, 1, 3): k(f's_memrealtime s[{46+2*((j+1)//2)}:{47+2*((j+1)//2)}]')
                for e in range(2):
                    k(f'v_add_u32 v{vRAs+e}, {sb}, v{vRA+e}')
                    k(f'v_add_u32 v{vCAs+e}, {sb}, v{vCA+e}')
            if n < 8: rd(n)
            if n > 0:
                k(f's_waitcnt lgkmcnt({0 if (n == 8 or tl) else min(15, rdc.n + 2)})')
                mm(n-1)
    k('s_bitcmp1_b32 s2, 4')
    k('s_cbranch_scc1 P_gB')
    k('s_mul_i32 s22, s20, 7')
    k('s_add_u32 s22, s22, s16')
    k('s_lshr_b32 s23, s22, 1')
    k('s_lshl_b32 s23, s23, 5')
    k('s_and_b32 s22, s22, 1')
    k('s_lshl_b32 s22, s22, 3')
    k('s_add_u32 s22, s22, s23')
    k(f'v_bfe_u32 v{vt}, v2, 4, 1')
    k(f'v_lshlrev_b32 v{vt}, 2, v{vt}')
    k(f'v_bfe_u32 v{vt+1}, v2, 5, 1')
    k(f'v_lshl_add_u32 v{vt}, v{vt+1}, 1, v{vt}')
    k(f'v_bfe_u32 v{vt+1}, v2, 3, 1')
    k(f'v_add3_u32 v{vt}, v{vt}, v{vt+1}, s22')
    k(f'v_lshlrev_b32 v{vt}, 13, v{vt}')
    k('s_lshl_b32 s22, s19, 9')
    k(f'v_add_u32 v{vt}, s22, v{vt}')
    k(f'v_and_b32 v{vt+1}, 7, v2')
    k(f'v_xor_b32 v{vt+1}, v{vt+1}, v{vG}')
    k(f'v_lshl_add_u32 v{vC}, v{vt+1}, 4, v{vt}')
    k(f'v_xor_b32 v{vt+1}, 4, v{vt+1}')
    k(f'v_lshl_add_u32 v{vC+1}, v{vt+1}, 4, v{vt}')
    k(f'v_add_u32 v{vC+1}, {16*8192}, v{vC+1}')
    k(f'v_lshrrev_b32 v{vt}, 1, v{vI}')
    k(f'v_xor_b32 v{vt}, v{vt}, v{vG}')
    k(f'v_lshlrev_b32 v{vt}, 4, v{vt}')
    k(f'v_lshl_add_u32 v{vt}, v{vI}, 7, v{vt}')
    k(f'v_add_u32 v{vCA}, 28672, v{vt}')
    k(f'v_xor_b32 v{vCA+1}, 64, v{vCA}')
    def rdA(o, es):
        for ct in range(7): k(f'ds_read_b128 {vr(o+4*ct,4)}, v{vCAs+es} offset:{ct*2048}')
    rdA.n = 7
    def dmaA(sb, j):
        for hq in range(2):
            k(f's_add_u32 s34, s32, {sb + hq*1024}')
            k('s_mov_b32 m0, s34')
            k('s_nop 0')
            k.vm(f'buffer_load_dwordx4 v{vC+hq}, s[12:15], s35 offen lds', j)
    body(128, rdA, dmaA)
    k(f's_mov_b32 s22, {f32bits(math.log2(math.e)/16):#x}')
    k(f's_mov_b32 s23, {WTA}')
    k('s_branch P_gepi')
    k.label('P_gB')
    k(f's_mov_b32 s22, {(1<<32)//14 + 1}')
    k(f'v_mul_hi_u32 v{vt}, v0, s22')
    k(f'v_mul_u32_u24 v{vt+1}, 14, v{vt}')
    k(f'v_sub_u32 v{vt+1}, v0, v{vt+1}')
    k(f'v_mul_u32_u24 v{vt}, 896, v{vt}')
    k(f'v_lshl_add_u32 v{vt}, v{vt+1}, 4, v{vt}')
    k('s_mul_i32 s22, s19, 229376')
    k('s_mul_i32 s23, s20, 224')
    k('s_add_u32 s22, s22, s23')
    k(f'v_add_u32 v{vC}, s22, v{vt}')
    k(f'v_add_u32 v{vC+1}, {32*896}, v{vC}')
    k('s_lshl_b32 s32, s16, 10')
    k('s_add_u32 s32, s32, 28672')
    k(f'v_bfe_u32 v{vt}, v2, 2, 2')
    k(f'v_lshl_add_u32 v{vt}, v{vG}, 3, v{vt}')
    k(f'v_mul_u32_u24 v{vt}, 224, v{vt}')
    k(f'v_and_b32 v{vt+1}, 3, v2')
    k(f'v_lshl_add_u32 v{vt}, v{vt+1}, 3, v{vt}')
    k(f'v_add_u32 v{vCA}, 28672, v{vt}')
    k(f'v_add_u32 v{vCA+1}, 7168, v{vCA}')
    def rdB(o, es):
        for ct in range(7):
            for hh in range(2): k(f'ds_read_b64_tr_b16 {vr(o+4*ct+2*hh,2)}, v{vCAs+es} offset:{ct*32+hh*896}')
    rdB.n = 14
    def dmaB(sb, j):
        for hq in range(2):
            k(f's_add_u32 s34, s32, {sb + hq*7168}')
            k('s_mov_b32 m0, s34')
            k('s_nop 0')
            k.vm(f'buffer_load_dwordx4 v{vC+hq}, s[12:15], s35 offen lds', j)
    body(64*896, rdB, dmaB)
    k('s_mov_b32 s22, 1.0')
    k(f's_mov_b32 s23, {WTB}')
    k.label('P_gepi')
    if tl: k('s_memrealtime s[52:53]')
    k('s_mul_i32 s24, s19, 28')
    k('s_mul_i32 s25, s20, 7')
    k('s_add_u32 s24, s24, s25')
    k('s_mul_i32 s24, s24, 14')
    k('s_add_u32 s24, s24, s21')
    k('s_lshl_b32 s24, s24, 10')
    k('s_add_u32 s24, s24, s23')
    k('s_mov_b32 s23, s22')
    for ct in range(7):
        d = vOp + 4*ct
        for T in range(2):
            a = vAcc + 28*T + 4*ct
            k(f'v_pk_mul_f32 {vr(a,2)}, {vr(a,2)}, s[22:23]')
            k(f'v_pk_mul_f32 {vr(a+2,2)}, {vr(a+2,2)}, s[22:23]')
            k(f'v_cvt_pk_bf16_f32 v{d+2*T}, v{a}, v{a+1}')
            k(f'v_cvt_pk_bf16_f32 v{d+2*T+1}, v{a+2}, v{a+3}')
        k(f'buffer_store_dwordx4 {vr(d,4)}, v{vL16}, {WS}, s24 offen ' + OPT['k1st'])
        k('s_add_u32 s24, s24, 14336')
    if tl:
        k('s_waitcnt vmcnt(0)')
        k('s_memrealtime s[42:43]')
        k('s_lshl_b32 s44, s2, 5')
        k(f's_add_u32 s44, s44, {STAMP + 0xE0000}')
        k('s_waitcnt lgkmcnt(0)')
        k('v_mov_b32 v10, s40'); k('v_mov_b32 v11, s42'); k('v_mov_b32 v12, s46'); k('v_mov_b32 v13, s48')
        k('v_mov_b32 v14, s50'); k('v_mov_b32 v15, s52')
        k(f'buffer_store_dwordx4 v[10:13], off, {WS}, s44')
        k(f'buffer_store_dwordx2 v[14:15], off, {WS}, s44 offset:16')
    k('s_endpgm')
    k.label('P_ln')
    srd(k, 8, 0, 1835008); srd(k, 12, 64, 896)
    srd(k, 28, 8, 7168)
    k('s_mov_b32 s17, s2')
    k('v_lshrrev_b32 v3, 3, v2')
    k('s_lshl_b32 s18, s17, 3')
    k('v_add_u32 v3, s18, v3')
    k('v_and_b32 v4, 7, v2')
    k('v_mul_u32_u24 v5, 896, v3')
    k('v_lshl_add_u32 v5, v4, 4, v5')
    k('v_lshlrev_b32 v6, 4, v4')
    vX, vW, vF = 16, 44, 72
    k('s_waitcnt lgkmcnt(0)')
    k('s_and_b32 s5, s5, 0xffff'); k('s_and_b32 s9, s9, 0xffff'); k('s_and_b32 s13, s13, 0xffff')
    for i in range(7): k(f'buffer_load_dwordx4 {vr(vX+4*i,4)}, v5, s[8:11], 0 offen offset:{i*128}')
    for i in range(7): k(f'buffer_load_dwordx4 {vr(vW+4*i,4)}, v6, s[12:15], 0 offen offset:{i*128}')
    k('v_lshrrev_b32 v7, 4, v3')
    k('v_mul_u32_u24 v7, 14336, v7')
    k('v_and_b32 v8, 15, v3')
    k('v_lshl_add_u32 v7, v8, 4, v7')
    k('v_lshrrev_b32 v8, 2, v4')
    k('v_lshl_add_u32 v7, v8, 10, v7')
    k('v_and_b32 v8, 3, v4')
    k('v_lshl_add_u32 v9, v8, 8, v7')
    k('v_bfe_u32 v8, v4, 1, 1')
    k('v_lshl_add_u32 v10, v8, 9, v7')
    k('v_and_b32 v8, 1, v4')
    k('v_lshl_add_u32 v10, v8, 3, v10')
    k('s_mov_b32 s20, 0xffff0000')
    k('s_and_b32 s29, s29, 0xffff')
    k('v_bfe_u32 v12, v2, 2, 3')
    k('v_mul_u32_u24 v12, 896, v12')
    k('v_and_b32 v13, 3, v2')
    k('v_lshl_add_u32 v12, v13, 3, v12')
    k('v_lshrrev_b32 v13, 5, v2')
    k('v_lshl_add_u32 v12, v13, 2, v12')
    k('s_lshl_b32 s21, s2, 5')
    k('buffer_load_dword v160, v12, s[28:31], s21 offen')
    k('s_barrier')
    k('s_mov_b32 s32, s4'); k('s_mov_b32 s33, s5'); k(f's_mov_b32 s34, {SENT_END - MEM_S}'); k('s_mov_b32 s35, 0x20000')
    k('s_mov_b32 s36, s4'); k('s_mov_b32 s37, s5'); k(f's_mov_b32 s38, {FLG + FLG_SZ}'); k('s_mov_b32 s39, 0x20000')
    k('v_lshlrev_b32 v11, 4, v2')
    k('s_mul_i32 s21, s2, 7168')
    k(f's_add_u32 s21, s21, {MEM + MEM_S}')
    k('s_add_u32 s22, s21, 4096')
    for r in range(4): k(f'v_mov_b32 v{164+r}, -1')
    for r in range(4): k(f'v_mov_b32 v{168+r}, 0')
    for r in range(7): k(f'buffer_store_dwordx4 v[164:167], v11, s[32:35], s{21 if r < 4 else 22} offen offset:{(r&3)*1024} ' + OPT['k1ln'])
    k('s_mul_i32 s21, s2, 12288')
    k(f's_add_u32 s21, s21, {PT}')
    for r in range(12):
        k(f'buffer_store_dwordx4 v[164:167], v11, {WS}, s21 offen offset:{(r&3)*1024} ' + OPT['k1ln'])
        if (r&3) == 3: k('s_add_u32 s21, s21, 4096')
    k('s_lshl_b32 s21, s2, 10')
    k(f's_add_u32 s21, s21, {FLG}')
    k('buffer_store_dwordx4 v[168:171], v11, s[36:39], s21 offen ' + OPT['k1ln'])
    k('s_waitcnt vmcnt(28)')
    for d in range(28):
        k(f'v_lshlrev_b32 v{vF+2*d}, 16, v{vX+d}')
        k(f'v_and_b32 v{vF+2*d+1}, s20, v{vX+d}')
    def red8(v):
        for ctl in ('quad_perm:[1,0,3,2]', 'quad_perm:[2,3,0,1]', 'row_half_mirror'):
            k.nop(2)
            k(f'v_add_f32_dpp v{v}, v{v}, v{v} {ctl} row_mask:0xf bank_mask:0xf')
    def rbf(v):
        k(f'v_cvt_pk_bf16_f32 v{v}, v{v}, v{v}')
        k(f'v_and_b32 v{v}, s20, v{v}')
    k(f'v_pk_add_f32 v[12:13], {vr(vF,2)}, {vr(vF+2,2)}')
    for d in range(2, 28): k(f'v_pk_add_f32 v[12:13], v[12:13], {vr(vF+2*d,2)}')
    k('v_add_f32 v12, v12, v13')
    k('s_barrier')
    red8(12)
    k(f's_mov_b32 s21, {f32bits(1/448):#x}')
    k('v_mul_f32 v12, s21, v12')
    k('v_mov_b32 v14, 0'); k('v_mov_b32 v15, 0')
    for d in range(28):
        k(f'v_pk_add_f32 {vr(vX,2)}, {vr(vF+2*d,2)}, v[12:13] op_sel_hi:[1,0] neg_lo:[0,1] neg_hi:[0,1]')
        k(f'v_pk_fma_f32 v[14:15], {vr(vX,2)}, {vr(vX,2)}, v[14:15]')
    k('v_add_f32 v14, v14, v15')
    red8(14)
    k('v_mul_f32 v14, s21, v14')
    rbf(14)
    k(f'v_add_f32 v14, {f32bits(1e-5):#x}, v14')
    rbf(14)
    k('v_sqrt_f32 v14, v14')
    k.nop(1)
    rbf(14)
    k('v_rcp_f32 v15, v14')
    rbf(12)
    k('s_waitcnt vmcnt(20)')
    k('v_mov_b32 v128, 0'); k('v_mov_b32 v129, 0')
    vO, vS = vX, 132
    for d in range(28):
        f = vF + 2*d
        k(f'v_pk_add_f32 {vr(f,2)}, {vr(f,2)}, v[12:13] op_sel_hi:[1,0] neg_lo:[0,1] neg_hi:[0,1]')
        k(f'v_cvt_pk_bf16_f32 v130, v{f}, v{f+1}')
        k(f'v_lshlrev_b32 v{f}, 16, v130')
        k(f'v_and_b32 v{f+1}, s20, v130')
        k(f'v_pk_mul_f32 v[130:131], {vr(f,2)}, v[14:15] op_sel:[0,1] op_sel_hi:[1,1]')
        k(f'v_pk_fma_f32 {vr(f,2)}, v[130:131], v[14:15], {vr(f,2)} op_sel_hi:[1,0,1] neg_lo:[1,0,0] neg_hi:[1,0,0]')
        k(f'v_pk_fma_f32 v[130:131], {vr(f,2)}, v[14:15], v[130:131] op_sel:[0,1,0] op_sel_hi:[1,1,1]')
        k(f'v_cvt_pk_bf16_f32 v{vO+d}, v130, v131')
        so = vS + 4*(d>>2) + {0:0, 1:2, 2:1, 3:3}[d&3]
        k(f'v_mov_b32 v{so}, v{vO+d}')
        k(f'v_dot2_f32_bf16 v{128+(d&1)}, v{vO+d}, v{vW+d}, v{128+(d&1)}')
        if d in (3, 15): k('s_barrier')
    k(f's_mov_b32 s22, {XNR}'); k(f's_mov_b32 s23, {XNF}'); k(f's_mov_b32 s24, {XNS}')
    for i in range(7):
        k(f'buffer_store_dwordx4 {vr(vO+4*i,4)}, v5, {WS}, s22 offen offset:{i*128} ' + OPT['k1ln'])
        k(f'buffer_store_dwordx4 {vr(vO+4*i,4)}, v9, {WS}, s23 offen offset:{(i&1)*2048} ' + OPT['k1ln'])
        k(f'buffer_store_dwordx2 {vr(vS+4*i,2)}, v10, {WS}, s24 offen offset:{(i&1)*2048} ' + OPT['k1ln'])
        k(f'buffer_store_dwordx2 {vr(vS+4*i+2,2)}, v10, {WS}, s24 offen offset:{(i&1)*2048+256} ' + OPT['k1ln'])
        if i & 1:
            k('s_add_u32 s23, s23, 4096'); k('s_add_u32 s24, s24, 4096')
    k.nop(2)
    k('v_add_f32 v128, v128, v129')
    red8(128)
    rbf(128)
    k('v_lshlrev_b32 v3, 2, v3')
    k(f's_mov_b32 s22, {RR}')
    k(f'buffer_store_dword v128, v3, {WS}, s22 offen ' + OPT['k1ln'])
    if tl:
        k('s_waitcnt vmcnt(0)')
        k('s_memrealtime s[42:43]')
        k('s_lshl_b32 s44, s2, 5')
        k(f's_add_u32 s44, s44, {STAMP + 0xE0000}')
        k('s_waitcnt lgkmcnt(0)')
        k('v_mov_b32 v10, s42')
        k(f'buffer_store_dword v10, off, {WS}, s44 offset:24')
    k('s_cmp_ge_u32 s2, 28')
    k('s_cbranch_scc1 P_exit')
    k('v_min_u32 v160, -2, v160')
    k('v_lshlrev_b32 v11, 2, v2')
    k('s_lshl_b32 s21, s2, 8')
    k(f's_add_u32 s22, s21, {MEM}')
    k(f's_add_u32 s21, s21, {SENT_END - MEM_S}')
    k(f'buffer_store_dword v160, v11, {WS}, s22 offen ' + OPT['k1ln'])
    k(f'buffer_store_dword v160, v11, {WS}, s21 offen ' + OPT['k1ln'])
    k.label('P_exit')
    k('s_endpgm')
    return k
```

```python
from asmlib import *
from layout import *

class K(Asm):
    def __init__(self):
        super().__init__()
        self.dsq = []; self.cold = []; self.vmq = []
    def ds(self, text, tag=None):
        self(text); self.dsq.append(tag)
    def wds(self, tag):
        if tag not in self.dsq: return
        idx = max(i for i, t in enumerate(self.dsq) if t == tag)
        n = len(self.dsq) - 1 - idx
        assert n <= 15
        self(f's_waitcnt lgkmcnt({n})')
        self.dsq = self.dsq[idx+1:]
    def wds0(self):
        self('s_waitcnt lgkmcnt(0)'); self.dsq = []
    def vm(self, text, tag=None):
        self(text); self.vmq.append(tag)
    def wvm(self, *tags, extra=''):
        idx = max([i for i, t in enumerate(self.vmq) if t in tags], default=-1)
        if idx < 0:
            if extra: self('s_waitcnt ' + extra)
            return
        n = len(self.vmq) - 1 - idx
        assert n <= 63
        self(f's_waitcnt vmcnt({n}) {extra}')
        self.vmq = self.vmq[idx+1:]
    def flush_cold(self):
        for l in self.cold: self(l)
        self.cold = []

SWS, SDBG = 4, 8
sROLE, sWAVE, sSTEP, sMODE, sM, sP, sX, sUM, sCNT = 12, 13, 14, 15, 16, 17, 18, 19, 20
sT0, sT1, sT2 = 21, 22, 23
sMASK8 = 24
sID = 26
sST = 28
sTM = 30
POLL_LIMIT = 400000
NSTEP = 63
OPT = dict(sa='late', sb='early', um='sc1', uf='sc1', sleepA=0, sleepB=0, stampmask=15, rt=0, barA=1, barB=1, prefP=0, pfd=2, pfs=128, upos='early', ud=2, apf=1, nb=8, stag=1, wpos=1, rsp=1, s1pos=0, upre=8, uneed=32, ust='sc1', rot=1, k1st='sc1', uwin=2, k1d=2, ap2=0, stagA=2, gv=0, sm2=0, tm=0, bp2=1, k1pf=0, k1ln='sc1', u0='cold', align=0, w64=0, p64=0, kpos='post', kdel=7, nu2=4, bgs=0, vsl=120, usl=120, psl=16, msl=120)

def stamp(k, idx, on):
    if not on or not (OPT['stampmask'] >> idx) & 1: return
    k(('s_memrealtime' if OPT['rt'] else 's_memtime') + f' s[{sTM}:{sTM+1}]')
    k.wds0()
    k(f'v_mov_b32 v0, s{sTM}')
    k(f'buffer_store_dword v0, off, s[{SWS}:{SWS+3}], s{sST} offset:{idx*4}')

def edge(k, on, off):
    if not on or OPT['rt']: return
    lp = k.newlabel('Led')
    k('s_memrealtime s[70:71]')
    k('s_waitcnt lgkmcnt(0)')
    k.label(lp)
    k('s_memrealtime s[72:73]')
    k('s_memtime s[74:75]')
    k('s_waitcnt lgkmcnt(0)')
    k('s_cmp_eq_u32 s72, s70')
    k(f's_cbranch_scc1 {lp}')
    k('v_mov_b32 v0, s72')
    k(f'buffer_store_dword v0, off, s[{SWS}:{SWS+3}], s76 offset:{off}')
    k('v_mov_b32 v0, s74')
    k(f'buffer_store_dword v0, off, s[{SWS}:{SWS+3}], s76 offset:{off+4}')

def publish(k, text):
    ls, ld = k.newlabel('Lslow'), k.newlabel('Lpub')
    k(f's_cbranch_scc0 {ls}')
    k(text)
    k.label(ld)
    k.cold += [ls + ':', text + ' sc1', f's_branch {ld}']

def gather_mem(k, vG, vOff0, vOff1, vL0, vL1, vT):
    lp, dn = k.newlabel('Lgm'), k.newlabel('Lgd')
    k(f's_mov_b32 s{sCNT}, 0')
    k.label(lp)
    k(f'buffer_load_dwordx4 {vr(vG,4)}, v{vOff0}, s[{SWS}:{SWS+3}], s{sM} offen sc1')
    k(f'buffer_load_dwordx4 {vr(vG+4,4)}, v{vOff1}, s[{SWS}:{SWS+3}], s{sM} offen sc1')
    k(f's_add_u32 s{sCNT}, s{sCNT}, 1')
    k(f's_cmp_gt_u32 s{sCNT}, s{sT2}')
    k('s_cbranch_scc1 L_fail')
    k('s_waitcnt vmcnt(1)')
    k(f'v_max3_u32 v{vT}, v{vG}, v{vG+1}, v{vG+2}')
    k('s_waitcnt vmcnt(0)')
    k(f'v_max3_u32 v{vT+1}, v{vG+4}, v{vG+5}, v{vG+6}')
    k(f'v_max3_u32 v{vT}, v{vT}, v{vG+3}, v{vG+7}')
    k(f'v_max_u32 v{vT}, v{vT}, v{vT+1}')
    k(f'v_cmp_eq_u32 vcc, -1, v{vT}')
    k(f's_cbranch_vccnz {lp}')
    if vL0 is None: return
    k.ds(f'ds_write_b128 v{vL0}, {vr(vG,4)}')
    k.ds(f'ds_write_b128 v{vL1}, {vr(vG+4,4)}')
    k.wds0()
    k('s_barrier')

def wait_mode(k, vT):
    lp = k.newlabel('Lwm')
    k(f's_mov_b32 s{sCNT}, 0')
    k(f'v_and_b32 v{vT+1}, 15, v0')
    k(f'v_lshlrev_b32 v{vT+1}, 2, v{vT+1}')
    k.label(lp)
    k(f'buffer_load_dword v{vT}, v{vT+1}, s[{SDBG}:{SDBG+3}], 0 offen offset:32 sc1')
    k(f's_add_u32 s{sCNT}, s{sCNT}, 1')
    k(f's_cmp_gt_u32 s{sCNT}, s{sT2}')
    k('s_cbranch_scc1 L_fail')
    k('s_waitcnt vmcnt(0)')
    k(f'v_cmp_eq_u32 vcc, 32, v{vT}')
    for rot in (8, 4, 2, 1):
        k.nop(2)
        k(f'v_add_u32_dpp v{vT}, v{vT}, v{vT} row_ror:{rot} row_mask:0xf bank_mask:0xf')
    k.nop(1)
    k(f'v_readfirstlane_b32 s{sMODE}, v{vT}')
    k('s_nop 3')
    k(f's_cmp_lt_u32 s{sMODE}, 32')
    k(f's_cbranch_scc1 {lp}')
    k('s_cmp_lg_u64 vcc, 0')
    k(f's_cselect_b32 s{sMODE}, 1, 2')

def common_lane_setup(k, vLane, vL16, vG0, vG1, vIdx, vT):
    k(f'v_and_b32 v{vLane}, 63, v0')
    k(f'v_lshlrev_b32 v{vL16}, 4, v{vLane}')
    if vG0 is not None:
        k(f's_lshl_b32 s{sT0}, s{sWAVE}, 10')
        k(f'v_add_u32 v{vG0}, s{sT0}, v{vL16}')
        k(f's_add_u32 s{sT0}, s{sWAVE}, 4')
        k(f's_min_u32 s{sT0}, s{sT0}, 6')
        k(f's_lshl_b32 s{sT0}, s{sT0}, 10')
        k(f'v_add_u32 v{vG1}, s{sT0}, v{vL16}')
    k(f'v_and_b32 v{vT}, 8, v{vLane}')
    k(f'v_mov_b32 v{vIdx}, 0x4444')
    k(f'v_mov_b32 v{vT+1}, 0xeeee')
    k(f'v_cmp_ne_u32 vcc, 0, v{vT}')
    k('s_nop 1')
    k(f'v_cndmask_b32 v{vIdx}, v{vIdx}, v{vT+1}, vcc')
    k(f's_mov_b32 s{sT2}, {POLL_LIMIT}')

def poll2(k, issue, checks, body, name, stag):
    nl = len(issue(0))
    l0, d0, d1, dn = [k.newlabel(name + x) for x in ('lp', 'd0', 'd1', 'dn')]
    k(f's_mov_b32 s{sCNT}, 0')
    for x in issue(0): k(x)
    k(f"s_sleep {stag}")
    k.label(l0)
    for st, dl in ((0, d0), (1, d1)):
        for x in issue(1 - st): k(x)
        if st == 0:
            k(f's_add_u32 s{sCNT}, s{sCNT}, 1')
            k(f's_cmp_gt_u32 s{sCNT}, s{sT2}')
            k('s_cbranch_scc1 L_fail')
        for rel, ins in checks(st):
            k(f's_waitcnt vmcnt({nl + rel})')
            for x in ins: k(x)
        if st == 0: k(f's_cbranch_vccz {d0}')
        else:       k(f's_cbranch_vccnz {l0}x')
    saved = list(k.dsq)
    body(1)
    k(f's_branch {dn}')
    k.label(l0 + 'x')
    k(f's_branch {l0}')
    k.label(d0)
    end = list(k.dsq); k.dsq = saved
    body(0)
    assert k.dsq == end
    k.label(dn)

def role_A(k, stamps=False):
    vLane, vL16, vIdx = 1, 2, 3
    vKey, vKeyS, vMK, vMKS, vQW, vQR, vSW, vSR, vPO, vVal = 4, 5, 6, 7, 8, 9, 10, 11, 12, 13
    vT = 14
    vM = 16
    vQ = 44
    vKT = 72
    vKM = 100
    vX = 114
    vG0, vG1 = 118, 119
    def W(lt, kb):
        i = lt*7 + kb
        return (256 + 8*i) if i < 32 else (120 + 8*(i-32))
    LM, LSP, LQS = 0, 7168, 20480
    k.label('L_roleA')
    k(f's_mov_b32 s{sID}, s{sROLE}')
    common_lane_setup(k, vLane, vL16, vG0, vG1, vIdx, vX)
    k(f's_lshr_b32 s{sT0}, s{sWAVE}, 1')
    k(f's_mul_i32 s{sT0}, s{sT0}, 14')
    k(f's_and_b32 s{sT1}, s{sWAVE}, 1')
    k(f's_add_u32 s33, s{sT0}, 6')
    k(f's_add_u32 s33, s33, s{sT1}')
    k(f's_lshl_b32 s34, s{sT1}, 3')
    k(f's_add_u32 s32, s{sT0}, s34')
    k(f's_mul_i32 s35, s{sID}, {28*14*1024}')
    k(f's_add_u32 s35, s35, {WTA}')
    k(f's_mul_i32 s36, s32, {14*1024}')
    k(f's_add_u32 s36, s36, s35')
    k(f's_mul_i32 s37, s33, {14*1024}')
    k(f's_add_u32 s37, s37, s35')
    for j in range(7):
        k(f's_add_u32 s{50+j}, s{sWAVE}, {(4*j) % 7}')
        k(f's_sub_u32 s40, s{50+j}, 7')
        k(f's_cmp_ge_u32 s{50+j}, 7')
        k(f's_cselect_b32 s{50+j}, s40, s{50+j}')
        k(f's_lshl_b32 s{50+j}, s{50+j}, 10')
    n = 0
    for lt in range(7):
        sb = 36 if lt < 6 else 37
        for j in range(7):
            k(f's_lshl_b32 s40, s{50+j}, 1')
            k(f's_add_u32 s40, s40, s{sb}')
            for f in range(2):
                k(f'buffer_load_dwordx4 {xr(W(lt, j) + 4*f,4)}, v{vL16}, s[{SWS}:{SWS+3}], s40 offen offset:{f*1024}')
                n += 1
                if n % 16 == 0: k('s_waitcnt vmcnt(40)')
        k(f's_add_u32 s{sb}, s{sb}, 14336')
    k(f'v_add_u32 v{vG1}, s51, v{vL16}')
    t = vX
    g, i = vQ, vQ+1
    k(f'v_lshrrev_b32 v{g}, 4, v{vLane}')
    k(f'v_and_b32 v{i}, 15, v{vLane}')
    k(f's_lshr_b32 s38, s32, 1')
    k(f's_lshr_b32 s39, s33, 1')
    k(f's_lshl_b32 s40, s38, 10')
    k(f'v_add_u32 v{vKey}, s40, v{vL16}')
    k(f's_lshl_b32 s40, s39, 10')
    k(f's_add_u32 s40, s40, s34')
    k(f'v_add_u32 v{vKeyS}, s40, v{vL16}')
    k(f'v_lshrrev_b32 v{t}, 1, v{g}')
    k(f'v_lshlrev_b32 v{t}, 8, v{t}')
    k(f'v_and_b32 v{t+1}, 7, v{i}')
    k(f'v_lshlrev_b32 v{t+1}, 4, v{t+1}')
    k(f'v_add_u32 v{t}, v{t}, v{t+1}')
    k(f'v_and_b32 v{t+1}, 1, v{g}')
    k(f'v_lshlrev_b32 v{t+1}, 7, v{t+1}')
    k(f'v_add_u32 v{t}, v{t}, v{t+1}')
    k(f's_lshl_b32 s40, s38, 9')
    k(f'v_add_u32 v{vMK}, s40, v{t}')
    k(f's_lshl_b32 s40, s39, 9')
    k(f's_add_u32 s40, s40, s34')
    k(f'v_add_u32 v{vMKS}, s40, v{t}')
    k(f's_lshl_b32 s40, s{sWAVE}, 10')
    k(f's_add_u32 s40, s40, {LQS}')
    k(f'v_lshrrev_b32 v{t}, 2, v{i}')
    k(f'v_add_u32 v{t}, v{t}, v{g}')
    k(f'v_and_b32 v{t}, 3, v{t}')
    k(f'v_lshlrev_b32 v{t}, 3, v{t}')
    k(f'v_lshlrev_b32 v{t+1}, 5, v{i}')
    k(f'v_add3_u32 v{vQW}, v{t}, v{t+1}, s40')
    k(f'v_lshrrev_b32 v{t}, 2, v{vLane}')
    k(f'v_lshlrev_b32 v{t}, 5, v{t}')
    k(f'v_add_u32 v{t+1}, v{vLane}, v{g}')
    k(f'v_and_b32 v{t+1}, 3, v{t+1}')
    k(f'v_lshlrev_b32 v{t+1}, 3, v{t+1}')
    k(f'v_add3_u32 v{vQR}, v{t}, v{t+1}, s40')
    k(f's_mul_i32 s40, s{sWAVE}, 3264')
    k(f's_add_u32 s40, s40, {LSP}')
    k(f'v_lshlrev_b32 v{t}, 4, v{i}')
    k(f'v_mul_u32_u24 v{t+1}, 272, v{g}')
    k(f'v_add3_u32 v{vSW}, v{t}, v{t+1}, s40')
    k(f'v_subrev_u32 v{t}, 12, v{i}')
    k(f'v_cmp_le_u32 vcc, 12, v{i}')
    k('s_nop 1')
    k(f'v_cndmask_b32 v{t}, v{i}, v{t}, vcc')
    k(f'v_lshrrev_b32 v{t+1}, 5, v{vLane}')
    k(f's_lshl_b32 s40, s{sWAVE}, 1')
    k(f'v_add_u32 v{t+1}, s40, v{t+1}')
    k(f'v_and_b32 v{t+2}, 1, v{g}')
    k(f'v_lshl_add_u32 v{t+3}, v{t+2}, 3, v{t+1}')
    k(f'v_lshlrev_b32 v{t+3}, 4, v{t+3}')
    k(f'v_mul_u32_u24 v{vSR}, 272, v{t}')
    k(f'v_add_u32 v{vSR}, v{vSR}, v{t+3}')
    if LSP: k(f'v_add_u32 v{vSR}, {LSP}, v{vSR}')
    k(f's_and_b32 s42, s{sID}, 1')
    k(f's_lshl_b32 s42, s42, 3')
    k(f'v_add_u32 v{t+1}, s42, v{t+1}')
    k(f'v_and_b32 v{vPO}, 1, v{i}')
    k(f'v_lshlrev_b32 v{vPO}, 3, v{vPO}')
    k(f'v_lshl_add_u32 v{vPO}, v{t+1}, 4, v{vPO}')
    k(f'v_bfe_u32 v{t}, v{i}, 1, 1')
    k(f'v_lshl_add_u32 v{vPO}, v{t}, 8, v{vPO}')
    k(f'v_bfe_u32 v{t}, v{i}, 3, 1')
    k(f'v_lshl_add_u32 v{vPO}, v{t}, 9, v{vPO}')
    k(f's_lshr_b32 s41, s{sID}, 1')
    k(f's_lshl_b32 s40, s41, 10')
    k(f'v_add_u32 v{vPO}, s40, v{vPO}')
    k(f'v_lshlrev_b32 v{t}, 3, v{i}')
    k(f'v_lshl_add_u32 v{t}, v{t+1}, 4, v{t}')
    k(f's_lshl_b32 s40, s41, 8')
    k(f's_add_u32 s40, s40, 8192')
    k(f'v_add_u32 v{t}, s40, v{t}')
    k(f'v_mov_b32 v{t+3}, 0x40000000')
    k(f'v_cmp_le_u32 vcc, 2, v{i}')
    k('s_nop 1')
    k(f'v_cndmask_b32 v{t}, v{t}, v{t+3}, vcc')
    k(f'v_cmp_le_u32 vcc, 4, v{i}')
    k('s_nop 1')
    k(f'v_cndmask_b32 v{vPO}, v{t}, v{vPO}, vcc')
    k(f'v_cmp_le_u32 vcc, 12, v{i}')
    k('s_nop 1')
    k(f'v_cndmask_b32 v{vPO}, v{vPO}, v{t+3}, vcc')
    k(f'v_lshl_add_u32 v{vPO}, v{t+2}, 2, v{vPO}')
    k(f'v_mov_b32 v{vVal}, 1.0')
    k(f'v_cmp_le_u32 vcc, v{t+3}, v{vPO}')
    k('s_nop 1')
    k(f'v_cndmask_b32 v{vVal}, v{vVal}, 0, vcc')
    k(f's_mov_b32 s{sSTEP}, 0')
    k(f's_mov_b32 s{sM}, {MEM}')
    k(f's_mov_b32 s{sP}, {PB}')
    k(f's_mov_b32 s{sX}, {XNS}')
    k(f's_lshl_b32 s40, s{sID}, 2')
    k(f's_add_u32 s40, s40, s{sWAVE}')
    k(f's_mul_i32 s40, s40, 7168')
    k(f'v_min_u32 v{vX}, {55*16}, v{vL16}')
    k(f'v_lshlrev_b32 v{vX}, 3, v{vX}')
    k(f'v_add_u32 v{vX}, s40, v{vX}')
    k(f"s_mov_b32 s{sUM}, {UF + OPT['ud']*UF_SEG}")
    WS = f's[{SWS}:{SWS+3}]'
    def key_list():
        L = []
        for p in range(3):
            L.append(f'buffer_load_dwordx4 {vr(vKT+8*p,4)}, v{vKey}, {WS}, s{sX} offen offset:{p*1024}')
            L.append(f'buffer_load_dwordx4 {vr(vKT+8*p+4,4)}, v{vKey}, {WS}, s46 offen offset:{p*1024}')
        L.append(f'buffer_load_dwordx2 {vr(vKT+24,2)}, v{vKeyS}, {WS}, s{sX} offen')
        L.append(f'buffer_load_dwordx2 {vr(vKT+26,2)}, v{vKeyS}, {WS}, s46 offen')
        return L
    def load_keys(keys=True):
        if keys:
            for x in key_list(): k(x)
        k(f's_add_u32 s{sX}, s{sX}, 28672')
        k(f's_add_u32 s46, s{sX}, 14336')
        k(f's_add_u32 s{sT0}, s{sSTEP}, {1 + OPT["ud"]}')
        k(f's_lshr_b32 s{sT0}, s{sT0}, 2')
        k(f's_lshl_b32 s{sT0}, s{sT0}, 7')
        k(f's_add_u32 s{sT0}, s{sT0}, {flag(F_U)}')
        k(f'buffer_load_dword v{vX+2}, off, {WS}, s{sT0} sc1')
    if OPT['tm']:
        k(f'v_lshlrev_b32 v{vQ+2}, 2, v{g}')
        k(f'v_sub_u32 v{vQ+2}, v{i}, v{vQ+2}')
        k(f'v_and_b32 v{vQ+3}, 1, v{vQ+2}')
        k(f'v_lshlrev_b32 v{vQ+3}, 4, v{vQ+3}')
        k(f'v_mov_b32 v{vLane}, 0x3f80')
        k(f'v_lshlrev_b32 v{vLane}, v{vQ+3}, v{vLane}')
        k(f'v_cmp_gt_u32 vcc, 4, v{vQ+2}')
        k(f'v_cmp_lt_u32 s[48:49], 1, v{vQ+2}')
        k('s_nop 0')
        k(f'v_cndmask_b32 v{vLane}, 0, v{vLane}, vcc')
    k(f's_add_u32 s46, s{sX}, 14336')
    k(f's_mov_b32 s{sSTEP}, -1')
    load_keys()
    k(f's_mov_b32 s{sSTEP}, 0')
    wait_mode(k, vT)
    k(f'v_mov_b32 v{vX+3}, 0x40000000')
    if stamps: k(f's_add_u32 s76, s{sST}, 0x20000')
    edge(k, stamps, 0)
    k.label('L_A_loop')
    for r in range(0, 28, 2): k(f'v_mov_b64 {vr(vQ+r,2)}, 0')
    vAd = vKM + 6
    for j in range(2, 7): k(f'v_add_u32 v{vAd+j}, s{50+j}, v{vL16}')
    def Mx(lt, kb, src):
        return f'v_smfmac_f32_16x16x64_bf16 {vr(vQ+4*lt,4)}, {vr(src,4)}, {xr(W(lt,kb),8)}, v{vIdx}'
    def M(lt, kb): return Mx(lt, kb, vM+4*kb)
    mk = [f'ds_read_b128 {vr(vKM+4*p,4)}, v{vMK} offset:{LM+p*512}' for p in range(3)]
    mk.append(f'ds_read_b64 {vr(vKM+12,2)}, v{vMKS} offset:{LM}')
    sets = [vM, vKM]
    def issue(st):
        return [f'buffer_load_dwordx4 {vr(sets[st],4)}, v{vG0}, {WS}, s{sM} offen sc1',
                f'buffer_load_dwordx4 {vr(sets[st]+4,4)}, v{vG1}, {WS}, s{sM} offen sc1']
    def checks(st):
        G = sets[st]
        return [(1, [f'v_max3_u32 v{vT}, v{G}, v{G+1}, v{G+2}']),
                (0, [f'v_max3_u32 v{vT+1}, v{G+4}, v{G+5}, v{G+6}', f'v_max3_u32 v{vT}, v{vT}, v{G+3}, v{G+7}',
                     f'v_max_u32 v{vT}, v{vT}, v{vT+1}', f'v_cmp_eq_u32 vcc, -1, v{vT}'])]
    NB = OPT['nb']
    def body(st):
        G = sets[st]
        stamp(k, 0, stamps)
        wrs = [f'ds_write_b128 v{vG0}, {vr(G,4)} offset:{LM}', f'ds_write_b128 v{vG1}, {vr(G+4,4)} offset:{LM}']
        seq = [(lt, j) for j in range(2) for lt in range(7)]
        for n, (lt, j) in enumerate(seq):
            k(Mx(lt, j, G + 4*j))
            if OPT['w64'] == 0 and n < 2: k.ds(wrs[n])
            if OPT['w64'] == 1 and n < 4: k.ds(f'ds_write_b64 v{vG0 if n < 2 else vG1}, {vr(G+2*n,2)} offset:{LM + 8*(n&1)}')
            if n == 4: k(f'v_cmp_le_u32 vcc, {OPT["uneed"]}, v{vX+2}')
            if n == 5: k('s_nop 0'); k(f'v_cndmask_b32 v{vX+1}, v{vX+3}, v{vX}, vcc')
            if n == NB - 1:
                k.wds0(); k('s_barrier')
            if NB - 1 <= n < NB + 4:
                jj = n - (NB - 1) + 2
                k.ds(f'ds_read_b128 {vr(vM+4*jj,4)}, v{vAd+jj} offset:{LM}', f'm{jj}')
            if n == NB + 5: k(f'buffer_load_dword v0, v{vX+1}, {WS}, s{sUM} offen sc1')
    if OPT['ap2']:
        poll2(k, issue, checks, body, 'Lga', OPT['stagA'])
    else:
        gather_mem(k, vM, vG0, vG1, None, None, vT)
        body(0)
    def cvt(lt, h):
        k(f'v_cvt_pk_bf16_f32 v{vQ+4*lt+h}, v{vQ+4*lt+2*h}, v{vQ+4*lt+2*h+1}')
    def wr(lt):
        k.ds(f'ds_write_b64 v{vQW}, {vr(vQ+4*lt,2)} offset:{512*(lt&1)}')
    def tr(p, h):
        k.ds(f'ds_read_b64_tr_b16 {vr(vQ+8*p+2*h,2)}, v{vQR} offset:{512*h}', f'q{p}')
    vSt = [vM, vM+4, vQ+4]
    def S(p, t):
        q = vQ + 8*p
        c = '0' if p == 0 else vr(vSt[t],4)
        if p < 3:
            a = vKM+4*p if t == 0 else vKT+8*p+4*(t-1)
            k(f'v_mfma_f32_16x16x32_bf16 {vr(vSt[t],4)}, {vr(a,4)}, {vr(q,4)}, {c}')
        else:
            a = vKM+12 if t == 0 else vKT+24+2*(t-1)
            k(f'v_mfma_f32_16x16x16_bf16 {vr(vSt[t],4)}, {vr(a,2)}, {vr(q,2)}, {c}')
    for lt in range(7):
        for j in range(2, 7):
            if lt == 0: k.wds(f'm{j}')
            k(M(lt, j))
            if OPT['tm'] and lt == 1 and j == 2: k(f'v_cndmask_b32 v{vT}, v{vLane}, 0, s[48:49]')
            if OPT['tm'] and lt == 1 and j == 3: k(f'v_cndmask_b32 v{vT+1}, 0, v{vLane}, s[48:49]')
            if lt == 0 and j == 6:
                k('s_waitcnt vmcnt(1)')
                for x in mk: k.ds(x, 'mk')
            if lt >= 1:
                if j == 4: cvt(lt-1, 0)
                if j == 5: cvt(lt-1, 1)
                if j == 6:
                    wr(lt-1)
                    if (lt-1) & 1: tr((lt-1)//2, 0); tr((lt-1)//2, 1)
        if lt == (4 if OPT['s1pos'] == 0 else 3):
            k.wds('q0')
            for t in range(3): S(0, t)
        if lt == 5 and OPT['s1pos'] == 1:
            k.wds('q1')
            for t in range(3): S(1, t)
    if OPT['s1pos'] == 0:
        k.wds('q1')
        for t in range(3): S(1, t)
        cvt(6, 0); cvt(6, 1)
        if OPT['tm']:
            k.wds('q2')
            k.nop(1)
            k(f'v_mfma_f32_16x16x16_bf16 {vr(vQ+12,4)}, {vr(vQ+24,2)}, {vr(vT,2)}, 0')
            for t in range(3): S(2, t)
            k(f'v_cvt_pk_bf16_f32 v{vQ+24}, v{vQ+12}, v{vQ+13}')
            k(f'v_cvt_pk_bf16_f32 v{vQ+25}, v{vQ+14}, v{vQ+15}')
            k.nop(2)
        else:
            wr(6); tr(3, 0)
            k.wds('q2')
            for t in range(3): S(2, t)
    else:
        k.nop(8)
        cvt(6, 0); cvt(6, 1); wr(6); tr(3, 0)
        k.wds('q2')
        for t in range(3): S(2, t)
    k.wds('q3')
    for t in range(3): S(3, t)
    for t in range(3):
        k.nop(2 if (t == 0 or OPT['p64'] == 0) else 1)
        if OPT['p64'] == 0: k.ds(f'ds_write_b128 v{vSW}, {vr(vSt[t],4)} offset:{1088*t}')
        else:
            k.ds(f'ds_write_b64 v{vSW}, {vr(vSt[t],2)} offset:{1088*t}')
            k.ds(f'ds_write_b64 v{vSW}, {vr(vSt[t]+2,2)} offset:{1088*t+8}')
    k.wds0()
    k('s_barrier')
    stamp(k, 1, stamps)
    mark = len(k.lines)
    R = vQ+8
    for w in range(4): k.ds(f'ds_read_b128 {vr(R+4*w,4)}, v{vSR} offset:{w*3264}', f'r{w}')
    k(f's_cmp_eq_u32 s{sMODE}, 1')
    k.wds('r1')
    k(f'v_pk_add_f32 {vr(R,2)}, {vr(R,2)}, {vr(R+4,2)}')
    k(f'v_pk_add_f32 {vr(R+2,2)}, {vr(R+2,2)}, {vr(R+6,2)}')
    k.wds('r2')
    k(f'v_pk_add_f32 {vr(R,2)}, {vr(R,2)}, {vr(R+8,2)}')
    k(f'v_pk_add_f32 {vr(R+2,2)}, {vr(R+2,2)}, {vr(R+10,2)}')
    k.wds('r3')
    k(f'v_pk_add_f32 {vr(R,2)}, {vr(R,2)}, {vr(R+12,2)}')
    k(f'v_pk_add_f32 {vr(R+2,2)}, {vr(R+2,2)}, {vr(R+14,2)}')
    k.nop(2)
    k(f'v_permlane16_swap_b32 v{R}, v{R+2}')
    k(f'v_permlane16_swap_b32 v{R+1}, v{R+3}')
    X = R+4; m = R+6; t = R+8
    k(f'v_pk_add_f32 {vr(X,2)}, {vr(R,2)}, {vr(R+2,2)}')
    def allred(op, m):
        for rot in (8, 4, 2, 1):
            k.nop(2)
            k(f'{op}_dpp v{m}, v{m}, v{m} row_ror:{rot} row_mask:0xf bank_mask:0xf')
        k(f'v_mov_b32 v{t}, v{m}')
        k.nop(2)
        k(f'v_permlane16_swap_b32 v{m}, v{t}')
        k(f'{op} v{m}, v{m}, v{t}')
    if OPT['sm2'] == 0:
        k(f'v_max_f32 v{m}, v{X}, v{X+1}')
        allred('v_max_f32', m)
        k(f'v_pk_add_f32 {vr(X,2)}, {vr(X,2)}, {vr(m,2)} op_sel_hi:[1,0] neg_lo:[0,1] neg_hi:[0,1]')
        k(f'v_exp_f32 v{X}, v{X}')
        k(f'v_exp_f32 v{X+1}, v{X+1}')
        k.nop(1)
        k(f'v_add_f32 v{m}, v{X}, v{X+1}')
        k(f'v_mul_f32 v{m}, v{m}, v{vVal}')
        allred('v_add_f32', m)
        k(f'v_rcp_f32 v{m}, v{m}')
        k.nop(1)
        k(f'v_pk_mul_f32 {vr(X,2)}, {vr(X,2)}, {vr(m,2)} op_sel_hi:[1,0]')
    else:
        l_, M, sc = R+10, R+12, R+14
        def dpp(op, r, rot): k(f'{op}_dpp v{r}, v{r}, v{r} row_ror:{rot} row_mask:0xf bank_mask:0xf')
        k(f'v_max_f32 v{m}, v{X}, v{X+1}')
        for rot in (8, 4, 2, 1):
            k.nop(2); dpp('v_max_f32', m, rot)
        k(f'v_pk_add_f32 {vr(X,2)}, {vr(X,2)}, {vr(m,2)} op_sel_hi:[1,0] neg_lo:[0,1] neg_hi:[0,1]')
        k(f'v_mov_b32 v{M}, v{m}')
        k(f'v_exp_f32 v{X}, v{X}')
        k(f'v_mov_b32 v{t}, v{m}')
        k(f'v_exp_f32 v{X+1}, v{X+1}')
        k.nop(1)
        k(f'v_add_f32 v{l_}, v{X}, v{X+1}')
        k(f'v_permlane16_swap_b32 v{M}, v{t}')
        k(f'v_mul_f32 v{l_}, v{l_}, v{vVal}')
        k(f'v_max_f32 v{M}, v{M}, v{t}')
        k(f'v_sub_f32 v{sc}, v{m}, v{M}')
        dpp('v_add_f32', l_, 8)
        k(f'v_exp_f32 v{sc}, v{sc}')
        k.nop(1)
        dpp('v_add_f32', l_, 4)
        k(f'v_pk_mul_f32 {vr(X,2)}, {vr(X,2)}, {vr(sc,2)} op_sel_hi:[1,0]')
        k.nop(1)
        dpp('v_add_f32', l_, 2)
        k.nop(2)
        dpp('v_add_f32', l_, 1)
        k(f'v_mul_f32 v{l_}, v{l_}, v{sc}')
        k(f'v_mov_b32 v{t}, v{l_}')
        k.nop(2)
        k(f'v_permlane16_swap_b32 v{l_}, v{t}')
        k(f'v_add_f32 v{l_}, v{l_}, v{t}')
        k(f'v_rcp_f32 v{l_}, v{l_}')
        k.nop(1)
        k(f'v_pk_mul_f32 {vr(X,2)}, {vr(X,2)}, {vr(l_,2)} op_sel_hi:[1,0]')
    k(f'v_cvt_pk_bf16_f32 v{X}, v{X}, v{X+1}')
    k(f'v_min_u32 v{X}, -2, v{X}')
    if OPT['kpos'] == 'soft':
        body_ = k.lines[mark:]; k.lines = k.lines[:mark]; L = key_list()
        for x in body_:
            if x == 's_nop 1' and L: k(L.pop(0)); k('s_nop 0')
            else: k(x)
        assert not L
    publish(k, f'buffer_store_dword v{X}, v{vPO}, {WS}, s{sP} offen')
    stamp(k, 2, stamps)
    k('s_barrier')
    if OPT['kdel']: k(f"s_sleep {OPT['kdel']}")
    load_keys(OPT['kpos'] != 'soft')
    if OPT['sleepA']: k(f"s_sleep {OPT['sleepA']}")
    k(f's_add_u32 s{sUM}, s{sUM}, {UF_SEG}')
    k(f's_add_u32 s{sM}, s{sM}, {MEM_S}')
    k(f's_add_u32 s{sP}, s{sP}, {PB_S}')
    if stamps: k(f's_add_u32 s{sST}, s{sST}, 16')
    k(f's_add_u32 s{sSTEP}, s{sSTEP}, 1')
    k(f's_cmp_lt_u32 s{sSTEP}, {NSTEP}')
    k('s_cbranch_scc1 L_A_loop')
    edge(k, stamps, 8)
    k('s_waitcnt vmcnt(0)')
    k('s_endpgm')
    k.flush_cold()

def role_B(k, stamps=False, wait_u=None):
    WS = f's[{SWS}:{SWS+3}]'
    vLane, vL16, vG0, vG1, vIdx = 1, 2, 3, 4, 5
    vWL, vPT, vPM, vRW, vRR, vL4 = 6, 7, 8, 9, 10, 11
    vC = 12
    vM = 16
    vA = 44
    vU = 76
    vTm = 108
    vUi = 140
    vUm = 172
    vRR2 = 188
    vKeep, vFl = 191, 15
    vD = vTm
    vG = vTm + 16
    vP = [vM, vA]
    def W(gi, kb):
        i = gi*5 + kb
        return (256 + 8*i) if i < 32 else (192 + 8*(i-32))
    LM, LRED, LW = 0, 7168, 16384
    k.label('L_roleB')
    k(f's_sub_u32 s{sID}, s{sROLE}, 16')
    common_lane_setup(k, vLane, vL16, vG0, vG1, vIdx, vC)
    k(f's_lshl_b32 s{sT0}, s{sWAVE}, 2')
    k(f's_mul_i32 s{sT0}, s{sT0}, 28')
    k(f's_lshl_b32 s{sT1}, s{sID}, 1')
    k(f's_add_u32 s{sT0}, s{sT0}, s{sT1}')
    k(f's_mul_i32 s35, s{sT0}, 14336')
    k(f's_add_u32 s35, s35, {WTB}')
    k(f's_lshl_b32 s37, s{sWAVE}, 15')
    k(f's_add_u32 s37, s37, {LW}')
    k(f'v_add_u32 v{vWL}, s37, v{vL16}')
    for j in range(7):
        k(f's_add_u32 s{50+j}, s{sWAVE}, {(4*j) % 7}')
        k(f's_sub_u32 s40, s{50+j}, 7')
        k(f's_cmp_ge_u32 s{50+j}, 7')
        k(f's_cselect_b32 s{50+j}, s40, s{50+j}')
        k(f's_lshl_b32 s{50+j}, s{50+j}, 10')
    k(f'v_add_u32 v{vG1}, s51, v{vL16}')
    for gi in range(8):
        k(f's_add_u32 s36, s35, {(gi>>1)*28*14336 + (gi&1)*14336}')
        for j in range(7):
            k(f's_lshl_b32 s40, s{50+j}, 1')
            k(f's_add_u32 s40, s40, s36')
            if j >= 5:
                k(f's_add_u32 s38, s37, {gi*4096 + (j-5)*2048}')
                k(f's_mov_b32 m0, s38')
                k('s_nop 0')
            for f in range(2):
                if j < 5: k(f'buffer_load_dwordx4 {xr(W(gi, j) + 4*f,4)}, v{vL16}, {WS}, s40 offen offset:{f*1024}')
                else:     k(f'buffer_load_dwordx4 v{vL16}, {WS}, s40 offen offset:{f*1024} lds')
        k('s_waitcnt vmcnt(40)')
    g, i = vA, vA+1
    vT = vC
    k(f'v_lshrrev_b32 v{g}, 4, v{vLane}')
    k(f'v_and_b32 v{i}, 15, v{vLane}')
    k(f's_lshl_b32 s40, s{sWAVE}, 11')
    k(f'v_add_u32 v{vPT}, s40, v{vL16}')
    k(f'v_lshrrev_b32 v{vT}, 1, v{g}')
    k(f'v_lshlrev_b32 v{vT}, 8, v{vT}')
    k(f'v_lshl_add_u32 v{vT}, v{i}, 4, v{vT}')
    k(f's_lshl_b32 s40, s{sWAVE}, 9')
    k(f's_add_u32 s40, s40, 8192')
    k(f'v_add_u32 v{vPM}, s40, v{vT}')
    k(f's_lshl_b32 s40, s{sWAVE}, 10')
    k(f's_add_u32 s40, s40, {LRED}')
    k(f'v_add_u32 v{vRW}, s40, v{vL16}')
    k(f'v_and_b32 v{vT}, 3, v{vLane}')
    k(f'v_lshlrev_b32 v{vT}, 6, v{vT}')
    k(f'v_lshrrev_b32 v{vT+1}, 5, v{vLane}')
    k(f'v_lshl_add_u32 v{vT}, v{vT+1}, 5, v{vT}')
    k(f'v_lshrrev_b32 v{vT+1}, 2, v{vLane}')
    k(f'v_and_b32 v{vT+2}, 3, v{vT+1}')
    k(f'v_lshl_add_u32 v{vT}, v{vT+2}, 2, v{vT}')
    k(f'v_bfe_u32 v{vT+2}, v{vLane}, 4, 1')
    k(f'v_lshl_add_u32 v{vT}, v{vT+2}, 8, v{vT}')
    k(f's_and_b32 s40, s{sWAVE}, 1')
    k(f's_lshl_b32 s40, s40, 9')
    k(f's_add_u32 s40, s40, {LRED}')
    k(f'v_add_u32 v{vRR}, s40, v{vT}')
    for w in range(1, 4): k(f'v_add_u32 v{vRR2+w-1}, {1024*w}, v{vRR}')
    k(f's_lshl_b32 s40, s{sID}, 1')
    k(f's_and_b32 s41, s{sWAVE}, 1')
    k(f's_add_u32 s40, s40, s41')
    k(f's_lshl_b32 s40, s40, 8')
    k(f'v_lshlrev_b32 v{vL4}, 2, v{vLane}')
    k(f'v_add_u32 v{vL4}, s40, v{vL4}')
    k(f's_mov_b32 s{sSTEP}, 0')
    k(f's_mov_b32 s{sM}, {MEM}')
    k(f's_mov_b32 s{sP}, {PB}')
    k(f's_lshl_b32 s{sX}, s{sID}, 15')
    k(f's_lshl_b32 s40, s{sWAVE}, 13')
    k(f's_add_u32 s{sX}, s{sX}, s40')
    k(f's_add_u32 s{sX}, s{sX}, {UF}')
    k(f's_mul_i32 s{sUM}, s{sWAVE}, {2*28*1024}')
    k(f's_lshl_b32 s40, s{sID}, 11')
    k(f's_add_u32 s{sUM}, s{sUM}, s40')
    k(f's_add_u32 s{sUM}, s{sUM}, {UM}')
    k(f's_mov_b32 s43, s{sUM}')
    def ldu(j):
        hh, T = j >> 1, j & 1
        r = vU + 16*(hh>>1) + 8*T + 4*(hh&1)
        return f'buffer_load_dwordx4 {vr(r,4)}, v{vL16}, {WS}, s{sX if j<4 else sT0} offen offset:{(j&3)*1024} ' + OPT['uf']
    def stum(u, T):
        return f'buffer_store_dwordx4 {vr(vUm+8*T+4*u,4)}, v{vL16}, {WS}, s{43 if u==0 else 44} offen offset:{T*1024} ' + OPT['um']
    def lw(gi):
        b = vTm + 16*(gi&1)
        for f in range(4): k.ds(f'ds_read_b128 {vr(b+4*f,4)}, v{vWL} offset:{gi*4096+f*1024}', f'w{gi}')
    def load_u(ahead):
        if wait_u:
            lu = k.newlabel('Lnu')
            k(f's_add_u32 s{sT0}, s{sSTEP}, {ahead}')
            k(f's_and_b32 s{sT1}, s{sT0}, 3')
            k(f's_cbranch_scc1 {lu}')
            k(f's_lshl_b32 s{sT0}, s{sT0}, 5')
            k(f's_add_u32 s{sT0}, s{sT0}, {flag(F_U)}')
            wait_u(k, sT0, 32, vC, sleep=1)
            k.label(lu)
        k(f's_add_u32 s{sT0}, s{sX}, 4096')
        for j in range(8): k(ldu(j))
        k(f's_add_u32 s{sX}, s{sX}, {UF_SEG}')
    if OPT['u0'] == 'pro': load_u(0)
    wait_mode(k, vC)
    sw = []
    for o in range(4):
        r = vU + 8*o
        for e in range(4):
            sel = e & 1
            sw.append(f'v_pk_mov_b32 {vr(vUi+8*o+2*e,2)}, {vr(r+(e&2),2)}, {vr(r+4+(e&2),2)} op_sel:[{sel},{sel}]')
    if stamps: k(f's_add_u32 s76, s{sST}, 0x20000')
    edge(k, stamps, 0)
    k.label('L_B_loop')
    lp = k.newlabel('Lgm')
    def gl():
        k(f'buffer_load_dwordx4 {vr(vM,4)}, v{vG0}, {WS}, s{sM} offen sc1')
        k(f'buffer_load_dwordx4 {vr(vM+4,4)}, v{vG1}, {WS}, s{sM} offen sc1')
    k('s_waitcnt vmcnt(1)')
    NU = OPT['nu2']
    k(f's_add_u32 s{sT0}, s{sX}, {4096 - UF_SEG}')
    for j in range(8-NU, 8): k(ldu(j))
    gl()
    for x in sw[:16-2*NU]: k(x)
    for r in range(0, 32, 2): k(f'v_mov_b64 {vr(vA+r,2)}, 0')
    for j in range(2, 7): k(f'v_add_u32 v{vG+j}, s{50+j}, v{vL16}')
    k(f's_add_u32 s45, s{sSTEP}, 1')
    k(f's_lshr_b32 s45, s45, 2')
    k(f's_lshl_b32 s45, s45, 7')
    k(f's_add_u32 s45, s45, {flag(F_U)}')
    k(f's_add_u32 s44, s43, {28*1024}')
    vm = [stum(0,0), stum(0,1), stum(1,0), stum(1,1)] + [ldu(j) for j in range(8)]
    lw(0)
    k(f's_mov_b32 s{sCNT}, 0')
    k(f's_branch {lp}w')
    k.label(lp)
    if OPT['bgs']: k(f"s_sleep {OPT['bgs']}")
    gl()
    k(f's_add_u32 s{sCNT}, s{sCNT}, 1')
    k(f's_cmp_gt_u32 s{sCNT}, s{sT2}')
    k('s_cbranch_scc1 L_fail')
    k.label(lp + 'w')
    k('s_waitcnt vmcnt(1)')
    k(f'v_max3_u32 v{vC}, v{vM}, v{vM+1}, v{vM+2}')
    k('s_waitcnt vmcnt(0)')
    k(f'v_max3_u32 v{vC+1}, v{vM+4}, v{vM+5}, v{vM+6}')
    k(f'v_max3_u32 v{vC}, v{vC}, v{vM+3}, v{vM+7}')
    k(f'v_max_u32 v{vC}, v{vC}, v{vC+1}')
    k(f'v_cmp_eq_u32 vcc, -1, v{vC}')
    k(f's_cbranch_vccnz {lp}')
    stamp(k, 0, stamps)
    k.ds(f'ds_write_b128 v{vG0}, {vr(vM,4)} offset:{LM}')
    k.ds(f'ds_write_b128 v{vG1}, {vr(vM+4,4)} offset:{LM}')
    ls, l2 = k.newlabel('Lbs'), k.newlabel('Lbt')
    k(f's_cmp_eq_u32 s{sSTEP}, 0')
    k(f's_cbranch_scc1 {l2}')
    k(f's_cmp_ge_u32 s{sWAVE}, 2')
    k(f's_cbranch_scc1 {ls}')
    k(f's_add_u32 s{sT0}, s{sM}, {MEMX - MEM - MEM_S}')
    k(f'buffer_store_dword v{vKeep}, v{vL4}, {WS}, s{sT0} offen sc1')
    k(f's_branch {l2}')
    k.label(ls)
    k(f's_cmp_eq_u32 s{sWAVE}, 2')
    k(f's_cselect_b32 s{sT0}, s{sSTEP}, 0')
    k(f's_cmp_le_u32 s{sT0}, 1')
    k(f's_cbranch_scc1 {l2}')
    k(f's_lshl_b32 s{sT0}, s{sSTEP}, 7')
    k(f's_add_u32 s{sT0}, s{sT0}, {flag(F_UM) - 256}')
    k('s_mov_b64 exec, 1')
    k(f'v_mov_b32 v{vC}, 1')
    k(f'buffer_atomic_add v{vC}, off, {WS}, s{sT0}')
    k('s_mov_b64 exec, -1')
    k.label(l2)
    k(f'buffer_load_dword v{vFl}, off, {WS}, s45 sc1')
    for x in vm[:4]: k(x)
    def acc(gi): return vA + 4*gi
    def cvt(gi, h):
        hh, T = gi>>1, gi&1
        d = vUm + 8*T + 4*(hh>>1) + 2*h + (hh&1)
        a = acc(gi) + 2*h
        k(f'v_cvt_pk_bf16_f32 v{d}, v{a}, v{a+1}')
    def lw1(gi, f):
        k.ds(f'ds_read_b128 {vr(vTm+16*(gi&1)+4*f,4)}, v{vWL} offset:{gi*4096+f*1024}', f'w{gi}')
    def MB(gi, j):
        w = xr(W(gi,j),8) if j < 5 else vr(vTm + 16*(gi&1) + 8*(j-5), 8)
        k(f'v_smfmac_f32_16x16x64_bf16 {vr(acc(gi),4)}, {vr(vM+4*j,4)}, {w}, v{vIdx}')
    for n in range(16):
        MB(n & 7, n >> 3)
        if n == 5:
            k.wds0(); k('s_barrier')
        if 5 <= n < 10:
            k.ds(f'ds_read_b128 {vr(vM+4*(n-3),4)}, v{vG+n-3} offset:{LM}', f'm{n-3}')
    for gi in range(8):
        for j in range(2, 7):
            if gi == 0: k.wds(f'm{j}')
            if j == 5: k.wds(f'w{gi}')
            MB(gi, j)
            if gi < 7 and j in (2, 3, 5, 6): lw1(gi+1, {2:0, 3:1, 5:2, 6:3}[j])
            if gi >= 1 and j == 4: cvt(gi-1, 0); cvt(gi-1, 1)
    k(f's_mov_b32 s43, s{sUM}')
    k(f's_add_u32 s{sUM}, s{sUM}, {UM_SEG}')
    for x in sw[16-2*NU:]: k(x)
    k.nop(max(0, 6 - 2*NU))
    cvt(7, 0); cvt(7, 1)
    for r in range(0, 8, 2): k(f'v_mov_b64 {vr(vD+r,2)}, 0')
    k(f's_cmp_ge_u32 s{sSTEP}, {NSTEP}')
    k('s_cbranch_scc1 L_B_end')
    k('s_waitcnt vmcnt(4)')
    if OPT['u0'] == 'cold':
        l0, l1 = k.newlabel('Lu0'), k.newlabel('Lu1')
        k(f's_cmp_eq_u32 s{sSTEP}, 0')
        k(f's_cbranch_scc1 {l0}')
        k.label(l1)
        main = k.lines; k.lines = []
        k.label(l0)
        load_u(0)
        k('s_waitcnt vmcnt(0)')
        for x in sw: k(x)
        k(f'v_mov_b32 v{vFl}, 32')
        k(f's_branch {l1}')
        k.cold += k.lines; k.lines = main
    if wait_u:
        lu = k.newlabel('Lnu')
        k(f'v_cmp_le_u32 vcc, 32, v{vFl}')
        k(f's_cbranch_vccnz {lu}')
        wait_u(k, 45, 32, vC)
        k.label(lu)
    k(f's_add_u32 s{sT0}, s{sX}, 4096')
    for j in range(8-NU): k(ldu(j))
    k(f's_add_u32 s{sX}, s{sX}, {UF_SEG}')
    stamp(k, 1, stamps)
    if OPT['sleepB']: k(f"s_sleep {OPT['sleepB']}")
    def issue(st):
        P = vP[st]
        return [f'buffer_load_dwordx4 {vr(P,4)}, v{vPT}, {WS}, s{sP} offen sc1',
                f'buffer_load_dwordx4 {vr(P+4,4)}, v{vPT}, {WS}, s{sP} offen offset:1024 sc1',
                f'buffer_load_dwordx4 {vr(P+8,4)}, v{vPM}, {WS}, s{sP} offen sc1']
    def checks(st):
        P = vP[st]
        return [(2, [f'v_max3_u32 v{vC}, v{P}, v{P+1}, v{P+2}']),
                (1, [f'v_max3_u32 v{vC+1}, v{P+4}, v{P+5}, v{P+6}', f'v_max3_u32 v{vC}, v{vC}, v{P+3}, v{P+7}']),
                (0, [f'v_max3_u32 v{vC+1}, v{vC+1}, v{P+8}, v{P+9}', f'v_max3_u32 v{vC}, v{vC}, v{P+10}, v{P+11}',
                     f'v_max_u32 v{vC}, v{vC}, v{vC+1}', f'v_cmp_eq_u32 vcc, -1, v{vC}'])]
    def body(st):
        P = vP[st]
        stamp(k, 2, stamps)
        for j in range(3):
            for T in range(2):
                b = vr(vUi + 16*j + 8*T, 8) if j < 2 else vr(vUm + 8*T, 8)
                k(f'v_smfmac_f32_16x16x64_bf16 {vr(vD+4*T,4)}, {vr(P+4*j,4)}, {b}, v{vIdx}')
    if OPT['bp2']: poll2(k, issue, checks, body, 'Lpp', OPT['stag'])
    else:
        lp = k.newlabel('Lp1')
        k(f's_mov_b32 s{sCNT}, 0')
        k.label(lp)
        for x in issue(0): k(x)
        k(f's_add_u32 s{sCNT}, s{sCNT}, 1')
        k(f's_cmp_gt_u32 s{sCNT}, s{sT2}')
        k('s_cbranch_scc1 L_fail')
        for rel, ins in checks(0):
            k(f's_waitcnt vmcnt({rel})')
            for x in ins: k(x)
        k(f's_cbranch_vccnz {lp}')
        body(0)
    k(f's_add_u32 s{sM}, s{sM}, {MEM_S}')
    k(f's_add_u32 s{sP}, s{sP}, {PB_S}')
    k.nop(6)
    for r in range(4): k(f'v_permlane32_swap_b32 v{vD+r}, v{vD+4+r}')
    k(f'v_pk_add_f32 {vr(vD,2)}, {vr(vD,2)}, {vr(vD+4,2)}')
    k(f'v_pk_add_f32 {vr(vD+2,2)}, {vr(vD+2,2)}, {vr(vD+6,2)}')
    k.ds(f'ds_write_b128 v{vRW}, {vr(vD,4)}')
    k.wds0()
    k('s_barrier')
    k(f's_cmp_ge_u32 s{sWAVE}, 2')
    k('s_cbranch_scc1 L_B_skip')
    R = vG
    for w in range(4): k.ds(f'ds_read2_b32 {vr(R+2*w,2)}, v{vRR} offset0:{0} offset1:{4}' if w == 0 else
                            f'ds_read2_b32 {vr(R+2*w,2)}, v{vRR2+w-1} offset0:0 offset1:4', f'r{w}')
    k(f's_cmp_eq_u32 s{sMODE}, 1')
    k.wds('r1')
    k(f'v_pk_add_f32 {vr(R,2)}, {vr(R,2)}, {vr(R+2,2)}')
    k.wds('r3')
    k(f'v_pk_add_f32 {vr(R+4,2)}, {vr(R+4,2)}, {vr(R+6,2)}')
    k(f'v_pk_add_f32 {vr(R,2)}, {vr(R,2)}, {vr(R+4,2)}')
    k(f'v_cvt_pk_bf16_f32 v{R}, v{R}, v{R+1}')
    k(f'v_min_u32 v{R}, -2, v{R}')
    publish(k, f'buffer_store_dword v{R}, v{vL4}, {WS}, s{sM} offen')
    k(f'v_mov_b32 v{vKeep}, v{R}')
    k(f's_cmp_lg_u32 s{sSTEP}, {NSTEP-1}')
    k('s_cbranch_scc1 L_B_skip2')
    k(f's_add_u32 s{sT0}, s{sM}, {MEMX - MEM - MEM_S}')
    k(f'buffer_store_dword v{R}, v{vL4}, {WS}, s{sT0} offen sc1')
    k('s_branch L_B_skip2')
    k.label('L_B_skip')
    k('s_waitcnt vmcnt(0)')
    k.label('L_B_skip2')
    stamp(k, 3, stamps)
    k('s_barrier')
    k(f's_add_u32 s{sSTEP}, s{sSTEP}, 1')
    if stamps: k(f's_add_u32 s{sST}, s{sST}, 16')
    k('s_branch L_B_loop')
    k.label('L_B_end')
    edge(k, stamps, 8)
    k(f's_add_u32 s44, s43, {28*1024}')
    for x in vm[:4]: k(x)
    k('s_waitcnt vmcnt(0)')
    k('s_barrier')
    k(f's_cmp_lg_u32 s{sWAVE}, 0')
    k('s_cbranch_scc1 L_exit')
    k('s_mov_b64 exec, 3')
    k(f'v_mov_b32 v{vC}, 1')
    k(f'v_lshlrev_b32 v{vC+1}, 7, v{vLane}')
    k(f's_mov_b32 s{sT0}, {flag(F_UM + 62)}')
    k(f'buffer_atomic_add v{vC}, v{vC+1}, {WS}, s{sT0} offen')
    k('s_endpgm')
    k.flush_cold()

def role_P(k, wait_u=None):
    WS = f's[{SWS}:{SWS+3}]'
    vLane, vU, vX, vS, vD = 1, 2, 3, 4, 8
    D = OPT['pfd']; st = OPT['pfs']; sh = 7 if st == 128 else 6
    k.label('L_roleP')
    k(f's_mov_b32 s{sT2}, {POLL_LIMIT}')
    k(f's_sub_u32 s{sID}, s{sROLE}, 30')
    k(f's_lshl_b32 s{sID}, s{sID}, 2')
    k(f's_add_u32 s{sID}, s{sID}, s{sWAVE}')
    k(f'v_and_b32 v{vLane}, 63, v0')
    k(f'v_lshlrev_b32 v{vU}, {sh}, v{vLane}')
    k(f's_mul_i32 s40, s{sID}, {UF_SEG//8}')
    k(f'v_add_u32 v{vU}, s40, v{vU}')
    k(f'v_min_u32 v{vX}, 55, v{vLane}')
    k(f'v_lshlrev_b32 v{vX}, 6, v{vX}')
    k(f's_mul_i32 s40, s{sID}, 3584')
    k(f'v_add_u32 v{vX}, s40, v{vX}')
    k(f'v_min_u32 v{vS}, 19, v{vLane}')
    k(f'v_lshlrev_b32 v{vS}, 6, v{vS}')
    k(f's_mul_i32 s40, s{sID}, 1280')
    k(f'v_add_u32 v{vS}, s40, v{vS}')
    k(f'v_min_u32 v{vS+1}, 13, v{vLane}')
    k(f'v_lshlrev_b32 v{vS+1}, 6, v{vS+1}')
    k(f's_mul_i32 s40, s{sID}, 896')
    k(f'v_add_u32 v{vS+1}, s40, v{vS+1}')
    k(f's_mov_b32 s{sSTEP}, 0')
    k(f's_mov_b32 s{sX}, {UF}')
    k(f's_mov_b32 s{sUM}, {XNS}')
    k(f's_mov_b32 s{sP}, {PB}')
    k(f's_mov_b32 s{sM}, {MEM + MEM_S}')
    k(f's_mov_b32 s41, {MEM - D*MEM_S}')
    k.label('L_P_loop')
    k(f's_cmp_le_u32 s{sSTEP}, {D}')
    k('s_cbranch_scc1 L_P_go')
    k(f's_mov_b32 s{sCNT}, 0')
    k.label('L_P_wait')
    k(f'buffer_load_dword v{vD}, off, {WS}, s41 sc1')
    k(f's_add_u32 s{sCNT}, s{sCNT}, 1')
    k(f's_cmp_gt_u32 s{sCNT}, s{sT2}')
    k('s_cbranch_scc1 L_fail')
    k('s_waitcnt vmcnt(0)')
    k(f'v_cmp_eq_u32 vcc, -1, v{vD}')
    k('s_cbranch_vccz L_P_go')
    k('s_sleep 2')
    k('s_branch L_P_wait')
    k.label('L_P_go')
    k(f'buffer_load_dword v{vD+1}, v{vS}, {WS}, s{sP} offen sc1')
    k(f'buffer_load_dword v{vD+2}, v{vS+1}, {WS}, s{sM} offen sc1')
    k(f'buffer_load_dword v{vD+3}, v{vX}, {WS}, s{sUM} offen sc1')
    n = 0 if OPT['apf'] else UF_SEG // 8 // (64*st)
    k(f's_mov_b32 s{sT0}, s{sX}')
    for j in range(n):
        k(f'buffer_load_dword v{vD+4+j}, v{vU}, {WS}, s{sT0} offen sc1')
        k(f's_add_u32 s{sT0}, s{sT0}, {64*st}')
    k(f's_add_u32 s{sX}, s{sX}, {UF_SEG}')
    k(f's_add_u32 s{sUM}, s{sUM}, 28672')
    k(f's_add_u32 s{sP}, s{sP}, {PB_S}')
    k(f's_add_u32 s{sM}, s{sM}, {MEM_S}')
    k(f's_add_u32 s41, s41, {MEM_S}')
    k(f's_add_u32 s{sSTEP}, s{sSTEP}, 1')
    k(f's_cmp_lt_u32 s{sSTEP}, {NSTEP}')
    k('s_cbranch_scc1 L_P_loop')
    k('s_waitcnt vmcnt(0)')
    k('s_endpgm')
```

```python
from asmlib import *
from layout import *

class K(Asm):
    def __init__(self):
        super().__init__()
        self.dsq = []; self.cold = []; self.vmq = []
    def ds(self, text, tag=None):
        self(text); self.dsq.append(tag)
    def wds(self, tag):
        if tag not in self.dsq: return
        idx = max(i for i, t in enumerate(self.dsq) if t == tag)
        n = len(self.dsq) - 1 - idx
        assert n <= 15
        self(f's_waitcnt lgkmcnt({n})')
        self.dsq = self.dsq[idx+1:]
    def wds0(self):
        self('s_waitcnt lgkmcnt(0)'); self.dsq = []
    def vm(self, text, tag=None):
        self(text); self.vmq.append(tag)
    def wvm(self, *tags, extra=''):
        idx = max([i for i, t in enumerate(self.vmq) if t in tags], default=-1)
        if idx < 0:
            if extra: self('s_waitcnt ' + extra)
            return
        n = len(self.vmq) - 1 - idx
        assert n <= 63
        self(f's_waitcnt vmcnt({n}) {extra}')
        self.vmq = self.vmq[idx+1:]
    def flush_cold(self):
        for l in self.cold: self(l)
        self.cold = []

SWS, SDBG = 4, 8
sROLE, sWAVE, sSTEP, sMODE, sM, sP, sX, sUM, sCNT = 12, 13, 14, 15, 16, 17, 18, 19, 20
sT0, sT1, sT2 = 21, 22, 23
sMASK8 = 24
sID = 26
sST = 28
sTM = 30
POLL_LIMIT = 400000
NSTEP = 63
OPT = dict(sa='late', sb='early', um='sc1', uf='sc1', sleepA=0, sleepB=0, stampmask=15, rt=0, barA=1, barB=1, prefP=0, pfd=2, pfs=128, upos='early', ud=2, apf=1, nb=8, stag=1, wpos=1, rsp=1, s1pos=0, upre=8, uneed=32, ust='sc1', rot=1, k1st='sc1', uwin=2, k1d=2, ap2=0, stagA=2, gv=0, k1late=0, cpf=0, sm2=0, tm=1, bp2=1, k1pf=0, k1ln='sc1', u0='cold', align=0, w64=0, p64=0, kpos='post', kdel=7, nu2=4, bgs=0, vsl=120, usl=120, psl=16, msl=120)

def stamp(k, idx, on):
    if not on or not (OPT['stampmask'] >> idx) & 1: return
    k(('s_memrealtime' if OPT['rt'] else 's_memtime') + f' s[{sTM}:{sTM+1}]')
    k.wds0()
    k(f'v_mov_b32 v0, s{sTM}')
    k(f'buffer_store_dword v0, off, s[{SWS}:{SWS+3}], s{sST} offset:{idx*4}')

def edge(k, on, off):
    if not on or OPT['rt']: return
    lp = k.newlabel('Led')
    k('s_memrealtime s[70:71]')
    k('s_waitcnt lgkmcnt(0)')
    k.label(lp)
    k('s_memrealtime s[72:73]')
    k('s_memtime s[74:75]')
    k('s_waitcnt lgkmcnt(0)')
    k('s_cmp_eq_u32 s72, s70')
    k(f's_cbranch_scc1 {lp}')
    k('v_mov_b32 v0, s72')
    k(f'buffer_store_dword v0, off, s[{SWS}:{SWS+3}], s76 offset:{off}')
    k('v_mov_b32 v0, s74')
    k(f'buffer_store_dword v0, off, s[{SWS}:{SWS+3}], s76 offset:{off+4}')

def publish(k, text):
    ls, ld = k.newlabel('Lslow'), k.newlabel('Lpub')
    k(f's_cbranch_scc0 {ls}')
    k(text)
    k.label(ld)
    k.cold += [ls + ':', text + ' sc1', f's_branch {ld}']

def gather_mem(k, vG, vOff0, vOff1, vL0, vL1, vT):
    lp, dn = k.newlabel('Lgm'), k.newlabel('Lgd')
    k(f's_mov_b32 s{sCNT}, 0')
    k.label(lp)
    k(f'buffer_load_dwordx4 {vr(vG,4)}, v{vOff0}, s[{SWS}:{SWS+3}], s{sM} offen sc1')
    k(f'buffer_load_dwordx4 {vr(vG+4,4)}, v{vOff1}, s[{SWS}:{SWS+3}], s{sM} offen sc1')
    k(f's_add_u32 s{sCNT}, s{sCNT}, 1')
    k(f's_cmp_gt_u32 s{sCNT}, s{sT2}')
    k('s_cbranch_scc1 L_fail')
    k('s_waitcnt vmcnt(1)')
    k(f'v_max3_u32 v{vT}, v{vG}, v{vG+1}, v{vG+2}')
    k('s_waitcnt vmcnt(0)')
    k(f'v_max3_u32 v{vT+1}, v{vG+4}, v{vG+5}, v{vG+6}')
    k(f'v_max3_u32 v{vT}, v{vT}, v{vG+3}, v{vG+7}')
    k(f'v_max_u32 v{vT}, v{vT}, v{vT+1}')
    k(f'v_cmp_eq_u32 vcc, -1, v{vT}')
    k(f's_cbranch_vccnz {lp}')
    if vL0 is None: return
    k.ds(f'ds_write_b128 v{vL0}, {vr(vG,4)}')
    k.ds(f'ds_write_b128 v{vL1}, {vr(vG+4,4)}')
    k.wds0()
    k('s_barrier')

def wait_mode(k, vT):
    lp = k.newlabel('Lwm')
    k(f's_mov_b32 s{sCNT}, 0')
    k(f'v_and_b32 v{vT+1}, 15, v0')
    k(f'v_lshlrev_b32 v{vT+1}, 2, v{vT+1}')
    k.label(lp)
    k(f'buffer_load_dword v{vT}, v{vT+1}, s[{SDBG}:{SDBG+3}], 0 offen offset:32 sc1')
    k(f's_add_u32 s{sCNT}, s{sCNT}, 1')
    k(f's_cmp_gt_u32 s{sCNT}, s{sT2}')
    k('s_cbranch_scc1 L_fail')
    k('s_waitcnt vmcnt(0)')
    k(f'v_cmp_eq_u32 vcc, 32, v{vT}')
    for rot in (8, 4, 2, 1):
        k.nop(2)
        k(f'v_add_u32_dpp v{vT}, v{vT}, v{vT} row_ror:{rot} row_mask:0xf bank_mask:0xf')
    k.nop(1)
    k(f'v_readfirstlane_b32 s{sMODE}, v{vT}')
    k('s_nop 3')
    k(f's_cmp_lt_u32 s{sMODE}, 32')
    k(f's_cbranch_scc1 {lp}')
    k('s_cmp_lg_u64 vcc, 0')
    k(f's_cselect_b32 s{sMODE}, 1, 2')

def common_lane_setup(k, vLane, vL16, vG0, vG1, vIdx, vT):
    k(f'v_and_b32 v{vLane}, 63, v0')
    k(f'v_lshlrev_b32 v{vL16}, 4, v{vLane}')
    if vG0 is not None:
        k(f's_lshl_b32 s{sT0}, s{sWAVE}, 10')
        k(f'v_add_u32 v{vG0}, s{sT0}, v{vL16}')
        k(f's_add_u32 s{sT0}, s{sWAVE}, 4')
        k(f's_min_u32 s{sT0}, s{sT0}, 6')
        k(f's_lshl_b32 s{sT0}, s{sT0}, 10')
        k(f'v_add_u32 v{vG1}, s{sT0}, v{vL16}')
    k(f'v_and_b32 v{vT}, 8, v{vLane}')
    k(f'v_mov_b32 v{vIdx}, 0x4444')
    k(f'v_mov_b32 v{vT+1}, 0xeeee')
    k(f'v_cmp_ne_u32 vcc, 0, v{vT}')
    k('s_nop 1')
    k(f'v_cndmask_b32 v{vIdx}, v{vIdx}, v{vT+1}, vcc')
    k(f's_mov_b32 s{sT2}, {POLL_LIMIT}')

def poll2(k, issue, checks, body, name, stag):
    nl = len(issue(0))
    l0, d0, d1, dn = [k.newlabel(name + x) for x in ('lp', 'd0', 'd1', 'dn')]
    k(f's_mov_b32 s{sCNT}, 0')
    for x in issue(0): k(x)
    k(f"s_sleep {stag}")
    k.label(l0)
    for st, dl in ((0, d0), (1, d1)):
        for x in issue(1 - st): k(x)
        if st == 0:
            k(f's_add_u32 s{sCNT}, s{sCNT}, 1')
            k(f's_cmp_gt_u32 s{sCNT}, s{sT2}')
            k('s_cbranch_scc1 L_fail')
        for rel, ins in checks(st):
            k(f's_waitcnt vmcnt({nl + rel})')
            for x in ins: k(x)
        if st == 0: k(f's_cbranch_vccz {d0}')
        else:       k(f's_cbranch_vccnz {l0}x')
    saved = list(k.dsq)
    body(1)
    k(f's_branch {dn}')
    k.label(l0 + 'x')
    k(f's_branch {l0}')
    k.label(d0)
    end = list(k.dsq); k.dsq = saved
    body(0)
    assert k.dsq == end
    k.label(dn)

def role_A(k, stamps=False):
    vLane, vL16, vIdx = 1, 2, 3
    vKey, vKeyS, vMK, vMKS, vQW, vQR, vSW, vSR, vPO, vVal = 4, 5, 6, 7, 8, 9, 10, 11, 12, 13
    vT = 14
    vM = 16
    vQ = 44
    vKT = 72
    vKM = 100
    vX = 114
    vG0, vG1 = 118, 119
    def W(lt, kb):
        i = lt*7 + kb
        return (256 + 8*i) if i < 32 else (120 + 8*(i-32))
    LM, LSP, LQS = 0, 7168, 20480
    k.label('L_roleA')
    k(f's_mov_b32 s{sID}, s{sROLE}')
    common_lane_setup(k, vLane, vL16, vG0, vG1, vIdx, vX)
    k(f's_lshr_b32 s{sT0}, s{sWAVE}, 1')
    k(f's_mul_i32 s{sT0}, s{sT0}, 14')
    k(f's_and_b32 s{sT1}, s{sWAVE}, 1')
    k(f's_add_u32 s33, s{sT0}, 6')
    k(f's_add_u32 s33, s33, s{sT1}')
    k(f's_lshl_b32 s34, s{sT1}, 3')
    k(f's_add_u32 s32, s{sT0}, s34')
    k(f's_mul_i32 s35, s{sID}, {28*14*1024}')
    k(f's_add_u32 s35, s35, {WTA}')
    k(f's_mul_i32 s36, s32, {14*1024}')
    k(f's_add_u32 s36, s36, s35')
    k(f's_mul_i32 s37, s33, {14*1024}')
    k(f's_add_u32 s37, s37, s35')
    for j in range(7):
        k(f's_add_u32 s{50+j}, s{sWAVE}, {(4*j) % 7}')
        k(f's_sub_u32 s40, s{50+j}, 7')
        k(f's_cmp_ge_u32 s{50+j}, 7')
        k(f's_cselect_b32 s{50+j}, s40, s{50+j}')
        k(f's_lshl_b32 s{50+j}, s{50+j}, 10')
    n = 0
    for lt in range(7):
        sb = 36 if lt < 6 else 37
        for j in range(7):
            k(f's_lshl_b32 s40, s{50+j}, 1')
            k(f's_add_u32 s40, s40, s{sb}')
            for f in range(2):
                k(f'buffer_load_dwordx4 {xr(W(lt, j) + 4*f,4)}, v{vL16}, s[{SWS}:{SWS+3}], s40 offen offset:{f*1024}')
                n += 1
                if n % 16 == 0: k('s_waitcnt vmcnt(40)')
        k(f's_add_u32 s{sb}, s{sb}, 14336')
    k(f'v_add_u32 v{vG1}, s51, v{vL16}')
    t = vX
    g, i = vQ, vQ+1
    k(f'v_lshrrev_b32 v{g}, 4, v{vLane}')
    k(f'v_and_b32 v{i}, 15, v{vLane}')
    k(f's_lshr_b32 s38, s32, 1')
    k(f's_lshr_b32 s39, s33, 1')
    k(f's_lshl_b32 s40, s38, 10')
    k(f'v_add_u32 v{vKey}, s40, v{vL16}')
    k(f's_lshl_b32 s40, s39, 10')
    k(f's_add_u32 s40, s40, s34')
    k(f'v_add_u32 v{vKeyS}, s40, v{vL16}')
    k(f'v_lshrrev_b32 v{t}, 1, v{g}')
    k(f'v_lshlrev_b32 v{t}, 8, v{t}')
    k(f'v_and_b32 v{t+1}, 7, v{i}')
    k(f'v_lshlrev_b32 v{t+1}, 4, v{t+1}')
    k(f'v_add_u32 v{t}, v{t}, v{t+1}')
    k(f'v_and_b32 v{t+1}, 1, v{g}')
    k(f'v_lshlrev_b32 v{t+1}, 7, v{t+1}')
    k(f'v_add_u32 v{t}, v{t}, v{t+1}')
    k(f's_lshl_b32 s40, s38, 9')
    k(f'v_add_u32 v{vMK}, s40, v{t}')
    k(f's_lshl_b32 s40, s39, 9')
    k(f's_add_u32 s40, s40, s34')
    k(f'v_add_u32 v{vMKS}, s40, v{t}')
    k(f's_lshl_b32 s40, s{sWAVE}, 10')
    k(f's_add_u32 s40, s40, {LQS}')
    k(f'v_lshrrev_b32 v{t}, 2, v{i}')
    k(f'v_add_u32 v{t}, v{t}, v{g}')
    k(f'v_and_b32 v{t}, 3, v{t}')
    k(f'v_lshlrev_b32 v{t}, 3, v{t}')
    k(f'v_lshlrev_b32 v{t+1}, 5, v{i}')
    k(f'v_add3_u32 v{vQW}, v{t}, v{t+1}, s40')
    k(f'v_lshrrev_b32 v{t}, 2, v{vLane}')
    k(f'v_lshlrev_b32 v{t}, 5, v{t}')
    k(f'v_add_u32 v{t+1}, v{vLane}, v{g}')
    k(f'v_and_b32 v{t+1}, 3, v{t+1}')
    k(f'v_lshlrev_b32 v{t+1}, 3, v{t+1}')
    k(f'v_add3_u32 v{vQR}, v{t}, v{t+1}, s40')
    k(f's_mul_i32 s40, s{sWAVE}, 3264')
    k(f's_add_u32 s40, s40, {LSP}')
    k(f'v_lshlrev_b32 v{t}, 4, v{i}')
    k(f'v_mul_u32_u24 v{t+1}, 272, v{g}')
    k(f'v_add3_u32 v{vSW}, v{t}, v{t+1}, s40')
    k(f'v_subrev_u32 v{t}, 12, v{i}')
    k(f'v_cmp_le_u32 vcc, 12, v{i}')
    k('s_nop 1')
    k(f'v_cndmask_b32 v{t}, v{i}, v{t}, vcc')
    k(f'v_lshrrev_b32 v{t+1}, 5, v{vLane}')
    k(f's_lshl_b32 s40, s{sWAVE}, 1')
    k(f'v_add_u32 v{t+1}, s40, v{t+1}')
    k(f'v_and_b32 v{t+2}, 1, v{g}')
    k(f'v_lshl_add_u32 v{t+3}, v{t+2}, 3, v{t+1}')
    k(f'v_lshlrev_b32 v{t+3}, 4, v{t+3}')
    k(f'v_mul_u32_u24 v{vSR}, 272, v{t}')
    k(f'v_add_u32 v{vSR}, v{vSR}, v{t+3}')
    if LSP: k(f'v_add_u32 v{vSR}, {LSP}, v{vSR}')
    k(f's_and_b32 s42, s{sID}, 1')
    k(f's_lshl_b32 s42, s42, 3')
    k(f'v_add_u32 v{t+1}, s42, v{t+1}')
    k(f'v_and_b32 v{vPO}, 1, v{i}')
    k(f'v_lshlrev_b32 v{vPO}, 3, v{vPO}')
    k(f'v_lshl_add_u32 v{vPO}, v{t+1}, 4, v{vPO}')
    k(f'v_bfe_u32 v{t}, v{i}, 1, 1')
    k(f'v_lshl_add_u32 v{vPO}, v{t}, 8, v{vPO}')
    k(f'v_bfe_u32 v{t}, v{i}, 3, 1')
    k(f'v_lshl_add_u32 v{vPO}, v{t}, 9, v{vPO}')
    k(f's_lshr_b32 s41, s{sID}, 1')
    k(f's_lshl_b32 s40, s41, 10')
    k(f'v_add_u32 v{vPO}, s40, v{vPO}')
    k(f'v_lshlrev_b32 v{t}, 3, v{i}')
    k(f'v_lshl_add_u32 v{t}, v{t+1}, 4, v{t}')
    k(f's_lshl_b32 s40, s41, 8')
    k(f's_add_u32 s40, s40, 8192')
    k(f'v_add_u32 v{t}, s40, v{t}')
    k(f'v_mov_b32 v{t+3}, 0x40000000')
    k(f'v_cmp_le_u32 vcc, 2, v{i}')
    k('s_nop 1')
    k(f'v_cndmask_b32 v{t}, v{t}, v{t+3}, vcc')
    k(f'v_cmp_le_u32 vcc, 4, v{i}')
    k('s_nop 1')
    k(f'v_cndmask_b32 v{vPO}, v{t}, v{vPO}, vcc')
    k(f'v_cmp_le_u32 vcc, 12, v{i}')
    k('s_nop 1')
    k(f'v_cndmask_b32 v{vPO}, v{vPO}, v{t+3}, vcc')
    k(f'v_lshl_add_u32 v{vPO}, v{t+2}, 2, v{vPO}')
    k(f'v_mov_b32 v{vVal}, 1.0')
    k(f'v_cmp_le_u32 vcc, v{t+3}, v{vPO}')
    k('s_nop 1')
    k(f'v_cndmask_b32 v{vVal}, v{vVal}, 0, vcc')
    k(f's_mov_b32 s{sSTEP}, 0')
    k(f's_mov_b32 s{sM}, {MEM}')
    k(f's_mov_b32 s{sP}, {PB}')
    k(f's_mov_b32 s{sX}, {XNS}')
    k(f's_lshl_b32 s40, s{sID}, 2')
    k(f's_add_u32 s40, s40, s{sWAVE}')
    k(f's_mul_i32 s40, s40, 7168')
    k(f'v_min_u32 v{vX}, {55*16}, v{vL16}')
    k(f'v_lshlrev_b32 v{vX}, 3, v{vX}')
    k(f'v_add_u32 v{vX}, s40, v{vX}')
    k(f"s_mov_b32 s{sUM}, {UF + OPT['ud']*UF_SEG}")
    WS = f's[{SWS}:{SWS+3}]'
    def key_list():
        L = []
        for p in range(3):
            L.append(f'buffer_load_dwordx4 {vr(vKT+8*p,4)}, v{vKey}, {WS}, s{sX} offen offset:{p*1024}')
            L.append(f'buffer_load_dwordx4 {vr(vKT+8*p+4,4)}, v{vKey}, {WS}, s46 offen offset:{p*1024}')
        L.append(f'buffer_load_dwordx2 {vr(vKT+24,2)}, v{vKeyS}, {WS}, s{sX} offen')
        L.append(f'buffer_load_dwordx2 {vr(vKT+26,2)}, v{vKeyS}, {WS}, s46 offen')
        return L
    def load_keys(keys=True):
        if keys:
            for x in key_list(): k(x)
        k(f's_add_u32 s{sX}, s{sX}, 28672')
        k(f's_add_u32 s46, s{sX}, 14336')
        k(f's_add_u32 s{sT0}, s{sSTEP}, {1 + OPT["ud"]}')
        k(f's_lshr_b32 s{sT0}, s{sT0}, 2')
        k(f's_lshl_b32 s{sT0}, s{sT0}, 7')
        k(f's_add_u32 s{sT0}, s{sT0}, {flag(F_U)}')
        k(f'buffer_load_dword v{vX+2}, off, {WS}, s{sT0} sc1')
    if OPT['tm']:
        k(f'v_lshlrev_b32 v{vQ+2}, 2, v{g}')
        k(f'v_sub_u32 v{vQ+2}, v{i}, v{vQ+2}')
        k(f'v_and_b32 v{vQ+3}, 1, v{vQ+2}')
        k(f'v_lshlrev_b32 v{vQ+3}, 4, v{vQ+3}')
        k(f'v_mov_b32 v{vLane}, 0x3f80')
        k(f'v_lshlrev_b32 v{vLane}, v{vQ+3}, v{vLane}')
        k(f'v_cmp_gt_u32 vcc, 4, v{vQ+2}')
        k(f'v_cmp_lt_u32 s[48:49], 1, v{vQ+2}')
        k('s_nop 0')
        k(f'v_cndmask_b32 v{vLane}, 0, v{vLane}, vcc')
    k(f's_add_u32 s46, s{sX}, 14336')
    k(f's_mov_b32 s{sSTEP}, -1')
    load_keys()
    k(f's_mov_b32 s{sSTEP}, 0')
    wait_mode(k, vT)
    k(f'v_mov_b32 v{vX+3}, 0x40000000')
    if stamps: k(f's_add_u32 s76, s{sST}, 0x20000')
    edge(k, stamps, 0)
    k.label('L_A_loop')
    for r in range(0, 28, 2): k(f'v_mov_b64 {vr(vQ+r,2)}, 0')
    vAd = vKM + 6
    for j in range(2, 7): k(f'v_add_u32 v{vAd+j}, s{50+j}, v{vL16}')
    def Mx(lt, kb, src):
        return f'v_smfmac_f32_16x16x64_bf16 {vr(vQ+4*lt,4)}, {vr(src,4)}, {xr(W(lt,kb),8)}, v{vIdx}'
    def M(lt, kb): return Mx(lt, kb, vM+4*kb)
    mk = [f'ds_read_b128 {vr(vKM+4*p,4)}, v{vMK} offset:{LM+p*512}' for p in range(3)]
    mk.append(f'ds_read_b64 {vr(vKM+12,2)}, v{vMKS} offset:{LM}')
    sets = [vM, vKM]
    def issue(st):
        return [f'buffer_load_dwordx4 {vr(sets[st],4)}, v{vG0}, {WS}, s{sM} offen sc1',
                f'buffer_load_dwordx4 {vr(sets[st]+4,4)}, v{vG1}, {WS}, s{sM} offen sc1']
    def checks(st):
        G = sets[st]
        return [(1, [f'v_max3_u32 v{vT}, v{G}, v{G+1}, v{G+2}']),
                (0, [f'v_max3_u32 v{vT+1}, v{G+4}, v{G+5}, v{G+6}', f'v_max3_u32 v{vT}, v{vT}, v{G+3}, v{G+7}',
                     f'v_max_u32 v{vT}, v{vT}, v{vT+1}', f'v_cmp_eq_u32 vcc, -1, v{vT}'])]
    NB = OPT['nb']
    def body(st):
        G = sets[st]
        stamp(k, 0, stamps)
        wrs = [f'ds_write_b128 v{vG0}, {vr(G,4)} offset:{LM}', f'ds_write_b128 v{vG1}, {vr(G+4,4)} offset:{LM}']
        seq = [(lt, j) for j in range(2) for lt in range(7)]
        for n, (lt, j) in enumerate(seq):
            k(Mx(lt, j, G + 4*j))
            if OPT['w64'] == 0 and n < 2: k.ds(wrs[n])
            if OPT['w64'] == 1 and n < 4: k.ds(f'ds_write_b64 v{vG0 if n < 2 else vG1}, {vr(G+2*n,2)} offset:{LM + 8*(n&1)}')
            if n == 4: k(f'v_cmp_le_u32 vcc, {OPT["uneed"]}, v{vX+2}')
            if n == 5: k('s_nop 0'); k(f'v_cndmask_b32 v{vX+1}, v{vX+3}, v{vX}, vcc')
            if n == NB - 1:
                k.wds0(); k('s_barrier')
            if NB - 1 <= n < NB + 4:
                jj = n - (NB - 1) + 2
                k.ds(f'ds_read_b128 {vr(vM+4*jj,4)}, v{vAd+jj} offset:{LM}', f'm{jj}')
            if n == NB + 5: k(f'buffer_load_dword v0, v{vX+1}, {WS}, s{sUM} offen sc1')
    if OPT['ap2']:
        poll2(k, issue, checks, body, 'Lga', OPT['stagA'])
    else:
        gather_mem(k, vM, vG0, vG1, None, None, vT)
        body(0)
    def cvt(lt, h):
        k(f'v_cvt_pk_bf16_f32 v{vQ+4*lt+h}, v{vQ+4*lt+2*h}, v{vQ+4*lt+2*h+1}')
    def wr(lt):
        k.ds(f'ds_write_b64 v{vQW}, {vr(vQ+4*lt,2)} offset:{512*(lt&1)}')
    def tr(p, h):
        k.ds(f'ds_read_b64_tr_b16 {vr(vQ+8*p+2*h,2)}, v{vQR} offset:{512*h}', f'q{p}')
    vSt = [vM, vM+4, vQ+4]
    def S(p, t):
        q = vQ + 8*p
        c = '0' if p == 0 else vr(vSt[t],4)
        if p < 3:
            a = vKM+4*p if t == 0 else vKT+8*p+4*(t-1)
            k(f'v_mfma_f32_16x16x32_bf16 {vr(vSt[t],4)}, {vr(a,4)}, {vr(q,4)}, {c}')
        else:
            a = vKM+12 if t == 0 else vKT+24+2*(t-1)
            k(f'v_mfma_f32_16x16x16_bf16 {vr(vSt[t],4)}, {vr(a,2)}, {vr(q,2)}, {c}')
    for lt in range(7):
        for j in range(2, 7):
            if lt == 0: k.wds(f'm{j}')
            k(M(lt, j))
            if OPT['tm'] and lt == 1 and j == 2: k(f'v_cndmask_b32 v{vT}, v{vLane}, 0, s[48:49]')
            if OPT['tm'] and lt == 1 and j == 3: k(f'v_cndmask_b32 v{vT+1}, 0, v{vLane}, s[48:49]')
            if lt == 0 and j == 6:
                k('s_waitcnt vmcnt(1)')
                for x in mk: k.ds(x, 'mk')
            if lt >= 1:
                if j == 4: cvt(lt-1, 0)
                if j == 5: cvt(lt-1, 1)
                if j == 6:
                    wr(lt-1)
                    if (lt-1) & 1: tr((lt-1)//2, 0); tr((lt-1)//2, 1)
        if lt == (4 if OPT['s1pos'] == 0 else 3):
            k.wds('q0')
            for t in range(3): S(0, t)
        if lt == 5 and OPT['s1pos'] == 1:
            k.wds('q1')
            for t in range(3): S(1, t)
    if OPT['s1pos'] == 0:
        k.wds('q1')
        for t in range(3): S(1, t)
        cvt(6, 0); cvt(6, 1)
        if OPT['tm']:
            k.wds('q2')
            k.nop(1)
            k(f'v_mfma_f32_16x16x16_bf16 {vr(vQ+12,4)}, {vr(vQ+24,2)}, {vr(vT,2)}, 0')
            for t in range(3): S(2, t)
            k(f'v_cvt_pk_bf16_f32 v{vQ+24}, v{vQ+12}, v{vQ+13}')
            k(f'v_cvt_pk_bf16_f32 v{vQ+25}, v{vQ+14}, v{vQ+15}')
            k.nop(2)
        else:
            wr(6); tr(3, 0)
            k.wds('q2')
            for t in range(3): S(2, t)
    else:
        k.nop(8)
        cvt(6, 0); cvt(6, 1); wr(6); tr(3, 0)
        k.wds('q2')
        for t in range(3): S(2, t)
    k.wds('q3')
    for t in range(3): S(3, t)
    for t in range(3):
        k.nop(2 if (t == 0 or OPT['p64'] == 0) else 1)
        if OPT['p64'] == 0: k.ds(f'ds_write_b128 v{vSW}, {vr(vSt[t],4)} offset:{1088*t}')
        else:
            k.ds(f'ds_write_b64 v{vSW}, {vr(vSt[t],2)} offset:{1088*t}')
            k.ds(f'ds_write_b64 v{vSW}, {vr(vSt[t]+2,2)} offset:{1088*t+8}')
    k.wds0()
    k('s_barrier')
    stamp(k, 1, stamps)
    mark = len(k.lines)
    R = vQ+8
    for w in range(4): k.ds(f'ds_read_b128 {vr(R+4*w,4)}, v{vSR} offset:{w*3264}', f'r{w}')
    k(f's_cmp_eq_u32 s{sMODE}, 1')
    k.wds('r1')
    k(f'v_pk_add_f32 {vr(R,2)}, {vr(R,2)}, {vr(R+4,2)}')
    k(f'v_pk_add_f32 {vr(R+2,2)}, {vr(R+2,2)}, {vr(R+6,2)}')
    k.wds('r2')
    k(f'v_pk_add_f32 {vr(R,2)}, {vr(R,2)}, {vr(R+8,2)}')
    k(f'v_pk_add_f32 {vr(R+2,2)}, {vr(R+2,2)}, {vr(R+10,2)}')
    k.wds('r3')
    k(f'v_pk_add_f32 {vr(R,2)}, {vr(R,2)}, {vr(R+12,2)}')
    k(f'v_pk_add_f32 {vr(R+2,2)}, {vr(R+2,2)}, {vr(R+14,2)}')
    k.nop(2)
    k(f'v_permlane16_swap_b32 v{R}, v{R+2}')
    k(f'v_permlane16_swap_b32 v{R+1}, v{R+3}')
    X = R+4; m = R+6; t = R+8
    k(f'v_pk_add_f32 {vr(X,2)}, {vr(R,2)}, {vr(R+2,2)}')
    def allred(op, m):
        for rot in (8, 4, 2, 1):
            k.nop(2)
            k(f'{op}_dpp v{m}, v{m}, v{m} row_ror:{rot} row_mask:0xf bank_mask:0xf')
        k(f'v_mov_b32 v{t}, v{m}')
        k.nop(2)
        k(f'v_permlane16_swap_b32 v{m}, v{t}')
        k(f'{op} v{m}, v{m}, v{t}')
    if OPT['sm2'] == 0:
        k(f'v_max_f32 v{m}, v{X}, v{X+1}')
        allred('v_max_f32', m)
        k(f'v_pk_add_f32 {vr(X,2)}, {vr(X,2)}, {vr(m,2)} op_sel_hi:[1,0] neg_lo:[0,1] neg_hi:[0,1]')
        k(f'v_exp_f32 v{X}, v{X}')
        k(f'v_exp_f32 v{X+1}, v{X+1}')
        k.nop(1)
        k(f'v_add_f32 v{m}, v{X}, v{X+1}')
        k(f'v_mul_f32 v{m}, v{m}, v{vVal}')
        allred('v_add_f32', m)
        k(f'v_rcp_f32 v{m}, v{m}')
        k.nop(1)
        k(f'v_pk_mul_f32 {vr(X,2)}, {vr(X,2)}, {vr(m,2)} op_sel_hi:[1,0]')
    else:
        l_, M, sc = R+10, R+12, R+14
        def dpp(op, r, rot): k(f'{op}_dpp v{r}, v{r}, v{r} row_ror:{rot} row_mask:0xf bank_mask:0xf')
        k(f'v_max_f32 v{m}, v{X}, v{X+1}')
        for rot in (8, 4, 2, 1):
            k.nop(2); dpp('v_max_f32', m, rot)
        k(f'v_pk_add_f32 {vr(X,2)}, {vr(X,2)}, {vr(m,2)} op_sel_hi:[1,0] neg_lo:[0,1] neg_hi:[0,1]')
        k(f'v_mov_b32 v{M}, v{m}')
        k(f'v_exp_f32 v{X}, v{X}')
        k(f'v_mov_b32 v{t}, v{m}')
        k(f'v_exp_f32 v{X+1}, v{X+1}')
        k.nop(1)
        k(f'v_add_f32 v{l_}, v{X}, v{X+1}')
        k(f'v_permlane16_swap_b32 v{M}, v{t}')
        k(f'v_mul_f32 v{l_}, v{l_}, v{vVal}')
        k(f'v_max_f32 v{M}, v{M}, v{t}')
        k(f'v_sub_f32 v{sc}, v{m}, v{M}')
        dpp('v_add_f32', l_, 8)
        k(f'v_exp_f32 v{sc}, v{sc}')
        k.nop(1)
        dpp('v_add_f32', l_, 4)
        k(f'v_pk_mul_f32 {vr(X,2)}, {vr(X,2)}, {vr(sc,2)} op_sel_hi:[1,0]')
        k.nop(1)
        dpp('v_add_f32', l_, 2)
        k.nop(2)
        dpp('v_add_f32', l_, 1)
        k(f'v_mul_f32 v{l_}, v{l_}, v{sc}')
        k(f'v_mov_b32 v{t}, v{l_}')
        k.nop(2)
        k(f'v_permlane16_swap_b32 v{l_}, v{t}')
        k(f'v_add_f32 v{l_}, v{l_}, v{t}')
        k(f'v_rcp_f32 v{l_}, v{l_}')
        k.nop(1)
        k(f'v_pk_mul_f32 {vr(X,2)}, {vr(X,2)}, {vr(l_,2)} op_sel_hi:[1,0]')
    k(f'v_cvt_pk_bf16_f32 v{X}, v{X}, v{X+1}')
    k(f'v_min_u32 v{X}, -2, v{X}')
    if OPT['kpos'] == 'soft':
        body_ = k.lines[mark:]; k.lines = k.lines[:mark]; L = key_list()
        for x in body_:
            if x == 's_nop 1' and L: k(L.pop(0)); k('s_nop 0')
            else: k(x)
        assert not L
    publish(k, f'buffer_store_dword v{X}, v{vPO}, {WS}, s{sP} offen')
    stamp(k, 2, stamps)
    k('s_barrier')
    if OPT['kdel']: k(f"s_sleep {OPT['kdel']}")
    load_keys(OPT['kpos'] != 'soft')
    if OPT['sleepA']: k(f"s_sleep {OPT['sleepA']}")
    k(f's_add_u32 s{sUM}, s{sUM}, {UF_SEG}')
    k(f's_add_u32 s{sM}, s{sM}, {MEM_S}')
    k(f's_add_u32 s{sP}, s{sP}, {PB_S}')
    if stamps: k(f's_add_u32 s{sST}, s{sST}, 16')
    k(f's_add_u32 s{sSTEP}, s{sSTEP}, 1')
    k(f's_cmp_lt_u32 s{sSTEP}, {NSTEP}')
    k('s_cbranch_scc1 L_A_loop')
    edge(k, stamps, 8)
    k('s_waitcnt vmcnt(0)')
    k('s_endpgm')
    k.flush_cold()

def role_B(k, stamps=False, wait_u=None):
    WS = f's[{SWS}:{SWS+3}]'
    vLane, vL16, vG0, vG1, vIdx = 1, 2, 3, 4, 5
    vWL, vPT, vPM, vRW, vRR, vL4 = 6, 7, 8, 9, 10, 11
    vC = 12
    vM = 16
    vA = 44
    vU = 76
    vTm = 108
    vUi = 140
    vUm = 172
    vRR2 = 188
    vKeep, vFl = 191, 15
    vD = vTm
    vG = vTm + 16
    vP = [vM, vA]
    def W(gi, kb):
        i = gi*5 + kb
        return (256 + 8*i) if i < 32 else (192 + 8*(i-32))
    LM, LRED, LW = 0, 7168, 16384
    k.label('L_roleB')
    k(f's_sub_u32 s{sID}, s{sROLE}, 16')
    common_lane_setup(k, vLane, vL16, vG0, vG1, vIdx, vC)
    k(f's_lshl_b32 s{sT0}, s{sWAVE}, 2')
    k(f's_mul_i32 s{sT0}, s{sT0}, 28')
    k(f's_lshl_b32 s{sT1}, s{sID}, 1')
    k(f's_add_u32 s{sT0}, s{sT0}, s{sT1}')
    k(f's_mul_i32 s35, s{sT0}, 14336')
    k(f's_add_u32 s35, s35, {WTB}')
    k(f's_lshl_b32 s37, s{sWAVE}, 15')
    k(f's_add_u32 s37, s37, {LW}')
    k(f'v_add_u32 v{vWL}, s37, v{vL16}')
    for j in range(7):
        k(f's_add_u32 s{50+j}, s{sWAVE}, {(4*j) % 7}')
        k(f's_sub_u32 s40, s{50+j}, 7')
        k(f's_cmp_ge_u32 s{50+j}, 7')
        k(f's_cselect_b32 s{50+j}, s40, s{50+j}')
        k(f's_lshl_b32 s{50+j}, s{50+j}, 10')
    k(f'v_add_u32 v{vG1}, s51, v{vL16}')
    for gi in range(8):
        k(f's_add_u32 s36, s35, {(gi>>1)*28*14336 + (gi&1)*14336}')
        for j in range(7):
            k(f's_lshl_b32 s40, s{50+j}, 1')
            k(f's_add_u32 s40, s40, s36')
            if j >= 5:
                k(f's_add_u32 s38, s37, {gi*4096 + (j-5)*2048}')
                k(f's_mov_b32 m0, s38')
                k('s_nop 0')
            for f in range(2):
                if j < 5: k(f'buffer_load_dwordx4 {xr(W(gi, j) + 4*f,4)}, v{vL16}, {WS}, s40 offen offset:{f*1024}')
                else:     k(f'buffer_load_dwordx4 v{vL16}, {WS}, s40 offen offset:{f*1024} lds')
        k('s_waitcnt vmcnt(40)')
    g, i = vA, vA+1
    vT = vC
    k(f'v_lshrrev_b32 v{g}, 4, v{vLane}')
    k(f'v_and_b32 v{i}, 15, v{vLane}')
    k(f's_lshl_b32 s40, s{sWAVE}, 11')
    k(f'v_add_u32 v{vPT}, s40, v{vL16}')
    k(f'v_lshrrev_b32 v{vT}, 1, v{g}')
    k(f'v_lshlrev_b32 v{vT}, 8, v{vT}')
    k(f'v_lshl_add_u32 v{vT}, v{i}, 4, v{vT}')
    k(f's_lshl_b32 s40, s{sWAVE}, 9')
    k(f's_add_u32 s40, s40, 8192')
    k(f'v_add_u32 v{vPM}, s40, v{vT}')
    k(f's_lshl_b32 s40, s{sWAVE}, 10')
    k(f's_add_u32 s40, s40, {LRED}')
    k(f'v_add_u32 v{vRW}, s40, v{vL16}')
    k(f'v_and_b32 v{vT}, 3, v{vLane}')
    k(f'v_lshlrev_b32 v{vT}, 6, v{vT}')
    k(f'v_lshrrev_b32 v{vT+1}, 5, v{vLane}')
    k(f'v_lshl_add_u32 v{vT}, v{vT+1}, 5, v{vT}')
    k(f'v_lshrrev_b32 v{vT+1}, 2, v{vLane}')
    k(f'v_and_b32 v{vT+2}, 3, v{vT+1}')
    k(f'v_lshl_add_u32 v{vT}, v{vT+2}, 2, v{vT}')
    k(f'v_bfe_u32 v{vT+2}, v{vLane}, 4, 1')
    k(f'v_lshl_add_u32 v{vT}, v{vT+2}, 8, v{vT}')
    k(f's_and_b32 s40, s{sWAVE}, 1')
    k(f's_lshl_b32 s40, s40, 9')
    k(f's_add_u32 s40, s40, {LRED}')
    k(f'v_add_u32 v{vRR}, s40, v{vT}')
    for w in range(1, 4): k(f'v_add_u32 v{vRR2+w-1}, {1024*w}, v{vRR}')
    k(f's_lshl_b32 s40, s{sID}, 1')
    k(f's_and_b32 s41, s{sWAVE}, 1')
    k(f's_add_u32 s40, s40, s41')
    k(f's_lshl_b32 s40, s40, 8')
    k(f'v_lshlrev_b32 v{vL4}, 2, v{vLane}')
    k(f'v_add_u32 v{vL4}, s40, v{vL4}')
    k(f's_mov_b32 s{sSTEP}, 0')
    k(f's_mov_b32 s{sM}, {MEM}')
    k(f's_mov_b32 s{sP}, {PB}')
    k(f's_lshl_b32 s{sX}, s{sID}, 15')
    k(f's_lshl_b32 s40, s{sWAVE}, 13')
    k(f's_add_u32 s{sX}, s{sX}, s40')
    k(f's_add_u32 s{sX}, s{sX}, {UF}')
    k(f's_mul_i32 s{sUM}, s{sWAVE}, {2*28*1024}')
    k(f's_lshl_b32 s40, s{sID}, 11')
    k(f's_add_u32 s{sUM}, s{sUM}, s40')
    k(f's_add_u32 s{sUM}, s{sUM}, {UM}')
    k(f's_mov_b32 s43, s{sUM}')
    def ldu(j):
        hh, T = j >> 1, j & 1
        r = vU + 16*(hh>>1) + 8*T + 4*(hh&1)
        return f'buffer_load_dwordx4 {vr(r,4)}, v{vL16}, {WS}, s{sX if j<4 else sT0} offen offset:{(j&3)*1024} ' + OPT['uf']
    def stum(u, T):
        return f'buffer_store_dwordx4 {vr(vUm+8*T+4*u,4)}, v{vL16}, {WS}, s{43 if u==0 else 44} offen offset:{T*1024} ' + OPT['um']
    def lw(gi):
        b = vTm + 16*(gi&1)
        for f in range(4): k.ds(f'ds_read_b128 {vr(b+4*f,4)}, v{vWL} offset:{gi*4096+f*1024}', f'w{gi}')
    def load_u(ahead):
        if wait_u:
            lu = k.newlabel('Lnu')
            k(f's_add_u32 s{sT0}, s{sSTEP}, {ahead}')
            k(f's_and_b32 s{sT1}, s{sT0}, 3')
            k(f's_cbranch_scc1 {lu}')
            k(f's_lshl_b32 s{sT0}, s{sT0}, 5')
            k(f's_add_u32 s{sT0}, s{sT0}, {flag(F_U)}')
            wait_u(k, sT0, 32, vC, sleep=1)
            k.label(lu)
        k(f's_add_u32 s{sT0}, s{sX}, 4096')
        for j in range(8): k(ldu(j))
        k(f's_add_u32 s{sX}, s{sX}, {UF_SEG}')
    if OPT['u0'] == 'pro': load_u(0)
    wait_mode(k, vC)
    sw = []
    for o in range(4):
        r = vU + 8*o
        for e in range(4):
            sel = e & 1
            sw.append(f'v_pk_mov_b32 {vr(vUi+8*o+2*e,2)}, {vr(r+(e&2),2)}, {vr(r+4+(e&2),2)} op_sel:[{sel},{sel}]')
    if stamps: k(f's_add_u32 s76, s{sST}, 0x20000')
    edge(k, stamps, 0)
    k.label('L_B_loop')
    lp = k.newlabel('Lgm')
    def gl():
        k(f'buffer_load_dwordx4 {vr(vM,4)}, v{vG0}, {WS}, s{sM} offen sc1')
        k(f'buffer_load_dwordx4 {vr(vM+4,4)}, v{vG1}, {WS}, s{sM} offen sc1')
    k('s_waitcnt vmcnt(1)')
    NU = OPT['nu2']
    k(f's_add_u32 s{sT0}, s{sX}, {4096 - UF_SEG}')
    for j in range(8-NU, 8): k(ldu(j))
    gl()
    for x in sw[:16-2*NU]: k(x)
    for r in range(0, 32, 2): k(f'v_mov_b64 {vr(vA+r,2)}, 0')
    for j in range(2, 7): k(f'v_add_u32 v{vG+j}, s{50+j}, v{vL16}')
    k(f's_add_u32 s45, s{sSTEP}, 1')
    k(f's_lshr_b32 s45, s45, 2')
    k(f's_lshl_b32 s45, s45, 7')
    k(f's_add_u32 s45, s45, {flag(F_U)}')
    k(f's_add_u32 s44, s43, {28*1024}')
    vm = [stum(0,0), stum(0,1), stum(1,0), stum(1,1)] + [ldu(j) for j in range(8)]
    lw(0)
    k(f's_mov_b32 s{sCNT}, 0')
    k(f's_branch {lp}w')
    k.label(lp)
    if OPT['bgs']: k(f"s_sleep {OPT['bgs']}")
    gl()
    k(f's_add_u32 s{sCNT}, s{sCNT}, 1')
    k(f's_cmp_gt_u32 s{sCNT}, s{sT2}')
    k('s_cbranch_scc1 L_fail')
    k.label(lp + 'w')
    k('s_waitcnt vmcnt(1)')
    k(f'v_max3_u32 v{vC}, v{vM}, v{vM+1}, v{vM+2}')
    k('s_waitcnt vmcnt(0)')
    k(f'v_max3_u32 v{vC+1}, v{vM+4}, v{vM+5}, v{vM+6}')
    k(f'v_max3_u32 v{vC}, v{vC}, v{vM+3}, v{vM+7}')
    k(f'v_max_u32 v{vC}, v{vC}, v{vC+1}')
    k(f'v_cmp_eq_u32 vcc, -1, v{vC}')
    k(f's_cbranch_vccnz {lp}')
    stamp(k, 0, stamps)
    k.ds(f'ds_write_b128 v{vG0}, {vr(vM,4)} offset:{LM}')
    k.ds(f'ds_write_b128 v{vG1}, {vr(vM+4,4)} offset:{LM}')
    ls, l2 = k.newlabel('Lbs'), k.newlabel('Lbt')
    k(f's_cmp_eq_u32 s{sSTEP}, 0')
    k(f's_cbranch_scc1 {l2}')
    k(f's_cmp_ge_u32 s{sWAVE}, 2')
    k(f's_cbranch_scc1 {ls}')
    k(f's_add_u32 s{sT0}, s{sM}, {MEMX - MEM - MEM_S}')
    k(f'buffer_store_dword v{vKeep}, v{vL4}, {WS}, s{sT0} offen sc1')
    k(f's_branch {l2}')
    k.label(ls)
    k(f's_cmp_eq_u32 s{sWAVE}, 2')
    k(f's_cselect_b32 s{sT0}, s{sSTEP}, 0')
    k(f's_cmp_le_u32 s{sT0}, 1')
    k(f's_cbranch_scc1 {l2}')
    k(f's_lshl_b32 s{sT0}, s{sSTEP}, 7')
    k(f's_add_u32 s{sT0}, s{sT0}, {flag(F_UM) - 256}')
    k('s_mov_b64 exec, 1')
    k(f'v_mov_b32 v{vC}, 1')
    k(f'buffer_atomic_add v{vC}, off, {WS}, s{sT0}')
    k('s_mov_b64 exec, -1')
    k.label(l2)
    k(f'buffer_load_dword v{vFl}, off, {WS}, s45 sc1')
    for x in vm[:4]: k(x)
    def acc(gi): return vA + 4*gi
    def cvt(gi, h):
        hh, T = gi>>1, gi&1
        d = vUm + 8*T + 4*(hh>>1) + 2*h + (hh&1)
        a = acc(gi) + 2*h
        k(f'v_cvt_pk_bf16_f32 v{d}, v{a}, v{a+1}')
    def lw1(gi, f):
        k.ds(f'ds_read_b128 {vr(vTm+16*(gi&1)+4*f,4)}, v{vWL} offset:{gi*4096+f*1024}', f'w{gi}')
    def MB(gi, j):
        w = xr(W(gi,j),8) if j < 5 else vr(vTm + 16*(gi&1) + 8*(j-5), 8)
        k(f'v_smfmac_f32_16x16x64_bf16 {vr(acc(gi),4)}, {vr(vM+4*j,4)}, {w}, v{vIdx}')
    for n in range(16):
        MB(n & 7, n >> 3)
        if n == 5:
            k.wds0(); k('s_barrier')
        if 5 <= n < 10:
            k.ds(f'ds_read_b128 {vr(vM+4*(n-3),4)}, v{vG+n-3} offset:{LM}', f'm{n-3}')
    for gi in range(8):
        for j in range(2, 7):
            if gi == 0: k.wds(f'm{j}')
            if j == 5: k.wds(f'w{gi}')
            MB(gi, j)
            if gi < 7 and j in (2, 3, 5, 6): lw1(gi+1, {2:0, 3:1, 5:2, 6:3}[j])
            if gi >= 1 and j == 4: cvt(gi-1, 0); cvt(gi-1, 1)
    k(f's_mov_b32 s43, s{sUM}')
    k(f's_add_u32 s{sUM}, s{sUM}, {UM_SEG}')
    for x in sw[16-2*NU:]: k(x)
    k.nop(max(0, 6 - 2*NU))
    cvt(7, 0); cvt(7, 1)
    for r in range(0, 8, 2): k(f'v_mov_b64 {vr(vD+r,2)}, 0')
    k(f's_cmp_ge_u32 s{sSTEP}, {NSTEP}')
    k('s_cbranch_scc1 L_B_end')
    k('s_waitcnt vmcnt(4)')
    if OPT['u0'] == 'cold':
        l0, l1 = k.newlabel('Lu0'), k.newlabel('Lu1')
        k(f's_cmp_eq_u32 s{sSTEP}, 0')
        k(f's_cbranch_scc1 {l0}')
        k.label(l1)
        main = k.lines; k.lines = []
        k.label(l0)
        load_u(0)
        k('s_waitcnt vmcnt(0)')
        for x in sw: k(x)
        k(f'v_mov_b32 v{vFl}, 32')
        k(f's_branch {l1}')
        k.cold += k.lines; k.lines = main
    if wait_u:
        lu = k.newlabel('Lnu')
        k(f'v_cmp_le_u32 vcc, 32, v{vFl}')
        k(f's_cbranch_vccnz {lu}')
        wait_u(k, 45, 32, vC)
        k.label(lu)
    k(f's_add_u32 s{sT0}, s{sX}, 4096')
    for j in range(8-NU): k(ldu(j))
    k(f's_add_u32 s{sX}, s{sX}, {UF_SEG}')
    stamp(k, 1, stamps)
    if OPT['sleepB']: k(f"s_sleep {OPT['sleepB']}")
    def issue(st):
        P = vP[st]
        return [f'buffer_load_dwordx4 {vr(P,4)}, v{vPT}, {WS}, s{sP} offen sc1',
                f'buffer_load_dwordx4 {vr(P+4,4)}, v{vPT}, {WS}, s{sP} offen offset:1024 sc1',
                f'buffer_load_dwordx4 {vr(P+8,4)}, v{vPM}, {WS}, s{sP} offen sc1']
    def checks(st):
        P = vP[st]
        return [(2, [f'v_max3_u32 v{vC}, v{P}, v{P+1}, v{P+2}']),
                (1, [f'v_max3_u32 v{vC+1}, v{P+4}, v{P+5}, v{P+6}', f'v_max3_u32 v{vC}, v{vC}, v{P+3}, v{P+7}']),
                (0, [f'v_max3_u32 v{vC+1}, v{vC+1}, v{P+8}, v{P+9}', f'v_max3_u32 v{vC}, v{vC}, v{P+10}, v{P+11}',
                     f'v_max_u32 v{vC}, v{vC}, v{vC+1}', f'v_cmp_eq_u32 vcc, -1, v{vC}'])]
    def body(st):
        P = vP[st]
        stamp(k, 2, stamps)
        for j in range(3):
            for T in range(2):
                b = vr(vUi + 16*j + 8*T, 8) if j < 2 else vr(vUm + 8*T, 8)
                k(f'v_smfmac_f32_16x16x64_bf16 {vr(vD+4*T,4)}, {vr(P+4*j,4)}, {b}, v{vIdx}')
    if OPT['bp2']: poll2(k, issue, checks, body, 'Lpp', OPT['stag'])
    else:
        lp = k.newlabel('Lp1')
        k(f's_mov_b32 s{sCNT}, 0')
        k.label(lp)
        for x in issue(0): k(x)
        k(f's_add_u32 s{sCNT}, s{sCNT}, 1')
        k(f's_cmp_gt_u32 s{sCNT}, s{sT2}')
        k('s_cbranch_scc1 L_fail')
        for rel, ins in checks(0):
            k(f's_waitcnt vmcnt({rel})')
            for x in ins: k(x)
        k(f's_cbranch_vccnz {lp}')
        body(0)
    k(f's_add_u32 s{sM}, s{sM}, {MEM_S}')
    k(f's_add_u32 s{sP}, s{sP}, {PB_S}')
    k.nop(6)
    for r in range(4): k(f'v_permlane32_swap_b32 v{vD+r}, v{vD+4+r}')
    k(f'v_pk_add_f32 {vr(vD,2)}, {vr(vD,2)}, {vr(vD+4,2)}')
    k(f'v_pk_add_f32 {vr(vD+2,2)}, {vr(vD+2,2)}, {vr(vD+6,2)}')
    k.ds(f'ds_write_b128 v{vRW}, {vr(vD,4)}')
    k.wds0()
    k('s_barrier')
    k(f's_cmp_ge_u32 s{sWAVE}, 2')
    k('s_cbranch_scc1 L_B_skip')
    R = vG
    for w in range(4): k.ds(f'ds_read2_b32 {vr(R+2*w,2)}, v{vRR} offset0:{0} offset1:{4}' if w == 0 else
                            f'ds_read2_b32 {vr(R+2*w,2)}, v{vRR2+w-1} offset0:0 offset1:4', f'r{w}')
    k(f's_cmp_eq_u32 s{sMODE}, 1')
    k.wds('r1')
    k(f'v_pk_add_f32 {vr(R,2)}, {vr(R,2)}, {vr(R+2,2)}')
    k.wds('r3')
    k(f'v_pk_add_f32 {vr(R+4,2)}, {vr(R+4,2)}, {vr(R+6,2)}')
    k(f'v_pk_add_f32 {vr(R,2)}, {vr(R,2)}, {vr(R+4,2)}')
    k(f'v_cvt_pk_bf16_f32 v{R}, v{R}, v{R+1}')
    k(f'v_min_u32 v{R}, -2, v{R}')
    publish(k, f'buffer_store_dword v{R}, v{vL4}, {WS}, s{sM} offen')
    k(f'v_mov_b32 v{vKeep}, v{R}')
    k(f's_cmp_lg_u32 s{sSTEP}, {NSTEP-1}')
    k('s_cbranch_scc1 L_B_skip2')
    k(f's_add_u32 s{sT0}, s{sM}, {MEMX - MEM - MEM_S}')
    k(f'buffer_store_dword v{R}, v{vL4}, {WS}, s{sT0} offen sc1')
    k('s_branch L_B_skip2')
    k.label('L_B_skip')
    k('s_waitcnt vmcnt(0)')
    k.label('L_B_skip2')
    stamp(k, 3, stamps)
    k('s_barrier')
    k(f's_add_u32 s{sSTEP}, s{sSTEP}, 1')
    if stamps: k(f's_add_u32 s{sST}, s{sST}, 16')
    k('s_branch L_B_loop')
    k.label('L_B_end')
    edge(k, stamps, 8)
    k(f's_add_u32 s44, s43, {28*1024}')
    for x in vm[:4]: k(x)
    k('s_waitcnt vmcnt(0)')
    k('s_barrier')
    k(f's_cmp_lg_u32 s{sWAVE}, 0')
    k('s_cbranch_scc1 L_exit')
    k('s_mov_b64 exec, 3')
    k(f'v_mov_b32 v{vC}, 1')
    k(f'v_lshlrev_b32 v{vC+1}, 7, v{vLane}')
    k(f's_mov_b32 s{sT0}, {flag(F_UM + 62)}')
    k(f'buffer_atomic_add v{vC}, v{vC+1}, {WS}, s{sT0} offen')
    k('s_endpgm')
    k.flush_cold()

def role_P(k, wait_u=None):
    WS = f's[{SWS}:{SWS+3}]'
    vLane, vU, vX, vS, vD = 1, 2, 3, 4, 8
    D = OPT['pfd']; st = OPT['pfs']; sh = 7 if st == 128 else 6
    k.label('L_roleP')
    k(f's_mov_b32 s{sT2}, {POLL_LIMIT}')
    k(f's_sub_u32 s{sID}, s{sROLE}, 30')
    k(f's_lshl_b32 s{sID}, s{sID}, 2')
    k(f's_add_u32 s{sID}, s{sID}, s{sWAVE}')
    k(f'v_and_b32 v{vLane}, 63, v0')
    k(f'v_lshlrev_b32 v{vU}, {sh}, v{vLane}')
    k(f's_mul_i32 s40, s{sID}, {UF_SEG//8}')
    k(f'v_add_u32 v{vU}, s40, v{vU}')
    k(f'v_min_u32 v{vX}, 55, v{vLane}')
    k(f'v_lshlrev_b32 v{vX}, 6, v{vX}')
    k(f's_mul_i32 s40, s{sID}, 3584')
    k(f'v_add_u32 v{vX}, s40, v{vX}')
    k(f'v_min_u32 v{vS}, 19, v{vLane}')
    k(f'v_lshlrev_b32 v{vS}, 6, v{vS}')
    k(f's_mul_i32 s40, s{sID}, 1280')
    k(f'v_add_u32 v{vS}, s40, v{vS}')
    k(f'v_min_u32 v{vS+1}, 13, v{vLane}')
    k(f'v_lshlrev_b32 v{vS+1}, 6, v{vS+1}')
    k(f's_mul_i32 s40, s{sID}, 896')
    k(f'v_add_u32 v{vS+1}, s40, v{vS+1}')
    k(f's_mov_b32 s{sSTEP}, 0')
    k(f's_mov_b32 s{sX}, {UF}')
    k(f's_mov_b32 s{sUM}, {XNS}')
    k(f's_mov_b32 s{sP}, {PB}')
    k(f's_mov_b32 s{sM}, {MEM + MEM_S}')
    k(f's_mov_b32 s41, {MEM - D*MEM_S}')
    if OPT['cpf']:
        k('s_getpc_b64 s[44:45]')
        k.label('L_P_pc')
        k('s_sub_u32 s44, s44, L_P_pc-L_roleA')
        k('s_subb_u32 s45, s45, 0')
        k(f's_lshl_b32 s40, s{sID}, 12')
        k(f'v_lshlrev_b32 v20, 6, v{vLane}')
        k('v_add_u32 v20, s40, v20')
        k('v_min_u32 v20, L_P_pc-L_roleA, v20')
        k('v_mov_b32 v21, s45')
        k('v_add_co_u32 v20, vcc, s44, v20')
        k('s_nop 1')
        k('v_addc_co_u32 v21, vcc, 0, v21, vcc')
        k('global_load_dword v22, v[20:21], off')
    k.label('L_P_loop')
    k(f's_cmp_le_u32 s{sSTEP}, {D}')
    k('s_cbranch_scc1 L_P_go')
    k(f's_mov_b32 s{sCNT}, 0')
    k.label('L_P_wait')
    k(f'buffer_load_dword v{vD}, off, {WS}, s41 sc1')
    k(f's_add_u32 s{sCNT}, s{sCNT}, 1')
    k(f's_cmp_gt_u32 s{sCNT}, s{sT2}')
    k('s_cbranch_scc1 L_fail')
    k('s_waitcnt vmcnt(0)')
    k(f'v_cmp_eq_u32 vcc, -1, v{vD}')
    k('s_cbranch_vccz L_P_go')
    k('s_sleep 2')
    k('s_branch L_P_wait')
    k.label('L_P_go')
    k(f'buffer_load_dword v{vD+1}, v{vS}, {WS}, s{sP} offen sc1')
    k(f'buffer_load_dword v{vD+2}, v{vS+1}, {WS}, s{sM} offen sc1')
    k(f'buffer_load_dword v{vD+3}, v{vX}, {WS}, s{sUM} offen sc1')
    n = 0 if OPT['apf'] else UF_SEG // 8 // (64*st)
    k(f's_mov_b32 s{sT0}, s{sX}')
    for j in range(n):
        k(f'buffer_load_dword v{vD+4+j}, v{vU}, {WS}, s{sT0} offen sc1')
        k(f's_add_u32 s{sT0}, s{sT0}, {64*st}')
    k(f's_add_u32 s{sX}, s{sX}, {UF_SEG}')
    k(f's_add_u32 s{sUM}, s{sUM}, 28672')
    k(f's_add_u32 s{sP}, s{sP}, {PB_S}')
    k(f's_add_u32 s{sM}, s{sM}, {MEM_S}')
    k(f's_add_u32 s41, s41, {MEM_S}')
    k(f's_add_u32 s{sSTEP}, s{sSTEP}, 1')
    k(f's_cmp_lt_u32 s{sSTEP}, {NSTEP}')
    k('s_cbranch_scc1 L_P_loop')
    k('s_waitcnt vmcnt(0)')
    k('s_endpgm')
```

```python
from chain import K, OPT
from asmlib import *
from layout import *
import math, struct

def f32bits(x): return struct.unpack('<I', struct.pack('<f', x))[0]
PREP_GRID, PREP_BLOCK, PREP_LDS = 256, 512, 3*43008

def srd(k, s, argoff, size):
    k(f's_load_dwordx2 s[{s}:{s+1}], s[0:1], {argoff}')
    k(f's_mov_b32 s{s+2}, {size}')
    k(f's_mov_b32 s{s+3}, 0x20000')

def gen_prep(tl=False):
    k = K()
    WS = 's[4:7]'
    k(f's_cmp_ge_u32 s2, {PREP_GRID}')
    k('s_cbranch_scc1 P_exit')
    srd(k, 4, 112, WS_SIZE)
    k('v_lshrrev_b32 v1, 6, v0')
    k('v_and_b32 v2, 63, v0')
    k('v_readfirstlane_b32 s16, v1')
    if tl: k('s_memrealtime s[40:41]')
    k('s_nop 2')
    if OPT['k1pf']:
        k('s_cmp_ge_u32 s16, 4')
        k('s_cbranch_scc1 P_nopf')
        k('s_lshl_b32 s44, s16, 3')
        k('s_add_u32 s44, s44, 16')
        k('s_load_dwordx2 s[56:57], s[0:1], s44')
        k('s_mov_b32 s58, 3670016')
        k('s_mov_b32 s59, 0x20000')
        k('v_lshlrev_b32 v190, 7, v2')
        k('s_mul_i32 s44, s2, 14336')
        k('s_add_u32 s45, s44, 6144')
        k('s_waitcnt lgkmcnt(0)')
        k('s_and_b32 s57, s57, 0xffff')
        k('buffer_load_dword v191, v190, s[56:59], s44 offen')
        k('buffer_load_dword v189, v190, s[56:59], s45 offen')
        k.label('P_nopf')
    k('s_cmp_eq_u32 s16, 7')
    k('s_cbranch_scc1 P_ln')
    k('s_and_b32 s19, s2, 15')
    k('s_bfe_u32 s18, s2, 0x10005')
    k('s_lshr_b32 s20, s2, 6')
    k('s_bitcmp1_b32 s2, 4')
    k('s_cbranch_scc1 P_gB0')
    srd(k, 8, 16, 3670016); srd(k, 12, 24, 3670016)
    k('s_branch P_g1')
    k.label('P_gB0')
    srd(k, 8, 32, 3670016); srd(k, 12, 40, 3670016)
    k.label('P_g1')
    vI, vG, vL16 = 3, 4, 5
    vR, vC, vRA, vCA, vt = 6, 10, 12, 16, 18
    vRAs, vCAs = 20, 24
    k(f'v_and_b32 v{vI}, 15, v2')
    k(f'v_lshrrev_b32 v{vG}, 4, v2')
    k(f'v_lshlrev_b32 v{vL16}, 4, v2')
    k('s_mul_i32 s21, s18, 7')
    k('s_add_u32 s21, s21, s16')
    k(f'v_lshrrev_b32 v{vt}, 3, v2')
    k('s_lshl_b32 s22, s21, 5')
    k(f'v_add_u32 v{vt}, s22, v{vt}')
    k(f'v_lshlrev_b32 v{vt}, 13, v{vt}')
    k('s_lshl_b32 s22, s19, 9')
    k(f'v_add_u32 v{vt}, s22, v{vt}')
    k(f'v_and_b32 v{vt+1}, 7, v2')
    k(f'v_and_b32 v26, 1, v{vG}')
    k(f'v_xor_b32 v{vt+1}, v{vt+1}, v26')
    for q in range(4):
        k(f'v_xor_b32 v26, {2*q}, v{vt+1}')
        k(f'v_lshl_add_u32 v{vR+q}, v26, 4, v{vt}')
        if q: k(f'v_add_u32 v{vR+q}, {q*8*8192}, v{vR+q}')
    k(f'v_lshrrev_b32 v{vt}, 2, v{vI}')
    k(f'v_bfe_u32 v{vt+1}, v{vI}, 1, 1')
    k(f'v_lshl_add_u32 v{vt+1}, v{vt}, 1, v{vt+1}')
    k(f'v_xor_b32 v{vt+1}, v{vt+1}, v{vG}')
    k(f'v_lshlrev_b32 v{vt+1}, 4, v{vt+1}')
    k(f'v_lshl_add_u32 v{vt+1}, v{vt}, 10, v{vt+1}')
    k(f'v_and_b32 v{vt}, 3, v{vI}')
    k(f'v_lshl_add_u32 v{vt+1}, v{vt}, 7, v{vt+1}')
    k('s_lshl_b32 s33, s16, 12')
    k(f'v_add_u32 v{vRA}, s33, v{vt+1}')
    k(f'v_xor_b32 v{vRA+1}, 64, v{vRA}')
    k('s_lshl_b32 s22, s18, 1')
    k('s_add_u32 s22, s22, s20')
    for j in range(4):
        k(f's_add_u32 s{24+j}, s22, {j}')
        k(f's_and_b32 s{24+j}, s{24+j}, 3')
    vAcc, vOp = 28, 84
    k('s_lshl_b32 s32, s16, 11')
    k('s_add_u32 s32, s32, 28672')
    def mm(n):
        o = vOp + 36*(n&1)
        for T in range(2):
            for ct in range(7):
                a = vAcc + 28*T + 4*ct
                k(f'v_mfma_f32_16x16x32_bf16 {vr(a,4)}, {vr(o+4*T,4)}, {vr(o+8+4*ct,4)}, {"0" if n == 0 else vr(a,4)}')
    def body(gstep, rdc, cdma):
        if tl == 2: k('s_memrealtime s[46:47]')
        k('s_waitcnt lgkmcnt(0)')
        if tl == 2: k('s_memrealtime s[48:49]')
        k('s_and_b32 s5, s5, 0xffff'); k('s_and_b32 s9, s9, 0xffff'); k('s_and_b32 s13, s13, 0xffff')
        k.vmq = []
        def issue(j):
            sb = (j % 3)*43008
            k(f's_lshl_b32 s36, s{24+j}, 7')
            k(f's_mul_i32 s35, s{24+j}, {gstep}')
            for q in range(4):
                k(f's_add_u32 s34, s33, {sb + q*1024}')
                k('s_mov_b32 m0, s34')
                k('s_nop 0')
                k.vm(f'buffer_load_dwordx4 v{vR+q}, s[8:11], s36 offen lds', j)
            cdma(sb, j)
        D = OPT['k1d']
        for j in range(D): issue(j)
        if tl == 2: k('s_memrealtime s[50:51]')
        def rd(n):
            j, es = n >> 1, n & 1
            o = vOp + 36*(n&1)
            for T in range(2): k(f'ds_read_b128 {vr(o+4*T,4)}, v{vRAs+es} offset:{T*512}')
            rdc(o + 8, es)
        for n in range(9):
            j = n >> 1
            if n < 8 and n % 2 == 0:
                sb = (j % 3)*43008
                k.wvm(j, extra='lgkmcnt(0)')
                k('s_barrier')
                if j + D < 4: issue(j + D)
                if tl == 1 and j in (0, 1, 3): k(f's_memrealtime s[{46+2*((j+1)//2)}:{47+2*((j+1)//2)}]')
                for e in range(2):
                    k(f'v_add_u32 v{vRAs+e}, {sb}, v{vRA+e}')
                    k(f'v_add_u32 v{vCAs+e}, {sb}, v{vCA+e}')
            if n < 8: rd(n)
            if n > 0:
                k(f's_waitcnt lgkmcnt({0 if (n == 8 or tl) else min(15, rdc.n + 2)})')
                mm(n-1)
    k('s_bitcmp1_b32 s2, 4')
    k('s_cbranch_scc1 P_gB')
    k('s_mul_i32 s22, s20, 7')
    k('s_add_u32 s22, s22, s16')
    k('s_lshr_b32 s23, s22, 1')
    k('s_lshl_b32 s23, s23, 5')
    k('s_and_b32 s22, s22, 1')
    k('s_lshl_b32 s22, s22, 3')
    k('s_add_u32 s22, s22, s23')
    k(f'v_bfe_u32 v{vt}, v2, 4, 1')
    k(f'v_lshlrev_b32 v{vt}, 2, v{vt}')
    k(f'v_bfe_u32 v{vt+1}, v2, 5, 1')
    k(f'v_lshl_add_u32 v{vt}, v{vt+1}, 1, v{vt}')
    k(f'v_bfe_u32 v{vt+1}, v2, 3, 1')
    k(f'v_add3_u32 v{vt}, v{vt}, v{vt+1}, s22')
    k(f'v_lshlrev_b32 v{vt}, 13, v{vt}')
    k('s_lshl_b32 s22, s19, 9')
    k(f'v_add_u32 v{vt}, s22, v{vt}')
    k(f'v_and_b32 v{vt+1}, 7, v2')
    k(f'v_xor_b32 v{vt+1}, v{vt+1}, v{vG}')
    k(f'v_lshl_add_u32 v{vC}, v{vt+1}, 4, v{vt}')
    k(f'v_xor_b32 v{vt+1}, 4, v{vt+1}')
    k(f'v_lshl_add_u32 v{vC+1}, v{vt+1}, 4, v{vt}')
    k(f'v_add_u32 v{vC+1}, {16*8192}, v{vC+1}')
    k(f'v_lshrrev_b32 v{vt}, 1, v{vI}')
    k(f'v_xor_b32 v{vt}, v{vt}, v{vG}')
    k(f'v_lshlrev_b32 v{vt}, 4, v{vt}')
    k(f'v_lshl_add_u32 v{vt}, v{vI}, 7, v{vt}')
    k(f'v_add_u32 v{vCA}, 28672, v{vt}')
    k(f'v_xor_b32 v{vCA+1}, 64, v{vCA}')
    def rdA(o, es):
        for ct in range(7): k(f'ds_read_b128 {vr(o+4*ct,4)}, v{vCAs+es} offset:{ct*2048}')
    rdA.n = 7
    def dmaA(sb, j):
        for hq in range(2):
            k(f's_add_u32 s34, s32, {sb + hq*1024}')
            k('s_mov_b32 m0, s34')
            k('s_nop 0')
            k.vm(f'buffer_load_dwordx4 v{vC+hq}, s[12:15], s35 offen lds', j)
    body(128, rdA, dmaA)
    k(f's_mov_b32 s22, {f32bits(math.log2(math.e)/16):#x}')
    k(f's_mov_b32 s23, {WTA}')
    k('s_branch P_gepi')
    k.label('P_gB')
    k(f's_mov_b32 s22, {(1<<32)//14 + 1}')
    k(f'v_mul_hi_u32 v{vt}, v0, s22')
    k(f'v_mul_u32_u24 v{vt+1}, 14, v{vt}')
    k(f'v_sub_u32 v{vt+1}, v0, v{vt+1}')
    k(f'v_mul_u32_u24 v{vt}, 896, v{vt}')
    k(f'v_lshl_add_u32 v{vt}, v{vt+1}, 4, v{vt}')
    k('s_mul_i32 s22, s19, 229376')
    k('s_mul_i32 s23, s20, 224')
    k('s_add_u32 s22, s22, s23')
    k(f'v_add_u32 v{vC}, s22, v{vt}')
    k(f'v_add_u32 v{vC+1}, {32*896}, v{vC}')
    k('s_lshl_b32 s32, s16, 10')
    k('s_add_u32 s32, s32, 28672')
    k(f'v_bfe_u32 v{vt}, v2, 2, 2')
    k(f'v_lshl_add_u32 v{vt}, v{vG}, 3, v{vt}')
    k(f'v_mul_u32_u24 v{vt}, 224, v{vt}')
    k(f'v_and_b32 v{vt+1}, 3, v2')
    k(f'v_lshl_add_u32 v{vt}, v{vt+1}, 3, v{vt}')
    k(f'v_add_u32 v{vCA}, 28672, v{vt}')
    k(f'v_add_u32 v{vCA+1}, 7168, v{vCA}')
    def rdB(o, es):
        for ct in range(7):
            for hh in range(2): k(f'ds_read_b64_tr_b16 {vr(o+4*ct+2*hh,2)}, v{vCAs+es} offset:{ct*32+hh*896}')
    rdB.n = 14
    def dmaB(sb, j):
        for hq in range(2):
            k(f's_add_u32 s34, s32, {sb + hq*7168}')
            k('s_mov_b32 m0, s34')
            k('s_nop 0')
            k.vm(f'buffer_load_dwordx4 v{vC+hq}, s[12:15], s35 offen lds', j)
    body(64*896, rdB, dmaB)
    k('s_mov_b32 s22, 1.0')
    k(f's_mov_b32 s23, {WTB}')
    k.label('P_gepi')
    if tl: k('s_memrealtime s[52:53]')
    k('s_mul_i32 s24, s19, 28')
    k('s_mul_i32 s25, s20, 7')
    k('s_add_u32 s24, s24, s25')
    k('s_mul_i32 s24, s24, 14')
    k('s_add_u32 s24, s24, s21')
    k('s_lshl_b32 s24, s24, 10')
    k('s_add_u32 s24, s24, s23')
    k('s_mov_b32 s23, s22')
    for ct in range(7):
        d = vOp + 4*ct
        for T in range(2):
            a = vAcc + 28*T + 4*ct
            k(f'v_pk_mul_f32 {vr(a,2)}, {vr(a,2)}, s[22:23]')
            k(f'v_pk_mul_f32 {vr(a+2,2)}, {vr(a+2,2)}, s[22:23]')
            k(f'v_cvt_pk_bf16_f32 v{d+2*T}, v{a}, v{a+1}')
            k(f'v_cvt_pk_bf16_f32 v{d+2*T+1}, v{a+2}, v{a+3}')
        k(f'buffer_store_dwordx4 {vr(d,4)}, v{vL16}, {WS}, s24 offen ' + OPT['k1st'])
        k('s_add_u32 s24, s24, 14336')
    if tl:
        k('s_waitcnt vmcnt(0)')
        k('s_memrealtime s[42:43]')
        k('s_lshl_b32 s44, s2, 5')
        k(f's_add_u32 s44, s44, {STAMP + 0xE0000}')
        k('s_waitcnt lgkmcnt(0)')
        k('v_mov_b32 v10, s40'); k('v_mov_b32 v11, s42'); k('v_mov_b32 v12, s46'); k('v_mov_b32 v13, s48')
        k('v_mov_b32 v14, s50'); k('v_mov_b32 v15, s52')
        k(f'buffer_store_dwordx4 v[10:13], off, {WS}, s44')
        k(f'buffer_store_dwordx2 v[14:15], off, {WS}, s44 offset:16')
    k('s_endpgm')
    k.label('P_ln')
    srd(k, 8, 0, 1835008); srd(k, 12, 64, 896)
    srd(k, 28, 8, 7168)
    k('s_mov_b32 s17, s2')
    k('v_lshrrev_b32 v3, 3, v2')
    k('s_lshl_b32 s18, s17, 3')
    k('v_add_u32 v3, s18, v3')
    k('v_and_b32 v4, 7, v2')
    k('v_mul_u32_u24 v5, 896, v3')
    k('v_lshl_add_u32 v5, v4, 4, v5')
    k('v_lshlrev_b32 v6, 4, v4')
    vX, vW, vF = 16, 44, 72
    k('s_waitcnt lgkmcnt(0)')
    k('s_and_b32 s5, s5, 0xffff'); k('s_and_b32 s9, s9, 0xffff'); k('s_and_b32 s13, s13, 0xffff')
    for i in range(7): k(f'buffer_load_dwordx4 {vr(vX+4*i,4)}, v5, s[8:11], 0 offen offset:{i*128}')
    for i in range(7): k(f'buffer_load_dwordx4 {vr(vW+4*i,4)}, v6, s[12:15], 0 offen offset:{i*128}')
    k('v_lshrrev_b32 v7, 4, v3')
    k('v_mul_u32_u24 v7, 14336, v7')
    k('v_and_b32 v8, 15, v3')
    k('v_lshl_add_u32 v7, v8, 4, v7')
    k('v_lshrrev_b32 v8, 2, v4')
    k('v_lshl_add_u32 v7, v8, 10, v7')
    k('v_and_b32 v8, 3, v4')
    k('v_lshl_add_u32 v9, v8, 8, v7')
    k('v_bfe_u32 v8, v4, 1, 1')
    k('v_lshl_add_u32 v10, v8, 9, v7')
    k('v_and_b32 v8, 1, v4')
    k('v_lshl_add_u32 v10, v8, 3, v10')
    k('s_mov_b32 s20, 0xffff0000')
    k('s_and_b32 s29, s29, 0xffff')
    k('v_bfe_u32 v12, v2, 2, 3')
    k('v_mul_u32_u24 v12, 896, v12')
    k('v_and_b32 v13, 3, v2')
    k('v_lshl_add_u32 v12, v13, 3, v12')
    k('v_lshrrev_b32 v13, 5, v2')
    k('v_lshl_add_u32 v12, v13, 2, v12')
    k('s_lshl_b32 s21, s2, 5')
    k('buffer_load_dword v160, v12, s[28:31], s21 offen')
    k('s_barrier')
    def fills():
        k('s_mov_b32 s32, s4'); k('s_mov_b32 s33, s5'); k(f's_mov_b32 s34, {SENT_END - MEM_S}'); k('s_mov_b32 s35, 0x20000')
        k('s_mov_b32 s36, s4'); k('s_mov_b32 s37, s5'); k(f's_mov_b32 s38, {FLG + FLG_SZ}'); k('s_mov_b32 s39, 0x20000')
        k('v_lshlrev_b32 v11, 4, v2')
        k('s_mul_i32 s21, s2, 7168')
        k(f's_add_u32 s21, s21, {MEM + MEM_S}')
        k('s_add_u32 s22, s21, 4096')
        for r in range(4): k(f'v_mov_b32 v{164+r}, -1')
        for r in range(4): k(f'v_mov_b32 v{168+r}, 0')
        for r in range(7): k(f'buffer_store_dwordx4 v[164:167], v11, s[32:35], s{21 if r < 4 else 22} offen offset:{(r&3)*1024} ' + OPT['k1ln'])
        k('s_mul_i32 s21, s2, 12288')
        k(f's_add_u32 s21, s21, {PT}')
        for r in range(12):
            k(f'buffer_store_dwordx4 v[164:167], v11, {WS}, s21 offen offset:{(r&3)*1024} ' + OPT['k1ln'])
            if (r&3) == 3: k('s_add_u32 s21, s21, 4096')
        k('s_lshl_b32 s21, s2, 10')
        k(f's_add_u32 s21, s21, {FLG}')
        k('buffer_store_dwordx4 v[168:171], v11, s[36:39], s21 offen ' + OPT['k1ln'])
    late = OPT['k1late']
    if not late: fills()
    k(f's_waitcnt vmcnt({8 if late else 28})')
    for d in range(28):
        k(f'v_lshlrev_b32 v{vF+2*d}, 16, v{vX+d}')
        k(f'v_and_b32 v{vF+2*d+1}, s20, v{vX+d}')
    def red8(v):
        for ctl in ('quad_perm:[1,0,3,2]', 'quad_perm:[2,3,0,1]', 'row_half_mirror'):
            k.nop(2)
            k(f'v_add_f32_dpp v{v}, v{v}, v{v} {ctl} row_mask:0xf bank_mask:0xf')
    def rbf(v):
        k(f'v_cvt_pk_bf16_f32 v{v}, v{v}, v{v}')
        k(f'v_and_b32 v{v}, s20, v{v}')
    k(f'v_pk_add_f32 v[12:13], {vr(vF,2)}, {vr(vF+2,2)}')
    for d in range(2, 28): k(f'v_pk_add_f32 v[12:13], v[12:13], {vr(vF+2*d,2)}')
    k('v_add_f32 v12, v12, v13')
    k('s_barrier')
    red8(12)
    k(f's_mov_b32 s21, {f32bits(1/448):#x}')
    k('v_mul_f32 v12, s21, v12')
    k('v_mov_b32 v14, 0'); k('v_mov_b32 v15, 0')
    for d in range(28):
        k(f'v_pk_add_f32 {vr(vX,2)}, {vr(vF+2*d,2)}, v[12:13] op_sel_hi:[1,0] neg_lo:[0,1] neg_hi:[0,1]')
        k(f'v_pk_fma_f32 v[14:15], {vr(vX,2)}, {vr(vX,2)}, v[14:15]')
    k('v_add_f32 v14, v14, v15')
    red8(14)
    k('v_mul_f32 v14, s21, v14')
    rbf(14)
    k(f'v_add_f32 v14, {f32bits(1e-5):#x}, v14')
    rbf(14)
    k('v_sqrt_f32 v14, v14')
    k.nop(1)
    rbf(14)
    k('v_rcp_f32 v15, v14')
    rbf(12)
    k(f's_waitcnt vmcnt({0 if late else 20})')
    k('v_mov_b32 v128, 0'); k('v_mov_b32 v129, 0')
    vO, vS = vX, 132
    for d in range(28):
        f = vF + 2*d
        k(f'v_pk_add_f32 {vr(f,2)}, {vr(f,2)}, v[12:13] op_sel_hi:[1,0] neg_lo:[0,1] neg_hi:[0,1]')
        k(f'v_cvt_pk_bf16_f32 v130, v{f}, v{f+1}')
        k(f'v_lshlrev_b32 v{f}, 16, v130')
        k(f'v_and_b32 v{f+1}, s20, v130')
        k(f'v_pk_mul_f32 v[130:131], {vr(f,2)}, v[14:15] op_sel:[0,1] op_sel_hi:[1,1]')
        k(f'v_pk_fma_f32 {vr(f,2)}, v[130:131], v[14:15], {vr(f,2)} op_sel_hi:[1,0,1] neg_lo:[1,0,0] neg_hi:[1,0,0]')
        k(f'v_pk_fma_f32 v[130:131], {vr(f,2)}, v[14:15], v[130:131] op_sel:[0,1,0] op_sel_hi:[1,1,1]')
        k(f'v_cvt_pk_bf16_f32 v{vO+d}, v130, v131')
        so = vS + 4*(d>>2) + {0:0, 1:2, 2:1, 3:3}[d&3]
        k(f'v_mov_b32 v{so}, v{vO+d}')
        k(f'v_dot2_f32_bf16 v{128+(d&1)}, v{vO+d}, v{vW+d}, v{128+(d&1)}')
        if d in (3, 15): k('s_barrier')
    k(f's_mov_b32 s22, {XNR}'); k(f's_mov_b32 s23, {XNF}'); k(f's_mov_b32 s24, {XNS}')
    for i in range(7):
        k(f'buffer_store_dwordx4 {vr(vO+4*i,4)}, v5, {WS}, s22 offen offset:{i*128} ' + OPT['k1ln'])
        k(f'buffer_store_dwordx4 {vr(vO+4*i,4)}, v9, {WS}, s23 offen offset:{(i&1)*2048} ' + OPT['k1ln'])
        k(f'buffer_store_dwordx2 {vr(vS+4*i,2)}, v10, {WS}, s24 offen offset:{(i&1)*2048} ' + OPT['k1ln'])
        k(f'buffer_store_dwordx2 {vr(vS+4*i+2,2)}, v10, {WS}, s24 offen offset:{(i&1)*2048+256} ' + OPT['k1ln'])
        if i & 1:
            k('s_add_u32 s23, s23, 4096'); k('s_add_u32 s24, s24, 4096')
    if late: fills()
    k.nop(2)
    k('v_add_f32 v128, v128, v129')
    red8(128)
    rbf(128)
    k('v_lshlrev_b32 v3, 2, v3')
    k(f's_mov_b32 s22, {RR}')
    k(f'buffer_store_dword v128, v3, {WS}, s22 offen ' + OPT['k1ln'])
    if tl:
        k('s_waitcnt vmcnt(0)')
        k('s_memrealtime s[42:43]')
        k('s_lshl_b32 s44, s2, 5')
        k(f's_add_u32 s44, s44, {STAMP + 0xE0000}')
        k('s_waitcnt lgkmcnt(0)')
        k('v_mov_b32 v10, s42')
        k(f'buffer_store_dword v10, off, {WS}, s44 offset:24')
    k('s_cmp_ge_u32 s2, 28')
    k('s_cbranch_scc1 P_exit')
    k('v_min_u32 v160, -2, v160')
    k('v_lshlrev_b32 v11, 2, v2')
    k('s_lshl_b32 s21, s2, 8')
    k(f's_add_u32 s22, s21, {MEM}')
    k(f's_add_u32 s21, s21, {SENT_END - MEM_S}')
    k(f'buffer_store_dword v160, v11, {WS}, s22 offen ' + OPT['k1ln'])
    k(f'buffer_store_dword v160, v11, {WS}, s21 offen ' + OPT['k1ln'])
    k.label('P_exit')
    k('s_endpgm')
    return k
```

```python
WTA   = 0
WT_SZ = 16*28*14*1024
WTB   = WTA + WT_SZ
XNF   = WTB + WT_SZ
XN_SZ = 128*14*1024
XNS   = XNF + XN_SZ
XNR   = XNS + XN_SZ
UF    = XNR + XN_SZ
UF_SEG = 16*28*1024
UM    = UF + 64*UF_SEG
UM_SEG = 8*28*1024
MEM   = UM + 64*UM_SEG
MEM_S = 7168
import os
NREP  = int(os.environ.get('NREP', '1'))
MEM_T = NREP*MEM_S
PB    = MEM + 64*MEM_T
PB_S  = 10240
PB_T  = PB_S
MEMX  = PB + 64*PB_T
SENT_END = MEMX + 64*MEM_S
PT    = SENT_END
PT_SEG = 48*1024
RR    = PT + 64*PT_SEG
HB    = RR + 8192
UPD   = HB + 32768
IDX   = UPD + 65536
FLG   = IDX + 4096
FLG_SZ = 128*256
STAMP = FLG + FLG_SZ
WS_USED = STAMP + (1<<20)
WS_SIZE = 268435456

def sigma(ks, g, jj):
    return 32*ks + 16*(g>>1) + 4*(jj>>1) + 2*(g&1) + (jj&1)
def nrow(nt, c):
    p, T = nt>>1, nt&1
    return sigma(p, c>>2, 4*T + (c&3))

F_U, F_P, F_UM, F_M1, F_M2 = 0, 16, 32, 96, 97
def flag(i): return FLG + 128*i
```

```python
from asmlib import *
from layout import *

class K(Asm):
    def __init__(self):
        super().__init__()
        self.dsq = []; self.cold = []; self.vmq = []
    def ds(self, text, tag=None):
        self(text); self.dsq.append(tag)
    def wds(self, tag):
        if tag not in self.dsq: return
        idx = max(i for i, t in enumerate(self.dsq) if t == tag)
        n = len(self.dsq) - 1 - idx
        assert n <= 15
        self(f's_waitcnt lgkmcnt({n})')
        self.dsq = self.dsq[idx+1:]
    def wds0(self):
        self('s_waitcnt lgkmcnt(0)'); self.dsq = []
    def vm(self, text, tag=None):
        self(text); self.vmq.append(tag)
    def wvm(self, *tags, extra=''):
        idx = max([i for i, t in enumerate(self.vmq) if t in tags], default=-1)
        if idx < 0:
            if extra: self('s_waitcnt ' + extra)
            return
        n = len(self.vmq) - 1 - idx
        assert n <= 63
        self(f's_waitcnt vmcnt({n}) {extra}')
        self.vmq = self.vmq[idx+1:]
    def flush_cold(self):
        for l in self.cold: self(l)
        self.cold = []

SWS, SDBG = 4, 8
sROLE, sWAVE, sSTEP, sMODE, sM, sP, sX, sUM, sCNT = 12, 13, 14, 15, 16, 17, 18, 19, 20
sT0, sT1, sT2 = 21, 22, 23
sMASK8 = 24
sID = 26
sST = 28
sTM = 30
POLL_LIMIT = 400000
NSTEP = 63
OPT = dict(sa='late', sb='early', um='sc1', uf='sc1', sleepA=0, sleepB=0, stampmask=15, rt=0, barA=1, barB=1, prefP=0, pfd=2, pfs=128, upos='early', ud=2, apf=1, nb=8, stag=1, wpos=1, rsp=1, s1pos=0, upre=8, uneed=32, ust='sc1', rot=1, k1st='sc1', uwin=2, k1d=2, ap2=0, stagA=2, gv=0, rep=3, k1late=0, cpf=0, sm2=0, tm=1, bp2=1, k1pf=0, k1ln='sc1', u0='cold', align=0, w64=0, p64=0, kpos='post', kdel=7, nu2=4, bgs=0, vsl=120, usl=120, psl=16, msl=120)

def stamp(k, idx, on):
    if not on or not (OPT['stampmask'] >> idx) & 1: return
    k(('s_memrealtime' if OPT['rt'] else 's_memtime') + f' s[{sTM}:{sTM+1}]')
    k.wds0()
    k(f'v_mov_b32 v0, s{sTM}')
    k(f'buffer_store_dword v0, off, s[{SWS}:{SWS+3}], s{sST} offset:{idx*4}')

def edge(k, on, off):
    if not on or OPT['rt']: return
    lp = k.newlabel('Led')
    k('s_memrealtime s[70:71]')
    k('s_waitcnt lgkmcnt(0)')
    k.label(lp)
    k('s_memrealtime s[72:73]')
    k('s_memtime s[74:75]')
    k('s_waitcnt lgkmcnt(0)')
    k('s_cmp_eq_u32 s72, s70')
    k(f's_cbranch_scc1 {lp}')
    k('v_mov_b32 v0, s72')
    k(f'buffer_store_dword v0, off, s[{SWS}:{SWS+3}], s76 offset:{off}')
    k('v_mov_b32 v0, s74')
    k(f'buffer_store_dword v0, off, s[{SWS}:{SWS+3}], s76 offset:{off+4}')

def publish(k, text):
    ls, ld = k.newlabel('Lslow'), k.newlabel('Lpub')
    if isinstance(text, str): text = [text]
    k(f's_cbranch_scc0 {ls}')
    for x in text: k(x)
    k.label(ld)
    k.cold += [ls + ':'] + [x + ' sc1' for x in text] + [f's_branch {ld}']

def gather_mem(k, vG, vOff0, vOff1, vL0, vL1, vT):
    lp, dn = k.newlabel('Lgm'), k.newlabel('Lgd')
    k(f's_mov_b32 s{sCNT}, 0')
    k.label(lp)
    k(f'buffer_load_dwordx4 {vr(vG,4)}, v{vOff0}, s[{SWS}:{SWS+3}], s{sM} offen sc1')
    k(f'buffer_load_dwordx4 {vr(vG+4,4)}, v{vOff1}, s[{SWS}:{SWS+3}], s{sM} offen sc1')
    k(f's_add_u32 s{sCNT}, s{sCNT}, 1')
    k(f's_cmp_gt_u32 s{sCNT}, s{sT2}')
    k('s_cbranch_scc1 L_fail')
    k('s_waitcnt vmcnt(1)')
    k(f'v_max3_u32 v{vT}, v{vG}, v{vG+1}, v{vG+2}')
    k('s_waitcnt vmcnt(0)')
    k(f'v_max3_u32 v{vT+1}, v{vG+4}, v{vG+5}, v{vG+6}')
    k(f'v_max3_u32 v{vT}, v{vT}, v{vG+3}, v{vG+7}')
    k(f'v_max_u32 v{vT}, v{vT}, v{vT+1}')
    k(f'v_cmp_eq_u32 vcc, -1, v{vT}')
    k(f's_cbranch_vccnz {lp}')
    if vL0 is None: return
    k.ds(f'ds_write_b128 v{vL0}, {vr(vG,4)}')
    k.ds(f'ds_write_b128 v{vL1}, {vr(vG+4,4)}')
    k.wds0()
    k('s_barrier')

def wait_mode(k, vT):
    lp = k.newlabel('Lwm')
    k(f's_mov_b32 s{sCNT}, 0')
    k(f'v_and_b32 v{vT+1}, 15, v0')
    k(f'v_lshlrev_b32 v{vT+1}, 2, v{vT+1}')
    k.label(lp)
    k(f'buffer_load_dword v{vT}, v{vT+1}, s[{SDBG}:{SDBG+3}], 0 offen offset:32 sc1')
    k(f's_add_u32 s{sCNT}, s{sCNT}, 1')
    k(f's_cmp_gt_u32 s{sCNT}, s{sT2}')
    k('s_cbranch_scc1 L_fail')
    k('s_waitcnt vmcnt(0)')
    k(f'v_cmp_eq_u32 vcc, 32, v{vT}')
    for rot in (8, 4, 2, 1):
        k.nop(2)
        k(f'v_add_u32_dpp v{vT}, v{vT}, v{vT} row_ror:{rot} row_mask:0xf bank_mask:0xf')
    k.nop(1)
    k(f'v_readfirstlane_b32 s{sMODE}, v{vT}')
    k('s_nop 3')
    k(f's_cmp_lt_u32 s{sMODE}, 32')
    k(f's_cbranch_scc1 {lp}')
    k('s_cmp_lg_u64 vcc, 0')
    k(f's_cselect_b32 s{sMODE}, 1, 2')

def common_lane_setup(k, vLane, vL16, vG0, vG1, vIdx, vT):
    k(f'v_and_b32 v{vLane}, 63, v0')
    k(f'v_lshlrev_b32 v{vL16}, 4, v{vLane}')
    if vG0 is not None:
        k(f's_lshl_b32 s{sT0}, s{sWAVE}, 10')
        k(f'v_add_u32 v{vG0}, s{sT0}, v{vL16}')
        k(f's_add_u32 s{sT0}, s{sWAVE}, 4')
        k(f's_min_u32 s{sT0}, s{sT0}, 6')
        k(f's_lshl_b32 s{sT0}, s{sT0}, 10')
        k(f'v_add_u32 v{vG1}, s{sT0}, v{vL16}')
    k(f'v_and_b32 v{vT}, 8, v{vLane}')
    k(f'v_mov_b32 v{vIdx}, 0x4444')
    k(f'v_mov_b32 v{vT+1}, 0xeeee')
    k(f'v_cmp_ne_u32 vcc, 0, v{vT}')
    k('s_nop 1')
    k(f'v_cndmask_b32 v{vIdx}, v{vIdx}, v{vT+1}, vcc')
    k(f's_mov_b32 s{sT2}, {POLL_LIMIT}')

def poll2(k, issue, checks, body, name, stag):
    nl = len(issue(0))
    l0, d0, d1, dn = [k.newlabel(name + x) for x in ('lp', 'd0', 'd1', 'dn')]
    k(f's_mov_b32 s{sCNT}, 0')
    for x in issue(0): k(x)
    k(f"s_sleep {stag}")
    k.label(l0)
    for st, dl in ((0, d0), (1, d1)):
        for x in issue(1 - st): k(x)
        if st == 0:
            k(f's_add_u32 s{sCNT}, s{sCNT}, 1')
            k(f's_cmp_gt_u32 s{sCNT}, s{sT2}')
            k('s_cbranch_scc1 L_fail')
        for rel, ins in checks(st):
            k(f's_waitcnt vmcnt({nl + rel})')
            for x in ins: k(x)
        if st == 0: k(f's_cbranch_vccz {d0}')
        else:       k(f's_cbranch_vccnz {l0}x')
    saved = list(k.dsq)
    body(1)
    k(f's_branch {dn}')
    k.label(l0 + 'x')
    k(f's_branch {l0}')
    k.label(d0)
    end = list(k.dsq); k.dsq = saved
    body(0)
    assert k.dsq == end
    k.label(dn)

def role_A(k, stamps=False):
    vLane, vL16, vIdx = 1, 2, 3
    vKey, vKeyS, vMK, vMKS, vQW, vQR, vSW, vSR, vPO, vVal = 4, 5, 6, 7, 8, 9, 10, 11, 12, 13
    vT = 14
    vM = 16
    vQ = 44
    vKT = 72
    vKM = 100
    vX = 114
    vG0, vG1 = 118, 119
    def W(lt, kb):
        i = lt*7 + kb
        return (256 + 8*i) if i < 32 else (120 + 8*(i-32))
    LM, LSP, LQS = 0, 7168, 20480
    k.label('L_roleA')
    k(f's_mov_b32 s{sID}, s{sROLE}')
    common_lane_setup(k, vLane, vL16, vG0, vG1, vIdx, vX)
    k(f's_lshr_b32 s{sT0}, s{sWAVE}, 1')
    k(f's_mul_i32 s{sT0}, s{sT0}, 14')
    k(f's_and_b32 s{sT1}, s{sWAVE}, 1')
    k(f's_add_u32 s33, s{sT0}, 6')
    k(f's_add_u32 s33, s33, s{sT1}')
    k(f's_lshl_b32 s34, s{sT1}, 3')
    k(f's_add_u32 s32, s{sT0}, s34')
    k(f's_mul_i32 s35, s{sID}, {28*14*1024}')
    k(f's_add_u32 s35, s35, {WTA}')
    k(f's_mul_i32 s36, s32, {14*1024}')
    k(f's_add_u32 s36, s36, s35')
    k(f's_mul_i32 s37, s33, {14*1024}')
    k(f's_add_u32 s37, s37, s35')
    for j in range(7):
        k(f's_add_u32 s{50+j}, s{sWAVE}, {(4*j) % 7}')
        k(f's_sub_u32 s40, s{50+j}, 7')
        k(f's_cmp_ge_u32 s{50+j}, 7')
        k(f's_cselect_b32 s{50+j}, s40, s{50+j}')
        k(f's_lshl_b32 s{50+j}, s{50+j}, 10')
    n = 0
    for lt in range(7):
        sb = 36 if lt < 6 else 37
        for j in range(7):
            k(f's_lshl_b32 s40, s{50+j}, 1')
            k(f's_add_u32 s40, s40, s{sb}')
            for f in range(2):
                k(f'buffer_load_dwordx4 {xr(W(lt, j) + 4*f,4)}, v{vL16}, s[{SWS}:{SWS+3}], s40 offen offset:{f*1024}')
                n += 1
                if n % 16 == 0: k('s_waitcnt vmcnt(40)')
        k(f's_add_u32 s{sb}, s{sb}, 14336')
    k(f'v_add_u32 v{vG1}, s51, v{vL16}')
    t = vX
    g, i = vQ, vQ+1
    k(f'v_lshrrev_b32 v{g}, 4, v{vLane}')
    k(f'v_and_b32 v{i}, 15, v{vLane}')
    k(f's_lshr_b32 s38, s32, 1')
    k(f's_lshr_b32 s39, s33, 1')
    k(f's_lshl_b32 s40, s38, 10')
    k(f'v_add_u32 v{vKey}, s40, v{vL16}')
    k(f's_lshl_b32 s40, s39, 10')
    k(f's_add_u32 s40, s40, s34')
    k(f'v_add_u32 v{vKeyS}, s40, v{vL16}')
    k(f'v_lshrrev_b32 v{t}, 1, v{g}')
    k(f'v_lshlrev_b32 v{t}, 8, v{t}')
    k(f'v_and_b32 v{t+1}, 7, v{i}')
    k(f'v_lshlrev_b32 v{t+1}, 4, v{t+1}')
    k(f'v_add_u32 v{t}, v{t}, v{t+1}')
    k(f'v_and_b32 v{t+1}, 1, v{g}')
    k(f'v_lshlrev_b32 v{t+1}, 7, v{t+1}')
    k(f'v_add_u32 v{t}, v{t}, v{t+1}')
    k(f's_lshl_b32 s40, s38, 9')
    k(f'v_add_u32 v{vMK}, s40, v{t}')
    k(f's_lshl_b32 s40, s39, 9')
    k(f's_add_u32 s40, s40, s34')
    k(f'v_add_u32 v{vMKS}, s40, v{t}')
    k(f's_lshl_b32 s40, s{sWAVE}, 10')
    k(f's_add_u32 s40, s40, {LQS}')
    k(f'v_lshrrev_b32 v{t}, 2, v{i}')
    k(f'v_add_u32 v{t}, v{t}, v{g}')
    k(f'v_and_b32 v{t}, 3, v{t}')
    k(f'v_lshlrev_b32 v{t}, 3, v{t}')
    k(f'v_lshlrev_b32 v{t+1}, 5, v{i}')
    k(f'v_add3_u32 v{vQW}, v{t}, v{t+1}, s40')
    k(f'v_lshrrev_b32 v{t}, 2, v{vLane}')
    k(f'v_lshlrev_b32 v{t}, 5, v{t}')
    k(f'v_add_u32 v{t+1}, v{vLane}, v{g}')
    k(f'v_and_b32 v{t+1}, 3, v{t+1}')
    k(f'v_lshlrev_b32 v{t+1}, 3, v{t+1}')
    k(f'v_add3_u32 v{vQR}, v{t}, v{t+1}, s40')
    k(f's_mul_i32 s40, s{sWAVE}, 3264')
    k(f's_add_u32 s40, s40, {LSP}')
    k(f'v_lshlrev_b32 v{t}, 4, v{i}')
    k(f'v_mul_u32_u24 v{t+1}, 272, v{g}')
    k(f'v_add3_u32 v{vSW}, v{t}, v{t+1}, s40')
    k(f'v_subrev_u32 v{t}, 12, v{i}')
    k(f'v_cmp_le_u32 vcc, 12, v{i}')
    k('s_nop 1')
    k(f'v_cndmask_b32 v{t}, v{i}, v{t}, vcc')
    k(f'v_lshrrev_b32 v{t+1}, 5, v{vLane}')
    k(f's_lshl_b32 s40, s{sWAVE}, 1')
    k(f'v_add_u32 v{t+1}, s40, v{t+1}')
    k(f'v_and_b32 v{t+2}, 1, v{g}')
    k(f'v_lshl_add_u32 v{t+3}, v{t+2}, 3, v{t+1}')
    k(f'v_lshlrev_b32 v{t+3}, 4, v{t+3}')
    k(f'v_mul_u32_u24 v{vSR}, 272, v{t}')
    k(f'v_add_u32 v{vSR}, v{vSR}, v{t+3}')
    if LSP: k(f'v_add_u32 v{vSR}, {LSP}, v{vSR}')
    k(f's_and_b32 s42, s{sID}, 1')
    k(f's_lshl_b32 s42, s42, 3')
    k(f'v_add_u32 v{t+1}, s42, v{t+1}')
    k(f'v_and_b32 v{vPO}, 1, v{i}')
    k(f'v_lshlrev_b32 v{vPO}, 3, v{vPO}')
    k(f'v_lshl_add_u32 v{vPO}, v{t+1}, 4, v{vPO}')
    k(f'v_bfe_u32 v{t}, v{i}, 1, 1')
    k(f'v_lshl_add_u32 v{vPO}, v{t}, 8, v{vPO}')
    k(f'v_bfe_u32 v{t}, v{i}, 3, 1')
    k(f'v_lshl_add_u32 v{vPO}, v{t}, 9, v{vPO}')
    k(f's_lshr_b32 s41, s{sID}, 1')
    k(f's_lshl_b32 s40, s41, 10')
    k(f'v_add_u32 v{vPO}, s40, v{vPO}')
    k(f'v_lshlrev_b32 v{t}, 3, v{i}')
    k(f'v_lshl_add_u32 v{t}, v{t+1}, 4, v{t}')
    k(f's_lshl_b32 s40, s41, 8')
    k(f's_add_u32 s40, s40, 8192')
    k(f'v_add_u32 v{t}, s40, v{t}')
    k(f'v_mov_b32 v{t+3}, 0x40000000')
    k(f'v_cmp_le_u32 vcc, 2, v{i}')
    k('s_nop 1')
    k(f'v_cndmask_b32 v{t}, v{t}, v{t+3}, vcc')
    k(f'v_cmp_le_u32 vcc, 4, v{i}')
    k('s_nop 1')
    k(f'v_cndmask_b32 v{vPO}, v{t}, v{vPO}, vcc')
    k(f'v_cmp_le_u32 vcc, 12, v{i}')
    k('s_nop 1')
    k(f'v_cndmask_b32 v{vPO}, v{vPO}, v{t+3}, vcc')
    k(f'v_lshl_add_u32 v{vPO}, v{t+2}, 2, v{vPO}')
    k(f'v_mov_b32 v{vVal}, 1.0')
    k(f'v_cmp_le_u32 vcc, v{t+3}, v{vPO}')
    k('s_nop 1')
    k(f'v_cndmask_b32 v{vVal}, v{vVal}, 0, vcc')
    k(f's_mov_b32 s{sSTEP}, 0')
    k(f's_lshr_b32 s{sM}, s{sID}, 3')
    k(f"s_mul_i32 s{sM}, s{sM}, {MEM_S if OPT['rep'] == 3 else 0}")
    k(f's_add_u32 s{sM}, s{sM}, {MEM}')
    k(f's_mov_b32 s{sP}, {PB}')
    k(f's_mov_b32 s{sX}, {XNS}')
    k(f's_lshl_b32 s40, s{sID}, 2')
    k(f's_add_u32 s40, s40, s{sWAVE}')
    k(f's_mul_i32 s40, s40, 7168')
    k(f'v_min_u32 v{vX}, {55*16}, v{vL16}')
    k(f'v_lshlrev_b32 v{vX}, 3, v{vX}')
    k(f'v_add_u32 v{vX}, s40, v{vX}')
    k(f"s_mov_b32 s{sUM}, {UF + OPT['ud']*UF_SEG}")
    WS = f's[{SWS}:{SWS+3}]'
    def key_list():
        L = []
        for p in range(3):
            L.append(f'buffer_load_dwordx4 {vr(vKT+8*p,4)}, v{vKey}, {WS}, s{sX} offen offset:{p*1024}')
            L.append(f'buffer_load_dwordx4 {vr(vKT+8*p+4,4)}, v{vKey}, {WS}, s46 offen offset:{p*1024}')
        L.append(f'buffer_load_dwordx2 {vr(vKT+24,2)}, v{vKeyS}, {WS}, s{sX} offen')
        L.append(f'buffer_load_dwordx2 {vr(vKT+26,2)}, v{vKeyS}, {WS}, s46 offen')
        return L
    def load_keys(keys=True):
        if keys:
            for x in key_list(): k(x)
        k(f's_add_u32 s{sX}, s{sX}, 28672')
        k(f's_add_u32 s46, s{sX}, 14336')
        k(f's_add_u32 s{sT0}, s{sSTEP}, {1 + OPT["ud"]}')
        k(f's_lshr_b32 s{sT0}, s{sT0}, 2')
        k(f's_lshl_b32 s{sT0}, s{sT0}, 7')
        k(f's_add_u32 s{sT0}, s{sT0}, {flag(F_U)}')
        k(f'buffer_load_dword v{vX+2}, off, {WS}, s{sT0} sc1')
    if OPT['tm']:
        k(f'v_lshlrev_b32 v{vQ+2}, 2, v{g}')
        k(f'v_sub_u32 v{vQ+2}, v{i}, v{vQ+2}')
        k(f'v_and_b32 v{vQ+3}, 1, v{vQ+2}')
        k(f'v_lshlrev_b32 v{vQ+3}, 4, v{vQ+3}')
        k(f'v_mov_b32 v{vLane}, 0x3f80')
        k(f'v_lshlrev_b32 v{vLane}, v{vQ+3}, v{vLane}')
        k(f'v_cmp_gt_u32 vcc, 4, v{vQ+2}')
        k(f'v_cmp_lt_u32 s[48:49], 1, v{vQ+2}')
        k('s_nop 0')
        k(f'v_cndmask_b32 v{vLane}, 0, v{vLane}, vcc')
    k(f's_add_u32 s46, s{sX}, 14336')
    k(f's_mov_b32 s{sSTEP}, -1')
    load_keys()
    k(f's_mov_b32 s{sSTEP}, 0')
    wait_mode(k, vT)
    k(f'v_mov_b32 v{vX+3}, 0x40000000')
    if stamps: k(f's_add_u32 s76, s{sST}, 0x20000')
    edge(k, stamps, 0)
    k.label('L_A_loop')
    for r in range(0, 28, 2): k(f'v_mov_b64 {vr(vQ+r,2)}, 0')
    vAd = vKM + 6
    for j in range(2, 7): k(f'v_add_u32 v{vAd+j}, s{50+j}, v{vL16}')
    def Mx(lt, kb, src):
        return f'v_smfmac_f32_16x16x64_bf16 {vr(vQ+4*lt,4)}, {vr(src,4)}, {xr(W(lt,kb),8)}, v{vIdx}'
    def M(lt, kb): return Mx(lt, kb, vM+4*kb)
    mk = [f'ds_read_b128 {vr(vKM+4*p,4)}, v{vMK} offset:{LM+p*512}' for p in range(3)]
    mk.append(f'ds_read_b64 {vr(vKM+12,2)}, v{vMKS} offset:{LM}')
    sets = [vM, vKM]
    def issue(st):
        return [f'buffer_load_dwordx4 {vr(sets[st],4)}, v{vG0}, {WS}, s{sM} offen sc1',
                f'buffer_load_dwordx4 {vr(sets[st]+4,4)}, v{vG1}, {WS}, s{sM} offen sc1']
    def checks(st):
        G = sets[st]
        return [(1, [f'v_max3_u32 v{vT}, v{G}, v{G+1}, v{G+2}']),
                (0, [f'v_max3_u32 v{vT+1}, v{G+4}, v{G+5}, v{G+6}', f'v_max3_u32 v{vT}, v{vT}, v{G+3}, v{G+7}',
                     f'v_max_u32 v{vT}, v{vT}, v{vT+1}', f'v_cmp_eq_u32 vcc, -1, v{vT}'])]
    NB = OPT['nb']
    def body(st):
        G = sets[st]
        stamp(k, 0, stamps)
        wrs = [f'ds_write_b128 v{vG0}, {vr(G,4)} offset:{LM}', f'ds_write_b128 v{vG1}, {vr(G+4,4)} offset:{LM}']
        seq = [(lt, j) for j in range(2) for lt in range(7)]
        for n, (lt, j) in enumerate(seq):
            k(Mx(lt, j, G + 4*j))
            if OPT['w64'] == 0 and n < 2: k.ds(wrs[n])
            if OPT['w64'] == 1 and n < 4: k.ds(f'ds_write_b64 v{vG0 if n < 2 else vG1}, {vr(G+2*n,2)} offset:{LM + 8*(n&1)}')
            if n == 4: k(f'v_cmp_le_u32 vcc, {OPT["uneed"]}, v{vX+2}')
            if n == 5: k('s_nop 0'); k(f'v_cndmask_b32 v{vX+1}, v{vX+3}, v{vX}, vcc')
            if n == NB - 1:
                k.wds0(); k('s_barrier')
            if NB - 1 <= n < NB + 4:
                jj = n - (NB - 1) + 2
                k.ds(f'ds_read_b128 {vr(vM+4*jj,4)}, v{vAd+jj} offset:{LM}', f'm{jj}')
            if n == NB + 5: k(f'buffer_load_dword v0, v{vX+1}, {WS}, s{sUM} offen sc1')
    if OPT['ap2']:
        poll2(k, issue, checks, body, 'Lga', OPT['stagA'])
    else:
        gather_mem(k, vM, vG0, vG1, None, None, vT)
        body(0)
    def cvt(lt, h):
        k(f'v_cvt_pk_bf16_f32 v{vQ+4*lt+h}, v{vQ+4*lt+2*h}, v{vQ+4*lt+2*h+1}')
    def wr(lt):
        k.ds(f'ds_write_b64 v{vQW}, {vr(vQ+4*lt,2)} offset:{512*(lt&1)}')
    def tr(p, h):
        k.ds(f'ds_read_b64_tr_b16 {vr(vQ+8*p+2*h,2)}, v{vQR} offset:{512*h}', f'q{p}')
    vSt = [vM, vM+4, vQ+4]
    def S(p, t):
        q = vQ + 8*p
        c = '0' if p == 0 else vr(vSt[t],4)
        if p < 3:
            a = vKM+4*p if t == 0 else vKT+8*p+4*(t-1)
            k(f'v_mfma_f32_16x16x32_bf16 {vr(vSt[t],4)}, {vr(a,4)}, {vr(q,4)}, {c}')
        else:
            a = vKM+12 if t == 0 else vKT+24+2*(t-1)
            k(f'v_mfma_f32_16x16x16_bf16 {vr(vSt[t],4)}, {vr(a,2)}, {vr(q,2)}, {c}')
    for lt in range(7):
        for j in range(2, 7):
            if lt == 0: k.wds(f'm{j}')
            k(M(lt, j))
            if OPT['tm'] and lt == 1 and j == 2: k(f'v_cndmask_b32 v{vT}, v{vLane}, 0, s[48:49]')
            if OPT['tm'] and lt == 1 and j == 3: k(f'v_cndmask_b32 v{vT+1}, 0, v{vLane}, s[48:49]')
            if lt == 0 and j == 6:
                k('s_waitcnt vmcnt(1)')
                for x in mk: k.ds(x, 'mk')
            if lt >= 1:
                if j == 4: cvt(lt-1, 0)
                if j == 5: cvt(lt-1, 1)
                if j == 6:
                    wr(lt-1)
                    if (lt-1) & 1: tr((lt-1)//2, 0); tr((lt-1)//2, 1)
        if lt == (4 if OPT['s1pos'] == 0 else 3):
            k.wds('q0')
            for t in range(3): S(0, t)
        if lt == 5 and OPT['s1pos'] == 1:
            k.wds('q1')
            for t in range(3): S(1, t)
    if OPT['s1pos'] == 0:
        k.wds('q1')
        for t in range(3): S(1, t)
        cvt(6, 0); cvt(6, 1)
        if OPT['tm']:
            k.wds('q2')
            k.nop(1)
            k(f'v_mfma_f32_16x16x16_bf16 {vr(vQ+12,4)}, {vr(vQ+24,2)}, {vr(vT,2)}, 0')
            for t in range(3): S(2, t)
            k(f'v_cvt_pk_bf16_f32 v{vQ+24}, v{vQ+12}, v{vQ+13}')
            k(f'v_cvt_pk_bf16_f32 v{vQ+25}, v{vQ+14}, v{vQ+15}')
            k.nop(2)
        else:
            wr(6); tr(3, 0)
            k.wds('q2')
            for t in range(3): S(2, t)
    else:
        k.nop(8)
        cvt(6, 0); cvt(6, 1); wr(6); tr(3, 0)
        k.wds('q2')
        for t in range(3): S(2, t)
    k.wds('q3')
    for t in range(3): S(3, t)
    for t in range(3):
        k.nop(2 if (t == 0 or OPT['p64'] == 0) else 1)
        if OPT['p64'] == 0: k.ds(f'ds_write_b128 v{vSW}, {vr(vSt[t],4)} offset:{1088*t}')
        else:
            k.ds(f'ds_write_b64 v{vSW}, {vr(vSt[t],2)} offset:{1088*t}')
            k.ds(f'ds_write_b64 v{vSW}, {vr(vSt[t]+2,2)} offset:{1088*t+8}')
    k.wds0()
    k('s_barrier')
    stamp(k, 1, stamps)
    mark = len(k.lines)
    R = vQ+8
    for w in range(4): k.ds(f'ds_read_b128 {vr(R+4*w,4)}, v{vSR} offset:{w*3264}', f'r{w}')
    k(f's_cmp_eq_u32 s{sMODE}, 1')
    k.wds('r1')
    k(f'v_pk_add_f32 {vr(R,2)}, {vr(R,2)}, {vr(R+4,2)}')
    k(f'v_pk_add_f32 {vr(R+2,2)}, {vr(R+2,2)}, {vr(R+6,2)}')
    k.wds('r2')
    k(f'v_pk_add_f32 {vr(R,2)}, {vr(R,2)}, {vr(R+8,2)}')
    k(f'v_pk_add_f32 {vr(R+2,2)}, {vr(R+2,2)}, {vr(R+10,2)}')
    k.wds('r3')
    k(f'v_pk_add_f32 {vr(R,2)}, {vr(R,2)}, {vr(R+12,2)}')
    k(f'v_pk_add_f32 {vr(R+2,2)}, {vr(R+2,2)}, {vr(R+14,2)}')
    k.nop(2)
    k(f'v_permlane16_swap_b32 v{R}, v{R+2}')
    k(f'v_permlane16_swap_b32 v{R+1}, v{R+3}')
    X = R+4; m = R+6; t = R+8
    k(f'v_pk_add_f32 {vr(X,2)}, {vr(R,2)}, {vr(R+2,2)}')
    def allred(op, m):
        for rot in (8, 4, 2, 1):
            k.nop(2)
            k(f'{op}_dpp v{m}, v{m}, v{m} row_ror:{rot} row_mask:0xf bank_mask:0xf')
        k(f'v_mov_b32 v{t}, v{m}')
        k.nop(2)
        k(f'v_permlane16_swap_b32 v{m}, v{t}')
        k(f'{op} v{m}, v{m}, v{t}')
    if OPT['sm2'] == 0:
        k(f'v_max_f32 v{m}, v{X}, v{X+1}')
        allred('v_max_f32', m)
        k(f'v_pk_add_f32 {vr(X,2)}, {vr(X,2)}, {vr(m,2)} op_sel_hi:[1,0] neg_lo:[0,1] neg_hi:[0,1]')
        k(f'v_exp_f32 v{X}, v{X}')
        k(f'v_exp_f32 v{X+1}, v{X+1}')
        k.nop(1)
        k(f'v_add_f32 v{m}, v{X}, v{X+1}')
        k(f'v_mul_f32 v{m}, v{m}, v{vVal}')
        allred('v_add_f32', m)
        k(f'v_rcp_f32 v{m}, v{m}')
        k.nop(1)
        k(f'v_pk_mul_f32 {vr(X,2)}, {vr(X,2)}, {vr(m,2)} op_sel_hi:[1,0]')
    else:
        l_, M, sc = R+10, R+12, R+14
        def dpp(op, r, rot): k(f'{op}_dpp v{r}, v{r}, v{r} row_ror:{rot} row_mask:0xf bank_mask:0xf')
        k(f'v_max_f32 v{m}, v{X}, v{X+1}')
        for rot in (8, 4, 2, 1):
            k.nop(2); dpp('v_max_f32', m, rot)
        k(f'v_pk_add_f32 {vr(X,2)}, {vr(X,2)}, {vr(m,2)} op_sel_hi:[1,0] neg_lo:[0,1] neg_hi:[0,1]')
        k(f'v_mov_b32 v{M}, v{m}')
        k(f'v_exp_f32 v{X}, v{X}')
        k(f'v_mov_b32 v{t}, v{m}')
        k(f'v_exp_f32 v{X+1}, v{X+1}')
        k.nop(1)
        k(f'v_add_f32 v{l_}, v{X}, v{X+1}')
        k(f'v_permlane16_swap_b32 v{M}, v{t}')
        k(f'v_mul_f32 v{l_}, v{l_}, v{vVal}')
        k(f'v_max_f32 v{M}, v{M}, v{t}')
        k(f'v_sub_f32 v{sc}, v{m}, v{M}')
        dpp('v_add_f32', l_, 8)
        k(f'v_exp_f32 v{sc}, v{sc}')
        k.nop(1)
        dpp('v_add_f32', l_, 4)
        k(f'v_pk_mul_f32 {vr(X,2)}, {vr(X,2)}, {vr(sc,2)} op_sel_hi:[1,0]')
        k.nop(1)
        dpp('v_add_f32', l_, 2)
        k.nop(2)
        dpp('v_add_f32', l_, 1)
        k(f'v_mul_f32 v{l_}, v{l_}, v{sc}')
        k(f'v_mov_b32 v{t}, v{l_}')
        k.nop(2)
        k(f'v_permlane16_swap_b32 v{l_}, v{t}')
        k(f'v_add_f32 v{l_}, v{l_}, v{t}')
        k(f'v_rcp_f32 v{l_}, v{l_}')
        k.nop(1)
        k(f'v_pk_mul_f32 {vr(X,2)}, {vr(X,2)}, {vr(l_,2)} op_sel_hi:[1,0]')
    k(f'v_cvt_pk_bf16_f32 v{X}, v{X}, v{X+1}')
    k(f'v_min_u32 v{X}, -2, v{X}')
    if OPT['kpos'] == 'soft':
        body_ = k.lines[mark:]; k.lines = k.lines[:mark]; L = key_list()
        for x in body_:
            if x == 's_nop 1' and L: k(L.pop(0)); k('s_nop 0')
            else: k(x)
        assert not L
    publish(k, f'buffer_store_dword v{X}, v{vPO}, {WS}, s{sP} offen')
    stamp(k, 2, stamps)
    k('s_barrier')
    if OPT['kdel']: k(f"s_sleep {OPT['kdel']}")
    load_keys(OPT['kpos'] != 'soft')
    if OPT['sleepA']: k(f"s_sleep {OPT['sleepA']}")
    k(f's_add_u32 s{sUM}, s{sUM}, {UF_SEG}')
    k(f's_add_u32 s{sM}, s{sM}, {MEM_T}')
    k(f's_add_u32 s{sP}, s{sP}, {PB_S}')
    if stamps: k(f's_add_u32 s{sST}, s{sST}, 16')
    k(f's_add_u32 s{sSTEP}, s{sSTEP}, 1')
    k(f's_cmp_lt_u32 s{sSTEP}, {NSTEP}')
    k('s_cbranch_scc1 L_A_loop')
    edge(k, stamps, 8)
    k('s_waitcnt vmcnt(0)')
    k('s_endpgm')
    k.flush_cold()

def role_B(k, stamps=False, wait_u=None):
    WS = f's[{SWS}:{SWS+3}]'
    vLane, vL16, vG0, vG1, vIdx = 1, 2, 3, 4, 5
    vWL, vPT, vPM, vRW, vRR, vL4 = 6, 7, 8, 9, 10, 11
    vC = 12
    vM = 16
    vA = 44
    vU = 76
    vTm = 108
    vUi = 140
    vUm = 172
    vRR2 = 188
    vKeep, vFl = 191, 15
    vD = vTm
    vG = vTm + 16
    vP = [vM, vA]
    def W(gi, kb):
        i = gi*5 + kb
        return (256 + 8*i) if i < 32 else (192 + 8*(i-32))
    LM, LRED, LW = 0, 7168, 16384
    k.label('L_roleB')
    k(f's_sub_u32 s{sID}, s{sROLE}, 16')
    common_lane_setup(k, vLane, vL16, vG0, vG1, vIdx, vC)
    k(f's_lshl_b32 s{sT0}, s{sWAVE}, 2')
    k(f's_mul_i32 s{sT0}, s{sT0}, 28')
    k(f's_lshl_b32 s{sT1}, s{sID}, 1')
    k(f's_add_u32 s{sT0}, s{sT0}, s{sT1}')
    k(f's_mul_i32 s35, s{sT0}, 14336')
    k(f's_add_u32 s35, s35, {WTB}')
    k(f's_lshl_b32 s37, s{sWAVE}, 15')
    k(f's_add_u32 s37, s37, {LW}')
    k(f'v_add_u32 v{vWL}, s37, v{vL16}')
    for j in range(7):
        k(f's_add_u32 s{50+j}, s{sWAVE}, {(4*j) % 7}')
        k(f's_sub_u32 s40, s{50+j}, 7')
        k(f's_cmp_ge_u32 s{50+j}, 7')
        k(f's_cselect_b32 s{50+j}, s40, s{50+j}')
        k(f's_lshl_b32 s{50+j}, s{50+j}, 10')
    k(f'v_add_u32 v{vG1}, s51, v{vL16}')
    for gi in range(8):
        k(f's_add_u32 s36, s35, {(gi>>1)*28*14336 + (gi&1)*14336}')
        for j in range(7):
            k(f's_lshl_b32 s40, s{50+j}, 1')
            k(f's_add_u32 s40, s40, s36')
            if j >= 5:
                k(f's_add_u32 s38, s37, {gi*4096 + (j-5)*2048}')
                k(f's_mov_b32 m0, s38')
                k('s_nop 0')
            for f in range(2):
                if j < 5: k(f'buffer_load_dwordx4 {xr(W(gi, j) + 4*f,4)}, v{vL16}, {WS}, s40 offen offset:{f*1024}')
                else:     k(f'buffer_load_dwordx4 v{vL16}, {WS}, s40 offen offset:{f*1024} lds')
        k('s_waitcnt vmcnt(40)')
    g, i = vA, vA+1
    vT = vC
    k(f'v_lshrrev_b32 v{g}, 4, v{vLane}')
    k(f'v_and_b32 v{i}, 15, v{vLane}')
    k(f's_lshl_b32 s40, s{sWAVE}, 11')
    k(f'v_add_u32 v{vPT}, s40, v{vL16}')
    k(f'v_lshrrev_b32 v{vT}, 1, v{g}')
    k(f'v_lshlrev_b32 v{vT}, 8, v{vT}')
    k(f'v_lshl_add_u32 v{vT}, v{i}, 4, v{vT}')
    k(f's_lshl_b32 s40, s{sWAVE}, 9')
    k(f's_add_u32 s40, s40, 8192')
    k(f'v_add_u32 v{vPM}, s40, v{vT}')
    k(f's_lshl_b32 s40, s{sWAVE}, 10')
    k(f's_add_u32 s40, s40, {LRED}')
    k(f'v_add_u32 v{vRW}, s40, v{vL16}')
    k(f'v_and_b32 v{vT}, 3, v{vLane}')
    k(f'v_lshlrev_b32 v{vT}, 6, v{vT}')
    k(f'v_lshrrev_b32 v{vT+1}, 5, v{vLane}')
    k(f'v_lshl_add_u32 v{vT}, v{vT+1}, 5, v{vT}')
    k(f'v_lshrrev_b32 v{vT+1}, 2, v{vLane}')
    k(f'v_and_b32 v{vT+2}, 3, v{vT+1}')
    k(f'v_lshl_add_u32 v{vT}, v{vT+2}, 2, v{vT}')
    k(f'v_bfe_u32 v{vT+2}, v{vLane}, 4, 1')
    k(f'v_lshl_add_u32 v{vT}, v{vT+2}, 8, v{vT}')
    k(f's_and_b32 s40, s{sWAVE}, 1')
    k(f's_lshl_b32 s40, s40, 9')
    k(f's_add_u32 s40, s40, {LRED}')
    k(f'v_add_u32 v{vRR}, s40, v{vT}')
    for w in range(1, 4): k(f'v_add_u32 v{vRR2+w-1}, {1024*w}, v{vRR}')
    k(f's_lshl_b32 s40, s{sID}, 1')
    k(f's_and_b32 s41, s{sWAVE}, 1')
    k(f's_add_u32 s40, s40, s41')
    k(f's_lshl_b32 s40, s40, 8')
    k(f'v_lshlrev_b32 v{vL4}, 2, v{vLane}')
    k(f'v_add_u32 v{vL4}, s40, v{vL4}')
    k(f's_mov_b32 s{sSTEP}, 0')
    k(f's_mov_b32 s{sM}, {MEM}')
    k(f's_mov_b32 s47, {MEMX - MEM_S}')
    k(f"s_mov_b32 s49, {MEM + 2*MEM_S}")
    k(f's_mov_b32 s{sP}, {PB}')
    k(f's_lshl_b32 s{sX}, s{sID}, 15')
    k(f's_lshl_b32 s40, s{sWAVE}, 13')
    k(f's_add_u32 s{sX}, s{sX}, s40')
    k(f's_add_u32 s{sX}, s{sX}, {UF}')
    k(f's_mul_i32 s{sUM}, s{sWAVE}, {2*28*1024}')
    k(f's_lshl_b32 s40, s{sID}, 11')
    k(f's_add_u32 s{sUM}, s{sUM}, s40')
    k(f's_add_u32 s{sUM}, s{sUM}, {UM}')
    k(f's_mov_b32 s43, s{sUM}')
    def ldu(j):
        hh, T = j >> 1, j & 1
        r = vU + 16*(hh>>1) + 8*T + 4*(hh&1)
        return f'buffer_load_dwordx4 {vr(r,4)}, v{vL16}, {WS}, s{sX if j<4 else sT0} offen offset:{(j&3)*1024} ' + OPT['uf']
    def stum(u, T):
        return f'buffer_store_dwordx4 {vr(vUm+8*T+4*u,4)}, v{vL16}, {WS}, s{43 if u==0 else 44} offen offset:{T*1024} ' + OPT['um']
    def lw(gi):
        b = vTm + 16*(gi&1)
        for f in range(4): k.ds(f'ds_read_b128 {vr(b+4*f,4)}, v{vWL} offset:{gi*4096+f*1024}', f'w{gi}')
    def load_u(ahead):
        if wait_u:
            lu = k.newlabel('Lnu')
            k(f's_add_u32 s{sT0}, s{sSTEP}, {ahead}')
            k(f's_and_b32 s{sT1}, s{sT0}, 3')
            k(f's_cbranch_scc1 {lu}')
            k(f's_lshl_b32 s{sT0}, s{sT0}, 5')
            k(f's_add_u32 s{sT0}, s{sT0}, {flag(F_U)}')
            wait_u(k, sT0, 32, vC, sleep=1)
            k.label(lu)
        k(f's_add_u32 s{sT0}, s{sX}, 4096')
        for j in range(8): k(ldu(j))
        k(f's_add_u32 s{sX}, s{sX}, {UF_SEG}')
    if OPT['u0'] == 'pro': load_u(0)
    wait_mode(k, vC)
    sw = []
    for o in range(4):
        r = vU + 8*o
        for e in range(4):
            sel = e & 1
            sw.append(f'v_pk_mov_b32 {vr(vUi+8*o+2*e,2)}, {vr(r+(e&2),2)}, {vr(r+4+(e&2),2)} op_sel:[{sel},{sel}]')
    if stamps: k(f's_add_u32 s76, s{sST}, 0x20000')
    edge(k, stamps, 0)
    k.label('L_B_loop')
    lp = k.newlabel('Lgm')
    def gl():
        sb = 49 if OPT['rep'] > 1 else sM
        k(f'buffer_load_dwordx4 {vr(vM,4)}, v{vG0}, {WS}, s{sb} offen sc1')
        k(f'buffer_load_dwordx4 {vr(vM+4,4)}, v{vG1}, {WS}, s{sb} offen sc1')
    k(f"s_waitcnt vmcnt({OPT['rep']})")
    NU = OPT['nu2']
    k(f's_add_u32 s{sT0}, s{sX}, {4096 - UF_SEG}')
    for j in range(8-NU, 8): k(ldu(j))
    gl()
    for x in sw[:16-2*NU]: k(x)
    for r in range(0, 32, 2): k(f'v_mov_b64 {vr(vA+r,2)}, 0')
    for j in range(2, 7): k(f'v_add_u32 v{vG+j}, s{50+j}, v{vL16}')
    k(f's_add_u32 s45, s{sSTEP}, 1')
    k(f's_lshr_b32 s45, s45, 2')
    k(f's_lshl_b32 s45, s45, 7')
    k(f's_add_u32 s45, s45, {flag(F_U)}')
    k(f's_add_u32 s44, s43, {28*1024}')
    vm = [stum(0,0), stum(0,1), stum(1,0), stum(1,1)] + [ldu(j) for j in range(8)]
    lw(0)
    k(f's_mov_b32 s{sCNT}, 0')
    k(f's_branch {lp}w')
    k.label(lp)
    if OPT['bgs']: k(f"s_sleep {OPT['bgs']}")
    gl()
    k(f's_add_u32 s{sCNT}, s{sCNT}, 1')
    k(f's_cmp_gt_u32 s{sCNT}, s{sT2}')
    k('s_cbranch_scc1 L_fail')
    k.label(lp + 'w')
    k('s_waitcnt vmcnt(1)')
    k(f'v_max3_u32 v{vC}, v{vM}, v{vM+1}, v{vM+2}')
    k('s_waitcnt vmcnt(0)')
    k(f'v_max3_u32 v{vC+1}, v{vM+4}, v{vM+5}, v{vM+6}')
    k(f'v_max3_u32 v{vC}, v{vC}, v{vM+3}, v{vM+7}')
    k(f'v_max_u32 v{vC}, v{vC}, v{vC+1}')
    k(f'v_cmp_eq_u32 vcc, -1, v{vC}')
    k(f's_cbranch_vccnz {lp}')
    stamp(k, 0, stamps)
    k.ds(f'ds_write_b128 v{vG0}, {vr(vM,4)} offset:{LM}')
    k.ds(f'ds_write_b128 v{vG1}, {vr(vM+4,4)} offset:{LM}')
    ls, l2 = k.newlabel('Lbs'), k.newlabel('Lbt')
    k(f's_cmp_eq_u32 s{sSTEP}, 0')
    k(f's_cbranch_scc1 {l2}')
    k(f's_cmp_ge_u32 s{sWAVE}, 2')
    k(f's_cbranch_scc1 {ls}')
    k(f'buffer_store_dword v{vKeep}, v{vL4}, {WS}, s47 offen sc1')
    k(f's_branch {l2}')
    k.label(ls)
    k(f's_cmp_eq_u32 s{sWAVE}, 2')
    k(f's_cselect_b32 s{sT0}, s{sSTEP}, 0')
    k(f's_cmp_le_u32 s{sT0}, 1')
    k(f's_cbranch_scc1 {l2}')
    k(f's_lshl_b32 s{sT0}, s{sSTEP}, 7')
    k(f's_add_u32 s{sT0}, s{sT0}, {flag(F_UM) - 256}')
    k('s_mov_b64 exec, 1')
    k(f'v_mov_b32 v{vC}, 1')
    k(f'buffer_atomic_add v{vC}, off, {WS}, s{sT0}')
    k('s_mov_b64 exec, -1')
    k.label(l2)
    k(f'buffer_load_dword v{vFl}, off, {WS}, s45 sc1')
    for x in vm[:4]: k(x)
    def acc(gi): return vA + 4*gi
    def cvt(gi, h):
        hh, T = gi>>1, gi&1
        d = vUm + 8*T + 4*(hh>>1) + 2*h + (hh&1)
        a = acc(gi) + 2*h
        k(f'v_cvt_pk_bf16_f32 v{d}, v{a}, v{a+1}')
    def lw1(gi, f):
        k.ds(f'ds_read_b128 {vr(vTm+16*(gi&1)+4*f,4)}, v{vWL} offset:{gi*4096+f*1024}', f'w{gi}')
    def MB(gi, j):
        w = xr(W(gi,j),8) if j < 5 else vr(vTm + 16*(gi&1) + 8*(j-5), 8)
        k(f'v_smfmac_f32_16x16x64_bf16 {vr(acc(gi),4)}, {vr(vM+4*j,4)}, {w}, v{vIdx}')
    for n in range(16):
        MB(n & 7, n >> 3)
        if n == 5:
            k.wds0(); k('s_barrier')
        if 5 <= n < 10:
            k.ds(f'ds_read_b128 {vr(vM+4*(n-3),4)}, v{vG+n-3} offset:{LM}', f'm{n-3}')
    for gi in range(8):
        for j in range(2, 7):
            if gi == 0: k.wds(f'm{j}')
            if j == 5: k.wds(f'w{gi}')
            MB(gi, j)
            if gi < 7 and j in (2, 3, 5, 6): lw1(gi+1, {2:0, 3:1, 5:2, 6:3}[j])
            if gi >= 1 and j == 4: cvt(gi-1, 0); cvt(gi-1, 1)
    k(f's_mov_b32 s43, s{sUM}')
    k(f's_add_u32 s{sUM}, s{sUM}, {UM_SEG}')
    for x in sw[16-2*NU:]: k(x)
    k.nop(max(0, 6 - 2*NU))
    cvt(7, 0); cvt(7, 1)
    for r in range(0, 8, 2): k(f'v_mov_b64 {vr(vD+r,2)}, 0')
    k(f's_cmp_ge_u32 s{sSTEP}, {NSTEP}')
    k('s_cbranch_scc1 L_B_end')
    k('s_waitcnt vmcnt(4)')
    if OPT['u0'] == 'cold':
        l0, l1 = k.newlabel('Lu0'), k.newlabel('Lu1')
        k(f's_cmp_eq_u32 s{sSTEP}, 0')
        k(f's_cbranch_scc1 {l0}')
        k.label(l1)
        main = k.lines; k.lines = []
        k.label(l0)
        load_u(0)
        k('s_waitcnt vmcnt(0)')
        for x in sw: k(x)
        k(f'v_mov_b32 v{vFl}, 32')
        k(f's_branch {l1}')
        k.cold += k.lines; k.lines = main
    if wait_u:
        lu = k.newlabel('Lnu')
        k(f'v_cmp_le_u32 vcc, 32, v{vFl}')
        k(f's_cbranch_vccnz {lu}')
        wait_u(k, 45, 32, vC)
        k.label(lu)
    k(f's_add_u32 s{sT0}, s{sX}, 4096')
    for j in range(8-NU): k(ldu(j))
    k(f's_add_u32 s{sX}, s{sX}, {UF_SEG}')
    stamp(k, 1, stamps)
    if OPT['sleepB']: k(f"s_sleep {OPT['sleepB']}")
    def issue(st):
        P = vP[st]
        return [f'buffer_load_dwordx4 {vr(P,4)}, v{vPT}, {WS}, s{sP} offen sc1',
                f'buffer_load_dwordx4 {vr(P+4,4)}, v{vPT}, {WS}, s{sP} offen offset:1024 sc1',
                f'buffer_load_dwordx4 {vr(P+8,4)}, v{vPM}, {WS}, s{sP} offen sc1']
    def checks(st):
        P = vP[st]
        return [(2, [f'v_max3_u32 v{vC}, v{P}, v{P+1}, v{P+2}']),
                (1, [f'v_max3_u32 v{vC+1}, v{P+4}, v{P+5}, v{P+6}', f'v_max3_u32 v{vC}, v{vC}, v{P+3}, v{P+7}']),
                (0, [f'v_max3_u32 v{vC+1}, v{vC+1}, v{P+8}, v{P+9}', f'v_max3_u32 v{vC}, v{vC}, v{P+10}, v{P+11}',
                     f'v_max_u32 v{vC}, v{vC}, v{vC+1}', f'v_cmp_eq_u32 vcc, -1, v{vC}'])]
    def body(st):
        P = vP[st]
        stamp(k, 2, stamps)
        for j in range(3):
            for T in range(2):
                b = vr(vUi + 16*j + 8*T, 8) if j < 2 else vr(vUm + 8*T, 8)
                k(f'v_smfmac_f32_16x16x64_bf16 {vr(vD+4*T,4)}, {vr(P+4*j,4)}, {b}, v{vIdx}')
    if OPT['bp2']: poll2(k, issue, checks, body, 'Lpp', OPT['stag'])
    else:
        lp = k.newlabel('Lp1')
        k(f's_mov_b32 s{sCNT}, 0')
        k.label(lp)
        for x in issue(0): k(x)
        k(f's_add_u32 s{sCNT}, s{sCNT}, 1')
        k(f's_cmp_gt_u32 s{sCNT}, s{sT2}')
        k('s_cbranch_scc1 L_fail')
        for rel, ins in checks(0):
            k(f's_waitcnt vmcnt({rel})')
            for x in ins: k(x)
        k(f's_cbranch_vccnz {lp}')
        body(0)
    k(f's_add_u32 s{sM}, s{sM}, {MEM_T}')
    k(f's_add_u32 s47, s47, {MEM_S}')
    k(f's_add_u32 s48, s{sM}, {MEM_S}')
    k(f's_add_u32 s49, s{sM}, {2*MEM_S}')
    k(f's_add_u32 s{sP}, s{sP}, {PB_S}')
    k.nop(6)
    for r in range(4): k(f'v_permlane32_swap_b32 v{vD+r}, v{vD+4+r}')
    k(f'v_pk_add_f32 {vr(vD,2)}, {vr(vD,2)}, {vr(vD+4,2)}')
    k(f'v_pk_add_f32 {vr(vD+2,2)}, {vr(vD+2,2)}, {vr(vD+6,2)}')
    k.ds(f'ds_write_b128 v{vRW}, {vr(vD,4)}')
    k.wds0()
    k('s_barrier')
    k(f's_cmp_ge_u32 s{sWAVE}, 2')
    k('s_cbranch_scc1 L_B_skip')
    R = vG
    for w in range(4): k.ds(f'ds_read2_b32 {vr(R+2*w,2)}, v{vRR} offset0:{0} offset1:{4}' if w == 0 else
                            f'ds_read2_b32 {vr(R+2*w,2)}, v{vRR2+w-1} offset0:0 offset1:4', f'r{w}')
    k(f's_cmp_eq_u32 s{sMODE}, 1')
    k.wds('r1')
    k(f'v_pk_add_f32 {vr(R,2)}, {vr(R,2)}, {vr(R+2,2)}')
    k.wds('r3')
    k(f'v_pk_add_f32 {vr(R+4,2)}, {vr(R+4,2)}, {vr(R+6,2)}')
    k(f'v_pk_add_f32 {vr(R,2)}, {vr(R,2)}, {vr(R+4,2)}')
    k(f'v_cvt_pk_bf16_f32 v{R}, v{R}, v{R+1}')
    k(f'v_min_u32 v{R}, -2, v{R}')
    publish(k, [f'buffer_store_dword v{R}, v{vL4}, {WS}, s{x} offen' for x in {1: [sM], 2: [sM, 49], 3: [sM, 48, 49]}[OPT['rep']]])
    k(f'v_mov_b32 v{vKeep}, v{R}')
    k(f's_cmp_lg_u32 s{sSTEP}, {NSTEP-1}')
    k('s_cbranch_scc1 L_B_skip2')
    k(f'buffer_store_dword v{R}, v{vL4}, {WS}, s47 offen sc1')
    k('s_branch L_B_skip2')
    k.label('L_B_skip')
    k('s_waitcnt vmcnt(0)')
    k.label('L_B_skip2')
    stamp(k, 3, stamps)
    k('s_barrier')
    k(f's_add_u32 s{sSTEP}, s{sSTEP}, 1')
    if stamps: k(f's_add_u32 s{sST}, s{sST}, 16')
    k('s_branch L_B_loop')
    k.label('L_B_end')
    edge(k, stamps, 8)
    k(f's_add_u32 s44, s43, {28*1024}')
    for x in vm[:4]: k(x)
    k('s_waitcnt vmcnt(0)')
    k('s_barrier')
    k(f's_cmp_lg_u32 s{sWAVE}, 0')
    k('s_cbranch_scc1 L_exit')
    k('s_mov_b64 exec, 3')
    k(f'v_mov_b32 v{vC}, 1')
    k(f'v_lshlrev_b32 v{vC+1}, 7, v{vLane}')
    k(f's_mov_b32 s{sT0}, {flag(F_UM + 62)}')
    k(f'buffer_atomic_add v{vC}, v{vC+1}, {WS}, s{sT0} offen')
    k('s_endpgm')
    k.flush_cold()

def role_P(k, wait_u=None):
    WS = f's[{SWS}:{SWS+3}]'
    vLane, vU, vX, vS, vD = 1, 2, 3, 4, 8
    D = OPT['pfd']; st = OPT['pfs']; sh = 7 if st == 128 else 6
    k.label('L_roleP')
    k(f's_mov_b32 s{sT2}, {POLL_LIMIT}')
    k(f's_sub_u32 s{sID}, s{sROLE}, 30')
    k(f's_lshl_b32 s{sID}, s{sID}, 2')
    k(f's_add_u32 s{sID}, s{sID}, s{sWAVE}')
    k(f'v_and_b32 v{vLane}, 63, v0')
    k(f'v_lshlrev_b32 v{vU}, {sh}, v{vLane}')
    k(f's_mul_i32 s40, s{sID}, {UF_SEG//8}')
    k(f'v_add_u32 v{vU}, s40, v{vU}')
    k(f'v_min_u32 v{vX}, 55, v{vLane}')
    k(f'v_lshlrev_b32 v{vX}, 6, v{vX}')
    k(f's_mul_i32 s40, s{sID}, 3584')
    k(f'v_add_u32 v{vX}, s40, v{vX}')
    k(f'v_min_u32 v{vS}, 19, v{vLane}')
    k(f'v_lshlrev_b32 v{vS}, 6, v{vS}')
    k(f's_mul_i32 s40, s{sID}, 1280')
    k(f'v_add_u32 v{vS}, s40, v{vS}')
    k(f'v_min_u32 v{vS+1}, 41, v{vLane}')
    k(f'v_lshlrev_b32 v{vS+1}, 6, v{vS+1}')
    k(f's_mul_i32 s40, s{sID}, 2688')
    k(f'v_add_u32 v{vS+1}, s40, v{vS+1}')
    k(f's_mov_b32 s{sSTEP}, 0')
    k(f's_mov_b32 s{sX}, {UF}')
    k(f's_mov_b32 s{sUM}, {XNS}')
    k(f's_mov_b32 s{sP}, {PB}')
    k(f's_mov_b32 s{sM}, {MEM + MEM_T}')
    k(f's_mov_b32 s41, {MEM - D*MEM_T + (2*MEM_S if OPT["rep"] > 1 else 0)}')
    if OPT['cpf']:
        k('s_getpc_b64 s[44:45]')
        k.label('L_P_pc')
        k('s_sub_u32 s44, s44, L_P_pc-L_roleA')
        k('s_subb_u32 s45, s45, 0')
        k(f's_lshl_b32 s40, s{sID}, 12')
        k(f'v_lshlrev_b32 v20, 6, v{vLane}')
        k('v_add_u32 v20, s40, v20')
        k('v_min_u32 v20, L_P_pc-L_roleA, v20')
        k('v_mov_b32 v21, s45')
        k('v_add_co_u32 v20, vcc, s44, v20')
        k('s_nop 1')
        k('v_addc_co_u32 v21, vcc, 0, v21, vcc')
        k('global_load_dword v22, v[20:21], off')
    k.label('L_P_loop')
    k(f's_cmp_le_u32 s{sSTEP}, {D}')
    k('s_cbranch_scc1 L_P_go')
    k(f's_mov_b32 s{sCNT}, 0')
    k.label('L_P_wait')
    k(f'buffer_load_dword v{vD}, off, {WS}, s41 sc1')
    k(f's_add_u32 s{sCNT}, s{sCNT}, 1')
    k(f's_cmp_gt_u32 s{sCNT}, s{sT2}')
    k('s_cbranch_scc1 L_fail')
    k('s_waitcnt vmcnt(0)')
    k(f'v_cmp_eq_u32 vcc, -1, v{vD}')
    k('s_cbranch_vccz L_P_go')
    k('s_sleep 2')
    k('s_branch L_P_wait')
    k.label('L_P_go')
    k(f'buffer_load_dword v{vD+1}, v{vS}, {WS}, s{sP} offen sc1')
    k(f'buffer_load_dword v{vD+2}, v{vS+1}, {WS}, s{sM} offen sc1')
    k(f'buffer_load_dword v{vD+3}, v{vX}, {WS}, s{sUM} offen sc1')
    n = 0 if OPT['apf'] else UF_SEG // 8 // (64*st)
    k(f's_mov_b32 s{sT0}, s{sX}')
    for j in range(n):
        k(f'buffer_load_dword v{vD+4+j}, v{vU}, {WS}, s{sT0} offen sc1')
        k(f's_add_u32 s{sT0}, s{sT0}, {64*st}')
    k(f's_add_u32 s{sX}, s{sX}, {UF_SEG}')
    k(f's_add_u32 s{sUM}, s{sUM}, 28672')
    k(f's_add_u32 s{sP}, s{sP}, {PB_S}')
    k(f's_add_u32 s{sM}, s{sM}, {MEM_T}')
    k(f's_add_u32 s41, s41, {MEM_T}')
    k(f's_add_u32 s{sSTEP}, s{sSTEP}, 1')
    k(f's_cmp_lt_u32 s{sSTEP}, {NSTEP}')
    k('s_cbranch_scc1 L_P_loop')
    k('s_waitcnt vmcnt(0)')
    k('s_endpgm')
```

```python
from chain import K, OPT
from asmlib import *
from layout import *
import math, struct

def f32bits(x): return struct.unpack('<I', struct.pack('<f', x))[0]
PREP_GRID, PREP_BLOCK, PREP_LDS = 256, 512, 3*43008

def srd(k, s, argoff, size):
    k(f's_load_dwordx2 s[{s}:{s+1}], s[0:1], {argoff}')
    k(f's_mov_b32 s{s+2}, {size}')
    k(f's_mov_b32 s{s+3}, 0x20000')

def gen_prep(tl=False):
    k = K()
    WS = 's[4:7]'
    k(f's_cmp_ge_u32 s2, {PREP_GRID}')
    k('s_cbranch_scc1 P_exit')
    srd(k, 4, 112, WS_SIZE)
    k('v_lshrrev_b32 v1, 6, v0')
    k('v_and_b32 v2, 63, v0')
    k('v_readfirstlane_b32 s16, v1')
    if tl: k('s_memrealtime s[40:41]')
    k('s_nop 2')
    if OPT['k1pf']:
        k('s_cmp_ge_u32 s16, 4')
        k('s_cbranch_scc1 P_nopf')
        k('s_lshl_b32 s44, s16, 3')
        k('s_add_u32 s44, s44, 16')
        k('s_load_dwordx2 s[56:57], s[0:1], s44')
        k('s_mov_b32 s58, 3670016')
        k('s_mov_b32 s59, 0x20000')
        k('v_lshlrev_b32 v190, 7, v2')
        k('s_mul_i32 s44, s2, 14336')
        k('s_add_u32 s45, s44, 6144')
        k('s_waitcnt lgkmcnt(0)')
        k('s_and_b32 s57, s57, 0xffff')
        k('buffer_load_dword v191, v190, s[56:59], s44 offen')
        k('buffer_load_dword v189, v190, s[56:59], s45 offen')
        k.label('P_nopf')
    k('s_cmp_eq_u32 s16, 7')
    k('s_cbranch_scc1 P_ln')
    k('s_and_b32 s19, s2, 15')
    k('s_bfe_u32 s18, s2, 0x10005')
    k('s_lshr_b32 s20, s2, 6')
    k('s_bitcmp1_b32 s2, 4')
    k('s_cbranch_scc1 P_gB0')
    srd(k, 8, 16, 3670016); srd(k, 12, 24, 3670016)
    k('s_branch P_g1')
    k.label('P_gB0')
    srd(k, 8, 32, 3670016); srd(k, 12, 40, 3670016)
    k.label('P_g1')
    vI, vG, vL16 = 3, 4, 5
    vR, vC, vRA, vCA, vt = 6, 10, 12, 16, 18
    vRAs, vCAs = 20, 24
    k(f'v_and_b32 v{vI}, 15, v2')
    k(f'v_lshrrev_b32 v{vG}, 4, v2')
    k(f'v_lshlrev_b32 v{vL16}, 4, v2')
    k('s_mul_i32 s21, s18, 7')
    k('s_add_u32 s21, s21, s16')
    k(f'v_lshrrev_b32 v{vt}, 3, v2')
    k('s_lshl_b32 s22, s21, 5')
    k(f'v_add_u32 v{vt}, s22, v{vt}')
    k(f'v_lshlrev_b32 v{vt}, 13, v{vt}')
    k('s_lshl_b32 s22, s19, 9')
    k(f'v_add_u32 v{vt}, s22, v{vt}')
    k(f'v_and_b32 v{vt+1}, 7, v2')
    k(f'v_and_b32 v26, 1, v{vG}')
    k(f'v_xor_b32 v{vt+1}, v{vt+1}, v26')
    for q in range(4):
        k(f'v_xor_b32 v26, {2*q}, v{vt+1}')
        k(f'v_lshl_add_u32 v{vR+q}, v26, 4, v{vt}')
        if q: k(f'v_add_u32 v{vR+q}, {q*8*8192}, v{vR+q}')
    k(f'v_lshrrev_b32 v{vt}, 2, v{vI}')
    k(f'v_bfe_u32 v{vt+1}, v{vI}, 1, 1')
    k(f'v_lshl_add_u32 v{vt+1}, v{vt}, 1, v{vt+1}')
    k(f'v_xor_b32 v{vt+1}, v{vt+1}, v{vG}')
    k(f'v_lshlrev_b32 v{vt+1}, 4, v{vt+1}')
    k(f'v_lshl_add_u32 v{vt+1}, v{vt}, 10, v{vt+1}')
    k(f'v_and_b32 v{vt}, 3, v{vI}')
    k(f'v_lshl_add_u32 v{vt+1}, v{vt}, 7, v{vt+1}')
    k('s_lshl_b32 s33, s16, 12')
    k(f'v_add_u32 v{vRA}, s33, v{vt+1}')
    k(f'v_xor_b32 v{vRA+1}, 64, v{vRA}')
    k('s_lshl_b32 s22, s18, 1')
    k('s_add_u32 s22, s22, s20')
    for j in range(4):
        k(f's_add_u32 s{24+j}, s22, {j}')
        k(f's_and_b32 s{24+j}, s{24+j}, 3')
    vAcc, vOp = 28, 84
    k('s_lshl_b32 s32, s16, 11')
    k('s_add_u32 s32, s32, 28672')
    def mm(n):
        o = vOp + 36*(n&1)
        for T in range(2):
            for ct in range(7):
                a = vAcc + 28*T + 4*ct
                k(f'v_mfma_f32_16x16x32_bf16 {vr(a,4)}, {vr(o+4*T,4)}, {vr(o+8+4*ct,4)}, {"0" if n == 0 else vr(a,4)}')
    def body(gstep, rdc, cdma):
        if tl == 2: k('s_memrealtime s[46:47]')
        k('s_waitcnt lgkmcnt(0)')
        if tl == 2: k('s_memrealtime s[48:49]')
        k('s_and_b32 s5, s5, 0xffff'); k('s_and_b32 s9, s9, 0xffff'); k('s_and_b32 s13, s13, 0xffff')
        k.vmq = []
        def issue(j):
            sb = (j % 3)*43008
            k(f's_lshl_b32 s36, s{24+j}, 7')
            k(f's_mul_i32 s35, s{24+j}, {gstep}')
            for q in range(4):
                k(f's_add_u32 s34, s33, {sb + q*1024}')
                k('s_mov_b32 m0, s34')
                k('s_nop 0')
                k.vm(f'buffer_load_dwordx4 v{vR+q}, s[8:11], s36 offen lds', j)
            cdma(sb, j)
        D = OPT['k1d']
        for j in range(D): issue(j)
        if tl == 2: k('s_memrealtime s[50:51]')
        def rd(n):
            j, es = n >> 1, n & 1
            o = vOp + 36*(n&1)
            for T in range(2): k(f'ds_read_b128 {vr(o+4*T,4)}, v{vRAs+es} offset:{T*512}')
            rdc(o + 8, es)
        for n in range(9):
            j = n >> 1
            if n < 8 and n % 2 == 0:
                sb = (j % 3)*43008
                k.wvm(j, extra='lgkmcnt(0)')
                k('s_barrier')
                if j + D < 4: issue(j + D)
                if tl == 1 and j in (0, 1, 3): k(f's_memrealtime s[{46+2*((j+1)//2)}:{47+2*((j+1)//2)}]')
                for e in range(2):
                    k(f'v_add_u32 v{vRAs+e}, {sb}, v{vRA+e}')
                    k(f'v_add_u32 v{vCAs+e}, {sb}, v{vCA+e}')
            if n < 8: rd(n)
            if n > 0:
                k(f's_waitcnt lgkmcnt({0 if (n == 8 or tl) else min(15, rdc.n + 2)})')
                mm(n-1)
    k('s_bitcmp1_b32 s2, 4')
    k('s_cbranch_scc1 P_gB')
    k('s_mul_i32 s22, s20, 7')
    k('s_add_u32 s22, s22, s16')
    k('s_lshr_b32 s23, s22, 1')
    k('s_lshl_b32 s23, s23, 5')
    k('s_and_b32 s22, s22, 1')
    k('s_lshl_b32 s22, s22, 3')
    k('s_add_u32 s22, s22, s23')
    k(f'v_bfe_u32 v{vt}, v2, 4, 1')
    k(f'v_lshlrev_b32 v{vt}, 2, v{vt}')
    k(f'v_bfe_u32 v{vt+1}, v2, 5, 1')
    k(f'v_lshl_add_u32 v{vt}, v{vt+1}, 1, v{vt}')
    k(f'v_bfe_u32 v{vt+1}, v2, 3, 1')
    k(f'v_add3_u32 v{vt}, v{vt}, v{vt+1}, s22')
    k(f'v_lshlrev_b32 v{vt}, 13, v{vt}')
    k('s_lshl_b32 s22, s19, 9')
    k(f'v_add_u32 v{vt}, s22, v{vt}')
    k(f'v_and_b32 v{vt+1}, 7, v2')
    k(f'v_xor_b32 v{vt+1}, v{vt+1}, v{vG}')
    k(f'v_lshl_add_u32 v{vC}, v{vt+1}, 4, v{vt}')
    k(f'v_xor_b32 v{vt+1}, 4, v{vt+1}')
    k(f'v_lshl_add_u32 v{vC+1}, v{vt+1}, 4, v{vt}')
    k(f'v_add_u32 v{vC+1}, {16*8192}, v{vC+1}')
    k(f'v_lshrrev_b32 v{vt}, 1, v{vI}')
    k(f'v_xor_b32 v{vt}, v{vt}, v{vG}')
    k(f'v_lshlrev_b32 v{vt}, 4, v{vt}')
    k(f'v_lshl_add_u32 v{vt}, v{vI}, 7, v{vt}')
    k(f'v_add_u32 v{vCA}, 28672, v{vt}')
    k(f'v_xor_b32 v{vCA+1}, 64, v{vCA}')
    def rdA(o, es):
        for ct in range(7): k(f'ds_read_b128 {vr(o+4*ct,4)}, v{vCAs+es} offset:{ct*2048}')
    rdA.n = 7
    def dmaA(sb, j):
        for hq in range(2):
            k(f's_add_u32 s34, s32, {sb + hq*1024}')
            k('s_mov_b32 m0, s34')
            k('s_nop 0')
            k.vm(f'buffer_load_dwordx4 v{vC+hq}, s[12:15], s35 offen lds', j)
    body(128, rdA, dmaA)
    k(f's_mov_b32 s22, {f32bits(math.log2(math.e)/16):#x}')
    k(f's_mov_b32 s23, {WTA}')
    k('s_branch P_gepi')
    k.label('P_gB')
    k(f's_mov_b32 s22, {(1<<32)//14 + 1}')
    k(f'v_mul_hi_u32 v{vt}, v0, s22')
    k(f'v_mul_u32_u24 v{vt+1}, 14, v{vt}')
    k(f'v_sub_u32 v{vt+1}, v0, v{vt+1}')
    k(f'v_mul_u32_u24 v{vt}, 896, v{vt}')
    k(f'v_lshl_add_u32 v{vt}, v{vt+1}, 4, v{vt}')
    k('s_mul_i32 s22, s19, 229376')
    k('s_mul_i32 s23, s20, 224')
    k('s_add_u32 s22, s22, s23')
    k(f'v_add_u32 v{vC}, s22, v{vt}')
    k(f'v_add_u32 v{vC+1}, {32*896}, v{vC}')
    k('s_lshl_b32 s32, s16, 10')
    k('s_add_u32 s32, s32, 28672')
    k(f'v_bfe_u32 v{vt}, v2, 2, 2')
    k(f'v_lshl_add_u32 v{vt}, v{vG}, 3, v{vt}')
    k(f'v_mul_u32_u24 v{vt}, 224, v{vt}')
    k(f'v_and_b32 v{vt+1}, 3, v2')
    k(f'v_lshl_add_u32 v{vt}, v{vt+1}, 3, v{vt}')
    k(f'v_add_u32 v{vCA}, 28672, v{vt}')
    k(f'v_add_u32 v{vCA+1}, 7168, v{vCA}')
    def rdB(o, es):
        for ct in range(7):
            for hh in range(2): k(f'ds_read_b64_tr_b16 {vr(o+4*ct+2*hh,2)}, v{vCAs+es} offset:{ct*32+hh*896}')
    rdB.n = 14
    def dmaB(sb, j):
        for hq in range(2):
            k(f's_add_u32 s34, s32, {sb + hq*7168}')
            k('s_mov_b32 m0, s34')
            k('s_nop 0')
            k.vm(f'buffer_load_dwordx4 v{vC+hq}, s[12:15], s35 offen lds', j)
    body(64*896, rdB, dmaB)
    k('s_mov_b32 s22, 1.0')
    k(f's_mov_b32 s23, {WTB}')
    k.label('P_gepi')
    if tl: k('s_memrealtime s[52:53]')
    k('s_mul_i32 s24, s19, 28')
    k('s_mul_i32 s25, s20, 7')
    k('s_add_u32 s24, s24, s25')
    k('s_mul_i32 s24, s24, 14')
    k('s_add_u32 s24, s24, s21')
    k('s_lshl_b32 s24, s24, 10')
    k('s_add_u32 s24, s24, s23')
    k('s_mov_b32 s23, s22')
    for ct in range(7):
        d = vOp + 4*ct
        for T in range(2):
            a = vAcc + 28*T + 4*ct
            k(f'v_pk_mul_f32 {vr(a,2)}, {vr(a,2)}, s[22:23]')
            k(f'v_pk_mul_f32 {vr(a+2,2)}, {vr(a+2,2)}, s[22:23]')
            k(f'v_cvt_pk_bf16_f32 v{d+2*T}, v{a}, v{a+1}')
            k(f'v_cvt_pk_bf16_f32 v{d+2*T+1}, v{a+2}, v{a+3}')
        k(f'buffer_store_dwordx4 {vr(d,4)}, v{vL16}, {WS}, s24 offen ' + OPT['k1st'])
        k('s_add_u32 s24, s24, 14336')
    if tl:
        k('s_waitcnt vmcnt(0)')
        k('s_memrealtime s[42:43]')
        k('s_lshl_b32 s44, s2, 5')
        k(f's_add_u32 s44, s44, {STAMP + 0xE0000}')
        k('s_waitcnt lgkmcnt(0)')
        k('v_mov_b32 v10, s40'); k('v_mov_b32 v11, s42'); k('v_mov_b32 v12, s46'); k('v_mov_b32 v13, s48')
        k('v_mov_b32 v14, s50'); k('v_mov_b32 v15, s52')
        k(f'buffer_store_dwordx4 v[10:13], off, {WS}, s44')
        k(f'buffer_store_dwordx2 v[14:15], off, {WS}, s44 offset:16')
    k('s_endpgm')
    k.label('P_ln')
    srd(k, 8, 0, 1835008); srd(k, 12, 64, 896)
    srd(k, 28, 8, 7168)
    k('s_mov_b32 s17, s2')
    k('v_lshrrev_b32 v3, 3, v2')
    k('s_lshl_b32 s18, s17, 3')
    k('v_add_u32 v3, s18, v3')
    k('v_and_b32 v4, 7, v2')
    k('v_mul_u32_u24 v5, 896, v3')
    k('v_lshl_add_u32 v5, v4, 4, v5')
    k('v_lshlrev_b32 v6, 4, v4')
    vX, vW, vF = 16, 44, 72
    k('s_waitcnt lgkmcnt(0)')
    k('s_and_b32 s5, s5, 0xffff'); k('s_and_b32 s9, s9, 0xffff'); k('s_and_b32 s13, s13, 0xffff')
    for i in range(7): k(f'buffer_load_dwordx4 {vr(vX+4*i,4)}, v5, s[8:11], 0 offen offset:{i*128}')
    for i in range(7): k(f'buffer_load_dwordx4 {vr(vW+4*i,4)}, v6, s[12:15], 0 offen offset:{i*128}')
    k('v_lshrrev_b32 v7, 4, v3')
    k('v_mul_u32_u24 v7, 14336, v7')
    k('v_and_b32 v8, 15, v3')
    k('v_lshl_add_u32 v7, v8, 4, v7')
    k('v_lshrrev_b32 v8, 2, v4')
    k('v_lshl_add_u32 v7, v8, 10, v7')
    k('v_and_b32 v8, 3, v4')
    k('v_lshl_add_u32 v9, v8, 8, v7')
    k('v_bfe_u32 v8, v4, 1, 1')
    k('v_lshl_add_u32 v10, v8, 9, v7')
    k('v_and_b32 v8, 1, v4')
    k('v_lshl_add_u32 v10, v8, 3, v10')
    k('s_mov_b32 s20, 0xffff0000')
    k('s_and_b32 s29, s29, 0xffff')
    k('v_bfe_u32 v12, v2, 2, 3')
    k('v_mul_u32_u24 v12, 896, v12')
    k('v_and_b32 v13, 3, v2')
    k('v_lshl_add_u32 v12, v13, 3, v12')
    k('v_lshrrev_b32 v13, 5, v2')
    k('v_lshl_add_u32 v12, v13, 2, v12')
    k('s_lshl_b32 s21, s2, 5')
    k('buffer_load_dword v160, v12, s[28:31], s21 offen')
    k('s_barrier')
    def fills():
        k('s_mov_b32 s32, s4'); k('s_mov_b32 s33, s5'); k(f's_mov_b32 s34, {SENT_END - MEM_S}'); k('s_mov_b32 s35, 0x20000')
        k('s_mov_b32 s36, s4'); k('s_mov_b32 s37, s5'); k(f's_mov_b32 s38, {FLG + FLG_SZ}'); k('s_mov_b32 s39, 0x20000')
        k('v_lshlrev_b32 v11, 4, v2')
        k('s_mul_i32 s21, s2, 10240')
        k(f's_add_u32 s21, s21, {MEM + MEM_T}')
        for r in range(4): k(f'v_mov_b32 v{164+r}, -1')
        for r in range(4): k(f'v_mov_b32 v{168+r}, 0')
        for r in range(10):
            k(f'buffer_store_dwordx4 v[164:167], v11, s[32:35], s21 offen offset:{(r&3)*1024} ' + OPT['k1ln'])
            if (r&3) == 3: k('s_add_u32 s21, s21, 4096')
        k('s_mul_i32 s21, s2, 12288')
        k(f's_add_u32 s21, s21, {PT}')
        for r in range(12):
            k(f'buffer_store_dwordx4 v[164:167], v11, {WS}, s21 offen offset:{(r&3)*1024} ' + OPT['k1ln'])
            if (r&3) == 3: k('s_add_u32 s21, s21, 4096')
        k('s_lshl_b32 s21, s2, 10')
        k(f's_add_u32 s21, s21, {FLG}')
        k('buffer_store_dwordx4 v[168:171], v11, s[36:39], s21 offen ' + OPT['k1ln'])
    late = OPT['k1late']
    if not late: fills()
    k(f's_waitcnt vmcnt({8 if late else 31})')
    for d in range(28):
        k(f'v_lshlrev_b32 v{vF+2*d}, 16, v{vX+d}')
        k(f'v_and_b32 v{vF+2*d+1}, s20, v{vX+d}')
    def red8(v):
        for ctl in ('quad_perm:[1,0,3,2]', 'quad_perm:[2,3,0,1]', 'row_half_mirror'):
            k.nop(2)
            k(f'v_add_f32_dpp v{v}, v{v}, v{v} {ctl} row_mask:0xf bank_mask:0xf')
    def rbf(v):
        k(f'v_cvt_pk_bf16_f32 v{v}, v{v}, v{v}')
        k(f'v_and_b32 v{v}, s20, v{v}')
    k(f'v_pk_add_f32 v[12:13], {vr(vF,2)}, {vr(vF+2,2)}')
    for d in range(2, 28): k(f'v_pk_add_f32 v[12:13], v[12:13], {vr(vF+2*d,2)}')
    k('v_add_f32 v12, v12, v13')
    k('s_barrier')
    red8(12)
    k(f's_mov_b32 s21, {f32bits(1/448):#x}')
    k('v_mul_f32 v12, s21, v12')
    k('v_mov_b32 v14, 0'); k('v_mov_b32 v15, 0')
    for d in range(28):
        k(f'v_pk_add_f32 {vr(vX,2)}, {vr(vF+2*d,2)}, v[12:13] op_sel_hi:[1,0] neg_lo:[0,1] neg_hi:[0,1]')
        k(f'v_pk_fma_f32 v[14:15], {vr(vX,2)}, {vr(vX,2)}, v[14:15]')
    k('v_add_f32 v14, v14, v15')
    red8(14)
    k('v_mul_f32 v14, s21, v14')
    rbf(14)
    k(f'v_add_f32 v14, {f32bits(1e-5):#x}, v14')
    rbf(14)
    k('v_sqrt_f32 v14, v14')
    k.nop(1)
    rbf(14)
    k('v_rcp_f32 v15, v14')
    rbf(12)
    k(f's_waitcnt vmcnt({0 if late else 23})')
    k('v_mov_b32 v128, 0'); k('v_mov_b32 v129, 0')
    vO, vS = vX, 132
    for d in range(28):
        f = vF + 2*d
        k(f'v_pk_add_f32 {vr(f,2)}, {vr(f,2)}, v[12:13] op_sel_hi:[1,0] neg_lo:[0,1] neg_hi:[0,1]')
        k(f'v_cvt_pk_bf16_f32 v130, v{f}, v{f+1}')
        k(f'v_lshlrev_b32 v{f}, 16, v130')
        k(f'v_and_b32 v{f+1}, s20, v130')
        k(f'v_pk_mul_f32 v[130:131], {vr(f,2)}, v[14:15] op_sel:[0,1] op_sel_hi:[1,1]')
        k(f'v_pk_fma_f32 {vr(f,2)}, v[130:131], v[14:15], {vr(f,2)} op_sel_hi:[1,0,1] neg_lo:[1,0,0] neg_hi:[1,0,0]')
        k(f'v_pk_fma_f32 v[130:131], {vr(f,2)}, v[14:15], v[130:131] op_sel:[0,1,0] op_sel_hi:[1,1,1]')
        k(f'v_cvt_pk_bf16_f32 v{vO+d}, v130, v131')
        so = vS + 4*(d>>2) + {0:0, 1:2, 2:1, 3:3}[d&3]
        k(f'v_mov_b32 v{so}, v{vO+d}')
        k(f'v_dot2_f32_bf16 v{128+(d&1)}, v{vO+d}, v{vW+d}, v{128+(d&1)}')
        if d in (3, 15): k('s_barrier')
    k(f's_mov_b32 s22, {XNR}'); k(f's_mov_b32 s23, {XNF}'); k(f's_mov_b32 s24, {XNS}')
    for i in range(7):
        k(f'buffer_store_dwordx4 {vr(vO+4*i,4)}, v5, {WS}, s22 offen offset:{i*128} ' + OPT['k1ln'])
        k(f'buffer_store_dwordx4 {vr(vO+4*i,4)}, v9, {WS}, s23 offen offset:{(i&1)*2048} ' + OPT['k1ln'])
        k(f'buffer_store_dwordx2 {vr(vS+4*i,2)}, v10, {WS}, s24 offen offset:{(i&1)*2048} ' + OPT['k1ln'])
        k(f'buffer_store_dwordx2 {vr(vS+4*i+2,2)}, v10, {WS}, s24 offen offset:{(i&1)*2048+256} ' + OPT['k1ln'])
        if i & 1:
            k('s_add_u32 s23, s23, 4096'); k('s_add_u32 s24, s24, 4096')
    if late: fills()
    k.nop(2)
    k('v_add_f32 v128, v128, v129')
    red8(128)
    rbf(128)
    k('v_lshlrev_b32 v3, 2, v3')
    k(f's_mov_b32 s22, {RR}')
    k(f'buffer_store_dword v128, v3, {WS}, s22 offen ' + OPT['k1ln'])
    if tl:
        k('s_waitcnt vmcnt(0)')
        k('s_memrealtime s[42:43]')
        k('s_lshl_b32 s44, s2, 5')
        k(f's_add_u32 s44, s44, {STAMP + 0xE0000}')
        k('s_waitcnt lgkmcnt(0)')
        k('v_mov_b32 v10, s42')
        k(f'buffer_store_dword v10, off, {WS}, s44 offset:24')
    k('s_cmp_ge_u32 s2, 28')
    k('s_cbranch_scc1 P_exit')
    k('v_min_u32 v160, -2, v160')
    k('v_lshlrev_b32 v11, 2, v2')
    k('s_lshl_b32 s21, s2, 8')
    k(f's_add_u32 s22, s21, {MEM}')
    k(f's_add_u32 s21, s21, {SENT_END - MEM_S}')
    for r in range(NREP):
        k(f'buffer_store_dword v160, v11, {WS}, s22 offen ' + OPT['k1ln'])
        k(f's_add_u32 s22, s22, {MEM_S}')
    k(f'buffer_store_dword v160, v11, {WS}, s21 offen ' + OPT['k1ln'])
    k.label('P_exit')
    k('s_endpgm')
    return k
```

```python
from asmlib import *
from layout import *

class K(Asm):
    def __init__(self):
        super().__init__()
        self.dsq = []; self.cold = []; self.vmq = []
    def ds(self, text, tag=None):
        self(text); self.dsq.append(tag)
    def wds(self, tag):
        if tag not in self.dsq: return
        idx = max(i for i, t in enumerate(self.dsq) if t == tag)
        n = len(self.dsq) - 1 - idx
        assert n <= 15
        self(f's_waitcnt lgkmcnt({n})')
        self.dsq = self.dsq[idx+1:]
    def wds0(self):
        self('s_waitcnt lgkmcnt(0)'); self.dsq = []
    def vm(self, text, tag=None):
        self(text); self.vmq.append(tag)
    def wvm(self, *tags, extra=''):
        idx = max([i for i, t in enumerate(self.vmq) if t in tags], default=-1)
        if idx < 0:
            if extra: self('s_waitcnt ' + extra)
            return
        n = len(self.vmq) - 1 - idx
        assert n <= 63
        self(f's_waitcnt vmcnt({n}) {extra}')
        self.vmq = self.vmq[idx+1:]
    def flush_cold(self):
        for l in self.cold: self(l)
        self.cold = []

SWS, SDBG = 4, 8
sROLE, sWAVE, sSTEP, sMODE, sM, sP, sX, sUM, sCNT = 12, 13, 14, 15, 16, 17, 18, 19, 20
sT0, sT1, sT2 = 21, 22, 23
sMASK8 = 24
sID = 26
sST = 28
sTM = 30
POLL_LIMIT = 400000
NSTEP = 63
OPT = dict(sa='late', sb='early', um='sc1', uf='sc1', sleepA=0, sleepB=0, stampmask=15, rt=0, barA=1, barB=1, prefP=0, pfd=2, pfs=128, upos='early', ud=2, apf=1, nb=8, stag=1, wpos=1, rsp=1, s1pos=0, upre=8, uneed=32, ust='sc1', rot=1, k1st='sc1', uwin=2, k1d=2, ap2=0, stagA=2, gv=0, rep=5, prep=2, k1late=0, cpf=0, sm2=0, tm=1, bp2=1, k1pf=0, k1ln='sc1', u0='cold', align=0, w64=0, p64=0, kpos='post', kdel=7, nu2=4, bgs=0, vsl=120, usl=120, psl=16, msl=120)

def stamp(k, idx, on):
    if not on or not (OPT['stampmask'] >> idx) & 1: return
    k(('s_memrealtime' if OPT['rt'] else 's_memtime') + f' s[{sTM}:{sTM+1}]')
    k.wds0()
    k(f'v_mov_b32 v0, s{sTM}')
    k(f'buffer_store_dword v0, off, s[{SWS}:{SWS+3}], s{sST} offset:{idx*4}')

def edge(k, on, off):
    if not on or OPT['rt']: return
    lp = k.newlabel('Led')
    k('s_memrealtime s[70:71]')
    k('s_waitcnt lgkmcnt(0)')
    k.label(lp)
    k('s_memrealtime s[72:73]')
    k('s_memtime s[74:75]')
    k('s_waitcnt lgkmcnt(0)')
    k('s_cmp_eq_u32 s72, s70')
    k(f's_cbranch_scc1 {lp}')
    k('v_mov_b32 v0, s72')
    k(f'buffer_store_dword v0, off, s[{SWS}:{SWS+3}], s76 offset:{off}')
    k('v_mov_b32 v0, s74')
    k(f'buffer_store_dword v0, off, s[{SWS}:{SWS+3}], s76 offset:{off+4}')

def publish(k, text):
    ls, ld = k.newlabel('Lslow'), k.newlabel('Lpub')
    if isinstance(text, str): text = [text]
    k(f's_cbranch_scc0 {ls}')
    for x in text: k(x)
    k.label(ld)
    k.cold += [ls + ':'] + [x + ' sc1' for x in text] + [f's_branch {ld}']

def gather_mem(k, vG, vOff0, vOff1, vL0, vL1, vT):
    lp, dn = k.newlabel('Lgm'), k.newlabel('Lgd')
    k(f's_mov_b32 s{sCNT}, 0')
    k.label(lp)
    k(f'buffer_load_dwordx4 {vr(vG,4)}, v{vOff0}, s[{SWS}:{SWS+3}], s{sM} offen sc1')
    k(f'buffer_load_dwordx4 {vr(vG+4,4)}, v{vOff1}, s[{SWS}:{SWS+3}], s{sM} offen sc1')
    k(f's_add_u32 s{sCNT}, s{sCNT}, 1')
    k(f's_cmp_gt_u32 s{sCNT}, s{sT2}')
    k('s_cbranch_scc1 L_fail')
    k('s_waitcnt vmcnt(1)')
    k(f'v_max3_u32 v{vT}, v{vG}, v{vG+1}, v{vG+2}')
    k('s_waitcnt vmcnt(0)')
    k(f'v_max3_u32 v{vT+1}, v{vG+4}, v{vG+5}, v{vG+6}')
    k(f'v_max3_u32 v{vT}, v{vT}, v{vG+3}, v{vG+7}')
    k(f'v_max_u32 v{vT}, v{vT}, v{vT+1}')
    k(f'v_cmp_eq_u32 vcc, -1, v{vT}')
    k(f's_cbranch_vccnz {lp}')
    if vL0 is None: return
    k.ds(f'ds_write_b128 v{vL0}, {vr(vG,4)}')
    k.ds(f'ds_write_b128 v{vL1}, {vr(vG+4,4)}')
    k.wds0()
    k('s_barrier')

def wait_mode(k, vT):
    lp = k.newlabel('Lwm')
    k(f's_mov_b32 s{sCNT}, 0')
    k(f'v_and_b32 v{vT+1}, 15, v0')
    k(f'v_lshlrev_b32 v{vT+1}, 2, v{vT+1}')
    k.label(lp)
    k(f'buffer_load_dword v{vT}, v{vT+1}, s[{SDBG}:{SDBG+3}], 0 offen offset:32 sc1')
    k(f's_add_u32 s{sCNT}, s{sCNT}, 1')
    k(f's_cmp_gt_u32 s{sCNT}, s{sT2}')
    k('s_cbranch_scc1 L_fail')
    k('s_waitcnt vmcnt(0)')
    k(f'v_cmp_eq_u32 vcc, 32, v{vT}')
    for rot in (8, 4, 2, 1):
        k.nop(2)
        k(f'v_add_u32_dpp v{vT}, v{vT}, v{vT} row_ror:{rot} row_mask:0xf bank_mask:0xf')
    k.nop(1)
    k(f'v_readfirstlane_b32 s{sMODE}, v{vT}')
    k('s_nop 3')
    k(f's_cmp_lt_u32 s{sMODE}, 32')
    k(f's_cbranch_scc1 {lp}')
    k('s_cmp_lg_u64 vcc, 0')
    k(f's_cselect_b32 s{sMODE}, 1, 2')

def common_lane_setup(k, vLane, vL16, vG0, vG1, vIdx, vT):
    k(f'v_and_b32 v{vLane}, 63, v0')
    k(f'v_lshlrev_b32 v{vL16}, 4, v{vLane}')
    if vG0 is not None:
        k(f's_lshl_b32 s{sT0}, s{sWAVE}, 10')
        k(f'v_add_u32 v{vG0}, s{sT0}, v{vL16}')
        k(f's_add_u32 s{sT0}, s{sWAVE}, 4')
        k(f's_min_u32 s{sT0}, s{sT0}, 6')
        k(f's_lshl_b32 s{sT0}, s{sT0}, 10')
        k(f'v_add_u32 v{vG1}, s{sT0}, v{vL16}')
    k(f'v_and_b32 v{vT}, 8, v{vLane}')
    k(f'v_mov_b32 v{vIdx}, 0x4444')
    k(f'v_mov_b32 v{vT+1}, 0xeeee')
    k(f'v_cmp_ne_u32 vcc, 0, v{vT}')
    k('s_nop 1')
    k(f'v_cndmask_b32 v{vIdx}, v{vIdx}, v{vT+1}, vcc')
    k(f's_mov_b32 s{sT2}, {POLL_LIMIT}')

def poll2(k, issue, checks, body, name, stag):
    nl = len(issue(0))
    l0, d0, d1, dn = [k.newlabel(name + x) for x in ('lp', 'd0', 'd1', 'dn')]
    k(f's_mov_b32 s{sCNT}, 0')
    for x in issue(0): k(x)
    k(f"s_sleep {stag}")
    k.label(l0)
    for st, dl in ((0, d0), (1, d1)):
        for x in issue(1 - st): k(x)
        if st == 0:
            k(f's_add_u32 s{sCNT}, s{sCNT}, 1')
            k(f's_cmp_gt_u32 s{sCNT}, s{sT2}')
            k('s_cbranch_scc1 L_fail')
        for rel, ins in checks(st):
            k(f's_waitcnt vmcnt({nl + rel})')
            for x in ins: k(x)
        if st == 0: k(f's_cbranch_vccz {d0}')
        else:       k(f's_cbranch_vccnz {l0}x')
    saved = list(k.dsq)
    body(1)
    k(f's_branch {dn}')
    k.label(l0 + 'x')
    k(f's_branch {l0}')
    k.label(d0)
    end = list(k.dsq); k.dsq = saved
    body(0)
    assert k.dsq == end
    k.label(dn)

def role_A(k, stamps=False):
    vLane, vL16, vIdx = 1, 2, 3
    vKey, vKeyS, vMK, vMKS, vQW, vQR, vSW, vSR, vPO, vVal = 4, 5, 6, 7, 8, 9, 10, 11, 12, 13
    vT = 14
    vM = 16
    vQ = 44
    vKT = 72
    vKM = 100
    vX = 114
    vG0, vG1 = 118, 119
    def W(lt, kb):
        i = lt*7 + kb
        return (256 + 8*i) if i < 32 else (120 + 8*(i-32))
    LM, LSP, LQS = 0, 7168, 20480
    k.label('L_roleA')
    k(f's_mov_b32 s{sID}, s{sROLE}')
    common_lane_setup(k, vLane, vL16, vG0, vG1, vIdx, vX)
    k(f's_lshr_b32 s{sT0}, s{sWAVE}, 1')
    k(f's_mul_i32 s{sT0}, s{sT0}, 14')
    k(f's_and_b32 s{sT1}, s{sWAVE}, 1')
    k(f's_add_u32 s33, s{sT0}, 6')
    k(f's_add_u32 s33, s33, s{sT1}')
    k(f's_lshl_b32 s34, s{sT1}, 3')
    k(f's_add_u32 s32, s{sT0}, s34')
    k(f's_mul_i32 s35, s{sID}, {28*14*1024}')
    k(f's_add_u32 s35, s35, {WTA}')
    k(f's_mul_i32 s36, s32, {14*1024}')
    k(f's_add_u32 s36, s36, s35')
    k(f's_mul_i32 s37, s33, {14*1024}')
    k(f's_add_u32 s37, s37, s35')
    for j in range(7):
        k(f's_add_u32 s{50+j}, s{sWAVE}, {(4*j) % 7}')
        k(f's_sub_u32 s40, s{50+j}, 7')
        k(f's_cmp_ge_u32 s{50+j}, 7')
        k(f's_cselect_b32 s{50+j}, s40, s{50+j}')
        k(f's_lshl_b32 s{50+j}, s{50+j}, 10')
    n = 0
    for lt in range(7):
        sb = 36 if lt < 6 else 37
        for j in range(7):
            k(f's_lshl_b32 s40, s{50+j}, 1')
            k(f's_add_u32 s40, s40, s{sb}')
            for f in range(2):
                k(f'buffer_load_dwordx4 {xr(W(lt, j) + 4*f,4)}, v{vL16}, s[{SWS}:{SWS+3}], s40 offen offset:{f*1024}')
                n += 1
                if n % 16 == 0: k('s_waitcnt vmcnt(40)')
        k(f's_add_u32 s{sb}, s{sb}, 14336')
    k(f'v_add_u32 v{vG1}, s51, v{vL16}')
    t = vX
    g, i = vQ, vQ+1
    k(f'v_lshrrev_b32 v{g}, 4, v{vLane}')
    k(f'v_and_b32 v{i}, 15, v{vLane}')
    k(f's_lshr_b32 s38, s32, 1')
    k(f's_lshr_b32 s39, s33, 1')
    k(f's_lshl_b32 s40, s38, 10')
    k(f'v_add_u32 v{vKey}, s40, v{vL16}')
    k(f's_lshl_b32 s40, s39, 10')
    k(f's_add_u32 s40, s40, s34')
    k(f'v_add_u32 v{vKeyS}, s40, v{vL16}')
    k(f'v_lshrrev_b32 v{t}, 1, v{g}')
    k(f'v_lshlrev_b32 v{t}, 8, v{t}')
    k(f'v_and_b32 v{t+1}, 7, v{i}')
    k(f'v_lshlrev_b32 v{t+1}, 4, v{t+1}')
    k(f'v_add_u32 v{t}, v{t}, v{t+1}')
    k(f'v_and_b32 v{t+1}, 1, v{g}')
    k(f'v_lshlrev_b32 v{t+1}, 7, v{t+1}')
    k(f'v_add_u32 v{t}, v{t}, v{t+1}')
    k(f's_lshl_b32 s40, s38, 9')
    k(f'v_add_u32 v{vMK}, s40, v{t}')
    k(f's_lshl_b32 s40, s39, 9')
    k(f's_add_u32 s40, s40, s34')
    k(f'v_add_u32 v{vMKS}, s40, v{t}')
    k(f's_lshl_b32 s40, s{sWAVE}, 10')
    k(f's_add_u32 s40, s40, {LQS}')
    k(f'v_lshrrev_b32 v{t}, 2, v{i}')
    k(f'v_add_u32 v{t}, v{t}, v{g}')
    k(f'v_and_b32 v{t}, 3, v{t}')
    k(f'v_lshlrev_b32 v{t}, 3, v{t}')
    k(f'v_lshlrev_b32 v{t+1}, 5, v{i}')
    k(f'v_add3_u32 v{vQW}, v{t}, v{t+1}, s40')
    k(f'v_lshrrev_b32 v{t}, 2, v{vLane}')
    k(f'v_lshlrev_b32 v{t}, 5, v{t}')
    k(f'v_add_u32 v{t+1}, v{vLane}, v{g}')
    k(f'v_and_b32 v{t+1}, 3, v{t+1}')
    k(f'v_lshlrev_b32 v{t+1}, 3, v{t+1}')
    k(f'v_add3_u32 v{vQR}, v{t}, v{t+1}, s40')
    k(f's_mul_i32 s40, s{sWAVE}, 3264')
    k(f's_add_u32 s40, s40, {LSP}')
    k(f'v_lshlrev_b32 v{t}, 4, v{i}')
    k(f'v_mul_u32_u24 v{t+1}, 272, v{g}')
    k(f'v_add3_u32 v{vSW}, v{t}, v{t+1}, s40')
    k(f'v_subrev_u32 v{t}, 12, v{i}')
    k(f'v_cmp_le_u32 vcc, 12, v{i}')
    k('s_nop 1')
    k(f'v_cndmask_b32 v{t}, v{i}, v{t}, vcc')
    k(f'v_lshrrev_b32 v{t+1}, 5, v{vLane}')
    k(f's_lshl_b32 s40, s{sWAVE}, 1')
    k(f'v_add_u32 v{t+1}, s40, v{t+1}')
    k(f'v_and_b32 v{t+2}, 1, v{g}')
    k(f'v_lshl_add_u32 v{t+3}, v{t+2}, 3, v{t+1}')
    k(f'v_lshlrev_b32 v{t+3}, 4, v{t+3}')
    k(f'v_mul_u32_u24 v{vSR}, 272, v{t}')
    k(f'v_add_u32 v{vSR}, v{vSR}, v{t+3}')
    if LSP: k(f'v_add_u32 v{vSR}, {LSP}, v{vSR}')
    k(f's_and_b32 s42, s{sID}, 1')
    k(f's_lshl_b32 s42, s42, 3')
    k(f'v_add_u32 v{t+1}, s42, v{t+1}')
    k(f'v_and_b32 v{vPO}, 1, v{i}')
    k(f'v_lshlrev_b32 v{vPO}, 3, v{vPO}')
    k(f'v_lshl_add_u32 v{vPO}, v{t+1}, 4, v{vPO}')
    k(f'v_bfe_u32 v{t}, v{i}, 1, 1')
    k(f'v_lshl_add_u32 v{vPO}, v{t}, 8, v{vPO}')
    k(f'v_bfe_u32 v{t}, v{i}, 3, 1')
    k(f'v_lshl_add_u32 v{vPO}, v{t}, 9, v{vPO}')
    k(f's_lshr_b32 s41, s{sID}, 1')
    k(f's_lshl_b32 s40, s41, 10')
    k(f'v_add_u32 v{vPO}, s40, v{vPO}')
    k(f'v_lshlrev_b32 v{t}, 3, v{i}')
    k(f'v_lshl_add_u32 v{t}, v{t+1}, 4, v{t}')
    k(f's_lshl_b32 s40, s41, 8')
    k(f's_add_u32 s40, s40, 8192')
    k(f'v_add_u32 v{t}, s40, v{t}')
    k(f'v_mov_b32 v{t+3}, 0x40000000')
    k(f'v_cmp_le_u32 vcc, 2, v{i}')
    k('s_nop 1')
    k(f'v_cndmask_b32 v{t}, v{t}, v{t+3}, vcc')
    k(f'v_cmp_le_u32 vcc, 4, v{i}')
    k('s_nop 1')
    k(f'v_cndmask_b32 v{vPO}, v{t}, v{vPO}, vcc')
    k(f'v_cmp_le_u32 vcc, 12, v{i}')
    k('s_nop 1')
    k(f'v_cndmask_b32 v{vPO}, v{vPO}, v{t+3}, vcc')
    k(f'v_lshl_add_u32 v{vPO}, v{t+2}, 2, v{vPO}')
    k(f'v_mov_b32 v{vVal}, 1.0')
    k(f'v_cmp_le_u32 vcc, v{t+3}, v{vPO}')
    k('s_nop 1')
    k(f'v_cndmask_b32 v{vVal}, v{vVal}, 0, vcc')
    k(f's_mov_b32 s{sSTEP}, 0')
    k(f"s_lshr_b32 s{sM}, s{sID}, {3 if OPT['rep'] == 3 else 2}")
    k(f"s_mul_i32 s{sM}, s{sM}, {MEM_S}")
    k(f's_add_u32 s{sM}, s{sM}, {MEM}')
    k(f's_mov_b32 s{sP}, {PB}')
    k(f's_mov_b32 s{sX}, {XNS}')
    k(f's_lshl_b32 s40, s{sID}, 2')
    k(f's_add_u32 s40, s40, s{sWAVE}')
    k(f's_mul_i32 s40, s40, 7168')
    k(f'v_min_u32 v{vX}, {55*16}, v{vL16}')
    k(f'v_lshlrev_b32 v{vX}, 3, v{vX}')
    k(f'v_add_u32 v{vX}, s40, v{vX}')
    k(f"s_mov_b32 s{sUM}, {UF + OPT['ud']*UF_SEG}")
    WS = f's[{SWS}:{SWS+3}]'
    def key_list():
        L = []
        for p in range(3):
            L.append(f'buffer_load_dwordx4 {vr(vKT+8*p,4)}, v{vKey}, {WS}, s{sX} offen offset:{p*1024}')
            L.append(f'buffer_load_dwordx4 {vr(vKT+8*p+4,4)}, v{vKey}, {WS}, s46 offen offset:{p*1024}')
        L.append(f'buffer_load_dwordx2 {vr(vKT+24,2)}, v{vKeyS}, {WS}, s{sX} offen')
        L.append(f'buffer_load_dwordx2 {vr(vKT+26,2)}, v{vKeyS}, {WS}, s46 offen')
        return L
    def load_keys(keys=True):
        if keys:
            for x in key_list(): k(x)
        k(f's_add_u32 s{sX}, s{sX}, 28672')
        k(f's_add_u32 s46, s{sX}, 14336')
        k(f's_add_u32 s{sT0}, s{sSTEP}, {1 + OPT["ud"]}')
        k(f's_lshr_b32 s{sT0}, s{sT0}, 2')
        k(f's_lshl_b32 s{sT0}, s{sT0}, 7')
        k(f's_add_u32 s{sT0}, s{sT0}, {flag(F_U)}')
        k(f'buffer_load_dword v{vX+2}, off, {WS}, s{sT0} sc1')
    if OPT['tm']:
        k(f'v_lshlrev_b32 v{vQ+2}, 2, v{g}')
        k(f'v_sub_u32 v{vQ+2}, v{i}, v{vQ+2}')
        k(f'v_and_b32 v{vQ+3}, 1, v{vQ+2}')
        k(f'v_lshlrev_b32 v{vQ+3}, 4, v{vQ+3}')
        k(f'v_mov_b32 v{vLane}, 0x3f80')
        k(f'v_lshlrev_b32 v{vLane}, v{vQ+3}, v{vLane}')
        k(f'v_cmp_gt_u32 vcc, 4, v{vQ+2}')
        k(f'v_cmp_lt_u32 s[48:49], 1, v{vQ+2}')
        k('s_nop 0')
        k(f'v_cndmask_b32 v{vLane}, 0, v{vLane}, vcc')
    k(f's_add_u32 s46, s{sX}, 14336')
    k(f's_mov_b32 s{sSTEP}, -1')
    load_keys()
    k(f's_mov_b32 s{sSTEP}, 0')
    wait_mode(k, vT)
    k(f'v_mov_b32 v{vX+3}, 0x40000000')
    if stamps: k(f's_add_u32 s76, s{sST}, 0x20000')
    edge(k, stamps, 0)
    k.label('L_A_loop')
    for r in range(0, 28, 2): k(f'v_mov_b64 {vr(vQ+r,2)}, 0')
    k(f's_add_u32 s47, s{sP}, {PB_S}')
    vAd = vKM + 6
    for j in range(2, 7): k(f'v_add_u32 v{vAd+j}, s{50+j}, v{vL16}')
    def Mx(lt, kb, src):
        return f'v_smfmac_f32_16x16x64_bf16 {vr(vQ+4*lt,4)}, {vr(src,4)}, {xr(W(lt,kb),8)}, v{vIdx}'
    def M(lt, kb): return Mx(lt, kb, vM+4*kb)
    mk = [f'ds_read_b128 {vr(vKM+4*p,4)}, v{vMK} offset:{LM+p*512}' for p in range(3)]
    mk.append(f'ds_read_b64 {vr(vKM+12,2)}, v{vMKS} offset:{LM}')
    sets = [vM, vKM]
    def issue(st):
        return [f'buffer_load_dwordx4 {vr(sets[st],4)}, v{vG0}, {WS}, s{sM} offen sc1',
                f'buffer_load_dwordx4 {vr(sets[st]+4,4)}, v{vG1}, {WS}, s{sM} offen sc1']
    def checks(st):
        G = sets[st]
        return [(1, [f'v_max3_u32 v{vT}, v{G}, v{G+1}, v{G+2}']),
                (0, [f'v_max3_u32 v{vT+1}, v{G+4}, v{G+5}, v{G+6}', f'v_max3_u32 v{vT}, v{vT}, v{G+3}, v{G+7}',
                     f'v_max_u32 v{vT}, v{vT}, v{vT+1}', f'v_cmp_eq_u32 vcc, -1, v{vT}'])]
    NB = OPT['nb']
    def body(st):
        G = sets[st]
        stamp(k, 0, stamps)
        wrs = [f'ds_write_b128 v{vG0}, {vr(G,4)} offset:{LM}', f'ds_write_b128 v{vG1}, {vr(G+4,4)} offset:{LM}']
        seq = [(lt, j) for j in range(2) for lt in range(7)]
        for n, (lt, j) in enumerate(seq):
            k(Mx(lt, j, G + 4*j))
            if OPT['w64'] == 0 and n < 2: k.ds(wrs[n])
            if OPT['w64'] == 1 and n < 4: k.ds(f'ds_write_b64 v{vG0 if n < 2 else vG1}, {vr(G+2*n,2)} offset:{LM + 8*(n&1)}')
            if n == 4: k(f'v_cmp_le_u32 vcc, {OPT["uneed"]}, v{vX+2}')
            if n == 5: k('s_nop 0'); k(f'v_cndmask_b32 v{vX+1}, v{vX+3}, v{vX}, vcc')
            if n == NB - 1:
                k.wds0(); k('s_barrier')
            if NB - 1 <= n < NB + 4:
                jj = n - (NB - 1) + 2
                k.ds(f'ds_read_b128 {vr(vM+4*jj,4)}, v{vAd+jj} offset:{LM}', f'm{jj}')
            if n == NB + 5: k(f'buffer_load_dword v0, v{vX+1}, {WS}, s{sUM} offen sc1')
    if OPT['ap2']:
        poll2(k, issue, checks, body, 'Lga', OPT['stagA'])
    else:
        gather_mem(k, vM, vG0, vG1, None, None, vT)
        body(0)
    def cvt(lt, h):
        k(f'v_cvt_pk_bf16_f32 v{vQ+4*lt+h}, v{vQ+4*lt+2*h}, v{vQ+4*lt+2*h+1}')
    def wr(lt):
        k.ds(f'ds_write_b64 v{vQW}, {vr(vQ+4*lt,2)} offset:{512*(lt&1)}')
    def tr(p, h):
        k.ds(f'ds_read_b64_tr_b16 {vr(vQ+8*p+2*h,2)}, v{vQR} offset:{512*h}', f'q{p}')
    vSt = [vM, vM+4, vQ+4]
    def S(p, t):
        q = vQ + 8*p
        c = '0' if p == 0 else vr(vSt[t],4)
        if p < 3:
            a = vKM+4*p if t == 0 else vKT+8*p+4*(t-1)
            k(f'v_mfma_f32_16x16x32_bf16 {vr(vSt[t],4)}, {vr(a,4)}, {vr(q,4)}, {c}')
        else:
            a = vKM+12 if t == 0 else vKT+24+2*(t-1)
            k(f'v_mfma_f32_16x16x16_bf16 {vr(vSt[t],4)}, {vr(a,2)}, {vr(q,2)}, {c}')
    for lt in range(7):
        for j in range(2, 7):
            if lt == 0: k.wds(f'm{j}')
            k(M(lt, j))
            if OPT['tm'] and lt == 1 and j == 2: k(f'v_cndmask_b32 v{vT}, v{vLane}, 0, s[48:49]')
            if OPT['tm'] and lt == 1 and j == 3: k(f'v_cndmask_b32 v{vT+1}, 0, v{vLane}, s[48:49]')
            if lt == 0 and j == 6:
                k('s_waitcnt vmcnt(1)')
                for x in mk: k.ds(x, 'mk')
            if lt >= 1:
                if j == 4: cvt(lt-1, 0)
                if j == 5: cvt(lt-1, 1)
                if j == 6:
                    wr(lt-1)
                    if (lt-1) & 1: tr((lt-1)//2, 0); tr((lt-1)//2, 1)
        if lt == (4 if OPT['s1pos'] == 0 else 3):
            k.wds('q0')
            for t in range(3): S(0, t)
        if lt == 5 and OPT['s1pos'] == 1:
            k.wds('q1')
            for t in range(3): S(1, t)
    if OPT['s1pos'] == 0:
        k.wds('q1')
        for t in range(3): S(1, t)
        cvt(6, 0); cvt(6, 1)
        if OPT['tm']:
            k.wds('q2')
            k.nop(1)
            k(f'v_mfma_f32_16x16x16_bf16 {vr(vQ+12,4)}, {vr(vQ+24,2)}, {vr(vT,2)}, 0')
            for t in range(3): S(2, t)
            k(f'v_cvt_pk_bf16_f32 v{vQ+24}, v{vQ+12}, v{vQ+13}')
            k(f'v_cvt_pk_bf16_f32 v{vQ+25}, v{vQ+14}, v{vQ+15}')
            k.nop(2)
        else:
            wr(6); tr(3, 0)
            k.wds('q2')
            for t in range(3): S(2, t)
    else:
        k.nop(8)
        cvt(6, 0); cvt(6, 1); wr(6); tr(3, 0)
        k.wds('q2')
        for t in range(3): S(2, t)
    k.wds('q3')
    for t in range(3): S(3, t)
    for t in range(3):
        k.nop(2 if (t == 0 or OPT['p64'] == 0) else 1)
        if OPT['p64'] == 0: k.ds(f'ds_write_b128 v{vSW}, {vr(vSt[t],4)} offset:{1088*t}')
        else:
            k.ds(f'ds_write_b64 v{vSW}, {vr(vSt[t],2)} offset:{1088*t}')
            k.ds(f'ds_write_b64 v{vSW}, {vr(vSt[t]+2,2)} offset:{1088*t+8}')
    k.wds0()
    k('s_barrier')
    stamp(k, 1, stamps)
    mark = len(k.lines)
    R = vQ+8
    for w in range(4): k.ds(f'ds_read_b128 {vr(R+4*w,4)}, v{vSR} offset:{w*3264}', f'r{w}')
    k(f's_cmp_eq_u32 s{sMODE}, 1')
    k.wds('r1')
    k(f'v_pk_add_f32 {vr(R,2)}, {vr(R,2)}, {vr(R+4,2)}')
    k(f'v_pk_add_f32 {vr(R+2,2)}, {vr(R+2,2)}, {vr(R+6,2)}')
    k.wds('r2')
    k(f'v_pk_add_f32 {vr(R,2)}, {vr(R,2)}, {vr(R+8,2)}')
    k(f'v_pk_add_f32 {vr(R+2,2)}, {vr(R+2,2)}, {vr(R+10,2)}')
    k.wds('r3')
    k(f'v_pk_add_f32 {vr(R,2)}, {vr(R,2)}, {vr(R+12,2)}')
    k(f'v_pk_add_f32 {vr(R+2,2)}, {vr(R+2,2)}, {vr(R+14,2)}')
    k.nop(2)
    k(f'v_permlane16_swap_b32 v{R}, v{R+2}')
    k(f'v_permlane16_swap_b32 v{R+1}, v{R+3}')
    X = R+4; m = R+6; t = R+8
    k(f'v_pk_add_f32 {vr(X,2)}, {vr(R,2)}, {vr(R+2,2)}')
    def allred(op, m):
        for rot in (8, 4, 2, 1):
            k.nop(2)
            k(f'{op}_dpp v{m}, v{m}, v{m} row_ror:{rot} row_mask:0xf bank_mask:0xf')
        k(f'v_mov_b32 v{t}, v{m}')
        k.nop(2)
        k(f'v_permlane16_swap_b32 v{m}, v{t}')
        k(f'{op} v{m}, v{m}, v{t}')
    if OPT['sm2'] == 0:
        k(f'v_max_f32 v{m}, v{X}, v{X+1}')
        allred('v_max_f32', m)
        k(f'v_pk_add_f32 {vr(X,2)}, {vr(X,2)}, {vr(m,2)} op_sel_hi:[1,0] neg_lo:[0,1] neg_hi:[0,1]')
        k(f'v_exp_f32 v{X}, v{X}')
        k(f'v_exp_f32 v{X+1}, v{X+1}')
        k.nop(1)
        k(f'v_add_f32 v{m}, v{X}, v{X+1}')
        k(f'v_mul_f32 v{m}, v{m}, v{vVal}')
        allred('v_add_f32', m)
        k(f'v_rcp_f32 v{m}, v{m}')
        k.nop(1)
        k(f'v_pk_mul_f32 {vr(X,2)}, {vr(X,2)}, {vr(m,2)} op_sel_hi:[1,0]')
    else:
        l_, M, sc = R+10, R+12, R+14
        def dpp(op, r, rot): k(f'{op}_dpp v{r}, v{r}, v{r} row_ror:{rot} row_mask:0xf bank_mask:0xf')
        k(f'v_max_f32 v{m}, v{X}, v{X+1}')
        for rot in (8, 4, 2, 1):
            k.nop(2); dpp('v_max_f32', m, rot)
        k(f'v_pk_add_f32 {vr(X,2)}, {vr(X,2)}, {vr(m,2)} op_sel_hi:[1,0] neg_lo:[0,1] neg_hi:[0,1]')
        k(f'v_mov_b32 v{M}, v{m}')
        k(f'v_exp_f32 v{X}, v{X}')
        k(f'v_mov_b32 v{t}, v{m}')
        k(f'v_exp_f32 v{X+1}, v{X+1}')
        k.nop(1)
        k(f'v_add_f32 v{l_}, v{X}, v{X+1}')
        k(f'v_permlane16_swap_b32 v{M}, v{t}')
        k(f'v_mul_f32 v{l_}, v{l_}, v{vVal}')
        k(f'v_max_f32 v{M}, v{M}, v{t}')
        k(f'v_sub_f32 v{sc}, v{m}, v{M}')
        dpp('v_add_f32', l_, 8)
        k(f'v_exp_f32 v{sc}, v{sc}')
        k.nop(1)
        dpp('v_add_f32', l_, 4)
        k(f'v_pk_mul_f32 {vr(X,2)}, {vr(X,2)}, {vr(sc,2)} op_sel_hi:[1,0]')
        k.nop(1)
        dpp('v_add_f32', l_, 2)
        k.nop(2)
        dpp('v_add_f32', l_, 1)
        k(f'v_mul_f32 v{l_}, v{l_}, v{sc}')
        k(f'v_mov_b32 v{t}, v{l_}')
        k.nop(2)
        k(f'v_permlane16_swap_b32 v{l_}, v{t}')
        k(f'v_add_f32 v{l_}, v{l_}, v{t}')
        k(f'v_rcp_f32 v{l_}, v{l_}')
        k.nop(1)
        k(f'v_pk_mul_f32 {vr(X,2)}, {vr(X,2)}, {vr(l_,2)} op_sel_hi:[1,0]')
    k(f'v_cvt_pk_bf16_f32 v{X}, v{X}, v{X+1}')
    k(f'v_min_u32 v{X}, -2, v{X}')
    if OPT['kpos'] == 'soft':
        body_ = k.lines[mark:]; k.lines = k.lines[:mark]; L = key_list()
        for x in body_:
            if x == 's_nop 1' and L: k(L.pop(0)); k('s_nop 0')
            else: k(x)
        assert not L
    publish(k, [f'buffer_store_dword v{X}, v{vPO}, {WS}, s{x} offen' for x in [sP, 47][:OPT['prep']]])
    stamp(k, 2, stamps)
    k('s_barrier')
    if OPT['kdel']: k(f"s_sleep {OPT['kdel']}")
    load_keys(OPT['kpos'] != 'soft')
    if OPT['sleepA']: k(f"s_sleep {OPT['sleepA']}")
    k(f's_add_u32 s{sUM}, s{sUM}, {UF_SEG}')
    k(f's_add_u32 s{sM}, s{sM}, {MEM_T}')
    k(f's_add_u32 s{sP}, s{sP}, {PB_T}')
    if stamps: k(f's_add_u32 s{sST}, s{sST}, 16')
    k(f's_add_u32 s{sSTEP}, s{sSTEP}, 1')
    k(f's_cmp_lt_u32 s{sSTEP}, {NSTEP}')
    k('s_cbranch_scc1 L_A_loop')
    edge(k, stamps, 8)
    k('s_waitcnt vmcnt(0)')
    k('s_endpgm')
    k.flush_cold()

def role_B(k, stamps=False, wait_u=None):
    WS = f's[{SWS}:{SWS+3}]'
    vLane, vL16, vG0, vG1, vIdx = 1, 2, 3, 4, 5
    vWL, vPT, vPM, vRW, vRR, vL4 = 6, 7, 8, 9, 10, 11
    vC = 12
    vM = 16
    vA = 44
    vU = 76
    vTm = 108
    vUi = 140
    vUm = 172
    vRR2 = 188
    vKeep, vFl = 191, 15
    vD = vTm
    vG = vTm + 16
    vP = [vM, vA]
    def W(gi, kb):
        i = gi*5 + kb
        return (256 + 8*i) if i < 32 else (192 + 8*(i-32))
    LM, LRED, LW = 0, 7168, 16384
    k.label('L_roleB')
    k(f's_sub_u32 s{sID}, s{sROLE}, 16')
    common_lane_setup(k, vLane, vL16, vG0, vG1, vIdx, vC)
    k(f's_lshl_b32 s{sT0}, s{sWAVE}, 2')
    k(f's_mul_i32 s{sT0}, s{sT0}, 28')
    k(f's_lshl_b32 s{sT1}, s{sID}, 1')
    k(f's_add_u32 s{sT0}, s{sT0}, s{sT1}')
    k(f's_mul_i32 s35, s{sT0}, 14336')
    k(f's_add_u32 s35, s35, {WTB}')
    k(f's_lshl_b32 s37, s{sWAVE}, 15')
    k(f's_add_u32 s37, s37, {LW}')
    k(f'v_add_u32 v{vWL}, s37, v{vL16}')
    for j in range(7):
        k(f's_add_u32 s{50+j}, s{sWAVE}, {(4*j) % 7}')
        k(f's_sub_u32 s40, s{50+j}, 7')
        k(f's_cmp_ge_u32 s{50+j}, 7')
        k(f's_cselect_b32 s{50+j}, s40, s{50+j}')
        k(f's_lshl_b32 s{50+j}, s{50+j}, 10')
    k(f'v_add_u32 v{vG1}, s51, v{vL16}')
    for gi in range(8):
        k(f's_add_u32 s36, s35, {(gi>>1)*28*14336 + (gi&1)*14336}')
        for j in range(7):
            k(f's_lshl_b32 s40, s{50+j}, 1')
            k(f's_add_u32 s40, s40, s36')
            if j >= 5:
                k(f's_add_u32 s38, s37, {gi*4096 + (j-5)*2048}')
                k(f's_mov_b32 m0, s38')
                k('s_nop 0')
            for f in range(2):
                if j < 5: k(f'buffer_load_dwordx4 {xr(W(gi, j) + 4*f,4)}, v{vL16}, {WS}, s40 offen offset:{f*1024}')
                else:     k(f'buffer_load_dwordx4 v{vL16}, {WS}, s40 offen offset:{f*1024} lds')
        k('s_waitcnt vmcnt(40)')
    g, i = vA, vA+1
    vT = vC
    k(f'v_lshrrev_b32 v{g}, 4, v{vLane}')
    k(f'v_and_b32 v{i}, 15, v{vLane}')
    k(f's_lshl_b32 s40, s{sWAVE}, 11')
    k(f'v_add_u32 v{vPT}, s40, v{vL16}')
    k(f'v_lshrrev_b32 v{vT}, 1, v{g}')
    k(f'v_lshlrev_b32 v{vT}, 8, v{vT}')
    k(f'v_lshl_add_u32 v{vT}, v{i}, 4, v{vT}')
    k(f's_lshl_b32 s40, s{sWAVE}, 9')
    k(f's_add_u32 s40, s40, 8192')
    k(f'v_add_u32 v{vPM}, s40, v{vT}')
    k(f's_lshl_b32 s40, s{sWAVE}, 10')
    k(f's_add_u32 s40, s40, {LRED}')
    k(f'v_add_u32 v{vRW}, s40, v{vL16}')
    k(f'v_and_b32 v{vT}, 3, v{vLane}')
    k(f'v_lshlrev_b32 v{vT}, 6, v{vT}')
    k(f'v_lshrrev_b32 v{vT+1}, 5, v{vLane}')
    k(f'v_lshl_add_u32 v{vT}, v{vT+1}, 5, v{vT}')
    k(f'v_lshrrev_b32 v{vT+1}, 2, v{vLane}')
    k(f'v_and_b32 v{vT+2}, 3, v{vT+1}')
    k(f'v_lshl_add_u32 v{vT}, v{vT+2}, 2, v{vT}')
    k(f'v_bfe_u32 v{vT+2}, v{vLane}, 4, 1')
    k(f'v_lshl_add_u32 v{vT}, v{vT+2}, 8, v{vT}')
    k(f's_and_b32 s40, s{sWAVE}, 1')
    k(f's_lshl_b32 s40, s40, 9')
    k(f's_add_u32 s40, s40, {LRED}')
    k(f'v_add_u32 v{vRR}, s40, v{vT}')
    for w in range(1, 4): k(f'v_add_u32 v{vRR2+w-1}, {1024*w}, v{vRR}')
    k(f's_lshl_b32 s40, s{sID}, 1')
    k(f's_and_b32 s41, s{sWAVE}, 1')
    k(f's_add_u32 s40, s40, s41')
    k(f's_lshl_b32 s40, s40, 8')
    k(f'v_lshlrev_b32 v{vL4}, 2, v{vLane}')
    k(f'v_add_u32 v{vL4}, s40, v{vL4}')
    k(f's_mov_b32 s{sSTEP}, 0')
    k(f's_lshr_b32 s{sM}, s{sWAVE}, 1')
    k(f's_mul_i32 s{sM}, s{sM}, {2*MEM_S}')
    k(f's_add_u32 s{sM}, s{sM}, {MEM}')
    k(f's_mov_b32 s47, {MEMX - MEM_S}')
    k(f"s_mov_b32 s49, {MEM + 4*MEM_S}")
    k(f's_and_b32 s{sP}, s{sID}, 1')
    k(f"s_mul_i32 s{sP}, s{sP}, {PB_S if OPT['prep'] == 2 else 0}")
    k(f's_add_u32 s{sP}, s{sP}, {PB}')
    k(f's_lshl_b32 s{sX}, s{sID}, 15')
    k(f's_lshl_b32 s40, s{sWAVE}, 13')
    k(f's_add_u32 s{sX}, s{sX}, s40')
    k(f's_add_u32 s{sX}, s{sX}, {UF}')
    k(f's_mul_i32 s{sUM}, s{sWAVE}, {2*28*1024}')
    k(f's_lshl_b32 s40, s{sID}, 11')
    k(f's_add_u32 s{sUM}, s{sUM}, s40')
    k(f's_add_u32 s{sUM}, s{sUM}, {UM}')
    k(f's_mov_b32 s43, s{sUM}')
    def ldu(j):
        hh, T = j >> 1, j & 1
        r = vU + 16*(hh>>1) + 8*T + 4*(hh&1)
        return f'buffer_load_dwordx4 {vr(r,4)}, v{vL16}, {WS}, s{sX if j<4 else sT0} offen offset:{(j&3)*1024} ' + OPT['uf']
    def stum(u, T):
        return f'buffer_store_dwordx4 {vr(vUm+8*T+4*u,4)}, v{vL16}, {WS}, s{43 if u==0 else 44} offen offset:{T*1024} ' + OPT['um']
    def lw(gi):
        b = vTm + 16*(gi&1)
        for f in range(4): k.ds(f'ds_read_b128 {vr(b+4*f,4)}, v{vWL} offset:{gi*4096+f*1024}', f'w{gi}')
    def load_u(ahead):
        if wait_u:
            lu = k.newlabel('Lnu')
            k(f's_add_u32 s{sT0}, s{sSTEP}, {ahead}')
            k(f's_and_b32 s{sT1}, s{sT0}, 3')
            k(f's_cbranch_scc1 {lu}')
            k(f's_lshl_b32 s{sT0}, s{sT0}, 5')
            k(f's_add_u32 s{sT0}, s{sT0}, {flag(F_U)}')
            wait_u(k, sT0, 32, vC, sleep=1)
            k.label(lu)
        k(f's_add_u32 s{sT0}, s{sX}, 4096')
        for j in range(8): k(ldu(j))
        k(f's_add_u32 s{sX}, s{sX}, {UF_SEG}')
    if OPT['u0'] == 'pro': load_u(0)
    wait_mode(k, vC)
    sw = []
    for o in range(4):
        r = vU + 8*o
        for e in range(4):
            sel = e & 1
            sw.append(f'v_pk_mov_b32 {vr(vUi+8*o+2*e,2)}, {vr(r+(e&2),2)}, {vr(r+4+(e&2),2)} op_sel:[{sel},{sel}]')
    if stamps: k(f's_add_u32 s76, s{sST}, 0x20000')
    edge(k, stamps, 0)
    k.label('L_B_loop')
    lp = k.newlabel('Lgm')
    def gl():
        sb = 49
        k(f'buffer_load_dwordx4 {vr(vM,4)}, v{vG0}, {WS}, s{sb} offen sc1')
        k(f'buffer_load_dwordx4 {vr(vM+4,4)}, v{vG1}, {WS}, s{sb} offen sc1')
    k('s_waitcnt vmcnt(3)')
    NU = OPT['nu2']
    k(f's_add_u32 s{sT0}, s{sX}, {4096 - UF_SEG}')
    for j in range(8-NU, 8): k(ldu(j))
    gl()
    for x in sw[:16-2*NU]: k(x)
    for r in range(0, 32, 2): k(f'v_mov_b64 {vr(vA+r,2)}, 0')
    for j in range(2, 7): k(f'v_add_u32 v{vG+j}, s{50+j}, v{vL16}')
    k(f's_add_u32 s45, s{sSTEP}, 1')
    k(f's_lshr_b32 s45, s45, 2')
    k(f's_lshl_b32 s45, s45, 7')
    k(f's_add_u32 s45, s45, {flag(F_U)}')
    k(f's_add_u32 s44, s43, {28*1024}')
    vm = [stum(0,0), stum(0,1), stum(1,0), stum(1,1)] + [ldu(j) for j in range(8)]
    lw(0)
    k(f's_mov_b32 s{sCNT}, 0')
    k(f's_branch {lp}w')
    k.label(lp)
    if OPT['bgs']: k(f"s_sleep {OPT['bgs']}")
    gl()
    k(f's_add_u32 s{sCNT}, s{sCNT}, 1')
    k(f's_cmp_gt_u32 s{sCNT}, s{sT2}')
    k('s_cbranch_scc1 L_fail')
    k.label(lp + 'w')
    k('s_waitcnt vmcnt(1)')
    k(f'v_max3_u32 v{vC}, v{vM}, v{vM+1}, v{vM+2}')
    k('s_waitcnt vmcnt(0)')
    k(f'v_max3_u32 v{vC+1}, v{vM+4}, v{vM+5}, v{vM+6}')
    k(f'v_max3_u32 v{vC}, v{vC}, v{vM+3}, v{vM+7}')
    k(f'v_max_u32 v{vC}, v{vC}, v{vC+1}')
    k(f'v_cmp_eq_u32 vcc, -1, v{vC}')
    k(f's_cbranch_vccnz {lp}')
    stamp(k, 0, stamps)
    k.ds(f'ds_write_b128 v{vG0}, {vr(vM,4)} offset:{LM}')
    k.ds(f'ds_write_b128 v{vG1}, {vr(vM+4,4)} offset:{LM}')
    ls, l2 = k.newlabel('Lbs'), k.newlabel('Lbt')
    k(f's_cmp_eq_u32 s{sSTEP}, 0')
    k(f's_cbranch_scc1 {l2}')
    k(f's_cmp_ge_u32 s{sWAVE}, 2')
    k(f's_cbranch_scc1 {ls}')
    k(f'buffer_store_dword v{vKeep}, v{vL4}, {WS}, s47 offen sc1')
    k(f's_branch {l2}')
    k.label(ls)
    k(f's_cmp_eq_u32 s{sWAVE}, 2')
    k(f's_cselect_b32 s{sT0}, s{sSTEP}, 0')
    k(f's_cmp_le_u32 s{sT0}, 1')
    k(f's_cbranch_scc1 {l2}')
    k(f's_lshl_b32 s{sT0}, s{sSTEP}, 7')
    k(f's_add_u32 s{sT0}, s{sT0}, {flag(F_UM) - 256}')
    k('s_mov_b64 exec, 1')
    k(f'v_mov_b32 v{vC}, 1')
    k(f'buffer_atomic_add v{vC}, off, {WS}, s{sT0}')
    k('s_mov_b64 exec, -1')
    k.label(l2)
    k(f'buffer_load_dword v{vFl}, off, {WS}, s45 sc1')
    for x in vm[:4]: k(x)
    def acc(gi): return vA + 4*gi
    def cvt(gi, h):
        hh, T = gi>>1, gi&1
        d = vUm + 8*T + 4*(hh>>1) + 2*h + (hh&1)
        a = acc(gi) + 2*h
        k(f'v_cvt_pk_bf16_f32 v{d}, v{a}, v{a+1}')
    def lw1(gi, f):
        k.ds(f'ds_read_b128 {vr(vTm+16*(gi&1)+4*f,4)}, v{vWL} offset:{gi*4096+f*1024}', f'w{gi}')
    def MB(gi, j):
        w = xr(W(gi,j),8) if j < 5 else vr(vTm + 16*(gi&1) + 8*(j-5), 8)
        k(f'v_smfmac_f32_16x16x64_bf16 {vr(acc(gi),4)}, {vr(vM+4*j,4)}, {w}, v{vIdx}')
    for n in range(16):
        MB(n & 7, n >> 3)
        if n == 5:
            k.wds0(); k('s_barrier')
        if 5 <= n < 10:
            k.ds(f'ds_read_b128 {vr(vM+4*(n-3),4)}, v{vG+n-3} offset:{LM}', f'm{n-3}')
    for gi in range(8):
        for j in range(2, 7):
            if gi == 0: k.wds(f'm{j}')
            if j == 5: k.wds(f'w{gi}')
            MB(gi, j)
            if gi < 7 and j in (2, 3, 5, 6): lw1(gi+1, {2:0, 3:1, 5:2, 6:3}[j])
            if gi >= 1 and j == 4: cvt(gi-1, 0); cvt(gi-1, 1)
    k(f's_mov_b32 s43, s{sUM}')
    k(f's_add_u32 s{sUM}, s{sUM}, {UM_SEG}')
    for x in sw[16-2*NU:]: k(x)
    k.nop(max(0, 6 - 2*NU))
    cvt(7, 0); cvt(7, 1)
    for r in range(0, 8, 2): k(f'v_mov_b64 {vr(vD+r,2)}, 0')
    k(f's_cmp_ge_u32 s{sSTEP}, {NSTEP}')
    k('s_cbranch_scc1 L_B_end')
    k('s_waitcnt vmcnt(4)')
    if OPT['u0'] == 'cold':
        l0, l1 = k.newlabel('Lu0'), k.newlabel('Lu1')
        k(f's_cmp_eq_u32 s{sSTEP}, 0')
        k(f's_cbranch_scc1 {l0}')
        k.label(l1)
        main = k.lines; k.lines = []
        k.label(l0)
        load_u(0)
        k('s_waitcnt vmcnt(0)')
        for x in sw: k(x)
        k(f'v_mov_b32 v{vFl}, 32')
        k(f's_branch {l1}')
        k.cold += k.lines; k.lines = main
    if wait_u:
        lu = k.newlabel('Lnu')
        k(f'v_cmp_le_u32 vcc, 32, v{vFl}')
        k(f's_cbranch_vccnz {lu}')
        wait_u(k, 45, 32, vC)
        k.label(lu)
    k(f's_add_u32 s{sT0}, s{sX}, 4096')
    for j in range(8-NU): k(ldu(j))
    k(f's_add_u32 s{sX}, s{sX}, {UF_SEG}')
    stamp(k, 1, stamps)
    if OPT['sleepB']: k(f"s_sleep {OPT['sleepB']}")
    def issue(st):
        P = vP[st]
        return [f'buffer_load_dwordx4 {vr(P,4)}, v{vPT}, {WS}, s{sP} offen sc1',
                f'buffer_load_dwordx4 {vr(P+4,4)}, v{vPT}, {WS}, s{sP} offen offset:1024 sc1',
                f'buffer_load_dwordx4 {vr(P+8,4)}, v{vPM}, {WS}, s{sP} offen sc1']
    def checks(st):
        P = vP[st]
        return [(2, [f'v_max3_u32 v{vC}, v{P}, v{P+1}, v{P+2}']),
                (1, [f'v_max3_u32 v{vC+1}, v{P+4}, v{P+5}, v{P+6}', f'v_max3_u32 v{vC}, v{vC}, v{P+3}, v{P+7}']),
                (0, [f'v_max3_u32 v{vC+1}, v{vC+1}, v{P+8}, v{P+9}', f'v_max3_u32 v{vC}, v{vC}, v{P+10}, v{P+11}',
                     f'v_max_u32 v{vC}, v{vC}, v{vC+1}', f'v_cmp_eq_u32 vcc, -1, v{vC}'])]
    def body(st):
        P = vP[st]
        stamp(k, 2, stamps)
        for j in range(3):
            for T in range(2):
                b = vr(vUi + 16*j + 8*T, 8) if j < 2 else vr(vUm + 8*T, 8)
                k(f'v_smfmac_f32_16x16x64_bf16 {vr(vD+4*T,4)}, {vr(P+4*j,4)}, {b}, v{vIdx}')
    if OPT['bp2']: poll2(k, issue, checks, body, 'Lpp', OPT['stag'])
    else:
        lp = k.newlabel('Lp1')
        k(f's_mov_b32 s{sCNT}, 0')
        k.label(lp)
        for x in issue(0): k(x)
        k(f's_add_u32 s{sCNT}, s{sCNT}, 1')
        k(f's_cmp_gt_u32 s{sCNT}, s{sT2}')
        k('s_cbranch_scc1 L_fail')
        for rel, ins in checks(0):
            k(f's_waitcnt vmcnt({rel})')
            for x in ins: k(x)
        k(f's_cbranch_vccnz {lp}')
        body(0)
    k(f's_add_u32 s{sM}, s{sM}, {MEM_T}')
    k(f's_add_u32 s47, s47, {MEM_S}')
    k(f's_add_u32 s48, s{sM}, {MEM_S}')
    k(f's_add_u32 s49, s49, {MEM_T}')
    k(f's_add_u32 s{sP}, s{sP}, {PB_T}')
    k.nop(6)
    for r in range(4): k(f'v_permlane32_swap_b32 v{vD+r}, v{vD+4+r}')
    k(f'v_pk_add_f32 {vr(vD,2)}, {vr(vD,2)}, {vr(vD+4,2)}')
    k(f'v_pk_add_f32 {vr(vD+2,2)}, {vr(vD+2,2)}, {vr(vD+6,2)}')
    k.ds(f'ds_write_b128 v{vRW}, {vr(vD,4)}')
    k.wds0()
    k('s_barrier')
    if OPT['rep'] == 3:
        k(f's_cmp_ge_u32 s{sWAVE}, 2')
        k('s_cbranch_scc1 L_B_skip')
    R = vG
    for w in range(4): k.ds(f'ds_read2_b32 {vr(R+2*w,2)}, v{vRR} offset0:{0} offset1:{4}' if w == 0 else
                            f'ds_read2_b32 {vr(R+2*w,2)}, v{vRR2+w-1} offset0:0 offset1:4', f'r{w}')
    k(f's_cmp_eq_u32 s{sMODE}, 1')
    k.wds('r1')
    k(f'v_pk_add_f32 {vr(R,2)}, {vr(R,2)}, {vr(R+2,2)}')
    k.wds('r3')
    k(f'v_pk_add_f32 {vr(R+4,2)}, {vr(R+4,2)}, {vr(R+6,2)}')
    k(f'v_pk_add_f32 {vr(R,2)}, {vr(R,2)}, {vr(R+4,2)}')
    k(f'v_cvt_pk_bf16_f32 v{R}, v{R}, v{R+1}')
    k(f'v_min_u32 v{R}, -2, v{R}')
    publish(k, [f'buffer_store_dword v{R}, v{vL4}, {WS}, s{x} offen' for x in [sM, 48, 49]])
    k(f'v_mov_b32 v{vKeep}, v{R}')
    k(f's_cmp_lg_u32 s{sSTEP}, {NSTEP-1}')
    k('s_cbranch_scc1 L_B_skip2')
    k(f'buffer_store_dword v{R}, v{vL4}, {WS}, s47 offen sc1')
    k('s_branch L_B_skip2')
    k.label('L_B_skip')
    k('s_waitcnt vmcnt(0)')
    k.label('L_B_skip2')
    stamp(k, 3, stamps)
    k('s_barrier')
    k(f's_add_u32 s{sSTEP}, s{sSTEP}, 1')
    if stamps: k(f's_add_u32 s{sST}, s{sST}, 16')
    k('s_branch L_B_loop')
    k.label('L_B_end')
    edge(k, stamps, 8)
    k(f's_add_u32 s44, s43, {28*1024}')
    for x in vm[:4]: k(x)
    k('s_waitcnt vmcnt(0)')
    k('s_barrier')
    k(f's_cmp_lg_u32 s{sWAVE}, 0')
    k('s_cbranch_scc1 L_exit')
    k('s_mov_b64 exec, 3')
    k(f'v_mov_b32 v{vC}, 1')
    k(f'v_lshlrev_b32 v{vC+1}, 7, v{vLane}')
    k(f's_mov_b32 s{sT0}, {flag(F_UM + 62)}')
    k(f'buffer_atomic_add v{vC}, v{vC+1}, {WS}, s{sT0} offen')
    k('s_endpgm')
    k.flush_cold()

def role_P(k, wait_u=None):
    WS = f's[{SWS}:{SWS+3}]'
    vLane, vU, vX, vS, vD = 1, 2, 3, 4, 8
    D = OPT['pfd']; st = OPT['pfs']; sh = 7 if st == 128 else 6
    k.label('L_roleP')
    k(f's_mov_b32 s{sT2}, {POLL_LIMIT}')
    k(f's_sub_u32 s{sID}, s{sROLE}, 30')
    k(f's_lshl_b32 s{sID}, s{sID}, 2')
    k(f's_add_u32 s{sID}, s{sID}, s{sWAVE}')
    k(f'v_and_b32 v{vLane}, 63, v0')
    k(f'v_lshlrev_b32 v{vU}, {sh}, v{vLane}')
    k(f's_mul_i32 s40, s{sID}, {UF_SEG//8}')
    k(f'v_add_u32 v{vU}, s40, v{vU}')
    for reg, n in ((vX, 28), (vS, 20), (vS+1, 35)):
        k(f'v_min_u32 v{reg}, {n-1}, v{vLane}')
        k(f's_mul_i32 s40, s{sID}, {n}')
        k(f'v_add_lshl_u32 v{reg}, v{reg}, s40, 7')
    k(f's_mov_b32 s{sSTEP}, 0')
    k(f's_mov_b32 s{sX}, {UF}')
    k(f's_mov_b32 s{sUM}, {XNS}')
    k(f's_mov_b32 s{sP}, {PB}')
    k(f's_mov_b32 s{sM}, {MEM + MEM_T}')
    k(f's_mov_b32 s41, {MEM - D*MEM_T + 4*MEM_S}')
    if OPT['cpf']:
        k('s_getpc_b64 s[44:45]')
        k.label('L_P_pc')
        k('s_sub_u32 s44, s44, L_P_pc-L_roleA')
        k('s_subb_u32 s45, s45, 0')
        k(f's_lshl_b32 s40, s{sID}, 12')
        k(f'v_lshlrev_b32 v20, 6, v{vLane}')
        k('v_add_u32 v20, s40, v20')
        k('v_min_u32 v20, L_P_pc-L_roleA, v20')
        k('v_mov_b32 v21, s45')
        k('v_add_co_u32 v20, vcc, s44, v20')
        k('s_nop 1')
        k('v_addc_co_u32 v21, vcc, 0, v21, vcc')
        k('global_load_dword v22, v[20:21], off')
    k.label('L_P_loop')
    k(f's_cmp_le_u32 s{sSTEP}, {D}')
    k('s_cbranch_scc1 L_P_go')
    k(f's_mov_b32 s{sCNT}, 0')
    k.label('L_P_wait')
    k(f'buffer_load_dword v{vD}, off, {WS}, s41 sc1')
    k(f's_add_u32 s{sCNT}, s{sCNT}, 1')
    k(f's_cmp_gt_u32 s{sCNT}, s{sT2}')
    k('s_cbranch_scc1 L_fail')
    k('s_waitcnt vmcnt(0)')
    k(f'v_cmp_eq_u32 vcc, -1, v{vD}')
    k('s_cbranch_vccz L_P_go')
    k('s_sleep 2')
    k('s_branch L_P_wait')
    k.label('L_P_go')
    k(f'buffer_load_dword v{vD+1}, v{vS}, {WS}, s{sP} offen sc1')
    k(f'buffer_load_dword v{vD+2}, v{vS+1}, {WS}, s{sM} offen sc1')
    k(f'buffer_load_dword v{vD+3}, v{vX}, {WS}, s{sUM} offen sc1')
    n = 0 if OPT['apf'] else UF_SEG // 8 // (64*st)
    k(f's_mov_b32 s{sT0}, s{sX}')
    for j in range(n):
        k(f'buffer_load_dword v{vD+4+j}, v{vU}, {WS}, s{sT0} offen sc1')
        k(f's_add_u32 s{sT0}, s{sT0}, {64*st}')
    k(f's_add_u32 s{sX}, s{sX}, {UF_SEG}')
    k(f's_add_u32 s{sUM}, s{sUM}, 28672')
    k(f's_add_u32 s{sP}, s{sP}, {PB_T}')
    k(f's_add_u32 s{sM}, s{sM}, {MEM_T}')
    k(f's_add_u32 s41, s41, {MEM_T}')
    k(f's_add_u32 s{sSTEP}, s{sSTEP}, 1')
    k(f's_cmp_lt_u32 s{sSTEP}, {NSTEP}')
    k('s_cbranch_scc1 L_P_loop')
    k('s_waitcnt vmcnt(0)')
    k('s_endpgm')
```

```python
from chain import K, OPT
from asmlib import *
from layout import *
import math, struct

def f32bits(x): return struct.unpack('<I', struct.pack('<f', x))[0]
PREP_GRID, PREP_BLOCK, PREP_LDS = 256, 512, 3*43008

def srd(k, s, argoff, size):
    k(f's_load_dwordx2 s[{s}:{s+1}], s[0:1], {argoff}')
    k(f's_mov_b32 s{s+2}, {size}')
    k(f's_mov_b32 s{s+3}, 0x20000')

def gen_prep(tl=False):
    k = K()
    WS = 's[4:7]'
    k(f's_cmp_ge_u32 s2, {PREP_GRID}')
    k('s_cbranch_scc1 P_exit')
    srd(k, 4, 112, WS_SIZE)
    k('v_lshrrev_b32 v1, 6, v0')
    k('v_and_b32 v2, 63, v0')
    k('v_readfirstlane_b32 s16, v1')
    if tl: k('s_memrealtime s[40:41]')
    k('s_nop 2')
    if OPT['k1pf']:
        k('s_cmp_ge_u32 s16, 4')
        k('s_cbranch_scc1 P_nopf')
        k('s_lshl_b32 s44, s16, 3')
        k('s_add_u32 s44, s44, 16')
        k('s_load_dwordx2 s[56:57], s[0:1], s44')
        k('s_mov_b32 s58, 3670016')
        k('s_mov_b32 s59, 0x20000')
        k('v_lshlrev_b32 v190, 7, v2')
        k('s_mul_i32 s44, s2, 14336')
        k('s_add_u32 s45, s44, 6144')
        k('s_waitcnt lgkmcnt(0)')
        k('s_and_b32 s57, s57, 0xffff')
        k('buffer_load_dword v191, v190, s[56:59], s44 offen')
        k('buffer_load_dword v189, v190, s[56:59], s45 offen')
        k.label('P_nopf')
    k('s_cmp_eq_u32 s16, 7')
    k('s_cbranch_scc1 P_ln')
    k('s_and_b32 s19, s2, 15')
    k('s_bfe_u32 s18, s2, 0x10005')
    k('s_lshr_b32 s20, s2, 6')
    k('s_bitcmp1_b32 s2, 4')
    k('s_cbranch_scc1 P_gB0')
    srd(k, 8, 16, 3670016); srd(k, 12, 24, 3670016)
    k('s_branch P_g1')
    k.label('P_gB0')
    srd(k, 8, 32, 3670016); srd(k, 12, 40, 3670016)
    k.label('P_g1')
    vI, vG, vL16 = 3, 4, 5
    vR, vC, vRA, vCA, vt = 6, 10, 12, 16, 18
    vRAs, vCAs = 20, 24
    k(f'v_and_b32 v{vI}, 15, v2')
    k(f'v_lshrrev_b32 v{vG}, 4, v2')
    k(f'v_lshlrev_b32 v{vL16}, 4, v2')
    k('s_mul_i32 s21, s18, 7')
    k('s_add_u32 s21, s21, s16')
    k(f'v_lshrrev_b32 v{vt}, 3, v2')
    k('s_lshl_b32 s22, s21, 5')
    k(f'v_add_u32 v{vt}, s22, v{vt}')
    k(f'v_lshlrev_b32 v{vt}, 13, v{vt}')
    k('s_lshl_b32 s22, s19, 9')
    k(f'v_add_u32 v{vt}, s22, v{vt}')
    k(f'v_and_b32 v{vt+1}, 7, v2')
    k(f'v_and_b32 v26, 1, v{vG}')
    k(f'v_xor_b32 v{vt+1}, v{vt+1}, v26')
    for q in range(4):
        k(f'v_xor_b32 v26, {2*q}, v{vt+1}')
        k(f'v_lshl_add_u32 v{vR+q}, v26, 4, v{vt}')
        if q: k(f'v_add_u32 v{vR+q}, {q*8*8192}, v{vR+q}')
    k(f'v_lshrrev_b32 v{vt}, 2, v{vI}')
    k(f'v_bfe_u32 v{vt+1}, v{vI}, 1, 1')
    k(f'v_lshl_add_u32 v{vt+1}, v{vt}, 1, v{vt+1}')
    k(f'v_xor_b32 v{vt+1}, v{vt+1}, v{vG}')
    k(f'v_lshlrev_b32 v{vt+1}, 4, v{vt+1}')
    k(f'v_lshl_add_u32 v{vt+1}, v{vt}, 10, v{vt+1}')
    k(f'v_and_b32 v{vt}, 3, v{vI}')
    k(f'v_lshl_add_u32 v{vt+1}, v{vt}, 7, v{vt+1}')
    k('s_lshl_b32 s33, s16, 12')
    k(f'v_add_u32 v{vRA}, s33, v{vt+1}')
    k(f'v_xor_b32 v{vRA+1}, 64, v{vRA}')
    k('s_lshl_b32 s22, s18, 1')
    k('s_add_u32 s22, s22, s20')
    for j in range(4):
        k(f's_add_u32 s{24+j}, s22, {j}')
        k(f's_and_b32 s{24+j}, s{24+j}, 3')
    vAcc, vOp = 28, 84
    k('s_lshl_b32 s32, s16, 11')
    k('s_add_u32 s32, s32, 28672')
    def mm(n):
        o = vOp + 36*(n&1)
        for T in range(2):
            for ct in range(7):
                a = vAcc + 28*T + 4*ct
                k(f'v_mfma_f32_16x16x32_bf16 {vr(a,4)}, {vr(o+4*T,4)}, {vr(o+8+4*ct,4)}, {"0" if n == 0 else vr(a,4)}')
    def body(gstep, rdc, cdma):
        if tl == 2: k('s_memrealtime s[46:47]')
        k('s_waitcnt lgkmcnt(0)')
        if tl == 2: k('s_memrealtime s[48:49]')
        k('s_and_b32 s5, s5, 0xffff'); k('s_and_b32 s9, s9, 0xffff'); k('s_and_b32 s13, s13, 0xffff')
        k.vmq = []
        def issue(j):
            sb = (j % 3)*43008
            k(f's_lshl_b32 s36, s{24+j}, 7')
            k(f's_mul_i32 s35, s{24+j}, {gstep}')
            for q in range(4):
                k(f's_add_u32 s34, s33, {sb + q*1024}')
                k('s_mov_b32 m0, s34')
                k('s_nop 0')
                k.vm(f'buffer_load_dwordx4 v{vR+q}, s[8:11], s36 offen lds', j)
            cdma(sb, j)
        D = OPT['k1d']
        for j in range(D): issue(j)
        if tl == 2: k('s_memrealtime s[50:51]')
        def rd(n):
            j, es = n >> 1, n & 1
            o = vOp + 36*(n&1)
            for T in range(2): k(f'ds_read_b128 {vr(o+4*T,4)}, v{vRAs+es} offset:{T*512}')
            rdc(o + 8, es)
        for n in range(9):
            j = n >> 1
            if n < 8 and n % 2 == 0:
                sb = (j % 3)*43008
                k.wvm(j, extra='lgkmcnt(0)')
                k('s_barrier')
                if j + D < 4: issue(j + D)
                if tl == 1 and j in (0, 1, 3): k(f's_memrealtime s[{46+2*((j+1)//2)}:{47+2*((j+1)//2)}]')
                for e in range(2):
                    k(f'v_add_u32 v{vRAs+e}, {sb}, v{vRA+e}')
                    k(f'v_add_u32 v{vCAs+e}, {sb}, v{vCA+e}')
            if n < 8: rd(n)
            if n > 0:
                k(f's_waitcnt lgkmcnt({0 if (n == 8 or tl) else min(15, rdc.n + 2)})')
                mm(n-1)
    k('s_bitcmp1_b32 s2, 4')
    k('s_cbranch_scc1 P_gB')
    k('s_mul_i32 s22, s20, 7')
    k('s_add_u32 s22, s22, s16')
    k('s_lshr_b32 s23, s22, 1')
    k('s_lshl_b32 s23, s23, 5')
    k('s_and_b32 s22, s22, 1')
    k('s_lshl_b32 s22, s22, 3')
    k('s_add_u32 s22, s22, s23')
    k(f'v_bfe_u32 v{vt}, v2, 4, 1')
    k(f'v_lshlrev_b32 v{vt}, 2, v{vt}')
    k(f'v_bfe_u32 v{vt+1}, v2, 5, 1')
    k(f'v_lshl_add_u32 v{vt}, v{vt+1}, 1, v{vt}')
    k(f'v_bfe_u32 v{vt+1}, v2, 3, 1')
    k(f'v_add3_u32 v{vt}, v{vt}, v{vt+1}, s22')
    k(f'v_lshlrev_b32 v{vt}, 13, v{vt}')
    k('s_lshl_b32 s22, s19, 9')
    k(f'v_add_u32 v{vt}, s22, v{vt}')
    k(f'v_and_b32 v{vt+1}, 7, v2')
    k(f'v_xor_b32 v{vt+1}, v{vt+1}, v{vG}')
    k(f'v_lshl_add_u32 v{vC}, v{vt+1}, 4, v{vt}')
    k(f'v_xor_b32 v{vt+1}, 4, v{vt+1}')
    k(f'v_lshl_add_u32 v{vC+1}, v{vt+1}, 4, v{vt}')
    k(f'v_add_u32 v{vC+1}, {16*8192}, v{vC+1}')
    k(f'v_lshrrev_b32 v{vt}, 1, v{vI}')
    k(f'v_xor_b32 v{vt}, v{vt}, v{vG}')
    k(f'v_lshlrev_b32 v{vt}, 4, v{vt}')
    k(f'v_lshl_add_u32 v{vt}, v{vI}, 7, v{vt}')
    k(f'v_add_u32 v{vCA}, 28672, v{vt}')
    k(f'v_xor_b32 v{vCA+1}, 64, v{vCA}')
    def rdA(o, es):
        for ct in range(7): k(f'ds_read_b128 {vr(o+4*ct,4)}, v{vCAs+es} offset:{ct*2048}')
    rdA.n = 7
    def dmaA(sb, j):
        for hq in range(2):
            k(f's_add_u32 s34, s32, {sb + hq*1024}')
            k('s_mov_b32 m0, s34')
            k('s_nop 0')
            k.vm(f'buffer_load_dwordx4 v{vC+hq}, s[12:15], s35 offen lds', j)
    body(128, rdA, dmaA)
    k(f's_mov_b32 s22, {f32bits(math.log2(math.e)/16):#x}')
    k(f's_mov_b32 s23, {WTA}')
    k('s_branch P_gepi')
    k.label('P_gB')
    k(f's_mov_b32 s22, {(1<<32)//14 + 1}')
    k(f'v_mul_hi_u32 v{vt}, v0, s22')
    k(f'v_mul_u32_u24 v{vt+1}, 14, v{vt}')
    k(f'v_sub_u32 v{vt+1}, v0, v{vt+1}')
    k(f'v_mul_u32_u24 v{vt}, 896, v{vt}')
    k(f'v_lshl_add_u32 v{vt}, v{vt+1}, 4, v{vt}')
    k('s_mul_i32 s22, s19, 229376')
    k('s_mul_i32 s23, s20, 224')
    k('s_add_u32 s22, s22, s23')
    k(f'v_add_u32 v{vC}, s22, v{vt}')
    k(f'v_add_u32 v{vC+1}, {32*896}, v{vC}')
    k('s_lshl_b32 s32, s16, 10')
    k('s_add_u32 s32, s32, 28672')
    k(f'v_bfe_u32 v{vt}, v2, 2, 2')
    k(f'v_lshl_add_u32 v{vt}, v{vG}, 3, v{vt}')
    k(f'v_mul_u32_u24 v{vt}, 224, v{vt}')
    k(f'v_and_b32 v{vt+1}, 3, v2')
    k(f'v_lshl_add_u32 v{vt}, v{vt+1}, 3, v{vt}')
    k(f'v_add_u32 v{vCA}, 28672, v{vt}')
    k(f'v_add_u32 v{vCA+1}, 7168, v{vCA}')
    def rdB(o, es):
        for ct in range(7):
            for hh in range(2): k(f'ds_read_b64_tr_b16 {vr(o+4*ct+2*hh,2)}, v{vCAs+es} offset:{ct*32+hh*896}')
    rdB.n = 14
    def dmaB(sb, j):
        for hq in range(2):
            k(f's_add_u32 s34, s32, {sb + hq*7168}')
            k('s_mov_b32 m0, s34')
            k('s_nop 0')
            k.vm(f'buffer_load_dwordx4 v{vC+hq}, s[12:15], s35 offen lds', j)
    body(64*896, rdB, dmaB)
    k('s_mov_b32 s22, 1.0')
    k(f's_mov_b32 s23, {WTB}')
    k.label('P_gepi')
    if tl: k('s_memrealtime s[52:53]')
    k('s_mul_i32 s24, s19, 28')
    k('s_mul_i32 s25, s20, 7')
    k('s_add_u32 s24, s24, s25')
    k('s_mul_i32 s24, s24, 14')
    k('s_add_u32 s24, s24, s21')
    k('s_lshl_b32 s24, s24, 10')
    k('s_add_u32 s24, s24, s23')
    k('s_mov_b32 s23, s22')
    for ct in range(7):
        d = vOp + 4*ct
        for T in range(2):
            a = vAcc + 28*T + 4*ct
            k(f'v_pk_mul_f32 {vr(a,2)}, {vr(a,2)}, s[22:23]')
            k(f'v_pk_mul_f32 {vr(a+2,2)}, {vr(a+2,2)}, s[22:23]')
            k(f'v_cvt_pk_bf16_f32 v{d+2*T}, v{a}, v{a+1}')
            k(f'v_cvt_pk_bf16_f32 v{d+2*T+1}, v{a+2}, v{a+3}')
        k(f'buffer_store_dwordx4 {vr(d,4)}, v{vL16}, {WS}, s24 offen ' + OPT['k1st'])
        k('s_add_u32 s24, s24, 14336')
    if tl:
        k('s_waitcnt vmcnt(0)')
        k('s_memrealtime s[42:43]')
        k('s_lshl_b32 s44, s2, 5')
        k(f's_add_u32 s44, s44, {STAMP + 0xE0000}')
        k('s_waitcnt lgkmcnt(0)')
        k('v_mov_b32 v10, s40'); k('v_mov_b32 v11, s42'); k('v_mov_b32 v12, s46'); k('v_mov_b32 v13, s48')
        k('v_mov_b32 v14, s50'); k('v_mov_b32 v15, s52')
        k(f'buffer_store_dwordx4 v[10:13], off, {WS}, s44')
        k(f'buffer_store_dwordx2 v[14:15], off, {WS}, s44 offset:16')
    k('s_endpgm')
    k.label('P_ln')
    srd(k, 8, 0, 1835008); srd(k, 12, 64, 896)
    srd(k, 28, 8, 7168)
    k('s_mov_b32 s17, s2')
    k('v_lshrrev_b32 v3, 3, v2')
    k('s_lshl_b32 s18, s17, 3')
    k('v_add_u32 v3, s18, v3')
    k('v_and_b32 v4, 7, v2')
    k('v_mul_u32_u24 v5, 896, v3')
    k('v_lshl_add_u32 v5, v4, 4, v5')
    k('v_lshlrev_b32 v6, 4, v4')
    vX, vW, vF = 16, 44, 72
    k('s_waitcnt lgkmcnt(0)')
    k('s_and_b32 s5, s5, 0xffff'); k('s_and_b32 s9, s9, 0xffff'); k('s_and_b32 s13, s13, 0xffff')
    for i in range(7): k(f'buffer_load_dwordx4 {vr(vX+4*i,4)}, v5, s[8:11], 0 offen offset:{i*128}')
    for i in range(7): k(f'buffer_load_dwordx4 {vr(vW+4*i,4)}, v6, s[12:15], 0 offen offset:{i*128}')
    k('v_lshrrev_b32 v7, 4, v3')
    k('v_mul_u32_u24 v7, 14336, v7')
    k('v_and_b32 v8, 15, v3')
    k('v_lshl_add_u32 v7, v8, 4, v7')
    k('v_lshrrev_b32 v8, 2, v4')
    k('v_lshl_add_u32 v7, v8, 10, v7')
    k('v_and_b32 v8, 3, v4')
    k('v_lshl_add_u32 v9, v8, 8, v7')
    k('v_bfe_u32 v8, v4, 1, 1')
    k('v_lshl_add_u32 v10, v8, 9, v7')
    k('v_and_b32 v8, 1, v4')
    k('v_lshl_add_u32 v10, v8, 3, v10')
    k('s_mov_b32 s20, 0xffff0000')
    k('s_and_b32 s29, s29, 0xffff')
    k('v_bfe_u32 v12, v2, 2, 3')
    k('v_mul_u32_u24 v12, 896, v12')
    k('v_and_b32 v13, 3, v2')
    k('v_lshl_add_u32 v12, v13, 3, v12')
    k('v_lshrrev_b32 v13, 5, v2')
    k('v_lshl_add_u32 v12, v13, 2, v12')
    k('s_lshl_b32 s21, s2, 5')
    k('buffer_load_dword v160, v12, s[28:31], s21 offen')
    k('s_barrier')
    def fills():
        k('s_mov_b32 s32, s4'); k('s_mov_b32 s33, s5'); k(f's_mov_b32 s34, {SENT_END - MEM_S}'); k('s_mov_b32 s35, 0x20000')
        k('s_mov_b32 s36, s4'); k('s_mov_b32 s37, s5'); k(f's_mov_b32 s38, {FLG + FLG_SZ}'); k('s_mov_b32 s39, 0x20000')
        k('v_lshlrev_b32 v11, 4, v2')
        k('s_mul_i32 s21, s2, 16384')
        k(f's_add_u32 s21, s21, {MEM + MEM_T}')
        for r in range(4): k(f'v_mov_b32 v{164+r}, -1')
        for r in range(4): k(f'v_mov_b32 v{168+r}, 0')
        for r in range(16):
            k(f'buffer_store_dwordx4 v[164:167], v11, s[32:35], s21 offen offset:{(r&3)*1024} ' + OPT['k1ln'])
            if (r&3) == 3: k('s_add_u32 s21, s21, 4096')
        k('s_mul_i32 s21, s2, 12288')
        k(f's_add_u32 s21, s21, {PT}')
        for r in range(12):
            k(f'buffer_store_dwordx4 v[164:167], v11, {WS}, s21 offen offset:{(r&3)*1024} ' + OPT['k1ln'])
            if (r&3) == 3: k('s_add_u32 s21, s21, 4096')
        k('s_lshl_b32 s21, s2, 10')
        k(f's_add_u32 s21, s21, {FLG}')
        k('buffer_store_dwordx4 v[168:171], v11, s[36:39], s21 offen ' + OPT['k1ln'])
    late = OPT['k1late']
    if not late: fills()
    k(f's_waitcnt vmcnt({8 if late else 37})')
    for d in range(28):
        k(f'v_lshlrev_b32 v{vF+2*d}, 16, v{vX+d}')
        k(f'v_and_b32 v{vF+2*d+1}, s20, v{vX+d}')
    def red8(v):
        for ctl in ('quad_perm:[1,0,3,2]', 'quad_perm:[2,3,0,1]', 'row_half_mirror'):
            k.nop(2)
            k(f'v_add_f32_dpp v{v}, v{v}, v{v} {ctl} row_mask:0xf bank_mask:0xf')
    def rbf(v):
        k(f'v_cvt_pk_bf16_f32 v{v}, v{v}, v{v}')
        k(f'v_and_b32 v{v}, s20, v{v}')
    k(f'v_pk_add_f32 v[12:13], {vr(vF,2)}, {vr(vF+2,2)}')
    for d in range(2, 28): k(f'v_pk_add_f32 v[12:13], v[12:13], {vr(vF+2*d,2)}')
    k('v_add_f32 v12, v12, v13')
    k('s_barrier')
    red8(12)
    k(f's_mov_b32 s21, {f32bits(1/448):#x}')
    k('v_mul_f32 v12, s21, v12')
    k('v_mov_b32 v14, 0'); k('v_mov_b32 v15, 0')
    for d in range(28):
        k(f'v_pk_add_f32 {vr(vX,2)}, {vr(vF+2*d,2)}, v[12:13] op_sel_hi:[1,0] neg_lo:[0,1] neg_hi:[0,1]')
        k(f'v_pk_fma_f32 v[14:15], {vr(vX,2)}, {vr(vX,2)}, v[14:15]')
    k('v_add_f32 v14, v14, v15')
    red8(14)
    k('v_mul_f32 v14, s21, v14')
    rbf(14)
    k(f'v_add_f32 v14, {f32bits(1e-5):#x}, v14')
    rbf(14)
    k('v_sqrt_f32 v14, v14')
    k.nop(1)
    rbf(14)
    k('v_rcp_f32 v15, v14')
    rbf(12)
    k(f's_waitcnt vmcnt({0 if late else 29})')
    k('v_mov_b32 v128, 0'); k('v_mov_b32 v129, 0')
    vO, vS = vX, 132
    for d in range(28):
        f = vF + 2*d
        k(f'v_pk_add_f32 {vr(f,2)}, {vr(f,2)}, v[12:13] op_sel_hi:[1,0] neg_lo:[0,1] neg_hi:[0,1]')
        k(f'v_cvt_pk_bf16_f32 v130, v{f}, v{f+1}')
        k(f'v_lshlrev_b32 v{f}, 16, v130')
        k(f'v_and_b32 v{f+1}, s20, v130')
        k(f'v_pk_mul_f32 v[130:131], {vr(f,2)}, v[14:15] op_sel:[0,1] op_sel_hi:[1,1]')
        k(f'v_pk_fma_f32 {vr(f,2)}, v[130:131], v[14:15], {vr(f,2)} op_sel_hi:[1,0,1] neg_lo:[1,0,0] neg_hi:[1,0,0]')
        k(f'v_pk_fma_f32 v[130:131], {vr(f,2)}, v[14:15], v[130:131] op_sel:[0,1,0] op_sel_hi:[1,1,1]')
        k(f'v_cvt_pk_bf16_f32 v{vO+d}, v130, v131')
        so = vS + 4*(d>>2) + {0:0, 1:2, 2:1, 3:3}[d&3]
        k(f'v_mov_b32 v{so}, v{vO+d}')
        k(f'v_dot2_f32_bf16 v{128+(d&1)}, v{vO+d}, v{vW+d}, v{128+(d&1)}')
        if d in (3, 15): k('s_barrier')
    k(f's_mov_b32 s22, {XNR}'); k(f's_mov_b32 s23, {XNF}'); k(f's_mov_b32 s24, {XNS}')
    for i in range(7):
        k(f'buffer_store_dwordx4 {vr(vO+4*i,4)}, v5, {WS}, s22 offen offset:{i*128} ' + OPT['k1ln'])
        k(f'buffer_store_dwordx4 {vr(vO+4*i,4)}, v9, {WS}, s23 offen offset:{(i&1)*2048} ' + OPT['k1ln'])
        k(f'buffer_store_dwordx2 {vr(vS+4*i,2)}, v10, {WS}, s24 offen offset:{(i&1)*2048} ' + OPT['k1ln'])
        k(f'buffer_store_dwordx2 {vr(vS+4*i+2,2)}, v10, {WS}, s24 offen offset:{(i&1)*2048+256} ' + OPT['k1ln'])
        if i & 1:
            k('s_add_u32 s23, s23, 4096'); k('s_add_u32 s24, s24, 4096')
    if late: fills()
    k.nop(2)
    k('v_add_f32 v128, v128, v129')
    red8(128)
    rbf(128)
    k('v_lshlrev_b32 v3, 2, v3')
    k(f's_mov_b32 s22, {RR}')
    k(f'buffer_store_dword v128, v3, {WS}, s22 offen ' + OPT['k1ln'])
    if tl:
        k('s_waitcnt vmcnt(0)')
        k('s_memrealtime s[42:43]')
        k('s_lshl_b32 s44, s2, 5')
        k(f's_add_u32 s44, s44, {STAMP + 0xE0000}')
        k('s_waitcnt lgkmcnt(0)')
        k('v_mov_b32 v10, s42')
        k(f'buffer_store_dword v10, off, {WS}, s44 offset:24')
    k('s_cmp_ge_u32 s2, 28')
    k('s_cbranch_scc1 P_exit')
    k('v_min_u32 v160, -2, v160')
    k('v_lshlrev_b32 v11, 2, v2')
    k('s_lshl_b32 s21, s2, 8')
    k(f's_add_u32 s22, s21, {MEM}')
    k(f's_add_u32 s21, s21, {SENT_END - MEM_S}')
    for r in range(NREP):
        k(f'buffer_store_dword v160, v11, {WS}, s22 offen ' + OPT['k1ln'])
        k(f's_add_u32 s22, s22, {MEM_S}')
    k(f'buffer_store_dword v160, v11, {WS}, s21 offen ' + OPT['k1ln'])
    k.label('P_exit')
    k('s_endpgm')
    return k
```

```python
from asmlib import *
from layout import *

class K(Asm):
    def __init__(self):
        super().__init__()
        self.dsq = []; self.cold = []; self.vmq = []
    def ds(self, text, tag=None):
        self(text); self.dsq.append(tag)
    def wds(self, tag):
        if tag not in self.dsq: return
        idx = max(i for i, t in enumerate(self.dsq) if t == tag)
        n = len(self.dsq) - 1 - idx
        assert n <= 15
        self(f's_waitcnt lgkmcnt({n})')
        self.dsq = self.dsq[idx+1:]
    def wds0(self):
        self('s_waitcnt lgkmcnt(0)'); self.dsq = []
    def vm(self, text, tag=None):
        self(text); self.vmq.append(tag)
    def wvm(self, *tags, extra=''):
        idx = max([i for i, t in enumerate(self.vmq) if t in tags], default=-1)
        if idx < 0:
            if extra: self('s_waitcnt ' + extra)
            return
        n = len(self.vmq) - 1 - idx
        assert n <= 63
        self(f's_waitcnt vmcnt({n}) {extra}')
        self.vmq = self.vmq[idx+1:]
    def flush_cold(self):
        for l in self.cold: self(l)
        self.cold = []

SWS, SDBG = 4, 8
sROLE, sWAVE, sSTEP, sMODE, sM, sP, sX, sUM, sCNT = 12, 13, 14, 15, 16, 17, 18, 19, 20
sT0, sT1, sT2 = 21, 22, 23
sMASK8 = 24
sID = 26
sST = 28
sTM = 30
POLL_LIMIT = 400000
NSTEP = 63
OPT = dict(sa='late', sb='early', um='sc1', uf='sc1', sleepA=0, sleepB=0, stampmask=15, rt=0, barA=1, barB=1, prefP=0, pfd=3, pfs=128, upos='early', ud=2, apf=1, nb=8, stag=1, wpos=1, rsp=1, s1pos=0, upre=8, uneed=32, ust='sc1', rot=1, k1st='sc1', uwin=2, k1d=2, ap2=0, stagA=2, gv=0, rep=3, prep=1, k1late=0, cpf=0, sm2=0, tm=1, bp2=1, k1pf=0, k1ln='sc1', u0='cold', align=0, w64=0, p64=0, kpos='post', kdel=7, nu2=4, bgs=0, vsl=120, usl=120, psl=16, msl=120)

def stamp(k, idx, on):
    if not on or not (OPT['stampmask'] >> idx) & 1: return
    k(('s_memrealtime' if OPT['rt'] else 's_memtime') + f' s[{sTM}:{sTM+1}]')
    k.wds0()
    k(f'v_mov_b32 v0, s{sTM}')
    k(f'buffer_store_dword v0, off, s[{SWS}:{SWS+3}], s{sST} offset:{idx*4}')

def edge(k, on, off):
    if not on or OPT['rt']: return
    lp = k.newlabel('Led')
    k('s_memrealtime s[70:71]')
    k('s_waitcnt lgkmcnt(0)')
    k.label(lp)
    k('s_memrealtime s[72:73]')
    k('s_memtime s[74:75]')
    k('s_waitcnt lgkmcnt(0)')
    k('s_cmp_eq_u32 s72, s70')
    k(f's_cbranch_scc1 {lp}')
    k('v_mov_b32 v0, s72')
    k(f'buffer_store_dword v0, off, s[{SWS}:{SWS+3}], s76 offset:{off}')
    k('v_mov_b32 v0, s74')
    k(f'buffer_store_dword v0, off, s[{SWS}:{SWS+3}], s76 offset:{off+4}')

def publish(k, text):
    ls, ld = k.newlabel('Lslow'), k.newlabel('Lpub')
    if isinstance(text, str): text = [text]
    k(f's_cbranch_scc0 {ls}')
    for x in text: k(x)
    k.label(ld)
    k.cold += [ls + ':'] + [x + ' sc1' for x in text] + [f's_branch {ld}']

def gather_mem(k, vG, vOff0, vOff1, vL0, vL1, vT):
    lp, dn = k.newlabel('Lgm'), k.newlabel('Lgd')
    k(f's_mov_b32 s{sCNT}, 0')
    k.label(lp)
    k(f'buffer_load_dwordx4 {vr(vG,4)}, v{vOff0}, s[{SWS}:{SWS+3}], s{sM} offen sc1')
    k(f'buffer_load_dwordx4 {vr(vG+4,4)}, v{vOff1}, s[{SWS}:{SWS+3}], s{sM} offen sc1')
    k(f's_add_u32 s{sCNT}, s{sCNT}, 1')
    k(f's_cmp_gt_u32 s{sCNT}, s{sT2}')
    k('s_cbranch_scc1 L_fail')
    k('s_waitcnt vmcnt(1)')
    k(f'v_max3_u32 v{vT}, v{vG}, v{vG+1}, v{vG+2}')
    k('s_waitcnt vmcnt(0)')
    k(f'v_max3_u32 v{vT+1}, v{vG+4}, v{vG+5}, v{vG+6}')
    k(f'v_max3_u32 v{vT}, v{vT}, v{vG+3}, v{vG+7}')
    k(f'v_max_u32 v{vT}, v{vT}, v{vT+1}')
    k(f'v_cmp_eq_u32 vcc, -1, v{vT}')
    k(f's_cbranch_vccnz {lp}')
    if vL0 is None: return
    k.ds(f'ds_write_b128 v{vL0}, {vr(vG,4)}')
    k.ds(f'ds_write_b128 v{vL1}, {vr(vG+4,4)}')
    k.wds0()
    k('s_barrier')

def wait_mode(k, vT):
    lp = k.newlabel('Lwm')
    k(f's_mov_b32 s{sCNT}, 0')
    k(f'v_and_b32 v{vT+1}, 15, v0')
    k(f'v_lshlrev_b32 v{vT+1}, 2, v{vT+1}')
    k.label(lp)
    k(f'buffer_load_dword v{vT}, v{vT+1}, s[{SDBG}:{SDBG+3}], 0 offen offset:32 sc1')
    k(f's_add_u32 s{sCNT}, s{sCNT}, 1')
    k(f's_cmp_gt_u32 s{sCNT}, s{sT2}')
    k('s_cbranch_scc1 L_fail')
    k('s_waitcnt vmcnt(0)')
    k(f'v_cmp_eq_u32 vcc, 32, v{vT}')
    for rot in (8, 4, 2, 1):
        k.nop(2)
        k(f'v_add_u32_dpp v{vT}, v{vT}, v{vT} row_ror:{rot} row_mask:0xf bank_mask:0xf')
    k.nop(1)
    k(f'v_readfirstlane_b32 s{sMODE}, v{vT}')
    k('s_nop 3')
    k(f's_cmp_lt_u32 s{sMODE}, 32')
    k(f's_cbranch_scc1 {lp}')
    k('s_cmp_lg_u64 vcc, 0')
    k(f's_cselect_b32 s{sMODE}, 1, 2')

def common_lane_setup(k, vLane, vL16, vG0, vG1, vIdx, vT):
    k(f'v_and_b32 v{vLane}, 63, v0')
    k(f'v_lshlrev_b32 v{vL16}, 4, v{vLane}')
    if vG0 is not None:
        k(f's_lshl_b32 s{sT0}, s{sWAVE}, 10')
        k(f'v_add_u32 v{vG0}, s{sT0}, v{vL16}')
        k(f's_add_u32 s{sT0}, s{sWAVE}, 4')
        k(f's_min_u32 s{sT0}, s{sT0}, 6')
        k(f's_lshl_b32 s{sT0}, s{sT0}, 10')
        k(f'v_add_u32 v{vG1}, s{sT0}, v{vL16}')
    k(f'v_and_b32 v{vT}, 8, v{vLane}')
    k(f'v_mov_b32 v{vIdx}, 0x4444')
    k(f'v_mov_b32 v{vT+1}, 0xeeee')
    k(f'v_cmp_ne_u32 vcc, 0, v{vT}')
    k('s_nop 1')
    k(f'v_cndmask_b32 v{vIdx}, v{vIdx}, v{vT+1}, vcc')
    k(f's_mov_b32 s{sT2}, {POLL_LIMIT}')

def poll2(k, issue, checks, body, name, stag):
    nl = len(issue(0))
    l0, d0, d1, dn = [k.newlabel(name + x) for x in ('lp', 'd0', 'd1', 'dn')]
    k(f's_mov_b32 s{sCNT}, 0')
    for x in issue(0): k(x)
    k(f"s_sleep {stag}")
    k.label(l0)
    for st, dl in ((0, d0), (1, d1)):
        for x in issue(1 - st): k(x)
        if st == 0:
            k(f's_add_u32 s{sCNT}, s{sCNT}, 1')
            k(f's_cmp_gt_u32 s{sCNT}, s{sT2}')
            k('s_cbranch_scc1 L_fail')
        for rel, ins in checks(st):
            k(f's_waitcnt vmcnt({nl + rel})')
            for x in ins: k(x)
        if st == 0: k(f's_cbranch_vccz {d0}')
        else:       k(f's_cbranch_vccnz {l0}x')
    saved = list(k.dsq)
    body(1)
    k(f's_branch {dn}')
    k.label(l0 + 'x')
    k(f's_branch {l0}')
    k.label(d0)
    end = list(k.dsq); k.dsq = saved
    body(0)
    assert k.dsq == end
    k.label(dn)

def role_A(k, stamps=False):
    vLane, vL16, vIdx = 1, 2, 3
    vKey, vKeyS, vMK, vMKS, vQW, vQR, vSW, vSR, vPO, vVal = 4, 5, 6, 7, 8, 9, 10, 11, 12, 13
    vT = 14
    vM = 16
    vQ = 44
    vKT = 72
    vKM = 100
    vX = 114
    vG0, vG1 = 118, 119
    def W(lt, kb):
        i = lt*7 + kb
        return (256 + 8*i) if i < 32 else (120 + 8*(i-32))
    LM, LSP, LQS = 0, 7168, 20480
    k.label('L_roleA')
    k(f's_mov_b32 s{sID}, s{sROLE}')
    common_lane_setup(k, vLane, vL16, vG0, vG1, vIdx, vX)
    k(f's_lshr_b32 s{sT0}, s{sWAVE}, 1')
    k(f's_mul_i32 s{sT0}, s{sT0}, 14')
    k(f's_and_b32 s{sT1}, s{sWAVE}, 1')
    k(f's_add_u32 s33, s{sT0}, 6')
    k(f's_add_u32 s33, s33, s{sT1}')
    k(f's_lshl_b32 s34, s{sT1}, 3')
    k(f's_add_u32 s32, s{sT0}, s34')
    k(f's_mul_i32 s35, s{sID}, {28*14*1024}')
    k(f's_add_u32 s35, s35, {WTA}')
    k(f's_mul_i32 s36, s32, {14*1024}')
    k(f's_add_u32 s36, s36, s35')
    k(f's_mul_i32 s37, s33, {14*1024}')
    k(f's_add_u32 s37, s37, s35')
    for j in range(7):
        k(f's_add_u32 s{50+j}, s{sWAVE}, {(4*j) % 7}')
        k(f's_sub_u32 s40, s{50+j}, 7')
        k(f's_cmp_ge_u32 s{50+j}, 7')
        k(f's_cselect_b32 s{50+j}, s40, s{50+j}')
        k(f's_lshl_b32 s{50+j}, s{50+j}, 10')
    n = 0
    for lt in range(7):
        sb = 36 if lt < 6 else 37
        for j in range(7):
            k(f's_lshl_b32 s40, s{50+j}, 1')
            k(f's_add_u32 s40, s40, s{sb}')
            for f in range(2):
                k(f'buffer_load_dwordx4 {xr(W(lt, j) + 4*f,4)}, v{vL16}, s[{SWS}:{SWS+3}], s40 offen offset:{f*1024}')
                n += 1
                if n % 16 == 0: k('s_waitcnt vmcnt(40)')
        k(f's_add_u32 s{sb}, s{sb}, 14336')
    k(f'v_add_u32 v{vG1}, s51, v{vL16}')
    t = vX
    g, i = vQ, vQ+1
    k(f'v_lshrrev_b32 v{g}, 4, v{vLane}')
    k(f'v_and_b32 v{i}, 15, v{vLane}')
    k(f's_lshr_b32 s38, s32, 1')
    k(f's_lshr_b32 s39, s33, 1')
    k(f's_lshl_b32 s40, s38, 10')
    k(f'v_add_u32 v{vKey}, s40, v{vL16}')
    k(f's_lshl_b32 s40, s39, 10')
    k(f's_add_u32 s40, s40, s34')
    k(f'v_add_u32 v{vKeyS}, s40, v{vL16}')
    k(f'v_lshrrev_b32 v{t}, 1, v{g}')
    k(f'v_lshlrev_b32 v{t}, 8, v{t}')
    k(f'v_and_b32 v{t+1}, 7, v{i}')
    k(f'v_lshlrev_b32 v{t+1}, 4, v{t+1}')
    k(f'v_add_u32 v{t}, v{t}, v{t+1}')
    k(f'v_and_b32 v{t+1}, 1, v{g}')
    k(f'v_lshlrev_b32 v{t+1}, 7, v{t+1}')
    k(f'v_add_u32 v{t}, v{t}, v{t+1}')
    k(f's_lshl_b32 s40, s38, 9')
    k(f'v_add_u32 v{vMK}, s40, v{t}')
    k(f's_lshl_b32 s40, s39, 9')
    k(f's_add_u32 s40, s40, s34')
    k(f'v_add_u32 v{vMKS}, s40, v{t}')
    k(f's_lshl_b32 s40, s{sWAVE}, 10')
    k(f's_add_u32 s40, s40, {LQS}')
    k(f'v_lshrrev_b32 v{t}, 2, v{i}')
    k(f'v_add_u32 v{t}, v{t}, v{g}')
    k(f'v_and_b32 v{t}, 3, v{t}')
    k(f'v_lshlrev_b32 v{t}, 3, v{t}')
    k(f'v_lshlrev_b32 v{t+1}, 5, v{i}')
    k(f'v_add3_u32 v{vQW}, v{t}, v{t+1}, s40')
    k(f'v_lshrrev_b32 v{t}, 2, v{vLane}')
    k(f'v_lshlrev_b32 v{t}, 5, v{t}')
    k(f'v_add_u32 v{t+1}, v{vLane}, v{g}')
    k(f'v_and_b32 v{t+1}, 3, v{t+1}')
    k(f'v_lshlrev_b32 v{t+1}, 3, v{t+1}')
    k(f'v_add3_u32 v{vQR}, v{t}, v{t+1}, s40')
    k(f's_mul_i32 s40, s{sWAVE}, 3264')
    k(f's_add_u32 s40, s40, {LSP}')
    k(f'v_lshlrev_b32 v{t}, 4, v{i}')
    k(f'v_mul_u32_u24 v{t+1}, 272, v{g}')
    k(f'v_add3_u32 v{vSW}, v{t}, v{t+1}, s40')
    k(f'v_subrev_u32 v{t}, 12, v{i}')
    k(f'v_cmp_le_u32 vcc, 12, v{i}')
    k('s_nop 1')
    k(f'v_cndmask_b32 v{t}, v{i}, v{t}, vcc')
    k(f'v_lshrrev_b32 v{t+1}, 5, v{vLane}')
    k(f's_lshl_b32 s40, s{sWAVE}, 1')
    k(f'v_add_u32 v{t+1}, s40, v{t+1}')
    k(f'v_and_b32 v{t+2}, 1, v{g}')
    k(f'v_lshl_add_u32 v{t+3}, v{t+2}, 3, v{t+1}')
    k(f'v_lshlrev_b32 v{t+3}, 4, v{t+3}')
    k(f'v_mul_u32_u24 v{vSR}, 272, v{t}')
    k(f'v_add_u32 v{vSR}, v{vSR}, v{t+3}')
    if LSP: k(f'v_add_u32 v{vSR}, {LSP}, v{vSR}')
    k(f's_and_b32 s42, s{sID}, 1')
    k(f's_lshl_b32 s42, s42, 3')
    k(f'v_add_u32 v{t+1}, s42, v{t+1}')
    k(f'v_and_b32 v{vPO}, 1, v{i}')
    k(f'v_lshlrev_b32 v{vPO}, 3, v{vPO}')
    k(f'v_lshl_add_u32 v{vPO}, v{t+1}, 4, v{vPO}')
    k(f'v_bfe_u32 v{t}, v{i}, 1, 1')
    k(f'v_lshl_add_u32 v{vPO}, v{t}, 8, v{vPO}')
    k(f'v_bfe_u32 v{t}, v{i}, 3, 1')
    k(f'v_lshl_add_u32 v{vPO}, v{t}, 9, v{vPO}')
    k(f's_lshr_b32 s41, s{sID}, 1')
    k(f's_lshl_b32 s40, s41, 10')
    k(f'v_add_u32 v{vPO}, s40, v{vPO}')
    k(f'v_lshlrev_b32 v{t}, 3, v{i}')
    k(f'v_lshl_add_u32 v{t}, v{t+1}, 4, v{t}')
    k(f's_lshl_b32 s40, s41, 8')
    k(f's_add_u32 s40, s40, 8192')
    k(f'v_add_u32 v{t}, s40, v{t}')
    k(f'v_mov_b32 v{t+3}, 0x40000000')
    k(f'v_cmp_le_u32 vcc, 2, v{i}')
    k('s_nop 1')
    k(f'v_cndmask_b32 v{t}, v{t}, v{t+3}, vcc')
    k(f'v_cmp_le_u32 vcc, 4, v{i}')
    k('s_nop 1')
    k(f'v_cndmask_b32 v{vPO}, v{t}, v{vPO}, vcc')
    k(f'v_cmp_le_u32 vcc, 12, v{i}')
    k('s_nop 1')
    k(f'v_cndmask_b32 v{vPO}, v{vPO}, v{t+3}, vcc')
    k(f'v_lshl_add_u32 v{vPO}, v{t+2}, 2, v{vPO}')
    k(f'v_mov_b32 v{vVal}, 1.0')
    k(f'v_cmp_le_u32 vcc, v{t+3}, v{vPO}')
    k('s_nop 1')
    k(f'v_cndmask_b32 v{vVal}, v{vVal}, 0, vcc')
    k(f's_mov_b32 s{sSTEP}, 0')
    k(f"s_lshr_b32 s{sM}, s{sID}, {3 if OPT['rep'] == 3 else 2}")
    k(f"s_mul_i32 s{sM}, s{sM}, {MEM_S}")
    k(f's_add_u32 s{sM}, s{sM}, {MEM}')
    k(f's_mov_b32 s{sP}, {PB}')
    k(f's_mov_b32 s{sX}, {XNS}')
    k(f's_lshl_b32 s40, s{sID}, 2')
    k(f's_add_u32 s40, s40, s{sWAVE}')
    k(f's_mul_i32 s40, s40, 7168')
    k(f'v_min_u32 v{vX}, {55*16}, v{vL16}')
    k(f'v_lshlrev_b32 v{vX}, 3, v{vX}')
    k(f'v_add_u32 v{vX}, s40, v{vX}')
    k(f"s_mov_b32 s{sUM}, {UF + OPT['ud']*UF_SEG}")
    WS = f's[{SWS}:{SWS+3}]'
    def key_list():
        L = []
        for p in range(3):
            L.append(f'buffer_load_dwordx4 {vr(vKT+8*p,4)}, v{vKey}, {WS}, s{sX} offen offset:{p*1024}')
            L.append(f'buffer_load_dwordx4 {vr(vKT+8*p+4,4)}, v{vKey}, {WS}, s46 offen offset:{p*1024}')
        L.append(f'buffer_load_dwordx2 {vr(vKT+24,2)}, v{vKeyS}, {WS}, s{sX} offen')
        L.append(f'buffer_load_dwordx2 {vr(vKT+26,2)}, v{vKeyS}, {WS}, s46 offen')
        return L
    def load_keys(keys=True):
        if keys:
            for x in key_list(): k(x)
        k(f's_add_u32 s{sX}, s{sX}, 28672')
        k(f's_add_u32 s46, s{sX}, 14336')
        k(f's_add_u32 s{sT0}, s{sSTEP}, {1 + OPT["ud"]}')
        k(f's_lshr_b32 s{sT0}, s{sT0}, 2')
        k(f's_lshl_b32 s{sT0}, s{sT0}, 7')
        k(f's_add_u32 s{sT0}, s{sT0}, {flag(F_U)}')
        k(f'buffer_load_dword v{vX+2}, off, {WS}, s{sT0} sc1')
    if OPT['tm']:
        k(f'v_lshlrev_b32 v{vQ+2}, 2, v{g}')
        k(f'v_sub_u32 v{vQ+2}, v{i}, v{vQ+2}')
        k(f'v_and_b32 v{vQ+3}, 1, v{vQ+2}')
        k(f'v_lshlrev_b32 v{vQ+3}, 4, v{vQ+3}')
        k(f'v_mov_b32 v{vLane}, 0x3f80')
        k(f'v_lshlrev_b32 v{vLane}, v{vQ+3}, v{vLane}')
        k(f'v_cmp_gt_u32 vcc, 4, v{vQ+2}')
        k(f'v_cmp_lt_u32 s[48:49], 1, v{vQ+2}')
        k('s_nop 0')
        k(f'v_cndmask_b32 v{vLane}, 0, v{vLane}, vcc')
    k(f's_add_u32 s46, s{sX}, 14336')
    k(f's_mov_b32 s{sSTEP}, -1')
    load_keys()
    k(f's_mov_b32 s{sSTEP}, 0')
    wait_mode(k, vT)
    k(f'v_mov_b32 v{vX+3}, 0x40000000')
    if stamps: k(f's_add_u32 s76, s{sST}, 0x20000')
    edge(k, stamps, 0)
    k.label('L_A_loop')
    for r in range(0, 28, 2): k(f'v_mov_b64 {vr(vQ+r,2)}, 0')
    k(f's_add_u32 s47, s{sP}, {PB_S}')
    vAd = vKM + 6
    for j in range(2, 7): k(f'v_add_u32 v{vAd+j}, s{50+j}, v{vL16}')
    def Mx(lt, kb, src):
        return f'v_smfmac_f32_16x16x64_bf16 {vr(vQ+4*lt,4)}, {vr(src,4)}, {xr(W(lt,kb),8)}, v{vIdx}'
    def M(lt, kb): return Mx(lt, kb, vM+4*kb)
    mk = [f'ds_read_b128 {vr(vKM+4*p,4)}, v{vMK} offset:{LM+p*512}' for p in range(3)]
    mk.append(f'ds_read_b64 {vr(vKM+12,2)}, v{vMKS} offset:{LM}')
    sets = [vM, vKM]
    def issue(st):
        return [f'buffer_load_dwordx4 {vr(sets[st],4)}, v{vG0}, {WS}, s{sM} offen sc1',
                f'buffer_load_dwordx4 {vr(sets[st]+4,4)}, v{vG1}, {WS}, s{sM} offen sc1']
    def checks(st):
        G = sets[st]
        return [(1, [f'v_max3_u32 v{vT}, v{G}, v{G+1}, v{G+2}']),
                (0, [f'v_max3_u32 v{vT+1}, v{G+4}, v{G+5}, v{G+6}', f'v_max3_u32 v{vT}, v{vT}, v{G+3}, v{G+7}',
                     f'v_max_u32 v{vT}, v{vT}, v{vT+1}', f'v_cmp_eq_u32 vcc, -1, v{vT}'])]
    NB = OPT['nb']
    def body(st):
        G = sets[st]
        stamp(k, 0, stamps)
        wrs = [f'ds_write_b128 v{vG0}, {vr(G,4)} offset:{LM}', f'ds_write_b128 v{vG1}, {vr(G+4,4)} offset:{LM}']
        seq = [(lt, j) for j in range(2) for lt in range(7)]
        for n, (lt, j) in enumerate(seq):
            k(Mx(lt, j, G + 4*j))
            if OPT['w64'] == 0 and n < 2: k.ds(wrs[n])
            if OPT['w64'] == 1 and n < 4: k.ds(f'ds_write_b64 v{vG0 if n < 2 else vG1}, {vr(G+2*n,2)} offset:{LM + 8*(n&1)}')
            if n == 4: k(f'v_cmp_le_u32 vcc, {OPT["uneed"]}, v{vX+2}')
            if n == 5: k('s_nop 0'); k(f'v_cndmask_b32 v{vX+1}, v{vX+3}, v{vX}, vcc')
            if n == NB - 1:
                k.wds0(); k('s_barrier')
            if NB - 1 <= n < NB + 4:
                jj = n - (NB - 1) + 2
                k.ds(f'ds_read_b128 {vr(vM+4*jj,4)}, v{vAd+jj} offset:{LM}', f'm{jj}')
            if n == NB + 5: k(f'buffer_load_dword v0, v{vX+1}, {WS}, s{sUM} offen sc1')
    if OPT['ap2']:
        poll2(k, issue, checks, body, 'Lga', OPT['stagA'])
    else:
        gather_mem(k, vM, vG0, vG1, None, None, vT)
        body(0)
    def cvt(lt, h):
        k(f'v_cvt_pk_bf16_f32 v{vQ+4*lt+h}, v{vQ+4*lt+2*h}, v{vQ+4*lt+2*h+1}')
    def wr(lt):
        k.ds(f'ds_write_b64 v{vQW}, {vr(vQ+4*lt,2)} offset:{512*(lt&1)}')
    def tr(p, h):
        k.ds(f'ds_read_b64_tr_b16 {vr(vQ+8*p+2*h,2)}, v{vQR} offset:{512*h}', f'q{p}')
    vSt = [vM, vM+4, vQ+4]
    def S(p, t):
        q = vQ + 8*p
        c = '0' if p == 0 else vr(vSt[t],4)
        if p < 3:
            a = vKM+4*p if t == 0 else vKT+8*p+4*(t-1)
            k(f'v_mfma_f32_16x16x32_bf16 {vr(vSt[t],4)}, {vr(a,4)}, {vr(q,4)}, {c}')
        else:
            a = vKM+12 if t == 0 else vKT+24+2*(t-1)
            k(f'v_mfma_f32_16x16x16_bf16 {vr(vSt[t],4)}, {vr(a,2)}, {vr(q,2)}, {c}')
    for lt in range(7):
        for j in range(2, 7):
            if lt == 0: k.wds(f'm{j}')
            k(M(lt, j))
            if OPT['tm'] and lt == 1 and j == 2: k(f'v_cndmask_b32 v{vT}, v{vLane}, 0, s[48:49]')
            if OPT['tm'] and lt == 1 and j == 3: k(f'v_cndmask_b32 v{vT+1}, 0, v{vLane}, s[48:49]')
            if lt == 0 and j == 6:
                k('s_waitcnt vmcnt(1)')
                for x in mk: k.ds(x, 'mk')
            if lt >= 1:
                if j == 4: cvt(lt-1, 0)
                if j == 5: cvt(lt-1, 1)
                if j == 6:
                    wr(lt-1)
                    if (lt-1) & 1: tr((lt-1)//2, 0); tr((lt-1)//2, 1)
        if lt == (4 if OPT['s1pos'] == 0 else 3):
            k.wds('q0')
            for t in range(3): S(0, t)
        if lt == 5 and OPT['s1pos'] == 1:
            k.wds('q1')
            for t in range(3): S(1, t)
    if OPT['s1pos'] == 0:
        k.wds('q1')
        for t in range(3): S(1, t)
        cvt(6, 0); cvt(6, 1)
        if OPT['tm']:
            k.wds('q2')
            k.nop(1)
            k(f'v_mfma_f32_16x16x16_bf16 {vr(vQ+12,4)}, {vr(vQ+24,2)}, {vr(vT,2)}, 0')
            for t in range(3): S(2, t)
            k(f'v_cvt_pk_bf16_f32 v{vQ+24}, v{vQ+12}, v{vQ+13}')
            k(f'v_cvt_pk_bf16_f32 v{vQ+25}, v{vQ+14}, v{vQ+15}')
            k.nop(2)
        else:
            wr(6); tr(3, 0)
            k.wds('q2')
            for t in range(3): S(2, t)
    else:
        k.nop(8)
        cvt(6, 0); cvt(6, 1); wr(6); tr(3, 0)
        k.wds('q2')
        for t in range(3): S(2, t)
    k.wds('q3')
    for t in range(3): S(3, t)
    for t in range(3):
        k.nop(2 if (t == 0 or OPT['p64'] == 0) else 1)
        if OPT['p64'] == 0: k.ds(f'ds_write_b128 v{vSW}, {vr(vSt[t],4)} offset:{1088*t}')
        else:
            k.ds(f'ds_write_b64 v{vSW}, {vr(vSt[t],2)} offset:{1088*t}')
            k.ds(f'ds_write_b64 v{vSW}, {vr(vSt[t]+2,2)} offset:{1088*t+8}')
    k.wds0()
    k('s_barrier')
    stamp(k, 1, stamps)
    mark = len(k.lines)
    R = vQ+8
    for w in range(4): k.ds(f'ds_read_b128 {vr(R+4*w,4)}, v{vSR} offset:{w*3264}', f'r{w}')
    k(f's_cmp_eq_u32 s{sMODE}, 1')
    k.wds('r1')
    k(f'v_pk_add_f32 {vr(R,2)}, {vr(R,2)}, {vr(R+4,2)}')
    k(f'v_pk_add_f32 {vr(R+2,2)}, {vr(R+2,2)}, {vr(R+6,2)}')
    k.wds('r2')
    k(f'v_pk_add_f32 {vr(R,2)}, {vr(R,2)}, {vr(R+8,2)}')
    k(f'v_pk_add_f32 {vr(R+2,2)}, {vr(R+2,2)}, {vr(R+10,2)}')
    k.wds('r3')
    k(f'v_pk_add_f32 {vr(R,2)}, {vr(R,2)}, {vr(R+12,2)}')
    k(f'v_pk_add_f32 {vr(R+2,2)}, {vr(R+2,2)}, {vr(R+14,2)}')
    k.nop(2)
    k(f'v_permlane16_swap_b32 v{R}, v{R+2}')
    k(f'v_permlane16_swap_b32 v{R+1}, v{R+3}')
    X = R+4; m = R+6; t = R+8
    k(f'v_pk_add_f32 {vr(X,2)}, {vr(R,2)}, {vr(R+2,2)}')
    def allred(op, m):
        for rot in (8, 4, 2, 1):
            k.nop(2)
            k(f'{op}_dpp v{m}, v{m}, v{m} row_ror:{rot} row_mask:0xf bank_mask:0xf')
        k(f'v_mov_b32 v{t}, v{m}')
        k.nop(2)
        k(f'v_permlane16_swap_b32 v{m}, v{t}')
        k(f'{op} v{m}, v{m}, v{t}')
    if OPT['sm2'] == 0:
        k(f'v_max_f32 v{m}, v{X}, v{X+1}')
        allred('v_max_f32', m)
        k(f'v_pk_add_f32 {vr(X,2)}, {vr(X,2)}, {vr(m,2)} op_sel_hi:[1,0] neg_lo:[0,1] neg_hi:[0,1]')
        k(f'v_exp_f32 v{X}, v{X}')
        k(f'v_exp_f32 v{X+1}, v{X+1}')
        k.nop(1)
        k(f'v_add_f32 v{m}, v{X}, v{X+1}')
        k(f'v_mul_f32 v{m}, v{m}, v{vVal}')
        allred('v_add_f32', m)
        k(f'v_rcp_f32 v{m}, v{m}')
        k.nop(1)
        k(f'v_pk_mul_f32 {vr(X,2)}, {vr(X,2)}, {vr(m,2)} op_sel_hi:[1,0]')
    else:
        l_, M, sc = R+10, R+12, R+14
        def dpp(op, r, rot): k(f'{op}_dpp v{r}, v{r}, v{r} row_ror:{rot} row_mask:0xf bank_mask:0xf')
        k(f'v_max_f32 v{m}, v{X}, v{X+1}')
        for rot in (8, 4, 2, 1):
            k.nop(2); dpp('v_max_f32', m, rot)
        k(f'v_pk_add_f32 {vr(X,2)}, {vr(X,2)}, {vr(m,2)} op_sel_hi:[1,0] neg_lo:[0,1] neg_hi:[0,1]')
        k(f'v_mov_b32 v{M}, v{m}')
        k(f'v_exp_f32 v{X}, v{X}')
        k(f'v_mov_b32 v{t}, v{m}')
        k(f'v_exp_f32 v{X+1}, v{X+1}')
        k.nop(1)
        k(f'v_add_f32 v{l_}, v{X}, v{X+1}')
        k(f'v_permlane16_swap_b32 v{M}, v{t}')
        k(f'v_mul_f32 v{l_}, v{l_}, v{vVal}')
        k(f'v_max_f32 v{M}, v{M}, v{t}')
        k(f'v_sub_f32 v{sc}, v{m}, v{M}')
        dpp('v_add_f32', l_, 8)
        k(f'v_exp_f32 v{sc}, v{sc}')
        k.nop(1)
        dpp('v_add_f32', l_, 4)
        k(f'v_pk_mul_f32 {vr(X,2)}, {vr(X,2)}, {vr(sc,2)} op_sel_hi:[1,0]')
        k.nop(1)
        dpp('v_add_f32', l_, 2)
        k.nop(2)
        dpp('v_add_f32', l_, 1)
        k(f'v_mul_f32 v{l_}, v{l_}, v{sc}')
        k(f'v_mov_b32 v{t}, v{l_}')
        k.nop(2)
        k(f'v_permlane16_swap_b32 v{l_}, v{t}')
        k(f'v_add_f32 v{l_}, v{l_}, v{t}')
        k(f'v_rcp_f32 v{l_}, v{l_}')
        k.nop(1)
        k(f'v_pk_mul_f32 {vr(X,2)}, {vr(X,2)}, {vr(l_,2)} op_sel_hi:[1,0]')
    k(f'v_cvt_pk_bf16_f32 v{X}, v{X}, v{X+1}')
    k(f'v_min_u32 v{X}, -2, v{X}')
    if OPT['kpos'] == 'soft':
        body_ = k.lines[mark:]; k.lines = k.lines[:mark]; L = key_list()
        for x in body_:
            if x == 's_nop 1' and L: k(L.pop(0)); k('s_nop 0')
            else: k(x)
        assert not L
    publish(k, [f'buffer_store_dword v{X}, v{vPO}, {WS}, s{x} offen' for x in [sP, 47][:OPT['prep']]])
    stamp(k, 2, stamps)
    k('s_barrier')
    if OPT['kdel']: k(f"s_sleep {OPT['kdel']}")
    load_keys(OPT['kpos'] != 'soft')
    if OPT['sleepA']: k(f"s_sleep {OPT['sleepA']}")
    k(f's_add_u32 s{sUM}, s{sUM}, {UF_SEG}')
    k(f's_add_u32 s{sM}, s{sM}, {MEM_T}')
    k(f's_add_u32 s{sP}, s{sP}, {PB_T}')
    if stamps: k(f's_add_u32 s{sST}, s{sST}, 16')
    k(f's_add_u32 s{sSTEP}, s{sSTEP}, 1')
    k(f's_cmp_lt_u32 s{sSTEP}, {NSTEP}')
    k('s_cbranch_scc1 L_A_loop')
    edge(k, stamps, 8)
    k('s_waitcnt vmcnt(0)')
    k('s_endpgm')
    k.flush_cold()

def role_B(k, stamps=False, wait_u=None):
    WS = f's[{SWS}:{SWS+3}]'
    vLane, vL16, vG0, vG1, vIdx = 1, 2, 3, 4, 5
    vWL, vPT, vPM, vRW, vRR, vL4 = 6, 7, 8, 9, 10, 11
    vC = 12
    vM = 16
    vA = 44
    vU = 76
    vTm = 108
    vUi = 140
    vUm = 172
    vRR2 = 188
    vKeep, vFl = 191, 15
    vD = vTm
    vG = vTm + 16
    vP = [vM, vA]
    def W(gi, kb):
        i = gi*5 + kb
        return (256 + 8*i) if i < 32 else (192 + 8*(i-32))
    LM, LRED, LW = 0, 7168, 16384
    k.label('L_roleB')
    k(f's_sub_u32 s{sID}, s{sROLE}, 16')
    common_lane_setup(k, vLane, vL16, vG0, vG1, vIdx, vC)
    k(f's_lshl_b32 s{sT0}, s{sWAVE}, 2')
    k(f's_mul_i32 s{sT0}, s{sT0}, 28')
    k(f's_lshl_b32 s{sT1}, s{sID}, 1')
    k(f's_add_u32 s{sT0}, s{sT0}, s{sT1}')
    k(f's_mul_i32 s35, s{sT0}, 14336')
    k(f's_add_u32 s35, s35, {WTB}')
    k(f's_lshl_b32 s37, s{sWAVE}, 15')
    k(f's_add_u32 s37, s37, {LW}')
    k(f'v_add_u32 v{vWL}, s37, v{vL16}')
    for j in range(7):
        k(f's_add_u32 s{50+j}, s{sWAVE}, {(4*j) % 7}')
        k(f's_sub_u32 s40, s{50+j}, 7')
        k(f's_cmp_ge_u32 s{50+j}, 7')
        k(f's_cselect_b32 s{50+j}, s40, s{50+j}')
        k(f's_lshl_b32 s{50+j}, s{50+j}, 10')
    k(f'v_add_u32 v{vG1}, s51, v{vL16}')
    for gi in range(8):
        k(f's_add_u32 s36, s35, {(gi>>1)*28*14336 + (gi&1)*14336}')
        for j in range(7):
            k(f's_lshl_b32 s40, s{50+j}, 1')
            k(f's_add_u32 s40, s40, s36')
            if j >= 5:
                k(f's_add_u32 s38, s37, {gi*4096 + (j-5)*2048}')
                k(f's_mov_b32 m0, s38')
                k('s_nop 0')
            for f in range(2):
                if j < 5: k(f'buffer_load_dwordx4 {xr(W(gi, j) + 4*f,4)}, v{vL16}, {WS}, s40 offen offset:{f*1024}')
                else:     k(f'buffer_load_dwordx4 v{vL16}, {WS}, s40 offen offset:{f*1024} lds')
        k('s_waitcnt vmcnt(40)')
    g, i = vA, vA+1
    vT = vC
    k(f'v_lshrrev_b32 v{g}, 4, v{vLane}')
    k(f'v_and_b32 v{i}, 15, v{vLane}')
    k(f's_lshl_b32 s40, s{sWAVE}, 11')
    k(f'v_add_u32 v{vPT}, s40, v{vL16}')
    k(f'v_lshrrev_b32 v{vT}, 1, v{g}')
    k(f'v_lshlrev_b32 v{vT}, 8, v{vT}')
    k(f'v_lshl_add_u32 v{vT}, v{i}, 4, v{vT}')
    k(f's_lshl_b32 s40, s{sWAVE}, 9')
    k(f's_add_u32 s40, s40, 8192')
    k(f'v_add_u32 v{vPM}, s40, v{vT}')
    k(f's_lshl_b32 s40, s{sWAVE}, 10')
    k(f's_add_u32 s40, s40, {LRED}')
    k(f'v_add_u32 v{vRW}, s40, v{vL16}')
    k(f'v_and_b32 v{vT}, 3, v{vLane}')
    k(f'v_lshlrev_b32 v{vT}, 6, v{vT}')
    k(f'v_lshrrev_b32 v{vT+1}, 5, v{vLane}')
    k(f'v_lshl_add_u32 v{vT}, v{vT+1}, 5, v{vT}')
    k(f'v_lshrrev_b32 v{vT+1}, 2, v{vLane}')
    k(f'v_and_b32 v{vT+2}, 3, v{vT+1}')
    k(f'v_lshl_add_u32 v{vT}, v{vT+2}, 2, v{vT}')
    k(f'v_bfe_u32 v{vT+2}, v{vLane}, 4, 1')
    k(f'v_lshl_add_u32 v{vT}, v{vT+2}, 8, v{vT}')
    k(f's_and_b32 s40, s{sWAVE}, 1')
    k(f's_lshl_b32 s40, s40, 9')
    k(f's_add_u32 s40, s40, {LRED}')
    k(f'v_add_u32 v{vRR}, s40, v{vT}')
    for w in range(1, 4): k(f'v_add_u32 v{vRR2+w-1}, {1024*w}, v{vRR}')
    k(f's_lshl_b32 s40, s{sID}, 1')
    k(f's_and_b32 s41, s{sWAVE}, 1')
    k(f's_add_u32 s40, s40, s41')
    k(f's_lshl_b32 s40, s40, 8')
    k(f'v_lshlrev_b32 v{vL4}, 2, v{vLane}')
    k(f'v_add_u32 v{vL4}, s40, v{vL4}')
    k(f's_mov_b32 s{sSTEP}, 0')
    k(f's_lshr_b32 s{sM}, s{sWAVE}, 1')
    k(f's_mul_i32 s{sM}, s{sM}, {2*MEM_S}')
    k(f's_add_u32 s{sM}, s{sM}, {MEM}')
    k(f's_mov_b32 s47, {MEMX - MEM_S}')
    k(f"s_mov_b32 s49, {MEM + (NREP-1)*MEM_S}")
    k(f's_and_b32 s{sP}, s{sID}, 1')
    k(f"s_mul_i32 s{sP}, s{sP}, {PB_S if OPT['prep'] == 2 else 0}")
    k(f's_add_u32 s{sP}, s{sP}, {PB}')
    k(f's_lshl_b32 s{sX}, s{sID}, 15')
    k(f's_lshl_b32 s40, s{sWAVE}, 13')
    k(f's_add_u32 s{sX}, s{sX}, s40')
    k(f's_add_u32 s{sX}, s{sX}, {UF}')
    k(f's_mul_i32 s{sUM}, s{sWAVE}, {2*28*1024}')
    k(f's_lshl_b32 s40, s{sID}, 11')
    k(f's_add_u32 s{sUM}, s{sUM}, s40')
    k(f's_add_u32 s{sUM}, s{sUM}, {UM}')
    k(f's_mov_b32 s43, s{sUM}')
    def ldu(j):
        hh, T = j >> 1, j & 1
        r = vU + 16*(hh>>1) + 8*T + 4*(hh&1)
        return f'buffer_load_dwordx4 {vr(r,4)}, v{vL16}, {WS}, s{sX if j<4 else sT0} offen offset:{(j&3)*1024} ' + OPT['uf']
    def stum(u, T):
        return f'buffer_store_dwordx4 {vr(vUm+8*T+4*u,4)}, v{vL16}, {WS}, s{43 if u==0 else 44} offen offset:{T*1024} ' + OPT['um']
    def lw(gi):
        b = vTm + 16*(gi&1)
        for f in range(4): k.ds(f'ds_read_b128 {vr(b+4*f,4)}, v{vWL} offset:{gi*4096+f*1024}', f'w{gi}')
    def load_u(ahead):
        if wait_u:
            lu = k.newlabel('Lnu')
            k(f's_add_u32 s{sT0}, s{sSTEP}, {ahead}')
            k(f's_and_b32 s{sT1}, s{sT0}, 3')
            k(f's_cbranch_scc1 {lu}')
            k(f's_lshl_b32 s{sT0}, s{sT0}, 5')
            k(f's_add_u32 s{sT0}, s{sT0}, {flag(F_U)}')
            wait_u(k, sT0, 32, vC, sleep=1)
            k.label(lu)
        k(f's_add_u32 s{sT0}, s{sX}, 4096')
        for j in range(8): k(ldu(j))
        k(f's_add_u32 s{sX}, s{sX}, {UF_SEG}')
    if OPT['u0'] == 'pro': load_u(0)
    wait_mode(k, vC)
    sw = []
    for o in range(4):
        r = vU + 8*o
        for e in range(4):
            sel = e & 1
            sw.append(f'v_pk_mov_b32 {vr(vUi+8*o+2*e,2)}, {vr(r+(e&2),2)}, {vr(r+4+(e&2),2)} op_sel:[{sel},{sel}]')
    if stamps: k(f's_add_u32 s76, s{sST}, 0x20000')
    edge(k, stamps, 0)
    k.label('L_B_loop')
    lp = k.newlabel('Lgm')
    def gl():
        sb = 49
        k(f'buffer_load_dwordx4 {vr(vM,4)}, v{vG0}, {WS}, s{sb} offen sc1')
        k(f'buffer_load_dwordx4 {vr(vM+4,4)}, v{vG1}, {WS}, s{sb} offen sc1')
    k('s_waitcnt vmcnt(3)')
    NU = OPT['nu2']
    k(f's_add_u32 s{sT0}, s{sX}, {4096 - UF_SEG}')
    for j in range(8-NU, 8): k(ldu(j))
    gl()
    for x in sw[:16-2*NU]: k(x)
    for r in range(0, 32, 2): k(f'v_mov_b64 {vr(vA+r,2)}, 0')
    for j in range(2, 7): k(f'v_add_u32 v{vG+j}, s{50+j}, v{vL16}')
    k(f's_add_u32 s45, s{sSTEP}, 1')
    k(f's_lshr_b32 s45, s45, 2')
    k(f's_lshl_b32 s45, s45, 7')
    k(f's_add_u32 s45, s45, {flag(F_U)}')
    k(f's_add_u32 s44, s43, {28*1024}')
    vm = [stum(0,0), stum(0,1), stum(1,0), stum(1,1)] + [ldu(j) for j in range(8)]
    lw(0)
    k(f's_mov_b32 s{sCNT}, 0')
    k(f's_branch {lp}w')
    k.label(lp)
    if OPT['bgs']: k(f"s_sleep {OPT['bgs']}")
    gl()
    k(f's_add_u32 s{sCNT}, s{sCNT}, 1')
    k(f's_cmp_gt_u32 s{sCNT}, s{sT2}')
    k('s_cbranch_scc1 L_fail')
    k.label(lp + 'w')
    k('s_waitcnt vmcnt(1)')
    k(f'v_max3_u32 v{vC}, v{vM}, v{vM+1}, v{vM+2}')
    k('s_waitcnt vmcnt(0)')
    k(f'v_max3_u32 v{vC+1}, v{vM+4}, v{vM+5}, v{vM+6}')
    k(f'v_max3_u32 v{vC}, v{vC}, v{vM+3}, v{vM+7}')
    k(f'v_max_u32 v{vC}, v{vC}, v{vC+1}')
    k(f'v_cmp_eq_u32 vcc, -1, v{vC}')
    k(f's_cbranch_vccnz {lp}')
    stamp(k, 0, stamps)
    k.ds(f'ds_write_b128 v{vG0}, {vr(vM,4)} offset:{LM}')
    k.ds(f'ds_write_b128 v{vG1}, {vr(vM+4,4)} offset:{LM}')
    ls, l2 = k.newlabel('Lbs'), k.newlabel('Lbt')
    k(f's_cmp_eq_u32 s{sSTEP}, 0')
    k(f's_cbranch_scc1 {l2}')
    k(f's_cmp_ge_u32 s{sWAVE}, 2')
    k(f's_cbranch_scc1 {ls}')
    k(f'buffer_store_dword v{vKeep}, v{vL4}, {WS}, s47 offen sc1')
    k(f's_branch {l2}')
    k.label(ls)
    k(f's_cmp_eq_u32 s{sWAVE}, 2')
    k(f's_cselect_b32 s{sT0}, s{sSTEP}, 0')
    k(f's_cmp_le_u32 s{sT0}, 1')
    k(f's_cbranch_scc1 {l2}')
    k(f's_lshl_b32 s{sT0}, s{sSTEP}, 7')
    k(f's_add_u32 s{sT0}, s{sT0}, {flag(F_UM) - 256}')
    k('s_mov_b64 exec, 1')
    k(f'v_mov_b32 v{vC}, 1')
    k(f'buffer_atomic_add v{vC}, off, {WS}, s{sT0}')
    k('s_mov_b64 exec, -1')
    k.label(l2)
    k(f'buffer_load_dword v{vFl}, off, {WS}, s45 sc1')
    for x in vm[:4]: k(x)
    def acc(gi): return vA + 4*gi
    def cvt(gi, h):
        hh, T = gi>>1, gi&1
        d = vUm + 8*T + 4*(hh>>1) + 2*h + (hh&1)
        a = acc(gi) + 2*h
        k(f'v_cvt_pk_bf16_f32 v{d}, v{a}, v{a+1}')
    def lw1(gi, f):
        k.ds(f'ds_read_b128 {vr(vTm+16*(gi&1)+4*f,4)}, v{vWL} offset:{gi*4096+f*1024}', f'w{gi}')
    def MB(gi, j):
        w = xr(W(gi,j),8) if j < 5 else vr(vTm + 16*(gi&1) + 8*(j-5), 8)
        k(f'v_smfmac_f32_16x16x64_bf16 {vr(acc(gi),4)}, {vr(vM+4*j,4)}, {w}, v{vIdx}')
    for n in range(16):
        MB(n & 7, n >> 3)
        if n == 5:
            k.wds0(); k('s_barrier')
        if 5 <= n < 10:
            k.ds(f'ds_read_b128 {vr(vM+4*(n-3),4)}, v{vG+n-3} offset:{LM}', f'm{n-3}')
    for gi in range(8):
        for j in range(2, 7):
            if gi == 0: k.wds(f'm{j}')
            if j == 5: k.wds(f'w{gi}')
            MB(gi, j)
            if gi < 7 and j in (2, 3, 5, 6): lw1(gi+1, {2:0, 3:1, 5:2, 6:3}[j])
            if gi >= 1 and j == 4: cvt(gi-1, 0); cvt(gi-1, 1)
    k(f's_mov_b32 s43, s{sUM}')
    k(f's_add_u32 s{sUM}, s{sUM}, {UM_SEG}')
    for x in sw[16-2*NU:]: k(x)
    k.nop(max(0, 6 - 2*NU))
    cvt(7, 0); cvt(7, 1)
    for r in range(0, 8, 2): k(f'v_mov_b64 {vr(vD+r,2)}, 0')
    k(f's_cmp_ge_u32 s{sSTEP}, {NSTEP}')
    k('s_cbranch_scc1 L_B_end')
    k('s_waitcnt vmcnt(4)')
    if OPT['u0'] == 'cold':
        l0, l1 = k.newlabel('Lu0'), k.newlabel('Lu1')
        k(f's_cmp_eq_u32 s{sSTEP}, 0')
        k(f's_cbranch_scc1 {l0}')
        k.label(l1)
        main = k.lines; k.lines = []
        k.label(l0)
        load_u(0)
        k('s_waitcnt vmcnt(0)')
        for x in sw: k(x)
        k(f'v_mov_b32 v{vFl}, 32')
        k(f's_branch {l1}')
        k.cold += k.lines; k.lines = main
    if wait_u:
        lu = k.newlabel('Lnu')
        k(f'v_cmp_le_u32 vcc, 32, v{vFl}')
        k(f's_cbranch_vccnz {lu}')
        wait_u(k, 45, 32, vC)
        k.label(lu)
    k(f's_add_u32 s{sT0}, s{sX}, 4096')
    for j in range(8-NU): k(ldu(j))
    k(f's_add_u32 s{sX}, s{sX}, {UF_SEG}')
    stamp(k, 1, stamps)
    if OPT['sleepB']: k(f"s_sleep {OPT['sleepB']}")
    def issue(st):
        P = vP[st]
        return [f'buffer_load_dwordx4 {vr(P,4)}, v{vPT}, {WS}, s{sP} offen sc1',
                f'buffer_load_dwordx4 {vr(P+4,4)}, v{vPT}, {WS}, s{sP} offen offset:1024 sc1',
                f'buffer_load_dwordx4 {vr(P+8,4)}, v{vPM}, {WS}, s{sP} offen sc1']
    def checks(st):
        P = vP[st]
        return [(2, [f'v_max3_u32 v{vC}, v{P}, v{P+1}, v{P+2}']),
                (1, [f'v_max3_u32 v{vC+1}, v{P+4}, v{P+5}, v{P+6}', f'v_max3_u32 v{vC}, v{vC}, v{P+3}, v{P+7}']),
                (0, [f'v_max3_u32 v{vC+1}, v{vC+1}, v{P+8}, v{P+9}', f'v_max3_u32 v{vC}, v{vC}, v{P+10}, v{P+11}',
                     f'v_max_u32 v{vC}, v{vC}, v{vC+1}', f'v_cmp_eq_u32 vcc, -1, v{vC}'])]
    def body(st):
        P = vP[st]
        stamp(k, 2, stamps)
        for j in range(3):
            for T in range(2):
                b = vr(vUi + 16*j + 8*T, 8) if j < 2 else vr(vUm + 8*T, 8)
                k(f'v_smfmac_f32_16x16x64_bf16 {vr(vD+4*T,4)}, {vr(P+4*j,4)}, {b}, v{vIdx}')
    if OPT['bp2']: poll2(k, issue, checks, body, 'Lpp', OPT['stag'])
    else:
        lp = k.newlabel('Lp1')
        k(f's_mov_b32 s{sCNT}, 0')
        k.label(lp)
        for x in issue(0): k(x)
        k(f's_add_u32 s{sCNT}, s{sCNT}, 1')
        k(f's_cmp_gt_u32 s{sCNT}, s{sT2}')
        k('s_cbranch_scc1 L_fail')
        for rel, ins in checks(0):
            k(f's_waitcnt vmcnt({rel})')
            for x in ins: k(x)
        k(f's_cbranch_vccnz {lp}')
        body(0)
    k(f's_add_u32 s{sM}, s{sM}, {MEM_T}')
    k(f's_add_u32 s47, s47, {MEM_S}')
    k(f's_add_u32 s48, s{sM}, {MEM_S}')
    k(f's_add_u32 s49, s49, {MEM_T}')
    k(f's_add_u32 s{sP}, s{sP}, {PB_T}')
    k.nop(6)
    for r in range(4): k(f'v_permlane32_swap_b32 v{vD+r}, v{vD+4+r}')
    k(f'v_pk_add_f32 {vr(vD,2)}, {vr(vD,2)}, {vr(vD+4,2)}')
    k(f'v_pk_add_f32 {vr(vD+2,2)}, {vr(vD+2,2)}, {vr(vD+6,2)}')
    k.ds(f'ds_write_b128 v{vRW}, {vr(vD,4)}')
    k.wds0()
    k('s_barrier')
    if OPT['rep'] == 3:
        k(f's_cmp_ge_u32 s{sWAVE}, 2')
        k('s_cbranch_scc1 L_B_skip')
    R = vG
    for w in range(4): k.ds(f'ds_read2_b32 {vr(R+2*w,2)}, v{vRR} offset0:{0} offset1:{4}' if w == 0 else
                            f'ds_read2_b32 {vr(R+2*w,2)}, v{vRR2+w-1} offset0:0 offset1:4', f'r{w}')
    k(f's_cmp_eq_u32 s{sMODE}, 1')
    k.wds('r1')
    k(f'v_pk_add_f32 {vr(R,2)}, {vr(R,2)}, {vr(R+2,2)}')
    k.wds('r3')
    k(f'v_pk_add_f32 {vr(R+4,2)}, {vr(R+4,2)}, {vr(R+6,2)}')
    k(f'v_pk_add_f32 {vr(R,2)}, {vr(R,2)}, {vr(R+4,2)}')
    k(f'v_cvt_pk_bf16_f32 v{R}, v{R}, v{R+1}')
    k(f'v_min_u32 v{R}, -2, v{R}')
    publish(k, [f'buffer_store_dword v{R}, v{vL4}, {WS}, s{x} offen' for x in [sM, 48, 49]])
    k(f'v_mov_b32 v{vKeep}, v{R}')
    k(f's_cmp_lg_u32 s{sSTEP}, {NSTEP-1}')
    k('s_cbranch_scc1 L_B_skip2')
    k(f'buffer_store_dword v{R}, v{vL4}, {WS}, s47 offen sc1')
    k('s_branch L_B_skip2')
    k.label('L_B_skip')
    k('s_waitcnt vmcnt(0)')
    k.label('L_B_skip2')
    stamp(k, 3, stamps)
    k('s_barrier')
    k(f's_add_u32 s{sSTEP}, s{sSTEP}, 1')
    if stamps: k(f's_add_u32 s{sST}, s{sST}, 16')
    k('s_branch L_B_loop')
    k.label('L_B_end')
    edge(k, stamps, 8)
    k(f's_add_u32 s44, s43, {28*1024}')
    for x in vm[:4]: k(x)
    k('s_waitcnt vmcnt(0)')
    k('s_barrier')
    k(f's_cmp_lg_u32 s{sWAVE}, 0')
    k('s_cbranch_scc1 L_exit')
    k('s_mov_b64 exec, 3')
    k(f'v_mov_b32 v{vC}, 1')
    k(f'v_lshlrev_b32 v{vC+1}, 7, v{vLane}')
    k(f's_mov_b32 s{sT0}, {flag(F_UM + 62)}')
    k(f'buffer_atomic_add v{vC}, v{vC+1}, {WS}, s{sT0} offen')
    k('s_endpgm')
    k.flush_cold()

def role_P(k, wait_u=None):
    WS = f's[{SWS}:{SWS+3}]'
    vLane, vU, vX, vS, vD = 1, 2, 3, 4, 8
    D = OPT['pfd']; st = OPT['pfs']; sh = 7 if st == 128 else 6
    k.label('L_roleP')
    k(f's_mov_b32 s{sT2}, {POLL_LIMIT}')
    k(f's_sub_u32 s{sID}, s{sROLE}, 30')
    k(f's_lshl_b32 s{sID}, s{sID}, 2')
    k(f's_add_u32 s{sID}, s{sID}, s{sWAVE}')
    k(f'v_and_b32 v{vLane}, 63, v0')
    k(f'v_lshlrev_b32 v{vU}, {sh}, v{vLane}')
    k(f's_mul_i32 s40, s{sID}, {UF_SEG//8}')
    k(f'v_add_u32 v{vU}, s40, v{vU}')
    for reg, n in ((vX, 28), (vS, PB_T//1024), (vS+1, 7*NREP)):
        k(f'v_min_u32 v{reg}, {n-1}, v{vLane}')
        k(f's_mul_i32 s40, s{sID}, {n}')
        k(f'v_add_lshl_u32 v{reg}, v{reg}, s40, 7')
    k(f's_mov_b32 s{sSTEP}, 0')
    k(f's_mov_b32 s{sX}, {UF}')
    k(f's_mov_b32 s{sUM}, {XNS}')
    k(f's_mov_b32 s{sP}, {PB}')
    k(f's_mov_b32 s{sM}, {MEM + MEM_T}')
    k(f's_mov_b32 s41, {MEM - D*MEM_T + (NREP-1)*MEM_S}')
    if OPT['cpf']:
        k('s_getpc_b64 s[44:45]')
        k.label('L_P_pc')
        k('s_sub_u32 s44, s44, L_P_pc-L_roleA')
        k('s_subb_u32 s45, s45, 0')
        k(f's_lshl_b32 s40, s{sID}, 12')
        k(f'v_lshlrev_b32 v20, 6, v{vLane}')
        k('v_add_u32 v20, s40, v20')
        k('v_min_u32 v20, L_P_pc-L_roleA, v20')
        k('v_mov_b32 v21, s45')
        k('v_add_co_u32 v20, vcc, s44, v20')
        k('s_nop 1')
        k('v_addc_co_u32 v21, vcc, 0, v21, vcc')
        k('global_load_dword v22, v[20:21], off')
    k.label('L_P_loop')
    k(f's_cmp_le_u32 s{sSTEP}, {D}')
    k('s_cbranch_scc1 L_P_go')
    k(f's_mov_b32 s{sCNT}, 0')
    k.label('L_P_wait')
    k(f'buffer_load_dword v{vD}, off, {WS}, s41 sc1')
    k(f's_add_u32 s{sCNT}, s{sCNT}, 1')
    k(f's_cmp_gt_u32 s{sCNT}, s{sT2}')
    k('s_cbranch_scc1 L_fail')
    k('s_waitcnt vmcnt(0)')
    k(f'v_cmp_eq_u32 vcc, -1, v{vD}')
    k('s_cbranch_vccz L_P_go')
    k('s_sleep 2')
    k('s_branch L_P_wait')
    k.label('L_P_go')
    k(f'buffer_load_dword v{vD+1}, v{vS}, {WS}, s{sP} offen sc1')
    k(f'buffer_load_dword v{vD+2}, v{vS+1}, {WS}, s{sM} offen sc1')
    k(f'buffer_load_dword v{vD+3}, v{vX}, {WS}, s{sUM} offen sc1')
    n = 0 if OPT['apf'] else UF_SEG // 8 // (64*st)
    k(f's_mov_b32 s{sT0}, s{sX}')
    for j in range(n):
        k(f'buffer_load_dword v{vD+4+j}, v{vU}, {WS}, s{sT0} offen sc1')
        k(f's_add_u32 s{sT0}, s{sT0}, {64*st}')
    k(f's_add_u32 s{sX}, s{sX}, {UF_SEG}')
    k(f's_add_u32 s{sUM}, s{sUM}, 28672')
    k(f's_add_u32 s{sP}, s{sP}, {PB_T}')
    k(f's_add_u32 s{sM}, s{sM}, {MEM_T}')
    k(f's_add_u32 s41, s41, {MEM_T}')
    k(f's_add_u32 s{sSTEP}, s{sSTEP}, 1')
    k(f's_cmp_lt_u32 s{sSTEP}, {NSTEP}')
    k('s_cbranch_scc1 L_P_loop')
    k('s_waitcnt vmcnt(0)')
    k('s_endpgm')
```

```python
from asmlib import *
from layout import *

class K(Asm):
    def __init__(self):
        super().__init__()
        self.dsq = []; self.cold = []; self.vmq = []
    def ds(self, text, tag=None):
        self(text); self.dsq.append(tag)
    def wds(self, tag):
        if tag not in self.dsq: return
        idx = max(i for i, t in enumerate(self.dsq) if t == tag)
        n = len(self.dsq) - 1 - idx
        assert n <= 15
        self(f's_waitcnt lgkmcnt({n})')
        self.dsq = self.dsq[idx+1:]
    def wds0(self):
        self('s_waitcnt lgkmcnt(0)'); self.dsq = []
    def vm(self, text, tag=None):
        self(text); self.vmq.append(tag)
    def wvm(self, *tags, extra=''):
        idx = max([i for i, t in enumerate(self.vmq) if t in tags], default=-1)
        if idx < 0:
            if extra: self('s_waitcnt ' + extra)
            return
        n = len(self.vmq) - 1 - idx
        assert n <= 63
        self(f's_waitcnt vmcnt({n}) {extra}')
        self.vmq = self.vmq[idx+1:]
    def flush_cold(self):
        for l in self.cold: self(l)
        self.cold = []

SWS, SDBG = 4, 8
sROLE, sWAVE, sSTEP, sMODE, sM, sP, sX, sUM, sCNT = 12, 13, 14, 15, 16, 17, 18, 19, 20
sT0, sT1, sT2 = 21, 22, 23
sMASK8 = 24
sID = 26
sST = 28
sTM = 30
POLL_LIMIT = 400000
NSTEP = 63
OPT = dict(sa='late', sb='early', um='sc1', uf='sc1', sleepA=0, sleepB=0, stampmask=15, rt=0, barA=1, barB=1, prefP=0, pfd=3, pfs=128, upos='early', ud=2, apf=1, nb=8, stag=1, wpos=1, rsp=1, s1pos=0, upre=8, uneed=32, ust='sc1', rot=1, k1st='sc1', uwin=2, k1d=2, ap2=0, stagA=2, gv=0, rep=3, prep=1, k1late=0, cpf=0, sm2=0, tm=1, bp2=1, k1pf=0, k1ln='sc1', u0='cold', align=0, w64=0, p64=0, kpos='post', kdel=7, nu2=4, bgs=0, vsl=120, usl=120, psl=16, msl=120)

def stamp(k, idx, on):
    if not on or not (OPT['stampmask'] >> idx) & 1: return
    k(('s_memrealtime' if OPT['rt'] else 's_memtime') + f' s[{sTM}:{sTM+1}]')
    k.wds0()
    k(f'v_mov_b32 v0, s{sTM}')
    k(f'buffer_store_dword v0, off, s[{SWS}:{SWS+3}], s{sST} offset:{idx*4}')

def edge(k, on, off):
    if not on or OPT['rt']: return
    lp = k.newlabel('Led')
    k('s_memrealtime s[70:71]')
    k('s_waitcnt lgkmcnt(0)')
    k.label(lp)
    k('s_memrealtime s[72:73]')
    k('s_memtime s[74:75]')
    k('s_waitcnt lgkmcnt(0)')
    k('s_cmp_eq_u32 s72, s70')
    k(f's_cbranch_scc1 {lp}')
    k('v_mov_b32 v0, s72')
    k(f'buffer_store_dword v0, off, s[{SWS}:{SWS+3}], s76 offset:{off}')
    k('v_mov_b32 v0, s74')
    k(f'buffer_store_dword v0, off, s[{SWS}:{SWS+3}], s76 offset:{off+4}')

def publish(k, text):
    ls, ld = k.newlabel('Lslow'), k.newlabel('Lpub')
    if isinstance(text, str): text = [text]
    k(f's_cbranch_scc0 {ls}')
    for x in text: k(x)
    k.label(ld)
    k.cold += [ls + ':'] + [x + ' sc1' for x in text] + [f's_branch {ld}']

def gather_mem(k, vG, vOff0, vOff1, vL0, vL1, vT):
    lp, dn = k.newlabel('Lgm'), k.newlabel('Lgd')
    k(f's_mov_b32 s{sCNT}, 0')
    k.label(lp)
    k(f'buffer_load_dwordx4 {vr(vG,4)}, v{vOff0}, s[{SWS}:{SWS+3}], s{sM} offen sc1')
    k(f'buffer_load_dwordx4 {vr(vG+4,4)}, v{vOff1}, s[{SWS}:{SWS+3}], s{sM} offen sc1')
    k(f's_add_u32 s{sCNT}, s{sCNT}, 1')
    k(f's_cmp_gt_u32 s{sCNT}, s{sT2}')
    k('s_cbranch_scc1 L_fail')
    k('s_waitcnt vmcnt(1)')
    k(f'v_max3_u32 v{vT}, v{vG}, v{vG+1}, v{vG+2}')
    k('s_waitcnt vmcnt(0)')
    k(f'v_max3_u32 v{vT+1}, v{vG+4}, v{vG+5}, v{vG+6}')
    k(f'v_max3_u32 v{vT}, v{vT}, v{vG+3}, v{vG+7}')
    k(f'v_max_u32 v{vT}, v{vT}, v{vT+1}')
    k(f'v_cmp_eq_u32 vcc, -1, v{vT}')
    k(f's_cbranch_vccnz {lp}')
    if vL0 is None: return
    k.ds(f'ds_write_b128 v{vL0}, {vr(vG,4)}')
    k.ds(f'ds_write_b128 v{vL1}, {vr(vG+4,4)}')
    k.wds0()
    k('s_barrier')

def wait_mode(k, vT):
    lp = k.newlabel('Lwm')
    k(f's_mov_b32 s{sCNT}, 0')
    k(f'v_and_b32 v{vT+1}, 15, v0')
    k(f'v_lshlrev_b32 v{vT+1}, 2, v{vT+1}')
    k.label(lp)
    k(f'buffer_load_dword v{vT}, v{vT+1}, s[{SDBG}:{SDBG+3}], 0 offen offset:32 sc1')
    k(f's_add_u32 s{sCNT}, s{sCNT}, 1')
    k(f's_cmp_gt_u32 s{sCNT}, s{sT2}')
    k('s_cbranch_scc1 L_fail')
    k('s_waitcnt vmcnt(0)')
    k(f'v_cmp_eq_u32 vcc, 32, v{vT}')
    for rot in (8, 4, 2, 1):
        k.nop(2)
        k(f'v_add_u32_dpp v{vT}, v{vT}, v{vT} row_ror:{rot} row_mask:0xf bank_mask:0xf')
    k.nop(1)
    k(f'v_readfirstlane_b32 s{sMODE}, v{vT}')
    k('s_nop 3')
    k(f's_cmp_lt_u32 s{sMODE}, 32')
    k(f's_cbranch_scc1 {lp}')
    k('s_cmp_lg_u64 vcc, 0')
    k(f's_cselect_b32 s{sMODE}, 1, 2')

def common_lane_setup(k, vLane, vL16, vG0, vG1, vIdx, vT):
    k(f'v_and_b32 v{vLane}, 63, v0')
    k(f'v_lshlrev_b32 v{vL16}, 4, v{vLane}')
    if vG0 is not None:
        k(f's_lshl_b32 s{sT0}, s{sWAVE}, 10')
        k(f'v_add_u32 v{vG0}, s{sT0}, v{vL16}')
        k(f's_add_u32 s{sT0}, s{sWAVE}, 4')
        k(f's_min_u32 s{sT0}, s{sT0}, 6')
        k(f's_lshl_b32 s{sT0}, s{sT0}, 10')
        k(f'v_add_u32 v{vG1}, s{sT0}, v{vL16}')
    k(f'v_and_b32 v{vT}, 8, v{vLane}')
    k(f'v_mov_b32 v{vIdx}, 0x4444')
    k(f'v_mov_b32 v{vT+1}, 0xeeee')
    k(f'v_cmp_ne_u32 vcc, 0, v{vT}')
    k('s_nop 1')
    k(f'v_cndmask_b32 v{vIdx}, v{vIdx}, v{vT+1}, vcc')
    k(f's_mov_b32 s{sT2}, {POLL_LIMIT}')

def poll2(k, issue, checks, body, name, stag):
    nl = len(issue(0))
    l0, d0, d1, dn = [k.newlabel(name + x) for x in ('lp', 'd0', 'd1', 'dn')]
    k(f's_mov_b32 s{sCNT}, 0')
    for x in issue(0): k(x)
    k(f"s_sleep {stag}")
    k.label(l0)
    for st, dl in ((0, d0), (1, d1)):
        for x in issue(1 - st): k(x)
        if st == 0:
            k(f's_add_u32 s{sCNT}, s{sCNT}, 1')
            k(f's_cmp_gt_u32 s{sCNT}, s{sT2}')
            k('s_cbranch_scc1 L_fail')
        for rel, ins in checks(st):
            k(f's_waitcnt vmcnt({nl + rel})')
            for x in ins: k(x)
        if st == 0: k(f's_cbranch_vccz {d0}')
        else:       k(f's_cbranch_vccnz {l0}x')
    saved = list(k.dsq)
    body(1)
    k(f's_branch {dn}')
    k.label(l0 + 'x')
    k(f's_branch {l0}')
    k.label(d0)
    end = list(k.dsq); k.dsq = saved
    body(0)
    assert k.dsq == end
    k.label(dn)

def role_A(k, stamps=False):
    vLane, vL16, vIdx = 1, 2, 3
    vKey, vKeyS, vMK, vMKS, vQW, vQR, vSW, vSR, vPO, vVal = 4, 5, 6, 7, 8, 9, 10, 11, 12, 13
    vT = 14
    vM = 16
    vQ = 44
    vKT = 72
    vKM = 100
    vX = 114
    vG0, vG1 = 118, 119
    def W(lt, kb):
        i = lt*7 + kb
        return (256 + 8*i) if i < 32 else (120 + 8*(i-32))
    LM, LSP, LQS = 0, 7168, 20480
    k.label('L_roleA')
    k(f's_mov_b32 s{sID}, s{sROLE}')
    common_lane_setup(k, vLane, vL16, vG0, vG1, vIdx, vX)
    k(f's_lshr_b32 s{sT0}, s{sWAVE}, 1')
    k(f's_mul_i32 s{sT0}, s{sT0}, 14')
    k(f's_and_b32 s{sT1}, s{sWAVE}, 1')
    k(f's_add_u32 s33, s{sT0}, 6')
    k(f's_add_u32 s33, s33, s{sT1}')
    k(f's_lshl_b32 s34, s{sT1}, 3')
    k(f's_add_u32 s32, s{sT0}, s34')
    k(f's_mul_i32 s35, s{sID}, {28*14*1024}')
    k(f's_add_u32 s35, s35, {WTA}')
    k(f's_mul_i32 s36, s32, {14*1024}')
    k(f's_add_u32 s36, s36, s35')
    k(f's_mul_i32 s37, s33, {14*1024}')
    k(f's_add_u32 s37, s37, s35')
    for j in range(7):
        k(f's_add_u32 s{50+j}, s{sWAVE}, {(4*j) % 7}')
        k(f's_sub_u32 s40, s{50+j}, 7')
        k(f's_cmp_ge_u32 s{50+j}, 7')
        k(f's_cselect_b32 s{50+j}, s40, s{50+j}')
        k(f's_lshl_b32 s{50+j}, s{50+j}, 10')
    n = 0
    for lt in range(7):
        sb = 36 if lt < 6 else 37
        for j in range(7):
            k(f's_lshl_b32 s40, s{50+j}, 1')
            k(f's_add_u32 s40, s40, s{sb}')
            for f in range(2):
                k(f'buffer_load_dwordx4 {xr(W(lt, j) + 4*f,4)}, v{vL16}, s[{SWS}:{SWS+3}], s40 offen offset:{f*1024}')
                n += 1
                if n % 16 == 0: k('s_waitcnt vmcnt(40)')
        k(f's_add_u32 s{sb}, s{sb}, 14336')
    k(f'v_add_u32 v{vG1}, s51, v{vL16}')
    t = vX
    g, i = vQ, vQ+1
    k(f'v_lshrrev_b32 v{g}, 4, v{vLane}')
    k(f'v_and_b32 v{i}, 15, v{vLane}')
    k(f's_lshr_b32 s38, s32, 1')
    k(f's_lshr_b32 s39, s33, 1')
    k(f's_lshl_b32 s40, s38, 10')
    k(f'v_add_u32 v{vKey}, s40, v{vL16}')
    k(f's_lshl_b32 s40, s39, 10')
    k(f's_add_u32 s40, s40, s34')
    k(f'v_add_u32 v{vKeyS}, s40, v{vL16}')
    k(f'v_lshrrev_b32 v{t}, 1, v{g}')
    k(f'v_lshlrev_b32 v{t}, 8, v{t}')
    k(f'v_and_b32 v{t+1}, 7, v{i}')
    k(f'v_lshlrev_b32 v{t+1}, 4, v{t+1}')
    k(f'v_add_u32 v{t}, v{t}, v{t+1}')
    k(f'v_and_b32 v{t+1}, 1, v{g}')
    k(f'v_lshlrev_b32 v{t+1}, 7, v{t+1}')
    k(f'v_add_u32 v{t}, v{t}, v{t+1}')
    k(f's_lshl_b32 s40, s38, 9')
    k(f'v_add_u32 v{vMK}, s40, v{t}')
    k(f's_lshl_b32 s40, s39, 9')
    k(f's_add_u32 s40, s40, s34')
    k(f'v_add_u32 v{vMKS}, s40, v{t}')
    k(f's_lshl_b32 s40, s{sWAVE}, 10')
    k(f's_add_u32 s40, s40, {LQS}')
    k(f'v_lshrrev_b32 v{t}, 2, v{i}')
    k(f'v_add_u32 v{t}, v{t}, v{g}')
    k(f'v_and_b32 v{t}, 3, v{t}')
    k(f'v_lshlrev_b32 v{t}, 3, v{t}')
    k(f'v_lshlrev_b32 v{t+1}, 5, v{i}')
    k(f'v_add3_u32 v{vQW}, v{t}, v{t+1}, s40')
    k(f'v_lshrrev_b32 v{t}, 2, v{vLane}')
    k(f'v_lshlrev_b32 v{t}, 5, v{t}')
    k(f'v_add_u32 v{t+1}, v{vLane}, v{g}')
    k(f'v_and_b32 v{t+1}, 3, v{t+1}')
    k(f'v_lshlrev_b32 v{t+1}, 3, v{t+1}')
    k(f'v_add3_u32 v{vQR}, v{t}, v{t+1}, s40')
    k(f's_mul_i32 s40, s{sWAVE}, 3264')
    k(f's_add_u32 s40, s40, {LSP}')
    k(f'v_lshlrev_b32 v{t}, 4, v{i}')
    k(f'v_mul_u32_u24 v{t+1}, 272, v{g}')
    k(f'v_add3_u32 v{vSW}, v{t}, v{t+1}, s40')
    k(f'v_subrev_u32 v{t}, 12, v{i}')
    k(f'v_cmp_le_u32 vcc, 12, v{i}')
    k('s_nop 1')
    k(f'v_cndmask_b32 v{t}, v{i}, v{t}, vcc')
    k(f'v_lshrrev_b32 v{t+1}, 5, v{vLane}')
    k(f's_lshl_b32 s40, s{sWAVE}, 1')
    k(f'v_add_u32 v{t+1}, s40, v{t+1}')
    k(f'v_and_b32 v{t+2}, 1, v{g}')
    k(f'v_lshl_add_u32 v{t+3}, v{t+2}, 3, v{t+1}')
    k(f'v_lshlrev_b32 v{t+3}, 4, v{t+3}')
    k(f'v_mul_u32_u24 v{vSR}, 272, v{t}')
    k(f'v_add_u32 v{vSR}, v{vSR}, v{t+3}')
    if LSP: k(f'v_add_u32 v{vSR}, {LSP}, v{vSR}')
    k(f's_and_b32 s42, s{sID}, 1')
    k(f's_lshl_b32 s42, s42, 3')
    k(f'v_add_u32 v{t+1}, s42, v{t+1}')
    k(f'v_and_b32 v{vPO}, 1, v{i}')
    k(f'v_lshlrev_b32 v{vPO}, 3, v{vPO}')
    k(f'v_lshl_add_u32 v{vPO}, v{t+1}, 4, v{vPO}')
    k(f'v_bfe_u32 v{t}, v{i}, 1, 1')
    k(f'v_lshl_add_u32 v{vPO}, v{t}, 8, v{vPO}')
    k(f'v_bfe_u32 v{t}, v{i}, 3, 1')
    k(f'v_lshl_add_u32 v{vPO}, v{t}, 9, v{vPO}')
    k(f's_lshr_b32 s41, s{sID}, 1')
    k(f's_lshl_b32 s40, s41, 10')
    k(f'v_add_u32 v{vPO}, s40, v{vPO}')
    k(f'v_lshlrev_b32 v{t}, 3, v{i}')
    k(f'v_lshl_add_u32 v{t}, v{t+1}, 4, v{t}')
    k(f's_lshl_b32 s40, s41, 8')
    k(f's_add_u32 s40, s40, 8192')
    k(f'v_add_u32 v{t}, s40, v{t}')
    k(f'v_mov_b32 v{t+3}, 0x40000000')
    k(f'v_cmp_le_u32 vcc, 2, v{i}')
    k('s_nop 1')
    k(f'v_cndmask_b32 v{t}, v{t}, v{t+3}, vcc')
    k(f'v_cmp_le_u32 vcc, 4, v{i}')
    k('s_nop 1')
    k(f'v_cndmask_b32 v{vPO}, v{t}, v{vPO}, vcc')
    k(f'v_cmp_le_u32 vcc, 12, v{i}')
    k('s_nop 1')
    k(f'v_cndmask_b32 v{vPO}, v{vPO}, v{t+3}, vcc')
    k(f'v_lshl_add_u32 v{vPO}, v{t+2}, 2, v{vPO}')
    k(f'v_mov_b32 v{vVal}, 1.0')
    k(f'v_cmp_le_u32 vcc, v{t+3}, v{vPO}')
    k('s_nop 1')
    k(f'v_cndmask_b32 v{vVal}, v{vVal}, 0, vcc')
    k(f's_mov_b32 s{sSTEP}, 0')
    k(f"s_lshr_b32 s{sM}, s{sID}, {3 if OPT['rep'] == 3 else 2}")
    k(f"s_mul_i32 s{sM}, s{sM}, {MEM_S}")
    k(f's_add_u32 s{sM}, s{sM}, {MEM}')
    k(f's_mov_b32 s{sP}, {PB}')
    k(f's_mov_b32 s{sX}, {XNS}')
    k(f's_lshl_b32 s40, s{sID}, 2')
    k(f's_add_u32 s40, s40, s{sWAVE}')
    k(f's_mul_i32 s40, s40, 7168')
    k(f'v_min_u32 v{vX}, {55*16}, v{vL16}')
    k(f'v_lshlrev_b32 v{vX}, 3, v{vX}')
    k(f'v_add_u32 v{vX}, s40, v{vX}')
    k(f"s_mov_b32 s{sUM}, {UF + OPT['ud']*UF_SEG}")
    WS = f's[{SWS}:{SWS+3}]'
    def key_list():
        L = []
        for p in range(3):
            L.append(f'buffer_load_dwordx4 {vr(vKT+8*p,4)}, v{vKey}, {WS}, s{sX} offen offset:{p*1024}')
            L.append(f'buffer_load_dwordx4 {vr(vKT+8*p+4,4)}, v{vKey}, {WS}, s46 offen offset:{p*1024}')
        L.append(f'buffer_load_dwordx2 {vr(vKT+24,2)}, v{vKeyS}, {WS}, s{sX} offen')
        L.append(f'buffer_load_dwordx2 {vr(vKT+26,2)}, v{vKeyS}, {WS}, s46 offen')
        return L
    def load_keys(keys=True):
        if keys:
            for x in key_list(): k(x)
        k(f's_add_u32 s{sX}, s{sX}, 28672')
        k(f's_add_u32 s46, s{sX}, 14336')
        k(f's_add_u32 s{sT0}, s{sSTEP}, {1 + OPT["ud"]}')
        k(f's_lshr_b32 s{sT0}, s{sT0}, 2')
        k(f's_lshl_b32 s{sT0}, s{sT0}, 7')
        k(f's_add_u32 s{sT0}, s{sT0}, {flag(F_U)}')
        k(f'buffer_load_dword v{vX+2}, off, {WS}, s{sT0} sc1')
    if OPT['tm']:
        k(f'v_lshlrev_b32 v{vQ+2}, 2, v{g}')
        k(f'v_sub_u32 v{vQ+2}, v{i}, v{vQ+2}')
        k(f'v_and_b32 v{vQ+3}, 1, v{vQ+2}')
        k(f'v_lshlrev_b32 v{vQ+3}, 4, v{vQ+3}')
        k(f'v_mov_b32 v{vLane}, 0x3f80')
        k(f'v_lshlrev_b32 v{vLane}, v{vQ+3}, v{vLane}')
        k(f'v_cmp_gt_u32 vcc, 4, v{vQ+2}')
        k(f'v_cmp_lt_u32 s[48:49], 1, v{vQ+2}')
        k('s_nop 0')
        k(f'v_cndmask_b32 v{vLane}, 0, v{vLane}, vcc')
    k(f's_add_u32 s46, s{sX}, 14336')
    k(f's_mov_b32 s{sSTEP}, -1')
    load_keys()
    k(f's_mov_b32 s{sSTEP}, 0')
    wait_mode(k, vT)
    k(f'v_mov_b32 v{vX+3}, 0x40000000')
    if stamps: k(f's_add_u32 s76, s{sST}, 0x20000')
    edge(k, stamps, 0)
    k.label('L_A_loop')
    for r in range(0, 28, 2): k(f'v_mov_b64 {vr(vQ+r,2)}, 0')
    k(f's_add_u32 s47, s{sP}, {PB_S}')
    vAd = vKM + 6
    for j in range(2, 7): k(f'v_add_u32 v{vAd+j}, s{50+j}, v{vL16}')
    def Mx(lt, kb, src):
        return f'v_smfmac_f32_16x16x64_bf16 {vr(vQ+4*lt,4)}, {vr(src,4)}, {xr(W(lt,kb),8)}, v{vIdx}'
    def M(lt, kb): return Mx(lt, kb, vM+4*kb)
    mk = [f'ds_read_b128 {vr(vKM+4*p,4)}, v{vMK} offset:{LM+p*512}' for p in range(3)]
    mk.append(f'ds_read_b64 {vr(vKM+12,2)}, v{vMKS} offset:{LM}')
    sets = [vM, vKM]
    def issue(st):
        return [f'buffer_load_dwordx4 {vr(sets[st],4)}, v{vG0}, {WS}, s{sM} offen sc1',
                f'buffer_load_dwordx4 {vr(sets[st]+4,4)}, v{vG1}, {WS}, s{sM} offen sc1']
    def checks(st):
        G = sets[st]
        return [(1, [f'v_max3_u32 v{vT}, v{G}, v{G+1}, v{G+2}']),
                (0, [f'v_max3_u32 v{vT+1}, v{G+4}, v{G+5}, v{G+6}', f'v_max3_u32 v{vT}, v{vT}, v{G+3}, v{G+7}',
                     f'v_max_u32 v{vT}, v{vT}, v{vT+1}', f'v_cmp_eq_u32 vcc, -1, v{vT}'])]
    NB = OPT['nb']
    def body(st):
        G = sets[st]
        stamp(k, 0, stamps)
        wrs = [f'ds_write_b128 v{vG0}, {vr(G,4)} offset:{LM}', f'ds_write_b128 v{vG1}, {vr(G+4,4)} offset:{LM}']
        seq = [(lt, j) for j in range(2) for lt in range(7)]
        for n, (lt, j) in enumerate(seq):
            k(Mx(lt, j, G + 4*j))
            if OPT['w64'] == 0 and n < 2: k.ds(wrs[n])
            if OPT['w64'] == 1 and n < 4: k.ds(f'ds_write_b64 v{vG0 if n < 2 else vG1}, {vr(G+2*n,2)} offset:{LM + 8*(n&1)}')
            if n == 4: k(f'v_cmp_le_u32 vcc, {OPT["uneed"]}, v{vX+2}')
            if n == 5: k('s_nop 0'); k(f'v_cndmask_b32 v{vX+1}, v{vX+3}, v{vX}, vcc')
            if n == NB - 1:
                k.wds0(); k('s_barrier')
            if NB - 1 <= n < NB + 4:
                jj = n - (NB - 1) + 2
                k.ds(f'ds_read_b128 {vr(vM+4*jj,4)}, v{vAd+jj} offset:{LM}', f'm{jj}')
            if n == NB + 5: k(f'buffer_load_dword v0, v{vX+1}, {WS}, s{sUM} offen sc1')
    if OPT['ap2']:
        poll2(k, issue, checks, body, 'Lga', OPT['stagA'])
    else:
        gather_mem(k, vM, vG0, vG1, None, None, vT)
        body(0)
    def cvt(lt, h):
        k(f'v_cvt_pk_bf16_f32 v{vQ+4*lt+h}, v{vQ+4*lt+2*h}, v{vQ+4*lt+2*h+1}')
    def wr(lt):
        k.ds(f'ds_write_b64 v{vQW}, {vr(vQ+4*lt,2)} offset:{512*(lt&1)}')
    def tr(p, h):
        k.ds(f'ds_read_b64_tr_b16 {vr(vQ+8*p+2*h,2)}, v{vQR} offset:{512*h}', f'q{p}')
    vSt = [vM, vM+4, vQ+4]
    def S(p, t):
        q = vQ + 8*p
        c = '0' if p == 0 else vr(vSt[t],4)
        if p < 3:
            a = vKM+4*p if t == 0 else vKT+8*p+4*(t-1)
            k(f'v_mfma_f32_16x16x32_bf16 {vr(vSt[t],4)}, {vr(a,4)}, {vr(q,4)}, {c}')
        else:
            a = vKM+12 if t == 0 else vKT+24+2*(t-1)
            k(f'v_mfma_f32_16x16x16_bf16 {vr(vSt[t],4)}, {vr(a,2)}, {vr(q,2)}, {c}')
    for lt in range(7):
        for j in range(2, 7):
            if lt == 0: k.wds(f'm{j}')
            k(M(lt, j))
            if OPT['tm'] and lt == 1 and j == 2: k(f'v_cndmask_b32 v{vT}, v{vLane}, 0, s[48:49]')
            if OPT['tm'] and lt == 1 and j == 3: k(f'v_cndmask_b32 v{vT+1}, 0, v{vLane}, s[48:49]')
            if lt == 0 and j == 6:
                k('s_waitcnt vmcnt(1)')
                for x in mk: k.ds(x, 'mk')
            if lt >= 1:
                if j == 4: cvt(lt-1, 0)
                if j == 5: cvt(lt-1, 1)
                if j == 6:
                    wr(lt-1)
                    if (lt-1) & 1: tr((lt-1)//2, 0); tr((lt-1)//2, 1)
        if lt == (4 if OPT['s1pos'] == 0 else 3):
            k.wds('q0')
            for t in range(3): S(0, t)
        if lt == 5 and OPT['s1pos'] == 1:
            k.wds('q1')
            for t in range(3): S(1, t)
    if OPT['s1pos'] == 0:
        k.wds('q1')
        for t in range(3): S(1, t)
        cvt(6, 0); cvt(6, 1)
        if OPT['tm']:
            k.wds('q2')
            k.nop(1)
            k(f'v_mfma_f32_16x16x16_bf16 {vr(vQ+12,4)}, {vr(vQ+24,2)}, {vr(vT,2)}, 0')
            for t in range(3): S(2, t)
            k(f'v_cvt_pk_bf16_f32 v{vQ+24}, v{vQ+12}, v{vQ+13}')
            k(f'v_cvt_pk_bf16_f32 v{vQ+25}, v{vQ+14}, v{vQ+15}')
            k.nop(2)
        else:
            wr(6); tr(3, 0)
            k.wds('q2')
            for t in range(3): S(2, t)
    else:
        k.nop(8)
        cvt(6, 0); cvt(6, 1); wr(6); tr(3, 0)
        k.wds('q2')
        for t in range(3): S(2, t)
    k.wds('q3')
    for t in range(3): S(3, t)
    for t in range(3):
        k.nop(2 if (t == 0 or OPT['p64'] == 0) else 1)
        if OPT['p64'] == 0: k.ds(f'ds_write_b128 v{vSW}, {vr(vSt[t],4)} offset:{1088*t}')
        else:
            k.ds(f'ds_write_b64 v{vSW}, {vr(vSt[t],2)} offset:{1088*t}')
            k.ds(f'ds_write_b64 v{vSW}, {vr(vSt[t]+2,2)} offset:{1088*t+8}')
    k.wds0()
    k('s_barrier')
    stamp(k, 1, stamps)
    mark = len(k.lines)
    R = vQ+8
    for w in range(4): k.ds(f'ds_read_b128 {vr(R+4*w,4)}, v{vSR} offset:{w*3264}', f'r{w}')
    k(f's_cmp_eq_u32 s{sMODE}, 1')
    k.wds('r1')
    k(f'v_pk_add_f32 {vr(R,2)}, {vr(R,2)}, {vr(R+4,2)}')
    k(f'v_pk_add_f32 {vr(R+2,2)}, {vr(R+2,2)}, {vr(R+6,2)}')
    k.wds('r2')
    k(f'v_pk_add_f32 {vr(R,2)}, {vr(R,2)}, {vr(R+8,2)}')
    k(f'v_pk_add_f32 {vr(R+2,2)}, {vr(R+2,2)}, {vr(R+10,2)}')
    k.wds('r3')
    k(f'v_pk_add_f32 {vr(R,2)}, {vr(R,2)}, {vr(R+12,2)}')
    k(f'v_pk_add_f32 {vr(R+2,2)}, {vr(R+2,2)}, {vr(R+14,2)}')
    k.nop(2)
    k(f'v_permlane16_swap_b32 v{R}, v{R+2}')
    k(f'v_permlane16_swap_b32 v{R+1}, v{R+3}')
    X = R+4; m = R+6; t = R+8
    k(f'v_pk_add_f32 {vr(X,2)}, {vr(R,2)}, {vr(R+2,2)}')
    def allred(op, m):
        for rot in (8, 4, 2, 1):
            k.nop(2)
            k(f'{op}_dpp v{m}, v{m}, v{m} row_ror:{rot} row_mask:0xf bank_mask:0xf')
        k(f'v_mov_b32 v{t}, v{m}')
        k.nop(2)
        k(f'v_permlane16_swap_b32 v{m}, v{t}')
        k(f'{op} v{m}, v{m}, v{t}')
    if OPT['sm2'] == 0:
        k(f'v_max_f32 v{m}, v{X}, v{X+1}')
        allred('v_max_f32', m)
        k(f'v_pk_add_f32 {vr(X,2)}, {vr(X,2)}, {vr(m,2)} op_sel_hi:[1,0] neg_lo:[0,1] neg_hi:[0,1]')
        k(f'v_exp_f32 v{X}, v{X}')
        k(f'v_exp_f32 v{X+1}, v{X+1}')
        k.nop(1)
        k(f'v_add_f32 v{m}, v{X}, v{X+1}')
        k(f'v_mul_f32 v{m}, v{m}, v{vVal}')
        allred('v_add_f32', m)
        k(f'v_rcp_f32 v{m}, v{m}')
        k.nop(1)
        k(f'v_pk_mul_f32 {vr(X,2)}, {vr(X,2)}, {vr(m,2)} op_sel_hi:[1,0]')
    else:
        l_, M, sc = R+10, R+12, R+14
        def dpp(op, r, rot): k(f'{op}_dpp v{r}, v{r}, v{r} row_ror:{rot} row_mask:0xf bank_mask:0xf')
        k(f'v_max_f32 v{m}, v{X}, v{X+1}')
        for rot in (8, 4, 2, 1):
            k.nop(2); dpp('v_max_f32', m, rot)
        k(f'v_pk_add_f32 {vr(X,2)}, {vr(X,2)}, {vr(m,2)} op_sel_hi:[1,0] neg_lo:[0,1] neg_hi:[0,1]')
        k(f'v_mov_b32 v{M}, v{m}')
        k(f'v_exp_f32 v{X}, v{X}')
        k(f'v_mov_b32 v{t}, v{m}')
        k(f'v_exp_f32 v{X+1}, v{X+1}')
        k.nop(1)
        k(f'v_add_f32 v{l_}, v{X}, v{X+1}')
        k(f'v_permlane16_swap_b32 v{M}, v{t}')
        k(f'v_mul_f32 v{l_}, v{l_}, v{vVal}')
        k(f'v_max_f32 v{M}, v{M}, v{t}')
        k(f'v_sub_f32 v{sc}, v{m}, v{M}')
        dpp('v_add_f32', l_, 8)
        k(f'v_exp_f32 v{sc}, v{sc}')
        k.nop(1)
        dpp('v_add_f32', l_, 4)
        k(f'v_pk_mul_f32 {vr(X,2)}, {vr(X,2)}, {vr(sc,2)} op_sel_hi:[1,0]')
        k.nop(1)
        dpp('v_add_f32', l_, 2)
        k.nop(2)
        dpp('v_add_f32', l_, 1)
        k(f'v_mul_f32 v{l_}, v{l_}, v{sc}')
        k(f'v_mov_b32 v{t}, v{l_}')
        k.nop(2)
        k(f'v_permlane16_swap_b32 v{l_}, v{t}')
        k(f'v_add_f32 v{l_}, v{l_}, v{t}')
        k(f'v_rcp_f32 v{l_}, v{l_}')
        k.nop(1)
        k(f'v_pk_mul_f32 {vr(X,2)}, {vr(X,2)}, {vr(l_,2)} op_sel_hi:[1,0]')
    k(f'v_cvt_pk_bf16_f32 v{X}, v{X}, v{X+1}')
    k(f'v_min_u32 v{X}, -2, v{X}')
    if OPT['kpos'] == 'soft':
        body_ = k.lines[mark:]; k.lines = k.lines[:mark]; L = key_list()
        for x in body_:
            if x == 's_nop 1' and L: k(L.pop(0)); k('s_nop 0')
            else: k(x)
        assert not L
    publish(k, [f'buffer_store_dword v{X}, v{vPO}, {WS}, s{x} offen' for x in [sP, 47][:OPT['prep']]])
    stamp(k, 2, stamps)
    k('s_barrier')
    if OPT['kdel']: k(f"s_sleep {OPT['kdel']}")
    load_keys(OPT['kpos'] != 'soft')
    if OPT['sleepA']: k(f"s_sleep {OPT['sleepA']}")
    k(f's_add_u32 s{sUM}, s{sUM}, {UF_SEG}')
    k(f's_add_u32 s{sM}, s{sM}, {MEM_T}')
    k(f's_add_u32 s{sP}, s{sP}, {PB_T}')
    if stamps: k(f's_add_u32 s{sST}, s{sST}, 16')
    k(f's_add_u32 s{sSTEP}, s{sSTEP}, 1')
    k(f's_cmp_lt_u32 s{sSTEP}, {NSTEP}')
    k('s_cbranch_scc1 L_A_loop')
    edge(k, stamps, 8)
    k('s_waitcnt vmcnt(0)')
    k('s_endpgm')
    k.flush_cold()

def role_B(k, stamps=False, wait_u=None):
    WS = f's[{SWS}:{SWS+3}]'
    vLane, vL16, vG0, vG1, vIdx = 1, 2, 3, 4, 5
    vWL, vPT, vPM, vRW, vRR, vL4 = 6, 7, 8, 9, 10, 11
    vC = 12
    vM = 16
    vA = 44
    vU = 76
    vTm = 108
    vUi = 140
    vUm = 172
    vRR2 = 188
    vKeep, vFl = 191, 15
    vD = vTm
    vG = vTm + 16
    vP = [vM, vA]
    def W(gi, kb):
        i = gi*5 + kb
        return (256 + 8*i) if i < 32 else (192 + 8*(i-32))
    LM, LRED, LW = 0, 7168, 16384
    k.label('L_roleB')
    k(f's_sub_u32 s{sID}, s{sROLE}, 16')
    common_lane_setup(k, vLane, vL16, vG0, vG1, vIdx, vC)
    k(f's_lshl_b32 s{sT0}, s{sWAVE}, 2')
    k(f's_mul_i32 s{sT0}, s{sT0}, 28')
    k(f's_lshl_b32 s{sT1}, s{sID}, 1')
    k(f's_add_u32 s{sT0}, s{sT0}, s{sT1}')
    k(f's_mul_i32 s35, s{sT0}, 14336')
    k(f's_add_u32 s35, s35, {WTB}')
    k(f's_lshl_b32 s37, s{sWAVE}, 15')
    k(f's_add_u32 s37, s37, {LW}')
    k(f'v_add_u32 v{vWL}, s37, v{vL16}')
    for j in range(7):
        k(f's_add_u32 s{50+j}, s{sWAVE}, {(4*j) % 7}')
        k(f's_sub_u32 s40, s{50+j}, 7')
        k(f's_cmp_ge_u32 s{50+j}, 7')
        k(f's_cselect_b32 s{50+j}, s40, s{50+j}')
        k(f's_lshl_b32 s{50+j}, s{50+j}, 10')
    k(f'v_add_u32 v{vG1}, s51, v{vL16}')
    for gi in range(8):
        k(f's_add_u32 s36, s35, {(gi>>1)*28*14336 + (gi&1)*14336}')
        for j in range(7):
            k(f's_lshl_b32 s40, s{50+j}, 1')
            k(f's_add_u32 s40, s40, s36')
            if j >= 5:
                k(f's_add_u32 s38, s37, {gi*4096 + (j-5)*2048}')
                k(f's_mov_b32 m0, s38')
                k('s_nop 0')
            for f in range(2):
                if j < 5: k(f'buffer_load_dwordx4 {xr(W(gi, j) + 4*f,4)}, v{vL16}, {WS}, s40 offen offset:{f*1024}')
                else:     k(f'buffer_load_dwordx4 v{vL16}, {WS}, s40 offen offset:{f*1024} lds')
        k('s_waitcnt vmcnt(40)')
    g, i = vA, vA+1
    vT = vC
    k(f'v_lshrrev_b32 v{g}, 4, v{vLane}')
    k(f'v_and_b32 v{i}, 15, v{vLane}')
    k(f's_lshl_b32 s40, s{sWAVE}, 11')
    k(f'v_add_u32 v{vPT}, s40, v{vL16}')
    k(f'v_lshrrev_b32 v{vT}, 1, v{g}')
    k(f'v_lshlrev_b32 v{vT}, 8, v{vT}')
    k(f'v_lshl_add_u32 v{vT}, v{i}, 4, v{vT}')
    k(f's_lshl_b32 s40, s{sWAVE}, 9')
    k(f's_add_u32 s40, s40, 8192')
    k(f'v_add_u32 v{vPM}, s40, v{vT}')
    k(f's_lshl_b32 s40, s{sWAVE}, 10')
    k(f's_add_u32 s40, s40, {LRED}')
    k(f'v_add_u32 v{vRW}, s40, v{vL16}')
    k(f'v_and_b32 v{vT}, 3, v{vLane}')
    k(f'v_lshlrev_b32 v{vT}, 6, v{vT}')
    k(f'v_lshrrev_b32 v{vT+1}, 5, v{vLane}')
    k(f'v_lshl_add_u32 v{vT}, v{vT+1}, 5, v{vT}')
    k(f'v_lshrrev_b32 v{vT+1}, 2, v{vLane}')
    k(f'v_and_b32 v{vT+2}, 3, v{vT+1}')
    k(f'v_lshl_add_u32 v{vT}, v{vT+2}, 2, v{vT}')
    k(f'v_bfe_u32 v{vT+2}, v{vLane}, 4, 1')
    k(f'v_lshl_add_u32 v{vT}, v{vT+2}, 8, v{vT}')
    k(f's_and_b32 s40, s{sWAVE}, 1')
    k(f's_lshl_b32 s40, s40, 9')
    k(f's_add_u32 s40, s40, {LRED}')
    k(f'v_add_u32 v{vRR}, s40, v{vT}')
    for w in range(1, 4): k(f'v_add_u32 v{vRR2+w-1}, {1024*w}, v{vRR}')
    k(f's_lshl_b32 s40, s{sID}, 1')
    k(f's_and_b32 s41, s{sWAVE}, 1')
    k(f's_add_u32 s40, s40, s41')
    k(f's_lshl_b32 s40, s40, 8')
    k(f'v_lshlrev_b32 v{vL4}, 2, v{vLane}')
    k(f'v_add_u32 v{vL4}, s40, v{vL4}')
    k(f's_mov_b32 s{sSTEP}, 0')
    k(f's_lshr_b32 s{sM}, s{sWAVE}, 1')
    k(f's_mul_i32 s{sM}, s{sM}, {2*MEM_S}')
    k(f's_add_u32 s{sM}, s{sM}, {MEM}')
    k(f's_mov_b32 s47, {MEMX - MEM_S}')
    k(f"s_mov_b32 s49, {MEM + (NREP-1)*MEM_S}")
    k(f's_and_b32 s{sP}, s{sID}, 1')
    k(f"s_mul_i32 s{sP}, s{sP}, {PB_S if OPT['prep'] == 2 else 0}")
    k(f's_add_u32 s{sP}, s{sP}, {PB}')
    k(f's_lshl_b32 s{sX}, s{sID}, 15')
    k(f's_lshl_b32 s40, s{sWAVE}, 13')
    k(f's_add_u32 s{sX}, s{sX}, s40')
    k(f's_add_u32 s{sX}, s{sX}, {UF}')
    k(f's_mul_i32 s{sUM}, s{sWAVE}, {2*28*1024}')
    k(f's_lshl_b32 s40, s{sID}, 11')
    k(f's_add_u32 s{sUM}, s{sUM}, s40')
    k(f's_add_u32 s{sUM}, s{sUM}, {UM}')
    k(f's_mov_b32 s43, s{sUM}')
    def ldu(j, s0=sX):
        hh, T = j >> 1, j & 1
        r = vU + 16*(hh>>1) + 8*T + 4*(hh&1)
        return f'buffer_load_dwordx4 {vr(r,4)}, v{vL16}, {WS}, s{s0 if j<4 else sT0} offen offset:{(j&3)*1024} ' + OPT['uf']
    def stum(u, T):
        return f'buffer_store_dwordx4 {vr(vUm+8*T+4*u,4)}, v{vL16}, {WS}, s{43 if u==0 else 44} offen offset:{T*1024} ' + OPT['um']
    def lw(gi):
        b = vTm + 16*(gi&1)
        for f in range(4): k.ds(f'ds_read_b128 {vr(b+4*f,4)}, v{vWL} offset:{gi*4096+f*1024}', f'w{gi}')
    def load_u(ahead):
        if wait_u:
            lu = k.newlabel('Lnu')
            k(f's_add_u32 s{sT0}, s{sSTEP}, {ahead}')
            k(f's_and_b32 s{sT1}, s{sT0}, 3')
            k(f's_cbranch_scc1 {lu}')
            k(f's_lshl_b32 s{sT0}, s{sT0}, 5')
            k(f's_add_u32 s{sT0}, s{sT0}, {flag(F_U)}')
            wait_u(k, sT0, 32, vC, sleep=1)
            k.label(lu)
        k(f's_add_u32 s{sT0}, s{sX}, 4096')
        for j in range(8): k(ldu(j))
        k(f's_add_u32 s{sX}, s{sX}, {UF_SEG}')
    if OPT['u0'] == 'pro': load_u(0)
    wait_mode(k, vC)
    sw = []
    for o in range(4):
        r = vU + 8*o
        for e in range(4):
            sel = e & 1
            sw.append(f'v_pk_mov_b32 {vr(vUi+8*o+2*e,2)}, {vr(r+(e&2),2)}, {vr(r+4+(e&2),2)} op_sel:[{sel},{sel}]')
    if stamps: k(f's_add_u32 s76, s{sST}, 0x20000')
    edge(k, stamps, 0)
    k.label('L_B_loop')
    lp = k.newlabel('Lgm')
    def gl():
        sb = 49
        k(f'buffer_load_dwordx4 {vr(vM,4)}, v{vG0}, {WS}, s{sb} offen sc1')
        k(f'buffer_load_dwordx4 {vr(vM+4,4)}, v{vG1}, {WS}, s{sb} offen sc1')
    k('s_waitcnt vmcnt(3)')
    NU = OPT['nu2']
    k(f's_add_u32 s{sT0}, s{sX}, {4096 - UF_SEG}')
    k(f's_sub_u32 s{sT1}, s{sX}, {UF_SEG}')
    for j in range(8-NU, 8): k(ldu(j, sT1))
    gl()
    NS = 8 if NU <= 4 else 0
    if NU == 0: NS = 16
    for x in sw[:NS]: k(x)
    for r in range(0, 32, 2): k(f'v_mov_b64 {vr(vA+r,2)}, 0')
    for j in range(2, 7): k(f'v_add_u32 v{vG+j}, s{50+j}, v{vL16}')
    k(f's_add_u32 s45, s{sSTEP}, 1')
    k(f's_lshr_b32 s45, s45, 2')
    k(f's_lshl_b32 s45, s45, 7')
    k(f's_add_u32 s45, s45, {flag(F_U)}')
    k(f's_add_u32 s44, s43, {28*1024}')
    vm = [stum(0,0), stum(0,1), stum(1,0), stum(1,1)] + [ldu(j) for j in range(8)]
    lw(0)
    k(f's_mov_b32 s{sCNT}, 0')
    k(f's_branch {lp}w')
    k.label(lp)
    if OPT['bgs']: k(f"s_sleep {OPT['bgs']}")
    gl()
    k(f's_add_u32 s{sCNT}, s{sCNT}, 1')
    k(f's_cmp_gt_u32 s{sCNT}, s{sT2}')
    k('s_cbranch_scc1 L_fail')
    k.label(lp + 'w')
    k('s_waitcnt vmcnt(1)')
    k(f'v_max3_u32 v{vC}, v{vM}, v{vM+1}, v{vM+2}')
    k('s_waitcnt vmcnt(0)')
    k(f'v_max3_u32 v{vC+1}, v{vM+4}, v{vM+5}, v{vM+6}')
    k(f'v_max3_u32 v{vC}, v{vC}, v{vM+3}, v{vM+7}')
    k(f'v_max_u32 v{vC}, v{vC}, v{vC+1}')
    k(f'v_cmp_eq_u32 vcc, -1, v{vC}')
    k(f's_cbranch_vccnz {lp}')
    stamp(k, 0, stamps)
    k.ds(f'ds_write_b128 v{vG0}, {vr(vM,4)} offset:{LM}')
    k.ds(f'ds_write_b128 v{vG1}, {vr(vM+4,4)} offset:{LM}')
    ls, l2 = k.newlabel('Lbs'), k.newlabel('Lbt')
    k(f's_cmp_eq_u32 s{sSTEP}, 0')
    k(f's_cbranch_scc1 {l2}')
    k(f's_cmp_ge_u32 s{sWAVE}, 2')
    k(f's_cbranch_scc1 {ls}')
    k(f'buffer_store_dword v{vKeep}, v{vL4}, {WS}, s47 offen sc1')
    k(f's_branch {l2}')
    k.label(ls)
    k(f's_cmp_eq_u32 s{sWAVE}, 2')
    k(f's_cselect_b32 s{sT0}, s{sSTEP}, 0')
    k(f's_cmp_le_u32 s{sT0}, 1')
    k(f's_cbranch_scc1 {l2}')
    k(f's_lshl_b32 s{sT0}, s{sSTEP}, 7')
    k(f's_add_u32 s{sT0}, s{sT0}, {flag(F_UM) - 256}')
    k('s_mov_b64 exec, 1')
    k(f'v_mov_b32 v{vC}, 1')
    k(f'buffer_atomic_add v{vC}, off, {WS}, s{sT0}')
    k('s_mov_b64 exec, -1')
    k.label(l2)
    k(f'buffer_load_dword v{vFl}, off, {WS}, s45 sc1')
    for x in vm[:4]: k(x)
    def acc(gi): return vA + 4*gi
    def cvt(gi, h):
        hh, T = gi>>1, gi&1
        d = vUm + 8*T + 4*(hh>>1) + 2*h + (hh&1)
        a = acc(gi) + 2*h
        k(f'v_cvt_pk_bf16_f32 v{d}, v{a}, v{a+1}')
    def lw1(gi, f):
        k.ds(f'ds_read_b128 {vr(vTm+16*(gi&1)+4*f,4)}, v{vWL} offset:{gi*4096+f*1024}', f'w{gi}')
    def MB(gi, j):
        w = xr(W(gi,j),8) if j < 5 else vr(vTm + 16*(gi&1) + 8*(j-5), 8)
        k(f'v_smfmac_f32_16x16x64_bf16 {vr(acc(gi),4)}, {vr(vM+4*j,4)}, {w}, v{vIdx}')
    for n in range(16):
        MB(n & 7, n >> 3)
        if n == 5:
            k.wds0(); k('s_barrier')
        if 5 <= n < 10:
            k.ds(f'ds_read_b128 {vr(vM+4*(n-3),4)}, v{vG+n-3} offset:{LM}', f'm{n-3}')
    for gi in range(8):
        for j in range(2, 7):
            if gi == 0: k.wds(f'm{j}')
            if j == 5: k.wds(f'w{gi}')
            MB(gi, j)
            if gi < 7 and j in (2, 3, 5, 6): lw1(gi+1, {2:0, 3:1, 5:2, 6:3}[j])
            if gi >= 1 and j == 4: cvt(gi-1, 0); cvt(gi-1, 1)
    k(f's_mov_b32 s43, s{sUM}')
    k(f's_add_u32 s{sUM}, s{sUM}, {UM_SEG}')
    for x in sw[NS:]: k(x)
    k.nop(6 if NS == 16 else 0)
    cvt(7, 0); cvt(7, 1)
    for r in range(0, 8, 2): k(f'v_mov_b64 {vr(vD+r,2)}, 0')
    k(f's_cmp_ge_u32 s{sSTEP}, {NSTEP}')
    k('s_cbranch_scc1 L_B_end')
    k('s_waitcnt vmcnt(4)')
    if OPT['u0'] == 'cold':
        l0, l1 = k.newlabel('Lu0'), k.newlabel('Lu1')
        k(f's_cmp_eq_u32 s{sSTEP}, 0')
        k(f's_cbranch_scc1 {l0}')
        k.label(l1)
        main = k.lines; k.lines = []
        k.label(l0)
        load_u(0)
        k('s_waitcnt vmcnt(0)')
        for x in sw: k(x)
        k(f'v_mov_b32 v{vFl}, 32')
        k(f's_branch {l1}')
        k.cold += k.lines; k.lines = main
    if wait_u:
        lu = k.newlabel('Lnu')
        k(f'v_cmp_le_u32 vcc, 32, v{vFl}')
        k(f's_cbranch_vccnz {lu}')
        wait_u(k, 45, 32, vC)
        k.label(lu)
    k(f's_add_u32 s{sT0}, s{sX}, 4096')
    for j in range(8-NU): k(ldu(j))
    k(f's_add_u32 s{sX}, s{sX}, {UF_SEG}')
    stamp(k, 1, stamps)
    if OPT['sleepB']: k(f"s_sleep {OPT['sleepB']}")
    def issue(st):
        P = vP[st]
        return [f'buffer_load_dwordx4 {vr(P,4)}, v{vPT}, {WS}, s{sP} offen sc1',
                f'buffer_load_dwordx4 {vr(P+4,4)}, v{vPT}, {WS}, s{sP} offen offset:1024 sc1',
                f'buffer_load_dwordx4 {vr(P+8,4)}, v{vPM}, {WS}, s{sP} offen sc1']
    def checks(st):
        P = vP[st]
        return [(2, [f'v_max3_u32 v{vC}, v{P}, v{P+1}, v{P+2}']),
                (1, [f'v_max3_u32 v{vC+1}, v{P+4}, v{P+5}, v{P+6}', f'v_max3_u32 v{vC}, v{vC}, v{P+3}, v{P+7}']),
                (0, [f'v_max3_u32 v{vC+1}, v{vC+1}, v{P+8}, v{P+9}', f'v_max3_u32 v{vC}, v{vC}, v{P+10}, v{P+11}',
                     f'v_max_u32 v{vC}, v{vC}, v{vC+1}', f'v_cmp_eq_u32 vcc, -1, v{vC}'])]
    def body(st):
        P = vP[st]
        stamp(k, 2, stamps)
        for j in range(3):
            for T in range(2):
                b = vr(vUi + 16*j + 8*T, 8) if j < 2 else vr(vUm + 8*T, 8)
                k(f'v_smfmac_f32_16x16x64_bf16 {vr(vD+4*T,4)}, {vr(P+4*j,4)}, {b}, v{vIdx}')
    if OPT['bp2']: poll2(k, issue, checks, body, 'Lpp', OPT['stag'])
    else:
        lp = k.newlabel('Lp1')
        k(f's_mov_b32 s{sCNT}, 0')
        k.label(lp)
        for x in issue(0): k(x)
        k(f's_add_u32 s{sCNT}, s{sCNT}, 1')
        k(f's_cmp_gt_u32 s{sCNT}, s{sT2}')
        k('s_cbranch_scc1 L_fail')
        for rel, ins in checks(0):
            k(f's_waitcnt vmcnt({rel})')
            for x in ins: k(x)
        k(f's_cbranch_vccnz {lp}')
        body(0)
    k(f's_add_u32 s{sM}, s{sM}, {MEM_T}')
    k(f's_add_u32 s47, s47, {MEM_S}')
    k(f's_add_u32 s48, s{sM}, {MEM_S}')
    k(f's_add_u32 s49, s49, {MEM_T}')
    k(f's_add_u32 s{sP}, s{sP}, {PB_T}')
    k.nop(6)
    for r in range(4): k(f'v_permlane32_swap_b32 v{vD+r}, v{vD+4+r}')
    k(f'v_pk_add_f32 {vr(vD,2)}, {vr(vD,2)}, {vr(vD+4,2)}')
    k(f'v_pk_add_f32 {vr(vD+2,2)}, {vr(vD+2,2)}, {vr(vD+6,2)}')
    k.ds(f'ds_write_b128 v{vRW}, {vr(vD,4)}')
    k.wds0()
    k('s_barrier')
    if OPT['rep'] == 3:
        k(f's_cmp_ge_u32 s{sWAVE}, 2')
        k('s_cbranch_scc1 L_B_skip')
    R = vG
    for w in range(4): k.ds(f'ds_read2_b32 {vr(R+2*w,2)}, v{vRR} offset0:{0} offset1:{4}' if w == 0 else
                            f'ds_read2_b32 {vr(R+2*w,2)}, v{vRR2+w-1} offset0:0 offset1:4', f'r{w}')
    k(f's_cmp_eq_u32 s{sMODE}, 1')
    k.wds('r1')
    k(f'v_pk_add_f32 {vr(R,2)}, {vr(R,2)}, {vr(R+2,2)}')
    k.wds('r3')
    k(f'v_pk_add_f32 {vr(R+4,2)}, {vr(R+4,2)}, {vr(R+6,2)}')
    k(f'v_pk_add_f32 {vr(R,2)}, {vr(R,2)}, {vr(R+4,2)}')
    k(f'v_cvt_pk_bf16_f32 v{R}, v{R}, v{R+1}')
    k(f'v_min_u32 v{R}, -2, v{R}')
    publish(k, [f'buffer_store_dword v{R}, v{vL4}, {WS}, s{x} offen' for x in [sM, 48, 49]])
    k(f'v_mov_b32 v{vKeep}, v{R}')
    k(f's_cmp_lg_u32 s{sSTEP}, {NSTEP-1}')
    k('s_cbranch_scc1 L_B_skip2')
    k(f'buffer_store_dword v{R}, v{vL4}, {WS}, s47 offen sc1')
    k('s_branch L_B_skip2')
    k.label('L_B_skip')
    k('s_waitcnt vmcnt(0)')
    k.label('L_B_skip2')
    stamp(k, 3, stamps)
    k('s_barrier')
    k(f's_add_u32 s{sSTEP}, s{sSTEP}, 1')
    if stamps: k(f's_add_u32 s{sST}, s{sST}, 16')
    k('s_branch L_B_loop')
    k.label('L_B_end')
    edge(k, stamps, 8)
    k(f's_add_u32 s44, s43, {28*1024}')
    for x in vm[:4]: k(x)
    k('s_waitcnt vmcnt(0)')
    k('s_barrier')
    k(f's_cmp_lg_u32 s{sWAVE}, 0')
    k('s_cbranch_scc1 L_exit')
    k('s_mov_b64 exec, 3')
    k(f'v_mov_b32 v{vC}, 1')
    k(f'v_lshlrev_b32 v{vC+1}, 7, v{vLane}')
    k(f's_mov_b32 s{sT0}, {flag(F_UM + 62)}')
    k(f'buffer_atomic_add v{vC}, v{vC+1}, {WS}, s{sT0} offen')
    k('s_endpgm')
    k.flush_cold()

def role_P(k, wait_u=None):
    WS = f's[{SWS}:{SWS+3}]'
    vLane, vU, vX, vS, vD = 1, 2, 3, 4, 8
    D = OPT['pfd']; st = OPT['pfs']; sh = 7 if st == 128 else 6
    k.label('L_roleP')
    k(f's_mov_b32 s{sT2}, {POLL_LIMIT}')
    k(f's_sub_u32 s{sID}, s{sROLE}, 30')
    k(f's_lshl_b32 s{sID}, s{sID}, 2')
    k(f's_add_u32 s{sID}, s{sID}, s{sWAVE}')
    k(f'v_and_b32 v{vLane}, 63, v0')
    k(f'v_lshlrev_b32 v{vU}, {sh}, v{vLane}')
    k(f's_mul_i32 s40, s{sID}, {UF_SEG//8}')
    k(f'v_add_u32 v{vU}, s40, v{vU}')
    for reg, n in ((vX, 28), (vS, PB_T//1024), (vS+1, 7*NREP)):
        k(f'v_min_u32 v{reg}, {n-1}, v{vLane}')
        k(f's_mul_i32 s40, s{sID}, {n}')
        k(f'v_add_lshl_u32 v{reg}, v{reg}, s40, 7')
    k(f's_mov_b32 s{sSTEP}, 0')
    k(f's_mov_b32 s{sX}, {UF}')
    k(f's_mov_b32 s{sUM}, {XNS}')
    k(f's_mov_b32 s{sP}, {PB}')
    k(f's_mov_b32 s{sM}, {MEM + MEM_T}')
    k(f's_mov_b32 s41, {MEM - D*MEM_T + (NREP-1)*MEM_S}')
    if OPT['cpf']:
        k('s_getpc_b64 s[44:45]')
        k.label('L_P_pc')
        k('s_sub_u32 s44, s44, L_P_pc-L_roleA')
        k('s_subb_u32 s45, s45, 0')
        k(f's_lshl_b32 s40, s{sID}, 12')
        k(f'v_lshlrev_b32 v20, 6, v{vLane}')
        k('v_add_u32 v20, s40, v20')
        k('v_min_u32 v20, L_P_pc-L_roleA, v20')
        k('v_mov_b32 v21, s45')
        k('v_add_co_u32 v20, vcc, s44, v20')
        k('s_nop 1')
        k('v_addc_co_u32 v21, vcc, 0, v21, vcc')
        k('global_load_dword v22, v[20:21], off')
    k.label('L_P_loop')
    k(f's_cmp_le_u32 s{sSTEP}, {D}')
    k('s_cbranch_scc1 L_P_go')
    k(f's_mov_b32 s{sCNT}, 0')
    k.label('L_P_wait')
    k(f'buffer_load_dword v{vD}, off, {WS}, s41 sc1')
    k(f's_add_u32 s{sCNT}, s{sCNT}, 1')
    k(f's_cmp_gt_u32 s{sCNT}, s{sT2}')
    k('s_cbranch_scc1 L_fail')
    k('s_waitcnt vmcnt(0)')
    k(f'v_cmp_eq_u32 vcc, -1, v{vD}')
    k('s_cbranch_vccz L_P_go')
    k('s_sleep 2')
    k('s_branch L_P_wait')
    k.label('L_P_go')
    k(f'buffer_load_dword v{vD+1}, v{vS}, {WS}, s{sP} offen sc1')
    k(f'buffer_load_dword v{vD+2}, v{vS+1}, {WS}, s{sM} offen sc1')
    k(f'buffer_load_dword v{vD+3}, v{vX}, {WS}, s{sUM} offen sc1')
    n = 0 if OPT['apf'] else UF_SEG // 8 // (64*st)
    k(f's_mov_b32 s{sT0}, s{sX}')
    for j in range(n):
        k(f'buffer_load_dword v{vD+4+j}, v{vU}, {WS}, s{sT0} offen sc1')
        k(f's_add_u32 s{sT0}, s{sT0}, {64*st}')
    k(f's_add_u32 s{sX}, s{sX}, {UF_SEG}')
    k(f's_add_u32 s{sUM}, s{sUM}, 28672')
    k(f's_add_u32 s{sP}, s{sP}, {PB_T}')
    k(f's_add_u32 s{sM}, s{sM}, {MEM_T}')
    k(f's_add_u32 s41, s41, {MEM_T}')
    k(f's_add_u32 s{sSTEP}, s{sSTEP}, 1')
    k(f's_cmp_lt_u32 s{sSTEP}, {NSTEP}')
    k('s_cbranch_scc1 L_P_loop')
    k('s_waitcnt vmcnt(0)')
    k('s_endpgm')
```

```python
from asmlib import *
from layout import *

class K(Asm):
    def __init__(self):
        super().__init__()
        self.dsq = []; self.cold = []; self.vmq = []
    def ds(self, text, tag=None):
        self(text); self.dsq.append(tag)
    def wds(self, tag):
        if tag not in self.dsq: return
        idx = max(i for i, t in enumerate(self.dsq) if t == tag)
        n = len(self.dsq) - 1 - idx
        assert n <= 15
        self(f's_waitcnt lgkmcnt({n})')
        self.dsq = self.dsq[idx+1:]
    def wds0(self):
        self('s_waitcnt lgkmcnt(0)'); self.dsq = []
    def vm(self, text, tag=None):
        self(text); self.vmq.append(tag)
    def wvm(self, *tags, extra=''):
        idx = max([i for i, t in enumerate(self.vmq) if t in tags], default=-1)
        if idx < 0:
            if extra: self('s_waitcnt ' + extra)
            return
        n = len(self.vmq) - 1 - idx
        assert n <= 63
        self(f's_waitcnt vmcnt({n}) {extra}')
        self.vmq = self.vmq[idx+1:]
    def flush_cold(self):
        for l in self.cold: self(l)
        self.cold = []

SWS, SDBG = 4, 8
sROLE, sWAVE, sSTEP, sMODE, sM, sP, sX, sUM, sCNT = 12, 13, 14, 15, 16, 17, 18, 19, 20
sT0, sT1, sT2 = 21, 22, 23
sMASK8 = 24
sID = 26
sST = 28
sTM = 30
POLL_LIMIT = 400000
NSTEP = 63
OPT = dict(sa='late', sb='early', um='sc1', uf='sc1', sleepA=0, sleepB=0, stampmask=15, rt=0, barA=1, barB=1, prefP=0, pfd=3, pfs=128, upos='early', ud=2, apf=1, nb=8, stag=1, wpos=1, rsp=1, s1pos=0, upre=8, uneed=32, ust='sc1', rot=1, k1st='sc1', uwin=2, k1d=2, ap2=0, stagA=2, gv=0, tw=0, rep=3, prep=1, k1late=0, cpf=0, sm2=0, tm=1, bp2=1, k1pf=0, k1ln='sc1', u0='cold', align=0, w64=0, p64=0, kpos='post', kdel=7, nu2=2, bgs=0, vsl=120, usl=120, psl=16, msl=120)

def stamp(k, idx, on):
    if not on or not (OPT['stampmask'] >> idx) & 1: return
    k(('s_memrealtime' if OPT['rt'] else 's_memtime') + f' s[{sTM}:{sTM+1}]')
    k.wds0()
    k(f'v_mov_b32 v0, s{sTM}')
    k(f'buffer_store_dword v0, off, s[{SWS}:{SWS+3}], s{sST} offset:{idx*4}')

def edge(k, on, off):
    if not on or OPT['rt']: return
    lp = k.newlabel('Led')
    k('s_memrealtime s[70:71]')
    k('s_waitcnt lgkmcnt(0)')
    k.label(lp)
    k('s_memrealtime s[72:73]')
    k('s_memtime s[74:75]')
    k('s_waitcnt lgkmcnt(0)')
    k('s_cmp_eq_u32 s72, s70')
    k(f's_cbranch_scc1 {lp}')
    k('v_mov_b32 v0, s72')
    k(f'buffer_store_dword v0, off, s[{SWS}:{SWS+3}], s76 offset:{off}')
    k('v_mov_b32 v0, s74')
    k(f'buffer_store_dword v0, off, s[{SWS}:{SWS+3}], s76 offset:{off+4}')

def publish(k, text):
    ls, ld = k.newlabel('Lslow'), k.newlabel('Lpub')
    if isinstance(text, str): text = [text]
    k(f's_cbranch_scc0 {ls}')
    for x in text: k(x)
    k.label(ld)
    k.cold += [ls + ':'] + [x + ' sc1' for x in text] + [f's_branch {ld}']

def gather_mem(k, vG, vOff0, vOff1, vL0, vL1, vT):
    lp, dn = k.newlabel('Lgm'), k.newlabel('Lgd')
    k(f's_mov_b32 s{sCNT}, 0')
    k.label(lp)
    k(f'buffer_load_dwordx4 {vr(vG,4)}, v{vOff0}, s[{SWS}:{SWS+3}], s{sM} offen sc1')
    k(f'buffer_load_dwordx4 {vr(vG+4,4)}, v{vOff1}, s[{SWS}:{SWS+3}], s{sM} offen sc1')
    k(f's_add_u32 s{sCNT}, s{sCNT}, 1')
    k(f's_cmp_gt_u32 s{sCNT}, s{sT2}')
    k('s_cbranch_scc1 L_fail')
    k('s_waitcnt vmcnt(1)')
    k(f'v_max3_u32 v{vT}, v{vG}, v{vG+1}, v{vG+2}')
    k('s_waitcnt vmcnt(0)')
    k(f'v_max3_u32 v{vT+1}, v{vG+4}, v{vG+5}, v{vG+6}')
    k(f'v_max3_u32 v{vT}, v{vT}, v{vG+3}, v{vG+7}')
    k(f'v_max_u32 v{vT}, v{vT}, v{vT+1}')
    k(f'v_cmp_eq_u32 vcc, -1, v{vT}')
    k(f's_cbranch_vccnz {lp}')
    if vL0 is None: return
    k.ds(f'ds_write_b128 v{vL0}, {vr(vG,4)}')
    k.ds(f'ds_write_b128 v{vL1}, {vr(vG+4,4)}')
    k.wds0()
    k('s_barrier')

def wait_mode(k, vT):
    lp = k.newlabel('Lwm')
    k(f's_mov_b32 s{sCNT}, 0')
    k(f'v_and_b32 v{vT+1}, 15, v0')
    k(f'v_lshlrev_b32 v{vT+1}, 2, v{vT+1}')
    k.label(lp)
    k(f'buffer_load_dword v{vT}, v{vT+1}, s[{SDBG}:{SDBG+3}], 0 offen offset:32 sc1')
    k(f's_add_u32 s{sCNT}, s{sCNT}, 1')
    k(f's_cmp_gt_u32 s{sCNT}, s{sT2}')
    k('s_cbranch_scc1 L_fail')
    k('s_waitcnt vmcnt(0)')
    k(f'v_cmp_eq_u32 vcc, 32, v{vT}')
    for rot in (8, 4, 2, 1):
        k.nop(2)
        k(f'v_add_u32_dpp v{vT}, v{vT}, v{vT} row_ror:{rot} row_mask:0xf bank_mask:0xf')
    k.nop(1)
    k(f'v_readfirstlane_b32 s{sMODE}, v{vT}')
    k('s_nop 3')
    k(f's_cmp_lt_u32 s{sMODE}, 32')
    k(f's_cbranch_scc1 {lp}')
    k('s_cmp_lg_u64 vcc, 0')
    k(f's_cselect_b32 s{sMODE}, 1, 2')

def common_lane_setup(k, vLane, vL16, vG0, vG1, vIdx, vT):
    k(f'v_and_b32 v{vLane}, 63, v0')
    k(f'v_lshlrev_b32 v{vL16}, 4, v{vLane}')
    if vG0 is not None:
        k(f's_lshl_b32 s{sT0}, s{sWAVE}, 10')
        k(f'v_add_u32 v{vG0}, s{sT0}, v{vL16}')
        k(f's_add_u32 s{sT0}, s{sWAVE}, 4')
        k(f's_min_u32 s{sT0}, s{sT0}, 6')
        k(f's_lshl_b32 s{sT0}, s{sT0}, 10')
        k(f'v_add_u32 v{vG1}, s{sT0}, v{vL16}')
    k(f'v_and_b32 v{vT}, 8, v{vLane}')
    k(f'v_mov_b32 v{vIdx}, 0x4444')
    k(f'v_mov_b32 v{vT+1}, 0xeeee')
    k(f'v_cmp_ne_u32 vcc, 0, v{vT}')
    k('s_nop 1')
    k(f'v_cndmask_b32 v{vIdx}, v{vIdx}, v{vT+1}, vcc')
    k(f's_mov_b32 s{sT2}, {POLL_LIMIT}')

def poll2(k, issue, checks, body, name, stag):
    nl = len(issue(0))
    l0, d0, d1, dn = [k.newlabel(name + x) for x in ('lp', 'd0', 'd1', 'dn')]
    k(f's_mov_b32 s{sCNT}, 0')
    for x in issue(0): k(x)
    k(f"s_sleep {stag}")
    k.label(l0)
    for st, dl in ((0, d0), (1, d1)):
        for x in issue(1 - st): k(x)
        if st == 0:
            k(f's_add_u32 s{sCNT}, s{sCNT}, 1')
            k(f's_cmp_gt_u32 s{sCNT}, s{sT2}')
            k('s_cbranch_scc1 L_fail')
        for rel, ins in checks(st):
            k(f's_waitcnt vmcnt({nl + rel})')
            for x in ins: k(x)
        if st == 0: k(f's_cbranch_vccz {d0}')
        else:       k(f's_cbranch_vccnz {l0}x')
    saved = list(k.dsq)
    body(1)
    k(f's_branch {dn}')
    k.label(l0 + 'x')
    k(f's_branch {l0}')
    k.label(d0)
    end = list(k.dsq); k.dsq = saved
    body(0)
    assert k.dsq == end
    k.label(dn)

def role_A(k, stamps=False):
    vLane, vL16, vIdx = 1, 2, 3
    vKey, vKeyS, vMK, vMKS, vQW, vQR, vSW, vSR, vPO, vVal = 4, 5, 6, 7, 8, 9, 10, 11, 12, 13
    vT = 14
    vM = 16
    vQ = 44
    vKT = 72
    vKM = 100
    vX = 114
    vG0, vG1 = 118, 119
    def W(lt, kb):
        i = lt*7 + kb
        return (256 + 8*i) if i < 32 else (120 + 8*(i-32))
    LM, LSP, LQS = 0, 7168, 20480
    k.label('L_roleA')
    k(f's_mov_b32 s{sID}, s{sROLE}')
    common_lane_setup(k, vLane, vL16, vG0, vG1, vIdx, vX)
    k(f's_lshr_b32 s{sT0}, s{sWAVE}, 1')
    k(f's_mul_i32 s{sT0}, s{sT0}, 14')
    k(f's_and_b32 s{sT1}, s{sWAVE}, 1')
    k(f's_add_u32 s33, s{sT0}, 6')
    k(f's_add_u32 s33, s33, s{sT1}')
    k(f's_lshl_b32 s34, s{sT1}, 3')
    k(f's_add_u32 s32, s{sT0}, s34')
    k(f's_mul_i32 s35, s{sID}, {28*14*1024}')
    k(f's_add_u32 s35, s35, {WTA}')
    k(f's_mul_i32 s36, s32, {14*1024}')
    k(f's_add_u32 s36, s36, s35')
    k(f's_mul_i32 s37, s33, {14*1024}')
    k(f's_add_u32 s37, s37, s35')
    for j in range(7):
        k(f's_add_u32 s{50+j}, s{sWAVE}, {(4*j) % 7}')
        k(f's_sub_u32 s40, s{50+j}, 7')
        k(f's_cmp_ge_u32 s{50+j}, 7')
        k(f's_cselect_b32 s{50+j}, s40, s{50+j}')
        k(f's_lshl_b32 s{50+j}, s{50+j}, 10')
    n = 0
    for lt in range(7):
        sb = 36 if lt < 6 else 37
        for j in range(7):
            k(f's_lshl_b32 s40, s{50+j}, 1')
            k(f's_add_u32 s40, s40, s{sb}')
            for f in range(2):
                k(f'buffer_load_dwordx4 {xr(W(lt, j) + 4*f,4)}, v{vL16}, s[{SWS}:{SWS+3}], s40 offen offset:{f*1024}')
                n += 1
                if n % 16 == 0: k('s_waitcnt vmcnt(40)')
        k(f's_add_u32 s{sb}, s{sb}, 14336')
    k(f'v_add_u32 v{vG1}, s51, v{vL16}')
    t = vX
    g, i = vQ, vQ+1
    k(f'v_lshrrev_b32 v{g}, 4, v{vLane}')
    k(f'v_and_b32 v{i}, 15, v{vLane}')
    k(f's_lshr_b32 s38, s32, 1')
    k(f's_lshr_b32 s39, s33, 1')
    k(f's_lshl_b32 s40, s38, 10')
    k(f'v_add_u32 v{vKey}, s40, v{vL16}')
    k(f's_lshl_b32 s40, s39, 10')
    k(f's_add_u32 s40, s40, s34')
    k(f'v_add_u32 v{vKeyS}, s40, v{vL16}')
    k(f'v_lshrrev_b32 v{t}, 1, v{g}')
    k(f'v_lshlrev_b32 v{t}, 8, v{t}')
    k(f'v_and_b32 v{t+1}, 7, v{i}')
    k(f'v_lshlrev_b32 v{t+1}, 4, v{t+1}')
    k(f'v_add_u32 v{t}, v{t}, v{t+1}')
    k(f'v_and_b32 v{t+1}, 1, v{g}')
    k(f'v_lshlrev_b32 v{t+1}, 7, v{t+1}')
    k(f'v_add_u32 v{t}, v{t}, v{t+1}')
    k(f's_lshl_b32 s40, s38, 9')
    k(f'v_add_u32 v{vMK}, s40, v{t}')
    k(f's_lshl_b32 s40, s39, 9')
    k(f's_add_u32 s40, s40, s34')
    k(f'v_add_u32 v{vMKS}, s40, v{t}')
    k(f's_lshl_b32 s40, s{sWAVE}, 10')
    k(f's_add_u32 s40, s40, {LQS}')
    k(f'v_lshrrev_b32 v{t}, 2, v{i}')
    k(f'v_add_u32 v{t}, v{t}, v{g}')
    k(f'v_and_b32 v{t}, 3, v{t}')
    k(f'v_lshlrev_b32 v{t}, 3, v{t}')
    k(f'v_lshlrev_b32 v{t+1}, 5, v{i}')
    k(f'v_add3_u32 v{vQW}, v{t}, v{t+1}, s40')
    k(f'v_lshrrev_b32 v{t}, 2, v{vLane}')
    k(f'v_lshlrev_b32 v{t}, 5, v{t}')
    k(f'v_add_u32 v{t+1}, v{vLane}, v{g}')
    k(f'v_and_b32 v{t+1}, 3, v{t+1}')
    k(f'v_lshlrev_b32 v{t+1}, 3, v{t+1}')
    k(f'v_add3_u32 v{vQR}, v{t}, v{t+1}, s40')
    k(f's_mul_i32 s40, s{sWAVE}, 3264')
    k(f's_add_u32 s40, s40, {LSP}')
    k(f'v_lshlrev_b32 v{t}, 4, v{i}')
    k(f'v_mul_u32_u24 v{t+1}, 272, v{g}')
    k(f'v_add3_u32 v{vSW}, v{t}, v{t+1}, s40')
    k(f'v_subrev_u32 v{t}, 12, v{i}')
    k(f'v_cmp_le_u32 vcc, 12, v{i}')
    k('s_nop 1')
    k(f'v_cndmask_b32 v{t}, v{i}, v{t}, vcc')
    k(f'v_lshrrev_b32 v{t+1}, 5, v{vLane}')
    k(f's_lshl_b32 s40, s{sWAVE}, 1')
    k(f'v_add_u32 v{t+1}, s40, v{t+1}')
    k(f'v_and_b32 v{t+2}, 1, v{g}')
    k(f'v_lshl_add_u32 v{t+3}, v{t+2}, 3, v{t+1}')
    k(f'v_lshlrev_b32 v{t+3}, 4, v{t+3}')
    k(f'v_mul_u32_u24 v{vSR}, 272, v{t}')
    k(f'v_add_u32 v{vSR}, v{vSR}, v{t+3}')
    if LSP: k(f'v_add_u32 v{vSR}, {LSP}, v{vSR}')
    k(f's_and_b32 s42, s{sID}, 1')
    k(f's_lshl_b32 s42, s42, 3')
    k(f'v_add_u32 v{t+1}, s42, v{t+1}')
    k(f'v_and_b32 v{vPO}, 1, v{i}')
    k(f'v_lshlrev_b32 v{vPO}, 3, v{vPO}')
    k(f'v_lshl_add_u32 v{vPO}, v{t+1}, 4, v{vPO}')
    k(f'v_bfe_u32 v{t}, v{i}, 1, 1')
    k(f'v_lshl_add_u32 v{vPO}, v{t}, 8, v{vPO}')
    k(f'v_bfe_u32 v{t}, v{i}, 3, 1')
    k(f'v_lshl_add_u32 v{vPO}, v{t}, 9, v{vPO}')
    k(f's_lshr_b32 s41, s{sID}, 1')
    k(f's_lshl_b32 s40, s41, 10')
    k(f'v_add_u32 v{vPO}, s40, v{vPO}')
    k(f'v_lshlrev_b32 v{t}, 3, v{i}')
    k(f'v_lshl_add_u32 v{t}, v{t+1}, 4, v{t}')
    k(f's_lshl_b32 s40, s41, 8')
    k(f's_add_u32 s40, s40, 8192')
    k(f'v_add_u32 v{t}, s40, v{t}')
    k(f'v_mov_b32 v{t+3}, 0x40000000')
    k(f'v_cmp_le_u32 vcc, 2, v{i}')
    k('s_nop 1')
    k(f'v_cndmask_b32 v{t}, v{t}, v{t+3}, vcc')
    k(f'v_cmp_le_u32 vcc, 4, v{i}')
    k('s_nop 1')
    k(f'v_cndmask_b32 v{vPO}, v{t}, v{vPO}, vcc')
    k(f'v_cmp_le_u32 vcc, 12, v{i}')
    k('s_nop 1')
    k(f'v_cndmask_b32 v{vPO}, v{vPO}, v{t+3}, vcc')
    k(f'v_lshl_add_u32 v{vPO}, v{t+2}, 2, v{vPO}')
    k(f'v_mov_b32 v{vVal}, 1.0')
    k(f'v_cmp_le_u32 vcc, v{t+3}, v{vPO}')
    k('s_nop 1')
    k(f'v_cndmask_b32 v{vVal}, v{vVal}, 0, vcc')
    k(f's_mov_b32 s{sSTEP}, 0')
    k(f"s_lshr_b32 s{sM}, s{sID}, {3 if OPT['rep'] == 3 else 2}")
    k(f"s_mul_i32 s{sM}, s{sM}, {MEM_S}")
    k(f's_add_u32 s{sM}, s{sM}, {MEM}')
    k(f's_mov_b32 s{sP}, {PB}')
    k(f's_mov_b32 s{sX}, {XNS}')
    k(f's_lshl_b32 s40, s{sID}, 2')
    k(f's_add_u32 s40, s40, s{sWAVE}')
    k(f's_mul_i32 s40, s40, 7168')
    k(f'v_min_u32 v{vX}, {55*16}, v{vL16}')
    k(f'v_lshlrev_b32 v{vX}, 3, v{vX}')
    k(f'v_add_u32 v{vX}, s40, v{vX}')
    k(f"s_mov_b32 s{sUM}, {UF + OPT['ud']*UF_SEG}")
    WS = f's[{SWS}:{SWS+3}]'
    def key_list():
        L = []
        for p in range(3):
            L.append(f'buffer_load_dwordx4 {vr(vKT+8*p,4)}, v{vKey}, {WS}, s{sX} offen offset:{p*1024}')
            L.append(f'buffer_load_dwordx4 {vr(vKT+8*p+4,4)}, v{vKey}, {WS}, s46 offen offset:{p*1024}')
        L.append(f'buffer_load_dwordx2 {vr(vKT+24,2)}, v{vKeyS}, {WS}, s{sX} offen')
        L.append(f'buffer_load_dwordx2 {vr(vKT+26,2)}, v{vKeyS}, {WS}, s46 offen')
        return L
    def load_keys(keys=True):
        if keys:
            for x in key_list(): k(x)
        k(f's_add_u32 s{sX}, s{sX}, 28672')
        k(f's_add_u32 s46, s{sX}, 14336')
        k(f's_add_u32 s{sT0}, s{sSTEP}, {1 + OPT["ud"]}')
        k(f's_lshr_b32 s{sT0}, s{sT0}, 2')
        k(f's_lshl_b32 s{sT0}, s{sT0}, 7')
        k(f's_add_u32 s{sT0}, s{sT0}, {flag(F_U)}')
        k(f'buffer_load_dword v{vX+2}, off, {WS}, s{sT0} sc1')
    if OPT['tm']:
        k(f'v_lshlrev_b32 v{vQ+2}, 2, v{g}')
        k(f'v_sub_u32 v{vQ+2}, v{i}, v{vQ+2}')
        k(f'v_and_b32 v{vQ+3}, 1, v{vQ+2}')
        k(f'v_lshlrev_b32 v{vQ+3}, 4, v{vQ+3}')
        k(f'v_mov_b32 v{vLane}, 0x3f80')
        k(f'v_lshlrev_b32 v{vLane}, v{vQ+3}, v{vLane}')
        k(f'v_cmp_gt_u32 vcc, 4, v{vQ+2}')
        k(f'v_cmp_lt_u32 s[48:49], 1, v{vQ+2}')
        k('s_nop 0')
        k(f'v_cndmask_b32 v{vLane}, 0, v{vLane}, vcc')
    k(f's_add_u32 s46, s{sX}, 14336')
    k(f's_mov_b32 s{sSTEP}, -1')
    load_keys()
    k(f's_mov_b32 s{sSTEP}, 0')
    wait_mode(k, vT)
    k(f'v_mov_b32 v{vX+3}, 0x40000000')
    if stamps: k(f's_add_u32 s76, s{sST}, 0x20000')
    edge(k, stamps, 0)
    k.label('L_A_loop')
    for r in range(0, 28, 2): k(f'v_mov_b64 {vr(vQ+r,2)}, 0')
    k(f's_add_u32 s47, s{sP}, {PB_S}')
    vAd = vKM + 6
    for j in range(2, 7): k(f'v_add_u32 v{vAd+j}, s{50+j}, v{vL16}')
    def Mx(lt, kb, src):
        return f'v_smfmac_f32_16x16x64_bf16 {vr(vQ+4*lt,4)}, {vr(src,4)}, {xr(W(lt,kb),8)}, v{vIdx}'
    def M(lt, kb): return Mx(lt, kb, vM+4*kb)
    mk = [f'ds_read_b128 {vr(vKM+4*p,4)}, v{vMK} offset:{LM+p*512}' for p in range(3)]
    mk.append(f'ds_read_b64 {vr(vKM+12,2)}, v{vMKS} offset:{LM}')
    sets = [vM, vKM]
    def issue(st):
        return [f'buffer_load_dwordx4 {vr(sets[st],4)}, v{vG0}, {WS}, s{sM} offen sc1',
                f'buffer_load_dwordx4 {vr(sets[st]+4,4)}, v{vG1}, {WS}, s{sM} offen sc1']
    def checks(st):
        G = sets[st]
        return [(1, [f'v_max3_u32 v{vT}, v{G}, v{G+1}, v{G+2}']),
                (0, [f'v_max3_u32 v{vT+1}, v{G+4}, v{G+5}, v{G+6}', f'v_max3_u32 v{vT}, v{vT}, v{G+3}, v{G+7}',
                     f'v_max_u32 v{vT}, v{vT}, v{vT+1}', f'v_cmp_eq_u32 vcc, -1, v{vT}'])]
    NB = OPT['nb']
    def body(st):
        G = sets[st]
        stamp(k, 0, stamps)
        wrs = [f'ds_write_b128 v{vG0}, {vr(G,4)} offset:{LM}', f'ds_write_b128 v{vG1}, {vr(G+4,4)} offset:{LM}']
        seq = [(lt, j) for j in range(2) for lt in range(7)]
        for n, (lt, j) in enumerate(seq):
            k(Mx(lt, j, G + 4*j))
            if OPT['w64'] == 0 and n < 2: k.ds(wrs[n])
            if OPT['w64'] == 1 and n < 4: k.ds(f'ds_write_b64 v{vG0 if n < 2 else vG1}, {vr(G+2*n,2)} offset:{LM + 8*(n&1)}')
            if n == 4: k(f'v_cmp_le_u32 vcc, {OPT["uneed"]}, v{vX+2}')
            if n == 5: k('s_nop 0'); k(f'v_cndmask_b32 v{vX+1}, v{vX+3}, v{vX}, vcc')
            if n == NB - 1:
                k.wds0(); k('s_barrier')
            if NB - 1 <= n < NB + 4:
                jj = n - (NB - 1) + 2
                k.ds(f'ds_read_b128 {vr(vM+4*jj,4)}, v{vAd+jj} offset:{LM}', f'm{jj}')
            if n == NB + 5: k(f'buffer_load_dword v0, v{vX+1}, {WS}, s{sUM} offen sc1')
    if OPT['ap2']:
        poll2(k, issue, checks, body, 'Lga', OPT['stagA'])
    else:
        gather_mem(k, vM, vG0, vG1, None, None, vT)
        body(0)
    def cvt(lt, h):
        k(f'v_cvt_pk_bf16_f32 v{vQ+4*lt+h}, v{vQ+4*lt+2*h}, v{vQ+4*lt+2*h+1}')
    def wr(lt):
        k.ds(f'ds_write_b64 v{vQW}, {vr(vQ+4*lt,2)} offset:{512*(lt&1)}')
    def tr(p, h):
        k.ds(f'ds_read_b64_tr_b16 {vr(vQ+8*p+2*h,2)}, v{vQR} offset:{512*h}', f'q{p}')
    vSt = [vM, vM+4, vQ+4]
    def S(p, t):
        q = vQ + 8*p
        c = '0' if p == 0 else vr(vSt[t],4)
        if p < 3:
            a = vKM+4*p if t == 0 else vKT+8*p+4*(t-1)
            k(f'v_mfma_f32_16x16x32_bf16 {vr(vSt[t],4)}, {vr(a,4)}, {vr(q,4)}, {c}')
        else:
            a = vKM+12 if t == 0 else vKT+24+2*(t-1)
            k(f'v_mfma_f32_16x16x16_bf16 {vr(vSt[t],4)}, {vr(a,2)}, {vr(q,2)}, {c}')
    for lt in range(7):
        for j in range(2, 7):
            if lt == 0: k.wds(f'm{j}')
            k(M(lt, j))
            if OPT['tm'] and lt == 1 and j == 2: k(f'v_cndmask_b32 v{vT}, v{vLane}, 0, s[48:49]')
            if OPT['tm'] and lt == 1 and j == 3: k(f'v_cndmask_b32 v{vT+1}, 0, v{vLane}, s[48:49]')
            if lt == 0 and j == 6:
                k('s_waitcnt vmcnt(1)')
                for x in mk: k.ds(x, 'mk')
            if lt >= 1:
                if j == 4: cvt(lt-1, 0)
                if j == 5: cvt(lt-1, 1)
                if j == 6:
                    wr(lt-1)
                    if (lt-1) & 1: tr((lt-1)//2, 0); tr((lt-1)//2, 1)
        if lt == (4 if OPT['s1pos'] == 0 else 3):
            k.wds('q0')
            for t in range(3): S(0, t)
        if lt == 5 and OPT['s1pos'] == 1:
            k.wds('q1')
            for t in range(3): S(1, t)
    if OPT['s1pos'] == 0:
        k.wds('q1')
        for t in range(3): S(1, t)
        cvt(6, 0); cvt(6, 1)
        if OPT['tm']:
            k.wds('q2')
            k.nop(1)
            k(f'v_mfma_f32_16x16x16_bf16 {vr(vQ+12,4)}, {vr(vQ+24,2)}, {vr(vT,2)}, 0')
            for t in range(3): S(2, t)
            k(f'v_cvt_pk_bf16_f32 v{vQ+24}, v{vQ+12}, v{vQ+13}')
            k(f'v_cvt_pk_bf16_f32 v{vQ+25}, v{vQ+14}, v{vQ+15}')
            k.nop(2)
        else:
            wr(6); tr(3, 0)
            k.wds('q2')
            for t in range(3): S(2, t)
    else:
        k.nop(8)
        cvt(6, 0); cvt(6, 1); wr(6); tr(3, 0)
        k.wds('q2')
        for t in range(3): S(2, t)
    k.wds('q3')
    for t in range(3): S(3, t)
    for t in range(3):
        k.nop(2 if (t == 0 or OPT['p64'] == 0) else 1)
        if OPT['p64'] == 0: k.ds(f'ds_write_b128 v{vSW}, {vr(vSt[t],4)} offset:{1088*t}')
        else:
            k.ds(f'ds_write_b64 v{vSW}, {vr(vSt[t],2)} offset:{1088*t}')
            k.ds(f'ds_write_b64 v{vSW}, {vr(vSt[t]+2,2)} offset:{1088*t+8}')
    k.wds0()
    k('s_barrier')
    stamp(k, 1, stamps)
    mark = len(k.lines)
    R = vQ+8
    for w in range(4): k.ds(f'ds_read_b128 {vr(R+4*w,4)}, v{vSR} offset:{w*3264}', f'r{w}')
    k(f's_cmp_eq_u32 s{sMODE}, 1')
    k.wds('r1')
    k(f'v_pk_add_f32 {vr(R,2)}, {vr(R,2)}, {vr(R+4,2)}')
    k(f'v_pk_add_f32 {vr(R+2,2)}, {vr(R+2,2)}, {vr(R+6,2)}')
    k.wds('r2')
    k(f'v_pk_add_f32 {vr(R,2)}, {vr(R,2)}, {vr(R+8,2)}')
    k(f'v_pk_add_f32 {vr(R+2,2)}, {vr(R+2,2)}, {vr(R+10,2)}')
    k.wds('r3')
    k(f'v_pk_add_f32 {vr(R,2)}, {vr(R,2)}, {vr(R+12,2)}')
    k(f'v_pk_add_f32 {vr(R+2,2)}, {vr(R+2,2)}, {vr(R+14,2)}')
    k.nop(2)
    k(f'v_permlane16_swap_b32 v{R}, v{R+2}')
    k(f'v_permlane16_swap_b32 v{R+1}, v{R+3}')
    X = R+4; m = R+6; t = R+8
    k(f'v_pk_add_f32 {vr(X,2)}, {vr(R,2)}, {vr(R+2,2)}')
    def allred(op, m):
        for rot in (8, 4, 2, 1):
            k.nop(2)
            k(f'{op}_dpp v{m}, v{m}, v{m} row_ror:{rot} row_mask:0xf bank_mask:0xf')
        k(f'v_mov_b32 v{t}, v{m}')
        k.nop(2)
        k(f'v_permlane16_swap_b32 v{m}, v{t}')
        k(f'{op} v{m}, v{m}, v{t}')
    if OPT['sm2'] == 0:
        k(f'v_max_f32 v{m}, v{X}, v{X+1}')
        allred('v_max_f32', m)
        k(f'v_pk_add_f32 {vr(X,2)}, {vr(X,2)}, {vr(m,2)} op_sel_hi:[1,0] neg_lo:[0,1] neg_hi:[0,1]')
        k(f'v_exp_f32 v{X}, v{X}')
        k(f'v_exp_f32 v{X+1}, v{X+1}')
        k.nop(1)
        k(f'v_add_f32 v{m}, v{X}, v{X+1}')
        k(f'v_mul_f32 v{m}, v{m}, v{vVal}')
        allred('v_add_f32', m)
        k(f'v_rcp_f32 v{m}, v{m}')
        k.nop(1)
        k(f'v_pk_mul_f32 {vr(X,2)}, {vr(X,2)}, {vr(m,2)} op_sel_hi:[1,0]')
    else:
        l_, M, sc = R+10, R+12, R+14
        def dpp(op, r, rot): k(f'{op}_dpp v{r}, v{r}, v{r} row_ror:{rot} row_mask:0xf bank_mask:0xf')
        k(f'v_max_f32 v{m}, v{X}, v{X+1}')
        for rot in (8, 4, 2, 1):
            k.nop(2); dpp('v_max_f32', m, rot)
        k(f'v_pk_add_f32 {vr(X,2)}, {vr(X,2)}, {vr(m,2)} op_sel_hi:[1,0] neg_lo:[0,1] neg_hi:[0,1]')
        k(f'v_mov_b32 v{M}, v{m}')
        k(f'v_exp_f32 v{X}, v{X}')
        k(f'v_mov_b32 v{t}, v{m}')
        k(f'v_exp_f32 v{X+1}, v{X+1}')
        k.nop(1)
        k(f'v_add_f32 v{l_}, v{X}, v{X+1}')
        k(f'v_permlane16_swap_b32 v{M}, v{t}')
        k(f'v_mul_f32 v{l_}, v{l_}, v{vVal}')
        k(f'v_max_f32 v{M}, v{M}, v{t}')
        k(f'v_sub_f32 v{sc}, v{m}, v{M}')
        dpp('v_add_f32', l_, 8)
        k(f'v_exp_f32 v{sc}, v{sc}')
        k.nop(1)
        dpp('v_add_f32', l_, 4)
        k(f'v_pk_mul_f32 {vr(X,2)}, {vr(X,2)}, {vr(sc,2)} op_sel_hi:[1,0]')
        k.nop(1)
        dpp('v_add_f32', l_, 2)
        k.nop(2)
        dpp('v_add_f32', l_, 1)
        k(f'v_mul_f32 v{l_}, v{l_}, v{sc}')
        k(f'v_mov_b32 v{t}, v{l_}')
        k.nop(2)
        k(f'v_permlane16_swap_b32 v{l_}, v{t}')
        k(f'v_add_f32 v{l_}, v{l_}, v{t}')
        k(f'v_rcp_f32 v{l_}, v{l_}')
        k.nop(1)
        k(f'v_pk_mul_f32 {vr(X,2)}, {vr(X,2)}, {vr(l_,2)} op_sel_hi:[1,0]')
    k(f'v_cvt_pk_bf16_f32 v{X}, v{X}, v{X+1}')
    k(f'v_min_u32 v{X}, -2, v{X}')
    if OPT['kpos'] == 'soft':
        body_ = k.lines[mark:]; k.lines = k.lines[:mark]; L = key_list()
        for x in body_:
            if x == 's_nop 1' and L: k(L.pop(0)); k('s_nop 0')
            else: k(x)
        assert not L
    publish(k, [f'buffer_store_dword v{X}, v{vPO}, {WS}, s{x} offen' for x in [sP, 47][:OPT['prep']]])
    stamp(k, 2, stamps)
    k('s_barrier')
    if stamps and OPT['tw']:
        k('s_waitcnt vmcnt(0)')
        stamp(k, 3, stamps)
    if OPT['kdel']: k(f"s_sleep {OPT['kdel']}")
    load_keys(OPT['kpos'] != 'soft')
    if OPT['sleepA']: k(f"s_sleep {OPT['sleepA']}")
    k(f's_add_u32 s{sUM}, s{sUM}, {UF_SEG}')
    k(f's_add_u32 s{sM}, s{sM}, {MEM_T}')
    k(f's_add_u32 s{sP}, s{sP}, {PB_T}')
    if stamps: k(f's_add_u32 s{sST}, s{sST}, 16')
    k(f's_add_u32 s{sSTEP}, s{sSTEP}, 1')
    k(f's_cmp_lt_u32 s{sSTEP}, {NSTEP}')
    k('s_cbranch_scc1 L_A_loop')
    edge(k, stamps, 8)
    k('s_waitcnt vmcnt(0)')
    k('s_endpgm')
    k.flush_cold()

def role_B(k, stamps=False, wait_u=None):
    WS = f's[{SWS}:{SWS+3}]'
    vLane, vL16, vG0, vG1, vIdx = 1, 2, 3, 4, 5
    vWL, vPT, vPM, vRW, vRR, vL4 = 6, 7, 8, 9, 10, 11
    vC = 12
    vM = 16
    vA = 44
    vU = 76
    vTm = 108
    vUi = 140
    vUm = 172
    vRR2 = 188
    vKeep, vFl = 191, 15
    vD = vTm
    vG = vTm + 16
    vP = [vM, vA]
    def W(gi, kb):
        i = gi*5 + kb
        return (256 + 8*i) if i < 32 else (192 + 8*(i-32))
    LM, LRED, LW = 0, 7168, 16384
    k.label('L_roleB')
    k(f's_sub_u32 s{sID}, s{sROLE}, 16')
    common_lane_setup(k, vLane, vL16, vG0, vG1, vIdx, vC)
    k(f's_lshl_b32 s{sT0}, s{sWAVE}, 2')
    k(f's_mul_i32 s{sT0}, s{sT0}, 28')
    k(f's_lshl_b32 s{sT1}, s{sID}, 1')
    k(f's_add_u32 s{sT0}, s{sT0}, s{sT1}')
    k(f's_mul_i32 s35, s{sT0}, 14336')
    k(f's_add_u32 s35, s35, {WTB}')
    k(f's_lshl_b32 s37, s{sWAVE}, 15')
    k(f's_add_u32 s37, s37, {LW}')
    k(f'v_add_u32 v{vWL}, s37, v{vL16}')
    for j in range(7):
        k(f's_add_u32 s{50+j}, s{sWAVE}, {(4*j) % 7}')
        k(f's_sub_u32 s40, s{50+j}, 7')
        k(f's_cmp_ge_u32 s{50+j}, 7')
        k(f's_cselect_b32 s{50+j}, s40, s{50+j}')
        k(f's_lshl_b32 s{50+j}, s{50+j}, 10')
    k(f'v_add_u32 v{vG1}, s51, v{vL16}')
    for gi in range(8):
        k(f's_add_u32 s36, s35, {(gi>>1)*28*14336 + (gi&1)*14336}')
        for j in range(7):
            k(f's_lshl_b32 s40, s{50+j}, 1')
            k(f's_add_u32 s40, s40, s36')
            if j >= 5:
                k(f's_add_u32 s38, s37, {gi*4096 + (j-5)*2048}')
                k(f's_mov_b32 m0, s38')
                k('s_nop 0')
            for f in range(2):
                if j < 5: k(f'buffer_load_dwordx4 {xr(W(gi, j) + 4*f,4)}, v{vL16}, {WS}, s40 offen offset:{f*1024}')
                else:     k(f'buffer_load_dwordx4 v{vL16}, {WS}, s40 offen offset:{f*1024} lds')
        k('s_waitcnt vmcnt(40)')
    g, i = vA, vA+1
    vT = vC
    k(f'v_lshrrev_b32 v{g}, 4, v{vLane}')
    k(f'v_and_b32 v{i}, 15, v{vLane}')
    k(f's_lshl_b32 s40, s{sWAVE}, 11')
    k(f'v_add_u32 v{vPT}, s40, v{vL16}')
    k(f'v_lshrrev_b32 v{vT}, 1, v{g}')
    k(f'v_lshlrev_b32 v{vT}, 8, v{vT}')
    k(f'v_lshl_add_u32 v{vT}, v{i}, 4, v{vT}')
    k(f's_lshl_b32 s40, s{sWAVE}, 9')
    k(f's_add_u32 s40, s40, 8192')
    k(f'v_add_u32 v{vPM}, s40, v{vT}')
    k(f's_lshl_b32 s40, s{sWAVE}, 10')
    k(f's_add_u32 s40, s40, {LRED}')
    k(f'v_add_u32 v{vRW}, s40, v{vL16}')
    k(f'v_and_b32 v{vT}, 3, v{vLane}')
    k(f'v_lshlrev_b32 v{vT}, 6, v{vT}')
    k(f'v_lshrrev_b32 v{vT+1}, 5, v{vLane}')
    k(f'v_lshl_add_u32 v{vT}, v{vT+1}, 5, v{vT}')
    k(f'v_lshrrev_b32 v{vT+1}, 2, v{vLane}')
    k(f'v_and_b32 v{vT+2}, 3, v{vT+1}')
    k(f'v_lshl_add_u32 v{vT}, v{vT+2}, 2, v{vT}')
    k(f'v_bfe_u32 v{vT+2}, v{vLane}, 4, 1')
    k(f'v_lshl_add_u32 v{vT}, v{vT+2}, 8, v{vT}')
    k(f's_and_b32 s40, s{sWAVE}, 1')
    k(f's_lshl_b32 s40, s40, 9')
    k(f's_add_u32 s40, s40, {LRED}')
    k(f'v_add_u32 v{vRR}, s40, v{vT}')
    for w in range(1, 4): k(f'v_add_u32 v{vRR2+w-1}, {1024*w}, v{vRR}')
    k(f's_lshl_b32 s40, s{sID}, 1')
    k(f's_and_b32 s41, s{sWAVE}, 1')
    k(f's_add_u32 s40, s40, s41')
    k(f's_lshl_b32 s40, s40, 8')
    k(f'v_lshlrev_b32 v{vL4}, 2, v{vLane}')
    k(f'v_add_u32 v{vL4}, s40, v{vL4}')
    k(f's_mov_b32 s{sSTEP}, 0')
    k(f's_lshr_b32 s{sM}, s{sWAVE}, 1')
    k(f's_mul_i32 s{sM}, s{sM}, {2*MEM_S}')
    k(f's_add_u32 s{sM}, s{sM}, {MEM}')
    k(f's_mov_b32 s47, {MEMX - MEM_S}')
    k(f"s_mov_b32 s49, {MEM + (NREP-1)*MEM_S}")
    k(f's_and_b32 s{sP}, s{sID}, 1')
    k(f"s_mul_i32 s{sP}, s{sP}, {PB_S if OPT['prep'] == 2 else 0}")
    k(f's_add_u32 s{sP}, s{sP}, {PB}')
    k(f's_lshl_b32 s{sX}, s{sID}, 15')
    k(f's_lshl_b32 s40, s{sWAVE}, 13')
    k(f's_add_u32 s{sX}, s{sX}, s40')
    k(f's_add_u32 s{sX}, s{sX}, {UF}')
    k(f's_mul_i32 s{sUM}, s{sWAVE}, {2*28*1024}')
    k(f's_lshl_b32 s40, s{sID}, 11')
    k(f's_add_u32 s{sUM}, s{sUM}, s40')
    k(f's_add_u32 s{sUM}, s{sUM}, {UM}')
    k(f's_mov_b32 s43, s{sUM}')
    def ldu(j, s0=sX):
        hh, T = j >> 1, j & 1
        r = vU + 16*(hh>>1) + 8*T + 4*(hh&1)
        return f'buffer_load_dwordx4 {vr(r,4)}, v{vL16}, {WS}, s{s0 if j<4 else sT0} offen offset:{(j&3)*1024} ' + OPT['uf']
    def stum(u, T):
        return f'buffer_store_dwordx4 {vr(vUm+8*T+4*u,4)}, v{vL16}, {WS}, s{43 if u==0 else 44} offen offset:{T*1024} ' + OPT['um']
    def lw(gi):
        b = vTm + 16*(gi&1)
        for f in range(4): k.ds(f'ds_read_b128 {vr(b+4*f,4)}, v{vWL} offset:{gi*4096+f*1024}', f'w{gi}')
    def load_u(ahead):
        if wait_u:
            lu = k.newlabel('Lnu')
            k(f's_add_u32 s{sT0}, s{sSTEP}, {ahead}')
            k(f's_and_b32 s{sT1}, s{sT0}, 3')
            k(f's_cbranch_scc1 {lu}')
            k(f's_lshl_b32 s{sT0}, s{sT0}, 5')
            k(f's_add_u32 s{sT0}, s{sT0}, {flag(F_U)}')
            wait_u(k, sT0, 32, vC, sleep=1)
            k.label(lu)
        k(f's_add_u32 s{sT0}, s{sX}, 4096')
        for j in range(8): k(ldu(j))
        k(f's_add_u32 s{sX}, s{sX}, {UF_SEG}')
    if OPT['u0'] == 'pro': load_u(0)
    wait_mode(k, vC)
    sw = []
    for o in range(4):
        r = vU + 8*o
        for e in range(4):
            sel = e & 1
            sw.append(f'v_pk_mov_b32 {vr(vUi+8*o+2*e,2)}, {vr(r+(e&2),2)}, {vr(r+4+(e&2),2)} op_sel:[{sel},{sel}]')
    if stamps: k(f's_add_u32 s76, s{sST}, 0x20000')
    edge(k, stamps, 0)
    k.label('L_B_loop')
    lp = k.newlabel('Lgm')
    def gl():
        sb = 49
        k(f'buffer_load_dwordx4 {vr(vM,4)}, v{vG0}, {WS}, s{sb} offen sc1')
        k(f'buffer_load_dwordx4 {vr(vM+4,4)}, v{vG1}, {WS}, s{sb} offen sc1')
    k('s_waitcnt vmcnt(3)')
    NU = OPT['nu2']
    k(f's_add_u32 s{sT0}, s{sX}, {4096 - UF_SEG}')
    k(f's_sub_u32 s{sT1}, s{sX}, {UF_SEG}')
    for j in range(8-NU, 8): k(ldu(j, sT1))
    gl()
    NS = 8 if NU <= 4 else 0
    if NU == 0: NS = 16
    for x in sw[:NS]: k(x)
    for r in range(0, 32, 2): k(f'v_mov_b64 {vr(vA+r,2)}, 0')
    for j in range(2, 7): k(f'v_add_u32 v{vG+j}, s{50+j}, v{vL16}')
    k(f's_add_u32 s45, s{sSTEP}, 1')
    k(f's_lshr_b32 s45, s45, 2')
    k(f's_lshl_b32 s45, s45, 7')
    k(f's_add_u32 s45, s45, {flag(F_U)}')
    k(f's_add_u32 s44, s43, {28*1024}')
    vm = [stum(0,0), stum(0,1), stum(1,0), stum(1,1)] + [ldu(j) for j in range(8)]
    lw(0)
    k(f's_mov_b32 s{sCNT}, 0')
    k(f's_branch {lp}w')
    k.label(lp)
    if OPT['bgs']: k(f"s_sleep {OPT['bgs']}")
    gl()
    k(f's_add_u32 s{sCNT}, s{sCNT}, 1')
    k(f's_cmp_gt_u32 s{sCNT}, s{sT2}')
    k('s_cbranch_scc1 L_fail')
    k.label(lp + 'w')
    k('s_waitcnt vmcnt(1)')
    k(f'v_max3_u32 v{vC}, v{vM}, v{vM+1}, v{vM+2}')
    k('s_waitcnt vmcnt(0)')
    k(f'v_max3_u32 v{vC+1}, v{vM+4}, v{vM+5}, v{vM+6}')
    k(f'v_max3_u32 v{vC}, v{vC}, v{vM+3}, v{vM+7}')
    k(f'v_max_u32 v{vC}, v{vC}, v{vC+1}')
    k(f'v_cmp_eq_u32 vcc, -1, v{vC}')
    k(f's_cbranch_vccnz {lp}')
    stamp(k, 0, stamps)
    k.ds(f'ds_write_b128 v{vG0}, {vr(vM,4)} offset:{LM}')
    k.ds(f'ds_write_b128 v{vG1}, {vr(vM+4,4)} offset:{LM}')
    ls, l2 = k.newlabel('Lbs'), k.newlabel('Lbt')
    k(f's_cmp_eq_u32 s{sSTEP}, 0')
    k(f's_cbranch_scc1 {l2}')
    k(f's_cmp_ge_u32 s{sWAVE}, 2')
    k(f's_cbranch_scc1 {ls}')
    k(f'buffer_store_dword v{vKeep}, v{vL4}, {WS}, s47 offen sc1')
    k(f's_branch {l2}')
    k.label(ls)
    k(f's_cmp_eq_u32 s{sWAVE}, 2')
    k(f's_cselect_b32 s{sT0}, s{sSTEP}, 0')
    k(f's_cmp_le_u32 s{sT0}, 1')
    k(f's_cbranch_scc1 {l2}')
    k(f's_lshl_b32 s{sT0}, s{sSTEP}, 7')
    k(f's_add_u32 s{sT0}, s{sT0}, {flag(F_UM) - 256}')
    k('s_mov_b64 exec, 1')
    k(f'v_mov_b32 v{vC}, 1')
    k(f'buffer_atomic_add v{vC}, off, {WS}, s{sT0}')
    k('s_mov_b64 exec, -1')
    k.label(l2)
    k(f'buffer_load_dword v{vFl}, off, {WS}, s45 sc1')
    for x in vm[:4]: k(x)
    def acc(gi): return vA + 4*gi
    def cvt(gi, h):
        hh, T = gi>>1, gi&1
        d = vUm + 8*T + 4*(hh>>1) + 2*h + (hh&1)
        a = acc(gi) + 2*h
        k(f'v_cvt_pk_bf16_f32 v{d}, v{a}, v{a+1}')
    def lw1(gi, f):
        k.ds(f'ds_read_b128 {vr(vTm+16*(gi&1)+4*f,4)}, v{vWL} offset:{gi*4096+f*1024}', f'w{gi}')
    def MB(gi, j):
        w = xr(W(gi,j),8) if j < 5 else vr(vTm + 16*(gi&1) + 8*(j-5), 8)
        k(f'v_smfmac_f32_16x16x64_bf16 {vr(acc(gi),4)}, {vr(vM+4*j,4)}, {w}, v{vIdx}')
    for n in range(16):
        MB(n & 7, n >> 3)
        if n == 5:
            k.wds0(); k('s_barrier')
        if 5 <= n < 10:
            k.ds(f'ds_read_b128 {vr(vM+4*(n-3),4)}, v{vG+n-3} offset:{LM}', f'm{n-3}')
    for gi in range(8):
        for j in range(2, 7):
            if gi == 0: k.wds(f'm{j}')
            if j == 5: k.wds(f'w{gi}')
            MB(gi, j)
            if gi < 7 and j in (2, 3, 5, 6): lw1(gi+1, {2:0, 3:1, 5:2, 6:3}[j])
            if gi >= 1 and j == 4: cvt(gi-1, 0); cvt(gi-1, 1)
    k(f's_mov_b32 s43, s{sUM}')
    k(f's_add_u32 s{sUM}, s{sUM}, {UM_SEG}')
    for x in sw[NS:]: k(x)
    k.nop(6 if NS == 16 else 0)
    cvt(7, 0); cvt(7, 1)
    for r in range(0, 8, 2): k(f'v_mov_b64 {vr(vD+r,2)}, 0')
    k(f's_cmp_ge_u32 s{sSTEP}, {NSTEP}')
    k('s_cbranch_scc1 L_B_end')
    k('s_waitcnt vmcnt(4)')
    if OPT['u0'] == 'cold':
        l0, l1 = k.newlabel('Lu0'), k.newlabel('Lu1')
        k(f's_cmp_eq_u32 s{sSTEP}, 0')
        k(f's_cbranch_scc1 {l0}')
        k.label(l1)
        main = k.lines; k.lines = []
        k.label(l0)
        load_u(0)
        k('s_waitcnt vmcnt(0)')
        for x in sw: k(x)
        k(f'v_mov_b32 v{vFl}, 32')
        k(f's_branch {l1}')
        k.cold += k.lines; k.lines = main
    if wait_u:
        lu = k.newlabel('Lnu')
        k(f'v_cmp_le_u32 vcc, 32, v{vFl}')
        k(f's_cbranch_vccnz {lu}')
        wait_u(k, 45, 32, vC)
        k.label(lu)
    k(f's_add_u32 s{sT0}, s{sX}, 4096')
    for j in range(8-NU): k(ldu(j))
    k(f's_add_u32 s{sX}, s{sX}, {UF_SEG}')
    stamp(k, 1, stamps)
    if OPT['sleepB']: k(f"s_sleep {OPT['sleepB']}")
    def issue(st):
        P = vP[st]
        return [f'buffer_load_dwordx4 {vr(P,4)}, v{vPT}, {WS}, s{sP} offen sc1',
                f'buffer_load_dwordx4 {vr(P+4,4)}, v{vPT}, {WS}, s{sP} offen offset:1024 sc1',
                f'buffer_load_dwordx4 {vr(P+8,4)}, v{vPM}, {WS}, s{sP} offen sc1']
    def checks(st):
        P = vP[st]
        return [(2, [f'v_max3_u32 v{vC}, v{P}, v{P+1}, v{P+2}']),
                (1, [f'v_max3_u32 v{vC+1}, v{P+4}, v{P+5}, v{P+6}', f'v_max3_u32 v{vC}, v{vC}, v{P+3}, v{P+7}']),
                (0, [f'v_max3_u32 v{vC+1}, v{vC+1}, v{P+8}, v{P+9}', f'v_max3_u32 v{vC}, v{vC}, v{P+10}, v{P+11}',
                     f'v_max_u32 v{vC}, v{vC}, v{vC+1}', f'v_cmp_eq_u32 vcc, -1, v{vC}'])]
    def body(st):
        P = vP[st]
        stamp(k, 2, stamps)
        for j in range(3):
            for T in range(2):
                b = vr(vUi + 16*j + 8*T, 8) if j < 2 else vr(vUm + 8*T, 8)
                k(f'v_smfmac_f32_16x16x64_bf16 {vr(vD+4*T,4)}, {vr(P+4*j,4)}, {b}, v{vIdx}')
    if OPT['bp2']: poll2(k, issue, checks, body, 'Lpp', OPT['stag'])
    else:
        lp = k.newlabel('Lp1')
        k(f's_mov_b32 s{sCNT}, 0')
        k.label(lp)
        for x in issue(0): k(x)
        k(f's_add_u32 s{sCNT}, s{sCNT}, 1')
        k(f's_cmp_gt_u32 s{sCNT}, s{sT2}')
        k('s_cbranch_scc1 L_fail')
        for rel, ins in checks(0):
            k(f's_waitcnt vmcnt({rel})')
            for x in ins: k(x)
        k(f's_cbranch_vccnz {lp}')
        body(0)
    k(f's_add_u32 s{sM}, s{sM}, {MEM_T}')
    k(f's_add_u32 s47, s47, {MEM_S}')
    k(f's_add_u32 s48, s{sM}, {MEM_S}')
    k(f's_add_u32 s49, s49, {MEM_T}')
    k(f's_add_u32 s{sP}, s{sP}, {PB_T}')
    k.nop(6)
    for r in range(4): k(f'v_permlane32_swap_b32 v{vD+r}, v{vD+4+r}')
    k(f'v_pk_add_f32 {vr(vD,2)}, {vr(vD,2)}, {vr(vD+4,2)}')
    k(f'v_pk_add_f32 {vr(vD+2,2)}, {vr(vD+2,2)}, {vr(vD+6,2)}')
    k.ds(f'ds_write_b128 v{vRW}, {vr(vD,4)}')
    k.wds0()
    k('s_barrier')
    if OPT['rep'] == 3:
        k(f's_cmp_ge_u32 s{sWAVE}, 2')
        k('s_cbranch_scc1 L_B_skip')
    R = vG
    for w in range(4): k.ds(f'ds_read2_b32 {vr(R+2*w,2)}, v{vRR} offset0:{0} offset1:{4}' if w == 0 else
                            f'ds_read2_b32 {vr(R+2*w,2)}, v{vRR2+w-1} offset0:0 offset1:4', f'r{w}')
    k(f's_cmp_eq_u32 s{sMODE}, 1')
    k.wds('r1')
    k(f'v_pk_add_f32 {vr(R,2)}, {vr(R,2)}, {vr(R+2,2)}')
    k.wds('r3')
    k(f'v_pk_add_f32 {vr(R+4,2)}, {vr(R+4,2)}, {vr(R+6,2)}')
    k(f'v_pk_add_f32 {vr(R,2)}, {vr(R,2)}, {vr(R+4,2)}')
    k(f'v_cvt_pk_bf16_f32 v{R}, v{R}, v{R+1}')
    k(f'v_min_u32 v{R}, -2, v{R}')
    publish(k, [f'buffer_store_dword v{R}, v{vL4}, {WS}, s{x} offen' for x in [sM, 48, 49]])
    k(f'v_mov_b32 v{vKeep}, v{R}')
    k(f's_cmp_lg_u32 s{sSTEP}, {NSTEP-1}')
    k('s_cbranch_scc1 L_B_skip2')
    k(f'buffer_store_dword v{R}, v{vL4}, {WS}, s47 offen sc1')
    k('s_branch L_B_skip2')
    k.label('L_B_skip')
    k('s_waitcnt vmcnt(0)')
    k.label('L_B_skip2')
    stamp(k, 3, stamps)
    k('s_barrier')
    k(f's_add_u32 s{sSTEP}, s{sSTEP}, 1')
    if stamps: k(f's_add_u32 s{sST}, s{sST}, 16')
    k('s_branch L_B_loop')
    k.label('L_B_end')
    edge(k, stamps, 8)
    for r in range(16): k(f'v_min_u32 v{vUm+r}, -2, v{vUm+r}')
    k(f's_add_u32 s44, s43, {28*1024}')
    for x in vm[:4]: k(x)
    k('s_waitcnt vmcnt(4)')
    k('s_barrier')
    k(f's_cmp_lg_u32 s{sWAVE}, 0')
    k('s_cbranch_scc1 L_exit')
    k('s_mov_b64 exec, 1')
    k(f'v_mov_b32 v{vC}, 1')
    k(f's_mov_b32 s{sT0}, {flag(F_UM + 62)}')
    k(f'buffer_atomic_add v{vC}, off, {WS}, s{sT0}')
    k('s_endpgm')
    k.flush_cold()

def role_P(k, wait_u=None):
    WS = f's[{SWS}:{SWS+3}]'
    vLane, vU, vX, vS, vD = 1, 2, 3, 4, 8
    D = OPT['pfd']; st = OPT['pfs']; sh = 7 if st == 128 else 6
    k.label('L_roleP')
    k(f's_mov_b32 s{sT2}, {POLL_LIMIT}')
    k(f's_sub_u32 s{sID}, s{sROLE}, 30')
    k(f's_lshl_b32 s{sID}, s{sID}, 2')
    k(f's_add_u32 s{sID}, s{sID}, s{sWAVE}')
    k(f'v_and_b32 v{vLane}, 63, v0')
    k(f'v_lshlrev_b32 v{vU}, {sh}, v{vLane}')
    k(f's_mul_i32 s40, s{sID}, {UF_SEG//8}')
    k(f'v_add_u32 v{vU}, s40, v{vU}')
    for reg, n in ((vX, 28), (vS, PB_T//1024), (vS+1, 7*NREP)):
        k(f'v_min_u32 v{reg}, {n-1}, v{vLane}')
        k(f's_mul_i32 s40, s{sID}, {n}')
        k(f'v_add_lshl_u32 v{reg}, v{reg}, s40, 7')
    k(f's_mov_b32 s{sSTEP}, 0')
    k(f's_mov_b32 s{sX}, {UF}')
    k(f's_mov_b32 s{sUM}, {XNS}')
    k(f's_mov_b32 s{sP}, {PB}')
    k(f's_mov_b32 s{sM}, {MEM + MEM_T}')
    k(f's_mov_b32 s41, {MEM - D*MEM_T + (NREP-1)*MEM_S}')
    if OPT['cpf']:
        k('s_getpc_b64 s[44:45]')
        k.label('L_P_pc')
        k('s_sub_u32 s44, s44, L_P_pc-L_roleA')
        k('s_subb_u32 s45, s45, 0')
        k(f's_lshl_b32 s40, s{sID}, 12')
        k(f'v_lshlrev_b32 v20, 6, v{vLane}')
        k('v_add_u32 v20, s40, v20')
        k('v_min_u32 v20, L_P_pc-L_roleA, v20')
        k('v_mov_b32 v21, s45')
        k('v_add_co_u32 v20, vcc, s44, v20')
        k('s_nop 1')
        k('v_addc_co_u32 v21, vcc, 0, v21, vcc')
        k('global_load_dword v22, v[20:21], off')
    k.label('L_P_loop')
    k(f's_cmp_le_u32 s{sSTEP}, {D}')
    k('s_cbranch_scc1 L_P_go')
    k(f's_mov_b32 s{sCNT}, 0')
    k.label('L_P_wait')
    k(f'buffer_load_dword v{vD}, off, {WS}, s41 sc1')
    k(f's_add_u32 s{sCNT}, s{sCNT}, 1')
    k(f's_cmp_gt_u32 s{sCNT}, s{sT2}')
    k('s_cbranch_scc1 L_fail')
    k('s_waitcnt vmcnt(0)')
    k(f'v_cmp_eq_u32 vcc, -1, v{vD}')
    k('s_cbranch_vccz L_P_go')
    k('s_sleep 2')
    k('s_branch L_P_wait')
    k.label('L_P_go')
    k(f'buffer_load_dword v{vD+1}, v{vS}, {WS}, s{sP} offen sc1')
    k(f'buffer_load_dword v{vD+2}, v{vS+1}, {WS}, s{sM} offen sc1')
    k(f'buffer_load_dword v{vD+3}, v{vX}, {WS}, s{sUM} offen sc1')
    n = 0 if OPT['apf'] else UF_SEG // 8 // (64*st)
    k(f's_mov_b32 s{sT0}, s{sX}')
    for j in range(n):
        k(f'buffer_load_dword v{vD+4+j}, v{vU}, {WS}, s{sT0} offen sc1')
        k(f's_add_u32 s{sT0}, s{sT0}, {64*st}')
    k(f's_add_u32 s{sX}, s{sX}, {UF_SEG}')
    k(f's_add_u32 s{sUM}, s{sUM}, 28672')
    k(f's_add_u32 s{sP}, s{sP}, {PB_T}')
    k(f's_add_u32 s{sM}, s{sM}, {MEM_T}')
    k(f's_add_u32 s41, s41, {MEM_T}')
    k(f's_add_u32 s{sSTEP}, s{sSTEP}, 1')
    k(f's_cmp_lt_u32 s{sSTEP}, {NSTEP}')
    k('s_cbranch_scc1 L_P_loop')
    k('s_waitcnt vmcnt(0)')
    k('s_endpgm')
```

```python
from chain import K, OPT
from asmlib import *
from layout import *
import math, struct

def f32bits(x): return struct.unpack('<I', struct.pack('<f', x))[0]
PREP_GRID, PREP_BLOCK, PREP_LDS = 256, 512, 3*43008

def srd(k, s, argoff, size):
    k(f's_load_dwordx2 s[{s}:{s+1}], s[0:1], {argoff}')
    k(f's_mov_b32 s{s+2}, {size}')
    k(f's_mov_b32 s{s+3}, 0x20000')

def gen_prep(tl=False):
    k = K()
    WS = 's[4:7]'
    k(f's_cmp_ge_u32 s2, {PREP_GRID}')
    k('s_cbranch_scc1 P_exit')
    srd(k, 4, 112, WS_SIZE)
    k('v_lshrrev_b32 v1, 6, v0')
    k('v_and_b32 v2, 63, v0')
    k('v_readfirstlane_b32 s16, v1')
    if tl: k('s_memrealtime s[40:41]')
    k('s_nop 2')
    if OPT['k1pf']:
        k('s_cmp_ge_u32 s16, 4')
        k('s_cbranch_scc1 P_nopf')
        k('s_lshl_b32 s44, s16, 3')
        k('s_add_u32 s44, s44, 16')
        k('s_load_dwordx2 s[56:57], s[0:1], s44')
        k('s_mov_b32 s58, 3670016')
        k('s_mov_b32 s59, 0x20000')
        k('v_lshlrev_b32 v190, 7, v2')
        k('s_mul_i32 s44, s2, 14336')
        k('s_add_u32 s45, s44, 6144')
        k('s_waitcnt lgkmcnt(0)')
        k('s_and_b32 s57, s57, 0xffff')
        k('buffer_load_dword v191, v190, s[56:59], s44 offen')
        k('buffer_load_dword v189, v190, s[56:59], s45 offen')
        k.label('P_nopf')
    k('s_cmp_eq_u32 s16, 7')
    k('s_cbranch_scc1 P_ln')
    k('s_and_b32 s19, s2, 15')
    k('s_bfe_u32 s18, s2, 0x10005')
    k('s_lshr_b32 s20, s2, 6')
    k('s_bitcmp1_b32 s2, 4')
    k('s_cbranch_scc1 P_gB0')
    srd(k, 8, 16, 3670016); srd(k, 12, 24, 3670016)
    k('s_branch P_g1')
    k.label('P_gB0')
    srd(k, 8, 32, 3670016); srd(k, 12, 40, 3670016)
    k.label('P_g1')
    vI, vG, vL16 = 3, 4, 5
    vR, vC, vRA, vCA, vt = 6, 10, 12, 16, 18
    vRAs, vCAs = 20, 24
    k(f'v_and_b32 v{vI}, 15, v2')
    k(f'v_lshrrev_b32 v{vG}, 4, v2')
    k(f'v_lshlrev_b32 v{vL16}, 4, v2')
    k('s_mul_i32 s21, s18, 7')
    k('s_add_u32 s21, s21, s16')
    k(f'v_lshrrev_b32 v{vt}, 3, v2')
    k('s_lshl_b32 s22, s21, 5')
    k(f'v_add_u32 v{vt}, s22, v{vt}')
    k(f'v_lshlrev_b32 v{vt}, 13, v{vt}')
    k('s_lshl_b32 s22, s19, 9')
    k(f'v_add_u32 v{vt}, s22, v{vt}')
    k(f'v_and_b32 v{vt+1}, 7, v2')
    k(f'v_and_b32 v26, 1, v{vG}')
    k(f'v_xor_b32 v{vt+1}, v{vt+1}, v26')
    for q in range(4):
        k(f'v_xor_b32 v26, {2*q}, v{vt+1}')
        k(f'v_lshl_add_u32 v{vR+q}, v26, 4, v{vt}')
        if q: k(f'v_add_u32 v{vR+q}, {q*8*8192}, v{vR+q}')
    k(f'v_lshrrev_b32 v{vt}, 2, v{vI}')
    k(f'v_bfe_u32 v{vt+1}, v{vI}, 1, 1')
    k(f'v_lshl_add_u32 v{vt+1}, v{vt}, 1, v{vt+1}')
    k(f'v_xor_b32 v{vt+1}, v{vt+1}, v{vG}')
    k(f'v_lshlrev_b32 v{vt+1}, 4, v{vt+1}')
    k(f'v_lshl_add_u32 v{vt+1}, v{vt}, 10, v{vt+1}')
    k(f'v_and_b32 v{vt}, 3, v{vI}')
    k(f'v_lshl_add_u32 v{vt+1}, v{vt}, 7, v{vt+1}')
    k('s_lshl_b32 s33, s16, 12')
    k(f'v_add_u32 v{vRA}, s33, v{vt+1}')
    k(f'v_xor_b32 v{vRA+1}, 64, v{vRA}')
    k('s_lshl_b32 s22, s18, 1')
    k('s_add_u32 s22, s22, s20')
    for j in range(4):
        k(f's_add_u32 s{24+j}, s22, {j}')
        k(f's_and_b32 s{24+j}, s{24+j}, 3')
    vAcc, vOp = 28, 84
    k('s_lshl_b32 s32, s16, 11')
    k('s_add_u32 s32, s32, 28672')
    def mm(n):
        o = vOp + 36*(n&1)
        for T in range(2):
            for ct in range(7):
                a = vAcc + 28*T + 4*ct
                k(f'v_mfma_f32_16x16x32_bf16 {vr(a,4)}, {vr(o+4*T,4)}, {vr(o+8+4*ct,4)}, {"0" if n == 0 else vr(a,4)}')
    def body(gstep, rdc, cdma):
        if tl == 2: k('s_memrealtime s[46:47]')
        k('s_waitcnt lgkmcnt(0)')
        if tl == 2: k('s_memrealtime s[48:49]')
        k('s_and_b32 s5, s5, 0xffff'); k('s_and_b32 s9, s9, 0xffff'); k('s_and_b32 s13, s13, 0xffff')
        k.vmq = []
        def issue(j):
            sb = (j % 3)*43008
            k(f's_lshl_b32 s36, s{24+j}, 7')
            k(f's_mul_i32 s35, s{24+j}, {gstep}')
            for q in range(4):
                k(f's_add_u32 s34, s33, {sb + q*1024}')
                k('s_mov_b32 m0, s34')
                k('s_nop 0')
                k.vm(f'buffer_load_dwordx4 v{vR+q}, s[8:11], s36 offen lds', j)
            cdma(sb, j)
        D = OPT['k1d']
        for j in range(D): issue(j)
        if tl == 2: k('s_memrealtime s[50:51]')
        def rd(n):
            j, es = n >> 1, n & 1
            o = vOp + 36*(n&1)
            for T in range(2): k(f'ds_read_b128 {vr(o+4*T,4)}, v{vRAs+es} offset:{T*512}')
            rdc(o + 8, es)
        for n in range(9):
            j = n >> 1
            if n < 8 and n % 2 == 0:
                sb = (j % 3)*43008
                k.wvm(j, extra='lgkmcnt(0)')
                k('s_barrier')
                if j + D < 4: issue(j + D)
                if tl == 1 and j in (0, 1, 3): k(f's_memrealtime s[{46+2*((j+1)//2)}:{47+2*((j+1)//2)}]')
                for e in range(2):
                    k(f'v_add_u32 v{vRAs+e}, {sb}, v{vRA+e}')
                    k(f'v_add_u32 v{vCAs+e}, {sb}, v{vCA+e}')
            if n < 8: rd(n)
            if n > 0:
                k(f's_waitcnt lgkmcnt({0 if (n == 8 or tl) else min(15, rdc.n + 2)})')
                mm(n-1)
    k('s_bitcmp1_b32 s2, 4')
    k('s_cbranch_scc1 P_gB')
    k('s_mul_i32 s22, s20, 7')
    k('s_add_u32 s22, s22, s16')
    k('s_lshr_b32 s23, s22, 1')
    k('s_lshl_b32 s23, s23, 5')
    k('s_and_b32 s22, s22, 1')
    k('s_lshl_b32 s22, s22, 3')
    k('s_add_u32 s22, s22, s23')
    k(f'v_bfe_u32 v{vt}, v2, 4, 1')
    k(f'v_lshlrev_b32 v{vt}, 2, v{vt}')
    k(f'v_bfe_u32 v{vt+1}, v2, 5, 1')
    k(f'v_lshl_add_u32 v{vt}, v{vt+1}, 1, v{vt}')
    k(f'v_bfe_u32 v{vt+1}, v2, 3, 1')
    k(f'v_add3_u32 v{vt}, v{vt}, v{vt+1}, s22')
    k(f'v_lshlrev_b32 v{vt}, 13, v{vt}')
    k('s_lshl_b32 s22, s19, 9')
    k(f'v_add_u32 v{vt}, s22, v{vt}')
    k(f'v_and_b32 v{vt+1}, 7, v2')
    k(f'v_xor_b32 v{vt+1}, v{vt+1}, v{vG}')
    k(f'v_lshl_add_u32 v{vC}, v{vt+1}, 4, v{vt}')
    k(f'v_xor_b32 v{vt+1}, 4, v{vt+1}')
    k(f'v_lshl_add_u32 v{vC+1}, v{vt+1}, 4, v{vt}')
    k(f'v_add_u32 v{vC+1}, {16*8192}, v{vC+1}')
    k(f'v_lshrrev_b32 v{vt}, 1, v{vI}')
    k(f'v_xor_b32 v{vt}, v{vt}, v{vG}')
    k(f'v_lshlrev_b32 v{vt}, 4, v{vt}')
    k(f'v_lshl_add_u32 v{vt}, v{vI}, 7, v{vt}')
    k(f'v_add_u32 v{vCA}, 28672, v{vt}')
    k(f'v_xor_b32 v{vCA+1}, 64, v{vCA}')
    def rdA(o, es):
        for ct in range(7): k(f'ds_read_b128 {vr(o+4*ct,4)}, v{vCAs+es} offset:{ct*2048}')
    rdA.n = 7
    def dmaA(sb, j):
        for hq in range(2):
            k(f's_add_u32 s34, s32, {sb + hq*1024}')
            k('s_mov_b32 m0, s34')
            k('s_nop 0')
            k.vm(f'buffer_load_dwordx4 v{vC+hq}, s[12:15], s35 offen lds', j)
    body(128, rdA, dmaA)
    k(f's_mov_b32 s22, {f32bits(math.log2(math.e)/16):#x}')
    k(f's_mov_b32 s23, {WTA}')
    k('s_branch P_gepi')
    k.label('P_gB')
    k(f's_mov_b32 s22, {(1<<32)//14 + 1}')
    k(f'v_mul_hi_u32 v{vt}, v0, s22')
    k(f'v_mul_u32_u24 v{vt+1}, 14, v{vt}')
    k(f'v_sub_u32 v{vt+1}, v0, v{vt+1}')
    k(f'v_mul_u32_u24 v{vt}, 896, v{vt}')
    k(f'v_lshl_add_u32 v{vt}, v{vt+1}, 4, v{vt}')
    k('s_mul_i32 s22, s19, 229376')
    k('s_mul_i32 s23, s20, 224')
    k('s_add_u32 s22, s22, s23')
    k(f'v_add_u32 v{vC}, s22, v{vt}')
    k(f'v_add_u32 v{vC+1}, {32*896}, v{vC}')
    k('s_lshl_b32 s32, s16, 10')
    k('s_add_u32 s32, s32, 28672')
    k(f'v_bfe_u32 v{vt}, v2, 2, 2')
    k(f'v_lshl_add_u32 v{vt}, v{vG}, 3, v{vt}')
    k(f'v_mul_u32_u24 v{vt}, 224, v{vt}')
    k(f'v_and_b32 v{vt+1}, 3, v2')
    k(f'v_lshl_add_u32 v{vt}, v{vt+1}, 3, v{vt}')
    k(f'v_add_u32 v{vCA}, 28672, v{vt}')
    k(f'v_add_u32 v{vCA+1}, 7168, v{vCA}')
    def rdB(o, es):
        for ct in range(7):
            for hh in range(2): k(f'ds_read_b64_tr_b16 {vr(o+4*ct+2*hh,2)}, v{vCAs+es} offset:{ct*32+hh*896}')
    rdB.n = 14
    def dmaB(sb, j):
        for hq in range(2):
            k(f's_add_u32 s34, s32, {sb + hq*7168}')
            k('s_mov_b32 m0, s34')
            k('s_nop 0')
            k.vm(f'buffer_load_dwordx4 v{vC+hq}, s[12:15], s35 offen lds', j)
    body(64*896, rdB, dmaB)
    k('s_mov_b32 s22, 1.0')
    k(f's_mov_b32 s23, {WTB}')
    k.label('P_gepi')
    if tl: k('s_memrealtime s[52:53]')
    k('s_mul_i32 s24, s19, 28')
    k('s_mul_i32 s25, s20, 7')
    k('s_add_u32 s24, s24, s25')
    k('s_mul_i32 s24, s24, 14')
    k('s_add_u32 s24, s24, s21')
    k('s_lshl_b32 s24, s24, 10')
    k('s_add_u32 s24, s24, s23')
    k('s_mov_b32 s23, s22')
    for ct in range(7):
        d = vOp + 4*ct
        for T in range(2):
            a = vAcc + 28*T + 4*ct
            k(f'v_pk_mul_f32 {vr(a,2)}, {vr(a,2)}, s[22:23]')
            k(f'v_pk_mul_f32 {vr(a+2,2)}, {vr(a+2,2)}, s[22:23]')
            k(f'v_cvt_pk_bf16_f32 v{d+2*T}, v{a}, v{a+1}')
            k(f'v_cvt_pk_bf16_f32 v{d+2*T+1}, v{a+2}, v{a+3}')
        k(f'buffer_store_dwordx4 {vr(d,4)}, v{vL16}, {WS}, s24 offen ' + OPT['k1st'])
        k('s_add_u32 s24, s24, 14336')
    if tl:
        k('s_waitcnt vmcnt(0)')
        k('s_memrealtime s[42:43]')
        k('s_lshl_b32 s44, s2, 5')
        k(f's_add_u32 s44, s44, {STAMP + 0xE0000}')
        k('s_waitcnt lgkmcnt(0)')
        k('v_mov_b32 v10, s40'); k('v_mov_b32 v11, s42'); k('v_mov_b32 v12, s46'); k('v_mov_b32 v13, s48')
        k('v_mov_b32 v14, s50'); k('v_mov_b32 v15, s52')
        k(f'buffer_store_dwordx4 v[10:13], off, {WS}, s44')
        k(f'buffer_store_dwordx2 v[14:15], off, {WS}, s44 offset:16')
    k('s_endpgm')
    k.label('P_ln')
    srd(k, 8, 0, 1835008); srd(k, 12, 64, 896)
    srd(k, 28, 8, 7168)
    k('s_mov_b32 s17, s2')
    k('v_lshrrev_b32 v3, 3, v2')
    k('s_lshl_b32 s18, s17, 3')
    k('v_add_u32 v3, s18, v3')
    k('v_and_b32 v4, 7, v2')
    k('v_mul_u32_u24 v5, 896, v3')
    k('v_lshl_add_u32 v5, v4, 4, v5')
    k('v_lshlrev_b32 v6, 4, v4')
    vX, vW, vF = 16, 44, 72
    k('s_waitcnt lgkmcnt(0)')
    k('s_and_b32 s5, s5, 0xffff'); k('s_and_b32 s9, s9, 0xffff'); k('s_and_b32 s13, s13, 0xffff')
    for i in range(7): k(f'buffer_load_dwordx4 {vr(vX+4*i,4)}, v5, s[8:11], 0 offen offset:{i*128}')
    for i in range(7): k(f'buffer_load_dwordx4 {vr(vW+4*i,4)}, v6, s[12:15], 0 offen offset:{i*128}')
    k('v_lshrrev_b32 v7, 4, v3')
    k('v_mul_u32_u24 v7, 14336, v7')
    k('v_and_b32 v8, 15, v3')
    k('v_lshl_add_u32 v7, v8, 4, v7')
    k('v_lshrrev_b32 v8, 2, v4')
    k('v_lshl_add_u32 v7, v8, 10, v7')
    k('v_and_b32 v8, 3, v4')
    k('v_lshl_add_u32 v9, v8, 8, v7')
    k('v_bfe_u32 v8, v4, 1, 1')
    k('v_lshl_add_u32 v10, v8, 9, v7')
    k('v_and_b32 v8, 1, v4')
    k('v_lshl_add_u32 v10, v8, 3, v10')
    k('s_mov_b32 s20, 0xffff0000')
    k('s_and_b32 s29, s29, 0xffff')
    k('v_bfe_u32 v12, v2, 2, 3')
    k('v_mul_u32_u24 v12, 896, v12')
    k('v_and_b32 v13, 3, v2')
    k('v_lshl_add_u32 v12, v13, 3, v12')
    k('v_lshrrev_b32 v13, 5, v2')
    k('v_lshl_add_u32 v12, v13, 2, v12')
    k('s_lshl_b32 s21, s2, 5')
    k('buffer_load_dword v160, v12, s[28:31], s21 offen')
    k('s_barrier')
    def fills():
        k('s_mov_b32 s32, s4'); k('s_mov_b32 s33, s5'); k(f's_mov_b32 s34, {SENT_END - MEM_S}'); k('s_mov_b32 s35, 0x20000')
        k('s_mov_b32 s36, s4'); k('s_mov_b32 s37, s5'); k(f's_mov_b32 s38, {FLG + FLG_SZ}'); k('s_mov_b32 s39, 0x20000')
        k('v_lshlrev_b32 v11, 4, v2')
        k('s_mul_i32 s21, s2, 10240')
        k(f's_add_u32 s21, s21, {MEM + MEM_T}')
        for r in range(4): k(f'v_mov_b32 v{164+r}, -1')
        for r in range(4): k(f'v_mov_b32 v{168+r}, 0')
        for r in range(10):
            k(f'buffer_store_dwordx4 v[164:167], v11, s[32:35], s21 offen offset:{(r&3)*1024} ' + OPT['k1ln'])
            if (r&3) == 3: k('s_add_u32 s21, s21, 4096')
        k('s_mul_i32 s21, s2, 12288')
        k(f's_add_u32 s21, s21, {PT}')
        for r in range(12):
            k(f'buffer_store_dwordx4 v[164:167], v11, {WS}, s21 offen offset:{(r&3)*1024} ' + OPT['k1ln'])
            if (r&3) == 3: k('s_add_u32 s21, s21, 4096')
        k(f's_mov_b32 s34, {UM + 64*UM_SEG}')
        k('s_lshl_b32 s21, s2, 10')
        k(f's_add_u32 s21, s21, {UM + 63*UM_SEG}')
        k('buffer_store_dwordx4 v[164:167], v11, s[32:35], s21 offen ' + OPT['k1ln'])
        k('s_lshl_b32 s21, s2, 10')
        k(f's_add_u32 s21, s21, {FLG}')
        k('buffer_store_dwordx4 v[168:171], v11, s[36:39], s21 offen ' + OPT['k1ln'])
    late = OPT['k1late']
    if not late: fills()
    k(f's_waitcnt vmcnt({8 if late else 32})')
    for d in range(28):
        k(f'v_lshlrev_b32 v{vF+2*d}, 16, v{vX+d}')
        k(f'v_and_b32 v{vF+2*d+1}, s20, v{vX+d}')
    def red8(v):
        for ctl in ('quad_perm:[1,0,3,2]', 'quad_perm:[2,3,0,1]', 'row_half_mirror'):
            k.nop(2)
            k(f'v_add_f32_dpp v{v}, v{v}, v{v} {ctl} row_mask:0xf bank_mask:0xf')
    def rbf(v):
        k(f'v_cvt_pk_bf16_f32 v{v}, v{v}, v{v}')
        k(f'v_and_b32 v{v}, s20, v{v}')
    k(f'v_pk_add_f32 v[12:13], {vr(vF,2)}, {vr(vF+2,2)}')
    for d in range(2, 28): k(f'v_pk_add_f32 v[12:13], v[12:13], {vr(vF+2*d,2)}')
    k('v_add_f32 v12, v12, v13')
    k('s_barrier')
    red8(12)
    k(f's_mov_b32 s21, {f32bits(1/448):#x}')
    k('v_mul_f32 v12, s21, v12')
    k('v_mov_b32 v14, 0'); k('v_mov_b32 v15, 0')
    for d in range(28):
        k(f'v_pk_add_f32 {vr(vX,2)}, {vr(vF+2*d,2)}, v[12:13] op_sel_hi:[1,0] neg_lo:[0,1] neg_hi:[0,1]')
        k(f'v_pk_fma_f32 v[14:15], {vr(vX,2)}, {vr(vX,2)}, v[14:15]')
    k('v_add_f32 v14, v14, v15')
    red8(14)
    k('v_mul_f32 v14, s21, v14')
    rbf(14)
    k(f'v_add_f32 v14, {f32bits(1e-5):#x}, v14')
    rbf(14)
    k('v_sqrt_f32 v14, v14')
    k.nop(1)
    rbf(14)
    k('v_rcp_f32 v15, v14')
    rbf(12)
    k(f's_waitcnt vmcnt({0 if late else 24})')
    k('v_mov_b32 v128, 0'); k('v_mov_b32 v129, 0')
    vO, vS = vX, 132
    for d in range(28):
        f = vF + 2*d
        k(f'v_pk_add_f32 {vr(f,2)}, {vr(f,2)}, v[12:13] op_sel_hi:[1,0] neg_lo:[0,1] neg_hi:[0,1]')
        k(f'v_cvt_pk_bf16_f32 v130, v{f}, v{f+1}')
        k(f'v_lshlrev_b32 v{f}, 16, v130')
        k(f'v_and_b32 v{f+1}, s20, v130')
        k(f'v_pk_mul_f32 v[130:131], {vr(f,2)}, v[14:15] op_sel:[0,1] op_sel_hi:[1,1]')
        k(f'v_pk_fma_f32 {vr(f,2)}, v[130:131], v[14:15], {vr(f,2)} op_sel_hi:[1,0,1] neg_lo:[1,0,0] neg_hi:[1,0,0]')
        k(f'v_pk_fma_f32 v[130:131], {vr(f,2)}, v[14:15], v[130:131] op_sel:[0,1,0] op_sel_hi:[1,1,1]')
        k(f'v_cvt_pk_bf16_f32 v{vO+d}, v130, v131')
        so = vS + 4*(d>>2) + {0:0, 1:2, 2:1, 3:3}[d&3]
        k(f'v_mov_b32 v{so}, v{vO+d}')
        k(f'v_dot2_f32_bf16 v{128+(d&1)}, v{vO+d}, v{vW+d}, v{128+(d&1)}')
        if d in (3, 15): k('s_barrier')
    k(f's_mov_b32 s22, {XNR}'); k(f's_mov_b32 s23, {XNF}'); k(f's_mov_b32 s24, {XNS}')
    for i in range(7):
        k(f'buffer_store_dwordx4 {vr(vO+4*i,4)}, v5, {WS}, s22 offen offset:{i*128} ' + OPT['k1ln'])
        k(f'buffer_store_dwordx4 {vr(vO+4*i,4)}, v9, {WS}, s23 offen offset:{(i&1)*2048} ' + OPT['k1ln'])
        k(f'buffer_store_dwordx2 {vr(vS+4*i,2)}, v10, {WS}, s24 offen offset:{(i&1)*2048} ' + OPT['k1ln'])
        k(f'buffer_store_dwordx2 {vr(vS+4*i+2,2)}, v10, {WS}, s24 offen offset:{(i&1)*2048+256} ' + OPT['k1ln'])
        if i & 1:
            k('s_add_u32 s23, s23, 4096'); k('s_add_u32 s24, s24, 4096')
    if late: fills()
    k.nop(2)
    k('v_add_f32 v128, v128, v129')
    red8(128)
    rbf(128)
    k('v_lshlrev_b32 v3, 2, v3')
    k(f's_mov_b32 s22, {RR}')
    k(f'buffer_store_dword v128, v3, {WS}, s22 offen ' + OPT['k1ln'])
    if tl:
        k('s_waitcnt vmcnt(0)')
        k('s_memrealtime s[42:43]')
        k('s_lshl_b32 s44, s2, 5')
        k(f's_add_u32 s44, s44, {STAMP + 0xE0000}')
        k('s_waitcnt lgkmcnt(0)')
        k('v_mov_b32 v10, s42')
        k(f'buffer_store_dword v10, off, {WS}, s44 offset:24')
    k('s_cmp_ge_u32 s2, 28')
    k('s_cbranch_scc1 P_exit')
    k('v_min_u32 v160, -2, v160')
    k('v_lshlrev_b32 v11, 2, v2')
    k('s_lshl_b32 s21, s2, 8')
    k(f's_add_u32 s22, s21, {MEM}')
    k(f's_add_u32 s21, s21, {SENT_END - MEM_S}')
    for r in range(NREP):
        k(f'buffer_store_dword v160, v11, {WS}, s22 offen ' + OPT['k1ln'])
        k(f's_add_u32 s22, s22, {MEM_S}')
    k(f'buffer_store_dword v160, v11, {WS}, s21 offen ' + OPT['k1ln'])
    k.label('P_exit')
    k('s_endpgm')
    return k
```

```python
from chain import *
from prep import srd, f32bits
WS = 's[4:7]'
sH, sBLK, sSEG, sQT, sCG, sJ = 60, 61, 62, 63, 64, 65
vLn, vL16 = 1, 2

def wait_flag(k, off_sgpr, target, vT, name='Lwf', sleep=8):
    lp, dn = k.newlabel(name), k.newlabel(name + 'd')
    k(f's_mov_b32 s{sCNT}, 0')
    k.label(lp)
    k(f'buffer_load_dword v{vT}, off, {WS}, s{off_sgpr} sc1')
    k(f's_add_u32 s{sCNT}, s{sCNT}, 1')
    k(f's_cmp_gt_u32 s{sCNT}, s{sT2}')
    k('s_cbranch_scc1 L_fail')
    k('s_waitcnt vmcnt(0)')
    k(f'v_cmp_le_u32 vcc, {target}, v{vT}')
    k(f's_cbranch_vccnz {dn}')
    k(f's_sleep {sleep}')
    k(f's_branch {lp}')
    k.label(dn)

def wait1(k, off_sgpr, cond, vT, sleep, fast=None):
    lp, dn, l2 = k.newlabel('Lw1'), k.newlabel('Lw1d'), k.newlabel('Lw1f')
    k(f's_cmp_lg_u32 s{sWAVE}, 0')
    k(f's_cbranch_scc1 {dn}')
    k(f's_mov_b32 s{sCNT}, 0')
    k.label(lp)
    k(f'buffer_load_dword v{vT}, off, {WS}, s{off_sgpr} sc1')
    k(f's_add_u32 s{sCNT}, s{sCNT}, 1')
    k(f's_cmp_gt_u32 s{sCNT}, s{sT2}')
    k('s_cbranch_scc1 L_fail')
    k('s_waitcnt vmcnt(0)')
    k(cond)
    k(f's_cbranch_vccnz {dn}')
    if fast:
        k('s_sleep 2')
        k(fast)
        k(f's_cbranch_scc1 {lp}')
    k(f's_sleep {sleep}')
    k(f's_branch {lp}')
    k.label(dn)
    k('s_barrier')

def signal(k, off_sgpr, vT, val=1):
    dn = k.newlabel('Lsg')
    k('s_waitcnt vmcnt(0)')
    k('s_barrier')
    k(f's_cmp_lg_u32 s{sWAVE}, 0')
    k(f's_cbranch_scc1 {dn}')
    k('s_mov_b64 exec, 1')
    k(f'v_mov_b32 v{vT}, {val}')
    k(f'buffer_atomic_add v{vT}, off, {WS}, s{off_sgpr}')
    k('s_mov_b64 exec, -1')
    k.label(dn)

TL = [False]
ACC0 = 32
def acc(lt, tt): return ACC0 + 4*(lt*8 + tt)

def gemm(k, wbase, swap, ntt=8):
    vW = 8
    vXa = 15
    k.vmq = []
    nst = ntt // 4
    k(f's_mul_i32 s41, s{sWAVE}, {14336*nst}')
    k(f's_mul_i32 s40, s{sBLK}, {14336*ntt}')
    k(f's_add_u32 s40, s40, s41')
    k(f's_add_u32 s40, s40, {XNF}')
    k(f's_mul_i32 s42, s{sH}, {28*14336}')
    k(f's_mul_i32 s43, s{sWAVE}, {7*14336}')
    k(f's_add_u32 s42, s42, s43')
    k(f's_add_u32 s42, s42, {wbase}')
    for j in range(14):
        k(f's_add_u32 s{76+j}, s59, {j}')
        k(f's_sub_u32 s43, s{76+j}, 14')
        k(f's_cmp_ge_u32 s{76+j}, 14')
        k(f's_cselect_b32 s{76+j}, s43, s{76+j}')
        k(f's_lshl_b32 s{76+j}, s{76+j}, 10')
    for lt in range(7): k(f'v_add_u32 v{vW+lt}, {lt*14336}, v{vL16}')
    k(f'v_add_u32 v17, 14336, v{vL16}')
    k('s_barrier')
    def stx(j, t):
        k(f's_add_u32 s43, s41, s{76+j}')
        if t: k('s_add_u32 s43, s43, 14336')
        k('s_mov_b32 m0, s43')
        k(f's_add_u32 s44, s40, s{76+j}')
        k.vm(f'buffer_load_dwordx4 v{17 if t else vL16}, {WS}, s44 offen lds', f'x{j}')
    def ldw(j, lt):
        if lt == 0: k(f's_add_u32 s45, s42, s{76+j}')
        k.vm(f'buffer_load_dwordx4 {ar(28*(j%3)+4*lt,4)}, v{vW+lt}, {WS}, s45 offen', f'w{j}')
    def xaddr(j):
        k(f'v_add_u32 v{vXa}, s{76+j}, v{vL16}')
        k(f'v_add_u32 v{vXa+1}, 57344, v{vXa}')
    def ldx(j, tt): k(f'ds_read_b128 {ar(84+32*(j&1)+4*tt,4)}, v{vXa + (tt>>2)} offset:{(tt&3)*14336}')
    for j in range(2):
        for t in range(nst): stx(j, t)
        for lt in range(7): ldw(j, lt)
    for j in (2, 3):
        for t in range(nst): stx(j, t)
    xaddr(0)
    k.wvm('x0')
    k('s_barrier')
    if TL[0] and not swap:
        tstamp(k, 57, 12, 18); k.vmq.append('st')
    for tt in range(ntt): ldx(0, tt)
    for j in range(14):
        if j + 1 < 14: xaddr(j+1)
        k.wvm(f'w{j}', f'x{j+1}', extra='lgkmcnt(0)')
        if j + 1 < 14: k('s_barrier')
        for tt in range(ntt):
            for lt in range(7):
                x, w = ar(84+32*(j&1)+4*tt,4), ar(28*(j%3)+4*lt,4)
                a, b = (w, x) if swap else (x, w)
                c = '0' if j == 0 else vr(acc(lt,tt),4)
                k(f'v_mfma_f32_16x16x32_bf16 {vr(acc(lt,tt),4)}, {a}, {b}, {c}')
                if lt == 1 and j + 1 < 14: ldx(j+1, tt)
                if ntt == 8:
                    if lt == 3 and tt < 2 and j + 4 < 14: stx(j+4, tt)
                    if lt == 5 and tt >= 1 and j + 2 < 14: ldw(j+2, tt-1)
                else:
                    if lt == 3 and tt == 0 and j + 4 < 14: stx(j+4, 0)
                    if lt in (3, 5) and (tt, lt) != (0, 3) and j + 2 < 14: ldw(j+2, 2*tt + (lt == 5) - 1)

def task_U(k, half=False):
    nq = 2 if half else 4
    k.label('T_Uh' if half else 'T_U')
    k(f's_mul_i32 s59, s{sBLK}, 7' if half else f's_min_u32 s59, s{sBLK}, 13')
    gemm(k, WTB, False, 2*nq)
    if TL[0]: tstamp(k, 57, 8, 16)
    k(f's_mul_i32 s40, s{sBLK}, {nq*UF_SEG}')
    k(f's_lshl_b32 s41, s{sH}, 11')
    k(f's_add_u32 s40, s40, s41')
    k(f's_add_u32 s40, s40, {UF}')
    k(f's_mul_i32 s41, s{sWAVE}, 7')
    for lt in range(7):
        k(f's_add_u32 s42, s41, {lt}')
        k(f's_lshr_b32 s43, s42, 1')
        k(f's_lshl_b32 s43, s43, 15')
        k(f's_and_b32 s42, s42, 1')
        k(f's_lshl_b32 s42, s42, 10')
        k(f's_add_u32 s{44+lt}, s40, s43')
        k(f's_add_u32 s{44+lt}, s{44+lt}, s42')
    if OPT['uwin'] and not half:
        lw = k.newlabel('Luw')
        k(f"s_cmp_lt_u32 s{sBLK}, {OPT['uwin']}")
        k(f's_cbranch_scc1 {lw}')
        k(f's_lshl_b32 s40, s{sBLK}, 7')
        k(f"s_add_u32 s40, s40, {flag(F_U) - 128*OPT['uwin']}")
        wait1(k, 40, 'v_cmp_le_u32 vcc, 32, v16', 16, 8)
        k.label(lw)
    for q in range(nq):
        for lt in range(7):
            a, b = acc(lt, 2*q), acc(lt, 2*q+1)
            k(f'v_cvt_pk_bf16_f32 v{a}, v{a}, v{a+1}')
            k(f'v_cvt_pk_bf16_f32 v{a+1}, v{a+2}, v{a+3}')
            k(f'v_cvt_pk_bf16_f32 v{a+2}, v{b}, v{b+1}')
            k(f'v_cvt_pk_bf16_f32 v{a+3}, v{b+2}, v{b+3}')
            k(f'buffer_store_dwordx4 {vr(a,4)}, v{vL16}, {WS}, s{44+lt} offen ' + OPT['ust'])
            k(f's_add_u32 s{44+lt}, s{44+lt}, {UF_SEG}')
    if half: k(f's_mov_b32 s40, {flag(F_U)}')
    else:
        k(f's_lshl_b32 s40, s{sBLK}, 7')
        k(f's_add_u32 s40, s40, {flag(F_U)}')
    signal(k, 40, 3, 1 if half else 2)
    k('s_branch W_next')

def xlane_red(k, op, m, t):
    for sw in ('v_permlane16_swap_b32', 'v_permlane32_swap_b32'):
        k(f'v_mov_b32 v{t}, v{m}')
        k.nop(2)
        k(f'{sw} v{m}, v{t}')
        k(f'{op} v{m}, v{m}, v{t}')

def task_P(k):
    k.label('T_P')
    k(f's_min_u32 s59, s{sBLK}, 13')
    gemm(k, WTA, True)
    vE, vO, vG, vI, vMK, vT = 16, 17, 18, 19, 20, 21
    k(f's_mul_i32 s40, s{sWAVE}, 7')
    k(f's_lshr_b32 s40, s40, 1')
    k(f's_lshl_b32 s40, s40, 10')
    k(f's_and_b32 s41, s{sWAVE}, 1')
    k(f's_lshl_b32 s42, s41, 3')
    k(f's_add_u32 s42, s42, s40')
    k(f's_mul_i32 s43, s41, 1016')
    k(f's_add_u32 s43, s43, 8')
    k(f's_add_u32 s43, s43, s40')
    k(f'v_add_u32 v{vE}, s42, v{vL16}')
    k(f'v_add_u32 v{vO}, s43, v{vL16}')
    k(f'v_add_u32 v{vT}, 57344, v{vE}')
    k(f'v_add_u32 v{vT+1}, 57344, v{vO}')
    k('s_barrier')
    for tt in range(8):
        for lt in range(7):
            a = acc(lt, tt)
            k(f'v_cvt_pk_bf16_f32 v{a}, v{a}, v{a+1}')
            k(f'v_cvt_pk_bf16_f32 v{a+1}, v{a+2}, v{a+3}')
            ad = (vE if lt % 2 == 0 else vO) if tt < 4 else (vT if lt % 2 == 0 else vT+1)
            k(f'ds_write_b64 v{ad}, {vr(a,2)} offset:{(tt&3)*14336 + (lt>>1)*1024}')
    k(f's_lshl_b32 s{sSEG}, s{sBLK}, 2')
    k(f's_add_u32 s{sSEG}, s{sSEG}, s{sWAVE}')
    k(f's_mul_i32 s40, s{sSEG}, 28672')
    k(f's_add_u32 s40, s40, {XNS}')
    vKT, vKM, vS = 32, 144, 200
    k('s_waitcnt lgkmcnt(0)')
    for f in range(28):
        k(f'buffer_load_dwordx4 {vr(vKT+4*f,4)}, v{vL16}, {WS}, s40 offen offset:{(f&3)*1024}')
        if (f&3) == 3: k('s_add_u32 s40, s40, 4096')
    k('s_barrier')
    k(f's_mul_i32 s41, s{sWAVE}, 28672')
    k(f'v_add_u32 v{vT}, s41, v{vL16}')
    for f in range(28): k(f'ds_read_b128 {ar(4*f,4)}, v{vT} offset:{f*1024}')
    k(f'v_lshrrev_b32 v{vG}, 4, v{vLn}')
    k(f'v_and_b32 v{vI}, 15, v{vLn}')
    k(f'v_lshrrev_b32 v{vMK}, 1, v{vG}')
    k(f'v_lshlrev_b32 v{vMK}, 8, v{vMK}')
    k(f'v_and_b32 v{vT}, 7, v{vI}')
    k(f'v_lshl_add_u32 v{vMK}, v{vT}, 4, v{vMK}')
    k(f'v_and_b32 v{vT}, 1, v{vG}')
    k(f'v_lshl_add_u32 v{vMK}, v{vT}, 7, v{vMK}')
    k(f'v_lshlrev_b32 v{vT}, 2, v{vG}')
    for r in range(4):
        k(f'v_cmp_gt_u32 s[{44+2*r}:{45+2*r}], v{vT}, v{vI}')
        if r < 3: k(f'v_add_u32 v{vT}, 1, v{vT}')
    k(f'v_cmp_gt_u32 s[52:53], 2, v{vG}')
    St = {(1,0): vS, (1,1): vS+4, (2,1): vS+8, (0,0): vS+12, (0,1): vS+16}
    k('s_waitcnt vmcnt(0) lgkmcnt(0)')
    for ks in range(14):
        for (kt, qt) in ((1,0), (1,1), (2,1)):
            c = '0' if ks == 0 else vr(St[kt,qt],4)
            k(f'v_mfma_f32_16x16x32_bf16 {vr(St[kt,qt],4)}, {vr(vKT+56*(kt-1)+4*ks,4)}, {ar(56*qt+4*ks,4)}, {c}')
    if TL[0]: tstamp(k, 57, 8, vT)
    k(f's_add_u32 s40, s{sSEG}, 63')
    k(f's_and_b32 s40, s40, 63')
    k(f's_mul_i32 s40, s40, {MEM_S}')
    k(f's_add_u32 s40, s40, {MEMX}')
    k(f's_add_u32 s41, s40, 4096')
    lp, dn = k.newlabel('Lpm'), k.newlabel('Lpd')
    k(f's_mov_b32 s{sCNT}, 0')
    k.label(lp)
    for ks in range(14):
        k(f'buffer_load_dwordx4 {vr(vKM+4*ks,4)}, v{vMK}, {WS}, s{40 if ks < 8 else 41} offen offset:{(ks&7)*512} sc1')
    k(f's_add_u32 s{sCNT}, s{sCNT}, 1')
    k(f's_cmp_gt_u32 s{sCNT}, s{sT2}')
    k('s_cbranch_scc1 L_fail')
    k('s_waitcnt vmcnt(0)')
    k(f'v_max3_u32 v{vT}, v{vKM}, v{vKM+1}, v{vKM+2}')
    for r in range(3, 55, 2): k(f'v_max3_u32 v{vT}, v{vT}, v{vKM+r}, v{vKM+r+1}')
    k(f'v_max_u32 v{vT}, v{vT}, v{vKM+55}')
    k(f'v_cmp_eq_u32 vcc, -1, v{vT}')
    k(f's_cbranch_vccz {dn}')
    l2 = k.newlabel('Lpl')
    k.label(l2)
    k('s_sleep 2')
    k(f's_cmp_ge_u32 s{sSEG}, 60')
    k(f's_cbranch_scc1 {l2}f')
    k(f"s_sleep {OPT['msl']}")
    k.label(l2 + 'f')
    k(f'buffer_load_dword v{vT}, v{vMK}, {WS}, s41 offen offset:2560 sc1')
    k(f's_add_u32 s{sCNT}, s{sCNT}, 1')
    k(f's_cmp_gt_u32 s{sCNT}, s{sT2}')
    k('s_cbranch_scc1 L_fail')
    k('s_waitcnt vmcnt(0)')
    k(f'v_cmp_eq_u32 vcc, -1, v{vT}')
    k(f's_cbranch_vccnz {l2}')
    k(f's_branch {lp}')
    k.label(dn)
    if TL[0]: tstamp(k, 57, 12, vT)
    for ks in range(14):
        for qt in range(2):
            c = '0' if ks == 0 else vr(St[0,qt],4)
            k(f'v_mfma_f32_16x16x32_bf16 {vr(St[0,qt],4)}, {vr(vKM+4*ks,4)}, {ar(56*qt+4*ks,4)}, {c}')
    k(f's_mul_i32 s40, s{sSEG}, {PT_SEG}')
    k(f's_add_u32 s40, s40, {PT}')
    k(f's_lshl_b32 s41, s{sH}, 11')
    k(f's_add_u32 s41, s41, s40')
    k(f's_lshr_b32 s42, s{sH}, 1')
    k(f's_lshl_b32 s42, s42, 11')
    k(f's_and_b32 s43, s{sH}, 1')
    k(f's_lshl_b32 s43, s43, 2')
    k(f's_add_u32 s42, s42, s43')
    k(f's_add_u32 s42, s42, s40')
    k(f's_add_u32 s42, s42, 32768')
    k(f'v_mov_b32 v{vT+2}, 0xff800000')
    k.nop(2)
    for d in ((1,0), (2,1)):
        for r in range(4):
            k(f'v_cndmask_b32 v{St[d]+r}, v{St[d]+r}, v{vT+2}, s[{44+2*r}:{45+2*r}]')
    for qt in range(2):
        tiles = [St[0,qt], St[1,qt]] + ([St[2,1]] if qt else [])
        regs = [t + r for t in tiles for r in range(4)]
        m, t, l = 24, 26, 28
        k(f'v_max3_f32 v{m}, v{regs[0]}, v{regs[1]}, v{regs[2]}')
        for i in range(3, len(regs) - 1, 2): k(f'v_max3_f32 v{m}, v{m}, v{regs[i]}, v{regs[i+1]}')
        k(f'v_max_f32 v{m}, v{m}, v{regs[-1]}')
        xlane_red(k, 'v_max_f32', m, t)
        for i in range(0, len(regs), 2):
            k(f'v_pk_add_f32 {vr(regs[i],2)}, {vr(regs[i],2)}, {vr(m,2)} op_sel_hi:[1,0] neg_lo:[0,1] neg_hi:[0,1]')
        for r in regs: k(f'v_exp_f32 v{r}, v{r}')
        k.nop(1)
        k(f'v_pk_add_f32 {vr(l,2)}, {vr(regs[0],2)}, {vr(regs[2],2)}')
        k(f'v_add_f32 v{l}, v{l}, v{l+1}')
        k(f'v_cndmask_b32 v{l}, 0, v{l}, s[52:53]')
        k(f'v_mov_b32 v{l+1}, 0')
        for i in range(4, len(regs), 2): k(f'v_pk_add_f32 {vr(l,2)}, {vr(l,2)}, {vr(regs[i],2)}')
        k(f'v_add_f32 v{l}, v{l}, v{l+1}')
        xlane_red(k, 'v_add_f32', l, t)
        k(f'v_rcp_f32 v{l}, v{l}')
        k.nop(1)
        for i in range(0, len(regs), 2):
            k(f'v_pk_mul_f32 {vr(regs[i],2)}, {vr(regs[i],2)}, {vr(l,2)} op_sel_hi:[1,0]')
        o = 220 + 8*qt
        k(f'v_cvt_pk_bf16_f32 v{o}, v{regs[4]}, v{regs[5]}')
        k(f'v_cvt_pk_bf16_f32 v{o+1}, v{regs[6]}, v{regs[7]}')
        if qt:
            k(f'v_cvt_pk_bf16_f32 v{o+2}, v{regs[8]}, v{regs[9]}')
            k(f'v_cvt_pk_bf16_f32 v{o+3}, v{regs[10]}, v{regs[11]}')
        else:
            k(f'v_mov_b64 {vr(o+2,2)}, 0')
        k(f'v_cvt_pk_bf16_f32 v{o+4}, v{regs[0]}, v{regs[1]}')
        k(f'v_cvt_pk_bf16_f32 v{o+5}, v{regs[2]}, v{regs[3]}')
        for r in range(6):
            if qt or r not in (2, 3): k(f'v_min_u32 v{o+r}, -2, v{o+r}')
        k(f'buffer_store_dwordx4 {vr(o,4)}, v{vL16}, {WS}, s41 offen offset:{qt*1024} sc1')
        k(f'buffer_store_dword v{o+4}, v{vL16}, {WS}, s42 offen offset:{qt*1024} sc1')
        k(f'buffer_store_dword v{o+5}, v{vL16}, {WS}, s42 offen offset:{qt*1024+8} sc1')
    k('s_branch W_next')

def rbf(k, v, sMaskHi):
    k(f'v_cvt_pk_bf16_f32 v{v}, v{v}, v{v}')
    k(f'v_and_b32 v{v}, s{sMaskHi}, v{v}')

def task_V(k):
    k.label('T_V')
    vU, vUM, vP, vD, vT = 32, 96, 128, 152, 16
    k(f's_lshr_b32 s{sBLK}, s{sSEG}, 2')
    k(f's_lshl_b32 s40, s{sBLK}, 7')
    k(f's_add_u32 s40, s40, {flag(F_U)}')
    wait1(k, 40, f'v_cmp_le_u32 vcc, 32, v{vT}', vT, 16)
    k(f's_mul_i32 s40, s{sSEG}, {UF_SEG}')
    k(f's_lshl_b32 s41, s{sCG}, 16')
    k(f's_add_u32 s40, s40, s41')
    k(f's_lshl_b32 s41, s{sWAVE}, 13')
    k(f's_add_u32 s40, s40, s41')
    k(f's_add_u32 s40, s40, {UF}')
    for bb in range(2):
        for hp in range(2):
            k(f's_add_u32 s41, s40, {bb*32768 + hp*4096}')
            for f in range(4):
                hh, T = 2*hp + (f>>1), f&1
                k(f'buffer_load_dwordx4 {vr(vU+16*(2*bb+T)+4*hh,4)}, v{vL16}, {WS}, s41 offen offset:{f*1024} sc1')
    srd(k, 68, 0, 1835008); srd(k, 72, 96, 1835008)
    vRow, vOff = vT+1, vT+2
    k(f's_lshl_b32 s42, s{sSEG}, 5')
    k(f's_lshl_b32 s43, s{sQT}, 4')
    k(f's_add_u32 s42, s42, s43')
    k(f'v_and_b32 v{vRow}, 15, v{vLn}')
    k(f'v_add_u32 v{vRow}, s42, v{vRow}')
    k(f'v_mul_u32_u24 v{vOff}, 896, v{vRow}')
    k(f'v_lshrrev_b32 v{vT+3}, 4, v{vLn}')
    k(f's_lshl_b32 s42, s{sCG}, 7')
    k(f's_lshl_b32 s43, s{sWAVE}, 5')
    k(f's_add_u32 s42, s42, s43')
    k(f'v_lshl_add_u32 v{vT+3}, v{vT+3}, 3, s42')
    k(f'v_add_u32 v{vOff}, v{vOff}, v{vT+3}')
    k(f's_mov_b32 s43, {XNR}')
    k('s_waitcnt lgkmcnt(0)')
    k('s_and_b32 s69, s69, 0xffff'); k('s_and_b32 s73, s73, 0xffff')
    vXr, vXn = vT+4, vT+6
    k(f'buffer_load_dwordx2 {vr(vXr,2)}, v{vOff}, s[68:71], 0 offen')
    k(f'buffer_load_dwordx2 {vr(vXn,2)}, v{vOff}, {WS}, s43 offen')
    k(f's_mov_b32 s40, {flag(F_M2)}')
    wait1(k, 40, f'v_cmp_le_u32 vcc, 28, v{vT}', vT, 16)
    vIx = 168
    k(f's_mov_b32 s40, {IDX}')
    for j in range(4): k(f'buffer_load_dwordx4 {vr(vIx+4*j,4)}, off, {WS}, s40 offset:{16*j} sc1')
    vSel, vSig, vY = 184, 185, 188
    k(f'v_mov_b32 v{vSel}, 0x40000000')
    k(f'v_mov_b32 v{vSig}, 0')
    k('s_waitcnt vmcnt(0)')
    for j in range(8):
        k(f'v_cmp_eq_u32 vcc, v{vIx+j}, v{vRow}')
        k(f'v_mov_b32 v{vT}, {j*1792}')
        k('s_nop 0')
        k(f'v_cndmask_b32 v{vSel}, v{vSel}, v{vT}, vcc')
        k(f'v_cndmask_b32 v{vSig}, v{vSig}, v{vIx+8+j}, vcc')
    k(f'v_lshl_add_u32 v{vSel}, v{vT+3}, 1, v{vSel}')
    for q in range(4):
        k(f's_mov_b32 s40, {UPD + q*14336}')
        k(f'buffer_load_dwordx4 {vr(vY+4*q,4)}, v{vSel}, {WS}, s40 offen sc1')
    k(f's_add_u32 s40, s{sSEG}, 63')
    k(f's_and_b32 s40, s40, 63')
    k(f's_mul_i32 s40, s40, {MEM_S}')
    k(f's_add_u32 s40, s40, {MEMX}')
    wait1(k, 40, f'v_cmp_ne_u32 vcc, -1, v{vT}', vT, OPT['vsl'], f's_cmp_ge_u32 s{sSEG}, 60')
    k(f's_mov_b32 s{sCNT}, 0')
    k(f's_mul_i32 s40, s{sSEG}, {PT_SEG}')
    k(f's_lshl_b32 s41, s{sQT}, 10')
    k(f's_add_u32 s40, s40, s41')
    k(f's_add_u32 s40, s40, {PT}')
    k(f's_lshl_b32 s41, s{sWAVE}, 13')
    k(f's_add_u32 s41, s41, s40')
    k(f's_add_u32 s42, s41, 4096')
    k(f's_lshl_b32 s43, s{sWAVE}, 12')
    k(f's_add_u32 s43, s43, s40')
    k(f's_add_u32 s43, s43, 32768')
    lp, dn = k.newlabel('Lvp'), k.newlabel('Lvq')
    k.label(lp)
    for hh in range(4):
        k(f'buffer_load_dwordx4 {vr(vP+4*hh,4)}, v{vL16}, {WS}, s{41 if hh<2 else 42} offen offset:{(hh&1)*2048} sc1')
    for u in range(2):
        k(f'buffer_load_dwordx4 {vr(vP+16+4*u,4)}, v{vL16}, {WS}, s43 offen offset:{u*2048} sc1')
    k(f's_add_u32 s{sCNT}, s{sCNT}, 1')
    k(f's_cmp_gt_u32 s{sCNT}, s{sT2}')
    k('s_cbranch_scc1 L_fail')
    k('s_waitcnt vmcnt(0)')
    k(f'v_max3_u32 v{vT}, v{vP}, v{vP+1}, v{vP+2}')
    for r in range(3, 23, 2): k(f'v_max3_u32 v{vT}, v{vT}, v{vP+r}, v{vP+r+1}')
    k(f'v_max_u32 v{vT}, v{vT}, v{vP+23}')
    k(f'v_cmp_eq_u32 vcc, -1, v{vT}')
    k(f's_cbranch_vccz {dn}')
    k('s_sleep 2')
    k(f's_cmp_ge_u32 s{sSEG}, 60')
    k(f's_cbranch_scc1 {lp}')
    k(f"s_sleep {OPT['psl']}")
    k(f's_branch {lp}')
    k.label(dn)
    if TL[0]: tstamp(k, 57, 8, vT)
    lastseg = k.newlabel('Lvl')
    k(f's_cmp_eq_u32 s{sSEG}, 63')
    k(f's_cbranch_scc1 {lastseg}')
    k(f's_lshl_b32 s40, s{sSEG}, 7')
    k(f's_add_u32 s40, s40, {flag(F_UM)}')
    wait1(k, 40, f'v_cmp_le_u32 vcc, 14, v{vT}', vT, OPT['usl'], f's_cmp_ge_u32 s{sSEG}, 60')
    k.label(lastseg)
    if TL[0]: tstamp(k, 57, 12, vT)
    k(f's_mul_i32 s40, s{sSEG}, {UM_SEG}')
    k(f's_mul_i32 s41, s{sWAVE}, {2*28672}')
    k(f's_add_u32 s40, s40, s41')
    k(f's_lshl_b32 s41, s{sCG}, 12')
    k(f's_add_u32 s40, s40, s41')
    k(f's_add_u32 s40, s40, {UM}')
    k(f's_add_u32 s41, s40, 28672')
    lp, dn = k.newlabel('Lvu'), k.newlabel('Lvv')
    k.label(lp)
    for u in range(2):
        for ct in range(4):
            k(f'buffer_load_dwordx4 {vr(vUM+8*ct+4*u,4)}, v{vL16}, {WS}, s{40+u} offen offset:{ct*1024} sc1')
    k(f's_cmp_lg_u32 s{sSEG}, 63')
    k(f's_cbranch_scc1 {dn}')
    k(f's_add_u32 s{sCNT}, s{sCNT}, 1')
    k(f's_cmp_gt_u32 s{sCNT}, s{sT2}')
    k('s_cbranch_scc1 L_fail')
    k('s_waitcnt vmcnt(0)')
    k(f'v_max3_u32 v{vT}, v{vUM}, v{vUM+1}, v{vUM+2}')
    for r in range(3, 31, 2): k(f'v_max3_u32 v{vT}, v{vT}, v{vUM+r}, v{vUM+r+1}')
    k(f'v_max_u32 v{vT}, v{vT}, v{vUM+31}')
    k(f'v_cmp_eq_u32 vcc, -1, v{vT}')
    k(f's_cbranch_vccz {dn}')
    k('s_sleep 2')
    k(f's_branch {lp}')
    k.label(dn)
    k('s_mov_b32 s54, 0xffff0000')
    for h in range(2):
        k(f'v_pk_add_f32 {vr(vY+2*h,2)}, {vr(vY+2*h,2)}, {vr(vY+4+2*h,2)}')
        k(f'v_pk_add_f32 {vr(vY+8+2*h,2)}, {vr(vY+8+2*h,2)}, {vr(vY+12+2*h,2)}')
        k(f'v_pk_add_f32 {vr(vY+2*h,2)}, {vr(vY+2*h,2)}, {vr(vY+8+2*h,2)}')
    vB, vXf = vY+4, vY+8
    for r in range(4):
        rbf(k, vY+r, 54)
        k(f'v_mul_f32 v{vY+r}, v{vY+r}, v{vSig}')
        rbf(k, vY+r, 54)
        src = vXn + (r>>1)
        k(f'v_lshlrev_b32 v{vB+r}, 16, v{src}' if r % 2 == 0 else f'v_and_b32 v{vB+r}, s54, v{src}')
        k(f'v_add_f32 v{vB+r}, v{vB+r}, v{vY+r}')
        rbf(k, vB+r, 54)
        src = vXr + (r>>1)
        k(f'v_lshlrev_b32 v{vXf+r}, 16, v{src}' if r % 2 == 0 else f'v_and_b32 v{vXf+r}, s54, v{src}')
    k('s_barrier')
    k('s_waitcnt vmcnt(8)')
    for hh in range(4):
        for ct in range(4):
            c = '0' if hh == 0 else vr(vD+4*ct,4)
            k(f'v_mfma_f32_16x16x32_bf16 {vr(vD+4*ct,4)}, {vr(vU+16*ct+4*hh,4)}, {vr(vP+4*hh,4)}, {c}')
    k('s_waitcnt vmcnt(0)')
    for u in range(2):
        for ct in range(4):
            k(f'v_mfma_f32_16x16x32_bf16 {vr(vD+4*ct,4)}, {vr(vUM+8*ct+4*u,4)}, {vr(vP+16+4*u,4)}, {vr(vD+4*ct,4)}')
    k(f's_lshl_b32 s40, s{sWAVE}, 12')
    k(f'v_add_u32 v{vT}, s40, v{vL16}')
    k(f's_lshl_b32 s40, s{sWAVE}, 10')
    k(f'v_add_u32 v{vT+3}, s40, v{vL16}')
    k.nop(2)
    for ct in range(4): k(f'ds_write_b128 v{vT}, {vr(vD+4*ct,4)} offset:{ct*1024}')
    k('s_waitcnt lgkmcnt(0)')
    k('s_barrier')
    for w in range(4): k(f'ds_read_b128 {vr(vU+4*w,4)}, v{vT+3} offset:{w*4096}')
    k('s_waitcnt lgkmcnt(0)')
    for h in range(2):
        k(f'v_pk_add_f32 {vr(vU+2*h,2)}, {vr(vU+2*h,2)}, {vr(vU+4+2*h,2)}')
        k(f'v_pk_add_f32 {vr(vU+8+2*h,2)}, {vr(vU+8+2*h,2)}, {vr(vU+12+2*h,2)}')
        k(f'v_pk_add_f32 {vr(vU+2*h,2)}, {vr(vU+2*h,2)}, {vr(vU+8+2*h,2)}')
    for r in range(4):
        rbf(k, vU+r, 54)
        k(f'v_add_f32 v{vU+r}, v{vU+r}, v{vXf+r}')
        rbf(k, vU+r, 54)
        k(f'v_add_f32 v{vU+r}, v{vU+r}, v{vB+r}')
    k(f'v_cvt_pk_bf16_f32 v{vU}, v{vU}, v{vU+1}')
    k(f'v_cvt_pk_bf16_f32 v{vU+1}, v{vU+2}, v{vU+3}')
    k(f'buffer_store_dwordx2 {vr(vU,2)}, v{vOff}, s[72:75], 0 offen')
    k('s_branch W_next')

def moe_stage(k, srdreg, pitch, soff, lds, vT):
    k(f'v_lshrrev_b32 v{vT}, 3, v0')
    k(f'v_and_b32 v{vT+1}, 7, v0')
    k(f's_mov_b32 s44, {pitch}')
    k(f'v_mul_lo_u32 v{vT+2}, v{vT}, s44')
    k(f'v_lshl_add_u32 v{vT+2}, v{vT+1}, 4, v{vT+2}')
    k(f'v_bfe_u32 v{vT+3}, v{vT}, 1, 1')
    k(f'v_bfe_u32 v{vT+4}, v{vT}, 3, 1')
    k(f'v_lshl_add_u32 v{vT+3}, v{vT+4}, 1, v{vT+3}')
    k(f'v_lshlrev_b32 v{vT+3}, 1, v{vT+3}')
    k(f'v_xor_b32 v{vT+3}, v{vT+3}, v{vT+1}')
    k(f'v_lshlrev_b32 v{vT+3}, 4, v{vT+3}')
    k(f'v_lshl_add_u32 v{vT+3}, v{vT}, 7, v{vT+3}')
    if lds: k(f'v_add_u32 v{vT+3}, {lds}, v{vT+3}')
    k(f's_mov_b32 s44, s{soff}')
    for r in range(14):
        k(f'buffer_load_dwordx4 {vr(32+4*r,4)}, v{vT+2}, s[{srdreg}:{srdreg+3}], s44 offen')
        k(f's_add_u32 s44, s44, {32*pitch}')
    for r in range(14):
        k(f's_waitcnt vmcnt({13-r})')
        k(f'ds_write_b128 v{vT+3}, {vr(32+4*r,4)} offset:{r*4096}')

def moe_mm(k, lds, vA, vD, vAd, vB):
    for ks in range(14):
        for hh in range(2): k(f'ds_read_b64_tr_b16 {vr(vB+4*ks+2*hh,2)}, v{vAd} offset:{lds + ks*4096 + hh*512}')
    k('s_waitcnt lgkmcnt(0)')
    for ks in range(14):
        k(f'v_mfma_f32_16x16x32_bf16 {vr(vD,4)}, {vr(vA+4*ks,4)}, {vr(vB+4*ks,4)}, {"0" if ks == 0 else vr(vD,4)}')

def moe_traddr(k, vAd, vT):
    k(f'v_bfe_u32 v{vAd}, v{vLn}, 2, 2')
    k(f'v_lshrrev_b32 v{vT}, 4, v{vLn}')
    k(f'v_lshl_add_u32 v{vAd}, v{vT}, 3, v{vAd}')
    k(f'v_lshlrev_b32 v{vAd}, 7, v{vAd}')
    k(f'v_and_b32 v{vT}, 3, v{vLn}')
    k(f'v_lshl_add_u32 v{vAd}, v{vT}, 3, v{vAd}')
    k(f'v_bfe_u32 v{vT}, v{vLn}, 3, 1')
    k(f'v_bfe_u32 v{vT+1}, v{vLn}, 4, 1')
    k(f'v_lshl_add_u32 v{vT}, v{vT+1}, 1, v{vT}')
    k(f'v_xor_b32 v{vT}, s{sWAVE}, v{vT}')
    k(f'v_lshl_add_u32 v{vAd}, v{vT}, 5, v{vAd}')

def sigmoid(k, v, t):
    k(f'v_mul_f32 v{t}, {f32bits(-1.4426950408889634):#x}, v{v}')
    k(f'v_exp_f32 v{t}, v{t}')
    k.nop(1)
    k(f'v_add_f32 v{t}, 1.0, v{t}')
    k(f'v_rcp_f32 v{v}, v{t}')
    k.nop(1)

def task_M1(k):
    k.label('T_M1')
    vT = 16
    srd(k, 68, 72, 1605632); srd(k, 72, 80, 1605632)
    vK = 160
    k(f's_mov_b32 s40, {RR}')
    k(f's_add_u32 s41, s40, 4096')
    for j in range(8): k(f'buffer_load_dwordx4 {vr(vK+4*j,4)}, v{vL16}, {WS}, s{40 + (j>>2)} offen offset:{(j&3)*1024}')
    k(f'v_lshlrev_b32 v{vT}, 2, v{vLn}')
    k(f'v_sub_u32 v{vT}, 0xffff, v{vT}')
    k('s_mov_b32 s54, 0xffff0000')
    k('s_waitcnt vmcnt(0) lgkmcnt(0)')
    k('s_and_b32 s69, s69, 0xffff'); k('s_and_b32 s73, s73, 0xffff')
    for j in range(32):
        r = vK + j
        k(f'v_ashrrev_i32 v{vT+1}, 31, v{r}')
        k(f'v_or_b32 v{vT+1}, 0x80000000, v{vT+1}')
        k(f'v_xor_b32 v{r}, v{r}, v{vT+1}')
        k(f'v_subrev_u32 v{vT+1}, {(j>>2)*256 + (j&3)}, v{vT}')
        k(f'v_and_or_b32 v{r}, v{r}, s54, v{vT+1}')
    m, t = vT+2, vT+3
    for it in range(8):
        k(f'v_max3_u32 v{m}, v{vK}, v{vK+1}, v{vK+2}')
        for r in range(3, 31, 2): k(f'v_max3_u32 v{m}, v{m}, v{vK+r}, v{vK+r+1}')
        k(f'v_max_u32 v{m}, v{m}, v{vK+31}')
        for rot in (8, 4, 2, 1):
            k.nop(2)
            k(f'v_max_u32_dpp v{m}, v{m}, v{m} row_ror:{rot} row_mask:0xf bank_mask:0xf')
        xlane_red(k, 'v_max_u32', m, t)
        k.nop(1)
        k(f'v_readfirstlane_b32 s{76+it}, v{m}')
        if it < 7:
            for j in range(32):
                k(f'v_cmp_eq_u32 vcc, v{m}, v{vK+j}')
                k('s_nop 1')
                k(f'v_cndmask_b32 v{vK+j}, v{vK+j}, 0, vcc')
    vKy, vIx = vT+4, vT+5
    k(f'v_mov_b32 v{vKy}, s76')
    k(f'v_and_b32 v{t}, 7, v{vLn}')
    for j in range(1, 8):
        k(f'v_cmp_eq_u32 vcc, {j}, v{t}')
        k(f'v_mov_b32 v{m}, s{76+j}')
        k('s_nop 0')
        k(f'v_cndmask_b32 v{vKy}, v{vKy}, v{m}, vcc')
    k(f'v_and_b32 v{vIx}, 0xffff, v{vKy}')
    k(f'v_sub_u32 v{vIx}, 0xffff, v{vIx}')
    sk = k.newlabel('Lm1s')
    k(f's_or_b32 s40, s{sJ}, s{sWAVE}')
    k('s_cmp_lg_u32 s40, 0')
    k(f's_cbranch_scc1 {sk}')
    k(f'v_and_b32 v{m}, s54, v{vKy}')
    k(f'v_not_b32 v{t}, v{m}')
    k(f'v_ashrrev_i32 v{t}, 31, v{t}')
    k(f'v_or_b32 v{t}, 0x80000000, v{t}')
    k(f'v_xor_b32 v{m}, v{m}, v{t}')
    k(f'v_and_b32 v{m}, s54, v{m}')
    sigmoid(k, m, t)
    rbf(k, m, 54)
    k(f'v_lshlrev_b32 v{t}, 2, v{vLn}')
    k(f's_mov_b32 s40, {IDX}')
    k('s_mov_b64 exec, 0xff')
    k(f'buffer_store_dword v{vIx}, v{t}, {WS}, s40 offen sc1')
    k(f'buffer_store_dword v{m}, v{t}, {WS}, s40 offen offset:32 sc1')
    k('s_mov_b64 exec, -1')
    k.label(sk)
    vA = 96
    k(f'v_mul_u32_u24 v{m}, 896, v{vIx}')
    k(f'v_lshrrev_b32 v{t}, 4, v{vLn}')
    k(f'v_lshl_add_u32 v{m}, v{t}, 4, v{m}')
    k(f's_mov_b32 s40, {XNR}')
    for ks in range(14): k(f'buffer_load_dwordx4 {vr(vA+4*ks,4)}, v{m}, {WS}, s40 offen offset:{ks*64}')
    k('s_barrier')
    k(f's_lshl_b32 s43, s{sJ}, 7')
    moe_stage(k, 68, 3584, 43, 0, 24)
    moe_stage(k, 72, 3584, 43, 57344, 24)
    vAd = vT
    moe_traddr(k, vAd, vT+1)
    k(f'v_add_u32 v{vT+1}, 57344, v{vAd}')
    k('s_waitcnt lgkmcnt(0)')
    k('s_barrier')
    vG, vUu = 24, 28
    moe_mm(k, 0, vA, vG, vAd, 32)
    moe_mm(k, 0, vA, vUu, vT+1, 160)
    k(f'v_lshrrev_b32 v{vT+2}, 4, v{vLn}')
    k(f'v_mul_u32_u24 v{vT+2}, {4*3584}, v{vT+2}')
    k(f'v_and_b32 v{vT+3}, 15, v{vLn}')
    k(f'v_lshl_add_u32 v{vT+2}, v{vT+3}, 1, v{vT+2}')
    k(f's_lshl_b32 s40, s{sWAVE}, 5')
    k(f's_add_u32 s40, s40, s43')
    k(f's_add_u32 s40, s40, {HB}')
    k.nop(4)
    k('s_mov_b32 exec_hi, 0')
    for r in range(4):
        rbf(k, vG+r, 54); rbf(k, vUu+r, 54)
        k(f'v_mov_b32 v{vT+4}, v{vG+r}')
        sigmoid(k, vT+4, vT+5)
        k(f'v_mul_f32 v{vG+r}, v{vG+r}, v{vT+4}')
        rbf(k, vG+r, 54)
        k(f'v_mul_f32 v{vG+r}, v{vG+r}, v{vUu+r}')
        k(f'v_cvt_pk_bf16_f32 v{vG+r}, v{vG+r}, v{vG+r}')
        k(f'buffer_store_short v{vG+r}, v{vT+2}, {WS}, s40 offen sc1')
        k(f's_add_u32 s40, s40, 3584')
    k('s_mov_b64 exec, -1')
    k(f's_mov_b32 s40, {flag(F_M1)}')
    signal(k, 40, 3)
    k('s_branch W_next')

def task_M2(k):
    k.label('T_M2')
    vT = 16
    srd(k, 68, 88, 1605632)
    k(f's_mul_hi_u32 s45, s{sJ}, {(1<<32)//7 + 1}')
    k(f's_mul_i32 s46, s45, 7')
    k(f's_sub_u32 s46, s{sJ}, s46')
    k(f's_mul_i32 s43, s45, {448*896}')
    k(f's_lshl_b32 s40, s46, 7')
    k(f's_add_u32 s43, s43, s40')
    k('s_waitcnt lgkmcnt(0)')
    k('s_and_b32 s69, s69, 0xffff')
    k('s_barrier')
    moe_stage(k, 68, 896, 43, 0, 24)
    vAd = vT
    moe_traddr(k, vAd, vT+1)
    k(f's_mov_b32 s40, {flag(F_M1)}')
    wait_flag(k, 40, 28, vT+1)
    vA = 96
    k(f'v_and_b32 v{vT+1}, 7, v{vLn}')
    k(f'v_mul_u32_u24 v{vT+1}, 3584, v{vT+1}')
    k(f'v_lshrrev_b32 v{vT+2}, 4, v{vLn}')
    k(f'v_lshl_add_u32 v{vT+1}, v{vT+2}, 4, v{vT+1}')
    k(f's_mul_i32 s40, s45, 896')
    k(f's_add_u32 s40, s40, {HB}')
    for ks in range(14): k(f'buffer_load_dwordx4 {vr(vA+4*ks,4)}, v{vT+1}, {WS}, s40 offen offset:{ks*64} sc1')
    k('s_waitcnt vmcnt(0) lgkmcnt(0)')
    k('s_barrier')
    moe_mm(k, 0, vA, 24, vAd, 32)
    k(f'v_mul_u32_u24 v{vT+2}, {4*1792}, v{vT+2}')
    k(f'v_and_b32 v{vT+3}, 15, v{vLn}')
    k(f'v_lshl_add_u32 v{vT+2}, v{vT+3}, 2, v{vT+2}')
    k(f's_mul_i32 s40, s45, 14336')
    k(f's_lshl_b32 s41, s46, 8')
    k(f's_add_u32 s40, s40, s41')
    k(f's_lshl_b32 s41, s{sWAVE}, 6')
    k(f's_add_u32 s40, s40, s41')
    k(f's_add_u32 s40, s40, {UPD}')
    k('s_mov_b32 exec_hi, 0')
    for r in range(4):
        k(f'buffer_store_dword v{24+r}, v{vT+2}, {WS}, s40 offen sc1')
        k(f's_add_u32 s40, s40, 1792')
    k('s_mov_b64 exec, -1')
    k(f's_mov_b32 s40, {flag(F_M2)}')
    signal(k, 40, 3)
    k('s_branch W_next')

LTK = 163832
Q_U2, Q_M1, Q_M2, Q_P0 = 0, 48, 76, 104
Q_G = Q_P0 + 48
Q_T = Q_G + 13*72
Q_END = Q_T + 3*56
DBG = 's[8:11]'

def tstamp(k, sOff, off, vT=3):
    k('s_memrealtime s[30:31]')
    k('s_waitcnt lgkmcnt(0)')
    k(f'v_mov_b32 v{vT}, s30')
    k(f'buffer_store_dword v{vT}, off, {WS}, s{sOff} offset:{off}')

def worker(k, pref=0, tl=False):
    TL[0] = tl
    def tl_start(base):
        if not tl: return
        k(f's_add_u32 s57, s42, {base}')
        k('s_lshl_b32 s57, s57, 4')
        k(f's_add_u32 s57, s57, {STAMP + 0x40000}')
        tstamp(k, 57, 0)
    k.label('L_worker')
    k(f'v_and_b32 v{vLn}, 63, v0')
    k(f'v_lshlrev_b32 v{vL16}, 4, v{vLn}')
    k(f's_mov_b32 s{sT2}, {POLL_LIMIT}')
    k(f's_mov_b32 s{sSTEP}, 255')
    k(f's_add_u32 s42, s2, {7 - pref}')
    k('s_and_b32 s42, s42, 7')
    k('s_lshl_b32 s42, s42, 5')
    k('s_lshr_b32 s41, s2, 3')
    k('s_add_u32 s42, s42, s41')
    tl_start(1536)
    k(f's_mul_hi_u32 s{sH}, s42, {(1<<32)//14 + 1}')
    k(f's_mul_i32 s41, s{sH}, 14')
    k(f's_sub_u32 s{sBLK}, s42, s41')
    k(f's_cmp_lt_u32 s{sBLK}, 2')
    k('s_cbranch_scc1 T_Uh')
    k(f's_sub_u32 s{sBLK}, s{sBLK}, 1')
    k('s_branch T_U')
    k.label('W_next')
    if tl: tstamp(k, 57, 4)
    k(f's_cmp_lg_u32 s{sWAVE}, 0')
    k('s_cbranch_scc1 W_bc')
    k('s_mov_b64 exec, 1')
    k('v_mov_b32 v3, 1')
    k(f'buffer_atomic_add v3, off, {DBG}, 0 offset:192 sc0')
    k(f'v_mov_b32 v4, {LTK}')
    k('s_waitcnt vmcnt(0)')
    k('ds_write_b32 v4, v3')
    k('s_waitcnt lgkmcnt(0)')
    k('s_mov_b64 exec, -1')
    k.label('W_bc')
    k('s_barrier')
    k(f'v_mov_b32 v4, {LTK}')
    k('ds_read_b32 v3, v4')
    k('s_waitcnt lgkmcnt(0)')
    k('v_readfirstlane_b32 s42, v3')
    k('s_nop 3')
    tl_start(0)
    k(f's_cmp_ge_u32 s42, {Q_END}')
    k('s_cbranch_scc1 L_exit')
    k(f's_cmp_lt_u32 s42, {Q_M1}')
    k('s_cbranch_scc0 W_q1')
    k(f's_and_b32 s{sH}, s42, 15')
    k(f's_lshr_b32 s{sBLK}, s42, 4')
    k(f's_add_u32 s{sBLK}, s{sBLK}, 13')
    k('s_branch T_U')
    k.label('W_q1')
    k(f's_sub_u32 s{sJ}, s42, {Q_M1}')
    k(f's_cmp_lt_u32 s42, {Q_M2}')
    k('s_cbranch_scc1 T_M1')
    k(f's_sub_u32 s{sJ}, s42, {Q_M2}')
    k(f's_cmp_lt_u32 s42, {Q_P0}')
    k('s_cbranch_scc1 T_M2')
    k(f's_cmp_lt_u32 s42, {Q_G}')
    k('s_cbranch_scc0 W_q2')
    k(f's_sub_u32 s42, s42, {Q_P0}')
    k(f's_and_b32 s{sH}, s42, 15')
    k(f's_lshr_b32 s{sBLK}, s42, 4')
    k('s_branch T_P')
    k.label('W_q2')
    k(f's_cmp_lt_u32 s42, {Q_T}')
    k('s_cbranch_scc0 W_q3')
    k(f's_sub_u32 s42, s42, {Q_G}')
    k(f's_mul_hi_u32 s41, s42, {(1<<32)//72 + 1}')
    k('s_mul_i32 s43, s41, 72')
    k('s_sub_u32 s42, s42, s43')
    k(f's_mov_b32 s{sH}, s42')
    k(f's_add_u32 s{sBLK}, s41, 3')
    k('s_cmp_lt_u32 s42, 16')
    k('s_cbranch_scc1 T_P')
    k('s_sub_u32 s42, s42, 16')
    k('s_mul_i32 s41, s41, 56')
    k('s_add_u32 s42, s42, s41')
    k('s_branch W_v')
    k.label('W_q3')
    k(f's_sub_u32 s42, s42, {Q_T - 13*56}')
    k.label('W_v')
    k(f's_mul_hi_u32 s{sSEG}, s42, {(1<<32)//14 + 1}')
    k(f's_mul_i32 s41, s{sSEG}, 14')
    k('s_sub_u32 s42, s42, s41')
    k('s_cmp_ge_u32 s42, 7')
    k(f's_cselect_b32 s{sQT}, 1, 0')
    k(f's_mul_i32 s41, s{sQT}, 7')
    k(f's_sub_u32 s{sCG}, s42, s41')
    k('s_branch T_V')
    task_U(k); task_U(k, True); task_P(k); task_V(k); task_M1(k); task_M2(k)
```

```python
from asmlib import *
from layout import *

class K(Asm):
    def __init__(self):
        super().__init__()
        self.dsq = []; self.cold = []; self.vmq = []
    def ds(self, text, tag=None):
        self(text); self.dsq.append(tag)
    def wds(self, tag):
        if tag not in self.dsq: return
        idx = max(i for i, t in enumerate(self.dsq) if t == tag)
        n = len(self.dsq) - 1 - idx
        assert n <= 15
        self(f's_waitcnt lgkmcnt({n})')
        self.dsq = self.dsq[idx+1:]
    def wds0(self):
        self('s_waitcnt lgkmcnt(0)'); self.dsq = []
    def vm(self, text, tag=None):
        self(text); self.vmq.append(tag)
    def wvm(self, *tags, extra=''):
        idx = max([i for i, t in enumerate(self.vmq) if t in tags], default=-1)
        if idx < 0:
            if extra: self('s_waitcnt ' + extra)
            return
        n = len(self.vmq) - 1 - idx
        assert n <= 63
        self(f's_waitcnt vmcnt({n}) {extra}')
        self.vmq = self.vmq[idx+1:]
    def flush_cold(self):
        for l in self.cold: self(l)
        self.cold = []

SWS, SDBG = 4, 8
sROLE, sWAVE, sSTEP, sMODE, sM, sP, sX, sUM, sCNT = 12, 13, 14, 15, 16, 17, 18, 19, 20
sT0, sT1, sT2 = 21, 22, 23
sMASK8 = 24
sID = 26
sST = 28
sTM = 30
POLL_LIMIT = 400000
NSTEP = 63
OPT = dict(sa='late', sb='early', um='sc1', uf='sc1', sleepA=0, sleepB=0, stampmask=15, rt=0, barA=1, barB=1, prefP=0, pfd=3, pfs=128, upos='early', ud=2, apf=1, nb=8, stag=1, wpos=1, rsp=1, s1pos=0, upre=8, uneed=32, ust='sc1', rot=1, k1st='sc1', uwin=2, k1d=2, ap2=0, stagA=2, gv=0, pf64=0, tw=0, rep=3, prep=1, k1late=0, cpf=0, sm2=0, tm=1, bp2=1, k1pf=0, k1ln='sc1', u0='cold', align=0, w64=0, p64=0, kpos='post', kdel=7, nu2=2, bgs=0, vsl=120, usl=120, psl=16, msl=120)

def stamp(k, idx, on):
    if not on or not (OPT['stampmask'] >> idx) & 1: return
    k(('s_memrealtime' if OPT['rt'] else 's_memtime') + f' s[{sTM}:{sTM+1}]')
    k.wds0()
    k(f'v_mov_b32 v0, s{sTM}')
    k(f'buffer_store_dword v0, off, s[{SWS}:{SWS+3}], s{sST} offset:{idx*4}')

def edge(k, on, off):
    if not on or OPT['rt']: return
    lp = k.newlabel('Led')
    k('s_memrealtime s[70:71]')
    k('s_waitcnt lgkmcnt(0)')
    k.label(lp)
    k('s_memrealtime s[72:73]')
    k('s_memtime s[74:75]')
    k('s_waitcnt lgkmcnt(0)')
    k('s_cmp_eq_u32 s72, s70')
    k(f's_cbranch_scc1 {lp}')
    k('v_mov_b32 v0, s72')
    k(f'buffer_store_dword v0, off, s[{SWS}:{SWS+3}], s76 offset:{off}')
    k('v_mov_b32 v0, s74')
    k(f'buffer_store_dword v0, off, s[{SWS}:{SWS+3}], s76 offset:{off+4}')

def publish(k, text):
    ls, ld = k.newlabel('Lslow'), k.newlabel('Lpub')
    if isinstance(text, str): text = [text]
    k(f's_cbranch_scc0 {ls}')
    for x in text: k(x)
    k.label(ld)
    k.cold += [ls + ':'] + [x + ' sc1' for x in text] + [f's_branch {ld}']

def gather_mem(k, vG, vOff0, vOff1, vL0, vL1, vT):
    lp, dn = k.newlabel('Lgm'), k.newlabel('Lgd')
    k(f's_mov_b32 s{sCNT}, 0')
    k.label(lp)
    k(f'buffer_load_dwordx4 {vr(vG,4)}, v{vOff0}, s[{SWS}:{SWS+3}], s{sM} offen sc1')
    k(f'buffer_load_dwordx4 {vr(vG+4,4)}, v{vOff1}, s[{SWS}:{SWS+3}], s{sM} offen sc1')
    k(f's_add_u32 s{sCNT}, s{sCNT}, 1')
    k(f's_cmp_gt_u32 s{sCNT}, s{sT2}')
    k('s_cbranch_scc1 L_fail')
    k('s_waitcnt vmcnt(1)')
    k(f'v_max3_u32 v{vT}, v{vG}, v{vG+1}, v{vG+2}')
    k('s_waitcnt vmcnt(0)')
    k(f'v_max3_u32 v{vT+1}, v{vG+4}, v{vG+5}, v{vG+6}')
    k(f'v_max3_u32 v{vT}, v{vT}, v{vG+3}, v{vG+7}')
    k(f'v_max_u32 v{vT}, v{vT}, v{vT+1}')
    k(f'v_cmp_eq_u32 vcc, -1, v{vT}')
    k(f's_cbranch_vccnz {lp}')
    if vL0 is None: return
    k.ds(f'ds_write_b128 v{vL0}, {vr(vG,4)}')
    k.ds(f'ds_write_b128 v{vL1}, {vr(vG+4,4)}')
    k.wds0()
    k('s_barrier')

def wait_mode(k, vT):
    lp = k.newlabel('Lwm')
    k(f's_mov_b32 s{sCNT}, 0')
    k(f'v_and_b32 v{vT+1}, 15, v0')
    k(f'v_lshlrev_b32 v{vT+1}, 2, v{vT+1}')
    k.label(lp)
    k(f'buffer_load_dword v{vT}, v{vT+1}, s[{SDBG}:{SDBG+3}], 0 offen offset:32 sc1')
    k(f's_add_u32 s{sCNT}, s{sCNT}, 1')
    k(f's_cmp_gt_u32 s{sCNT}, s{sT2}')
    k('s_cbranch_scc1 L_fail')
    k('s_waitcnt vmcnt(0)')
    k(f'v_cmp_eq_u32 vcc, 32, v{vT}')
    for rot in (8, 4, 2, 1):
        k.nop(2)
        k(f'v_add_u32_dpp v{vT}, v{vT}, v{vT} row_ror:{rot} row_mask:0xf bank_mask:0xf')
    k.nop(1)
    k(f'v_readfirstlane_b32 s{sMODE}, v{vT}')
    k('s_nop 3')
    k(f's_cmp_lt_u32 s{sMODE}, 32')
    k(f's_cbranch_scc1 {lp}')
    k('s_cmp_lg_u64 vcc, 0')
    k(f's_cselect_b32 s{sMODE}, 1, 2')

def common_lane_setup(k, vLane, vL16, vG0, vG1, vIdx, vT):
    k(f'v_and_b32 v{vLane}, 63, v0')
    k(f'v_lshlrev_b32 v{vL16}, 4, v{vLane}')
    if vG0 is not None:
        k(f's_lshl_b32 s{sT0}, s{sWAVE}, 10')
        k(f'v_add_u32 v{vG0}, s{sT0}, v{vL16}')
        k(f's_add_u32 s{sT0}, s{sWAVE}, 4')
        k(f's_min_u32 s{sT0}, s{sT0}, 6')
        k(f's_lshl_b32 s{sT0}, s{sT0}, 10')
        k(f'v_add_u32 v{vG1}, s{sT0}, v{vL16}')
    k(f'v_and_b32 v{vT}, 8, v{vLane}')
    k(f'v_mov_b32 v{vIdx}, 0x4444')
    k(f'v_mov_b32 v{vT+1}, 0xeeee')
    k(f'v_cmp_ne_u32 vcc, 0, v{vT}')
    k('s_nop 1')
    k(f'v_cndmask_b32 v{vIdx}, v{vIdx}, v{vT+1}, vcc')
    k(f's_mov_b32 s{sT2}, {POLL_LIMIT}')

def poll2(k, issue, checks, body, name, stag):
    nl = len(issue(0))
    l0, d0, d1, dn = [k.newlabel(name + x) for x in ('lp', 'd0', 'd1', 'dn')]
    k(f's_mov_b32 s{sCNT}, 0')
    for x in issue(0): k(x)
    k(f"s_sleep {stag}")
    k.label(l0)
    for st, dl in ((0, d0), (1, d1)):
        for x in issue(1 - st): k(x)
        if st == 0:
            k(f's_add_u32 s{sCNT}, s{sCNT}, 1')
            k(f's_cmp_gt_u32 s{sCNT}, s{sT2}')
            k('s_cbranch_scc1 L_fail')
        for rel, ins in checks(st):
            k(f's_waitcnt vmcnt({nl + rel})')
            for x in ins: k(x)
        if st == 0: k(f's_cbranch_vccz {d0}')
        else:       k(f's_cbranch_vccnz {l0}x')
    saved = list(k.dsq)
    body(1)
    k(f's_branch {dn}')
    k.label(l0 + 'x')
    k(f's_branch {l0}')
    k.label(d0)
    end = list(k.dsq); k.dsq = saved
    body(0)
    assert k.dsq == end
    k.label(dn)

def role_A(k, stamps=False):
    vLane, vL16, vIdx = 1, 2, 3
    vKey, vKeyS, vMK, vMKS, vQW, vQR, vSW, vSR, vPO, vVal = 4, 5, 6, 7, 8, 9, 10, 11, 12, 13
    vT = 14
    vM = 16
    vQ = 44
    vKT = 72
    vKM = 100
    vX = 114
    vG0, vG1 = 118, 119
    def W(lt, kb):
        i = lt*7 + kb
        return (256 + 8*i) if i < 32 else (120 + 8*(i-32))
    LM, LSP, LQS = 0, 7168, 20480
    k.label('L_roleA')
    k(f's_mov_b32 s{sID}, s{sROLE}')
    common_lane_setup(k, vLane, vL16, vG0, vG1, vIdx, vX)
    k(f's_lshr_b32 s{sT0}, s{sWAVE}, 1')
    k(f's_mul_i32 s{sT0}, s{sT0}, 14')
    k(f's_and_b32 s{sT1}, s{sWAVE}, 1')
    k(f's_add_u32 s33, s{sT0}, 6')
    k(f's_add_u32 s33, s33, s{sT1}')
    k(f's_lshl_b32 s34, s{sT1}, 3')
    k(f's_add_u32 s32, s{sT0}, s34')
    k(f's_mul_i32 s35, s{sID}, {28*14*1024}')
    k(f's_add_u32 s35, s35, {WTA}')
    k(f's_mul_i32 s36, s32, {14*1024}')
    k(f's_add_u32 s36, s36, s35')
    k(f's_mul_i32 s37, s33, {14*1024}')
    k(f's_add_u32 s37, s37, s35')
    for j in range(7):
        k(f's_add_u32 s{50+j}, s{sWAVE}, {(4*j) % 7}')
        k(f's_sub_u32 s40, s{50+j}, 7')
        k(f's_cmp_ge_u32 s{50+j}, 7')
        k(f's_cselect_b32 s{50+j}, s40, s{50+j}')
        k(f's_lshl_b32 s{50+j}, s{50+j}, 10')
    n = 0
    for lt in range(7):
        sb = 36 if lt < 6 else 37
        for j in range(7):
            k(f's_lshl_b32 s40, s{50+j}, 1')
            k(f's_add_u32 s40, s40, s{sb}')
            for f in range(2):
                k(f'buffer_load_dwordx4 {xr(W(lt, j) + 4*f,4)}, v{vL16}, s[{SWS}:{SWS+3}], s40 offen offset:{f*1024}')
                n += 1
                if n % 16 == 0: k('s_waitcnt vmcnt(40)')
        k(f's_add_u32 s{sb}, s{sb}, 14336')
    k(f'v_add_u32 v{vG1}, s51, v{vL16}')
    t = vX
    g, i = vQ, vQ+1
    k(f'v_lshrrev_b32 v{g}, 4, v{vLane}')
    k(f'v_and_b32 v{i}, 15, v{vLane}')
    k(f's_lshr_b32 s38, s32, 1')
    k(f's_lshr_b32 s39, s33, 1')
    k(f's_lshl_b32 s40, s38, 10')
    k(f'v_add_u32 v{vKey}, s40, v{vL16}')
    k(f's_lshl_b32 s40, s39, 10')
    k(f's_add_u32 s40, s40, s34')
    k(f'v_add_u32 v{vKeyS}, s40, v{vL16}')
    k(f'v_lshrrev_b32 v{t}, 1, v{g}')
    k(f'v_lshlrev_b32 v{t}, 8, v{t}')
    k(f'v_and_b32 v{t+1}, 7, v{i}')
    k(f'v_lshlrev_b32 v{t+1}, 4, v{t+1}')
    k(f'v_add_u32 v{t}, v{t}, v{t+1}')
    k(f'v_and_b32 v{t+1}, 1, v{g}')
    k(f'v_lshlrev_b32 v{t+1}, 7, v{t+1}')
    k(f'v_add_u32 v{t}, v{t}, v{t+1}')
    k(f's_lshl_b32 s40, s38, 9')
    k(f'v_add_u32 v{vMK}, s40, v{t}')
    k(f's_lshl_b32 s40, s39, 9')
    k(f's_add_u32 s40, s40, s34')
    k(f'v_add_u32 v{vMKS}, s40, v{t}')
    k(f's_lshl_b32 s40, s{sWAVE}, 10')
    k(f's_add_u32 s40, s40, {LQS}')
    k(f'v_lshrrev_b32 v{t}, 2, v{i}')
    k(f'v_add_u32 v{t}, v{t}, v{g}')
    k(f'v_and_b32 v{t}, 3, v{t}')
    k(f'v_lshlrev_b32 v{t}, 3, v{t}')
    k(f'v_lshlrev_b32 v{t+1}, 5, v{i}')
    k(f'v_add3_u32 v{vQW}, v{t}, v{t+1}, s40')
    k(f'v_lshrrev_b32 v{t}, 2, v{vLane}')
    k(f'v_lshlrev_b32 v{t}, 5, v{t}')
    k(f'v_add_u32 v{t+1}, v{vLane}, v{g}')
    k(f'v_and_b32 v{t+1}, 3, v{t+1}')
    k(f'v_lshlrev_b32 v{t+1}, 3, v{t+1}')
    k(f'v_add3_u32 v{vQR}, v{t}, v{t+1}, s40')
    k(f's_mul_i32 s40, s{sWAVE}, 3264')
    k(f's_add_u32 s40, s40, {LSP}')
    k(f'v_lshlrev_b32 v{t}, 4, v{i}')
    k(f'v_mul_u32_u24 v{t+1}, 272, v{g}')
    k(f'v_add3_u32 v{vSW}, v{t}, v{t+1}, s40')
    k(f'v_subrev_u32 v{t}, 12, v{i}')
    k(f'v_cmp_le_u32 vcc, 12, v{i}')
    k('s_nop 1')
    k(f'v_cndmask_b32 v{t}, v{i}, v{t}, vcc')
    k(f'v_lshrrev_b32 v{t+1}, 5, v{vLane}')
    k(f's_lshl_b32 s40, s{sWAVE}, 1')
    k(f'v_add_u32 v{t+1}, s40, v{t+1}')
    k(f'v_and_b32 v{t+2}, 1, v{g}')
    k(f'v_lshl_add_u32 v{t+3}, v{t+2}, 3, v{t+1}')
    k(f'v_lshlrev_b32 v{t+3}, 4, v{t+3}')
    k(f'v_mul_u32_u24 v{vSR}, 272, v{t}')
    k(f'v_add_u32 v{vSR}, v{vSR}, v{t+3}')
    if LSP: k(f'v_add_u32 v{vSR}, {LSP}, v{vSR}')
    k(f's_and_b32 s42, s{sID}, 1')
    k(f's_lshl_b32 s42, s42, 3')
    k(f'v_add_u32 v{t+1}, s42, v{t+1}')
    k(f'v_and_b32 v{vPO}, 1, v{i}')
    k(f'v_lshlrev_b32 v{vPO}, 3, v{vPO}')
    k(f'v_lshl_add_u32 v{vPO}, v{t+1}, 4, v{vPO}')
    k(f'v_bfe_u32 v{t}, v{i}, 1, 1')
    k(f'v_lshl_add_u32 v{vPO}, v{t}, 8, v{vPO}')
    k(f'v_bfe_u32 v{t}, v{i}, 3, 1')
    k(f'v_lshl_add_u32 v{vPO}, v{t}, 9, v{vPO}')
    k(f's_lshr_b32 s41, s{sID}, 1')
    k(f's_lshl_b32 s40, s41, 10')
    k(f'v_add_u32 v{vPO}, s40, v{vPO}')
    k(f'v_lshlrev_b32 v{t}, 3, v{i}')
    k(f'v_lshl_add_u32 v{t}, v{t+1}, 4, v{t}')
    k(f's_lshl_b32 s40, s41, 8')
    k(f's_add_u32 s40, s40, 8192')
    k(f'v_add_u32 v{t}, s40, v{t}')
    k(f'v_mov_b32 v{t+3}, 0x40000000')
    k(f'v_cmp_le_u32 vcc, 2, v{i}')
    k('s_nop 1')
    k(f'v_cndmask_b32 v{t}, v{t}, v{t+3}, vcc')
    k(f'v_cmp_le_u32 vcc, 4, v{i}')
    k('s_nop 1')
    k(f'v_cndmask_b32 v{vPO}, v{t}, v{vPO}, vcc')
    k(f'v_cmp_le_u32 vcc, 12, v{i}')
    k('s_nop 1')
    k(f'v_cndmask_b32 v{vPO}, v{vPO}, v{t+3}, vcc')
    k(f'v_lshl_add_u32 v{vPO}, v{t+2}, 2, v{vPO}')
    k(f'v_mov_b32 v{vVal}, 1.0')
    k(f'v_cmp_le_u32 vcc, v{t+3}, v{vPO}')
    k('s_nop 1')
    k(f'v_cndmask_b32 v{vVal}, v{vVal}, 0, vcc')
    k(f's_mov_b32 s{sSTEP}, 0')
    k(f"s_lshr_b32 s{sM}, s{sID}, {3 if OPT['rep'] == 3 else 2}")
    k(f"s_mul_i32 s{sM}, s{sM}, {MEM_S if NREP == 3 else 0}")
    k(f's_add_u32 s{sM}, s{sM}, {MEM}')
    k(f's_mov_b32 s{sP}, {PB}')
    k(f's_mov_b32 s{sX}, {XNS}')
    k(f's_lshl_b32 s40, s{sID}, 2')
    k(f's_add_u32 s40, s40, s{sWAVE}')
    k(f's_mul_i32 s40, s40, 7168')
    k(f'v_min_u32 v{vX}, {55*16}, v{vL16}')
    k(f'v_lshlrev_b32 v{vX}, 3, v{vX}')
    k(f'v_add_u32 v{vX}, s40, v{vX}')
    k(f"s_mov_b32 s{sUM}, {UF + OPT['ud']*UF_SEG}")
    WS = f's[{SWS}:{SWS+3}]'
    def key_list():
        L = []
        for p in range(3):
            L.append(f'buffer_load_dwordx4 {vr(vKT+8*p,4)}, v{vKey}, {WS}, s{sX} offen offset:{p*1024}')
            L.append(f'buffer_load_dwordx4 {vr(vKT+8*p+4,4)}, v{vKey}, {WS}, s46 offen offset:{p*1024}')
        L.append(f'buffer_load_dwordx2 {vr(vKT+24,2)}, v{vKeyS}, {WS}, s{sX} offen')
        L.append(f'buffer_load_dwordx2 {vr(vKT+26,2)}, v{vKeyS}, {WS}, s46 offen')
        return L
    def load_keys(keys=True):
        if keys:
            for x in key_list(): k(x)
        k(f's_add_u32 s{sX}, s{sX}, 28672')
        k(f's_add_u32 s46, s{sX}, 14336')
        k(f's_add_u32 s{sT0}, s{sSTEP}, {1 + OPT["ud"]}')
        k(f's_lshr_b32 s{sT0}, s{sT0}, 2')
        k(f's_lshl_b32 s{sT0}, s{sT0}, 7')
        k(f's_add_u32 s{sT0}, s{sT0}, {flag(F_U)}')
        k(f'buffer_load_dword v{vX+2}, off, {WS}, s{sT0} sc1')
    if OPT['tm']:
        k(f'v_lshlrev_b32 v{vQ+2}, 2, v{g}')
        k(f'v_sub_u32 v{vQ+2}, v{i}, v{vQ+2}')
        k(f'v_and_b32 v{vQ+3}, 1, v{vQ+2}')
        k(f'v_lshlrev_b32 v{vQ+3}, 4, v{vQ+3}')
        k(f'v_mov_b32 v{vLane}, 0x3f80')
        k(f'v_lshlrev_b32 v{vLane}, v{vQ+3}, v{vLane}')
        k(f'v_cmp_gt_u32 vcc, 4, v{vQ+2}')
        k(f'v_cmp_lt_u32 s[48:49], 1, v{vQ+2}')
        k('s_nop 0')
        k(f'v_cndmask_b32 v{vLane}, 0, v{vLane}, vcc')
    k(f's_add_u32 s46, s{sX}, 14336')
    k(f's_mov_b32 s{sSTEP}, -1')
    load_keys()
    k(f's_mov_b32 s{sSTEP}, 0')
    wait_mode(k, vT)
    k(f'v_mov_b32 v{vX+3}, 0x40000000')
    if stamps: k(f's_add_u32 s76, s{sST}, 0x20000')
    edge(k, stamps, 0)
    k.label('L_A_loop')
    for r in range(0, 28, 2): k(f'v_mov_b64 {vr(vQ+r,2)}, 0')
    k(f's_add_u32 s47, s{sP}, {PB_S}')
    vAd = vKM + 6
    for j in range(2, 7): k(f'v_add_u32 v{vAd+j}, s{50+j}, v{vL16}')
    def Mx(lt, kb, src):
        return f'v_smfmac_f32_16x16x64_bf16 {vr(vQ+4*lt,4)}, {vr(src,4)}, {xr(W(lt,kb),8)}, v{vIdx}'
    def M(lt, kb): return Mx(lt, kb, vM+4*kb)
    mk = [f'ds_read_b128 {vr(vKM+4*p,4)}, v{vMK} offset:{LM+p*512}' for p in range(3)]
    mk.append(f'ds_read_b64 {vr(vKM+12,2)}, v{vMKS} offset:{LM}')
    sets = [vM, vKM]
    def issue(st):
        return [f'buffer_load_dwordx4 {vr(sets[st],4)}, v{vG0}, {WS}, s{sM} offen sc1',
                f'buffer_load_dwordx4 {vr(sets[st]+4,4)}, v{vG1}, {WS}, s{sM} offen sc1']
    def checks(st):
        G = sets[st]
        return [(1, [f'v_max3_u32 v{vT}, v{G}, v{G+1}, v{G+2}']),
                (0, [f'v_max3_u32 v{vT+1}, v{G+4}, v{G+5}, v{G+6}', f'v_max3_u32 v{vT}, v{vT}, v{G+3}, v{G+7}',
                     f'v_max_u32 v{vT}, v{vT}, v{vT+1}', f'v_cmp_eq_u32 vcc, -1, v{vT}'])]
    NB = OPT['nb']
    def body(st):
        G = sets[st]
        stamp(k, 0, stamps)
        wrs = [f'ds_write_b128 v{vG0}, {vr(G,4)} offset:{LM}', f'ds_write_b128 v{vG1}, {vr(G+4,4)} offset:{LM}']
        seq = [(lt, j) for j in range(2) for lt in range(7)]
        for n, (lt, j) in enumerate(seq):
            k(Mx(lt, j, G + 4*j))
            if OPT['w64'] == 0 and n < 2: k.ds(wrs[n])
            if OPT['w64'] == 1 and n < 4: k.ds(f'ds_write_b64 v{vG0 if n < 2 else vG1}, {vr(G+2*n,2)} offset:{LM + 8*(n&1)}')
            if n == 4: k(f'v_cmp_le_u32 vcc, {OPT["uneed"]}, v{vX+2}')
            if n == 5: k('s_nop 0'); k(f'v_cndmask_b32 v{vX+1}, v{vX+3}, v{vX}, vcc')
            if n == NB - 1:
                k.wds0(); k('s_barrier')
            if NB - 1 <= n < NB + 4:
                jj = n - (NB - 1) + 2
                k.ds(f'ds_read_b128 {vr(vM+4*jj,4)}, v{vAd+jj} offset:{LM}', f'm{jj}')
            if n == NB + 5: k(f'buffer_load_dword v0, v{vX+1}, {WS}, s{sUM} offen sc1')
    if OPT['ap2']:
        poll2(k, issue, checks, body, 'Lga', OPT['stagA'])
    else:
        gather_mem(k, vM, vG0, vG1, None, None, vT)
        body(0)
    def cvt(lt, h):
        k(f'v_cvt_pk_bf16_f32 v{vQ+4*lt+h}, v{vQ+4*lt+2*h}, v{vQ+4*lt+2*h+1}')
    def wr(lt):
        k.ds(f'ds_write_b64 v{vQW}, {vr(vQ+4*lt,2)} offset:{512*(lt&1)}')
    def tr(p, h):
        k.ds(f'ds_read_b64_tr_b16 {vr(vQ+8*p+2*h,2)}, v{vQR} offset:{512*h}', f'q{p}')
    vSt = [vM, vM+4, vQ+4]
    def S(p, t):
        q = vQ + 8*p
        c = '0' if p == 0 else vr(vSt[t],4)
        if p < 3:
            a = vKM+4*p if t == 0 else vKT+8*p+4*(t-1)
            k(f'v_mfma_f32_16x16x32_bf16 {vr(vSt[t],4)}, {vr(a,4)}, {vr(q,4)}, {c}')
        else:
            a = vKM+12 if t == 0 else vKT+24+2*(t-1)
            k(f'v_mfma_f32_16x16x16_bf16 {vr(vSt[t],4)}, {vr(a,2)}, {vr(q,2)}, {c}')
    for lt in range(7):
        for j in range(2, 7):
            if lt == 0: k.wds(f'm{j}')
            k(M(lt, j))
            if OPT['tm'] and lt == 1 and j == 2: k(f'v_cndmask_b32 v{vT}, v{vLane}, 0, s[48:49]')
            if OPT['tm'] and lt == 1 and j == 3: k(f'v_cndmask_b32 v{vT+1}, 0, v{vLane}, s[48:49]')
            if lt == 0 and j == 6:
                k('s_waitcnt vmcnt(1)')
                for x in mk: k.ds(x, 'mk')
            if lt >= 1:
                if j == 4: cvt(lt-1, 0)
                if j == 5: cvt(lt-1, 1)
                if j == 6:
                    wr(lt-1)
                    if (lt-1) & 1: tr((lt-1)//2, 0); tr((lt-1)//2, 1)
        if lt == (4 if OPT['s1pos'] == 0 else 3):
            k.wds('q0')
            for t in range(3): S(0, t)
        if lt == 5 and OPT['s1pos'] == 1:
            k.wds('q1')
            for t in range(3): S(1, t)
    if OPT['s1pos'] == 0:
        k.wds('q1')
        for t in range(3): S(1, t)
        cvt(6, 0); cvt(6, 1)
        if OPT['tm']:
            k.wds('q2')
            k.nop(1)
            k(f'v_mfma_f32_16x16x16_bf16 {vr(vQ+12,4)}, {vr(vQ+24,2)}, {vr(vT,2)}, 0')
            for t in range(3): S(2, t)
            k(f'v_cvt_pk_bf16_f32 v{vQ+24}, v{vQ+12}, v{vQ+13}')
            k(f'v_cvt_pk_bf16_f32 v{vQ+25}, v{vQ+14}, v{vQ+15}')
            k.nop(2)
        else:
            wr(6); tr(3, 0)
            k.wds('q2')
            for t in range(3): S(2, t)
    else:
        k.nop(8)
        cvt(6, 0); cvt(6, 1); wr(6); tr(3, 0)
        k.wds('q2')
        for t in range(3): S(2, t)
    k.wds('q3')
    for t in range(3): S(3, t)
    for t in range(3):
        k.nop(2 if (t == 0 or OPT['p64'] == 0) else 1)
        if OPT['p64'] == 0: k.ds(f'ds_write_b128 v{vSW}, {vr(vSt[t],4)} offset:{1088*t}')
        else:
            k.ds(f'ds_write_b64 v{vSW}, {vr(vSt[t],2)} offset:{1088*t}')
            k.ds(f'ds_write_b64 v{vSW}, {vr(vSt[t]+2,2)} offset:{1088*t+8}')
    k.wds0()
    k('s_barrier')
    stamp(k, 1, stamps)
    mark = len(k.lines)
    R = vQ+8
    for w in range(4): k.ds(f'ds_read_b128 {vr(R+4*w,4)}, v{vSR} offset:{w*3264}', f'r{w}')
    k(f's_cmp_eq_u32 s{sMODE}, 1')
    k.wds('r1')
    k(f'v_pk_add_f32 {vr(R,2)}, {vr(R,2)}, {vr(R+4,2)}')
    k(f'v_pk_add_f32 {vr(R+2,2)}, {vr(R+2,2)}, {vr(R+6,2)}')
    k.wds('r2')
    k(f'v_pk_add_f32 {vr(R,2)}, {vr(R,2)}, {vr(R+8,2)}')
    k(f'v_pk_add_f32 {vr(R+2,2)}, {vr(R+2,2)}, {vr(R+10,2)}')
    k.wds('r3')
    k(f'v_pk_add_f32 {vr(R,2)}, {vr(R,2)}, {vr(R+12,2)}')
    k(f'v_pk_add_f32 {vr(R+2,2)}, {vr(R+2,2)}, {vr(R+14,2)}')
    k.nop(2)
    k(f'v_permlane16_swap_b32 v{R}, v{R+2}')
    k(f'v_permlane16_swap_b32 v{R+1}, v{R+3}')
    X = R+4; m = R+6; t = R+8
    k(f'v_pk_add_f32 {vr(X,2)}, {vr(R,2)}, {vr(R+2,2)}')
    def allred(op, m):
        for rot in (8, 4, 2, 1):
            k.nop(2)
            k(f'{op}_dpp v{m}, v{m}, v{m} row_ror:{rot} row_mask:0xf bank_mask:0xf')
        k(f'v_mov_b32 v{t}, v{m}')
        k.nop(2)
        k(f'v_permlane16_swap_b32 v{m}, v{t}')
        k(f'{op} v{m}, v{m}, v{t}')
    if OPT['sm2'] == 0:
        k(f'v_max_f32 v{m}, v{X}, v{X+1}')
        allred('v_max_f32', m)
        k(f'v_pk_add_f32 {vr(X,2)}, {vr(X,2)}, {vr(m,2)} op_sel_hi:[1,0] neg_lo:[0,1] neg_hi:[0,1]')
        k(f'v_exp_f32 v{X}, v{X}')
        k(f'v_exp_f32 v{X+1}, v{X+1}')
        k.nop(1)
        k(f'v_add_f32 v{m}, v{X}, v{X+1}')
        k(f'v_mul_f32 v{m}, v{m}, v{vVal}')
        allred('v_add_f32', m)
        k(f'v_rcp_f32 v{m}, v{m}')
        k.nop(1)
        k(f'v_pk_mul_f32 {vr(X,2)}, {vr(X,2)}, {vr(m,2)} op_sel_hi:[1,0]')
    else:
        l_, M, sc = R+10, R+12, R+14
        def dpp(op, r, rot): k(f'{op}_dpp v{r}, v{r}, v{r} row_ror:{rot} row_mask:0xf bank_mask:0xf')
        k(f'v_max_f32 v{m}, v{X}, v{X+1}')
        for rot in (8, 4, 2, 1):
            k.nop(2); dpp('v_max_f32', m, rot)
        k(f'v_pk_add_f32 {vr(X,2)}, {vr(X,2)}, {vr(m,2)} op_sel_hi:[1,0] neg_lo:[0,1] neg_hi:[0,1]')
        k(f'v_mov_b32 v{M}, v{m}')
        k(f'v_exp_f32 v{X}, v{X}')
        k(f'v_mov_b32 v{t}, v{m}')
        k(f'v_exp_f32 v{X+1}, v{X+1}')
        k.nop(1)
        k(f'v_add_f32 v{l_}, v{X}, v{X+1}')
        k(f'v_permlane16_swap_b32 v{M}, v{t}')
        k(f'v_mul_f32 v{l_}, v{l_}, v{vVal}')
        k(f'v_max_f32 v{M}, v{M}, v{t}')
        k(f'v_sub_f32 v{sc}, v{m}, v{M}')
        dpp('v_add_f32', l_, 8)
        k(f'v_exp_f32 v{sc}, v{sc}')
        k.nop(1)
        dpp('v_add_f32', l_, 4)
        k(f'v_pk_mul_f32 {vr(X,2)}, {vr(X,2)}, {vr(sc,2)} op_sel_hi:[1,0]')
        k.nop(1)
        dpp('v_add_f32', l_, 2)
        k.nop(2)
        dpp('v_add_f32', l_, 1)
        k(f'v_mul_f32 v{l_}, v{l_}, v{sc}')
        k(f'v_mov_b32 v{t}, v{l_}')
        k.nop(2)
        k(f'v_permlane16_swap_b32 v{l_}, v{t}')
        k(f'v_add_f32 v{l_}, v{l_}, v{t}')
        k(f'v_rcp_f32 v{l_}, v{l_}')
        k.nop(1)
        k(f'v_pk_mul_f32 {vr(X,2)}, {vr(X,2)}, {vr(l_,2)} op_sel_hi:[1,0]')
    k(f'v_cvt_pk_bf16_f32 v{X}, v{X}, v{X+1}')
    k(f'v_min_u32 v{X}, -2, v{X}')
    if OPT['kpos'] == 'soft':
        body_ = k.lines[mark:]; k.lines = k.lines[:mark]; L = key_list()
        for x in body_:
            if x == 's_nop 1' and L: k(L.pop(0)); k('s_nop 0')
            else: k(x)
        assert not L
    publish(k, [f'buffer_store_dword v{X}, v{vPO}, {WS}, s{x} offen' for x in [sP, 47][:OPT['prep']]])
    stamp(k, 2, stamps)
    k('s_barrier')
    if stamps and OPT['tw']:
        k('s_waitcnt vmcnt(0)')
        stamp(k, 3, stamps)
    if OPT['kdel']: k(f"s_sleep {OPT['kdel']}")
    load_keys(OPT['kpos'] != 'soft')
    if OPT['sleepA']: k(f"s_sleep {OPT['sleepA']}")
    k(f's_add_u32 s{sUM}, s{sUM}, {UF_SEG}')
    k(f's_add_u32 s{sM}, s{sM}, {MEM_T}')
    k(f's_add_u32 s{sP}, s{sP}, {PB_T}')
    if stamps: k(f's_add_u32 s{sST}, s{sST}, 16')
    k(f's_add_u32 s{sSTEP}, s{sSTEP}, 1')
    k(f's_cmp_lt_u32 s{sSTEP}, {NSTEP}')
    k('s_cbranch_scc1 L_A_loop')
    edge(k, stamps, 8)
    k('s_waitcnt vmcnt(0)')
    k('s_endpgm')
    k.flush_cold()

def role_B(k, stamps=False, wait_u=None):
    WS = f's[{SWS}:{SWS+3}]'
    vLane, vL16, vG0, vG1, vIdx = 1, 2, 3, 4, 5
    vWL, vPT, vPM, vRW, vRR, vL4 = 6, 7, 8, 9, 10, 11
    vC = 12
    vM = 16
    vA = 44
    vU = 76
    vTm = 108
    vUi = 140
    vUm = 172
    vRR2 = 188
    vKeep, vFl = 191, 15
    vD = vTm
    vG = vTm + 16
    vP = [vM, vA]
    def W(gi, kb):
        i = gi*5 + kb
        return (256 + 8*i) if i < 32 else (192 + 8*(i-32))
    LM, LRED, LW = 0, 7168, 16384
    k.label('L_roleB')
    k(f's_sub_u32 s{sID}, s{sROLE}, 16')
    common_lane_setup(k, vLane, vL16, vG0, vG1, vIdx, vC)
    k(f's_lshl_b32 s{sT0}, s{sWAVE}, 2')
    k(f's_mul_i32 s{sT0}, s{sT0}, 28')
    k(f's_lshl_b32 s{sT1}, s{sID}, 1')
    k(f's_add_u32 s{sT0}, s{sT0}, s{sT1}')
    k(f's_mul_i32 s35, s{sT0}, 14336')
    k(f's_add_u32 s35, s35, {WTB}')
    k(f's_lshl_b32 s37, s{sWAVE}, 15')
    k(f's_add_u32 s37, s37, {LW}')
    k(f'v_add_u32 v{vWL}, s37, v{vL16}')
    for j in range(7):
        k(f's_add_u32 s{50+j}, s{sWAVE}, {(4*j) % 7}')
        k(f's_sub_u32 s40, s{50+j}, 7')
        k(f's_cmp_ge_u32 s{50+j}, 7')
        k(f's_cselect_b32 s{50+j}, s40, s{50+j}')
        k(f's_lshl_b32 s{50+j}, s{50+j}, 10')
    k(f'v_add_u32 v{vG1}, s51, v{vL16}')
    for gi in range(8):
        k(f's_add_u32 s36, s35, {(gi>>1)*28*14336 + (gi&1)*14336}')
        for j in range(7):
            k(f's_lshl_b32 s40, s{50+j}, 1')
            k(f's_add_u32 s40, s40, s36')
            if j >= 5:
                k(f's_add_u32 s38, s37, {gi*4096 + (j-5)*2048}')
                k(f's_mov_b32 m0, s38')
                k('s_nop 0')
            for f in range(2):
                if j < 5: k(f'buffer_load_dwordx4 {xr(W(gi, j) + 4*f,4)}, v{vL16}, {WS}, s40 offen offset:{f*1024}')
                else:     k(f'buffer_load_dwordx4 v{vL16}, {WS}, s40 offen offset:{f*1024} lds')
        k('s_waitcnt vmcnt(40)')
    g, i = vA, vA+1
    vT = vC
    k(f'v_lshrrev_b32 v{g}, 4, v{vLane}')
    k(f'v_and_b32 v{i}, 15, v{vLane}')
    k(f's_lshl_b32 s40, s{sWAVE}, 11')
    k(f'v_add_u32 v{vPT}, s40, v{vL16}')
    k(f'v_lshrrev_b32 v{vT}, 1, v{g}')
    k(f'v_lshlrev_b32 v{vT}, 8, v{vT}')
    k(f'v_lshl_add_u32 v{vT}, v{i}, 4, v{vT}')
    k(f's_lshl_b32 s40, s{sWAVE}, 9')
    k(f's_add_u32 s40, s40, 8192')
    k(f'v_add_u32 v{vPM}, s40, v{vT}')
    k(f's_lshl_b32 s40, s{sWAVE}, 10')
    k(f's_add_u32 s40, s40, {LRED}')
    k(f'v_add_u32 v{vRW}, s40, v{vL16}')
    k(f'v_and_b32 v{vT}, 3, v{vLane}')
    k(f'v_lshlrev_b32 v{vT}, 6, v{vT}')
    k(f'v_lshrrev_b32 v{vT+1}, 5, v{vLane}')
    k(f'v_lshl_add_u32 v{vT}, v{vT+1}, 5, v{vT}')
    k(f'v_lshrrev_b32 v{vT+1}, 2, v{vLane}')
    k(f'v_and_b32 v{vT+2}, 3, v{vT+1}')
    k(f'v_lshl_add_u32 v{vT}, v{vT+2}, 2, v{vT}')
    k(f'v_bfe_u32 v{vT+2}, v{vLane}, 4, 1')
    k(f'v_lshl_add_u32 v{vT}, v{vT+2}, 8, v{vT}')
    k(f's_and_b32 s40, s{sWAVE}, 1')
    k(f's_lshl_b32 s40, s40, 9')
    k(f's_add_u32 s40, s40, {LRED}')
    k(f'v_add_u32 v{vRR}, s40, v{vT}')
    for w in range(1, 4): k(f'v_add_u32 v{vRR2+w-1}, {1024*w}, v{vRR}')
    k(f's_lshl_b32 s40, s{sID}, 1')
    k(f's_and_b32 s41, s{sWAVE}, 1')
    k(f's_add_u32 s40, s40, s41')
    k(f's_lshl_b32 s40, s40, 8')
    k(f'v_lshlrev_b32 v{vL4}, 2, v{vLane}')
    k(f'v_add_u32 v{vL4}, s40, v{vL4}')
    k(f's_mov_b32 s{sSTEP}, 0')
    k(f's_lshr_b32 s{sM}, s{sWAVE}, 1')
    k(f's_mul_i32 s{sM}, s{sM}, {2*MEM_S}')
    k(f's_add_u32 s{sM}, s{sM}, {MEM}')
    k(f's_mov_b32 s47, {MEMX - MEM_S}')
    k(f"s_mov_b32 s49, {MEM + (NREP-1)*MEM_S}")
    k(f's_and_b32 s{sP}, s{sID}, 1')
    k(f"s_mul_i32 s{sP}, s{sP}, {PB_S if OPT['prep'] == 2 else 0}")
    k(f's_add_u32 s{sP}, s{sP}, {PB}')
    k(f's_lshl_b32 s{sX}, s{sID}, 15')
    k(f's_lshl_b32 s40, s{sWAVE}, 13')
    k(f's_add_u32 s{sX}, s{sX}, s40')
    k(f's_add_u32 s{sX}, s{sX}, {UF}')
    k(f's_mul_i32 s{sUM}, s{sWAVE}, {2*28*1024}')
    k(f's_lshl_b32 s40, s{sID}, 11')
    k(f's_add_u32 s{sUM}, s{sUM}, s40')
    k(f's_add_u32 s{sUM}, s{sUM}, {UM}')
    k(f's_mov_b32 s43, s{sUM}')
    def ldu(j, s0=sX):
        hh, T = j >> 1, j & 1
        r = vU + 16*(hh>>1) + 8*T + 4*(hh&1)
        return f'buffer_load_dwordx4 {vr(r,4)}, v{vL16}, {WS}, s{s0 if j<4 else sT0} offen offset:{(j&3)*1024} ' + OPT['uf']
    def stum(u, T):
        return f'buffer_store_dwordx4 {vr(vUm+8*T+4*u,4)}, v{vL16}, {WS}, s{43 if u==0 else 44} offen offset:{T*1024} ' + OPT['um']
    def lw(gi):
        b = vTm + 16*(gi&1)
        for f in range(4): k.ds(f'ds_read_b128 {vr(b+4*f,4)}, v{vWL} offset:{gi*4096+f*1024}', f'w{gi}')
    def load_u(ahead):
        if wait_u:
            lu = k.newlabel('Lnu')
            k(f's_add_u32 s{sT0}, s{sSTEP}, {ahead}')
            k(f's_and_b32 s{sT1}, s{sT0}, 3')
            k(f's_cbranch_scc1 {lu}')
            k(f's_lshl_b32 s{sT0}, s{sT0}, 5')
            k(f's_add_u32 s{sT0}, s{sT0}, {flag(F_U)}')
            wait_u(k, sT0, 32, vC, sleep=1)
            k.label(lu)
        k(f's_add_u32 s{sT0}, s{sX}, 4096')
        for j in range(8): k(ldu(j))
        k(f's_add_u32 s{sX}, s{sX}, {UF_SEG}')
    if OPT['u0'] == 'pro': load_u(0)
    wait_mode(k, vC)
    sw = []
    for o in range(4):
        r = vU + 8*o
        for e in range(4):
            sel = e & 1
            sw.append(f'v_pk_mov_b32 {vr(vUi+8*o+2*e,2)}, {vr(r+(e&2),2)}, {vr(r+4+(e&2),2)} op_sel:[{sel},{sel}]')
    if stamps: k(f's_add_u32 s76, s{sST}, 0x20000')
    edge(k, stamps, 0)
    k.label('L_B_loop')
    lp = k.newlabel('Lgm')
    def gl():
        sb = 49
        k(f'buffer_load_dwordx4 {vr(vM,4)}, v{vG0}, {WS}, s{sb} offen sc1')
        k(f'buffer_load_dwordx4 {vr(vM+4,4)}, v{vG1}, {WS}, s{sb} offen sc1')
    k(f's_waitcnt vmcnt({NREP})')
    NU = OPT['nu2']
    k(f's_add_u32 s{sT0}, s{sX}, {4096 - UF_SEG}')
    k(f's_sub_u32 s{sT1}, s{sX}, {UF_SEG}')
    for j in range(8-NU, 8): k(ldu(j, sT1))
    gl()
    NS = 8 if NU <= 4 else 0
    if NU == 0: NS = 16
    for x in sw[:NS]: k(x)
    for r in range(0, 32, 2): k(f'v_mov_b64 {vr(vA+r,2)}, 0')
    for j in range(2, 7): k(f'v_add_u32 v{vG+j}, s{50+j}, v{vL16}')
    k(f's_add_u32 s45, s{sSTEP}, 1')
    k(f's_lshr_b32 s45, s45, 2')
    k(f's_lshl_b32 s45, s45, 7')
    k(f's_add_u32 s45, s45, {flag(F_U)}')
    k(f's_add_u32 s44, s43, {28*1024}')
    vm = [stum(0,0), stum(0,1), stum(1,0), stum(1,1)] + [ldu(j) for j in range(8)]
    lw(0)
    k(f's_mov_b32 s{sCNT}, 0')
    k(f's_branch {lp}w')
    k.label(lp)
    if OPT['bgs']: k(f"s_sleep {OPT['bgs']}")
    gl()
    k(f's_add_u32 s{sCNT}, s{sCNT}, 1')
    k(f's_cmp_gt_u32 s{sCNT}, s{sT2}')
    k('s_cbranch_scc1 L_fail')
    k.label(lp + 'w')
    k('s_waitcnt vmcnt(1)')
    k(f'v_max3_u32 v{vC}, v{vM}, v{vM+1}, v{vM+2}')
    k('s_waitcnt vmcnt(0)')
    k(f'v_max3_u32 v{vC+1}, v{vM+4}, v{vM+5}, v{vM+6}')
    k(f'v_max3_u32 v{vC}, v{vC}, v{vM+3}, v{vM+7}')
    k(f'v_max_u32 v{vC}, v{vC}, v{vC+1}')
    k(f'v_cmp_eq_u32 vcc, -1, v{vC}')
    k(f's_cbranch_vccnz {lp}')
    stamp(k, 0, stamps)
    k.ds(f'ds_write_b128 v{vG0}, {vr(vM,4)} offset:{LM}')
    k.ds(f'ds_write_b128 v{vG1}, {vr(vM+4,4)} offset:{LM}')
    ls, l2 = k.newlabel('Lbs'), k.newlabel('Lbt')
    k(f's_cmp_eq_u32 s{sSTEP}, 0')
    k(f's_cbranch_scc1 {l2}')
    k(f's_cmp_ge_u32 s{sWAVE}, 2')
    k(f's_cbranch_scc1 {ls}')
    k(f'buffer_store_dword v{vKeep}, v{vL4}, {WS}, s47 offen sc1')
    k(f's_branch {l2}')
    k.label(ls)
    k(f's_cmp_eq_u32 s{sWAVE}, 2')
    k(f's_cselect_b32 s{sT0}, s{sSTEP}, 0')
    k(f's_cmp_le_u32 s{sT0}, 1')
    k(f's_cbranch_scc1 {l2}')
    k(f's_lshl_b32 s{sT0}, s{sSTEP}, 7')
    k(f's_add_u32 s{sT0}, s{sT0}, {flag(F_UM) - 256}')
    k('s_mov_b64 exec, 1')
    k(f'v_mov_b32 v{vC}, 1')
    k(f'buffer_atomic_add v{vC}, off, {WS}, s{sT0}')
    k('s_mov_b64 exec, -1')
    k.label(l2)
    k(f'buffer_load_dword v{vFl}, off, {WS}, s45 sc1')
    for x in vm[:4]: k(x)
    def acc(gi): return vA + 4*gi
    def cvt(gi, h):
        hh, T = gi>>1, gi&1
        d = vUm + 8*T + 4*(hh>>1) + 2*h + (hh&1)
        a = acc(gi) + 2*h
        k(f'v_cvt_pk_bf16_f32 v{d}, v{a}, v{a+1}')
    def lw1(gi, f):
        k.ds(f'ds_read_b128 {vr(vTm+16*(gi&1)+4*f,4)}, v{vWL} offset:{gi*4096+f*1024}', f'w{gi}')
    def MB(gi, j):
        w = xr(W(gi,j),8) if j < 5 else vr(vTm + 16*(gi&1) + 8*(j-5), 8)
        k(f'v_smfmac_f32_16x16x64_bf16 {vr(acc(gi),4)}, {vr(vM+4*j,4)}, {w}, v{vIdx}')
    for n in range(16):
        MB(n & 7, n >> 3)
        if n == 5:
            k.wds0(); k('s_barrier')
        if 5 <= n < 10:
            k.ds(f'ds_read_b128 {vr(vM+4*(n-3),4)}, v{vG+n-3} offset:{LM}', f'm{n-3}')
    for gi in range(8):
        for j in range(2, 7):
            if gi == 0: k.wds(f'm{j}')
            if j == 5: k.wds(f'w{gi}')
            MB(gi, j)
            if gi < 7 and j in (2, 3, 5, 6): lw1(gi+1, {2:0, 3:1, 5:2, 6:3}[j])
            if gi >= 1 and j == 4: cvt(gi-1, 0); cvt(gi-1, 1)
    k(f's_mov_b32 s43, s{sUM}')
    k(f's_add_u32 s{sUM}, s{sUM}, {UM_SEG}')
    for x in sw[NS:]: k(x)
    k.nop(6 if NS == 16 else 0)
    cvt(7, 0); cvt(7, 1)
    for r in range(0, 8, 2): k(f'v_mov_b64 {vr(vD+r,2)}, 0')
    k(f's_cmp_ge_u32 s{sSTEP}, {NSTEP}')
    k('s_cbranch_scc1 L_B_end')
    k('s_waitcnt vmcnt(4)')
    if OPT['u0'] == 'cold':
        l0, l1 = k.newlabel('Lu0'), k.newlabel('Lu1')
        k(f's_cmp_eq_u32 s{sSTEP}, 0')
        k(f's_cbranch_scc1 {l0}')
        k.label(l1)
        main = k.lines; k.lines = []
        k.label(l0)
        load_u(0)
        k('s_waitcnt vmcnt(0)')
        for x in sw: k(x)
        k(f'v_mov_b32 v{vFl}, 32')
        k(f's_branch {l1}')
        k.cold += k.lines; k.lines = main
    if wait_u:
        lu = k.newlabel('Lnu')
        k(f'v_cmp_le_u32 vcc, 32, v{vFl}')
        k(f's_cbranch_vccnz {lu}')
        wait_u(k, 45, 32, vC)
        k.label(lu)
    k(f's_add_u32 s{sT0}, s{sX}, 4096')
    for j in range(8-NU): k(ldu(j))
    k(f's_add_u32 s{sX}, s{sX}, {UF_SEG}')
    stamp(k, 1, stamps)
    if OPT['sleepB']: k(f"s_sleep {OPT['sleepB']}")
    def issue(st):
        P = vP[st]
        return [f'buffer_load_dwordx4 {vr(P,4)}, v{vPT}, {WS}, s{sP} offen sc1',
                f'buffer_load_dwordx4 {vr(P+4,4)}, v{vPT}, {WS}, s{sP} offen offset:1024 sc1',
                f'buffer_load_dwordx4 {vr(P+8,4)}, v{vPM}, {WS}, s{sP} offen sc1']
    def checks(st):
        P = vP[st]
        return [(2, [f'v_max3_u32 v{vC}, v{P}, v{P+1}, v{P+2}']),
                (1, [f'v_max3_u32 v{vC+1}, v{P+4}, v{P+5}, v{P+6}', f'v_max3_u32 v{vC}, v{vC}, v{P+3}, v{P+7}']),
                (0, [f'v_max3_u32 v{vC+1}, v{vC+1}, v{P+8}, v{P+9}', f'v_max3_u32 v{vC}, v{vC}, v{P+10}, v{P+11}',
                     f'v_max_u32 v{vC}, v{vC}, v{vC+1}', f'v_cmp_eq_u32 vcc, -1, v{vC}'])]
    def body(st):
        P = vP[st]
        stamp(k, 2, stamps)
        for j in range(3):
            for T in range(2):
                b = vr(vUi + 16*j + 8*T, 8) if j < 2 else vr(vUm + 8*T, 8)
                k(f'v_smfmac_f32_16x16x64_bf16 {vr(vD+4*T,4)}, {vr(P+4*j,4)}, {b}, v{vIdx}')
    if OPT['bp2']: poll2(k, issue, checks, body, 'Lpp', OPT['stag'])
    else:
        lp = k.newlabel('Lp1')
        k(f's_mov_b32 s{sCNT}, 0')
        k.label(lp)
        for x in issue(0): k(x)
        k(f's_add_u32 s{sCNT}, s{sCNT}, 1')
        k(f's_cmp_gt_u32 s{sCNT}, s{sT2}')
        k('s_cbranch_scc1 L_fail')
        for rel, ins in checks(0):
            k(f's_waitcnt vmcnt({rel})')
            for x in ins: k(x)
        k(f's_cbranch_vccnz {lp}')
        body(0)
    k(f's_add_u32 s{sM}, s{sM}, {MEM_T}')
    k(f's_add_u32 s47, s47, {MEM_S}')
    k(f's_add_u32 s48, s{sM}, {MEM_S}')
    k(f's_add_u32 s49, s49, {MEM_T}')
    k(f's_add_u32 s{sP}, s{sP}, {PB_T}')
    k.nop(6)
    for r in range(4): k(f'v_permlane32_swap_b32 v{vD+r}, v{vD+4+r}')
    k(f'v_pk_add_f32 {vr(vD,2)}, {vr(vD,2)}, {vr(vD+4,2)}')
    k(f'v_pk_add_f32 {vr(vD+2,2)}, {vr(vD+2,2)}, {vr(vD+6,2)}')
    k.ds(f'ds_write_b128 v{vRW}, {vr(vD,4)}')
    k.wds0()
    k('s_barrier')
    if OPT['rep'] == 3:
        k(f's_cmp_ge_u32 s{sWAVE}, 2')
        k('s_cbranch_scc1 L_B_skip')
    R = vG
    for w in range(4): k.ds(f'ds_read2_b32 {vr(R+2*w,2)}, v{vRR} offset0:{0} offset1:{4}' if w == 0 else
                            f'ds_read2_b32 {vr(R+2*w,2)}, v{vRR2+w-1} offset0:0 offset1:4', f'r{w}')
    k(f's_cmp_eq_u32 s{sMODE}, 1')
    k.wds('r1')
    k(f'v_pk_add_f32 {vr(R,2)}, {vr(R,2)}, {vr(R+2,2)}')
    k.wds('r3')
    k(f'v_pk_add_f32 {vr(R+4,2)}, {vr(R+4,2)}, {vr(R+6,2)}')
    k(f'v_pk_add_f32 {vr(R,2)}, {vr(R,2)}, {vr(R+4,2)}')
    k(f'v_cvt_pk_bf16_f32 v{R}, v{R}, v{R+1}')
    k(f'v_min_u32 v{R}, -2, v{R}')
    publish(k, [f'buffer_store_dword v{R}, v{vL4}, {WS}, s{x} offen' for x in {1: [sM], 2: [sM, 49], 3: [sM, 48, 49]}[NREP]])
    k(f'v_mov_b32 v{vKeep}, v{R}')
    k(f's_cmp_lg_u32 s{sSTEP}, {NSTEP-1}')
    k('s_cbranch_scc1 L_B_skip2')
    k(f'buffer_store_dword v{R}, v{vL4}, {WS}, s47 offen sc1')
    k('s_branch L_B_skip2')
    k.label('L_B_skip')
    k('s_waitcnt vmcnt(0)')
    k.label('L_B_skip2')
    stamp(k, 3, stamps)
    k('s_barrier')
    k(f's_add_u32 s{sSTEP}, s{sSTEP}, 1')
    if stamps: k(f's_add_u32 s{sST}, s{sST}, 16')
    k('s_branch L_B_loop')
    k.label('L_B_end')
    edge(k, stamps, 8)
    for r in range(16): k(f'v_min_u32 v{vUm+r}, -2, v{vUm+r}')
    k(f's_add_u32 s44, s43, {28*1024}')
    for x in vm[:4]: k(x)
    k('s_waitcnt vmcnt(4)')
    k('s_barrier')
    k(f's_cmp_lg_u32 s{sWAVE}, 0')
    k('s_cbranch_scc1 L_exit')
    k('s_mov_b64 exec, 1')
    k(f'v_mov_b32 v{vC}, 1')
    k(f's_mov_b32 s{sT0}, {flag(F_UM + 62)}')
    k(f'buffer_atomic_add v{vC}, off, {WS}, s{sT0}')
    k('s_endpgm')
    k.flush_cold()

def role_P(k, wait_u=None):
    WS = f's[{SWS}:{SWS+3}]'
    vLane, vU, vX, vS, vD = 1, 2, 3, 4, 8
    D = OPT['pfd']; st = OPT['pfs']; sh = 7 if st == 128 else 6
    k.label('L_roleP')
    k(f's_mov_b32 s{sT2}, {POLL_LIMIT}')
    k(f's_sub_u32 s{sID}, s{sROLE}, 30')
    k(f's_lshl_b32 s{sID}, s{sID}, 2')
    k(f's_add_u32 s{sID}, s{sID}, s{sWAVE}')
    k(f'v_and_b32 v{vLane}, 63, v0')
    k(f'v_lshlrev_b32 v{vU}, {sh}, v{vLane}')
    k(f's_mul_i32 s40, s{sID}, {UF_SEG//8}')
    k(f'v_add_u32 v{vU}, s40, v{vU}')
    f2 = 2 if OPT['pf64'] else 1
    for reg, n in ((vX, 28*f2), (vS, PB_T//1024*f2), (vS+1, 7*NREP*f2)):
        k(f'v_min_u32 v{reg}, {n-1}, v{vLane}')
        k(f's_mul_i32 s40, s{sID}, {n}')
        k(f'v_add_lshl_u32 v{reg}, v{reg}, s40, {8 - f2}')
    k(f's_mov_b32 s{sSTEP}, 0')
    k(f's_mov_b32 s{sX}, {UF}')
    k(f's_mov_b32 s{sUM}, {XNS}')
    k(f's_mov_b32 s{sP}, {PB}')
    k(f's_mov_b32 s{sM}, {MEM + MEM_T}')
    k(f's_mov_b32 s41, {MEM - D*MEM_T + (NREP-1)*MEM_S}')
    if OPT['cpf']:
        k('s_getpc_b64 s[44:45]')
        k.label('L_P_pc')
        k('s_sub_u32 s44, s44, L_P_pc-L_roleA')
        k('s_subb_u32 s45, s45, 0')
        k(f's_lshl_b32 s40, s{sID}, 12')
        k(f'v_lshlrev_b32 v20, 6, v{vLane}')
        k('v_add_u32 v20, s40, v20')
        k('v_min_u32 v20, L_P_pc-L_roleA, v20')
        k('v_mov_b32 v21, s45')
        k('v_add_co_u32 v20, vcc, s44, v20')
        k('s_nop 1')
        k('v_addc_co_u32 v21, vcc, 0, v21, vcc')
        k('global_load_dword v22, v[20:21], off')
    k.label('L_P_loop')
    k(f's_cmp_le_u32 s{sSTEP}, {D}')
    k('s_cbranch_scc1 L_P_go')
    k(f's_mov_b32 s{sCNT}, 0')
    k.label('L_P_wait')
    k(f'buffer_load_dword v{vD}, off, {WS}, s41 sc1')
    k(f's_add_u32 s{sCNT}, s{sCNT}, 1')
    k(f's_cmp_gt_u32 s{sCNT}, s{sT2}')
    k('s_cbranch_scc1 L_fail')
    k('s_waitcnt vmcnt(0)')
    k(f'v_cmp_eq_u32 vcc, -1, v{vD}')
    k('s_cbranch_vccz L_P_go')
    k('s_sleep 2')
    k('s_branch L_P_wait')
    k.label('L_P_go')
    k(f'buffer_load_dword v{vD+1}, v{vS}, {WS}, s{sP} offen sc1')
    k(f'buffer_load_dword v{vD+2}, v{vS+1}, {WS}, s{sM} offen sc1')
    k(f'buffer_load_dword v{vD+3}, v{vX}, {WS}, s{sUM} offen sc1')
    n = 0 if OPT['apf'] else UF_SEG // 8 // (64*st)
    k(f's_mov_b32 s{sT0}, s{sX}')
    for j in range(n):
        k(f'buffer_load_dword v{vD+4+j}, v{vU}, {WS}, s{sT0} offen sc1')
        k(f's_add_u32 s{sT0}, s{sT0}, {64*st}')
    k(f's_add_u32 s{sX}, s{sX}, {UF_SEG}')
    k(f's_add_u32 s{sUM}, s{sUM}, 28672')
    k(f's_add_u32 s{sP}, s{sP}, {PB_T}')
    k(f's_add_u32 s{sM}, s{sM}, {MEM_T}')
    k(f's_add_u32 s41, s41, {MEM_T}')
    k(f's_add_u32 s{sSTEP}, s{sSTEP}, 1')
    k(f's_cmp_lt_u32 s{sSTEP}, {NSTEP}')
    k('s_cbranch_scc1 L_P_loop')
    k('s_waitcnt vmcnt(0)')
    k('s_endpgm')
```

```python
WTA   = 0
WT_SZ = 16*28*14*1024
WTB   = WTA + WT_SZ
XNF   = WTB + WT_SZ
XN_SZ = 128*14*1024
XNS   = XNF + XN_SZ
XNR   = XNS + XN_SZ
UF    = XNR + XN_SZ
UF_SEG = 16*28*1024
UM    = UF + 64*UF_SEG
UM_SEG = 8*28*1024
MEM   = UM + 64*UM_SEG
MEM_S = 7168
import os
NREP  = int(os.environ.get('NREP', '3'))
MEM_T = NREP*MEM_S
PB    = MEM + 64*MEM_T
PB_S  = 10240
PB_T  = PB_S
MEMX  = PB + 64*PB_T
SENT_END = MEMX + 64*MEM_S
PT    = SENT_END
PT_SEG = 48*1024
RR    = PT + 64*PT_SEG
HB    = RR + 8192
UPD   = HB + 32768
IDX   = UPD + 65536
FLG   = IDX + 4096
FLG_SZ = 128*256
STAMP = FLG + FLG_SZ
WS_USED = STAMP + (1<<20)
WS_SIZE = 268435456

def sigma(ks, g, jj):
    return 32*ks + 16*(g>>1) + 4*(jj>>1) + 2*(g&1) + (jj&1)
def nrow(nt, c):
    p, T = nt>>1, nt&1
    return sigma(p, c>>2, 4*T + (c&3))

F_U, F_P, F_UM, F_M1, F_M2 = 0, 16, 32, 96, 97
def flag(i): return FLG + 128*i
```

```python
from chain import K, OPT
from asmlib import *
from layout import *
import math, struct

def f32bits(x): return struct.unpack('<I', struct.pack('<f', x))[0]
PREP_GRID, PREP_BLOCK, PREP_LDS = 256, 512, 3*43008

def srd(k, s, argoff, size):
    k(f's_load_dwordx2 s[{s}:{s+1}], s[0:1], {argoff}')
    k(f's_mov_b32 s{s+2}, {size}')
    k(f's_mov_b32 s{s+3}, 0x20000')

def gen_prep(tl=False):
    k = K()
    WS = 's[4:7]'
    k(f's_cmp_ge_u32 s2, {PREP_GRID}')
    k('s_cbranch_scc1 P_exit')
    srd(k, 4, 112, WS_SIZE)
    k('v_lshrrev_b32 v1, 6, v0')
    k('v_and_b32 v2, 63, v0')
    k('v_readfirstlane_b32 s16, v1')
    if tl: k('s_memrealtime s[40:41]')
    k('s_nop 2')
    if OPT['k1pf']:
        k('s_cmp_ge_u32 s16, 4')
        k('s_cbranch_scc1 P_nopf')
        k('s_lshl_b32 s44, s16, 3')
        k('s_add_u32 s44, s44, 16')
        k('s_load_dwordx2 s[56:57], s[0:1], s44')
        k('s_mov_b32 s58, 3670016')
        k('s_mov_b32 s59, 0x20000')
        k('v_lshlrev_b32 v190, 7, v2')
        k('s_mul_i32 s44, s2, 14336')
        k('s_add_u32 s45, s44, 6144')
        k('s_waitcnt lgkmcnt(0)')
        k('s_and_b32 s57, s57, 0xffff')
        k('buffer_load_dword v191, v190, s[56:59], s44 offen')
        k('buffer_load_dword v189, v190, s[56:59], s45 offen')
        k.label('P_nopf')
    k('s_cmp_eq_u32 s16, 7')
    k('s_cbranch_scc1 P_ln')
    k('s_and_b32 s19, s2, 15')
    k('s_bfe_u32 s18, s2, 0x10005')
    k('s_lshr_b32 s20, s2, 6')
    k('s_bitcmp1_b32 s2, 4')
    k('s_cbranch_scc1 P_gB0')
    srd(k, 8, 16, 3670016); srd(k, 12, 24, 3670016)
    k('s_branch P_g1')
    k.label('P_gB0')
    srd(k, 8, 32, 3670016); srd(k, 12, 40, 3670016)
    k.label('P_g1')
    vI, vG, vL16 = 3, 4, 5
    vR, vC, vRA, vCA, vt = 6, 10, 12, 16, 18
    vRAs, vCAs = 20, 24
    k(f'v_and_b32 v{vI}, 15, v2')
    k(f'v_lshrrev_b32 v{vG}, 4, v2')
    k(f'v_lshlrev_b32 v{vL16}, 4, v2')
    k('s_mul_i32 s21, s18, 7')
    k('s_add_u32 s21, s21, s16')
    k(f'v_lshrrev_b32 v{vt}, 3, v2')
    k('s_lshl_b32 s22, s21, 5')
    k(f'v_add_u32 v{vt}, s22, v{vt}')
    k(f'v_lshlrev_b32 v{vt}, 13, v{vt}')
    k('s_lshl_b32 s22, s19, 9')
    k(f'v_add_u32 v{vt}, s22, v{vt}')
    k(f'v_and_b32 v{vt+1}, 7, v2')
    k(f'v_and_b32 v26, 1, v{vG}')
    k(f'v_xor_b32 v{vt+1}, v{vt+1}, v26')
    for q in range(4):
        k(f'v_xor_b32 v26, {2*q}, v{vt+1}')
        k(f'v_lshl_add_u32 v{vR+q}, v26, 4, v{vt}')
        if q: k(f'v_add_u32 v{vR+q}, {q*8*8192}, v{vR+q}')
    k(f'v_lshrrev_b32 v{vt}, 2, v{vI}')
    k(f'v_bfe_u32 v{vt+1}, v{vI}, 1, 1')
    k(f'v_lshl_add_u32 v{vt+1}, v{vt}, 1, v{vt+1}')
    k(f'v_xor_b32 v{vt+1}, v{vt+1}, v{vG}')
    k(f'v_lshlrev_b32 v{vt+1}, 4, v{vt+1}')
    k(f'v_lshl_add_u32 v{vt+1}, v{vt}, 10, v{vt+1}')
    k(f'v_and_b32 v{vt}, 3, v{vI}')
    k(f'v_lshl_add_u32 v{vt+1}, v{vt}, 7, v{vt+1}')
    k('s_lshl_b32 s33, s16, 12')
    k(f'v_add_u32 v{vRA}, s33, v{vt+1}')
    k(f'v_xor_b32 v{vRA+1}, 64, v{vRA}')
    k('s_lshl_b32 s22, s18, 1')
    k('s_add_u32 s22, s22, s20')
    for j in range(4):
        k(f's_add_u32 s{24+j}, s22, {j}')
        k(f's_and_b32 s{24+j}, s{24+j}, 3')
    vAcc, vOp = 28, 84
    k('s_lshl_b32 s32, s16, 11')
    k('s_add_u32 s32, s32, 28672')
    def mm(n):
        o = vOp + 36*(n&1)
        for T in range(2):
            for ct in range(7):
                a = vAcc + 28*T + 4*ct
                k(f'v_mfma_f32_16x16x32_bf16 {vr(a,4)}, {vr(o+4*T,4)}, {vr(o+8+4*ct,4)}, {"0" if n == 0 else vr(a,4)}')
    def body(gstep, rdc, cdma):
        if tl == 2: k('s_memrealtime s[46:47]')
        k('s_waitcnt lgkmcnt(0)')
        if tl == 2: k('s_memrealtime s[48:49]')
        k('s_and_b32 s5, s5, 0xffff'); k('s_and_b32 s9, s9, 0xffff'); k('s_and_b32 s13, s13, 0xffff')
        k.vmq = []
        def issue(j):
            sb = (j % 3)*43008
            k(f's_lshl_b32 s36, s{24+j}, 7')
            k(f's_mul_i32 s35, s{24+j}, {gstep}')
            for q in range(4):
                k(f's_add_u32 s34, s33, {sb + q*1024}')
                k('s_mov_b32 m0, s34')
                k('s_nop 0')
                k.vm(f'buffer_load_dwordx4 v{vR+q}, s[8:11], s36 offen lds', j)
            cdma(sb, j)
        D = OPT['k1d']
        for j in range(D): issue(j)
        if tl == 2: k('s_memrealtime s[50:51]')
        def rd(n):
            j, es = n >> 1, n & 1
            o = vOp + 36*(n&1)
            for T in range(2): k(f'ds_read_b128 {vr(o+4*T,4)}, v{vRAs+es} offset:{T*512}')
            rdc(o + 8, es)
        for n in range(9):
            j = n >> 1
            if n < 8 and n % 2 == 0:
                sb = (j % 3)*43008
                k.wvm(j, extra='lgkmcnt(0)')
                k('s_barrier')
                if j + D < 4: issue(j + D)
                if tl == 1 and j in (0, 1, 3): k(f's_memrealtime s[{46+2*((j+1)//2)}:{47+2*((j+1)//2)}]')
                for e in range(2):
                    k(f'v_add_u32 v{vRAs+e}, {sb}, v{vRA+e}')
                    k(f'v_add_u32 v{vCAs+e}, {sb}, v{vCA+e}')
            if n < 8: rd(n)
            if n > 0:
                k(f's_waitcnt lgkmcnt({0 if (n == 8 or tl) else min(15, rdc.n + 2)})')
                mm(n-1)
    k('s_bitcmp1_b32 s2, 4')
    k('s_cbranch_scc1 P_gB')
    k('s_mul_i32 s22, s20, 7')
    k('s_add_u32 s22, s22, s16')
    k('s_lshr_b32 s23, s22, 1')
    k('s_lshl_b32 s23, s23, 5')
    k('s_and_b32 s22, s22, 1')
    k('s_lshl_b32 s22, s22, 3')
    k('s_add_u32 s22, s22, s23')
    k(f'v_bfe_u32 v{vt}, v2, 4, 1')
    k(f'v_lshlrev_b32 v{vt}, 2, v{vt}')
    k(f'v_bfe_u32 v{vt+1}, v2, 5, 1')
    k(f'v_lshl_add_u32 v{vt}, v{vt+1}, 1, v{vt}')
    k(f'v_bfe_u32 v{vt+1}, v2, 3, 1')
    k(f'v_add3_u32 v{vt}, v{vt}, v{vt+1}, s22')
    k(f'v_lshlrev_b32 v{vt}, 13, v{vt}')
    k('s_lshl_b32 s22, s19, 9')
    k(f'v_add_u32 v{vt}, s22, v{vt}')
    k(f'v_and_b32 v{vt+1}, 7, v2')
    k(f'v_xor_b32 v{vt+1}, v{vt+1}, v{vG}')
    k(f'v_lshl_add_u32 v{vC}, v{vt+1}, 4, v{vt}')
    k(f'v_xor_b32 v{vt+1}, 4, v{vt+1}')
    k(f'v_lshl_add_u32 v{vC+1}, v{vt+1}, 4, v{vt}')
    k(f'v_add_u32 v{vC+1}, {16*8192}, v{vC+1}')
    k(f'v_lshrrev_b32 v{vt}, 1, v{vI}')
    k(f'v_xor_b32 v{vt}, v{vt}, v{vG}')
    k(f'v_lshlrev_b32 v{vt}, 4, v{vt}')
    k(f'v_lshl_add_u32 v{vt}, v{vI}, 7, v{vt}')
    k(f'v_add_u32 v{vCA}, 28672, v{vt}')
    k(f'v_xor_b32 v{vCA+1}, 64, v{vCA}')
    def rdA(o, es):
        for ct in range(7): k(f'ds_read_b128 {vr(o+4*ct,4)}, v{vCAs+es} offset:{ct*2048}')
    rdA.n = 7
    def dmaA(sb, j):
        for hq in range(2):
            k(f's_add_u32 s34, s32, {sb + hq*1024}')
            k('s_mov_b32 m0, s34')
            k('s_nop 0')
            k.vm(f'buffer_load_dwordx4 v{vC+hq}, s[12:15], s35 offen lds', j)
    body(128, rdA, dmaA)
    k(f's_mov_b32 s22, {f32bits(math.log2(math.e)/16):#x}')
    k(f's_mov_b32 s23, {WTA}')
    k('s_branch P_gepi')
    k.label('P_gB')
    k(f's_mov_b32 s22, {(1<<32)//14 + 1}')
    k(f'v_mul_hi_u32 v{vt}, v0, s22')
    k(f'v_mul_u32_u24 v{vt+1}, 14, v{vt}')
    k(f'v_sub_u32 v{vt+1}, v0, v{vt+1}')
    k(f'v_mul_u32_u24 v{vt}, 896, v{vt}')
    k(f'v_lshl_add_u32 v{vt}, v{vt+1}, 4, v{vt}')
    k('s_mul_i32 s22, s19, 229376')
    k('s_mul_i32 s23, s20, 224')
    k('s_add_u32 s22, s22, s23')
    k(f'v_add_u32 v{vC}, s22, v{vt}')
    k(f'v_add_u32 v{vC+1}, {32*896}, v{vC}')
    k('s_lshl_b32 s32, s16, 10')
    k('s_add_u32 s32, s32, 28672')
    k(f'v_bfe_u32 v{vt}, v2, 2, 2')
    k(f'v_lshl_add_u32 v{vt}, v{vG}, 3, v{vt}')
    k(f'v_mul_u32_u24 v{vt}, 224, v{vt}')
    k(f'v_and_b32 v{vt+1}, 3, v2')
    k(f'v_lshl_add_u32 v{vt}, v{vt+1}, 3, v{vt}')
    k(f'v_add_u32 v{vCA}, 28672, v{vt}')
    k(f'v_add_u32 v{vCA+1}, 7168, v{vCA}')
    def rdB(o, es):
        for ct in range(7):
            for hh in range(2): k(f'ds_read_b64_tr_b16 {vr(o+4*ct+2*hh,2)}, v{vCAs+es} offset:{ct*32+hh*896}')
    rdB.n = 14
    def dmaB(sb, j):
        for hq in range(2):
            k(f's_add_u32 s34, s32, {sb + hq*7168}')
            k('s_mov_b32 m0, s34')
            k('s_nop 0')
            k.vm(f'buffer_load_dwordx4 v{vC+hq}, s[12:15], s35 offen lds', j)
    body(64*896, rdB, dmaB)
    k('s_mov_b32 s22, 1.0')
    k(f's_mov_b32 s23, {WTB}')
    k.label('P_gepi')
    if tl: k('s_memrealtime s[52:53]')
    k('s_mul_i32 s24, s19, 28')
    k('s_mul_i32 s25, s20, 7')
    k('s_add_u32 s24, s24, s25')
    k('s_mul_i32 s24, s24, 14')
    k('s_add_u32 s24, s24, s21')
    k('s_lshl_b32 s24, s24, 10')
    k('s_add_u32 s24, s24, s23')
    k('s_mov_b32 s23, s22')
    for ct in range(7):
        d = vOp + 4*ct
        for T in range(2):
            a = vAcc + 28*T + 4*ct
            k(f'v_pk_mul_f32 {vr(a,2)}, {vr(a,2)}, s[22:23]')
            k(f'v_pk_mul_f32 {vr(a+2,2)}, {vr(a+2,2)}, s[22:23]')
            k(f'v_cvt_pk_bf16_f32 v{d+2*T}, v{a}, v{a+1}')
            k(f'v_cvt_pk_bf16_f32 v{d+2*T+1}, v{a+2}, v{a+3}')
        k(f'buffer_store_dwordx4 {vr(d,4)}, v{vL16}, {WS}, s24 offen ' + OPT['k1st'])
        k('s_add_u32 s24, s24, 14336')
    if tl:
        k('s_waitcnt vmcnt(0)')
        k('s_memrealtime s[42:43]')
        k('s_lshl_b32 s44, s2, 5')
        k(f's_add_u32 s44, s44, {STAMP + 0xE0000}')
        k('s_waitcnt lgkmcnt(0)')
        k('v_mov_b32 v10, s40'); k('v_mov_b32 v11, s42'); k('v_mov_b32 v12, s46'); k('v_mov_b32 v13, s48')
        k('v_mov_b32 v14, s50'); k('v_mov_b32 v15, s52')
        k(f'buffer_store_dwordx4 v[10:13], off, {WS}, s44')
        k(f'buffer_store_dwordx2 v[14:15], off, {WS}, s44 offset:16')
    k('s_endpgm')
    k.label('P_ln')
    srd(k, 8, 0, 1835008); srd(k, 12, 64, 896)
    srd(k, 28, 8, 7168)
    k('s_mov_b32 s17, s2')
    k('v_lshrrev_b32 v3, 3, v2')
    k('s_lshl_b32 s18, s17, 3')
    k('v_add_u32 v3, s18, v3')
    k('v_and_b32 v4, 7, v2')
    k('v_mul_u32_u24 v5, 896, v3')
    k('v_lshl_add_u32 v5, v4, 4, v5')
    k('v_lshlrev_b32 v6, 4, v4')
    vX, vW, vF = 16, 44, 72
    k('s_waitcnt lgkmcnt(0)')
    k('s_and_b32 s5, s5, 0xffff'); k('s_and_b32 s9, s9, 0xffff'); k('s_and_b32 s13, s13, 0xffff')
    for i in range(7): k(f'buffer_load_dwordx4 {vr(vX+4*i,4)}, v5, s[8:11], 0 offen offset:{i*128}')
    for i in range(7): k(f'buffer_load_dwordx4 {vr(vW+4*i,4)}, v6, s[12:15], 0 offen offset:{i*128}')
    k('v_lshrrev_b32 v7, 4, v3')
    k('v_mul_u32_u24 v7, 14336, v7')
    k('v_and_b32 v8, 15, v3')
    k('v_lshl_add_u32 v7, v8, 4, v7')
    k('v_lshrrev_b32 v8, 2, v4')
    k('v_lshl_add_u32 v7, v8, 10, v7')
    k('v_and_b32 v8, 3, v4')
    k('v_lshl_add_u32 v9, v8, 8, v7')
    k('v_bfe_u32 v8, v4, 1, 1')
    k('v_lshl_add_u32 v10, v8, 9, v7')
    k('v_and_b32 v8, 1, v4')
    k('v_lshl_add_u32 v10, v8, 3, v10')
    k('s_mov_b32 s20, 0xffff0000')
    k('s_and_b32 s29, s29, 0xffff')
    k('v_bfe_u32 v12, v2, 2, 3')
    k('v_mul_u32_u24 v12, 896, v12')
    k('v_and_b32 v13, 3, v2')
    k('v_lshl_add_u32 v12, v13, 3, v12')
    k('v_lshrrev_b32 v13, 5, v2')
    k('v_lshl_add_u32 v12, v13, 2, v12')
    k('s_lshl_b32 s21, s2, 5')
    k('buffer_load_dword v160, v12, s[28:31], s21 offen')
    k('s_barrier')
    def fills():
        k('s_mov_b32 s32, s4'); k('s_mov_b32 s33, s5'); k(f's_mov_b32 s34, {SENT_END - MEM_S}'); k('s_mov_b32 s35, 0x20000')
        k('s_mov_b32 s36, s4'); k('s_mov_b32 s37, s5'); k(f's_mov_b32 s38, {FLG + FLG_SZ}'); k('s_mov_b32 s39, 0x20000')
        k('v_lshlrev_b32 v11, 4, v2')
        NF = -(-(SENT_END - MEM_S - MEM - MEM_T) // (256*1024))
        k(f's_mul_i32 s21, s2, {NF*1024}')
        k(f's_add_u32 s21, s21, {MEM + MEM_T}')
        for r in range(4): k(f'v_mov_b32 v{164+r}, -1')
        for r in range(4): k(f'v_mov_b32 v{168+r}, 0')
        for r in range(NF):
            k(f'buffer_store_dwordx4 v[164:167], v11, s[32:35], s21 offen offset:{(r&3)*1024} ' + OPT['k1ln'])
            if (r&3) == 3: k('s_add_u32 s21, s21, 4096')
        k('s_mul_i32 s21, s2, 12288')
        k(f's_add_u32 s21, s21, {PT}')
        for r in range(12):
            k(f'buffer_store_dwordx4 v[164:167], v11, {WS}, s21 offen offset:{(r&3)*1024} ' + OPT['k1ln'])
            if (r&3) == 3: k('s_add_u32 s21, s21, 4096')
        k(f's_mov_b32 s34, {UM + 64*UM_SEG}')
        k('s_lshl_b32 s21, s2, 10')
        k(f's_add_u32 s21, s21, {UM + 63*UM_SEG}')
        k('buffer_store_dwordx4 v[164:167], v11, s[32:35], s21 offen ' + OPT['k1ln'])
        k('s_lshl_b32 s21, s2, 10')
        k(f's_add_u32 s21, s21, {FLG}')
        k('buffer_store_dwordx4 v[168:171], v11, s[36:39], s21 offen ' + OPT['k1ln'])
    NFG = -(-(SENT_END - MEM_S - MEM - MEM_T) // (256*1024))
    late = OPT['k1late']
    if not late: fills()
    k(f's_waitcnt vmcnt({8 if late else 22 + NFG})')
    for d in range(28):
        k(f'v_lshlrev_b32 v{vF+2*d}, 16, v{vX+d}')
        k(f'v_and_b32 v{vF+2*d+1}, s20, v{vX+d}')
    def red8(v):
        for ctl in ('quad_perm:[1,0,3,2]', 'quad_perm:[2,3,0,1]', 'row_half_mirror'):
            k.nop(2)
            k(f'v_add_f32_dpp v{v}, v{v}, v{v} {ctl} row_mask:0xf bank_mask:0xf')
    def rbf(v):
        k(f'v_cvt_pk_bf16_f32 v{v}, v{v}, v{v}')
        k(f'v_and_b32 v{v}, s20, v{v}')
    k(f'v_pk_add_f32 v[12:13], {vr(vF,2)}, {vr(vF+2,2)}')
    for d in range(2, 28): k(f'v_pk_add_f32 v[12:13], v[12:13], {vr(vF+2*d,2)}')
    k('v_add_f32 v12, v12, v13')
    k('s_barrier')
    red8(12)
    k(f's_mov_b32 s21, {f32bits(1/448):#x}')
    k('v_mul_f32 v12, s21, v12')
    k('v_mov_b32 v14, 0'); k('v_mov_b32 v15, 0')
    for d in range(28):
        k(f'v_pk_add_f32 {vr(vX,2)}, {vr(vF+2*d,2)}, v[12:13] op_sel_hi:[1,0] neg_lo:[0,1] neg_hi:[0,1]')
        k(f'v_pk_fma_f32 v[14:15], {vr(vX,2)}, {vr(vX,2)}, v[14:15]')
    k('v_add_f32 v14, v14, v15')
    red8(14)
    k('v_mul_f32 v14, s21, v14')
    rbf(14)
    k(f'v_add_f32 v14, {f32bits(1e-5):#x}, v14')
    rbf(14)
    k('v_sqrt_f32 v14, v14')
    k.nop(1)
    rbf(14)
    k('v_rcp_f32 v15, v14')
    rbf(12)
    k(f's_waitcnt vmcnt({0 if late else 14 + NFG})')
    k('v_mov_b32 v128, 0'); k('v_mov_b32 v129, 0')
    vO, vS = vX, 132
    for d in range(28):
        f = vF + 2*d
        k(f'v_pk_add_f32 {vr(f,2)}, {vr(f,2)}, v[12:13] op_sel_hi:[1,0] neg_lo:[0,1] neg_hi:[0,1]')
        k(f'v_cvt_pk_bf16_f32 v130, v{f}, v{f+1}')
        k(f'v_lshlrev_b32 v{f}, 16, v130')
        k(f'v_and_b32 v{f+1}, s20, v130')
        k(f'v_pk_mul_f32 v[130:131], {vr(f,2)}, v[14:15] op_sel:[0,1] op_sel_hi:[1,1]')
        k(f'v_pk_fma_f32 {vr(f,2)}, v[130:131], v[14:15], {vr(f,2)} op_sel_hi:[1,0,1] neg_lo:[1,0,0] neg_hi:[1,0,0]')
        k(f'v_pk_fma_f32 v[130:131], {vr(f,2)}, v[14:15], v[130:131] op_sel:[0,1,0] op_sel_hi:[1,1,1]')
        k(f'v_cvt_pk_bf16_f32 v{vO+d}, v130, v131')
        so = vS + 4*(d>>2) + {0:0, 1:2, 2:1, 3:3}[d&3]
        k(f'v_mov_b32 v{so}, v{vO+d}')
        k(f'v_dot2_f32_bf16 v{128+(d&1)}, v{vO+d}, v{vW+d}, v{128+(d&1)}')
        if d in (3, 15): k('s_barrier')
    k(f's_mov_b32 s22, {XNR}'); k(f's_mov_b32 s23, {XNF}'); k(f's_mov_b32 s24, {XNS}')
    for i in range(7):
        k(f'buffer_store_dwordx4 {vr(vO+4*i,4)}, v5, {WS}, s22 offen offset:{i*128} ' + OPT['k1ln'])
        k(f'buffer_store_dwordx4 {vr(vO+4*i,4)}, v9, {WS}, s23 offen offset:{(i&1)*2048} ' + OPT['k1ln'])
        k(f'buffer_store_dwordx2 {vr(vS+4*i,2)}, v10, {WS}, s24 offen offset:{(i&1)*2048} ' + OPT['k1ln'])
        k(f'buffer_store_dwordx2 {vr(vS+4*i+2,2)}, v10, {WS}, s24 offen offset:{(i&1)*2048+256} ' + OPT['k1ln'])
        if i & 1:
            k('s_add_u32 s23, s23, 4096'); k('s_add_u32 s24, s24, 4096')
    if late: fills()
    k.nop(2)
    k('v_add_f32 v128, v128, v129')
    red8(128)
    rbf(128)
    k('v_lshlrev_b32 v3, 2, v3')
    k(f's_mov_b32 s22, {RR}')
    k(f'buffer_store_dword v128, v3, {WS}, s22 offen ' + OPT['k1ln'])
    if tl:
        k('s_waitcnt vmcnt(0)')
        k('s_memrealtime s[42:43]')
        k('s_lshl_b32 s44, s2, 5')
        k(f's_add_u32 s44, s44, {STAMP + 0xE0000}')
        k('s_waitcnt lgkmcnt(0)')
        k('v_mov_b32 v10, s42')
        k(f'buffer_store_dword v10, off, {WS}, s44 offset:24')
    k('s_cmp_ge_u32 s2, 28')
    k('s_cbranch_scc1 P_exit')
    k('v_min_u32 v160, -2, v160')
    k('v_lshlrev_b32 v11, 2, v2')
    k('s_lshl_b32 s21, s2, 8')
    k(f's_add_u32 s22, s21, {MEM}')
    k(f's_add_u32 s21, s21, {SENT_END - MEM_S}')
    for r in range(NREP):
        k(f'buffer_store_dword v160, v11, {WS}, s22 offen ' + OPT['k1ln'])
        k(f's_add_u32 s22, s22, {MEM_S}')
    k(f'buffer_store_dword v160, v11, {WS}, s21 offen ' + OPT['k1ln'])
    k.label('P_exit')
    k('s_endpgm')
    return k
```

```python
from asmlib import *
from layout import *

class K(Asm):
    def __init__(self):
        super().__init__()
        self.dsq = []; self.cold = []; self.vmq = []
    def ds(self, text, tag=None):
        self(text); self.dsq.append(tag)
    def wds(self, tag):
        if tag not in self.dsq: return
        idx = max(i for i, t in enumerate(self.dsq) if t == tag)
        n = len(self.dsq) - 1 - idx
        assert n <= 15
        self(f's_waitcnt lgkmcnt({n})')
        self.dsq = self.dsq[idx+1:]
    def wds0(self):
        self('s_waitcnt lgkmcnt(0)'); self.dsq = []
    def vm(self, text, tag=None):
        self(text); self.vmq.append(tag)
    def wvm(self, *tags, extra=''):
        idx = max([i for i, t in enumerate(self.vmq) if t in tags], default=-1)
        if idx < 0:
            if extra: self('s_waitcnt ' + extra)
            return
        n = len(self.vmq) - 1 - idx
        assert n <= 63
        self(f's_waitcnt vmcnt({n}) {extra}')
        self.vmq = self.vmq[idx+1:]
    def flush_cold(self):
        for l in self.cold: self(l)
        self.cold = []

SWS, SDBG = 4, 8
sROLE, sWAVE, sSTEP, sMODE, sM, sP, sX, sUM, sCNT = 12, 13, 14, 15, 16, 17, 18, 19, 20
sT0, sT1, sT2 = 21, 22, 23
sMASK8 = 24
sID = 26
sST = 28
sTM = 30
POLL_LIMIT = 400000
NSTEP = 63
OPT = dict(sa='late', sb='early', um='sc1', uf='sc1', sleepA=0, sleepB=0, stampmask=15, rt=0, barA=1, barB=1, prefP=0, pfd=2, pfs=128, upos='early', ud=2, apf=1, nb=7, stag=1, wpos=1, rsp=1, s1pos=0, upre=8, uneed=32, ust='sc1', rot=1, k1st='sc1', uwin=2, k1d=2, ap2=0, stagA=2, gv=0, bdel=0, pc=0, padA=0, padB=0, tail2=1, pf64=1, tw=0, rep=3, prep=1, k1late=0, cpf=0, sm2=0, tm=0, bp2=1, k1pf=0, k1ln='sc1', u0='cold', align=0, w64=0, p64=0, kpos='post', kdel=7, nu2=4, bgs=0, vsl=120, usl=120, psl=16, msl=120)

def stamp(k, idx, on):
    if not on or not (OPT['stampmask'] >> idx) & 1: return
    k(('s_memrealtime' if OPT['rt'] else 's_memtime') + f' s[{sTM}:{sTM+1}]')
    k.wds0()
    k(f'v_mov_b32 v0, s{sTM}')
    k(f'buffer_store_dword v0, off, s[{SWS}:{SWS+3}], s{sST} offset:{idx*4}')

def edge(k, on, off):
    if not on or OPT['rt']: return
    lp = k.newlabel('Led')
    k('s_memrealtime s[70:71]')
    k('s_waitcnt lgkmcnt(0)')
    k.label(lp)
    k('s_memrealtime s[72:73]')
    k('s_memtime s[74:75]')
    k('s_waitcnt lgkmcnt(0)')
    k('s_cmp_eq_u32 s72, s70')
    k(f's_cbranch_scc1 {lp}')
    k('v_mov_b32 v0, s72')
    k(f'buffer_store_dword v0, off, s[{SWS}:{SWS+3}], s76 offset:{off}')
    k('v_mov_b32 v0, s74')
    k(f'buffer_store_dword v0, off, s[{SWS}:{SWS+3}], s76 offset:{off+4}')

def publish(k, text):
    ls, ld = k.newlabel('Lslow'), k.newlabel('Lpub')
    if isinstance(text, str): text = [text]
    k(f's_cbranch_scc0 {ls}')
    for x in text: k(x)
    k.label(ld)
    k.cold += [ls + ':'] + [x + ' sc1' for x in text] + [f's_branch {ld}']

def gather_mem(k, vG, vOff0, vOff1, vL0, vL1, vT):
    lp, dn = k.newlabel('Lgm'), k.newlabel('Lgd')
    k(f's_mov_b32 s{sCNT}, 0')
    k.label(lp)
    k(f'buffer_load_dwordx4 {vr(vG,4)}, v{vOff0}, s[{SWS}:{SWS+3}], s{sM} offen sc1')
    k(f'buffer_load_dwordx4 {vr(vG+4,4)}, v{vOff1}, s[{SWS}:{SWS+3}], s{sM} offen sc1')
    k(f's_add_u32 s{sCNT}, s{sCNT}, 1')
    k(f's_cmp_gt_u32 s{sCNT}, s{sT2}')
    k('s_cbranch_scc1 L_fail')
    k('s_waitcnt vmcnt(1)')
    k(f'v_max3_u32 v{vT}, v{vG}, v{vG+1}, v{vG+2}')
    k('s_waitcnt vmcnt(0)')
    k(f'v_max3_u32 v{vT+1}, v{vG+4}, v{vG+5}, v{vG+6}')
    k(f'v_max3_u32 v{vT}, v{vT}, v{vG+3}, v{vG+7}')
    k(f'v_max_u32 v{vT}, v{vT}, v{vT+1}')
    k(f'v_cmp_eq_u32 vcc, -1, v{vT}')
    k(f's_cbranch_vccnz {lp}')
    if vL0 is None: return
    k.ds(f'ds_write_b128 v{vL0}, {vr(vG,4)}')
    k.ds(f'ds_write_b128 v{vL1}, {vr(vG+4,4)}')
    k.wds0()
    k('s_barrier')

def wait_mode(k, vT):
    lp = k.newlabel('Lwm')
    k(f's_mov_b32 s{sCNT}, 0')
    k(f'v_and_b32 v{vT+1}, 15, v0')
    k(f'v_lshlrev_b32 v{vT+1}, 2, v{vT+1}')
    k.label(lp)
    k(f'buffer_load_dword v{vT}, v{vT+1}, s[{SDBG}:{SDBG+3}], 0 offen offset:32 sc1')
    k(f's_add_u32 s{sCNT}, s{sCNT}, 1')
    k(f's_cmp_gt_u32 s{sCNT}, s{sT2}')
    k('s_cbranch_scc1 L_fail')
    k('s_waitcnt vmcnt(0)')
    k(f'v_cmp_eq_u32 vcc, 32, v{vT}')
    for rot in (8, 4, 2, 1):
        k.nop(2)
        k(f'v_add_u32_dpp v{vT}, v{vT}, v{vT} row_ror:{rot} row_mask:0xf bank_mask:0xf')
    k.nop(1)
    k(f'v_readfirstlane_b32 s{sMODE}, v{vT}')
    k('s_nop 3')
    k(f's_cmp_lt_u32 s{sMODE}, 32')
    k(f's_cbranch_scc1 {lp}')
    k('s_cmp_lg_u64 vcc, 0')
    k(f's_cselect_b32 s{sMODE}, 1, 2')

def common_lane_setup(k, vLane, vL16, vG0, vG1, vIdx, vT):
    k(f'v_and_b32 v{vLane}, 63, v0')
    k(f'v_lshlrev_b32 v{vL16}, 4, v{vLane}')
    if vG0 is not None:
        k(f's_lshl_b32 s{sT0}, s{sWAVE}, 10')
        k(f'v_add_u32 v{vG0}, s{sT0}, v{vL16}')
        k(f's_add_u32 s{sT0}, s{sWAVE}, 4')
        k(f's_min_u32 s{sT0}, s{sT0}, 6')
        k(f's_lshl_b32 s{sT0}, s{sT0}, 10')
        k(f'v_add_u32 v{vG1}, s{sT0}, v{vL16}')
    k(f'v_and_b32 v{vT}, 8, v{vLane}')
    k(f'v_mov_b32 v{vIdx}, 0x4444')
    k(f'v_mov_b32 v{vT+1}, 0xeeee')
    k(f'v_cmp_ne_u32 vcc, 0, v{vT}')
    k('s_nop 1')
    k(f'v_cndmask_b32 v{vIdx}, v{vIdx}, v{vT+1}, vcc')
    k(f's_mov_b32 s{sT2}, {POLL_LIMIT}')

def poll2(k, issue, checks, body, name, stag):
    nl = len(issue(0))
    l0, d0, d1, dn = [k.newlabel(name + x) for x in ('lp', 'd0', 'd1', 'dn')]
    k(f's_mov_b32 s{sCNT}, 0')
    for x in issue(0): k(x)
    k(f"s_sleep {stag}")
    k.label(l0)
    for st, dl in ((0, d0), (1, d1)):
        for x in issue(1 - st): k(x)
        if st == 0:
            k(f's_add_u32 s{sCNT}, s{sCNT}, 1')
            k(f's_cmp_gt_u32 s{sCNT}, s{sT2}')
            k('s_cbranch_scc1 L_fail')
        for rel, ins in checks(st):
            k(f's_waitcnt vmcnt({nl + rel})')
            for x in ins: k(x)
        if st == 0: k(f's_cbranch_vccz {d0}')
        else:       k(f's_cbranch_vccnz {l0}x')
    saved = list(k.dsq)
    body(1)
    k(f's_branch {dn}')
    k.label(l0 + 'x')
    k(f's_branch {l0}')
    k.label(d0)
    end = list(k.dsq); k.dsq = saved
    body(0)
    assert k.dsq == end
    k.label(dn)

def role_A(k, stamps=False):
    vLane, vL16, vIdx = 1, 2, 3
    vKey, vKeyS, vMK, vMKS, vQW, vQR, vSW, vSR, vPO, vVal = 4, 5, 6, 7, 8, 9, 10, 11, 12, 13
    vT = 14
    vM = 16
    vQ = 44
    vKT = 72
    vKM = 100
    vX = 114
    vG0, vG1 = 118, 119
    def W(lt, kb):
        i = lt*7 + kb
        return (256 + 8*i) if i < 32 else (120 + 8*(i-32))
    LM, LSP, LQS = 0, 7168, 20480
    k.label('L_roleA')
    k(f's_mov_b32 s{sID}, s{sROLE}')
    common_lane_setup(k, vLane, vL16, vG0, vG1, vIdx, vX)
    k(f's_lshr_b32 s{sT0}, s{sWAVE}, 1')
    k(f's_mul_i32 s{sT0}, s{sT0}, 14')
    k(f's_and_b32 s{sT1}, s{sWAVE}, 1')
    k(f's_add_u32 s33, s{sT0}, 6')
    k(f's_add_u32 s33, s33, s{sT1}')
    k(f's_lshl_b32 s34, s{sT1}, 3')
    k(f's_add_u32 s32, s{sT0}, s34')
    k(f's_mul_i32 s35, s{sID}, {28*14*1024}')
    k(f's_add_u32 s35, s35, {WTA}')
    k(f's_mul_i32 s36, s32, {14*1024}')
    k(f's_add_u32 s36, s36, s35')
    k(f's_mul_i32 s37, s33, {14*1024}')
    k(f's_add_u32 s37, s37, s35')
    for j in range(7):
        k(f's_add_u32 s{50+j}, s{sWAVE}, {(4*j) % 7}')
        k(f's_sub_u32 s40, s{50+j}, 7')
        k(f's_cmp_ge_u32 s{50+j}, 7')
        k(f's_cselect_b32 s{50+j}, s40, s{50+j}')
        k(f's_lshl_b32 s{50+j}, s{50+j}, 10')
    n = 0
    for lt in range(7):
        sb = 36 if lt < 6 else 37
        for j in range(7):
            k(f's_lshl_b32 s40, s{50+j}, 1')
            k(f's_add_u32 s40, s40, s{sb}')
            for f in range(2):
                k(f'buffer_load_dwordx4 {xr(W(lt, j) + 4*f,4)}, v{vL16}, s[{SWS}:{SWS+3}], s40 offen offset:{f*1024}')
                n += 1
                if n % 16 == 0: k('s_waitcnt vmcnt(40)')
        k(f's_add_u32 s{sb}, s{sb}, 14336')
    k(f'v_add_u32 v{vG1}, s51, v{vL16}')
    t = vX
    g, i = vQ, vQ+1
    k(f'v_lshrrev_b32 v{g}, 4, v{vLane}')
    k(f'v_and_b32 v{i}, 15, v{vLane}')
    k(f's_lshr_b32 s38, s32, 1')
    k(f's_lshr_b32 s39, s33, 1')
    k(f's_lshl_b32 s40, s38, 10')
    k(f'v_add_u32 v{vKey}, s40, v{vL16}')
    k(f's_lshl_b32 s40, s39, 10')
    k(f's_add_u32 s40, s40, s34')
    k(f'v_add_u32 v{vKeyS}, s40, v{vL16}')
    k(f'v_lshrrev_b32 v{t}, 1, v{g}')
    k(f'v_lshlrev_b32 v{t}, 8, v{t}')
    k(f'v_and_b32 v{t+1}, 7, v{i}')
    k(f'v_lshlrev_b32 v{t+1}, 4, v{t+1}')
    k(f'v_add_u32 v{t}, v{t}, v{t+1}')
    k(f'v_and_b32 v{t+1}, 1, v{g}')
    k(f'v_lshlrev_b32 v{t+1}, 7, v{t+1}')
    k(f'v_add_u32 v{t}, v{t}, v{t+1}')
    k(f's_lshl_b32 s40, s38, 9')
    k(f'v_add_u32 v{vMK}, s40, v{t}')
    k(f's_lshl_b32 s40, s39, 9')
    k(f's_add_u32 s40, s40, s34')
    k(f'v_add_u32 v{vMKS}, s40, v{t}')
    k(f's_lshl_b32 s40, s{sWAVE}, 10')
    k(f's_add_u32 s40, s40, {LQS}')
    k(f'v_lshrrev_b32 v{t}, 2, v{i}')
    k(f'v_add_u32 v{t}, v{t}, v{g}')
    k(f'v_and_b32 v{t}, 3, v{t}')
    k(f'v_lshlrev_b32 v{t}, 3, v{t}')
    k(f'v_lshlrev_b32 v{t+1}, 5, v{i}')
    k(f'v_add3_u32 v{vQW}, v{t}, v{t+1}, s40')
    k(f'v_lshrrev_b32 v{t}, 2, v{vLane}')
    k(f'v_lshlrev_b32 v{t}, 5, v{t}')
    k(f'v_add_u32 v{t+1}, v{vLane}, v{g}')
    k(f'v_and_b32 v{t+1}, 3, v{t+1}')
    k(f'v_lshlrev_b32 v{t+1}, 3, v{t+1}')
    k(f'v_add3_u32 v{vQR}, v{t}, v{t+1}, s40')
    k(f's_mul_i32 s40, s{sWAVE}, 3264')
    k(f's_add_u32 s40, s40, {LSP}')
    k(f'v_lshlrev_b32 v{t}, 4, v{i}')
    k(f'v_mul_u32_u24 v{t+1}, 272, v{g}')
    k(f'v_add3_u32 v{vSW}, v{t}, v{t+1}, s40')
    k(f'v_subrev_u32 v{t}, 12, v{i}')
    k(f'v_cmp_le_u32 vcc, 12, v{i}')
    k('s_nop 1')
    k(f'v_cndmask_b32 v{t}, v{i}, v{t}, vcc')
    k(f'v_lshrrev_b32 v{t+1}, 5, v{vLane}')
    k(f's_lshl_b32 s40, s{sWAVE}, 1')
    k(f'v_add_u32 v{t+1}, s40, v{t+1}')
    k(f'v_and_b32 v{t+2}, 1, v{g}')
    k(f'v_lshl_add_u32 v{t+3}, v{t+2}, 3, v{t+1}')
    k(f'v_lshlrev_b32 v{t+3}, 4, v{t+3}')
    k(f'v_mul_u32_u24 v{vSR}, 272, v{t}')
    k(f'v_add_u32 v{vSR}, v{vSR}, v{t+3}')
    if LSP: k(f'v_add_u32 v{vSR}, {LSP}, v{vSR}')
    k(f's_and_b32 s42, s{sID}, 1')
    k(f's_lshl_b32 s42, s42, 3')
    k(f'v_add_u32 v{t+1}, s42, v{t+1}')
    k(f'v_and_b32 v{vPO}, 1, v{i}')
    k(f'v_lshlrev_b32 v{vPO}, 3, v{vPO}')
    k(f'v_lshl_add_u32 v{vPO}, v{t+1}, 4, v{vPO}')
    k(f'v_bfe_u32 v{t}, v{i}, 1, 1')
    k(f'v_lshl_add_u32 v{vPO}, v{t}, 8, v{vPO}')
    k(f'v_bfe_u32 v{t}, v{i}, 3, 1')
    k(f'v_lshl_add_u32 v{vPO}, v{t}, 9, v{vPO}')
    k(f's_lshr_b32 s41, s{sID}, 1')
    k(f's_lshl_b32 s40, s41, 10')
    k(f'v_add_u32 v{vPO}, s40, v{vPO}')
    k(f'v_lshlrev_b32 v{t}, 3, v{i}')
    k(f'v_lshl_add_u32 v{t}, v{t+1}, 4, v{t}')
    k(f's_lshl_b32 s40, s41, 8')
    k(f's_add_u32 s40, s40, 8192')
    k(f'v_add_u32 v{t}, s40, v{t}')
    k(f'v_mov_b32 v{t+3}, 0x40000000')
    k(f'v_cmp_le_u32 vcc, 2, v{i}')
    k('s_nop 1')
    k(f'v_cndmask_b32 v{t}, v{t}, v{t+3}, vcc')
    k(f'v_cmp_le_u32 vcc, 4, v{i}')
    k('s_nop 1')
    k(f'v_cndmask_b32 v{vPO}, v{t}, v{vPO}, vcc')
    k(f'v_cmp_le_u32 vcc, 12, v{i}')
    k('s_nop 1')
    k(f'v_cndmask_b32 v{vPO}, v{vPO}, v{t+3}, vcc')
    k(f'v_lshl_add_u32 v{vPO}, v{t+2}, 2, v{vPO}')
    k(f'v_mov_b32 v{vVal}, 1.0')
    k(f'v_cmp_le_u32 vcc, v{t+3}, v{vPO}')
    k('s_nop 1')
    k(f'v_cndmask_b32 v{vVal}, v{vVal}, 0, vcc')
    k(f's_mov_b32 s{sSTEP}, 0')
    k(f"s_lshr_b32 s{sM}, s{sID}, {3 if OPT['rep'] == 3 else 2}")
    k(f"s_mul_i32 s{sM}, s{sM}, {MEM_S if NREP == 3 else 0}")
    k(f's_add_u32 s{sM}, s{sM}, {MEM}')
    k(f's_mov_b32 s{sP}, {PB}')
    k(f's_mov_b32 s{sX}, {XNS}')
    k(f's_lshl_b32 s40, s{sID}, 2')
    k(f's_add_u32 s40, s40, s{sWAVE}')
    k(f's_mul_i32 s40, s40, 7168')
    k(f'v_min_u32 v{vX}, {55*16}, v{vL16}')
    k(f'v_lshlrev_b32 v{vX}, 3, v{vX}')
    k(f'v_add_u32 v{vX}, s40, v{vX}')
    k(f"s_mov_b32 s{sUM}, {UF + OPT['ud']*UF_SEG}")
    WS = f's[{SWS}:{SWS+3}]'
    def key_list():
        L = []
        for p in range(3):
            L.append(f'buffer_load_dwordx4 {vr(vKT+8*p,4)}, v{vKey}, {WS}, s{sX} offen offset:{p*1024}')
            L.append(f'buffer_load_dwordx4 {vr(vKT+8*p+4,4)}, v{vKey}, {WS}, s46 offen offset:{p*1024}')
        L.append(f'buffer_load_dwordx2 {vr(vKT+24,2)}, v{vKeyS}, {WS}, s{sX} offen')
        L.append(f'buffer_load_dwordx2 {vr(vKT+26,2)}, v{vKeyS}, {WS}, s46 offen')
        return L
    def load_flag():
        k(f's_add_u32 s{sT0}, s{sSTEP}, {1 + OPT["ud"]}')
        k(f's_lshr_b32 s{sT0}, s{sT0}, 2')
        k(f's_lshl_b32 s{sT0}, s{sT0}, 7')
        k(f's_add_u32 s{sT0}, s{sT0}, {flag(F_U)}')
        k(f'buffer_load_dword v{vX+2}, off, {WS}, s{sT0} sc1')
    def load_keys(keys=True):
        if keys:
            for x in key_list(): k(x)
        k(f's_add_u32 s{sX}, s{sX}, 28672')
        k(f's_add_u32 s46, s{sX}, 14336')
    if OPT['tm']:
        k(f'v_lshlrev_b32 v{vQ+2}, 2, v{g}')
        k(f'v_sub_u32 v{vQ+2}, v{i}, v{vQ+2}')
        k(f'v_and_b32 v{vQ+3}, 1, v{vQ+2}')
        k(f'v_lshlrev_b32 v{vQ+3}, 4, v{vQ+3}')
        k(f'v_mov_b32 v{vLane}, 0x3f80')
        k(f'v_lshlrev_b32 v{vLane}, v{vQ+3}, v{vLane}')
        k(f'v_cmp_gt_u32 vcc, 4, v{vQ+2}')
        k(f'v_cmp_lt_u32 s[48:49], 1, v{vQ+2}')
        k('s_nop 0')
        k(f'v_cndmask_b32 v{vLane}, 0, v{vLane}, vcc')
    k(f's_add_u32 s46, s{sX}, 14336')
    k(f's_mov_b32 s{sSTEP}, -1')
    load_flag()
    load_keys()
    k(f's_mov_b32 s{sSTEP}, 0')
    wait_mode(k, vT)
    k(f'v_mov_b32 v{vX+3}, 0x40000000')
    if stamps: k(f's_add_u32 s76, s{sST}, 0x20000')
    edge(k, stamps, 0)
    k('s_branch L_A_loop')
    k('.p2align 8')
    for _ in range(OPT['padA']): k('s_nop 0')
    k.label('L_A_loop')
    for r in range(0, 28, 2): k(f'v_mov_b64 {vr(vQ+r,2)}, 0')
    k(f's_add_u32 s47, s{sP}, {PB_S}')
    vAd = vKM + 6
    for j in range(2, 7): k(f'v_add_u32 v{vAd+j}, s{50+j}, v{vL16}')
    def Mx(lt, kb, src):
        return f'v_smfmac_f32_16x16x64_bf16 {vr(vQ+4*lt,4)}, {vr(src,4)}, {xr(W(lt,kb),8)}, v{vIdx}'
    def M(lt, kb): return Mx(lt, kb, vM+4*kb)
    mk = [f'ds_read_b128 {vr(vKM+4*p,4)}, v{vMK} offset:{LM+p*512}' for p in range(3)]
    mk.append(f'ds_read_b64 {vr(vKM+12,2)}, v{vMKS} offset:{LM}')
    sets = [vM, vKM]
    def issue(st):
        return [f'buffer_load_dwordx4 {vr(sets[st],4)}, v{vG0}, {WS}, s{sM} offen sc1',
                f'buffer_load_dwordx4 {vr(sets[st]+4,4)}, v{vG1}, {WS}, s{sM} offen sc1']
    def checks(st):
        G = sets[st]
        return [(1, [f'v_max3_u32 v{vT}, v{G}, v{G+1}, v{G+2}']),
                (0, [f'v_max3_u32 v{vT+1}, v{G+4}, v{G+5}, v{G+6}', f'v_max3_u32 v{vT}, v{vT}, v{G+3}, v{G+7}',
                     f'v_max_u32 v{vT}, v{vT}, v{vT+1}', f'v_cmp_eq_u32 vcc, -1, v{vT}'])]
    NB = OPT['nb']
    def body(st):
        G = sets[st]
        stamp(k, 0, stamps)
        if stamps and OPT['pc']:
            k(f'v_mov_b32 v0, s{sCNT}')
            k(f'buffer_store_dword v0, off, s[{SWS}:{SWS+3}], s{sST} offset:12')
        wrs = [f'ds_write_b128 v{vG0}, {vr(G,4)} offset:{LM}', f'ds_write_b128 v{vG1}, {vr(G+4,4)} offset:{LM}']
        seq = [(lt, j) for j in range(2) for lt in range(7)]
        for n, (lt, j) in enumerate(seq):
            k(Mx(lt, j, G + 4*j))
            if OPT['w64'] == 0 and n < 2: k.ds(wrs[n])
            if OPT['w64'] == 1 and n < 4: k.ds(f'ds_write_b64 v{vG0 if n < 2 else vG1}, {vr(G+2*n,2)} offset:{LM + 8*(n&1)}')
            if n == 4: k(f'v_cmp_le_u32 vcc, {OPT["uneed"]}, v{vX+2}')
            if n == 5: k('s_nop 0'); k(f'v_cndmask_b32 v{vX+1}, v{vX+3}, v{vX}, vcc')
            if n == NB - 1:
                k.wds0(); k('s_barrier')
            if NB - 1 <= n < NB + 4:
                jj = n - (NB - 1) + 2
                k.ds(f'ds_read_b128 {vr(vM+4*jj,4)}, v{vAd+jj} offset:{LM}', f'm{jj}')
            if n == NB + 5: k(f'buffer_load_dword v0, v{vX+1}, {WS}, s{sUM} offen sc1')
    if stamps and OPT['pc']: stamp(k, 1, True)
    if OPT['ap2']:
        poll2(k, issue, checks, body, 'Lga', OPT['stagA'])
    else:
        gather_mem(k, vM, vG0, vG1, None, None, vT)
        body(0)
    def cvt(lt, h):
        k(f'v_cvt_pk_bf16_f32 v{vQ+4*lt+h}, v{vQ+4*lt+2*h}, v{vQ+4*lt+2*h+1}')
    def wr(lt):
        k.ds(f'ds_write_b64 v{vQW}, {vr(vQ+4*lt,2)} offset:{512*(lt&1)}')
    def tr(p, h):
        k.ds(f'ds_read_b64_tr_b16 {vr(vQ+8*p+2*h,2)}, v{vQR} offset:{512*h}', f'q{p}')
    vSt = [vM, vM+4, vQ+4]
    def S(p, t):
        q = vQ + 8*p
        c = '0' if p == 0 else vr(vSt[t],4)
        if p < 3:
            a = vKM+4*p if t == 0 else vKT+8*p+4*(t-1)
            k(f'v_mfma_f32_16x16x32_bf16 {vr(vSt[t],4)}, {vr(a,4)}, {vr(q,4)}, {c}')
        else:
            a = vKM+12 if t == 0 else vKT+24+2*(t-1)
            k(f'v_mfma_f32_16x16x16_bf16 {vr(vSt[t],4)}, {vr(a,2)}, {vr(q,2)}, {c}')
    for lt in range(7):
        for j in range(2, 7):
            if lt == 0: k.wds(f'm{j}')
            k(M(lt, j))
            if OPT['tm'] and lt == 1 and j == 2: k(f'v_cndmask_b32 v{vT}, v{vLane}, 0, s[48:49]')
            if OPT['tm'] and lt == 1 and j == 3: k(f'v_cndmask_b32 v{vT+1}, 0, v{vLane}, s[48:49]')
            if lt == 0 and j == 6:
                k('s_waitcnt vmcnt(1)')
                for x in mk: k.ds(x, 'mk')
            if lt >= 1:
                if j == 4: cvt(lt-1, 0)
                if j == 5: cvt(lt-1, 1)
                if j == 6:
                    wr(lt-1)
                    if (lt-1) & 1: tr((lt-1)//2, 0); tr((lt-1)//2, 1)
        if lt == (4 if OPT['s1pos'] == 0 else 3):
            k.wds('q0')
            for t in range(3): S(0, t)
        if lt == 5 and OPT['s1pos'] == 1:
            k.wds('q1')
            for t in range(3): S(1, t)
    if OPT['s1pos'] == 0:
        k.wds('q1')
        for t in range(3): S(1, t)
        cvt(6, 0); cvt(6, 1)
        if OPT['tm']:
            k.wds('q2')
            k.nop(1)
            k(f'v_mfma_f32_16x16x16_bf16 {vr(vQ+12,4)}, {vr(vQ+24,2)}, {vr(vT,2)}, 0')
            for t in range(3): S(2, t)
            k(f'v_cvt_pk_bf16_f32 v{vQ+24}, v{vQ+12}, v{vQ+13}')
            k(f'v_cvt_pk_bf16_f32 v{vQ+25}, v{vQ+14}, v{vQ+15}')
            k.nop(2)
        else:
            wr(6); tr(3, 0)
            k.wds('q2')
            for t in range(3): S(2, t)
    else:
        k.nop(8)
        cvt(6, 0); cvt(6, 1); wr(6); tr(3, 0)
        k.wds('q2')
        for t in range(3): S(2, t)
    k.wds('q3')
    for t in range(3): S(3, t)
    for t in range(3):
        k.nop(2 if (t == 0 or OPT['p64'] == 0) else 1)
        if OPT['p64'] == 0: k.ds(f'ds_write_b128 v{vSW}, {vr(vSt[t],4)} offset:{1088*t}')
        else:
            k.ds(f'ds_write_b64 v{vSW}, {vr(vSt[t],2)} offset:{1088*t}')
            k.ds(f'ds_write_b64 v{vSW}, {vr(vSt[t]+2,2)} offset:{1088*t+8}')
    k.wds0()
    k('s_barrier')
    stamp(k, 1, stamps and not OPT['pc'])
    mark = len(k.lines)
    R = vQ+8
    for w in range(4): k.ds(f'ds_read_b128 {vr(R+4*w,4)}, v{vSR} offset:{w*3264}', f'r{w}')
    k(f's_cmp_eq_u32 s{sMODE}, 1')
    k.wds('r1')
    k(f'v_pk_add_f32 {vr(R,2)}, {vr(R,2)}, {vr(R+4,2)}')
    k(f'v_pk_add_f32 {vr(R+2,2)}, {vr(R+2,2)}, {vr(R+6,2)}')
    k.wds('r2')
    k(f'v_pk_add_f32 {vr(R,2)}, {vr(R,2)}, {vr(R+8,2)}')
    k(f'v_pk_add_f32 {vr(R+2,2)}, {vr(R+2,2)}, {vr(R+10,2)}')
    k.wds('r3')
    k(f'v_pk_add_f32 {vr(R,2)}, {vr(R,2)}, {vr(R+12,2)}')
    k(f'v_pk_add_f32 {vr(R+2,2)}, {vr(R+2,2)}, {vr(R+14,2)}')
    k.nop(2)
    k(f'v_permlane16_swap_b32 v{R}, v{R+2}')
    k(f'v_permlane16_swap_b32 v{R+1}, v{R+3}')
    X = R+4; m = R+6; t = R+8
    k(f'v_pk_add_f32 {vr(X,2)}, {vr(R,2)}, {vr(R+2,2)}')
    def allred(op, m):
        for rot in (8, 4, 2, 1):
            k.nop(2)
            k(f'{op}_dpp v{m}, v{m}, v{m} row_ror:{rot} row_mask:0xf bank_mask:0xf')
        k(f'v_mov_b32 v{t}, v{m}')
        k.nop(2)
        k(f'v_permlane16_swap_b32 v{m}, v{t}')
        k(f'{op} v{m}, v{m}, v{t}')
    if OPT['sm2'] == 0:
        k(f'v_max_f32 v{m}, v{X}, v{X+1}')
        allred('v_max_f32', m)
        k(f'v_pk_add_f32 {vr(X,2)}, {vr(X,2)}, {vr(m,2)} op_sel_hi:[1,0] neg_lo:[0,1] neg_hi:[0,1]')
        k(f'v_exp_f32 v{X}, v{X}')
        k(f'v_exp_f32 v{X+1}, v{X+1}')
        k.nop(1)
        k(f'v_add_f32 v{m}, v{X}, v{X+1}')
        k(f'v_mul_f32 v{m}, v{m}, v{vVal}')
        allred('v_add_f32', m)
        k(f'v_rcp_f32 v{m}, v{m}')
        k.nop(1)
        k(f'v_pk_mul_f32 {vr(X,2)}, {vr(X,2)}, {vr(m,2)} op_sel_hi:[1,0]')
    else:
        l_, M, sc = R+10, R+12, R+14
        def dpp(op, r, rot): k(f'{op}_dpp v{r}, v{r}, v{r} row_ror:{rot} row_mask:0xf bank_mask:0xf')
        k(f'v_max_f32 v{m}, v{X}, v{X+1}')
        for rot in (8, 4, 2, 1):
            k.nop(2); dpp('v_max_f32', m, rot)
        k(f'v_pk_add_f32 {vr(X,2)}, {vr(X,2)}, {vr(m,2)} op_sel_hi:[1,0] neg_lo:[0,1] neg_hi:[0,1]')
        k(f'v_mov_b32 v{M}, v{m}')
        k(f'v_exp_f32 v{X}, v{X}')
        k(f'v_mov_b32 v{t}, v{m}')
        k(f'v_exp_f32 v{X+1}, v{X+1}')
        k.nop(1)
        k(f'v_add_f32 v{l_}, v{X}, v{X+1}')
        k(f'v_permlane16_swap_b32 v{M}, v{t}')
        k(f'v_mul_f32 v{l_}, v{l_}, v{vVal}')
        k(f'v_max_f32 v{M}, v{M}, v{t}')
        k(f'v_sub_f32 v{sc}, v{m}, v{M}')
        dpp('v_add_f32', l_, 8)
        k(f'v_exp_f32 v{sc}, v{sc}')
        k.nop(1)
        dpp('v_add_f32', l_, 4)
        k(f'v_pk_mul_f32 {vr(X,2)}, {vr(X,2)}, {vr(sc,2)} op_sel_hi:[1,0]')
        k.nop(1)
        dpp('v_add_f32', l_, 2)
        k.nop(2)
        dpp('v_add_f32', l_, 1)
        k(f'v_mul_f32 v{l_}, v{l_}, v{sc}')
        k(f'v_mov_b32 v{t}, v{l_}')
        k.nop(2)
        k(f'v_permlane16_swap_b32 v{l_}, v{t}')
        k(f'v_add_f32 v{l_}, v{l_}, v{t}')
        k(f'v_rcp_f32 v{l_}, v{l_}')
        k.nop(1)
        k(f'v_pk_mul_f32 {vr(X,2)}, {vr(X,2)}, {vr(l_,2)} op_sel_hi:[1,0]')
    k(f'v_cvt_pk_bf16_f32 v{X}, v{X}, v{X+1}')
    k(f'v_min_u32 v{X}, -2, v{X}')
    if OPT['kpos'] == 'soft':
        body_ = k.lines[mark:]; k.lines = k.lines[:mark]; L = key_list()
        for x in body_:
            if x == 's_nop 1' and L: k(L.pop(0)); k('s_nop 0')
            else: k(x)
        assert not L
    publish(k, [f'buffer_store_dword v{X}, v{vPO}, {WS}, s{x} offen' for x in [sP, 47][:OPT['prep']]])
    stamp(k, 2, stamps)
    k('s_barrier')
    if stamps and OPT['tw']:
        k('s_waitcnt vmcnt(0)')
        stamp(k, 3, stamps)
    load_flag()
    if OPT['kdel']: k(f"s_sleep {OPT['kdel']}")
    load_keys(OPT['kpos'] != 'soft')
    if OPT['sleepA']: k(f"s_sleep {OPT['sleepA']}")
    k(f's_add_u32 s{sUM}, s{sUM}, {UF_SEG}')
    k(f's_add_u32 s{sM}, s{sM}, {MEM_T}')
    k(f's_add_u32 s{sP}, s{sP}, {PB_T}')
    if stamps: k(f's_add_u32 s{sST}, s{sST}, 16')
    k(f's_add_u32 s{sSTEP}, s{sSTEP}, 1')
    k(f's_cmp_lt_u32 s{sSTEP}, {NSTEP}')
    k('s_cbranch_scc1 L_A_loop')
    edge(k, stamps, 8)
    k('s_waitcnt vmcnt(0)')
    k('s_endpgm')
    k.flush_cold()

def role_B(k, stamps=False, wait_u=None):
    WS = f's[{SWS}:{SWS+3}]'
    vLane, vL16, vG0, vG1, vIdx = 1, 2, 3, 4, 5
    vWL, vPT, vPM, vRW, vRR, vL4 = 6, 7, 8, 9, 10, 11
    vC = 12
    vM = 16
    vA = 44
    vU = 76
    vTm = 108
    vUi = 140
    vUm = 172
    vRR2 = 188
    vKeep, vFl = 191, 15
    vD = vTm
    vG = vTm + 16
    vP = [vM, vA]
    def W(gi, kb):
        i = gi*5 + kb
        return (256 + 8*i) if i < 32 else (192 + 8*(i-32))
    LM, LRED, LW = 0, 7168, 16384
    k.label('L_roleB')
    k(f's_sub_u32 s{sID}, s{sROLE}, 16')
    common_lane_setup(k, vLane, vL16, vG0, vG1, vIdx, vC)
    k(f's_lshl_b32 s{sT0}, s{sWAVE}, 2')
    k(f's_mul_i32 s{sT0}, s{sT0}, 28')
    k(f's_lshl_b32 s{sT1}, s{sID}, 1')
    k(f's_add_u32 s{sT0}, s{sT0}, s{sT1}')
    k(f's_mul_i32 s35, s{sT0}, 14336')
    k(f's_add_u32 s35, s35, {WTB}')
    k(f's_lshl_b32 s37, s{sWAVE}, 15')
    k(f's_add_u32 s37, s37, {LW}')
    k(f'v_add_u32 v{vWL}, s37, v{vL16}')
    for j in range(7):
        k(f's_add_u32 s{50+j}, s{sWAVE}, {(4*j) % 7}')
        k(f's_sub_u32 s40, s{50+j}, 7')
        k(f's_cmp_ge_u32 s{50+j}, 7')
        k(f's_cselect_b32 s{50+j}, s40, s{50+j}')
        k(f's_lshl_b32 s{50+j}, s{50+j}, 10')
    k(f'v_add_u32 v{vG1}, s51, v{vL16}')
    for gi in range(8):
        k(f's_add_u32 s36, s35, {(gi>>1)*28*14336 + (gi&1)*14336}')
        for j in range(7):
            k(f's_lshl_b32 s40, s{50+j}, 1')
            k(f's_add_u32 s40, s40, s36')
            if j >= 5:
                k(f's_add_u32 s38, s37, {gi*4096 + (j-5)*2048}')
                k(f's_mov_b32 m0, s38')
                k('s_nop 0')
            for f in range(2):
                if j < 5: k(f'buffer_load_dwordx4 {xr(W(gi, j) + 4*f,4)}, v{vL16}, {WS}, s40 offen offset:{f*1024}')
                else:     k(f'buffer_load_dwordx4 v{vL16}, {WS}, s40 offen offset:{f*1024} lds')
        k('s_waitcnt vmcnt(40)')
    g, i = vA, vA+1
    vT = vC
    k(f'v_lshrrev_b32 v{g}, 4, v{vLane}')
    k(f'v_and_b32 v{i}, 15, v{vLane}')
    k(f's_lshl_b32 s40, s{sWAVE}, 11')
    k(f'v_add_u32 v{vPT}, s40, v{vL16}')
    k(f'v_lshrrev_b32 v{vT}, 1, v{g}')
    k(f'v_lshlrev_b32 v{vT}, 8, v{vT}')
    k(f'v_lshl_add_u32 v{vT}, v{i}, 4, v{vT}')
    k(f's_lshl_b32 s40, s{sWAVE}, 9')
    k(f's_add_u32 s40, s40, 8192')
    k(f'v_add_u32 v{vPM}, s40, v{vT}')
    k(f's_lshl_b32 s40, s{sWAVE}, 10')
    k(f's_add_u32 s40, s40, {LRED}')
    k(f'v_add_u32 v{vRW}, s40, v{vL16}')
    k(f'v_and_b32 v{vT}, 3, v{vLane}')
    k(f'v_lshlrev_b32 v{vT}, 6, v{vT}')
    k(f'v_lshrrev_b32 v{vT+1}, 5, v{vLane}')
    k(f'v_lshl_add_u32 v{vT}, v{vT+1}, 5, v{vT}')
    k(f'v_lshrrev_b32 v{vT+1}, 2, v{vLane}')
    k(f'v_and_b32 v{vT+2}, 3, v{vT+1}')
    k(f'v_lshl_add_u32 v{vT}, v{vT+2}, 2, v{vT}')
    k(f'v_bfe_u32 v{vT+2}, v{vLane}, 4, 1')
    k(f'v_lshl_add_u32 v{vT}, v{vT+2}, 8, v{vT}')
    k(f's_and_b32 s40, s{sWAVE}, 1')
    k(f's_lshl_b32 s40, s40, 9')
    k(f's_add_u32 s40, s40, {LRED}')
    k(f'v_add_u32 v{vRR}, s40, v{vT}')
    for w in range(1, 4): k(f'v_add_u32 v{vRR2+w-1}, {1024*w}, v{vRR}')
    k(f's_lshl_b32 s40, s{sID}, 1')
    k(f's_and_b32 s41, s{sWAVE}, 1')
    k(f's_add_u32 s40, s40, s41')
    k(f's_lshl_b32 s40, s40, 8')
    k(f'v_lshlrev_b32 v{vL4}, 2, v{vLane}')
    k(f'v_add_u32 v{vL4}, s40, v{vL4}')
    k(f's_mov_b32 s{sSTEP}, 0')
    k(f's_lshr_b32 s{sM}, s{sWAVE}, 1')
    k(f's_mul_i32 s{sM}, s{sM}, {2*MEM_S}')
    k(f's_add_u32 s{sM}, s{sM}, {MEM}')
    k(f's_mov_b32 s47, {MEMX - MEM_S}')
    k(f"s_mov_b32 s49, {MEM + (NREP-1)*MEM_S}")
    k(f's_and_b32 s{sP}, s{sID}, 1')
    k(f"s_mul_i32 s{sP}, s{sP}, {PB_S if OPT['prep'] == 2 else 0}")
    k(f's_add_u32 s{sP}, s{sP}, {PB}')
    k(f's_lshl_b32 s{sX}, s{sID}, 15')
    k(f's_lshl_b32 s40, s{sWAVE}, 13')
    k(f's_add_u32 s{sX}, s{sX}, s40')
    k(f's_add_u32 s{sX}, s{sX}, {UF}')
    k(f's_mul_i32 s{sUM}, s{sWAVE}, {2*28*1024}')
    k(f's_lshl_b32 s40, s{sID}, 11')
    k(f's_add_u32 s{sUM}, s{sUM}, s40')
    k(f's_add_u32 s{sUM}, s{sUM}, {UM}')
    k(f's_mov_b32 s43, s{sUM}')
    def ldu(j, s0=sX):
        hh, T = j >> 1, j & 1
        r = vU + 16*(hh>>1) + 8*T + 4*(hh&1)
        return f'buffer_load_dwordx4 {vr(r,4)}, v{vL16}, {WS}, s{s0 if j<4 else sT0} offen offset:{(j&3)*1024} ' + OPT['uf']
    def stum(u, T):
        return f'buffer_store_dwordx4 {vr(vUm+8*T+4*u,4)}, v{vL16}, {WS}, s{43 if u==0 else 44} offen offset:{T*1024} ' + OPT['um']
    def lw(gi):
        b = vTm + 16*(gi&1)
        for f in range(4): k.ds(f'ds_read_b128 {vr(b+4*f,4)}, v{vWL} offset:{gi*4096+f*1024}', f'w{gi}')
    def load_u(ahead):
        if wait_u:
            lu = k.newlabel('Lnu')
            k(f's_add_u32 s{sT0}, s{sSTEP}, {ahead}')
            k(f's_and_b32 s{sT1}, s{sT0}, 3')
            k(f's_cbranch_scc1 {lu}')
            k(f's_lshl_b32 s{sT0}, s{sT0}, 5')
            k(f's_add_u32 s{sT0}, s{sT0}, {flag(F_U)}')
            wait_u(k, sT0, 32, vC, sleep=1)
            k.label(lu)
        k(f's_add_u32 s{sT0}, s{sX}, 4096')
        for j in range(8): k(ldu(j))
        k(f's_add_u32 s{sX}, s{sX}, {UF_SEG}')
    if OPT['u0'] == 'pro': load_u(0)
    wait_mode(k, vC)
    sw = []
    for o in range(4):
        r = vU + 8*o
        for e in range(4):
            sel = e & 1
            sw.append(f'v_pk_mov_b32 {vr(vUi+8*o+2*e,2)}, {vr(r+(e&2),2)}, {vr(r+4+(e&2),2)} op_sel:[{sel},{sel}]')
    if stamps: k(f's_add_u32 s76, s{sST}, 0x20000')
    edge(k, stamps, 0)
    k('s_branch L_B_loop')
    k('.p2align 8')
    for _ in range(OPT['padB']): k('s_nop 0')
    k.label('L_B_loop')
    lp = k.newlabel('Lgm')
    def gl():
        sb = 49
        k(f'buffer_load_dwordx4 {vr(vM,4)}, v{vG0}, {WS}, s{sb} offen sc1')
        k(f'buffer_load_dwordx4 {vr(vM+4,4)}, v{vG1}, {WS}, s{sb} offen sc1')
    k(f's_waitcnt vmcnt({NREP})')
    NU = OPT['nu2']
    if OPT['bdel']: k(f"s_sleep {OPT['bdel']}")
    k(f's_add_u32 s{sT0}, s{sX}, {4096 - UF_SEG}')
    k(f's_sub_u32 s{sT1}, s{sX}, {UF_SEG}')
    for j in range(8-NU, 8): k(ldu(j, sT1))
    gl()
    NS = 8 if NU <= 4 else 0
    if NU == 0: NS = 16
    for x in sw[:NS]: k(x)
    for r in range(0, 32, 2): k(f'v_mov_b64 {vr(vA+r,2)}, 0')
    for j in range(2, 7): k(f'v_add_u32 v{vG+j}, s{50+j}, v{vL16}')
    k(f's_add_u32 s45, s{sSTEP}, 1')
    k(f's_lshr_b32 s45, s45, 2')
    k(f's_lshl_b32 s45, s45, 7')
    k(f's_add_u32 s45, s45, {flag(F_U)}')
    k(f's_add_u32 s44, s43, {28*1024}')
    vm = [stum(0,0), stum(0,1), stum(1,0), stum(1,1)] + [ldu(j) for j in range(8)]
    lw(0)
    k(f's_mov_b32 s{sCNT}, 0')
    k(f's_branch {lp}w')
    k.label(lp)
    if OPT['bgs']: k(f"s_sleep {OPT['bgs']}")
    gl()
    k(f's_add_u32 s{sCNT}, s{sCNT}, 1')
    k(f's_cmp_gt_u32 s{sCNT}, s{sT2}')
    k('s_cbranch_scc1 L_fail')
    k.label(lp + 'w')
    k('s_waitcnt vmcnt(1)')
    k(f'v_max3_u32 v{vC}, v{vM}, v{vM+1}, v{vM+2}')
    k('s_waitcnt vmcnt(0)')
    k(f'v_max3_u32 v{vC+1}, v{vM+4}, v{vM+5}, v{vM+6}')
    k(f'v_max3_u32 v{vC}, v{vC}, v{vM+3}, v{vM+7}')
    k(f'v_max_u32 v{vC}, v{vC}, v{vC+1}')
    k(f'v_cmp_eq_u32 vcc, -1, v{vC}')
    k(f's_cbranch_vccnz {lp}')
    stamp(k, 0, stamps)
    k.ds(f'ds_write_b128 v{vG0}, {vr(vM,4)} offset:{LM}')
    k.ds(f'ds_write_b128 v{vG1}, {vr(vM+4,4)} offset:{LM}')
    ls, l2 = k.newlabel('Lbs'), k.newlabel('Lbt')
    k(f's_cmp_eq_u32 s{sSTEP}, 0')
    k(f's_cbranch_scc1 {l2}')
    k(f's_cmp_ge_u32 s{sWAVE}, 2')
    k(f's_cbranch_scc1 {ls}')
    k(f'buffer_store_dword v{vKeep}, v{vL4}, {WS}, s47 offen sc1')
    k(f's_branch {l2}')
    k.label(ls)
    k(f's_cmp_eq_u32 s{sWAVE}, 2')
    k(f's_cselect_b32 s{sT0}, s{sSTEP}, 0')
    k(f's_cmp_le_u32 s{sT0}, 1')
    k(f's_cbranch_scc1 {l2}')
    k(f's_lshl_b32 s{sT0}, s{sSTEP}, 7')
    k(f's_add_u32 s{sT0}, s{sT0}, {flag(F_UM) - 256}')
    k('s_mov_b64 exec, 1')
    k(f'v_mov_b32 v{vC}, 1')
    k(f'buffer_atomic_add v{vC}, off, {WS}, s{sT0}')
    k('s_mov_b64 exec, -1')
    k.label(l2)
    k(f'buffer_load_dword v{vFl}, off, {WS}, s45 sc1')
    for x in vm[:4]: k(x)
    def acc(gi): return vA + 4*gi
    def cvt(gi, h):
        hh, T = gi>>1, gi&1
        d = vUm + 8*T + 4*(hh>>1) + 2*h + (hh&1)
        a = acc(gi) + 2*h
        k(f'v_cvt_pk_bf16_f32 v{d}, v{a}, v{a+1}')
    def lw1(gi, f):
        k.ds(f'ds_read_b128 {vr(vTm+16*(gi&1)+4*f,4)}, v{vWL} offset:{gi*4096+f*1024}', f'w{gi}')
    def MB(gi, j):
        w = xr(W(gi,j),8) if j < 5 else vr(vTm + 16*(gi&1) + 8*(j-5), 8)
        k(f'v_smfmac_f32_16x16x64_bf16 {vr(acc(gi),4)}, {vr(vM+4*j,4)}, {w}, v{vIdx}')
    for n in range(16):
        MB(n & 7, n >> 3)
        if n == 5:
            k.wds0(); k('s_barrier')
        if 5 <= n < 10:
            k.ds(f'ds_read_b128 {vr(vM+4*(n-3),4)}, v{vG+n-3} offset:{LM}', f'm{n-3}')
    for gi in range(8):
        for j in range(2, 7):
            if gi == 0: k.wds(f'm{j}')
            if j == 5: k.wds(f'w{gi}')
            MB(gi, j)
            if gi < 7 and j in (2, 3, 5, 6): lw1(gi+1, {2:0, 3:1, 5:2, 6:3}[j])
            if gi >= 1 and j == 4: cvt(gi-1, 0); cvt(gi-1, 1)
    k(f's_mov_b32 s43, s{sUM}')
    k(f's_add_u32 s{sUM}, s{sUM}, {UM_SEG}')
    for x in sw[NS:]: k(x)
    k.nop(6 if NS == 16 else 0)
    cvt(7, 0); cvt(7, 1)
    for r in range(0, 8, 2): k(f'v_mov_b64 {vr(vD+r,2)}, 0')
    k(f's_cmp_ge_u32 s{sSTEP}, {NSTEP}')
    k('s_cbranch_scc1 L_B_end')
    k('s_waitcnt vmcnt(4)')
    if OPT['u0'] == 'cold':
        l0, l1 = k.newlabel('Lu0'), k.newlabel('Lu1')
        k(f's_cmp_eq_u32 s{sSTEP}, 0')
        k(f's_cbranch_scc1 {l0}')
        k.label(l1)
        main = k.lines; k.lines = []
        k.label(l0)
        load_u(0)
        k('s_waitcnt vmcnt(0)')
        for x in sw: k(x)
        k(f'v_mov_b32 v{vFl}, 32')
        k(f's_branch {l1}')
        k.cold += k.lines; k.lines = main
    if wait_u:
        lu = k.newlabel('Lnu')
        k(f'v_cmp_le_u32 vcc, 32, v{vFl}')
        k(f's_cbranch_vccnz {lu}')
        wait_u(k, 45, 32, vC)
        k.label(lu)
    k(f's_add_u32 s{sT0}, s{sX}, 4096')
    for j in range(8-NU): k(ldu(j))
    k(f's_add_u32 s{sX}, s{sX}, {UF_SEG}')
    stamp(k, 1, stamps)
    if OPT['sleepB']: k(f"s_sleep {OPT['sleepB']}")
    def issue(st):
        P = vP[st]
        return [f'buffer_load_dwordx4 {vr(P,4)}, v{vPT}, {WS}, s{sP} offen sc1',
                f'buffer_load_dwordx4 {vr(P+4,4)}, v{vPT}, {WS}, s{sP} offen offset:1024 sc1',
                f'buffer_load_dwordx4 {vr(P+8,4)}, v{vPM}, {WS}, s{sP} offen sc1']
    def checks(st):
        P = vP[st]
        return [(2, [f'v_max3_u32 v{vC}, v{P}, v{P+1}, v{P+2}']),
                (1, [f'v_max3_u32 v{vC+1}, v{P+4}, v{P+5}, v{P+6}', f'v_max3_u32 v{vC}, v{vC}, v{P+3}, v{P+7}']),
                (0, [f'v_max3_u32 v{vC+1}, v{vC+1}, v{P+8}, v{P+9}', f'v_max3_u32 v{vC}, v{vC}, v{P+10}, v{P+11}',
                     f'v_max_u32 v{vC}, v{vC}, v{vC+1}', f'v_cmp_eq_u32 vcc, -1, v{vC}'])]
    def body(st):
        P = vP[st]
        stamp(k, 2, stamps)
        for j in range(3):
            for T in range(2):
                b = vr(vUi + 16*j + 8*T, 8) if j < 2 else vr(vUm + 8*T, 8)
                k(f'v_smfmac_f32_16x16x64_bf16 {vr(vD+4*T,4)}, {vr(P+4*j,4)}, {b}, v{vIdx}')
    if OPT['bp2']: poll2(k, issue, checks, body, 'Lpp', OPT['stag'])
    else:
        lp = k.newlabel('Lp1')
        k(f's_mov_b32 s{sCNT}, 0')
        k.label(lp)
        for x in issue(0): k(x)
        k(f's_add_u32 s{sCNT}, s{sCNT}, 1')
        k(f's_cmp_gt_u32 s{sCNT}, s{sT2}')
        k('s_cbranch_scc1 L_fail')
        for rel, ins in checks(0):
            k(f's_waitcnt vmcnt({rel})')
            for x in ins: k(x)
        k(f's_cbranch_vccnz {lp}')
        body(0)
    k(f's_add_u32 s{sM}, s{sM}, {MEM_T}')
    k(f's_add_u32 s47, s47, {MEM_S}')
    k(f's_add_u32 s48, s{sM}, {MEM_S}')
    k(f's_add_u32 s49, s49, {MEM_T}')
    k(f's_add_u32 s{sP}, s{sP}, {PB_T}')
    k.nop(3)
    for r in range(4): k(f'v_permlane32_swap_b32 v{vD+r}, v{vD+4+r}')
    k(f'v_pk_add_f32 {vr(vD,2)}, {vr(vD,2)}, {vr(vD+4,2)}')
    k(f'v_pk_add_f32 {vr(vD+2,2)}, {vr(vD+2,2)}, {vr(vD+6,2)}')
    k.ds(f'ds_write_b128 v{vRW}, {vr(vD,4)}')
    k.wds0()
    k('s_barrier')
    if OPT['rep'] == 3:
        k(f's_cmp_ge_u32 s{sWAVE}, 2')
        k('s_cbranch_scc1 L_B_skip')
    R = vG
    for w in range(4): k.ds(f'ds_read2_b32 {vr(R+2*w,2)}, v{vRR} offset0:{0} offset1:{4}' if w == 0 else
                            f'ds_read2_b32 {vr(R+2*w,2)}, v{vRR2+w-1} offset0:0 offset1:4', f'r{w}')
    k(f's_cmp_eq_u32 s{sMODE}, 1')
    k.wds('r1')
    k(f'v_pk_add_f32 {vr(R,2)}, {vr(R,2)}, {vr(R+2,2)}')
    k.wds('r3')
    k(f'v_pk_add_f32 {vr(R+4,2)}, {vr(R+4,2)}, {vr(R+6,2)}')
    k(f'v_pk_add_f32 {vr(R,2)}, {vr(R,2)}, {vr(R+4,2)}')
    k(f'v_cvt_pk_bf16_f32 v{R}, v{R}, v{R+1}')
    k(f'v_min_u32 v{R}, -2, v{R}')
    publish(k, [f'buffer_store_dword v{R}, v{vL4}, {WS}, s{x} offen' for x in {1: [sM], 2: [sM, 49], 3: [sM, 48, 49]}[NREP]])
    k(f'v_mov_b32 v{vKeep}, v{R}')
    k(f's_cmp_lg_u32 s{sSTEP}, {NSTEP-1}')
    k('s_cbranch_scc1 L_B_skip2')
    k(f'buffer_store_dword v{R}, v{vL4}, {WS}, s47 offen sc1')
    k('s_branch L_B_skip2')
    k.label('L_B_skip')
    k('s_waitcnt vmcnt(0)')
    k.label('L_B_skip2')
    stamp(k, 3, stamps)
    k('s_barrier')
    k(f's_add_u32 s{sSTEP}, s{sSTEP}, 1')
    if stamps: k(f's_add_u32 s{sST}, s{sST}, 16')
    k('s_branch L_B_loop')
    k.label('L_B_end')
    edge(k, stamps, 8)
    for r in range(16): k(f'v_min_u32 v{vUm+r}, -2, v{vUm+r}')
    k(f's_add_u32 s44, s43, {28*1024}')
    for x in vm[:4]: k(x)
    k('s_waitcnt vmcnt(4)')
    k('s_barrier')
    k(f's_cmp_lg_u32 s{sWAVE}, 0')
    k('s_cbranch_scc1 L_exit')
    k('s_mov_b64 exec, 1')
    k(f'v_mov_b32 v{vC}, 1')
    k(f's_mov_b32 s{sT0}, {flag(F_UM + 62)}')
    k(f'buffer_atomic_add v{vC}, off, {WS}, s{sT0}')
    k('s_endpgm')
    k.flush_cold()

def role_P(k, wait_u=None):
    WS = f's[{SWS}:{SWS+3}]'
    vLane, vU, vX, vS, vD = 1, 2, 3, 4, 8
    D = OPT['pfd']; st = OPT['pfs']; sh = 7 if st == 128 else 6
    k.label('L_roleP')
    k(f's_mov_b32 s{sT2}, {POLL_LIMIT}')
    k(f's_sub_u32 s{sID}, s{sROLE}, 30')
    k(f's_lshl_b32 s{sID}, s{sID}, 2')
    k(f's_add_u32 s{sID}, s{sID}, s{sWAVE}')
    k(f'v_and_b32 v{vLane}, 63, v0')
    k(f'v_lshlrev_b32 v{vU}, {sh}, v{vLane}')
    k(f's_mul_i32 s40, s{sID}, {UF_SEG//8}')
    k(f'v_add_u32 v{vU}, s40, v{vU}')
    f2 = 2 if OPT['pf64'] else 1
    for reg, n in ((vX, 28*f2), (vS, PB_T//1024*f2), (vS+1, 7*NREP*f2)):
        k(f'v_min_u32 v{reg}, {n-1}, v{vLane}')
        k(f's_mul_i32 s40, s{sID}, {n}')
        k(f'v_add_lshl_u32 v{reg}, v{reg}, s40, {8 - f2}')
    k(f's_mov_b32 s{sSTEP}, 0')
    k(f's_mov_b32 s{sX}, {UF}')
    k(f's_mov_b32 s{sUM}, {XNS}')
    k(f's_mov_b32 s{sP}, {PB}')
    k(f's_mov_b32 s{sM}, {MEM + MEM_T}')
    k(f's_mov_b32 s41, {MEM - D*MEM_T + (NREP-1)*MEM_S}')
    if OPT['cpf']:
        k('s_getpc_b64 s[44:45]')
        k.label('L_P_pc')
        k('s_sub_u32 s44, s44, L_P_pc-L_roleA')
        k('s_subb_u32 s45, s45, 0')
        k(f's_lshl_b32 s40, s{sID}, 12')
        k(f'v_lshlrev_b32 v20, 6, v{vLane}')
        k('v_add_u32 v20, s40, v20')
        k('v_min_u32 v20, L_P_pc-L_roleA, v20')
        k('v_mov_b32 v21, s45')
        k('v_add_co_u32 v20, vcc, s44, v20')
        k('s_nop 1')
        k('v_addc_co_u32 v21, vcc, 0, v21, vcc')
        k('global_load_dword v22, v[20:21], off')
    k.label('L_P_loop')
    k(f's_cmp_le_u32 s{sSTEP}, {D}')
    k('s_cbranch_scc1 L_P_go')
    k(f's_mov_b32 s{sCNT}, 0')
    k.label('L_P_wait')
    k(f'buffer_load_dword v{vD}, off, {WS}, s41 sc1')
    k(f's_add_u32 s{sCNT}, s{sCNT}, 1')
    k(f's_cmp_gt_u32 s{sCNT}, s{sT2}')
    k('s_cbranch_scc1 L_fail')
    k('s_waitcnt vmcnt(0)')
    k(f'v_cmp_eq_u32 vcc, -1, v{vD}')
    k('s_cbranch_vccz L_P_go')
    k('s_sleep 2')
    k('s_branch L_P_wait')
    k.label('L_P_go')
    k(f'buffer_load_dword v{vD+1}, v{vS}, {WS}, s{sP} offen sc1')
    k(f'buffer_load_dword v{vD+2}, v{vS+1}, {WS}, s{sM} offen sc1')
    k(f'buffer_load_dword v{vD+3}, v{vX}, {WS}, s{sUM} offen sc1')
    n = 0 if OPT['apf'] else UF_SEG // 8 // (64*st)
    k(f's_mov_b32 s{sT0}, s{sX}')
    for j in range(n):
        k(f'buffer_load_dword v{vD+4+j}, v{vU}, {WS}, s{sT0} offen sc1')
        k(f's_add_u32 s{sT0}, s{sT0}, {64*st}')
    k(f's_add_u32 s{sX}, s{sX}, {UF_SEG}')
    k(f's_add_u32 s{sUM}, s{sUM}, 28672')
    k(f's_add_u32 s{sP}, s{sP}, {PB_T}')
    k(f's_add_u32 s{sM}, s{sM}, {MEM_T}')
    k(f's_add_u32 s41, s41, {MEM_T}')
    k(f's_add_u32 s{sSTEP}, s{sSTEP}, 1')
    k(f's_cmp_lt_u32 s{sSTEP}, {NSTEP}')
    k('s_cbranch_scc1 L_P_loop')
    k('s_waitcnt vmcnt(0)')
    k('s_endpgm')
```

```python
from asmlib import *
from layout import *

class K(Asm):
    def __init__(self):
        super().__init__()
        self.dsq = []; self.cold = []; self.vmq = []
    def ds(self, text, tag=None):
        self(text); self.dsq.append(tag)
    def wds(self, tag):
        if tag not in self.dsq: return
        idx = max(i for i, t in enumerate(self.dsq) if t == tag)
        n = len(self.dsq) - 1 - idx
        assert n <= 15
        self(f's_waitcnt lgkmcnt({n})')
        self.dsq = self.dsq[idx+1:]
    def wds0(self):
        self('s_waitcnt lgkmcnt(0)'); self.dsq = []
    def vm(self, text, tag=None):
        self(text); self.vmq.append(tag)
    def wvm(self, *tags, extra=''):
        idx = max([i for i, t in enumerate(self.vmq) if t in tags], default=-1)
        if idx < 0:
            if extra: self('s_waitcnt ' + extra)
            return
        n = len(self.vmq) - 1 - idx
        assert n <= 63
        self(f's_waitcnt vmcnt({n}) {extra}')
        self.vmq = self.vmq[idx+1:]
    def flush_cold(self):
        for l in self.cold: self(l)
        self.cold = []

SWS, SDBG = 4, 8
sROLE, sWAVE, sSTEP, sMODE, sM, sP, sX, sUM, sCNT = 12, 13, 14, 15, 16, 17, 18, 19, 20
sT0, sT1, sT2 = 21, 22, 23
sMASK8 = 24
sID = 26
sST = 28
sTM = 30
POLL_LIMIT = 400000
NSTEP = 63
OPT = dict(sa='late', sb='early', um='sc1', uf='sc1', sleepA=0, sleepB=0, stampmask=15, rt=0, barA=1, barB=1, prefP=0, pfd=2, pfs=128, upos='early', ud=2, apf=1, nb=7, stag=1, wpos=1, rsp=1, s1pos=0, upre=8, uneed=32, ust='sc1', rot=1, k1st='sc1', uwin=2, k1d=2, ap2=0, stagA=2, gv=0, ug=8, bdel=0, pc=0, padA=0, padB=0, tail2=1, pf64=1, tw=0, rep=3, prep=1, k1late=0, cpf=0, sm2=0, tm=0, bp2=1, k1pf=0, k1ln='sc1', u0='cold', align=0, w64=0, p64=0, kpos='post', kdel=7, nu2=4, bgs=0, vsl=120, usl=120, psl=16, msl=120)

def stamp(k, idx, on):
    if not on or not (OPT['stampmask'] >> idx) & 1: return
    k(('s_memrealtime' if OPT['rt'] else 's_memtime') + f' s[{sTM}:{sTM+1}]')
    k.wds0()
    k(f'v_mov_b32 v0, s{sTM}')
    k(f'buffer_store_dword v0, off, s[{SWS}:{SWS+3}], s{sST} offset:{idx*4}')

def edge(k, on, off):
    if not on or OPT['rt']: return
    lp = k.newlabel('Led')
    k('s_memrealtime s[70:71]')
    k('s_waitcnt lgkmcnt(0)')
    k.label(lp)
    k('s_memrealtime s[72:73]')
    k('s_memtime s[74:75]')
    k('s_waitcnt lgkmcnt(0)')
    k('s_cmp_eq_u32 s72, s70')
    k(f's_cbranch_scc1 {lp}')
    k('v_mov_b32 v0, s72')
    k(f'buffer_store_dword v0, off, s[{SWS}:{SWS+3}], s76 offset:{off}')
    k('v_mov_b32 v0, s74')
    k(f'buffer_store_dword v0, off, s[{SWS}:{SWS+3}], s76 offset:{off+4}')

def publish(k, text):
    ls, ld = k.newlabel('Lslow'), k.newlabel('Lpub')
    if isinstance(text, str): text = [text]
    k(f's_cbranch_scc0 {ls}')
    for x in text: k(x)
    k.label(ld)
    k.cold += [ls + ':'] + [x + ' sc1' for x in text] + [f's_branch {ld}']

def gather_mem(k, vG, vOff0, vOff1, vL0, vL1, vT):
    lp, dn = k.newlabel('Lgm'), k.newlabel('Lgd')
    k(f's_mov_b32 s{sCNT}, 0')
    k.label(lp)
    k(f'buffer_load_dwordx4 {vr(vG,4)}, v{vOff0}, s[{SWS}:{SWS+3}], s{sM} offen sc1')
    k(f'buffer_load_dwordx4 {vr(vG+4,4)}, v{vOff1}, s[{SWS}:{SWS+3}], s{sM} offen sc1')
    k(f's_add_u32 s{sCNT}, s{sCNT}, 1')
    k(f's_cmp_gt_u32 s{sCNT}, s{sT2}')
    k('s_cbranch_scc1 L_fail')
    k('s_waitcnt vmcnt(1)')
    k(f'v_max3_u32 v{vT}, v{vG}, v{vG+1}, v{vG+2}')
    k('s_waitcnt vmcnt(0)')
    k(f'v_max3_u32 v{vT+1}, v{vG+4}, v{vG+5}, v{vG+6}')
    k(f'v_max3_u32 v{vT}, v{vT}, v{vG+3}, v{vG+7}')
    k(f'v_max_u32 v{vT}, v{vT}, v{vT+1}')
    k(f'v_cmp_eq_u32 vcc, -1, v{vT}')
    k(f's_cbranch_vccnz {lp}')
    if vL0 is None: return
    k.ds(f'ds_write_b128 v{vL0}, {vr(vG,4)}')
    k.ds(f'ds_write_b128 v{vL1}, {vr(vG+4,4)}')
    k.wds0()
    k('s_barrier')

def wait_mode(k, vT):
    lp = k.newlabel('Lwm')
    k(f's_mov_b32 s{sCNT}, 0')
    k(f'v_and_b32 v{vT+1}, 15, v0')
    k(f'v_lshlrev_b32 v{vT+1}, 2, v{vT+1}')
    k.label(lp)
    k(f'buffer_load_dword v{vT}, v{vT+1}, s[{SDBG}:{SDBG+3}], 0 offen offset:32 sc1')
    k(f's_add_u32 s{sCNT}, s{sCNT}, 1')
    k(f's_cmp_gt_u32 s{sCNT}, s{sT2}')
    k('s_cbranch_scc1 L_fail')
    k('s_waitcnt vmcnt(0)')
    k(f'v_cmp_eq_u32 vcc, 32, v{vT}')
    for rot in (8, 4, 2, 1):
        k.nop(2)
        k(f'v_add_u32_dpp v{vT}, v{vT}, v{vT} row_ror:{rot} row_mask:0xf bank_mask:0xf')
    k.nop(1)
    k(f'v_readfirstlane_b32 s{sMODE}, v{vT}')
    k('s_nop 3')
    k(f's_cmp_lt_u32 s{sMODE}, 32')
    k(f's_cbranch_scc1 {lp}')
    k('s_cmp_lg_u64 vcc, 0')
    k(f's_cselect_b32 s{sMODE}, 1, 2')

def common_lane_setup(k, vLane, vL16, vG0, vG1, vIdx, vT):
    k(f'v_and_b32 v{vLane}, 63, v0')
    k(f'v_lshlrev_b32 v{vL16}, 4, v{vLane}')
    if vG0 is not None:
        k(f's_lshl_b32 s{sT0}, s{sWAVE}, 10')
        k(f'v_add_u32 v{vG0}, s{sT0}, v{vL16}')
        k(f's_add_u32 s{sT0}, s{sWAVE}, 4')
        k(f's_min_u32 s{sT0}, s{sT0}, 6')
        k(f's_lshl_b32 s{sT0}, s{sT0}, 10')
        k(f'v_add_u32 v{vG1}, s{sT0}, v{vL16}')
    k(f'v_and_b32 v{vT}, 8, v{vLane}')
    k(f'v_mov_b32 v{vIdx}, 0x4444')
    k(f'v_mov_b32 v{vT+1}, 0xeeee')
    k(f'v_cmp_ne_u32 vcc, 0, v{vT}')
    k('s_nop 1')
    k(f'v_cndmask_b32 v{vIdx}, v{vIdx}, v{vT+1}, vcc')
    k(f's_mov_b32 s{sT2}, {POLL_LIMIT}')

def poll2(k, issue, checks, body, name, stag):
    nl = len(issue(0))
    l0, d0, d1, dn = [k.newlabel(name + x) for x in ('lp', 'd0', 'd1', 'dn')]
    k(f's_mov_b32 s{sCNT}, 0')
    for x in issue(0): k(x)
    k(f"s_sleep {stag}")
    k.label(l0)
    for st, dl in ((0, d0), (1, d1)):
        for x in issue(1 - st): k(x)
        if st == 0:
            k(f's_add_u32 s{sCNT}, s{sCNT}, 1')
            k(f's_cmp_gt_u32 s{sCNT}, s{sT2}')
            k('s_cbranch_scc1 L_fail')
        for rel, ins in checks(st):
            k(f's_waitcnt vmcnt({nl + rel})')
            for x in ins: k(x)
        if st == 0: k(f's_cbranch_vccz {d0}')
        else:       k(f's_cbranch_vccnz {l0}x')
    saved = list(k.dsq)
    body(1)
    k(f's_branch {dn}')
    k.label(l0 + 'x')
    k(f's_branch {l0}')
    k.label(d0)
    end = list(k.dsq); k.dsq = saved
    body(0)
    assert k.dsq == end
    k.label(dn)

def role_A(k, stamps=False):
    vLane, vL16, vIdx = 1, 2, 3
    vKey, vKeyS, vMK, vMKS, vQW, vQR, vSW, vSR, vPO, vVal = 4, 5, 6, 7, 8, 9, 10, 11, 12, 13
    vT = 14
    vM = 16
    vQ = 44
    vKT = 72
    vKM = 100
    vX = 114
    vG0, vG1 = 118, 119
    def W(lt, kb):
        i = lt*7 + kb
        return (256 + 8*i) if i < 32 else (120 + 8*(i-32))
    LM, LSP, LQS = 0, 7168, 20480
    k.label('L_roleA')
    k(f's_mov_b32 s{sID}, s{sROLE}')
    common_lane_setup(k, vLane, vL16, vG0, vG1, vIdx, vX)
    k(f's_lshr_b32 s{sT0}, s{sWAVE}, 1')
    k(f's_mul_i32 s{sT0}, s{sT0}, 14')
    k(f's_and_b32 s{sT1}, s{sWAVE}, 1')
    k(f's_add_u32 s33, s{sT0}, 6')
    k(f's_add_u32 s33, s33, s{sT1}')
    k(f's_lshl_b32 s34, s{sT1}, 3')
    k(f's_add_u32 s32, s{sT0}, s34')
    k(f's_mul_i32 s35, s{sID}, {28*14*1024}')
    k(f's_add_u32 s35, s35, {WTA}')
    k(f's_mul_i32 s36, s32, {14*1024}')
    k(f's_add_u32 s36, s36, s35')
    k(f's_mul_i32 s37, s33, {14*1024}')
    k(f's_add_u32 s37, s37, s35')
    for j in range(7):
        k(f's_add_u32 s{50+j}, s{sWAVE}, {(4*j) % 7}')
        k(f's_sub_u32 s40, s{50+j}, 7')
        k(f's_cmp_ge_u32 s{50+j}, 7')
        k(f's_cselect_b32 s{50+j}, s40, s{50+j}')
        k(f's_lshl_b32 s{50+j}, s{50+j}, 10')
    n = 0
    for lt in range(7):
        sb = 36 if lt < 6 else 37
        for j in range(7):
            k(f's_lshl_b32 s40, s{50+j}, 1')
            k(f's_add_u32 s40, s40, s{sb}')
            for f in range(2):
                k(f'buffer_load_dwordx4 {xr(W(lt, j) + 4*f,4)}, v{vL16}, s[{SWS}:{SWS+3}], s40 offen offset:{f*1024}')
                n += 1
                if n % 16 == 0: k('s_waitcnt vmcnt(40)')
        k(f's_add_u32 s{sb}, s{sb}, 14336')
    k(f'v_add_u32 v{vG1}, s51, v{vL16}')
    t = vX
    g, i = vQ, vQ+1
    k(f'v_lshrrev_b32 v{g}, 4, v{vLane}')
    k(f'v_and_b32 v{i}, 15, v{vLane}')
    k(f's_lshr_b32 s38, s32, 1')
    k(f's_lshr_b32 s39, s33, 1')
    k(f's_lshl_b32 s40, s38, 10')
    k(f'v_add_u32 v{vKey}, s40, v{vL16}')
    k(f's_lshl_b32 s40, s39, 10')
    k(f's_add_u32 s40, s40, s34')
    k(f'v_add_u32 v{vKeyS}, s40, v{vL16}')
    k(f'v_lshrrev_b32 v{t}, 1, v{g}')
    k(f'v_lshlrev_b32 v{t}, 8, v{t}')
    k(f'v_and_b32 v{t+1}, 7, v{i}')
    k(f'v_lshlrev_b32 v{t+1}, 4, v{t+1}')
    k(f'v_add_u32 v{t}, v{t}, v{t+1}')
    k(f'v_and_b32 v{t+1}, 1, v{g}')
    k(f'v_lshlrev_b32 v{t+1}, 7, v{t+1}')
    k(f'v_add_u32 v{t}, v{t}, v{t+1}')
    k(f's_lshl_b32 s40, s38, 9')
    k(f'v_add_u32 v{vMK}, s40, v{t}')
    k(f's_lshl_b32 s40, s39, 9')
    k(f's_add_u32 s40, s40, s34')
    k(f'v_add_u32 v{vMKS}, s40, v{t}')
    k(f's_lshl_b32 s40, s{sWAVE}, 10')
    k(f's_add_u32 s40, s40, {LQS}')
    k(f'v_lshrrev_b32 v{t}, 2, v{i}')
    k(f'v_add_u32 v{t}, v{t}, v{g}')
    k(f'v_and_b32 v{t}, 3, v{t}')
    k(f'v_lshlrev_b32 v{t}, 3, v{t}')
    k(f'v_lshlrev_b32 v{t+1}, 5, v{i}')
    k(f'v_add3_u32 v{vQW}, v{t}, v{t+1}, s40')
    k(f'v_lshrrev_b32 v{t}, 2, v{vLane}')
    k(f'v_lshlrev_b32 v{t}, 5, v{t}')
    k(f'v_add_u32 v{t+1}, v{vLane}, v{g}')
    k(f'v_and_b32 v{t+1}, 3, v{t+1}')
    k(f'v_lshlrev_b32 v{t+1}, 3, v{t+1}')
    k(f'v_add3_u32 v{vQR}, v{t}, v{t+1}, s40')
    k(f's_mul_i32 s40, s{sWAVE}, 3264')
    k(f's_add_u32 s40, s40, {LSP}')
    k(f'v_lshlrev_b32 v{t}, 4, v{i}')
    k(f'v_mul_u32_u24 v{t+1}, 272, v{g}')
    k(f'v_add3_u32 v{vSW}, v{t}, v{t+1}, s40')
    k(f'v_subrev_u32 v{t}, 12, v{i}')
    k(f'v_cmp_le_u32 vcc, 12, v{i}')
    k('s_nop 1')
    k(f'v_cndmask_b32 v{t}, v{i}, v{t}, vcc')
    k(f'v_lshrrev_b32 v{t+1}, 5, v{vLane}')
    k(f's_lshl_b32 s40, s{sWAVE}, 1')
    k(f'v_add_u32 v{t+1}, s40, v{t+1}')
    k(f'v_and_b32 v{t+2}, 1, v{g}')
    k(f'v_lshl_add_u32 v{t+3}, v{t+2}, 3, v{t+1}')
    k(f'v_lshlrev_b32 v{t+3}, 4, v{t+3}')
    k(f'v_mul_u32_u24 v{vSR}, 272, v{t}')
    k(f'v_add_u32 v{vSR}, v{vSR}, v{t+3}')
    if LSP: k(f'v_add_u32 v{vSR}, {LSP}, v{vSR}')
    k(f's_and_b32 s42, s{sID}, 1')
    k(f's_lshl_b32 s42, s42, 3')
    k(f'v_add_u32 v{t+1}, s42, v{t+1}')
    k(f'v_and_b32 v{vPO}, 1, v{i}')
    k(f'v_lshlrev_b32 v{vPO}, 3, v{vPO}')
    k(f'v_lshl_add_u32 v{vPO}, v{t+1}, 4, v{vPO}')
    k(f'v_bfe_u32 v{t}, v{i}, 1, 1')
    k(f'v_lshl_add_u32 v{vPO}, v{t}, 8, v{vPO}')
    k(f'v_bfe_u32 v{t}, v{i}, 3, 1')
    k(f'v_lshl_add_u32 v{vPO}, v{t}, 9, v{vPO}')
    k(f's_lshr_b32 s41, s{sID}, 1')
    k(f's_lshl_b32 s40, s41, 10')
    k(f'v_add_u32 v{vPO}, s40, v{vPO}')
    k(f'v_lshlrev_b32 v{t}, 3, v{i}')
    k(f'v_lshl_add_u32 v{t}, v{t+1}, 4, v{t}')
    k(f's_lshl_b32 s40, s41, 8')
    k(f's_add_u32 s40, s40, 8192')
    k(f'v_add_u32 v{t}, s40, v{t}')
    k(f'v_mov_b32 v{t+3}, 0x40000000')
    k(f'v_cmp_le_u32 vcc, 2, v{i}')
    k('s_nop 1')
    k(f'v_cndmask_b32 v{t}, v{t}, v{t+3}, vcc')
    k(f'v_cmp_le_u32 vcc, 4, v{i}')
    k('s_nop 1')
    k(f'v_cndmask_b32 v{vPO}, v{t}, v{vPO}, vcc')
    k(f'v_cmp_le_u32 vcc, 12, v{i}')
    k('s_nop 1')
    k(f'v_cndmask_b32 v{vPO}, v{vPO}, v{t+3}, vcc')
    k(f'v_lshl_add_u32 v{vPO}, v{t+2}, 2, v{vPO}')
    k(f'v_mov_b32 v{vVal}, 1.0')
    k(f'v_cmp_le_u32 vcc, v{t+3}, v{vPO}')
    k('s_nop 1')
    k(f'v_cndmask_b32 v{vVal}, v{vVal}, 0, vcc')
    k(f's_mov_b32 s{sSTEP}, 0')
    k(f"s_lshr_b32 s{sM}, s{sID}, {3 if OPT['rep'] == 3 else 2}")
    k(f"s_mul_i32 s{sM}, s{sM}, {MEM_S if NREP == 3 else 0}")
    k(f's_add_u32 s{sM}, s{sM}, {MEM}')
    k(f's_mov_b32 s{sP}, {PB}')
    k(f's_mov_b32 s{sX}, {XNS}')
    k(f's_lshl_b32 s40, s{sID}, 2')
    k(f's_add_u32 s40, s40, s{sWAVE}')
    k(f's_mul_i32 s40, s40, 7168')
    k(f'v_min_u32 v{vX}, {55*16}, v{vL16}')
    k(f'v_lshlrev_b32 v{vX}, 3, v{vX}')
    k(f'v_add_u32 v{vX}, s40, v{vX}')
    k(f"s_mov_b32 s{sUM}, {UF + OPT['ud']*UF_SEG}")
    WS = f's[{SWS}:{SWS+3}]'
    def key_list():
        L = []
        for p in range(3):
            L.append(f'buffer_load_dwordx4 {vr(vKT+8*p,4)}, v{vKey}, {WS}, s{sX} offen offset:{p*1024}')
            L.append(f'buffer_load_dwordx4 {vr(vKT+8*p+4,4)}, v{vKey}, {WS}, s46 offen offset:{p*1024}')
        L.append(f'buffer_load_dwordx2 {vr(vKT+24,2)}, v{vKeyS}, {WS}, s{sX} offen')
        L.append(f'buffer_load_dwordx2 {vr(vKT+26,2)}, v{vKeyS}, {WS}, s46 offen')
        return L
    def load_flag():
        k(f's_add_u32 s{sT0}, s{sSTEP}, {1 + OPT["ud"]}')
        k(f's_lshr_b32 s{sT0}, s{sT0}, 2')
        k(f's_lshl_b32 s{sT0}, s{sT0}, 7')
        k(f's_add_u32 s{sT0}, s{sT0}, {flag(F_U)}')
        k(f'buffer_load_dword v{vX+2}, off, {WS}, s{sT0} sc1')
    def load_keys(keys=True):
        if keys:
            for x in key_list(): k(x)
        k(f's_add_u32 s{sX}, s{sX}, 28672')
        k(f's_add_u32 s46, s{sX}, 14336')
    if OPT['tm']:
        k(f'v_lshlrev_b32 v{vQ+2}, 2, v{g}')
        k(f'v_sub_u32 v{vQ+2}, v{i}, v{vQ+2}')
        k(f'v_and_b32 v{vQ+3}, 1, v{vQ+2}')
        k(f'v_lshlrev_b32 v{vQ+3}, 4, v{vQ+3}')
        k(f'v_mov_b32 v{vLane}, 0x3f80')
        k(f'v_lshlrev_b32 v{vLane}, v{vQ+3}, v{vLane}')
        k(f'v_cmp_gt_u32 vcc, 4, v{vQ+2}')
        k(f'v_cmp_lt_u32 s[48:49], 1, v{vQ+2}')
        k('s_nop 0')
        k(f'v_cndmask_b32 v{vLane}, 0, v{vLane}, vcc')
    k(f's_add_u32 s46, s{sX}, 14336')
    k(f's_mov_b32 s{sSTEP}, -1')
    load_flag()
    load_keys()
    k(f's_mov_b32 s{sSTEP}, 0')
    wait_mode(k, vT)
    k(f'v_mov_b32 v{vX+3}, 0x40000000')
    if stamps: k(f's_add_u32 s76, s{sST}, 0x20000')
    edge(k, stamps, 0)
    k('s_branch L_A_loop')
    k('.p2align 8')
    for _ in range(OPT['padA']): k('s_nop 0')
    k.label('L_A_loop')
    for r in range(0, 28, 2): k(f'v_mov_b64 {vr(vQ+r,2)}, 0')
    k(f's_add_u32 s47, s{sP}, {PB_S}')
    vAd = vKM + 6
    for j in range(2, 7): k(f'v_add_u32 v{vAd+j}, s{50+j}, v{vL16}')
    def Mx(lt, kb, src):
        return f'v_smfmac_f32_16x16x64_bf16 {vr(vQ+4*lt,4)}, {vr(src,4)}, {xr(W(lt,kb),8)}, v{vIdx}'
    def M(lt, kb): return Mx(lt, kb, vM+4*kb)
    mk = [f'ds_read_b128 {vr(vKM+4*p,4)}, v{vMK} offset:{LM+p*512}' for p in range(3)]
    mk.append(f'ds_read_b64 {vr(vKM+12,2)}, v{vMKS} offset:{LM}')
    sets = [vM, vKM]
    def issue(st):
        return [f'buffer_load_dwordx4 {vr(sets[st],4)}, v{vG0}, {WS}, s{sM} offen sc1',
                f'buffer_load_dwordx4 {vr(sets[st]+4,4)}, v{vG1}, {WS}, s{sM} offen sc1']
    def checks(st):
        G = sets[st]
        return [(1, [f'v_max3_u32 v{vT}, v{G}, v{G+1}, v{G+2}']),
                (0, [f'v_max3_u32 v{vT+1}, v{G+4}, v{G+5}, v{G+6}', f'v_max3_u32 v{vT}, v{vT}, v{G+3}, v{G+7}',
                     f'v_max_u32 v{vT}, v{vT}, v{vT+1}', f'v_cmp_eq_u32 vcc, -1, v{vT}'])]
    NB = OPT['nb']
    def body(st):
        G = sets[st]
        stamp(k, 0, stamps)
        if stamps and OPT['pc']:
            k(f'v_mov_b32 v0, s{sCNT}')
            k(f'buffer_store_dword v0, off, s[{SWS}:{SWS+3}], s{sST} offset:12')
        wrs = [f'ds_write_b128 v{vG0}, {vr(G,4)} offset:{LM}', f'ds_write_b128 v{vG1}, {vr(G+4,4)} offset:{LM}']
        seq = [(lt, j) for j in range(2) for lt in range(7)]
        for n, (lt, j) in enumerate(seq):
            k(Mx(lt, j, G + 4*j))
            if OPT['w64'] == 0 and n < 2: k.ds(wrs[n])
            if OPT['w64'] == 1 and n < 4: k.ds(f'ds_write_b64 v{vG0 if n < 2 else vG1}, {vr(G+2*n,2)} offset:{LM + 8*(n&1)}')
            if n == 4: k(f'v_cmp_le_u32 vcc, {OPT["uneed"]}, v{vX+2}')
            if n == 5: k('s_nop 0'); k(f'v_cndmask_b32 v{vX+1}, v{vX+3}, v{vX}, vcc')
            if n == NB - 1:
                k.wds0(); k('s_barrier')
            if NB - 1 <= n < NB + 4:
                jj = n - (NB - 1) + 2
                k.ds(f'ds_read_b128 {vr(vM+4*jj,4)}, v{vAd+jj} offset:{LM}', f'm{jj}')
            if n == NB + 5: k(f'buffer_load_dword v0, v{vX+1}, {WS}, s{sUM} offen sc1')
    if stamps and OPT['pc']: stamp(k, 1, True)
    if OPT['ap2']:
        poll2(k, issue, checks, body, 'Lga', OPT['stagA'])
    else:
        gather_mem(k, vM, vG0, vG1, None, None, vT)
        body(0)
    def cvt(lt, h):
        k(f'v_cvt_pk_bf16_f32 v{vQ+4*lt+h}, v{vQ+4*lt+2*h}, v{vQ+4*lt+2*h+1}')
    def wr(lt):
        k.ds(f'ds_write_b64 v{vQW}, {vr(vQ+4*lt,2)} offset:{512*(lt&1)}')
    def tr(p, h):
        k.ds(f'ds_read_b64_tr_b16 {vr(vQ+8*p+2*h,2)}, v{vQR} offset:{512*h}', f'q{p}')
    vSt = [vM, vM+4, vQ+4]
    def S(p, t):
        q = vQ + 8*p
        c = '0' if p == 0 else vr(vSt[t],4)
        if p < 3:
            a = vKM+4*p if t == 0 else vKT+8*p+4*(t-1)
            k(f'v_mfma_f32_16x16x32_bf16 {vr(vSt[t],4)}, {vr(a,4)}, {vr(q,4)}, {c}')
        else:
            a = vKM+12 if t == 0 else vKT+24+2*(t-1)
            k(f'v_mfma_f32_16x16x16_bf16 {vr(vSt[t],4)}, {vr(a,2)}, {vr(q,2)}, {c}')
    for lt in range(7):
        for j in range(2, 7):
            if lt == 0: k.wds(f'm{j}')
            k(M(lt, j))
            if OPT['tm'] and lt == 1 and j == 2: k(f'v_cndmask_b32 v{vT}, v{vLane}, 0, s[48:49]')
            if OPT['tm'] and lt == 1 and j == 3: k(f'v_cndmask_b32 v{vT+1}, 0, v{vLane}, s[48:49]')
            if lt == 0 and j == 6:
                k('s_waitcnt vmcnt(1)')
                for x in mk: k.ds(x, 'mk')
            if lt >= 1:
                if j == 4: cvt(lt-1, 0)
                if j == 5: cvt(lt-1, 1)
                if j == 6:
                    wr(lt-1)
                    if (lt-1) & 1: tr((lt-1)//2, 0); tr((lt-1)//2, 1)
        if lt == (4 if OPT['s1pos'] == 0 else 3):
            k.wds('q0')
            for t in range(3): S(0, t)
        if lt == 5 and OPT['s1pos'] == 1:
            k.wds('q1')
            for t in range(3): S(1, t)
    if OPT['s1pos'] == 0:
        k.wds('q1')
        for t in range(3): S(1, t)
        cvt(6, 0); cvt(6, 1)
        if OPT['tm']:
            k.wds('q2')
            k.nop(1)
            k(f'v_mfma_f32_16x16x16_bf16 {vr(vQ+12,4)}, {vr(vQ+24,2)}, {vr(vT,2)}, 0')
            for t in range(3): S(2, t)
            k(f'v_cvt_pk_bf16_f32 v{vQ+24}, v{vQ+12}, v{vQ+13}')
            k(f'v_cvt_pk_bf16_f32 v{vQ+25}, v{vQ+14}, v{vQ+15}')
            k.nop(2)
        else:
            wr(6); tr(3, 0)
            k.wds('q2')
            for t in range(3): S(2, t)
    else:
        k.nop(8)
        cvt(6, 0); cvt(6, 1); wr(6); tr(3, 0)
        k.wds('q2')
        for t in range(3): S(2, t)
    k.wds('q3')
    for t in range(3): S(3, t)
    for t in range(3):
        k.nop(2 if (t == 0 or OPT['p64'] == 0) else 1)
        if OPT['p64'] == 0: k.ds(f'ds_write_b128 v{vSW}, {vr(vSt[t],4)} offset:{1088*t}')
        else:
            k.ds(f'ds_write_b64 v{vSW}, {vr(vSt[t],2)} offset:{1088*t}')
            k.ds(f'ds_write_b64 v{vSW}, {vr(vSt[t]+2,2)} offset:{1088*t+8}')
    k.wds0()
    k('s_barrier')
    stamp(k, 1, stamps and not OPT['pc'])
    mark = len(k.lines)
    R = vQ+8
    for w in range(4): k.ds(f'ds_read_b128 {vr(R+4*w,4)}, v{vSR} offset:{w*3264}', f'r{w}')
    k(f's_cmp_eq_u32 s{sMODE}, 1')
    k.wds('r1')
    k(f'v_pk_add_f32 {vr(R,2)}, {vr(R,2)}, {vr(R+4,2)}')
    k(f'v_pk_add_f32 {vr(R+2,2)}, {vr(R+2,2)}, {vr(R+6,2)}')
    k.wds('r2')
    k(f'v_pk_add_f32 {vr(R,2)}, {vr(R,2)}, {vr(R+8,2)}')
    k(f'v_pk_add_f32 {vr(R+2,2)}, {vr(R+2,2)}, {vr(R+10,2)}')
    k.wds('r3')
    k(f'v_pk_add_f32 {vr(R,2)}, {vr(R,2)}, {vr(R+12,2)}')
    k(f'v_pk_add_f32 {vr(R+2,2)}, {vr(R+2,2)}, {vr(R+14,2)}')
    k.nop(2)
    k(f'v_permlane16_swap_b32 v{R}, v{R+2}')
    k(f'v_permlane16_swap_b32 v{R+1}, v{R+3}')
    X = R+4; m = R+6; t = R+8
    k(f'v_pk_add_f32 {vr(X,2)}, {vr(R,2)}, {vr(R+2,2)}')
    def allred(op, m):
        for rot in (8, 4, 2, 1):
            k.nop(2)
            k(f'{op}_dpp v{m}, v{m}, v{m} row_ror:{rot} row_mask:0xf bank_mask:0xf')
        k(f'v_mov_b32 v{t}, v{m}')
        k.nop(2)
        k(f'v_permlane16_swap_b32 v{m}, v{t}')
        k(f'{op} v{m}, v{m}, v{t}')
    if OPT['sm2'] == 0:
        k(f'v_max_f32 v{m}, v{X}, v{X+1}')
        allred('v_max_f32', m)
        k(f'v_pk_add_f32 {vr(X,2)}, {vr(X,2)}, {vr(m,2)} op_sel_hi:[1,0] neg_lo:[0,1] neg_hi:[0,1]')
        k(f'v_exp_f32 v{X}, v{X}')
        k(f'v_exp_f32 v{X+1}, v{X+1}')
        k.nop(1)
        k(f'v_add_f32 v{m}, v{X}, v{X+1}')
        k(f'v_mul_f32 v{m}, v{m}, v{vVal}')
        allred('v_add_f32', m)
        k(f'v_rcp_f32 v{m}, v{m}')
        k.nop(1)
        k(f'v_pk_mul_f32 {vr(X,2)}, {vr(X,2)}, {vr(m,2)} op_sel_hi:[1,0]')
    else:
        l_, M, sc = R+10, R+12, R+14
        def dpp(op, r, rot): k(f'{op}_dpp v{r}, v{r}, v{r} row_ror:{rot} row_mask:0xf bank_mask:0xf')
        k(f'v_max_f32 v{m}, v{X}, v{X+1}')
        for rot in (8, 4, 2, 1):
            k.nop(2); dpp('v_max_f32', m, rot)
        k(f'v_pk_add_f32 {vr(X,2)}, {vr(X,2)}, {vr(m,2)} op_sel_hi:[1,0] neg_lo:[0,1] neg_hi:[0,1]')
        k(f'v_mov_b32 v{M}, v{m}')
        k(f'v_exp_f32 v{X}, v{X}')
        k(f'v_mov_b32 v{t}, v{m}')
        k(f'v_exp_f32 v{X+1}, v{X+1}')
        k.nop(1)
        k(f'v_add_f32 v{l_}, v{X}, v{X+1}')
        k(f'v_permlane16_swap_b32 v{M}, v{t}')
        k(f'v_mul_f32 v{l_}, v{l_}, v{vVal}')
        k(f'v_max_f32 v{M}, v{M}, v{t}')
        k(f'v_sub_f32 v{sc}, v{m}, v{M}')
        dpp('v_add_f32', l_, 8)
        k(f'v_exp_f32 v{sc}, v{sc}')
        k.nop(1)
        dpp('v_add_f32', l_, 4)
        k(f'v_pk_mul_f32 {vr(X,2)}, {vr(X,2)}, {vr(sc,2)} op_sel_hi:[1,0]')
        k.nop(1)
        dpp('v_add_f32', l_, 2)
        k.nop(2)
        dpp('v_add_f32', l_, 1)
        k(f'v_mul_f32 v{l_}, v{l_}, v{sc}')
        k(f'v_mov_b32 v{t}, v{l_}')
        k.nop(2)
        k(f'v_permlane16_swap_b32 v{l_}, v{t}')
        k(f'v_add_f32 v{l_}, v{l_}, v{t}')
        k(f'v_rcp_f32 v{l_}, v{l_}')
        k.nop(1)
        k(f'v_pk_mul_f32 {vr(X,2)}, {vr(X,2)}, {vr(l_,2)} op_sel_hi:[1,0]')
    k(f'v_cvt_pk_bf16_f32 v{X}, v{X}, v{X+1}')
    k(f'v_min_u32 v{X}, -2, v{X}')
    if OPT['kpos'] == 'soft':
        body_ = k.lines[mark:]; k.lines = k.lines[:mark]; L = key_list()
        for x in body_:
            if x == 's_nop 1' and L: k(L.pop(0)); k('s_nop 0')
            else: k(x)
        assert not L
    publish(k, [f'buffer_store_dword v{X}, v{vPO}, {WS}, s{x} offen' for x in [sP, 47][:OPT['prep']]])
    stamp(k, 2, stamps)
    k('s_barrier')
    if stamps and OPT['tw']:
        k('s_waitcnt vmcnt(0)')
        stamp(k, 3, stamps)
    load_flag()
    if OPT['kdel']: k(f"s_sleep {OPT['kdel']}")
    load_keys(OPT['kpos'] != 'soft')
    if OPT['sleepA']: k(f"s_sleep {OPT['sleepA']}")
    k(f's_add_u32 s{sUM}, s{sUM}, {UF_SEG}')
    k(f's_add_u32 s{sM}, s{sM}, {MEM_T}')
    k(f's_add_u32 s{sP}, s{sP}, {PB_T}')
    if stamps: k(f's_add_u32 s{sST}, s{sST}, 16')
    k(f's_add_u32 s{sSTEP}, s{sSTEP}, 1')
    k(f's_cmp_lt_u32 s{sSTEP}, {NSTEP}')
    k('s_cbranch_scc1 L_A_loop')
    edge(k, stamps, 8)
    k('s_waitcnt vmcnt(0)')
    k('s_endpgm')
    k.flush_cold()

def role_B(k, stamps=False, wait_u=None):
    WS = f's[{SWS}:{SWS+3}]'
    vLane, vL16, vG0, vG1, vIdx = 1, 2, 3, 4, 5
    vWL, vPT, vPM, vRW, vRR, vL4 = 6, 7, 8, 9, 10, 11
    vC = 12
    vM = 16
    vA = 44
    vU = 76
    vTm = 108
    vUi = 140
    vUm = 172
    vRR2 = 188
    vKeep, vFl = 191, 15
    vD = vTm
    vG = vTm + 16
    vP = [vM, vA]
    def W(gi, kb):
        i = gi*5 + kb
        return (256 + 8*i) if i < 32 else (192 + 8*(i-32))
    LM, LRED, LW = 0, 7168, 16384
    k.label('L_roleB')
    k(f's_sub_u32 s{sID}, s{sROLE}, 16')
    common_lane_setup(k, vLane, vL16, vG0, vG1, vIdx, vC)
    k(f's_lshl_b32 s{sT0}, s{sWAVE}, 2')
    k(f's_mul_i32 s{sT0}, s{sT0}, 28')
    k(f's_lshl_b32 s{sT1}, s{sID}, 1')
    k(f's_add_u32 s{sT0}, s{sT0}, s{sT1}')
    k(f's_mul_i32 s35, s{sT0}, 14336')
    k(f's_add_u32 s35, s35, {WTB}')
    k(f's_lshl_b32 s37, s{sWAVE}, 15')
    k(f's_add_u32 s37, s37, {LW}')
    k(f'v_add_u32 v{vWL}, s37, v{vL16}')
    for j in range(7):
        k(f's_add_u32 s{50+j}, s{sWAVE}, {(4*j) % 7}')
        k(f's_sub_u32 s40, s{50+j}, 7')
        k(f's_cmp_ge_u32 s{50+j}, 7')
        k(f's_cselect_b32 s{50+j}, s40, s{50+j}')
        k(f's_lshl_b32 s{50+j}, s{50+j}, 10')
    k(f'v_add_u32 v{vG1}, s51, v{vL16}')
    for gi in range(8):
        k(f's_add_u32 s36, s35, {(gi>>1)*28*14336 + (gi&1)*14336}')
        for j in range(7):
            k(f's_lshl_b32 s40, s{50+j}, 1')
            k(f's_add_u32 s40, s40, s36')
            if j >= 5:
                k(f's_add_u32 s38, s37, {gi*4096 + (j-5)*2048}')
                k(f's_mov_b32 m0, s38')
                k('s_nop 0')
            for f in range(2):
                if j < 5: k(f'buffer_load_dwordx4 {xr(W(gi, j) + 4*f,4)}, v{vL16}, {WS}, s40 offen offset:{f*1024}')
                else:     k(f'buffer_load_dwordx4 v{vL16}, {WS}, s40 offen offset:{f*1024} lds')
        k('s_waitcnt vmcnt(40)')
    g, i = vA, vA+1
    vT = vC
    k(f'v_lshrrev_b32 v{g}, 4, v{vLane}')
    k(f'v_and_b32 v{i}, 15, v{vLane}')
    k(f's_lshl_b32 s40, s{sWAVE}, 11')
    k(f'v_add_u32 v{vPT}, s40, v{vL16}')
    k(f'v_lshrrev_b32 v{vT}, 1, v{g}')
    k(f'v_lshlrev_b32 v{vT}, 8, v{vT}')
    k(f'v_lshl_add_u32 v{vT}, v{i}, 4, v{vT}')
    k(f's_lshl_b32 s40, s{sWAVE}, 9')
    k(f's_add_u32 s40, s40, 8192')
    k(f'v_add_u32 v{vPM}, s40, v{vT}')
    k(f's_lshl_b32 s40, s{sWAVE}, 10')
    k(f's_add_u32 s40, s40, {LRED}')
    k(f'v_add_u32 v{vRW}, s40, v{vL16}')
    k(f'v_and_b32 v{vT}, 3, v{vLane}')
    k(f'v_lshlrev_b32 v{vT}, 6, v{vT}')
    k(f'v_lshrrev_b32 v{vT+1}, 5, v{vLane}')
    k(f'v_lshl_add_u32 v{vT}, v{vT+1}, 5, v{vT}')
    k(f'v_lshrrev_b32 v{vT+1}, 2, v{vLane}')
    k(f'v_and_b32 v{vT+2}, 3, v{vT+1}')
    k(f'v_lshl_add_u32 v{vT}, v{vT+2}, 2, v{vT}')
    k(f'v_bfe_u32 v{vT+2}, v{vLane}, 4, 1')
    k(f'v_lshl_add_u32 v{vT}, v{vT+2}, 8, v{vT}')
    k(f's_and_b32 s40, s{sWAVE}, 1')
    k(f's_lshl_b32 s40, s40, 9')
    k(f's_add_u32 s40, s40, {LRED}')
    k(f'v_add_u32 v{vRR}, s40, v{vT}')
    for w in range(1, 4): k(f'v_add_u32 v{vRR2+w-1}, {1024*w}, v{vRR}')
    k(f's_lshl_b32 s40, s{sID}, 1')
    k(f's_and_b32 s41, s{sWAVE}, 1')
    k(f's_add_u32 s40, s40, s41')
    k(f's_lshl_b32 s40, s40, 8')
    k(f'v_lshlrev_b32 v{vL4}, 2, v{vLane}')
    k(f'v_add_u32 v{vL4}, s40, v{vL4}')
    k(f's_mov_b32 s{sSTEP}, 0')
    k(f's_lshr_b32 s{sM}, s{sWAVE}, 1')
    k(f's_mul_i32 s{sM}, s{sM}, {2*MEM_S}')
    k(f's_add_u32 s{sM}, s{sM}, {MEM}')
    k(f's_mov_b32 s47, {MEMX - MEM_S}')
    k(f"s_mov_b32 s49, {MEM + (NREP-1)*MEM_S}")
    k(f's_and_b32 s{sP}, s{sID}, 1')
    k(f"s_mul_i32 s{sP}, s{sP}, {PB_S if OPT['prep'] == 2 else 0}")
    k(f's_add_u32 s{sP}, s{sP}, {PB}')
    k(f's_lshl_b32 s{sX}, s{sID}, 15')
    k(f's_lshl_b32 s40, s{sWAVE}, 13')
    k(f's_add_u32 s{sX}, s{sX}, s40')
    k(f's_add_u32 s{sX}, s{sX}, {UF}')
    k(f's_mul_i32 s{sUM}, s{sWAVE}, {2*28*1024}')
    k(f's_lshl_b32 s40, s{sID}, 11')
    k(f's_add_u32 s{sUM}, s{sUM}, s40')
    k(f's_add_u32 s{sUM}, s{sUM}, {UM}')
    k(f's_mov_b32 s43, s{sUM}')
    def ldu(j, s0=sX):
        hh, T = j >> 1, j & 1
        r = vU + 16*(hh>>1) + 8*T + 4*(hh&1)
        return f'buffer_load_dwordx4 {vr(r,4)}, v{vL16}, {WS}, s{s0 if j<4 else sT0} offen offset:{(j&3)*1024} ' + OPT['uf']
    def stum(u, T):
        return f'buffer_store_dwordx4 {vr(vUm+8*T+4*u,4)}, v{vL16}, {WS}, s{43 if u==0 else 44} offen offset:{T*1024} ' + OPT['um']
    def lw(gi):
        b = vTm + 16*(gi&1)
        for f in range(4): k.ds(f'ds_read_b128 {vr(b+4*f,4)}, v{vWL} offset:{gi*4096+f*1024}', f'w{gi}')
    def load_u(ahead):
        if wait_u:
            lu = k.newlabel('Lnu')
            k(f's_add_u32 s{sT0}, s{sSTEP}, {ahead}')
            k(f's_and_b32 s{sT1}, s{sT0}, 3')
            k(f's_cbranch_scc1 {lu}')
            k(f's_lshl_b32 s{sT0}, s{sT0}, 5')
            k(f's_add_u32 s{sT0}, s{sT0}, {flag(F_U)}')
            wait_u(k, sT0, 32, vC, sleep=1)
            k.label(lu)
        k(f's_add_u32 s{sT0}, s{sX}, 4096')
        for j in range(8): k(ldu(j))
        k(f's_add_u32 s{sX}, s{sX}, {UF_SEG}')
    if OPT['u0'] == 'pro': load_u(0)
    wait_mode(k, vC)
    sw = []
    for o in range(4):
        r = vU + 8*o
        for e in range(4):
            sel = e & 1
            sw.append(f'v_pk_mov_b32 {vr(vUi+8*o+2*e,2)}, {vr(r+(e&2),2)}, {vr(r+4+(e&2),2)} op_sel:[{sel},{sel}]')
    if stamps: k(f's_add_u32 s76, s{sST}, 0x20000')
    edge(k, stamps, 0)
    k('s_branch L_B_loop')
    k('.p2align 8')
    for _ in range(OPT['padB']): k('s_nop 0')
    k.label('L_B_loop')
    lp = k.newlabel('Lgm')
    def gl():
        sb = 49
        k(f'buffer_load_dwordx4 {vr(vM,4)}, v{vG0}, {WS}, s{sb} offen sc1')
        k(f'buffer_load_dwordx4 {vr(vM+4,4)}, v{vG1}, {WS}, s{sb} offen sc1')
    k(f's_waitcnt vmcnt({NREP})')
    NU = OPT['nu2']
    if OPT['bdel']: k(f"s_sleep {OPT['bdel']}")
    k(f's_add_u32 s{sT0}, s{sX}, {4096 - UF_SEG}')
    k(f's_sub_u32 s{sT1}, s{sX}, {UF_SEG}')
    for j in range(8-NU, 8): k(ldu(j, sT1))
    gl()
    NS = 8 if NU <= 4 else 0
    if NU == 0: NS = 16
    for x in sw[:NS]: k(x)
    for r in range(0, 32, 2): k(f'v_mov_b64 {vr(vA+r,2)}, 0')
    for j in range(2, 7): k(f'v_add_u32 v{vG+j}, s{50+j}, v{vL16}')
    k(f's_add_u32 s45, s{sSTEP}, 1')
    k(f's_lshr_b32 s45, s45, 2')
    k(f's_lshl_b32 s45, s45, 7')
    k(f's_add_u32 s45, s45, {flag(F_U)}')
    k(f's_add_u32 s44, s43, {28*1024}')
    vm = [stum(0,0), stum(0,1), stum(1,0), stum(1,1)] + [ldu(j) for j in range(8)]
    lw(0)
    k(f's_mov_b32 s{sCNT}, 0')
    k(f's_branch {lp}w')
    k.label(lp)
    if OPT['bgs']: k(f"s_sleep {OPT['bgs']}")
    gl()
    k(f's_add_u32 s{sCNT}, s{sCNT}, 1')
    k(f's_cmp_gt_u32 s{sCNT}, s{sT2}')
    k('s_cbranch_scc1 L_fail')
    k.label(lp + 'w')
    k('s_waitcnt vmcnt(1)')
    k(f'v_max3_u32 v{vC}, v{vM}, v{vM+1}, v{vM+2}')
    k('s_waitcnt vmcnt(0)')
    k(f'v_max3_u32 v{vC+1}, v{vM+4}, v{vM+5}, v{vM+6}')
    k(f'v_max3_u32 v{vC}, v{vC}, v{vM+3}, v{vM+7}')
    k(f'v_max_u32 v{vC}, v{vC}, v{vC+1}')
    k(f'v_cmp_eq_u32 vcc, -1, v{vC}')
    k(f's_cbranch_vccnz {lp}')
    stamp(k, 0, stamps)
    k.ds(f'ds_write_b128 v{vG0}, {vr(vM,4)} offset:{LM}')
    k.ds(f'ds_write_b128 v{vG1}, {vr(vM+4,4)} offset:{LM}')
    ls, l2 = k.newlabel('Lbs'), k.newlabel('Lbt')
    k(f's_cmp_eq_u32 s{sSTEP}, 0')
    k(f's_cbranch_scc1 {l2}')
    k(f's_cmp_ge_u32 s{sWAVE}, 2')
    k(f's_cbranch_scc1 {ls}')
    k(f'buffer_store_dword v{vKeep}, v{vL4}, {WS}, s47 offen sc1')
    k(f's_branch {l2}')
    k.label(ls)
    k(f's_cmp_eq_u32 s{sWAVE}, 2')
    k(f's_cselect_b32 s{sT0}, s{sSTEP}, 0')
    k(f's_cmp_le_u32 s{sT0}, 1')
    k(f's_cbranch_scc1 {l2}')
    k(f's_lshl_b32 s{sT0}, s{sSTEP}, 7')
    k(f's_add_u32 s{sT0}, s{sT0}, {flag(F_UM) - 256}')
    k('s_mov_b64 exec, 1')
    k(f'v_mov_b32 v{vC}, 1')
    k(f'buffer_atomic_add v{vC}, off, {WS}, s{sT0}')
    k('s_mov_b64 exec, -1')
    k.label(l2)
    k(f'buffer_load_dword v{vFl}, off, {WS}, s45 sc1')
    for x in vm[:4]: k(x)
    def acc(gi): return vA + 4*gi
    def cvt(gi, h):
        hh, T = gi>>1, gi&1
        d = vUm + 8*T + 4*(hh>>1) + 2*h + (hh&1)
        a = acc(gi) + 2*h
        k(f'v_cvt_pk_bf16_f32 v{d}, v{a}, v{a+1}')
    def lw1(gi, f):
        k.ds(f'ds_read_b128 {vr(vTm+16*(gi&1)+4*f,4)}, v{vWL} offset:{gi*4096+f*1024}', f'w{gi}')
    def mid_u():
        lsk = k.newlabel('Lsk')
        k(f's_cmp_ge_u32 s{sSTEP}, {NSTEP-1}')
        k(f's_cbranch_scc1 {lsk}')
        k('s_waitcnt vmcnt(4)')
        if wait_u:
            lu = k.newlabel('Lnu')
            k(f'v_cmp_le_u32 vcc, 32, v{vFl}')
            k(f's_cbranch_vccnz {lu}')
            wait_u(k, 45, 32, vC)
            k.label(lu)
        k(f's_add_u32 s{sT0}, s{sX}, 4096')
        for j in range(8-NU): k(ldu(j))
        k.label(lsk)
        k(f's_add_u32 s{sX}, s{sX}, {UF_SEG}')
    def MB(gi, j):
        w = xr(W(gi,j),8) if j < 5 else vr(vTm + 16*(gi&1) + 8*(j-5), 8)
        k(f'v_smfmac_f32_16x16x64_bf16 {vr(acc(gi),4)}, {vr(vM+4*j,4)}, {w}, v{vIdx}')
    for n in range(16):
        MB(n & 7, n >> 3)
        if n == 5:
            k.wds0(); k('s_barrier')
        if 5 <= n < 10:
            k.ds(f'ds_read_b128 {vr(vM+4*(n-3),4)}, v{vG+n-3} offset:{LM}', f'm{n-3}')
    for gi in range(8):
        for j in range(2, 7):
            if gi == 0: k.wds(f'm{j}')
            if j == 5: k.wds(f'w{gi}')
            MB(gi, j)
            if gi < 7 and j in (2, 3, 5, 6): lw1(gi+1, {2:0, 3:1, 5:2, 6:3}[j])
            if gi >= 1 and j == 4: cvt(gi-1, 0); cvt(gi-1, 1)
        if gi + 1 == OPT['ug'] and gi < 7: mid_u()
    k(f's_mov_b32 s43, s{sUM}')
    k(f's_add_u32 s{sUM}, s{sUM}, {UM_SEG}')
    for x in sw[NS:]: k(x)
    k.nop(6 if NS == 16 else 0)
    cvt(7, 0); cvt(7, 1)
    for r in range(0, 8, 2): k(f'v_mov_b64 {vr(vD+r,2)}, 0')
    k(f's_cmp_ge_u32 s{sSTEP}, {NSTEP}')
    k('s_cbranch_scc1 L_B_end')
    if OPT['u0'] == 'cold':
        l0, l1 = k.newlabel('Lu0'), k.newlabel('Lu1')
        k(f's_cmp_eq_u32 s{sSTEP}, 0')
        k(f's_cbranch_scc1 {l0}')
        k.label(l1)
        main = k.lines; k.lines = []
        k.label(l0)
        load_u(0)
        k('s_waitcnt vmcnt(0)')
        for x in sw: k(x)
        k(f'v_mov_b32 v{vFl}, 32')
        k(f's_branch {l1}')
        k.cold += k.lines; k.lines = main
    if OPT['ug'] == 8: mid_u()
    stamp(k, 1, stamps)
    if OPT['sleepB']: k(f"s_sleep {OPT['sleepB']}")
    def issue(st):
        P = vP[st]
        return [f'buffer_load_dwordx4 {vr(P,4)}, v{vPT}, {WS}, s{sP} offen sc1',
                f'buffer_load_dwordx4 {vr(P+4,4)}, v{vPT}, {WS}, s{sP} offen offset:1024 sc1',
                f'buffer_load_dwordx4 {vr(P+8,4)}, v{vPM}, {WS}, s{sP} offen sc1']
    def checks(st):
        P = vP[st]
        return [(2, [f'v_max3_u32 v{vC}, v{P}, v{P+1}, v{P+2}']),
                (1, [f'v_max3_u32 v{vC+1}, v{P+4}, v{P+5}, v{P+6}', f'v_max3_u32 v{vC}, v{vC}, v{P+3}, v{P+7}']),
                (0, [f'v_max3_u32 v{vC+1}, v{vC+1}, v{P+8}, v{P+9}', f'v_max3_u32 v{vC}, v{vC}, v{P+10}, v{P+11}',
                     f'v_max_u32 v{vC}, v{vC}, v{vC+1}', f'v_cmp_eq_u32 vcc, -1, v{vC}'])]
    def body(st):
        P = vP[st]
        stamp(k, 2, stamps)
        for j in range(3):
            for T in range(2):
                b = vr(vUi + 16*j + 8*T, 8) if j < 2 else vr(vUm + 8*T, 8)
                k(f'v_smfmac_f32_16x16x64_bf16 {vr(vD+4*T,4)}, {vr(P+4*j,4)}, {b}, v{vIdx}')
    if OPT['bp2']: poll2(k, issue, checks, body, 'Lpp', OPT['stag'])
    else:
        lp = k.newlabel('Lp1')
        k(f's_mov_b32 s{sCNT}, 0')
        k.label(lp)
        for x in issue(0): k(x)
        k(f's_add_u32 s{sCNT}, s{sCNT}, 1')
        k(f's_cmp_gt_u32 s{sCNT}, s{sT2}')
        k('s_cbranch_scc1 L_fail')
        for rel, ins in checks(0):
            k(f's_waitcnt vmcnt({rel})')
            for x in ins: k(x)
        k(f's_cbranch_vccnz {lp}')
        body(0)
    k(f's_add_u32 s{sM}, s{sM}, {MEM_T}')
    k(f's_add_u32 s47, s47, {MEM_S}')
    k(f's_add_u32 s48, s{sM}, {MEM_S}')
    k(f's_add_u32 s49, s49, {MEM_T}')
    k(f's_add_u32 s{sP}, s{sP}, {PB_T}')
    k.nop(3)
    for r in range(4): k(f'v_permlane32_swap_b32 v{vD+r}, v{vD+4+r}')
    k(f'v_pk_add_f32 {vr(vD,2)}, {vr(vD,2)}, {vr(vD+4,2)}')
    k(f'v_pk_add_f32 {vr(vD+2,2)}, {vr(vD+2,2)}, {vr(vD+6,2)}')
    k.ds(f'ds_write_b128 v{vRW}, {vr(vD,4)}')
    k.wds0()
    k('s_barrier')
    if OPT['rep'] == 3:
        k(f's_cmp_ge_u32 s{sWAVE}, 2')
        k('s_cbranch_scc1 L_B_skip')
    R = vG
    for w in range(4): k.ds(f'ds_read2_b32 {vr(R+2*w,2)}, v{vRR} offset0:{0} offset1:{4}' if w == 0 else
                            f'ds_read2_b32 {vr(R+2*w,2)}, v{vRR2+w-1} offset0:0 offset1:4', f'r{w}')
    k(f's_cmp_eq_u32 s{sMODE}, 1')
    k.wds('r1')
    k(f'v_pk_add_f32 {vr(R,2)}, {vr(R,2)}, {vr(R+2,2)}')
    k.wds('r3')
    k(f'v_pk_add_f32 {vr(R+4,2)}, {vr(R+4,2)}, {vr(R+6,2)}')
    k(f'v_pk_add_f32 {vr(R,2)}, {vr(R,2)}, {vr(R+4,2)}')
    k(f'v_cvt_pk_bf16_f32 v{R}, v{R}, v{R+1}')
    k(f'v_min_u32 v{R}, -2, v{R}')
    publish(k, [f'buffer_store_dword v{R}, v{vL4}, {WS}, s{x} offen' for x in {1: [sM], 2: [sM, 49], 3: [sM, 48, 49]}[NREP]])
    k(f'v_mov_b32 v{vKeep}, v{R}')
    k(f's_cmp_lg_u32 s{sSTEP}, {NSTEP-1}')
    k('s_cbranch_scc1 L_B_skip2')
    k(f'buffer_store_dword v{R}, v{vL4}, {WS}, s47 offen sc1')
    k('s_branch L_B_skip2')
    k.label('L_B_skip')
    k('s_waitcnt vmcnt(0)')
    k.label('L_B_skip2')
    stamp(k, 3, stamps)
    k('s_barrier')
    k(f's_add_u32 s{sSTEP}, s{sSTEP}, 1')
    if stamps: k(f's_add_u32 s{sST}, s{sST}, 16')
    k('s_branch L_B_loop')
    k.label('L_B_end')
    edge(k, stamps, 8)
    for r in range(16): k(f'v_min_u32 v{vUm+r}, -2, v{vUm+r}')
    k(f's_add_u32 s44, s43, {28*1024}')
    for x in vm[:4]: k(x)
    k('s_waitcnt vmcnt(4)')
    k('s_barrier')
    k(f's_cmp_lg_u32 s{sWAVE}, 0')
    k('s_cbranch_scc1 L_exit')
    k('s_mov_b64 exec, 1')
    k(f'v_mov_b32 v{vC}, 1')
    k(f's_mov_b32 s{sT0}, {flag(F_UM + 62)}')
    k(f'buffer_atomic_add v{vC}, off, {WS}, s{sT0}')
    k('s_endpgm')
    k.flush_cold()

def role_P(k, wait_u=None):
    WS = f's[{SWS}:{SWS+3}]'
    vLane, vU, vX, vS, vD = 1, 2, 3, 4, 8
    D = OPT['pfd']; st = OPT['pfs']; sh = 7 if st == 128 else 6
    k.label('L_roleP')
    k(f's_mov_b32 s{sT2}, {POLL_LIMIT}')
    k(f's_sub_u32 s{sID}, s{sROLE}, 30')
    k(f's_lshl_b32 s{sID}, s{sID}, 2')
    k(f's_add_u32 s{sID}, s{sID}, s{sWAVE}')
    k(f'v_and_b32 v{vLane}, 63, v0')
    k(f'v_lshlrev_b32 v{vU}, {sh}, v{vLane}')
    k(f's_mul_i32 s40, s{sID}, {UF_SEG//8}')
    k(f'v_add_u32 v{vU}, s40, v{vU}')
    f2 = 2 if OPT['pf64'] else 1
    for reg, n in ((vX, 28*f2), (vS, PB_T//1024*f2), (vS+1, 7*NREP*f2)):
        k(f'v_min_u32 v{reg}, {n-1}, v{vLane}')
        k(f's_mul_i32 s40, s{sID}, {n}')
        k(f'v_add_lshl_u32 v{reg}, v{reg}, s40, {8 - f2}')
    k(f's_mov_b32 s{sSTEP}, 0')
    k(f's_mov_b32 s{sX}, {UF}')
    k(f's_mov_b32 s{sUM}, {XNS}')
    k(f's_mov_b32 s{sP}, {PB}')
    k(f's_mov_b32 s{sM}, {MEM + MEM_T}')
    k(f's_mov_b32 s41, {MEM - D*MEM_T + (NREP-1)*MEM_S}')
    if OPT['cpf']:
        k('s_getpc_b64 s[44:45]')
        k.label('L_P_pc')
        k('s_sub_u32 s44, s44, L_P_pc-L_roleA')
        k('s_subb_u32 s45, s45, 0')
        k(f's_lshl_b32 s40, s{sID}, 12')
        k(f'v_lshlrev_b32 v20, 6, v{vLane}')
        k('v_add_u32 v20, s40, v20')
        k('v_min_u32 v20, L_P_pc-L_roleA, v20')
        k('v_mov_b32 v21, s45')
        k('v_add_co_u32 v20, vcc, s44, v20')
        k('s_nop 1')
        k('v_addc_co_u32 v21, vcc, 0, v21, vcc')
        k('global_load_dword v22, v[20:21], off')
    k.label('L_P_loop')
    k(f's_cmp_le_u32 s{sSTEP}, {D}')
    k('s_cbranch_scc1 L_P_go')
    k(f's_mov_b32 s{sCNT}, 0')
    k.label('L_P_wait')
    k(f'buffer_load_dword v{vD}, off, {WS}, s41 sc1')
    k(f's_add_u32 s{sCNT}, s{sCNT}, 1')
    k(f's_cmp_gt_u32 s{sCNT}, s{sT2}')
    k('s_cbranch_scc1 L_fail')
    k('s_waitcnt vmcnt(0)')
    k(f'v_cmp_eq_u32 vcc, -1, v{vD}')
    k('s_cbranch_vccz L_P_go')
    k('s_sleep 2')
    k('s_branch L_P_wait')
    k.label('L_P_go')
    k(f'buffer_load_dword v{vD+1}, v{vS}, {WS}, s{sP} offen sc1')
    k(f'buffer_load_dword v{vD+2}, v{vS+1}, {WS}, s{sM} offen sc1')
    k(f'buffer_load_dword v{vD+3}, v{vX}, {WS}, s{sUM} offen sc1')
    n = 0 if OPT['apf'] else UF_SEG // 8 // (64*st)
    k(f's_mov_b32 s{sT0}, s{sX}')
    for j in range(n):
        k(f'buffer_load_dword v{vD+4+j}, v{vU}, {WS}, s{sT0} offen sc1')
        k(f's_add_u32 s{sT0}, s{sT0}, {64*st}')
    k(f's_add_u32 s{sX}, s{sX}, {UF_SEG}')
    k(f's_add_u32 s{sUM}, s{sUM}, 28672')
    k(f's_add_u32 s{sP}, s{sP}, {PB_T}')
    k(f's_add_u32 s{sM}, s{sM}, {MEM_T}')
    k(f's_add_u32 s41, s41, {MEM_T}')
    k(f's_add_u32 s{sSTEP}, s{sSTEP}, 1')
    k(f's_cmp_lt_u32 s{sSTEP}, {NSTEP}')
    k('s_cbranch_scc1 L_P_loop')
    k('s_waitcnt vmcnt(0)')
    k('s_endpgm')
```

```python
from asmlib import *
from layout import *

class K(Asm):
    def __init__(self):
        super().__init__()
        self.dsq = []; self.cold = []; self.vmq = []
    def ds(self, text, tag=None):
        self(text); self.dsq.append(tag)
    def wds(self, tag):
        if tag not in self.dsq: return
        idx = max(i for i, t in enumerate(self.dsq) if t == tag)
        n = len(self.dsq) - 1 - idx
        assert n <= 15
        self(f's_waitcnt lgkmcnt({n})')
        self.dsq = self.dsq[idx+1:]
    def wds0(self):
        self('s_waitcnt lgkmcnt(0)'); self.dsq = []
    def vm(self, text, tag=None):
        self(text); self.vmq.append(tag)
    def wvm(self, *tags, extra=''):
        idx = max([i for i, t in enumerate(self.vmq) if t in tags], default=-1)
        if idx < 0:
            if extra: self('s_waitcnt ' + extra)
            return
        n = len(self.vmq) - 1 - idx
        assert n <= 63
        self(f's_waitcnt vmcnt({n}) {extra}')
        self.vmq = self.vmq[idx+1:]
    def flush_cold(self):
        for l in self.cold: self(l)
        self.cold = []

SWS, SDBG = 4, 8
sROLE, sWAVE, sSTEP, sMODE, sM, sP, sX, sUM, sCNT = 12, 13, 14, 15, 16, 17, 18, 19, 20
sT0, sT1, sT2 = 21, 22, 23
sMASK8 = 24
sID = 26
sST = 28
sTM = 30
POLL_LIMIT = 400000
NSTEP = 63
OPT = dict(sa='late', sb='early', um='sc1', uf='sc1', sleepA=0, sleepB=0, stampmask=15, rt=0, barA=1, barB=1, prefP=0, pfd=2, pfs=128, upos='early', ud=2, apf=1, nb=7, stag=1, wpos=1, rsp=1, s1pos=0, upre=8, uneed=32, ust='sc1', rot=1, k1st='sc1', uwin=2, k1d=2, ap2=1, stagA=2, gv=0, t01=0, ug=8, bdel=0, pc=0, padA=0, padB=0, tail2=1, pf64=1, tw=0, rep=3, prep=1, k1late=0, cpf=0, sm2=0, tm=0, bp2=1, k1pf=0, k1ln='sc1', u0='cold', align=0, w64=0, p64=0, kpos='post', kdel=9, nu2=4, bgs=0, vsl=120, usl=120, psl=16, msl=120)

def stamp(k, idx, on):
    if not on or not (OPT['stampmask'] >> idx) & 1: return
    k(('s_memrealtime' if OPT['rt'] else 's_memtime') + f' s[{sTM}:{sTM+1}]')
    k.wds0()
    k(f'v_mov_b32 v0, s{sTM}')
    k(f'buffer_store_dword v0, off, s[{SWS}:{SWS+3}], s{sST} offset:{idx*4}')

def edge(k, on, off):
    if not on or OPT['rt']: return
    lp = k.newlabel('Led')
    k('s_memrealtime s[70:71]')
    k('s_waitcnt lgkmcnt(0)')
    k.label(lp)
    k('s_memrealtime s[72:73]')
    k('s_memtime s[74:75]')
    k('s_waitcnt lgkmcnt(0)')
    k('s_cmp_eq_u32 s72, s70')
    k(f's_cbranch_scc1 {lp}')
    k('v_mov_b32 v0, s72')
    k(f'buffer_store_dword v0, off, s[{SWS}:{SWS+3}], s76 offset:{off}')
    k('v_mov_b32 v0, s74')
    k(f'buffer_store_dword v0, off, s[{SWS}:{SWS+3}], s76 offset:{off+4}')

def publish(k, text):
    ls, ld = k.newlabel('Lslow'), k.newlabel('Lpub')
    if isinstance(text, str): text = [text]
    k(f's_cbranch_scc0 {ls}')
    for x in text: k(x)
    k.label(ld)
    k.cold += [ls + ':'] + [x + ' sc1' for x in text] + [f's_branch {ld}']

def gather_mem(k, vG, vOff0, vOff1, vL0, vL1, vT):
    lp, dn = k.newlabel('Lgm'), k.newlabel('Lgd')
    k(f's_mov_b32 s{sCNT}, 0')
    k.label(lp)
    k(f'buffer_load_dwordx4 {vr(vG,4)}, v{vOff0}, s[{SWS}:{SWS+3}], s{sM} offen sc1')
    k(f'buffer_load_dwordx4 {vr(vG+4,4)}, v{vOff1}, s[{SWS}:{SWS+3}], s{sM} offen sc1')
    k(f's_add_u32 s{sCNT}, s{sCNT}, 1')
    k(f's_cmp_gt_u32 s{sCNT}, s{sT2}')
    k('s_cbranch_scc1 L_fail')
    k('s_waitcnt vmcnt(1)')
    k(f'v_max3_u32 v{vT}, v{vG}, v{vG+1}, v{vG+2}')
    k('s_waitcnt vmcnt(0)')
    k(f'v_max3_u32 v{vT+1}, v{vG+4}, v{vG+5}, v{vG+6}')
    k(f'v_max3_u32 v{vT}, v{vT}, v{vG+3}, v{vG+7}')
    k(f'v_max_u32 v{vT}, v{vT}, v{vT+1}')
    k(f'v_cmp_eq_u32 vcc, -1, v{vT}')
    k(f's_cbranch_vccnz {lp}')
    if vL0 is None: return
    k.ds(f'ds_write_b128 v{vL0}, {vr(vG,4)}')
    k.ds(f'ds_write_b128 v{vL1}, {vr(vG+4,4)}')
    k.wds0()
    k('s_barrier')

def wait_mode(k, vT):
    lp = k.newlabel('Lwm')
    k(f's_mov_b32 s{sCNT}, 0')
    k(f'v_and_b32 v{vT+1}, 15, v0')
    k(f'v_lshlrev_b32 v{vT+1}, 2, v{vT+1}')
    k.label(lp)
    k(f'buffer_load_dword v{vT}, v{vT+1}, s[{SDBG}:{SDBG+3}], 0 offen offset:32 sc1')
    k(f's_add_u32 s{sCNT}, s{sCNT}, 1')
    k(f's_cmp_gt_u32 s{sCNT}, s{sT2}')
    k('s_cbranch_scc1 L_fail')
    k('s_waitcnt vmcnt(0)')
    k(f'v_cmp_eq_u32 vcc, 32, v{vT}')
    for rot in (8, 4, 2, 1):
        k.nop(2)
        k(f'v_add_u32_dpp v{vT}, v{vT}, v{vT} row_ror:{rot} row_mask:0xf bank_mask:0xf')
    k.nop(1)
    k(f'v_readfirstlane_b32 s{sMODE}, v{vT}')
    k('s_nop 3')
    k(f's_cmp_lt_u32 s{sMODE}, 32')
    k(f's_cbranch_scc1 {lp}')
    k('s_cmp_lg_u64 vcc, 0')
    k(f's_cselect_b32 s{sMODE}, 1, 2')

def common_lane_setup(k, vLane, vL16, vG0, vG1, vIdx, vT):
    k(f'v_and_b32 v{vLane}, 63, v0')
    k(f'v_lshlrev_b32 v{vL16}, 4, v{vLane}')
    if vG0 is not None:
        k(f's_lshl_b32 s{sT0}, s{sWAVE}, 10')
        k(f'v_add_u32 v{vG0}, s{sT0}, v{vL16}')
        k(f's_add_u32 s{sT0}, s{sWAVE}, 4')
        k(f's_min_u32 s{sT0}, s{sT0}, 6')
        k(f's_lshl_b32 s{sT0}, s{sT0}, 10')
        k(f'v_add_u32 v{vG1}, s{sT0}, v{vL16}')
    k(f'v_and_b32 v{vT}, 8, v{vLane}')
    k(f'v_mov_b32 v{vIdx}, 0x4444')
    k(f'v_mov_b32 v{vT+1}, 0xeeee')
    k(f'v_cmp_ne_u32 vcc, 0, v{vT}')
    k('s_nop 1')
    k(f'v_cndmask_b32 v{vIdx}, v{vIdx}, v{vT+1}, vcc')
    k(f's_mov_b32 s{sT2}, {POLL_LIMIT}')

def poll2(k, issue, checks, body, name, stag):
    nl = len(issue(0))
    l0, d0, d1, dn = [k.newlabel(name + x) for x in ('lp', 'd0', 'd1', 'dn')]
    k(f's_mov_b32 s{sCNT}, 0')
    for x in issue(0): k(x)
    k(f"s_sleep {stag}")
    k.label(l0)
    for st, dl in ((0, d0), (1, d1)):
        for x in issue(1 - st): k(x)
        if st == 0:
            k(f's_add_u32 s{sCNT}, s{sCNT}, 1')
            k(f's_cmp_gt_u32 s{sCNT}, s{sT2}')
            k('s_cbranch_scc1 L_fail')
        for rel, ins in checks(st):
            k(f's_waitcnt vmcnt({nl + rel})')
            for x in ins: k(x)
        if st == 0: k(f's_cbranch_vccz {d0}')
        else:       k(f's_cbranch_vccnz {l0}x')
    saved = list(k.dsq)
    body(1)
    k(f's_branch {dn}')
    k.label(l0 + 'x')
    k(f's_branch {l0}')
    k.label(d0)
    end = list(k.dsq); k.dsq = saved
    body(0)
    assert k.dsq == end
    k.label(dn)

def role_A(k, stamps=False):
    vLane, vL16, vIdx = 1, 2, 3
    vKey, vKeyS, vMK, vMKS, vQW, vQR, vSW, vSR, vPO, vVal = 4, 5, 6, 7, 8, 9, 10, 11, 12, 13
    vT = 14
    vM = 16
    vQ = 44
    vKT = 72
    vKM = 100
    vX = 114
    vG0, vG1 = 118, 119
    def W(lt, kb):
        i = lt*7 + kb
        return (256 + 8*i) if i < 32 else (120 + 8*(i-32))
    LM, LSP, LQS = 0, 7168, 20480
    k.label('L_roleA')
    k(f's_mov_b32 s{sID}, s{sROLE}')
    common_lane_setup(k, vLane, vL16, vG0, vG1, vIdx, vX)
    k(f's_lshr_b32 s{sT0}, s{sWAVE}, 1')
    k(f's_mul_i32 s{sT0}, s{sT0}, 14')
    k(f's_and_b32 s{sT1}, s{sWAVE}, 1')
    k(f's_add_u32 s33, s{sT0}, 6')
    k(f's_add_u32 s33, s33, s{sT1}')
    k(f's_lshl_b32 s34, s{sT1}, 3')
    k(f's_add_u32 s32, s{sT0}, s34')
    k(f's_mul_i32 s35, s{sID}, {28*14*1024}')
    k(f's_add_u32 s35, s35, {WTA}')
    k(f's_mul_i32 s36, s32, {14*1024}')
    k(f's_add_u32 s36, s36, s35')
    k(f's_mul_i32 s37, s33, {14*1024}')
    k(f's_add_u32 s37, s37, s35')
    for j in range(7):
        k(f's_add_u32 s{50+j}, s{sWAVE}, {(4*j) % 7}')
        k(f's_sub_u32 s40, s{50+j}, 7')
        k(f's_cmp_ge_u32 s{50+j}, 7')
        k(f's_cselect_b32 s{50+j}, s40, s{50+j}')
        k(f's_lshl_b32 s{50+j}, s{50+j}, 10')
    n = 0
    for lt in range(7):
        sb = 36 if lt < 6 else 37
        for j in range(7):
            k(f's_lshl_b32 s40, s{50+j}, 1')
            k(f's_add_u32 s40, s40, s{sb}')
            for f in range(2):
                k(f'buffer_load_dwordx4 {xr(W(lt, j) + 4*f,4)}, v{vL16}, s[{SWS}:{SWS+3}], s40 offen offset:{f*1024}')
                n += 1
                if n % 16 == 0: k('s_waitcnt vmcnt(40)')
        k(f's_add_u32 s{sb}, s{sb}, 14336')
    k(f'v_add_u32 v{vG1}, s51, v{vL16}')
    t = vX
    g, i = vQ, vQ+1
    k(f'v_lshrrev_b32 v{g}, 4, v{vLane}')
    k(f'v_and_b32 v{i}, 15, v{vLane}')
    k(f's_lshr_b32 s38, s32, 1')
    k(f's_lshr_b32 s39, s33, 1')
    k(f's_lshl_b32 s40, s38, 10')
    k(f'v_add_u32 v{vKey}, s40, v{vL16}')
    k(f's_lshl_b32 s40, s39, 10')
    k(f's_add_u32 s40, s40, s34')
    k(f'v_add_u32 v{vKeyS}, s40, v{vL16}')
    k(f'v_lshrrev_b32 v{t}, 1, v{g}')
    k(f'v_lshlrev_b32 v{t}, 8, v{t}')
    k(f'v_and_b32 v{t+1}, 7, v{i}')
    k(f'v_lshlrev_b32 v{t+1}, 4, v{t+1}')
    k(f'v_add_u32 v{t}, v{t}, v{t+1}')
    k(f'v_and_b32 v{t+1}, 1, v{g}')
    k(f'v_lshlrev_b32 v{t+1}, 7, v{t+1}')
    k(f'v_add_u32 v{t}, v{t}, v{t+1}')
    k(f's_lshl_b32 s40, s38, 9')
    k(f'v_add_u32 v{vMK}, s40, v{t}')
    k(f's_lshl_b32 s40, s39, 9')
    k(f's_add_u32 s40, s40, s34')
    k(f'v_add_u32 v{vMKS}, s40, v{t}')
    k(f's_lshl_b32 s40, s{sWAVE}, 10')
    k(f's_add_u32 s40, s40, {LQS}')
    k(f'v_lshrrev_b32 v{t}, 2, v{i}')
    k(f'v_add_u32 v{t}, v{t}, v{g}')
    k(f'v_and_b32 v{t}, 3, v{t}')
    k(f'v_lshlrev_b32 v{t}, 3, v{t}')
    k(f'v_lshlrev_b32 v{t+1}, 5, v{i}')
    k(f'v_add3_u32 v{vQW}, v{t}, v{t+1}, s40')
    k(f'v_lshrrev_b32 v{t}, 2, v{vLane}')
    k(f'v_lshlrev_b32 v{t}, 5, v{t}')
    k(f'v_add_u32 v{t+1}, v{vLane}, v{g}')
    k(f'v_and_b32 v{t+1}, 3, v{t+1}')
    k(f'v_lshlrev_b32 v{t+1}, 3, v{t+1}')
    k(f'v_add3_u32 v{vQR}, v{t}, v{t+1}, s40')
    k(f's_mul_i32 s40, s{sWAVE}, 3264')
    k(f's_add_u32 s40, s40, {LSP}')
    k(f'v_lshlrev_b32 v{t}, 4, v{i}')
    k(f'v_mul_u32_u24 v{t+1}, 272, v{g}')
    k(f'v_add3_u32 v{vSW}, v{t}, v{t+1}, s40')
    k(f'v_subrev_u32 v{t}, 12, v{i}')
    k(f'v_cmp_le_u32 vcc, 12, v{i}')
    k('s_nop 1')
    k(f'v_cndmask_b32 v{t}, v{i}, v{t}, vcc')
    k(f'v_lshrrev_b32 v{t+1}, 5, v{vLane}')
    k(f's_lshl_b32 s40, s{sWAVE}, 1')
    k(f'v_add_u32 v{t+1}, s40, v{t+1}')
    k(f'v_and_b32 v{t+2}, 1, v{g}')
    k(f'v_lshl_add_u32 v{t+3}, v{t+2}, 3, v{t+1}')
    k(f'v_lshlrev_b32 v{t+3}, 4, v{t+3}')
    k(f'v_mul_u32_u24 v{vSR}, 272, v{t}')
    k(f'v_add_u32 v{vSR}, v{vSR}, v{t+3}')
    if LSP: k(f'v_add_u32 v{vSR}, {LSP}, v{vSR}')
    k(f's_and_b32 s42, s{sID}, 1')
    k(f's_lshl_b32 s42, s42, 3')
    k(f'v_add_u32 v{t+1}, s42, v{t+1}')
    k(f'v_and_b32 v{vPO}, 1, v{i}')
    k(f'v_lshlrev_b32 v{vPO}, 3, v{vPO}')
    k(f'v_lshl_add_u32 v{vPO}, v{t+1}, 4, v{vPO}')
    k(f'v_bfe_u32 v{t}, v{i}, 1, 1')
    k(f'v_lshl_add_u32 v{vPO}, v{t}, 8, v{vPO}')
    k(f'v_bfe_u32 v{t}, v{i}, 3, 1')
    k(f'v_lshl_add_u32 v{vPO}, v{t}, 9, v{vPO}')
    k(f's_lshr_b32 s41, s{sID}, 1')
    k(f's_lshl_b32 s40, s41, 10')
    k(f'v_add_u32 v{vPO}, s40, v{vPO}')
    k(f'v_lshlrev_b32 v{t}, 3, v{i}')
    k(f'v_lshl_add_u32 v{t}, v{t+1}, 4, v{t}')
    k(f's_lshl_b32 s40, s41, 8')
    k(f's_add_u32 s40, s40, 8192')
    k(f'v_add_u32 v{t}, s40, v{t}')
    k(f'v_mov_b32 v{t+3}, 0x40000000')
    k(f'v_cmp_le_u32 vcc, 2, v{i}')
    k('s_nop 1')
    k(f'v_cndmask_b32 v{t}, v{t}, v{t+3}, vcc')
    k(f'v_cmp_le_u32 vcc, 4, v{i}')
    k('s_nop 1')
    k(f'v_cndmask_b32 v{vPO}, v{t}, v{vPO}, vcc')
    k(f'v_cmp_le_u32 vcc, 12, v{i}')
    k('s_nop 1')
    k(f'v_cndmask_b32 v{vPO}, v{vPO}, v{t+3}, vcc')
    k(f'v_lshl_add_u32 v{vPO}, v{t+2}, 2, v{vPO}')
    k(f'v_mov_b32 v{vVal}, 1.0')
    k(f'v_cmp_le_u32 vcc, v{t+3}, v{vPO}')
    k('s_nop 1')
    k(f'v_cndmask_b32 v{vVal}, v{vVal}, 0, vcc')
    k(f's_mov_b32 s{sSTEP}, 0')
    k(f"s_lshr_b32 s{sM}, s{sID}, {3 if OPT['rep'] == 3 else 2}")
    k(f"s_mul_i32 s{sM}, s{sM}, {MEM_S if NREP == 3 else 0}")
    k(f's_add_u32 s{sM}, s{sM}, {MEM}')
    k(f's_mov_b32 s{sP}, {PB}')
    k(f's_mov_b32 s{sX}, {XNS}')
    k(f's_lshl_b32 s40, s{sID}, 2')
    k(f's_add_u32 s40, s40, s{sWAVE}')
    k(f's_mul_i32 s40, s40, 7168')
    k(f'v_min_u32 v{vX}, {55*16}, v{vL16}')
    k(f'v_lshlrev_b32 v{vX}, 3, v{vX}')
    k(f'v_add_u32 v{vX}, s40, v{vX}')
    k(f"s_mov_b32 s{sUM}, {UF + OPT['ud']*UF_SEG}")
    WS = f's[{SWS}:{SWS+3}]'
    def key_list():
        L = []
        for p in range(3):
            L.append(f'buffer_load_dwordx4 {vr(vKT+8*p,4)}, v{vKey}, {WS}, s{sX} offen offset:{p*1024}')
            L.append(f'buffer_load_dwordx4 {vr(vKT+8*p+4,4)}, v{vKey}, {WS}, s46 offen offset:{p*1024}')
        L.append(f'buffer_load_dwordx2 {vr(vKT+24,2)}, v{vKeyS}, {WS}, s{sX} offen')
        L.append(f'buffer_load_dwordx2 {vr(vKT+26,2)}, v{vKeyS}, {WS}, s46 offen')
        return L
    def load_flag():
        k(f's_add_u32 s{sT0}, s{sSTEP}, {1 + OPT["ud"]}')
        k(f's_lshr_b32 s{sT0}, s{sT0}, 2')
        k(f's_lshl_b32 s{sT0}, s{sT0}, 7')
        k(f's_add_u32 s{sT0}, s{sT0}, {flag(F_U)}')
        k(f'buffer_load_dword v{vX+2}, off, {WS}, s{sT0} sc1')
    def load_keys(keys=True):
        if keys:
            for x in key_list(): k(x)
        k(f's_add_u32 s{sX}, s{sX}, 28672')
        k(f's_add_u32 s46, s{sX}, 14336')
    if OPT['tm']:
        k(f'v_lshlrev_b32 v{vQ+2}, 2, v{g}')
        k(f'v_sub_u32 v{vQ+2}, v{i}, v{vQ+2}')
        k(f'v_and_b32 v{vQ+3}, 1, v{vQ+2}')
        k(f'v_lshlrev_b32 v{vQ+3}, 4, v{vQ+3}')
        k(f'v_mov_b32 v{vLane}, 0x3f80')
        k(f'v_lshlrev_b32 v{vLane}, v{vQ+3}, v{vLane}')
        k(f'v_cmp_gt_u32 vcc, 4, v{vQ+2}')
        k(f'v_cmp_lt_u32 s[48:49], 1, v{vQ+2}')
        k('s_nop 0')
        k(f'v_cndmask_b32 v{vLane}, 0, v{vLane}, vcc')
    k(f's_add_u32 s46, s{sX}, 14336')
    k(f's_mov_b32 s{sSTEP}, -1')
    load_flag()
    load_keys()
    if OPT['t01']:
        lt_ = k.newlabel('Lt01')
        k('s_waitcnt vmcnt(8)')
        k(f'v_cmp_le_u32 vcc, {OPT["uneed"]}, v{vX+2}')
        k(f's_cbranch_vccz {lt_}')
        k(f's_mov_b32 s40, {UF}')
        k(f's_mov_b32 s41, {UF + UF_SEG}')
        k(f'buffer_load_dword v{vX+3}, v{vX}, {WS}, s40 offen sc1')
        k(f'buffer_load_dword v{vX+1}, v{vX}, {WS}, s41 offen sc1')
        k.label(lt_)
    k(f's_mov_b32 s{sSTEP}, 0')
    wait_mode(k, vT)
    k(f'v_mov_b32 v{vX+3}, 0x40000000')
    if stamps: k(f's_add_u32 s76, s{sST}, 0x20000')
    edge(k, stamps, 0)
    k('s_branch L_A_loop')
    k('.p2align 8')
    for _ in range(OPT['padA']): k('s_nop 0')
    k.label('L_A_loop')
    for r in range(0, 28, 2): k(f'v_mov_b64 {vr(vQ+r,2)}, 0')
    k(f's_add_u32 s47, s{sP}, {PB_S}')
    vAd = vKM + 6
    for j in range(2, 7): k(f'v_add_u32 v{vAd+j}, s{50+j}, v{vL16}')
    def Mx(lt, kb, src):
        return f'v_smfmac_f32_16x16x64_bf16 {vr(vQ+4*lt,4)}, {vr(src,4)}, {xr(W(lt,kb),8)}, v{vIdx}'
    def M(lt, kb): return Mx(lt, kb, vM+4*kb)
    mk = [f'ds_read_b128 {vr(vKM+4*p,4)}, v{vMK} offset:{LM+p*512}' for p in range(3)]
    mk.append(f'ds_read_b64 {vr(vKM+12,2)}, v{vMKS} offset:{LM}')
    sets = [vM, vKM]
    def issue(st):
        return [f'buffer_load_dwordx4 {vr(sets[st],4)}, v{vG0}, {WS}, s{sM} offen sc1',
                f'buffer_load_dwordx4 {vr(sets[st]+4,4)}, v{vG1}, {WS}, s{sM} offen sc1']
    def checks(st):
        G = sets[st]
        return [(1, [f'v_max3_u32 v{vT}, v{G}, v{G+1}, v{G+2}']),
                (0, [f'v_max3_u32 v{vT+1}, v{G+4}, v{G+5}, v{G+6}', f'v_max3_u32 v{vT}, v{vT}, v{G+3}, v{G+7}',
                     f'v_max_u32 v{vT}, v{vT}, v{vT+1}', f'v_cmp_eq_u32 vcc, -1, v{vT}'])]
    NB = OPT['nb']
    def body(st):
        G = sets[st]
        stamp(k, 0, stamps)
        if stamps and OPT['pc']:
            k(f'v_mov_b32 v0, s{sCNT}')
            k(f'buffer_store_dword v0, off, s[{SWS}:{SWS+3}], s{sST} offset:12')
        wrs = [f'ds_write_b128 v{vG0}, {vr(G,4)} offset:{LM}', f'ds_write_b128 v{vG1}, {vr(G+4,4)} offset:{LM}']
        seq = [(lt, j) for j in range(2) for lt in range(7)]
        for n, (lt, j) in enumerate(seq):
            k(Mx(lt, j, G + 4*j))
            if OPT['w64'] == 0 and n < 2: k.ds(wrs[n])
            if OPT['w64'] == 1 and n < 4: k.ds(f'ds_write_b64 v{vG0 if n < 2 else vG1}, {vr(G+2*n,2)} offset:{LM + 8*(n&1)}')
            if n == 4: k(f'v_cmp_le_u32 vcc, {OPT["uneed"]}, v{vX+2}')
            if n == 5: k('s_nop 0'); k(f'v_cndmask_b32 v{vX+1}, v{vX+3}, v{vX}, vcc')
            if n == NB - 1:
                k.wds0(); k('s_barrier')
            if NB - 1 <= n < NB + 4:
                jj = n - (NB - 1) + 2
                k.ds(f'ds_read_b128 {vr(vM+4*jj,4)}, v{vAd+jj} offset:{LM}', f'm{jj}')
            if n == NB + 5: k(f'buffer_load_dword v0, v{vX+1}, {WS}, s{sUM} offen sc1')
    if stamps and OPT['pc']: stamp(k, 1, True)
    if OPT['ap2']:
        poll2(k, issue, checks, body, 'Lga', OPT['stagA'])
    else:
        gather_mem(k, vM, vG0, vG1, None, None, vT)
        body(0)
    def cvt(lt, h):
        k(f'v_cvt_pk_bf16_f32 v{vQ+4*lt+h}, v{vQ+4*lt+2*h}, v{vQ+4*lt+2*h+1}')
    def wr(lt):
        k.ds(f'ds_write_b64 v{vQW}, {vr(vQ+4*lt,2)} offset:{512*(lt&1)}')
    def tr(p, h):
        k.ds(f'ds_read_b64_tr_b16 {vr(vQ+8*p+2*h,2)}, v{vQR} offset:{512*h}', f'q{p}')
    vSt = [vM, vM+4, vQ+4]
    def S(p, t):
        q = vQ + 8*p
        c = '0' if p == 0 else vr(vSt[t],4)
        if p < 3:
            a = vKM+4*p if t == 0 else vKT+8*p+4*(t-1)
            k(f'v_mfma_f32_16x16x32_bf16 {vr(vSt[t],4)}, {vr(a,4)}, {vr(q,4)}, {c}')
        else:
            a = vKM+12 if t == 0 else vKT+24+2*(t-1)
            k(f'v_mfma_f32_16x16x16_bf16 {vr(vSt[t],4)}, {vr(a,2)}, {vr(q,2)}, {c}')
    for lt in range(7):
        for j in range(2, 7):
            if lt == 0: k.wds(f'm{j}')
            k(M(lt, j))
            if OPT['tm'] and lt == 1 and j == 2: k(f'v_cndmask_b32 v{vT}, v{vLane}, 0, s[48:49]')
            if OPT['tm'] and lt == 1 and j == 3: k(f'v_cndmask_b32 v{vT+1}, 0, v{vLane}, s[48:49]')
            if lt == 0 and j == 6:
                k('s_waitcnt vmcnt(1)')
                for x in mk: k.ds(x, 'mk')
            if lt >= 1:
                if j == 4: cvt(lt-1, 0)
                if j == 5: cvt(lt-1, 1)
                if j == 6:
                    wr(lt-1)
                    if (lt-1) & 1: tr((lt-1)//2, 0); tr((lt-1)//2, 1)
        if lt == (4 if OPT['s1pos'] == 0 else 3):
            k.wds('q0')
            for t in range(3): S(0, t)
        if lt == 5 and OPT['s1pos'] == 1:
            k.wds('q1')
            for t in range(3): S(1, t)
    if OPT['s1pos'] == 0:
        k.wds('q1')
        for t in range(3): S(1, t)
        cvt(6, 0); cvt(6, 1)
        if OPT['tm']:
            k.wds('q2')
            k.nop(1)
            k(f'v_mfma_f32_16x16x16_bf16 {vr(vQ+12,4)}, {vr(vQ+24,2)}, {vr(vT,2)}, 0')
            for t in range(3): S(2, t)
            k(f'v_cvt_pk_bf16_f32 v{vQ+24}, v{vQ+12}, v{vQ+13}')
            k(f'v_cvt_pk_bf16_f32 v{vQ+25}, v{vQ+14}, v{vQ+15}')
            k.nop(2)
        else:
            wr(6); tr(3, 0)
            k.wds('q2')
            for t in range(3): S(2, t)
    else:
        k.nop(8)
        cvt(6, 0); cvt(6, 1); wr(6); tr(3, 0)
        k.wds('q2')
        for t in range(3): S(2, t)
    k.wds('q3')
    for t in range(3): S(3, t)
    for t in range(3):
        k.nop(2 if (t == 0 or OPT['p64'] == 0) else 1)
        if OPT['p64'] == 0: k.ds(f'ds_write_b128 v{vSW}, {vr(vSt[t],4)} offset:{1088*t}')
        else:
            k.ds(f'ds_write_b64 v{vSW}, {vr(vSt[t],2)} offset:{1088*t}')
            k.ds(f'ds_write_b64 v{vSW}, {vr(vSt[t]+2,2)} offset:{1088*t+8}')
    k.wds0()
    k('s_barrier')
    stamp(k, 1, stamps and not OPT['pc'])
    mark = len(k.lines)
    R = vQ+8
    for w in range(4): k.ds(f'ds_read_b128 {vr(R+4*w,4)}, v{vSR} offset:{w*3264}', f'r{w}')
    k(f's_cmp_eq_u32 s{sMODE}, 1')
    k.wds('r1')
    k(f'v_pk_add_f32 {vr(R,2)}, {vr(R,2)}, {vr(R+4,2)}')
    k(f'v_pk_add_f32 {vr(R+2,2)}, {vr(R+2,2)}, {vr(R+6,2)}')
    k.wds('r2')
    k(f'v_pk_add_f32 {vr(R,2)}, {vr(R,2)}, {vr(R+8,2)}')
    k(f'v_pk_add_f32 {vr(R+2,2)}, {vr(R+2,2)}, {vr(R+10,2)}')
    k.wds('r3')
    k(f'v_pk_add_f32 {vr(R,2)}, {vr(R,2)}, {vr(R+12,2)}')
    k(f'v_pk_add_f32 {vr(R+2,2)}, {vr(R+2,2)}, {vr(R+14,2)}')
    k.nop(2)
    k(f'v_permlane16_swap_b32 v{R}, v{R+2}')
    k(f'v_permlane16_swap_b32 v{R+1}, v{R+3}')
    X = R+4; m = R+6; t = R+8
    k(f'v_pk_add_f32 {vr(X,2)}, {vr(R,2)}, {vr(R+2,2)}')
    def allred(op, m):
        for rot in (8, 4, 2, 1):
            k.nop(2)
            k(f'{op}_dpp v{m}, v{m}, v{m} row_ror:{rot} row_mask:0xf bank_mask:0xf')
        k(f'v_mov_b32 v{t}, v{m}')
        k.nop(2)
        k(f'v_permlane16_swap_b32 v{m}, v{t}')
        k(f'{op} v{m}, v{m}, v{t}')
    if OPT['sm2'] == 0:
        k(f'v_max_f32 v{m}, v{X}, v{X+1}')
        allred('v_max_f32', m)
        k(f'v_pk_add_f32 {vr(X,2)}, {vr(X,2)}, {vr(m,2)} op_sel_hi:[1,0] neg_lo:[0,1] neg_hi:[0,1]')
        k(f'v_exp_f32 v{X}, v{X}')
        k(f'v_exp_f32 v{X+1}, v{X+1}')
        k.nop(1)
        k(f'v_add_f32 v{m}, v{X}, v{X+1}')
        k(f'v_mul_f32 v{m}, v{m}, v{vVal}')
        allred('v_add_f32', m)
        k(f'v_rcp_f32 v{m}, v{m}')
        k.nop(1)
        k(f'v_pk_mul_f32 {vr(X,2)}, {vr(X,2)}, {vr(m,2)} op_sel_hi:[1,0]')
    else:
        l_, M, sc = R+10, R+12, R+14
        def dpp(op, r, rot): k(f'{op}_dpp v{r}, v{r}, v{r} row_ror:{rot} row_mask:0xf bank_mask:0xf')
        k(f'v_max_f32 v{m}, v{X}, v{X+1}')
        for rot in (8, 4, 2, 1):
            k.nop(2); dpp('v_max_f32', m, rot)
        k(f'v_pk_add_f32 {vr(X,2)}, {vr(X,2)}, {vr(m,2)} op_sel_hi:[1,0] neg_lo:[0,1] neg_hi:[0,1]')
        k(f'v_mov_b32 v{M}, v{m}')
        k(f'v_exp_f32 v{X}, v{X}')
        k(f'v_mov_b32 v{t}, v{m}')
        k(f'v_exp_f32 v{X+1}, v{X+1}')
        k.nop(1)
        k(f'v_add_f32 v{l_}, v{X}, v{X+1}')
        k(f'v_permlane16_swap_b32 v{M}, v{t}')
        k(f'v_mul_f32 v{l_}, v{l_}, v{vVal}')
        k(f'v_max_f32 v{M}, v{M}, v{t}')
        k(f'v_sub_f32 v{sc}, v{m}, v{M}')
        dpp('v_add_f32', l_, 8)
        k(f'v_exp_f32 v{sc}, v{sc}')
        k.nop(1)
        dpp('v_add_f32', l_, 4)
        k(f'v_pk_mul_f32 {vr(X,2)}, {vr(X,2)}, {vr(sc,2)} op_sel_hi:[1,0]')
        k.nop(1)
        dpp('v_add_f32', l_, 2)
        k.nop(2)
        dpp('v_add_f32', l_, 1)
        k(f'v_mul_f32 v{l_}, v{l_}, v{sc}')
        k(f'v_mov_b32 v{t}, v{l_}')
        k.nop(2)
        k(f'v_permlane16_swap_b32 v{l_}, v{t}')
        k(f'v_add_f32 v{l_}, v{l_}, v{t}')
        k(f'v_rcp_f32 v{l_}, v{l_}')
        k.nop(1)
        k(f'v_pk_mul_f32 {vr(X,2)}, {vr(X,2)}, {vr(l_,2)} op_sel_hi:[1,0]')
    k(f'v_cvt_pk_bf16_f32 v{X}, v{X}, v{X+1}')
    k(f'v_min_u32 v{X}, -2, v{X}')
    if OPT['kpos'] == 'soft':
        body_ = k.lines[mark:]; k.lines = k.lines[:mark]; L = key_list()
        for x in body_:
            if x == 's_nop 1' and L: k(L.pop(0)); k('s_nop 0')
            else: k(x)
        assert not L
    publish(k, [f'buffer_store_dword v{X}, v{vPO}, {WS}, s{x} offen' for x in [sP, 47][:OPT['prep']]])
    stamp(k, 2, stamps)
    k('s_barrier')
    if stamps and OPT['tw']:
        k('s_waitcnt vmcnt(0)')
        stamp(k, 3, stamps)
    load_flag()
    if OPT['kdel']: k(f"s_sleep {OPT['kdel']}")
    load_keys(OPT['kpos'] != 'soft')
    if OPT['sleepA']: k(f"s_sleep {OPT['sleepA']}")
    k(f's_add_u32 s{sUM}, s{sUM}, {UF_SEG}')
    k(f's_add_u32 s{sM}, s{sM}, {MEM_T}')
    k(f's_add_u32 s{sP}, s{sP}, {PB_T}')
    if stamps: k(f's_add_u32 s{sST}, s{sST}, 16')
    k(f's_add_u32 s{sSTEP}, s{sSTEP}, 1')
    k(f's_cmp_lt_u32 s{sSTEP}, {NSTEP}')
    k('s_cbranch_scc1 L_A_loop')
    edge(k, stamps, 8)
    k('s_waitcnt vmcnt(0)')
    k('s_endpgm')
    k.flush_cold()

def role_B(k, stamps=False, wait_u=None):
    WS = f's[{SWS}:{SWS+3}]'
    vLane, vL16, vG0, vG1, vIdx = 1, 2, 3, 4, 5
    vWL, vPT, vPM, vRW, vRR, vL4 = 6, 7, 8, 9, 10, 11
    vC = 12
    vM = 16
    vA = 44
    vU = 76
    vTm = 108
    vUi = 140
    vUm = 172
    vRR2 = 188
    vKeep, vFl = 191, 15
    vD = vTm
    vG = vTm + 16
    vP = [vM, vA]
    def W(gi, kb):
        i = gi*5 + kb
        return (256 + 8*i) if i < 32 else (192 + 8*(i-32))
    LM, LRED, LW = 0, 7168, 16384
    k.label('L_roleB')
    k(f's_sub_u32 s{sID}, s{sROLE}, 16')
    common_lane_setup(k, vLane, vL16, vG0, vG1, vIdx, vC)
    k(f's_lshl_b32 s{sT0}, s{sWAVE}, 2')
    k(f's_mul_i32 s{sT0}, s{sT0}, 28')
    k(f's_lshl_b32 s{sT1}, s{sID}, 1')
    k(f's_add_u32 s{sT0}, s{sT0}, s{sT1}')
    k(f's_mul_i32 s35, s{sT0}, 14336')
    k(f's_add_u32 s35, s35, {WTB}')
    k(f's_lshl_b32 s37, s{sWAVE}, 15')
    k(f's_add_u32 s37, s37, {LW}')
    k(f'v_add_u32 v{vWL}, s37, v{vL16}')
    for j in range(7):
        k(f's_add_u32 s{50+j}, s{sWAVE}, {(4*j) % 7}')
        k(f's_sub_u32 s40, s{50+j}, 7')
        k(f's_cmp_ge_u32 s{50+j}, 7')
        k(f's_cselect_b32 s{50+j}, s40, s{50+j}')
        k(f's_lshl_b32 s{50+j}, s{50+j}, 10')
    k(f'v_add_u32 v{vG1}, s51, v{vL16}')
    for gi in range(8):
        k(f's_add_u32 s36, s35, {(gi>>1)*28*14336 + (gi&1)*14336}')
        for j in range(7):
            k(f's_lshl_b32 s40, s{50+j}, 1')
            k(f's_add_u32 s40, s40, s36')
            if j >= 5:
                k(f's_add_u32 s38, s37, {gi*4096 + (j-5)*2048}')
                k(f's_mov_b32 m0, s38')
                k('s_nop 0')
            for f in range(2):
                if j < 5: k(f'buffer_load_dwordx4 {xr(W(gi, j) + 4*f,4)}, v{vL16}, {WS}, s40 offen offset:{f*1024}')
                else:     k(f'buffer_load_dwordx4 v{vL16}, {WS}, s40 offen offset:{f*1024} lds')
        k('s_waitcnt vmcnt(40)')
    g, i = vA, vA+1
    vT = vC
    k(f'v_lshrrev_b32 v{g}, 4, v{vLane}')
    k(f'v_and_b32 v{i}, 15, v{vLane}')
    k(f's_lshl_b32 s40, s{sWAVE}, 11')
    k(f'v_add_u32 v{vPT}, s40, v{vL16}')
    k(f'v_lshrrev_b32 v{vT}, 1, v{g}')
    k(f'v_lshlrev_b32 v{vT}, 8, v{vT}')
    k(f'v_lshl_add_u32 v{vT}, v{i}, 4, v{vT}')
    k(f's_lshl_b32 s40, s{sWAVE}, 9')
    k(f's_add_u32 s40, s40, 8192')
    k(f'v_add_u32 v{vPM}, s40, v{vT}')
    k(f's_lshl_b32 s40, s{sWAVE}, 10')
    k(f's_add_u32 s40, s40, {LRED}')
    k(f'v_add_u32 v{vRW}, s40, v{vL16}')
    k(f'v_and_b32 v{vT}, 3, v{vLane}')
    k(f'v_lshlrev_b32 v{vT}, 6, v{vT}')
    k(f'v_lshrrev_b32 v{vT+1}, 5, v{vLane}')
    k(f'v_lshl_add_u32 v{vT}, v{vT+1}, 5, v{vT}')
    k(f'v_lshrrev_b32 v{vT+1}, 2, v{vLane}')
    k(f'v_and_b32 v{vT+2}, 3, v{vT+1}')
    k(f'v_lshl_add_u32 v{vT}, v{vT+2}, 2, v{vT}')
    k(f'v_bfe_u32 v{vT+2}, v{vLane}, 4, 1')
    k(f'v_lshl_add_u32 v{vT}, v{vT+2}, 8, v{vT}')
    k(f's_and_b32 s40, s{sWAVE}, 1')
    k(f's_lshl_b32 s40, s40, 9')
    k(f's_add_u32 s40, s40, {LRED}')
    k(f'v_add_u32 v{vRR}, s40, v{vT}')
    for w in range(1, 4): k(f'v_add_u32 v{vRR2+w-1}, {1024*w}, v{vRR}')
    k(f's_lshl_b32 s40, s{sID}, 1')
    k(f's_and_b32 s41, s{sWAVE}, 1')
    k(f's_add_u32 s40, s40, s41')
    k(f's_lshl_b32 s40, s40, 8')
    k(f'v_lshlrev_b32 v{vL4}, 2, v{vLane}')
    k(f'v_add_u32 v{vL4}, s40, v{vL4}')
    k(f's_mov_b32 s{sSTEP}, 0')
    k(f's_lshr_b32 s{sM}, s{sWAVE}, 1')
    k(f's_mul_i32 s{sM}, s{sM}, {2*MEM_S}')
    k(f's_add_u32 s{sM}, s{sM}, {MEM}')
    k(f's_mov_b32 s47, {MEMX - MEM_S}')
    k(f"s_mov_b32 s49, {MEM + (NREP-1)*MEM_S}")
    k(f's_and_b32 s{sP}, s{sID}, 1')
    k(f"s_mul_i32 s{sP}, s{sP}, {PB_S if OPT['prep'] == 2 else 0}")
    k(f's_add_u32 s{sP}, s{sP}, {PB}')
    k(f's_lshl_b32 s{sX}, s{sID}, 15')
    k(f's_lshl_b32 s40, s{sWAVE}, 13')
    k(f's_add_u32 s{sX}, s{sX}, s40')
    k(f's_add_u32 s{sX}, s{sX}, {UF}')
    k(f's_mul_i32 s{sUM}, s{sWAVE}, {2*28*1024}')
    k(f's_lshl_b32 s40, s{sID}, 11')
    k(f's_add_u32 s{sUM}, s{sUM}, s40')
    k(f's_add_u32 s{sUM}, s{sUM}, {UM}')
    k(f's_mov_b32 s43, s{sUM}')
    def ldu(j, s0=sX):
        hh, T = j >> 1, j & 1
        r = vU + 16*(hh>>1) + 8*T + 4*(hh&1)
        return f'buffer_load_dwordx4 {vr(r,4)}, v{vL16}, {WS}, s{s0 if j<4 else sT0} offen offset:{(j&3)*1024} ' + OPT['uf']
    def stum(u, T):
        return f'buffer_store_dwordx4 {vr(vUm+8*T+4*u,4)}, v{vL16}, {WS}, s{43 if u==0 else 44} offen offset:{T*1024} ' + OPT['um']
    def lw(gi):
        b = vTm + 16*(gi&1)
        for f in range(4): k.ds(f'ds_read_b128 {vr(b+4*f,4)}, v{vWL} offset:{gi*4096+f*1024}', f'w{gi}')
    def load_u(ahead):
        if wait_u:
            lu = k.newlabel('Lnu')
            k(f's_add_u32 s{sT0}, s{sSTEP}, {ahead}')
            k(f's_and_b32 s{sT1}, s{sT0}, 3')
            k(f's_cbranch_scc1 {lu}')
            k(f's_lshl_b32 s{sT0}, s{sT0}, 5')
            k(f's_add_u32 s{sT0}, s{sT0}, {flag(F_U)}')
            wait_u(k, sT0, 32, vC, sleep=1)
            k.label(lu)
        k(f's_add_u32 s{sT0}, s{sX}, 4096')
        for j in range(8): k(ldu(j))
        k(f's_add_u32 s{sX}, s{sX}, {UF_SEG}')
    if OPT['u0'] == 'pro': load_u(0)
    wait_mode(k, vC)
    sw = []
    for o in range(4):
        r = vU + 8*o
        for e in range(4):
            sel = e & 1
            sw.append(f'v_pk_mov_b32 {vr(vUi+8*o+2*e,2)}, {vr(r+(e&2),2)}, {vr(r+4+(e&2),2)} op_sel:[{sel},{sel}]')
    if stamps: k(f's_add_u32 s76, s{sST}, 0x20000')
    edge(k, stamps, 0)
    k('s_branch L_B_loop')
    k('.p2align 8')
    for _ in range(OPT['padB']): k('s_nop 0')
    k.label('L_B_loop')
    lp = k.newlabel('Lgm')
    def gl():
        sb = 49
        k(f'buffer_load_dwordx4 {vr(vM,4)}, v{vG0}, {WS}, s{sb} offen sc1')
        k(f'buffer_load_dwordx4 {vr(vM+4,4)}, v{vG1}, {WS}, s{sb} offen sc1')
    k(f's_waitcnt vmcnt({NREP})')
    NU = OPT['nu2']
    if OPT['bdel']: k(f"s_sleep {OPT['bdel']}")
    k(f's_add_u32 s{sT0}, s{sX}, {4096 - UF_SEG}')
    k(f's_sub_u32 s{sT1}, s{sX}, {UF_SEG}')
    for j in range(8-NU, 8): k(ldu(j, sT1))
    gl()
    NS = 8 if NU <= 4 else 0
    if NU == 0: NS = 16
    for x in sw[:NS]: k(x)
    for r in range(0, 32, 2): k(f'v_mov_b64 {vr(vA+r,2)}, 0')
    for j in range(2, 7): k(f'v_add_u32 v{vG+j}, s{50+j}, v{vL16}')
    k(f's_add_u32 s45, s{sSTEP}, 1')
    k(f's_lshr_b32 s45, s45, 2')
    k(f's_lshl_b32 s45, s45, 7')
    k(f's_add_u32 s45, s45, {flag(F_U)}')
    k(f's_add_u32 s44, s43, {28*1024}')
    vm = [stum(0,0), stum(0,1), stum(1,0), stum(1,1)] + [ldu(j) for j in range(8)]
    lw(0)
    k(f's_mov_b32 s{sCNT}, 0')
    k(f's_branch {lp}w')
    k.label(lp)
    if OPT['bgs']: k(f"s_sleep {OPT['bgs']}")
    gl()
    k(f's_add_u32 s{sCNT}, s{sCNT}, 1')
    k(f's_cmp_gt_u32 s{sCNT}, s{sT2}')
    k('s_cbranch_scc1 L_fail')
    k.label(lp + 'w')
    k('s_waitcnt vmcnt(1)')
    k(f'v_max3_u32 v{vC}, v{vM}, v{vM+1}, v{vM+2}')
    k('s_waitcnt vmcnt(0)')
    k(f'v_max3_u32 v{vC+1}, v{vM+4}, v{vM+5}, v{vM+6}')
    k(f'v_max3_u32 v{vC}, v{vC}, v{vM+3}, v{vM+7}')
    k(f'v_max_u32 v{vC}, v{vC}, v{vC+1}')
    k(f'v_cmp_eq_u32 vcc, -1, v{vC}')
    k(f's_cbranch_vccnz {lp}')
    stamp(k, 0, stamps)
    k.ds(f'ds_write_b128 v{vG0}, {vr(vM,4)} offset:{LM}')
    k.ds(f'ds_write_b128 v{vG1}, {vr(vM+4,4)} offset:{LM}')
    ls, l2 = k.newlabel('Lbs'), k.newlabel('Lbt')
    k(f's_cmp_eq_u32 s{sSTEP}, 0')
    k(f's_cbranch_scc1 {l2}')
    k(f's_cmp_ge_u32 s{sWAVE}, 2')
    k(f's_cbranch_scc1 {ls}')
    k(f'buffer_store_dword v{vKeep}, v{vL4}, {WS}, s47 offen sc1')
    k(f's_branch {l2}')
    k.label(ls)
    k(f's_cmp_eq_u32 s{sWAVE}, 2')
    k(f's_cselect_b32 s{sT0}, s{sSTEP}, 0')
    k(f's_cmp_le_u32 s{sT0}, 1')
    k(f's_cbranch_scc1 {l2}')
    k(f's_lshl_b32 s{sT0}, s{sSTEP}, 7')
    k(f's_add_u32 s{sT0}, s{sT0}, {flag(F_UM) - 256}')
    k('s_mov_b64 exec, 1')
    k(f'v_mov_b32 v{vC}, 1')
    k(f'buffer_atomic_add v{vC}, off, {WS}, s{sT0}')
    k('s_mov_b64 exec, -1')
    k.label(l2)
    k(f'buffer_load_dword v{vFl}, off, {WS}, s45 sc1')
    for x in vm[:4]: k(x)
    def acc(gi): return vA + 4*gi
    def cvt(gi, h):
        hh, T = gi>>1, gi&1
        d = vUm + 8*T + 4*(hh>>1) + 2*h + (hh&1)
        a = acc(gi) + 2*h
        k(f'v_cvt_pk_bf16_f32 v{d}, v{a}, v{a+1}')
    def lw1(gi, f):
        k.ds(f'ds_read_b128 {vr(vTm+16*(gi&1)+4*f,4)}, v{vWL} offset:{gi*4096+f*1024}', f'w{gi}')
    def mid_u():
        lsk = k.newlabel('Lsk')
        k(f's_cmp_ge_u32 s{sSTEP}, {NSTEP-1}')
        k(f's_cbranch_scc1 {lsk}')
        k('s_waitcnt vmcnt(4)')
        if wait_u:
            lu = k.newlabel('Lnu')
            k(f'v_cmp_le_u32 vcc, 32, v{vFl}')
            k(f's_cbranch_vccnz {lu}')
            wait_u(k, 45, 32, vC)
            k.label(lu)
        k(f's_add_u32 s{sT0}, s{sX}, 4096')
        for j in range(8-NU): k(ldu(j))
        k.label(lsk)
        k(f's_add_u32 s{sX}, s{sX}, {UF_SEG}')
    def MB(gi, j):
        w = xr(W(gi,j),8) if j < 5 else vr(vTm + 16*(gi&1) + 8*(j-5), 8)
        k(f'v_smfmac_f32_16x16x64_bf16 {vr(acc(gi),4)}, {vr(vM+4*j,4)}, {w}, v{vIdx}')
    for n in range(16):
        MB(n & 7, n >> 3)
        if n == 5:
            k.wds0(); k('s_barrier')
        if 5 <= n < 10:
            k.ds(f'ds_read_b128 {vr(vM+4*(n-3),4)}, v{vG+n-3} offset:{LM}', f'm{n-3}')
    for gi in range(8):
        for j in range(2, 7):
            if gi == 0: k.wds(f'm{j}')
            if j == 5: k.wds(f'w{gi}')
            MB(gi, j)
            if gi < 7 and j in (2, 3, 5, 6): lw1(gi+1, {2:0, 3:1, 5:2, 6:3}[j])
            if gi >= 1 and j == 4: cvt(gi-1, 0); cvt(gi-1, 1)
        if gi + 1 == OPT['ug'] and gi < 7: mid_u()
    k(f's_mov_b32 s43, s{sUM}')
    k(f's_add_u32 s{sUM}, s{sUM}, {UM_SEG}')
    for x in sw[NS:]: k(x)
    k.nop(6 if NS == 16 else 0)
    cvt(7, 0); cvt(7, 1)
    for r in range(0, 8, 2): k(f'v_mov_b64 {vr(vD+r,2)}, 0')
    k(f's_cmp_ge_u32 s{sSTEP}, {NSTEP}')
    k('s_cbranch_scc1 L_B_end')
    if OPT['u0'] == 'cold':
        l0, l1 = k.newlabel('Lu0'), k.newlabel('Lu1')
        k(f's_cmp_eq_u32 s{sSTEP}, 0')
        k(f's_cbranch_scc1 {l0}')
        k.label(l1)
        main = k.lines; k.lines = []
        k.label(l0)
        load_u(0)
        k('s_waitcnt vmcnt(0)')
        for x in sw: k(x)
        k(f'v_mov_b32 v{vFl}, 32')
        k(f's_branch {l1}')
        k.cold += k.lines; k.lines = main
    if OPT['ug'] == 8: mid_u()
    stamp(k, 1, stamps)
    if OPT['sleepB']: k(f"s_sleep {OPT['sleepB']}")
    def issue(st):
        P = vP[st]
        return [f'buffer_load_dwordx4 {vr(P,4)}, v{vPT}, {WS}, s{sP} offen sc1',
                f'buffer_load_dwordx4 {vr(P+4,4)}, v{vPT}, {WS}, s{sP} offen offset:1024 sc1',
                f'buffer_load_dwordx4 {vr(P+8,4)}, v{vPM}, {WS}, s{sP} offen sc1']
    def checks(st):
        P = vP[st]
        return [(2, [f'v_max3_u32 v{vC}, v{P}, v{P+1}, v{P+2}']),
                (1, [f'v_max3_u32 v{vC+1}, v{P+4}, v{P+5}, v{P+6}', f'v_max3_u32 v{vC}, v{vC}, v{P+3}, v{P+7}']),
                (0, [f'v_max3_u32 v{vC+1}, v{vC+1}, v{P+8}, v{P+9}', f'v_max3_u32 v{vC}, v{vC}, v{P+10}, v{P+11}',
                     f'v_max_u32 v{vC}, v{vC}, v{vC+1}', f'v_cmp_eq_u32 vcc, -1, v{vC}'])]
    def body(st):
        P = vP[st]
        stamp(k, 2, stamps)
        for j in range(3):
            for T in range(2):
                b = vr(vUi + 16*j + 8*T, 8) if j < 2 else vr(vUm + 8*T, 8)
                k(f'v_smfmac_f32_16x16x64_bf16 {vr(vD+4*T,4)}, {vr(P+4*j,4)}, {b}, v{vIdx}')
    if OPT['bp2']: poll2(k, issue, checks, body, 'Lpp', OPT['stag'])
    else:
        lp = k.newlabel('Lp1')
        k(f's_mov_b32 s{sCNT}, 0')
        k.label(lp)
        for x in issue(0): k(x)
        k(f's_add_u32 s{sCNT}, s{sCNT}, 1')
        k(f's_cmp_gt_u32 s{sCNT}, s{sT2}')
        k('s_cbranch_scc1 L_fail')
        for rel, ins in checks(0):
            k(f's_waitcnt vmcnt({rel})')
            for x in ins: k(x)
        k(f's_cbranch_vccnz {lp}')
        body(0)
    k(f's_add_u32 s{sM}, s{sM}, {MEM_T}')
    k(f's_add_u32 s47, s47, {MEM_S}')
    k(f's_add_u32 s48, s{sM}, {MEM_S}')
    k(f's_add_u32 s49, s49, {MEM_T}')
    k(f's_add_u32 s{sP}, s{sP}, {PB_T}')
    k.nop(3)
    for r in range(4): k(f'v_permlane32_swap_b32 v{vD+r}, v{vD+4+r}')
    k(f'v_pk_add_f32 {vr(vD,2)}, {vr(vD,2)}, {vr(vD+4,2)}')
    k(f'v_pk_add_f32 {vr(vD+2,2)}, {vr(vD+2,2)}, {vr(vD+6,2)}')
    k.ds(f'ds_write_b128 v{vRW}, {vr(vD,4)}')
    k.wds0()
    k('s_barrier')
    if OPT['rep'] == 3:
        k(f's_cmp_ge_u32 s{sWAVE}, 2')
        k('s_cbranch_scc1 L_B_skip')
    R = vG
    for w in range(4): k.ds(f'ds_read2_b32 {vr(R+2*w,2)}, v{vRR} offset0:{0} offset1:{4}' if w == 0 else
                            f'ds_read2_b32 {vr(R+2*w,2)}, v{vRR2+w-1} offset0:0 offset1:4', f'r{w}')
    k(f's_cmp_eq_u32 s{sMODE}, 1')
    k.wds('r1')
    k(f'v_pk_add_f32 {vr(R,2)}, {vr(R,2)}, {vr(R+2,2)}')
    k.wds('r3')
    k(f'v_pk_add_f32 {vr(R+4,2)}, {vr(R+4,2)}, {vr(R+6,2)}')
    k(f'v_pk_add_f32 {vr(R,2)}, {vr(R,2)}, {vr(R+4,2)}')
    k(f'v_cvt_pk_bf16_f32 v{R}, v{R}, v{R+1}')
    k(f'v_min_u32 v{R}, -2, v{R}')
    publish(k, [f'buffer_store_dword v{R}, v{vL4}, {WS}, s{x} offen' for x in {1: [sM], 2: [sM, 49], 3: [sM, 48, 49]}[NREP]])
    k(f'v_mov_b32 v{vKeep}, v{R}')
    k(f's_cmp_lg_u32 s{sSTEP}, {NSTEP-1}')
    k('s_cbranch_scc1 L_B_skip2')
    k(f'buffer_store_dword v{R}, v{vL4}, {WS}, s47 offen sc1')
    k('s_branch L_B_skip2')
    k.label('L_B_skip')
    k('s_waitcnt vmcnt(0)')
    k.label('L_B_skip2')
    stamp(k, 3, stamps)
    k('s_barrier')
    k(f's_add_u32 s{sSTEP}, s{sSTEP}, 1')
    if stamps: k(f's_add_u32 s{sST}, s{sST}, 16')
    k('s_branch L_B_loop')
    k.label('L_B_end')
    edge(k, stamps, 8)
    for r in range(16): k(f'v_min_u32 v{vUm+r}, -2, v{vUm+r}')
    k(f's_add_u32 s44, s43, {28*1024}')
    for x in vm[:4]: k(x)
    k('s_waitcnt vmcnt(4)')
    k('s_barrier')
    k(f's_cmp_lg_u32 s{sWAVE}, 0')
    k('s_cbranch_scc1 L_exit')
    k('s_mov_b64 exec, 1')
    k(f'v_mov_b32 v{vC}, 1')
    k(f's_mov_b32 s{sT0}, {flag(F_UM + 62)}')
    k(f'buffer_atomic_add v{vC}, off, {WS}, s{sT0}')
    k('s_endpgm')
    k.flush_cold()

def role_P(k, wait_u=None):
    WS = f's[{SWS}:{SWS+3}]'
    vLane, vU, vX, vS, vD = 1, 2, 3, 4, 8
    D = OPT['pfd']; st = OPT['pfs']; sh = 7 if st == 128 else 6
    k.label('L_roleP')
    k(f's_mov_b32 s{sT2}, {POLL_LIMIT}')
    k(f's_sub_u32 s{sID}, s{sROLE}, 30')
    k(f's_lshl_b32 s{sID}, s{sID}, 2')
    k(f's_add_u32 s{sID}, s{sID}, s{sWAVE}')
    k(f'v_and_b32 v{vLane}, 63, v0')
    k(f'v_lshlrev_b32 v{vU}, {sh}, v{vLane}')
    k(f's_mul_i32 s40, s{sID}, {UF_SEG//8}')
    k(f'v_add_u32 v{vU}, s40, v{vU}')
    f2 = 2 if OPT['pf64'] else 1
    for reg, n in ((vX, 28*f2), (vS, PB_T//1024*f2), (vS+1, 7*NREP*f2)):
        k(f'v_min_u32 v{reg}, {n-1}, v{vLane}')
        k(f's_mul_i32 s40, s{sID}, {n}')
        k(f'v_add_lshl_u32 v{reg}, v{reg}, s40, {8 - f2}')
    k(f's_mov_b32 s{sSTEP}, 0')
    k(f's_mov_b32 s{sX}, {UF}')
    k(f's_mov_b32 s{sUM}, {XNS}')
    k(f's_mov_b32 s{sP}, {PB}')
    k(f's_mov_b32 s{sM}, {MEM + MEM_T}')
    k(f's_mov_b32 s41, {MEM - D*MEM_T + (NREP-1)*MEM_S}')
    if OPT['cpf']:
        k('s_getpc_b64 s[44:45]')
        k.label('L_P_pc')
        k('s_sub_u32 s44, s44, L_P_pc-L_roleA')
        k('s_subb_u32 s45, s45, 0')
        k(f's_lshl_b32 s40, s{sID}, 12')
        k(f'v_lshlrev_b32 v20, 6, v{vLane}')
        k('v_add_u32 v20, s40, v20')
        k('v_min_u32 v20, L_P_pc-L_roleA, v20')
        k('v_mov_b32 v21, s45')
        k('v_add_co_u32 v20, vcc, s44, v20')
        k('s_nop 1')
        k('v_addc_co_u32 v21, vcc, 0, v21, vcc')
        k('global_load_dword v22, v[20:21], off')
    k.label('L_P_loop')
    k(f's_cmp_le_u32 s{sSTEP}, {D}')
    k('s_cbranch_scc1 L_P_go')
    k(f's_mov_b32 s{sCNT}, 0')
    k.label('L_P_wait')
    k(f'buffer_load_dword v{vD}, off, {WS}, s41 sc1')
    k(f's_add_u32 s{sCNT}, s{sCNT}, 1')
    k(f's_cmp_gt_u32 s{sCNT}, s{sT2}')
    k('s_cbranch_scc1 L_fail')
    k('s_waitcnt vmcnt(0)')
    k(f'v_cmp_eq_u32 vcc, -1, v{vD}')
    k('s_cbranch_vccz L_P_go')
    k('s_sleep 2')
    k('s_branch L_P_wait')
    k.label('L_P_go')
    k(f'buffer_load_dword v{vD+1}, v{vS}, {WS}, s{sP} offen sc1')
    k(f'buffer_load_dword v{vD+2}, v{vS+1}, {WS}, s{sM} offen sc1')
    k(f'buffer_load_dword v{vD+3}, v{vX}, {WS}, s{sUM} offen sc1')
    n = 0 if OPT['apf'] else UF_SEG // 8 // (64*st)
    k(f's_mov_b32 s{sT0}, s{sX}')
    for j in range(n):
        k(f'buffer_load_dword v{vD+4+j}, v{vU}, {WS}, s{sT0} offen sc1')
        k(f's_add_u32 s{sT0}, s{sT0}, {64*st}')
    k(f's_add_u32 s{sX}, s{sX}, {UF_SEG}')
    k(f's_add_u32 s{sUM}, s{sUM}, 28672')
    k(f's_add_u32 s{sP}, s{sP}, {PB_T}')
    k(f's_add_u32 s{sM}, s{sM}, {MEM_T}')
    k(f's_add_u32 s41, s41, {MEM_T}')
    k(f's_add_u32 s{sSTEP}, s{sSTEP}, 1')
    k(f's_cmp_lt_u32 s{sSTEP}, {NSTEP}')
    k('s_cbranch_scc1 L_P_loop')
    k('s_waitcnt vmcnt(0)')
    k('s_endpgm')
```

```python
from chain import K, OPT
from asmlib import *
from layout import *
import math, struct

def f32bits(x): return struct.unpack('<I', struct.pack('<f', x))[0]
PREP_GRID, PREP_BLOCK, PREP_LDS = 256, 512, 3*43008

def srd(k, s, argoff, size):
    k(f's_load_dwordx2 s[{s}:{s+1}], s[0:1], {argoff}')
    k(f's_mov_b32 s{s+2}, {size}')
    k(f's_mov_b32 s{s+3}, 0x20000')

def gen_prep(tl=False):
    k = K()
    WS = 's[4:7]'
    k(f's_cmp_ge_u32 s2, {PREP_GRID}')
    k('s_cbranch_scc1 P_exit')
    srd(k, 4, 112, WS_SIZE)
    k('v_lshrrev_b32 v1, 6, v0')
    k('v_and_b32 v2, 63, v0')
    k('v_readfirstlane_b32 s16, v1')
    if tl: k('s_memrealtime s[40:41]')
    k('s_nop 2')
    if OPT['k1pf']:
        k('s_cmp_ge_u32 s16, 4')
        k('s_cbranch_scc1 P_nopf')
        k('s_lshl_b32 s44, s16, 3')
        k('s_add_u32 s44, s44, 16')
        k('s_load_dwordx2 s[56:57], s[0:1], s44')
        k('s_mov_b32 s58, 3670016')
        k('s_mov_b32 s59, 0x20000')
        k('v_lshlrev_b32 v190, 7, v2')
        k('s_mul_i32 s44, s2, 14336')
        k('s_add_u32 s45, s44, 6144')
        k('s_waitcnt lgkmcnt(0)')
        k('s_and_b32 s57, s57, 0xffff')
        k('buffer_load_dword v191, v190, s[56:59], s44 offen')
        k('buffer_load_dword v189, v190, s[56:59], s45 offen')
        k.label('P_nopf')
    k('s_cmp_eq_u32 s16, 7')
    k('s_cbranch_scc1 P_ln')
    k('s_and_b32 s19, s2, 15')
    k('s_bfe_u32 s18, s2, 0x10005')
    k('s_lshr_b32 s20, s2, 6')
    k('s_bitcmp1_b32 s2, 4')
    k('s_cbranch_scc1 P_gB0')
    srd(k, 8, 16, 3670016); srd(k, 12, 24, 3670016)
    k('s_branch P_g1')
    k.label('P_gB0')
    srd(k, 8, 32, 3670016); srd(k, 12, 40, 3670016)
    k.label('P_g1')
    vI, vG, vL16 = 3, 4, 5
    vR, vC, vRA, vCA, vt = 6, 10, 12, 16, 18
    vRAs, vCAs = 20, 24
    k(f'v_and_b32 v{vI}, 15, v2')
    k(f'v_lshrrev_b32 v{vG}, 4, v2')
    k(f'v_lshlrev_b32 v{vL16}, 4, v2')
    k('s_mul_i32 s21, s18, 7')
    k('s_add_u32 s21, s21, s16')
    k(f'v_lshrrev_b32 v{vt}, 3, v2')
    k('s_lshl_b32 s22, s21, 5')
    k(f'v_add_u32 v{vt}, s22, v{vt}')
    k(f'v_lshlrev_b32 v{vt}, 13, v{vt}')
    k('s_lshl_b32 s22, s19, 9')
    k(f'v_add_u32 v{vt}, s22, v{vt}')
    k(f'v_and_b32 v{vt+1}, 7, v2')
    k(f'v_and_b32 v26, 1, v{vG}')
    k(f'v_xor_b32 v{vt+1}, v{vt+1}, v26')
    for q in range(4):
        k(f'v_xor_b32 v26, {2*q}, v{vt+1}')
        k(f'v_lshl_add_u32 v{vR+q}, v26, 4, v{vt}')
        if q: k(f'v_add_u32 v{vR+q}, {q*8*8192}, v{vR+q}')
    k(f'v_lshrrev_b32 v{vt}, 2, v{vI}')
    k(f'v_bfe_u32 v{vt+1}, v{vI}, 1, 1')
    k(f'v_lshl_add_u32 v{vt+1}, v{vt}, 1, v{vt+1}')
    k(f'v_xor_b32 v{vt+1}, v{vt+1}, v{vG}')
    k(f'v_lshlrev_b32 v{vt+1}, 4, v{vt+1}')
    k(f'v_lshl_add_u32 v{vt+1}, v{vt}, 10, v{vt+1}')
    k(f'v_and_b32 v{vt}, 3, v{vI}')
    k(f'v_lshl_add_u32 v{vt+1}, v{vt}, 7, v{vt+1}')
    k('s_lshl_b32 s33, s16, 12')
    k(f'v_add_u32 v{vRA}, s33, v{vt+1}')
    k(f'v_xor_b32 v{vRA+1}, 64, v{vRA}')
    k('s_lshl_b32 s22, s18, 1')
    k('s_add_u32 s22, s22, s20')
    for j in range(4):
        k(f's_add_u32 s{24+j}, s22, {j}')
        k(f's_and_b32 s{24+j}, s{24+j}, 3')
    vAcc, vOp = 28, 84
    k('s_lshl_b32 s32, s16, 11')
    k('s_add_u32 s32, s32, 28672')
    def mm(n):
        o = vOp + 36*(n&1)
        for T in range(2):
            for ct in range(7):
                a = vAcc + 28*T + 4*ct
                k(f'v_mfma_f32_16x16x32_bf16 {vr(a,4)}, {vr(o+4*T,4)}, {vr(o+8+4*ct,4)}, {"0" if n == 0 else vr(a,4)}')
    def body(gstep, rdc, cdma):
        if tl == 2: k('s_memrealtime s[46:47]')
        k('s_waitcnt lgkmcnt(0)')
        if tl == 2: k('s_memrealtime s[48:49]')
        k('s_and_b32 s5, s5, 0xffff'); k('s_and_b32 s9, s9, 0xffff'); k('s_and_b32 s13, s13, 0xffff')
        k.vmq = []
        def issue(j):
            sb = (j % 3)*43008
            k(f's_lshl_b32 s36, s{24+j}, 7')
            k(f's_mul_i32 s35, s{24+j}, {gstep}')
            for q in range(4):
                k(f's_add_u32 s34, s33, {sb + q*1024}')
                k('s_mov_b32 m0, s34')
                k('s_nop 0')
                k.vm(f'buffer_load_dwordx4 v{vR+q}, s[8:11], s36 offen lds', j)
            cdma(sb, j)
        D = OPT['k1d']
        for j in range(D): issue(j)
        if tl == 2: k('s_memrealtime s[50:51]')
        def rd(n):
            j, es = n >> 1, n & 1
            o = vOp + 36*(n&1)
            for T in range(2): k(f'ds_read_b128 {vr(o+4*T,4)}, v{vRAs+es} offset:{T*512}')
            rdc(o + 8, es)
        for n in range(9):
            j = n >> 1
            if n < 8 and n % 2 == 0:
                sb = (j % 3)*43008
                k.wvm(j, extra='lgkmcnt(0)')
                k('s_barrier')
                if j + D < 4: issue(j + D)
                if tl == 1 and j in (0, 1, 3): k(f's_memrealtime s[{46+2*((j+1)//2)}:{47+2*((j+1)//2)}]')
                for e in range(2):
                    k(f'v_add_u32 v{vRAs+e}, {sb}, v{vRA+e}')
                    k(f'v_add_u32 v{vCAs+e}, {sb}, v{vCA+e}')
            if n < 8: rd(n)
            if n > 0:
                k(f's_waitcnt lgkmcnt({0 if (n == 8 or tl) else min(15, rdc.n + 2)})')
                mm(n-1)
    k('s_bitcmp1_b32 s2, 4')
    k('s_cbranch_scc1 P_gB')
    k('s_mul_i32 s22, s20, 7')
    k('s_add_u32 s22, s22, s16')
    k('s_lshr_b32 s23, s22, 1')
    k('s_lshl_b32 s23, s23, 5')
    k('s_and_b32 s22, s22, 1')
    k('s_lshl_b32 s22, s22, 3')
    k('s_add_u32 s22, s22, s23')
    k(f'v_bfe_u32 v{vt}, v2, 4, 1')
    k(f'v_lshlrev_b32 v{vt}, 2, v{vt}')
    k(f'v_bfe_u32 v{vt+1}, v2, 5, 1')
    k(f'v_lshl_add_u32 v{vt}, v{vt+1}, 1, v{vt}')
    k(f'v_bfe_u32 v{vt+1}, v2, 3, 1')
    k(f'v_add3_u32 v{vt}, v{vt}, v{vt+1}, s22')
    k(f'v_lshlrev_b32 v{vt}, 13, v{vt}')
    k('s_lshl_b32 s22, s19, 9')
    k(f'v_add_u32 v{vt}, s22, v{vt}')
    k(f'v_and_b32 v{vt+1}, 7, v2')
    k(f'v_xor_b32 v{vt+1}, v{vt+1}, v{vG}')
    k(f'v_lshl_add_u32 v{vC}, v{vt+1}, 4, v{vt}')
    k(f'v_xor_b32 v{vt+1}, 4, v{vt+1}')
    k(f'v_lshl_add_u32 v{vC+1}, v{vt+1}, 4, v{vt}')
    k(f'v_add_u32 v{vC+1}, {16*8192}, v{vC+1}')
    k(f'v_lshrrev_b32 v{vt}, 1, v{vI}')
    k(f'v_xor_b32 v{vt}, v{vt}, v{vG}')
    k(f'v_lshlrev_b32 v{vt}, 4, v{vt}')
    k(f'v_lshl_add_u32 v{vt}, v{vI}, 7, v{vt}')
    k(f'v_add_u32 v{vCA}, 28672, v{vt}')
    k(f'v_xor_b32 v{vCA+1}, 64, v{vCA}')
    def rdA(o, es):
        for ct in range(7): k(f'ds_read_b128 {vr(o+4*ct,4)}, v{vCAs+es} offset:{ct*2048}')
    rdA.n = 7
    def dmaA(sb, j):
        for hq in range(2):
            k(f's_add_u32 s34, s32, {sb + hq*1024}')
            k('s_mov_b32 m0, s34')
            k('s_nop 0')
            k.vm(f'buffer_load_dwordx4 v{vC+hq}, s[12:15], s35 offen lds', j)
    body(128, rdA, dmaA)
    k(f's_mov_b32 s22, {f32bits(math.log2(math.e)/16):#x}')
    k(f's_mov_b32 s23, {WTA}')
    k('s_branch P_gepi')
    k.label('P_gB')
    k(f's_mov_b32 s22, {(1<<32)//14 + 1}')
    k(f'v_mul_hi_u32 v{vt}, v0, s22')
    k(f'v_mul_u32_u24 v{vt+1}, 14, v{vt}')
    k(f'v_sub_u32 v{vt+1}, v0, v{vt+1}')
    k(f'v_mul_u32_u24 v{vt}, 896, v{vt}')
    k(f'v_lshl_add_u32 v{vt}, v{vt+1}, 4, v{vt}')
    k('s_mul_i32 s22, s19, 229376')
    k('s_mul_i32 s23, s20, 224')
    k('s_add_u32 s22, s22, s23')
    k(f'v_add_u32 v{vC}, s22, v{vt}')
    k(f'v_add_u32 v{vC+1}, {32*896}, v{vC}')
    k('s_lshl_b32 s32, s16, 10')
    k('s_add_u32 s32, s32, 28672')
    k(f'v_bfe_u32 v{vt}, v2, 2, 2')
    k(f'v_lshl_add_u32 v{vt}, v{vG}, 3, v{vt}')
    k(f'v_mul_u32_u24 v{vt}, 224, v{vt}')
    k(f'v_and_b32 v{vt+1}, 3, v2')
    k(f'v_lshl_add_u32 v{vt}, v{vt+1}, 3, v{vt}')
    k(f'v_add_u32 v{vCA}, 28672, v{vt}')
    k(f'v_add_u32 v{vCA+1}, 7168, v{vCA}')
    def rdB(o, es):
        for ct in range(7):
            for hh in range(2): k(f'ds_read_b64_tr_b16 {vr(o+4*ct+2*hh,2)}, v{vCAs+es} offset:{ct*32+hh*896}')
    rdB.n = 14
    def dmaB(sb, j):
        for hq in range(2):
            k(f's_add_u32 s34, s32, {sb + hq*7168}')
            k('s_mov_b32 m0, s34')
            k('s_nop 0')
            k.vm(f'buffer_load_dwordx4 v{vC+hq}, s[12:15], s35 offen lds', j)
    body(64*896, rdB, dmaB)
    k('s_mov_b32 s22, 1.0')
    k(f's_mov_b32 s23, {WTB}')
    k.label('P_gepi')
    if tl: k('s_memrealtime s[52:53]')
    k('s_mul_i32 s24, s19, 28')
    k('s_mul_i32 s25, s20, 7')
    k('s_add_u32 s24, s24, s25')
    k('s_mul_i32 s24, s24, 14')
    k('s_add_u32 s24, s24, s21')
    k('s_lshl_b32 s24, s24, 10')
    k('s_add_u32 s24, s24, s23')
    k('s_mov_b32 s23, s22')
    for ct in range(7):
        d = vOp + 4*ct
        for T in range(2):
            a = vAcc + 28*T + 4*ct
            k(f'v_pk_mul_f32 {vr(a,2)}, {vr(a,2)}, s[22:23]')
            k(f'v_pk_mul_f32 {vr(a+2,2)}, {vr(a+2,2)}, s[22:23]')
            k(f'v_cvt_pk_bf16_f32 v{d+2*T}, v{a}, v{a+1}')
            k(f'v_cvt_pk_bf16_f32 v{d+2*T+1}, v{a+2}, v{a+3}')
        k(f'buffer_store_dwordx4 {vr(d,4)}, v{vL16}, {WS}, s24 offen ' + OPT['k1st'])
        k('s_add_u32 s24, s24, 14336')
    if tl:
        k('s_waitcnt vmcnt(0)')
        k('s_memrealtime s[42:43]')
        k('s_lshl_b32 s44, s2, 5')
        k(f's_add_u32 s44, s44, {STAMP + 0xE0000}')
        k('s_waitcnt lgkmcnt(0)')
        k('v_mov_b32 v10, s40'); k('v_mov_b32 v11, s42'); k('v_mov_b32 v12, s46'); k('v_mov_b32 v13, s48')
        k('v_mov_b32 v14, s50'); k('v_mov_b32 v15, s52')
        k(f'buffer_store_dwordx4 v[10:13], off, {WS}, s44')
        k(f'buffer_store_dwordx2 v[14:15], off, {WS}, s44 offset:16')
    k('s_endpgm')
    k.label('P_ln')
    srd(k, 8, 0, 1835008); srd(k, 12, 64, 896)
    srd(k, 28, 8, 7168)
    k('s_mov_b32 s17, s2')
    k('v_lshrrev_b32 v3, 3, v2')
    k('s_lshl_b32 s18, s17, 3')
    k('v_add_u32 v3, s18, v3')
    k('v_and_b32 v4, 7, v2')
    k('v_mul_u32_u24 v5, 896, v3')
    k('v_lshl_add_u32 v5, v4, 4, v5')
    k('v_lshlrev_b32 v6, 4, v4')
    vX, vW, vF = 16, 44, 72
    k('s_waitcnt lgkmcnt(0)')
    k('s_and_b32 s5, s5, 0xffff'); k('s_and_b32 s9, s9, 0xffff'); k('s_and_b32 s13, s13, 0xffff')
    for i in range(7): k(f'buffer_load_dwordx4 {vr(vX+4*i,4)}, v5, s[8:11], 0 offen offset:{i*128}')
    for i in range(7): k(f'buffer_load_dwordx4 {vr(vW+4*i,4)}, v6, s[12:15], 0 offen offset:{i*128}')
    k('v_lshrrev_b32 v7, 4, v3')
    k('v_mul_u32_u24 v7, 14336, v7')
    k('v_and_b32 v8, 15, v3')
    k('v_lshl_add_u32 v7, v8, 4, v7')
    k('v_lshrrev_b32 v8, 2, v4')
    k('v_lshl_add_u32 v7, v8, 10, v7')
    k('v_and_b32 v8, 3, v4')
    k('v_lshl_add_u32 v9, v8, 8, v7')
    k('v_bfe_u32 v8, v4, 1, 1')
    k('v_lshl_add_u32 v10, v8, 9, v7')
    k('v_and_b32 v8, 1, v4')
    k('v_lshl_add_u32 v10, v8, 3, v10')
    k('s_mov_b32 s20, 0xffff0000')
    k('s_and_b32 s29, s29, 0xffff')
    k('v_bfe_u32 v12, v2, 2, 3')
    k('v_mul_u32_u24 v12, 896, v12')
    k('v_and_b32 v13, 3, v2')
    k('v_lshl_add_u32 v12, v13, 3, v12')
    k('v_lshrrev_b32 v13, 5, v2')
    k('v_lshl_add_u32 v12, v13, 2, v12')
    k('s_lshl_b32 s21, s2, 5')
    k('buffer_load_dword v160, v12, s[28:31], s21 offen')
    k('s_barrier')
    def fills():
        k('s_mov_b32 s32, s4'); k('s_mov_b32 s33, s5'); k(f's_mov_b32 s34, {SENT_END - MEM_S}'); k('s_mov_b32 s35, 0x20000')
        k('s_mov_b32 s36, s4'); k('s_mov_b32 s37, s5'); k(f's_mov_b32 s38, {FLG + FLG_SZ}'); k('s_mov_b32 s39, 0x20000')
        k('v_lshlrev_b32 v11, 4, v2')
        NF = -(-(SENT_END - MEM_S - MEM - MEM_T) // (256*1024))
        k(f's_mul_i32 s21, s2, {NF*1024}')
        k(f's_add_u32 s21, s21, {MEM + MEM_T}')
        for r in range(4): k(f'v_mov_b32 v{164+r}, -1')
        for r in range(4): k(f'v_mov_b32 v{168+r}, 0')
        for r in range(NF):
            k(f'buffer_store_dwordx4 v[164:167], v11, s[32:35], s21 offen offset:{(r&3)*1024} ' + OPT['k1ln'])
            if (r&3) == 3: k('s_add_u32 s21, s21, 4096')
        k(f's_mov_b32 s34, {UM + 64*UM_SEG}')
        k('s_lshl_b32 s21, s2, 10')
        k(f's_add_u32 s21, s21, {UM + 63*UM_SEG}')
        k('buffer_store_dwordx4 v[164:167], v11, s[32:35], s21 offen ' + OPT['k1ln'])
        k('s_lshl_b32 s21, s2, 10')
        k(f's_add_u32 s21, s21, {FLG}')
        k('buffer_store_dwordx4 v[168:171], v11, s[36:39], s21 offen ' + OPT['k1ln'])
    NFG = -(-(SENT_END - MEM_S - MEM - MEM_T) // (256*1024))
    late = OPT['k1late']
    if not late: fills()
    k(f's_waitcnt vmcnt({8 if late else 10 + NFG})')
    for d in range(28):
        k(f'v_lshlrev_b32 v{vF+2*d}, 16, v{vX+d}')
        k(f'v_and_b32 v{vF+2*d+1}, s20, v{vX+d}')
    def red8(v):
        for ctl in ('quad_perm:[1,0,3,2]', 'quad_perm:[2,3,0,1]', 'row_half_mirror'):
            k.nop(2)
            k(f'v_add_f32_dpp v{v}, v{v}, v{v} {ctl} row_mask:0xf bank_mask:0xf')
    def rbf(v):
        k(f'v_cvt_pk_bf16_f32 v{v}, v{v}, v{v}')
        k(f'v_and_b32 v{v}, s20, v{v}')
    k(f'v_pk_add_f32 v[12:13], {vr(vF,2)}, {vr(vF+2,2)}')
    for d in range(2, 28): k(f'v_pk_add_f32 v[12:13], v[12:13], {vr(vF+2*d,2)}')
    k('v_add_f32 v12, v12, v13')
    k('s_barrier')
    red8(12)
    k(f's_mov_b32 s21, {f32bits(1/448):#x}')
    k('v_mul_f32 v12, s21, v12')
    k('v_mov_b32 v14, 0'); k('v_mov_b32 v15, 0')
    for d in range(28):
        k(f'v_pk_add_f32 {vr(vX,2)}, {vr(vF+2*d,2)}, v[12:13] op_sel_hi:[1,0] neg_lo:[0,1] neg_hi:[0,1]')
        k(f'v_pk_fma_f32 v[14:15], {vr(vX,2)}, {vr(vX,2)}, v[14:15]')
    k('v_add_f32 v14, v14, v15')
    red8(14)
    k('v_mul_f32 v14, s21, v14')
    rbf(14)
    k(f'v_add_f32 v14, {f32bits(1e-5):#x}, v14')
    rbf(14)
    k('v_sqrt_f32 v14, v14')
    k.nop(1)
    rbf(14)
    k('v_rcp_f32 v15, v14')
    rbf(12)
    k(f's_waitcnt vmcnt({0 if late else 2 + NFG})')
    k('v_mov_b32 v128, 0'); k('v_mov_b32 v129, 0')
    vO, vS = vX, 132
    for d in range(28):
        f = vF + 2*d
        k(f'v_pk_add_f32 {vr(f,2)}, {vr(f,2)}, v[12:13] op_sel_hi:[1,0] neg_lo:[0,1] neg_hi:[0,1]')
        k(f'v_cvt_pk_bf16_f32 v130, v{f}, v{f+1}')
        k(f'v_lshlrev_b32 v{f}, 16, v130')
        k(f'v_and_b32 v{f+1}, s20, v130')
        k(f'v_pk_mul_f32 v[130:131], {vr(f,2)}, v[14:15] op_sel:[0,1] op_sel_hi:[1,1]')
        k(f'v_pk_fma_f32 {vr(f,2)}, v[130:131], v[14:15], {vr(f,2)} op_sel_hi:[1,0,1] neg_lo:[1,0,0] neg_hi:[1,0,0]')
        k(f'v_pk_fma_f32 v[130:131], {vr(f,2)}, v[14:15], v[130:131] op_sel:[0,1,0] op_sel_hi:[1,1,1]')
        k(f'v_cvt_pk_bf16_f32 v{vO+d}, v130, v131')
        so = vS + 4*(d>>2) + {0:0, 1:2, 2:1, 3:3}[d&3]
        k(f'v_mov_b32 v{so}, v{vO+d}')
        k(f'v_dot2_f32_bf16 v{128+(d&1)}, v{vO+d}, v{vW+d}, v{128+(d&1)}')
        if d in (3, 15): k('s_barrier')
    k(f's_mov_b32 s23, {XNF}'); k(f's_mov_b32 s24, {XNS}')
    for i in range(7):
        k(f'buffer_store_dwordx4 {vr(vO+4*i,4)}, v9, {WS}, s23 offen offset:{(i&1)*2048} ' + OPT['k1ln'])
        k(f'buffer_store_dwordx2 {vr(vS+4*i,2)}, v10, {WS}, s24 offen offset:{(i&1)*2048} ' + OPT['k1ln'])
        k(f'buffer_store_dwordx2 {vr(vS+4*i+2,2)}, v10, {WS}, s24 offen offset:{(i&1)*2048+256} ' + OPT['k1ln'])
        if i & 1:
            k('s_add_u32 s23, s23, 4096'); k('s_add_u32 s24, s24, 4096')
    if late: fills()
    k.nop(2)
    k('v_add_f32 v128, v128, v129')
    red8(128)
    rbf(128)
    k('v_lshlrev_b32 v3, 2, v3')
    k(f's_mov_b32 s22, {RR}')
    k(f'buffer_store_dword v128, v3, {WS}, s22 offen ' + OPT['k1ln'])
    if tl:
        k('s_waitcnt vmcnt(0)')
        k('s_memrealtime s[42:43]')
        k('s_lshl_b32 s44, s2, 5')
        k(f's_add_u32 s44, s44, {STAMP + 0xE0000}')
        k('s_waitcnt lgkmcnt(0)')
        k('v_mov_b32 v10, s42')
        k(f'buffer_store_dword v10, off, {WS}, s44 offset:24')
    k('s_cmp_ge_u32 s2, 28')
    k('s_cbranch_scc1 P_exit')
    k('v_min_u32 v160, -2, v160')
    k('v_lshlrev_b32 v11, 2, v2')
    k('s_lshl_b32 s21, s2, 8')
    k(f's_add_u32 s22, s21, {MEM}')
    k(f's_add_u32 s21, s21, {SENT_END - MEM_S}')
    for r in range(NREP):
        k(f'buffer_store_dword v160, v11, {WS}, s22 offen ' + OPT['k1ln'])
        k(f's_add_u32 s22, s22, {MEM_S}')
    k(f'buffer_store_dword v160, v11, {WS}, s21 offen ' + OPT['k1ln'])
    k.label('P_exit')
    k('s_endpgm')
    return k
```

```python
from chain import *
from prep import srd, f32bits
WS = 's[4:7]'
sH, sBLK, sSEG, sQT, sCG, sJ = 60, 61, 62, 63, 64, 65
vLn, vL16 = 1, 2

def wait_flag(k, off_sgpr, target, vT, name='Lwf', sleep=8):
    lp, dn = k.newlabel(name), k.newlabel(name + 'd')
    k(f's_mov_b32 s{sCNT}, 0')
    k.label(lp)
    k(f'buffer_load_dword v{vT}, off, {WS}, s{off_sgpr} sc1')
    k(f's_add_u32 s{sCNT}, s{sCNT}, 1')
    k(f's_cmp_gt_u32 s{sCNT}, s{sT2}')
    k('s_cbranch_scc1 L_fail')
    k('s_waitcnt vmcnt(0)')
    k(f'v_cmp_le_u32 vcc, {target}, v{vT}')
    k(f's_cbranch_vccnz {dn}')
    k(f's_sleep {sleep}')
    k(f's_branch {lp}')
    k.label(dn)

def wait1(k, off_sgpr, cond, vT, sleep, fast=None):
    lp, dn, l2 = k.newlabel('Lw1'), k.newlabel('Lw1d'), k.newlabel('Lw1f')
    k(f's_cmp_lg_u32 s{sWAVE}, 0')
    k(f's_cbranch_scc1 {dn}')
    k(f's_mov_b32 s{sCNT}, 0')
    k.label(lp)
    k(f'buffer_load_dword v{vT}, off, {WS}, s{off_sgpr} sc1')
    k(f's_add_u32 s{sCNT}, s{sCNT}, 1')
    k(f's_cmp_gt_u32 s{sCNT}, s{sT2}')
    k('s_cbranch_scc1 L_fail')
    k('s_waitcnt vmcnt(0)')
    k(cond)
    k(f's_cbranch_vccnz {dn}')
    if fast:
        k('s_sleep 2')
        k(fast)
        k(f's_cbranch_scc1 {lp}')
    k(f's_sleep {sleep}')
    k(f's_branch {lp}')
    k.label(dn)
    k('s_barrier')

def signal(k, off_sgpr, vT, val=1):
    dn = k.newlabel('Lsg')
    k('s_waitcnt vmcnt(0)')
    k('s_barrier')
    k(f's_cmp_lg_u32 s{sWAVE}, 0')
    k(f's_cbranch_scc1 {dn}')
    k('s_mov_b64 exec, 1')
    k(f'v_mov_b32 v{vT}, {val}')
    k(f'buffer_atomic_add v{vT}, off, {WS}, s{off_sgpr}')
    k('s_mov_b64 exec, -1')
    k.label(dn)

TL = [False]
ACC0 = 32
def acc(lt, tt): return ACC0 + 4*(lt*8 + tt)

def gemm(k, wbase, swap, ntt=8):
    vW = 8
    vXa = 15
    k.vmq = []
    nst = ntt // 4
    k(f's_mul_i32 s41, s{sWAVE}, {14336*nst}')
    k(f's_mul_i32 s40, s{sBLK}, {14336*ntt}')
    k(f's_add_u32 s40, s40, s41')
    k(f's_add_u32 s40, s40, {XNF}')
    k(f's_mul_i32 s42, s{sH}, {28*14336}')
    k(f's_mul_i32 s43, s{sWAVE}, {7*14336}')
    k(f's_add_u32 s42, s42, s43')
    k(f's_add_u32 s42, s42, {wbase}')
    for j in range(14):
        k(f's_add_u32 s{76+j}, s59, {j}')
        k(f's_sub_u32 s43, s{76+j}, 14')
        k(f's_cmp_ge_u32 s{76+j}, 14')
        k(f's_cselect_b32 s{76+j}, s43, s{76+j}')
        k(f's_lshl_b32 s{76+j}, s{76+j}, 10')
    for lt in range(7): k(f'v_add_u32 v{vW+lt}, {lt*14336}, v{vL16}')
    k(f'v_add_u32 v17, 14336, v{vL16}')
    k('s_barrier')
    def stx(j, t):
        k(f's_add_u32 s43, s41, s{76+j}')
        if t: k('s_add_u32 s43, s43, 14336')
        k('s_mov_b32 m0, s43')
        k(f's_add_u32 s44, s40, s{76+j}')
        k.vm(f'buffer_load_dwordx4 v{17 if t else vL16}, {WS}, s44 offen lds', f'x{j}')
    def ldw(j, lt):
        if lt == 0: k(f's_add_u32 s45, s42, s{76+j}')
        k.vm(f'buffer_load_dwordx4 {ar(28*(j%3)+4*lt,4)}, v{vW+lt}, {WS}, s45 offen', f'w{j}')
    def xaddr(j):
        k(f'v_add_u32 v{vXa}, s{76+j}, v{vL16}')
        k(f'v_add_u32 v{vXa+1}, 57344, v{vXa}')
    def ldx(j, tt): k(f'ds_read_b128 {ar(84+32*(j&1)+4*tt,4)}, v{vXa + (tt>>2)} offset:{(tt&3)*14336}')
    for j in range(2):
        for t in range(nst): stx(j, t)
        for lt in range(7): ldw(j, lt)
    for j in (2, 3):
        for t in range(nst): stx(j, t)
    xaddr(0)
    k.wvm('x0')
    k('s_barrier')
    if TL[0] and not swap:
        tstamp(k, 57, 12, 18); k.vmq.append('st')
    for tt in range(ntt): ldx(0, tt)
    for j in range(14):
        if j + 1 < 14: xaddr(j+1)
        k.wvm(f'w{j}', f'x{j+1}', extra='lgkmcnt(0)')
        if j + 1 < 14: k('s_barrier')
        for tt in range(ntt):
            for lt in range(7):
                x, w = ar(84+32*(j&1)+4*tt,4), ar(28*(j%3)+4*lt,4)
                a, b = (w, x) if swap else (x, w)
                c = '0' if j == 0 else vr(acc(lt,tt),4)
                k(f'v_mfma_f32_16x16x32_bf16 {vr(acc(lt,tt),4)}, {a}, {b}, {c}')
                if lt == 1 and j + 1 < 14: ldx(j+1, tt)
                if ntt == 8:
                    if lt == 3 and tt < 2 and j + 4 < 14: stx(j+4, tt)
                    if lt == 5 and tt >= 1 and j + 2 < 14: ldw(j+2, tt-1)
                else:
                    if lt == 3 and tt == 0 and j + 4 < 14: stx(j+4, 0)
                    if lt in (3, 5) and (tt, lt) != (0, 3) and j + 2 < 14: ldw(j+2, 2*tt + (lt == 5) - 1)

def task_U(k, half=False):
    nq = 2 if half else 4
    k.label('T_Uh' if half else 'T_U')
    k(f's_mul_i32 s59, s{sBLK}, 7' if half else f's_min_u32 s59, s{sBLK}, 13')
    gemm(k, WTB, False, 2*nq)
    if TL[0]: tstamp(k, 57, 8, 16)
    k(f's_mul_i32 s40, s{sBLK}, {nq*UF_SEG}')
    k(f's_lshl_b32 s41, s{sH}, 11')
    k(f's_add_u32 s40, s40, s41')
    k(f's_add_u32 s40, s40, {UF}')
    k(f's_mul_i32 s41, s{sWAVE}, 7')
    for lt in range(7):
        k(f's_add_u32 s42, s41, {lt}')
        k(f's_lshr_b32 s43, s42, 1')
        k(f's_lshl_b32 s43, s43, 15')
        k(f's_and_b32 s42, s42, 1')
        k(f's_lshl_b32 s42, s42, 10')
        k(f's_add_u32 s{44+lt}, s40, s43')
        k(f's_add_u32 s{44+lt}, s{44+lt}, s42')
    if OPT['uwin'] and not half:
        lw = k.newlabel('Luw')
        k(f"s_cmp_lt_u32 s{sBLK}, {OPT['uwin']}")
        k(f's_cbranch_scc1 {lw}')
        k(f's_lshl_b32 s40, s{sBLK}, 7')
        k(f"s_add_u32 s40, s40, {flag(F_U) - 128*OPT['uwin']}")
        wait1(k, 40, 'v_cmp_le_u32 vcc, 32, v16', 16, 8)
        k.label(lw)
    for q in range(nq):
        for lt in range(7):
            a, b = acc(lt, 2*q), acc(lt, 2*q+1)
            k(f'v_cvt_pk_bf16_f32 v{a}, v{a}, v{a+1}')
            k(f'v_cvt_pk_bf16_f32 v{a+1}, v{a+2}, v{a+3}')
            k(f'v_cvt_pk_bf16_f32 v{a+2}, v{b}, v{b+1}')
            k(f'v_cvt_pk_bf16_f32 v{a+3}, v{b+2}, v{b+3}')
            k(f'buffer_store_dwordx4 {vr(a,4)}, v{vL16}, {WS}, s{44+lt} offen ' + OPT['ust'])
            k(f's_add_u32 s{44+lt}, s{44+lt}, {UF_SEG}')
    if half: k(f's_mov_b32 s40, {flag(F_U)}')
    else:
        k(f's_lshl_b32 s40, s{sBLK}, 7')
        k(f's_add_u32 s40, s40, {flag(F_U)}')
    signal(k, 40, 3, 1 if half else 2)
    k('s_branch W_next')

def xlane_red(k, op, m, t):
    for sw in ('v_permlane16_swap_b32', 'v_permlane32_swap_b32'):
        k(f'v_mov_b32 v{t}, v{m}')
        k.nop(2)
        k(f'{sw} v{m}, v{t}')
        k(f'{op} v{m}, v{m}, v{t}')

def task_P(k):
    k.label('T_P')
    k(f's_min_u32 s59, s{sBLK}, 13')
    def ptoff():
        k(f's_lshl_b32 s{sSEG}, s{sBLK}, 2')
        k(f's_add_u32 s{sSEG}, s{sSEG}, s{sWAVE}')
        k(f's_mul_i32 s40, s{sSEG}, {PT_SEG}')
        k(f's_add_u32 s40, s40, {PT}')
        k(f's_lshl_b32 s41, s{sH}, 11')
        k(f's_add_u32 s41, s41, s40')
        k(f's_lshr_b32 s42, s{sH}, 1')
        k(f's_lshl_b32 s42, s42, 11')
        k(f's_and_b32 s43, s{sH}, 1')
        k(f's_lshl_b32 s43, s43, 2')
        k(f's_add_u32 s42, s42, s43')
        k(f's_add_u32 s42, s42, s40')
        k(f's_add_u32 s42, s42, 32768')
    ptoff()
    for r in range(4): k(f'v_mov_b32 v{20+r}, -1')
    for qt in range(2):
        k(f'buffer_store_dwordx4 v[20:23], v{vL16}, {WS}, s41 offen offset:{qt*1024} sc1')
        k(f'buffer_store_dword v20, v{vL16}, {WS}, s42 offen offset:{qt*1024} sc1')
        k(f'buffer_store_dword v20, v{vL16}, {WS}, s42 offen offset:{qt*1024+8} sc1')
    gemm(k, WTA, True)
    k(f's_lshl_b32 s40, s{sBLK}, 7')
    k(f's_add_u32 s40, s40, {flag(F_P)}')
    signal(k, 40, 3)
    vE, vO, vG, vI, vMK, vT = 16, 17, 18, 19, 20, 21
    k(f's_mul_i32 s40, s{sWAVE}, 7')
    k(f's_lshr_b32 s40, s40, 1')
    k(f's_lshl_b32 s40, s40, 10')
    k(f's_and_b32 s41, s{sWAVE}, 1')
    k(f's_lshl_b32 s42, s41, 3')
    k(f's_add_u32 s42, s42, s40')
    k(f's_mul_i32 s43, s41, 1016')
    k(f's_add_u32 s43, s43, 8')
    k(f's_add_u32 s43, s43, s40')
    k(f'v_add_u32 v{vE}, s42, v{vL16}')
    k(f'v_add_u32 v{vO}, s43, v{vL16}')
    k(f'v_add_u32 v{vT}, 57344, v{vE}')
    k(f'v_add_u32 v{vT+1}, 57344, v{vO}')
    k('s_barrier')
    for tt in range(8):
        for lt in range(7):
            a = acc(lt, tt)
            k(f'v_cvt_pk_bf16_f32 v{a}, v{a}, v{a+1}')
            k(f'v_cvt_pk_bf16_f32 v{a+1}, v{a+2}, v{a+3}')
            ad = (vE if lt % 2 == 0 else vO) if tt < 4 else (vT if lt % 2 == 0 else vT+1)
            k(f'ds_write_b64 v{ad}, {vr(a,2)} offset:{(tt&3)*14336 + (lt>>1)*1024}')
    k(f's_lshl_b32 s{sSEG}, s{sBLK}, 2')
    k(f's_add_u32 s{sSEG}, s{sSEG}, s{sWAVE}')
    k(f's_mul_i32 s40, s{sSEG}, 28672')
    k(f's_add_u32 s40, s40, {XNS}')
    vKT, vKM, vS = 32, 144, 200
    k('s_waitcnt lgkmcnt(0)')
    for f in range(28):
        k(f'buffer_load_dwordx4 {vr(vKT+4*f,4)}, v{vL16}, {WS}, s40 offen offset:{(f&3)*1024}')
        if (f&3) == 3: k('s_add_u32 s40, s40, 4096')
    k('s_barrier')
    k(f's_mul_i32 s41, s{sWAVE}, 28672')
    k(f'v_add_u32 v{vT}, s41, v{vL16}')
    for f in range(28): k(f'ds_read_b128 {ar(4*f,4)}, v{vT} offset:{f*1024}')
    k(f'v_lshrrev_b32 v{vG}, 4, v{vLn}')
    k(f'v_and_b32 v{vI}, 15, v{vLn}')
    k(f'v_lshrrev_b32 v{vMK}, 1, v{vG}')
    k(f'v_lshlrev_b32 v{vMK}, 8, v{vMK}')
    k(f'v_and_b32 v{vT}, 7, v{vI}')
    k(f'v_lshl_add_u32 v{vMK}, v{vT}, 4, v{vMK}')
    k(f'v_and_b32 v{vT}, 1, v{vG}')
    k(f'v_lshl_add_u32 v{vMK}, v{vT}, 7, v{vMK}')
    k(f'v_lshlrev_b32 v{vT}, 2, v{vG}')
    for r in range(4):
        k(f'v_cmp_gt_u32 s[{44+2*r}:{45+2*r}], v{vT}, v{vI}')
        if r < 3: k(f'v_add_u32 v{vT}, 1, v{vT}')
    k(f'v_cmp_gt_u32 s[52:53], 2, v{vG}')
    St = {(1,0): vS, (1,1): vS+4, (2,1): vS+8, (0,0): vS+12, (0,1): vS+16}
    k('s_waitcnt vmcnt(0) lgkmcnt(0)')
    for ks in range(14):
        for (kt, qt) in ((1,0), (1,1), (2,1)):
            c = '0' if ks == 0 else vr(St[kt,qt],4)
            k(f'v_mfma_f32_16x16x32_bf16 {vr(St[kt,qt],4)}, {vr(vKT+56*(kt-1)+4*ks,4)}, {ar(56*qt+4*ks,4)}, {c}')
    if TL[0]: tstamp(k, 57, 8, vT)
    k(f's_add_u32 s40, s{sSEG}, 63')
    k(f's_and_b32 s40, s40, 63')
    k(f's_mul_i32 s40, s40, {MEM_S}')
    k(f's_add_u32 s40, s40, {MEMX}')
    k(f's_add_u32 s41, s40, 4096')
    lp, dn = k.newlabel('Lpm'), k.newlabel('Lpd')
    k(f's_mov_b32 s{sCNT}, 0')
    k.label(lp)
    for ks in range(14):
        k(f'buffer_load_dwordx4 {vr(vKM+4*ks,4)}, v{vMK}, {WS}, s{40 if ks < 8 else 41} offen offset:{(ks&7)*512} sc1')
    k(f's_add_u32 s{sCNT}, s{sCNT}, 1')
    k(f's_cmp_gt_u32 s{sCNT}, s{sT2}')
    k('s_cbranch_scc1 L_fail')
    k('s_waitcnt vmcnt(0)')
    k(f'v_max3_u32 v{vT}, v{vKM}, v{vKM+1}, v{vKM+2}')
    for r in range(3, 55, 2): k(f'v_max3_u32 v{vT}, v{vT}, v{vKM+r}, v{vKM+r+1}')
    k(f'v_max_u32 v{vT}, v{vT}, v{vKM+55}')
    k(f'v_cmp_eq_u32 vcc, -1, v{vT}')
    k(f's_cbranch_vccz {dn}')
    l2 = k.newlabel('Lpl')
    k.label(l2)
    k('s_sleep 2')
    k(f's_cmp_ge_u32 s{sSEG}, 60')
    k(f's_cbranch_scc1 {l2}f')
    k(f"s_sleep {OPT['msl']}")
    k.label(l2 + 'f')
    k(f'buffer_load_dword v{vT}, v{vMK}, {WS}, s41 offen offset:2560 sc1')
    k(f's_add_u32 s{sCNT}, s{sCNT}, 1')
    k(f's_cmp_gt_u32 s{sCNT}, s{sT2}')
    k('s_cbranch_scc1 L_fail')
    k('s_waitcnt vmcnt(0)')
    k(f'v_cmp_eq_u32 vcc, -1, v{vT}')
    k(f's_cbranch_vccnz {l2}')
    k(f's_branch {lp}')
    k.label(dn)
    if TL[0]: tstamp(k, 57, 12, vT)
    for ks in range(14):
        for qt in range(2):
            c = '0' if ks == 0 else vr(St[0,qt],4)
            k(f'v_mfma_f32_16x16x32_bf16 {vr(St[0,qt],4)}, {vr(vKM+4*ks,4)}, {ar(56*qt+4*ks,4)}, {c}')
    ptoff()
    k(f'v_mov_b32 v{vT+2}, 0xff800000')
    k.nop(2)
    for d in ((1,0), (2,1)):
        for r in range(4):
            k(f'v_cndmask_b32 v{St[d]+r}, v{St[d]+r}, v{vT+2}, s[{44+2*r}:{45+2*r}]')
    for qt in range(2):
        tiles = [St[0,qt], St[1,qt]] + ([St[2,1]] if qt else [])
        regs = [t + r for t in tiles for r in range(4)]
        m, t, l = 24, 26, 28
        k(f'v_max3_f32 v{m}, v{regs[0]}, v{regs[1]}, v{regs[2]}')
        for i in range(3, len(regs) - 1, 2): k(f'v_max3_f32 v{m}, v{m}, v{regs[i]}, v{regs[i+1]}')
        k(f'v_max_f32 v{m}, v{m}, v{regs[-1]}')
        xlane_red(k, 'v_max_f32', m, t)
        for i in range(0, len(regs), 2):
            k(f'v_pk_add_f32 {vr(regs[i],2)}, {vr(regs[i],2)}, {vr(m,2)} op_sel_hi:[1,0] neg_lo:[0,1] neg_hi:[0,1]')
        for r in regs: k(f'v_exp_f32 v{r}, v{r}')
        k.nop(1)
        k(f'v_pk_add_f32 {vr(l,2)}, {vr(regs[0],2)}, {vr(regs[2],2)}')
        k(f'v_add_f32 v{l}, v{l}, v{l+1}')
        k(f'v_cndmask_b32 v{l}, 0, v{l}, s[52:53]')
        k(f'v_mov_b32 v{l+1}, 0')
        for i in range(4, len(regs), 2): k(f'v_pk_add_f32 {vr(l,2)}, {vr(l,2)}, {vr(regs[i],2)}')
        k(f'v_add_f32 v{l}, v{l}, v{l+1}')
        xlane_red(k, 'v_add_f32', l, t)
        k(f'v_rcp_f32 v{l}, v{l}')
        k.nop(1)
        for i in range(0, len(regs), 2):
            k(f'v_pk_mul_f32 {vr(regs[i],2)}, {vr(regs[i],2)}, {vr(l,2)} op_sel_hi:[1,0]')
        o = 220 + 8*qt
        k(f'v_cvt_pk_bf16_f32 v{o}, v{regs[4]}, v{regs[5]}')
        k(f'v_cvt_pk_bf16_f32 v{o+1}, v{regs[6]}, v{regs[7]}')
        if qt:
            k(f'v_cvt_pk_bf16_f32 v{o+2}, v{regs[8]}, v{regs[9]}')
            k(f'v_cvt_pk_bf16_f32 v{o+3}, v{regs[10]}, v{regs[11]}')
        else:
            k(f'v_mov_b64 {vr(o+2,2)}, 0')
        k(f'v_cvt_pk_bf16_f32 v{o+4}, v{regs[0]}, v{regs[1]}')
        k(f'v_cvt_pk_bf16_f32 v{o+5}, v{regs[2]}, v{regs[3]}')
        for r in range(6):
            if qt or r not in (2, 3): k(f'v_min_u32 v{o+r}, -2, v{o+r}')
        k(f'buffer_store_dwordx4 {vr(o,4)}, v{vL16}, {WS}, s41 offen offset:{qt*1024} sc1')
        k(f'buffer_store_dword v{o+4}, v{vL16}, {WS}, s42 offen offset:{qt*1024} sc1')
        k(f'buffer_store_dword v{o+5}, v{vL16}, {WS}, s42 offen offset:{qt*1024+8} sc1')
    k('s_branch W_next')

def rbf(k, v, sMaskHi):
    k(f'v_cvt_pk_bf16_f32 v{v}, v{v}, v{v}')
    k(f'v_and_b32 v{v}, s{sMaskHi}, v{v}')

def task_V(k):
    k.label('T_V')
    vU, vUM, vP, vD, vT = 32, 96, 128, 152, 16
    k(f's_lshr_b32 s{sBLK}, s{sSEG}, 2')
    k(f's_lshl_b32 s40, s{sBLK}, 7')
    k(f's_add_u32 s40, s40, {flag(F_U)}')
    wait1(k, 40, f'v_cmp_le_u32 vcc, 32, v{vT}', vT, 16)
    k(f's_mul_i32 s40, s{sSEG}, {UF_SEG}')
    k(f's_lshl_b32 s41, s{sCG}, 16')
    k(f's_add_u32 s40, s40, s41')
    k(f's_lshl_b32 s41, s{sWAVE}, 13')
    k(f's_add_u32 s40, s40, s41')
    k(f's_add_u32 s40, s40, {UF}')
    for bb in range(2):
        for hp in range(2):
            k(f's_add_u32 s41, s40, {bb*32768 + hp*4096}')
            for f in range(4):
                hh, T = 2*hp + (f>>1), f&1
                k(f'buffer_load_dwordx4 {vr(vU+16*(2*bb+T)+4*hh,4)}, v{vL16}, {WS}, s41 offen offset:{f*1024} sc1')
    srd(k, 68, 0, 1835008); srd(k, 72, 96, 1835008)
    vRow, vOff = vT+1, vT+2
    k(f's_lshl_b32 s42, s{sSEG}, 5')
    k(f's_lshl_b32 s43, s{sQT}, 4')
    k(f's_add_u32 s42, s42, s43')
    k(f'v_and_b32 v{vRow}, 15, v{vLn}')
    k(f'v_add_u32 v{vRow}, s42, v{vRow}')
    k(f'v_mul_u32_u24 v{vOff}, 896, v{vRow}')
    k(f'v_lshrrev_b32 v{vT+3}, 4, v{vLn}')
    k(f's_lshl_b32 s42, s{sCG}, 7')
    k(f's_lshl_b32 s43, s{sWAVE}, 5')
    k(f's_add_u32 s42, s42, s43')
    k(f'v_lshl_add_u32 v{vT+3}, v{vT+3}, 3, s42')
    k(f'v_add_u32 v{vOff}, v{vOff}, v{vT+3}')
    vXo = vT+8
    k(f'v_lshrrev_b32 v{vXo}, 4, v{vT+3}')
    k(f'v_lshlrev_b32 v{vXo}, 8, v{vXo}')
    k(f'v_and_b32 v{vXo+1}, 15, v{vT+3}')
    k(f'v_add_u32 v{vXo}, v{vXo}, v{vXo+1}')
    k(f'v_and_b32 v{vXo+1}, 15, v{vLn}')
    k(f'v_lshl_add_u32 v{vXo}, v{vXo+1}, 4, v{vXo}')
    k(f's_lshl_b32 s43, s{sSEG}, 1')
    k(f's_add_u32 s43, s43, s{sQT}')
    k(f's_mul_i32 s43, s43, 14336')
    k(f's_add_u32 s43, s43, {XNF}')
    k('s_waitcnt lgkmcnt(0)')
    k('s_and_b32 s69, s69, 0xffff'); k('s_and_b32 s73, s73, 0xffff')
    vXr, vXn = vT+4, vT+6
    k(f'buffer_load_dwordx2 {vr(vXr,2)}, v{vOff}, s[68:71], 0 offen')
    k(f'buffer_load_dwordx2 {vr(vXn,2)}, v{vXo}, {WS}, s43 offen')
    k(f's_mov_b32 s40, {flag(F_M2)}')
    wait1(k, 40, f'v_cmp_le_u32 vcc, 28, v{vT}', vT, 16)
    vIx = 168
    k(f's_mov_b32 s40, {IDX}')
    for j in range(4): k(f'buffer_load_dwordx4 {vr(vIx+4*j,4)}, off, {WS}, s40 offset:{16*j} sc1')
    vSel, vSig, vY = 184, 185, 188
    k(f'v_mov_b32 v{vSel}, 0x40000000')
    k(f'v_mov_b32 v{vSig}, 0')
    k('s_waitcnt vmcnt(0)')
    for j in range(8):
        k(f'v_cmp_eq_u32 vcc, v{vIx+j}, v{vRow}')
        k(f'v_mov_b32 v{vT}, {j*1792}')
        k('s_nop 0')
        k(f'v_cndmask_b32 v{vSel}, v{vSel}, v{vT}, vcc')
        k(f'v_cndmask_b32 v{vSig}, v{vSig}, v{vIx+8+j}, vcc')
    k(f'v_lshl_add_u32 v{vSel}, v{vT+3}, 1, v{vSel}')
    for q in range(4):
        k(f's_mov_b32 s40, {UPD + q*14336}')
        k(f'buffer_load_dwordx4 {vr(vY+4*q,4)}, v{vSel}, {WS}, s40 offen sc1')
    k(f's_lshl_b32 s40, s{sBLK}, 7')
    k(f's_add_u32 s40, s40, {flag(F_P)}')
    wait1(k, 40, f'v_cmp_le_u32 vcc, 16, v{vT}', vT, 32)
    k(f's_add_u32 s40, s{sSEG}, 63')
    k(f's_and_b32 s40, s40, 63')
    k(f's_mul_i32 s40, s40, {MEM_S}')
    k(f's_add_u32 s40, s40, {MEMX}')
    wait1(k, 40, f'v_cmp_ne_u32 vcc, -1, v{vT}', vT, OPT['vsl'], f's_cmp_ge_u32 s{sSEG}, 60')
    k(f's_mov_b32 s{sCNT}, 0')
    k(f's_mul_i32 s40, s{sSEG}, {PT_SEG}')
    k(f's_lshl_b32 s41, s{sQT}, 10')
    k(f's_add_u32 s40, s40, s41')
    k(f's_add_u32 s40, s40, {PT}')
    k(f's_lshl_b32 s41, s{sWAVE}, 13')
    k(f's_add_u32 s41, s41, s40')
    k(f's_add_u32 s42, s41, 4096')
    k(f's_lshl_b32 s43, s{sWAVE}, 12')
    k(f's_add_u32 s43, s43, s40')
    k(f's_add_u32 s43, s43, 32768')
    lp, dn = k.newlabel('Lvp'), k.newlabel('Lvq')
    k.label(lp)
    for hh in range(4):
        k(f'buffer_load_dwordx4 {vr(vP+4*hh,4)}, v{vL16}, {WS}, s{41 if hh<2 else 42} offen offset:{(hh&1)*2048} sc1')
    for u in range(2):
        k(f'buffer_load_dwordx4 {vr(vP+16+4*u,4)}, v{vL16}, {WS}, s43 offen offset:{u*2048} sc1')
    k(f's_add_u32 s{sCNT}, s{sCNT}, 1')
    k(f's_cmp_gt_u32 s{sCNT}, s{sT2}')
    k('s_cbranch_scc1 L_fail')
    k('s_waitcnt vmcnt(0)')
    k(f'v_max3_u32 v{vT}, v{vP}, v{vP+1}, v{vP+2}')
    for r in range(3, 23, 2): k(f'v_max3_u32 v{vT}, v{vT}, v{vP+r}, v{vP+r+1}')
    k(f'v_max_u32 v{vT}, v{vT}, v{vP+23}')
    k(f'v_cmp_eq_u32 vcc, -1, v{vT}')
    k(f's_cbranch_vccz {dn}')
    k('s_sleep 2')
    k(f's_cmp_ge_u32 s{sSEG}, 60')
    k(f's_cbranch_scc1 {lp}')
    k(f"s_sleep {OPT['psl']}")
    k(f's_branch {lp}')
    k.label(dn)
    if TL[0]: tstamp(k, 57, 8, vT)
    lastseg = k.newlabel('Lvl')
    k(f's_cmp_eq_u32 s{sSEG}, 63')
    k(f's_cbranch_scc1 {lastseg}')
    k(f's_lshl_b32 s40, s{sSEG}, 7')
    k(f's_add_u32 s40, s40, {flag(F_UM)}')
    wait1(k, 40, f'v_cmp_le_u32 vcc, 14, v{vT}', vT, OPT['usl'], f's_cmp_ge_u32 s{sSEG}, 60')
    k.label(lastseg)
    if TL[0]: tstamp(k, 57, 12, vT)
    k(f's_mul_i32 s40, s{sSEG}, {UM_SEG}')
    k(f's_mul_i32 s41, s{sWAVE}, {2*28672}')
    k(f's_add_u32 s40, s40, s41')
    k(f's_lshl_b32 s41, s{sCG}, 12')
    k(f's_add_u32 s40, s40, s41')
    k(f's_add_u32 s40, s40, {UM}')
    k(f's_add_u32 s41, s40, 28672')
    lp, dn = k.newlabel('Lvu'), k.newlabel('Lvv')
    k.label(lp)
    for u in range(2):
        for ct in range(4):
            k(f'buffer_load_dwordx4 {vr(vUM+8*ct+4*u,4)}, v{vL16}, {WS}, s{40+u} offen offset:{ct*1024} sc1')
    k(f's_cmp_lg_u32 s{sSEG}, 63')
    k(f's_cbranch_scc1 {dn}')
    k(f's_add_u32 s{sCNT}, s{sCNT}, 1')
    k(f's_cmp_gt_u32 s{sCNT}, s{sT2}')
    k('s_cbranch_scc1 L_fail')
    k('s_waitcnt vmcnt(0)')
    k(f'v_max3_u32 v{vT}, v{vUM}, v{vUM+1}, v{vUM+2}')
    for r in range(3, 31, 2): k(f'v_max3_u32 v{vT}, v{vT}, v{vUM+r}, v{vUM+r+1}')
    k(f'v_max_u32 v{vT}, v{vT}, v{vUM+31}')
    k(f'v_cmp_eq_u32 vcc, -1, v{vT}')
    k(f's_cbranch_vccz {dn}')
    k('s_sleep 2')
    k(f's_branch {lp}')
    k.label(dn)
    k('s_mov_b32 s54, 0xffff0000')
    for h in range(2):
        k(f'v_pk_add_f32 {vr(vY+2*h,2)}, {vr(vY+2*h,2)}, {vr(vY+4+2*h,2)}')
        k(f'v_pk_add_f32 {vr(vY+8+2*h,2)}, {vr(vY+8+2*h,2)}, {vr(vY+12+2*h,2)}')
        k(f'v_pk_add_f32 {vr(vY+2*h,2)}, {vr(vY+2*h,2)}, {vr(vY+8+2*h,2)}')
    vB, vXf = vY+4, vY+8
    for r in range(4):
        rbf(k, vY+r, 54)
        k(f'v_mul_f32 v{vY+r}, v{vY+r}, v{vSig}')
        rbf(k, vY+r, 54)
        src = vXn + (r>>1)
        k(f'v_lshlrev_b32 v{vB+r}, 16, v{src}' if r % 2 == 0 else f'v_and_b32 v{vB+r}, s54, v{src}')
        k(f'v_add_f32 v{vB+r}, v{vB+r}, v{vY+r}')
        rbf(k, vB+r, 54)
        src = vXr + (r>>1)
        k(f'v_lshlrev_b32 v{vXf+r}, 16, v{src}' if r % 2 == 0 else f'v_and_b32 v{vXf+r}, s54, v{src}')
    k('s_barrier')
    k('s_waitcnt vmcnt(8)')
    for hh in range(4):
        for ct in range(4):
            c = '0' if hh == 0 else vr(vD+4*ct,4)
            k(f'v_mfma_f32_16x16x32_bf16 {vr(vD+4*ct,4)}, {vr(vU+16*ct+4*hh,4)}, {vr(vP+4*hh,4)}, {c}')
    k('s_waitcnt vmcnt(0)')
    for u in range(2):
        for ct in range(4):
            k(f'v_mfma_f32_16x16x32_bf16 {vr(vD+4*ct,4)}, {vr(vUM+8*ct+4*u,4)}, {vr(vP+16+4*u,4)}, {vr(vD+4*ct,4)}')
    k(f's_lshl_b32 s40, s{sWAVE}, 12')
    k(f'v_add_u32 v{vT}, s40, v{vL16}')
    k(f's_lshl_b32 s40, s{sWAVE}, 10')
    k(f'v_add_u32 v{vT+3}, s40, v{vL16}')
    k.nop(2)
    for ct in range(4): k(f'ds_write_b128 v{vT}, {vr(vD+4*ct,4)} offset:{ct*1024}')
    k('s_waitcnt lgkmcnt(0)')
    k('s_barrier')
    for w in range(4): k(f'ds_read_b128 {vr(vU+4*w,4)}, v{vT+3} offset:{w*4096}')
    k('s_waitcnt lgkmcnt(0)')
    for h in range(2):
        k(f'v_pk_add_f32 {vr(vU+2*h,2)}, {vr(vU+2*h,2)}, {vr(vU+4+2*h,2)}')
        k(f'v_pk_add_f32 {vr(vU+8+2*h,2)}, {vr(vU+8+2*h,2)}, {vr(vU+12+2*h,2)}')
        k(f'v_pk_add_f32 {vr(vU+2*h,2)}, {vr(vU+2*h,2)}, {vr(vU+8+2*h,2)}')
    for r in range(4):
        rbf(k, vU+r, 54)
        k(f'v_add_f32 v{vU+r}, v{vU+r}, v{vXf+r}')
        rbf(k, vU+r, 54)
        k(f'v_add_f32 v{vU+r}, v{vU+r}, v{vB+r}')
    k(f'v_cvt_pk_bf16_f32 v{vU}, v{vU}, v{vU+1}')
    k(f'v_cvt_pk_bf16_f32 v{vU+1}, v{vU+2}, v{vU+3}')
    k(f'buffer_store_dwordx2 {vr(vU,2)}, v{vOff}, s[72:75], 0 offen')
    k('s_branch W_next')

def moe_stage(k, srdreg, pitch, soff, lds, vT):
    k(f'v_lshrrev_b32 v{vT}, 3, v0')
    k(f'v_and_b32 v{vT+1}, 7, v0')
    k(f's_mov_b32 s44, {pitch}')
    k(f'v_mul_lo_u32 v{vT+2}, v{vT}, s44')
    k(f'v_lshl_add_u32 v{vT+2}, v{vT+1}, 4, v{vT+2}')
    k(f'v_bfe_u32 v{vT+3}, v{vT}, 1, 1')
    k(f'v_bfe_u32 v{vT+4}, v{vT}, 3, 1')
    k(f'v_lshl_add_u32 v{vT+3}, v{vT+4}, 1, v{vT+3}')
    k(f'v_lshlrev_b32 v{vT+3}, 1, v{vT+3}')
    k(f'v_xor_b32 v{vT+3}, v{vT+3}, v{vT+1}')
    k(f'v_lshlrev_b32 v{vT+3}, 4, v{vT+3}')
    k(f'v_lshl_add_u32 v{vT+3}, v{vT}, 7, v{vT+3}')
    if lds: k(f'v_add_u32 v{vT+3}, {lds}, v{vT+3}')
    k(f's_mov_b32 s44, s{soff}')
    for r in range(14):
        k(f'buffer_load_dwordx4 {vr(32+4*r,4)}, v{vT+2}, s[{srdreg}:{srdreg+3}], s44 offen')
        k(f's_add_u32 s44, s44, {32*pitch}')
    for r in range(14):
        k(f's_waitcnt vmcnt({13-r})')
        k(f'ds_write_b128 v{vT+3}, {vr(32+4*r,4)} offset:{r*4096}')

def moe_mm(k, lds, vA, vD, vAd, vB):
    for ks in range(14):
        for hh in range(2): k(f'ds_read_b64_tr_b16 {vr(vB+4*ks+2*hh,2)}, v{vAd} offset:{lds + ks*4096 + hh*512}')
    k('s_waitcnt lgkmcnt(0)')
    for ks in range(14):
        k(f'v_mfma_f32_16x16x32_bf16 {vr(vD,4)}, {vr(vA+4*ks,4)}, {vr(vB+4*ks,4)}, {"0" if ks == 0 else vr(vD,4)}')

def moe_traddr(k, vAd, vT):
    k(f'v_bfe_u32 v{vAd}, v{vLn}, 2, 2')
    k(f'v_lshrrev_b32 v{vT}, 4, v{vLn}')
    k(f'v_lshl_add_u32 v{vAd}, v{vT}, 3, v{vAd}')
    k(f'v_lshlrev_b32 v{vAd}, 7, v{vAd}')
    k(f'v_and_b32 v{vT}, 3, v{vLn}')
    k(f'v_lshl_add_u32 v{vAd}, v{vT}, 3, v{vAd}')
    k(f'v_bfe_u32 v{vT}, v{vLn}, 3, 1')
    k(f'v_bfe_u32 v{vT+1}, v{vLn}, 4, 1')
    k(f'v_lshl_add_u32 v{vT}, v{vT+1}, 1, v{vT}')
    k(f'v_xor_b32 v{vT}, s{sWAVE}, v{vT}')
    k(f'v_lshl_add_u32 v{vAd}, v{vT}, 5, v{vAd}')

def sigmoid(k, v, t):
    k(f'v_mul_f32 v{t}, {f32bits(-1.4426950408889634):#x}, v{v}')
    k(f'v_exp_f32 v{t}, v{t}')
    k.nop(1)
    k(f'v_add_f32 v{t}, 1.0, v{t}')
    k(f'v_rcp_f32 v{v}, v{t}')
    k.nop(1)

def task_M1(k):
    k.label('T_M1')
    vT = 16
    srd(k, 68, 72, 1605632); srd(k, 72, 80, 1605632)
    vK = 160
    k(f's_mov_b32 s40, {RR}')
    k(f's_add_u32 s41, s40, 4096')
    for j in range(8): k(f'buffer_load_dwordx4 {vr(vK+4*j,4)}, v{vL16}, {WS}, s{40 + (j>>2)} offen offset:{(j&3)*1024}')
    k(f'v_lshlrev_b32 v{vT}, 2, v{vLn}')
    k(f'v_sub_u32 v{vT}, 0xffff, v{vT}')
    k('s_mov_b32 s54, 0xffff0000')
    k('s_waitcnt vmcnt(0) lgkmcnt(0)')
    k('s_and_b32 s69, s69, 0xffff'); k('s_and_b32 s73, s73, 0xffff')
    for j in range(32):
        r = vK + j
        k(f'v_ashrrev_i32 v{vT+1}, 31, v{r}')
        k(f'v_or_b32 v{vT+1}, 0x80000000, v{vT+1}')
        k(f'v_xor_b32 v{r}, v{r}, v{vT+1}')
        k(f'v_subrev_u32 v{vT+1}, {(j>>2)*256 + (j&3)}, v{vT}')
        k(f'v_and_or_b32 v{r}, v{r}, s54, v{vT+1}')
    m, t = vT+2, vT+3
    for it in range(8):
        k(f'v_max3_u32 v{m}, v{vK}, v{vK+1}, v{vK+2}')
        for r in range(3, 31, 2): k(f'v_max3_u32 v{m}, v{m}, v{vK+r}, v{vK+r+1}')
        k(f'v_max_u32 v{m}, v{m}, v{vK+31}')
        for rot in (8, 4, 2, 1):
            k.nop(2)
            k(f'v_max_u32_dpp v{m}, v{m}, v{m} row_ror:{rot} row_mask:0xf bank_mask:0xf')
        xlane_red(k, 'v_max_u32', m, t)
        k.nop(1)
        k(f'v_readfirstlane_b32 s{76+it}, v{m}')
        if it < 7:
            for j in range(32):
                k(f'v_cmp_eq_u32 vcc, v{m}, v{vK+j}')
                k('s_nop 1')
                k(f'v_cndmask_b32 v{vK+j}, v{vK+j}, 0, vcc')
    vKy, vIx = vT+4, vT+5
    k(f'v_mov_b32 v{vKy}, s76')
    k(f'v_and_b32 v{t}, 7, v{vLn}')
    for j in range(1, 8):
        k(f'v_cmp_eq_u32 vcc, {j}, v{t}')
        k(f'v_mov_b32 v{m}, s{76+j}')
        k('s_nop 0')
        k(f'v_cndmask_b32 v{vKy}, v{vKy}, v{m}, vcc')
    k(f'v_and_b32 v{vIx}, 0xffff, v{vKy}')
    k(f'v_sub_u32 v{vIx}, 0xffff, v{vIx}')
    sk = k.newlabel('Lm1s')
    k(f's_or_b32 s40, s{sJ}, s{sWAVE}')
    k('s_cmp_lg_u32 s40, 0')
    k(f's_cbranch_scc1 {sk}')
    k(f'v_and_b32 v{m}, s54, v{vKy}')
    k(f'v_not_b32 v{t}, v{m}')
    k(f'v_ashrrev_i32 v{t}, 31, v{t}')
    k(f'v_or_b32 v{t}, 0x80000000, v{t}')
    k(f'v_xor_b32 v{m}, v{m}, v{t}')
    k(f'v_and_b32 v{m}, s54, v{m}')
    sigmoid(k, m, t)
    rbf(k, m, 54)
    k(f'v_lshlrev_b32 v{t}, 2, v{vLn}')
    k(f's_mov_b32 s40, {IDX}')
    k('s_mov_b64 exec, 0xff')
    k(f'buffer_store_dword v{vIx}, v{t}, {WS}, s40 offen sc1')
    k(f'buffer_store_dword v{m}, v{t}, {WS}, s40 offen offset:32 sc1')
    k('s_mov_b64 exec, -1')
    k.label(sk)
    vA = 96
    k(f'v_lshrrev_b32 v{m}, 4, v{vIx}')
    k(f'v_mul_u32_u24 v{m}, 14336, v{m}')
    k(f'v_and_b32 v{t}, 15, v{vIx}')
    k(f'v_lshl_add_u32 v{m}, v{t}, 4, v{m}')
    k(f'v_lshrrev_b32 v{t}, 4, v{vLn}')
    k(f'v_lshl_add_u32 v{m}, v{t}, 8, v{m}')
    k(f's_mov_b32 s40, {XNF}')
    for ks in range(14):
        k(f'buffer_load_dwordx4 {vr(vA+4*ks,4)}, v{m}, {WS}, s40 offen offset:{(ks&3)*1024}')
        if (ks&3) == 3: k('s_add_u32 s40, s40, 4096')
    k('s_barrier')
    k(f's_lshl_b32 s43, s{sJ}, 7')
    moe_stage(k, 68, 3584, 43, 0, 24)
    moe_stage(k, 72, 3584, 43, 57344, 24)
    vAd = vT
    moe_traddr(k, vAd, vT+1)
    k(f'v_add_u32 v{vT+1}, 57344, v{vAd}')
    k('s_waitcnt lgkmcnt(0)')
    k('s_barrier')
    vG, vUu = 24, 28
    moe_mm(k, 0, vA, vG, vAd, 32)
    moe_mm(k, 0, vA, vUu, vT+1, 160)
    k(f'v_lshrrev_b32 v{vT+2}, 4, v{vLn}')
    k(f'v_mul_u32_u24 v{vT+2}, {4*3584}, v{vT+2}')
    k(f'v_and_b32 v{vT+3}, 15, v{vLn}')
    k(f'v_lshl_add_u32 v{vT+2}, v{vT+3}, 1, v{vT+2}')
    k(f's_lshl_b32 s40, s{sWAVE}, 5')
    k(f's_add_u32 s40, s40, s43')
    k(f's_add_u32 s40, s40, {HB}')
    k.nop(4)
    k('s_mov_b32 exec_hi, 0')
    for r in range(4):
        rbf(k, vG+r, 54); rbf(k, vUu+r, 54)
        k(f'v_mov_b32 v{vT+4}, v{vG+r}')
        sigmoid(k, vT+4, vT+5)
        k(f'v_mul_f32 v{vG+r}, v{vG+r}, v{vT+4}')
        rbf(k, vG+r, 54)
        k(f'v_mul_f32 v{vG+r}, v{vG+r}, v{vUu+r}')
        k(f'v_cvt_pk_bf16_f32 v{vG+r}, v{vG+r}, v{vG+r}')
        k(f'buffer_store_short v{vG+r}, v{vT+2}, {WS}, s40 offen sc1')
        k(f's_add_u32 s40, s40, 3584')
    k('s_mov_b64 exec, -1')
    k(f's_mov_b32 s40, {flag(F_M1)}')
    signal(k, 40, 3)
    k('s_branch W_next')

def task_M2(k):
    k.label('T_M2')
    vT = 16
    srd(k, 68, 88, 1605632)
    k(f's_mul_hi_u32 s45, s{sJ}, {(1<<32)//7 + 1}')
    k(f's_mul_i32 s46, s45, 7')
    k(f's_sub_u32 s46, s{sJ}, s46')
    k(f's_mul_i32 s43, s45, {448*896}')
    k(f's_lshl_b32 s40, s46, 7')
    k(f's_add_u32 s43, s43, s40')
    k('s_waitcnt lgkmcnt(0)')
    k('s_and_b32 s69, s69, 0xffff')
    k('s_barrier')
    moe_stage(k, 68, 896, 43, 0, 24)
    vAd = vT
    moe_traddr(k, vAd, vT+1)
    k(f's_mov_b32 s40, {flag(F_M1)}')
    wait_flag(k, 40, 28, vT+1)
    vA = 96
    k(f'v_and_b32 v{vT+1}, 7, v{vLn}')
    k(f'v_mul_u32_u24 v{vT+1}, 3584, v{vT+1}')
    k(f'v_lshrrev_b32 v{vT+2}, 4, v{vLn}')
    k(f'v_lshl_add_u32 v{vT+1}, v{vT+2}, 4, v{vT+1}')
    k(f's_mul_i32 s40, s45, 896')
    k(f's_add_u32 s40, s40, {HB}')
    for ks in range(14): k(f'buffer_load_dwordx4 {vr(vA+4*ks,4)}, v{vT+1}, {WS}, s40 offen offset:{ks*64} sc1')
    k('s_waitcnt vmcnt(0) lgkmcnt(0)')
    k('s_barrier')
    moe_mm(k, 0, vA, 24, vAd, 32)
    k(f'v_mul_u32_u24 v{vT+2}, {4*1792}, v{vT+2}')
    k(f'v_and_b32 v{vT+3}, 15, v{vLn}')
    k(f'v_lshl_add_u32 v{vT+2}, v{vT+3}, 2, v{vT+2}')
    k(f's_mul_i32 s40, s45, 14336')
    k(f's_lshl_b32 s41, s46, 8')
    k(f's_add_u32 s40, s40, s41')
    k(f's_lshl_b32 s41, s{sWAVE}, 6')
    k(f's_add_u32 s40, s40, s41')
    k(f's_add_u32 s40, s40, {UPD}')
    k('s_mov_b32 exec_hi, 0')
    for r in range(4):
        k(f'buffer_store_dword v{24+r}, v{vT+2}, {WS}, s40 offen sc1')
        k(f's_add_u32 s40, s40, 1792')
    k('s_mov_b64 exec, -1')
    k(f's_mov_b32 s40, {flag(F_M2)}')
    signal(k, 40, 3)
    k('s_branch W_next')

LTK = 163832
Q_U2, Q_M1, Q_M2, Q_P0 = 0, 48, 76, 104
Q_G = Q_P0 + 48
Q_T = Q_G + 13*72
Q_END = Q_T + 3*56
DBG = 's[8:11]'

def tstamp(k, sOff, off, vT=3):
    k('s_memrealtime s[30:31]')
    k('s_waitcnt lgkmcnt(0)')
    k(f'v_mov_b32 v{vT}, s30')
    k(f'buffer_store_dword v{vT}, off, {WS}, s{sOff} offset:{off}')

def worker(k, pref=0, tl=False):
    TL[0] = tl
    def tl_start(base):
        if not tl: return
        k(f's_add_u32 s57, s42, {base}')
        k('s_lshl_b32 s57, s57, 4')
        k(f's_add_u32 s57, s57, {STAMP + 0x40000}')
        tstamp(k, 57, 0)
    k.label('L_worker')
    k(f'v_and_b32 v{vLn}, 63, v0')
    k(f'v_lshlrev_b32 v{vL16}, 4, v{vLn}')
    k(f's_mov_b32 s{sT2}, {POLL_LIMIT}')
    k(f's_mov_b32 s{sSTEP}, 255')
    k(f's_add_u32 s42, s2, {7 - pref}')
    k('s_and_b32 s42, s42, 7')
    k('s_lshl_b32 s42, s42, 5')
    k('s_lshr_b32 s41, s2, 3')
    k('s_add_u32 s42, s42, s41')
    tl_start(1536)
    k(f's_mul_hi_u32 s{sH}, s42, {(1<<32)//14 + 1}')
    k(f's_mul_i32 s41, s{sH}, 14')
    k(f's_sub_u32 s{sBLK}, s42, s41')
    k(f's_cmp_lt_u32 s{sBLK}, 2')
    k('s_cbranch_scc1 T_Uh')
    k(f's_sub_u32 s{sBLK}, s{sBLK}, 1')
    k('s_branch T_U')
    k.label('W_next')
    if tl: tstamp(k, 57, 4)
    k(f's_cmp_lg_u32 s{sWAVE}, 0')
    k('s_cbranch_scc1 W_bc')
    k('s_mov_b64 exec, 1')
    k('v_mov_b32 v3, 1')
    k(f'buffer_atomic_add v3, off, {DBG}, 0 offset:192 sc0')
    k(f'v_mov_b32 v4, {LTK}')
    k('s_waitcnt vmcnt(0)')
    k('ds_write_b32 v4, v3')
    k('s_waitcnt lgkmcnt(0)')
    k('s_mov_b64 exec, -1')
    k.label('W_bc')
    k('s_barrier')
    k(f'v_mov_b32 v4, {LTK}')
    k('ds_read_b32 v3, v4')
    k('s_waitcnt lgkmcnt(0)')
    k('v_readfirstlane_b32 s42, v3')
    k('s_nop 3')
    tl_start(0)
    k(f's_cmp_ge_u32 s42, {Q_END}')
    k('s_cbranch_scc1 L_exit')
    k(f's_cmp_lt_u32 s42, {Q_M1}')
    k('s_cbranch_scc0 W_q1')
    k(f's_and_b32 s{sH}, s42, 15')
    k(f's_lshr_b32 s{sBLK}, s42, 4')
    k(f's_add_u32 s{sBLK}, s{sBLK}, 13')
    k('s_branch T_U')
    k.label('W_q1')
    k(f's_sub_u32 s{sJ}, s42, {Q_M1}')
    k(f's_cmp_lt_u32 s42, {Q_M2}')
    k('s_cbranch_scc1 T_M1')
    k(f's_sub_u32 s{sJ}, s42, {Q_M2}')
    k(f's_cmp_lt_u32 s42, {Q_P0}')
    k('s_cbranch_scc1 T_M2')
    k(f's_cmp_lt_u32 s42, {Q_G}')
    k('s_cbranch_scc0 W_q2')
    k(f's_sub_u32 s42, s42, {Q_P0}')
    k(f's_and_b32 s{sH}, s42, 15')
    k(f's_lshr_b32 s{sBLK}, s42, 4')
    k('s_branch T_P')
    k.label('W_q2')
    k(f's_cmp_lt_u32 s42, {Q_T}')
    k('s_cbranch_scc0 W_q3')
    k(f's_sub_u32 s42, s42, {Q_G}')
    k(f's_mul_hi_u32 s41, s42, {(1<<32)//72 + 1}')
    k('s_mul_i32 s43, s41, 72')
    k('s_sub_u32 s42, s42, s43')
    k(f's_mov_b32 s{sH}, s42')
    k(f's_add_u32 s{sBLK}, s41, 3')
    k('s_cmp_lt_u32 s42, 16')
    k('s_cbranch_scc1 T_P')
    k('s_sub_u32 s42, s42, 16')
    k('s_mul_i32 s41, s41, 56')
    k('s_add_u32 s42, s42, s41')
    k('s_branch W_v')
    k.label('W_q3')
    k(f's_sub_u32 s42, s42, {Q_T - 13*56}')
    k.label('W_v')
    k(f's_mul_hi_u32 s{sSEG}, s42, {(1<<32)//14 + 1}')
    k(f's_mul_i32 s41, s{sSEG}, 14')
    k('s_sub_u32 s42, s42, s41')
    k('s_cmp_ge_u32 s42, 7')
    k(f's_cselect_b32 s{sQT}, 1, 0')
    k(f's_mul_i32 s41, s{sQT}, 7')
    k(f's_sub_u32 s{sCG}, s42, s41')
    k('s_branch T_V')
    task_U(k); task_U(k, True); task_P(k); task_V(k); task_M1(k); task_M2(k)
```

```python
from chain import K, OPT
from asmlib import *
from layout import *
import math, struct

def f32bits(x): return struct.unpack('<I', struct.pack('<f', x))[0]
PREP_GRID, PREP_BLOCK, PREP_LDS = 256, 512, 3*43008 + 28672

def srd(k, s, argoff, size):
    k(f's_load_dwordx2 s[{s}:{s+1}], s[0:1], {argoff}')
    k(f's_mov_b32 s{s+2}, {size}')
    k(f's_mov_b32 s{s+3}, 0x20000')

def gen_prep(tl=False):
    k = K()
    WS = 's[4:7]'
    k(f's_cmp_ge_u32 s2, {PREP_GRID}')
    k('s_cbranch_scc1 P_exit')
    srd(k, 4, 112, WS_SIZE)
    k('v_lshrrev_b32 v1, 6, v0')
    k('v_and_b32 v2, 63, v0')
    k('v_readfirstlane_b32 s16, v1')
    if tl: k('s_memrealtime s[40:41]')
    k('s_nop 2')
    if OPT['k1pf']:
        k('s_cmp_ge_u32 s16, 4')
        k('s_cbranch_scc1 P_nopf')
        k('s_lshl_b32 s44, s16, 3')
        k('s_add_u32 s44, s44, 16')
        k('s_load_dwordx2 s[56:57], s[0:1], s44')
        k('s_mov_b32 s58, 3670016')
        k('s_mov_b32 s59, 0x20000')
        k('v_lshlrev_b32 v190, 7, v2')
        k('s_mul_i32 s44, s2, 14336')
        k('s_add_u32 s45, s44, 6144')
        k('s_waitcnt lgkmcnt(0)')
        k('s_and_b32 s57, s57, 0xffff')
        k('buffer_load_dword v191, v190, s[56:59], s44 offen')
        k('buffer_load_dword v189, v190, s[56:59], s45 offen')
        k.label('P_nopf')
    k('s_cmp_eq_u32 s16, 7')
    k('s_cbranch_scc1 P_ln')
    k('s_and_b32 s19, s2, 15')
    k('s_bfe_u32 s18, s2, 0x10005')
    k('s_lshr_b32 s20, s2, 6')
    k('s_bitcmp1_b32 s2, 4')
    k('s_cbranch_scc1 P_gB0')
    srd(k, 8, 16, 3670016); srd(k, 12, 24, 3670016)
    k('s_branch P_g1')
    k.label('P_gB0')
    srd(k, 8, 32, 3670016); srd(k, 12, 40, 3670016)
    k.label('P_g1')
    vI, vG, vL16 = 3, 4, 5
    vR, vC, vRA, vCA, vt = 6, 10, 12, 16, 18
    vRAs, vCAs = 20, 24
    k(f'v_and_b32 v{vI}, 15, v2')
    k(f'v_lshrrev_b32 v{vG}, 4, v2')
    k(f'v_lshlrev_b32 v{vL16}, 4, v2')
    k('s_mul_i32 s21, s18, 7')
    k('s_add_u32 s21, s21, s16')
    k(f'v_lshrrev_b32 v{vt}, 3, v2')
    k('s_lshl_b32 s22, s21, 5')
    k(f'v_add_u32 v{vt}, s22, v{vt}')
    k(f'v_lshlrev_b32 v{vt}, 13, v{vt}')
    k('s_lshl_b32 s22, s19, 9')
    k(f'v_add_u32 v{vt}, s22, v{vt}')
    k(f'v_and_b32 v{vt+1}, 7, v2')
    k(f'v_and_b32 v26, 1, v{vG}')
    k(f'v_xor_b32 v{vt+1}, v{vt+1}, v26')
    for q in range(4):
        k(f'v_xor_b32 v26, {2*q}, v{vt+1}')
        k(f'v_lshl_add_u32 v{vR+q}, v26, 4, v{vt}')
        if q: k(f'v_add_u32 v{vR+q}, {q*8*8192}, v{vR+q}')
    k(f'v_lshrrev_b32 v{vt}, 2, v{vI}')
    k(f'v_bfe_u32 v{vt+1}, v{vI}, 1, 1')
    k(f'v_lshl_add_u32 v{vt+1}, v{vt}, 1, v{vt+1}')
    k(f'v_xor_b32 v{vt+1}, v{vt+1}, v{vG}')
    k(f'v_lshlrev_b32 v{vt+1}, 4, v{vt+1}')
    k(f'v_lshl_add_u32 v{vt+1}, v{vt}, 10, v{vt+1}')
    k(f'v_and_b32 v{vt}, 3, v{vI}')
    k(f'v_lshl_add_u32 v{vt+1}, v{vt}, 7, v{vt+1}')
    k('s_lshl_b32 s33, s16, 12')
    k(f'v_add_u32 v{vRA}, s33, v{vt+1}')
    k(f'v_xor_b32 v{vRA+1}, 64, v{vRA}')
    k('s_lshl_b32 s22, s18, 1')
    k('s_add_u32 s22, s22, s20')
    for j in range(4):
        k(f's_add_u32 s{24+j}, s22, {j}')
        k(f's_and_b32 s{24+j}, s{24+j}, 3')
    vC3 = 156
    vAcc, vOp = 28, 84
    k('s_lshl_b32 s32, s16, 11')
    k('s_add_u32 s32, s32, 28672')
    def mm(n):
        o = vOp + 36*(n&1)
        for T in range(2):
            for ct in range(7):
                a = vAcc + 28*T + 4*ct
                k(f'v_mfma_f32_16x16x32_bf16 {vr(a,4)}, {vr(o+4*T,4)}, {vr(o+8+4*ct,4)}, {"0" if n == 0 else vr(a,4)}')
    def body(gstep, rdc, cdma):
        if tl == 2: k('s_memrealtime s[46:47]')
        k('s_waitcnt lgkmcnt(0)')
        if tl == 2: k('s_memrealtime s[48:49]')
        k('s_and_b32 s5, s5, 0xffff'); k('s_and_b32 s9, s9, 0xffff'); k('s_and_b32 s13, s13, 0xffff')
        k.vmq = []
        def issue(j):
            sb = j*43008
            k(f's_lshl_b32 s36, s{24+j}, 7')
            k(f's_mul_i32 s35, s{24+j}, {gstep}')
            if j < 3: cdma(sb, j)
            else:
                for hq in range(2): k.vm(f'buffer_load_dwordx4 {vr(vC3+4*hq,4)}, v{vC+hq}, s[12:15], s35 offen', 'c3')
            for q in range(4):
                k(f's_add_u32 s34, s33, {sb + q*1024}')
                k('s_mov_b32 m0, s34')
                k('s_nop 0')
                k.vm(f'buffer_load_dwordx4 v{vR+q}, s[8:11], s36 offen lds', j)
        for j in range(4): issue(j)
        k(f'v_add_u32 v26, s32, v{vL16}')
        if tl == 2: k('s_memrealtime s[50:51]')
        def rd(n):
            j, es = n >> 1, n & 1
            o = vOp + 36*(n&1)
            for T in range(2): k(f'ds_read_b128 {vr(o+4*T,4)}, v{vRAs+es} offset:{T*512}')
            rdc(o + 8, es)
        for n in range(9):
            j = n >> 1
            if n < 8 and n % 2 == 0:
                sb = j*43008
                if j == 2:
                    k.wvm('c3')
                    for hq in range(2): k(f'ds_write_b128 v26, {vr(vC3+4*hq,4)} offset:{hq*cdma.step}')
                k.wvm(j, extra='lgkmcnt(0)')
                k('s_barrier')
                if tl == 1 and j in (0, 1, 3): k(f's_memrealtime s[{46+2*((j+1)//2)}:{47+2*((j+1)//2)}]')
                for e in range(2):
                    k(f'v_add_u32 v{vRAs+e}, {sb}, v{vRA+e}')
                    k(f'v_add_u32 v{vCAs+e}, {sb if j < 3 else 0}, v{vCA+e}')
            if n < 8: rd(n)
            if n > 0:
                k(f's_waitcnt lgkmcnt({0 if (n == 8 or tl) else min(15, rdc.n + 2)})')
                mm(n-1)
    k('s_bitcmp1_b32 s2, 4')
    k('s_cbranch_scc1 P_gB')
    k('s_mul_i32 s22, s20, 7')
    k('s_add_u32 s22, s22, s16')
    k('s_lshr_b32 s23, s22, 1')
    k('s_lshl_b32 s23, s23, 5')
    k('s_and_b32 s22, s22, 1')
    k('s_lshl_b32 s22, s22, 3')
    k('s_add_u32 s22, s22, s23')
    k(f'v_bfe_u32 v{vt}, v2, 4, 1')
    k(f'v_lshlrev_b32 v{vt}, 2, v{vt}')
    k(f'v_bfe_u32 v{vt+1}, v2, 5, 1')
    k(f'v_lshl_add_u32 v{vt}, v{vt+1}, 1, v{vt}')
    k(f'v_bfe_u32 v{vt+1}, v2, 3, 1')
    k(f'v_add3_u32 v{vt}, v{vt}, v{vt+1}, s22')
    k(f'v_lshlrev_b32 v{vt}, 13, v{vt}')
    k('s_lshl_b32 s22, s19, 9')
    k(f'v_add_u32 v{vt}, s22, v{vt}')
    k(f'v_and_b32 v{vt+1}, 7, v2')
    k(f'v_xor_b32 v{vt+1}, v{vt+1}, v{vG}')
    k(f'v_lshl_add_u32 v{vC}, v{vt+1}, 4, v{vt}')
    k(f'v_xor_b32 v{vt+1}, 4, v{vt+1}')
    k(f'v_lshl_add_u32 v{vC+1}, v{vt+1}, 4, v{vt}')
    k(f'v_add_u32 v{vC+1}, {16*8192}, v{vC+1}')
    k(f'v_lshrrev_b32 v{vt}, 1, v{vI}')
    k(f'v_xor_b32 v{vt}, v{vt}, v{vG}')
    k(f'v_lshlrev_b32 v{vt}, 4, v{vt}')
    k(f'v_lshl_add_u32 v{vt}, v{vI}, 7, v{vt}')
    k(f'v_add_u32 v{vCA}, 28672, v{vt}')
    k(f'v_xor_b32 v{vCA+1}, 64, v{vCA}')
    def rdA(o, es):
        for ct in range(7): k(f'ds_read_b128 {vr(o+4*ct,4)}, v{vCAs+es} offset:{ct*2048}')
    rdA.n = 7
    def dmaA(sb, j):
        for hq in range(2):
            k(f's_add_u32 s34, s32, {sb + hq*1024}')
            k('s_mov_b32 m0, s34')
            k('s_nop 0')
            k.vm(f'buffer_load_dwordx4 v{vC+hq}, s[12:15], s35 offen lds', j)
    dmaA.step = 1024
    body(128, rdA, dmaA)
    k(f's_mov_b32 s22, {f32bits(math.log2(math.e)/16):#x}')
    k(f's_mov_b32 s23, {WTA}')
    k('s_branch P_gepi')
    k.label('P_gB')
    k(f's_mov_b32 s22, {(1<<32)//14 + 1}')
    k(f'v_mul_hi_u32 v{vt}, v0, s22')
    k(f'v_mul_u32_u24 v{vt+1}, 14, v{vt}')
    k(f'v_sub_u32 v{vt+1}, v0, v{vt+1}')
    k(f'v_mul_u32_u24 v{vt}, 896, v{vt}')
    k(f'v_lshl_add_u32 v{vt}, v{vt+1}, 4, v{vt}')
    k('s_mul_i32 s22, s19, 229376')
    k('s_mul_i32 s23, s20, 224')
    k('s_add_u32 s22, s22, s23')
    k(f'v_add_u32 v{vC}, s22, v{vt}')
    k(f'v_add_u32 v{vC+1}, {32*896}, v{vC}')
    k('s_lshl_b32 s32, s16, 10')
    k('s_add_u32 s32, s32, 28672')
    k(f'v_bfe_u32 v{vt}, v2, 2, 2')
    k(f'v_lshl_add_u32 v{vt}, v{vG}, 3, v{vt}')
    k(f'v_mul_u32_u24 v{vt}, 224, v{vt}')
    k(f'v_and_b32 v{vt+1}, 3, v2')
    k(f'v_lshl_add_u32 v{vt}, v{vt+1}, 3, v{vt}')
    k(f'v_add_u32 v{vCA}, 28672, v{vt}')
    k(f'v_add_u32 v{vCA+1}, 7168, v{vCA}')
    def rdB(o, es):
        for ct in range(7):
            for hh in range(2): k(f'ds_read_b64_tr_b16 {vr(o+4*ct+2*hh,2)}, v{vCAs+es} offset:{ct*32+hh*896}')
    rdB.n = 14
    def dmaB(sb, j):
        for hq in range(2):
            k(f's_add_u32 s34, s32, {sb + hq*7168}')
            k('s_mov_b32 m0, s34')
            k('s_nop 0')
            k.vm(f'buffer_load_dwordx4 v{vC+hq}, s[12:15], s35 offen lds', j)
    dmaB.step = 7168
    body(64*896, rdB, dmaB)
    k('s_mov_b32 s22, 1.0')
    k(f's_mov_b32 s23, {WTB}')
    k.label('P_gepi')
    if tl: k('s_memrealtime s[52:53]')
    k('s_mul_i32 s24, s19, 28')
    k('s_mul_i32 s25, s20, 7')
    k('s_add_u32 s24, s24, s25')
    k('s_mul_i32 s24, s24, 14')
    k('s_add_u32 s24, s24, s21')
    k('s_lshl_b32 s24, s24, 10')
    k('s_add_u32 s24, s24, s23')
    k('s_mov_b32 s23, s22')
    for ct in range(7):
        d = vOp + 4*ct
        for T in range(2):
            a = vAcc + 28*T + 4*ct
            k(f'v_pk_mul_f32 {vr(a,2)}, {vr(a,2)}, s[22:23]')
            k(f'v_pk_mul_f32 {vr(a+2,2)}, {vr(a+2,2)}, s[22:23]')
            k(f'v_cvt_pk_bf16_f32 v{d+2*T}, v{a}, v{a+1}')
            k(f'v_cvt_pk_bf16_f32 v{d+2*T+1}, v{a+2}, v{a+3}')
        k(f'buffer_store_dwordx4 {vr(d,4)}, v{vL16}, {WS}, s24 offen ' + OPT['k1st'])
        k('s_add_u32 s24, s24, 14336')
    if tl:
        k('s_waitcnt vmcnt(0)')
        k('s_memrealtime s[42:43]')
        k('s_lshl_b32 s44, s2, 5')
        k(f's_add_u32 s44, s44, {STAMP + 0xE0000}')
        k('s_waitcnt lgkmcnt(0)')
        k('v_mov_b32 v10, s40'); k('v_mov_b32 v11, s42'); k('v_mov_b32 v12, s46'); k('v_mov_b32 v13, s48')
        k('v_mov_b32 v14, s50'); k('v_mov_b32 v15, s52')
        k(f'buffer_store_dwordx4 v[10:13], off, {WS}, s44')
        k(f'buffer_store_dwordx2 v[14:15], off, {WS}, s44 offset:16')
    k('s_endpgm')
    k.label('P_ln')
    srd(k, 8, 0, 1835008); srd(k, 12, 64, 896)
    srd(k, 28, 8, 7168)
    k('s_mov_b32 s17, s2')
    k('v_lshrrev_b32 v3, 3, v2')
    k('s_lshl_b32 s18, s17, 3')
    k('v_add_u32 v3, s18, v3')
    k('v_and_b32 v4, 7, v2')
    k('v_mul_u32_u24 v5, 896, v3')
    k('v_lshl_add_u32 v5, v4, 4, v5')
    k('v_lshlrev_b32 v6, 4, v4')
    vX, vW, vF = 16, 44, 72
    k('s_waitcnt lgkmcnt(0)')
    k('s_and_b32 s5, s5, 0xffff'); k('s_and_b32 s9, s9, 0xffff'); k('s_and_b32 s13, s13, 0xffff')
    for i in range(7): k(f'buffer_load_dwordx4 {vr(vX+4*i,4)}, v5, s[8:11], 0 offen offset:{i*128}')
    for i in range(7): k(f'buffer_load_dwordx4 {vr(vW+4*i,4)}, v6, s[12:15], 0 offen offset:{i*128}')
    k('v_lshrrev_b32 v7, 4, v3')
    k('v_mul_u32_u24 v7, 14336, v7')
    k('v_and_b32 v8, 15, v3')
    k('v_lshl_add_u32 v7, v8, 4, v7')
    k('v_lshrrev_b32 v8, 2, v4')
    k('v_lshl_add_u32 v7, v8, 10, v7')
    k('v_and_b32 v8, 3, v4')
    k('v_lshl_add_u32 v9, v8, 8, v7')
    k('v_bfe_u32 v8, v4, 1, 1')
    k('v_lshl_add_u32 v10, v8, 9, v7')
    k('v_and_b32 v8, 1, v4')
    k('v_lshl_add_u32 v10, v8, 3, v10')
    k('s_mov_b32 s20, 0xffff0000')
    k('s_and_b32 s29, s29, 0xffff')
    k('v_bfe_u32 v12, v2, 2, 3')
    k('v_mul_u32_u24 v12, 896, v12')
    k('v_and_b32 v13, 3, v2')
    k('v_lshl_add_u32 v12, v13, 3, v12')
    k('v_lshrrev_b32 v13, 5, v2')
    k('v_lshl_add_u32 v12, v13, 2, v12')
    k('s_lshl_b32 s21, s2, 5')
    k('buffer_load_dword v160, v12, s[28:31], s21 offen')
    k('s_barrier')
    def fills():
        k('s_mov_b32 s32, s4'); k('s_mov_b32 s33, s5'); k(f's_mov_b32 s34, {SENT_END - MEM_S}'); k('s_mov_b32 s35, 0x20000')
        k('s_mov_b32 s36, s4'); k('s_mov_b32 s37, s5'); k(f's_mov_b32 s38, {FLG + FLG_SZ}'); k('s_mov_b32 s39, 0x20000')
        k('v_lshlrev_b32 v11, 4, v2')
        NF = -(-(SENT_END - MEM_S - MEM - MEM_T) // (256*1024))
        k(f's_mul_i32 s21, s2, {NF*1024}')
        k(f's_add_u32 s21, s21, {MEM + MEM_T}')
        for r in range(4): k(f'v_mov_b32 v{164+r}, -1')
        for r in range(4): k(f'v_mov_b32 v{168+r}, 0')
        for r in range(NF):
            k(f'buffer_store_dwordx4 v[164:167], v11, s[32:35], s21 offen offset:{(r&3)*1024} ' + OPT['k1ln'])
            if (r&3) == 3: k('s_add_u32 s21, s21, 4096')
        k(f's_mov_b32 s34, {UM + 64*UM_SEG}')
        k('s_lshl_b32 s21, s2, 10')
        k(f's_add_u32 s21, s21, {UM + 63*UM_SEG}')
        k('buffer_store_dwordx4 v[164:167], v11, s[32:35], s21 offen ' + OPT['k1ln'])
        k('s_lshl_b32 s21, s2, 10')
        k(f's_add_u32 s21, s21, {FLG}')
        k('buffer_store_dwordx4 v[168:171], v11, s[36:39], s21 offen ' + OPT['k1ln'])
    NFG = -(-(SENT_END - MEM_S - MEM - MEM_T) // (256*1024))
    late = OPT['k1late']
    if not late: fills()
    k(f's_waitcnt vmcnt({8 if late else 10 + NFG})')
    for d in range(28):
        k(f'v_lshlrev_b32 v{vF+2*d}, 16, v{vX+d}')
        k(f'v_and_b32 v{vF+2*d+1}, s20, v{vX+d}')
    def red8(v):
        for ctl in ('quad_perm:[1,0,3,2]', 'quad_perm:[2,3,0,1]', 'row_half_mirror'):
            k.nop(2)
            k(f'v_add_f32_dpp v{v}, v{v}, v{v} {ctl} row_mask:0xf bank_mask:0xf')
    def rbf(v):
        k(f'v_cvt_pk_bf16_f32 v{v}, v{v}, v{v}')
        k(f'v_and_b32 v{v}, s20, v{v}')
    k(f'v_pk_add_f32 v[12:13], {vr(vF,2)}, {vr(vF+2,2)}')
    for d in range(2, 28): k(f'v_pk_add_f32 v[12:13], v[12:13], {vr(vF+2*d,2)}')
    k('v_add_f32 v12, v12, v13')
    k('s_barrier')
    red8(12)
    k(f's_mov_b32 s21, {f32bits(1/448):#x}')
    k('v_mul_f32 v12, s21, v12')
    k('v_mov_b32 v14, 0'); k('v_mov_b32 v15, 0')
    for d in range(28):
        k(f'v_pk_add_f32 {vr(vX,2)}, {vr(vF+2*d,2)}, v[12:13] op_sel_hi:[1,0] neg_lo:[0,1] neg_hi:[0,1]')
        k(f'v_pk_fma_f32 v[14:15], {vr(vX,2)}, {vr(vX,2)}, v[14:15]')
    k('v_add_f32 v14, v14, v15')
    red8(14)
    k('v_mul_f32 v14, s21, v14')
    rbf(14)
    k(f'v_add_f32 v14, {f32bits(1e-5):#x}, v14')
    rbf(14)
    k('v_sqrt_f32 v14, v14')
    k.nop(1)
    rbf(14)
    k('v_rcp_f32 v15, v14')
    rbf(12)
    k(f's_waitcnt vmcnt({0 if late else 2 + NFG})')
    k('v_mov_b32 v128, 0'); k('v_mov_b32 v129, 0')
    vO, vS = vX, 132
    for d in range(28):
        f = vF + 2*d
        k(f'v_pk_add_f32 {vr(f,2)}, {vr(f,2)}, v[12:13] op_sel_hi:[1,0] neg_lo:[0,1] neg_hi:[0,1]')
        k(f'v_cvt_pk_bf16_f32 v130, v{f}, v{f+1}')
        k(f'v_lshlrev_b32 v{f}, 16, v130')
        k(f'v_and_b32 v{f+1}, s20, v130')
        k(f'v_pk_mul_f32 v[130:131], {vr(f,2)}, v[14:15] op_sel:[0,1] op_sel_hi:[1,1]')
        k(f'v_pk_fma_f32 {vr(f,2)}, v[130:131], v[14:15], {vr(f,2)} op_sel_hi:[1,0,1] neg_lo:[1,0,0] neg_hi:[1,0,0]')
        k(f'v_pk_fma_f32 v[130:131], {vr(f,2)}, v[14:15], v[130:131] op_sel:[0,1,0] op_sel_hi:[1,1,1]')
        k(f'v_cvt_pk_bf16_f32 v{vO+d}, v130, v131')
        so = vS + 4*(d>>2) + {0:0, 1:2, 2:1, 3:3}[d&3]
        k(f'v_mov_b32 v{so}, v{vO+d}')
        k(f'v_dot2_f32_bf16 v{128+(d&1)}, v{vO+d}, v{vW+d}, v{128+(d&1)}')
        if d in (3, 15): k('s_barrier')
    k(f's_mov_b32 s23, {XNF}'); k(f's_mov_b32 s24, {XNS}')
    for i in range(7):
        k(f'buffer_store_dwordx4 {vr(vO+4*i,4)}, v9, {WS}, s23 offen offset:{(i&1)*2048} ' + OPT['k1ln'])
        k(f'buffer_store_dwordx2 {vr(vS+4*i,2)}, v10, {WS}, s24 offen offset:{(i&1)*2048} ' + OPT['k1ln'])
        k(f'buffer_store_dwordx2 {vr(vS+4*i+2,2)}, v10, {WS}, s24 offen offset:{(i&1)*2048+256} ' + OPT['k1ln'])
        if i & 1:
            k('s_add_u32 s23, s23, 4096'); k('s_add_u32 s24, s24, 4096')
    if late: fills()
    k.nop(2)
    k('v_add_f32 v128, v128, v129')
    red8(128)
    rbf(128)
    k('v_lshlrev_b32 v3, 2, v3')
    k(f's_mov_b32 s22, {RR}')
    k(f'buffer_store_dword v128, v3, {WS}, s22 offen ' + OPT['k1ln'])
    if tl:
        k('s_waitcnt vmcnt(0)')
        k('s_memrealtime s[42:43]')
        k('s_lshl_b32 s44, s2, 5')
        k(f's_add_u32 s44, s44, {STAMP + 0xE0000}')
        k('s_waitcnt lgkmcnt(0)')
        k('v_mov_b32 v10, s42')
        k(f'buffer_store_dword v10, off, {WS}, s44 offset:24')
    k('s_cmp_ge_u32 s2, 28')
    k('s_cbranch_scc1 P_exit')
    k('v_min_u32 v160, -2, v160')
    k('v_lshlrev_b32 v11, 2, v2')
    k('s_lshl_b32 s21, s2, 8')
    k(f's_add_u32 s22, s21, {MEM}')
    k(f's_add_u32 s21, s21, {SENT_END - MEM_S}')
    for r in range(NREP):
        k(f'buffer_store_dword v160, v11, {WS}, s22 offen ' + OPT['k1ln'])
        k(f's_add_u32 s22, s22, {MEM_S}')
    k(f'buffer_store_dword v160, v11, {WS}, s21 offen ' + OPT['k1ln'])
    k.label('P_exit')
    k('s_endpgm')
    return k
```

```python
from asmlib import *
from layout import *

class K(Asm):
    def __init__(self):
        super().__init__()
        self.dsq = []; self.cold = []; self.vmq = []
    def ds(self, text, tag=None):
        self(text); self.dsq.append(tag)
    def wds(self, tag):
        if tag not in self.dsq: return
        idx = max(i for i, t in enumerate(self.dsq) if t == tag)
        n = len(self.dsq) - 1 - idx
        assert n <= 15
        self(f's_waitcnt lgkmcnt({n})')
        self.dsq = self.dsq[idx+1:]
    def wds0(self):
        self('s_waitcnt lgkmcnt(0)'); self.dsq = []
    def vm(self, text, tag=None):
        self(text); self.vmq.append(tag)
    def wvm(self, *tags, extra=''):
        idx = max([i for i, t in enumerate(self.vmq) if t in tags], default=-1)
        if idx < 0:
            if extra: self('s_waitcnt ' + extra)
            return
        n = len(self.vmq) - 1 - idx
        assert n <= 63
        self(f's_waitcnt vmcnt({n}) {extra}')
        self.vmq = self.vmq[idx+1:]
    def flush_cold(self):
        for l in self.cold: self(l)
        self.cold = []

SWS, SDBG = 4, 8
sROLE, sWAVE, sSTEP, sMODE, sM, sP, sX, sUM, sCNT = 12, 13, 14, 15, 16, 17, 18, 19, 20
sT0, sT1, sT2 = 21, 22, 23
sMASK8 = 24
sID = 26
sST = 28
sTM = 30
POLL_LIMIT = 400000
NSTEP = 63
OPT = dict(sa='late', sb='early', um='sc1', uf='sc1', sleepA=0, sleepB=0, stampmask=15, rt=0, barA=1, barB=1, prefP=0, pfd=2, pfs=128, upos='early', ud=2, apf=1, nb=7, stag=1, wpos=1, rsp=1, s1pos=0, upre=8, uneed=32, ust='sc1', rot=1, k1st='sc1', uwin=2, k1d=2, ap2=1, stagA=2, gv=0, diag=0, lnbar=1, t01=0, ug=8, bdel=0, pc=0, padA=0, padB=0, tail2=1, pf64=1, tw=0, rep=3, prep=1, k1late=0, cpf=0, sm2=0, tm=0, bp2=1, k1pf=0, k1ln='sc1', u0='cold', align=0, w64=0, p64=0, kpos='post', kdel=9, nu2=4, bgs=0, vsl=120, usl=120, psl=16, msl=120)

def stamp(k, idx, on):
    if not on or not (OPT['stampmask'] >> idx) & 1: return
    k(('s_memrealtime' if OPT['rt'] else 's_memtime') + f' s[{sTM}:{sTM+1}]')
    k.wds0()
    k(f'v_mov_b32 v0, s{sTM}')
    k(f'buffer_store_dword v0, off, s[{SWS}:{SWS+3}], s{sST} offset:{idx*4}')

def edge(k, on, off):
    if not on or OPT['rt']: return
    lp = k.newlabel('Led')
    k('s_memrealtime s[70:71]')
    k('s_waitcnt lgkmcnt(0)')
    k.label(lp)
    k('s_memrealtime s[72:73]')
    k('s_memtime s[74:75]')
    k('s_waitcnt lgkmcnt(0)')
    k('s_cmp_eq_u32 s72, s70')
    k(f's_cbranch_scc1 {lp}')
    k('v_mov_b32 v0, s72')
    k(f'buffer_store_dword v0, off, s[{SWS}:{SWS+3}], s76 offset:{off}')
    k('v_mov_b32 v0, s74')
    k(f'buffer_store_dword v0, off, s[{SWS}:{SWS+3}], s76 offset:{off+4}')

def diag(k, idx, op='buffer_atomic_umax'):
    if not OPT['diag']: return
    k('s_memrealtime s[70:71]')
    k('s_waitcnt lgkmcnt(0)')
    k('v_mov_b32 v0, s70')
    k(f'{op} v0, off, s[{SDBG}:{SDBG+3}], 0 offset:{4*idx}')

def publish(k, text):
    ls, ld = k.newlabel('Lslow'), k.newlabel('Lpub')
    if isinstance(text, str): text = [text]
    k(f's_cbranch_scc0 {ls}')
    for x in text: k(x)
    k.label(ld)
    k.cold += [ls + ':'] + [x + ' sc1' for x in text] + [f's_branch {ld}']

def gather_mem(k, vG, vOff0, vOff1, vL0, vL1, vT):
    lp, dn = k.newlabel('Lgm'), k.newlabel('Lgd')
    k(f's_mov_b32 s{sCNT}, 0')
    k.label(lp)
    k(f'buffer_load_dwordx4 {vr(vG,4)}, v{vOff0}, s[{SWS}:{SWS+3}], s{sM} offen sc1')
    k(f'buffer_load_dwordx4 {vr(vG+4,4)}, v{vOff1}, s[{SWS}:{SWS+3}], s{sM} offen sc1')
    k(f's_add_u32 s{sCNT}, s{sCNT}, 1')
    k(f's_cmp_gt_u32 s{sCNT}, s{sT2}')
    k('s_cbranch_scc1 L_fail')
    k('s_waitcnt vmcnt(1)')
    k(f'v_max3_u32 v{vT}, v{vG}, v{vG+1}, v{vG+2}')
    k('s_waitcnt vmcnt(0)')
    k(f'v_max3_u32 v{vT+1}, v{vG+4}, v{vG+5}, v{vG+6}')
    k(f'v_max3_u32 v{vT}, v{vT}, v{vG+3}, v{vG+7}')
    k(f'v_max_u32 v{vT}, v{vT}, v{vT+1}')
    k(f'v_cmp_eq_u32 vcc, -1, v{vT}')
    k(f's_cbranch_vccnz {lp}')
    if vL0 is None: return
    k.ds(f'ds_write_b128 v{vL0}, {vr(vG,4)}')
    k.ds(f'ds_write_b128 v{vL1}, {vr(vG+4,4)}')
    k.wds0()
    k('s_barrier')

def wait_mode(k, vT):
    lp = k.newlabel('Lwm')
    k(f's_mov_b32 s{sCNT}, 0')
    k(f'v_and_b32 v{vT+1}, 15, v0')
    k(f'v_lshlrev_b32 v{vT+1}, 2, v{vT+1}')
    k.label(lp)
    k(f'buffer_load_dword v{vT}, v{vT+1}, s[{SDBG}:{SDBG+3}], 0 offen offset:32 sc1')
    k(f's_add_u32 s{sCNT}, s{sCNT}, 1')
    k(f's_cmp_gt_u32 s{sCNT}, s{sT2}')
    k('s_cbranch_scc1 L_fail')
    k('s_waitcnt vmcnt(0)')
    k(f'v_cmp_eq_u32 vcc, 32, v{vT}')
    for rot in (8, 4, 2, 1):
        k.nop(2)
        k(f'v_add_u32_dpp v{vT}, v{vT}, v{vT} row_ror:{rot} row_mask:0xf bank_mask:0xf')
    k.nop(1)
    k(f'v_readfirstlane_b32 s{sMODE}, v{vT}')
    k('s_nop 3')
    k(f's_cmp_lt_u32 s{sMODE}, 32')
    k(f's_cbranch_scc1 {lp}')
    k('s_cmp_lg_u64 vcc, 0')
    k(f's_cselect_b32 s{sMODE}, 1, 2')

def common_lane_setup(k, vLane, vL16, vG0, vG1, vIdx, vT):
    k(f'v_and_b32 v{vLane}, 63, v0')
    k(f'v_lshlrev_b32 v{vL16}, 4, v{vLane}')
    if vG0 is not None:
        k(f's_lshl_b32 s{sT0}, s{sWAVE}, 10')
        k(f'v_add_u32 v{vG0}, s{sT0}, v{vL16}')
        k(f's_add_u32 s{sT0}, s{sWAVE}, 4')
        k(f's_min_u32 s{sT0}, s{sT0}, 6')
        k(f's_lshl_b32 s{sT0}, s{sT0}, 10')
        k(f'v_add_u32 v{vG1}, s{sT0}, v{vL16}')
    k(f'v_and_b32 v{vT}, 8, v{vLane}')
    k(f'v_mov_b32 v{vIdx}, 0x4444')
    k(f'v_mov_b32 v{vT+1}, 0xeeee')
    k(f'v_cmp_ne_u32 vcc, 0, v{vT}')
    k('s_nop 1')
    k(f'v_cndmask_b32 v{vIdx}, v{vIdx}, v{vT+1}, vcc')
    k(f's_mov_b32 s{sT2}, {POLL_LIMIT}')

def poll2(k, issue, checks, body, name, stag):
    nl = len(issue(0))
    l0, d0, d1, dn = [k.newlabel(name + x) for x in ('lp', 'd0', 'd1', 'dn')]
    k(f's_mov_b32 s{sCNT}, 0')
    for x in issue(0): k(x)
    k(f"s_sleep {stag}")
    k.label(l0)
    for st, dl in ((0, d0), (1, d1)):
        for x in issue(1 - st): k(x)
        if st == 0:
            k(f's_add_u32 s{sCNT}, s{sCNT}, 1')
            k(f's_cmp_gt_u32 s{sCNT}, s{sT2}')
            k('s_cbranch_scc1 L_fail')
        for rel, ins in checks(st):
            k(f's_waitcnt vmcnt({nl + rel})')
            for x in ins: k(x)
        if st == 0: k(f's_cbranch_vccz {d0}')
        else:       k(f's_cbranch_vccnz {l0}x')
    saved = list(k.dsq)
    body(1)
    k(f's_branch {dn}')
    k.label(l0 + 'x')
    k(f's_branch {l0}')
    k.label(d0)
    end = list(k.dsq); k.dsq = saved
    body(0)
    assert k.dsq == end
    k.label(dn)

def role_A(k, stamps=False):
    vLane, vL16, vIdx = 1, 2, 3
    vKey, vKeyS, vMK, vMKS, vQW, vQR, vSW, vSR, vPO, vVal = 4, 5, 6, 7, 8, 9, 10, 11, 12, 13
    vT = 14
    vM = 16
    vQ = 44
    vKT = 72
    vKM = 100
    vX = 114
    vG0, vG1 = 118, 119
    def W(lt, kb):
        i = lt*7 + kb
        return (256 + 8*i) if i < 32 else (120 + 8*(i-32))
    LM, LSP, LQS = 0, 7168, 20480
    k.label('L_roleA')
    k(f's_mov_b32 s{sID}, s{sROLE}')
    common_lane_setup(k, vLane, vL16, vG0, vG1, vIdx, vX)
    k(f's_lshr_b32 s{sT0}, s{sWAVE}, 1')
    k(f's_mul_i32 s{sT0}, s{sT0}, 14')
    k(f's_and_b32 s{sT1}, s{sWAVE}, 1')
    k(f's_add_u32 s33, s{sT0}, 6')
    k(f's_add_u32 s33, s33, s{sT1}')
    k(f's_lshl_b32 s34, s{sT1}, 3')
    k(f's_add_u32 s32, s{sT0}, s34')
    k(f's_mul_i32 s35, s{sID}, {28*14*1024}')
    k(f's_add_u32 s35, s35, {WTA}')
    k(f's_mul_i32 s36, s32, {14*1024}')
    k(f's_add_u32 s36, s36, s35')
    k(f's_mul_i32 s37, s33, {14*1024}')
    k(f's_add_u32 s37, s37, s35')
    for j in range(7):
        k(f's_add_u32 s{50+j}, s{sWAVE}, {(4*j) % 7}')
        k(f's_sub_u32 s40, s{50+j}, 7')
        k(f's_cmp_ge_u32 s{50+j}, 7')
        k(f's_cselect_b32 s{50+j}, s40, s{50+j}')
        k(f's_lshl_b32 s{50+j}, s{50+j}, 10')
    n = 0
    for lt in range(7):
        sb = 36 if lt < 6 else 37
        for j in range(7):
            k(f's_lshl_b32 s40, s{50+j}, 1')
            k(f's_add_u32 s40, s40, s{sb}')
            for f in range(2):
                k(f'buffer_load_dwordx4 {xr(W(lt, j) + 4*f,4)}, v{vL16}, s[{SWS}:{SWS+3}], s40 offen offset:{f*1024}')
                n += 1
                if n % 16 == 0: k('s_waitcnt vmcnt(40)')
        k(f's_add_u32 s{sb}, s{sb}, 14336')
    k(f'v_add_u32 v{vG1}, s51, v{vL16}')
    t = vX
    g, i = vQ, vQ+1
    k(f'v_lshrrev_b32 v{g}, 4, v{vLane}')
    k(f'v_and_b32 v{i}, 15, v{vLane}')
    k(f's_lshr_b32 s38, s32, 1')
    k(f's_lshr_b32 s39, s33, 1')
    k(f's_lshl_b32 s40, s38, 10')
    k(f'v_add_u32 v{vKey}, s40, v{vL16}')
    k(f's_lshl_b32 s40, s39, 10')
    k(f's_add_u32 s40, s40, s34')
    k(f'v_add_u32 v{vKeyS}, s40, v{vL16}')
    k(f'v_lshrrev_b32 v{t}, 1, v{g}')
    k(f'v_lshlrev_b32 v{t}, 8, v{t}')
    k(f'v_and_b32 v{t+1}, 7, v{i}')
    k(f'v_lshlrev_b32 v{t+1}, 4, v{t+1}')
    k(f'v_add_u32 v{t}, v{t}, v{t+1}')
    k(f'v_and_b32 v{t+1}, 1, v{g}')
    k(f'v_lshlrev_b32 v{t+1}, 7, v{t+1}')
    k(f'v_add_u32 v{t}, v{t}, v{t+1}')
    k(f's_lshl_b32 s40, s38, 9')
    k(f'v_add_u32 v{vMK}, s40, v{t}')
    k(f's_lshl_b32 s40, s39, 9')
    k(f's_add_u32 s40, s40, s34')
    k(f'v_add_u32 v{vMKS}, s40, v{t}')
    k(f's_lshl_b32 s40, s{sWAVE}, 10')
    k(f's_add_u32 s40, s40, {LQS}')
    k(f'v_lshrrev_b32 v{t}, 2, v{i}')
    k(f'v_add_u32 v{t}, v{t}, v{g}')
    k(f'v_and_b32 v{t}, 3, v{t}')
    k(f'v_lshlrev_b32 v{t}, 3, v{t}')
    k(f'v_lshlrev_b32 v{t+1}, 5, v{i}')
    k(f'v_add3_u32 v{vQW}, v{t}, v{t+1}, s40')
    k(f'v_lshrrev_b32 v{t}, 2, v{vLane}')
    k(f'v_lshlrev_b32 v{t}, 5, v{t}')
    k(f'v_add_u32 v{t+1}, v{vLane}, v{g}')
    k(f'v_and_b32 v{t+1}, 3, v{t+1}')
    k(f'v_lshlrev_b32 v{t+1}, 3, v{t+1}')
    k(f'v_add3_u32 v{vQR}, v{t}, v{t+1}, s40')
    k(f's_mul_i32 s40, s{sWAVE}, 3264')
    k(f's_add_u32 s40, s40, {LSP}')
    k(f'v_lshlrev_b32 v{t}, 4, v{i}')
    k(f'v_mul_u32_u24 v{t+1}, 272, v{g}')
    k(f'v_add3_u32 v{vSW}, v{t}, v{t+1}, s40')
    k(f'v_subrev_u32 v{t}, 12, v{i}')
    k(f'v_cmp_le_u32 vcc, 12, v{i}')
    k('s_nop 1')
    k(f'v_cndmask_b32 v{t}, v{i}, v{t}, vcc')
    k(f'v_lshrrev_b32 v{t+1}, 5, v{vLane}')
    k(f's_lshl_b32 s40, s{sWAVE}, 1')
    k(f'v_add_u32 v{t+1}, s40, v{t+1}')
    k(f'v_and_b32 v{t+2}, 1, v{g}')
    k(f'v_lshl_add_u32 v{t+3}, v{t+2}, 3, v{t+1}')
    k(f'v_lshlrev_b32 v{t+3}, 4, v{t+3}')
    k(f'v_mul_u32_u24 v{vSR}, 272, v{t}')
    k(f'v_add_u32 v{vSR}, v{vSR}, v{t+3}')
    if LSP: k(f'v_add_u32 v{vSR}, {LSP}, v{vSR}')
    k(f's_and_b32 s42, s{sID}, 1')
    k(f's_lshl_b32 s42, s42, 3')
    k(f'v_add_u32 v{t+1}, s42, v{t+1}')
    k(f'v_and_b32 v{vPO}, 1, v{i}')
    k(f'v_lshlrev_b32 v{vPO}, 3, v{vPO}')
    k(f'v_lshl_add_u32 v{vPO}, v{t+1}, 4, v{vPO}')
    k(f'v_bfe_u32 v{t}, v{i}, 1, 1')
    k(f'v_lshl_add_u32 v{vPO}, v{t}, 8, v{vPO}')
    k(f'v_bfe_u32 v{t}, v{i}, 3, 1')
    k(f'v_lshl_add_u32 v{vPO}, v{t}, 9, v{vPO}')
    k(f's_lshr_b32 s41, s{sID}, 1')
    k(f's_lshl_b32 s40, s41, 10')
    k(f'v_add_u32 v{vPO}, s40, v{vPO}')
    k(f'v_lshlrev_b32 v{t}, 3, v{i}')
    k(f'v_lshl_add_u32 v{t}, v{t+1}, 4, v{t}')
    k(f's_lshl_b32 s40, s41, 8')
    k(f's_add_u32 s40, s40, 8192')
    k(f'v_add_u32 v{t}, s40, v{t}')
    k(f'v_mov_b32 v{t+3}, 0x40000000')
    k(f'v_cmp_le_u32 vcc, 2, v{i}')
    k('s_nop 1')
    k(f'v_cndmask_b32 v{t}, v{t}, v{t+3}, vcc')
    k(f'v_cmp_le_u32 vcc, 4, v{i}')
    k('s_nop 1')
    k(f'v_cndmask_b32 v{vPO}, v{t}, v{vPO}, vcc')
    k(f'v_cmp_le_u32 vcc, 12, v{i}')
    k('s_nop 1')
    k(f'v_cndmask_b32 v{vPO}, v{vPO}, v{t+3}, vcc')
    k(f'v_lshl_add_u32 v{vPO}, v{t+2}, 2, v{vPO}')
    k(f'v_mov_b32 v{vVal}, 1.0')
    k(f'v_cmp_le_u32 vcc, v{t+3}, v{vPO}')
    k('s_nop 1')
    k(f'v_cndmask_b32 v{vVal}, v{vVal}, 0, vcc')
    k(f's_mov_b32 s{sSTEP}, 0')
    k(f"s_lshr_b32 s{sM}, s{sID}, {3 if OPT['rep'] == 3 else 2}")
    k(f"s_mul_i32 s{sM}, s{sM}, {MEM_S if NREP == 3 else 0}")
    k(f's_add_u32 s{sM}, s{sM}, {MEM}')
    k(f's_mov_b32 s{sP}, {PB}')
    k(f's_mov_b32 s{sX}, {XNS}')
    k(f's_lshl_b32 s40, s{sID}, 2')
    k(f's_add_u32 s40, s40, s{sWAVE}')
    k(f's_mul_i32 s40, s40, 7168')
    k(f'v_min_u32 v{vX}, {55*16}, v{vL16}')
    k(f'v_lshlrev_b32 v{vX}, 3, v{vX}')
    k(f'v_add_u32 v{vX}, s40, v{vX}')
    k(f"s_mov_b32 s{sUM}, {UF + OPT['ud']*UF_SEG}")
    WS = f's[{SWS}:{SWS+3}]'
    def key_list():
        L = []
        for p in range(3):
            L.append(f'buffer_load_dwordx4 {vr(vKT+8*p,4)}, v{vKey}, {WS}, s{sX} offen offset:{p*1024}')
            L.append(f'buffer_load_dwordx4 {vr(vKT+8*p+4,4)}, v{vKey}, {WS}, s46 offen offset:{p*1024}')
        L.append(f'buffer_load_dwordx2 {vr(vKT+24,2)}, v{vKeyS}, {WS}, s{sX} offen')
        L.append(f'buffer_load_dwordx2 {vr(vKT+26,2)}, v{vKeyS}, {WS}, s46 offen')
        return L
    def load_flag():
        k(f's_add_u32 s{sT0}, s{sSTEP}, {1 + OPT["ud"]}')
        k(f's_lshr_b32 s{sT0}, s{sT0}, 2')
        k(f's_lshl_b32 s{sT0}, s{sT0}, 7')
        k(f's_add_u32 s{sT0}, s{sT0}, {flag(F_U)}')
        k(f'buffer_load_dword v{vX+2}, off, {WS}, s{sT0} sc1')
    def load_keys(keys=True):
        if keys:
            for x in key_list(): k(x)
        k(f's_add_u32 s{sX}, s{sX}, 28672')
        k(f's_add_u32 s46, s{sX}, 14336')
    if OPT['tm']:
        k(f'v_lshlrev_b32 v{vQ+2}, 2, v{g}')
        k(f'v_sub_u32 v{vQ+2}, v{i}, v{vQ+2}')
        k(f'v_and_b32 v{vQ+3}, 1, v{vQ+2}')
        k(f'v_lshlrev_b32 v{vQ+3}, 4, v{vQ+3}')
        k(f'v_mov_b32 v{vLane}, 0x3f80')
        k(f'v_lshlrev_b32 v{vLane}, v{vQ+3}, v{vLane}')
        k(f'v_cmp_gt_u32 vcc, 4, v{vQ+2}')
        k(f'v_cmp_lt_u32 s[48:49], 1, v{vQ+2}')
        k('s_nop 0')
        k(f'v_cndmask_b32 v{vLane}, 0, v{vLane}, vcc')
    k(f's_add_u32 s46, s{sX}, 14336')
    k(f's_mov_b32 s{sSTEP}, -1')
    load_flag()
    load_keys()
    if OPT['t01']:
        lt_ = k.newlabel('Lt01')
        k('s_waitcnt vmcnt(8)')
        k(f'v_cmp_le_u32 vcc, {OPT["uneed"]}, v{vX+2}')
        k(f's_cbranch_vccz {lt_}')
        k(f's_mov_b32 s40, {UF}')
        k(f's_mov_b32 s41, {UF + UF_SEG}')
        k(f'buffer_load_dword v{vX+3}, v{vX}, {WS}, s40 offen sc1')
        k(f'buffer_load_dword v{vX+1}, v{vX}, {WS}, s41 offen sc1')
        k.label(lt_)
    k(f's_mov_b32 s{sSTEP}, 0')
    wait_mode(k, vT)
    k(f'v_mov_b32 v{vX+3}, 0x40000000')
    if stamps: k(f's_add_u32 s76, s{sST}, 0x20000')
    edge(k, stamps, 0)
    diag(k, 4)
    k('s_branch L_A_loop')
    k('.p2align 8')
    for _ in range(OPT['padA']): k('s_nop 0')
    k.label('L_A_loop')
    for r in range(0, 28, 2): k(f'v_mov_b64 {vr(vQ+r,2)}, 0')
    k(f's_add_u32 s47, s{sP}, {PB_S}')
    vAd = vKM + 6
    for j in range(2, 7): k(f'v_add_u32 v{vAd+j}, s{50+j}, v{vL16}')
    def Mx(lt, kb, src):
        return f'v_smfmac_f32_16x16x64_bf16 {vr(vQ+4*lt,4)}, {vr(src,4)}, {xr(W(lt,kb),8)}, v{vIdx}'
    def M(lt, kb): return Mx(lt, kb, vM+4*kb)
    mk = [f'ds_read_b128 {vr(vKM+4*p,4)}, v{vMK} offset:{LM+p*512}' for p in range(3)]
    mk.append(f'ds_read_b64 {vr(vKM+12,2)}, v{vMKS} offset:{LM}')
    sets = [vM, vKM]
    def issue(st):
        return [f'buffer_load_dwordx4 {vr(sets[st],4)}, v{vG0}, {WS}, s{sM} offen sc1',
                f'buffer_load_dwordx4 {vr(sets[st]+4,4)}, v{vG1}, {WS}, s{sM} offen sc1']
    def checks(st):
        G = sets[st]
        return [(1, [f'v_max3_u32 v{vT}, v{G}, v{G+1}, v{G+2}']),
                (0, [f'v_max3_u32 v{vT+1}, v{G+4}, v{G+5}, v{G+6}', f'v_max3_u32 v{vT}, v{vT}, v{G+3}, v{G+7}',
                     f'v_max_u32 v{vT}, v{vT}, v{vT+1}', f'v_cmp_eq_u32 vcc, -1, v{vT}'])]
    NB = OPT['nb']
    def body(st):
        G = sets[st]
        stamp(k, 0, stamps)
        if stamps and OPT['pc']:
            k(f'v_mov_b32 v0, s{sCNT}')
            k(f'buffer_store_dword v0, off, s[{SWS}:{SWS+3}], s{sST} offset:12')
        wrs = [f'ds_write_b128 v{vG0}, {vr(G,4)} offset:{LM}', f'ds_write_b128 v{vG1}, {vr(G+4,4)} offset:{LM}']
        seq = [(lt, j) for j in range(2) for lt in range(7)]
        for n, (lt, j) in enumerate(seq):
            k(Mx(lt, j, G + 4*j))
            if OPT['w64'] == 0 and n < 2: k.ds(wrs[n])
            if OPT['w64'] == 1 and n < 4: k.ds(f'ds_write_b64 v{vG0 if n < 2 else vG1}, {vr(G+2*n,2)} offset:{LM + 8*(n&1)}')
            if n == 4: k(f'v_cmp_le_u32 vcc, {OPT["uneed"]}, v{vX+2}')
            if n == 5: k('s_nop 0'); k(f'v_cndmask_b32 v{vX+1}, v{vX+3}, v{vX}, vcc')
            if n == NB - 1:
                k.wds0(); k('s_barrier')
            if NB - 1 <= n < NB + 4:
                jj = n - (NB - 1) + 2
                k.ds(f'ds_read_b128 {vr(vM+4*jj,4)}, v{vAd+jj} offset:{LM}', f'm{jj}')
            if n == NB + 5: k(f'buffer_load_dword v0, v{vX+1}, {WS}, s{sUM} offen sc1')
    if stamps and OPT['pc']: stamp(k, 1, True)
    if OPT['ap2']:
        poll2(k, issue, checks, body, 'Lga', OPT['stagA'])
    else:
        gather_mem(k, vM, vG0, vG1, None, None, vT)
        body(0)
    def cvt(lt, h):
        k(f'v_cvt_pk_bf16_f32 v{vQ+4*lt+h}, v{vQ+4*lt+2*h}, v{vQ+4*lt+2*h+1}')
    def wr(lt):
        k.ds(f'ds_write_b64 v{vQW}, {vr(vQ+4*lt,2)} offset:{512*(lt&1)}')
    def tr(p, h):
        k.ds(f'ds_read_b64_tr_b16 {vr(vQ+8*p+2*h,2)}, v{vQR} offset:{512*h}', f'q{p}')
    vSt = [vM, vM+4, vQ+4]
    def S(p, t):
        q = vQ + 8*p
        c = '0' if p == 0 else vr(vSt[t],4)
        if p < 3:
            a = vKM+4*p if t == 0 else vKT+8*p+4*(t-1)
            k(f'v_mfma_f32_16x16x32_bf16 {vr(vSt[t],4)}, {vr(a,4)}, {vr(q,4)}, {c}')
        else:
            a = vKM+12 if t == 0 else vKT+24+2*(t-1)
            k(f'v_mfma_f32_16x16x16_bf16 {vr(vSt[t],4)}, {vr(a,2)}, {vr(q,2)}, {c}')
    for lt in range(7):
        for j in range(2, 7):
            if lt == 0: k.wds(f'm{j}')
            k(M(lt, j))
            if OPT['tm'] and lt == 1 and j == 2: k(f'v_cndmask_b32 v{vT}, v{vLane}, 0, s[48:49]')
            if OPT['tm'] and lt == 1 and j == 3: k(f'v_cndmask_b32 v{vT+1}, 0, v{vLane}, s[48:49]')
            if lt == 0 and j == 6:
                k('s_waitcnt vmcnt(1)')
                for x in mk: k.ds(x, 'mk')
            if lt >= 1:
                if j == 4: cvt(lt-1, 0)
                if j == 5: cvt(lt-1, 1)
                if j == 6:
                    wr(lt-1)
                    if (lt-1) & 1: tr((lt-1)//2, 0); tr((lt-1)//2, 1)
        if lt == (4 if OPT['s1pos'] == 0 else 3):
            k.wds('q0')
            for t in range(3): S(0, t)
        if lt == 5 and OPT['s1pos'] == 1:
            k.wds('q1')
            for t in range(3): S(1, t)
    if OPT['s1pos'] == 0:
        k.wds('q1')
        for t in range(3): S(1, t)
        cvt(6, 0); cvt(6, 1)
        if OPT['tm']:
            k.wds('q2')
            k.nop(1)
            k(f'v_mfma_f32_16x16x16_bf16 {vr(vQ+12,4)}, {vr(vQ+24,2)}, {vr(vT,2)}, 0')
            for t in range(3): S(2, t)
            k(f'v_cvt_pk_bf16_f32 v{vQ+24}, v{vQ+12}, v{vQ+13}')
            k(f'v_cvt_pk_bf16_f32 v{vQ+25}, v{vQ+14}, v{vQ+15}')
            k.nop(2)
        else:
            wr(6); tr(3, 0)
            k.wds('q2')
            for t in range(3): S(2, t)
    else:
        k.nop(8)
        cvt(6, 0); cvt(6, 1); wr(6); tr(3, 0)
        k.wds('q2')
        for t in range(3): S(2, t)
    k.wds('q3')
    for t in range(3): S(3, t)
    for t in range(3):
        k.nop(2 if (t == 0 or OPT['p64'] == 0) else 1)
        if OPT['p64'] == 0: k.ds(f'ds_write_b128 v{vSW}, {vr(vSt[t],4)} offset:{1088*t}')
        else:
            k.ds(f'ds_write_b64 v{vSW}, {vr(vSt[t],2)} offset:{1088*t}')
            k.ds(f'ds_write_b64 v{vSW}, {vr(vSt[t]+2,2)} offset:{1088*t+8}')
    k.wds0()
    k('s_barrier')
    stamp(k, 1, stamps and not OPT['pc'])
    mark = len(k.lines)
    R = vQ+8
    for w in range(4): k.ds(f'ds_read_b128 {vr(R+4*w,4)}, v{vSR} offset:{w*3264}', f'r{w}')
    k(f's_cmp_eq_u32 s{sMODE}, 1')
    k.wds('r1')
    k(f'v_pk_add_f32 {vr(R,2)}, {vr(R,2)}, {vr(R+4,2)}')
    k(f'v_pk_add_f32 {vr(R+2,2)}, {vr(R+2,2)}, {vr(R+6,2)}')
    k.wds('r2')
    k(f'v_pk_add_f32 {vr(R,2)}, {vr(R,2)}, {vr(R+8,2)}')
    k(f'v_pk_add_f32 {vr(R+2,2)}, {vr(R+2,2)}, {vr(R+10,2)}')
    k.wds('r3')
    k(f'v_pk_add_f32 {vr(R,2)}, {vr(R,2)}, {vr(R+12,2)}')
    k(f'v_pk_add_f32 {vr(R+2,2)}, {vr(R+2,2)}, {vr(R+14,2)}')
    k.nop(2)
    k(f'v_permlane16_swap_b32 v{R}, v{R+2}')
    k(f'v_permlane16_swap_b32 v{R+1}, v{R+3}')
    X = R+4; m = R+6; t = R+8
    k(f'v_pk_add_f32 {vr(X,2)}, {vr(R,2)}, {vr(R+2,2)}')
    def allred(op, m):
        for rot in (8, 4, 2, 1):
            k.nop(2)
            k(f'{op}_dpp v{m}, v{m}, v{m} row_ror:{rot} row_mask:0xf bank_mask:0xf')
        k(f'v_mov_b32 v{t}, v{m}')
        k.nop(2)
        k(f'v_permlane16_swap_b32 v{m}, v{t}')
        k(f'{op} v{m}, v{m}, v{t}')
    if OPT['sm2'] == 0:
        k(f'v_max_f32 v{m}, v{X}, v{X+1}')
        allred('v_max_f32', m)
        k(f'v_pk_add_f32 {vr(X,2)}, {vr(X,2)}, {vr(m,2)} op_sel_hi:[1,0] neg_lo:[0,1] neg_hi:[0,1]')
        k(f'v_exp_f32 v{X}, v{X}')
        k(f'v_exp_f32 v{X+1}, v{X+1}')
        k.nop(1)
        k(f'v_add_f32 v{m}, v{X}, v{X+1}')
        k(f'v_mul_f32 v{m}, v{m}, v{vVal}')
        allred('v_add_f32', m)
        k(f'v_rcp_f32 v{m}, v{m}')
        k.nop(1)
        k(f'v_pk_mul_f32 {vr(X,2)}, {vr(X,2)}, {vr(m,2)} op_sel_hi:[1,0]')
    else:
        l_, M, sc = R+10, R+12, R+14
        def dpp(op, r, rot): k(f'{op}_dpp v{r}, v{r}, v{r} row_ror:{rot} row_mask:0xf bank_mask:0xf')
        k(f'v_max_f32 v{m}, v{X}, v{X+1}')
        for rot in (8, 4, 2, 1):
            k.nop(2); dpp('v_max_f32', m, rot)
        k(f'v_pk_add_f32 {vr(X,2)}, {vr(X,2)}, {vr(m,2)} op_sel_hi:[1,0] neg_lo:[0,1] neg_hi:[0,1]')
        k(f'v_mov_b32 v{M}, v{m}')
        k(f'v_exp_f32 v{X}, v{X}')
        k(f'v_mov_b32 v{t}, v{m}')
        k(f'v_exp_f32 v{X+1}, v{X+1}')
        k.nop(1)
        k(f'v_add_f32 v{l_}, v{X}, v{X+1}')
        k(f'v_permlane16_swap_b32 v{M}, v{t}')
        k(f'v_mul_f32 v{l_}, v{l_}, v{vVal}')
        k(f'v_max_f32 v{M}, v{M}, v{t}')
        k(f'v_sub_f32 v{sc}, v{m}, v{M}')
        dpp('v_add_f32', l_, 8)
        k(f'v_exp_f32 v{sc}, v{sc}')
        k.nop(1)
        dpp('v_add_f32', l_, 4)
        k(f'v_pk_mul_f32 {vr(X,2)}, {vr(X,2)}, {vr(sc,2)} op_sel_hi:[1,0]')
        k.nop(1)
        dpp('v_add_f32', l_, 2)
        k.nop(2)
        dpp('v_add_f32', l_, 1)
        k(f'v_mul_f32 v{l_}, v{l_}, v{sc}')
        k(f'v_mov_b32 v{t}, v{l_}')
        k.nop(2)
        k(f'v_permlane16_swap_b32 v{l_}, v{t}')
        k(f'v_add_f32 v{l_}, v{l_}, v{t}')
        k(f'v_rcp_f32 v{l_}, v{l_}')
        k.nop(1)
        k(f'v_pk_mul_f32 {vr(X,2)}, {vr(X,2)}, {vr(l_,2)} op_sel_hi:[1,0]')
    k(f'v_cvt_pk_bf16_f32 v{X}, v{X}, v{X+1}')
    k(f'v_min_u32 v{X}, -2, v{X}')
    if OPT['kpos'] == 'soft':
        body_ = k.lines[mark:]; k.lines = k.lines[:mark]; L = key_list()
        for x in body_:
            if x == 's_nop 1' and L: k(L.pop(0)); k('s_nop 0')
            else: k(x)
        assert not L
    publish(k, [f'buffer_store_dword v{X}, v{vPO}, {WS}, s{x} offen' for x in [sP, 47][:OPT['prep']]])
    stamp(k, 2, stamps)
    k('s_barrier')
    if stamps and OPT['tw']:
        k('s_waitcnt vmcnt(0)')
        stamp(k, 3, stamps)
    load_flag()
    if OPT['kdel']: k(f"s_sleep {OPT['kdel']}")
    load_keys(OPT['kpos'] != 'soft')
    if OPT['sleepA']: k(f"s_sleep {OPT['sleepA']}")
    k(f's_add_u32 s{sUM}, s{sUM}, {UF_SEG}')
    k(f's_add_u32 s{sM}, s{sM}, {MEM_T}')
    k(f's_add_u32 s{sP}, s{sP}, {PB_T}')
    if stamps: k(f's_add_u32 s{sST}, s{sST}, 16')
    k(f's_add_u32 s{sSTEP}, s{sSTEP}, 1')
    k(f's_cmp_lt_u32 s{sSTEP}, {NSTEP}')
    k('s_cbranch_scc1 L_A_loop')
    diag(k, 5)
    edge(k, stamps, 8)
    k('s_waitcnt vmcnt(0)')
    k('s_endpgm')
    k.flush_cold()

def role_B(k, stamps=False, wait_u=None):
    WS = f's[{SWS}:{SWS+3}]'
    vLane, vL16, vG0, vG1, vIdx = 1, 2, 3, 4, 5
    vWL, vPT, vPM, vRW, vRR, vL4 = 6, 7, 8, 9, 10, 11
    vC = 12
    vM = 16
    vA = 44
    vU = 76
    vTm = 108
    vUi = 140
    vUm = 172
    vRR2 = 188
    vKeep, vFl = 191, 15
    vD = vTm
    vG = vTm + 16
    vP = [vM, vA]
    def W(gi, kb):
        i = gi*5 + kb
        return (256 + 8*i) if i < 32 else (192 + 8*(i-32))
    LM, LRED, LW = 0, 7168, 16384
    k.label('L_roleB')
    k(f's_sub_u32 s{sID}, s{sROLE}, 16')
    common_lane_setup(k, vLane, vL16, vG0, vG1, vIdx, vC)
    k(f's_lshl_b32 s{sT0}, s{sWAVE}, 2')
    k(f's_mul_i32 s{sT0}, s{sT0}, 28')
    k(f's_lshl_b32 s{sT1}, s{sID}, 1')
    k(f's_add_u32 s{sT0}, s{sT0}, s{sT1}')
    k(f's_mul_i32 s35, s{sT0}, 14336')
    k(f's_add_u32 s35, s35, {WTB}')
    k(f's_lshl_b32 s37, s{sWAVE}, 15')
    k(f's_add_u32 s37, s37, {LW}')
    k(f'v_add_u32 v{vWL}, s37, v{vL16}')
    for j in range(7):
        k(f's_add_u32 s{50+j}, s{sWAVE}, {(4*j) % 7}')
        k(f's_sub_u32 s40, s{50+j}, 7')
        k(f's_cmp_ge_u32 s{50+j}, 7')
        k(f's_cselect_b32 s{50+j}, s40, s{50+j}')
        k(f's_lshl_b32 s{50+j}, s{50+j}, 10')
    k(f'v_add_u32 v{vG1}, s51, v{vL16}')
    for gi in range(8):
        k(f's_add_u32 s36, s35, {(gi>>1)*28*14336 + (gi&1)*14336}')
        for j in range(7):
            k(f's_lshl_b32 s40, s{50+j}, 1')
            k(f's_add_u32 s40, s40, s36')
            if j >= 5:
                k(f's_add_u32 s38, s37, {gi*4096 + (j-5)*2048}')
                k(f's_mov_b32 m0, s38')
                k('s_nop 0')
            for f in range(2):
                if j < 5: k(f'buffer_load_dwordx4 {xr(W(gi, j) + 4*f,4)}, v{vL16}, {WS}, s40 offen offset:{f*1024}')
                else:     k(f'buffer_load_dwordx4 v{vL16}, {WS}, s40 offen offset:{f*1024} lds')
        k('s_waitcnt vmcnt(40)')
    g, i = vA, vA+1
    vT = vC
    k(f'v_lshrrev_b32 v{g}, 4, v{vLane}')
    k(f'v_and_b32 v{i}, 15, v{vLane}')
    k(f's_lshl_b32 s40, s{sWAVE}, 11')
    k(f'v_add_u32 v{vPT}, s40, v{vL16}')
    k(f'v_lshrrev_b32 v{vT}, 1, v{g}')
    k(f'v_lshlrev_b32 v{vT}, 8, v{vT}')
    k(f'v_lshl_add_u32 v{vT}, v{i}, 4, v{vT}')
    k(f's_lshl_b32 s40, s{sWAVE}, 9')
    k(f's_add_u32 s40, s40, 8192')
    k(f'v_add_u32 v{vPM}, s40, v{vT}')
    k(f's_lshl_b32 s40, s{sWAVE}, 10')
    k(f's_add_u32 s40, s40, {LRED}')
    k(f'v_add_u32 v{vRW}, s40, v{vL16}')
    k(f'v_and_b32 v{vT}, 3, v{vLane}')
    k(f'v_lshlrev_b32 v{vT}, 6, v{vT}')
    k(f'v_lshrrev_b32 v{vT+1}, 5, v{vLane}')
    k(f'v_lshl_add_u32 v{vT}, v{vT+1}, 5, v{vT}')
    k(f'v_lshrrev_b32 v{vT+1}, 2, v{vLane}')
    k(f'v_and_b32 v{vT+2}, 3, v{vT+1}')
    k(f'v_lshl_add_u32 v{vT}, v{vT+2}, 2, v{vT}')
    k(f'v_bfe_u32 v{vT+2}, v{vLane}, 4, 1')
    k(f'v_lshl_add_u32 v{vT}, v{vT+2}, 8, v{vT}')
    k(f's_and_b32 s40, s{sWAVE}, 1')
    k(f's_lshl_b32 s40, s40, 9')
    k(f's_add_u32 s40, s40, {LRED}')
    k(f'v_add_u32 v{vRR}, s40, v{vT}')
    for w in range(1, 4): k(f'v_add_u32 v{vRR2+w-1}, {1024*w}, v{vRR}')
    k(f's_lshl_b32 s40, s{sID}, 1')
    k(f's_and_b32 s41, s{sWAVE}, 1')
    k(f's_add_u32 s40, s40, s41')
    k(f's_lshl_b32 s40, s40, 8')
    k(f'v_lshlrev_b32 v{vL4}, 2, v{vLane}')
    k(f'v_add_u32 v{vL4}, s40, v{vL4}')
    k(f's_mov_b32 s{sSTEP}, 0')
    k(f's_lshr_b32 s{sM}, s{sWAVE}, 1')
    k(f's_mul_i32 s{sM}, s{sM}, {2*MEM_S}')
    k(f's_add_u32 s{sM}, s{sM}, {MEM}')
    k(f's_mov_b32 s47, {MEMX - MEM_S}')
    k(f"s_mov_b32 s49, {MEM + (NREP-1)*MEM_S}")
    k(f's_and_b32 s{sP}, s{sID}, 1')
    k(f"s_mul_i32 s{sP}, s{sP}, {PB_S if OPT['prep'] == 2 else 0}")
    k(f's_add_u32 s{sP}, s{sP}, {PB}')
    k(f's_lshl_b32 s{sX}, s{sID}, 15')
    k(f's_lshl_b32 s40, s{sWAVE}, 13')
    k(f's_add_u32 s{sX}, s{sX}, s40')
    k(f's_add_u32 s{sX}, s{sX}, {UF}')
    k(f's_mul_i32 s{sUM}, s{sWAVE}, {2*28*1024}')
    k(f's_lshl_b32 s40, s{sID}, 11')
    k(f's_add_u32 s{sUM}, s{sUM}, s40')
    k(f's_add_u32 s{sUM}, s{sUM}, {UM}')
    k(f's_mov_b32 s43, s{sUM}')
    def ldu(j, s0=sX):
        hh, T = j >> 1, j & 1
        r = vU + 16*(hh>>1) + 8*T + 4*(hh&1)
        return f'buffer_load_dwordx4 {vr(r,4)}, v{vL16}, {WS}, s{s0 if j<4 else sT0} offen offset:{(j&3)*1024} ' + OPT['uf']
    def stum(u, T):
        return f'buffer_store_dwordx4 {vr(vUm+8*T+4*u,4)}, v{vL16}, {WS}, s{43 if u==0 else 44} offen offset:{T*1024} ' + OPT['um']
    def lw(gi):
        b = vTm + 16*(gi&1)
        for f in range(4): k.ds(f'ds_read_b128 {vr(b+4*f,4)}, v{vWL} offset:{gi*4096+f*1024}', f'w{gi}')
    def load_u(ahead):
        if wait_u:
            lu = k.newlabel('Lnu')
            k(f's_add_u32 s{sT0}, s{sSTEP}, {ahead}')
            k(f's_and_b32 s{sT1}, s{sT0}, 3')
            k(f's_cbranch_scc1 {lu}')
            k(f's_lshl_b32 s{sT0}, s{sT0}, 5')
            k(f's_add_u32 s{sT0}, s{sT0}, {flag(F_U)}')
            wait_u(k, sT0, 32, vC, sleep=1)
            k.label(lu)
        k(f's_add_u32 s{sT0}, s{sX}, 4096')
        for j in range(8): k(ldu(j))
        k(f's_add_u32 s{sX}, s{sX}, {UF_SEG}')
    if OPT['u0'] == 'pro': load_u(0)
    wait_mode(k, vC)
    sw = []
    for o in range(4):
        r = vU + 8*o
        for e in range(4):
            sel = e & 1
            sw.append(f'v_pk_mov_b32 {vr(vUi+8*o+2*e,2)}, {vr(r+(e&2),2)}, {vr(r+4+(e&2),2)} op_sel:[{sel},{sel}]')
    if stamps: k(f's_add_u32 s76, s{sST}, 0x20000')
    edge(k, stamps, 0)
    diag(k, 7)
    k('s_branch L_B_loop')
    k('.p2align 8')
    for _ in range(OPT['padB']): k('s_nop 0')
    k.label('L_B_loop')
    lp = k.newlabel('Lgm')
    def gl():
        sb = 49
        k(f'buffer_load_dwordx4 {vr(vM,4)}, v{vG0}, {WS}, s{sb} offen sc1')
        k(f'buffer_load_dwordx4 {vr(vM+4,4)}, v{vG1}, {WS}, s{sb} offen sc1')
    k(f's_waitcnt vmcnt({NREP})')
    NU = OPT['nu2']
    if OPT['bdel']: k(f"s_sleep {OPT['bdel']}")
    k(f's_add_u32 s{sT0}, s{sX}, {4096 - UF_SEG}')
    k(f's_sub_u32 s{sT1}, s{sX}, {UF_SEG}')
    for j in range(8-NU, 8): k(ldu(j, sT1))
    gl()
    NS = 8 if NU <= 4 else 0
    if NU == 0: NS = 16
    for x in sw[:NS]: k(x)
    for r in range(0, 32, 2): k(f'v_mov_b64 {vr(vA+r,2)}, 0')
    for j in range(2, 7): k(f'v_add_u32 v{vG+j}, s{50+j}, v{vL16}')
    k(f's_add_u32 s45, s{sSTEP}, 1')
    k(f's_lshr_b32 s45, s45, 2')
    k(f's_lshl_b32 s45, s45, 7')
    k(f's_add_u32 s45, s45, {flag(F_U)}')
    k(f's_add_u32 s44, s43, {28*1024}')
    vm = [stum(0,0), stum(0,1), stum(1,0), stum(1,1)] + [ldu(j) for j in range(8)]
    lw(0)
    k(f's_mov_b32 s{sCNT}, 0')
    k(f's_branch {lp}w')
    k.label(lp)
    if OPT['bgs']: k(f"s_sleep {OPT['bgs']}")
    gl()
    k(f's_add_u32 s{sCNT}, s{sCNT}, 1')
    k(f's_cmp_gt_u32 s{sCNT}, s{sT2}')
    k('s_cbranch_scc1 L_fail')
    k.label(lp + 'w')
    k('s_waitcnt vmcnt(1)')
    k(f'v_max3_u32 v{vC}, v{vM}, v{vM+1}, v{vM+2}')
    k('s_waitcnt vmcnt(0)')
    k(f'v_max3_u32 v{vC+1}, v{vM+4}, v{vM+5}, v{vM+6}')
    k(f'v_max3_u32 v{vC}, v{vC}, v{vM+3}, v{vM+7}')
    k(f'v_max_u32 v{vC}, v{vC}, v{vC+1}')
    k(f'v_cmp_eq_u32 vcc, -1, v{vC}')
    k(f's_cbranch_vccnz {lp}')
    stamp(k, 0, stamps)
    k.ds(f'ds_write_b128 v{vG0}, {vr(vM,4)} offset:{LM}')
    k.ds(f'ds_write_b128 v{vG1}, {vr(vM+4,4)} offset:{LM}')
    ls, l2 = k.newlabel('Lbs'), k.newlabel('Lbt')
    k(f's_cmp_eq_u32 s{sSTEP}, 0')
    k(f's_cbranch_scc1 {l2}')
    k(f's_cmp_ge_u32 s{sWAVE}, 2')
    k(f's_cbranch_scc1 {ls}')
    k(f'buffer_store_dword v{vKeep}, v{vL4}, {WS}, s47 offen sc1')
    k(f's_branch {l2}')
    k.label(ls)
    k(f's_cmp_eq_u32 s{sWAVE}, 2')
    k(f's_cselect_b32 s{sT0}, s{sSTEP}, 0')
    k(f's_cmp_le_u32 s{sT0}, 1')
    k(f's_cbranch_scc1 {l2}')
    k(f's_lshl_b32 s{sT0}, s{sSTEP}, 7')
    k(f's_add_u32 s{sT0}, s{sT0}, {flag(F_UM) - 256}')
    k('s_mov_b64 exec, 1')
    k(f'v_mov_b32 v{vC}, 1')
    k(f'buffer_atomic_add v{vC}, off, {WS}, s{sT0}')
    k('s_mov_b64 exec, -1')
    k.label(l2)
    k(f'buffer_load_dword v{vFl}, off, {WS}, s45 sc1')
    for x in vm[:4]: k(x)
    def acc(gi): return vA + 4*gi
    def cvt(gi, h):
        hh, T = gi>>1, gi&1
        d = vUm + 8*T + 4*(hh>>1) + 2*h + (hh&1)
        a = acc(gi) + 2*h
        k(f'v_cvt_pk_bf16_f32 v{d}, v{a}, v{a+1}')
    def lw1(gi, f):
        k.ds(f'ds_read_b128 {vr(vTm+16*(gi&1)+4*f,4)}, v{vWL} offset:{gi*4096+f*1024}', f'w{gi}')
    def mid_u():
        lsk = k.newlabel('Lsk')
        k(f's_cmp_ge_u32 s{sSTEP}, {NSTEP-1}')
        k(f's_cbranch_scc1 {lsk}')
        k('s_waitcnt vmcnt(4)')
        if wait_u:
            lu = k.newlabel('Lnu')
            k(f'v_cmp_le_u32 vcc, 32, v{vFl}')
            k(f's_cbranch_vccnz {lu}')
            wait_u(k, 45, 32, vC)
            k.label(lu)
        k(f's_add_u32 s{sT0}, s{sX}, 4096')
        for j in range(8-NU): k(ldu(j))
        k.label(lsk)
        k(f's_add_u32 s{sX}, s{sX}, {UF_SEG}')
    def MB(gi, j):
        w = xr(W(gi,j),8) if j < 5 else vr(vTm + 16*(gi&1) + 8*(j-5), 8)
        k(f'v_smfmac_f32_16x16x64_bf16 {vr(acc(gi),4)}, {vr(vM+4*j,4)}, {w}, v{vIdx}')
    for n in range(16):
        MB(n & 7, n >> 3)
        if n == 5:
            k.wds0(); k('s_barrier')
        if 5 <= n < 10:
            k.ds(f'ds_read_b128 {vr(vM+4*(n-3),4)}, v{vG+n-3} offset:{LM}', f'm{n-3}')
    for gi in range(8):
        for j in range(2, 7):
            if gi == 0: k.wds(f'm{j}')
            if j == 5: k.wds(f'w{gi}')
            MB(gi, j)
            if gi < 7 and j in (2, 3, 5, 6): lw1(gi+1, {2:0, 3:1, 5:2, 6:3}[j])
            if gi >= 1 and j == 4: cvt(gi-1, 0); cvt(gi-1, 1)
        if gi + 1 == OPT['ug'] and gi < 7: mid_u()
    k(f's_mov_b32 s43, s{sUM}')
    k(f's_add_u32 s{sUM}, s{sUM}, {UM_SEG}')
    for x in sw[NS:]: k(x)
    k.nop(6 if NS == 16 else 0)
    cvt(7, 0); cvt(7, 1)
    for r in range(0, 8, 2): k(f'v_mov_b64 {vr(vD+r,2)}, 0')
    k(f's_cmp_ge_u32 s{sSTEP}, {NSTEP}')
    k('s_cbranch_scc1 L_B_end')
    if OPT['u0'] == 'cold':
        l0, l1 = k.newlabel('Lu0'), k.newlabel('Lu1')
        k(f's_cmp_eq_u32 s{sSTEP}, 0')
        k(f's_cbranch_scc1 {l0}')
        k.label(l1)
        main = k.lines; k.lines = []
        k.label(l0)
        load_u(0)
        k('s_waitcnt vmcnt(0)')
        for x in sw: k(x)
        k(f'v_mov_b32 v{vFl}, 32')
        k(f's_branch {l1}')
        k.cold += k.lines; k.lines = main
    if OPT['ug'] == 8: mid_u()
    stamp(k, 1, stamps)
    if OPT['sleepB']: k(f"s_sleep {OPT['sleepB']}")
    def issue(st):
        P = vP[st]
        return [f'buffer_load_dwordx4 {vr(P,4)}, v{vPT}, {WS}, s{sP} offen sc1',
                f'buffer_load_dwordx4 {vr(P+4,4)}, v{vPT}, {WS}, s{sP} offen offset:1024 sc1',
                f'buffer_load_dwordx4 {vr(P+8,4)}, v{vPM}, {WS}, s{sP} offen sc1']
    def checks(st):
        P = vP[st]
        return [(2, [f'v_max3_u32 v{vC}, v{P}, v{P+1}, v{P+2}']),
                (1, [f'v_max3_u32 v{vC+1}, v{P+4}, v{P+5}, v{P+6}', f'v_max3_u32 v{vC}, v{vC}, v{P+3}, v{P+7}']),
                (0, [f'v_max3_u32 v{vC+1}, v{vC+1}, v{P+8}, v{P+9}', f'v_max3_u32 v{vC}, v{vC}, v{P+10}, v{P+11}',
                     f'v_max_u32 v{vC}, v{vC}, v{vC+1}', f'v_cmp_eq_u32 vcc, -1, v{vC}'])]
    def body(st):
        P = vP[st]
        stamp(k, 2, stamps)
        for j in range(3):
            for T in range(2):
                b = vr(vUi + 16*j + 8*T, 8) if j < 2 else vr(vUm + 8*T, 8)
                k(f'v_smfmac_f32_16x16x64_bf16 {vr(vD+4*T,4)}, {vr(P+4*j,4)}, {b}, v{vIdx}')
    if OPT['bp2']: poll2(k, issue, checks, body, 'Lpp', OPT['stag'])
    else:
        lp = k.newlabel('Lp1')
        k(f's_mov_b32 s{sCNT}, 0')
        k.label(lp)
        for x in issue(0): k(x)
        k(f's_add_u32 s{sCNT}, s{sCNT}, 1')
        k(f's_cmp_gt_u32 s{sCNT}, s{sT2}')
        k('s_cbranch_scc1 L_fail')
        for rel, ins in checks(0):
            k(f's_waitcnt vmcnt({rel})')
            for x in ins: k(x)
        k(f's_cbranch_vccnz {lp}')
        body(0)
    k(f's_add_u32 s{sM}, s{sM}, {MEM_T}')
    k(f's_add_u32 s47, s47, {MEM_S}')
    k(f's_add_u32 s48, s{sM}, {MEM_S}')
    k(f's_add_u32 s49, s49, {MEM_T}')
    k(f's_add_u32 s{sP}, s{sP}, {PB_T}')
    k.nop(3)
    for r in range(4): k(f'v_permlane32_swap_b32 v{vD+r}, v{vD+4+r}')
    k(f'v_pk_add_f32 {vr(vD,2)}, {vr(vD,2)}, {vr(vD+4,2)}')
    k(f'v_pk_add_f32 {vr(vD+2,2)}, {vr(vD+2,2)}, {vr(vD+6,2)}')
    k.ds(f'ds_write_b128 v{vRW}, {vr(vD,4)}')
    k.wds0()
    k('s_barrier')
    if OPT['rep'] == 3:
        k(f's_cmp_ge_u32 s{sWAVE}, 2')
        k('s_cbranch_scc1 L_B_skip')
    R = vG
    for w in range(4): k.ds(f'ds_read2_b32 {vr(R+2*w,2)}, v{vRR} offset0:{0} offset1:{4}' if w == 0 else
                            f'ds_read2_b32 {vr(R+2*w,2)}, v{vRR2+w-1} offset0:0 offset1:4', f'r{w}')
    k(f's_cmp_eq_u32 s{sMODE}, 1')
    k.wds('r1')
    k(f'v_pk_add_f32 {vr(R,2)}, {vr(R,2)}, {vr(R+2,2)}')
    k.wds('r3')
    k(f'v_pk_add_f32 {vr(R+4,2)}, {vr(R+4,2)}, {vr(R+6,2)}')
    k(f'v_pk_add_f32 {vr(R,2)}, {vr(R,2)}, {vr(R+4,2)}')
    k(f'v_cvt_pk_bf16_f32 v{R}, v{R}, v{R+1}')
    k(f'v_min_u32 v{R}, -2, v{R}')
    publish(k, [f'buffer_store_dword v{R}, v{vL4}, {WS}, s{x} offen' for x in {1: [sM], 2: [sM, 49], 3: [sM, 48, 49]}[NREP]])
    k(f'v_mov_b32 v{vKeep}, v{R}')
    k(f's_cmp_lg_u32 s{sSTEP}, {NSTEP-1}')
    k('s_cbranch_scc1 L_B_skip2')
    k(f'buffer_store_dword v{R}, v{vL4}, {WS}, s47 offen sc1')
    k('s_branch L_B_skip2')
    k.label('L_B_skip')
    k('s_waitcnt vmcnt(0)')
    k.label('L_B_skip2')
    stamp(k, 3, stamps)
    k('s_barrier')
    k(f's_add_u32 s{sSTEP}, s{sSTEP}, 1')
    if stamps: k(f's_add_u32 s{sST}, s{sST}, 16')
    k('s_branch L_B_loop')
    k.label('L_B_end')
    edge(k, stamps, 8)
    for r in range(16): k(f'v_min_u32 v{vUm+r}, -2, v{vUm+r}')
    k(f's_add_u32 s44, s43, {28*1024}')
    for x in vm[:4]: k(x)
    k('s_waitcnt vmcnt(4)')
    k('s_barrier')
    k(f's_cmp_lg_u32 s{sWAVE}, 0')
    k('s_cbranch_scc1 L_exit')
    k('s_mov_b64 exec, 1')
    k(f'v_mov_b32 v{vC}, 1')
    k(f's_mov_b32 s{sT0}, {flag(F_UM + 62)}')
    k(f'buffer_atomic_add v{vC}, off, {WS}, s{sT0}')
    k('s_endpgm')
    k.flush_cold()

def role_P(k, wait_u=None):
    WS = f's[{SWS}:{SWS+3}]'
    vLane, vU, vX, vS, vD = 1, 2, 3, 4, 8
    D = OPT['pfd']; st = OPT['pfs']; sh = 7 if st == 128 else 6
    k.label('L_roleP')
    k(f's_mov_b32 s{sT2}, {POLL_LIMIT}')
    k(f's_sub_u32 s{sID}, s{sROLE}, 30')
    k(f's_lshl_b32 s{sID}, s{sID}, 2')
    k(f's_add_u32 s{sID}, s{sID}, s{sWAVE}')
    k(f'v_and_b32 v{vLane}, 63, v0')
    k(f'v_lshlrev_b32 v{vU}, {sh}, v{vLane}')
    k(f's_mul_i32 s40, s{sID}, {UF_SEG//8}')
    k(f'v_add_u32 v{vU}, s40, v{vU}')
    f2 = 2 if OPT['pf64'] else 1
    for reg, n in ((vX, 28*f2), (vS, PB_T//1024*f2), (vS+1, 7*NREP*f2)):
        k(f'v_min_u32 v{reg}, {n-1}, v{vLane}')
        k(f's_mul_i32 s40, s{sID}, {n}')
        k(f'v_add_lshl_u32 v{reg}, v{reg}, s40, {8 - f2}')
    k(f's_mov_b32 s{sSTEP}, 0')
    k(f's_mov_b32 s{sX}, {UF}')
    k(f's_mov_b32 s{sUM}, {XNS}')
    k(f's_mov_b32 s{sP}, {PB}')
    k(f's_mov_b32 s{sM}, {MEM + MEM_T}')
    k(f's_mov_b32 s41, {MEM - D*MEM_T + (NREP-1)*MEM_S}')
    if OPT['cpf']:
        k('s_getpc_b64 s[44:45]')
        k.label('L_P_pc')
        k('s_sub_u32 s44, s44, L_P_pc-L_roleA')
        k('s_subb_u32 s45, s45, 0')
        k(f's_lshl_b32 s40, s{sID}, 12')
        k(f'v_lshlrev_b32 v20, 6, v{vLane}')
        k('v_add_u32 v20, s40, v20')
        k('v_min_u32 v20, L_P_pc-L_roleA, v20')
        k('v_mov_b32 v21, s45')
        k('v_add_co_u32 v20, vcc, s44, v20')
        k('s_nop 1')
        k('v_addc_co_u32 v21, vcc, 0, v21, vcc')
        k('global_load_dword v22, v[20:21], off')
    if OPT['diag']:
        diag(k, 3)
        k(f'v_lshlrev_b32 v20, 3, v{vLane}')
        k(f's_lshl_b32 s40, s{sWAVE}, 9')
        k(f's_add_u32 s40, s40, {STAMP}')
        k(f'buffer_load_dwordx2 v[22:23], v20, {WS}, s40 offen')
        k('s_waitcnt vmcnt(0)')
        k('v_not_b32 v22, v22')
        k(f'buffer_atomic_umax v22, off, s[{SDBG}:{SDBG+3}], 0 offset:0')
        k(f'buffer_atomic_umax v23, off, s[{SDBG}:{SDBG+3}], 0 offset:4')
    k.label('L_P_loop')
    k(f's_cmp_le_u32 s{sSTEP}, {D}')
    k('s_cbranch_scc1 L_P_go')
    k(f's_mov_b32 s{sCNT}, 0')
    k.label('L_P_wait')
    k(f'buffer_load_dword v{vD}, off, {WS}, s41 sc1')
    k(f's_add_u32 s{sCNT}, s{sCNT}, 1')
    k(f's_cmp_gt_u32 s{sCNT}, s{sT2}')
    k('s_cbranch_scc1 L_fail')
    k('s_waitcnt vmcnt(0)')
    k(f'v_cmp_eq_u32 vcc, -1, v{vD}')
    k('s_cbranch_vccz L_P_go')
    k('s_sleep 2')
    k('s_branch L_P_wait')
    k.label('L_P_go')
    k(f'buffer_load_dword v{vD+1}, v{vS}, {WS}, s{sP} offen sc1')
    k(f'buffer_load_dword v{vD+2}, v{vS+1}, {WS}, s{sM} offen sc1')
    k(f'buffer_load_dword v{vD+3}, v{vX}, {WS}, s{sUM} offen sc1')
    n = 0 if OPT['apf'] else UF_SEG // 8 // (64*st)
    k(f's_mov_b32 s{sT0}, s{sX}')
    for j in range(n):
        k(f'buffer_load_dword v{vD+4+j}, v{vU}, {WS}, s{sT0} offen sc1')
        k(f's_add_u32 s{sT0}, s{sT0}, {64*st}')
    k(f's_add_u32 s{sX}, s{sX}, {UF_SEG}')
    k(f's_add_u32 s{sUM}, s{sUM}, 28672')
    k(f's_add_u32 s{sP}, s{sP}, {PB_T}')
    k(f's_add_u32 s{sM}, s{sM}, {MEM_T}')
    k(f's_add_u32 s41, s41, {MEM_T}')
    k(f's_add_u32 s{sSTEP}, s{sSTEP}, 1')
    k(f's_cmp_lt_u32 s{sSTEP}, {NSTEP}')
    k('s_cbranch_scc1 L_P_loop')
    k('s_waitcnt vmcnt(0)')
    k('s_endpgm')
```

```python
from chain import K, OPT
from asmlib import *
from layout import *
import math, struct

def f32bits(x): return struct.unpack('<I', struct.pack('<f', x))[0]
PREP_GRID, PREP_BLOCK, PREP_LDS = 256, 512, 3*43008 + 28672

def srd(k, s, argoff, size):
    k(f's_load_dwordx2 s[{s}:{s+1}], s[0:1], {argoff}')
    k(f's_mov_b32 s{s+2}, {size}')
    k(f's_mov_b32 s{s+3}, 0x20000')

def gen_prep(tl=False):
    k = K()
    WS = 's[4:7]'
    k(f's_cmp_ge_u32 s2, {PREP_GRID}')
    k('s_cbranch_scc1 P_exit')
    srd(k, 4, 112, WS_SIZE)
    k('v_lshrrev_b32 v1, 6, v0')
    k('v_and_b32 v2, 63, v0')
    k('v_readfirstlane_b32 s16, v1')
    if tl or OPT['diag']: k('s_memrealtime s[40:41]')
    k('s_nop 2')
    if OPT['k1pf']:
        k('s_cmp_ge_u32 s16, 4')
        k('s_cbranch_scc1 P_nopf')
        k('s_lshl_b32 s44, s16, 3')
        k('s_add_u32 s44, s44, 16')
        k('s_load_dwordx2 s[56:57], s[0:1], s44')
        k('s_mov_b32 s58, 3670016')
        k('s_mov_b32 s59, 0x20000')
        k('v_lshlrev_b32 v190, 7, v2')
        k('s_mul_i32 s44, s2, 14336')
        k('s_add_u32 s45, s44, 6144')
        k('s_waitcnt lgkmcnt(0)')
        k('s_and_b32 s57, s57, 0xffff')
        k('buffer_load_dword v191, v190, s[56:59], s44 offen')
        k('buffer_load_dword v189, v190, s[56:59], s45 offen')
        k.label('P_nopf')
    k('s_cmp_eq_u32 s16, 7')
    k('s_cbranch_scc1 P_ln')
    k('s_and_b32 s19, s2, 15')
    k('s_bfe_u32 s18, s2, 0x10005')
    k('s_lshr_b32 s20, s2, 6')
    k('s_bitcmp1_b32 s2, 4')
    k('s_cbranch_scc1 P_gB0')
    srd(k, 8, 16, 3670016); srd(k, 12, 24, 3670016)
    k('s_branch P_g1')
    k.label('P_gB0')
    srd(k, 8, 32, 3670016); srd(k, 12, 40, 3670016)
    k.label('P_g1')
    vI, vG, vL16 = 3, 4, 5
    vR, vC, vRA, vCA, vt = 6, 10, 12, 16, 18
    vRAs, vCAs = 20, 24
    k(f'v_and_b32 v{vI}, 15, v2')
    k(f'v_lshrrev_b32 v{vG}, 4, v2')
    k(f'v_lshlrev_b32 v{vL16}, 4, v2')
    k('s_mul_i32 s21, s18, 7')
    k('s_add_u32 s21, s21, s16')
    k(f'v_lshrrev_b32 v{vt}, 3, v2')
    k('s_lshl_b32 s22, s21, 5')
    k(f'v_add_u32 v{vt}, s22, v{vt}')
    k(f'v_lshlrev_b32 v{vt}, 13, v{vt}')
    k('s_lshl_b32 s22, s19, 9')
    k(f'v_add_u32 v{vt}, s22, v{vt}')
    k(f'v_and_b32 v{vt+1}, 7, v2')
    k(f'v_and_b32 v26, 1, v{vG}')
    k(f'v_xor_b32 v{vt+1}, v{vt+1}, v26')
    for q in range(4):
        k(f'v_xor_b32 v26, {2*q}, v{vt+1}')
        k(f'v_lshl_add_u32 v{vR+q}, v26, 4, v{vt}')
        if q: k(f'v_add_u32 v{vR+q}, {q*8*8192}, v{vR+q}')
    k(f'v_lshrrev_b32 v{vt}, 2, v{vI}')
    k(f'v_bfe_u32 v{vt+1}, v{vI}, 1, 1')
    k(f'v_lshl_add_u32 v{vt+1}, v{vt}, 1, v{vt+1}')
    k(f'v_xor_b32 v{vt+1}, v{vt+1}, v{vG}')
    k(f'v_lshlrev_b32 v{vt+1}, 4, v{vt+1}')
    k(f'v_lshl_add_u32 v{vt+1}, v{vt}, 10, v{vt+1}')
    k(f'v_and_b32 v{vt}, 3, v{vI}')
    k(f'v_lshl_add_u32 v{vt+1}, v{vt}, 7, v{vt+1}')
    k('s_lshl_b32 s33, s16, 12')
    k(f'v_add_u32 v{vRA}, s33, v{vt+1}')
    k(f'v_xor_b32 v{vRA+1}, 64, v{vRA}')
    k('s_lshl_b32 s22, s18, 1')
    k('s_add_u32 s22, s22, s20')
    for j in range(4):
        k(f's_add_u32 s{24+j}, s22, {j}')
        k(f's_and_b32 s{24+j}, s{24+j}, 3')
    vC3 = 156
    vAcc, vOp = 28, 84
    k('s_lshl_b32 s32, s16, 11')
    k('s_add_u32 s32, s32, 28672')
    def mm(n):
        o = vOp + 36*(n&1)
        for T in range(2):
            for ct in range(7):
                a = vAcc + 28*T + 4*ct
                k(f'v_mfma_f32_16x16x32_bf16 {vr(a,4)}, {vr(o+4*T,4)}, {vr(o+8+4*ct,4)}, {"0" if n == 0 else vr(a,4)}')
    def body(gstep, rdc, cdma):
        if tl == 2: k('s_memrealtime s[46:47]')
        k('s_waitcnt lgkmcnt(0)')
        if tl == 2: k('s_memrealtime s[48:49]')
        k('s_and_b32 s5, s5, 0xffff'); k('s_and_b32 s9, s9, 0xffff'); k('s_and_b32 s13, s13, 0xffff')
        k.vmq = []
        def issue(j):
            sb = j*43008
            k(f's_lshl_b32 s36, s{24+j}, 7')
            k(f's_mul_i32 s35, s{24+j}, {gstep}')
            if j < 3: cdma(sb, j)
            else:
                for hq in range(2): k.vm(f'buffer_load_dwordx4 {vr(vC3+4*hq,4)}, v{vC+hq}, s[12:15], s35 offen', 'c3')
            for q in range(4):
                k(f's_add_u32 s34, s33, {sb + q*1024}')
                k('s_mov_b32 m0, s34')
                k('s_nop 0')
                k.vm(f'buffer_load_dwordx4 v{vR+q}, s[8:11], s36 offen lds', j)
        for j in range(4): issue(j)
        k(f'v_add_u32 v26, s32, v{vL16}')
        if tl == 2: k('s_memrealtime s[50:51]')
        def rd(n):
            j, es = n >> 1, n & 1
            o = vOp + 36*(n&1)
            for T in range(2): k(f'ds_read_b128 {vr(o+4*T,4)}, v{vRAs+es} offset:{T*512}')
            rdc(o + 8, es)
        for n in range(9):
            j = n >> 1
            if n < 8 and n % 2 == 0:
                sb = j*43008
                if j == 2:
                    k.wvm('c3')
                    for hq in range(2): k(f'ds_write_b128 v26, {vr(vC3+4*hq,4)} offset:{hq*cdma.step}')
                k.wvm(j, extra='lgkmcnt(0)')
                k('s_barrier')
                if tl == 1 and j in (0, 1, 3): k(f's_memrealtime s[{46+2*((j+1)//2)}:{47+2*((j+1)//2)}]')
                for e in range(2):
                    k(f'v_add_u32 v{vRAs+e}, {sb}, v{vRA+e}')
                    k(f'v_add_u32 v{vCAs+e}, {sb if j < 3 else 0}, v{vCA+e}')
            if n < 8: rd(n)
            if n > 0:
                k(f's_waitcnt lgkmcnt({0 if (n == 8 or tl) else min(15, rdc.n + 2)})')
                mm(n-1)
    k('s_bitcmp1_b32 s2, 4')
    k('s_cbranch_scc1 P_gB')
    k('s_mul_i32 s22, s20, 7')
    k('s_add_u32 s22, s22, s16')
    k('s_lshr_b32 s23, s22, 1')
    k('s_lshl_b32 s23, s23, 5')
    k('s_and_b32 s22, s22, 1')
    k('s_lshl_b32 s22, s22, 3')
    k('s_add_u32 s22, s22, s23')
    k(f'v_bfe_u32 v{vt}, v2, 4, 1')
    k(f'v_lshlrev_b32 v{vt}, 2, v{vt}')
    k(f'v_bfe_u32 v{vt+1}, v2, 5, 1')
    k(f'v_lshl_add_u32 v{vt}, v{vt+1}, 1, v{vt}')
    k(f'v_bfe_u32 v{vt+1}, v2, 3, 1')
    k(f'v_add3_u32 v{vt}, v{vt}, v{vt+1}, s22')
    k(f'v_lshlrev_b32 v{vt}, 13, v{vt}')
    k('s_lshl_b32 s22, s19, 9')
    k(f'v_add_u32 v{vt}, s22, v{vt}')
    k(f'v_and_b32 v{vt+1}, 7, v2')
    k(f'v_xor_b32 v{vt+1}, v{vt+1}, v{vG}')
    k(f'v_lshl_add_u32 v{vC}, v{vt+1}, 4, v{vt}')
    k(f'v_xor_b32 v{vt+1}, 4, v{vt+1}')
    k(f'v_lshl_add_u32 v{vC+1}, v{vt+1}, 4, v{vt}')
    k(f'v_add_u32 v{vC+1}, {16*8192}, v{vC+1}')
    k(f'v_lshrrev_b32 v{vt}, 1, v{vI}')
    k(f'v_xor_b32 v{vt}, v{vt}, v{vG}')
    k(f'v_lshlrev_b32 v{vt}, 4, v{vt}')
    k(f'v_lshl_add_u32 v{vt}, v{vI}, 7, v{vt}')
    k(f'v_add_u32 v{vCA}, 28672, v{vt}')
    k(f'v_xor_b32 v{vCA+1}, 64, v{vCA}')
    def rdA(o, es):
        for ct in range(7): k(f'ds_read_b128 {vr(o+4*ct,4)}, v{vCAs+es} offset:{ct*2048}')
    rdA.n = 7
    def dmaA(sb, j):
        for hq in range(2):
            k(f's_add_u32 s34, s32, {sb + hq*1024}')
            k('s_mov_b32 m0, s34')
            k('s_nop 0')
            k.vm(f'buffer_load_dwordx4 v{vC+hq}, s[12:15], s35 offen lds', j)
    dmaA.step = 1024
    body(128, rdA, dmaA)
    k(f's_mov_b32 s22, {f32bits(math.log2(math.e)/16):#x}')
    k(f's_mov_b32 s23, {WTA}')
    k('s_branch P_gepi')
    k.label('P_gB')
    k(f's_mov_b32 s22, {(1<<32)//14 + 1}')
    k(f'v_mul_hi_u32 v{vt}, v0, s22')
    k(f'v_mul_u32_u24 v{vt+1}, 14, v{vt}')
    k(f'v_sub_u32 v{vt+1}, v0, v{vt+1}')
    k(f'v_mul_u32_u24 v{vt}, 896, v{vt}')
    k(f'v_lshl_add_u32 v{vt}, v{vt+1}, 4, v{vt}')
    k('s_mul_i32 s22, s19, 229376')
    k('s_mul_i32 s23, s20, 224')
    k('s_add_u32 s22, s22, s23')
    k(f'v_add_u32 v{vC}, s22, v{vt}')
    k(f'v_add_u32 v{vC+1}, {32*896}, v{vC}')
    k('s_lshl_b32 s32, s16, 10')
    k('s_add_u32 s32, s32, 28672')
    k(f'v_bfe_u32 v{vt}, v2, 2, 2')
    k(f'v_lshl_add_u32 v{vt}, v{vG}, 3, v{vt}')
    k(f'v_mul_u32_u24 v{vt}, 224, v{vt}')
    k(f'v_and_b32 v{vt+1}, 3, v2')
    k(f'v_lshl_add_u32 v{vt}, v{vt+1}, 3, v{vt}')
    k(f'v_add_u32 v{vCA}, 28672, v{vt}')
    k(f'v_add_u32 v{vCA+1}, 7168, v{vCA}')
    def rdB(o, es):
        for ct in range(7):
            for hh in range(2): k(f'ds_read_b64_tr_b16 {vr(o+4*ct+2*hh,2)}, v{vCAs+es} offset:{ct*32+hh*896}')
    rdB.n = 14
    def dmaB(sb, j):
        for hq in range(2):
            k(f's_add_u32 s34, s32, {sb + hq*7168}')
            k('s_mov_b32 m0, s34')
            k('s_nop 0')
            k.vm(f'buffer_load_dwordx4 v{vC+hq}, s[12:15], s35 offen lds', j)
    dmaB.step = 7168
    body(64*896, rdB, dmaB)
    k('s_mov_b32 s22, 1.0')
    k(f's_mov_b32 s23, {WTB}')
    k.label('P_gepi')
    if tl: k('s_memrealtime s[52:53]')
    k('s_mul_i32 s24, s19, 28')
    k('s_mul_i32 s25, s20, 7')
    k('s_add_u32 s24, s24, s25')
    k('s_mul_i32 s24, s24, 14')
    k('s_add_u32 s24, s24, s21')
    k('s_lshl_b32 s24, s24, 10')
    k('s_add_u32 s24, s24, s23')
    k('s_mov_b32 s23, s22')
    for ct in range(7):
        d = vOp + 4*ct
        for T in range(2):
            a = vAcc + 28*T + 4*ct
            k(f'v_pk_mul_f32 {vr(a,2)}, {vr(a,2)}, s[22:23]')
            k(f'v_pk_mul_f32 {vr(a+2,2)}, {vr(a+2,2)}, s[22:23]')
            k(f'v_cvt_pk_bf16_f32 v{d+2*T}, v{a}, v{a+1}')
            k(f'v_cvt_pk_bf16_f32 v{d+2*T+1}, v{a+2}, v{a+3}')
        k(f'buffer_store_dwordx4 {vr(d,4)}, v{vL16}, {WS}, s24 offen ' + OPT['k1st'])
        k('s_add_u32 s24, s24, 14336')
    if OPT['diag']:
        k('s_waitcnt vmcnt(0)')
        k('s_memrealtime s[42:43]')
        k('s_lshl_b32 s44, s2, 3')
        k(f's_add_u32 s44, s44, {STAMP}')
        k('s_waitcnt lgkmcnt(0)')
        k('v_mov_b32 v10, s40'); k('v_mov_b32 v11, s42')
        k(f'buffer_store_dwordx2 v[10:11], off, {WS}, s44')
    if tl:
        k('s_waitcnt vmcnt(0)')
        k('s_memrealtime s[42:43]')
        k('s_lshl_b32 s44, s2, 5')
        k(f's_add_u32 s44, s44, {STAMP + 0xE0000}')
        k('s_waitcnt lgkmcnt(0)')
        k('v_mov_b32 v10, s40'); k('v_mov_b32 v11, s42'); k('v_mov_b32 v12, s46'); k('v_mov_b32 v13, s48')
        k('v_mov_b32 v14, s50'); k('v_mov_b32 v15, s52')
        k(f'buffer_store_dwordx4 v[10:13], off, {WS}, s44')
        k(f'buffer_store_dwordx2 v[14:15], off, {WS}, s44 offset:16')
    k('s_endpgm')
    k.label('P_ln')
    srd(k, 8, 0, 1835008); srd(k, 12, 64, 896)
    srd(k, 28, 8, 7168)
    k('s_mov_b32 s17, s2')
    k('v_lshrrev_b32 v3, 3, v2')
    k('s_lshl_b32 s18, s17, 3')
    k('v_add_u32 v3, s18, v3')
    k('v_and_b32 v4, 7, v2')
    k('v_mul_u32_u24 v5, 896, v3')
    k('v_lshl_add_u32 v5, v4, 4, v5')
    k('v_lshlrev_b32 v6, 4, v4')
    vX, vW, vF = 16, 44, 72
    k('s_waitcnt lgkmcnt(0)')
    k('s_and_b32 s5, s5, 0xffff'); k('s_and_b32 s9, s9, 0xffff'); k('s_and_b32 s13, s13, 0xffff')
    for i in range(7): k(f'buffer_load_dwordx4 {vr(vX+4*i,4)}, v5, s[8:11], 0 offen offset:{i*128}')
    for i in range(7): k(f'buffer_load_dwordx4 {vr(vW+4*i,4)}, v6, s[12:15], 0 offen offset:{i*128}')
    k('v_lshrrev_b32 v7, 4, v3')
    k('v_mul_u32_u24 v7, 14336, v7')
    k('v_and_b32 v8, 15, v3')
    k('v_lshl_add_u32 v7, v8, 4, v7')
    k('v_lshrrev_b32 v8, 2, v4')
    k('v_lshl_add_u32 v7, v8, 10, v7')
    k('v_and_b32 v8, 3, v4')
    k('v_lshl_add_u32 v9, v8, 8, v7')
    k('v_bfe_u32 v8, v4, 1, 1')
    k('v_lshl_add_u32 v10, v8, 9, v7')
    k('v_and_b32 v8, 1, v4')
    k('v_lshl_add_u32 v10, v8, 3, v10')
    k('s_mov_b32 s20, 0xffff0000')
    k('s_and_b32 s29, s29, 0xffff')
    k('v_bfe_u32 v12, v2, 2, 3')
    k('v_mul_u32_u24 v12, 896, v12')
    k('v_and_b32 v13, 3, v2')
    k('v_lshl_add_u32 v12, v13, 3, v12')
    k('v_lshrrev_b32 v13, 5, v2')
    k('v_lshl_add_u32 v12, v13, 2, v12')
    k('s_lshl_b32 s21, s2, 5')
    k('buffer_load_dword v160, v12, s[28:31], s21 offen')
    if OPT['lnbar']: k('s_barrier')
    def fills():
        k('s_mov_b32 s32, s4'); k('s_mov_b32 s33, s5'); k(f's_mov_b32 s34, {SENT_END - MEM_S}'); k('s_mov_b32 s35, 0x20000')
        k('s_mov_b32 s36, s4'); k('s_mov_b32 s37, s5'); k(f's_mov_b32 s38, {FLG + FLG_SZ}'); k('s_mov_b32 s39, 0x20000')
        k('v_lshlrev_b32 v11, 4, v2')
        NF = -(-(SENT_END - MEM_S - MEM - MEM_T) // (256*1024))
        k(f's_mul_i32 s21, s2, {NF*1024}')
        k(f's_add_u32 s21, s21, {MEM + MEM_T}')
        for r in range(4): k(f'v_mov_b32 v{164+r}, -1')
        for r in range(4): k(f'v_mov_b32 v{168+r}, 0')
        for r in range(NF):
            k(f'buffer_store_dwordx4 v[164:167], v11, s[32:35], s21 offen offset:{(r&3)*1024} ' + OPT['k1ln'])
            if (r&3) == 3: k('s_add_u32 s21, s21, 4096')
        k(f's_mov_b32 s34, {UM + 64*UM_SEG}')
        k('s_lshl_b32 s21, s2, 10')
        k(f's_add_u32 s21, s21, {UM + 63*UM_SEG}')
        k('buffer_store_dwordx4 v[164:167], v11, s[32:35], s21 offen ' + OPT['k1ln'])
        k('s_lshl_b32 s21, s2, 10')
        k(f's_add_u32 s21, s21, {FLG}')
        k('buffer_store_dwordx4 v[168:171], v11, s[36:39], s21 offen ' + OPT['k1ln'])
    NFG = -(-(SENT_END - MEM_S - MEM - MEM_T) // (256*1024))
    late = OPT['k1late']
    if not late: fills()
    k(f's_waitcnt vmcnt({8 if late else 10 + NFG})')
    for d in range(28):
        k(f'v_lshlrev_b32 v{vF+2*d}, 16, v{vX+d}')
        k(f'v_and_b32 v{vF+2*d+1}, s20, v{vX+d}')
    def red8(v):
        for ctl in ('quad_perm:[1,0,3,2]', 'quad_perm:[2,3,0,1]', 'row_half_mirror'):
            k.nop(2)
            k(f'v_add_f32_dpp v{v}, v{v}, v{v} {ctl} row_mask:0xf bank_mask:0xf')
    def rbf(v):
        k(f'v_cvt_pk_bf16_f32 v{v}, v{v}, v{v}')
        k(f'v_and_b32 v{v}, s20, v{v}')
    k(f'v_pk_add_f32 v[12:13], {vr(vF,2)}, {vr(vF+2,2)}')
    for d in range(2, 28): k(f'v_pk_add_f32 v[12:13], v[12:13], {vr(vF+2*d,2)}')
    k('v_add_f32 v12, v12, v13')
    if OPT['lnbar']: k('s_barrier')
    red8(12)
    k(f's_mov_b32 s21, {f32bits(1/448):#x}')
    k('v_mul_f32 v12, s21, v12')
    k('v_mov_b32 v14, 0'); k('v_mov_b32 v15, 0')
    for d in range(28):
        k(f'v_pk_add_f32 {vr(vX,2)}, {vr(vF+2*d,2)}, v[12:13] op_sel_hi:[1,0] neg_lo:[0,1] neg_hi:[0,1]')
        k(f'v_pk_fma_f32 v[14:15], {vr(vX,2)}, {vr(vX,2)}, v[14:15]')
    k('v_add_f32 v14, v14, v15')
    red8(14)
    k('v_mul_f32 v14, s21, v14')
    rbf(14)
    k(f'v_add_f32 v14, {f32bits(1e-5):#x}, v14')
    rbf(14)
    k('v_sqrt_f32 v14, v14')
    k.nop(1)
    rbf(14)
    k('v_rcp_f32 v15, v14')
    rbf(12)
    k(f's_waitcnt vmcnt({0 if late else 2 + NFG})')
    k('v_mov_b32 v128, 0'); k('v_mov_b32 v129, 0')
    vO, vS = vX, 132
    for d in range(28):
        f = vF + 2*d
        k(f'v_pk_add_f32 {vr(f,2)}, {vr(f,2)}, v[12:13] op_sel_hi:[1,0] neg_lo:[0,1] neg_hi:[0,1]')
        k(f'v_cvt_pk_bf16_f32 v130, v{f}, v{f+1}')
        k(f'v_lshlrev_b32 v{f}, 16, v130')
        k(f'v_and_b32 v{f+1}, s20, v130')
        k(f'v_pk_mul_f32 v[130:131], {vr(f,2)}, v[14:15] op_sel:[0,1] op_sel_hi:[1,1]')
        k(f'v_pk_fma_f32 {vr(f,2)}, v[130:131], v[14:15], {vr(f,2)} op_sel_hi:[1,0,1] neg_lo:[1,0,0] neg_hi:[1,0,0]')
        k(f'v_pk_fma_f32 v[130:131], {vr(f,2)}, v[14:15], v[130:131] op_sel:[0,1,0] op_sel_hi:[1,1,1]')
        k(f'v_cvt_pk_bf16_f32 v{vO+d}, v130, v131')
        so = vS + 4*(d>>2) + {0:0, 1:2, 2:1, 3:3}[d&3]
        k(f'v_mov_b32 v{so}, v{vO+d}')
        k(f'v_dot2_f32_bf16 v{128+(d&1)}, v{vO+d}, v{vW+d}, v{128+(d&1)}')
        if OPT['lnbar'] and d in (3, 15): k('s_barrier')
    k(f's_mov_b32 s23, {XNF}'); k(f's_mov_b32 s24, {XNS}')
    for i in range(7):
        k(f'buffer_store_dwordx4 {vr(vO+4*i,4)}, v9, {WS}, s23 offen offset:{(i&1)*2048} ' + OPT['k1ln'])
        k(f'buffer_store_dwordx2 {vr(vS+4*i,2)}, v10, {WS}, s24 offen offset:{(i&1)*2048} ' + OPT['k1ln'])
        k(f'buffer_store_dwordx2 {vr(vS+4*i+2,2)}, v10, {WS}, s24 offen offset:{(i&1)*2048+256} ' + OPT['k1ln'])
        if i & 1:
            k('s_add_u32 s23, s23, 4096'); k('s_add_u32 s24, s24, 4096')
    if late: fills()
    k.nop(2)
    k('v_add_f32 v128, v128, v129')
    red8(128)
    rbf(128)
    k('v_lshlrev_b32 v3, 2, v3')
    k(f's_mov_b32 s22, {RR}')
    k(f'buffer_store_dword v128, v3, {WS}, s22 offen ' + OPT['k1ln'])
    if tl:
        k('s_waitcnt vmcnt(0)')
        k('s_memrealtime s[42:43]')
        k('s_lshl_b32 s44, s2, 5')
        k(f's_add_u32 s44, s44, {STAMP + 0xE0000}')
        k('s_waitcnt lgkmcnt(0)')
        k('v_mov_b32 v10, s42')
        k(f'buffer_store_dword v10, off, {WS}, s44 offset:24')
    k('s_cmp_ge_u32 s2, 28')
    k('s_cbranch_scc1 P_exit')
    k('v_min_u32 v160, -2, v160')
    k('v_lshlrev_b32 v11, 2, v2')
    k('s_lshl_b32 s21, s2, 8')
    k(f's_add_u32 s22, s21, {MEM}')
    k(f's_add_u32 s21, s21, {SENT_END - MEM_S}')
    for r in range(NREP):
        k(f'buffer_store_dword v160, v11, {WS}, s22 offen ' + OPT['k1ln'])
        k(f's_add_u32 s22, s22, {MEM_S}')
    k(f'buffer_store_dword v160, v11, {WS}, s21 offen ' + OPT['k1ln'])
    k.label('P_exit')
    k('s_endpgm')
    return k
```

```python
from chain import *
from prep import srd, f32bits
WS = 's[4:7]'
sH, sBLK, sSEG, sQT, sCG, sJ = 60, 61, 62, 63, 64, 65
vLn, vL16 = 1, 2

def wait_flag(k, off_sgpr, target, vT, name='Lwf', sleep=8):
    lp, dn = k.newlabel(name), k.newlabel(name + 'd')
    k(f's_mov_b32 s{sCNT}, 0')
    k.label(lp)
    k(f'buffer_load_dword v{vT}, off, {WS}, s{off_sgpr} sc1')
    k(f's_add_u32 s{sCNT}, s{sCNT}, 1')
    k(f's_cmp_gt_u32 s{sCNT}, s{sT2}')
    k('s_cbranch_scc1 L_fail')
    k('s_waitcnt vmcnt(0)')
    k(f'v_cmp_le_u32 vcc, {target}, v{vT}')
    k(f's_cbranch_vccnz {dn}')
    k(f's_sleep {sleep}')
    k(f's_branch {lp}')
    k.label(dn)

def wait1(k, off_sgpr, cond, vT, sleep, fast=None):
    lp, dn, l2 = k.newlabel('Lw1'), k.newlabel('Lw1d'), k.newlabel('Lw1f')
    k(f's_cmp_lg_u32 s{sWAVE}, 0')
    k(f's_cbranch_scc1 {dn}')
    k(f's_mov_b32 s{sCNT}, 0')
    k.label(lp)
    k(f'buffer_load_dword v{vT}, off, {WS}, s{off_sgpr} sc1')
    k(f's_add_u32 s{sCNT}, s{sCNT}, 1')
    k(f's_cmp_gt_u32 s{sCNT}, s{sT2}')
    k('s_cbranch_scc1 L_fail')
    k('s_waitcnt vmcnt(0)')
    k(cond)
    k(f's_cbranch_vccnz {dn}')
    if fast:
        k('s_sleep 2')
        k(fast)
        k(f's_cbranch_scc1 {lp}')
    k(f's_sleep {sleep}')
    k(f's_branch {lp}')
    k.label(dn)
    k('s_barrier')

def signal(k, off_sgpr, vT, val=1):
    dn = k.newlabel('Lsg')
    k('s_waitcnt vmcnt(0)')
    k('s_barrier')
    k(f's_cmp_lg_u32 s{sWAVE}, 0')
    k(f's_cbranch_scc1 {dn}')
    k('s_mov_b64 exec, 1')
    k(f'v_mov_b32 v{vT}, {val}')
    k(f'buffer_atomic_add v{vT}, off, {WS}, s{off_sgpr}')
    k('s_mov_b64 exec, -1')
    k.label(dn)

TL = [False]
ACC0 = 32
def acc(lt, tt): return ACC0 + 4*(lt*8 + tt)

def gemm(k, wbase, swap, ntt=8):
    vW = 8
    vXa = 15
    k.vmq = []
    nst = ntt // 4
    k(f's_mul_i32 s41, s{sWAVE}, {14336*nst}')
    k(f's_mul_i32 s40, s{sBLK}, {14336*ntt}')
    k(f's_add_u32 s40, s40, s41')
    k(f's_add_u32 s40, s40, {XNF}')
    k(f's_mul_i32 s42, s{sH}, {28*14336}')
    k(f's_mul_i32 s43, s{sWAVE}, {7*14336}')
    k(f's_add_u32 s42, s42, s43')
    k(f's_add_u32 s42, s42, {wbase}')
    for j in range(14):
        k(f's_add_u32 s{76+j}, s59, {j}')
        k(f's_sub_u32 s43, s{76+j}, 14')
        k(f's_cmp_ge_u32 s{76+j}, 14')
        k(f's_cselect_b32 s{76+j}, s43, s{76+j}')
        k(f's_lshl_b32 s{76+j}, s{76+j}, 10')
    for lt in range(7): k(f'v_add_u32 v{vW+lt}, {lt*14336}, v{vL16}')
    k(f'v_add_u32 v17, 14336, v{vL16}')
    k('s_barrier')
    def stx(j, t):
        k(f's_add_u32 s43, s41, s{76+j}')
        if t: k('s_add_u32 s43, s43, 14336')
        k('s_mov_b32 m0, s43')
        k(f's_add_u32 s44, s40, s{76+j}')
        k.vm(f'buffer_load_dwordx4 v{17 if t else vL16}, {WS}, s44 offen lds', f'x{j}')
    def ldw(j, lt):
        if lt == 0: k(f's_add_u32 s45, s42, s{76+j}')
        k.vm(f'buffer_load_dwordx4 {ar(28*(j%3)+4*lt,4)}, v{vW+lt}, {WS}, s45 offen', f'w{j}')
    def xaddr(j):
        k(f'v_add_u32 v{vXa}, s{76+j}, v{vL16}')
        k(f'v_add_u32 v{vXa+1}, 57344, v{vXa}')
    def ldx(j, tt): k(f'ds_read_b128 {ar(84+32*(j&1)+4*tt,4)}, v{vXa + (tt>>2)} offset:{(tt&3)*14336}')
    for j in range(2):
        for t in range(nst): stx(j, t)
        for lt in range(7): ldw(j, lt)
    for j in (2, 3):
        for t in range(nst): stx(j, t)
    xaddr(0)
    k.wvm('x0')
    k('s_barrier')
    if TL[0] and not swap:
        tstamp(k, 57, 12, 18); k.vmq.append('st')
    for tt in range(ntt): ldx(0, tt)
    for j in range(14):
        if j + 1 < 14: xaddr(j+1)
        k.wvm(f'w{j}', f'x{j+1}', extra='lgkmcnt(0)')
        if j + 1 < 14: k('s_barrier')
        for tt in range(ntt):
            for lt in range(7):
                x, w = ar(84+32*(j&1)+4*tt,4), ar(28*(j%3)+4*lt,4)
                a, b = (w, x) if swap else (x, w)
                c = '0' if j == 0 else vr(acc(lt,tt),4)
                k(f'v_mfma_f32_16x16x32_bf16 {vr(acc(lt,tt),4)}, {a}, {b}, {c}')
                if lt == 1 and j + 1 < 14: ldx(j+1, tt)
                if ntt == 8:
                    if lt == 3 and tt < 2 and j + 4 < 14: stx(j+4, tt)
                    if lt == 5 and tt >= 1 and j + 2 < 14: ldw(j+2, tt-1)
                else:
                    if lt == 3 and tt == 0 and j + 4 < 14: stx(j+4, 0)
                    if lt in (3, 5) and (tt, lt) != (0, 3) and j + 2 < 14: ldw(j+2, 2*tt + (lt == 5) - 1)

def task_U(k, half=False):
    nq = 2 if half else 4
    k.label('T_Uh' if half else 'T_U')
    k(f's_mul_i32 s59, s{sBLK}, 7' if half else f's_min_u32 s59, s{sBLK}, 13')
    gemm(k, WTB, False, 2*nq)
    if TL[0]: tstamp(k, 57, 8, 16)
    k(f's_mul_i32 s40, s{sBLK}, {nq*UF_SEG}')
    k(f's_lshl_b32 s41, s{sH}, 11')
    k(f's_add_u32 s40, s40, s41')
    k(f's_add_u32 s40, s40, {UF}')
    k(f's_mul_i32 s41, s{sWAVE}, 7')
    for lt in range(7):
        k(f's_add_u32 s42, s41, {lt}')
        k(f's_lshr_b32 s43, s42, 1')
        k(f's_lshl_b32 s43, s43, 15')
        k(f's_and_b32 s42, s42, 1')
        k(f's_lshl_b32 s42, s42, 10')
        k(f's_add_u32 s{44+lt}, s40, s43')
        k(f's_add_u32 s{44+lt}, s{44+lt}, s42')
    if OPT['uwin'] and not half:
        lw = k.newlabel('Luw')
        k(f"s_cmp_lt_u32 s{sBLK}, {OPT['uwin']}")
        k(f's_cbranch_scc1 {lw}')
        k(f's_lshl_b32 s40, s{sBLK}, 7')
        k(f"s_add_u32 s40, s40, {flag(F_U) - 128*OPT['uwin']}")
        wait1(k, 40, 'v_cmp_le_u32 vcc, 32, v16', 16, 8)
        k.label(lw)
    for q in range(nq):
        for lt in range(7):
            a, b = acc(lt, 2*q), acc(lt, 2*q+1)
            k(f'v_cvt_pk_bf16_f32 v{a}, v{a}, v{a+1}')
            k(f'v_cvt_pk_bf16_f32 v{a+1}, v{a+2}, v{a+3}')
            k(f'v_cvt_pk_bf16_f32 v{a+2}, v{b}, v{b+1}')
            k(f'v_cvt_pk_bf16_f32 v{a+3}, v{b+2}, v{b+3}')
            k(f'buffer_store_dwordx4 {vr(a,4)}, v{vL16}, {WS}, s{44+lt} offen ' + OPT['ust'])
            k(f's_add_u32 s{44+lt}, s{44+lt}, {UF_SEG}')
    if half: k(f's_mov_b32 s40, {flag(F_U)}')
    else:
        k(f's_lshl_b32 s40, s{sBLK}, 7')
        k(f's_add_u32 s40, s40, {flag(F_U)}')
    signal(k, 40, 3, 1 if half else 2)
    k('s_branch W_next')

def xlane_red(k, op, m, t):
    for sw in ('v_permlane16_swap_b32', 'v_permlane32_swap_b32'):
        k(f'v_mov_b32 v{t}, v{m}')
        k.nop(2)
        k(f'{sw} v{m}, v{t}')
        k(f'{op} v{m}, v{m}, v{t}')

def task_P(k):
    k.label('T_P')
    k(f's_min_u32 s59, s{sBLK}, 13')
    def ptoff():
        k(f's_lshl_b32 s{sSEG}, s{sBLK}, 2')
        k(f's_add_u32 s{sSEG}, s{sSEG}, s{sWAVE}')
        k(f's_mul_i32 s40, s{sSEG}, {PT_SEG}')
        k(f's_add_u32 s40, s40, {PT}')
        k(f's_lshl_b32 s41, s{sH}, 11')
        k(f's_add_u32 s41, s41, s40')
        k(f's_lshr_b32 s42, s{sH}, 1')
        k(f's_lshl_b32 s42, s42, 11')
        k(f's_and_b32 s43, s{sH}, 1')
        k(f's_lshl_b32 s43, s43, 2')
        k(f's_add_u32 s42, s42, s43')
        k(f's_add_u32 s42, s42, s40')
        k(f's_add_u32 s42, s42, 32768')
    ptoff()
    for r in range(4): k(f'v_mov_b32 v{20+r}, -1')
    for qt in range(2):
        k(f'buffer_store_dwordx4 v[20:23], v{vL16}, {WS}, s41 offen offset:{qt*1024} sc1')
        k(f'buffer_store_dword v20, v{vL16}, {WS}, s42 offen offset:{qt*1024} sc1')
        k(f'buffer_store_dword v20, v{vL16}, {WS}, s42 offen offset:{qt*1024+8} sc1')
    gemm(k, WTA, True)
    k(f's_lshl_b32 s40, s{sBLK}, 7')
    k(f's_add_u32 s40, s40, {flag(F_P)}')
    signal(k, 40, 3)
    vE, vO, vG, vI, vMK, vT = 16, 17, 18, 19, 20, 21
    k(f's_mul_i32 s40, s{sWAVE}, 7')
    k(f's_lshr_b32 s40, s40, 1')
    k(f's_lshl_b32 s40, s40, 10')
    k(f's_and_b32 s41, s{sWAVE}, 1')
    k(f's_lshl_b32 s42, s41, 3')
    k(f's_add_u32 s42, s42, s40')
    k(f's_mul_i32 s43, s41, 1016')
    k(f's_add_u32 s43, s43, 8')
    k(f's_add_u32 s43, s43, s40')
    k(f'v_add_u32 v{vE}, s42, v{vL16}')
    k(f'v_add_u32 v{vO}, s43, v{vL16}')
    k(f'v_add_u32 v{vT}, 57344, v{vE}')
    k(f'v_add_u32 v{vT+1}, 57344, v{vO}')
    k('s_barrier')
    for tt in range(8):
        for lt in range(7):
            a = acc(lt, tt)
            k(f'v_cvt_pk_bf16_f32 v{a}, v{a}, v{a+1}')
            k(f'v_cvt_pk_bf16_f32 v{a+1}, v{a+2}, v{a+3}')
            ad = (vE if lt % 2 == 0 else vO) if tt < 4 else (vT if lt % 2 == 0 else vT+1)
            k(f'ds_write_b64 v{ad}, {vr(a,2)} offset:{(tt&3)*14336 + (lt>>1)*1024}')
    k(f's_lshl_b32 s{sSEG}, s{sBLK}, 2')
    k(f's_add_u32 s{sSEG}, s{sSEG}, s{sWAVE}')
    k(f's_mul_i32 s40, s{sSEG}, 28672')
    k(f's_add_u32 s40, s40, {XNS}')
    vKT, vKM, vS = 32, 144, 200
    k('s_waitcnt lgkmcnt(0)')
    for f in range(28):
        k(f'buffer_load_dwordx4 {vr(vKT+4*f,4)}, v{vL16}, {WS}, s40 offen offset:{(f&3)*1024}')
        if (f&3) == 3: k('s_add_u32 s40, s40, 4096')
    k('s_barrier')
    k(f's_mul_i32 s41, s{sWAVE}, 28672')
    k(f'v_add_u32 v{vT}, s41, v{vL16}')
    for f in range(28): k(f'ds_read_b128 {ar(4*f,4)}, v{vT} offset:{f*1024}')
    k(f'v_lshrrev_b32 v{vG}, 4, v{vLn}')
    k(f'v_and_b32 v{vI}, 15, v{vLn}')
    k(f'v_lshrrev_b32 v{vMK}, 1, v{vG}')
    k(f'v_lshlrev_b32 v{vMK}, 8, v{vMK}')
    k(f'v_and_b32 v{vT}, 7, v{vI}')
    k(f'v_lshl_add_u32 v{vMK}, v{vT}, 4, v{vMK}')
    k(f'v_and_b32 v{vT}, 1, v{vG}')
    k(f'v_lshl_add_u32 v{vMK}, v{vT}, 7, v{vMK}')
    k(f'v_lshlrev_b32 v{vT}, 2, v{vG}')
    for r in range(4):
        k(f'v_cmp_gt_u32 s[{44+2*r}:{45+2*r}], v{vT}, v{vI}')
        if r < 3: k(f'v_add_u32 v{vT}, 1, v{vT}')
    k(f'v_cmp_gt_u32 s[52:53], 2, v{vG}')
    St = {(1,0): vS, (1,1): vS+4, (2,1): vS+8, (0,0): vS+12, (0,1): vS+16}
    k('s_waitcnt vmcnt(0) lgkmcnt(0)')
    for ks in range(14):
        for (kt, qt) in ((1,0), (1,1), (2,1)):
            c = '0' if ks == 0 else vr(St[kt,qt],4)
            k(f'v_mfma_f32_16x16x32_bf16 {vr(St[kt,qt],4)}, {vr(vKT+56*(kt-1)+4*ks,4)}, {ar(56*qt+4*ks,4)}, {c}')
    if TL[0]: tstamp(k, 57, 8, vT)
    k(f's_add_u32 s40, s{sSEG}, 63')
    k(f's_and_b32 s40, s40, 63')
    k(f's_mul_i32 s40, s40, {MEM_S}')
    k(f's_add_u32 s40, s40, {MEMX}')
    k(f's_add_u32 s41, s40, 4096')
    lp, dn = k.newlabel('Lpm'), k.newlabel('Lpd')
    k(f's_mov_b32 s{sCNT}, 0')
    k.label(lp)
    for ks in range(14):
        k(f'buffer_load_dwordx4 {vr(vKM+4*ks,4)}, v{vMK}, {WS}, s{40 if ks < 8 else 41} offen offset:{(ks&7)*512} sc1')
    k(f's_add_u32 s{sCNT}, s{sCNT}, 1')
    k(f's_cmp_gt_u32 s{sCNT}, s{sT2}')
    k('s_cbranch_scc1 L_fail')
    k('s_waitcnt vmcnt(0)')
    k(f'v_max3_u32 v{vT}, v{vKM}, v{vKM+1}, v{vKM+2}')
    for r in range(3, 55, 2): k(f'v_max3_u32 v{vT}, v{vT}, v{vKM+r}, v{vKM+r+1}')
    k(f'v_max_u32 v{vT}, v{vT}, v{vKM+55}')
    k(f'v_cmp_eq_u32 vcc, -1, v{vT}')
    k(f's_cbranch_vccz {dn}')
    l2 = k.newlabel('Lpl')
    k.label(l2)
    k('s_sleep 2')
    k(f's_cmp_ge_u32 s{sSEG}, 60')
    k(f's_cbranch_scc1 {l2}f')
    k(f"s_sleep {OPT['msl']}")
    k.label(l2 + 'f')
    k(f'buffer_load_dword v{vT}, v{vMK}, {WS}, s41 offen offset:2560 sc1')
    k(f's_add_u32 s{sCNT}, s{sCNT}, 1')
    k(f's_cmp_gt_u32 s{sCNT}, s{sT2}')
    k('s_cbranch_scc1 L_fail')
    k('s_waitcnt vmcnt(0)')
    k(f'v_cmp_eq_u32 vcc, -1, v{vT}')
    k(f's_cbranch_vccnz {l2}')
    k(f's_branch {lp}')
    k.label(dn)
    if TL[0]: tstamp(k, 57, 12, vT)
    for ks in range(14):
        for qt in range(2):
            c = '0' if ks == 0 else vr(St[0,qt],4)
            k(f'v_mfma_f32_16x16x32_bf16 {vr(St[0,qt],4)}, {vr(vKM+4*ks,4)}, {ar(56*qt+4*ks,4)}, {c}')
    ptoff()
    k(f'v_mov_b32 v{vT+2}, 0xff800000')
    k.nop(2)
    for d in ((1,0), (2,1)):
        for r in range(4):
            k(f'v_cndmask_b32 v{St[d]+r}, v{St[d]+r}, v{vT+2}, s[{44+2*r}:{45+2*r}]')
    for qt in range(2):
        tiles = [St[0,qt], St[1,qt]] + ([St[2,1]] if qt else [])
        regs = [t + r for t in tiles for r in range(4)]
        m, t, l = 24, 26, 28
        k(f'v_max3_f32 v{m}, v{regs[0]}, v{regs[1]}, v{regs[2]}')
        for i in range(3, len(regs) - 1, 2): k(f'v_max3_f32 v{m}, v{m}, v{regs[i]}, v{regs[i+1]}')
        k(f'v_max_f32 v{m}, v{m}, v{regs[-1]}')
        xlane_red(k, 'v_max_f32', m, t)
        for i in range(0, len(regs), 2):
            k(f'v_pk_add_f32 {vr(regs[i],2)}, {vr(regs[i],2)}, {vr(m,2)} op_sel_hi:[1,0] neg_lo:[0,1] neg_hi:[0,1]')
        for r in regs: k(f'v_exp_f32 v{r}, v{r}')
        k.nop(1)
        k(f'v_pk_add_f32 {vr(l,2)}, {vr(regs[0],2)}, {vr(regs[2],2)}')
        k(f'v_add_f32 v{l}, v{l}, v{l+1}')
        k(f'v_cndmask_b32 v{l}, 0, v{l}, s[52:53]')
        k(f'v_mov_b32 v{l+1}, 0')
        for i in range(4, len(regs), 2): k(f'v_pk_add_f32 {vr(l,2)}, {vr(l,2)}, {vr(regs[i],2)}')
        k(f'v_add_f32 v{l}, v{l}, v{l+1}')
        xlane_red(k, 'v_add_f32', l, t)
        k(f'v_rcp_f32 v{l}, v{l}')
        k.nop(1)
        for i in range(0, len(regs), 2):
            k(f'v_pk_mul_f32 {vr(regs[i],2)}, {vr(regs[i],2)}, {vr(l,2)} op_sel_hi:[1,0]')
        o = 220 + 8*qt
        k(f'v_cvt_pk_bf16_f32 v{o}, v{regs[4]}, v{regs[5]}')
        k(f'v_cvt_pk_bf16_f32 v{o+1}, v{regs[6]}, v{regs[7]}')
        if qt:
            k(f'v_cvt_pk_bf16_f32 v{o+2}, v{regs[8]}, v{regs[9]}')
            k(f'v_cvt_pk_bf16_f32 v{o+3}, v{regs[10]}, v{regs[11]}')
        else:
            k(f'v_mov_b64 {vr(o+2,2)}, 0')
        k(f'v_cvt_pk_bf16_f32 v{o+4}, v{regs[0]}, v{regs[1]}')
        k(f'v_cvt_pk_bf16_f32 v{o+5}, v{regs[2]}, v{regs[3]}')
        for r in range(6):
            if qt or r not in (2, 3): k(f'v_min_u32 v{o+r}, -2, v{o+r}')
        k(f'buffer_store_dwordx4 {vr(o,4)}, v{vL16}, {WS}, s41 offen offset:{qt*1024} sc1')
        k(f'buffer_store_dword v{o+4}, v{vL16}, {WS}, s42 offen offset:{qt*1024} sc1')
        k(f'buffer_store_dword v{o+5}, v{vL16}, {WS}, s42 offen offset:{qt*1024+8} sc1')
    k('s_branch W_next')

def rbf(k, v, sMaskHi):
    k(f'v_cvt_pk_bf16_f32 v{v}, v{v}, v{v}')
    k(f'v_and_b32 v{v}, s{sMaskHi}, v{v}')

def task_V(k):
    k.label('T_V')
    vU, vUM, vP, vD, vT = 32, 96, 128, 152, 16
    k(f's_lshr_b32 s{sBLK}, s{sSEG}, 2')
    k(f's_lshl_b32 s40, s{sBLK}, 7')
    k(f's_add_u32 s40, s40, {flag(F_U)}')
    wait1(k, 40, f'v_cmp_le_u32 vcc, 32, v{vT}', vT, 16)
    k(f's_mul_i32 s40, s{sSEG}, {UF_SEG}')
    k(f's_lshl_b32 s41, s{sCG}, 16')
    k(f's_add_u32 s40, s40, s41')
    k(f's_lshl_b32 s41, s{sWAVE}, 13')
    k(f's_add_u32 s40, s40, s41')
    k(f's_add_u32 s40, s40, {UF}')
    for bb in range(2):
        for hp in range(2):
            k(f's_add_u32 s41, s40, {bb*32768 + hp*4096}')
            for f in range(4):
                hh, T = 2*hp + (f>>1), f&1
                k(f'buffer_load_dwordx4 {vr(vU+16*(2*bb+T)+4*hh,4)}, v{vL16}, {WS}, s41 offen offset:{f*1024} sc1')
    srd(k, 68, 0, 1835008); srd(k, 72, 96, 1835008)
    vRow, vOff = vT+1, vT+2
    k(f's_lshl_b32 s42, s{sSEG}, 5')
    k(f's_lshl_b32 s43, s{sQT}, 4')
    k(f's_add_u32 s42, s42, s43')
    k(f'v_and_b32 v{vRow}, 15, v{vLn}')
    k(f'v_add_u32 v{vRow}, s42, v{vRow}')
    k(f'v_mul_u32_u24 v{vOff}, 896, v{vRow}')
    k(f'v_lshrrev_b32 v{vT+3}, 4, v{vLn}')
    k(f's_lshl_b32 s42, s{sCG}, 7')
    k(f's_lshl_b32 s43, s{sWAVE}, 5')
    k(f's_add_u32 s42, s42, s43')
    k(f'v_lshl_add_u32 v{vT+3}, v{vT+3}, 3, s42')
    k(f'v_add_u32 v{vOff}, v{vOff}, v{vT+3}')
    vXo = vT+8
    k(f'v_lshrrev_b32 v{vXo}, 4, v{vT+3}')
    k(f'v_lshlrev_b32 v{vXo}, 8, v{vXo}')
    k(f'v_and_b32 v{vXo+1}, 15, v{vT+3}')
    k(f'v_add_u32 v{vXo}, v{vXo}, v{vXo+1}')
    k(f'v_and_b32 v{vXo+1}, 15, v{vLn}')
    k(f'v_lshl_add_u32 v{vXo}, v{vXo+1}, 4, v{vXo}')
    k(f's_lshl_b32 s43, s{sSEG}, 1')
    k(f's_add_u32 s43, s43, s{sQT}')
    k(f's_mul_i32 s43, s43, 14336')
    k(f's_add_u32 s43, s43, {XNF}')
    k('s_waitcnt lgkmcnt(0)')
    k('s_and_b32 s69, s69, 0xffff'); k('s_and_b32 s73, s73, 0xffff')
    vXr, vXn = vT+4, vT+6
    k(f'buffer_load_dwordx2 {vr(vXr,2)}, v{vOff}, s[68:71], 0 offen')
    k(f'buffer_load_dwordx2 {vr(vXn,2)}, v{vXo}, {WS}, s43 offen')
    k(f's_mov_b32 s40, {flag(F_M2)}')
    wait1(k, 40, f'v_cmp_le_u32 vcc, 28, v{vT}', vT, 16)
    vIx = 168
    k(f's_mov_b32 s40, {IDX}')
    for j in range(4): k(f'buffer_load_dwordx4 {vr(vIx+4*j,4)}, off, {WS}, s40 offset:{16*j} sc1')
    vSel, vSig, vY = 184, 185, 188
    k(f'v_mov_b32 v{vSel}, 0x40000000')
    k(f'v_mov_b32 v{vSig}, 0')
    k('s_waitcnt vmcnt(0)')
    for j in range(8):
        k(f'v_cmp_eq_u32 vcc, v{vIx+j}, v{vRow}')
        k(f'v_mov_b32 v{vT}, {j*1792}')
        k('s_nop 0')
        k(f'v_cndmask_b32 v{vSel}, v{vSel}, v{vT}, vcc')
        k(f'v_cndmask_b32 v{vSig}, v{vSig}, v{vIx+8+j}, vcc')
    k(f'v_lshl_add_u32 v{vSel}, v{vT+3}, 1, v{vSel}')
    for q in range(4):
        k(f's_mov_b32 s40, {UPD + q*14336}')
        k(f'buffer_load_dwordx4 {vr(vY+4*q,4)}, v{vSel}, {WS}, s40 offen sc1')
    k(f's_lshl_b32 s40, s{sBLK}, 7')
    k(f's_add_u32 s40, s40, {flag(F_P)}')
    wait1(k, 40, f'v_cmp_le_u32 vcc, 16, v{vT}', vT, 32)
    k(f's_add_u32 s40, s{sSEG}, 63')
    k(f's_and_b32 s40, s40, 63')
    k(f's_mul_i32 s40, s40, {MEM_S}')
    k(f's_add_u32 s40, s40, {MEMX}')
    wait1(k, 40, f'v_cmp_ne_u32 vcc, -1, v{vT}', vT, OPT['vsl'], f's_cmp_ge_u32 s{sSEG}, 60')
    k(f's_mov_b32 s{sCNT}, 0')
    k(f's_mul_i32 s40, s{sSEG}, {PT_SEG}')
    k(f's_lshl_b32 s41, s{sQT}, 10')
    k(f's_add_u32 s40, s40, s41')
    k(f's_add_u32 s40, s40, {PT}')
    k(f's_lshl_b32 s41, s{sWAVE}, 13')
    k(f's_add_u32 s41, s41, s40')
    k(f's_add_u32 s42, s41, 4096')
    k(f's_lshl_b32 s43, s{sWAVE}, 12')
    k(f's_add_u32 s43, s43, s40')
    k(f's_add_u32 s43, s43, 32768')
    lp, dn = k.newlabel('Lvp'), k.newlabel('Lvq')
    k.label(lp)
    for hh in range(4):
        k(f'buffer_load_dwordx4 {vr(vP+4*hh,4)}, v{vL16}, {WS}, s{41 if hh<2 else 42} offen offset:{(hh&1)*2048} sc1')
    for u in range(2):
        k(f'buffer_load_dwordx4 {vr(vP+16+4*u,4)}, v{vL16}, {WS}, s43 offen offset:{u*2048} sc1')
    k(f's_add_u32 s{sCNT}, s{sCNT}, 1')
    k(f's_cmp_gt_u32 s{sCNT}, s{sT2}')
    k('s_cbranch_scc1 L_fail')
    k('s_waitcnt vmcnt(0)')
    k(f'v_max3_u32 v{vT}, v{vP}, v{vP+1}, v{vP+2}')
    for r in range(3, 23, 2): k(f'v_max3_u32 v{vT}, v{vT}, v{vP+r}, v{vP+r+1}')
    k(f'v_max_u32 v{vT}, v{vT}, v{vP+23}')
    k(f'v_cmp_eq_u32 vcc, -1, v{vT}')
    k(f's_cbranch_vccz {dn}')
    k('s_sleep 2')
    k(f's_cmp_ge_u32 s{sSEG}, 60')
    k(f's_cbranch_scc1 {lp}')
    k(f"s_sleep {OPT['psl']}")
    k(f's_branch {lp}')
    k.label(dn)
    if TL[0]: tstamp(k, 57, 8, vT)
    lastseg = k.newlabel('Lvl')
    k(f's_cmp_eq_u32 s{sSEG}, 63')
    k(f's_cbranch_scc1 {lastseg}')
    k(f's_lshl_b32 s40, s{sSEG}, 7')
    k(f's_add_u32 s40, s40, {flag(F_UM)}')
    wait1(k, 40, f'v_cmp_le_u32 vcc, 14, v{vT}', vT, OPT['usl'], f's_cmp_ge_u32 s{sSEG}, 60')
    k.label(lastseg)
    if TL[0]: tstamp(k, 57, 12, vT)
    k(f's_mul_i32 s40, s{sSEG}, {UM_SEG}')
    k(f's_mul_i32 s41, s{sWAVE}, {2*28672}')
    k(f's_add_u32 s40, s40, s41')
    k(f's_lshl_b32 s41, s{sCG}, 12')
    k(f's_add_u32 s40, s40, s41')
    k(f's_add_u32 s40, s40, {UM}')
    k(f's_add_u32 s41, s40, 28672')
    lp, dn = k.newlabel('Lvu'), k.newlabel('Lvv')
    k.label(lp)
    for u in range(2):
        for ct in range(4):
            k(f'buffer_load_dwordx4 {vr(vUM+8*ct+4*u,4)}, v{vL16}, {WS}, s{40+u} offen offset:{ct*1024} sc1')
    k(f's_cmp_lg_u32 s{sSEG}, 63')
    k(f's_cbranch_scc1 {dn}')
    k(f's_add_u32 s{sCNT}, s{sCNT}, 1')
    k(f's_cmp_gt_u32 s{sCNT}, s{sT2}')
    k('s_cbranch_scc1 L_fail')
    k('s_waitcnt vmcnt(0)')
    k(f'v_max3_u32 v{vT}, v{vUM}, v{vUM+1}, v{vUM+2}')
    for r in range(3, 31, 2): k(f'v_max3_u32 v{vT}, v{vT}, v{vUM+r}, v{vUM+r+1}')
    k(f'v_max_u32 v{vT}, v{vT}, v{vUM+31}')
    k(f'v_cmp_eq_u32 vcc, -1, v{vT}')
    k(f's_cbranch_vccz {dn}')
    k('s_sleep 2')
    k(f's_branch {lp}')
    k.label(dn)
    k('s_mov_b32 s54, 0xffff0000')
    for h in range(2):
        k(f'v_pk_add_f32 {vr(vY+2*h,2)}, {vr(vY+2*h,2)}, {vr(vY+4+2*h,2)}')
        k(f'v_pk_add_f32 {vr(vY+8+2*h,2)}, {vr(vY+8+2*h,2)}, {vr(vY+12+2*h,2)}')
        k(f'v_pk_add_f32 {vr(vY+2*h,2)}, {vr(vY+2*h,2)}, {vr(vY+8+2*h,2)}')
    vB, vXf = vY+4, vY+8
    for r in range(4):
        rbf(k, vY+r, 54)
        k(f'v_mul_f32 v{vY+r}, v{vY+r}, v{vSig}')
        rbf(k, vY+r, 54)
        src = vXn + (r>>1)
        k(f'v_lshlrev_b32 v{vB+r}, 16, v{src}' if r % 2 == 0 else f'v_and_b32 v{vB+r}, s54, v{src}')
        k(f'v_add_f32 v{vB+r}, v{vB+r}, v{vY+r}')
        rbf(k, vB+r, 54)
        src = vXr + (r>>1)
        k(f'v_lshlrev_b32 v{vXf+r}, 16, v{src}' if r % 2 == 0 else f'v_and_b32 v{vXf+r}, s54, v{src}')
    k('s_barrier')
    k('s_waitcnt vmcnt(8)')
    for hh in range(4):
        for ct in range(4):
            c = '0' if hh == 0 else vr(vD+4*ct,4)
            k(f'v_mfma_f32_16x16x32_bf16 {vr(vD+4*ct,4)}, {vr(vU+16*ct+4*hh,4)}, {vr(vP+4*hh,4)}, {c}')
    k('s_waitcnt vmcnt(0)')
    for u in range(2):
        for ct in range(4):
            k(f'v_mfma_f32_16x16x32_bf16 {vr(vD+4*ct,4)}, {vr(vUM+8*ct+4*u,4)}, {vr(vP+16+4*u,4)}, {vr(vD+4*ct,4)}')
    k(f's_lshl_b32 s40, s{sWAVE}, 12')
    k(f'v_add_u32 v{vT}, s40, v{vL16}')
    k(f's_lshl_b32 s40, s{sWAVE}, 10')
    k(f'v_add_u32 v{vT+3}, s40, v{vL16}')
    k.nop(2)
    for ct in range(4): k(f'ds_write_b128 v{vT}, {vr(vD+4*ct,4)} offset:{ct*1024}')
    k('s_waitcnt lgkmcnt(0)')
    k('s_barrier')
    for w in range(4): k(f'ds_read_b128 {vr(vU+4*w,4)}, v{vT+3} offset:{w*4096}')
    k('s_waitcnt lgkmcnt(0)')
    for h in range(2):
        k(f'v_pk_add_f32 {vr(vU+2*h,2)}, {vr(vU+2*h,2)}, {vr(vU+4+2*h,2)}')
        k(f'v_pk_add_f32 {vr(vU+8+2*h,2)}, {vr(vU+8+2*h,2)}, {vr(vU+12+2*h,2)}')
        k(f'v_pk_add_f32 {vr(vU+2*h,2)}, {vr(vU+2*h,2)}, {vr(vU+8+2*h,2)}')
    for r in range(4):
        rbf(k, vU+r, 54)
        k(f'v_add_f32 v{vU+r}, v{vU+r}, v{vXf+r}')
        rbf(k, vU+r, 54)
        k(f'v_add_f32 v{vU+r}, v{vU+r}, v{vB+r}')
    k(f'v_cvt_pk_bf16_f32 v{vU}, v{vU}, v{vU+1}')
    k(f'v_cvt_pk_bf16_f32 v{vU+1}, v{vU+2}, v{vU+3}')
    k(f'buffer_store_dwordx2 {vr(vU,2)}, v{vOff}, s[72:75], 0 offen')
    if OPT['diag']:
        k('s_waitcnt vmcnt(0)')
        k('v_mov_b32 v31, v0')
        diag(k, 6)
        k('v_mov_b32 v0, v31')
    k('s_branch W_next')

def moe_stage(k, srdreg, pitch, soff, lds, vT):
    k(f'v_lshrrev_b32 v{vT}, 3, v0')
    k(f'v_and_b32 v{vT+1}, 7, v0')
    k(f's_mov_b32 s44, {pitch}')
    k(f'v_mul_lo_u32 v{vT+2}, v{vT}, s44')
    k(f'v_lshl_add_u32 v{vT+2}, v{vT+1}, 4, v{vT+2}')
    k(f'v_bfe_u32 v{vT+3}, v{vT}, 1, 1')
    k(f'v_bfe_u32 v{vT+4}, v{vT}, 3, 1')
    k(f'v_lshl_add_u32 v{vT+3}, v{vT+4}, 1, v{vT+3}')
    k(f'v_lshlrev_b32 v{vT+3}, 1, v{vT+3}')
    k(f'v_xor_b32 v{vT+3}, v{vT+3}, v{vT+1}')
    k(f'v_lshlrev_b32 v{vT+3}, 4, v{vT+3}')
    k(f'v_lshl_add_u32 v{vT+3}, v{vT}, 7, v{vT+3}')
    if lds: k(f'v_add_u32 v{vT+3}, {lds}, v{vT+3}')
    k(f's_mov_b32 s44, s{soff}')
    for r in range(14):
        k(f'buffer_load_dwordx4 {vr(32+4*r,4)}, v{vT+2}, s[{srdreg}:{srdreg+3}], s44 offen')
        k(f's_add_u32 s44, s44, {32*pitch}')
    for r in range(14):
        k(f's_waitcnt vmcnt({13-r})')
        k(f'ds_write_b128 v{vT+3}, {vr(32+4*r,4)} offset:{r*4096}')

def moe_mm(k, lds, vA, vD, vAd, vB):
    for ks in range(14):
        for hh in range(2): k(f'ds_read_b64_tr_b16 {vr(vB+4*ks+2*hh,2)}, v{vAd} offset:{lds + ks*4096 + hh*512}')
    k('s_waitcnt lgkmcnt(0)')
    for ks in range(14):
        k(f'v_mfma_f32_16x16x32_bf16 {vr(vD,4)}, {vr(vA+4*ks,4)}, {vr(vB+4*ks,4)}, {"0" if ks == 0 else vr(vD,4)}')

def moe_traddr(k, vAd, vT):
    k(f'v_bfe_u32 v{vAd}, v{vLn}, 2, 2')
    k(f'v_lshrrev_b32 v{vT}, 4, v{vLn}')
    k(f'v_lshl_add_u32 v{vAd}, v{vT}, 3, v{vAd}')
    k(f'v_lshlrev_b32 v{vAd}, 7, v{vAd}')
    k(f'v_and_b32 v{vT}, 3, v{vLn}')
    k(f'v_lshl_add_u32 v{vAd}, v{vT}, 3, v{vAd}')
    k(f'v_bfe_u32 v{vT}, v{vLn}, 3, 1')
    k(f'v_bfe_u32 v{vT+1}, v{vLn}, 4, 1')
    k(f'v_lshl_add_u32 v{vT}, v{vT+1}, 1, v{vT}')
    k(f'v_xor_b32 v{vT}, s{sWAVE}, v{vT}')
    k(f'v_lshl_add_u32 v{vAd}, v{vT}, 5, v{vAd}')

def sigmoid(k, v, t):
    k(f'v_mul_f32 v{t}, {f32bits(-1.4426950408889634):#x}, v{v}')
    k(f'v_exp_f32 v{t}, v{t}')
    k.nop(1)
    k(f'v_add_f32 v{t}, 1.0, v{t}')
    k(f'v_rcp_f32 v{v}, v{t}')
    k.nop(1)

def task_M1(k):
    k.label('T_M1')
    vT = 16
    srd(k, 68, 72, 1605632); srd(k, 72, 80, 1605632)
    vK = 160
    k(f's_mov_b32 s40, {RR}')
    k(f's_add_u32 s41, s40, 4096')
    for j in range(8): k(f'buffer_load_dwordx4 {vr(vK+4*j,4)}, v{vL16}, {WS}, s{40 + (j>>2)} offen offset:{(j&3)*1024}')
    k(f'v_lshlrev_b32 v{vT}, 2, v{vLn}')
    k(f'v_sub_u32 v{vT}, 0xffff, v{vT}')
    k('s_mov_b32 s54, 0xffff0000')
    k('s_waitcnt vmcnt(0) lgkmcnt(0)')
    k('s_and_b32 s69, s69, 0xffff'); k('s_and_b32 s73, s73, 0xffff')
    for j in range(32):
        r = vK + j
        k(f'v_ashrrev_i32 v{vT+1}, 31, v{r}')
        k(f'v_or_b32 v{vT+1}, 0x80000000, v{vT+1}')
        k(f'v_xor_b32 v{r}, v{r}, v{vT+1}')
        k(f'v_subrev_u32 v{vT+1}, {(j>>2)*256 + (j&3)}, v{vT}')
        k(f'v_and_or_b32 v{r}, v{r}, s54, v{vT+1}')
    m, t = vT+2, vT+3
    for it in range(8):
        k(f'v_max3_u32 v{m}, v{vK}, v{vK+1}, v{vK+2}')
        for r in range(3, 31, 2): k(f'v_max3_u32 v{m}, v{m}, v{vK+r}, v{vK+r+1}')
        k(f'v_max_u32 v{m}, v{m}, v{vK+31}')
        for rot in (8, 4, 2, 1):
            k.nop(2)
            k(f'v_max_u32_dpp v{m}, v{m}, v{m} row_ror:{rot} row_mask:0xf bank_mask:0xf')
        xlane_red(k, 'v_max_u32', m, t)
        k.nop(1)
        k(f'v_readfirstlane_b32 s{76+it}, v{m}')
        if it < 7:
            for j in range(32):
                k(f'v_cmp_eq_u32 vcc, v{m}, v{vK+j}')
                k('s_nop 1')
                k(f'v_cndmask_b32 v{vK+j}, v{vK+j}, 0, vcc')
    vKy, vIx = vT+4, vT+5
    k(f'v_mov_b32 v{vKy}, s76')
    k(f'v_and_b32 v{t}, 7, v{vLn}')
    for j in range(1, 8):
        k(f'v_cmp_eq_u32 vcc, {j}, v{t}')
        k(f'v_mov_b32 v{m}, s{76+j}')
        k('s_nop 0')
        k(f'v_cndmask_b32 v{vKy}, v{vKy}, v{m}, vcc')
    k(f'v_and_b32 v{vIx}, 0xffff, v{vKy}')
    k(f'v_sub_u32 v{vIx}, 0xffff, v{vIx}')
    sk = k.newlabel('Lm1s')
    k(f's_or_b32 s40, s{sJ}, s{sWAVE}')
    k('s_cmp_lg_u32 s40, 0')
    k(f's_cbranch_scc1 {sk}')
    k(f'v_and_b32 v{m}, s54, v{vKy}')
    k(f'v_not_b32 v{t}, v{m}')
    k(f'v_ashrrev_i32 v{t}, 31, v{t}')
    k(f'v_or_b32 v{t}, 0x80000000, v{t}')
    k(f'v_xor_b32 v{m}, v{m}, v{t}')
    k(f'v_and_b32 v{m}, s54, v{m}')
    sigmoid(k, m, t)
    rbf(k, m, 54)
    k(f'v_lshlrev_b32 v{t}, 2, v{vLn}')
    k(f's_mov_b32 s40, {IDX}')
    k('s_mov_b64 exec, 0xff')
    k(f'buffer_store_dword v{vIx}, v{t}, {WS}, s40 offen sc1')
    k(f'buffer_store_dword v{m}, v{t}, {WS}, s40 offen offset:32 sc1')
    k('s_mov_b64 exec, -1')
    k.label(sk)
    vA = 96
    k(f'v_lshrrev_b32 v{m}, 4, v{vIx}')
    k(f'v_mul_u32_u24 v{m}, 14336, v{m}')
    k(f'v_and_b32 v{t}, 15, v{vIx}')
    k(f'v_lshl_add_u32 v{m}, v{t}, 4, v{m}')
    k(f'v_lshrrev_b32 v{t}, 4, v{vLn}')
    k(f'v_lshl_add_u32 v{m}, v{t}, 8, v{m}')
    k(f's_mov_b32 s40, {XNF}')
    for ks in range(14):
        k(f'buffer_load_dwordx4 {vr(vA+4*ks,4)}, v{m}, {WS}, s40 offen offset:{(ks&3)*1024}')
        if (ks&3) == 3: k('s_add_u32 s40, s40, 4096')
    k('s_barrier')
    k(f's_lshl_b32 s43, s{sJ}, 7')
    moe_stage(k, 68, 3584, 43, 0, 24)
    moe_stage(k, 72, 3584, 43, 57344, 24)
    vAd = vT
    moe_traddr(k, vAd, vT+1)
    k(f'v_add_u32 v{vT+1}, 57344, v{vAd}')
    k('s_waitcnt lgkmcnt(0)')
    k('s_barrier')
    vG, vUu = 24, 28
    moe_mm(k, 0, vA, vG, vAd, 32)
    moe_mm(k, 0, vA, vUu, vT+1, 160)
    k(f'v_lshrrev_b32 v{vT+2}, 4, v{vLn}')
    k(f'v_mul_u32_u24 v{vT+2}, {4*3584}, v{vT+2}')
    k(f'v_and_b32 v{vT+3}, 15, v{vLn}')
    k(f'v_lshl_add_u32 v{vT+2}, v{vT+3}, 1, v{vT+2}')
    k(f's_lshl_b32 s40, s{sWAVE}, 5')
    k(f's_add_u32 s40, s40, s43')
    k(f's_add_u32 s40, s40, {HB}')
    k.nop(4)
    k('s_mov_b32 exec_hi, 0')
    for r in range(4):
        rbf(k, vG+r, 54); rbf(k, vUu+r, 54)
        k(f'v_mov_b32 v{vT+4}, v{vG+r}')
        sigmoid(k, vT+4, vT+5)
        k(f'v_mul_f32 v{vG+r}, v{vG+r}, v{vT+4}')
        rbf(k, vG+r, 54)
        k(f'v_mul_f32 v{vG+r}, v{vG+r}, v{vUu+r}')
        k(f'v_cvt_pk_bf16_f32 v{vG+r}, v{vG+r}, v{vG+r}')
        k(f'buffer_store_short v{vG+r}, v{vT+2}, {WS}, s40 offen sc1')
        k(f's_add_u32 s40, s40, 3584')
    k('s_mov_b64 exec, -1')
    k(f's_mov_b32 s40, {flag(F_M1)}')
    signal(k, 40, 3)
    k('s_branch W_next')

def task_M2(k):
    k.label('T_M2')
    vT = 16
    srd(k, 68, 88, 1605632)
    k(f's_mul_hi_u32 s45, s{sJ}, {(1<<32)//7 + 1}')
    k(f's_mul_i32 s46, s45, 7')
    k(f's_sub_u32 s46, s{sJ}, s46')
    k(f's_mul_i32 s43, s45, {448*896}')
    k(f's_lshl_b32 s40, s46, 7')
    k(f's_add_u32 s43, s43, s40')
    k('s_waitcnt lgkmcnt(0)')
    k('s_and_b32 s69, s69, 0xffff')
    k('s_barrier')
    moe_stage(k, 68, 896, 43, 0, 24)
    vAd = vT
    moe_traddr(k, vAd, vT+1)
    k(f's_mov_b32 s40, {flag(F_M1)}')
    wait_flag(k, 40, 28, vT+1)
    vA = 96
    k(f'v_and_b32 v{vT+1}, 7, v{vLn}')
    k(f'v_mul_u32_u24 v{vT+1}, 3584, v{vT+1}')
    k(f'v_lshrrev_b32 v{vT+2}, 4, v{vLn}')
    k(f'v_lshl_add_u32 v{vT+1}, v{vT+2}, 4, v{vT+1}')
    k(f's_mul_i32 s40, s45, 896')
    k(f's_add_u32 s40, s40, {HB}')
    for ks in range(14): k(f'buffer_load_dwordx4 {vr(vA+4*ks,4)}, v{vT+1}, {WS}, s40 offen offset:{ks*64} sc1')
    k('s_waitcnt vmcnt(0) lgkmcnt(0)')
    k('s_barrier')
    moe_mm(k, 0, vA, 24, vAd, 32)
    k(f'v_mul_u32_u24 v{vT+2}, {4*1792}, v{vT+2}')
    k(f'v_and_b32 v{vT+3}, 15, v{vLn}')
    k(f'v_lshl_add_u32 v{vT+2}, v{vT+3}, 2, v{vT+2}')
    k(f's_mul_i32 s40, s45, 14336')
    k(f's_lshl_b32 s41, s46, 8')
    k(f's_add_u32 s40, s40, s41')
    k(f's_lshl_b32 s41, s{sWAVE}, 6')
    k(f's_add_u32 s40, s40, s41')
    k(f's_add_u32 s40, s40, {UPD}')
    k('s_mov_b32 exec_hi, 0')
    for r in range(4):
        k(f'buffer_store_dword v{24+r}, v{vT+2}, {WS}, s40 offen sc1')
        k(f's_add_u32 s40, s40, 1792')
    k('s_mov_b64 exec, -1')
    k(f's_mov_b32 s40, {flag(F_M2)}')
    signal(k, 40, 3)
    k('s_branch W_next')

LTK = 163832
Q_U2, Q_M1, Q_M2, Q_P0 = 0, 48, 76, 104
Q_G = Q_P0 + 48
Q_T = Q_G + 13*72
Q_END = Q_T + 3*56
DBG = 's[8:11]'

def tstamp(k, sOff, off, vT=3):
    k('s_memrealtime s[30:31]')
    k('s_waitcnt lgkmcnt(0)')
    k(f'v_mov_b32 v{vT}, s30')
    k(f'buffer_store_dword v{vT}, off, {WS}, s{sOff} offset:{off}')

def worker(k, pref=0, tl=False):
    TL[0] = tl
    def tl_start(base):
        if not tl: return
        k(f's_add_u32 s57, s42, {base}')
        k('s_lshl_b32 s57, s57, 4')
        k(f's_add_u32 s57, s57, {STAMP + 0x40000}')
        tstamp(k, 57, 0)
    k.label('L_worker')
    k(f'v_and_b32 v{vLn}, 63, v0')
    k(f'v_lshlrev_b32 v{vL16}, 4, v{vLn}')
    k(f's_mov_b32 s{sT2}, {POLL_LIMIT}')
    k(f's_mov_b32 s{sSTEP}, 255')
    k(f's_add_u32 s42, s2, {7 - pref}')
    k('s_and_b32 s42, s42, 7')
    k('s_lshl_b32 s42, s42, 5')
    k('s_lshr_b32 s41, s2, 3')
    k('s_add_u32 s42, s42, s41')
    tl_start(1536)
    k(f's_mul_hi_u32 s{sH}, s42, {(1<<32)//14 + 1}')
    k(f's_mul_i32 s41, s{sH}, 14')
    k(f's_sub_u32 s{sBLK}, s42, s41')
    k(f's_cmp_lt_u32 s{sBLK}, 2')
    k('s_cbranch_scc1 T_Uh')
    k(f's_sub_u32 s{sBLK}, s{sBLK}, 1')
    k('s_branch T_U')
    k.label('W_next')
    if tl: tstamp(k, 57, 4)
    k(f's_cmp_lg_u32 s{sWAVE}, 0')
    k('s_cbranch_scc1 W_bc')
    k('s_mov_b64 exec, 1')
    k('v_mov_b32 v3, 1')
    k(f'buffer_atomic_add v3, off, {DBG}, 0 offset:192 sc0')
    k(f'v_mov_b32 v4, {LTK}')
    k('s_waitcnt vmcnt(0)')
    k('ds_write_b32 v4, v3')
    k('s_waitcnt lgkmcnt(0)')
    k('s_mov_b64 exec, -1')
    k.label('W_bc')
    k('s_barrier')
    k(f'v_mov_b32 v4, {LTK}')
    k('ds_read_b32 v3, v4')
    k('s_waitcnt lgkmcnt(0)')
    k('v_readfirstlane_b32 s42, v3')
    k('s_nop 3')
    tl_start(0)
    k(f's_cmp_ge_u32 s42, {Q_END}')
    k('s_cbranch_scc1 L_exit')
    k(f's_cmp_lt_u32 s42, {Q_M1}')
    k('s_cbranch_scc0 W_q1')
    k(f's_and_b32 s{sH}, s42, 15')
    k(f's_lshr_b32 s{sBLK}, s42, 4')
    k(f's_add_u32 s{sBLK}, s{sBLK}, 13')
    k('s_branch T_U')
    k.label('W_q1')
    k(f's_sub_u32 s{sJ}, s42, {Q_M1}')
    k(f's_cmp_lt_u32 s42, {Q_M2}')
    k('s_cbranch_scc1 T_M1')
    k(f's_sub_u32 s{sJ}, s42, {Q_M2}')
    k(f's_cmp_lt_u32 s42, {Q_P0}')
    k('s_cbranch_scc1 T_M2')
    k(f's_cmp_lt_u32 s42, {Q_G}')
    k('s_cbranch_scc0 W_q2')
    k(f's_sub_u32 s42, s42, {Q_P0}')
    k(f's_and_b32 s{sH}, s42, 15')
    k(f's_lshr_b32 s{sBLK}, s42, 4')
    k('s_branch T_P')
    k.label('W_q2')
    k(f's_cmp_lt_u32 s42, {Q_T}')
    k('s_cbranch_scc0 W_q3')
    k(f's_sub_u32 s42, s42, {Q_G}')
    k(f's_mul_hi_u32 s41, s42, {(1<<32)//72 + 1}')
    k('s_mul_i32 s43, s41, 72')
    k('s_sub_u32 s42, s42, s43')
    k(f's_mov_b32 s{sH}, s42')
    k(f's_add_u32 s{sBLK}, s41, 3')
    k('s_cmp_lt_u32 s42, 16')
    k('s_cbranch_scc1 T_P')
    k('s_sub_u32 s42, s42, 16')
    k('s_mul_i32 s41, s41, 56')
    k('s_add_u32 s42, s42, s41')
    k('s_branch W_v')
    k.label('W_q3')
    k(f's_sub_u32 s42, s42, {Q_T - 13*56}')
    k.label('W_v')
    k(f's_mul_hi_u32 s{sSEG}, s42, {(1<<32)//14 + 1}')
    k(f's_mul_i32 s41, s{sSEG}, 14')
    k('s_sub_u32 s42, s42, s41')
    k('s_cmp_ge_u32 s42, 7')
    k(f's_cselect_b32 s{sQT}, 1, 0')
    k(f's_mul_i32 s41, s{sQT}, 7')
    k(f's_sub_u32 s{sCG}, s42, s41')
    k('s_branch T_V')
    task_U(k); task_U(k, True); task_P(k); task_V(k); task_M1(k); task_M2(k)
```

```python
from asmlib import *
from layout import *

class K(Asm):
    def __init__(self):
        super().__init__()
        self.dsq = []; self.cold = []; self.vmq = []
    def ds(self, text, tag=None):
        self(text); self.dsq.append(tag)
    def wds(self, tag):
        if tag not in self.dsq: return
        idx = max(i for i, t in enumerate(self.dsq) if t == tag)
        n = len(self.dsq) - 1 - idx
        assert n <= 15
        self(f's_waitcnt lgkmcnt({n})')
        self.dsq = self.dsq[idx+1:]
    def wds0(self):
        self('s_waitcnt lgkmcnt(0)'); self.dsq = []
    def vm(self, text, tag=None):
        self(text); self.vmq.append(tag)
    def wvm(self, *tags, extra=''):
        idx = max([i for i, t in enumerate(self.vmq) if t in tags], default=-1)
        if idx < 0:
            if extra: self('s_waitcnt ' + extra)
            return
        n = len(self.vmq) - 1 - idx
        assert n <= 63
        self(f's_waitcnt vmcnt({n}) {extra}')
        self.vmq = self.vmq[idx+1:]
    def flush_cold(self):
        for l in self.cold: self(l)
        self.cold = []

SWS, SDBG = 4, 8
sROLE, sWAVE, sSTEP, sMODE, sM, sP, sX, sUM, sCNT = 12, 13, 14, 15, 16, 17, 18, 19, 20
sT0, sT1, sT2 = 21, 22, 23
sMASK8 = 24
sID = 26
sST = 28
sTM = 30
POLL_LIMIT = 400000
NSTEP = 63
OPT = dict(sa='late', sb='early', um='sc1', uf='sc1', sleepA=0, sleepB=0, stampmask=15, rt=0, barA=1, barB=1, prefP=0, pfd=2, pfs=128, upos='early', ud=2, apf=1, nb=7, stag=1, wpos=1, rsp=1, s1pos=0, upre=8, uneed=32, ust='sc1', rot=1, k1st='sc1', uwin=2, k1d=2, ap2=1, stagA=2, gv=0, qc=0, ninf=0, abar=1, diag=0, lnbar=1, t01=0, ug=8, bdel=0, pc=0, padA=0, padB=0, tail2=1, pf64=1, tw=0, rep=3, prep=1, k1late=0, cpf=0, sm2=0, tm=0, bp2=1, k1pf=0, k1ln='sc1', u0='cold', align=0, w64=0, p64=0, kpos='post', kdel=9, nu2=4, bgs=0, vsl=120, usl=120, psl=16, msl=120)

def stamp(k, idx, on):
    if not on or not (OPT['stampmask'] >> idx) & 1: return
    k(('s_memrealtime' if OPT['rt'] else 's_memtime') + f' s[{sTM}:{sTM+1}]')
    k.wds0()
    k(f'v_mov_b32 v0, s{sTM}')
    k(f'buffer_store_dword v0, off, s[{SWS}:{SWS+3}], s{sST} offset:{idx*4}')

def edge(k, on, off):
    if not on or OPT['rt']: return
    lp = k.newlabel('Led')
    k('s_memrealtime s[70:71]')
    k('s_waitcnt lgkmcnt(0)')
    k.label(lp)
    k('s_memrealtime s[72:73]')
    k('s_memtime s[74:75]')
    k('s_waitcnt lgkmcnt(0)')
    k('s_cmp_eq_u32 s72, s70')
    k(f's_cbranch_scc1 {lp}')
    k('v_mov_b32 v0, s72')
    k(f'buffer_store_dword v0, off, s[{SWS}:{SWS+3}], s76 offset:{off}')
    k('v_mov_b32 v0, s74')
    k(f'buffer_store_dword v0, off, s[{SWS}:{SWS+3}], s76 offset:{off+4}')

def diag(k, idx, op='buffer_atomic_umax'):
    if not OPT['diag']: return
    k('s_memrealtime s[70:71]')
    k('s_waitcnt lgkmcnt(0)')
    k('v_mov_b32 v0, s70')
    k(f'{op} v0, off, s[{SDBG}:{SDBG+3}], 0 offset:{4*idx}')

def publish(k, text):
    ls, ld = k.newlabel('Lslow'), k.newlabel('Lpub')
    if isinstance(text, str): text = [text]
    k(f's_cbranch_scc0 {ls}')
    for x in text: k(x)
    k.label(ld)
    k.cold += [ls + ':'] + [x + ' sc1' for x in text] + [f's_branch {ld}']

def gather_mem(k, vG, vOff0, vOff1, vL0, vL1, vT):
    lp, dn = k.newlabel('Lgm'), k.newlabel('Lgd')
    k(f's_mov_b32 s{sCNT}, 0')
    k.label(lp)
    k(f'buffer_load_dwordx4 {vr(vG,4)}, v{vOff0}, s[{SWS}:{SWS+3}], s{sM} offen sc1')
    k(f'buffer_load_dwordx4 {vr(vG+4,4)}, v{vOff1}, s[{SWS}:{SWS+3}], s{sM} offen sc1')
    k(f's_add_u32 s{sCNT}, s{sCNT}, 1')
    k(f's_cmp_gt_u32 s{sCNT}, s{sT2}')
    k('s_cbranch_scc1 L_fail')
    k('s_waitcnt vmcnt(1)')
    k(f'v_max3_u32 v{vT}, v{vG}, v{vG+1}, v{vG+2}')
    k('s_waitcnt vmcnt(0)')
    k(f'v_max3_u32 v{vT+1}, v{vG+4}, v{vG+5}, v{vG+6}')
    k(f'v_max3_u32 v{vT}, v{vT}, v{vG+3}, v{vG+7}')
    k(f'v_max_u32 v{vT}, v{vT}, v{vT+1}')
    k(f'v_cmp_eq_u32 vcc, -1, v{vT}')
    k(f's_cbranch_vccnz {lp}')
    if vL0 is None: return
    k.ds(f'ds_write_b128 v{vL0}, {vr(vG,4)}')
    k.ds(f'ds_write_b128 v{vL1}, {vr(vG+4,4)}')
    k.wds0()
    k('s_barrier')

def wait_mode(k, vT):
    lp = k.newlabel('Lwm')
    k(f's_mov_b32 s{sCNT}, 0')
    k(f'v_and_b32 v{vT+1}, 15, v0')
    k(f'v_lshlrev_b32 v{vT+1}, 2, v{vT+1}')
    k.label(lp)
    k(f'buffer_load_dword v{vT}, v{vT+1}, s[{SDBG}:{SDBG+3}], 0 offen offset:32 sc1')
    k(f's_add_u32 s{sCNT}, s{sCNT}, 1')
    k(f's_cmp_gt_u32 s{sCNT}, s{sT2}')
    k('s_cbranch_scc1 L_fail')
    k('s_waitcnt vmcnt(0)')
    k(f'v_cmp_eq_u32 vcc, 32, v{vT}')
    for rot in (8, 4, 2, 1):
        k.nop(2)
        k(f'v_add_u32_dpp v{vT}, v{vT}, v{vT} row_ror:{rot} row_mask:0xf bank_mask:0xf')
    k.nop(1)
    k(f'v_readfirstlane_b32 s{sMODE}, v{vT}')
    k('s_nop 3')
    k(f's_cmp_lt_u32 s{sMODE}, 32')
    k(f's_cbranch_scc1 {lp}')
    k('s_cmp_lg_u64 vcc, 0')
    k(f's_cselect_b32 s{sMODE}, 1, 2')

def common_lane_setup(k, vLane, vL16, vG0, vG1, vIdx, vT):
    k(f'v_and_b32 v{vLane}, 63, v0')
    k(f'v_lshlrev_b32 v{vL16}, 4, v{vLane}')
    if vG0 is not None:
        k(f's_lshl_b32 s{sT0}, s{sWAVE}, 10')
        k(f'v_add_u32 v{vG0}, s{sT0}, v{vL16}')
        k(f's_add_u32 s{sT0}, s{sWAVE}, 4')
        k(f's_min_u32 s{sT0}, s{sT0}, 6')
        k(f's_lshl_b32 s{sT0}, s{sT0}, 10')
        k(f'v_add_u32 v{vG1}, s{sT0}, v{vL16}')
    k(f'v_and_b32 v{vT}, 8, v{vLane}')
    k(f'v_mov_b32 v{vIdx}, 0x4444')
    k(f'v_mov_b32 v{vT+1}, 0xeeee')
    k(f'v_cmp_ne_u32 vcc, 0, v{vT}')
    k('s_nop 1')
    k(f'v_cndmask_b32 v{vIdx}, v{vIdx}, v{vT+1}, vcc')
    k(f's_mov_b32 s{sT2}, {POLL_LIMIT}')

def poll2(k, issue, checks, body, name, stag):
    nl = len(issue(0))
    l0, d0, d1, dn = [k.newlabel(name + x) for x in ('lp', 'd0', 'd1', 'dn')]
    k(f's_mov_b32 s{sCNT}, 0')
    for x in issue(0): k(x)
    k(f"s_sleep {stag}")
    k.label(l0)
    for st, dl in ((0, d0), (1, d1)):
        for x in issue(1 - st): k(x)
        if st == 0:
            k(f's_add_u32 s{sCNT}, s{sCNT}, 1')
            k(f's_cmp_gt_u32 s{sCNT}, s{sT2}')
            k('s_cbranch_scc1 L_fail')
        for rel, ins in checks(st):
            k(f's_waitcnt vmcnt({nl + rel})')
            for x in ins: k(x)
        if st == 0: k(f's_cbranch_vccz {d0}')
        else:       k(f's_cbranch_vccnz {l0}x')
    saved = list(k.dsq)
    body(1)
    k(f's_branch {dn}')
    k.label(l0 + 'x')
    k(f's_branch {l0}')
    k.label(d0)
    end = list(k.dsq); k.dsq = saved
    body(0)
    assert k.dsq == end
    k.label(dn)

def role_A(k, stamps=False):
    vLane, vL16, vIdx = 1, 2, 3
    vKey, vKeyS, vMK, vMKS, vQW, vQR, vSW, vSR, vPO, vVal = 4, 5, 6, 7, 8, 9, 10, 11, 12, 13
    vT = 14
    vM = 16
    vQ = 44
    vKT = 72
    vS0 = 48
    vKM = 100
    vX = 114
    vG0, vG1 = 118, 119
    def W(lt, kb):
        i = lt*7 + kb
        return (256 + 8*i) if i < 32 else (120 + 8*(i-32))
    LM, LSP, LQS = 0, 7168, 22528
    SPW = 3536
    k.label('L_roleA')
    k(f's_mov_b32 s{sID}, s{sROLE}')
    common_lane_setup(k, vLane, vL16, vG0, vG1, vIdx, vX)
    k(f's_lshr_b32 s{sT0}, s{sWAVE}, 1')
    k(f's_mul_i32 s{sT0}, s{sT0}, 14')
    k(f's_and_b32 s{sT1}, s{sWAVE}, 1')
    k(f's_add_u32 s33, s{sT0}, 6')
    k(f's_add_u32 s33, s33, s{sT1}')
    k(f's_lshl_b32 s34, s{sT1}, 3')
    k(f's_add_u32 s32, s{sT0}, s34')
    k(f's_mul_i32 s35, s{sID}, {28*14*1024}')
    k(f's_add_u32 s35, s35, {WTA}')
    k(f's_mul_i32 s36, s32, {14*1024}')
    k(f's_add_u32 s36, s36, s35')
    k(f's_mul_i32 s37, s33, {14*1024}')
    k(f's_add_u32 s37, s37, s35')
    for j in range(7):
        k(f's_add_u32 s{50+j}, s{sWAVE}, {(4*j) % 7}')
        k(f's_sub_u32 s40, s{50+j}, 7')
        k(f's_cmp_ge_u32 s{50+j}, 7')
        k(f's_cselect_b32 s{50+j}, s40, s{50+j}')
        k(f's_lshl_b32 s{50+j}, s{50+j}, 10')
    n = 0
    for lt in range(7):
        sb = 36 if lt < 6 else 37
        for j in range(7):
            k(f's_lshl_b32 s40, s{50+j}, 1')
            k(f's_add_u32 s40, s40, s{sb}')
            for f in range(2):
                k(f'buffer_load_dwordx4 {xr(W(lt, j) + 4*f,4)}, v{vL16}, s[{SWS}:{SWS+3}], s40 offen offset:{f*1024}')
                n += 1
                if n % 16 == 0: k('s_waitcnt vmcnt(40)')
        k(f's_add_u32 s{sb}, s{sb}, 14336')
    k(f'v_add_u32 v{vG1}, s51, v{vL16}')
    t = vX
    g, i = vQ, vQ+1
    k(f'v_lshrrev_b32 v{g}, 4, v{vLane}')
    k(f'v_and_b32 v{i}, 15, v{vLane}')
    k(f's_lshr_b32 s38, s32, 1')
    k(f's_lshr_b32 s39, s33, 1')
    k(f's_lshl_b32 s40, s38, 10')
    k(f'v_add_u32 v{vKey}, s40, v{vL16}')
    k(f's_lshl_b32 s40, s39, 10')
    k(f's_add_u32 s40, s40, s34')
    k(f'v_add_u32 v{vKeyS}, s40, v{vL16}')
    k(f'v_lshrrev_b32 v{t}, 1, v{g}')
    k(f'v_lshlrev_b32 v{t}, 8, v{t}')
    k(f'v_and_b32 v{t+1}, 7, v{i}')
    k(f'v_lshlrev_b32 v{t+1}, 4, v{t+1}')
    k(f'v_add_u32 v{t}, v{t}, v{t+1}')
    k(f'v_and_b32 v{t+1}, 1, v{g}')
    k(f'v_lshlrev_b32 v{t+1}, 7, v{t+1}')
    k(f'v_add_u32 v{t}, v{t}, v{t+1}')
    k(f's_lshl_b32 s40, s38, 9')
    k(f'v_add_u32 v{vMK}, s40, v{t}')
    k(f's_lshl_b32 s40, s39, 9')
    k(f's_add_u32 s40, s40, s34')
    k(f'v_add_u32 v{vMKS}, s40, v{t}')
    k(f's_lshl_b32 s40, s{sWAVE}, 10')
    k(f's_add_u32 s40, s40, {LQS}')
    k(f'v_lshrrev_b32 v{t}, 2, v{i}')
    k(f'v_add_u32 v{t}, v{t}, v{g}')
    k(f'v_and_b32 v{t}, 3, v{t}')
    k(f'v_lshlrev_b32 v{t}, 3, v{t}')
    k(f'v_lshlrev_b32 v{t+1}, 5, v{i}')
    k(f'v_add3_u32 v{vQW}, v{t}, v{t+1}, s40')
    k(f'v_lshrrev_b32 v{t}, 2, v{vLane}')
    k(f'v_lshlrev_b32 v{t}, 5, v{t}')
    k(f'v_add_u32 v{t+1}, v{vLane}, v{g}')
    k(f'v_and_b32 v{t+1}, 3, v{t+1}')
    k(f'v_lshlrev_b32 v{t+1}, 3, v{t+1}')
    k(f'v_add3_u32 v{vQR}, v{t}, v{t+1}, s40')
    k(f's_mul_i32 s40, s{sWAVE}, {SPW}')
    k(f's_add_u32 s40, s40, {LSP}')
    k(f'v_lshlrev_b32 v{t}, 4, v{i}')
    k(f'v_mul_u32_u24 v{t+1}, 272, v{g}')
    k(f'v_add3_u32 v{vSW}, v{t}, v{t+1}, s40')
    if OPT['ninf']:
        k(f'v_min_u32 v{t}, 12, v{i}')
        k(f'v_lshrrev_b32 v{t+1}, 1, v{i}')
        k(f'v_cmp_eq_u32 vcc, 1, v{t+1}')
        k('s_nop 1')
        k(f'v_cndmask_b32 v{t}, v{t}, 12, vcc')
        k(f'v_mov_b32 v{vS0}, 0xff800000')
        for r in range(1, 4): k(f'v_mov_b32 v{vS0+r}, v{vS0}')
        k(f'v_lshlrev_b32 v{t+1}, 4, v{i}')
        k(f'v_add_u32 v{t+1}, s40, v{t+1}')
        k(f'ds_write_b128 v{t+1}, {vr(vS0,4)} offset:{12*272}')
    else:
        k(f'v_subrev_u32 v{t}, 12, v{i}')
        k(f'v_cmp_le_u32 vcc, 12, v{i}')
        k('s_nop 1')
        k(f'v_cndmask_b32 v{t}, v{i}, v{t}, vcc')
    k(f'v_lshrrev_b32 v{t+1}, 5, v{vLane}')
    k(f's_lshl_b32 s40, s{sWAVE}, 1')
    k(f'v_add_u32 v{t+1}, s40, v{t+1}')
    k(f'v_and_b32 v{t+2}, 1, v{g}')
    k(f'v_lshl_add_u32 v{t+3}, v{t+2}, 3, v{t+1}')
    k(f'v_lshlrev_b32 v{t+3}, 4, v{t+3}')
    k(f'v_mul_u32_u24 v{vSR}, 272, v{t}')
    k(f'v_add_u32 v{vSR}, v{vSR}, v{t+3}')
    if LSP: k(f'v_add_u32 v{vSR}, {LSP}, v{vSR}')
    k(f's_and_b32 s42, s{sID}, 1')
    k(f's_lshl_b32 s42, s42, 3')
    k(f'v_add_u32 v{t+1}, s42, v{t+1}')
    k(f'v_and_b32 v{vPO}, 1, v{i}')
    k(f'v_lshlrev_b32 v{vPO}, 3, v{vPO}')
    k(f'v_lshl_add_u32 v{vPO}, v{t+1}, 4, v{vPO}')
    k(f'v_bfe_u32 v{t}, v{i}, 1, 1')
    k(f'v_lshl_add_u32 v{vPO}, v{t}, 8, v{vPO}')
    k(f'v_bfe_u32 v{t}, v{i}, 3, 1')
    k(f'v_lshl_add_u32 v{vPO}, v{t}, 9, v{vPO}')
    k(f's_lshr_b32 s41, s{sID}, 1')
    k(f's_lshl_b32 s40, s41, 10')
    k(f'v_add_u32 v{vPO}, s40, v{vPO}')
    k(f'v_lshlrev_b32 v{t}, 3, v{i}')
    k(f'v_lshl_add_u32 v{t}, v{t+1}, 4, v{t}')
    k(f's_lshl_b32 s40, s41, 8')
    k(f's_add_u32 s40, s40, 8192')
    k(f'v_add_u32 v{t}, s40, v{t}')
    k(f'v_mov_b32 v{t+3}, 0x40000000')
    k(f'v_cmp_le_u32 vcc, 2, v{i}')
    k('s_nop 1')
    k(f'v_cndmask_b32 v{t}, v{t}, v{t+3}, vcc')
    k(f'v_cmp_le_u32 vcc, 4, v{i}')
    k('s_nop 1')
    k(f'v_cndmask_b32 v{vPO}, v{t}, v{vPO}, vcc')
    k(f'v_cmp_le_u32 vcc, 12, v{i}')
    k('s_nop 1')
    k(f'v_cndmask_b32 v{vPO}, v{vPO}, v{t+3}, vcc')
    k(f'v_lshl_add_u32 v{vPO}, v{t+2}, 2, v{vPO}')
    k(f'v_mov_b32 v{vVal}, 1.0')
    k(f'v_cmp_le_u32 vcc, v{t+3}, v{vPO}')
    k('s_nop 1')
    k(f'v_cndmask_b32 v{vVal}, v{vVal}, 0, vcc')
    k(f's_mov_b32 s{sSTEP}, 0')
    k(f"s_lshr_b32 s{sM}, s{sID}, {3 if OPT['rep'] == 3 else 2}")
    k(f"s_mul_i32 s{sM}, s{sM}, {MEM_S if NREP == 3 else 0}")
    k(f's_add_u32 s{sM}, s{sM}, {MEM}')
    k(f's_mov_b32 s{sP}, {PB}')
    k(f's_mov_b32 s{sX}, {XNS}')
    k(f's_lshl_b32 s40, s{sID}, 2')
    k(f's_add_u32 s40, s40, s{sWAVE}')
    k(f's_mul_i32 s40, s40, 7168')
    k(f'v_min_u32 v{vX}, {55*16}, v{vL16}')
    k(f'v_lshlrev_b32 v{vX}, 3, v{vX}')
    k(f'v_add_u32 v{vX}, s40, v{vX}')
    k(f"s_mov_b32 s{sUM}, {UF + OPT['ud']*UF_SEG}")
    WS = f's[{SWS}:{SWS+3}]'
    def key_list():
        L = []
        for p in range(3):
            L.append(f'buffer_load_dwordx4 {vr(vKT+8*p,4)}, v{vKey}, {WS}, s{sX} offen offset:{p*1024}')
            L.append(f'buffer_load_dwordx4 {vr(vKT+8*p+4,4)}, v{vKey}, {WS}, s46 offen offset:{p*1024}')
        L.append(f'buffer_load_dwordx2 {vr(vKT+24,2)}, v{vKeyS}, {WS}, s{sX} offen')
        L.append(f'buffer_load_dwordx2 {vr(vKT+26,2)}, v{vKeyS}, {WS}, s46 offen')
        return L
    def load_flag():
        k(f's_add_u32 s{sT0}, s{sSTEP}, {1 + OPT["ud"]}')
        k(f's_lshr_b32 s{sT0}, s{sT0}, 2')
        k(f's_lshl_b32 s{sT0}, s{sT0}, 7')
        k(f's_add_u32 s{sT0}, s{sT0}, {flag(F_U)}')
        k(f'buffer_load_dword v{vX+2}, off, {WS}, s{sT0} sc1')
    def load_keys(keys=True):
        if keys:
            for x in key_list(): k(x)
        k(f's_add_u32 s{sX}, s{sX}, 28672')
        k(f's_add_u32 s46, s{sX}, 14336')
    if OPT['tm']:
        k(f'v_lshlrev_b32 v{vQ+2}, 2, v{g}')
        k(f'v_sub_u32 v{vQ+2}, v{i}, v{vQ+2}')
        k(f'v_and_b32 v{vQ+3}, 1, v{vQ+2}')
        k(f'v_lshlrev_b32 v{vQ+3}, 4, v{vQ+3}')
        k(f'v_mov_b32 v{vLane}, 0x3f80')
        k(f'v_lshlrev_b32 v{vLane}, v{vQ+3}, v{vLane}')
        k(f'v_cmp_gt_u32 vcc, 4, v{vQ+2}')
        k(f'v_cmp_lt_u32 s[48:49], 1, v{vQ+2}')
        k('s_nop 0')
        k(f'v_cndmask_b32 v{vLane}, 0, v{vLane}, vcc')
    k(f's_add_u32 s46, s{sX}, 14336')
    k(f's_mov_b32 s{sSTEP}, -1')
    load_flag()
    load_keys()
    if OPT['t01']:
        lt_ = k.newlabel('Lt01')
        k('s_waitcnt vmcnt(8)')
        k(f'v_cmp_le_u32 vcc, {OPT["uneed"]}, v{vX+2}')
        k(f's_cbranch_vccz {lt_}')
        k(f's_mov_b32 s40, {UF}')
        k(f's_mov_b32 s41, {UF + UF_SEG}')
        k(f'buffer_load_dword v{vX+3}, v{vX}, {WS}, s40 offen sc1')
        k(f'buffer_load_dword v{vX+1}, v{vX}, {WS}, s41 offen sc1')
        k.label(lt_)
    k(f's_mov_b32 s{sSTEP}, 0')
    wait_mode(k, vT)
    k(f'v_mov_b32 v{vX+3}, 0x40000000')
    if stamps: k(f's_add_u32 s76, s{sST}, 0x20000')
    edge(k, stamps, 0)
    diag(k, 4)
    k('s_branch L_A_loop')
    k('.p2align 8')
    for _ in range(OPT['padA']): k('s_nop 0')
    k.label('L_A_loop')
    for r in range(0, 28, 2): k(f'v_mov_b64 {vr(vQ+r,2)}, 0')
    k(f's_add_u32 s47, s{sP}, {PB_S}')
    vAd = vKM + 6
    for j in range(2, 7): k(f'v_add_u32 v{vAd+j}, s{50+j}, v{vL16}')
    def Mx(lt, kb, src):
        return f'v_smfmac_f32_16x16x64_bf16 {vr(vQ+4*lt,4)}, {vr(src,4)}, {xr(W(lt,kb),8)}, v{vIdx}'
    def M(lt, kb): return Mx(lt, kb, vM+4*kb)
    mk = [f'ds_read_b128 {vr(vKM+4*p,4)}, v{vMK} offset:{LM+p*512}' for p in range(3)]
    mk.append(f'ds_read_b64 {vr(vKM+12,2)}, v{vMKS} offset:{LM}')
    sets = [vM, vKM]
    def issue(st):
        return [f'buffer_load_dwordx4 {vr(sets[st],4)}, v{vG0}, {WS}, s{sM} offen sc1',
                f'buffer_load_dwordx4 {vr(sets[st]+4,4)}, v{vG1}, {WS}, s{sM} offen sc1']
    def checks(st):
        G = sets[st]
        if OPT['qc']: return [(0, [f'v_max_u32 v{vT}, v{G+3}, v{G+7}', f'v_cmp_eq_u32 vcc, -1, v{vT}'])]
        return [(1, [f'v_max3_u32 v{vT}, v{G}, v{G+1}, v{G+2}']),
                (0, [f'v_max3_u32 v{vT+1}, v{G+4}, v{G+5}, v{G+6}', f'v_max3_u32 v{vT}, v{vT}, v{G+3}, v{G+7}',
                     f'v_max_u32 v{vT}, v{vT}, v{vT+1}', f'v_cmp_eq_u32 vcc, -1, v{vT}'])]
    NB = OPT['nb']
    def body(st):
        G = sets[st]
        stamp(k, 0, stamps)
        if stamps and OPT['pc']:
            k(f'v_mov_b32 v0, s{sCNT}')
            k(f'buffer_store_dword v0, off, s[{SWS}:{SWS+3}], s{sST} offset:12')
        wrs = [f'ds_write_b128 v{vG0}, {vr(G,4)} offset:{LM}', f'ds_write_b128 v{vG1}, {vr(G+4,4)} offset:{LM}']
        seq = [(lt, j) for j in range(2) for lt in range(7)]
        for n, (lt, j) in enumerate(seq):
            k(Mx(lt, j, G + 4*j))
            if OPT['w64'] == 0 and n < 2: k.ds(wrs[n])
            if OPT['w64'] == 1 and n < 4: k.ds(f'ds_write_b64 v{vG0 if n < 2 else vG1}, {vr(G+2*n,2)} offset:{LM + 8*(n&1)}')
            if OPT['qc']:
                if n == 2: k(f'v_max3_u32 v{vT}, v{G}, v{G+1}, v{G+2}')
                if n == 3: k(f'v_max3_u32 v{vT+1}, v{G+4}, v{G+5}, v{G+6}')
                if n == 4: k(f'v_max_u32 v{vT}, v{vT}, v{vT+1}')
                if n == 5: k(f'v_cmp_eq_u32 vcc, -1, v{vT}')
                if n == 6: k('s_cbranch_vccnz L_A_redo')
                if n == 11: k(f'v_cmp_le_u32 vcc, {OPT["uneed"]}, v{vX+2}')
                if n == 12: k('s_nop 0'); k(f'v_cndmask_b32 v{vX+1}, v{vX+3}, v{vX}, vcc')
            else:
                if n == 4: k(f'v_cmp_le_u32 vcc, {OPT["uneed"]}, v{vX+2}')
                if n == 5: k('s_nop 0'); k(f'v_cndmask_b32 v{vX+1}, v{vX+3}, v{vX}, vcc')
            if n == NB - 1:
                k.wds0(); k('s_barrier')
            if NB - 1 <= n < NB + 4:
                jj = n - (NB - 1) + 2
                k.ds(f'ds_read_b128 {vr(vM+4*jj,4)}, v{vAd+jj} offset:{LM}', f'm{jj}')
            if n == (13 if OPT['qc'] else NB + 5): k(f'buffer_load_dword v0, v{vX+1}, {WS}, s{sUM} offen sc1')
    if OPT['qc']: k.cold += ['L_A_redo:', 's_waitcnt vmcnt(0) lgkmcnt(0)', 's_nop 15', 's_branch L_A_loop']
    if stamps and OPT['pc']: stamp(k, 1, True)
    if OPT['ap2']:
        poll2(k, issue, checks, body, 'Lga', OPT['stagA'])
    else:
        gather_mem(k, vM, vG0, vG1, None, None, vT)
        body(0)
    def cvt(lt, h):
        k(f'v_cvt_pk_bf16_f32 v{vQ+4*lt+h}, v{vQ+4*lt+2*h}, v{vQ+4*lt+2*h+1}')
    def wr(lt):
        k.ds(f'ds_write_b64 v{vQW}, {vr(vQ+4*lt,2)} offset:{512*(lt&1)}')
    def tr(p, h):
        k.ds(f'ds_read_b64_tr_b16 {vr(vQ+8*p+2*h,2)}, v{vQR} offset:{512*h}', f'q{p}')
    vSt = [vM, vM+4, vQ+4]
    def S(p, t):
        q = vQ + 8*p
        c = '0' if p == 0 else vr(vSt[t],4)
        if p < 3:
            a = vKM+4*p if t == 0 else vKT+8*p+4*(t-1)
            k(f'v_mfma_f32_16x16x32_bf16 {vr(vSt[t],4)}, {vr(a,4)}, {vr(q,4)}, {c}')
        else:
            a = vKM+12 if t == 0 else vKT+24+2*(t-1)
            k(f'v_mfma_f32_16x16x16_bf16 {vr(vSt[t],4)}, {vr(a,2)}, {vr(q,2)}, {c}')
    for lt in range(7):
        for j in range(2, 7):
            if lt == 0: k.wds(f'm{j}')
            k(M(lt, j))
            if OPT['tm'] and lt == 1 and j == 2: k(f'v_cndmask_b32 v{vT}, v{vLane}, 0, s[48:49]')
            if OPT['tm'] and lt == 1 and j == 3: k(f'v_cndmask_b32 v{vT+1}, 0, v{vLane}, s[48:49]')
            if lt == 0 and j == 6:
                k('s_waitcnt vmcnt(1)')
                for x in mk: k.ds(x, 'mk')
            if lt >= 1:
                if j == 4: cvt(lt-1, 0)
                if j == 5: cvt(lt-1, 1)
                if j == 6:
                    wr(lt-1)
                    if (lt-1) & 1: tr((lt-1)//2, 0); tr((lt-1)//2, 1)
        if lt == (4 if OPT['s1pos'] == 0 else 3):
            k.wds('q0')
            for t in range(3): S(0, t)
        if lt == 5 and OPT['s1pos'] == 1:
            k.wds('q1')
            for t in range(3): S(1, t)
    if OPT['s1pos'] == 0:
        k.wds('q1')
        for t in range(3): S(1, t)
        cvt(6, 0); cvt(6, 1)
        if OPT['tm']:
            k.wds('q2')
            k.nop(1)
            k(f'v_mfma_f32_16x16x16_bf16 {vr(vQ+12,4)}, {vr(vQ+24,2)}, {vr(vT,2)}, 0')
            for t in range(3): S(2, t)
            k(f'v_cvt_pk_bf16_f32 v{vQ+24}, v{vQ+12}, v{vQ+13}')
            k(f'v_cvt_pk_bf16_f32 v{vQ+25}, v{vQ+14}, v{vQ+15}')
            k.nop(2)
        else:
            wr(6); tr(3, 0)
            k.wds('q2')
            for t in range(3): S(2, t)
    else:
        k.nop(8)
        cvt(6, 0); cvt(6, 1); wr(6); tr(3, 0)
        k.wds('q2')
        for t in range(3): S(2, t)
    k.wds('q3')
    for t in range(3): S(3, t)
    for t in range(3):
        k.nop(2 if (t == 0 or OPT['p64'] == 0) else 1)
        if OPT['p64'] == 0: k.ds(f'ds_write_b128 v{vSW}, {vr(vSt[t],4)} offset:{1088*t}')
        else:
            k.ds(f'ds_write_b64 v{vSW}, {vr(vSt[t],2)} offset:{1088*t}')
            k.ds(f'ds_write_b64 v{vSW}, {vr(vSt[t]+2,2)} offset:{1088*t+8}')
    k.wds0()
    k('s_barrier')
    stamp(k, 1, stamps and not OPT['pc'])
    mark = len(k.lines)
    R = vQ+8
    for w in range(4): k.ds(f'ds_read_b128 {vr(R+4*w,4)}, v{vSR} offset:{w*SPW}', f'r{w}')
    k(f's_cmp_eq_u32 s{sMODE}, 1')
    k.wds('r1')
    k(f'v_pk_add_f32 {vr(R,2)}, {vr(R,2)}, {vr(R+4,2)}')
    k(f'v_pk_add_f32 {vr(R+2,2)}, {vr(R+2,2)}, {vr(R+6,2)}')
    k.wds('r2')
    k(f'v_pk_add_f32 {vr(R,2)}, {vr(R,2)}, {vr(R+8,2)}')
    k(f'v_pk_add_f32 {vr(R+2,2)}, {vr(R+2,2)}, {vr(R+10,2)}')
    k.wds('r3')
    k(f'v_pk_add_f32 {vr(R,2)}, {vr(R,2)}, {vr(R+12,2)}')
    k(f'v_pk_add_f32 {vr(R+2,2)}, {vr(R+2,2)}, {vr(R+14,2)}')
    k.nop(2)
    k(f'v_permlane16_swap_b32 v{R}, v{R+2}')
    k(f'v_permlane16_swap_b32 v{R+1}, v{R+3}')
    X = R+4; m = R+6; t = R+8
    k(f'v_pk_add_f32 {vr(X,2)}, {vr(R,2)}, {vr(R+2,2)}')
    def allred(op, m):
        for rot in (8, 4, 2, 1):
            k.nop(2)
            k(f'{op}_dpp v{m}, v{m}, v{m} row_ror:{rot} row_mask:0xf bank_mask:0xf')
        k(f'v_mov_b32 v{t}, v{m}')
        k.nop(2)
        k(f'v_permlane16_swap_b32 v{m}, v{t}')
        k(f'{op} v{m}, v{m}, v{t}')
    if OPT['sm2'] == 0:
        k(f'v_max_f32 v{m}, v{X}, v{X+1}')
        allred('v_max_f32', m)
        k(f'v_pk_add_f32 {vr(X,2)}, {vr(X,2)}, {vr(m,2)} op_sel_hi:[1,0] neg_lo:[0,1] neg_hi:[0,1]')
        k(f'v_exp_f32 v{X}, v{X}')
        k(f'v_exp_f32 v{X+1}, v{X+1}')
        k.nop(1)
        k(f'v_add_f32 v{m}, v{X}, v{X+1}')
        if not OPT['ninf']: k(f'v_mul_f32 v{m}, v{m}, v{vVal}')
        allred('v_add_f32', m)
        k(f'v_rcp_f32 v{m}, v{m}')
        k.nop(1)
        k(f'v_pk_mul_f32 {vr(X,2)}, {vr(X,2)}, {vr(m,2)} op_sel_hi:[1,0]')
    else:
        l_, M, sc = R+10, R+12, R+14
        def dpp(op, r, rot): k(f'{op}_dpp v{r}, v{r}, v{r} row_ror:{rot} row_mask:0xf bank_mask:0xf')
        k(f'v_max_f32 v{m}, v{X}, v{X+1}')
        for rot in (8, 4, 2, 1):
            k.nop(2); dpp('v_max_f32', m, rot)
        k(f'v_pk_add_f32 {vr(X,2)}, {vr(X,2)}, {vr(m,2)} op_sel_hi:[1,0] neg_lo:[0,1] neg_hi:[0,1]')
        k(f'v_mov_b32 v{M}, v{m}')
        k(f'v_exp_f32 v{X}, v{X}')
        k(f'v_mov_b32 v{t}, v{m}')
        k(f'v_exp_f32 v{X+1}, v{X+1}')
        k.nop(1)
        k(f'v_add_f32 v{l_}, v{X}, v{X+1}')
        k(f'v_permlane16_swap_b32 v{M}, v{t}')
        k(f'v_mul_f32 v{l_}, v{l_}, v{vVal}')
        k(f'v_max_f32 v{M}, v{M}, v{t}')
        k(f'v_sub_f32 v{sc}, v{m}, v{M}')
        dpp('v_add_f32', l_, 8)
        k(f'v_exp_f32 v{sc}, v{sc}')
        k.nop(1)
        dpp('v_add_f32', l_, 4)
        k(f'v_pk_mul_f32 {vr(X,2)}, {vr(X,2)}, {vr(sc,2)} op_sel_hi:[1,0]')
        k.nop(1)
        dpp('v_add_f32', l_, 2)
        k.nop(2)
        dpp('v_add_f32', l_, 1)
        k(f'v_mul_f32 v{l_}, v{l_}, v{sc}')
        k(f'v_mov_b32 v{t}, v{l_}')
        k.nop(2)
        k(f'v_permlane16_swap_b32 v{l_}, v{t}')
        k(f'v_add_f32 v{l_}, v{l_}, v{t}')
        k(f'v_rcp_f32 v{l_}, v{l_}')
        k.nop(1)
        k(f'v_pk_mul_f32 {vr(X,2)}, {vr(X,2)}, {vr(l_,2)} op_sel_hi:[1,0]')
    k(f'v_cvt_pk_bf16_f32 v{X}, v{X}, v{X+1}')
    k(f'v_min_u32 v{X}, -2, v{X}')
    if OPT['kpos'] == 'soft':
        body_ = k.lines[mark:]; k.lines = k.lines[:mark]; L = key_list()
        for x in body_:
            if x == 's_nop 1' and L: k(L.pop(0)); k('s_nop 0')
            else: k(x)
        assert not L
    publish(k, [f'buffer_store_dword v{X}, v{vPO}, {WS}, s{x} offen' for x in [sP, 47][:OPT['prep']]])
    stamp(k, 2, stamps)
    if OPT['abar']: k('s_barrier')
    if stamps and OPT['tw']:
        k('s_waitcnt vmcnt(0)')
        stamp(k, 3, stamps)
    load_flag()
    if OPT['kdel']: k(f"s_sleep {OPT['kdel']}")
    load_keys(OPT['kpos'] != 'soft')
    if OPT['sleepA']: k(f"s_sleep {OPT['sleepA']}")
    k(f's_add_u32 s{sUM}, s{sUM}, {UF_SEG}')
    k(f's_add_u32 s{sM}, s{sM}, {MEM_T}')
    k(f's_add_u32 s{sP}, s{sP}, {PB_T}')
    if stamps: k(f's_add_u32 s{sST}, s{sST}, 16')
    k(f's_add_u32 s{sSTEP}, s{sSTEP}, 1')
    k(f's_cmp_lt_u32 s{sSTEP}, {NSTEP}')
    k('s_cbranch_scc1 L_A_loop')
    diag(k, 5)
    edge(k, stamps, 8)
    k('s_waitcnt vmcnt(0)')
    k('s_endpgm')
    k.flush_cold()

def role_B(k, stamps=False, wait_u=None):
    WS = f's[{SWS}:{SWS+3}]'
    vLane, vL16, vG0, vG1, vIdx = 1, 2, 3, 4, 5
    vWL, vPT, vPM, vRW, vRR, vL4 = 6, 7, 8, 9, 10, 11
    vC = 12
    vM = 16
    vA = 44
    vU = 76
    vTm = 108
    vUi = 140
    vUm = 172
    vRR2 = 188
    vKeep, vFl = 191, 15
    vD = vTm
    vG = vTm + 16
    vP = [vM, vA]
    def W(gi, kb):
        i = gi*5 + kb
        return (256 + 8*i) if i < 32 else (192 + 8*(i-32))
    LM, LRED, LW = 0, 7168, 16384
    k.label('L_roleB')
    k(f's_sub_u32 s{sID}, s{sROLE}, 16')
    common_lane_setup(k, vLane, vL16, vG0, vG1, vIdx, vC)
    k(f's_lshl_b32 s{sT0}, s{sWAVE}, 2')
    k(f's_mul_i32 s{sT0}, s{sT0}, 28')
    k(f's_lshl_b32 s{sT1}, s{sID}, 1')
    k(f's_add_u32 s{sT0}, s{sT0}, s{sT1}')
    k(f's_mul_i32 s35, s{sT0}, 14336')
    k(f's_add_u32 s35, s35, {WTB}')
    k(f's_lshl_b32 s37, s{sWAVE}, 15')
    k(f's_add_u32 s37, s37, {LW}')
    k(f'v_add_u32 v{vWL}, s37, v{vL16}')
    for j in range(7):
        k(f's_add_u32 s{50+j}, s{sWAVE}, {(4*j) % 7}')
        k(f's_sub_u32 s40, s{50+j}, 7')
        k(f's_cmp_ge_u32 s{50+j}, 7')
        k(f's_cselect_b32 s{50+j}, s40, s{50+j}')
        k(f's_lshl_b32 s{50+j}, s{50+j}, 10')
    k(f'v_add_u32 v{vG1}, s51, v{vL16}')
    for gi in range(8):
        k(f's_add_u32 s36, s35, {(gi>>1)*28*14336 + (gi&1)*14336}')
        for j in range(7):
            k(f's_lshl_b32 s40, s{50+j}, 1')
            k(f's_add_u32 s40, s40, s36')
            if j >= 5:
                k(f's_add_u32 s38, s37, {gi*4096 + (j-5)*2048}')
                k(f's_mov_b32 m0, s38')
                k('s_nop 0')
            for f in range(2):
                if j < 5: k(f'buffer_load_dwordx4 {xr(W(gi, j) + 4*f,4)}, v{vL16}, {WS}, s40 offen offset:{f*1024}')
                else:     k(f'buffer_load_dwordx4 v{vL16}, {WS}, s40 offen offset:{f*1024} lds')
        k('s_waitcnt vmcnt(40)')
    g, i = vA, vA+1
    vT = vC
    k(f'v_lshrrev_b32 v{g}, 4, v{vLane}')
    k(f'v_and_b32 v{i}, 15, v{vLane}')
    k(f's_lshl_b32 s40, s{sWAVE}, 11')
    k(f'v_add_u32 v{vPT}, s40, v{vL16}')
    k(f'v_lshrrev_b32 v{vT}, 1, v{g}')
    k(f'v_lshlrev_b32 v{vT}, 8, v{vT}')
    k(f'v_lshl_add_u32 v{vT}, v{i}, 4, v{vT}')
    k(f's_lshl_b32 s40, s{sWAVE}, 9')
    k(f's_add_u32 s40, s40, 8192')
    k(f'v_add_u32 v{vPM}, s40, v{vT}')
    k(f's_lshl_b32 s40, s{sWAVE}, 10')
    k(f's_add_u32 s40, s40, {LRED}')
    k(f'v_add_u32 v{vRW}, s40, v{vL16}')
    k(f'v_and_b32 v{vT}, 3, v{vLane}')
    k(f'v_lshlrev_b32 v{vT}, 6, v{vT}')
    k(f'v_lshrrev_b32 v{vT+1}, 5, v{vLane}')
    k(f'v_lshl_add_u32 v{vT}, v{vT+1}, 5, v{vT}')
    k(f'v_lshrrev_b32 v{vT+1}, 2, v{vLane}')
    k(f'v_and_b32 v{vT+2}, 3, v{vT+1}')
    k(f'v_lshl_add_u32 v{vT}, v{vT+2}, 2, v{vT}')
    k(f'v_bfe_u32 v{vT+2}, v{vLane}, 4, 1')
    k(f'v_lshl_add_u32 v{vT}, v{vT+2}, 8, v{vT}')
    k(f's_and_b32 s40, s{sWAVE}, 1')
    k(f's_lshl_b32 s40, s40, 9')
    k(f's_add_u32 s40, s40, {LRED}')
    k(f'v_add_u32 v{vRR}, s40, v{vT}')
    for w in range(1, 4): k(f'v_add_u32 v{vRR2+w-1}, {1024*w}, v{vRR}')
    k(f's_lshl_b32 s40, s{sID}, 1')
    k(f's_and_b32 s41, s{sWAVE}, 1')
    k(f's_add_u32 s40, s40, s41')
    k(f's_lshl_b32 s40, s40, 8')
    k(f'v_lshlrev_b32 v{vL4}, 2, v{vLane}')
    k(f'v_add_u32 v{vL4}, s40, v{vL4}')
    k(f's_mov_b32 s{sSTEP}, 0')
    k(f's_lshr_b32 s{sM}, s{sWAVE}, 1')
    k(f's_mul_i32 s{sM}, s{sM}, {2*MEM_S}')
    k(f's_add_u32 s{sM}, s{sM}, {MEM}')
    k(f's_mov_b32 s47, {MEMX - MEM_S}')
    k(f"s_mov_b32 s49, {MEM + (NREP-1)*MEM_S}")
    k(f's_and_b32 s{sP}, s{sID}, 1')
    k(f"s_mul_i32 s{sP}, s{sP}, {PB_S if OPT['prep'] == 2 else 0}")
    k(f's_add_u32 s{sP}, s{sP}, {PB}')
    k(f's_lshl_b32 s{sX}, s{sID}, 15')
    k(f's_lshl_b32 s40, s{sWAVE}, 13')
    k(f's_add_u32 s{sX}, s{sX}, s40')
    k(f's_add_u32 s{sX}, s{sX}, {UF}')
    k(f's_mul_i32 s{sUM}, s{sWAVE}, {2*28*1024}')
    k(f's_lshl_b32 s40, s{sID}, 11')
    k(f's_add_u32 s{sUM}, s{sUM}, s40')
    k(f's_add_u32 s{sUM}, s{sUM}, {UM}')
    k(f's_mov_b32 s43, s{sUM}')
    def ldu(j, s0=sX):
        hh, T = j >> 1, j & 1
        r = vU + 16*(hh>>1) + 8*T + 4*(hh&1)
        return f'buffer_load_dwordx4 {vr(r,4)}, v{vL16}, {WS}, s{s0 if j<4 else sT0} offen offset:{(j&3)*1024} ' + OPT['uf']
    def stum(u, T):
        return f'buffer_store_dwordx4 {vr(vUm+8*T+4*u,4)}, v{vL16}, {WS}, s{43 if u==0 else 44} offen offset:{T*1024} ' + OPT['um']
    def lw(gi):
        b = vTm + 16*(gi&1)
        for f in range(4): k.ds(f'ds_read_b128 {vr(b+4*f,4)}, v{vWL} offset:{gi*4096+f*1024}', f'w{gi}')
    def load_u(ahead):
        if wait_u:
            lu = k.newlabel('Lnu')
            k(f's_add_u32 s{sT0}, s{sSTEP}, {ahead}')
            k(f's_and_b32 s{sT1}, s{sT0}, 3')
            k(f's_cbranch_scc1 {lu}')
            k(f's_lshl_b32 s{sT0}, s{sT0}, 5')
            k(f's_add_u32 s{sT0}, s{sT0}, {flag(F_U)}')
            wait_u(k, sT0, 32, vC, sleep=1)
            k.label(lu)
        k(f's_add_u32 s{sT0}, s{sX}, 4096')
        for j in range(8): k(ldu(j))
        k(f's_add_u32 s{sX}, s{sX}, {UF_SEG}')
    if OPT['u0'] == 'pro': load_u(0)
    wait_mode(k, vC)
    sw = []
    for o in range(4):
        r = vU + 8*o
        for e in range(4):
            sel = e & 1
            sw.append(f'v_pk_mov_b32 {vr(vUi+8*o+2*e,2)}, {vr(r+(e&2),2)}, {vr(r+4+(e&2),2)} op_sel:[{sel},{sel}]')
    if stamps: k(f's_add_u32 s76, s{sST}, 0x20000')
    edge(k, stamps, 0)
    diag(k, 7)
    k('s_branch L_B_loop')
    k('.p2align 8')
    for _ in range(OPT['padB']): k('s_nop 0')
    k.label('L_B_loop')
    lp = k.newlabel('Lgm')
    def gl():
        sb = 49
        k(f'buffer_load_dwordx4 {vr(vM,4)}, v{vG0}, {WS}, s{sb} offen sc1')
        k(f'buffer_load_dwordx4 {vr(vM+4,4)}, v{vG1}, {WS}, s{sb} offen sc1')
    k(f's_waitcnt vmcnt({NREP})')
    NU = OPT['nu2']
    if OPT['bdel']: k(f"s_sleep {OPT['bdel']}")
    k(f's_add_u32 s{sT0}, s{sX}, {4096 - UF_SEG}')
    k(f's_sub_u32 s{sT1}, s{sX}, {UF_SEG}')
    for j in range(8-NU, 8): k(ldu(j, sT1))
    gl()
    NS = 8 if NU <= 4 else 0
    if NU == 0: NS = 16
    for x in sw[:NS]: k(x)
    for r in range(0, 32, 2): k(f'v_mov_b64 {vr(vA+r,2)}, 0')
    for j in range(2, 7): k(f'v_add_u32 v{vG+j}, s{50+j}, v{vL16}')
    k(f's_add_u32 s45, s{sSTEP}, 1')
    k(f's_lshr_b32 s45, s45, 2')
    k(f's_lshl_b32 s45, s45, 7')
    k(f's_add_u32 s45, s45, {flag(F_U)}')
    k(f's_add_u32 s44, s43, {28*1024}')
    vm = [stum(0,0), stum(0,1), stum(1,0), stum(1,1)] + [ldu(j) for j in range(8)]
    lw(0)
    k(f's_mov_b32 s{sCNT}, 0')
    k(f's_branch {lp}w')
    k.label(lp)
    if OPT['bgs']: k(f"s_sleep {OPT['bgs']}")
    gl()
    k(f's_add_u32 s{sCNT}, s{sCNT}, 1')
    k(f's_cmp_gt_u32 s{sCNT}, s{sT2}')
    k('s_cbranch_scc1 L_fail')
    k.label(lp + 'w')
    k('s_waitcnt vmcnt(1)')
    k(f'v_max3_u32 v{vC}, v{vM}, v{vM+1}, v{vM+2}')
    k('s_waitcnt vmcnt(0)')
    k(f'v_max3_u32 v{vC+1}, v{vM+4}, v{vM+5}, v{vM+6}')
    k(f'v_max3_u32 v{vC}, v{vC}, v{vM+3}, v{vM+7}')
    k(f'v_max_u32 v{vC}, v{vC}, v{vC+1}')
    k(f'v_cmp_eq_u32 vcc, -1, v{vC}')
    k(f's_cbranch_vccnz {lp}')
    stamp(k, 0, stamps)
    k.ds(f'ds_write_b128 v{vG0}, {vr(vM,4)} offset:{LM}')
    k.ds(f'ds_write_b128 v{vG1}, {vr(vM+4,4)} offset:{LM}')
    ls, l2 = k.newlabel('Lbs'), k.newlabel('Lbt')
    k(f's_cmp_eq_u32 s{sSTEP}, 0')
    k(f's_cbranch_scc1 {l2}')
    k(f's_cmp_ge_u32 s{sWAVE}, 2')
    k(f's_cbranch_scc1 {ls}')
    k(f'buffer_store_dword v{vKeep}, v{vL4}, {WS}, s47 offen sc1')
    k(f's_branch {l2}')
    k.label(ls)
    k(f's_cmp_eq_u32 s{sWAVE}, 2')
    k(f's_cselect_b32 s{sT0}, s{sSTEP}, 0')
    k(f's_cmp_le_u32 s{sT0}, 1')
    k(f's_cbranch_scc1 {l2}')
    k(f's_lshl_b32 s{sT0}, s{sSTEP}, 7')
    k(f's_add_u32 s{sT0}, s{sT0}, {flag(F_UM) - 256}')
    k('s_mov_b64 exec, 1')
    k(f'v_mov_b32 v{vC}, 1')
    k(f'buffer_atomic_add v{vC}, off, {WS}, s{sT0}')
    k('s_mov_b64 exec, -1')
    k.label(l2)
    k(f'buffer_load_dword v{vFl}, off, {WS}, s45 sc1')
    for x in vm[:4]: k(x)
    def acc(gi): return vA + 4*gi
    def cvt(gi, h):
        hh, T = gi>>1, gi&1
        d = vUm + 8*T + 4*(hh>>1) + 2*h + (hh&1)
        a = acc(gi) + 2*h
        k(f'v_cvt_pk_bf16_f32 v{d}, v{a}, v{a+1}')
    def lw1(gi, f):
        k.ds(f'ds_read_b128 {vr(vTm+16*(gi&1)+4*f,4)}, v{vWL} offset:{gi*4096+f*1024}', f'w{gi}')
    def mid_u():
        lsk = k.newlabel('Lsk')
        k(f's_cmp_ge_u32 s{sSTEP}, {NSTEP-1}')
        k(f's_cbranch_scc1 {lsk}')
        k('s_waitcnt vmcnt(4)')
        if wait_u:
            lu = k.newlabel('Lnu')
            k(f'v_cmp_le_u32 vcc, 32, v{vFl}')
            k(f's_cbranch_vccnz {lu}')
            wait_u(k, 45, 32, vC)
            k.label(lu)
        k(f's_add_u32 s{sT0}, s{sX}, 4096')
        for j in range(8-NU): k(ldu(j))
        k.label(lsk)
        k(f's_add_u32 s{sX}, s{sX}, {UF_SEG}')
    def MB(gi, j):
        w = xr(W(gi,j),8) if j < 5 else vr(vTm + 16*(gi&1) + 8*(j-5), 8)
        k(f'v_smfmac_f32_16x16x64_bf16 {vr(acc(gi),4)}, {vr(vM+4*j,4)}, {w}, v{vIdx}')
    for n in range(16):
        MB(n & 7, n >> 3)
        if n == 5:
            k.wds0(); k('s_barrier')
        if 5 <= n < 10:
            k.ds(f'ds_read_b128 {vr(vM+4*(n-3),4)}, v{vG+n-3} offset:{LM}', f'm{n-3}')
    for gi in range(8):
        for j in range(2, 7):
            if gi == 0: k.wds(f'm{j}')
            if j == 5: k.wds(f'w{gi}')
            MB(gi, j)
            if gi < 7 and j in (2, 3, 5, 6): lw1(gi+1, {2:0, 3:1, 5:2, 6:3}[j])
            if gi >= 1 and j == 4: cvt(gi-1, 0); cvt(gi-1, 1)
        if gi + 1 == OPT['ug'] and gi < 7: mid_u()
    k(f's_mov_b32 s43, s{sUM}')
    k(f's_add_u32 s{sUM}, s{sUM}, {UM_SEG}')
    for x in sw[NS:]: k(x)
    k.nop(6 if NS == 16 else 0)
    cvt(7, 0); cvt(7, 1)
    for r in range(0, 8, 2): k(f'v_mov_b64 {vr(vD+r,2)}, 0')
    k(f's_cmp_ge_u32 s{sSTEP}, {NSTEP}')
    k('s_cbranch_scc1 L_B_end')
    if OPT['u0'] == 'cold':
        l0, l1 = k.newlabel('Lu0'), k.newlabel('Lu1')
        k(f's_cmp_eq_u32 s{sSTEP}, 0')
        k(f's_cbranch_scc1 {l0}')
        k.label(l1)
        main = k.lines; k.lines = []
        k.label(l0)
        load_u(0)
        k('s_waitcnt vmcnt(0)')
        for x in sw: k(x)
        k(f'v_mov_b32 v{vFl}, 32')
        k(f's_branch {l1}')
        k.cold += k.lines; k.lines = main
    if OPT['ug'] == 8: mid_u()
    stamp(k, 1, stamps)
    if OPT['sleepB']: k(f"s_sleep {OPT['sleepB']}")
    def issue(st):
        P = vP[st]
        return [f'buffer_load_dwordx4 {vr(P,4)}, v{vPT}, {WS}, s{sP} offen sc1',
                f'buffer_load_dwordx4 {vr(P+4,4)}, v{vPT}, {WS}, s{sP} offen offset:1024 sc1',
                f'buffer_load_dwordx4 {vr(P+8,4)}, v{vPM}, {WS}, s{sP} offen sc1']
    def checks(st):
        P = vP[st]
        if OPT['qc']: return [(0, [f'v_max3_u32 v{vC}, v{P+3}, v{P+7}, v{P+11}', f'v_cmp_eq_u32 vcc, -1, v{vC}'])]
        return [(2, [f'v_max3_u32 v{vC}, v{P}, v{P+1}, v{P+2}']),
                (1, [f'v_max3_u32 v{vC+1}, v{P+4}, v{P+5}, v{P+6}', f'v_max3_u32 v{vC}, v{vC}, v{P+3}, v{P+7}']),
                (0, [f'v_max3_u32 v{vC+1}, v{vC+1}, v{P+8}, v{P+9}', f'v_max3_u32 v{vC}, v{vC}, v{P+10}, v{P+11}',
                     f'v_max_u32 v{vC}, v{vC}, v{vC+1}', f'v_cmp_eq_u32 vcc, -1, v{vC}'])]
    def body(st):
        P = vP[st]
        stamp(k, 2, stamps)
        for j in range(3):
            for T in range(2):
                b = vr(vUi + 16*j + 8*T, 8) if j < 2 else vr(vUm + 8*T, 8)
                k(f'v_smfmac_f32_16x16x64_bf16 {vr(vD+4*T,4)}, {vr(P+4*j,4)}, {b}, v{vIdx}')
                if OPT['qc']:
                    n = 2*j + T
                    q = [f'v_max3_u32 v{vC}, v{P}, v{P+1}, v{P+2}', f'v_max3_u32 v{vC+1}, v{P+4}, v{P+5}, v{P+6}', f'v_max3_u32 v{vC}, v{vC}, v{P+8}, v{P+9}',
                         f'v_max3_u32 v{vC}, v{vC}, v{vC+1}, v{P+10}', f'v_cmp_eq_u32 vcc, -1, v{vC}', 's_cbranch_vccnz L_B_redo']
                    k(q[n])
    if OPT['qc']:
        k.cold += ['L_B_redo:', 's_waitcnt vmcnt(0)', 's_nop 15'] + [f'v_mov_b64 {vr(vD+r,2)}, 0' for r in range(0, 8, 2)] + ['s_branch L_B_poll']
        k.label('L_B_poll')
    if OPT['bp2']: poll2(k, issue, checks, body, 'Lpp', OPT['stag'])
    else:
        lp = k.newlabel('Lp1')
        k(f's_mov_b32 s{sCNT}, 0')
        k.label(lp)
        for x in issue(0): k(x)
        k(f's_add_u32 s{sCNT}, s{sCNT}, 1')
        k(f's_cmp_gt_u32 s{sCNT}, s{sT2}')
        k('s_cbranch_scc1 L_fail')
        for rel, ins in checks(0):
            k(f's_waitcnt vmcnt({rel})')
            for x in ins: k(x)
        k(f's_cbranch_vccnz {lp}')
        body(0)
    k(f's_add_u32 s{sM}, s{sM}, {MEM_T}')
    k(f's_add_u32 s47, s47, {MEM_S}')
    k(f's_add_u32 s48, s{sM}, {MEM_S}')
    k(f's_add_u32 s49, s49, {MEM_T}')
    k(f's_add_u32 s{sP}, s{sP}, {PB_T}')
    k.nop(3)
    for r in range(4): k(f'v_permlane32_swap_b32 v{vD+r}, v{vD+4+r}')
    k(f'v_pk_add_f32 {vr(vD,2)}, {vr(vD,2)}, {vr(vD+4,2)}')
    k(f'v_pk_add_f32 {vr(vD+2,2)}, {vr(vD+2,2)}, {vr(vD+6,2)}')
    k.ds(f'ds_write_b128 v{vRW}, {vr(vD,4)}')
    k.wds0()
    k('s_barrier')
    if OPT['rep'] == 3:
        k(f's_cmp_ge_u32 s{sWAVE}, 2')
        k('s_cbranch_scc1 L_B_skip')
    R = vG
    for w in range(4): k.ds(f'ds_read2_b32 {vr(R+2*w,2)}, v{vRR} offset0:{0} offset1:{4}' if w == 0 else
                            f'ds_read2_b32 {vr(R+2*w,2)}, v{vRR2+w-1} offset0:0 offset1:4', f'r{w}')
    k(f's_cmp_eq_u32 s{sMODE}, 1')
    k.wds('r1')
    k(f'v_pk_add_f32 {vr(R,2)}, {vr(R,2)}, {vr(R+2,2)}')
    k.wds('r3')
    k(f'v_pk_add_f32 {vr(R+4,2)}, {vr(R+4,2)}, {vr(R+6,2)}')
    k(f'v_pk_add_f32 {vr(R,2)}, {vr(R,2)}, {vr(R+4,2)}')
    k(f'v_cvt_pk_bf16_f32 v{R}, v{R}, v{R+1}')
    k(f'v_min_u32 v{R}, -2, v{R}')
    publish(k, [f'buffer_store_dword v{R}, v{vL4}, {WS}, s{x} offen' for x in {1: [sM], 2: [sM, 49], 3: [sM, 48, 49]}[NREP]])
    k(f'v_mov_b32 v{vKeep}, v{R}')
    k(f's_cmp_lg_u32 s{sSTEP}, {NSTEP-1}')
    k('s_cbranch_scc1 L_B_skip2')
    k(f'buffer_store_dword v{R}, v{vL4}, {WS}, s47 offen sc1')
    k('s_branch L_B_skip2')
    k.label('L_B_skip')
    k('s_waitcnt vmcnt(0)')
    k.label('L_B_skip2')
    stamp(k, 3, stamps)
    k('s_barrier')
    k(f's_add_u32 s{sSTEP}, s{sSTEP}, 1')
    if stamps: k(f's_add_u32 s{sST}, s{sST}, 16')
    k('s_branch L_B_loop')
    k.label('L_B_end')
    edge(k, stamps, 8)
    for r in range(16): k(f'v_min_u32 v{vUm+r}, -2, v{vUm+r}')
    k(f's_add_u32 s44, s43, {28*1024}')
    for x in vm[:4]: k(x)
    k('s_waitcnt vmcnt(4)')
    k('s_barrier')
    k(f's_cmp_lg_u32 s{sWAVE}, 0')
    k('s_cbranch_scc1 L_exit')
    k('s_mov_b64 exec, 1')
    k(f'v_mov_b32 v{vC}, 1')
    k(f's_mov_b32 s{sT0}, {flag(F_UM + 62)}')
    k(f'buffer_atomic_add v{vC}, off, {WS}, s{sT0}')
    k('s_endpgm')
    k.flush_cold()

def role_P(k, wait_u=None):
    WS = f's[{SWS}:{SWS+3}]'
    vLane, vU, vX, vS, vD = 1, 2, 3, 4, 8
    D = OPT['pfd']; st = OPT['pfs']; sh = 7 if st == 128 else 6
    k.label('L_roleP')
    k(f's_mov_b32 s{sT2}, {POLL_LIMIT}')
    k(f's_sub_u32 s{sID}, s{sROLE}, 30')
    k(f's_lshl_b32 s{sID}, s{sID}, 2')
    k(f's_add_u32 s{sID}, s{sID}, s{sWAVE}')
    k(f'v_and_b32 v{vLane}, 63, v0')
    k(f'v_lshlrev_b32 v{vU}, {sh}, v{vLane}')
    k(f's_mul_i32 s40, s{sID}, {UF_SEG//8}')
    k(f'v_add_u32 v{vU}, s40, v{vU}')
    f2 = 2 if OPT['pf64'] else 1
    for reg, n in ((vX, 28*f2), (vS, PB_T//1024*f2), (vS+1, 7*NREP*f2)):
        k(f'v_min_u32 v{reg}, {n-1}, v{vLane}')
        k(f's_mul_i32 s40, s{sID}, {n}')
        k(f'v_add_lshl_u32 v{reg}, v{reg}, s40, {8 - f2}')
    k(f's_mov_b32 s{sSTEP}, 0')
    k(f's_mov_b32 s{sX}, {UF}')
    k(f's_mov_b32 s{sUM}, {XNS}')
    k(f's_mov_b32 s{sP}, {PB}')
    k(f's_mov_b32 s{sM}, {MEM + MEM_T}')
    k(f's_mov_b32 s41, {MEM - D*MEM_T + (NREP-1)*MEM_S}')
    if OPT['cpf']:
        k('s_getpc_b64 s[44:45]')
        k.label('L_P_pc')
        k('s_sub_u32 s44, s44, L_P_pc-L_roleA')
        k('s_subb_u32 s45, s45, 0')
        k(f's_lshl_b32 s40, s{sID}, 12')
        k(f'v_lshlrev_b32 v20, 6, v{vLane}')
        k('v_add_u32 v20, s40, v20')
        k('v_min_u32 v20, L_P_pc-L_roleA, v20')
        k('v_mov_b32 v21, s45')
        k('v_add_co_u32 v20, vcc, s44, v20')
        k('s_nop 1')
        k('v_addc_co_u32 v21, vcc, 0, v21, vcc')
        k('global_load_dword v22, v[20:21], off')
    if OPT['diag']:
        diag(k, 3)
        k(f'v_lshlrev_b32 v20, 3, v{vLane}')
        k(f's_lshl_b32 s40, s{sWAVE}, 9')
        k(f's_add_u32 s40, s40, {STAMP}')
        k(f'buffer_load_dwordx2 v[22:23], v20, {WS}, s40 offen')
        k('s_waitcnt vmcnt(0)')
        k('v_not_b32 v22, v22')
        k(f'buffer_atomic_umax v22, off, s[{SDBG}:{SDBG+3}], 0 offset:0')
        k(f'buffer_atomic_umax v23, off, s[{SDBG}:{SDBG+3}], 0 offset:4')
    k.label('L_P_loop')
    k(f's_cmp_le_u32 s{sSTEP}, {D}')
    k('s_cbranch_scc1 L_P_go')
    k(f's_mov_b32 s{sCNT}, 0')
    k.label('L_P_wait')
    k(f'buffer_load_dword v{vD}, off, {WS}, s41 sc1')
    k(f's_add_u32 s{sCNT}, s{sCNT}, 1')
    k(f's_cmp_gt_u32 s{sCNT}, s{sT2}')
    k('s_cbranch_scc1 L_fail')
    k('s_waitcnt vmcnt(0)')
    k(f'v_cmp_eq_u32 vcc, -1, v{vD}')
    k('s_cbranch_vccz L_P_go')
    k('s_sleep 2')
    k('s_branch L_P_wait')
    k.label('L_P_go')
    k(f'buffer_load_dword v{vD+1}, v{vS}, {WS}, s{sP} offen sc1')
    k(f'buffer_load_dword v{vD+2}, v{vS+1}, {WS}, s{sM} offen sc1')
    k(f'buffer_load_dword v{vD+3}, v{vX}, {WS}, s{sUM} offen sc1')
    n = 0 if OPT['apf'] else UF_SEG // 8 // (64*st)
    k(f's_mov_b32 s{sT0}, s{sX}')
    for j in range(n):
        k(f'buffer_load_dword v{vD+4+j}, v{vU}, {WS}, s{sT0} offen sc1')
        k(f's_add_u32 s{sT0}, s{sT0}, {64*st}')
    k(f's_add_u32 s{sX}, s{sX}, {UF_SEG}')
    k(f's_add_u32 s{sUM}, s{sUM}, 28672')
    k(f's_add_u32 s{sP}, s{sP}, {PB_T}')
    k(f's_add_u32 s{sM}, s{sM}, {MEM_T}')
    k(f's_add_u32 s41, s41, {MEM_T}')
    k(f's_add_u32 s{sSTEP}, s{sSTEP}, 1')
    k(f's_cmp_lt_u32 s{sSTEP}, {NSTEP}')
    k('s_cbranch_scc1 L_P_loop')
    k('s_waitcnt vmcnt(0)')
    k('s_endpgm')
```

```python
WTA   = 0
WT_SZ = 16*28*14*1024
WTB   = WTA + WT_SZ
XNF   = WTB + WT_SZ
XN_SZ = 128*14*1024
XNS   = XNF + XN_SZ
XNR   = XNS + XN_SZ
UF    = XNR + XN_SZ
UF_SEG = 16*28*1024
UM    = UF + 64*UF_SEG
UM_SEG = 8*28*1024
MEM   = UM + 64*UM_SEG
MEM_S = 7168
import os
NREP  = int(os.environ.get('NREP', '1'))
MEM_T = NREP*MEM_S
PB    = MEM + 64*MEM_T
PMD   = int(os.environ.get('PMD', '0'))
PB_S  = 12288 if PMD else 10240
PB_T  = PB_S
MEMX  = PB + 64*PB_T
SENT_END = MEMX + 64*MEM_S
PT    = SENT_END
PT_SEG = 48*1024
RR    = PT + 64*PT_SEG
HB    = RR + 8192
UPD   = HB + 32768
IDX   = UPD + 65536
FLG   = IDX + 4096
FLG_SZ = 128*256
STAMP = 0x4400000
assert FLG + FLG_SZ <= STAMP
WS_USED = STAMP + (1<<20)
WS_SIZE = 268435456

def sigma(ks, g, jj):
    return 32*ks + 16*(g>>1) + 4*(jj>>1) + 2*(g&1) + (jj&1)
def nrow(nt, c):
    p, T = nt>>1, nt&1
    return sigma(p, c>>2, 4*T + (c&3))

F_U, F_P, F_UM, F_M1, F_M2, F_U0 = 0, 16, 32, 96, 97, 98
def flag(i): return FLG + 128*i
```

```python
from asmlib import *
from layout import *

class K(Asm):
    def __init__(self):
        super().__init__()
        self.dsq = []; self.cold = []; self.vmq = []
    def ds(self, text, tag=None):
        self(text); self.dsq.append(tag)
    def wds(self, tag):
        if tag not in self.dsq: return
        idx = max(i for i, t in enumerate(self.dsq) if t == tag)
        n = len(self.dsq) - 1 - idx
        assert n <= 15
        self(f's_waitcnt lgkmcnt({n})')
        self.dsq = self.dsq[idx+1:]
    def wds0(self):
        self('s_waitcnt lgkmcnt(0)'); self.dsq = []
    def vm(self, text, tag=None):
        self(text); self.vmq.append(tag)
    def wvm(self, *tags, extra=''):
        idx = max([i for i, t in enumerate(self.vmq) if t in tags], default=-1)
        if idx < 0:
            if extra: self('s_waitcnt ' + extra)
            return
        n = len(self.vmq) - 1 - idx
        assert n <= 63
        self(f's_waitcnt vmcnt({n}) {extra}')
        self.vmq = self.vmq[idx+1:]
    def flush_cold(self):
        for l in self.cold: self(l)
        self.cold = []

SWS, SDBG = 4, 8
sROLE, sWAVE, sSTEP, sMODE, sM, sP, sX, sUM, sCNT = 12, 13, 14, 15, 16, 17, 18, 19, 20
sT0, sT1, sT2 = 21, 22, 23
sMASK8 = 24
sID = 26
sST = 28
sTM = 30
POLL_LIMIT = 400000
NSTEP = 63
OPT = dict(sa='late', sb='early', um='sc1', uf='sc1', sleepA=0, sleepB=0, stampmask=15, rt=0, barA=1, barB=1, prefP=0, pfd=2, pfs=128, upos='early', ud=2, apf=1, nb=7, stag=1, wpos=1, rsp=1, s1pos=0, upre=8, uneed=32, ust='sc1', rot=1, k1st='sc1', uwin=2, k1d=2, ap2=1, stagA=2, gv=0, pst='', pld='sc1', qc=0, ninf=0, abar=1, diag=0, lnbar=1, t01=0, ug=8, bdel=0, pc=0, padA=0, padB=0, tail2=1, pf64=1, tw=0, rep=3, prep=1, k1late=0, cpf=0, sm2=0, tm=1, bp2=0, k1pf=0, k1ln='sc1', u0='cold', align=0, w64=0, p64=0, kpos='post', kdel=7, nu2=4, bgs=0, vsl=120, usl=120, psl=16, msl=120)

def stamp(k, idx, on):
    if not on or not (OPT['stampmask'] >> idx) & 1: return
    k(('s_memrealtime' if OPT['rt'] else 's_memtime') + f' s[{sTM}:{sTM+1}]')
    k.wds0()
    k(f'v_mov_b32 v0, s{sTM}')
    k(f'buffer_store_dword v0, off, s[{SWS}:{SWS+3}], s{sST} offset:{idx*4}')

def edge(k, on, off):
    if not on or OPT['rt']: return
    lp = k.newlabel('Led')
    k('s_memrealtime s[70:71]')
    k('s_waitcnt lgkmcnt(0)')
    k.label(lp)
    k('s_memrealtime s[72:73]')
    k('s_memtime s[74:75]')
    k('s_waitcnt lgkmcnt(0)')
    k('s_cmp_eq_u32 s72, s70')
    k(f's_cbranch_scc1 {lp}')
    k('v_mov_b32 v0, s72')
    k(f'buffer_store_dword v0, off, s[{SWS}:{SWS+3}], s76 offset:{off}')
    k('v_mov_b32 v0, s74')
    k(f'buffer_store_dword v0, off, s[{SWS}:{SWS+3}], s76 offset:{off+4}')

def diag(k, idx, op='buffer_atomic_umax'):
    if not OPT['diag']: return
    k('s_memrealtime s[70:71]')
    k('s_waitcnt lgkmcnt(0)')
    k('v_mov_b32 v0, s70')
    k(f'{op} v0, off, s[{SDBG}:{SDBG+3}], 0 offset:{4*idx}')

def publish(k, text):
    ls, ld = k.newlabel('Lslow'), k.newlabel('Lpub')
    if isinstance(text, str): text = [text]
    k(f's_cbranch_scc0 {ls}')
    for x in text: k(x + ' ' + OPT['pst'])
    k.label(ld)
    k.cold += [ls + ':'] + [x + ' sc1' for x in text] + [f's_branch {ld}']

def gather_mem(k, vG, vOff0, vOff1, vL0, vL1, vT):
    lp, dn = k.newlabel('Lgm'), k.newlabel('Lgd')
    k(f's_mov_b32 s{sCNT}, 0')
    k.label(lp)
    k(f'buffer_load_dwordx4 {vr(vG,4)}, v{vOff0}, s[{SWS}:{SWS+3}], s{sM} offen sc1')
    k(f'buffer_load_dwordx4 {vr(vG+4,4)}, v{vOff1}, s[{SWS}:{SWS+3}], s{sM} offen sc1')
    k(f's_add_u32 s{sCNT}, s{sCNT}, 1')
    k(f's_cmp_gt_u32 s{sCNT}, s{sT2}')
    k('s_cbranch_scc1 L_fail')
    k('s_waitcnt vmcnt(1)')
    k(f'v_max3_u32 v{vT}, v{vG}, v{vG+1}, v{vG+2}')
    k('s_waitcnt vmcnt(0)')
    k(f'v_max3_u32 v{vT+1}, v{vG+4}, v{vG+5}, v{vG+6}')
    k(f'v_max3_u32 v{vT}, v{vT}, v{vG+3}, v{vG+7}')
    k(f'v_max_u32 v{vT}, v{vT}, v{vT+1}')
    k(f'v_cmp_eq_u32 vcc, -1, v{vT}')
    k(f's_cbranch_vccnz {lp}')
    if vL0 is None: return
    k.ds(f'ds_write_b128 v{vL0}, {vr(vG,4)}')
    k.ds(f'ds_write_b128 v{vL1}, {vr(vG+4,4)}')
    k.wds0()
    k('s_barrier')

def wait_mode(k, vT):
    lp = k.newlabel('Lwm')
    k(f's_mov_b32 s{sCNT}, 0')
    k(f'v_and_b32 v{vT+1}, 15, v0')
    k(f'v_lshlrev_b32 v{vT+1}, 2, v{vT+1}')
    k.label(lp)
    k(f'buffer_load_dword v{vT}, v{vT+1}, s[{SDBG}:{SDBG+3}], 0 offen offset:32 sc1')
    k(f's_add_u32 s{sCNT}, s{sCNT}, 1')
    k(f's_cmp_gt_u32 s{sCNT}, s{sT2}')
    k('s_cbranch_scc1 L_fail')
    k('s_waitcnt vmcnt(0)')
    k(f'v_cmp_eq_u32 vcc, 32, v{vT}')
    for rot in (8, 4, 2, 1):
        k.nop(2)
        k(f'v_add_u32_dpp v{vT}, v{vT}, v{vT} row_ror:{rot} row_mask:0xf bank_mask:0xf')
    k.nop(1)
    k(f'v_readfirstlane_b32 s{sMODE}, v{vT}')
    k('s_nop 3')
    k(f's_cmp_lt_u32 s{sMODE}, 32')
    k(f's_cbranch_scc1 {lp}')
    k('s_cmp_lg_u64 vcc, 0')
    k(f's_cselect_b32 s{sMODE}, 1, 2')

def common_lane_setup(k, vLane, vL16, vG0, vG1, vIdx, vT):
    k(f'v_and_b32 v{vLane}, 63, v0')
    k(f'v_lshlrev_b32 v{vL16}, 4, v{vLane}')
    if vG0 is not None:
        k(f's_lshl_b32 s{sT0}, s{sWAVE}, 10')
        k(f'v_add_u32 v{vG0}, s{sT0}, v{vL16}')
        k(f's_add_u32 s{sT0}, s{sWAVE}, 4')
        k(f's_min_u32 s{sT0}, s{sT0}, 6')
        k(f's_lshl_b32 s{sT0}, s{sT0}, 10')
        k(f'v_add_u32 v{vG1}, s{sT0}, v{vL16}')
    k(f'v_and_b32 v{vT}, 8, v{vLane}')
    k(f'v_mov_b32 v{vIdx}, 0x4444')
    k(f'v_mov_b32 v{vT+1}, 0xeeee')
    k(f'v_cmp_ne_u32 vcc, 0, v{vT}')
    k('s_nop 1')
    k(f'v_cndmask_b32 v{vIdx}, v{vIdx}, v{vT+1}, vcc')
    k(f's_mov_b32 s{sT2}, {POLL_LIMIT}')

def poll2(k, issue, checks, body, name, stag):
    nl = len(issue(0))
    l0, d0, d1, dn = [k.newlabel(name + x) for x in ('lp', 'd0', 'd1', 'dn')]
    k(f's_mov_b32 s{sCNT}, 0')
    for x in issue(0): k(x)
    k(f"s_sleep {stag}")
    k.label(l0)
    for st, dl in ((0, d0), (1, d1)):
        for x in issue(1 - st): k(x)
        if st == 0:
            k(f's_add_u32 s{sCNT}, s{sCNT}, 1')
            k(f's_cmp_gt_u32 s{sCNT}, s{sT2}')
            k('s_cbranch_scc1 L_fail')
        for rel, ins in checks(st):
            k(f's_waitcnt vmcnt({nl + rel})')
            for x in ins: k(x)
        if st == 0: k(f's_cbranch_vccz {d0}')
        else:       k(f's_cbranch_vccnz {l0}x')
    saved = list(k.dsq)
    body(1)
    k(f's_branch {dn}')
    k.label(l0 + 'x')
    k(f's_branch {l0}')
    k.label(d0)
    end = list(k.dsq); k.dsq = saved
    body(0)
    assert k.dsq == end
    k.label(dn)

def role_A(k, stamps=False):
    vLane, vL16, vIdx = 1, 2, 3
    vKey, vKeyS, vMK, vMKS, vQW, vQR, vSW, vSR, vPO, vVal = 4, 5, 6, 7, 8, 9, 10, 11, 12, 13
    vT = 14
    vM = 16
    vQ = 44
    vKT = 72
    vS0 = 48
    vKM = 100
    vX = 114
    vG0, vG1 = 118, 119
    def W(lt, kb):
        i = lt*7 + kb
        return (256 + 8*i) if i < 32 else (120 + 8*(i-32))
    LM, LSP, LQS = 0, 7168, 22528
    SPW = 3536
    k.label('L_roleA')
    k(f's_mov_b32 s{sID}, s{sROLE}')
    common_lane_setup(k, vLane, vL16, vG0, vG1, vIdx, vX)
    k(f's_lshr_b32 s{sT0}, s{sWAVE}, 1')
    k(f's_mul_i32 s{sT0}, s{sT0}, 14')
    k(f's_and_b32 s{sT1}, s{sWAVE}, 1')
    k(f's_add_u32 s33, s{sT0}, 6')
    k(f's_add_u32 s33, s33, s{sT1}')
    k(f's_lshl_b32 s34, s{sT1}, 3')
    k(f's_add_u32 s32, s{sT0}, s34')
    k(f's_mul_i32 s35, s{sID}, {28*14*1024}')
    k(f's_add_u32 s35, s35, {WTA}')
    k(f's_mul_i32 s36, s32, {14*1024}')
    k(f's_add_u32 s36, s36, s35')
    k(f's_mul_i32 s37, s33, {14*1024}')
    k(f's_add_u32 s37, s37, s35')
    for j in range(7):
        k(f's_add_u32 s{50+j}, s{sWAVE}, {(4*j) % 7}')
        k(f's_sub_u32 s40, s{50+j}, 7')
        k(f's_cmp_ge_u32 s{50+j}, 7')
        k(f's_cselect_b32 s{50+j}, s40, s{50+j}')
        k(f's_lshl_b32 s{50+j}, s{50+j}, 10')
    n = 0
    for lt in range(7):
        sb = 36 if lt < 6 else 37
        for j in range(7):
            k(f's_lshl_b32 s40, s{50+j}, 1')
            k(f's_add_u32 s40, s40, s{sb}')
            for f in range(2):
                k(f'buffer_load_dwordx4 {xr(W(lt, j) + 4*f,4)}, v{vL16}, s[{SWS}:{SWS+3}], s40 offen offset:{f*1024}')
                n += 1
                if n % 16 == 0: k('s_waitcnt vmcnt(40)')
        k(f's_add_u32 s{sb}, s{sb}, 14336')
    k(f'v_add_u32 v{vG1}, s51, v{vL16}')
    t = vX
    g, i = vQ, vQ+1
    k(f'v_lshrrev_b32 v{g}, 4, v{vLane}')
    k(f'v_and_b32 v{i}, 15, v{vLane}')
    k(f's_lshr_b32 s38, s32, 1')
    k(f's_lshr_b32 s39, s33, 1')
    k(f's_lshl_b32 s40, s38, 10')
    k(f'v_add_u32 v{vKey}, s40, v{vL16}')
    k(f's_lshl_b32 s40, s39, 10')
    k(f's_add_u32 s40, s40, s34')
    k(f'v_add_u32 v{vKeyS}, s40, v{vL16}')
    k(f'v_lshrrev_b32 v{t}, 1, v{g}')
    k(f'v_lshlrev_b32 v{t}, 8, v{t}')
    k(f'v_lshrrev_b32 v{t+1}, 2, v{i}')
    k(f'v_lshl_add_u32 v{t}, v{t+1}, 5, v{t}')
    k(f'v_and_b32 v{t+1}, 1, v{i}')
    k(f'v_lshl_add_u32 v{t}, v{t+1}, 4, v{t}')
    k(f'v_and_b32 v{t+1}, 1, v{g}')
    k(f'v_lshlrev_b32 v{t+1}, 7, v{t+1}')
    k(f'v_add_u32 v{t}, v{t}, v{t+1}')
    k(f's_lshl_b32 s40, s38, 9')
    k(f'v_add_u32 v{vMK}, s40, v{t}')
    k(f's_lshl_b32 s40, s39, 9')
    k(f's_add_u32 s40, s40, s34')
    k(f'v_add_u32 v{vMKS}, s40, v{t}')
    k(f's_lshl_b32 s40, s{sWAVE}, 10')
    k(f's_add_u32 s40, s40, {LQS}')
    k(f'v_lshrrev_b32 v{t}, 2, v{i}')
    k(f'v_add_u32 v{t}, v{t}, v{g}')
    k(f'v_and_b32 v{t}, 3, v{t}')
    k(f'v_lshlrev_b32 v{t}, 3, v{t}')
    k(f'v_lshlrev_b32 v{t+1}, 5, v{i}')
    k(f'v_add3_u32 v{vQW}, v{t}, v{t+1}, s40')
    k(f'v_lshrrev_b32 v{t}, 2, v{vLane}')
    k(f'v_lshlrev_b32 v{t}, 5, v{t}')
    k(f'v_add_u32 v{t+1}, v{vLane}, v{g}')
    k(f'v_and_b32 v{t+1}, 3, v{t+1}')
    k(f'v_lshlrev_b32 v{t+1}, 3, v{t+1}')
    k(f'v_add3_u32 v{vQR}, v{t}, v{t+1}, s40')
    k(f's_mul_i32 s40, s{sWAVE}, {SPW}')
    k(f's_add_u32 s40, s40, {LSP}')
    k(f'v_lshlrev_b32 v{t}, 4, v{i}')
    k(f'v_mul_u32_u24 v{t+1}, 272, v{g}')
    k(f'v_add3_u32 v{vSW}, v{t}, v{t+1}, s40')
    if OPT['ninf']:
        k(f'v_min_u32 v{t}, 12, v{i}')
        k(f'v_lshrrev_b32 v{t+1}, 1, v{i}')
        k(f'v_cmp_eq_u32 vcc, 1, v{t+1}')
        k('s_nop 1')
        k(f'v_cndmask_b32 v{t}, v{t}, 12, vcc')
        k(f'v_mov_b32 v{vS0}, 0xff800000')
        for r in range(1, 4): k(f'v_mov_b32 v{vS0+r}, v{vS0}')
        k(f'v_lshlrev_b32 v{t+1}, 4, v{i}')
        k(f'v_add_u32 v{t+1}, s40, v{t+1}')
        k(f'ds_write_b128 v{t+1}, {vr(vS0,4)} offset:{12*272}')
    else:
        k(f'v_subrev_u32 v{t}, 12, v{i}')
        k(f'v_cmp_le_u32 vcc, 12, v{i}')
        k('s_nop 1')
        k(f'v_cndmask_b32 v{t}, v{i}, v{t}, vcc')
    k(f'v_lshrrev_b32 v{t+1}, 5, v{vLane}')
    k(f's_lshl_b32 s40, s{sWAVE}, 1')
    k(f'v_add_u32 v{t+1}, s40, v{t+1}')
    k(f'v_and_b32 v{t+2}, 1, v{g}')
    k(f'v_lshl_add_u32 v{t+3}, v{t+2}, 3, v{t+1}')
    k(f'v_lshlrev_b32 v{t+3}, 4, v{t+3}')
    k(f'v_mul_u32_u24 v{vSR}, 272, v{t}')
    k(f'v_add_u32 v{vSR}, v{vSR}, v{t+3}')
    if LSP: k(f'v_add_u32 v{vSR}, {LSP}, v{vSR}')
    k(f's_and_b32 s42, s{sID}, 1')
    k(f's_lshl_b32 s42, s42, 3')
    k(f'v_add_u32 v{t+1}, s42, v{t+1}')
    k(f'v_and_b32 v{t}, 3, v{i}')
    k(f'v_lshlrev_b32 v{t}, 2, v{t}')
    k(f'v_lshl_add_u32 v{t+1}, v{t+1}, 4, v{t}')
    k(f'v_lshl_add_u32 v{vPO}, v{t+2}, 8, v{t+1}')
    k(f'v_bfe_u32 v{t}, v{i}, 3, 1')
    k(f'v_lshl_add_u32 v{vPO}, v{t}, 9, v{vPO}')
    k(f's_lshr_b32 s41, s{sID}, 1')
    k(f's_lshl_b32 s40, s41, 10')
    k(f'v_add_u32 v{vPO}, s40, v{vPO}')
    k(f'v_mov_b32 v{t+3}, 0x40000000')
    if PMD:
        k(f's_lshl_b32 s40, s41, 9')
        k(f's_add_u32 s40, s40, 8192')
        k(f'v_lshl_add_u32 v{t}, v{t+2}, 8, v{t+1}')
        k(f'v_add_u32 v{t}, s40, v{t}')
    else:
        k(f's_lshl_b32 s40, s41, 8')
        k(f's_add_u32 s40, s40, 8192')
        k(f'v_add_u32 v{t}, s40, v{t+1}')
        k(f'v_cmp_ne_u32 vcc, 0, v{t+2}')
        k('s_nop 1')
        k(f'v_cndmask_b32 v{t}, v{t}, v{t+3}, vcc')
    k(f'v_cmp_le_u32 vcc, 4, v{i}')
    k('s_nop 1')
    k(f'v_cndmask_b32 v{vPO}, v{t}, v{vPO}, vcc')
    k(f'v_cmp_le_u32 vcc, 12, v{i}')
    k('s_nop 1')
    k(f'v_cndmask_b32 v{vPO}, v{vPO}, v{t+3}, vcc')
    k(f'v_mov_b32 v{vVal}, 1.0')
    k(f'v_cmp_le_u32 vcc, v{t+3}, v{vPO}')
    k('s_nop 1')
    k(f'v_cndmask_b32 v{vVal}, v{vVal}, 0, vcc')
    if PMD:
        k(f'v_and_b32 v{t}, 28, v{vLane}')
        k(f'v_cmp_eq_u32 vcc, 16, v{t}')
        k('s_nop 1')
        k(f'v_cndmask_b32 v{vVal}, v{vVal}, 0, vcc')
    k(f's_mov_b32 s{sSTEP}, 0')
    k(f"s_lshr_b32 s{sM}, s{sID}, {3 if OPT['rep'] == 3 else 2}")
    k(f"s_mul_i32 s{sM}, s{sM}, {MEM_S if NREP == 3 else 0}")
    k(f's_add_u32 s{sM}, s{sM}, {MEM}')
    k(f's_mov_b32 s{sP}, {PB}')
    k(f's_mov_b32 s{sX}, {XNS}')
    k(f's_lshl_b32 s40, s{sID}, 2')
    k(f's_add_u32 s40, s40, s{sWAVE}')
    k(f's_mul_i32 s40, s40, 7168')
    k(f'v_min_u32 v{vX}, {55*16}, v{vL16}')
    k(f'v_lshlrev_b32 v{vX}, 3, v{vX}')
    k(f'v_add_u32 v{vX}, s40, v{vX}')
    k(f"s_mov_b32 s{sUM}, {UF + OPT['ud']*UF_SEG}")
    WS = f's[{SWS}:{SWS+3}]'
    def key_list():
        L = []
        for p in range(3):
            L.append(f'buffer_load_dwordx4 {vr(vKT+8*p,4)}, v{vKey}, {WS}, s{sX} offen offset:{p*1024}')
            L.append(f'buffer_load_dwordx4 {vr(vKT+8*p+4,4)}, v{vKey}, {WS}, s46 offen offset:{p*1024}')
        L.append(f'buffer_load_dwordx2 {vr(vKT+24,2)}, v{vKeyS}, {WS}, s{sX} offen')
        L.append(f'buffer_load_dwordx2 {vr(vKT+26,2)}, v{vKeyS}, {WS}, s46 offen')
        return L
    def load_flag():
        k(f's_add_u32 s{sT0}, s{sSTEP}, {1 + OPT["ud"]}')
        k(f's_lshr_b32 s{sT0}, s{sT0}, 2')
        k(f's_lshl_b32 s{sT0}, s{sT0}, 7')
        k(f's_add_u32 s{sT0}, s{sT0}, {flag(F_U)}')
        k(f'buffer_load_dword v{vX+2}, off, {WS}, s{sT0} sc1')
    def load_keys(keys=True):
        if keys:
            for x in key_list(): k(x)
        k(f's_add_u32 s{sX}, s{sX}, 28672')
        k(f's_add_u32 s46, s{sX}, 14336')
    if OPT['tm']:
        k(f'v_lshlrev_b32 v{vQ+2}, 2, v{g}')
        k(f'v_sub_u32 v{vQ+2}, v{i}, v{vQ+2}')
        k(f'v_and_b32 v{vQ+3}, 1, v{vQ+2}')
        k(f'v_lshlrev_b32 v{vQ+3}, 4, v{vQ+3}')
        k(f'v_mov_b32 v{vLane}, 0x3f80')
        k(f'v_lshlrev_b32 v{vLane}, v{vQ+3}, v{vLane}')
        k(f'v_cmp_gt_u32 vcc, 4, v{vQ+2}')
        k(f'v_cmp_lt_u32 s[48:49], 1, v{vQ+2}')
        k('s_nop 0')
        k(f'v_cndmask_b32 v{vLane}, 0, v{vLane}, vcc')
    k(f's_add_u32 s46, s{sX}, 14336')
    k(f's_mov_b32 s{sSTEP}, -1')
    load_flag()
    load_keys()
    if OPT['t01']:
        lt_ = k.newlabel('Lt01')
        k('s_waitcnt vmcnt(8)')
        k(f'v_cmp_le_u32 vcc, {OPT["uneed"]}, v{vX+2}')
        k(f's_cbranch_vccz {lt_}')
        k(f's_mov_b32 s40, {UF}')
        k(f's_mov_b32 s41, {UF + UF_SEG}')
        k(f'buffer_load_dword v{vX+3}, v{vX}, {WS}, s40 offen sc1')
        k(f'buffer_load_dword v{vX+1}, v{vX}, {WS}, s41 offen sc1')
        k.label(lt_)
    k(f's_mov_b32 s{sSTEP}, 0')
    wait_mode(k, vT)
    k(f'v_mov_b32 v{vX+3}, 0x40000000')
    if stamps: k(f's_add_u32 s76, s{sST}, 0x20000')
    edge(k, stamps, 0)
    diag(k, 4)
    k('s_branch L_A_loop')
    k('.p2align 8')
    for _ in range(OPT['padA']): k('s_nop 0')
    k.label('L_A_loop')
    for r in range(0, 28, 2): k(f'v_mov_b64 {vr(vQ+r,2)}, 0')
    k(f's_add_u32 s47, s{sP}, {PB_S}')
    vAd = vKM + 6
    for j in range(2, 7): k(f'v_add_u32 v{vAd+j}, s{50+j}, v{vL16}')
    def Mx(lt, kb, src):
        return f'v_smfmac_f32_16x16x64_bf16 {vr(vQ+4*lt,4)}, {vr(src,4)}, {xr(W(lt,kb),8)}, v{vIdx}'
    def M(lt, kb): return Mx(lt, kb, vM+4*kb)
    mk = [f'ds_read_b128 {vr(vKM+4*p,4)}, v{vMK} offset:{LM+p*512}' for p in range(3)]
    mk.append(f'ds_read_b64 {vr(vKM+12,2)}, v{vMKS} offset:{LM}')
    sets = [vM, vKM]
    def issue(st):
        return [f'buffer_load_dwordx4 {vr(sets[st],4)}, v{vG0}, {WS}, s{sM} offen ' + OPT['pld'],
                f'buffer_load_dwordx4 {vr(sets[st]+4,4)}, v{vG1}, {WS}, s{sM} offen ' + OPT['pld']]
    def checks(st):
        G = sets[st]
        if OPT['qc']: return [(0, [f'v_max_u32 v{vT}, v{G+3}, v{G+7}', f'v_cmp_eq_u32 vcc, -1, v{vT}'])]
        return [(1, [f'v_max3_u32 v{vT}, v{G}, v{G+1}, v{G+2}']),
                (0, [f'v_max3_u32 v{vT+1}, v{G+4}, v{G+5}, v{G+6}', f'v_max3_u32 v{vT}, v{vT}, v{G+3}, v{G+7}',
                     f'v_max_u32 v{vT}, v{vT}, v{vT+1}', f'v_cmp_eq_u32 vcc, -1, v{vT}'])]
    NB = OPT['nb']
    def body(st):
        G = sets[st]
        stamp(k, 0, stamps)
        if stamps and OPT['pc']:
            k(f'v_mov_b32 v0, s{sCNT}')
            k(f'buffer_store_dword v0, off, s[{SWS}:{SWS+3}], s{sST} offset:12')
        wrs = [f'ds_write_b128 v{vG0}, {vr(G,4)} offset:{LM}', f'ds_write_b128 v{vG1}, {vr(G+4,4)} offset:{LM}']
        seq = [(lt, j) for j in range(2) for lt in range(7)]
        for n, (lt, j) in enumerate(seq):
            k(Mx(lt, j, G + 4*j))
            if OPT['w64'] == 0 and n < 2: k.ds(wrs[n])
            if OPT['w64'] == 1 and n < 4: k.ds(f'ds_write_b64 v{vG0 if n < 2 else vG1}, {vr(G+2*n,2)} offset:{LM + 8*(n&1)}')
            if OPT['qc']:
                if n == 2: k(f'v_max3_u32 v{vT}, v{G}, v{G+1}, v{G+2}')
                if n == 3: k(f'v_max3_u32 v{vT+1}, v{G+4}, v{G+5}, v{G+6}')
                if n == 4: k(f'v_max_u32 v{vT}, v{vT}, v{vT+1}')
                if n == 5: k(f'v_cmp_eq_u32 vcc, -1, v{vT}')
                if n == 6: k('s_cbranch_vccnz L_A_redo')
                if n == 11: k(f'v_cmp_le_u32 vcc, {OPT["uneed"]}, v{vX+2}')
                if n == 12: k('s_nop 0'); k(f'v_cndmask_b32 v{vX+1}, v{vX+3}, v{vX}, vcc')
            else:
                if n == 4: k(f'v_cmp_le_u32 vcc, {OPT["uneed"]}, v{vX+2}')
                if n == 5: k('s_nop 0'); k(f'v_cndmask_b32 v{vX+1}, v{vX+3}, v{vX}, vcc')
            if n == NB - 1:
                k.wds0(); k('s_barrier')
            if NB - 1 <= n < NB + 4:
                jj = n - (NB - 1) + 2
                k.ds(f'ds_read_b128 {vr(vM+4*jj,4)}, v{vAd+jj} offset:{LM}', f'm{jj}')
            if n == (13 if OPT['qc'] else NB + 5): k(f'buffer_load_dword v0, v{vX+1}, {WS}, s{sUM} offen sc1')
    if OPT['qc']: k.cold += ['L_A_redo:', 's_waitcnt vmcnt(0) lgkmcnt(0)', 's_nop 15', 's_branch L_A_loop']
    if stamps and OPT['pc']: stamp(k, 1, True)
    if OPT['ap2']:
        poll2(k, issue, checks, body, 'Lga', OPT['stagA'])
    else:
        gather_mem(k, vM, vG0, vG1, None, None, vT)
        body(0)
    def cvt(lt, h):
        k(f'v_cvt_pk_bf16_f32 v{vQ+4*lt+h}, v{vQ+4*lt+2*h}, v{vQ+4*lt+2*h+1}')
    def wr(lt):
        k.ds(f'ds_write_b64 v{vQW}, {vr(vQ+4*lt,2)} offset:{512*(lt&1)}')
    def tr(p, h):
        k.ds(f'ds_read_b64_tr_b16 {vr(vQ+8*p+2*h,2)}, v{vQR} offset:{512*h}', f'q{p}')
    vSt = [vM, vM+4, vQ+4]
    def S(p, t):
        q = vQ + 8*p
        c = '0' if p == 0 else vr(vSt[t],4)
        if p < 3:
            a = vKM+4*p if t == 0 else vKT+8*p+4*(t-1)
            k(f'v_mfma_f32_16x16x32_bf16 {vr(vSt[t],4)}, {vr(a,4)}, {vr(q,4)}, {c}')
        else:
            a = vKM+12 if t == 0 else vKT+24+2*(t-1)
            k(f'v_mfma_f32_16x16x16_bf16 {vr(vSt[t],4)}, {vr(a,2)}, {vr(q,2)}, {c}')
    for lt in range(7):
        for j in range(2, 7):
            if lt == 0: k.wds(f'm{j}')
            k(M(lt, j))
            if OPT['tm'] and lt == 1 and j == 2: k(f'v_cndmask_b32 v{vT}, v{vLane}, 0, s[48:49]')
            if OPT['tm'] and lt == 1 and j == 3: k(f'v_cndmask_b32 v{vT+1}, 0, v{vLane}, s[48:49]')
            if lt == 0 and j == 6:
                k('s_waitcnt vmcnt(1)')
                for x in mk: k.ds(x, 'mk')
            if lt >= 1:
                if j == 4: cvt(lt-1, 0)
                if j == 5: cvt(lt-1, 1)
                if j == 6:
                    wr(lt-1)
                    if (lt-1) & 1: tr((lt-1)//2, 0); tr((lt-1)//2, 1)
        if lt == (4 if OPT['s1pos'] == 0 else 3):
            k.wds('q0')
            for t in range(3): S(0, t)
        if lt == 5 and OPT['s1pos'] == 1:
            k.wds('q1')
            for t in range(3): S(1, t)
    if OPT['s1pos'] == 0:
        k.wds('q1')
        for t in range(3): S(1, t)
        cvt(6, 0); cvt(6, 1)
        if OPT['tm']:
            k.wds('q2')
            k.nop(1)
            k(f'v_mfma_f32_16x16x16_bf16 {vr(vQ+12,4)}, {vr(vQ+24,2)}, {vr(vT,2)}, 0')
            for t in range(3): S(2, t)
            k(f'v_cvt_pk_bf16_f32 v{vQ+24}, v{vQ+12}, v{vQ+13}')
            k(f'v_cvt_pk_bf16_f32 v{vQ+25}, v{vQ+14}, v{vQ+15}')
            k.nop(2)
        else:
            wr(6); tr(3, 0)
            k.wds('q2')
            for t in range(3): S(2, t)
    else:
        k.nop(8)
        cvt(6, 0); cvt(6, 1); wr(6); tr(3, 0)
        k.wds('q2')
        for t in range(3): S(2, t)
    k.wds('q3')
    for t in range(3): S(3, t)
    for t in range(3):
        k.nop(2 if (t == 0 or OPT['p64'] == 0) else 1)
        if OPT['p64'] == 0: k.ds(f'ds_write_b128 v{vSW}, {vr(vSt[t],4)} offset:{1088*t}')
        else:
            k.ds(f'ds_write_b64 v{vSW}, {vr(vSt[t],2)} offset:{1088*t}')
            k.ds(f'ds_write_b64 v{vSW}, {vr(vSt[t]+2,2)} offset:{1088*t+8}')
    k.wds0()
    k('s_barrier')
    stamp(k, 1, stamps and not OPT['pc'])
    mark = len(k.lines)
    R = vQ+8
    for w in range(4): k.ds(f'ds_read_b128 {vr(R+4*w,4)}, v{vSR} offset:{w*SPW}', f'r{w}')
    k(f's_cmp_eq_u32 s{sMODE}, 1')
    k.wds('r1')
    k(f'v_pk_add_f32 {vr(R,2)}, {vr(R,2)}, {vr(R+4,2)}')
    k(f'v_pk_add_f32 {vr(R+2,2)}, {vr(R+2,2)}, {vr(R+6,2)}')
    k.wds('r2')
    k(f'v_pk_add_f32 {vr(R,2)}, {vr(R,2)}, {vr(R+8,2)}')
    k(f'v_pk_add_f32 {vr(R+2,2)}, {vr(R+2,2)}, {vr(R+10,2)}')
    k.wds('r3')
    k(f'v_pk_add_f32 {vr(R,2)}, {vr(R,2)}, {vr(R+12,2)}')
    k(f'v_pk_add_f32 {vr(R+2,2)}, {vr(R+2,2)}, {vr(R+14,2)}')
    k.nop(2)
    k(f'v_permlane16_swap_b32 v{R}, v{R+2}')
    k(f'v_permlane16_swap_b32 v{R+1}, v{R+3}')
    X = R+4; m = R+6; t = R+8
    k(f'v_pk_add_f32 {vr(X,2)}, {vr(R,2)}, {vr(R+2,2)}')
    def allred(op, m):
        for rot in (8, 4, 2, 1):
            k.nop(2)
            k(f'{op}_dpp v{m}, v{m}, v{m} row_ror:{rot} row_mask:0xf bank_mask:0xf')
        k(f'v_mov_b32 v{t}, v{m}')
        k.nop(2)
        k(f'v_permlane16_swap_b32 v{m}, v{t}')
        k(f'{op} v{m}, v{m}, v{t}')
    if OPT['sm2'] == 0:
        k(f'v_max_f32 v{m}, v{X}, v{X+1}')
        allred('v_max_f32', m)
        k(f'v_pk_add_f32 {vr(X,2)}, {vr(X,2)}, {vr(m,2)} op_sel_hi:[1,0] neg_lo:[0,1] neg_hi:[0,1]')
        k(f'v_exp_f32 v{X}, v{X}')
        k(f'v_exp_f32 v{X+1}, v{X+1}')
        k.nop(1)
        k(f'v_add_f32 v{m}, v{X}, v{X+1}')
        if not OPT['ninf']: k(f'v_mul_f32 v{m}, v{m}, v{vVal}')
        allred('v_add_f32', m)
        k(f'v_rcp_f32 v{m}, v{m}')
        k.nop(1)
        k(f'v_pk_mul_f32 {vr(X,2)}, {vr(X,2)}, {vr(m,2)} op_sel_hi:[1,0]')
    else:
        l_, M, sc = R+10, R+12, R+14
        def dpp(op, r, rot): k(f'{op}_dpp v{r}, v{r}, v{r} row_ror:{rot} row_mask:0xf bank_mask:0xf')
        k(f'v_max_f32 v{m}, v{X}, v{X+1}')
        for rot in (8, 4, 2, 1):
            k.nop(2); dpp('v_max_f32', m, rot)
        k(f'v_pk_add_f32 {vr(X,2)}, {vr(X,2)}, {vr(m,2)} op_sel_hi:[1,0] neg_lo:[0,1] neg_hi:[0,1]')
        k(f'v_mov_b32 v{M}, v{m}')
        k(f'v_exp_f32 v{X}, v{X}')
        k(f'v_mov_b32 v{t}, v{m}')
        k(f'v_exp_f32 v{X+1}, v{X+1}')
        k.nop(1)
        k(f'v_add_f32 v{l_}, v{X}, v{X+1}')
        k(f'v_permlane16_swap_b32 v{M}, v{t}')
        k(f'v_mul_f32 v{l_}, v{l_}, v{vVal}')
        k(f'v_max_f32 v{M}, v{M}, v{t}')
        k(f'v_sub_f32 v{sc}, v{m}, v{M}')
        dpp('v_add_f32', l_, 8)
        k(f'v_exp_f32 v{sc}, v{sc}')
        k.nop(1)
        dpp('v_add_f32', l_, 4)
        k(f'v_pk_mul_f32 {vr(X,2)}, {vr(X,2)}, {vr(sc,2)} op_sel_hi:[1,0]')
        k.nop(1)
        dpp('v_add_f32', l_, 2)
        k.nop(2)
        dpp('v_add_f32', l_, 1)
        k(f'v_mul_f32 v{l_}, v{l_}, v{sc}')
        k(f'v_mov_b32 v{t}, v{l_}')
        k.nop(2)
        k(f'v_permlane16_swap_b32 v{l_}, v{t}')
        k(f'v_add_f32 v{l_}, v{l_}, v{t}')
        k(f'v_rcp_f32 v{l_}, v{l_}')
        k.nop(1)
        k(f'v_pk_mul_f32 {vr(X,2)}, {vr(X,2)}, {vr(l_,2)} op_sel_hi:[1,0]')
    k(f'v_cvt_pk_bf16_f32 v{X}, v{X}, v{X+1}')
    k(f'v_min_u32 v{X}, -2, v{X}')
    if OPT['kpos'] == 'soft':
        body_ = k.lines[mark:]; k.lines = k.lines[:mark]; L = key_list()
        for x in body_:
            if x == 's_nop 1' and L: k(L.pop(0)); k('s_nop 0')
            else: k(x)
        assert not L
    publish(k, [f'buffer_store_dword v{X}, v{vPO}, {WS}, s{x} offen' for x in [sP, 47][:OPT['prep']]])
    stamp(k, 2, stamps)
    if OPT['abar']: k('s_barrier')
    if stamps and OPT['tw']:
        k('s_waitcnt vmcnt(0)')
        stamp(k, 3, stamps)
    load_flag()
    if OPT['kdel']: k(f"s_sleep {OPT['kdel']}")
    load_keys(OPT['kpos'] != 'soft')
    if OPT['sleepA']: k(f"s_sleep {OPT['sleepA']}")
    k(f's_add_u32 s{sUM}, s{sUM}, {UF_SEG}')
    k(f's_add_u32 s{sM}, s{sM}, {MEM_T}')
    k(f's_add_u32 s{sP}, s{sP}, {PB_T}')
    if stamps: k(f's_add_u32 s{sST}, s{sST}, 16')
    k(f's_add_u32 s{sSTEP}, s{sSTEP}, 1')
    k(f's_cmp_lt_u32 s{sSTEP}, {NSTEP}')
    k('s_cbranch_scc1 L_A_loop')
    diag(k, 5)
    edge(k, stamps, 8)
    k('s_waitcnt vmcnt(0)')
    k('s_endpgm')
    k.flush_cold()

def role_B(k, stamps=False, wait_u=None):
    WS = f's[{SWS}:{SWS+3}]'
    vLane, vL16, vG0, vG1, vIdx = 1, 2, 3, 4, 5
    vWL, vPT, vPM, vRW, vRR, vL4 = 6, 7, 8, 9, 10, 11
    vC = 12
    vM = 16
    vA = 44
    vU = 76
    vTm = 108
    vUi = 140
    vUm = 172
    vRR2 = 188
    vKeep, vFl = 191, 15
    vD = vTm
    vG = vTm + 16
    vP = [vM, vA]
    def W(gi, kb):
        i = gi*5 + kb
        return (256 + 8*i) if i < 32 else (192 + 8*(i-32))
    LM, LRED, LW = 0, 7168, 16384
    k.label('L_roleB')
    k(f's_sub_u32 s{sID}, s{sROLE}, 16')
    common_lane_setup(k, vLane, vL16, vG0, vG1, vIdx, vC)
    k(f's_lshl_b32 s{sT0}, s{sWAVE}, 2')
    k(f's_mul_i32 s{sT0}, s{sT0}, 28')
    k(f's_lshl_b32 s{sT1}, s{sID}, 1')
    k(f's_add_u32 s{sT0}, s{sT0}, s{sT1}')
    k(f's_mul_i32 s35, s{sT0}, 14336')
    k(f's_add_u32 s35, s35, {WTB}')
    k(f's_lshl_b32 s37, s{sWAVE}, 15')
    k(f's_add_u32 s37, s37, {LW}')
    k(f'v_add_u32 v{vWL}, s37, v{vL16}')
    for j in range(7):
        k(f's_add_u32 s{50+j}, s{sWAVE}, {(4*j) % 7}')
        k(f's_sub_u32 s40, s{50+j}, 7')
        k(f's_cmp_ge_u32 s{50+j}, 7')
        k(f's_cselect_b32 s{50+j}, s40, s{50+j}')
        k(f's_lshl_b32 s{50+j}, s{50+j}, 10')
    k(f'v_add_u32 v{vG1}, s51, v{vL16}')
    for gi in range(8):
        k(f's_add_u32 s36, s35, {(gi>>1)*28*14336 + (gi&1)*14336}')
        for j in range(7):
            k(f's_lshl_b32 s40, s{50+j}, 1')
            k(f's_add_u32 s40, s40, s36')
            if j >= 5:
                k(f's_add_u32 s38, s37, {gi*4096 + (j-5)*2048}')
                k(f's_mov_b32 m0, s38')
                k('s_nop 0')
            for f in range(2):
                if j < 5: k(f'buffer_load_dwordx4 {xr(W(gi, j) + 4*f,4)}, v{vL16}, {WS}, s40 offen offset:{f*1024}')
                else:     k(f'buffer_load_dwordx4 v{vL16}, {WS}, s40 offen offset:{f*1024} lds')
        k('s_waitcnt vmcnt(40)')
    g, i = vA, vA+1
    vT = vC
    k(f'v_lshrrev_b32 v{g}, 4, v{vLane}')
    k(f'v_and_b32 v{i}, 15, v{vLane}')
    k(f's_lshl_b32 s40, s{sWAVE}, 11')
    k(f'v_add_u32 v{vPT}, s40, v{vL16}')
    k(f'v_lshrrev_b32 v{vT}, 1, v{g}')
    k(f'v_lshlrev_b32 v{vT}, 8, v{vT}')
    k(f'v_lshl_add_u32 v{vT}, v{i}, 4, v{vT}')
    k(f's_lshl_b32 s40, s{sWAVE}, {10 if PMD else 9}')
    k(f's_add_u32 s40, s40, 8192')
    k(f'v_add_u32 v{vPM}, s40, v{vL16 if PMD else vT}')
    k(f's_lshl_b32 s40, s{sWAVE}, 10')
    k(f's_add_u32 s40, s40, {LRED}')
    k(f'v_add_u32 v{vRW}, s40, v{vL16}')
    k(f'v_and_b32 v{vT}, 3, v{vLane}')
    k(f'v_lshlrev_b32 v{vT}, 6, v{vT}')
    k(f'v_lshrrev_b32 v{vT+1}, 5, v{vLane}')
    k(f'v_lshl_add_u32 v{vT}, v{vT+1}, 5, v{vT}')
    k(f'v_lshrrev_b32 v{vT+1}, 2, v{vLane}')
    k(f'v_and_b32 v{vT+2}, 3, v{vT+1}')
    k(f'v_lshl_add_u32 v{vT}, v{vT+2}, 2, v{vT}')
    k(f'v_bfe_u32 v{vT+2}, v{vLane}, 4, 1')
    k(f'v_lshl_add_u32 v{vT}, v{vT+2}, 8, v{vT}')
    k(f's_and_b32 s40, s{sWAVE}, 1')
    k(f's_lshl_b32 s40, s40, 9')
    k(f's_add_u32 s40, s40, {LRED}')
    k(f'v_add_u32 v{vRR}, s40, v{vT}')
    for w in range(1, 4): k(f'v_add_u32 v{vRR2+w-1}, {1024*w}, v{vRR}')
    k(f's_lshl_b32 s40, s{sID}, 1')
    k(f's_and_b32 s41, s{sWAVE}, 1')
    k(f's_add_u32 s40, s40, s41')
    k(f's_lshl_b32 s40, s40, 8')
    k(f'v_lshlrev_b32 v{vL4}, 2, v{vLane}')
    k(f'v_add_u32 v{vL4}, s40, v{vL4}')
    k(f's_mov_b32 s{sSTEP}, 0')
    k(f's_lshr_b32 s{sM}, s{sWAVE}, 1')
    k(f's_mul_i32 s{sM}, s{sM}, {2*MEM_S}')
    k(f's_add_u32 s{sM}, s{sM}, {MEM}')
    k(f's_mov_b32 s47, {MEMX - MEM_S}')
    k(f"s_mov_b32 s49, {MEM + (NREP-1)*MEM_S}")
    k(f's_and_b32 s{sP}, s{sID}, 1')
    k(f"s_mul_i32 s{sP}, s{sP}, {PB_S if OPT['prep'] == 2 else 0}")
    k(f's_add_u32 s{sP}, s{sP}, {PB}')
    k(f's_lshl_b32 s{sX}, s{sID}, 15')
    k(f's_lshl_b32 s40, s{sWAVE}, 13')
    k(f's_add_u32 s{sX}, s{sX}, s40')
    k(f's_add_u32 s{sX}, s{sX}, {UF}')
    k(f's_mul_i32 s{sUM}, s{sWAVE}, {2*28*1024}')
    k(f's_lshl_b32 s40, s{sID}, 11')
    k(f's_add_u32 s{sUM}, s{sUM}, s40')
    k(f's_add_u32 s{sUM}, s{sUM}, {UM}')
    k(f's_mov_b32 s43, s{sUM}')
    def ldu(j, s0=sX):
        hh, T = j >> 1, j & 1
        r = vU + 16*(hh>>1) + 8*T + 4*(hh&1)
        return f'buffer_load_dwordx4 {vr(r,4)}, v{vL16}, {WS}, s{s0 if j<4 else sT0} offen offset:{(j&3)*1024} ' + OPT['uf']
    def stum(u, T):
        return f'buffer_store_dwordx4 {vr(vUm+8*T+4*u,4)}, v{vL16}, {WS}, s{43 if u==0 else 44} offen offset:{T*1024} ' + OPT['um']
    def lw(gi):
        b = vTm + 16*(gi&1)
        for f in range(4): k.ds(f'ds_read_b128 {vr(b+4*f,4)}, v{vWL} offset:{gi*4096+f*1024}', f'w{gi}')
    def load_u(ahead):
        if wait_u:
            lu = k.newlabel('Lnu')
            k(f's_add_u32 s{sT0}, s{sSTEP}, {ahead}')
            k(f's_and_b32 s{sT1}, s{sT0}, 3')
            k(f's_cbranch_scc1 {lu}')
            k(f's_lshl_b32 s{sT0}, s{sT0}, 5')
            k(f's_add_u32 s{sT0}, s{sT0}, {flag(F_U)}')
            wait_u(k, sT0, 32, vC, sleep=1)
            k.label(lu)
        k(f's_add_u32 s{sT0}, s{sX}, 4096')
        for j in range(8): k(ldu(j))
        k(f's_add_u32 s{sX}, s{sX}, {UF_SEG}')
    if OPT['u0'] == 'pro': load_u(0)
    wait_mode(k, vC)
    sw = []
    for o in range(4):
        r = vU + 8*o
        for e in range(4):
            sel = e & 1
            sw.append(f'v_pk_mov_b32 {vr(vUi+8*o+2*e,2)}, {vr(r+(e&2),2)}, {vr(r+4+(e&2),2)} op_sel:[{sel},{sel}]')
    if stamps: k(f's_add_u32 s76, s{sST}, 0x20000')
    edge(k, stamps, 0)
    diag(k, 7)
    k('s_branch L_B_loop')
    k('.p2align 8')
    for _ in range(OPT['padB']): k('s_nop 0')
    k.label('L_B_loop')
    lp = k.newlabel('Lgm')
    def gl():
        sb = 49
        k(f'buffer_load_dwordx4 {vr(vM,4)}, v{vG0}, {WS}, s{sb} offen sc1')
        k(f'buffer_load_dwordx4 {vr(vM+4,4)}, v{vG1}, {WS}, s{sb} offen sc1')
    k(f's_waitcnt vmcnt({NREP})')
    NU = OPT['nu2']
    if OPT['bdel']: k(f"s_sleep {OPT['bdel']}")
    k(f's_add_u32 s{sT0}, s{sX}, {4096 - UF_SEG}')
    k(f's_sub_u32 s{sT1}, s{sX}, {UF_SEG}')
    for j in range(8-NU, 8): k(ldu(j, sT1))
    gl()
    NS = 8 if NU <= 4 else 0
    if NU == 0: NS = 16
    for x in sw[:NS]: k(x)
    for r in range(0, 32, 2): k(f'v_mov_b64 {vr(vA+r,2)}, 0')
    for j in range(2, 7): k(f'v_add_u32 v{vG+j}, s{50+j}, v{vL16}')
    k(f's_add_u32 s45, s{sSTEP}, 1')
    k(f's_lshr_b32 s45, s45, 2')
    k(f's_lshl_b32 s45, s45, 7')
    k(f's_add_u32 s45, s45, {flag(F_U)}')
    k(f's_add_u32 s44, s43, {28*1024}')
    vm = [stum(0,0), stum(0,1), stum(1,0), stum(1,1)] + [ldu(j) for j in range(8)]
    lw(0)
    k(f's_mov_b32 s{sCNT}, 0')
    k(f's_branch {lp}w')
    k.label(lp)
    if OPT['bgs']: k(f"s_sleep {OPT['bgs']}")
    gl()
    k(f's_add_u32 s{sCNT}, s{sCNT}, 1')
    k(f's_cmp_gt_u32 s{sCNT}, s{sT2}')
    k('s_cbranch_scc1 L_fail')
    k.label(lp + 'w')
    k('s_waitcnt vmcnt(1)')
    k(f'v_max3_u32 v{vC}, v{vM}, v{vM+1}, v{vM+2}')
    k('s_waitcnt vmcnt(0)')
    k(f'v_max3_u32 v{vC+1}, v{vM+4}, v{vM+5}, v{vM+6}')
    k(f'v_max3_u32 v{vC}, v{vC}, v{vM+3}, v{vM+7}')
    k(f'v_max_u32 v{vC}, v{vC}, v{vC+1}')
    k(f'v_cmp_eq_u32 vcc, -1, v{vC}')
    k(f's_cbranch_vccnz {lp}')
    stamp(k, 0, stamps)
    k.ds(f'ds_write_b128 v{vG0}, {vr(vM,4)} offset:{LM}')
    k.ds(f'ds_write_b128 v{vG1}, {vr(vM+4,4)} offset:{LM}')
    ls, l2 = k.newlabel('Lbs'), k.newlabel('Lbt')
    k(f's_cmp_eq_u32 s{sSTEP}, 0')
    k(f's_cbranch_scc1 {l2}')
    k(f's_cmp_ge_u32 s{sWAVE}, 2')
    k(f's_cbranch_scc1 {ls}')
    k(f'buffer_store_dword v{vKeep}, v{vL4}, {WS}, s47 offen sc1')
    k(f's_branch {l2}')
    k.label(ls)
    k(f's_cmp_eq_u32 s{sWAVE}, 2')
    k(f's_cselect_b32 s{sT0}, s{sSTEP}, 0')
    k(f's_cmp_le_u32 s{sT0}, 1')
    k(f's_cbranch_scc1 {l2}')
    k(f's_lshl_b32 s{sT0}, s{sSTEP}, 7')
    k(f's_add_u32 s{sT0}, s{sT0}, {flag(F_UM) - 256}')
    k('s_mov_b64 exec, 1')
    k(f'v_mov_b32 v{vC}, 1')
    k(f'buffer_atomic_add v{vC}, off, {WS}, s{sT0}')
    k('s_mov_b64 exec, -1')
    k.label(l2)
    k(f'buffer_load_dword v{vFl}, off, {WS}, s45 sc1')
    for x in vm[:4]: k(x)
    def acc(gi): return vA + 4*gi
    def cvt(gi, h):
        hh, T = gi>>1, gi&1
        d = vUm + 8*T + 4*(hh>>1) + 2*h + (hh&1)
        a = acc(gi) + 2*h
        k(f'v_cvt_pk_bf16_f32 v{d}, v{a}, v{a+1}')
    def lw1(gi, f):
        k.ds(f'ds_read_b128 {vr(vTm+16*(gi&1)+4*f,4)}, v{vWL} offset:{gi*4096+f*1024}', f'w{gi}')
    def mid_u():
        lsk = k.newlabel('Lsk')
        k(f's_cmp_ge_u32 s{sSTEP}, {NSTEP-1}')
        k(f's_cbranch_scc1 {lsk}')
        k('s_waitcnt vmcnt(4)')
        if wait_u:
            lu = k.newlabel('Lnu')
            k(f'v_cmp_le_u32 vcc, 32, v{vFl}')
            k(f's_cbranch_vccnz {lu}')
            wait_u(k, 45, 32, vC)
            k.label(lu)
        k(f's_add_u32 s{sT0}, s{sX}, 4096')
        for j in range(8-NU): k(ldu(j))
        k.label(lsk)
        k(f's_add_u32 s{sX}, s{sX}, {UF_SEG}')
    def MB(gi, j):
        w = xr(W(gi,j),8) if j < 5 else vr(vTm + 16*(gi&1) + 8*(j-5), 8)
        k(f'v_smfmac_f32_16x16x64_bf16 {vr(acc(gi),4)}, {vr(vM+4*j,4)}, {w}, v{vIdx}')
    for n in range(16):
        MB(n & 7, n >> 3)
        if n == 5:
            k.wds0(); k('s_barrier')
        if 5 <= n < 10:
            k.ds(f'ds_read_b128 {vr(vM+4*(n-3),4)}, v{vG+n-3} offset:{LM}', f'm{n-3}')
    for gi in range(8):
        for j in range(2, 7):
            if gi == 0: k.wds(f'm{j}')
            if j == 5: k.wds(f'w{gi}')
            MB(gi, j)
            if gi < 7 and j in (2, 3, 5, 6): lw1(gi+1, {2:0, 3:1, 5:2, 6:3}[j])
            if gi >= 1 and j == 4: cvt(gi-1, 0); cvt(gi-1, 1)
        if gi + 1 == OPT['ug'] and gi < 7: mid_u()
    k(f's_mov_b32 s43, s{sUM}')
    k(f's_add_u32 s{sUM}, s{sUM}, {UM_SEG}')
    for x in sw[NS:]: k(x)
    k.nop(6 if NS == 16 else 0)
    cvt(7, 0); cvt(7, 1)
    for r in range(0, 8, 2): k(f'v_mov_b64 {vr(vD+r,2)}, 0')
    k(f's_cmp_ge_u32 s{sSTEP}, {NSTEP}')
    k('s_cbranch_scc1 L_B_end')
    if OPT['u0'] == 'cold':
        l0, l1 = k.newlabel('Lu0'), k.newlabel('Lu1')
        k(f's_cmp_eq_u32 s{sSTEP}, 0')
        k(f's_cbranch_scc1 {l0}')
        k.label(l1)
        main = k.lines; k.lines = []
        k.label(l0)
        load_u(0)
        k('s_waitcnt vmcnt(0)')
        for x in sw: k(x)
        k(f'v_mov_b32 v{vFl}, 32')
        k(f's_branch {l1}')
        k.cold += k.lines; k.lines = main
    if OPT['ug'] == 8: mid_u()
    stamp(k, 1, stamps)
    if OPT['sleepB']: k(f"s_sleep {OPT['sleepB']}")
    def issue(st):
        P = vP[st]
        return [f'buffer_load_dwordx4 {vr(P,4)}, v{vPT}, {WS}, s{sP} offen ' + OPT['pld'],
                f'buffer_load_dwordx4 {vr(P+4,4)}, v{vPT}, {WS}, s{sP} offen offset:1024 ' + OPT['pld'],
                f'buffer_load_dwordx4 {vr(P+8,4)}, v{vPM}, {WS}, s{sP} offen ' + OPT['pld']]
    def checks(st):
        P = vP[st]
        if OPT['qc']: return [(0, [f'v_max3_u32 v{vC}, v{P+3}, v{P+7}, v{P+11}', f'v_cmp_eq_u32 vcc, -1, v{vC}'])]
        return [(2, [f'v_max3_u32 v{vC}, v{P}, v{P+1}, v{P+2}']),
                (1, [f'v_max3_u32 v{vC+1}, v{P+4}, v{P+5}, v{P+6}', f'v_max3_u32 v{vC}, v{vC}, v{P+3}, v{P+7}']),
                (0, [f'v_max3_u32 v{vC+1}, v{vC+1}, v{P+8}, v{P+9}', f'v_max3_u32 v{vC}, v{vC}, v{P+10}, v{P+11}',
                     f'v_max_u32 v{vC}, v{vC}, v{vC+1}', f'v_cmp_eq_u32 vcc, -1, v{vC}'])]
    def body(st):
        P = vP[st]
        stamp(k, 2, stamps)
        for j in range(3):
            for T in range(2):
                b = vr(vUi + 16*j + 8*T, 8) if j < 2 else vr(vUm + 8*T, 8)
                k(f'v_smfmac_f32_16x16x64_bf16 {vr(vD+4*T,4)}, {vr(P+4*j,4)}, {b}, v{vIdx}')
                if OPT['qc']:
                    n = 2*j + T
                    q = [f'v_max3_u32 v{vC}, v{P}, v{P+1}, v{P+2}', f'v_max3_u32 v{vC+1}, v{P+4}, v{P+5}, v{P+6}', f'v_max3_u32 v{vC}, v{vC}, v{P+8}, v{P+9}',
                         f'v_max3_u32 v{vC}, v{vC}, v{vC+1}, v{P+10}', f'v_cmp_eq_u32 vcc, -1, v{vC}', 's_cbranch_vccnz L_B_redo']
                    k(q[n])
    if OPT['qc']:
        k.cold += ['L_B_redo:', 's_waitcnt vmcnt(0)', 's_nop 15'] + [f'v_mov_b64 {vr(vD+r,2)}, 0' for r in range(0, 8, 2)] + ['s_branch L_B_poll']
        k.label('L_B_poll')
    if OPT['bp2']: poll2(k, issue, checks, body, 'Lpp', OPT['stag'])
    else:
        lp = k.newlabel('Lp1')
        k(f's_mov_b32 s{sCNT}, 0')
        k.label(lp)
        for x in issue(0): k(x)
        k(f's_add_u32 s{sCNT}, s{sCNT}, 1')
        k(f's_cmp_gt_u32 s{sCNT}, s{sT2}')
        k('s_cbranch_scc1 L_fail')
        for rel, ins in checks(0):
            k(f's_waitcnt vmcnt({rel})')
            for x in ins: k(x)
        k(f's_cbranch_vccnz {lp}')
        body(0)
    k(f's_add_u32 s{sM}, s{sM}, {MEM_T}')
    k(f's_add_u32 s47, s47, {MEM_S}')
    k(f's_add_u32 s48, s{sM}, {MEM_S}')
    k(f's_add_u32 s49, s49, {MEM_T}')
    k(f's_add_u32 s{sP}, s{sP}, {PB_T}')
    k.nop(3)
    for r in range(4): k(f'v_permlane32_swap_b32 v{vD+r}, v{vD+4+r}')
    k(f'v_pk_add_f32 {vr(vD,2)}, {vr(vD,2)}, {vr(vD+4,2)}')
    k(f'v_pk_add_f32 {vr(vD+2,2)}, {vr(vD+2,2)}, {vr(vD+6,2)}')
    k.ds(f'ds_write_b128 v{vRW}, {vr(vD,4)}')
    k.wds0()
    k('s_barrier')
    if OPT['rep'] == 3:
        k(f's_cmp_ge_u32 s{sWAVE}, 2')
        k('s_cbranch_scc1 L_B_skip')
    R = vG
    for w in range(4): k.ds(f'ds_read2_b32 {vr(R+2*w,2)}, v{vRR} offset0:{0} offset1:{4}' if w == 0 else
                            f'ds_read2_b32 {vr(R+2*w,2)}, v{vRR2+w-1} offset0:0 offset1:4', f'r{w}')
    k(f's_cmp_eq_u32 s{sMODE}, 1')
    k.wds('r1')
    k(f'v_pk_add_f32 {vr(R,2)}, {vr(R,2)}, {vr(R+2,2)}')
    k.wds('r3')
    k(f'v_pk_add_f32 {vr(R+4,2)}, {vr(R+4,2)}, {vr(R+6,2)}')
    k(f'v_pk_add_f32 {vr(R,2)}, {vr(R,2)}, {vr(R+4,2)}')
    k(f'v_cvt_pk_bf16_f32 v{R}, v{R}, v{R+1}')
    k(f'v_min_u32 v{R}, -2, v{R}')
    publish(k, [f'buffer_store_dword v{R}, v{vL4}, {WS}, s{x} offen' for x in {1: [sM], 2: [sM, 49], 3: [sM, 48, 49]}[NREP]])
    k(f'v_mov_b32 v{vKeep}, v{R}')
    k(f's_cmp_lg_u32 s{sSTEP}, {NSTEP-1}')
    k('s_cbranch_scc1 L_B_skip2')
    k(f'buffer_store_dword v{R}, v{vL4}, {WS}, s47 offen sc1')
    k('s_branch L_B_skip2')
    k.label('L_B_skip')
    k('s_waitcnt vmcnt(0)')
    k.label('L_B_skip2')
    stamp(k, 3, stamps)
    k('s_barrier')
    k(f's_add_u32 s{sSTEP}, s{sSTEP}, 1')
    if stamps: k(f's_add_u32 s{sST}, s{sST}, 16')
    k('s_branch L_B_loop')
    k.label('L_B_end')
    edge(k, stamps, 8)
    for r in range(16): k(f'v_min_u32 v{vUm+r}, -2, v{vUm+r}')
    k(f's_add_u32 s44, s43, {28*1024}')
    for x in vm[:4]: k(x)
    k('s_waitcnt vmcnt(4)')
    k('s_barrier')
    k(f's_cmp_lg_u32 s{sWAVE}, 0')
    k('s_cbranch_scc1 L_exit')
    k('s_mov_b64 exec, 1')
    k(f'v_mov_b32 v{vC}, 1')
    k(f's_mov_b32 s{sT0}, {flag(F_UM + 62)}')
    k(f'buffer_atomic_add v{vC}, off, {WS}, s{sT0}')
    k('s_endpgm')
    k.flush_cold()

def role_P(k, wait_u=None):
    WS = f's[{SWS}:{SWS+3}]'
    vLane, vU, vX, vS, vD = 1, 2, 3, 4, 8
    D = OPT['pfd']; st = OPT['pfs']; sh = 7 if st == 128 else 6
    k.label('L_roleP')
    k(f's_mov_b32 s{sT2}, {POLL_LIMIT}')
    k(f's_sub_u32 s{sID}, s{sROLE}, 30')
    k(f's_lshl_b32 s{sID}, s{sID}, 2')
    k(f's_add_u32 s{sID}, s{sID}, s{sWAVE}')
    k(f'v_and_b32 v{vLane}, 63, v0')
    k(f'v_lshlrev_b32 v{vU}, {sh}, v{vLane}')
    k(f's_mul_i32 s40, s{sID}, {UF_SEG//8}')
    k(f'v_add_u32 v{vU}, s40, v{vU}')
    f2 = 2 if OPT['pf64'] else 1
    for reg, n in ((vX, 28*f2), (vS, PB_T//1024*f2), (vS+1, 7*NREP*f2)):
        k(f'v_min_u32 v{reg}, {n-1}, v{vLane}')
        k(f's_mul_i32 s40, s{sID}, {n}')
        k(f'v_add_lshl_u32 v{reg}, v{reg}, s40, {8 - f2}')
    k(f's_mov_b32 s{sSTEP}, 0')
    k(f's_mov_b32 s{sX}, {UF}')
    k(f's_mov_b32 s{sUM}, {XNS}')
    k(f's_mov_b32 s{sP}, {PB}')
    k(f's_mov_b32 s{sM}, {MEM + MEM_T}')
    k(f's_mov_b32 s41, {MEM - D*MEM_T + (NREP-1)*MEM_S}')
    if OPT['cpf']:
        k('s_getpc_b64 s[44:45]')
        k.label('L_P_pc')
        k('s_sub_u32 s44, s44, L_P_pc-L_roleA')
        k('s_subb_u32 s45, s45, 0')
        k(f's_lshl_b32 s40, s{sID}, 12')
        k(f'v_lshlrev_b32 v20, 6, v{vLane}')
        k('v_add_u32 v20, s40, v20')
        k('v_min_u32 v20, L_P_pc-L_roleA, v20')
        k('v_mov_b32 v21, s45')
        k('v_add_co_u32 v20, vcc, s44, v20')
        k('s_nop 1')
        k('v_addc_co_u32 v21, vcc, 0, v21, vcc')
        k('global_load_dword v22, v[20:21], off')
    if OPT['diag']:
        diag(k, 3)
        k(f'v_lshlrev_b32 v20, 3, v{vLane}')
        k(f's_lshl_b32 s40, s{sWAVE}, 9')
        k(f's_add_u32 s40, s40, {STAMP}')
        k(f'buffer_load_dwordx2 v[22:23], v20, {WS}, s40 offen')
        k('s_waitcnt vmcnt(0)')
        k('v_not_b32 v22, v22')
        k(f'buffer_atomic_umax v22, off, s[{SDBG}:{SDBG+3}], 0 offset:0')
        k(f'buffer_atomic_umax v23, off, s[{SDBG}:{SDBG+3}], 0 offset:4')
    k.label('L_P_loop')
    k(f's_cmp_le_u32 s{sSTEP}, {D}')
    k('s_cbranch_scc1 L_P_go')
    k(f's_mov_b32 s{sCNT}, 0')
    k.label('L_P_wait')
    k(f'buffer_load_dword v{vD}, off, {WS}, s41 sc1')
    k(f's_add_u32 s{sCNT}, s{sCNT}, 1')
    k(f's_cmp_gt_u32 s{sCNT}, s{sT2}')
    k('s_cbranch_scc1 L_fail')
    k('s_waitcnt vmcnt(0)')
    k(f'v_cmp_eq_u32 vcc, -1, v{vD}')
    k('s_cbranch_vccz L_P_go')
    k('s_sleep 2')
    k('s_branch L_P_wait')
    k.label('L_P_go')
    k(f'buffer_load_dword v{vD+1}, v{vS}, {WS}, s{sP} offen sc1')
    k(f'buffer_load_dword v{vD+2}, v{vS+1}, {WS}, s{sM} offen sc1')
    k(f'buffer_load_dword v{vD+3}, v{vX}, {WS}, s{sUM} offen sc1')
    n = 0 if OPT['apf'] else UF_SEG // 8 // (64*st)
    k(f's_mov_b32 s{sT0}, s{sX}')
    for j in range(n):
        k(f'buffer_load_dword v{vD+4+j}, v{vU}, {WS}, s{sT0} offen sc1')
        k(f's_add_u32 s{sT0}, s{sT0}, {64*st}')
    k(f's_add_u32 s{sX}, s{sX}, {UF_SEG}')
    k(f's_add_u32 s{sUM}, s{sUM}, 28672')
    k(f's_add_u32 s{sP}, s{sP}, {PB_T}')
    k(f's_add_u32 s{sM}, s{sM}, {MEM_T}')
    k(f's_add_u32 s41, s41, {MEM_T}')
    k(f's_add_u32 s{sSTEP}, s{sSTEP}, 1')
    k(f's_cmp_lt_u32 s{sSTEP}, {NSTEP}')
    k('s_cbranch_scc1 L_P_loop')
    k('s_waitcnt vmcnt(0)')
    k('s_endpgm')
```

```python
from chain import K, OPT
from asmlib import *
from layout import *
import math, struct

def f32bits(x): return struct.unpack('<I', struct.pack('<f', x))[0]
PREP_GRID, PREP_BLOCK, PREP_LDS = 256, 512, 3*43008 + 28672

def srd(k, s, argoff, size):
    k(f's_load_dwordx2 s[{s}:{s+1}], s[0:1], {argoff}')
    k(f's_mov_b32 s{s+2}, {size}')
    k(f's_mov_b32 s{s+3}, 0x20000')

def gen_prep(tl=False):
    k = K()
    WS = 's[4:7]'
    k(f's_cmp_ge_u32 s2, {PREP_GRID}')
    k('s_cbranch_scc1 P_exit')
    srd(k, 4, 112, WS_SIZE)
    k('v_lshrrev_b32 v1, 6, v0')
    k('v_and_b32 v2, 63, v0')
    k('v_readfirstlane_b32 s16, v1')
    if tl or OPT['diag']: k('s_memrealtime s[40:41]')
    k('s_nop 2')
    if OPT['k1pf']:
        k('s_cmp_ge_u32 s16, 4')
        k('s_cbranch_scc1 P_nopf')
        k('s_lshl_b32 s44, s16, 3')
        k('s_add_u32 s44, s44, 16')
        k('s_load_dwordx2 s[56:57], s[0:1], s44')
        k('s_mov_b32 s58, 3670016')
        k('s_mov_b32 s59, 0x20000')
        k('v_lshlrev_b32 v190, 7, v2')
        k('s_mul_i32 s44, s2, 14336')
        k('s_add_u32 s45, s44, 6144')
        k('s_waitcnt lgkmcnt(0)')
        k('s_and_b32 s57, s57, 0xffff')
        k('buffer_load_dword v191, v190, s[56:59], s44 offen')
        k('buffer_load_dword v189, v190, s[56:59], s45 offen')
        k.label('P_nopf')
    k('s_cmp_eq_u32 s16, 7')
    k('s_cbranch_scc1 P_ln')
    k('s_and_b32 s19, s2, 15')
    k('s_bfe_u32 s18, s2, 0x10005')
    k('s_lshr_b32 s20, s2, 6')
    k('s_bitcmp1_b32 s2, 4')
    k('s_cbranch_scc1 P_gB0')
    srd(k, 8, 16, 3670016); srd(k, 12, 24, 3670016)
    k('s_branch P_g1')
    k.label('P_gB0')
    srd(k, 8, 32, 3670016); srd(k, 12, 40, 3670016)
    k.label('P_g1')
    vI, vG, vL16 = 3, 4, 5
    vR, vC, vRA, vCA, vt = 6, 10, 12, 16, 18
    vRAs, vCAs = 20, 24
    k(f'v_and_b32 v{vI}, 15, v2')
    k(f'v_lshrrev_b32 v{vG}, 4, v2')
    k(f'v_lshlrev_b32 v{vL16}, 4, v2')
    k('s_mul_i32 s21, s18, 7')
    k('s_add_u32 s21, s21, s16')
    k(f'v_lshrrev_b32 v{vt}, 3, v2')
    k('s_lshl_b32 s22, s21, 5')
    k(f'v_add_u32 v{vt}, s22, v{vt}')
    k(f'v_lshlrev_b32 v{vt}, 13, v{vt}')
    k('s_lshl_b32 s22, s19, 9')
    k(f'v_add_u32 v{vt}, s22, v{vt}')
    k(f'v_and_b32 v{vt+1}, 7, v2')
    k(f'v_and_b32 v26, 1, v{vG}')
    k(f'v_xor_b32 v{vt+1}, v{vt+1}, v26')
    for q in range(4):
        k(f'v_xor_b32 v26, {2*q}, v{vt+1}')
        k(f'v_lshl_add_u32 v{vR+q}, v26, 4, v{vt}')
        if q: k(f'v_add_u32 v{vR+q}, {q*8*8192}, v{vR+q}')
    k(f'v_lshrrev_b32 v{vt}, 2, v{vI}')
    k(f'v_bfe_u32 v{vt+1}, v{vI}, 1, 1')
    k(f'v_lshl_add_u32 v{vt+1}, v{vt}, 1, v{vt+1}')
    k(f'v_xor_b32 v{vt+1}, v{vt+1}, v{vG}')
    k(f'v_lshlrev_b32 v{vt+1}, 4, v{vt+1}')
    k(f'v_lshl_add_u32 v{vt+1}, v{vt}, 10, v{vt+1}')
    k(f'v_and_b32 v{vt}, 3, v{vI}')
    k(f'v_lshl_add_u32 v{vt+1}, v{vt}, 7, v{vt+1}')
    k('s_lshl_b32 s33, s16, 12')
    k(f'v_add_u32 v{vRA}, s33, v{vt+1}')
    k(f'v_xor_b32 v{vRA+1}, 64, v{vRA}')
    k('s_lshl_b32 s22, s18, 1')
    k('s_add_u32 s22, s22, s20')
    for j in range(4):
        k(f's_add_u32 s{24+j}, s22, {j}')
        k(f's_and_b32 s{24+j}, s{24+j}, 3')
    vC3 = 156
    vAcc, vOp = 28, 84
    k('s_lshl_b32 s32, s16, 11')
    k('s_add_u32 s32, s32, 28672')
    def mm(n):
        o = vOp + 36*(n&1)
        for T in range(2):
            for ct in range(7):
                a = vAcc + 28*T + 4*ct
                k(f'v_mfma_f32_16x16x32_bf16 {vr(a,4)}, {vr(o+4*T,4)}, {vr(o+8+4*ct,4)}, {"0" if n == 0 else vr(a,4)}')
    def body(gstep, rdc, cdma):
        if tl == 2: k('s_memrealtime s[46:47]')
        k('s_waitcnt lgkmcnt(0)')
        if tl == 2: k('s_memrealtime s[48:49]')
        k('s_and_b32 s5, s5, 0xffff'); k('s_and_b32 s9, s9, 0xffff'); k('s_and_b32 s13, s13, 0xffff')
        k.vmq = []
        def issue(j):
            sb = j*43008
            k(f's_lshl_b32 s36, s{24+j}, 7')
            k(f's_mul_i32 s35, s{24+j}, {gstep}')
            if j < 3: cdma(sb, j)
            else:
                for hq in range(2): k.vm(f'buffer_load_dwordx4 {vr(vC3+4*hq,4)}, v{vC+hq}, s[12:15], s35 offen', 'c3')
            for q in range(4):
                k(f's_add_u32 s34, s33, {sb + q*1024}')
                k('s_mov_b32 m0, s34')
                k('s_nop 0')
                k.vm(f'buffer_load_dwordx4 v{vR+q}, s[8:11], s36 offen lds', j)
        for j in range(4): issue(j)
        k(f'v_add_u32 v26, s32, v{vL16}')
        if tl == 2: k('s_memrealtime s[50:51]')
        def rd(n):
            j, es = n >> 1, n & 1
            o = vOp + 36*(n&1)
            for T in range(2): k(f'ds_read_b128 {vr(o+4*T,4)}, v{vRAs+es} offset:{T*512}')
            rdc(o + 8, es)
        for n in range(9):
            j = n >> 1
            if n < 8 and n % 2 == 0:
                sb = j*43008
                if j == 2:
                    k.wvm('c3')
                    for hq in range(2): k(f'ds_write_b128 v26, {vr(vC3+4*hq,4)} offset:{hq*cdma.step}')
                k.wvm(j, extra='lgkmcnt(0)')
                k('s_barrier')
                if tl == 1 and j in (0, 1, 3): k(f's_memrealtime s[{46+2*((j+1)//2)}:{47+2*((j+1)//2)}]')
                for e in range(2):
                    k(f'v_add_u32 v{vRAs+e}, {sb}, v{vRA+e}')
                    k(f'v_add_u32 v{vCAs+e}, {sb if j < 3 else 0}, v{vCA+e}')
            if n < 8: rd(n)
            if n > 0:
                k(f's_waitcnt lgkmcnt({0 if (n == 8 or tl) else min(15, rdc.n + 2)})')
                mm(n-1)
    k('s_bitcmp1_b32 s2, 4')
    k('s_cbranch_scc1 P_gB')
    k('s_mul_i32 s22, s20, 7')
    k('s_add_u32 s22, s22, s16')
    k('s_lshr_b32 s23, s22, 1')
    k('s_lshl_b32 s23, s23, 5')
    k('s_and_b32 s22, s22, 1')
    k('s_lshl_b32 s22, s22, 3')
    k('s_add_u32 s22, s22, s23')
    k(f'v_bfe_u32 v{vt}, v2, 4, 1')
    k(f'v_lshlrev_b32 v{vt}, 2, v{vt}')
    k(f'v_bfe_u32 v{vt+1}, v2, 5, 1')
    k(f'v_lshl_add_u32 v{vt}, v{vt+1}, 1, v{vt}')
    k(f'v_bfe_u32 v{vt+1}, v2, 3, 1')
    k(f'v_add3_u32 v{vt}, v{vt}, v{vt+1}, s22')
    k(f'v_lshlrev_b32 v{vt}, 13, v{vt}')
    k('s_lshl_b32 s22, s19, 9')
    k(f'v_add_u32 v{vt}, s22, v{vt}')
    k(f'v_and_b32 v{vt+1}, 7, v2')
    k(f'v_xor_b32 v{vt+1}, v{vt+1}, v{vG}')
    k(f'v_lshl_add_u32 v{vC}, v{vt+1}, 4, v{vt}')
    k(f'v_xor_b32 v{vt+1}, 4, v{vt+1}')
    k(f'v_lshl_add_u32 v{vC+1}, v{vt+1}, 4, v{vt}')
    k(f'v_add_u32 v{vC+1}, {16*8192}, v{vC+1}')
    k(f'v_lshrrev_b32 v{vt}, 1, v{vI}')
    k(f'v_xor_b32 v{vt}, v{vt}, v{vG}')
    k(f'v_lshlrev_b32 v{vt}, 4, v{vt}')
    k(f'v_lshl_add_u32 v{vt}, v{vI}, 7, v{vt}')
    k(f'v_add_u32 v{vCA}, 28672, v{vt}')
    k(f'v_xor_b32 v{vCA+1}, 64, v{vCA}')
    def rdA(o, es):
        for ct in range(7): k(f'ds_read_b128 {vr(o+4*ct,4)}, v{vCAs+es} offset:{ct*2048}')
    rdA.n = 7
    def dmaA(sb, j):
        for hq in range(2):
            k(f's_add_u32 s34, s32, {sb + hq*1024}')
            k('s_mov_b32 m0, s34')
            k('s_nop 0')
            k.vm(f'buffer_load_dwordx4 v{vC+hq}, s[12:15], s35 offen lds', j)
    dmaA.step = 1024
    body(128, rdA, dmaA)
    k(f's_mov_b32 s22, {f32bits(math.log2(math.e)/16):#x}')
    k(f's_mov_b32 s23, {WTA}')
    k('s_branch P_gepi')
    k.label('P_gB')
    k(f's_mov_b32 s22, {(1<<32)//14 + 1}')
    k(f'v_mul_hi_u32 v{vt}, v0, s22')
    k(f'v_mul_u32_u24 v{vt+1}, 14, v{vt}')
    k(f'v_sub_u32 v{vt+1}, v0, v{vt+1}')
    k(f'v_mul_u32_u24 v{vt}, 896, v{vt}')
    k(f'v_lshl_add_u32 v{vt}, v{vt+1}, 4, v{vt}')
    k('s_mul_i32 s22, s19, 229376')
    k('s_mul_i32 s23, s20, 224')
    k('s_add_u32 s22, s22, s23')
    k(f'v_add_u32 v{vC}, s22, v{vt}')
    k(f'v_add_u32 v{vC+1}, {32*896}, v{vC}')
    k('s_lshl_b32 s32, s16, 10')
    k('s_add_u32 s32, s32, 28672')
    k(f'v_bfe_u32 v{vt}, v2, 2, 2')
    k(f'v_lshl_add_u32 v{vt}, v{vG}, 3, v{vt}')
    k(f'v_mul_u32_u24 v{vt}, 224, v{vt}')
    k(f'v_and_b32 v{vt+1}, 3, v2')
    k(f'v_lshl_add_u32 v{vt}, v{vt+1}, 3, v{vt}')
    k(f'v_add_u32 v{vCA}, 28672, v{vt}')
    k(f'v_add_u32 v{vCA+1}, 7168, v{vCA}')
    def rdB(o, es):
        for ct in range(7):
            for hh in range(2): k(f'ds_read_b64_tr_b16 {vr(o+4*ct+2*hh,2)}, v{vCAs+es} offset:{ct*32+hh*896}')
    rdB.n = 14
    def dmaB(sb, j):
        for hq in range(2):
            k(f's_add_u32 s34, s32, {sb + hq*7168}')
            k('s_mov_b32 m0, s34')
            k('s_nop 0')
            k.vm(f'buffer_load_dwordx4 v{vC+hq}, s[12:15], s35 offen lds', j)
    dmaB.step = 7168
    body(64*896, rdB, dmaB)
    k('s_mov_b32 s22, 1.0')
    k(f's_mov_b32 s23, {WTB}')
    k.label('P_gepi')
    if tl: k('s_memrealtime s[52:53]')
    k('s_mul_i32 s24, s19, 28')
    k('s_mul_i32 s25, s20, 7')
    k('s_add_u32 s24, s24, s25')
    k('s_mul_i32 s24, s24, 14')
    k('s_add_u32 s24, s24, s21')
    k('s_lshl_b32 s24, s24, 10')
    k('s_add_u32 s24, s24, s23')
    k('s_mov_b32 s23, s22')
    for ct in range(7):
        d = vOp + 4*ct
        for T in range(2):
            a = vAcc + 28*T + 4*ct
            k(f'v_pk_mul_f32 {vr(a,2)}, {vr(a,2)}, s[22:23]')
            k(f'v_pk_mul_f32 {vr(a+2,2)}, {vr(a+2,2)}, s[22:23]')
            k(f'v_cvt_pk_bf16_f32 v{d+2*T}, v{a}, v{a+1}')
            k(f'v_cvt_pk_bf16_f32 v{d+2*T+1}, v{a+2}, v{a+3}')
        k(f'buffer_store_dwordx4 {vr(d,4)}, v{vL16}, {WS}, s24 offen ' + OPT['k1st'])
        k('s_add_u32 s24, s24, 14336')
    if OPT['diag']:
        k('s_waitcnt vmcnt(0)')
        k('s_memrealtime s[42:43]')
        k('s_lshl_b32 s44, s2, 3')
        k(f's_add_u32 s44, s44, {STAMP}')
        k('s_waitcnt lgkmcnt(0)')
        k('v_mov_b32 v10, s40'); k('v_mov_b32 v11, s42')
        k(f'buffer_store_dwordx2 v[10:11], off, {WS}, s44')
    if tl:
        k('s_waitcnt vmcnt(0)')
        k('s_memrealtime s[42:43]')
        k('s_lshl_b32 s44, s2, 5')
        k(f's_add_u32 s44, s44, {STAMP + 0xE0000}')
        k('s_waitcnt lgkmcnt(0)')
        k('v_mov_b32 v10, s40'); k('v_mov_b32 v11, s42'); k('v_mov_b32 v12, s46'); k('v_mov_b32 v13, s48')
        k('v_mov_b32 v14, s50'); k('v_mov_b32 v15, s52')
        k(f'buffer_store_dwordx4 v[10:13], off, {WS}, s44')
        k(f'buffer_store_dwordx2 v[14:15], off, {WS}, s44 offset:16')
    k('s_endpgm')
    k.label('P_ln')
    srd(k, 8, 0, 1835008); srd(k, 12, 64, 896)
    srd(k, 28, 8, 7168)
    k('s_mov_b32 s17, s2')
    k('v_lshrrev_b32 v3, 3, v2')
    k('s_lshl_b32 s18, s17, 3')
    k('v_add_u32 v3, s18, v3')
    k('v_and_b32 v4, 7, v2')
    k('v_mul_u32_u24 v5, 896, v3')
    k('v_lshl_add_u32 v5, v4, 4, v5')
    k('v_lshlrev_b32 v6, 4, v4')
    vX, vW, vF = 16, 44, 72
    k('s_waitcnt lgkmcnt(0)')
    k('s_and_b32 s5, s5, 0xffff'); k('s_and_b32 s9, s9, 0xffff'); k('s_and_b32 s13, s13, 0xffff')
    for i in range(7): k(f'buffer_load_dwordx4 {vr(vX+4*i,4)}, v5, s[8:11], 0 offen offset:{i*128}')
    for i in range(7): k(f'buffer_load_dwordx4 {vr(vW+4*i,4)}, v6, s[12:15], 0 offen offset:{i*128}')
    k('v_lshrrev_b32 v7, 4, v3')
    k('v_mul_u32_u24 v7, 14336, v7')
    k('v_lshrrev_b32 v8, 2, v4')
    k('v_lshl_add_u32 v7, v8, 10, v7')
    k('v_and_b32 v8, 15, v3')
    k('v_lshl_add_u32 v9, v8, 4, v7')
    k('v_and_b32 v8, 3, v4')
    k('v_lshl_add_u32 v9, v8, 8, v9')
    k('v_bfe_u32 v8, v3, 1, 2')
    k('v_lshl_add_u32 v10, v8, 6, v7')
    k('v_bfe_u32 v8, v3, 3, 1')
    k('v_lshl_add_u32 v10, v8, 5, v10')
    k('v_and_b32 v8, 1, v3')
    k('v_lshl_add_u32 v10, v8, 4, v10')
    k('v_bfe_u32 v8, v4, 1, 1')
    k('v_lshl_add_u32 v10, v8, 9, v10')
    k('v_and_b32 v8, 1, v4')
    k('v_lshl_add_u32 v10, v8, 3, v10')
    k('s_mov_b32 s20, 0xffff0000')
    k('s_and_b32 s29, s29, 0xffff')
    k('v_bfe_u32 v12, v2, 2, 3')
    k('v_mul_u32_u24 v12, 896, v12')
    k('v_and_b32 v13, 3, v2')
    k('v_lshl_add_u32 v12, v13, 3, v12')
    k('v_lshrrev_b32 v13, 5, v2')
    k('v_lshl_add_u32 v12, v13, 2, v12')
    k('s_lshl_b32 s21, s2, 5')
    k('buffer_load_dword v160, v12, s[28:31], s21 offen')
    if OPT['lnbar']: k('s_barrier')
    def fills():
        k('s_mov_b32 s32, s4'); k('s_mov_b32 s33, s5'); k(f's_mov_b32 s34, {SENT_END - MEM_S}'); k('s_mov_b32 s35, 0x20000')
        k('s_mov_b32 s36, s4'); k('s_mov_b32 s37, s5'); k(f's_mov_b32 s38, {FLG + FLG_SZ}'); k('s_mov_b32 s39, 0x20000')
        k('v_lshlrev_b32 v11, 4, v2')
        NF = -(-(SENT_END - MEM_S - MEM - MEM_T) // (256*1024))
        k(f's_mul_i32 s21, s2, {NF*1024}')
        k(f's_add_u32 s21, s21, {MEM + MEM_T}')
        for r in range(4): k(f'v_mov_b32 v{164+r}, -1')
        for r in range(4): k(f'v_mov_b32 v{168+r}, 0')
        for r in range(NF):
            k(f'buffer_store_dwordx4 v[164:167], v11, s[32:35], s21 offen offset:{(r&3)*1024} ' + OPT['k1ln'])
            if (r&3) == 3: k('s_add_u32 s21, s21, 4096')
        k(f's_mov_b32 s34, {UM + 64*UM_SEG}')
        k('s_lshl_b32 s21, s2, 10')
        k(f's_add_u32 s21, s21, {UM + 63*UM_SEG}')
        k('buffer_store_dwordx4 v[164:167], v11, s[32:35], s21 offen ' + OPT['k1ln'])
        k('s_lshl_b32 s21, s2, 10')
        k(f's_add_u32 s21, s21, {FLG}')
        k('buffer_store_dwordx4 v[168:171], v11, s[36:39], s21 offen ' + OPT['k1ln'])
    NFG = -(-(SENT_END - MEM_S - MEM - MEM_T) // (256*1024))
    late = OPT['k1late']
    if not late: fills()
    k(f's_waitcnt vmcnt({8 if late else 10 + NFG})')
    for d in range(28):
        k(f'v_lshlrev_b32 v{vF+2*d}, 16, v{vX+d}')
        k(f'v_and_b32 v{vF+2*d+1}, s20, v{vX+d}')
    def red8(v):
        for ctl in ('quad_perm:[1,0,3,2]', 'quad_perm:[2,3,0,1]', 'row_half_mirror'):
            k.nop(2)
            k(f'v_add_f32_dpp v{v}, v{v}, v{v} {ctl} row_mask:0xf bank_mask:0xf')
    def rbf(v):
        k(f'v_cvt_pk_bf16_f32 v{v}, v{v}, v{v}')
        k(f'v_and_b32 v{v}, s20, v{v}')
    k(f'v_pk_add_f32 v[12:13], {vr(vF,2)}, {vr(vF+2,2)}')
    for d in range(2, 28): k(f'v_pk_add_f32 v[12:13], v[12:13], {vr(vF+2*d,2)}')
    k('v_add_f32 v12, v12, v13')
    if OPT['lnbar']: k('s_barrier')
    red8(12)
    k(f's_mov_b32 s21, {f32bits(1/448):#x}')
    k('v_mul_f32 v12, s21, v12')
    k('v_mov_b32 v14, 0'); k('v_mov_b32 v15, 0')
    for d in range(28):
        k(f'v_pk_add_f32 {vr(vX,2)}, {vr(vF+2*d,2)}, v[12:13] op_sel_hi:[1,0] neg_lo:[0,1] neg_hi:[0,1]')
        k(f'v_pk_fma_f32 v[14:15], {vr(vX,2)}, {vr(vX,2)}, v[14:15]')
    k('v_add_f32 v14, v14, v15')
    red8(14)
    k('v_mul_f32 v14, s21, v14')
    rbf(14)
    k(f'v_add_f32 v14, {f32bits(1e-5):#x}, v14')
    rbf(14)
    k('v_sqrt_f32 v14, v14')
    k.nop(1)
    rbf(14)
    k('v_rcp_f32 v15, v14')
    rbf(12)
    k(f's_waitcnt vmcnt({0 if late else 2 + NFG})')
    k('v_mov_b32 v128, 0'); k('v_mov_b32 v129, 0')
    vO, vS = vX, 132
    for d in range(28):
        f = vF + 2*d
        k(f'v_pk_add_f32 {vr(f,2)}, {vr(f,2)}, v[12:13] op_sel_hi:[1,0] neg_lo:[0,1] neg_hi:[0,1]')
        k(f'v_cvt_pk_bf16_f32 v130, v{f}, v{f+1}')
        k(f'v_lshlrev_b32 v{f}, 16, v130')
        k(f'v_and_b32 v{f+1}, s20, v130')
        k(f'v_pk_mul_f32 v[130:131], {vr(f,2)}, v[14:15] op_sel:[0,1] op_sel_hi:[1,1]')
        k(f'v_pk_fma_f32 {vr(f,2)}, v[130:131], v[14:15], {vr(f,2)} op_sel_hi:[1,0,1] neg_lo:[1,0,0] neg_hi:[1,0,0]')
        k(f'v_pk_fma_f32 v[130:131], {vr(f,2)}, v[14:15], v[130:131] op_sel:[0,1,0] op_sel_hi:[1,1,1]')
        k(f'v_cvt_pk_bf16_f32 v{vO+d}, v130, v131')
        so = vS + 4*(d>>2) + {0:0, 1:2, 2:1, 3:3}[d&3]
        k(f'v_mov_b32 v{so}, v{vO+d}')
        k(f'v_dot2_f32_bf16 v{128+(d&1)}, v{vO+d}, v{vW+d}, v{128+(d&1)}')
        if OPT['lnbar'] and d in (3, 15): k('s_barrier')
    k(f's_mov_b32 s23, {XNF}'); k(f's_mov_b32 s24, {XNS}')
    for i in range(7):
        k(f'buffer_store_dwordx4 {vr(vO+4*i,4)}, v9, {WS}, s23 offen offset:{(i&1)*2048} ' + OPT['k1ln'])
        k(f'buffer_store_dwordx2 {vr(vS+4*i,2)}, v10, {WS}, s24 offen offset:{(i&1)*2048} ' + OPT['k1ln'])
        k(f'buffer_store_dwordx2 {vr(vS+4*i+2,2)}, v10, {WS}, s24 offen offset:{(i&1)*2048+256} ' + OPT['k1ln'])
        if i & 1:
            k('s_add_u32 s23, s23, 4096'); k('s_add_u32 s24, s24, 4096')
    if late: fills()
    k.nop(2)
    k('v_add_f32 v128, v128, v129')
    red8(128)
    rbf(128)
    k('v_lshlrev_b32 v3, 2, v3')
    k(f's_mov_b32 s22, {RR}')
    k(f'buffer_store_dword v128, v3, {WS}, s22 offen ' + OPT['k1ln'])
    if tl:
        k('s_waitcnt vmcnt(0)')
        k('s_memrealtime s[42:43]')
        k('s_lshl_b32 s44, s2, 5')
        k(f's_add_u32 s44, s44, {STAMP + 0xE0000}')
        k('s_waitcnt lgkmcnt(0)')
        k('v_mov_b32 v10, s42')
        k(f'buffer_store_dword v10, off, {WS}, s44 offset:24')
    k('s_cmp_ge_u32 s2, 28')
    k('s_cbranch_scc1 P_exit')
    k('v_min_u32 v160, -2, v160')
    k('v_lshlrev_b32 v11, 2, v2')
    k('s_lshl_b32 s21, s2, 8')
    k(f's_add_u32 s22, s21, {MEM}')
    k(f's_add_u32 s21, s21, {SENT_END - MEM_S}')
    for r in range(NREP):
        k(f'buffer_store_dword v160, v11, {WS}, s22 offen ' + OPT['k1ln'])
        k(f's_add_u32 s22, s22, {MEM_S}')
    k(f'buffer_store_dword v160, v11, {WS}, s21 offen ' + OPT['k1ln'])
    k.label('P_exit')
    k('s_endpgm')
    return k
```

```python
from chain import *
from prep import srd, f32bits
WS = 's[4:7]'
sH, sBLK, sSEG, sQT, sCG, sJ = 60, 61, 62, 63, 64, 65
vLn, vL16 = 1, 2

def wait_flag(k, off_sgpr, target, vT, name='Lwf', sleep=8):
    lp, dn = k.newlabel(name), k.newlabel(name + 'd')
    k(f's_mov_b32 s{sCNT}, 0')
    k.label(lp)
    k(f'buffer_load_dword v{vT}, off, {WS}, s{off_sgpr} sc1')
    k(f's_add_u32 s{sCNT}, s{sCNT}, 1')
    k(f's_cmp_gt_u32 s{sCNT}, s{sT2}')
    k('s_cbranch_scc1 L_fail')
    k('s_waitcnt vmcnt(0)')
    k(f'v_cmp_le_u32 vcc, {target}, v{vT}')
    k(f's_cbranch_vccnz {dn}')
    k(f's_sleep {sleep}')
    k(f's_branch {lp}')
    k.label(dn)

def wait1(k, off_sgpr, cond, vT, sleep, fast=None):
    lp, dn, l2 = k.newlabel('Lw1'), k.newlabel('Lw1d'), k.newlabel('Lw1f')
    k(f's_cmp_lg_u32 s{sWAVE}, 0')
    k(f's_cbranch_scc1 {dn}')
    k(f's_mov_b32 s{sCNT}, 0')
    k.label(lp)
    k(f'buffer_load_dword v{vT}, off, {WS}, s{off_sgpr} sc1')
    k(f's_add_u32 s{sCNT}, s{sCNT}, 1')
    k(f's_cmp_gt_u32 s{sCNT}, s{sT2}')
    k('s_cbranch_scc1 L_fail')
    k('s_waitcnt vmcnt(0)')
    k(cond)
    k(f's_cbranch_vccnz {dn}')
    if fast:
        k('s_sleep 2')
        k(fast)
        k(f's_cbranch_scc1 {lp}')
    k(f's_sleep {sleep}')
    k(f's_branch {lp}')
    k.label(dn)
    k('s_barrier')

def signal(k, off_sgpr, vT, val=1):
    dn = k.newlabel('Lsg')
    k('s_waitcnt vmcnt(0)')
    k('s_barrier')
    k(f's_cmp_lg_u32 s{sWAVE}, 0')
    k(f's_cbranch_scc1 {dn}')
    k('s_mov_b64 exec, 1')
    k(f'v_mov_b32 v{vT}, {val}')
    k(f'buffer_atomic_add v{vT}, off, {WS}, s{off_sgpr}')
    k('s_mov_b64 exec, -1')
    k.label(dn)

TL = [False]
ACC0 = 32
def acc(lt, tt): return ACC0 + 4*(lt*8 + tt)

def gemm(k, wbase, swap, ntt=8):
    vW = 8
    vXa = 15
    k.vmq = []
    nst = ntt // 4
    k(f's_mul_i32 s41, s{sWAVE}, {14336*nst}')
    k(f's_mul_i32 s40, s{sBLK}, {14336*ntt}')
    k(f's_add_u32 s40, s40, s41')
    k(f's_add_u32 s40, s40, {XNF}')
    k(f's_mul_i32 s42, s{sH}, {28*14336}')
    k(f's_mul_i32 s43, s{sWAVE}, {7*14336}')
    k(f's_add_u32 s42, s42, s43')
    k(f's_add_u32 s42, s42, {wbase}')
    for j in range(14):
        k(f's_add_u32 s{76+j}, s59, {j}')
        k(f's_sub_u32 s43, s{76+j}, 14')
        k(f's_cmp_ge_u32 s{76+j}, 14')
        k(f's_cselect_b32 s{76+j}, s43, s{76+j}')
        k(f's_lshl_b32 s{76+j}, s{76+j}, 10')
    for lt in range(7): k(f'v_add_u32 v{vW+lt}, {lt*14336}, v{vL16}')
    k(f'v_add_u32 v17, 14336, v{vL16}')
    k('s_barrier')
    def stx(j, t):
        k(f's_add_u32 s43, s41, s{76+j}')
        if t: k('s_add_u32 s43, s43, 14336')
        k('s_mov_b32 m0, s43')
        k(f's_add_u32 s44, s40, s{76+j}')
        k.vm(f'buffer_load_dwordx4 v{17 if t else vL16}, {WS}, s44 offen lds', f'x{j}')
    def ldw(j, lt):
        if lt == 0: k(f's_add_u32 s45, s42, s{76+j}')
        k.vm(f'buffer_load_dwordx4 {ar(28*(j%3)+4*lt,4)}, v{vW+lt}, {WS}, s45 offen', f'w{j}')
    def xaddr(j):
        k(f'v_add_u32 v{vXa}, s{76+j}, v{vL16}')
        k(f'v_add_u32 v{vXa+1}, 57344, v{vXa}')
    def ldx(j, tt): k(f'ds_read_b128 {ar(84+32*(j&1)+4*tt,4)}, v{vXa + (tt>>2)} offset:{(tt&3)*14336}')
    for j in range(2):
        for t in range(nst): stx(j, t)
        for lt in range(7): ldw(j, lt)
    for j in (2, 3):
        for t in range(nst): stx(j, t)
    xaddr(0)
    k.wvm('x0')
    k('s_barrier')
    if TL[0] and not swap:
        tstamp(k, 57, 12, 18); k.vmq.append('st')
    for tt in range(ntt): ldx(0, tt)
    for j in range(14):
        if j + 1 < 14: xaddr(j+1)
        k.wvm(f'w{j}', f'x{j+1}', extra='lgkmcnt(0)')
        if j + 1 < 14: k('s_barrier')
        for tt in range(ntt):
            for lt in range(7):
                x, w = ar(84+32*(j&1)+4*tt,4), ar(28*(j%3)+4*lt,4)
                a, b = (w, x) if swap else (x, w)
                c = '0' if j == 0 else vr(acc(lt,tt),4)
                k(f'v_mfma_f32_16x16x32_bf16 {vr(acc(lt,tt),4)}, {a}, {b}, {c}')
                if lt == 1 and j + 1 < 14: ldx(j+1, tt)
                if ntt == 8:
                    if lt == 3 and tt < 2 and j + 4 < 14: stx(j+4, tt)
                    if lt == 5 and tt >= 1 and j + 2 < 14: ldw(j+2, tt-1)
                else:
                    if lt == 3 and tt == 0 and j + 4 < 14: stx(j+4, 0)
                    if lt in (3, 5) and (tt, lt) != (0, 3) and j + 2 < 14: ldw(j+2, 2*tt + (lt == 5) - 1)

def task_U(k, half=False):
    nq = 2 if half else 4
    k.label('T_Uh' if half else 'T_U')
    k(f's_mul_i32 s59, s{sBLK}, 7' if half else f's_min_u32 s59, s{sBLK}, 13')
    gemm(k, WTB, False, 2*nq)
    if TL[0]: tstamp(k, 57, 8, 16)
    k(f's_mul_i32 s40, s{sBLK}, {nq*UF_SEG}')
    k(f's_lshl_b32 s41, s{sH}, 11')
    k(f's_add_u32 s40, s40, s41')
    k(f's_add_u32 s40, s40, {UF}')
    k(f's_mul_i32 s41, s{sWAVE}, 7')
    for lt in range(7):
        k(f's_add_u32 s42, s41, {lt}')
        k(f's_lshr_b32 s43, s42, 1')
        k(f's_lshl_b32 s43, s43, 15')
        k(f's_and_b32 s42, s42, 1')
        k(f's_lshl_b32 s42, s42, 10')
        k(f's_add_u32 s{44+lt}, s40, s43')
        k(f's_add_u32 s{44+lt}, s{44+lt}, s42')
    if OPT['uwin'] and not half:
        lw = k.newlabel('Luw')
        k(f"s_cmp_lt_u32 s{sBLK}, {OPT['uwin']}")
        k(f's_cbranch_scc1 {lw}')
        k(f's_lshl_b32 s40, s{sBLK}, 7')
        k(f"s_add_u32 s40, s40, {flag(F_U) - 128*OPT['uwin']}")
        wait1(k, 40, 'v_cmp_le_u32 vcc, 32, v16', 16, 8)
        k.label(lw)
    for q in range(nq):
        for lt in range(7):
            a, b = acc(lt, 2*q), acc(lt, 2*q+1)
            k(f'v_cvt_pk_bf16_f32 v{a}, v{a}, v{a+1}')
            k(f'v_cvt_pk_bf16_f32 v{a+1}, v{a+2}, v{a+3}')
            k(f'v_cvt_pk_bf16_f32 v{a+2}, v{b}, v{b+1}')
            k(f'v_cvt_pk_bf16_f32 v{a+3}, v{b+2}, v{b+3}')
            k(f'buffer_store_dwordx4 {vr(a,4)}, v{vL16}, {WS}, s{44+lt} offen ' + OPT['ust'])
            k(f's_add_u32 s{44+lt}, s{44+lt}, {UF_SEG}')
    if half: k(f's_mov_b32 s40, {flag(F_U)}')
    else:
        k(f's_lshl_b32 s40, s{sBLK}, 7')
        k(f's_add_u32 s40, s40, {flag(F_U)}')
    signal(k, 40, 3, 1 if half else 2)
    k('s_branch W_next')

def xlane_red(k, op, m, t):
    for sw in ('v_permlane16_swap_b32', 'v_permlane32_swap_b32'):
        k(f'v_mov_b32 v{t}, v{m}')
        k.nop(2)
        k(f'{sw} v{m}, v{t}')
        k(f'{op} v{m}, v{m}, v{t}')

def task_P(k):
    k.label('T_P')
    k(f's_min_u32 s59, s{sBLK}, 13')
    def ptoff():
        k(f's_lshl_b32 s{sSEG}, s{sBLK}, 2')
        k(f's_add_u32 s{sSEG}, s{sSEG}, s{sWAVE}')
        k(f's_mul_i32 s40, s{sSEG}, {PT_SEG}')
        k(f's_add_u32 s40, s40, {PT}')
        k(f's_lshl_b32 s41, s{sH}, 11')
        k(f's_add_u32 s41, s41, s40')
        k(f's_lshr_b32 s42, s{sH}, 1')
        k(f's_lshl_b32 s42, s42, 11')
        k(f's_and_b32 s43, s{sH}, 1')
        k(f's_lshl_b32 s43, s43, 2')
        k(f's_add_u32 s42, s42, s43')
        k(f's_add_u32 s42, s42, s40')
        k(f's_add_u32 s42, s42, 32768')
    ptoff()
    for r in range(4): k(f'v_mov_b32 v{20+r}, -1')
    for qt in range(2):
        k(f'buffer_store_dwordx4 v[20:23], v{vL16}, {WS}, s41 offen offset:{qt*1024} sc1')
        k(f'buffer_store_dword v20, v{vL16}, {WS}, s42 offen offset:{qt*1024} sc1')
        k(f'buffer_store_dword v20, v{vL16}, {WS}, s42 offen offset:{qt*1024+8} sc1')
    gemm(k, WTA, True)
    k(f's_lshl_b32 s40, s{sBLK}, 7')
    k(f's_add_u32 s40, s40, {flag(F_P)}')
    signal(k, 40, 3)
    vE, vO, vG, vI, vMK, vT = 16, 17, 18, 19, 20, 21
    k(f's_mul_i32 s40, s{sWAVE}, 7')
    k(f's_lshr_b32 s40, s40, 1')
    k(f's_lshl_b32 s40, s40, 10')
    k(f's_and_b32 s41, s{sWAVE}, 1')
    k(f's_lshl_b32 s42, s41, 3')
    k(f's_add_u32 s42, s42, s40')
    k(f's_mul_i32 s43, s41, 1016')
    k(f's_add_u32 s43, s43, 8')
    k(f's_add_u32 s43, s43, s40')
    k(f'v_add_u32 v{vE}, s42, v{vL16}')
    k(f'v_add_u32 v{vO}, s43, v{vL16}')
    k(f'v_add_u32 v{vT}, 57344, v{vE}')
    k(f'v_add_u32 v{vT+1}, 57344, v{vO}')
    k('s_barrier')
    for tt in range(8):
        for lt in range(7):
            a = acc(lt, tt)
            k(f'v_cvt_pk_bf16_f32 v{a}, v{a}, v{a+1}')
            k(f'v_cvt_pk_bf16_f32 v{a+1}, v{a+2}, v{a+3}')
            ad = (vE if lt % 2 == 0 else vO) if tt < 4 else (vT if lt % 2 == 0 else vT+1)
            k(f'ds_write_b64 v{ad}, {vr(a,2)} offset:{(tt&3)*14336 + (lt>>1)*1024}')
    k(f's_lshl_b32 s{sSEG}, s{sBLK}, 2')
    k(f's_add_u32 s{sSEG}, s{sSEG}, s{sWAVE}')
    k(f's_mul_i32 s40, s{sSEG}, 28672')
    k(f's_add_u32 s40, s40, {XNS}')
    vKT, vKM, vS = 32, 144, 200
    k(f'v_and_b32 v{vG}, 0x310, v{vL16}')
    k(f'v_bfe_u32 v{vI}, v{vLn}, 1, 2')
    k(f'v_lshl_add_u32 v{vG}, v{vI}, 6, v{vG}')
    k(f'v_bfe_u32 v{vI}, v{vLn}, 3, 1')
    k(f'v_lshl_add_u32 v{vG}, v{vI}, 5, v{vG}')
    k('s_waitcnt lgkmcnt(0)')
    for f in range(28):
        k(f'buffer_load_dwordx4 {vr(vKT+4*f,4)}, v{vG}, {WS}, s40 offen offset:{(f&3)*1024}')
        if (f&3) == 3: k('s_add_u32 s40, s40, 4096')
    k('s_barrier')
    k(f's_mul_i32 s41, s{sWAVE}, 28672')
    k(f'v_add_u32 v{vT}, s41, v{vL16}')
    for f in range(28): k(f'ds_read_b128 {ar(4*f,4)}, v{vT} offset:{f*1024}')
    k(f'v_lshrrev_b32 v{vG}, 4, v{vLn}')
    k(f'v_and_b32 v{vI}, 15, v{vLn}')
    k(f'v_lshrrev_b32 v{vMK}, 1, v{vG}')
    k(f'v_lshlrev_b32 v{vMK}, 8, v{vMK}')
    k(f'v_and_b32 v{vT}, 7, v{vI}')
    k(f'v_lshl_add_u32 v{vMK}, v{vT}, 4, v{vMK}')
    k(f'v_and_b32 v{vT}, 1, v{vG}')
    k(f'v_lshl_add_u32 v{vMK}, v{vT}, 7, v{vMK}')
    k(f'v_lshlrev_b32 v{vT}, 2, v{vG}')
    for r in range(4):
        k(f'v_cmp_gt_u32 s[{44+2*r}:{45+2*r}], v{vT}, v{vI}')
        if r < 3: k(f'v_add_u32 v{vT}, 1, v{vT}')
    k(f'v_cmp_gt_u32 s[52:53], 2, v{vG}')
    St = {(1,0): vS, (1,1): vS+4, (2,1): vS+8, (0,0): vS+12, (0,1): vS+16}
    k('s_waitcnt vmcnt(0) lgkmcnt(0)')
    for ks in range(14):
        for (kt, qt) in ((1,0), (1,1), (2,1)):
            c = '0' if ks == 0 else vr(St[kt,qt],4)
            k(f'v_mfma_f32_16x16x32_bf16 {vr(St[kt,qt],4)}, {vr(vKT+56*(kt-1)+4*ks,4)}, {ar(56*qt+4*ks,4)}, {c}')
    if TL[0]: tstamp(k, 57, 8, vT)
    k(f's_add_u32 s40, s{sSEG}, 63')
    k(f's_and_b32 s40, s40, 63')
    k(f's_mul_i32 s40, s40, {MEM_S}')
    k(f's_add_u32 s40, s40, {MEMX}')
    k(f's_add_u32 s41, s40, 4096')
    lp, dn = k.newlabel('Lpm'), k.newlabel('Lpd')
    k(f's_mov_b32 s{sCNT}, 0')
    k.label(lp)
    for ks in range(14):
        k(f'buffer_load_dwordx4 {vr(vKM+4*ks,4)}, v{vMK}, {WS}, s{40 if ks < 8 else 41} offen offset:{(ks&7)*512} sc1')
    k(f's_add_u32 s{sCNT}, s{sCNT}, 1')
    k(f's_cmp_gt_u32 s{sCNT}, s{sT2}')
    k('s_cbranch_scc1 L_fail')
    k('s_waitcnt vmcnt(0)')
    k(f'v_max3_u32 v{vT}, v{vKM}, v{vKM+1}, v{vKM+2}')
    for r in range(3, 55, 2): k(f'v_max3_u32 v{vT}, v{vT}, v{vKM+r}, v{vKM+r+1}')
    k(f'v_max_u32 v{vT}, v{vT}, v{vKM+55}')
    k(f'v_cmp_eq_u32 vcc, -1, v{vT}')
    k(f's_cbranch_vccz {dn}')
    l2 = k.newlabel('Lpl')
    k.label(l2)
    k('s_sleep 2')
    k(f's_cmp_ge_u32 s{sSEG}, 60')
    k(f's_cbranch_scc1 {l2}f')
    k(f"s_sleep {OPT['msl']}")
    k.label(l2 + 'f')
    k(f'buffer_load_dword v{vT}, v{vMK}, {WS}, s41 offen offset:2560 sc1')
    k(f's_add_u32 s{sCNT}, s{sCNT}, 1')
    k(f's_cmp_gt_u32 s{sCNT}, s{sT2}')
    k('s_cbranch_scc1 L_fail')
    k('s_waitcnt vmcnt(0)')
    k(f'v_cmp_eq_u32 vcc, -1, v{vT}')
    k(f's_cbranch_vccnz {l2}')
    k(f's_branch {lp}')
    k.label(dn)
    if TL[0]: tstamp(k, 57, 12, vT)
    for ks in range(14):
        for qt in range(2):
            c = '0' if ks == 0 else vr(St[0,qt],4)
            k(f'v_mfma_f32_16x16x32_bf16 {vr(St[0,qt],4)}, {vr(vKM+4*ks,4)}, {ar(56*qt+4*ks,4)}, {c}')
    ptoff()
    k(f'v_mov_b32 v{vT+2}, 0xff800000')
    k.nop(2)
    for d in ((1,0), (2,1)):
        for r in range(4):
            k(f'v_cndmask_b32 v{St[d]+r}, v{St[d]+r}, v{vT+2}, s[{44+2*r}:{45+2*r}]')
    for qt in range(2):
        tiles = [St[0,qt], St[1,qt]] + ([St[2,1]] if qt else [])
        regs = [t + r for t in tiles for r in range(4)]
        m, t, l = 24, 26, 28
        k(f'v_max3_f32 v{m}, v{regs[0]}, v{regs[1]}, v{regs[2]}')
        for i in range(3, len(regs) - 1, 2): k(f'v_max3_f32 v{m}, v{m}, v{regs[i]}, v{regs[i+1]}')
        k(f'v_max_f32 v{m}, v{m}, v{regs[-1]}')
        xlane_red(k, 'v_max_f32', m, t)
        for i in range(0, len(regs), 2):
            k(f'v_pk_add_f32 {vr(regs[i],2)}, {vr(regs[i],2)}, {vr(m,2)} op_sel_hi:[1,0] neg_lo:[0,1] neg_hi:[0,1]')
        for r in regs: k(f'v_exp_f32 v{r}, v{r}')
        k.nop(1)
        k(f'v_pk_add_f32 {vr(l,2)}, {vr(regs[0],2)}, {vr(regs[2],2)}')
        k(f'v_add_f32 v{l}, v{l}, v{l+1}')
        k(f'v_cndmask_b32 v{l}, 0, v{l}, s[52:53]')
        k(f'v_mov_b32 v{l+1}, 0')
        for i in range(4, len(regs), 2): k(f'v_pk_add_f32 {vr(l,2)}, {vr(l,2)}, {vr(regs[i],2)}')
        k(f'v_add_f32 v{l}, v{l}, v{l+1}')
        xlane_red(k, 'v_add_f32', l, t)
        k(f'v_rcp_f32 v{l}, v{l}')
        k.nop(1)
        for i in range(0, len(regs), 2):
            k(f'v_pk_mul_f32 {vr(regs[i],2)}, {vr(regs[i],2)}, {vr(l,2)} op_sel_hi:[1,0]')
        o = 220 + 8*qt
        k(f'v_cvt_pk_bf16_f32 v{o}, v{regs[4]}, v{regs[5]}')
        k(f'v_cvt_pk_bf16_f32 v{o+1}, v{regs[6]}, v{regs[7]}')
        if qt:
            k(f'v_cvt_pk_bf16_f32 v{o+2}, v{regs[8]}, v{regs[9]}')
            k(f'v_cvt_pk_bf16_f32 v{o+3}, v{regs[10]}, v{regs[11]}')
        else:
            k(f'v_mov_b64 {vr(o+2,2)}, 0')
        k(f'v_cvt_pk_bf16_f32 v{o+4}, v{regs[0]}, v{regs[1]}')
        k(f'v_cvt_pk_bf16_f32 v{o+5}, v{regs[2]}, v{regs[3]}')
        for r in range(6):
            if qt or r not in (2, 3): k(f'v_min_u32 v{o+r}, -2, v{o+r}')
        k(f'buffer_store_dwordx4 {vr(o,4)}, v{vL16}, {WS}, s41 offen offset:{qt*1024} sc1')
        k(f'buffer_store_dword v{o+4}, v{vL16}, {WS}, s42 offen offset:{qt*1024} sc1')
        k(f'buffer_store_dword v{o+5}, v{vL16}, {WS}, s42 offen offset:{qt*1024+8} sc1')
    k('s_branch W_next')

def rbf(k, v, sMaskHi):
    k(f'v_cvt_pk_bf16_f32 v{v}, v{v}, v{v}')
    k(f'v_and_b32 v{v}, s{sMaskHi}, v{v}')

def task_V(k):
    k.label('T_V')
    vU, vUM, vP, vD, vT = 32, 96, 128, 152, 16
    k(f's_lshr_b32 s{sBLK}, s{sSEG}, 2')
    k(f's_lshl_b32 s40, s{sBLK}, 7')
    k(f's_add_u32 s40, s40, {flag(F_U)}')
    wait1(k, 40, f'v_cmp_le_u32 vcc, 32, v{vT}', vT, 16)
    k(f's_mul_i32 s40, s{sSEG}, {UF_SEG}')
    k(f's_lshl_b32 s41, s{sCG}, 16')
    k(f's_add_u32 s40, s40, s41')
    k(f's_lshl_b32 s41, s{sWAVE}, 13')
    k(f's_add_u32 s40, s40, s41')
    k(f's_add_u32 s40, s40, {UF}')
    for bb in range(2):
        for hp in range(2):
            k(f's_add_u32 s41, s40, {bb*32768 + hp*4096}')
            for f in range(4):
                hh, T = 2*hp + (f>>1), f&1
                k(f'buffer_load_dwordx4 {vr(vU+16*(2*bb+T)+4*hh,4)}, v{vL16}, {WS}, s41 offen offset:{f*1024} sc1')
    srd(k, 68, 0, 1835008); srd(k, 72, 96, 1835008)
    vRow, vOff = vT+1, vT+2
    k(f's_lshl_b32 s42, s{sSEG}, 5')
    k(f's_lshl_b32 s43, s{sQT}, 4')
    k(f's_add_u32 s42, s42, s43')
    k(f'v_and_b32 v{vRow}, 15, v{vLn}')
    k(f'v_add_u32 v{vRow}, s42, v{vRow}')
    k(f'v_mul_u32_u24 v{vOff}, 896, v{vRow}')
    k(f'v_lshrrev_b32 v{vT+3}, 4, v{vLn}')
    k(f's_lshl_b32 s42, s{sCG}, 7')
    k(f's_lshl_b32 s43, s{sWAVE}, 5')
    k(f's_add_u32 s42, s42, s43')
    k(f'v_lshl_add_u32 v{vT+3}, v{vT+3}, 3, s42')
    k(f'v_add_u32 v{vOff}, v{vOff}, v{vT+3}')
    vXo = vT+8
    k(f'v_lshrrev_b32 v{vXo}, 4, v{vT+3}')
    k(f'v_lshlrev_b32 v{vXo}, 8, v{vXo}')
    k(f'v_and_b32 v{vXo+1}, 15, v{vT+3}')
    k(f'v_add_u32 v{vXo}, v{vXo}, v{vXo+1}')
    k(f'v_and_b32 v{vXo+1}, 15, v{vLn}')
    k(f'v_lshl_add_u32 v{vXo}, v{vXo+1}, 4, v{vXo}')
    k(f's_lshl_b32 s43, s{sSEG}, 1')
    k(f's_add_u32 s43, s43, s{sQT}')
    k(f's_mul_i32 s43, s43, 14336')
    k(f's_add_u32 s43, s43, {XNF}')
    k('s_waitcnt lgkmcnt(0)')
    k('s_and_b32 s69, s69, 0xffff'); k('s_and_b32 s73, s73, 0xffff')
    vXr, vXn = vT+4, vT+6
    k(f'buffer_load_dwordx2 {vr(vXr,2)}, v{vOff}, s[68:71], 0 offen')
    k(f'buffer_load_dwordx2 {vr(vXn,2)}, v{vXo}, {WS}, s43 offen')
    k(f's_mov_b32 s40, {flag(F_M2)}')
    wait1(k, 40, f'v_cmp_le_u32 vcc, 28, v{vT}', vT, 16)
    vIx = 168
    k(f's_mov_b32 s40, {IDX}')
    for j in range(4): k(f'buffer_load_dwordx4 {vr(vIx+4*j,4)}, off, {WS}, s40 offset:{16*j} sc1')
    vSel, vSig, vY = 184, 185, 188
    k(f'v_mov_b32 v{vSel}, 0x40000000')
    k(f'v_mov_b32 v{vSig}, 0')
    k('s_waitcnt vmcnt(0)')
    for j in range(8):
        k(f'v_cmp_eq_u32 vcc, v{vIx+j}, v{vRow}')
        k(f'v_mov_b32 v{vT}, {j*1792}')
        k('s_nop 0')
        k(f'v_cndmask_b32 v{vSel}, v{vSel}, v{vT}, vcc')
        k(f'v_cndmask_b32 v{vSig}, v{vSig}, v{vIx+8+j}, vcc')
    k(f'v_lshl_add_u32 v{vSel}, v{vT+3}, 1, v{vSel}')
    for q in range(4):
        k(f's_mov_b32 s40, {UPD + q*14336}')
        k(f'buffer_load_dwordx4 {vr(vY+4*q,4)}, v{vSel}, {WS}, s40 offen sc1')
    k(f's_lshl_b32 s40, s{sBLK}, 7')
    k(f's_add_u32 s40, s40, {flag(F_P)}')
    wait1(k, 40, f'v_cmp_le_u32 vcc, 16, v{vT}', vT, 32)
    k(f's_add_u32 s40, s{sSEG}, 63')
    k(f's_and_b32 s40, s40, 63')
    k(f's_mul_i32 s40, s40, {MEM_S}')
    k(f's_add_u32 s40, s40, {MEMX}')
    wait1(k, 40, f'v_cmp_ne_u32 vcc, -1, v{vT}', vT, OPT['vsl'], f's_cmp_ge_u32 s{sSEG}, 60')
    k(f's_mov_b32 s{sCNT}, 0')
    k(f's_mul_i32 s40, s{sSEG}, {PT_SEG}')
    k(f's_lshl_b32 s41, s{sQT}, 10')
    k(f's_add_u32 s40, s40, s41')
    k(f's_add_u32 s40, s40, {PT}')
    k(f's_lshl_b32 s41, s{sWAVE}, 13')
    k(f's_add_u32 s41, s41, s40')
    k(f's_add_u32 s42, s41, 4096')
    k(f's_lshl_b32 s43, s{sWAVE}, 12')
    k(f's_add_u32 s43, s43, s40')
    k(f's_add_u32 s43, s43, 32768')
    lp, dn = k.newlabel('Lvp'), k.newlabel('Lvq')
    k.label(lp)
    for hh in range(4):
        k(f'buffer_load_dwordx4 {vr(vP+4*hh,4)}, v{vL16}, {WS}, s{41 if hh<2 else 42} offen offset:{(hh&1)*2048} sc1')
    for u in range(2):
        k(f'buffer_load_dwordx4 {vr(vP+16+4*u,4)}, v{vL16}, {WS}, s43 offen offset:{u*2048} sc1')
    k(f's_add_u32 s{sCNT}, s{sCNT}, 1')
    k(f's_cmp_gt_u32 s{sCNT}, s{sT2}')
    k('s_cbranch_scc1 L_fail')
    k('s_waitcnt vmcnt(0)')
    k(f'v_max3_u32 v{vT}, v{vP}, v{vP+1}, v{vP+2}')
    for r in range(3, 23, 2): k(f'v_max3_u32 v{vT}, v{vT}, v{vP+r}, v{vP+r+1}')
    k(f'v_max_u32 v{vT}, v{vT}, v{vP+23}')
    k(f'v_cmp_eq_u32 vcc, -1, v{vT}')
    k(f's_cbranch_vccz {dn}')
    k('s_sleep 2')
    k(f's_cmp_ge_u32 s{sSEG}, 60')
    k(f's_cbranch_scc1 {lp}')
    k(f"s_sleep {OPT['psl']}")
    k(f's_branch {lp}')
    k.label(dn)
    if TL[0]: tstamp(k, 57, 8, vT)
    lastseg = k.newlabel('Lvl')
    k(f's_cmp_eq_u32 s{sSEG}, 63')
    k(f's_cbranch_scc1 {lastseg}')
    k(f's_lshl_b32 s40, s{sSEG}, 7')
    k(f's_add_u32 s40, s40, {flag(F_UM)}')
    wait1(k, 40, f'v_cmp_le_u32 vcc, 14, v{vT}', vT, OPT['usl'], f's_cmp_ge_u32 s{sSEG}, 60')
    k.label(lastseg)
    if TL[0]: tstamp(k, 57, 12, vT)
    k(f's_mul_i32 s40, s{sSEG}, {UM_SEG}')
    k(f's_mul_i32 s41, s{sWAVE}, {2*28672}')
    k(f's_add_u32 s40, s40, s41')
    k(f's_lshl_b32 s41, s{sCG}, 12')
    k(f's_add_u32 s40, s40, s41')
    k(f's_add_u32 s40, s40, {UM}')
    k(f's_add_u32 s41, s40, 28672')
    lp, dn = k.newlabel('Lvu'), k.newlabel('Lvv')
    k.label(lp)
    for u in range(2):
        for ct in range(4):
            k(f'buffer_load_dwordx4 {vr(vUM+8*ct+4*u,4)}, v{vL16}, {WS}, s{40+u} offen offset:{ct*1024} sc1')
    k(f's_cmp_lg_u32 s{sSEG}, 63')
    k(f's_cbranch_scc1 {dn}')
    k(f's_add_u32 s{sCNT}, s{sCNT}, 1')
    k(f's_cmp_gt_u32 s{sCNT}, s{sT2}')
    k('s_cbranch_scc1 L_fail')
    k('s_waitcnt vmcnt(0)')
    k(f'v_max3_u32 v{vT}, v{vUM}, v{vUM+1}, v{vUM+2}')
    for r in range(3, 31, 2): k(f'v_max3_u32 v{vT}, v{vT}, v{vUM+r}, v{vUM+r+1}')
    k(f'v_max_u32 v{vT}, v{vT}, v{vUM+31}')
    k(f'v_cmp_eq_u32 vcc, -1, v{vT}')
    k(f's_cbranch_vccz {dn}')
    k('s_sleep 2')
    k(f's_branch {lp}')
    k.label(dn)
    k('s_mov_b32 s54, 0xffff0000')
    for h in range(2):
        k(f'v_pk_add_f32 {vr(vY+2*h,2)}, {vr(vY+2*h,2)}, {vr(vY+4+2*h,2)}')
        k(f'v_pk_add_f32 {vr(vY+8+2*h,2)}, {vr(vY+8+2*h,2)}, {vr(vY+12+2*h,2)}')
        k(f'v_pk_add_f32 {vr(vY+2*h,2)}, {vr(vY+2*h,2)}, {vr(vY+8+2*h,2)}')
    vB, vXf = vY+4, vY+8
    for r in range(4):
        rbf(k, vY+r, 54)
        k(f'v_mul_f32 v{vY+r}, v{vY+r}, v{vSig}')
        rbf(k, vY+r, 54)
        src = vXn + (r>>1)
        k(f'v_lshlrev_b32 v{vB+r}, 16, v{src}' if r % 2 == 0 else f'v_and_b32 v{vB+r}, s54, v{src}')
        k(f'v_add_f32 v{vB+r}, v{vB+r}, v{vY+r}')
        rbf(k, vB+r, 54)
        src = vXr + (r>>1)
        k(f'v_lshlrev_b32 v{vXf+r}, 16, v{src}' if r % 2 == 0 else f'v_and_b32 v{vXf+r}, s54, v{src}')
    k('s_barrier')
    k('s_waitcnt vmcnt(8)')
    for hh in range(4):
        for ct in range(4):
            c = '0' if hh == 0 else vr(vD+4*ct,4)
            k(f'v_mfma_f32_16x16x32_bf16 {vr(vD+4*ct,4)}, {vr(vU+16*ct+4*hh,4)}, {vr(vP+4*hh,4)}, {c}')
    k('s_waitcnt vmcnt(0)')
    for u in range(2):
        for ct in range(4):
            k(f'v_mfma_f32_16x16x32_bf16 {vr(vD+4*ct,4)}, {vr(vUM+8*ct+4*u,4)}, {vr(vP+16+4*u,4)}, {vr(vD+4*ct,4)}')
    k(f's_lshl_b32 s40, s{sWAVE}, 12')
    k(f'v_add_u32 v{vT}, s40, v{vL16}')
    k(f's_lshl_b32 s40, s{sWAVE}, 10')
    k(f'v_add_u32 v{vT+3}, s40, v{vL16}')
    k.nop(2)
    for ct in range(4): k(f'ds_write_b128 v{vT}, {vr(vD+4*ct,4)} offset:{ct*1024}')
    k('s_waitcnt lgkmcnt(0)')
    k('s_barrier')
    for w in range(4): k(f'ds_read_b128 {vr(vU+4*w,4)}, v{vT+3} offset:{w*4096}')
    k('s_waitcnt lgkmcnt(0)')
    for h in range(2):
        k(f'v_pk_add_f32 {vr(vU+2*h,2)}, {vr(vU+2*h,2)}, {vr(vU+4+2*h,2)}')
        k(f'v_pk_add_f32 {vr(vU+8+2*h,2)}, {vr(vU+8+2*h,2)}, {vr(vU+12+2*h,2)}')
        k(f'v_pk_add_f32 {vr(vU+2*h,2)}, {vr(vU+2*h,2)}, {vr(vU+8+2*h,2)}')
    for r in range(4):
        rbf(k, vU+r, 54)
        k(f'v_add_f32 v{vU+r}, v{vU+r}, v{vXf+r}')
        rbf(k, vU+r, 54)
        k(f'v_add_f32 v{vU+r}, v{vU+r}, v{vB+r}')
    k(f'v_cvt_pk_bf16_f32 v{vU}, v{vU}, v{vU+1}')
    k(f'v_cvt_pk_bf16_f32 v{vU+1}, v{vU+2}, v{vU+3}')
    k(f'buffer_store_dwordx2 {vr(vU,2)}, v{vOff}, s[72:75], 0 offen')
    if OPT['diag']:
        k('s_waitcnt vmcnt(0)')
        k('v_mov_b32 v31, v0')
        diag(k, 6)
        k('v_mov_b32 v0, v31')
    k('s_branch W_next')

def moe_stage(k, srdreg, pitch, soff, lds, vT):
    k(f'v_lshrrev_b32 v{vT}, 3, v0')
    k(f'v_and_b32 v{vT+1}, 7, v0')
    k(f's_mov_b32 s44, {pitch}')
    k(f'v_mul_lo_u32 v{vT+2}, v{vT}, s44')
    k(f'v_lshl_add_u32 v{vT+2}, v{vT+1}, 4, v{vT+2}')
    k(f'v_bfe_u32 v{vT+3}, v{vT}, 1, 1')
    k(f'v_bfe_u32 v{vT+4}, v{vT}, 3, 1')
    k(f'v_lshl_add_u32 v{vT+3}, v{vT+4}, 1, v{vT+3}')
    k(f'v_lshlrev_b32 v{vT+3}, 1, v{vT+3}')
    k(f'v_xor_b32 v{vT+3}, v{vT+3}, v{vT+1}')
    k(f'v_lshlrev_b32 v{vT+3}, 4, v{vT+3}')
    k(f'v_lshl_add_u32 v{vT+3}, v{vT}, 7, v{vT+3}')
    if lds: k(f'v_add_u32 v{vT+3}, {lds}, v{vT+3}')
    k(f's_mov_b32 s44, s{soff}')
    for r in range(14):
        k(f'buffer_load_dwordx4 {vr(32+4*r,4)}, v{vT+2}, s[{srdreg}:{srdreg+3}], s44 offen')
        k(f's_add_u32 s44, s44, {32*pitch}')
    for r in range(14):
        k(f's_waitcnt vmcnt({13-r})')
        k(f'ds_write_b128 v{vT+3}, {vr(32+4*r,4)} offset:{r*4096}')

def moe_mm(k, lds, vA, vD, vAd, vB):
    for ks in range(14):
        for hh in range(2): k(f'ds_read_b64_tr_b16 {vr(vB+4*ks+2*hh,2)}, v{vAd} offset:{lds + ks*4096 + hh*512}')
    k('s_waitcnt lgkmcnt(0)')
    for ks in range(14):
        k(f'v_mfma_f32_16x16x32_bf16 {vr(vD,4)}, {vr(vA+4*ks,4)}, {vr(vB+4*ks,4)}, {"0" if ks == 0 else vr(vD,4)}')

def moe_traddr(k, vAd, vT):
    k(f'v_bfe_u32 v{vAd}, v{vLn}, 2, 2')
    k(f'v_lshrrev_b32 v{vT}, 4, v{vLn}')
    k(f'v_lshl_add_u32 v{vAd}, v{vT}, 3, v{vAd}')
    k(f'v_lshlrev_b32 v{vAd}, 7, v{vAd}')
    k(f'v_and_b32 v{vT}, 3, v{vLn}')
    k(f'v_lshl_add_u32 v{vAd}, v{vT}, 3, v{vAd}')
    k(f'v_bfe_u32 v{vT}, v{vLn}, 3, 1')
    k(f'v_bfe_u32 v{vT+1}, v{vLn}, 4, 1')
    k(f'v_lshl_add_u32 v{vT}, v{vT+1}, 1, v{vT}')
    k(f'v_xor_b32 v{vT}, s{sWAVE}, v{vT}')
    k(f'v_lshl_add_u32 v{vAd}, v{vT}, 5, v{vAd}')

def sigmoid(k, v, t):
    k(f'v_mul_f32 v{t}, {f32bits(-1.4426950408889634):#x}, v{v}')
    k(f'v_exp_f32 v{t}, v{t}')
    k.nop(1)
    k(f'v_add_f32 v{t}, 1.0, v{t}')
    k(f'v_rcp_f32 v{v}, v{t}')
    k.nop(1)

def task_M1(k):
    k.label('T_M1')
    vT = 16
    srd(k, 68, 72, 1605632); srd(k, 72, 80, 1605632)
    vK = 160
    k(f's_mov_b32 s40, {RR}')
    k(f's_add_u32 s41, s40, 4096')
    for j in range(8): k(f'buffer_load_dwordx4 {vr(vK+4*j,4)}, v{vL16}, {WS}, s{40 + (j>>2)} offen offset:{(j&3)*1024}')
    k(f'v_lshlrev_b32 v{vT}, 2, v{vLn}')
    k(f'v_sub_u32 v{vT}, 0xffff, v{vT}')
    k('s_mov_b32 s54, 0xffff0000')
    k('s_waitcnt vmcnt(0) lgkmcnt(0)')
    k('s_and_b32 s69, s69, 0xffff'); k('s_and_b32 s73, s73, 0xffff')
    for j in range(32):
        r = vK + j
        k(f'v_ashrrev_i32 v{vT+1}, 31, v{r}')
        k(f'v_or_b32 v{vT+1}, 0x80000000, v{vT+1}')
        k(f'v_xor_b32 v{r}, v{r}, v{vT+1}')
        k(f'v_subrev_u32 v{vT+1}, {(j>>2)*256 + (j&3)}, v{vT}')
        k(f'v_and_or_b32 v{r}, v{r}, s54, v{vT+1}')
    m, t = vT+2, vT+3
    for it in range(8):
        k(f'v_max3_u32 v{m}, v{vK}, v{vK+1}, v{vK+2}')
        for r in range(3, 31, 2): k(f'v_max3_u32 v{m}, v{m}, v{vK+r}, v{vK+r+1}')
        k(f'v_max_u32 v{m}, v{m}, v{vK+31}')
        for rot in (8, 4, 2, 1):
            k.nop(2)
            k(f'v_max_u32_dpp v{m}, v{m}, v{m} row_ror:{rot} row_mask:0xf bank_mask:0xf')
        xlane_red(k, 'v_max_u32', m, t)
        k.nop(1)
        k(f'v_readfirstlane_b32 s{76+it}, v{m}')
        if it < 7:
            for j in range(32):
                k(f'v_cmp_eq_u32 vcc, v{m}, v{vK+j}')
                k('s_nop 1')
                k(f'v_cndmask_b32 v{vK+j}, v{vK+j}, 0, vcc')
    vKy, vIx = vT+4, vT+5
    k(f'v_mov_b32 v{vKy}, s76')
    k(f'v_and_b32 v{t}, 7, v{vLn}')
    for j in range(1, 8):
        k(f'v_cmp_eq_u32 vcc, {j}, v{t}')
        k(f'v_mov_b32 v{m}, s{76+j}')
        k('s_nop 0')
        k(f'v_cndmask_b32 v{vKy}, v{vKy}, v{m}, vcc')
    k(f'v_and_b32 v{vIx}, 0xffff, v{vKy}')
    k(f'v_sub_u32 v{vIx}, 0xffff, v{vIx}')
    sk = k.newlabel('Lm1s')
    k(f's_or_b32 s40, s{sJ}, s{sWAVE}')
    k('s_cmp_lg_u32 s40, 0')
    k(f's_cbranch_scc1 {sk}')
    k(f'v_and_b32 v{m}, s54, v{vKy}')
    k(f'v_not_b32 v{t}, v{m}')
    k(f'v_ashrrev_i32 v{t}, 31, v{t}')
    k(f'v_or_b32 v{t}, 0x80000000, v{t}')
    k(f'v_xor_b32 v{m}, v{m}, v{t}')
    k(f'v_and_b32 v{m}, s54, v{m}')
    sigmoid(k, m, t)
    rbf(k, m, 54)
    k(f'v_lshlrev_b32 v{t}, 2, v{vLn}')
    k(f's_mov_b32 s40, {IDX}')
    k('s_mov_b64 exec, 0xff')
    k(f'buffer_store_dword v{vIx}, v{t}, {WS}, s40 offen sc1')
    k(f'buffer_store_dword v{m}, v{t}, {WS}, s40 offen offset:32 sc1')
    k('s_mov_b64 exec, -1')
    k.label(sk)
    vA = 96
    k(f'v_lshrrev_b32 v{m}, 4, v{vIx}')
    k(f'v_mul_u32_u24 v{m}, 14336, v{m}')
    k(f'v_and_b32 v{t}, 15, v{vIx}')
    k(f'v_lshl_add_u32 v{m}, v{t}, 4, v{m}')
    k(f'v_lshrrev_b32 v{t}, 4, v{vLn}')
    k(f'v_lshl_add_u32 v{m}, v{t}, 8, v{m}')
    k(f's_mov_b32 s40, {XNF}')
    for ks in range(14):
        k(f'buffer_load_dwordx4 {vr(vA+4*ks,4)}, v{m}, {WS}, s40 offen offset:{(ks&3)*1024}')
        if (ks&3) == 3: k('s_add_u32 s40, s40, 4096')
    k('s_barrier')
    k(f's_lshl_b32 s43, s{sJ}, 7')
    moe_stage(k, 68, 3584, 43, 0, 24)
    moe_stage(k, 72, 3584, 43, 57344, 24)
    vAd = vT
    moe_traddr(k, vAd, vT+1)
    k(f'v_add_u32 v{vT+1}, 57344, v{vAd}')
    k('s_waitcnt lgkmcnt(0)')
    k('s_barrier')
    vG, vUu = 24, 28
    moe_mm(k, 0, vA, vG, vAd, 32)
    moe_mm(k, 0, vA, vUu, vT+1, 160)
    k(f'v_lshrrev_b32 v{vT+2}, 4, v{vLn}')
    k(f'v_mul_u32_u24 v{vT+2}, {4*3584}, v{vT+2}')
    k(f'v_and_b32 v{vT+3}, 15, v{vLn}')
    k(f'v_lshl_add_u32 v{vT+2}, v{vT+3}, 1, v{vT+2}')
    k(f's_lshl_b32 s40, s{sWAVE}, 5')
    k(f's_add_u32 s40, s40, s43')
    k(f's_add_u32 s40, s40, {HB}')
    k.nop(4)
    k('s_mov_b32 exec_hi, 0')
    for r in range(4):
        rbf(k, vG+r, 54); rbf(k, vUu+r, 54)
        k(f'v_mov_b32 v{vT+4}, v{vG+r}')
        sigmoid(k, vT+4, vT+5)
        k(f'v_mul_f32 v{vG+r}, v{vG+r}, v{vT+4}')
        rbf(k, vG+r, 54)
        k(f'v_mul_f32 v{vG+r}, v{vG+r}, v{vUu+r}')
        k(f'v_cvt_pk_bf16_f32 v{vG+r}, v{vG+r}, v{vG+r}')
        k(f'buffer_store_short v{vG+r}, v{vT+2}, {WS}, s40 offen sc1')
        k(f's_add_u32 s40, s40, 3584')
    k('s_mov_b64 exec, -1')
    k(f's_mov_b32 s40, {flag(F_M1)}')
    signal(k, 40, 3)
    k('s_branch W_next')

def task_M2(k):
    k.label('T_M2')
    vT = 16
    srd(k, 68, 88, 1605632)
    k(f's_mul_hi_u32 s45, s{sJ}, {(1<<32)//7 + 1}')
    k(f's_mul_i32 s46, s45, 7')
    k(f's_sub_u32 s46, s{sJ}, s46')
    k(f's_mul_i32 s43, s45, {448*896}')
    k(f's_lshl_b32 s40, s46, 7')
    k(f's_add_u32 s43, s43, s40')
    k('s_waitcnt lgkmcnt(0)')
    k('s_and_b32 s69, s69, 0xffff')
    k('s_barrier')
    moe_stage(k, 68, 896, 43, 0, 24)
    vAd = vT
    moe_traddr(k, vAd, vT+1)
    k(f's_mov_b32 s40, {flag(F_M1)}')
    wait_flag(k, 40, 28, vT+1)
    vA = 96
    k(f'v_and_b32 v{vT+1}, 7, v{vLn}')
    k(f'v_mul_u32_u24 v{vT+1}, 3584, v{vT+1}')
    k(f'v_lshrrev_b32 v{vT+2}, 4, v{vLn}')
    k(f'v_lshl_add_u32 v{vT+1}, v{vT+2}, 4, v{vT+1}')
    k(f's_mul_i32 s40, s45, 896')
    k(f's_add_u32 s40, s40, {HB}')
    for ks in range(14): k(f'buffer_load_dwordx4 {vr(vA+4*ks,4)}, v{vT+1}, {WS}, s40 offen offset:{ks*64} sc1')
    k('s_waitcnt vmcnt(0) lgkmcnt(0)')
    k('s_barrier')
    moe_mm(k, 0, vA, 24, vAd, 32)
    k(f'v_mul_u32_u24 v{vT+2}, {4*1792}, v{vT+2}')
    k(f'v_and_b32 v{vT+3}, 15, v{vLn}')
    k(f'v_lshl_add_u32 v{vT+2}, v{vT+3}, 2, v{vT+2}')
    k(f's_mul_i32 s40, s45, 14336')
    k(f's_lshl_b32 s41, s46, 8')
    k(f's_add_u32 s40, s40, s41')
    k(f's_lshl_b32 s41, s{sWAVE}, 6')
    k(f's_add_u32 s40, s40, s41')
    k(f's_add_u32 s40, s40, {UPD}')
    k('s_mov_b32 exec_hi, 0')
    for r in range(4):
        k(f'buffer_store_dword v{24+r}, v{vT+2}, {WS}, s40 offen sc1')
        k(f's_add_u32 s40, s40, 1792')
    k('s_mov_b64 exec, -1')
    k(f's_mov_b32 s40, {flag(F_M2)}')
    signal(k, 40, 3)
    k('s_branch W_next')

LTK = 163832
Q_U2, Q_M1, Q_M2, Q_P0 = 0, 48, 76, 104
Q_G = Q_P0 + 48
Q_T = Q_G + 13*72
Q_END = Q_T + 3*56
DBG = 's[8:11]'

def tstamp(k, sOff, off, vT=3):
    k('s_memrealtime s[30:31]')
    k('s_waitcnt lgkmcnt(0)')
    k(f'v_mov_b32 v{vT}, s30')
    k(f'buffer_store_dword v{vT}, off, {WS}, s{sOff} offset:{off}')

def worker(k, pref=0, tl=False):
    TL[0] = tl
    def tl_start(base):
        if not tl: return
        k(f's_add_u32 s57, s42, {base}')
        k('s_lshl_b32 s57, s57, 4')
        k(f's_add_u32 s57, s57, {STAMP + 0x40000}')
        tstamp(k, 57, 0)
    k.label('L_worker')
    k(f'v_and_b32 v{vLn}, 63, v0')
    k(f'v_lshlrev_b32 v{vL16}, 4, v{vLn}')
    k(f's_mov_b32 s{sT2}, {POLL_LIMIT}')
    k(f's_mov_b32 s{sSTEP}, 255')
    k(f's_add_u32 s42, s2, {7 - pref}')
    k('s_and_b32 s42, s42, 7')
    k('s_lshl_b32 s42, s42, 5')
    k('s_lshr_b32 s41, s2, 3')
    k('s_add_u32 s42, s42, s41')
    tl_start(1536)
    k(f's_mul_hi_u32 s{sH}, s42, {(1<<32)//14 + 1}')
    k(f's_mul_i32 s41, s{sH}, 14')
    k(f's_sub_u32 s{sBLK}, s42, s41')
    k(f's_cmp_lt_u32 s{sBLK}, 2')
    k('s_cbranch_scc1 T_Uh')
    k(f's_sub_u32 s{sBLK}, s{sBLK}, 1')
    k('s_branch T_U')
    k.label('W_next')
    if tl: tstamp(k, 57, 4)
    k(f's_cmp_lg_u32 s{sWAVE}, 0')
    k('s_cbranch_scc1 W_bc')
    k('s_mov_b64 exec, 1')
    k('v_mov_b32 v3, 1')
    k(f'buffer_atomic_add v3, off, {DBG}, 0 offset:192 sc0')
    k(f'v_mov_b32 v4, {LTK}')
    k('s_waitcnt vmcnt(0)')
    k('ds_write_b32 v4, v3')
    k('s_waitcnt lgkmcnt(0)')
    k('s_mov_b64 exec, -1')
    k.label('W_bc')
    k('s_barrier')
    k(f'v_mov_b32 v4, {LTK}')
    k('ds_read_b32 v3, v4')
    k('s_waitcnt lgkmcnt(0)')
    k('v_readfirstlane_b32 s42, v3')
    k('s_nop 3')
    tl_start(0)
    k(f's_cmp_ge_u32 s42, {Q_END}')
    k('s_cbranch_scc1 L_exit')
    k(f's_cmp_lt_u32 s42, {Q_M1}')
    k('s_cbranch_scc0 W_q1')
    k(f's_and_b32 s{sH}, s42, 15')
    k(f's_lshr_b32 s{sBLK}, s42, 4')
    k(f's_add_u32 s{sBLK}, s{sBLK}, 13')
    k('s_branch T_U')
    k.label('W_q1')
    k(f's_sub_u32 s{sJ}, s42, {Q_M1}')
    k(f's_cmp_lt_u32 s42, {Q_M2}')
    k('s_cbranch_scc1 T_M1')
    k(f's_sub_u32 s{sJ}, s42, {Q_M2}')
    k(f's_cmp_lt_u32 s42, {Q_P0}')
    k('s_cbranch_scc1 T_M2')
    k(f's_cmp_lt_u32 s42, {Q_G}')
    k('s_cbranch_scc0 W_q2')
    k(f's_sub_u32 s42, s42, {Q_P0}')
    k(f's_and_b32 s{sH}, s42, 15')
    k(f's_lshr_b32 s{sBLK}, s42, 4')
    k('s_branch T_P')
    k.label('W_q2')
    k(f's_cmp_lt_u32 s42, {Q_T}')
    k('s_cbranch_scc0 W_q3')
    k(f's_sub_u32 s42, s42, {Q_G}')
    k(f's_mul_hi_u32 s41, s42, {(1<<32)//72 + 1}')
    k('s_mul_i32 s43, s41, 72')
    k('s_sub_u32 s42, s42, s43')
    k(f's_mov_b32 s{sH}, s42')
    k(f's_add_u32 s{sBLK}, s41, 3')
    k('s_cmp_lt_u32 s42, 16')
    k('s_cbranch_scc1 T_P')
    k('s_sub_u32 s42, s42, 16')
    k('s_mul_i32 s41, s41, 56')
    k('s_add_u32 s42, s42, s41')
    k('s_branch W_v')
    k.label('W_q3')
    k(f's_sub_u32 s42, s42, {Q_T - 13*56}')
    k.label('W_v')
    k(f's_mul_hi_u32 s{sSEG}, s42, {(1<<32)//14 + 1}')
    k(f's_mul_i32 s41, s{sSEG}, 14')
    k('s_sub_u32 s42, s42, s41')
    k('s_cmp_ge_u32 s42, 7')
    k(f's_cselect_b32 s{sQT}, 1, 0')
    k(f's_mul_i32 s41, s{sQT}, 7')
    k(f's_sub_u32 s{sCG}, s42, s41')
    k('s_branch T_V')
    task_U(k); task_U(k, True); task_P(k); task_V(k); task_M1(k); task_M2(k)
```

```python
from asmlib import *
from layout import *

class K(Asm):
    def __init__(self):
        super().__init__()
        self.dsq = []; self.cold = []; self.vmq = []
    def ds(self, text, tag=None):
        self(text); self.dsq.append(tag)
    def wds(self, tag):
        if tag not in self.dsq: return
        idx = max(i for i, t in enumerate(self.dsq) if t == tag)
        n = len(self.dsq) - 1 - idx
        assert n <= 15
        self(f's_waitcnt lgkmcnt({n})')
        self.dsq = self.dsq[idx+1:]
    def wds0(self):
        self('s_waitcnt lgkmcnt(0)'); self.dsq = []
    def vm(self, text, tag=None):
        self(text); self.vmq.append(tag)
    def wvm(self, *tags, extra=''):
        idx = max([i for i, t in enumerate(self.vmq) if t in tags], default=-1)
        if idx < 0:
            if extra: self('s_waitcnt ' + extra)
            return
        n = len(self.vmq) - 1 - idx
        assert n <= 63
        self(f's_waitcnt vmcnt({n}) {extra}')
        self.vmq = self.vmq[idx+1:]
    def flush_cold(self):
        for l in self.cold: self(l)
        self.cold = []

SWS, SDBG = 4, 8
sROLE, sWAVE, sSTEP, sMODE, sM, sP, sX, sUM, sCNT = 12, 13, 14, 15, 16, 17, 18, 19, 20
sT0, sT1, sT2 = 21, 22, 23
sMASK8 = 24
sID = 26
sST = 28
sTM = 30
POLL_LIMIT = 400000
NSTEP = 63
OPT = dict(sa='late', sb='early', um='sc1', uf='sc1', sleepA=0, sleepB=0, stampmask=15, rt=0, barA=1, barB=1, prefP=0, pfd=2, pfs=128, upos='early', ud=2, apf=1, nb=7, stag=1, wpos=1, rsp=1, s1pos=0, upre=8, uneed=32, ust='sc1', rot=1, k1st='sc1', uwin=1, k1d=2, ap2=1, stagA=2, gv=0, s0a=1, s0=1, wpf=0, pst='', pld='sc1', qc=0, ninf=0, abar=1, diag=0, lnbar=1, t01=0, ug=8, bdel=0, pc=0, padA=0, padB=0, tail2=1, pf64=1, tw=0, rep=3, prep=1, k1late=0, cpf=0, sm2=0, tm=1, bp2=1, k1pf=0, k1ln='sc1', u0='early', align=0, w64=0, p64=0, kpos='post', kdel=7, nu2=4, bgs=0, vsl=120, usl=120, psl=16, msl=120)

def stamp(k, idx, on):
    if not on or not (OPT['stampmask'] >> idx) & 1: return
    k(('s_memrealtime' if OPT['rt'] else 's_memtime') + f' s[{sTM}:{sTM+1}]')
    k.wds0()
    k(f'v_mov_b32 v0, s{sTM}')
    k(f'buffer_store_dword v0, off, s[{SWS}:{SWS+3}], s{sST} offset:{idx*4}')

def edge(k, on, off):
    if not on or OPT['rt']: return
    lp = k.newlabel('Led')
    k('s_memrealtime s[70:71]')
    k('s_waitcnt lgkmcnt(0)')
    k.label(lp)
    k('s_memrealtime s[72:73]')
    k('s_memtime s[74:75]')
    k('s_waitcnt lgkmcnt(0)')
    k('s_cmp_eq_u32 s72, s70')
    k(f's_cbranch_scc1 {lp}')
    k('v_mov_b32 v0, s72')
    k(f'buffer_store_dword v0, off, s[{SWS}:{SWS+3}], s76 offset:{off}')
    k('v_mov_b32 v0, s74')
    k(f'buffer_store_dword v0, off, s[{SWS}:{SWS+3}], s76 offset:{off+4}')

def diag(k, idx, op='buffer_atomic_umax'):
    if not OPT['diag']: return
    k('s_memrealtime s[70:71]')
    k('s_waitcnt lgkmcnt(0)')
    k('v_mov_b32 v0, s70')
    k(f'{op} v0, off, s[{SDBG}:{SDBG+3}], 0 offset:{4*idx}')

def publish(k, text):
    ls, ld = k.newlabel('Lslow'), k.newlabel('Lpub')
    if isinstance(text, str): text = [text]
    k(f's_cbranch_scc0 {ls}')
    for x in text: k(x + ' ' + OPT['pst'])
    k.label(ld)
    k.cold += [ls + ':'] + [x + ' sc1' for x in text] + [f's_branch {ld}']

def gather_mem(k, vG, vOff0, vOff1, vL0, vL1, vT):
    lp, dn = k.newlabel('Lgm'), k.newlabel('Lgd')
    k(f's_mov_b32 s{sCNT}, 0')
    k.label(lp)
    k(f'buffer_load_dwordx4 {vr(vG,4)}, v{vOff0}, s[{SWS}:{SWS+3}], s{sM} offen sc1')
    k(f'buffer_load_dwordx4 {vr(vG+4,4)}, v{vOff1}, s[{SWS}:{SWS+3}], s{sM} offen sc1')
    k(f's_add_u32 s{sCNT}, s{sCNT}, 1')
    k(f's_cmp_gt_u32 s{sCNT}, s{sT2}')
    k('s_cbranch_scc1 L_fail')
    k('s_waitcnt vmcnt(1)')
    k(f'v_max3_u32 v{vT}, v{vG}, v{vG+1}, v{vG+2}')
    k('s_waitcnt vmcnt(0)')
    k(f'v_max3_u32 v{vT+1}, v{vG+4}, v{vG+5}, v{vG+6}')
    k(f'v_max3_u32 v{vT}, v{vT}, v{vG+3}, v{vG+7}')
    k(f'v_max_u32 v{vT}, v{vT}, v{vT+1}')
    k(f'v_cmp_eq_u32 vcc, -1, v{vT}')
    k(f's_cbranch_vccnz {lp}')
    if vL0 is None: return
    k.ds(f'ds_write_b128 v{vL0}, {vr(vG,4)}')
    k.ds(f'ds_write_b128 v{vL1}, {vr(vG+4,4)}')
    k.wds0()
    k('s_barrier')

def mode_issue(k, vT):
    k(f'v_and_b32 v{vT+1}, 15, v0')
    k(f'v_lshlrev_b32 v{vT+1}, 2, v{vT+1}')
    k(f'buffer_load_dword v{vT}, v{vT+1}, s[{SDBG}:{SDBG+3}], 0 offen offset:32 sc1')

def wait_mode(k, vT, issued=False):
    lp = k.newlabel('Lwm')
    k(f's_mov_b32 s{sCNT}, 0')
    if issued: k(f's_branch {lp}e')
    else:
        k(f'v_and_b32 v{vT+1}, 15, v0')
        k(f'v_lshlrev_b32 v{vT+1}, 2, v{vT+1}')
    k.label(lp)
    k(f'buffer_load_dword v{vT}, v{vT+1}, s[{SDBG}:{SDBG+3}], 0 offen offset:32 sc1')
    k(f's_add_u32 s{sCNT}, s{sCNT}, 1')
    k(f's_cmp_gt_u32 s{sCNT}, s{sT2}')
    k('s_cbranch_scc1 L_fail')
    k('s_waitcnt vmcnt(0)')
    k.label(lp + 'e')
    k(f'v_cmp_eq_u32 vcc, 32, v{vT}')
    for rot in (8, 4, 2, 1):
        k.nop(2)
        k(f'v_add_u32_dpp v{vT}, v{vT}, v{vT} row_ror:{rot} row_mask:0xf bank_mask:0xf')
    k.nop(1)
    k(f'v_readfirstlane_b32 s{sMODE}, v{vT}')
    k('s_nop 3')
    k(f's_cmp_lt_u32 s{sMODE}, 32')
    k(f's_cbranch_scc1 {lp}')
    k('s_cmp_lg_u64 vcc, 0')
    k(f's_cselect_b32 s{sMODE}, 1, 2')

def common_lane_setup(k, vLane, vL16, vG0, vG1, vIdx, vT):
    k(f'v_and_b32 v{vLane}, 63, v0')
    k(f'v_lshlrev_b32 v{vL16}, 4, v{vLane}')
    if vG0 is not None:
        k(f's_lshl_b32 s{sT0}, s{sWAVE}, 10')
        k(f'v_add_u32 v{vG0}, s{sT0}, v{vL16}')
        k(f's_add_u32 s{sT0}, s{sWAVE}, 4')
        k(f's_min_u32 s{sT0}, s{sT0}, 6')
        k(f's_lshl_b32 s{sT0}, s{sT0}, 10')
        k(f'v_add_u32 v{vG1}, s{sT0}, v{vL16}')
    k(f'v_and_b32 v{vT}, 8, v{vLane}')
    k(f'v_mov_b32 v{vIdx}, 0x4444')
    k(f'v_mov_b32 v{vT+1}, 0xeeee')
    k(f'v_cmp_ne_u32 vcc, 0, v{vT}')
    k('s_nop 1')
    k(f'v_cndmask_b32 v{vIdx}, v{vIdx}, v{vT+1}, vcc')
    k(f's_mov_b32 s{sT2}, {POLL_LIMIT}')

def poll2(k, issue, checks, body, name, stag):
    nl = len(issue(0))
    l0, d0, d1, dn = [k.newlabel(name + x) for x in ('lp', 'd0', 'd1', 'dn')]
    k(f's_mov_b32 s{sCNT}, 0')
    for x in issue(0): k(x)
    k(f"s_sleep {stag}")
    k.label(l0)
    for st, dl in ((0, d0), (1, d1)):
        for x in issue(1 - st): k(x)
        if st == 0:
            k(f's_add_u32 s{sCNT}, s{sCNT}, 1')
            k(f's_cmp_gt_u32 s{sCNT}, s{sT2}')
            k('s_cbranch_scc1 L_fail')
        for rel, ins in checks(st):
            k(f's_waitcnt vmcnt({nl + rel})')
            for x in ins: k(x)
        if st == 0: k(f's_cbranch_vccz {d0}')
        else:       k(f's_cbranch_vccnz {l0}x')
    saved = list(k.dsq)
    body(1)
    k(f's_branch {dn}')
    k.label(l0 + 'x')
    k(f's_branch {l0}')
    k.label(d0)
    end = list(k.dsq); k.dsq = saved
    body(0)
    assert k.dsq == end
    k.label(dn)

def role_A(k, stamps=False):
    vLane, vL16, vIdx = 1, 2, 3
    vKey, vKeyS, vMK, vMKS, vQW, vQR, vSW, vSR, vPO, vVal = 4, 5, 6, 7, 8, 9, 10, 11, 12, 13
    vT = 14
    vM = 16
    vQ = 44
    vKT = 72
    vS0 = 48
    vKM = 100
    vX = 114
    vG0, vG1 = 118, 119
    def W(lt, kb):
        i = lt*7 + kb
        return (256 + 8*i) if i < 32 else (120 + 8*(i-32))
    LM, LSP, LQS = 0, 7168, 22528
    SPW = 3536
    k.label('L_roleA')
    k(f's_mov_b32 s{sID}, s{sROLE}')
    common_lane_setup(k, vLane, vL16, vG0, vG1, vIdx, vX)
    k(f's_lshr_b32 s{sT0}, s{sWAVE}, 1')
    k(f's_mul_i32 s{sT0}, s{sT0}, 14')
    k(f's_and_b32 s{sT1}, s{sWAVE}, 1')
    k(f's_add_u32 s33, s{sT0}, 6')
    k(f's_add_u32 s33, s33, s{sT1}')
    k(f's_lshl_b32 s34, s{sT1}, 3')
    k(f's_add_u32 s32, s{sT0}, s34')
    k(f's_mul_i32 s35, s{sID}, {28*14*1024}')
    k(f's_add_u32 s35, s35, {WTA}')
    k(f's_mul_i32 s36, s32, {14*1024}')
    k(f's_add_u32 s36, s36, s35')
    k(f's_mul_i32 s37, s33, {14*1024}')
    k(f's_add_u32 s37, s37, s35')
    for j in range(7):
        k(f's_add_u32 s{50+j}, s{sWAVE}, {(4*j) % 7}')
        k(f's_sub_u32 s40, s{50+j}, 7')
        k(f's_cmp_ge_u32 s{50+j}, 7')
        k(f's_cselect_b32 s{50+j}, s40, s{50+j}')
        k(f's_lshl_b32 s{50+j}, s{50+j}, 10')
    k(f'v_add_u32 v{vG1}, s51, v{vL16}')
    t = vX
    g, i = vQ, vQ+1
    k(f'v_lshrrev_b32 v{g}, 4, v{vLane}')
    k(f'v_and_b32 v{i}, 15, v{vLane}')
    k(f's_lshr_b32 s38, s32, 1')
    k(f's_lshr_b32 s39, s33, 1')
    k(f's_lshl_b32 s40, s38, 10')
    k(f'v_add_u32 v{vKey}, s40, v{vL16}')
    k(f's_lshl_b32 s40, s39, 10')
    k(f's_add_u32 s40, s40, s34')
    k(f'v_add_u32 v{vKeyS}, s40, v{vL16}')
    k(f'v_lshrrev_b32 v{t}, 1, v{g}')
    k(f'v_lshlrev_b32 v{t}, 8, v{t}')
    k(f'v_lshrrev_b32 v{t+1}, 2, v{i}')
    k(f'v_lshl_add_u32 v{t}, v{t+1}, 5, v{t}')
    k(f'v_and_b32 v{t+1}, 1, v{i}')
    k(f'v_lshl_add_u32 v{t}, v{t+1}, 4, v{t}')
    k(f'v_and_b32 v{t+1}, 1, v{g}')
    k(f'v_lshlrev_b32 v{t+1}, 7, v{t+1}')
    k(f'v_add_u32 v{t}, v{t}, v{t+1}')
    k(f's_lshl_b32 s40, s38, 9')
    k(f'v_add_u32 v{vMK}, s40, v{t}')
    k(f's_lshl_b32 s40, s39, 9')
    k(f's_add_u32 s40, s40, s34')
    k(f'v_add_u32 v{vMKS}, s40, v{t}')
    k(f's_lshl_b32 s40, s{sWAVE}, 10')
    k(f's_add_u32 s40, s40, {LQS}')
    k(f'v_lshrrev_b32 v{t}, 2, v{i}')
    k(f'v_add_u32 v{t}, v{t}, v{g}')
    k(f'v_and_b32 v{t}, 3, v{t}')
    k(f'v_lshlrev_b32 v{t}, 3, v{t}')
    k(f'v_lshlrev_b32 v{t+1}, 5, v{i}')
    k(f'v_add3_u32 v{vQW}, v{t}, v{t+1}, s40')
    k(f'v_lshrrev_b32 v{t}, 2, v{vLane}')
    k(f'v_lshlrev_b32 v{t}, 5, v{t}')
    k(f'v_add_u32 v{t+1}, v{vLane}, v{g}')
    k(f'v_and_b32 v{t+1}, 3, v{t+1}')
    k(f'v_lshlrev_b32 v{t+1}, 3, v{t+1}')
    k(f'v_add3_u32 v{vQR}, v{t}, v{t+1}, s40')
    k(f's_mul_i32 s40, s{sWAVE}, {SPW}')
    k(f's_add_u32 s40, s40, {LSP}')
    k(f'v_lshlrev_b32 v{t}, 4, v{i}')
    k(f'v_mul_u32_u24 v{t+1}, 272, v{g}')
    k(f'v_add3_u32 v{vSW}, v{t}, v{t+1}, s40')
    if OPT['ninf']:
        k(f'v_min_u32 v{t}, 12, v{i}')
        k(f'v_lshrrev_b32 v{t+1}, 1, v{i}')
        k(f'v_cmp_eq_u32 vcc, 1, v{t+1}')
        k('s_nop 1')
        k(f'v_cndmask_b32 v{t}, v{t}, 12, vcc')
        k(f'v_mov_b32 v{vS0}, 0xff800000')
        for r in range(1, 4): k(f'v_mov_b32 v{vS0+r}, v{vS0}')
        k(f'v_lshlrev_b32 v{t+1}, 4, v{i}')
        k(f'v_add_u32 v{t+1}, s40, v{t+1}')
        k(f'ds_write_b128 v{t+1}, {vr(vS0,4)} offset:{12*272}')
    else:
        k(f'v_subrev_u32 v{t}, 12, v{i}')
        k(f'v_cmp_le_u32 vcc, 12, v{i}')
        k('s_nop 1')
        k(f'v_cndmask_b32 v{t}, v{i}, v{t}, vcc')
    k(f'v_lshrrev_b32 v{t+1}, 5, v{vLane}')
    k(f's_lshl_b32 s40, s{sWAVE}, 1')
    k(f'v_add_u32 v{t+1}, s40, v{t+1}')
    k(f'v_and_b32 v{t+2}, 1, v{g}')
    k(f'v_lshl_add_u32 v{t+3}, v{t+2}, 3, v{t+1}')
    k(f'v_lshlrev_b32 v{t+3}, 4, v{t+3}')
    k(f'v_mul_u32_u24 v{vSR}, 272, v{t}')
    k(f'v_add_u32 v{vSR}, v{vSR}, v{t+3}')
    if LSP: k(f'v_add_u32 v{vSR}, {LSP}, v{vSR}')
    k(f's_and_b32 s42, s{sID}, 1')
    k(f's_lshl_b32 s42, s42, 3')
    k(f'v_add_u32 v{t+1}, s42, v{t+1}')
    k(f'v_and_b32 v{t}, 3, v{i}')
    k(f'v_lshlrev_b32 v{t}, 2, v{t}')
    k(f'v_lshl_add_u32 v{t+1}, v{t+1}, 4, v{t}')
    k(f'v_lshl_add_u32 v{vPO}, v{t+2}, 8, v{t+1}')
    k(f'v_bfe_u32 v{t}, v{i}, 3, 1')
    k(f'v_lshl_add_u32 v{vPO}, v{t}, 9, v{vPO}')
    k(f's_lshr_b32 s41, s{sID}, 1')
    k(f's_lshl_b32 s40, s41, 10')
    k(f'v_add_u32 v{vPO}, s40, v{vPO}')
    k(f'v_mov_b32 v{t+3}, 0x40000000')
    if PMD:
        k(f's_lshl_b32 s40, s41, 9')
        k(f's_add_u32 s40, s40, 8192')
        k(f'v_lshl_add_u32 v{t}, v{t+2}, 8, v{t+1}')
        k(f'v_add_u32 v{t}, s40, v{t}')
    else:
        k(f's_lshl_b32 s40, s41, 8')
        k(f's_add_u32 s40, s40, 8192')
        k(f'v_add_u32 v{t}, s40, v{t+1}')
        k(f'v_cmp_ne_u32 vcc, 0, v{t+2}')
        k('s_nop 1')
        k(f'v_cndmask_b32 v{t}, v{t}, v{t+3}, vcc')
    k(f'v_cmp_le_u32 vcc, 4, v{i}')
    k('s_nop 1')
    k(f'v_cndmask_b32 v{vPO}, v{t}, v{vPO}, vcc')
    k(f'v_cmp_le_u32 vcc, 12, v{i}')
    k('s_nop 1')
    k(f'v_cndmask_b32 v{vPO}, v{vPO}, v{t+3}, vcc')
    k(f'v_mov_b32 v{vVal}, 1.0')
    k(f'v_cmp_le_u32 vcc, v{t+3}, v{vPO}')
    k('s_nop 1')
    k(f'v_cndmask_b32 v{vVal}, v{vVal}, 0, vcc')
    if PMD:
        k(f'v_and_b32 v{t}, 28, v{vLane}')
        k(f'v_cmp_eq_u32 vcc, 16, v{t}')
        k('s_nop 1')
        k(f'v_cndmask_b32 v{vVal}, v{vVal}, 0, vcc')
    k(f's_mov_b32 s{sSTEP}, 0')
    k(f"s_lshr_b32 s{sM}, s{sID}, {3 if OPT['rep'] == 3 else 2}")
    k(f"s_mul_i32 s{sM}, s{sM}, {MEM_S if NREP == 3 else 0}")
    k(f's_add_u32 s{sM}, s{sM}, {MEM}')
    k(f's_mov_b32 s{sP}, {PB}')
    k(f's_mov_b32 s{sX}, {XNS}')
    k(f's_lshl_b32 s40, s{sID}, 2')
    k(f's_add_u32 s40, s40, s{sWAVE}')
    k(f's_mul_i32 s40, s40, 7168')
    k(f'v_min_u32 v{vX}, {55*16}, v{vL16}')
    k(f'v_lshlrev_b32 v{vX}, 3, v{vX}')
    k(f'v_add_u32 v{vX}, s40, v{vX}')
    k(f"s_mov_b32 s{sUM}, {UF + OPT['ud']*UF_SEG}")
    WS = f's[{SWS}:{SWS+3}]'
    def key_list():
        L = []
        for p in range(3):
            L.append(f'buffer_load_dwordx4 {vr(vKT+8*p,4)}, v{vKey}, {WS}, s{sX} offen offset:{p*1024}')
            L.append(f'buffer_load_dwordx4 {vr(vKT+8*p+4,4)}, v{vKey}, {WS}, s46 offen offset:{p*1024}')
        L.append(f'buffer_load_dwordx2 {vr(vKT+24,2)}, v{vKeyS}, {WS}, s{sX} offen')
        L.append(f'buffer_load_dwordx2 {vr(vKT+26,2)}, v{vKeyS}, {WS}, s46 offen')
        return L
    def load_flag():
        k(f's_add_u32 s{sT0}, s{sSTEP}, {1 + OPT["ud"]}')
        k(f's_lshr_b32 s{sT0}, s{sT0}, 2')
        k(f's_lshl_b32 s{sT0}, s{sT0}, 7')
        k(f's_add_u32 s{sT0}, s{sT0}, {flag(F_U)}')
        k(f'buffer_load_dword v{vX+2}, off, {WS}, s{sT0} sc1')
    def load_keys(keys=True):
        if keys:
            for x in key_list(): k(x)
        k(f's_add_u32 s{sX}, s{sX}, 28672')
        k(f's_add_u32 s46, s{sX}, 14336')
    if OPT['tm']:
        k(f'v_lshlrev_b32 v{vQ+2}, 2, v{g}')
        k(f'v_sub_u32 v{vQ+2}, v{i}, v{vQ+2}')
        k(f'v_and_b32 v{vQ+3}, 1, v{vQ+2}')
        k(f'v_lshlrev_b32 v{vQ+3}, 4, v{vQ+3}')
        k(f'v_mov_b32 v{vLane}, 0x3f80')
        k(f'v_lshlrev_b32 v{vLane}, v{vQ+3}, v{vLane}')
        k(f'v_cmp_gt_u32 vcc, 4, v{vQ+2}')
        k(f'v_cmp_lt_u32 s[48:49], 1, v{vQ+2}')
        k('s_nop 0')
        k(f'v_cndmask_b32 v{vLane}, 0, v{vLane}, vcc')
    k(f's_add_u32 s46, s{sX}, 14336')
    def Mx(lt, kb, src):
        return f'v_smfmac_f32_16x16x64_bf16 {vr(vQ+4*lt,4)}, {vr(src,4)}, {xr(W(lt,kb),8)}, v{vIdx}'
    def M(lt, kb): return Mx(lt, kb, vM+4*kb)
    def cvt(lt, h):
        k(f'v_cvt_pk_bf16_f32 v{vQ+4*lt+h}, v{vQ+4*lt+2*h}, v{vQ+4*lt+2*h+1}')
    def wr(lt):
        k.ds(f'ds_write_b64 v{vQW}, {vr(vQ+4*lt,2)} offset:{512*(lt&1)}')
    def tr(p, h):
        k.ds(f'ds_read_b64_tr_b16 {vr(vQ+8*p+2*h,2)}, v{vQR} offset:{512*h}', f'q{p}')
    vSt = [vM, vM+4, vQ+4]
    def S(p, t):
        q = vQ + 8*p
        c = '0' if p == 0 else vr(vSt[t],4)
        if p < 3:
            a = vKM+4*p if t == 0 else vKT+8*p+4*(t-1)
            k(f'v_mfma_f32_16x16x32_bf16 {vr(vSt[t],4)}, {vr(a,4)}, {vr(q,4)}, {c}')
        else:
            a = vKM+12 if t == 0 else vKT+24+2*(t-1)
            k(f'v_mfma_f32_16x16x16_bf16 {vr(vSt[t],4)}, {vr(a,2)}, {vr(q,2)}, {c}')
    load_keys()
    S0 = OPT['s0a']
    if S0:
        for j in range(7):
            k(f's_add_u32 s40, s{50+j}, {MEM}')
            k(f'buffer_load_dwordx4 {vr(vM+4*j,4)}, v{vL16}, {WS}, s40 offen')
        for p in range(3): k(f'buffer_load_dwordx4 {vr(vKM+4*p,4)}, v{vMK}, {WS}, s{sM} offen offset:{p*512}')
        k(f'buffer_load_dwordx2 {vr(vKM+12,2)}, v{vMKS}, {WS}, s{sM} offen')
        for r in range(0, 28, 2): k(f'v_mov_b64 {vr(vQ+r,2)}, 0')
    def q0(lt, n):
        k(f's_waitcnt vmcnt({n})')
        for j in range(7):
            k(M(lt, j))
            if lt >= 1 and j == 3: cvt(lt-1, 0); cvt(lt-1, 1); wr(lt-1)
            if lt >= 1 and j == 4 and (lt-1) & 1: tr((lt-1)//2, 0); tr((lt-1)//2, 1)
    k(f's_mov_b32 s{sSTEP}, -1')
    for lt in range(7):
        sb = 36 if lt < 6 else 37
        if lt == 5: mode_issue(k, vT)
        if lt == 6: load_flag()
        for j in range(7):
            k(f's_lshl_b32 s40, s{50+j}, 1')
            k(f's_add_u32 s40, s40, s{sb}')
            for f in range(2):
                k(f'buffer_load_dwordx4 {xr(W(lt, j) + 4*f,4)}, v{vL16}, s[{SWS}:{SWS+3}], s40 offen offset:{f*1024}')
        k(f's_add_u32 s{sb}, s{sb}, 14336')
        if S0 and lt >= 2: q0(lt-2, 28)
        else: k('s_waitcnt vmcnt(40)')
    k(f's_mov_b32 s{sSTEP}, 0')
    if S0: q0(5, 14)
    else: k('s_waitcnt vmcnt(14)')
    wait_mode(k, vT, True)
    k(f'v_mov_b32 v{vX+3}, 0x40000000')
    if stamps: k(f's_add_u32 s76, s{sST}, 0x20000')
    edge(k, stamps, 0)
    diag(k, 4)
    if S0:
        k(f's_add_u32 s47, s{sP}, {PB_S}')
        q0(6, 0)
        stamp(k, 0, stamps)
        k(f'v_cmp_le_u32 vcc, {OPT["uneed"]}, v{vX+2}')
        k.nop(2)
        k(f'v_cndmask_b32 v{vX+1}, v{vX+3}, v{vX}, vcc')
        k(f'buffer_load_dword v0, v{vX+1}, {WS}, s{sUM} offen sc1')
        k.nop(4)
        cvt(6, 0); cvt(6, 1); wr(6); tr(3, 0)
        k.wds0()
        for p in range(4):
            for t in range(3): S(p, t)
        k('s_branch L_A_mid')
    k('s_branch L_A_loop')
    k('.p2align 8')
    for _ in range(OPT['padA']): k('s_nop 0')
    k.label('L_A_loop')
    for r in range(0, 28, 2): k(f'v_mov_b64 {vr(vQ+r,2)}, 0')
    k(f's_add_u32 s47, s{sP}, {PB_S}')
    vAd = vKM + 6
    for j in range(2, 7): k(f'v_add_u32 v{vAd+j}, s{50+j}, v{vL16}')
    mk = [f'ds_read_b128 {vr(vKM+4*p,4)}, v{vMK} offset:{LM+p*512}' for p in range(3)]
    mk.append(f'ds_read_b64 {vr(vKM+12,2)}, v{vMKS} offset:{LM}')
    sets = [vM, vKM]
    def issue(st):
        return [f'buffer_load_dwordx4 {vr(sets[st],4)}, v{vG0}, {WS}, s{sM} offen ' + OPT['pld'],
                f'buffer_load_dwordx4 {vr(sets[st]+4,4)}, v{vG1}, {WS}, s{sM} offen ' + OPT['pld']]
    def checks(st):
        G = sets[st]
        if OPT['qc']: return [(0, [f'v_max_u32 v{vT}, v{G+3}, v{G+7}', f'v_cmp_eq_u32 vcc, -1, v{vT}'])]
        return [(1, [f'v_max3_u32 v{vT}, v{G}, v{G+1}, v{G+2}']),
                (0, [f'v_max3_u32 v{vT+1}, v{G+4}, v{G+5}, v{G+6}', f'v_max3_u32 v{vT}, v{vT}, v{G+3}, v{G+7}',
                     f'v_max_u32 v{vT}, v{vT}, v{vT+1}', f'v_cmp_eq_u32 vcc, -1, v{vT}'])]
    NB = OPT['nb']
    def body(st):
        G = sets[st]
        stamp(k, 0, stamps)
        if stamps and OPT['pc']:
            k(f'v_mov_b32 v0, s{sCNT}')
            k(f'buffer_store_dword v0, off, s[{SWS}:{SWS+3}], s{sST} offset:12')
        wrs = [f'ds_write_b128 v{vG0}, {vr(G,4)} offset:{LM}', f'ds_write_b128 v{vG1}, {vr(G+4,4)} offset:{LM}']
        seq = [(lt, j) for j in range(2) for lt in range(7)]
        for n, (lt, j) in enumerate(seq):
            k(Mx(lt, j, G + 4*j))
            if OPT['w64'] == 0 and n < 2: k.ds(wrs[n])
            if OPT['w64'] == 1 and n < 4: k.ds(f'ds_write_b64 v{vG0 if n < 2 else vG1}, {vr(G+2*n,2)} offset:{LM + 8*(n&1)}')
            if OPT['qc']:
                if n == 2: k(f'v_max3_u32 v{vT}, v{G}, v{G+1}, v{G+2}')
                if n == 3: k(f'v_max3_u32 v{vT+1}, v{G+4}, v{G+5}, v{G+6}')
                if n == 4: k(f'v_max_u32 v{vT}, v{vT}, v{vT+1}')
                if n == 5: k(f'v_cmp_eq_u32 vcc, -1, v{vT}')
                if n == 6: k('s_cbranch_vccnz L_A_redo')
                if n == 11: k(f'v_cmp_le_u32 vcc, {OPT["uneed"]}, v{vX+2}')
                if n == 12: k('s_nop 0'); k(f'v_cndmask_b32 v{vX+1}, v{vX+3}, v{vX}, vcc')
            else:
                if n == 4: k(f'v_cmp_le_u32 vcc, {OPT["uneed"]}, v{vX+2}')
                if n == 5: k('s_nop 0'); k(f'v_cndmask_b32 v{vX+1}, v{vX+3}, v{vX}, vcc')
            if n == NB - 1:
                k.wds0(); k('s_barrier')
            if NB - 1 <= n < NB + 4:
                jj = n - (NB - 1) + 2
                k.ds(f'ds_read_b128 {vr(vM+4*jj,4)}, v{vAd+jj} offset:{LM}', f'm{jj}')
            if n == (13 if OPT['qc'] else NB + 5): k(f'buffer_load_dword v0, v{vX+1}, {WS}, s{sUM} offen sc1')
    if OPT['qc']: k.cold += ['L_A_redo:', 's_waitcnt vmcnt(0) lgkmcnt(0)', 's_nop 15', 's_branch L_A_loop']
    if stamps and OPT['pc']: stamp(k, 1, True)
    if OPT['ap2']:
        poll2(k, issue, checks, body, 'Lga', OPT['stagA'])
    else:
        gather_mem(k, vM, vG0, vG1, None, None, vT)
        body(0)
    for lt in range(7):
        for j in range(2, 7):
            if lt == 0: k.wds(f'm{j}')
            k(M(lt, j))
            if OPT['tm'] and lt == 1 and j == 2: k(f'v_cndmask_b32 v{vT}, v{vLane}, 0, s[48:49]')
            if OPT['tm'] and lt == 1 and j == 3: k(f'v_cndmask_b32 v{vT+1}, 0, v{vLane}, s[48:49]')
            if lt == 0 and j == 6:
                k('s_waitcnt vmcnt(1)')
                for x in mk: k.ds(x, 'mk')
            if lt >= 1:
                if j == 4: cvt(lt-1, 0)
                if j == 5: cvt(lt-1, 1)
                if j == 6:
                    wr(lt-1)
                    if (lt-1) & 1: tr((lt-1)//2, 0); tr((lt-1)//2, 1)
        if lt == (4 if OPT['s1pos'] == 0 else 3):
            k.wds('q0')
            for t in range(3): S(0, t)
        if lt == 5 and OPT['s1pos'] == 1:
            k.wds('q1')
            for t in range(3): S(1, t)
    if OPT['s1pos'] == 0:
        k.wds('q1')
        for t in range(3): S(1, t)
        cvt(6, 0); cvt(6, 1)
        if OPT['tm']:
            k.wds('q2')
            k.nop(1)
            k(f'v_mfma_f32_16x16x16_bf16 {vr(vQ+12,4)}, {vr(vQ+24,2)}, {vr(vT,2)}, 0')
            for t in range(3): S(2, t)
            k(f'v_cvt_pk_bf16_f32 v{vQ+24}, v{vQ+12}, v{vQ+13}')
            k(f'v_cvt_pk_bf16_f32 v{vQ+25}, v{vQ+14}, v{vQ+15}')
            k.nop(2)
        else:
            wr(6); tr(3, 0)
            k.wds('q2')
            for t in range(3): S(2, t)
    else:
        k.nop(8)
        cvt(6, 0); cvt(6, 1); wr(6); tr(3, 0)
        k.wds('q2')
        for t in range(3): S(2, t)
    k.wds('q3')
    for t in range(3): S(3, t)
    k.label('L_A_mid')
    for t in range(3):
        k.nop(2 if (t == 0 or OPT['p64'] == 0) else 1)
        if OPT['p64'] == 0: k.ds(f'ds_write_b128 v{vSW}, {vr(vSt[t],4)} offset:{1088*t}')
        else:
            k.ds(f'ds_write_b64 v{vSW}, {vr(vSt[t],2)} offset:{1088*t}')
            k.ds(f'ds_write_b64 v{vSW}, {vr(vSt[t]+2,2)} offset:{1088*t+8}')
    k.wds0()
    k('s_barrier')
    stamp(k, 1, stamps and not OPT['pc'])
    mark = len(k.lines)
    R = vQ+8
    for w in range(4): k.ds(f'ds_read_b128 {vr(R+4*w,4)}, v{vSR} offset:{w*SPW}', f'r{w}')
    k(f's_cmp_eq_u32 s{sMODE}, 1')
    k.wds('r1')
    k(f'v_pk_add_f32 {vr(R,2)}, {vr(R,2)}, {vr(R+4,2)}')
    k(f'v_pk_add_f32 {vr(R+2,2)}, {vr(R+2,2)}, {vr(R+6,2)}')
    k.wds('r2')
    k(f'v_pk_add_f32 {vr(R,2)}, {vr(R,2)}, {vr(R+8,2)}')
    k(f'v_pk_add_f32 {vr(R+2,2)}, {vr(R+2,2)}, {vr(R+10,2)}')
    k.wds('r3')
    k(f'v_pk_add_f32 {vr(R,2)}, {vr(R,2)}, {vr(R+12,2)}')
    k(f'v_pk_add_f32 {vr(R+2,2)}, {vr(R+2,2)}, {vr(R+14,2)}')
    k.nop(2)
    k(f'v_permlane16_swap_b32 v{R}, v{R+2}')
    k(f'v_permlane16_swap_b32 v{R+1}, v{R+3}')
    X = R+4; m = R+6; t = R+8
    k(f'v_pk_add_f32 {vr(X,2)}, {vr(R,2)}, {vr(R+2,2)}')
    def allred(op, m):
        for rot in (8, 4, 2, 1):
            k.nop(2)
            k(f'{op}_dpp v{m}, v{m}, v{m} row_ror:{rot} row_mask:0xf bank_mask:0xf')
        k(f'v_mov_b32 v{t}, v{m}')
        k.nop(2)
        k(f'v_permlane16_swap_b32 v{m}, v{t}')
        k(f'{op} v{m}, v{m}, v{t}')
    if OPT['sm2'] == 0:
        k(f'v_max_f32 v{m}, v{X}, v{X+1}')
        allred('v_max_f32', m)
        k(f'v_pk_add_f32 {vr(X,2)}, {vr(X,2)}, {vr(m,2)} op_sel_hi:[1,0] neg_lo:[0,1] neg_hi:[0,1]')
        k(f'v_exp_f32 v{X}, v{X}')
        k(f'v_exp_f32 v{X+1}, v{X+1}')
        k.nop(1)
        k(f'v_add_f32 v{m}, v{X}, v{X+1}')
        if not OPT['ninf']: k(f'v_mul_f32 v{m}, v{m}, v{vVal}')
        allred('v_add_f32', m)
        k(f'v_rcp_f32 v{m}, v{m}')
        k.nop(1)
        k(f'v_pk_mul_f32 {vr(X,2)}, {vr(X,2)}, {vr(m,2)} op_sel_hi:[1,0]')
    else:
        l_, M, sc = R+10, R+12, R+14
        def dpp(op, r, rot): k(f'{op}_dpp v{r}, v{r}, v{r} row_ror:{rot} row_mask:0xf bank_mask:0xf')
        k(f'v_max_f32 v{m}, v{X}, v{X+1}')
        for rot in (8, 4, 2, 1):
            k.nop(2); dpp('v_max_f32', m, rot)
        k(f'v_pk_add_f32 {vr(X,2)}, {vr(X,2)}, {vr(m,2)} op_sel_hi:[1,0] neg_lo:[0,1] neg_hi:[0,1]')
        k(f'v_mov_b32 v{M}, v{m}')
        k(f'v_exp_f32 v{X}, v{X}')
        k(f'v_mov_b32 v{t}, v{m}')
        k(f'v_exp_f32 v{X+1}, v{X+1}')
        k.nop(1)
        k(f'v_add_f32 v{l_}, v{X}, v{X+1}')
        k(f'v_permlane16_swap_b32 v{M}, v{t}')
        k(f'v_mul_f32 v{l_}, v{l_}, v{vVal}')
        k(f'v_max_f32 v{M}, v{M}, v{t}')
        k(f'v_sub_f32 v{sc}, v{m}, v{M}')
        dpp('v_add_f32', l_, 8)
        k(f'v_exp_f32 v{sc}, v{sc}')
        k.nop(1)
        dpp('v_add_f32', l_, 4)
        k(f'v_pk_mul_f32 {vr(X,2)}, {vr(X,2)}, {vr(sc,2)} op_sel_hi:[1,0]')
        k.nop(1)
        dpp('v_add_f32', l_, 2)
        k.nop(2)
        dpp('v_add_f32', l_, 1)
        k(f'v_mul_f32 v{l_}, v{l_}, v{sc}')
        k(f'v_mov_b32 v{t}, v{l_}')
        k.nop(2)
        k(f'v_permlane16_swap_b32 v{l_}, v{t}')
        k(f'v_add_f32 v{l_}, v{l_}, v{t}')
        k(f'v_rcp_f32 v{l_}, v{l_}')
        k.nop(1)
        k(f'v_pk_mul_f32 {vr(X,2)}, {vr(X,2)}, {vr(l_,2)} op_sel_hi:[1,0]')
    k(f'v_cvt_pk_bf16_f32 v{X}, v{X}, v{X+1}')
    k(f'v_min_u32 v{X}, -2, v{X}')
    if OPT['kpos'] == 'soft':
        body_ = k.lines[mark:]; k.lines = k.lines[:mark]; L = key_list()
        for x in body_:
            if x == 's_nop 1' and L: k(L.pop(0)); k('s_nop 0')
            else: k(x)
        assert not L
    publish(k, [f'buffer_store_dword v{X}, v{vPO}, {WS}, s{x} offen' for x in [sP, 47][:OPT['prep']]])
    stamp(k, 2, stamps)
    if OPT['abar']: k('s_barrier')
    if stamps and OPT['tw']:
        k('s_waitcnt vmcnt(0)')
        stamp(k, 3, stamps)
    load_flag()
    if OPT['kdel']: k(f"s_sleep {OPT['kdel']}")
    load_keys(OPT['kpos'] != 'soft')
    if OPT['sleepA']: k(f"s_sleep {OPT['sleepA']}")
    k(f's_add_u32 s{sUM}, s{sUM}, {UF_SEG}')
    k(f's_add_u32 s{sM}, s{sM}, {MEM_T}')
    k(f's_add_u32 s{sP}, s{sP}, {PB_T}')
    if stamps: k(f's_add_u32 s{sST}, s{sST}, 16')
    k(f's_add_u32 s{sSTEP}, s{sSTEP}, 1')
    k(f's_cmp_lt_u32 s{sSTEP}, {NSTEP}')
    k('s_cbranch_scc1 L_A_loop')
    diag(k, 5)
    edge(k, stamps, 8)
    k('s_waitcnt vmcnt(0)')
    k('s_endpgm')
    k.flush_cold()

def role_B(k, stamps=False, wait_u=None):
    WS = f's[{SWS}:{SWS+3}]'
    vLane, vL16, vG0, vG1, vIdx = 1, 2, 3, 4, 5
    vWL, vPT, vPM, vRW, vRR, vL4 = 6, 7, 8, 9, 10, 11
    vC = 12
    vM = 16
    vA = 44
    vU = 76
    vTm = 108
    vUi = 140
    vUm = 172
    vRR2 = 188
    vKeep, vFl = 191, 15
    vD = vTm
    vG = vTm + 16
    vP = [vM, vA]
    def W(gi, kb):
        i = gi*5 + kb
        return (256 + 8*i) if i < 32 else (192 + 8*(i-32))
    LM, LRED, LW = 0, 7168, 16384
    k.label('L_roleB')
    k(f's_sub_u32 s{sID}, s{sROLE}, 16')
    common_lane_setup(k, vLane, vL16, vG0, vG1, vIdx, vC)
    k(f's_lshl_b32 s{sT0}, s{sWAVE}, 2')
    k(f's_mul_i32 s{sT0}, s{sT0}, 28')
    k(f's_lshl_b32 s{sT1}, s{sID}, 1')
    k(f's_add_u32 s{sT0}, s{sT0}, s{sT1}')
    k(f's_mul_i32 s35, s{sT0}, 14336')
    k(f's_add_u32 s35, s35, {WTB}')
    k(f's_lshl_b32 s37, s{sWAVE}, 15')
    k(f's_add_u32 s37, s37, {LW}')
    k(f'v_add_u32 v{vWL}, s37, v{vL16}')
    for j in range(7):
        k(f's_add_u32 s{50+j}, s{sWAVE}, {(4*j) % 7}')
        k(f's_sub_u32 s40, s{50+j}, 7')
        k(f's_cmp_ge_u32 s{50+j}, 7')
        k(f's_cselect_b32 s{50+j}, s40, s{50+j}')
        k(f's_lshl_b32 s{50+j}, s{50+j}, 10')
    k(f's_lshl_b32 s{sX}, s{sID}, 15')
    k(f's_lshl_b32 s40, s{sWAVE}, 13')
    k(f's_add_u32 s{sX}, s{sX}, s40')
    k(f's_add_u32 s{sX}, s{sX}, {UF}')
    def ldu(j, s0=sX):
        hh, T = j >> 1, j & 1
        r = vU + 16*(hh>>1) + 8*T + 4*(hh&1)
        return f'buffer_load_dwordx4 {vr(r,4)}, v{vL16}, {WS}, s{s0 if j<4 else sT0} offen offset:{(j&3)*1024} ' + OPT['uf']
    k(f'v_add_u32 v{vG1}, s51, v{vL16}')
    def acc(gi): return vA + 4*gi
    def cvt(gi, h):
        hh, T = gi>>1, gi&1
        d = vUm + 8*T + 4*(hh>>1) + 2*h + (hh&1)
        a = acc(gi) + 2*h
        k(f'v_cvt_pk_bf16_f32 v{d}, v{a}, v{a+1}')
    def lw1(gi, f):
        k.ds(f'ds_read_b128 {vr(vTm+16*(gi&1)+4*f,4)}, v{vWL} offset:{gi*4096+f*1024}', f'w{gi}')
    def MB(gi, j):
        w = xr(W(gi,j),8) if j < 5 else vr(vTm + 16*(gi&1) + 8*(j-5), 8)
        k(f'v_smfmac_f32_16x16x64_bf16 {vr(acc(gi),4)}, {vr(vM+4*j,4)}, {w}, v{vIdx}')
    def um0(gi, n):
        k(f's_waitcnt vmcnt({n})')
        for f in range(4): lw1(gi, f)
        for j in range(7):
            if j == 5: k.wds0()
            MB(gi, j)
            if gi >= 1 and j == 4: cvt(gi-1, 0); cvt(gi-1, 1)
    if OPT['s0']:
        for j in range(7):
            k(f's_add_u32 s40, s{50+j}, {MEM}')
            k(f'buffer_load_dwordx4 {vr(vM+4*j,4)}, v{vL16}, {WS}, s40 offen')
        for r in range(0, 32, 2): k(f'v_mov_b64 {vr(vA+r,2)}, 0')
    k('s_mov_b32 s58, 0')
    for gi in range(8):
        if gi == 5: mode_issue(k, 188)
        if OPT['u0'] == 'early' and gi == 5:
            k(f's_mov_b32 s40, {flag(F_U0)}')
            k(f'buffer_load_dword v{vFl}, off, {WS}, s40 sc1')
        if OPT['u0'] == 'early' and gi == 7:
            le = k.newlabel('Lue')
            k('s_waitcnt vmcnt(28)')
            k(f'v_cmp_le_u32 vcc, 64, v{vFl}')
            k(f's_cbranch_vccz {le}')
            k(f's_add_u32 s{sT0}, s{sX}, 4096')
            for j in range(8): k(ldu(j))
            k(f's_add_u32 s{sX}, s{sX}, {UF_SEG}')
            k('s_mov_b32 s58, 1')
            k.label(le)
        k(f's_add_u32 s36, s35, {(gi>>1)*28*14336 + (gi&1)*14336}')
        for j in range(7):
            k(f's_lshl_b32 s40, s{50+j}, 1')
            k(f's_add_u32 s40, s40, s36')
            if j >= 5:
                k(f's_add_u32 s38, s37, {gi*4096 + (j-5)*2048}')
                k(f's_mov_b32 m0, s38')
                k('s_nop 0')
            for f in range(2):
                if j < 5: k(f'buffer_load_dwordx4 {xr(W(gi, j) + 4*f,4)}, v{vL16}, {WS}, s40 offen offset:{f*1024}')
                else:     k(f'buffer_load_dwordx4 v{vL16}, {WS}, s40 offen offset:{f*1024} lds')
        if OPT['s0'] and gi >= 2: um0(gi-2, 28)
        else: k('s_waitcnt vmcnt(40)')
    g, i = vD, vD+1
    vT = vC
    k(f'v_lshrrev_b32 v{g}, 4, v{vLane}')
    k(f'v_and_b32 v{i}, 15, v{vLane}')
    k(f's_lshl_b32 s40, s{sWAVE}, 11')
    k(f'v_add_u32 v{vPT}, s40, v{vL16}')
    k(f'v_lshrrev_b32 v{vT}, 1, v{g}')
    k(f'v_lshlrev_b32 v{vT}, 8, v{vT}')
    k(f'v_lshl_add_u32 v{vT}, v{i}, 4, v{vT}')
    k(f's_lshl_b32 s40, s{sWAVE}, {10 if PMD else 9}')
    k(f's_add_u32 s40, s40, 8192')
    k(f'v_add_u32 v{vPM}, s40, v{vL16 if PMD else vT}')
    k(f's_lshl_b32 s40, s{sWAVE}, 10')
    k(f's_add_u32 s40, s40, {LRED}')
    k(f'v_add_u32 v{vRW}, s40, v{vL16}')
    k(f'v_and_b32 v{vT}, 3, v{vLane}')
    k(f'v_lshlrev_b32 v{vT}, 6, v{vT}')
    k(f'v_lshrrev_b32 v{vT+1}, 5, v{vLane}')
    k(f'v_lshl_add_u32 v{vT}, v{vT+1}, 5, v{vT}')
    k(f'v_lshrrev_b32 v{vT+1}, 2, v{vLane}')
    k(f'v_and_b32 v{vT+2}, 3, v{vT+1}')
    k(f'v_lshl_add_u32 v{vT}, v{vT+2}, 2, v{vT}')
    k(f'v_bfe_u32 v{vT+2}, v{vLane}, 4, 1')
    k(f'v_lshl_add_u32 v{vT}, v{vT+2}, 8, v{vT}')
    k(f's_and_b32 s40, s{sWAVE}, 1')
    k(f's_lshl_b32 s40, s40, 9')
    k(f's_add_u32 s40, s40, {LRED}')
    k(f'v_add_u32 v{vRR}, s40, v{vT}')
    k(f's_lshl_b32 s40, s{sID}, 1')
    k(f's_and_b32 s41, s{sWAVE}, 1')
    k(f's_add_u32 s40, s40, s41')
    k(f's_lshl_b32 s40, s40, 8')
    k(f'v_lshlrev_b32 v{vL4}, 2, v{vLane}')
    k(f'v_add_u32 v{vL4}, s40, v{vL4}')
    k(f's_mov_b32 s{sSTEP}, 0')
    k(f's_lshr_b32 s{sM}, s{sWAVE}, 1')
    k(f's_mul_i32 s{sM}, s{sM}, {2*MEM_S}')
    k(f's_add_u32 s{sM}, s{sM}, {MEM}')
    k(f's_mov_b32 s47, {MEMX - MEM_S}')
    k(f"s_mov_b32 s49, {MEM + (NREP-1)*MEM_S}")
    k(f's_and_b32 s{sP}, s{sID}, 1')
    k(f"s_mul_i32 s{sP}, s{sP}, {PB_S if OPT['prep'] == 2 else 0}")
    k(f's_add_u32 s{sP}, s{sP}, {PB}')
    k(f's_mul_i32 s{sUM}, s{sWAVE}, {2*28*1024}')
    k(f's_lshl_b32 s40, s{sID}, 11')
    k(f's_add_u32 s{sUM}, s{sUM}, s40')
    k(f's_add_u32 s{sUM}, s{sUM}, {UM}')
    k(f's_mov_b32 s43, s{sUM}')
    def stum(u, T):
        return f'buffer_store_dwordx4 {vr(vUm+8*T+4*u,4)}, v{vL16}, {WS}, s{43 if u==0 else 44} offen offset:{T*1024} ' + OPT['um']
    def lw(gi):
        b = vTm + 16*(gi&1)
        for f in range(4): k.ds(f'ds_read_b128 {vr(b+4*f,4)}, v{vWL} offset:{gi*4096+f*1024}', f'w{gi}')
    def load_u(ahead):
        if wait_u:
            k(f's_mov_b32 s{sT0}, {flag(F_U0)}')
            wait_u(k, sT0, 64, vC, sleep=1)
        k(f's_add_u32 s{sT0}, s{sX}, 4096')
        for j in range(8): k(ldu(j))
        k(f's_add_u32 s{sX}, s{sX}, {UF_SEG}')
    k(f's_mov_b32 s{sSTEP}, 0')
    if OPT['s0']:
        um0(6, 14); um0(7, 0)
    if OPT['u0'] == 'pro': load_u(0)
    if OPT['u0'] == 'early':
        le = k.newlabel('Luf')
        k('s_cmp_eq_u32 s58, 1')
        k(f's_cbranch_scc1 {le}')
        load_u(0)
        k.label(le)
    k('s_waitcnt vmcnt(0)')
    wait_mode(k, 188, True)
    for w in range(1, 4): k(f'v_add_u32 v{vRR2+w-1}, {1024*w}, v{vRR}')
    sw = []
    for o in range(4):
        r = vU + 8*o
        for e in range(4):
            sel = e & 1
            sw.append(f'v_pk_mov_b32 {vr(vUi+8*o+2*e,2)}, {vr(r+(e&2),2)}, {vr(r+4+(e&2),2)} op_sel:[{sel},{sel}]')
    if stamps: k(f's_add_u32 s76, s{sST}, 0x20000')
    edge(k, stamps, 0)
    diag(k, 7)
    if OPT['s0']:
        for x in sw[:8]: k(x)
        k(f'v_mov_b32 v{vFl}, 64')
        stamp(k, 0, stamps)
        k('s_branch L_B_mid')
    k('s_branch L_B_loop')
    k('.p2align 8')
    for _ in range(OPT['padB']): k('s_nop 0')
    k.label('L_B_loop')
    lp = k.newlabel('Lgm')
    def gl():
        sb = 49
        k(f'buffer_load_dwordx4 {vr(vM,4)}, v{vG0}, {WS}, s{sb} offen sc1')
        k(f'buffer_load_dwordx4 {vr(vM+4,4)}, v{vG1}, {WS}, s{sb} offen sc1')
    k(f's_waitcnt vmcnt({NREP})')
    NU = OPT['nu2']
    if OPT['bdel']: k(f"s_sleep {OPT['bdel']}")
    k(f's_add_u32 s{sT0}, s{sX}, {4096 - UF_SEG}')
    k(f's_sub_u32 s{sT1}, s{sX}, {UF_SEG}')
    for j in range(8-NU, 8): k(ldu(j, sT1))
    gl()
    NS = 8 if NU <= 4 else 0
    if NU == 0: NS = 16
    for x in sw[:NS]: k(x)
    for r in range(0, 32, 2): k(f'v_mov_b64 {vr(vA+r,2)}, 0')
    for j in range(2, 7): k(f'v_add_u32 v{vG+j}, s{50+j}, v{vL16}')
    k(f's_add_u32 s45, s{sSTEP}, 1')
    k(f's_lshr_b32 s45, s45, 2')
    k(f's_lshl_b32 s45, s45, 7')
    k(f's_add_u32 s45, s45, {flag(F_U)}')
    k(f's_cmp_eq_u32 s{sSTEP}, 0')
    k(f's_cselect_b32 s45, {flag(F_U0)}, s45')
    k(f's_add_u32 s44, s43, {28*1024}')
    vm = [stum(0,0), stum(0,1), stum(1,0), stum(1,1)] + [ldu(j) for j in range(8)]
    lw(0)
    k(f's_mov_b32 s{sCNT}, 0')
    k(f's_branch {lp}w')
    k.label(lp)
    if OPT['bgs']: k(f"s_sleep {OPT['bgs']}")
    gl()
    k(f's_add_u32 s{sCNT}, s{sCNT}, 1')
    k(f's_cmp_gt_u32 s{sCNT}, s{sT2}')
    k('s_cbranch_scc1 L_fail')
    k.label(lp + 'w')
    k('s_waitcnt vmcnt(1)')
    k(f'v_max3_u32 v{vC}, v{vM}, v{vM+1}, v{vM+2}')
    k('s_waitcnt vmcnt(0)')
    k(f'v_max3_u32 v{vC+1}, v{vM+4}, v{vM+5}, v{vM+6}')
    k(f'v_max3_u32 v{vC}, v{vC}, v{vM+3}, v{vM+7}')
    k(f'v_max_u32 v{vC}, v{vC}, v{vC+1}')
    k(f'v_cmp_eq_u32 vcc, -1, v{vC}')
    k(f's_cbranch_vccnz {lp}')
    stamp(k, 0, stamps)
    k.ds(f'ds_write_b128 v{vG0}, {vr(vM,4)} offset:{LM}')
    k.ds(f'ds_write_b128 v{vG1}, {vr(vM+4,4)} offset:{LM}')
    ls, l2 = k.newlabel('Lbs'), k.newlabel('Lbt')
    k(f's_cmp_eq_u32 s{sSTEP}, 0')
    k(f's_cbranch_scc1 {l2}')
    k(f's_cmp_ge_u32 s{sWAVE}, 2')
    k(f's_cbranch_scc1 {ls}')
    k(f'buffer_store_dword v{vKeep}, v{vL4}, {WS}, s47 offen sc1')
    k(f's_branch {l2}')
    k.label(ls)
    k(f's_cmp_eq_u32 s{sWAVE}, 2')
    k(f's_cselect_b32 s{sT0}, s{sSTEP}, 0')
    k(f's_cmp_le_u32 s{sT0}, 1')
    k(f's_cbranch_scc1 {l2}')
    k(f's_lshl_b32 s{sT0}, s{sSTEP}, 7')
    k(f's_add_u32 s{sT0}, s{sT0}, {flag(F_UM) - 256}')
    k('s_mov_b64 exec, 1')
    k(f'v_mov_b32 v{vC}, 1')
    k(f'buffer_atomic_add v{vC}, off, {WS}, s{sT0}')
    k('s_mov_b64 exec, -1')
    k.label(l2)
    k(f'buffer_load_dword v{vFl}, off, {WS}, s45 sc1')
    for x in vm[:4]: k(x)
    def mid_u():
        lsk = k.newlabel('Lsk')
        k(f's_cmp_ge_u32 s{sSTEP}, {NSTEP-1}')
        k(f's_cbranch_scc1 {lsk}')
        k('s_waitcnt vmcnt(4)')
        if wait_u:
            lu = k.newlabel('Lnu')
            k(f'v_cmp_le_u32 vcc, 32, v{vFl}')
            k(f's_cbranch_vccnz {lu}')
            wait_u(k, 45, 32, vC)
            k.label(lu)
        k(f's_add_u32 s{sT0}, s{sX}, 4096')
        for j in range(8-NU): k(ldu(j))
        k.label(lsk)
        k(f's_add_u32 s{sX}, s{sX}, {UF_SEG}')
    for n in range(16):
        MB(n & 7, n >> 3)
        if n == 5:
            k.wds0(); k('s_barrier')
        if 5 <= n < 10:
            k.ds(f'ds_read_b128 {vr(vM+4*(n-3),4)}, v{vG+n-3} offset:{LM}', f'm{n-3}')
    for gi in range(8):
        for j in range(2, 7):
            if gi == 0: k.wds(f'm{j}')
            if j == 5: k.wds(f'w{gi}')
            MB(gi, j)
            if gi < 7 and j in (2, 3, 5, 6): lw1(gi+1, {2:0, 3:1, 5:2, 6:3}[j])
            if gi >= 1 and j == 4: cvt(gi-1, 0); cvt(gi-1, 1)
        if gi + 1 == OPT['ug'] and gi < 7: mid_u()
    k.label('L_B_mid')
    k(f's_mov_b32 s43, s{sUM}')
    k(f's_add_u32 s{sUM}, s{sUM}, {UM_SEG}')
    for x in sw[NS:]: k(x)
    k.nop(6 if NS == 16 else 0)
    cvt(7, 0); cvt(7, 1)
    for r in range(0, 8, 2): k(f'v_mov_b64 {vr(vD+r,2)}, 0')
    k(f's_cmp_ge_u32 s{sSTEP}, {NSTEP}')
    k('s_cbranch_scc1 L_B_end')
    if OPT['u0'] == 'cold':
        l0, l1 = k.newlabel('Lu0'), k.newlabel('Lu1')
        k(f's_cmp_eq_u32 s{sSTEP}, 0')
        k(f's_cbranch_scc1 {l0}')
        k.label(l1)
        main = k.lines; k.lines = []
        k.label(l0)
        load_u(0)
        k('s_waitcnt vmcnt(0)')
        for x in sw: k(x)
        k(f'v_mov_b32 v{vFl}, 32')
        k(f's_branch {l1}')
        k.cold += k.lines; k.lines = main
    if OPT['ug'] == 8: mid_u()
    stamp(k, 1, stamps)
    if OPT['sleepB']: k(f"s_sleep {OPT['sleepB']}")
    def issue(st):
        P = vP[st]
        return [f'buffer_load_dwordx4 {vr(P,4)}, v{vPT}, {WS}, s{sP} offen ' + OPT['pld'],
                f'buffer_load_dwordx4 {vr(P+4,4)}, v{vPT}, {WS}, s{sP} offen offset:1024 ' + OPT['pld'],
                f'buffer_load_dwordx4 {vr(P+8,4)}, v{vPM}, {WS}, s{sP} offen ' + OPT['pld']]
    def checks(st):
        P = vP[st]
        if OPT['qc']: return [(0, [f'v_max3_u32 v{vC}, v{P+3}, v{P+7}, v{P+11}', f'v_cmp_eq_u32 vcc, -1, v{vC}'])]
        return [(2, [f'v_max3_u32 v{vC}, v{P}, v{P+1}, v{P+2}']),
                (1, [f'v_max3_u32 v{vC+1}, v{P+4}, v{P+5}, v{P+6}', f'v_max3_u32 v{vC}, v{vC}, v{P+3}, v{P+7}']),
                (0, [f'v_max3_u32 v{vC+1}, v{vC+1}, v{P+8}, v{P+9}', f'v_max3_u32 v{vC}, v{vC}, v{P+10}, v{P+11}',
                     f'v_max_u32 v{vC}, v{vC}, v{vC+1}', f'v_cmp_eq_u32 vcc, -1, v{vC}'])]
    def body(st):
        P = vP[st]
        stamp(k, 2, stamps)
        for j in range(3):
            for T in range(2):
                b = vr(vUi + 16*j + 8*T, 8) if j < 2 else vr(vUm + 8*T, 8)
                k(f'v_smfmac_f32_16x16x64_bf16 {vr(vD+4*T,4)}, {vr(P+4*j,4)}, {b}, v{vIdx}')
                if OPT['qc']:
                    n = 2*j + T
                    q = [f'v_max3_u32 v{vC}, v{P}, v{P+1}, v{P+2}', f'v_max3_u32 v{vC+1}, v{P+4}, v{P+5}, v{P+6}', f'v_max3_u32 v{vC}, v{vC}, v{P+8}, v{P+9}',
                         f'v_max3_u32 v{vC}, v{vC}, v{vC+1}, v{P+10}', f'v_cmp_eq_u32 vcc, -1, v{vC}', 's_cbranch_vccnz L_B_redo']
                    k(q[n])
    if OPT['qc']:
        k.cold += ['L_B_redo:', 's_waitcnt vmcnt(0)', 's_nop 15'] + [f'v_mov_b64 {vr(vD+r,2)}, 0' for r in range(0, 8, 2)] + ['s_branch L_B_poll']
        k.label('L_B_poll')
    if OPT['bp2']: poll2(k, issue, checks, body, 'Lpp', OPT['stag'])
    else:
        lp = k.newlabel('Lp1')
        k(f's_mov_b32 s{sCNT}, 0')
        k.label(lp)
        for x in issue(0): k(x)
        k(f's_add_u32 s{sCNT}, s{sCNT}, 1')
        k(f's_cmp_gt_u32 s{sCNT}, s{sT2}')
        k('s_cbranch_scc1 L_fail')
        for rel, ins in checks(0):
            k(f's_waitcnt vmcnt({rel})')
            for x in ins: k(x)
        k(f's_cbranch_vccnz {lp}')
        body(0)
    k(f's_add_u32 s{sM}, s{sM}, {MEM_T}')
    k(f's_add_u32 s47, s47, {MEM_S}')
    k(f's_add_u32 s48, s{sM}, {MEM_S}')
    k(f's_add_u32 s49, s49, {MEM_T}')
    k(f's_add_u32 s{sP}, s{sP}, {PB_T}')
    k.nop(3)
    for r in range(4): k(f'v_permlane32_swap_b32 v{vD+r}, v{vD+4+r}')
    k(f'v_pk_add_f32 {vr(vD,2)}, {vr(vD,2)}, {vr(vD+4,2)}')
    k(f'v_pk_add_f32 {vr(vD+2,2)}, {vr(vD+2,2)}, {vr(vD+6,2)}')
    k.ds(f'ds_write_b128 v{vRW}, {vr(vD,4)}')
    k.wds0()
    k('s_barrier')
    if OPT['rep'] == 3:
        k(f's_cmp_ge_u32 s{sWAVE}, 2')
        k('s_cbranch_scc1 L_B_skip')
    R = vG
    for w in range(4): k.ds(f'ds_read2_b32 {vr(R+2*w,2)}, v{vRR} offset0:{0} offset1:{4}' if w == 0 else
                            f'ds_read2_b32 {vr(R+2*w,2)}, v{vRR2+w-1} offset0:0 offset1:4', f'r{w}')
    k(f's_cmp_eq_u32 s{sMODE}, 1')
    k.wds('r1')
    k(f'v_pk_add_f32 {vr(R,2)}, {vr(R,2)}, {vr(R+2,2)}')
    k.wds('r3')
    k(f'v_pk_add_f32 {vr(R+4,2)}, {vr(R+4,2)}, {vr(R+6,2)}')
    k(f'v_pk_add_f32 {vr(R,2)}, {vr(R,2)}, {vr(R+4,2)}')
    k(f'v_cvt_pk_bf16_f32 v{R}, v{R}, v{R+1}')
    k(f'v_min_u32 v{R}, -2, v{R}')
    publish(k, [f'buffer_store_dword v{R}, v{vL4}, {WS}, s{x} offen' for x in {1: [sM], 2: [sM, 49], 3: [sM, 48, 49]}[NREP]])
    k(f'v_mov_b32 v{vKeep}, v{R}')
    k(f's_cmp_lg_u32 s{sSTEP}, {NSTEP-1}')
    k('s_cbranch_scc1 L_B_skip2')
    k(f'buffer_store_dword v{R}, v{vL4}, {WS}, s47 offen sc1')
    k('s_branch L_B_skip2')
    k.label('L_B_skip')
    k('s_waitcnt vmcnt(0)')
    k.label('L_B_skip2')
    stamp(k, 3, stamps)
    k('s_barrier')
    k(f's_add_u32 s{sSTEP}, s{sSTEP}, 1')
    if stamps: k(f's_add_u32 s{sST}, s{sST}, 16')
    k('s_branch L_B_loop')
    k.label('L_B_end')
    edge(k, stamps, 8)
    for r in range(16): k(f'v_min_u32 v{vUm+r}, -2, v{vUm+r}')
    k(f's_add_u32 s44, s43, {28*1024}')
    for x in vm[:4]: k(x)
    k('s_waitcnt vmcnt(4)')
    k('s_barrier')
    k(f's_cmp_lg_u32 s{sWAVE}, 0')
    k('s_cbranch_scc1 L_exit')
    k('s_mov_b64 exec, 1')
    k(f'v_mov_b32 v{vC}, 1')
    k(f's_mov_b32 s{sT0}, {flag(F_UM + 62)}')
    k(f'buffer_atomic_add v{vC}, off, {WS}, s{sT0}')
    k('s_endpgm')
    k.flush_cold()

def role_P(k, wait_u=None):
    WS = f's[{SWS}:{SWS+3}]'
    vLane, vU, vX, vS, vD = 1, 2, 3, 4, 8
    D = OPT['pfd']; st = OPT['pfs']; sh = 7 if st == 128 else 6
    k.label('L_roleP')
    k(f's_mov_b32 s{sT2}, {POLL_LIMIT}')
    k(f's_sub_u32 s{sID}, s{sROLE}, 30')
    k(f's_lshl_b32 s{sID}, s{sID}, 2')
    k(f's_add_u32 s{sID}, s{sID}, s{sWAVE}')
    k(f'v_and_b32 v{vLane}, 63, v0')
    k(f'v_lshlrev_b32 v{vU}, {sh}, v{vLane}')
    k(f's_mul_i32 s40, s{sID}, {UF_SEG//8}')
    k(f'v_add_u32 v{vU}, s40, v{vU}')
    f2 = 2 if OPT['pf64'] else 1
    for reg, n in ((vX, 28*f2), (vS, PB_T//1024*f2), (vS+1, 7*NREP*f2)):
        k(f'v_min_u32 v{reg}, {n-1}, v{vLane}')
        k(f's_mul_i32 s40, s{sID}, {n}')
        k(f'v_add_lshl_u32 v{reg}, v{reg}, s40, {8 - f2}')
    k(f's_mov_b32 s{sSTEP}, 0')
    k(f's_mov_b32 s{sX}, {UF}')
    k(f's_mov_b32 s{sUM}, {XNS}')
    k(f's_mov_b32 s{sP}, {PB}')
    k(f's_mov_b32 s{sM}, {MEM + MEM_T}')
    k(f's_mov_b32 s41, {MEM - D*MEM_T + (NREP-1)*MEM_S}')
    if OPT['cpf']:
        k('s_getpc_b64 s[44:45]')
        k.label('L_P_pc')
        k('s_sub_u32 s44, s44, L_P_pc-L_roleA')
        k('s_subb_u32 s45, s45, 0')
        k(f's_lshl_b32 s40, s{sID}, 12')
        k(f'v_lshlrev_b32 v20, 6, v{vLane}')
        k('v_add_u32 v20, s40, v20')
        k('v_min_u32 v20, L_P_pc-L_roleA, v20')
        k('v_mov_b32 v21, s45')
        k('v_add_co_u32 v20, vcc, s44, v20')
        k('s_nop 1')
        k('v_addc_co_u32 v21, vcc, 0, v21, vcc')
        k('global_load_dword v22, v[20:21], off')
    if OPT['diag']:
        diag(k, 3)
        k(f'v_lshlrev_b32 v20, 3, v{vLane}')
        k(f's_lshl_b32 s40, s{sWAVE}, 9')
        k(f's_add_u32 s40, s40, {STAMP}')
        k(f'buffer_load_dwordx2 v[22:23], v20, {WS}, s40 offen')
        k('s_waitcnt vmcnt(0)')
        k('v_not_b32 v22, v22')
        k(f'buffer_atomic_umax v22, off, s[{SDBG}:{SDBG+3}], 0 offset:0')
        k(f'buffer_atomic_umax v23, off, s[{SDBG}:{SDBG+3}], 0 offset:4')
    k.label('L_P_loop')
    if OPT['wpf']:
        k(f's_cmp_lg_u32 s{sSTEP}, {D+1}')
        k('s_cbranch_scc1 L_P_nw')
        k(f'v_lshlrev_b32 v20, 7, v{vLane}')
        k(f'v_min_u32 v21, 47, v{vLane}')
        k(f'v_lshlrev_b32 v21, 7, v21')
        k('v_add_u32 v21, 8192, v21')
        k(f's_mul_i32 s42, s{sID}, 7')
        for r in range(7):
            k(f's_add_u32 s43, s42, {r}')
            k('s_and_b32 s44, s43, 3')
            k('s_mul_i32 s44, s44, 112')
            k('s_lshr_b32 s43, s43, 2')
            k('s_lshl_b32 s43, s43, 1')
            k('s_add_u32 s43, s43, s44')
            k('s_mul_i32 s43, s43, 14336')
            k(f's_add_u32 s43, s43, {WTB + 85*14336}')
            k(f'buffer_load_dword v{24+2*r}, v20, {WS}, s43 offen')
            k(f'buffer_load_dword v{25+2*r}, v21, {WS}, s43 offen')
        k.label('L_P_nw')
    k(f's_cmp_le_u32 s{sSTEP}, {D}')
    k('s_cbranch_scc1 L_P_go')
    k(f's_mov_b32 s{sCNT}, 0')
    k.label('L_P_wait')
    k(f'buffer_load_dword v{vD}, off, {WS}, s41 sc1')
    k(f's_add_u32 s{sCNT}, s{sCNT}, 1')
    k(f's_cmp_gt_u32 s{sCNT}, s{sT2}')
    k('s_cbranch_scc1 L_fail')
    k('s_waitcnt vmcnt(0)')
    k(f'v_cmp_eq_u32 vcc, -1, v{vD}')
    k('s_cbranch_vccz L_P_go')
    k('s_sleep 2')
    k('s_branch L_P_wait')
    k.label('L_P_go')
    k(f'buffer_load_dword v{vD+1}, v{vS}, {WS}, s{sP} offen sc1')
    k(f'buffer_load_dword v{vD+2}, v{vS+1}, {WS}, s{sM} offen sc1')
    k(f'buffer_load_dword v{vD+3}, v{vX}, {WS}, s{sUM} offen sc1')
    n = 0 if OPT['apf'] else UF_SEG // 8 // (64*st)
    k(f's_mov_b32 s{sT0}, s{sX}')
    for j in range(n):
        k(f'buffer_load_dword v{vD+4+j}, v{vU}, {WS}, s{sT0} offen sc1')
        k(f's_add_u32 s{sT0}, s{sT0}, {64*st}')
    k(f's_add_u32 s{sX}, s{sX}, {UF_SEG}')
    k(f's_add_u32 s{sUM}, s{sUM}, 28672')
    k(f's_add_u32 s{sP}, s{sP}, {PB_T}')
    k(f's_add_u32 s{sM}, s{sM}, {MEM_T}')
    k(f's_add_u32 s41, s41, {MEM_T}')
    k(f's_add_u32 s{sSTEP}, s{sSTEP}, 1')
    k(f's_cmp_lt_u32 s{sSTEP}, {NSTEP}')
    k('s_cbranch_scc1 L_P_loop')
    k('s_waitcnt vmcnt(0)')
    k('s_endpgm')
```

```python
from chain import *
from prep import srd, f32bits
WS = 's[4:7]'
sH, sBLK, sSEG, sQT, sCG, sJ = 60, 61, 62, 63, 64, 65
vLn, vL16 = 1, 2

def wait_flag(k, off_sgpr, target, vT, name='Lwf', sleep=8):
    lp, dn = k.newlabel(name), k.newlabel(name + 'd')
    k(f's_mov_b32 s{sCNT}, 0')
    k.label(lp)
    k(f'buffer_load_dword v{vT}, off, {WS}, s{off_sgpr} sc1')
    k(f's_add_u32 s{sCNT}, s{sCNT}, 1')
    k(f's_cmp_gt_u32 s{sCNT}, s{sT2}')
    k('s_cbranch_scc1 L_fail')
    k('s_waitcnt vmcnt(0)')
    k(f'v_cmp_le_u32 vcc, {target}, v{vT}')
    k(f's_cbranch_vccnz {dn}')
    k(f's_sleep {sleep}')
    k(f's_branch {lp}')
    k.label(dn)

def wait1(k, off_sgpr, cond, vT, sleep, fast=None):
    lp, dn, l2 = k.newlabel('Lw1'), k.newlabel('Lw1d'), k.newlabel('Lw1f')
    k(f's_cmp_lg_u32 s{sWAVE}, 0')
    k(f's_cbranch_scc1 {dn}')
    k(f's_mov_b32 s{sCNT}, 0')
    k.label(lp)
    k(f'buffer_load_dword v{vT}, off, {WS}, s{off_sgpr} sc1')
    k(f's_add_u32 s{sCNT}, s{sCNT}, 1')
    k(f's_cmp_gt_u32 s{sCNT}, s{sT2}')
    k('s_cbranch_scc1 L_fail')
    k('s_waitcnt vmcnt(0)')
    k(cond)
    k(f's_cbranch_vccnz {dn}')
    if fast:
        k('s_sleep 2')
        k(fast)
        k(f's_cbranch_scc1 {lp}')
    k(f's_sleep {sleep}')
    k(f's_branch {lp}')
    k.label(dn)
    k('s_barrier')

def signal(k, off_sgpr, vT, val=1):
    dn = k.newlabel('Lsg')
    k('s_waitcnt vmcnt(0)')
    k('s_barrier')
    k(f's_cmp_lg_u32 s{sWAVE}, 0')
    k(f's_cbranch_scc1 {dn}')
    k('s_mov_b64 exec, 1')
    k(f'v_mov_b32 v{vT}, {val}')
    k(f'buffer_atomic_add v{vT}, off, {WS}, s{off_sgpr}')
    k('s_mov_b64 exec, -1')
    k.label(dn)

TL = [False]
ACC0 = 32
def acc(lt, tt): return ACC0 + 4*(lt*8 + tt)

def gemm(k, wbase, swap, ntt=8):
    vW = 8
    vXa = 15
    k.vmq = []
    nst = ntt // 4
    k(f's_mul_i32 s41, s{sWAVE}, {14336*nst}')
    k(f's_mul_i32 s40, s{sBLK}, {14336*ntt}')
    k(f's_add_u32 s40, s40, s41')
    k(f's_add_u32 s40, s40, {XNF}')
    k(f's_mul_i32 s42, s{sH}, {28*14336}')
    k(f's_mul_i32 s43, s{sWAVE}, {7*14336}')
    k(f's_add_u32 s42, s42, s43')
    k(f's_add_u32 s42, s42, {wbase}')
    for j in range(14):
        k(f's_add_u32 s{76+j}, s59, {j}')
        k(f's_sub_u32 s43, s{76+j}, 14')
        k(f's_cmp_ge_u32 s{76+j}, 14')
        k(f's_cselect_b32 s{76+j}, s43, s{76+j}')
        k(f's_lshl_b32 s{76+j}, s{76+j}, 10')
    for lt in range(7): k(f'v_add_u32 v{vW+lt}, {lt*14336}, v{vL16}')
    k(f'v_add_u32 v17, 14336, v{vL16}')
    k('s_barrier')
    def stx(j, t):
        k(f's_add_u32 s43, s41, s{76+j}')
        if t: k('s_add_u32 s43, s43, 14336')
        k('s_mov_b32 m0, s43')
        k(f's_add_u32 s44, s40, s{76+j}')
        k.vm(f'buffer_load_dwordx4 v{17 if t else vL16}, {WS}, s44 offen lds', f'x{j}')
    def ldw(j, lt):
        if lt == 0: k(f's_add_u32 s45, s42, s{76+j}')
        k.vm(f'buffer_load_dwordx4 {ar(28*(j%3)+4*lt,4)}, v{vW+lt}, {WS}, s45 offen', f'w{j}')
    def xaddr(j):
        k(f'v_add_u32 v{vXa}, s{76+j}, v{vL16}')
        k(f'v_add_u32 v{vXa+1}, 57344, v{vXa}')
    def ldx(j, tt): k(f'ds_read_b128 {ar(84+32*(j&1)+4*tt,4)}, v{vXa + (tt>>2)} offset:{(tt&3)*14336}')
    for j in range(2):
        for t in range(nst): stx(j, t)
        for lt in range(7): ldw(j, lt)
    for j in (2, 3):
        for t in range(nst): stx(j, t)
    xaddr(0)
    k.wvm('x0')
    k('s_barrier')
    if TL[0] and not swap:
        tstamp(k, 57, 12, 18); k.vmq.append('st')
    for tt in range(ntt): ldx(0, tt)
    for j in range(14):
        if j + 1 < 14: xaddr(j+1)
        k.wvm(f'w{j}', f'x{j+1}', extra='lgkmcnt(0)')
        if j + 1 < 14: k('s_barrier')
        for tt in range(ntt):
            for lt in range(7):
                x, w = ar(84+32*(j&1)+4*tt,4), ar(28*(j%3)+4*lt,4)
                a, b = (w, x) if swap else (x, w)
                c = '0' if j == 0 else vr(acc(lt,tt),4)
                k(f'v_mfma_f32_16x16x32_bf16 {vr(acc(lt,tt),4)}, {a}, {b}, {c}')
                if lt == 1 and j + 1 < 14: ldx(j+1, tt)
                if ntt == 8:
                    if lt == 3 and tt < 2 and j + 4 < 14: stx(j+4, tt)
                    if lt == 5 and tt >= 1 and j + 2 < 14: ldw(j+2, tt-1)
                else:
                    if lt == 3 and tt == 0 and j + 4 < 14: stx(j+4, 0)
                    if lt in (3, 5) and (tt, lt) != (0, 3) and j + 2 < 14: ldw(j+2, 2*tt + (lt == 5) - 1)

def task_U(k, half=False):
    nq = 2 if half else 4
    k.label('T_Uh' if half else 'T_U')
    k(f's_mul_i32 s59, s{sBLK}, 7' if half else f's_min_u32 s59, s{sBLK}, 13')
    gemm(k, WTB, False, 2*nq)
    if TL[0]: tstamp(k, 57, 8, 16)
    k(f's_mul_i32 s40, s{sBLK}, {nq*UF_SEG}')
    k(f's_lshl_b32 s41, s{sH}, 11')
    k(f's_add_u32 s40, s40, s41')
    k(f's_add_u32 s40, s40, {UF}')
    k(f's_mul_i32 s41, s{sWAVE}, 7')
    for lt in range(7):
        k(f's_add_u32 s42, s41, {lt}')
        k(f's_lshr_b32 s43, s42, 1')
        k(f's_lshl_b32 s43, s43, 15')
        k(f's_and_b32 s42, s42, 1')
        k(f's_lshl_b32 s42, s42, 10')
        k(f's_add_u32 s{44+lt}, s40, s43')
        k(f's_add_u32 s{44+lt}, s{44+lt}, s42')
    if OPT['uwin'] and not half:
        lw = k.newlabel('Luw')
        k(f"s_cmp_lt_u32 s{sBLK}, {OPT['uwin']}")
        k(f's_cbranch_scc1 {lw}')
        k(f's_lshl_b32 s40, s{sBLK}, 7')
        k(f"s_add_u32 s40, s40, {flag(F_U) - 128*OPT['uwin']}")
        wait1(k, 40, 'v_cmp_le_u32 vcc, 32, v16', 16, 8)
        k.label(lw)
    for q in range(nq):
        for lt in range(7):
            a, b = acc(lt, 2*q), acc(lt, 2*q+1)
            k(f'v_cvt_pk_bf16_f32 v{a}, v{a}, v{a+1}')
            k(f'v_cvt_pk_bf16_f32 v{a+1}, v{a+2}, v{a+3}')
            k(f'v_cvt_pk_bf16_f32 v{a+2}, v{b}, v{b+1}')
            k(f'v_cvt_pk_bf16_f32 v{a+3}, v{b+2}, v{b+3}')
            k(f'buffer_store_dwordx4 {vr(a,4)}, v{vL16}, {WS}, s{44+lt} offen ' + OPT['ust'])
            k(f's_add_u32 s{44+lt}, s{44+lt}, {UF_SEG}')
    if half: k(f's_mov_b32 s40, {flag(F_U)}')
    else:
        k(f's_lshl_b32 s40, s{sBLK}, 7')
        k(f's_add_u32 s40, s40, {flag(F_U)}')
    signal(k, 40, 3, 2)
    k('s_branch W_next')

def task_Uq(k):
    k.label('T_Uq')
    vW, vAcc = 8, 32
    k.vmq = []
    k(f's_mul_i32 s40, s{sWAVE}, 14336')
    k(f's_add_u32 s40, s40, {XNF}')
    k(f's_mul_i32 s42, s{sH}, {28*14336}')
    k(f's_mul_i32 s43, s{sCG}, {7*14336}')
    k(f's_add_u32 s42, s42, s43')
    k(f's_add_u32 s42, s42, {WTB}')
    for lt in range(7): k(f'v_add_u32 v{vW+lt}, {lt*14336}, v{vL16}')
    R = 6
    def ld(ks):
        b = 32*(ks % R)
        k.vm(f'buffer_load_dwordx4 {ar(b,4)}, v{vL16}, {WS}, s40 offen offset:{(ks&3)*1024}', ks)
        for lt in range(7): k.vm(f'buffer_load_dwordx4 {ar(b+4+4*lt,4)}, v{vW+lt}, {WS}, s42 offen offset:{(ks&3)*1024}', ks)
        if (ks&3) == 3: k('s_add_u32 s40, s40, 4096'); k('s_add_u32 s42, s42, 4096')
    for ks in range(R): ld(ks)
    for ks in range(14):
        k.wvm(ks)
        b = 32*(ks % R)
        for lt in range(7):
            k(f'v_mfma_f32_16x16x32_bf16 {vr(vAcc+4*lt,4)}, {ar(b,4)}, {ar(b+4+4*lt,4)}, {"0" if ks == 0 else vr(vAcc+4*lt,4)}')
        if ks + R < 14: ld(ks + R)
    if TL[0]: tstamp(k, 57, 8, 16)
    k(f's_lshr_b32 s40, s{sWAVE}, 1')
    k(f's_mul_i32 s40, s40, {UF_SEG}')
    k(f's_lshl_b32 s41, s{sH}, 11')
    k(f's_add_u32 s40, s40, s41')
    k(f's_and_b32 s41, s{sWAVE}, 1')
    k(f's_lshl_b32 s41, s41, 3')
    k(f's_add_u32 s40, s40, s41')
    k(f's_add_u32 s40, s40, {UF}')
    k(f's_mul_i32 s41, s{sCG}, 7')
    for lt in range(7):
        a = vAcc + 4*lt
        k(f's_add_u32 s42, s41, {lt}')
        k(f's_lshr_b32 s43, s42, 1')
        k(f's_lshl_b32 s43, s43, 15')
        k(f's_and_b32 s42, s42, 1')
        k(f's_lshl_b32 s42, s42, 10')
        k(f's_add_u32 s43, s43, s42')
        k(f's_add_u32 s43, s43, s40')
        k(f'v_cvt_pk_bf16_f32 v{a}, v{a}, v{a+1}')
        k(f'v_cvt_pk_bf16_f32 v{a+1}, v{a+2}, v{a+3}')
        k(f'buffer_store_dwordx2 {vr(a,2)}, v{vL16}, {WS}, s43 offen sc1')
    k(f's_mov_b32 s40, {flag(F_U0)}')
    signal(k, 40, 3)
    k('s_branch W_next')

def xlane_red(k, op, m, t):
    for sw in ('v_permlane16_swap_b32', 'v_permlane32_swap_b32'):
        k(f'v_mov_b32 v{t}, v{m}')
        k.nop(2)
        k(f'{sw} v{m}, v{t}')
        k(f'{op} v{m}, v{m}, v{t}')

def task_P(k):
    k.label('T_P')
    k(f's_min_u32 s59, s{sBLK}, 13')
    def ptoff():
        k(f's_lshl_b32 s{sSEG}, s{sBLK}, 2')
        k(f's_add_u32 s{sSEG}, s{sSEG}, s{sWAVE}')
        k(f's_mul_i32 s40, s{sSEG}, {PT_SEG}')
        k(f's_add_u32 s40, s40, {PT}')
        k(f's_lshl_b32 s41, s{sH}, 11')
        k(f's_add_u32 s41, s41, s40')
        k(f's_lshr_b32 s42, s{sH}, 1')
        k(f's_lshl_b32 s42, s42, 11')
        k(f's_and_b32 s43, s{sH}, 1')
        k(f's_lshl_b32 s43, s43, 2')
        k(f's_add_u32 s42, s42, s43')
        k(f's_add_u32 s42, s42, s40')
        k(f's_add_u32 s42, s42, 32768')
    ptoff()
    for r in range(4): k(f'v_mov_b32 v{20+r}, -1')
    for qt in range(2):
        k(f'buffer_store_dwordx4 v[20:23], v{vL16}, {WS}, s41 offen offset:{qt*1024} sc1')
        k(f'buffer_store_dword v20, v{vL16}, {WS}, s42 offen offset:{qt*1024} sc1')
        k(f'buffer_store_dword v20, v{vL16}, {WS}, s42 offen offset:{qt*1024+8} sc1')
    gemm(k, WTA, True)
    k(f's_lshl_b32 s40, s{sBLK}, 7')
    k(f's_add_u32 s40, s40, {flag(F_P)}')
    signal(k, 40, 3)
    vE, vO, vG, vI, vMK, vT = 16, 17, 18, 19, 20, 21
    k(f's_mul_i32 s40, s{sWAVE}, 7')
    k(f's_lshr_b32 s40, s40, 1')
    k(f's_lshl_b32 s40, s40, 10')
    k(f's_and_b32 s41, s{sWAVE}, 1')
    k(f's_lshl_b32 s42, s41, 3')
    k(f's_add_u32 s42, s42, s40')
    k(f's_mul_i32 s43, s41, 1016')
    k(f's_add_u32 s43, s43, 8')
    k(f's_add_u32 s43, s43, s40')
    k(f'v_add_u32 v{vE}, s42, v{vL16}')
    k(f'v_add_u32 v{vO}, s43, v{vL16}')
    k(f'v_add_u32 v{vT}, 57344, v{vE}')
    k(f'v_add_u32 v{vT+1}, 57344, v{vO}')
    k('s_barrier')
    for tt in range(8):
        for lt in range(7):
            a = acc(lt, tt)
            k(f'v_cvt_pk_bf16_f32 v{a}, v{a}, v{a+1}')
            k(f'v_cvt_pk_bf16_f32 v{a+1}, v{a+2}, v{a+3}')
            ad = (vE if lt % 2 == 0 else vO) if tt < 4 else (vT if lt % 2 == 0 else vT+1)
            k(f'ds_write_b64 v{ad}, {vr(a,2)} offset:{(tt&3)*14336 + (lt>>1)*1024}')
    k(f's_lshl_b32 s{sSEG}, s{sBLK}, 2')
    k(f's_add_u32 s{sSEG}, s{sSEG}, s{sWAVE}')
    k(f's_mul_i32 s40, s{sSEG}, 28672')
    k(f's_add_u32 s40, s40, {XNS}')
    vKT, vKM, vS = 32, 144, 200
    k(f'v_and_b32 v{vG}, 0x310, v{vL16}')
    k(f'v_bfe_u32 v{vI}, v{vLn}, 1, 2')
    k(f'v_lshl_add_u32 v{vG}, v{vI}, 6, v{vG}')
    k(f'v_bfe_u32 v{vI}, v{vLn}, 3, 1')
    k(f'v_lshl_add_u32 v{vG}, v{vI}, 5, v{vG}')
    k('s_waitcnt lgkmcnt(0)')
    for f in range(28):
        k(f'buffer_load_dwordx4 {vr(vKT+4*f,4)}, v{vG}, {WS}, s40 offen offset:{(f&3)*1024}')
        if (f&3) == 3: k('s_add_u32 s40, s40, 4096')
    k('s_barrier')
    k(f's_mul_i32 s41, s{sWAVE}, 28672')
    k(f'v_add_u32 v{vT}, s41, v{vL16}')
    for f in range(28): k(f'ds_read_b128 {ar(4*f,4)}, v{vT} offset:{f*1024}')
    k(f'v_lshrrev_b32 v{vG}, 4, v{vLn}')
    k(f'v_and_b32 v{vI}, 15, v{vLn}')
    k(f'v_lshrrev_b32 v{vMK}, 1, v{vG}')
    k(f'v_lshlrev_b32 v{vMK}, 8, v{vMK}')
    k(f'v_and_b32 v{vT}, 7, v{vI}')
    k(f'v_lshl_add_u32 v{vMK}, v{vT}, 4, v{vMK}')
    k(f'v_and_b32 v{vT}, 1, v{vG}')
    k(f'v_lshl_add_u32 v{vMK}, v{vT}, 7, v{vMK}')
    k(f'v_lshlrev_b32 v{vT}, 2, v{vG}')
    for r in range(4):
        k(f'v_cmp_gt_u32 s[{44+2*r}:{45+2*r}], v{vT}, v{vI}')
        if r < 3: k(f'v_add_u32 v{vT}, 1, v{vT}')
    k(f'v_cmp_gt_u32 s[52:53], 2, v{vG}')
    St = {(1,0): vS, (1,1): vS+4, (2,1): vS+8, (0,0): vS+12, (0,1): vS+16}
    k('s_waitcnt vmcnt(0) lgkmcnt(0)')
    for ks in range(14):
        for (kt, qt) in ((1,0), (1,1), (2,1)):
            c = '0' if ks == 0 else vr(St[kt,qt],4)
            k(f'v_mfma_f32_16x16x32_bf16 {vr(St[kt,qt],4)}, {vr(vKT+56*(kt-1)+4*ks,4)}, {ar(56*qt+4*ks,4)}, {c}')
    if TL[0]: tstamp(k, 57, 8, vT)
    k(f's_add_u32 s40, s{sSEG}, 63')
    k(f's_and_b32 s40, s40, 63')
    k(f's_mul_i32 s40, s40, {MEM_S}')
    k(f's_add_u32 s40, s40, {MEMX}')
    k(f's_add_u32 s41, s40, 4096')
    lp, dn = k.newlabel('Lpm'), k.newlabel('Lpd')
    k(f's_mov_b32 s{sCNT}, 0')
    k.label(lp)
    for ks in range(14):
        k(f'buffer_load_dwordx4 {vr(vKM+4*ks,4)}, v{vMK}, {WS}, s{40 if ks < 8 else 41} offen offset:{(ks&7)*512} sc1')
    k(f's_add_u32 s{sCNT}, s{sCNT}, 1')
    k(f's_cmp_gt_u32 s{sCNT}, s{sT2}')
    k('s_cbranch_scc1 L_fail')
    k('s_waitcnt vmcnt(0)')
    k(f'v_max3_u32 v{vT}, v{vKM}, v{vKM+1}, v{vKM+2}')
    for r in range(3, 55, 2): k(f'v_max3_u32 v{vT}, v{vT}, v{vKM+r}, v{vKM+r+1}')
    k(f'v_max_u32 v{vT}, v{vT}, v{vKM+55}')
    k(f'v_cmp_eq_u32 vcc, -1, v{vT}')
    k(f's_cbranch_vccz {dn}')
    l2 = k.newlabel('Lpl')
    k(f's_cmp_ge_u32 s{sSEG}, 63')
    k(f's_cbranch_scc1 {lp}')
    k.label(l2)
    k('s_sleep 2')
    k(f's_cmp_ge_u32 s{sSEG}, 60')
    k(f's_cbranch_scc1 {l2}f')
    k(f"s_sleep {OPT['msl']}")
    k.label(l2 + 'f')
    k(f'buffer_load_dword v{vT}, v{vMK}, {WS}, s41 offen offset:2560 sc1')
    k(f's_add_u32 s{sCNT}, s{sCNT}, 1')
    k(f's_cmp_gt_u32 s{sCNT}, s{sT2}')
    k('s_cbranch_scc1 L_fail')
    k('s_waitcnt vmcnt(0)')
    k(f'v_cmp_eq_u32 vcc, -1, v{vT}')
    k(f's_cbranch_vccnz {l2}')
    k(f's_branch {lp}')
    k.label(dn)
    if TL[0]: tstamp(k, 57, 12, vT)
    for ks in range(14):
        for qt in range(2):
            c = '0' if ks == 0 else vr(St[0,qt],4)
            k(f'v_mfma_f32_16x16x32_bf16 {vr(St[0,qt],4)}, {vr(vKM+4*ks,4)}, {ar(56*qt+4*ks,4)}, {c}')
    ptoff()
    k(f'v_mov_b32 v{vT+2}, 0xff800000')
    k.nop(2)
    for d in ((1,0), (2,1)):
        for r in range(4):
            k(f'v_cndmask_b32 v{St[d]+r}, v{St[d]+r}, v{vT+2}, s[{44+2*r}:{45+2*r}]')
    for qt in range(2):
        tiles = [St[0,qt], St[1,qt]] + ([St[2,1]] if qt else [])
        regs = [t + r for t in tiles for r in range(4)]
        m, t, l = 24, 26, 28
        k(f'v_max3_f32 v{m}, v{regs[0]}, v{regs[1]}, v{regs[2]}')
        for i in range(3, len(regs) - 1, 2): k(f'v_max3_f32 v{m}, v{m}, v{regs[i]}, v{regs[i+1]}')
        k(f'v_max_f32 v{m}, v{m}, v{regs[-1]}')
        xlane_red(k, 'v_max_f32', m, t)
        for i in range(0, len(regs), 2):
            k(f'v_pk_add_f32 {vr(regs[i],2)}, {vr(regs[i],2)}, {vr(m,2)} op_sel_hi:[1,0] neg_lo:[0,1] neg_hi:[0,1]')
        for r in regs: k(f'v_exp_f32 v{r}, v{r}')
        k.nop(1)
        k(f'v_pk_add_f32 {vr(l,2)}, {vr(regs[0],2)}, {vr(regs[2],2)}')
        k(f'v_add_f32 v{l}, v{l}, v{l+1}')
        k(f'v_cndmask_b32 v{l}, 0, v{l}, s[52:53]')
        k(f'v_mov_b32 v{l+1}, 0')
        for i in range(4, len(regs), 2): k(f'v_pk_add_f32 {vr(l,2)}, {vr(l,2)}, {vr(regs[i],2)}')
        k(f'v_add_f32 v{l}, v{l}, v{l+1}')
        xlane_red(k, 'v_add_f32', l, t)
        k(f'v_rcp_f32 v{l}, v{l}')
        k.nop(1)
        for i in range(0, len(regs), 2):
            k(f'v_pk_mul_f32 {vr(regs[i],2)}, {vr(regs[i],2)}, {vr(l,2)} op_sel_hi:[1,0]')
        o = 220 + 8*qt
        k(f'v_cvt_pk_bf16_f32 v{o}, v{regs[4]}, v{regs[5]}')
        k(f'v_cvt_pk_bf16_f32 v{o+1}, v{regs[6]}, v{regs[7]}')
        if qt:
            k(f'v_cvt_pk_bf16_f32 v{o+2}, v{regs[8]}, v{regs[9]}')
            k(f'v_cvt_pk_bf16_f32 v{o+3}, v{regs[10]}, v{regs[11]}')
        else:
            k(f'v_mov_b64 {vr(o+2,2)}, 0')
        k(f'v_cvt_pk_bf16_f32 v{o+4}, v{regs[0]}, v{regs[1]}')
        k(f'v_cvt_pk_bf16_f32 v{o+5}, v{regs[2]}, v{regs[3]}')
        for r in range(6):
            if qt or r not in (2, 3): k(f'v_min_u32 v{o+r}, -2, v{o+r}')
        k(f'buffer_store_dwordx4 {vr(o,4)}, v{vL16}, {WS}, s41 offen offset:{qt*1024} sc1')
        k(f'buffer_store_dword v{o+4}, v{vL16}, {WS}, s42 offen offset:{qt*1024} sc1')
        k(f'buffer_store_dword v{o+5}, v{vL16}, {WS}, s42 offen offset:{qt*1024+8} sc1')
    k('s_branch W_next')

def rbf(k, v, sMaskHi):
    k(f'v_cvt_pk_bf16_f32 v{v}, v{v}, v{v}')
    k(f'v_and_b32 v{v}, s{sMaskHi}, v{v}')

def task_V(k):
    k.label('T_V')
    vU, vUM, vP, vD, vT = 32, 96, 128, 152, 16
    k(f's_lshr_b32 s{sBLK}, s{sSEG}, 2')
    k(f's_lshl_b32 s40, s{sBLK}, 7')
    k(f's_add_u32 s40, s40, {flag(F_U)}')
    wait1(k, 40, f'v_cmp_le_u32 vcc, 32, v{vT}', vT, 16)
    k(f's_mov_b32 s40, {flag(F_U0)}')
    wait1(k, 40, f'v_cmp_le_u32 vcc, 64, v{vT}', vT, 16)
    k(f's_mul_i32 s40, s{sSEG}, {UF_SEG}')
    k(f's_lshl_b32 s41, s{sCG}, 16')
    k(f's_add_u32 s40, s40, s41')
    k(f's_lshl_b32 s41, s{sWAVE}, 13')
    k(f's_add_u32 s40, s40, s41')
    k(f's_add_u32 s40, s40, {UF}')
    for bb in range(2):
        for hp in range(2):
            k(f's_add_u32 s41, s40, {bb*32768 + hp*4096}')
            for f in range(4):
                hh, T = 2*hp + (f>>1), f&1
                k(f'buffer_load_dwordx4 {vr(vU+16*(2*bb+T)+4*hh,4)}, v{vL16}, {WS}, s41 offen offset:{f*1024} sc1')
    srd(k, 68, 0, 1835008); srd(k, 72, 96, 1835008)
    vRow, vOff = vT+1, vT+2
    k(f's_lshl_b32 s42, s{sSEG}, 5')
    k(f's_lshl_b32 s43, s{sQT}, 4')
    k(f's_add_u32 s42, s42, s43')
    k(f'v_and_b32 v{vRow}, 15, v{vLn}')
    k(f'v_add_u32 v{vRow}, s42, v{vRow}')
    k(f'v_mul_u32_u24 v{vOff}, 896, v{vRow}')
    k(f'v_lshrrev_b32 v{vT+3}, 4, v{vLn}')
    k(f's_lshl_b32 s42, s{sCG}, 7')
    k(f's_lshl_b32 s43, s{sWAVE}, 5')
    k(f's_add_u32 s42, s42, s43')
    k(f'v_lshl_add_u32 v{vT+3}, v{vT+3}, 3, s42')
    k(f'v_add_u32 v{vOff}, v{vOff}, v{vT+3}')
    vXo = vT+8
    k(f'v_lshrrev_b32 v{vXo}, 4, v{vT+3}')
    k(f'v_lshlrev_b32 v{vXo}, 8, v{vXo}')
    k(f'v_and_b32 v{vXo+1}, 15, v{vT+3}')
    k(f'v_add_u32 v{vXo}, v{vXo}, v{vXo+1}')
    k(f'v_and_b32 v{vXo+1}, 15, v{vLn}')
    k(f'v_lshl_add_u32 v{vXo}, v{vXo+1}, 4, v{vXo}')
    k(f's_lshl_b32 s43, s{sSEG}, 1')
    k(f's_add_u32 s43, s43, s{sQT}')
    k(f's_mul_i32 s43, s43, 14336')
    k(f's_add_u32 s43, s43, {XNF}')
    k('s_waitcnt lgkmcnt(0)')
    k('s_and_b32 s69, s69, 0xffff'); k('s_and_b32 s73, s73, 0xffff')
    vXr, vXn = vT+4, vT+6
    k(f'buffer_load_dwordx2 {vr(vXr,2)}, v{vOff}, s[68:71], 0 offen')
    k(f'buffer_load_dwordx2 {vr(vXn,2)}, v{vXo}, {WS}, s43 offen')
    k(f's_mov_b32 s40, {flag(F_M2)}')
    wait1(k, 40, f'v_cmp_le_u32 vcc, 28, v{vT}', vT, 16)
    vIx = 168
    k(f's_mov_b32 s40, {IDX}')
    for j in range(4): k(f'buffer_load_dwordx4 {vr(vIx+4*j,4)}, off, {WS}, s40 offset:{16*j} sc1')
    vSel, vSig, vY = 184, 185, 188
    k(f'v_mov_b32 v{vSel}, 0x40000000')
    k(f'v_mov_b32 v{vSig}, 0')
    k('s_waitcnt vmcnt(0)')
    for j in range(8):
        k(f'v_cmp_eq_u32 vcc, v{vIx+j}, v{vRow}')
        k(f'v_mov_b32 v{vT}, {j*1792}')
        k('s_nop 0')
        k(f'v_cndmask_b32 v{vSel}, v{vSel}, v{vT}, vcc')
        k(f'v_cndmask_b32 v{vSig}, v{vSig}, v{vIx+8+j}, vcc')
    k(f'v_lshl_add_u32 v{vSel}, v{vT+3}, 1, v{vSel}')
    for q in range(4):
        k(f's_mov_b32 s40, {UPD + q*14336}')
        k(f'buffer_load_dwordx4 {vr(vY+4*q,4)}, v{vSel}, {WS}, s40 offen sc1')
    k('s_waitcnt vmcnt(0)')
    k('s_mov_b32 s54, 0xffff0000')
    for h in range(2):
        k(f'v_pk_add_f32 {vr(vY+2*h,2)}, {vr(vY+2*h,2)}, {vr(vY+4+2*h,2)}')
        k(f'v_pk_add_f32 {vr(vY+8+2*h,2)}, {vr(vY+8+2*h,2)}, {vr(vY+12+2*h,2)}')
        k(f'v_pk_add_f32 {vr(vY+2*h,2)}, {vr(vY+2*h,2)}, {vr(vY+8+2*h,2)}')
    vB, vXf = vY+4, vY+8
    for r in range(4):
        rbf(k, vY+r, 54)
        k(f'v_mul_f32 v{vY+r}, v{vY+r}, v{vSig}')
        rbf(k, vY+r, 54)
        src = vXn + (r>>1)
        k(f'v_lshlrev_b32 v{vB+r}, 16, v{src}' if r % 2 == 0 else f'v_and_b32 v{vB+r}, s54, v{src}')
        k(f'v_add_f32 v{vB+r}, v{vB+r}, v{vY+r}')
        rbf(k, vB+r, 54)
        src = vXr + (r>>1)
        k(f'v_lshlrev_b32 v{vXf+r}, 16, v{src}' if r % 2 == 0 else f'v_and_b32 v{vXf+r}, s54, v{src}')
    k(f's_lshl_b32 s40, s{sBLK}, 7')
    k(f's_add_u32 s40, s40, {flag(F_P)}')
    wait1(k, 40, f'v_cmp_le_u32 vcc, 16, v{vT}', vT, 32)
    k(f's_add_u32 s40, s{sSEG}, 63')
    k(f's_and_b32 s40, s40, 63')
    k(f's_mul_i32 s40, s40, {MEM_S}')
    k(f's_add_u32 s40, s40, {MEMX}')
    wait1(k, 40, f'v_cmp_ne_u32 vcc, -1, v{vT}', vT, OPT['vsl'], f's_cmp_ge_u32 s{sSEG}, 60')
    k(f's_mov_b32 s{sCNT}, 0')
    lastseg = k.newlabel('Lvl')
    k(f's_cmp_eq_u32 s{sSEG}, 63')
    k(f's_cbranch_scc1 {lastseg}')
    k(f's_lshl_b32 s40, s{sSEG}, 7')
    k(f's_add_u32 s40, s40, {flag(F_UM)}')
    wait1(k, 40, f'v_cmp_le_u32 vcc, 14, v{vT}', vT, OPT['usl'], f's_cmp_ge_u32 s{sSEG}, 60')
    k.label(lastseg)
    if TL[0]: tstamp(k, 57, 12, vT)
    k(f's_mul_i32 s40, s{sSEG}, {UM_SEG}')
    k(f's_mul_i32 s41, s{sWAVE}, {2*28672}')
    k(f's_add_u32 s40, s40, s41')
    k(f's_lshl_b32 s41, s{sCG}, 12')
    k(f's_add_u32 s40, s40, s41')
    k(f's_add_u32 s40, s40, {UM}')
    k(f's_add_u32 s41, s40, 28672')
    lp, dn = k.newlabel('Lvu'), k.newlabel('Lvv')
    k.label(lp)
    for u in range(2):
        for ct in range(4):
            k(f'buffer_load_dwordx4 {vr(vUM+8*ct+4*u,4)}, v{vL16}, {WS}, s{40+u} offen offset:{ct*1024} sc1')
    k(f's_cmp_lg_u32 s{sSEG}, 63')
    k(f's_cbranch_scc1 {dn}')
    k(f's_add_u32 s{sCNT}, s{sCNT}, 1')
    k(f's_cmp_gt_u32 s{sCNT}, s{sT2}')
    k('s_cbranch_scc1 L_fail')
    k('s_waitcnt vmcnt(0)')
    k(f'v_max3_u32 v{vT}, v{vUM}, v{vUM+1}, v{vUM+2}')
    for r in range(3, 31, 2): k(f'v_max3_u32 v{vT}, v{vT}, v{vUM+r}, v{vUM+r+1}')
    k(f'v_max_u32 v{vT}, v{vT}, v{vUM+31}')
    k(f'v_cmp_eq_u32 vcc, -1, v{vT}')
    k(f's_cbranch_vccz {dn}')
    k('s_sleep 2')
    k(f's_branch {lp}')
    k.label(dn)
    k(f's_mul_i32 s40, s{sSEG}, {PT_SEG}')
    k(f's_lshl_b32 s41, s{sQT}, 10')
    k(f's_add_u32 s40, s40, s41')
    k(f's_add_u32 s40, s40, {PT}')
    k(f's_lshl_b32 s41, s{sWAVE}, 13')
    k(f's_add_u32 s41, s41, s40')
    k(f's_add_u32 s42, s41, 4096')
    k(f's_lshl_b32 s43, s{sWAVE}, 12')
    k(f's_add_u32 s43, s43, s40')
    k(f's_add_u32 s43, s43, 32768')
    lp, dn = k.newlabel('Lvp'), k.newlabel('Lvq')
    k.label(lp)
    for hh in range(4):
        k(f'buffer_load_dwordx4 {vr(vP+4*hh,4)}, v{vL16}, {WS}, s{41 if hh<2 else 42} offen offset:{(hh&1)*2048} sc1')
    for u in range(2):
        k(f'buffer_load_dwordx4 {vr(vP+16+4*u,4)}, v{vL16}, {WS}, s43 offen offset:{u*2048} sc1')
    k(f's_add_u32 s{sCNT}, s{sCNT}, 1')
    k(f's_cmp_gt_u32 s{sCNT}, s{sT2}')
    k('s_cbranch_scc1 L_fail')
    k('s_waitcnt vmcnt(0)')
    k(f'v_max3_u32 v{vT}, v{vP}, v{vP+1}, v{vP+2}')
    for r in range(3, 23, 2): k(f'v_max3_u32 v{vT}, v{vT}, v{vP+r}, v{vP+r+1}')
    k(f'v_max_u32 v{vT}, v{vT}, v{vP+23}')
    k(f'v_cmp_eq_u32 vcc, -1, v{vT}')
    k(f's_cbranch_vccz {dn}')
    k('s_sleep 2')
    k(f's_cmp_ge_u32 s{sSEG}, 60')
    k(f's_cbranch_scc1 {lp}')
    k(f"s_sleep {OPT['psl']}")
    k(f's_branch {lp}')
    k.label(dn)
    if TL[0]: tstamp(k, 57, 8, vT)
    for hh in range(4):
        for ct in range(4):
            c = '0' if hh == 0 else vr(vD+4*ct,4)
            k(f'v_mfma_f32_16x16x32_bf16 {vr(vD+4*ct,4)}, {vr(vU+16*ct+4*hh,4)}, {vr(vP+4*hh,4)}, {c}')
    k('s_waitcnt vmcnt(0)')
    for u in range(2):
        for ct in range(4):
            k(f'v_mfma_f32_16x16x32_bf16 {vr(vD+4*ct,4)}, {vr(vUM+8*ct+4*u,4)}, {vr(vP+16+4*u,4)}, {vr(vD+4*ct,4)}')
    k(f's_lshl_b32 s40, s{sWAVE}, 12')
    k(f'v_add_u32 v{vT}, s40, v{vL16}')
    k(f's_lshl_b32 s40, s{sWAVE}, 10')
    k(f'v_add_u32 v{vT+3}, s40, v{vL16}')
    k.nop(2)
    for ct in range(4): k(f'ds_write_b128 v{vT}, {vr(vD+4*ct,4)} offset:{ct*1024}')
    k('s_waitcnt lgkmcnt(0)')
    k('s_barrier')
    for w in range(4): k(f'ds_read_b128 {vr(vU+4*w,4)}, v{vT+3} offset:{w*4096}')
    k('s_waitcnt lgkmcnt(0)')
    for h in range(2):
        k(f'v_pk_add_f32 {vr(vU+2*h,2)}, {vr(vU+2*h,2)}, {vr(vU+4+2*h,2)}')
        k(f'v_pk_add_f32 {vr(vU+8+2*h,2)}, {vr(vU+8+2*h,2)}, {vr(vU+12+2*h,2)}')
        k(f'v_pk_add_f32 {vr(vU+2*h,2)}, {vr(vU+2*h,2)}, {vr(vU+8+2*h,2)}')
    for r in range(4):
        rbf(k, vU+r, 54)
        k(f'v_add_f32 v{vU+r}, v{vU+r}, v{vXf+r}')
        rbf(k, vU+r, 54)
        k(f'v_add_f32 v{vU+r}, v{vU+r}, v{vB+r}')
    k(f'v_cvt_pk_bf16_f32 v{vU}, v{vU}, v{vU+1}')
    k(f'v_cvt_pk_bf16_f32 v{vU+1}, v{vU+2}, v{vU+3}')
    k(f'buffer_store_dwordx2 {vr(vU,2)}, v{vOff}, s[72:75], 0 offen')
    if OPT['diag']:
        k('s_waitcnt vmcnt(0)')
        k('v_mov_b32 v31, v0')
        diag(k, 6)
        k('v_mov_b32 v0, v31')
    k('s_branch W_next')

def moe_stage(k, srdreg, pitch, soff, lds, vT):
    k(f'v_lshrrev_b32 v{vT}, 3, v0')
    k(f'v_and_b32 v{vT+1}, 7, v0')
    k(f's_mov_b32 s44, {pitch}')
    k(f'v_mul_lo_u32 v{vT+2}, v{vT}, s44')
    k(f'v_lshl_add_u32 v{vT+2}, v{vT+1}, 4, v{vT+2}')
    k(f'v_bfe_u32 v{vT+3}, v{vT}, 1, 1')
    k(f'v_bfe_u32 v{vT+4}, v{vT}, 3, 1')
    k(f'v_lshl_add_u32 v{vT+3}, v{vT+4}, 1, v{vT+3}')
    k(f'v_lshlrev_b32 v{vT+3}, 1, v{vT+3}')
    k(f'v_xor_b32 v{vT+3}, v{vT+3}, v{vT+1}')
    k(f'v_lshlrev_b32 v{vT+3}, 4, v{vT+3}')
    k(f'v_lshl_add_u32 v{vT+3}, v{vT}, 7, v{vT+3}')
    if lds: k(f'v_add_u32 v{vT+3}, {lds}, v{vT+3}')
    k(f's_mov_b32 s44, s{soff}')
    for r in range(14):
        k(f'buffer_load_dwordx4 {vr(32+4*r,4)}, v{vT+2}, s[{srdreg}:{srdreg+3}], s44 offen')
        k(f's_add_u32 s44, s44, {32*pitch}')
    for r in range(14):
        k(f's_waitcnt vmcnt({13-r})')
        k(f'ds_write_b128 v{vT+3}, {vr(32+4*r,4)} offset:{r*4096}')

def moe_mm(k, lds, vA, vD, vAd, vB):
    for ks in range(14):
        for hh in range(2): k(f'ds_read_b64_tr_b16 {vr(vB+4*ks+2*hh,2)}, v{vAd} offset:{lds + ks*4096 + hh*512}')
    k('s_waitcnt lgkmcnt(0)')
    for ks in range(14):
        k(f'v_mfma_f32_16x16x32_bf16 {vr(vD,4)}, {vr(vA+4*ks,4)}, {vr(vB+4*ks,4)}, {"0" if ks == 0 else vr(vD,4)}')

def moe_traddr(k, vAd, vT):
    k(f'v_bfe_u32 v{vAd}, v{vLn}, 2, 2')
    k(f'v_lshrrev_b32 v{vT}, 4, v{vLn}')
    k(f'v_lshl_add_u32 v{vAd}, v{vT}, 3, v{vAd}')
    k(f'v_lshlrev_b32 v{vAd}, 7, v{vAd}')
    k(f'v_and_b32 v{vT}, 3, v{vLn}')
    k(f'v_lshl_add_u32 v{vAd}, v{vT}, 3, v{vAd}')
    k(f'v_bfe_u32 v{vT}, v{vLn}, 3, 1')
    k(f'v_bfe_u32 v{vT+1}, v{vLn}, 4, 1')
    k(f'v_lshl_add_u32 v{vT}, v{vT+1}, 1, v{vT}')
    k(f'v_xor_b32 v{vT}, s{sWAVE}, v{vT}')
    k(f'v_lshl_add_u32 v{vAd}, v{vT}, 5, v{vAd}')

def sigmoid(k, v, t):
    k(f'v_mul_f32 v{t}, {f32bits(-1.4426950408889634):#x}, v{v}')
    k(f'v_exp_f32 v{t}, v{t}')
    k.nop(1)
    k(f'v_add_f32 v{t}, 1.0, v{t}')
    k(f'v_rcp_f32 v{v}, v{t}')
    k.nop(1)

def task_M1(k):
    k.label('T_M1')
    vT = 16
    srd(k, 68, 72, 1605632); srd(k, 72, 80, 1605632)
    vK = 160
    k(f's_mov_b32 s40, {RR}')
    k(f's_add_u32 s41, s40, 4096')
    for j in range(8): k(f'buffer_load_dwordx4 {vr(vK+4*j,4)}, v{vL16}, {WS}, s{40 + (j>>2)} offen offset:{(j&3)*1024}')
    k(f'v_lshlrev_b32 v{vT}, 2, v{vLn}')
    k(f'v_sub_u32 v{vT}, 0xffff, v{vT}')
    k('s_mov_b32 s54, 0xffff0000')
    k('s_waitcnt vmcnt(0) lgkmcnt(0)')
    k('s_and_b32 s69, s69, 0xffff'); k('s_and_b32 s73, s73, 0xffff')
    for j in range(32):
        r = vK + j
        k(f'v_ashrrev_i32 v{vT+1}, 31, v{r}')
        k(f'v_or_b32 v{vT+1}, 0x80000000, v{vT+1}')
        k(f'v_xor_b32 v{r}, v{r}, v{vT+1}')
        k(f'v_subrev_u32 v{vT+1}, {(j>>2)*256 + (j&3)}, v{vT}')
        k(f'v_and_or_b32 v{r}, v{r}, s54, v{vT+1}')
    m, t = vT+2, vT+3
    for it in range(8):
        k(f'v_max3_u32 v{m}, v{vK}, v{vK+1}, v{vK+2}')
        for r in range(3, 31, 2): k(f'v_max3_u32 v{m}, v{m}, v{vK+r}, v{vK+r+1}')
        k(f'v_max_u32 v{m}, v{m}, v{vK+31}')
        for rot in (8, 4, 2, 1):
            k.nop(2)
            k(f'v_max_u32_dpp v{m}, v{m}, v{m} row_ror:{rot} row_mask:0xf bank_mask:0xf')
        xlane_red(k, 'v_max_u32', m, t)
        k.nop(1)
        k(f'v_readfirstlane_b32 s{76+it}, v{m}')
        if it < 7:
            for j in range(32):
                k(f'v_cmp_eq_u32 vcc, v{m}, v{vK+j}')
                k('s_nop 1')
                k(f'v_cndmask_b32 v{vK+j}, v{vK+j}, 0, vcc')
    vKy, vIx = vT+4, vT+5
    k(f'v_mov_b32 v{vKy}, s76')
    k(f'v_and_b32 v{t}, 7, v{vLn}')
    for j in range(1, 8):
        k(f'v_cmp_eq_u32 vcc, {j}, v{t}')
        k(f'v_mov_b32 v{m}, s{76+j}')
        k('s_nop 0')
        k(f'v_cndmask_b32 v{vKy}, v{vKy}, v{m}, vcc')
    k(f'v_and_b32 v{vIx}, 0xffff, v{vKy}')
    k(f'v_sub_u32 v{vIx}, 0xffff, v{vIx}')
    sk = k.newlabel('Lm1s')
    k(f's_or_b32 s40, s{sJ}, s{sWAVE}')
    k('s_cmp_lg_u32 s40, 0')
    k(f's_cbranch_scc1 {sk}')
    k(f'v_and_b32 v{m}, s54, v{vKy}')
    k(f'v_not_b32 v{t}, v{m}')
    k(f'v_ashrrev_i32 v{t}, 31, v{t}')
    k(f'v_or_b32 v{t}, 0x80000000, v{t}')
    k(f'v_xor_b32 v{m}, v{m}, v{t}')
    k(f'v_and_b32 v{m}, s54, v{m}')
    sigmoid(k, m, t)
    rbf(k, m, 54)
    k(f'v_lshlrev_b32 v{t}, 2, v{vLn}')
    k(f's_mov_b32 s40, {IDX}')
    k('s_mov_b64 exec, 0xff')
    k(f'buffer_store_dword v{vIx}, v{t}, {WS}, s40 offen sc1')
    k(f'buffer_store_dword v{m}, v{t}, {WS}, s40 offen offset:32 sc1')
    k('s_mov_b64 exec, -1')
    k.label(sk)
    vA = 96
    k(f'v_lshrrev_b32 v{m}, 4, v{vIx}')
    k(f'v_mul_u32_u24 v{m}, 14336, v{m}')
    k(f'v_and_b32 v{t}, 15, v{vIx}')
    k(f'v_lshl_add_u32 v{m}, v{t}, 4, v{m}')
    k(f'v_lshrrev_b32 v{t}, 4, v{vLn}')
    k(f'v_lshl_add_u32 v{m}, v{t}, 8, v{m}')
    k(f's_mov_b32 s40, {XNF}')
    for ks in range(14):
        k(f'buffer_load_dwordx4 {vr(vA+4*ks,4)}, v{m}, {WS}, s40 offen offset:{(ks&3)*1024}')
        if (ks&3) == 3: k('s_add_u32 s40, s40, 4096')
    k('s_barrier')
    k(f's_lshl_b32 s43, s{sJ}, 7')
    moe_stage(k, 68, 3584, 43, 0, 24)
    moe_stage(k, 72, 3584, 43, 57344, 24)
    vAd = vT
    moe_traddr(k, vAd, vT+1)
    k(f'v_add_u32 v{vT+1}, 57344, v{vAd}')
    k('s_waitcnt lgkmcnt(0)')
    k('s_barrier')
    vG, vUu = 24, 28
    moe_mm(k, 0, vA, vG, vAd, 32)
    moe_mm(k, 0, vA, vUu, vT+1, 160)
    k(f'v_lshrrev_b32 v{vT+2}, 4, v{vLn}')
    k(f'v_mul_u32_u24 v{vT+2}, {4*3584}, v{vT+2}')
    k(f'v_and_b32 v{vT+3}, 15, v{vLn}')
    k(f'v_lshl_add_u32 v{vT+2}, v{vT+3}, 1, v{vT+2}')
    k(f's_lshl_b32 s40, s{sWAVE}, 5')
    k(f's_add_u32 s40, s40, s43')
    k(f's_add_u32 s40, s40, {HB}')
    k.nop(4)
    k('s_mov_b32 exec_hi, 0')
    for r in range(4):
        rbf(k, vG+r, 54); rbf(k, vUu+r, 54)
        k(f'v_mov_b32 v{vT+4}, v{vG+r}')
        sigmoid(k, vT+4, vT+5)
        k(f'v_mul_f32 v{vG+r}, v{vG+r}, v{vT+4}')
        rbf(k, vG+r, 54)
        k(f'v_mul_f32 v{vG+r}, v{vG+r}, v{vUu+r}')
        k(f'v_cvt_pk_bf16_f32 v{vG+r}, v{vG+r}, v{vG+r}')
        k(f'buffer_store_short v{vG+r}, v{vT+2}, {WS}, s40 offen sc1')
        k(f's_add_u32 s40, s40, 3584')
    k('s_mov_b64 exec, -1')
    k(f's_mov_b32 s40, {flag(F_M1)}')
    signal(k, 40, 3)
    k('s_branch W_next')

def task_M2(k):
    k.label('T_M2')
    vT = 16
    srd(k, 68, 88, 1605632)
    k(f's_mul_hi_u32 s45, s{sJ}, {(1<<32)//7 + 1}')
    k(f's_mul_i32 s46, s45, 7')
    k(f's_sub_u32 s46, s{sJ}, s46')
    k(f's_mul_i32 s43, s45, {448*896}')
    k(f's_lshl_b32 s40, s46, 7')
    k(f's_add_u32 s43, s43, s40')
    k('s_waitcnt lgkmcnt(0)')
    k('s_and_b32 s69, s69, 0xffff')
    k('s_barrier')
    moe_stage(k, 68, 896, 43, 0, 24)
    vAd = vT
    moe_traddr(k, vAd, vT+1)
    k(f's_mov_b32 s40, {flag(F_M1)}')
    wait_flag(k, 40, 28, vT+1)
    vA = 96
    k(f'v_and_b32 v{vT+1}, 7, v{vLn}')
    k(f'v_mul_u32_u24 v{vT+1}, 3584, v{vT+1}')
    k(f'v_lshrrev_b32 v{vT+2}, 4, v{vLn}')
    k(f'v_lshl_add_u32 v{vT+1}, v{vT+2}, 4, v{vT+1}')
    k(f's_mul_i32 s40, s45, 896')
    k(f's_add_u32 s40, s40, {HB}')
    for ks in range(14): k(f'buffer_load_dwordx4 {vr(vA+4*ks,4)}, v{vT+1}, {WS}, s40 offen offset:{ks*64} sc1')
    k('s_waitcnt vmcnt(0) lgkmcnt(0)')
    k('s_barrier')
    moe_mm(k, 0, vA, 24, vAd, 32)
    k(f'v_mul_u32_u24 v{vT+2}, {4*1792}, v{vT+2}')
    k(f'v_and_b32 v{vT+3}, 15, v{vLn}')
    k(f'v_lshl_add_u32 v{vT+2}, v{vT+3}, 2, v{vT+2}')
    k(f's_mul_i32 s40, s45, 14336')
    k(f's_lshl_b32 s41, s46, 8')
    k(f's_add_u32 s40, s40, s41')
    k(f's_lshl_b32 s41, s{sWAVE}, 6')
    k(f's_add_u32 s40, s40, s41')
    k(f's_add_u32 s40, s40, {UPD}')
    k('s_mov_b32 exec_hi, 0')
    for r in range(4):
        k(f'buffer_store_dword v{24+r}, v{vT+2}, {WS}, s40 offen sc1')
        k(f's_add_u32 s40, s40, 1792')
    k('s_mov_b64 exec, -1')
    k(f's_mov_b32 s40, {flag(F_M2)}')
    signal(k, 40, 3)
    k('s_branch W_next')

LTK = 163832
Q_U2, Q_M1, Q_M2, Q_P0 = 0, 96, 124, 152
Q_G = Q_P0 + 48
Q_T = Q_G + 13*72
Q_END = Q_T + 3*56
DBG = 's[8:11]'

def tstamp(k, sOff, off, vT=3):
    k('s_memrealtime s[30:31]')
    k('s_waitcnt lgkmcnt(0)')
    k(f'v_mov_b32 v{vT}, s30')
    k(f'buffer_store_dword v{vT}, off, {WS}, s{sOff} offset:{off}')

def worker(k, pref=0, tl=False):
    TL[0] = tl
    def tl_start(base):
        if not tl: return
        k(f's_add_u32 s57, s42, {base}')
        k('s_lshl_b32 s57, s57, 4')
        k(f's_add_u32 s57, s57, {STAMP + 0x40000}')
        tstamp(k, 57, 0)
    k.label('L_worker')
    k(f'v_and_b32 v{vLn}, 63, v0')
    k(f'v_lshlrev_b32 v{vL16}, 4, v{vLn}')
    k(f's_mov_b32 s{sT2}, {POLL_LIMIT}')
    k(f's_mov_b32 s{sSTEP}, 255')
    k(f's_add_u32 s42, s2, {7 - pref}')
    k('s_and_b32 s42, s42, 7')
    k('s_lshl_b32 s42, s42, 5')
    k('s_lshr_b32 s41, s2, 3')
    k('s_add_u32 s42, s42, s41')
    tl_start(1536)
    k(f's_mul_hi_u32 s{sH}, s42, {(1<<32)//14 + 1}')
    k(f's_mul_i32 s41, s{sH}, 14')
    k(f's_sub_u32 s{sBLK}, s42, s41')
    k(f's_mov_b32 s{sCG}, s{sBLK}')
    k(f's_cmp_lt_u32 s{sBLK}, 4')
    k('s_cbranch_scc1 T_Uq')
    k(f's_sub_u32 s{sBLK}, s{sBLK}, 4')
    k(f's_cmp_lg_u32 s{sBLK}, 0')
    k('s_cbranch_scc1 T_U')
    k(f's_mov_b32 s{sBLK}, 1')
    k('s_branch T_Uh')
    k.label('W_next')
    if tl: tstamp(k, 57, 4)
    k(f's_cmp_lg_u32 s{sWAVE}, 0')
    k('s_cbranch_scc1 W_bc')
    k('s_mov_b64 exec, 1')
    k('v_mov_b32 v3, 1')
    k(f'buffer_atomic_add v3, off, {DBG}, 0 offset:192 sc0')
    k(f'v_mov_b32 v4, {LTK}')
    k('s_waitcnt vmcnt(0)')
    k('ds_write_b32 v4, v3')
    k('s_waitcnt lgkmcnt(0)')
    k('s_mov_b64 exec, -1')
    k.label('W_bc')
    k('s_barrier')
    k(f'v_mov_b32 v4, {LTK}')
    k('ds_read_b32 v3, v4')
    k('s_waitcnt lgkmcnt(0)')
    k('v_readfirstlane_b32 s42, v3')
    k('s_nop 3')
    tl_start(0)
    k(f's_cmp_ge_u32 s42, {Q_END}')
    k('s_cbranch_scc1 L_exit')
    k(f's_cmp_lt_u32 s42, {Q_M1}')
    k('s_cbranch_scc0 W_q1')
    k(f's_and_b32 s{sH}, s42, 15')
    k(f's_lshr_b32 s{sBLK}, s42, 4')
    k(f's_add_u32 s{sBLK}, s{sBLK}, 10')
    k('s_branch T_U')
    k.label('W_q1')
    k(f's_sub_u32 s{sJ}, s42, {Q_M1}')
    k(f's_cmp_lt_u32 s42, {Q_M2}')
    k('s_cbranch_scc1 T_M1')
    k(f's_sub_u32 s{sJ}, s42, {Q_M2}')
    k(f's_cmp_lt_u32 s42, {Q_P0}')
    k('s_cbranch_scc1 T_M2')
    k(f's_cmp_lt_u32 s42, {Q_G}')
    k('s_cbranch_scc0 W_q2')
    k(f's_sub_u32 s42, s42, {Q_P0}')
    k(f's_and_b32 s{sH}, s42, 15')
    k(f's_lshr_b32 s{sBLK}, s42, 4')
    k('s_branch T_P')
    k.label('W_q2')
    k(f's_cmp_lt_u32 s42, {Q_T}')
    k('s_cbranch_scc0 W_q3')
    k(f's_sub_u32 s42, s42, {Q_G}')
    k(f's_mul_hi_u32 s41, s42, {(1<<32)//72 + 1}')
    k('s_mul_i32 s43, s41, 72')
    k('s_sub_u32 s42, s42, s43')
    k(f's_mov_b32 s{sH}, s42')
    k(f's_add_u32 s{sBLK}, s41, 3')
    k('s_cmp_lt_u32 s42, 16')
    k('s_cbranch_scc1 T_P')
    k('s_sub_u32 s42, s42, 16')
    k('s_mul_i32 s41, s41, 56')
    k('s_add_u32 s42, s42, s41')
    k('s_branch W_v')
    k.label('W_q3')
    k(f's_sub_u32 s42, s42, {Q_T - 13*56}')
    k.label('W_v')
    k(f's_mul_hi_u32 s{sSEG}, s42, {(1<<32)//14 + 1}')
    k(f's_mul_i32 s41, s{sSEG}, 14')
    k('s_sub_u32 s42, s42, s41')
    k('s_cmp_ge_u32 s42, 7')
    k(f's_cselect_b32 s{sQT}, 1, 0')
    k(f's_mul_i32 s41, s{sQT}, 7')
    k(f's_sub_u32 s{sCG}, s42, s41')
    k('s_branch T_V')
    task_U(k); task_U(k, True); task_Uq(k); task_P(k); task_V(k); task_M1(k); task_M2(k)
```
